```python
import torch

def _softmax(x, axis=-1):
    return torch.softmax(x, dim=axis)

def _gelu(x):
    return torch.nn.functional.gelu(x, approximate='tanh')

def _silu(x):
    return torch.nn.functional.silu(x)

def _sigmoid(x):
    return torch.sigmoid(x)

def _layernorm(x, axis=-1, eps=1e-05):
    m = x.mean(dim=axis, keepdim=True)
    v = x.var(dim=axis, keepdim=True, unbiased=False)
    return (x - m) / torch.sqrt(v + eps)

def _scatter_add(tgt, idx, src, axis=0):
    return tgt.clone().index_add_(axis, idx, src)

def _segment_sum(src, seg, n):
    out = torch.zeros((n,) + src.shape[1:], dtype=src.dtype)
    return out.index_add_(0, seg, src)

def _pad(x, pw):
    flat = tuple((v for pair in reversed(pw) for v in pair))
    return torch.nn.functional.pad(x, flat)
kernel_name = 'sequential_preLN__memory_aug_recurrent_mem_tr__dense_activation_relu__prompt'

def setup_inputs():

    _w = lambda a: (lambda t: t.to(torch.bfloat16) if t.is_floating_point() else t)(torch.as_tensor(a))

    def _A_setup():
        B, S, Dm = (1, 2048, 448)
        H, Dh = (16, 256)
        M, seg = (8, 32)
        seg = min(seg, S)
        S = S // seg * seg
        return {'x': _w((lambda *s: torch.randn(*s, dtype=torch.bfloat16) * 0.05)(B, S, Dm)), 'mem0': _w((lambda *s: torch.randn(*s, dtype=torch.bfloat16) * 0.2)(B, M, Dm)), 'Wq': _w((lambda *s: torch.randn(*s, dtype=torch.bfloat16) * 1.6)(Dm, H, Dh) * Dm ** (-0.5)), 'Wk': _w((lambda *s: torch.randn(*s, dtype=torch.bfloat16) * 1.6)(Dm, H, Dh) * Dm ** (-0.5)), 'Wv': _w((lambda *s: torch.randn(*s, dtype=torch.bfloat16) * 0.2)(Dm, H, Dh) * Dm ** (-0.5)), 'Wo': _w((lambda *s: torch.randn(*s, dtype=torch.bfloat16) * 0.2)(H, Dh, Dm) * (H * Dh) ** (-0.5)), 'seg_len': seg}
    _A_in = _A_setup()

    def _B_setup():
        B, S, D, Dff = (1, 2048, 448, 1792)
        return {'x': _w((lambda *s: torch.randn(*s, dtype=torch.bfloat16) * 0.05)(B, S, D)), 'w1': _w((lambda *s: torch.randn(*s, dtype=torch.bfloat16) * 0.05)(D, Dff)), 'w2': _w((lambda *s: torch.randn(*s, dtype=torch.bfloat16) * 0.05)(Dff, D))}
    _B_in = _B_setup()
    return {'A_x': _A_in['x'], 'A_mem0': _A_in['mem0'], 'A_Wq': _A_in['Wq'], 'A_Wk': _A_in['Wk'], 'A_Wv': _A_in['Wv'], 'A_Wo': _A_in['Wo'], 'A_seg_len': _A_in['seg_len'], 'B_x': _B_in['x'], 'B_w1': _B_in['w1'], 'B_w2': _B_in['w2']}

def reference(A_x, A_mem0, A_Wq, A_Wk, A_Wv, A_Wo, A_seg_len, B_x, B_w1, B_w2):

    def _A_ref(x, mem0, Wq, Wk, Wv, Wo, seg_len):
        B, S, Dm = x.shape
        H, Dh = (Wq.shape[1], Wq.shape[2])
        M = mem0.shape[1]
        scale = Dh ** (-0.5)
        n_seg = S // seg_len
        L = M + seg_len
        idx = torch.arange(L)
        mask = (idx[:, None] < M) | (idx[:, None] >= idx[None, :])
        mem = mem0
        outs = []
        for s in range(n_seg):
            xs = x[:, s * seg_len:(s + 1) * seg_len, :].clone()
            h = torch.concatenate([mem, xs], axis=1)
            q = torch.einsum('btd,dhe->bhte', h, Wq)
            k = torch.einsum('btd,dhe->bhte', h, Wk)
            v = torch.einsum('btd,dhe->bhte', h, Wv)
            scores = torch.einsum('bhqe,bhke->bhqk', q, k) * scale
            scores = torch.where(mask[None, None], scores, -1000000000.0)
            p = _softmax(scores, axis=-1)
            o = torch.einsum('bhqk,bhke->bhqe', p, v)
            o = torch.einsum('bhte,hed->btd', o, Wo)
            mem = o[:, :M, :].clone()
            outs.append(o[:, M:, :])
        return torch.concatenate(outs, axis=1)

    def _B_ref(x, w1, w2):
        h = torch.einsum('bsd,df->bsf', x, w1)
        zero = torch.zeros_like(h)
        h = torch.maximum(h, zero)
        return torch.einsum('bsf,fd->bsd', h, w2)
    x = A_x
    h = x + _A_ref(_layernorm(x, axis=-1), A_mem0, A_Wq, A_Wk, A_Wv, A_Wo, A_seg_len)
    h2 = h + _B_ref(_layernorm(h, axis=-1), B_w1, B_w2)
    return h2
```

```python
import re

_REG = re.compile(r'^([vas])(?:(\d+)|\[(\d+):(\d+)\])$')

def regs_of(tok):
    tok = tok.strip()
    neg = tok.lstrip('-')
    if neg.startswith('abs(') and neg.endswith(')'):
        neg = neg[4:-1]
    if neg.startswith('|') and neg.endswith('|'):
        neg = neg[1:-1]
    m = _REG.match(neg)
    if m:
        k = m.group(1)
        if m.group(2) is not None:
            return {(k, int(m.group(2)))}
        return {(k, i) for i in range(int(m.group(3)), int(m.group(4)) + 1)}
    if neg in ('vcc', 'vcc_lo', 'vcc_hi'):
        return {('s', 'vcc')}
    if neg in ('exec', 'exec_lo', 'exec_hi'):
        return {('s', 'exec')}
    if neg == 'm0':
        return {('s', 'm0')}
    return set()

TRANS = ('v_exp_f32', 'v_log_f32', 'v_rcp_f32', 'v_rsq_f32', 'v_sqrt_f32', 'v_sin_f32', 'v_cos_f32')

class Ins:
    __slots__ = ('text', 'op', 'rd', 'wr', 'kind', 'passes', 'srcc', 'dpp', 'data')
    def __init__(self, text):
        self.text = text
        t = text.split(';')[0].strip()
        parts = t.split(None, 1)
        op = parts[0]
        self.op = op
        rest = parts[1] if len(parts) > 1 else ''
        ops = [o.strip() for o in rest.split(',')] if rest else []
        j = []
        depth = 0
        for o in ops:
            if depth > 0:
                j[-1] += ',' + o
            else:
                j.append(o)
            depth += o.count('[') - o.count(']') + o.count('(') - o.count(')')
        ops = j
        mods = ''
        if ops:
            last = ops[-1].split(None, 1)
            ops[-1] = last[0]
            mods = last[1] if len(last) > 1 else ''
        R = [regs_of(o) for o in ops]
        self.rd, self.wr = set(), set()
        self.passes = 0
        self.srcc = set()
        self.dpp = False
        self.data = set()
        allr = set().union(*R) if R else set()
        if op.startswith('v_mfma') or op.startswith('v_smfmac'):
            self.kind = 'mfma'
            self.passes = 8 if '32x32' in op else 4
            self.wr = R[0]
            if op.startswith('v_smfmac'):
                self.srcc = R[0]
                self.rd = R[1] | R[2] | R[3]
            else:
                self.srcc = R[3]
                self.rd = R[1] | R[2]
        elif op.startswith('v_'):
            self.kind = 'valu'
            self.dpp = ('_dpp' in op) or ('quad_perm' in mods) or ('row_' in mods)
            if op.startswith('v_cmp'):
                self.wr = R[0]; self.rd = set().union(*R[1:])
            elif op.startswith('v_permlane') :
                self.wr = R[0] | R[1]; self.rd = R[0] | R[1]
            elif op.startswith('v_readfirstlane') or op.startswith('v_readlane'):
                self.wr = R[0]; self.rd = set().union(*R[1:])
            elif '_co_' in op:
                self.wr = R[0] | R[1]; self.rd = set().union(*R[2:])
            else:
                self.wr = R[0]; self.rd = set().union(*R[1:]) if len(R) > 1 else set()
                if op.startswith(('v_fmac', 'v_pk_fmac', 'v_dot2c', 'v_writelane')) or self.dpp:
                    self.rd |= R[0]
                if op.startswith('v_cndmask') and len(R) == 3:
                    self.rd |= {('s', 'vcc')}
        elif op.startswith('ds_'):
            self.kind = 'ds'
            if op.startswith(('ds_read', 'ds_bpermute', 'ds_permute', 'ds_swizzle')) or '_rtn' in op:
                self.wr = R[0]; self.rd = set().union(*R[1:]) if len(R) > 1 else set()
            else:
                self.rd = allr
        elif op.startswith(('buffer_', 'global_', 'flat_')):
            self.kind = 'vmem'
            islds = ' lds' in (' ' + mods) or '_lds_' in op
            if op in ('buffer_wbl2', 'buffer_inv'):
                pass
            elif 'load' in op and not islds:
                self.wr = R[0]; self.rd = set().union(*R[1:])
                if 'd16' in op:
                    self.rd |= R[0]
            elif islds:
                self.rd = allr | {('s', 'm0')}
            elif 'atomic' in op:
                self.rd = allr
                if 'sc0' in mods:
                    self.wr = R[0]
            else:
                self.rd = allr
                if op.endswith(('x3', 'x4')):
                    self.data = R[0] if op.startswith('buffer_') else R[1]
        elif op.startswith('s_'):
            self.kind = 'salu'
            if op.startswith(('s_cmp', 's_cbranch', 's_branch', 's_waitcnt', 's_barrier', 's_nop', 's_sleep',
                              's_endpgm', 's_setprio', 's_bitcmp')):
                self.rd = allr
            else:
                self.wr = R[0] if R else set(); self.rd = set().union(*R[1:]) if len(R) > 1 else set()
                if 'saveexec' in op:
                    self.wr |= {('s', 'exec')}
        else:
            raise ValueError('unknown instruction: ' + text)

class Asm:
    def __init__(self):
        self.items = []
        self.nlab = 0
    def __call__(self, text):
        for line in text.split('\n'):
            line = line.strip()
            if not line or line.startswith(';'):
                continue
            if line.endswith(':'):
                self.items.append(('l', line[:-1]))
            else:
                self.items.append(('i', Ins(line)))
    def raw(self, text):
        self.items.append(('r', text))
    def label(self, name):
        self.items.append(('l', name))
    def newlabel(self, stem='L'):
        self.nlab += 1
        return '%s_%d' % (stem, self.nlab)

    def finish(self):
        out = []
        ti = 0; tm = 0
        last_mfma_t = None; last_mfma_p = 0
        valu_w = {}; trans_w = {}; valu_sw = {}; mfma_w = {}; mfma_c = {}; store_d = {}
        m0_w = None
        generic = None
        def need(ins):
            ni = 0; nm = 0
            def req(pt, ws):
                nonlocal ni
                ni = max(ni, pt + ws + 1)
            def reqm(pt, ws):
                nonlocal nm
                nm = max(nm, pt + ws + 1)
            vr = [r for r in ins.rd if r[0] in 'va']
            vw = [r for r in ins.wr if r[0] in 'va']
            sr = [r for r in ins.rd if r[0] == 's']
            if ins.kind == 'mfma':
                for r in list(vr) + list(ins.srcc):
                    if r in valu_w: req(valu_w[r], 2)
                if generic is not None: req(generic, 2)
                for r in vr:
                    if r in mfma_w: reqm(mfma_w[r][0], mfma_w[r][1] + 4)
                for r in ins.srcc:
                    if r in mfma_w:
                        pt, pp, D = mfma_w[r]
                        if D == frozenset(ins.srcc) and pp == ins.passes: pass
                        else: reqm(pt, pp + 2)
                for r in vw:
                    if r in mfma_w and r not in ins.srcc:
                        reqm(mfma_w[r][0], mfma_w[r][1] + 4)
            else:
                for r in vr + vw:
                    if r in mfma_w: reqm(mfma_w[r][0], mfma_w[r][1] + 4)
                if ins.kind == 'valu':
                    for r in vw:
                        if r in mfma_c: reqm(mfma_c[r][0], mfma_c[r][1] - 1)
                        if r in store_d: req(store_d[r], 2)
                    if ins.dpp or ins.op.startswith('v_permlane'):
                        for r in vr:
                            if r in valu_w: req(valu_w[r], 2)
                        if generic is not None: req(generic, 2)
                    if ins.op.startswith(('v_readfirstlane', 'v_readlane')):
                        for r in vr:
                            if r in valu_w: req(valu_w[r], 1)
                        if generic is not None: req(generic, 1)
                        for r in sr:
                            if r in valu_sw: req(valu_sw[r], 4)
                    if not ins.op.startswith(TRANS):
                        for r in vr:
                            if r in trans_w: req(trans_w[r], 1)
                    for r in sr:
                        if r in valu_sw: req(valu_sw[r], 2)
                    if sr and generic is not None: req(generic, 2)
                else:
                    for r in vw:
                        if r in store_d: req(store_d[r], 1)
                    if ins.kind == 'vmem':
                        for r in sr:
                            if r in valu_sw: req(valu_sw[r], 5)
                        if ('s', 'm0') in ins.rd and m0_w is not None: req(m0_w, 1)
                    if ins.kind == 'salu':
                        for r in sr:
                            if r in valu_sw and r != ('s', 'vcc'): req(valu_sw[r], 1)
                    if ins.kind in ('vmem', 'ds'):
                        for r in vr:
                            if r in trans_w: req(trans_w[r], 1)
            return ni, nm
        def pad(k):
            nonlocal ti, tm
            while k > 0:
                c = min(k, 16)
                out.append('    s_nop %d' % (c - 1))
                ti += c; tm += c; k -= c
        def flush_long():
            k = 0
            for r, (pt, pp, D) in mfma_w.items(): k = max(k, pt + pp + 4 + 1 - tm)
            for r, pt in valu_sw.items():
                if r != ('s', 'vcc'): k = max(k, pt + 5 + 1 - ti)
            for r, pt in store_d.items(): k = max(k, pt + 2 + 1 - ti)
            for r, pt in trans_w.items(): k = max(k, pt + 1 + 1 - ti)
            return k
        for kind, x in self.items:
            if kind == 'r':
                out.append(x); continue
            if kind == 'l':
                pad(flush_long())
                out.append(x + ':')
                generic = ti - 1
                last_mfma_t = None
                continue
            ins = x
            if ins.op.startswith(('s_cbranch', 's_branch')):
                pad(flush_long() - 1)
            ni, nm = need(ins)
            credit = tm
            if ins.kind == 'mfma' and last_mfma_t is not None:
                credit = max(tm, last_mfma_t + last_mfma_p - 1)
            k = ni - ti
            if nm > credit: k = max(k, nm - tm)
            pad(k)
            tm = max(tm, credit)
            out.append('    ' + ins.text)
            if ins.kind == 'mfma':
                D = frozenset(ins.wr)
                for r in ins.wr:
                    mfma_w[r] = (tm, ins.passes, D); valu_w.pop(r, None); trans_w.pop(r, None)
                for r in ins.srcc: mfma_c[r] = (tm, ins.passes)
                last_mfma_t, last_mfma_p = tm, ins.passes
            elif ins.kind == 'valu':
                for r in ins.wr:
                    if r[0] in 'va':
                        valu_w[r] = ti; mfma_w.pop(r, None)
                        if ins.op.startswith(TRANS): trans_w[r] = ti
                        else: trans_w.pop(r, None)
                    else:
                        valu_sw[r] = ti
            else:
                for r in ins.wr:
                    if r[0] in 'va':
                        valu_w.pop(r, None); mfma_w.pop(r, None); trans_w.pop(r, None)
                    else:
                        valu_sw.pop(r, None)
                        if r == ('s', 'm0'): m0_w = ti
                for r in ins.data: store_d[r] = ti
            c = int(ins.text.split()[1].split(';')[0], 0) + 1 if ins.op == 's_nop' else 1
            ti += c; tm += c
            if len(mfma_w) > 64:
                for r in [r for r, v in mfma_w.items() if v[0] + 20 < tm]: del mfma_w[r]
            for d in (valu_sw, store_d, trans_w):
                for r in [r for r, v in d.items() if v + 8 < ti]: del d[r]
        return '\n'.join(out) + '\n'

def vr(base, n=1, k='v'):
    return '%s%d' % (k, base) if n == 1 else '%s[%d:%d]' % (k, base, base + n - 1)
def sr(base, n=1): return vr(base, n, 's')
def ar(base, n=1): return vr(base, n, 'a')

def weave(a, mf, fill_ds, fill_va):
    fd = list(fill_ds); fv = list(fill_va)
    for i, m in enumerate(mf):
        a(m)
        if fd and fd[0][0] <= i:
            a(fd.pop(0)[1])
        if fv and fv[0][0] <= i:
            a(fv.pop(0)[1])
    for _, x in fd: a(x)
    for _, x in fv: a(x)
```

```python
from asmlib import *
import layout as L
from team import *
import prep

A_SEG = 36; A_Z = 37; A_TX = 38; A_U = 39; A_S0 = 40; A_S1 = 41; A_XS = 44
AL_M = 0
AL_E = 8192
AL_ST = 24576
AL_X = 28672
AV = dict(l8=0, pa=1, idx=2, l16=3, mf=12)
TXV = lambda hl, kb: f'a[{(hl*14+kb)*4}:{(hl*14+kb)*4+3}]'
TX8 = lambda hl, b: f'a[{(hl*14+2*b)*4}:{(hl*14+2*b)*4+7}]'
def oreg(p, c):
    i = c*8 + p
    return ('v', 64 + 4*i) if i < 48 else ('a', 224 + 4*(i-48))

def wait_cnt(a, off_sgpr, target, vt):
    l = a.newlabel('L_wc'); d = a.newlabel('L_wcd')
    a(f"""
    s_mov_b32 s{S_SPIN}, 0
    v_mov_b32 v{vt}, 0
{l}:
    buffer_load_dword v{vt+1}, v{vt}, {WSRD}, s{off_sgpr} offen sc1
    s_add_u32 s{S_SPIN}, s{S_SPIN}, 1
    s_waitcnt vmcnt(0)
    v_readfirstlane_b32 s{S_T0}, v{vt+1}
    s_cmp_ge_u32 s{S_T0}, {target}
    s_cbranch_scc1 {d}
    s_sleep 4
    s_cmp_lt_u32 s{S_SPIN}, s{S_LIM}
    s_cbranch_scc1 {l}
    s_mov_b32 s{S_LIM}, 1
{d}:
    """)

def dma_run(a, n, vaddr, sbase, lds_base_sgpr, flags):
    for k in range(n):
        if k % 4 == 0:
            if k: a(f's_add_u32 s{sbase}, s{sbase}, 4096\ns_add_u32 s{lds_base_sgpr}, s{lds_base_sgpr}, 4096')
            a(f's_mov_b32 m0, s{lds_base_sgpr}')
        a(f'buffer_load_dwordx4 v{vaddr}, {WSRD}, s{sbase} offen offset:{(k%4)*1024} lds {flags}')

def attn_role(a, cfg):
    V = AV; xfl = cfg['xflags']; LN = 40
    mf = V['mf']
    a(f"""
    v_mbcnt_lo_u32_b32 v{LN}, -1, 0
    v_mbcnt_hi_u32_b32 v{LN}, -1, v{LN}
    s_load_dwordx2 s[4:5], s[0:1], 0
    s_mov_b32 s{S_LIM}, {SPIN_MAX*8}
    s_lshr_b32 s{A_SEG}, s{S_ROLE}, 1
    s_and_b32 s{A_Z}, s{S_ROLE}, 1
    """)
    common_addrs(a, V, LN)
    a(f"""
    v_lshlrev_b32 v{V['l16']}, 4, v{LN}
    s_waitcnt lgkmcnt(0)
    """)
    prep.srd(a, A_XS, 4, 2048*896)
    q, g, t = LN+1, LN+2, LN+3
    a(f"""
    v_and_b32 v{q}, 15, v{LN}
    v_lshrrev_b32 v{g}, 4, v{LN}
    s_lshl_b32 s{S_T0}, s{A_Z}, 4
    v_add_u32 v{t}, s{S_T0}, v{q}
    v_lshlrev_b32 v{t+1}, 2, v{g}
    v_mov_b32 v{t+2}, 0
    v_mov_b32 v{t+3}, 0xff800000
    """)
    for k in range(8):
        a(f"""
        v_add_u32 v{t+4}, {(k>>2)*16 + (k&3)}, v{t+1}
        v_cmp_gt_u32 vcc, v{t+4}, v{t}
        v_cndmask_b32 v{4+k}, v{t+2}, v{t+3}, vcc
        """)
    a(f"""
    s_lshl_b32 s{A_S0}, s{A_SEG}, 7
    s_add_u32 s{A_S0}, s{A_S0}, {L.CNT_T}
    """)
    if cfg['flags']: wait_cnt(a, A_S0, 28, t)
    a(f"""
    s_mul_i32 s{A_S0}, s{A_SEG}, 28672
    s_mul_i32 s{A_S1}, s{S_WAVE}, 7168
    s_add_u32 s{A_S0}, s{A_S0}, s{A_S1}
    s_add_u32 s{A_S0}, s{A_S0}, {L.XN}
    s_add_u32 s{A_S1}, s{A_S1}, {AL_X}
    """)
    dma_run(a, 7, V['l16'], A_S0, A_S1, '')
    a(f"""
    s_mul_i32 s{A_TX}, s{A_SEG}, 458752
    s_mov_b32 s{A_U}, s{A_TX}
    s_mul_i32 s{S_T0}, s{S_WAVE}, {4*28672}
    s_add_u32 s{A_TX}, s{A_TX}, s{S_T0}
    s_mul_i32 s{S_T0}, s{A_Z}, 14336
    s_add_u32 s{A_TX}, s{A_TX}, s{S_T0}
    s_add_u32 s{A_TX}, s{A_TX}, {L.TX}
    s_mul_i32 s{S_T0}, s{S_WAVE}, {7*16384}
    s_add_u32 s{A_U}, s{A_U}, s{S_T0}
    s_add_u32 s{A_U}, s{A_U}, {L.U}
    """)
    def load_tx():
        for hl in range(4):
            a(f's_add_u32 s{S_T0}, s{A_TX}, {hl*28672}')
            load_1k_run(a, [TXV(hl, kb) for kb in range(14)], V['l16'], S_T0, xfl)
    load_tx()
    a('s_waitcnt vmcnt(56)\ns_barrier')
    KF = 64; SC = 176; LM = 48
    for kt in range(2):
        for kb in range(14):
            a(f"ds_read_b128 v[{KF+(kt*14+kb)*4}:{KF+(kt*14+kb)*4+3}], v{V['l16']} offset:{AL_X+kt*14336+kb*1024}")
    a('s_waitcnt lgkmcnt(0)')
    for hl in range(4):
        a(f's_waitcnt vmcnt({14*(3-hl)})')
        for kb in range(14):
            for kt in range(2):
                c = SC + (hl*2+kt)*4; k = KF+(kt*14+kb)*4
                a(f'v_mfma_f32_16x16x32_bf16 v[{c}:{c+3}], v[{k}:{k+3}], {TXV(hl,kb)}, ' + ('0' if kb == 0 else f'v[{c}:{c+3}]'))
    a(f"""
    s_lshl_b32 s{A_S0}, s{A_SEG}, 7
    s_add_u32 s{A_S0}, s{A_S0}, {L.CNT_U}
    """)
    if cfg['flags']: wait_cnt(a, A_S0, 28, t)
    vq = Q('vmcnt', 63)
    NR = 56
    def uload(i):
        o = []
        if i % 4 == 0: o.append(f's_add_u32 s{S_T1}, s{A_U}, {i*1024}')
        r = (i % NR)*4
        o.append(f"buffer_load_dwordx4 a[{r}:{r+3}], v{V['l16']}, {WSRD}, s{S_T1} offen offset:{(i%4)*1024} {xfl}")
        vq.issue(i)
        return '\n'.join(o)
    a('s_nop 7')
    for i in range(NR): a(uload(i))
    T = 208
    for hl in range(4):
        c = SC + hl*8
        for k in range(8): a(f'v_add_f32 v{c+k}, v{c+k}, v{4+k}')
        a(f"""
        v_max3_f32 v{LM+hl}, v{c}, v{c+1}, v{c+2}
        v_max3_f32 v{LM+hl}, v{LM+hl}, v{c+3}, v{c+4}
        v_max3_f32 v{LM+hl}, v{LM+hl}, v{c+5}, v{c+6}
        v_max_f32 v{LM+hl}, v{LM+hl}, v{c+7}
        """)
        xlane4(a, 'v_max_f32', LM+hl, T)
        for k in range(8): a(f'v_sub_f32 v{c+k}, v{c+k}, v{LM+hl}')
        for k in range(8): a(f'v_exp_f32 v{c+k}, v{c+k}')
        s = LM+4+hl
        a(f'v_add_f32 v{s}, v{c}, v{c+1}')
        for k in range(2, 8): a(f'v_add_f32 v{s}, v{s}, v{c+k}')
        xlane4(a, 'v_add_f32', s, T)
        for k in range(4): a(f'v_cvt_pk_bf16_f32 v{T+4+k}, v{c+2*k}, v{c+2*k+1}')
        if hl == 0:
            a(f"s_lshl_b32 s{S_T0}, s{S_WAVE}, 12\nv_add_u32 v{LN+1}, s{S_T0}, v{V['l16']}")
        a(f'ds_write_b128 v{LN+1}, v[{T+4}:{T+7}] offset:{AL_E+hl*1024}')
    a('s_waitcnt lgkmcnt(0)\ns_barrier')
    EF = 12; OA = 28
    oacc = [28, 32, 36, 56]
    lq = Q('lgkmcnt', 15)
    def eread(i):
        r = EF + (i % 4)*4
        lq.issue(i)
        return f"ds_read_b128 v[{r}:{r+3}], v{V['l16']} offset:{AL_E+(i%16)*1024}"
    for i in range(3): a(eread(i))
    def opost(i):
        c, h = i // 16, i % 16
        k, r = oreg(h >> 1, c); r += 2*(h & 1); A = oacc[i % 4]
        if k == 'v':
            return [f'v_cvt_pk_bf16_f32 v{r}, v{A}, v{A+1}', f'v_cvt_pk_bf16_f32 v{r+1}, v{A+2}, v{A+3}']
        return [f'v_cvt_pk_bf16_f32 v{A}, v{A}, v{A+1}', f'v_cvt_pk_bf16_f32 v{A+2}, v{A+2}, v{A+3}',
                f'v_accvgpr_write_b32 a{r}, v{A}', f'v_accvgpr_write_b32 a{r+1}, v{A+2}']
    for i in range(112):
        for w in (vq.wait(i), lq.wait(i)):
            if w: a(w)
        A = oacc[i % 4]; e = EF + (i % 4)*4; u = (i % NR)*4
        a(f'v_mfma_f32_16x16x32_bf16 v[{A}:{A+3}], v[{e}:{e+3}], a[{u}:{u+3}], 0')
        if i + 3 < 112: a(eread(i+3))
        if i >= 3:
            for x in opost(i-3): a(x)
        if i >= 1 and i - 1 + NR < 112: a(uload(i-1+NR))
    for i in range(109, 112):
        for x in opost(i): a(x)
    a('s_nop 7')
    load_tx()
    XR = 4
    xreg = lambda c: (4 + 2*c) if c < 4 else (56 + 2*(c-4))
    a(f"""
    v_and_b32 v{q}, 15, v{LN}
    v_lshrrev_b32 v{g}, 4, v{LN}
    v_mul_u32_u24 v{t}, 896, v{q}
    v_lshl_add_u32 v{t}, v{g}, 3, v{t}
    s_mul_i32 s{S_T0}, s{S_ROLE}, {16*896}
    s_mul_i32 s{S_T1}, s{S_WAVE}, 224
    s_add_u32 s{S_T0}, s{S_T0}, s{S_T1}
    """)
    for c in range(7):
        a(f'buffer_load_dwordx2 v[{xreg(c)}:{xreg(c)+1}], v{t}, s[{A_XS}:{A_XS+3}], s{S_T0} offen offset:{c*32}')
    MK = 62
    a(f"""
    v_and_b32 v{t+1}, 1, v{q}
    v_lshlrev_b32 v{t+1}, 4, v{t+1}
    v_mov_b32 v{t+2}, 0xffff
    v_lshlrev_b32 v{t+2}, v{t+1}, v{t+2}
    v_lshrrev_b32 v{t+1}, 1, v{q}
    v_lshlrev_b32 v{t+3}, 1, v{g}
    v_mov_b32 v{t+4}, 0
    v_cmp_eq_u32 vcc, v{t+1}, v{t+3}
    v_add_u32 v{t+3}, 1, v{t+3}
    v_cndmask_b32 v{MK}, v{t+4}, v{t+2}, vcc
    v_cmp_eq_u32 vcc, v{t+1}, v{t+3}
    s_lshl_b32 s{S_MOFF}, s{A_SEG}, 13
    s_add_u32 s{S_MOFF}, s{S_MOFF}, {L.MB_Y}
    v_cndmask_b32 v{MK+1}, v{t+4}, v{t+2}, vcc
    """)
    a('s_waitcnt vmcnt(40)')
    poll_m(a, V, sleep=cfg['asleep'])
    lq = Q('lgkmcnt', 15)
    for b in range(7):
        for hf in range(2):
            a(f"ds_read_b64_tr_b16 v[{mf+4*b+2*hf}:{mf+4*b+2*hf+1}], v{V['l8']} offset:{AL_M+b*1024+hf*512}")
            lq.issue(b)
    SA = 40
    a(f"s_lshl_b32 s{A_S0}, s{A_SEG}, 7\ns_add_u32 s{A_S0}, s{A_S0}, {L.CNT_V}")
    for half in range(2):
        for k in range(4): a(f'v_mov_b64 v[{SA+2*k}:{SA+2*k+1}], 0')
        for b in range(7):
            w = lq.wait(b)
            if w: a(w)
            for hh in range(2):
                a(SM(SA+4*hh, mf+4*b, TX8(2*half+hh, b), V['idx']))
        if half == 0:
            for hh in range(2):
                A = SA+4*hh
                a(f'v_add_f32 v{A}, v{A}, v{A+2}\nv_add_f32 v{A+1}, v{A+1}, v{A+3}')
                a(f'v_accvgpr_write_b32 a{2*hh}, v{A}\nv_accvgpr_write_b32 a{2*hh+1}, v{A+1}')
    S = 12
    for hh in range(2):
        A = SA+4*hh
        a(f'v_add_f32 v{S+4+2*hh}, v{A}, v{A+2}\nv_add_f32 v{S+5+2*hh}, v{A+1}, v{A+3}')
    for k in range(4): a(f'v_accvgpr_read_b32 v{S+k}, a{k}')
    if cfg['flags']: wait_cnt(a, A_S0, 56, 36)
    a(f"""
    s_mul_i32 s{A_S0}, s{A_SEG}, 114688
    s_mul_i32 s{A_S1}, s{S_WAVE}, 28672
    s_add_u32 s{A_S0}, s{A_S0}, s{A_S1}
    s_add_u32 s{A_S0}, s{A_S0}, {L.VM}
    """)
    load_1k_run(a, [f'a[{8+4*k}:{8+4*k+3}]' for k in range(28)], V['l16'], A_S0, xfl)
    MX, TT, FX, Z = 20, 24, 28, 32
    H4 = range(4)
    def x4(op, x):
        for h in H4: a(f'v_mov_b32 v{TT+h}, v{x+h}')
        for h in H4: a(f'v_permlane16_swap_b32 v{x+h}, v{TT+h}')
        for h in H4: a(f'{op} v{x+h}, v{x+h}, v{TT+h}')
        for h in H4: a(f'v_mov_b32 v{TT+h}, v{x+h}')
        for h in H4: a(f'v_permlane32_swap_b32 v{x+h}, v{TT+h}')
        for h in H4: a(f'{op} v{x+h}, v{x+h}, v{TT+h}')
    for h in H4: a(f'v_max3_f32 v{MX+h}, v{S+2*h}, v{S+2*h+1}, v{LM+h}')
    x4('v_max_f32', MX)
    for h in H4: a(f'v_sub_f32 v{S+2*h}, v{S+2*h}, v{MX+h}\nv_sub_f32 v{S+2*h+1}, v{S+2*h+1}, v{MX+h}\nv_sub_f32 v{FX+h}, v{LM+h}, v{MX+h}')
    for h in H4: a(f'v_exp_f32 v{S+2*h}, v{S+2*h}\nv_exp_f32 v{S+2*h+1}, v{S+2*h+1}\nv_exp_f32 v{FX+h}, v{FX+h}')
    for h in H4: a(f'v_add_f32 v{Z+h}, v{S+2*h}, v{S+2*h+1}')
    x4('v_add_f32', Z)
    for h in H4: a(f'v_fmac_f32 v{Z+h}, v{FX+h}, v{LM+4+h}')
    for h in H4: a(f'v_rcp_f32 v{Z+h}, v{Z+h}')
    for h in H4: a(f'v_mul_f32 v{S+2*h}, v{S+2*h}, v{Z+h}\nv_mul_f32 v{S+2*h+1}, v{S+2*h+1}, v{Z+h}\nv_mul_f32 v{FX+h}, v{FX+h}, v{Z+h}')
    PM = 36; DG = 40
    for h in H4: a(f'v_cvt_pk_bf16_f32 v{PM+h}, v{S+2*h}, v{S+2*h+1}\nv_cvt_pk_bf16_f32 v{FX+h}, v{FX+h}, v{FX+h}')
    for h in H4: a(f'v_and_b32 v{DG+2*h}, v{FX+h}, v{MK}\nv_and_b32 v{DG+2*h+1}, v{FX+h}, v{MK+1}')
    a(f"""
    s_mul_i32 s{S_T0}, s{S_WAVE}, 3072
    v_add_u32 v{MX}, s{S_T0}, v{V['l16']}
    ds_write_b128 v{MX}, v[{DG}:{DG+3}] offset:{AL_E}
    ds_write_b128 v{MX}, v[{DG+4}:{DG+7}] offset:{AL_E+1024}
    ds_write_b128 v{MX}, v[{PM}:{PM+3}] offset:{AL_E+2048}
    s_waitcnt lgkmcnt(0)
    s_barrier
    """)
    CF = 128
    for k in range(12):
        a(f"ds_read_b128 a[{CF+4*k}:{CF+4*k+3}], v{V['l16']} offset:{AL_E+k*1024}")
    cfd = lambda p: CF + 4*((p >> 1)*3 + (p & 1))
    cfm = lambda u: CF + 4*(u*3 + 2)
    FA = 12
    a('s_waitcnt lgkmcnt(0)')
    for p in range(8):
        for c in range(7):
            k, r = oreg(p, c); A = FA + 4*c
            a(f'v_mfma_f32_16x16x32_bf16 v[{A}:{A+3}], {k}[{r}:{r+3}], a[{cfd(p)}:{cfd(p)+3}], ' + ('0' if p == 0 else f'v[{A}:{A+3}]'))
    for c in range(7):
        a(f's_waitcnt vmcnt({4*(6-c)})')
        for u in range(4):
            A = FA + 4*c; r = 8 + 4*(c*4+u)
            a(f'v_mfma_f32_16x16x32_bf16 v[{A}:{A+3}], a[{r}:{r+3}], a[{cfm(u)}:{cfm(u)+3}], v[{A}:{A+3}]')
    HP = 64; HF = 80
    for c in range(7):
        A = FA + 4*c; x = xreg(c)
        for k in range(2):
            a(f"""
            v_cvt_pk_bf16_f32 v{A+2*k}, v{A+2*k}, v{A+2*k+1}
            v_and_b32 v{A+2*k+1}, 0xffff0000, v{A+2*k}
            v_lshlrev_b32 v{A+2*k}, 16, v{A+2*k}
            v_lshlrev_b32 v{HF+4*c+2*k}, 16, v{x+k}
            v_and_b32 v{HF+4*c+2*k+1}, 0xffff0000, v{x+k}
            v_pk_add_f32 v[{A+2*k}:{A+2*k+1}], v[{A+2*k}:{A+2*k+1}], v[{HF+4*c+2*k}:{HF+4*c+2*k+1}]
            v_cvt_pk_bf16_f32 v{HP+2*c+k}, v{A+2*k}, v{A+2*k+1}
            v_lshlrev_b32 v{HF+4*c+2*k}, 16, v{HP+2*c+k}
            v_and_b32 v{HF+4*c+2*k+1}, 0xffff0000, v{HP+2*c+k}
            """)
    a(f"""
    s_mul_i32 s{A_S0}, s{S_ROLE}, 14336
    s_mul_i32 s{S_T0}, s{S_WAVE}, 3584
    s_add_u32 s{A_S1}, s{A_S0}, s{S_T0}
    s_add_u32 s{A_S1}, s{A_S1}, {L.HB}
    """)
    for c in range(7):
        a(f"buffer_store_dwordx2 v[{HP+2*c}:{HP+2*c+1}], v{V['l8']}, {WSRD}, s{A_S1} offen offset:{c*512} {xfl}")
    s0, nm, d0, st = 40, 42, 44, 48
    a(f'v_pk_add_f32 v[{s0}:{s0+1}], v[{HF}:{HF+1}], v[{HF+2}:{HF+3}]')
    for i in range(2, 14): a(f'v_pk_add_f32 v[{s0}:{s0+1}], v[{s0}:{s0+1}], v[{HF+2*i}:{HF+2*i+1}]')
    a(f'v_add_f32 v{s0}, v{s0}, v{s0+1}')
    xlane4(a, 'v_add_f32', s0, d0)
    a(f'v_mul_f32 v{nm}, 0xbc124925, v{s0}\nv_mul_f32 v{nm+1}, 0xbc124925, v{s0}')
    for i in range(14):
        d = d0 + 2*(i & 1)
        a(f'v_pk_add_f32 v[{d}:{d+1}], v[{HF+2*i}:{HF+2*i+1}], v[{nm}:{nm+1}]')
        a(f'v_pk_mul_f32 v[{s0}:{s0+1}], v[{d}:{d+1}], v[{d}:{d+1}]' if i == 0 else f'v_pk_fma_f32 v[{s0}:{s0+1}], v[{d}:{d+1}], v[{d}:{d+1}], v[{s0}:{s0+1}]')
    a(f'v_add_f32 v{nm+1}, v{s0}, v{s0+1}')
    xlane4(a, 'v_add_f32', nm+1, d0)
    a(f"""
    s_lshl_b32 s{S_T0}, s{S_WAVE}, 9
    v_add_u32 v{d0}, s{S_T0}, v{V['l8']}
    ds_write_b64 v{d0}, v[{nm}:{nm+1}] offset:{AL_ST}
    s_waitcnt lgkmcnt(0)
    s_barrier
    """)
    for k in range(4): a(f"ds_read_b64 v[{st+2*k}:{st+2*k+1}], v{V['l8']} offset:{AL_ST+k*512}")
    rs = 46
    a(f"""
    s_waitcnt lgkmcnt(0)
    v_add_f32 v{nm}, v{st}, v{st+2}
    v_add_f32 v{d0}, v{st+4}, v{st+6}
    v_add_f32 v{nm}, v{nm}, v{d0}
    v_mul_f32 v{nm}, 0.25, v{nm}
    v_add_f32 v{rs}, v{st+1}, v{st+3}
    v_add_f32 v{d0}, v{st+5}, v{st+7}
    v_add_f32 v{rs}, v{rs}, v{d0}
    v_sub_f32 v{st}, v{st}, v{nm}
    v_sub_f32 v{st+2}, v{st+2}, v{nm}
    v_sub_f32 v{st+4}, v{st+4}, v{nm}
    v_sub_f32 v{st+6}, v{st+6}, v{nm}
    v_mul_f32 v{d0}, v{st}, v{st}
    v_fmac_f32 v{d0}, v{st+2}, v{st+2}
    v_fmac_f32 v{d0}, v{st+4}, v{st+4}
    v_fmac_f32 v{d0}, v{st+6}, v{st+6}
    v_fmac_f32 v{rs}, 0x42e00000, v{d0}
    v_mul_f32 v{rs}, 0x3b124925, v{rs}
    """)
    prep.ln_stats_finish(a, nm, rs, d0)
    a(f'v_mov_b32 v{nm+1}, v{nm}\nv_mov_b32 v{rs+1}, v{rs}')
    NP = 108
    for i in range(14):
        u = HF+2*i
        a(f"""
        v_pk_add_f32 v[{u}:{u+1}], v[{u}:{u+1}], v[{nm}:{nm+1}]
        v_cvt_pk_bf16_f32 v{NP+i}, v{u}, v{u+1}
        v_lshlrev_b32 v{u}, 16, v{NP+i}
        v_and_b32 v{u+1}, 0xffff0000, v{NP+i}
        v_pk_mul_f32 v[{u}:{u+1}], v[{u}:{u+1}], v[{rs}:{rs+1}]
        v_cvt_pk_bf16_f32 v{NP+i}, v{u}, v{u+1}
        """)
    a(f"""
    s_mul_i32 s{S_T0}, s{S_WAVE}, 3072
    s_add_u32 s{A_S0}, s{A_S0}, {L.HN}
    s_add_u32 s{A_S1}, s{A_S0}, s{S_T0}
    s_lshr_b32 s{S_T0}, s{S_WAVE}, 1
    s_lshl_b32 s{S_T0}, s{S_T0}, 10
    s_and_b32 s{S_T1}, s{S_WAVE}, 1
    s_lshl_b32 s{S_T1}, s{S_T1}, 3
    s_add_u32 s{S_T0}, s{S_T0}, s{S_T1}
    s_add_u32 s{A_S0}, s{A_S0}, s{S_T0}
    s_add_u32 s{A_S0}, s{A_S0}, 12288
    """)
    for i in range(3):
        a(f"buffer_store_dwordx4 v[{NP+4*i}:{NP+4*i+3}], v{V['l16']}, {WSRD}, s{A_S1} offen offset:{i*1024} {xfl}")
    a(f"buffer_store_dwordx2 v[{NP+12}:{NP+13}], v{V['l16']}, {WSRD}, s{A_S0} offen {xfl}")
    a(f"""
    s_lshl_b32 s{A_S0}, s{A_SEG}, 7
    s_add_u32 s{A_S0}, s{A_S0}, {L.CNT_H}
    v_mov_b32 v4, 0
    v_mov_b32 v5, 1
    s_waitcnt vmcnt(0)
    s_mov_b64 exec, 1
    buffer_atomic_add v5, v4, {WSRD}, s{A_S0} offen
    s_mov_b64 exec, -1
    """)
```

```python
import sys
sys.path.insert(0, 'gen')
from asmlib import *
import layout as L
def kd(name, vgpr=512, accum=256, sgpr=102):
    return f'''.amdhsa_kernel {name}
  .amdhsa_next_free_vgpr {vgpr}
  .amdhsa_next_free_sgpr {sgpr}
  .amdhsa_accum_offset {accum}
  .amdhsa_group_segment_fixed_size 0
  .amdhsa_kernarg_size 104
  .amdhsa_user_sgpr_count 2
  .amdhsa_user_sgpr_kernarg_segment_ptr 1
  .amdhsa_system_sgpr_workgroup_id_x 1
.end_amdhsa_kernel
'''
def assemble(kernels, header=''):
    head = header + ''.join(f'; @launch kernel={n} grid=({g},1,1) block=({b},1,1) lds={l}\n' for n, _, g, b, l in kernels)
    text = '.amdgcn_target "amdgcn-amd-amdhsa--gfx950"\n.text\n'
    ro = '.section .rodata,"a"\n'
    seen = set(); base = 0
    for n, fn, g, b, l in kernels:
        if n in seen: continue
        seen.add(n)
        a = Asm(); a.nlab = base
        fn(a)
        base = a.nlab + 1
        text += f'.globl {n}\n.p2align 8\n.type {n},@function\n{n}:\n' + a.finish()
        ro += '.p2align 6\n' + kd(n)
    return head + text + ro
```

```python
from asmlib import *
import layout as L
from team import *
from attn import wait_cnt
import prep

F_J = 36; F_SEG = 37; F_S0 = 38; F_S1 = 39; F_C = 40; F_W = 44; F_OUT = 48
CT_PAIRS = [(7*w+2*i, 7*w+2*i+1) for w in range(4) for i in range(3)] + [(6, 13), (20, 27)]
W1S = 144
FL_W2 = 65536
FL_RED = 0

def ffn_role(a, cfg, ngroups):
    xfl = cfg['xflags']
    LN, l16, l8 = 1, 2, 3
    a(f"""
    v_mbcnt_lo_u32_b32 v{LN}, -1, 0
    v_mbcnt_hi_u32_b32 v{LN}, -1, v{LN}
    s_load_dwordx4 s[4:7], s[0:1], 64
    s_load_dwordx2 s[52:53], s[0:1], 80
    s_mov_b32 s{S_LIM}, {SPIN_MAX*8}
    s_mul_i32 s{F_SEG}, s{S_ROLE}, 2341
    s_lshr_b32 s{F_SEG}, s{F_SEG}, 16
    s_mul_i32 s{F_J}, s{F_SEG}, 28
    s_sub_u32 s{F_J}, s{S_ROLE}, s{F_J}
    v_lshlrev_b32 v{l16}, 4, v{LN}
    v_lshlrev_b32 v{l8}, 3, v{LN}
    s_lshl_b32 s{S_T0}, s{S_WAVE}, 6
    v_add_u32 v0, s{S_T0}, v{LN}
    s_waitcnt lgkmcnt(0)
    s_barrier
    """)
    prep.srd(a, F_W, 4, 448*3584)
    prep.srd(a, F_OUT, 52, 2048*896)
    a(f"""
    v_lshrrev_b32 v4, 3, v0
    v_and_b32 v5, 7, v0
    v_mul_u32_u24 v6, 3584, v4
    v_lshl_add_u32 v6, v5, 4, v6
    v_mul_u32_u24 v7, {W1S}, v4
    v_lshl_add_u32 v7, v5, 4, v7
    s_lshl_b32 s{F_S0}, s{F_J}, 7
    """)
    for k in range(14):
        a(f'buffer_load_dwordx4 v[{16+4*k}:{16+4*k+3}], v6, s[{F_W}:{F_W+3}], s{F_S0} offen\ns_add_u32 s{F_S0}, s{F_S0}, {32*3584}')
    prep.srd(a, F_W, 6, 1792*896)
    a(f"""
    v_lshrrev_b32 v4, 1, v0
    v_and_b32 v5, 1, v0
    v_mul_u32_u24 v6, 896, v4
    v_lshl_add_u32 v6, v5, 4, v6
    v_lshlrev_b32 v8, 4, v0
    s_lshl_b32 s{F_S0}, s{F_J}, 5
    """)
    for k in range(14):
        a(f'buffer_load_dwordx4 v[{72+4*k}:{72+4*k+3}], v6, s[{F_W}:{F_W+3}], s{F_S0} offen\ns_add_u32 s{F_S0}, s{F_S0}, {128*896}')
    for k in range(14):
        a(f's_waitcnt vmcnt({27-k})\nds_write_b128 v7, v[{16+4*k}:{16+4*k+3}] offset:{k*32*W1S}')
    a(f'v_add_u32 v8, {FL_W2}, v8')
    for k in range(14):
        a(f's_waitcnt vmcnt({13-k})\nds_write_b128 v8, v[{72+4*k}:{72+4*k+3}] offset:{k*4096}')
    a(f"""
    v_lshrrev_b32 v4, 2, v{LN}
    v_mul_u32_u24 v4, {W1S}, v4
    v_and_b32 v5, 3, v{LN}
    v_lshl_add_u32 v4, v5, 3, v4
    s_lshr_b32 s{S_T0}, s{S_WAVE}, 1
    s_lshl_b32 s{S_T0}, s{S_T0}, 6
    v_add_u32 v4, s{S_T0}, v4
    s_mul_i32 s{S_T0}, s{S_WAVE}, 14336
    s_add_u32 s{S_T0}, s{S_T0}, {FL_W2}
    v_add_u32 v5, s{S_T0}, v{l8}
    s_waitcnt lgkmcnt(0)
    s_barrier
    """)
    W1 = lambda t, kb: (t*14+kb)*4
    W2 = lambda kb: 112 + kb*4
    for t in range(2):
        for kb in range(14):
            for hf in range(2):
                r = W1(t, kb) + 2*hf
                a(f'ds_read_b64_tr_b16 a[{r}:{r+1}], v4 offset:{CT_PAIRS[kb][hf]*16*W1S + t*32}')
    for kb in range(14):
        for hf in range(2):
            r = W2(kb) + 2*hf
            a(f'ds_read_b64_tr_b16 a[{r}:{r+1}], v5 offset:{kb*1024+hf*512}')
    a(f"""
    v_and_b32 v4, 15, v{LN}
    v_mul_u32_u24 v4, 896, v4
    v_lshrrev_b32 v5, 4, v{LN}
    v_lshl_add_u32 v4, v5, 3, v4
    s_lshl_b32 s{S_T0}, s{S_WAVE}, 11
    v_add_u32 v5, s{S_T0}, v{l16}
    s_and_b32 s{S_T0}, s{S_WAVE}, 1
    s_lshl_b32 s{S_T0}, s{S_T0}, 10
    v_add_u32 v6, s{S_T0}, v{l16}
    v_mov_b32 v8, 0
    v_mov_b32 v9, 1
    s_waitcnt lgkmcnt(0)
    s_barrier
F_top:
    s_lshl_b32 s{F_C}, s{F_SEG}, 7
    s_add_u32 s{F_S0}, s{F_C}, {L.CNT_H}
    """)
    if cfg['flags']: wait_cnt(a, F_S0, 8, 10)
    B = 16; AC = 128
    a(f"""
    s_lshl_b32 s{F_S1}, s{F_SEG}, 1
    s_and_b32 s{S_T0}, s{S_WAVE}, 1
    s_add_u32 s{F_S1}, s{F_S1}, s{S_T0}
    s_mul_i32 s{F_S0}, s{F_S1}, 14336
    s_lshl_b32 s{S_T1}, s{F_J}, 9
    s_add_u32 s{S_T1}, s{S_T1}, s{F_S0}
    s_add_u32 s{S_T1}, s{S_T1}, {L.HB}
    s_add_u32 s{F_S0}, s{F_S0}, {L.HN}
    """)
    load_1k_run(a, [vr(B+4*k, 4) for k in range(14)], l16, F_S0, xfl)
    a(f'buffer_load_dwordx2 v[12:13], v{l8}, {WSRD}, s{S_T1} offen {xfl}')
    for kb in range(14):
        a(f's_waitcnt vmcnt({14-kb})')
        for t in range(2):
            c = AC + 4*t
            a(f'v_mfma_f32_16x16x32_bf16 v[{c}:{c+3}], a[{W1(t,kb)}:{W1(t,kb)+3}], v[{B+4*kb}:{B+4*kb+3}], ' + ('0' if kb == 0 else f'v[{c}:{c+3}]'))
    a(f"""
    s_mul_i32 s{F_S0}, s{F_S1}, 57344
    s_lshl_b32 s{S_T0}, s{F_J}, 11
    s_add_u32 s{F_S0}, s{F_S0}, s{S_T0}
    s_lshr_b32 s{S_T0}, s{S_WAVE}, 1
    s_lshl_b32 s{S_T0}, s{S_T0}, 10
    s_add_u32 s{F_S0}, s{F_S0}, s{S_T0}
    s_add_u32 s{F_S0}, s{F_S0}, {L.HID}
    """)
    for k in range(8): a(f'v_max_f32 v{AC+k}, 0, v{AC+k}')
    for k in range(4): a(f'v_cvt_pk_bf16_f32 v{AC+8+k}, v{AC+2*k}, v{AC+2*k+1}')
    sk = a.newlabel('F_sk')
    a(f"""
    buffer_store_dwordx4 v[{AC+8}:{AC+11}], v{l16}, {WSRD}, s{F_S0} offen sc1
    s_add_u32 s{F_S0}, s{F_C}, {L.CNT_F}
    s_cmp_lg_u32 s{S_WAVE}, 0
    s_waitcnt vmcnt(0)
    s_barrier
    s_cbranch_scc1 {sk}
    s_mov_b64 exec, 1
    buffer_atomic_add v9, v8, {WSRD}, s{F_S0} offen
    s_mov_b64 exec, -1
{sk}:
    """)
    wait_cnt(a, F_S0, 28, 10)
    a(f"""
    s_mul_i32 s{F_S0}, s{F_SEG}, {2*57344}
    s_mul_i32 s{S_T0}, s{S_WAVE}, 14336
    s_add_u32 s{F_S0}, s{F_S0}, s{S_T0}
    s_add_u32 s{F_S0}, s{F_S0}, {L.HID}
    s_add_u32 s{S_T1}, s{F_S0}, 57344
    """)
    load_1k_run(a, [vr(B+4*k, 4) for k in range(14)], l16, F_S0, 'sc1')
    load_1k_run(a, [vr(B+56+4*k, 4) for k in range(14)], l16, S_T1, 'sc1')
    for z in range(2):
        for kb in range(14):
            a(f's_waitcnt vmcnt({27-z*14-kb})')
            c = AC + 4*z; b = B + 56*z + 4*kb
            a(f'v_mfma_f32_16x16x32_bf16 v[{c}:{c+3}], a[{W2(kb)}:{W2(kb)+3}], v[{b}:{b+3}], ' + ('0' if kb == 0 else f'v[{c}:{c+3}]'))
    fin = a.newlabel('F_fin')
    R = AC + 8
    a(f"""
    ds_write_b128 v5, v[{AC}:{AC+3}] offset:{FL_RED}
    ds_write_b128 v5, v[{AC+4}:{AC+7}] offset:{FL_RED+1024}
    s_cmp_ge_u32 s{S_WAVE}, 2
    s_waitcnt lgkmcnt(0)
    s_barrier
    s_cbranch_scc1 {fin}
    ds_read_b128 v[{R}:{R+3}], v6 offset:{FL_RED}
    ds_read_b128 v[{R+4}:{R+7}], v6 offset:{FL_RED+2048}
    ds_read_b128 v[{R+8}:{R+11}], v6 offset:{FL_RED+4096}
    ds_read_b128 v[{R+12}:{R+15}], v6 offset:{FL_RED+6144}
    s_mul_i32 s{F_S0}, s{F_S1}, {16*896}
    s_lshl_b32 s{S_T0}, s{F_J}, 5
    s_add_u32 s{F_S0}, s{F_S0}, s{S_T0}
    v_lshlrev_b32 v{AC}, 16, v12
    v_and_b32 v{AC+1}, 0xffff0000, v12
    v_lshlrev_b32 v{AC+2}, 16, v13
    v_and_b32 v{AC+3}, 0xffff0000, v13
    s_waitcnt lgkmcnt(0)
    """)
    for k in range(2):
        r = R + 2*k
        a(f"""
        v_pk_add_f32 v[{r}:{r+1}], v[{r}:{r+1}], v[{r+4}:{r+5}]
        v_pk_add_f32 v[{r+8}:{r+9}], v[{r+8}:{r+9}], v[{r+12}:{r+13}]
        v_pk_add_f32 v[{r}:{r+1}], v[{r}:{r+1}], v[{r+8}:{r+9}]
        v_cvt_pk_bf16_f32 v{r}, v{r}, v{r+1}
        v_and_b32 v{r+1}, 0xffff0000, v{r}
        v_lshlrev_b32 v{r}, 16, v{r}
        v_pk_add_f32 v[{r}:{r+1}], v[{r}:{r+1}], v[{AC+2*k}:{AC+2*k+1}]
        v_cvt_pk_bf16_f32 v{14+k}, v{r}, v{r+1}
        """)
    a(f"""
    buffer_store_dwordx2 v[14:15], v4, s[{F_OUT}:{F_OUT+3}], s{F_S0} offen
{fin}:
    s_add_u32 s{F_SEG}, s{F_SEG}, {ngroups}
    s_cmp_lt_u32 s{F_SEG}, 64
    s_cbranch_scc1 F_top
    """)
```

```python
from asmlib import *
import layout as L
from team import *

G_SEG = 36; G_XO = 37; G_OO = 38; G_M0 = 39; G_IT = 40; G_CO = 41; G_CS = 42; G_CN = 43; G_CN2 = 44; G_SLOT = 46
XF = 16
ACC = 48
OUT = 112
NSLOT = 4

def gemm_role(a, cfg):
    xfl = cfg['xflags']
    a(f"""
    s_lshr_b32 s{S_T0}, s{S_ROLE}, 2
    s_and_b32 s{G_SEG}, s{S_ROLE}, 3
    s_lshl_b32 s{S_T0}, s{S_T0}, 2
    s_add_u32 s{S_T0}, s{S_T0}, s{S_WAVE}
    v_lshlrev_b32 v2, 4, v1
    s_mul_i32 s{G_M0}, s{S_WAVE}, 7168
    s_mul_i32 s{G_XO}, s{G_SEG}, 28672
    s_add_u32 s{G_XO}, s{G_XO}, s{G_M0}
    s_add_u32 s{G_XO}, s{G_XO}, {L.XN}
    """)
    def dma(slot_off_sgpr=None, slot_const=None):
        o = []
        if slot_const is not None: o.append(f's_add_u32 m0, s{G_M0}, {slot_const}')
        else: o.append(f's_add_u32 m0, s{G_M0}, s{slot_off_sgpr}')
        for k in range(7):
            if k == 4:
                o.append(f's_add_u32 m0, m0, 4096\ns_add_u32 s{G_XO}, s{G_XO}, 4096')
            o.append(f'buffer_load_dwordx4 v2, {WSRD}, s{G_XO} offen offset:{(k%4)*1024} lds')
        o.append(f's_add_u32 s{G_XO}, s{G_XO}, {4*28672-4096}')
        return o
    for sl in range(3):
        for x in dma(slot_const=sl*28672): a(x)
    a(f"""
    s_mul_i32 s{S_T1}, s{S_T0}, {4*14336}
    s_add_u32 s{S_T1}, s{S_T1}, {L.WT}
    s_lshl_b32 s{G_CO}, s{S_ROLE}, 2
    s_add_u32 s{G_CO}, s{G_CO}, s{S_WAVE}
    s_lshl_b32 s{G_CO}, s{G_CO}, 7
    s_add_u32 s{G_CO}, s{G_CO}, {L.DUMMY + 0x100000}
    s_mov_b32 s{G_CN}, s{G_CO}
    s_mul_i32 s{G_OO}, s{G_SEG}, 458752
    s_cmp_ge_u32 s{S_T0}, 112
    s_cbranch_scc1 G_type1
    """)
    for typ in (0, 1):
        if typ: a.label('G_type1'); a(f's_sub_u32 s{S_T0}, s{S_T0}, 112')
        a(f"""
        s_mul_i32 s{G_IT}, s{S_T0}, 37
        s_lshr_b32 s{G_IT}, s{G_IT}, 8
        s_mul_i32 s{G_SLOT}, s{G_IT}, 7
        s_cmp_gt_u32 s{G_SLOT}, s{S_T0}
        s_cselect_b32 s{G_SLOT}, 1, 0
        s_sub_u32 s{G_IT}, s{G_IT}, s{G_SLOT}
        s_mul_i32 s{G_SLOT}, s{G_IT}, 7
        s_sub_u32 s{G_SLOT}, s{S_T0}, s{G_SLOT}
        """)
        if typ == 0:
            a(f"""
            s_mul_i32 s{G_IT}, s{G_IT}, 28672
            s_lshl_b32 s{G_SLOT}, s{G_SLOT}, 11
            s_add_u32 s{G_OO}, s{G_OO}, s{G_IT}
            s_add_u32 s{G_OO}, s{G_OO}, s{G_SLOT}
            s_add_u32 s{G_OO}, s{G_OO}, {L.TX}
            v_bfe_u32 v3, v1, 3, 1
            v_mul_u32_u24 v3, 14336, v3
            v_lshrrev_b32 v4, 4, v1
            v_lshl_add_u32 v3, v4, 8, v3
            v_bfe_u32 v4, v1, 2, 1
            v_lshl_add_u32 v3, v4, 7, v3
            v_and_b32 v4, 3, v1
            v_lshl_add_u32 v3, v4, 4, v3
            """)
            ooff = [0, 1024, 14336, 15360]
        else:
            a(f"""
            s_lshl_b32 s{G_IT}, s{G_IT}, 10
            s_lshl_b32 s{G_SLOT}, s{G_SLOT}, 16
            s_add_u32 s{G_OO}, s{G_OO}, s{G_IT}
            s_add_u32 s{G_OO}, s{G_OO}, s{G_SLOT}
            s_add_u32 s{G_OO}, s{G_OO}, {L.U}
            v_mov_b32 v3, v2
            """)
            ooff = [0, 16384, 32768, 49152]
        n = 21
        for t in range(4):
            base = (t >> 1)*2*14336 + (t & 1)*64 if typ == 0 else t*14336
            for kb in range(14):
                if kb % 3 == 0: a(f's_add_u32 s{S_T0}, s{S_T1}, {base + kb*1024}')
                r = (t*14+kb)*4
                a(f'buffer_load_dwordx4 a[{r}:{r+3}], v3, {WSRD}, s{S_T0} offen offset:{(kb%3)*1024}')
                n += 1
                if n >= 60: a('s_waitcnt vmcnt(30)'); n = 30
        a(f"""
        s_lshl_b32 s{G_CN2}, s{G_SEG}, 7
        s_add_u32 s{G_CN2}, s{G_CN2}, {L.CNT_U if typ else L.CNT_T}
        s_cmp_eq_u32 s{S_WAVE}, 0
        s_cselect_b32 s{G_CN2}, s{G_CN2}, s{G_CO}
        s_cselect_b32 s{G_CS}, 512, 0
        s_sub_u32 s{S_T1}, s{G_OO}, {L.DUMMY}
        s_mov_b32 s{G_OO}, {L.DUMMY}
        v_mov_b32 v4, v2
        v_mov_b32 v6, 0
        v_mov_b32 v7, 1
        s_mov_b32 s{G_IT}, 0
        s_mov_b32 s{G_SLOT}, {3*28672}
        s_waitcnt vmcnt(0)
        s_barrier
        """)
        xr = lambda kb, z: XF + ((kb % 4)*2 + z)*4
        def xread(kb, z, addr):
            return dsop(f'ds_read_b128 v[{xr(kb,z)}:{xr(kb,z)+3}], v{addr} offset:{z*14336+(kb%14)*1024}', ('x', kb))
        PD = 2
        lq = Q('lgkmcnt', 15)
        for kb in range(PD):
            for z in range(2): a(xread(kb, z, 4)(lq))
        top = f'G_top{typ}'
        signal = f"""s_mov_b64 exec, 1
            buffer_atomic_add v7, v6, {WSRD}, s{G_CO} offen
            s_mov_b64 exec, -1
            s_mov_b32 s{G_CO}, s{G_CN}
            s_mov_b32 s{G_CN}, s{G_CN2}
            s_add_u32 s{G_CN2}, s{G_CN2}, s{G_CS}"""
        a.label(top)
        def epi(par):
            va = []; st = []
            for o in range(4):
                if typ == 0: z, T = o >> 1, o & 1; ca = ACC + par*32 + ((2*T)*2+z)*4; cb = ACC + par*32 + ((2*T+1)*2+z)*4
                else: ca = ACC + par*32 + (o*2)*4; cb = ACC + par*32 + (o*2+1)*4
                r = OUT + 4*o
                va.append([f'v_cvt_pk_bf16_f32 v{r}, v{ca}, v{ca+1}', f'v_cvt_pk_bf16_f32 v{r+1}, v{ca+2}, v{ca+3}',
                           f'v_cvt_pk_bf16_f32 v{r+2}, v{cb}, v{cb+1}', f'v_cvt_pk_bf16_f32 v{r+3}, v{cb+2}, v{cb+3}'])
                st.append(f's_add_u32 s{S_T0}, s{G_OO}, {ooff[o]}\nbuffer_store_dwordx4 v[{r}:{r+3}], v2, {WSRD}, s{S_T0} offen {xfl}')
            return va, st
        for par in range(2):
            cur, nxt = (4, 5) if par == 0 else (5, 4)
            ms = []
            for kb in range(14):
                K = par*14 + kb
                for t in range(4):
                    for z in range(2):
                        c = ACC + par*32 + (t*2+z)*4
                        wr = f'a[{(t*14+kb)*4}:{(t*14+kb)*4+3}]'; x = f'v[{xr(K,z)}:{xr(K,z)+3}]'
                        A, B = (wr, x) if typ == 0 else (x, wr)
                        ms.append((f'v_mfma_f32_16x16x32_bf16 v[{c}:{c+3}], {A}, {B}, ' + ('0' if kb == 0 else f'v[{c}:{c+3}]'),
                                   [('x', K)] if t == 0 and z == 0 else []))
            gp = Gaps(112)
            for kb in range(14):
                K = par*14 + kb + PD
                addr = cur if kb + PD < 14 else nxt
                for z in range(2): gp.put('ds', kb*8 + 1 + 2*z, xread(K % 28 if K >= 28 else K, z, addr))
            va, st = epi(1-par)
            g = 4
            for o in range(4):
                for x in va[o]: g = gp.put('va', g, x) + 1
                g = gp.put('ds', g+1, st[o]) + 1
            gp.force('va', g+1, f's_add_u32 s{G_OO}, s{G_OO}, s{S_T1}\ns_mov_b32 s{S_T1}, {4*458752}')
            gp.force('va', 60, f"""v_add_u32 v{nxt}, 28672, v{cur}
                v_subrev_u32 v8, {NSLOT*28672}, v{nxt}
                v_min_u32 v{nxt}, v{nxt}, v8""")
            sync = f's_waitcnt vmcnt(11)\ns_barrier\n' + signal
            gp.force('ds', 80, sync)
            d = dma(slot_off_sgpr=G_SLOT)
            g = 82
            for x in d: g = gp.put('ds', g, x) + 2
            gp.force('va', g, f"""s_add_u32 s{G_SLOT}, s{G_SLOT}, 28672
                s_cmp_ge_u32 s{G_SLOT}, {NSLOT*28672}
                s_cselect_b32 s{G_SLOT}, 0, s{G_SLOT}""")
            emit_stream(a, ms, gp, lq)
        a(f"""
        s_add_u32 s{G_IT}, s{G_IT}, 1
        s_cmp_lt_u32 s{G_IT}, 8
        s_cbranch_scc1 {top}
        """)
        va, st = epi(1)
        for o in range(4):
            for x in va[o]: a(x)
            a(st[o])
        a('s_waitcnt vmcnt(0) lgkmcnt(0)\ns_barrier')
        a(signal); a(signal)
        a('s_branch G_done')
    a.label('G_done')
```

```python
S, D, H, DH, NSEG, SEG, M, FF = 2048, 448, 16, 256, 64, 32, 8, 1792
KB = 14
XN   = 0x0000000
WT   = 0x0200000
W1F  = 0x0F00000
W2F  = 0x1100000
MB_M = 0x1300000
MB_P = 0x1400000
MB_Y = 0x1520000
MB_END = 0x15C0000
STAMP = 0x1600000
XP   = 0x1700000
VM   = 0x1C00000
TX   = 0x2400000
U    = 0x4000000
HB   = 0x5C00000
HID  = 0x6000000
WS_BYTES = 268435456
CNT  = 0x15F0000
CNT_BYTES = 0x10000
CNT_U = CNT; CNT_T = CNT + 0x2000; CNT_V = CNT + 0x4000; CNT_H = CNT + 0x6000; CNT_F = CNT + 0xA000
DUMMY = 0x8000000
HN   = 0x5E00000
CNT_P = CNT + 0xE000
CNT_TEAM = CNT_P + 0x400; CNT_TK = CNT_P + 0x480
VS   = 0x1A00000
CNT_I = CNT_P + 0x500
CNT_G = CNT_P + 0x800
CNT_I2 = CNT_P + 0x580
FL   = 0x1A00000
CNT_TK7 = CNT_P + 0xC00
```

```python
from asmlib import *
import layout as L
from team import Q, xlane4

KA = dict(x=0, mem0=8, wq=16, wk=24, wv=32, wo=40, w1=64, w2=72, out=80, dbg=88, ws=96)
LOG2E_16 = 0x3db8aa3b

def srd(a, d, lo, nbytes):
    a(f"""
    s_mov_b32 s{d}, s{lo}
    s_and_b32 s{d+1}, s{lo+1}, 0xffff
    s_mov_b32 s{d+2}, {nbytes}
    s_mov_b32 s{d+3}, 0x20000
    """)

WO_STRIDE = 144
def prep_kernel(a, diag=False):
    WS, SA, SB = 8, 12, 16
    a(f"""
    s_cmp_ge_u32 s2, 256
    s_cbranch_scc1 P_exit
    s_load_dwordx2 s[4:5], s[0:1], {KA['ws']}
    s_load_dwordx4 s[24:27], s[0:1], {KA['wq']}
    s_load_dwordx4 s[28:31], s[0:1], {KA['wv']}
    s_load_dwordx4 s[32:35], s[0:1], {KA['x']}
    v_lshrrev_b32 v2, 6, v0
    v_and_b32 v1, 63, v0
    v_readfirstlane_b32 s20, v2
    s_and_b32 s21, s2, 7
    s_lshr_b32 s22, s2, 3
    s_waitcnt lgkmcnt(0)
    """)
    srd(a, WS, 4, L.WS_BYTES)
    def st(k):
        if diag: a(f's_memtime s[{60+2*k}:{61+2*k}]')
    if diag:
        for k in range(8): a(f's_mov_b64 s[{60+2*k}:{61+2*k}], 0')
    st(0)
    nfill = L.CNT + L.CNT_BYTES - L.MB_M
    assert nfill % (256*4096) == 0 or True
    per = (nfill + 255) // 256
    per = (per + 4095) // 4096 * 4096
    a(f"""
    v_lshlrev_b32 v3, 4, v0
    v_mov_b32 v4, -1
    v_mov_b32 v5, -1
    v_mov_b32 v6, -1
    v_mov_b32 v7, -1
    s_mul_i32 s23, s2, {per}
    s_add_u32 s23, s23, {L.MB_M}
    """)
    assert L.MB_M + 256*per <= L.STAMP
    for k in range(per // 4096):
        l = a.newlabel('P_fs')
        a(f"""
        s_add_u32 s36, s23, {k*4096}
        s_and_b32 s37, s36, 0xffffe000
        s_cmp_eq_u32 s37, {L.MB_M}
        s_cbranch_scc1 {l}
        s_cmp_eq_u32 s37, {L.MB_Y}
        s_cbranch_scc1 {l}
        s_cmp_ge_u32 s36, {L.CNT}
        s_cselect_b32 s37, 0, -1
        v_mov_b32 v4, s37
        v_mov_b32 v5, s37
        v_mov_b32 v6, s37
        v_mov_b32 v7, s37
        buffer_store_dwordx4 v[4:7], v3, s[{WS}:{WS+3}], s36 offen
{l}:
        """)
    assert L.MB_M + 256*per > L.CNT + L.CNT_BYTES - 1 or True
    a(f"""
    s_cmp_ge_u32 s22, 28
    s_cbranch_scc1 P_ln
    """)
    a(f"""
    s_mul_i32 s23, s22, 37
    s_lshr_b32 s23, s23, 8
    s_mul_i32 s36, s23, 7
    s_sub_u32 s36, s22, s36
    s_lshl_b32 s21, s21, 2
    s_add_u32 s21, s21, s23
    s_and_b32 s37, s21, 1
    s_lshr_b32 s38, s21, 1
    s_cmp_eq_u32 s37, 0
    s_cselect_b32 s40, s24, s28
    s_cselect_b32 s41, s25, s29
    s_cselect_b32 s42, s26, s30
    s_cselect_b32 s43, s27, s31
    """)
    srd(a, SA, 40, 448*8192)
    srd(a, SB, 42, 448*8192)
    BF, AFR, ACC = 16, 144, 208
    AST = 528
    LDS_A = 36864
    breg = lambda ks, nt: BF + (ks*4 + nt)*4
    a(f"""
    s_lshl_b32 s39, s20, 2
    s_cmp_eq_u32 s20, 3
    s_cselect_b32 s39, 11, s39
    v_and_b32 v4, 15, v1
    v_lshrrev_b32 v5, 4, v1
    v_lshrrev_b32 v6, 5, v1
    v_and_b32 v7, 31, v1
    v_lshlrev_b32 v8, 13, v6
    v_lshl_add_u32 v8, v7, 4, v8
    v_mul_u32_u24 v14, {AST}, v6
    v_lshl_add_u32 v14, v7, 4, v14
    s_mul_i32 s46, s20, {32*AST}
    s_add_u32 s46, s46, {LDS_A}
    v_add_u32 v15, s46, v14
    v_lshrrev_b32 v6, 2, v4
    v_and_b32 v7, 3, v4
    v_lshl_add_u32 v6, v6, 3, v7
    v_mul_u32_u24 v2, {AST}, v6
    v_lshl_add_u32 v2, v5, 4, v2
    v_add_u32 v2, s46, v2
    s_lshl_b32 s44, s39, 18
    s_lshl_b32 s45, s38, 9
    s_add_u32 s44, s44, s45
    """)
    vq = Q('vmcnt', 63)
    def a_loads(lo, hi):
        for i_ in range(lo, hi):
            a(f's_add_u32 s46, s44, {i_*2*8192}')
            a(f'buffer_load_dwordx4 a[{4*i_}:{4*i_+3}], v8, s[{SA}:{SA+3}], s46 offen'); vq.issue(('a', i_))
    a('s_cmp_eq_u32 s37, 0\ns_cbranch_scc0 P_t1')
    a(f"""
    s_lshl_b32 s47, s36, 19
    s_add_u32 s47, s47, s45
    s_lshl_b32 s46, s20, 17
    s_add_u32 s47, s47, s46
    s_mul_i32 s46, s20, {16*AST}
    v_add_u32 v12, s46, v14
    v_mov_b32 v9, v8
    s_mov_b32 s49, {2*8192}
    s_mov_b32 s48, {LOG2E_16}
    v_mov_b32 v10, {2*AST}
    s_branch P_tj
P_t1:
    v_lshrrev_b32 v10, 3, v0
    v_and_b32 v11, 7, v0
    v_mul_u32_u24 v9, 896, v10
    v_lshl_add_u32 v9, v11, 4, v9
    v_mul_u32_u24 v12, {WO_STRIDE}, v10
    v_lshl_add_u32 v12, v11, 4, v12
    s_mul_i32 s47, s38, 229376
    s_lshl_b32 s46, s36, 7
    s_add_u32 s47, s47, s46
    s_mov_b32 s49, {32*896}
    s_mov_b32 s48, 1.0
    v_mov_b32 v10, {32*WO_STRIDE}
P_tj:
    s_waitcnt vmcnt(0)
    """)
    st(1)
    for k in range(8):
        a(f'buffer_load_dwordx4 v[{AFR+4*k}:{AFR+4*k+3}], v9, s[{SB}:{SB+3}], s47 offen\ns_add_u32 s47, s47, s49'); vq.issue(('b', k))
    a_loads(0, 52)
    for k in range(8):
        a(vq.wait(('b', k)))
        a(f'ds_write_b128 v12, v[{AFR+4*k}:{AFR+4*k+3}]\nv_add_u32 v12, v12, v10')
    a(vq.wait(('a', 3)))
    a_loads(52, 64)
    a('s_waitcnt lgkmcnt(0)\ns_barrier')
    st(2)
    a('s_cmp_eq_u32 s37, 0\ns_cbranch_scc0 P_r1')
    a(f"""
    v_mul_u32_u24 v13, {AST}, v4
    v_lshl_add_u32 v13, v5, 4, v13
    """)
    for ks in range(8):
        for nt in range(4):
            a(f'ds_read_b128 v[{breg(ks,nt)}:{breg(ks,nt)+3}], v13 offset:{nt*16*AST + ks*64}')
    a(f"""
    s_branch P_rj
P_r1:
    v_bfe_u32 v10, v1, 2, 2
    v_lshl_add_u32 v10, v5, 3, v10
    v_mul_u32_u24 v13, {WO_STRIDE}, v10
    v_and_b32 v11, 3, v1
    v_lshl_add_u32 v13, v11, 3, v13
    """)
    for ks in range(8):
        for nt in range(4):
            for hf in range(2):
                r = breg(ks, nt) + 2*hf
                a(f'ds_read_b64_tr_b16 v[{r}:{r+1}], v13 offset:{(ks*32+hf*4)*WO_STRIDE + nt*32}')
    a(f"""
P_rj:
    s_mul_i32 s46, s37, 448
    s_mul_i32 s47, s38, 28
    s_add_u32 s46, s46, s47
    s_lshl_b32 s47, s36, 2
    s_add_u32 s46, s46, s47
    s_mul_i32 s46, s46, 14336
    s_lshl_b32 s47, s39, 10
    s_add_u32 s46, s46, s47
    s_add_u32 s46, s46, {L.WT}
    v_lshlrev_b32 v3, 4, v1
    """)
    def stage(kbl):
        for i_ in range(16):
            w = vq.wait(('a', kbl*16+i_))
            if w: a(w)
            a(f'ds_write_b128 v15, a[{4*(kbl*16+i_)}:{4*(kbl*16+i_)+3}] offset:{i_*2*AST}')
        for hf in range(2):
            for ks in range(8):
                r = AFR + (hf*8+ks)*4
                a(f'ds_read_b128 v[{r}:{r+3}], v2 offset:{hf*4*AST + ks*64}')
    for kbl in range(4):
        if kbl == 3: a('s_cmp_ge_u32 s20, 2\ns_cbranch_scc1 P_exit')
        stage(kbl)
        for hf in range(2):
            a(f's_waitcnt lgkmcnt({8*(1-hf)})')
            for ks in range(8):
                r = AFR + (hf*8+ks)*4
                for nt in range(4):
                    c = ACC + (hf*4+nt)*4
                    a(f'v_mfma_f32_16x16x32_bf16 v[{c}:{c+3}], v[{r}:{r+3}], v[{breg(ks,nt)}:{breg(ks,nt)+3}], ' + ('0' if ks == 0 else f'v[{c}:{c+3}]'))
        if kbl == 0: st(3)
        for nt in range(4):
            ca = ACC + nt*4; cb = ACC + (4+nt)*4
            o = 240 + nt*4
            for r in range(4):
                a(f'v_mul_f32 v{ca+r}, s48, v{ca+r}\nv_mul_f32 v{cb+r}, s48, v{cb+r}')
            a(f"""
            v_cvt_pk_bf16_f32 v{o}, v{ca}, v{ca+1}
            v_cvt_pk_bf16_f32 v{o+1}, v{ca+2}, v{ca+3}
            v_cvt_pk_bf16_f32 v{o+2}, v{cb}, v{cb+1}
            v_cvt_pk_bf16_f32 v{o+3}, v{cb+2}, v{cb+3}
            s_add_u32 s47, s46, {nt*14336}
            buffer_store_dwordx4 v[{o}:{o+3}], v3, s[{WS}:{WS+3}], s47 offen offset:{kbl*1024}
            """)
            vq.issue()
    a('s_branch P_exit')
    a.label('P_ln')
    srd(a, SA, 32, 2048*896)
    srd(a, SB, 34, 8*896)
    X = 16
    U = 80
    a(f"""
    s_sub_u32 s22, s22, 28
    s_lshl_b32 s21, s21, 2
    s_add_u32 s21, s21, s22
    s_lshl_b32 s21, s21, 2
    s_add_u32 s21, s21, s20
    v_lshrrev_b32 v4, 2, v1
    v_and_b32 v5, 3, v1
    v_mul_u32_u24 v6, 896, v4
    v_lshl_add_u32 v6, v5, 4, v6
    s_mul_i32 s23, s21, {16*896}
    """)
    for kb in range(14):
        a(f'buffer_load_dwordx4 v[{X+4*kb}:{X+4*kb+3}], v6, s[{SA}:{SA+3}], s23 offen offset:{kb*64}')
    l = a.newlabel('P_m0')
    a(f's_cmp_ge_u32 s21, 28\ns_cbranch_scc1 {l}')
    from team import img_addr
    img_addr(a, 8, 9, 1)
    a(f"""
    v_lshrrev_b32 v9, 4, v1
    v_mul_u32_u24 v9, {2*896}, v9
    v_and_b32 v7, 15, v1
    v_lshl_add_u32 v9, v7, 1, v9
    s_lshl_b32 s36, s21, 5
    buffer_load_ushort v200, v9, s[{SB}:{SB+3}], s36 offen
    buffer_load_ushort v201, v9, s[{SB}:{SB+3}], s36 offen offset:896
    s_lshr_b32 s36, s21, 2
    s_lshl_b32 s36, s36, 10
    s_and_b32 s37, s21, 3
    s_lshl_b32 s37, s37, 7
    s_add_u32 s36, s36, s37
    s_add_u32 s37, s36, {L.MB_Y}
    s_add_u32 s36, s36, {L.MB_M}
    s_waitcnt vmcnt(0)
    v_lshl_or_b32 v200, v201, 16, v200
    buffer_store_dword v200, v8, s[{WS}:{WS+3}], s36 offen
    buffer_store_dword v200, v8, s[{WS}:{WS+3}], s37 offen
{l}:
    s_waitcnt vmcnt(0)
    """)
    st(2)
    ln_rows(a, X, U, 56, 10, quadred)
    st(4)
    a(f"""
    s_mul_i32 s36, s20, 14336
    v_lshlrev_b32 v7, 8, v5
    v_lshl_add_u32 v7, v4, 4, v7
    v_add_u32 v7, s36, v7
    v_lshlrev_b32 v3, 4, v1
    v_add_u32 v8, s36, v3
    """)
    for kb in range(14):
        a(f'ds_write_b128 v7, v[{X+4*kb}:{X+4*kb+3}] offset:{kb*1024}')
    a(f"""
    v_bfe_u32 v9, v1, 1, 1
    v_mul_u32_u24 v9, 14336, v9
    v_lshrrev_b32 v6, 4, v1
    v_lshl_add_u32 v9, v6, 8, v9
    v_bfe_u32 v6, v1, 2, 2
    v_lshl_add_u32 v9, v6, 6, v9
    v_and_b32 v6, 1, v1
    v_lshl_add_u32 v9, v6, 4, v9
    s_lshr_b32 s36, s20, 1
    s_mul_i32 s36, s36, 28672
    s_and_b32 s37, s20, 1
    s_lshl_b32 s37, s37, 5
    s_add_u32 s36, s36, s37
    v_add_u32 v9, s36, v9
    s_mul_i32 s36, s21, 14336
    s_add_u32 s37, s36, {L.XP}
    s_add_u32 s36, s36, {L.XN}
    s_waitcnt lgkmcnt(0)
    s_barrier
    """)
    for kb in range(14):
        a(f'ds_read_b128 v[{X+4*kb}:{X+4*kb+3}], v8 offset:{kb*1024}')
    for kb in range(14):
        a(f'ds_read_b128 v[{U+4*kb}:{U+4*kb+3}], v9 offset:{kb*1024}')
    a('s_waitcnt lgkmcnt(14)')
    for kb in range(14):
        if kb and kb % 4 == 0: a('s_add_u32 s36, s36, 4096')
        a(f'buffer_store_dwordx4 v[{X+4*kb}:{X+4*kb+3}], v3, s[{WS}:{WS+3}], s36 offen offset:{(kb%4)*1024}')
    a('s_waitcnt lgkmcnt(0)')
    for kb in range(14):
        if kb and kb % 4 == 0: a('s_add_u32 s37, s37, 4096')
        a(f'buffer_store_dwordx4 v[{U+4*kb}:{U+4*kb+3}], v3, s[{WS}:{WS+3}], s37 offen offset:{(kb%4)*1024}')
    a.label('P_exit')
    if diag:
        a('s_cmp_ge_u32 s2, 256\ns_cbranch_scc1 P_exit2')
        st(5)
        a('s_waitcnt vmcnt(0)')
        st(6)
        a(f's_waitcnt lgkmcnt(0)\ns_lshl_b32 s36, s2, 2\ns_add_u32 s36, s36, s20\ns_lshl_b32 s36, s36, 6\ns_add_u32 s36, s36, {L.STAMP}\ns_mov_b64 exec, 1\nv_mov_b32 v3, 0')
        for k in range(7):
            a(f'v_mov_b32 v4, s{60+2*k}\nbuffer_store_dword v4, v3, s[{WS}:{WS+3}], s36 offen offset:{4*k}\ns_nop 1')
        a.label('P_exit2')
    a('s_endpgm')

def rnd_bf16(a, r, t):
    a(f'v_cvt_pk_bf16_f32 v{r}, v{r}, v{r}\nv_and_b32 v{r}, 0xffff0000, v{r}')

def quadred(a, x, t):
    a(f'v_add_f32_dpp v{x}, v{x}, v{x} quad_perm:[1,0,3,2] row_mask:0xf bank_mask:0xf')
    a(f'v_add_f32_dpp v{x}, v{x}, v{x} quad_perm:[2,3,0,1] row_mask:0xf bank_mask:0xf')

def ln_stats_finish(a, mu, rs, tt):
    rnd_bf16(a, rs, tt)
    a(f'v_add_f32 v{rs}, 0x3727c5ac, v{rs}')
    rnd_bf16(a, rs, tt)
    a(f'v_sqrt_f32 v{rs}, v{rs}')
    rnd_bf16(a, rs, tt)
    a(f'v_rcp_f32 v{rs}, v{rs}')
    rnd_bf16(a, mu, tt)

def ln_rows(a, X, U, n, t, red):
    s0, s1, d0, nm, rs = t, t+1, t+2, t+4, 76
    for i in range(n):
        a(f'v_lshlrev_b32 v{U+2*i}, 16, v{X+i}\nv_and_b32 v{U+2*i+1}, 0xffff0000, v{X+i}')
        if i == 1: a(f'v_pk_add_f32 v[{s0}:{s1}], v[{U}:{U+1}], v[{U+2}:{U+3}]')
        if i > 1: a(f'v_pk_add_f32 v[{s0}:{s1}], v[{s0}:{s1}], v[{U+2*i}:{U+2*i+1}]')
    a(f'v_add_f32 v{s0}, v{s0}, v{s1}')
    red(a, s0, d0)
    a(f'v_mul_f32 v{nm}, 0xbb124925, v{s0}\nv_mul_f32 v{nm+1}, 0xbb124925, v{s0}')
    for i in range(n):
        d = d0 if i & 1 else 72
        a(f'v_pk_add_f32 v[{d}:{d+1}], v[{U+2*i}:{U+2*i+1}], v[{nm}:{nm+1}]')
        if i == 0: a(f'v_pk_mul_f32 v[{s0}:{s1}], v[{d}:{d+1}], v[{d}:{d+1}]')
        else: a(f'v_pk_fma_f32 v[{s0}:{s1}], v[{d}:{d+1}], v[{d}:{d+1}], v[{s0}:{s1}]')
    a(f'v_add_f32 v{s0}, v{s0}, v{s1}')
    red(a, s0, d0)
    a(f'v_mul_f32 v{rs}, 0x3b124925, v{s0}')
    ln_stats_finish(a, nm, rs, d0)
    a(f'v_mov_b32 v{nm+1}, v{nm}\nv_mov_b32 v{rs+1}, v{rs}')
    for i in range(n):
        u = U+2*i
        a(f"""
        v_pk_add_f32 v[{u}:{u+1}], v[{u}:{u+1}], v[{nm}:{nm+1}]
        v_cvt_pk_bf16_f32 v{X+i}, v{u}, v{u+1}
        v_lshlrev_b32 v{u}, 16, v{X+i}
        v_and_b32 v{u+1}, 0xffff0000, v{X+i}
        v_pk_mul_f32 v[{u}:{u+1}], v[{u}:{u+1}], v[{rs}:{rs+1}]
        v_cvt_pk_bf16_f32 v{X+i}, v{u}, v{u+1}
        """)
```

```python
from asmlib import *
import layout as L

SENT = -1
S_WS = 8
S_DBG = 12
S_ROLE = 16
S_WAVE = 17
S_XCC = 18
S_STEP = 19
S_FAST = 20
S_MOFF = 21; S_POFF = 22; S_EOFF = 23; S_GOFF = 24; S_XOFF = 25; S_T0 = 26; S_T1 = 27; S_SPIN = 28; S_LIM = 29
S_EXEC = 30
S_STMP = 32
S_TM = 34
SPIN_MAX = 20000
NTEAM = 30

LDS_M = 0
LDS_T = 7168
LDS_RED = 7168
LDS_BW = 16384
LDS_ROLE = 160*1024 - 16

def prologue(a, stamps):
    a(f'''
    s_cmp_ge_u32 s2, 256
    s_cbranch_scc1 L_exit
    s_load_dwordx2 s[4:5], s[0:1], 96
    s_load_dwordx2 s[6:7], s[0:1], 88
    s_getreg_b32 s{S_XCC}, hwreg(HW_REG_XCC_ID, 0, 4)
    v_lshrrev_b32 v2, 6, v0
    v_and_b32 v1, 63, v0
    v_readfirstlane_b32 s{S_WAVE}, v2
    s_and_b32 s{S_XCC}, s{S_XCC}, 7
    s_waitcnt lgkmcnt(0)
    s_mov_b32 s{S_WS}, s4
    s_and_b32 s{S_WS+1}, s5, 0xffff
    s_mov_b32 s{S_WS+2}, {L.WS_BYTES}
    s_mov_b32 s{S_WS+3}, 0x20000
    s_mov_b32 s{S_DBG}, s6
    s_and_b32 s{S_DBG+1}, s7, 0xffff
    s_mov_b32 s{S_DBG+2}, 256
    s_mov_b32 s{S_DBG+3}, 0x20000
    v_mov_b32 v4, {LDS_ROLE}
    s_cmp_lg_u32 s{S_WAVE}, 0
    s_cbranch_scc1 L_role_wait
    s_mov_b64 exec, 1
    s_mov_b32 s{S_T0}, 0
L_role_try:
    s_add_u32 s{S_T1}, s{S_XCC}, s{S_T0}
    s_and_b32 s{S_T1}, s{S_T1}, 7
    s_lshl_b32 s{S_ROLE}, s{S_T1}, 2
    v_mov_b32 v2, s{S_ROLE}
    v_mov_b32 v3, 1
    buffer_atomic_add v3, v2, s[{S_DBG}:{S_DBG+3}], 0 offen sc0
    s_waitcnt vmcnt(0)
    v_readfirstlane_b32 s{S_ROLE}, v3
    s_cmp_lt_u32 s{S_ROLE}, 32
    s_cbranch_scc1 L_role_got
    s_add_u32 s{S_T0}, s{S_T0}, 1
    s_cmp_lt_u32 s{S_T0}, 8
    s_cbranch_scc1 L_role_try
    s_mov_b32 s{S_ROLE}, 31
    s_mov_b32 s{S_T1}, 0
L_role_got:
    s_lshl_b32 s{S_T1}, s{S_T1}, 5
    s_add_u32 s{S_ROLE}, s{S_ROLE}, s{S_T1}
    v_mov_b32 v2, s{S_ROLE}
    ds_write_b32 v4, v2
    s_mov_b64 exec, -1
    s_waitcnt lgkmcnt(0)
L_role_wait:
    s_barrier
    ds_read_b32 v2, v4
    s_waitcnt lgkmcnt(0)
    v_readfirstlane_b32 s{S_ROLE}, v2
    ''')

def team_register(a):
    l = a.newlabel('L_reg')
    a(f'''
    s_cmp_lg_u32 s{S_WAVE}, 0
    s_cbranch_scc1 {l}
    s_cmp_eq_u32 s{S_XCC}, 0
    s_cselect_b32 s{S_T0}, 1, 0x10001
    s_mov_b64 exec, 1
    v_mov_b32 v2, 64
    v_mov_b32 v3, s{S_T0}
    buffer_atomic_add v3, v2, s[{S_DBG}:{S_DBG+3}], 0 offen
    s_mov_b64 exec, -1
{l}:
    ''')

def team_mode(a, vt0, vt1):
    l = a.newlabel('L_mode'); d = a.newlabel('L_moded')
    a(f'''
    s_mov_b32 s{S_SPIN}, 0
    v_mov_b32 v{vt0}, 64
{l}:
    buffer_load_dword v{vt1}, v{vt0}, s[{S_DBG}:{S_DBG+3}], 0 offen sc1
    s_waitcnt vmcnt(0)
    v_readfirstlane_b32 s{S_T0}, v{vt1}
    s_and_b32 s{S_T1}, s{S_T0}, 0xffff
    s_cmp_ge_u32 s{S_T1}, {NTEAM}
    s_cbranch_scc1 {d}
    s_sleep 2
    s_add_u32 s{S_SPIN}, s{S_SPIN}, 1
    s_cmp_lt_u32 s{S_SPIN}, {SPIN_MAX}
    s_cbranch_scc1 {l}
    s_mov_b32 s{S_T0}, 0x10000
{d}:
    s_lshr_b32 s{S_T0}, s{S_T0}, 16
    s_cmp_eq_u32 s{S_T0}, 0
    s_cselect_b32 s{S_FAST}, 1, 0
    s_mov_b32 s{S_LIM}, {SPIN_MAX}
    ''')

def stamp(a, stamps, idx, vt=None):
    if not stamps: return
    a(f's_memtime s[{40+2*idx}:{41+2*idx}]')

def stamp_flush(a, stamps, n, vt):
    if not stamps: return
    a(f"""
    s_waitcnt lgkmcnt(0)
    s_mov_b64 exec, 1
    v_mov_b32 v{vt+1}, 0
    """)
    for k in range(n):
        a(f"""
        v_mov_b32 v{vt}, s{40+2*k}
        buffer_store_dword v{vt}, v{vt+1}, s[{S_WS}:{S_WS+3}], s{S_STMP} offen offset:{k*4}
        s_nop 1
        """)
    a('s_mov_b64 exec, -1')

def wreg(wb, vbase):
    return ar(8*wb, 8) if wb < 32 else vr(vbase + 8*(wb-32), 8)
def wreg_half(wb, vbase, half):
    return ar(8*wb + 4*half, 4) if wb < 32 else vr(vbase + 8*(wb-32) + 4*half, 4)

def xlane4(a, op, x, t):
    a(f'''
    v_mov_b32 v{t}, v{x}
    v_permlane16_swap_b32 v{x}, v{t}
    {op} v{x}, v{x}, v{t}
    v_mov_b32 v{t}, v{x}
    v_permlane32_swap_b32 v{x}, v{t}
    {op} v{x}, v{x}, v{t}
    ''')

QP = 'quad_perm:[2,3,0,1] row_mask:0xf bank_mask:0xf'

def read_mf(a, V):
    for b in range(7):
        a(f"ds_read_b64_tr_b16 v[{V['mf']+4*b}:{V['mf']+4*b+1}], v{V['l8']} offset:{LDS_M+b*1024}")
        a(f"ds_read_b64_tr_b16 v[{V['mf']+4*b+2}:{V['mf']+4*b+3}], v{V['l8']} offset:{LDS_M+b*1024+512}")

def SM(acc, A, B, idx):
    return f'v_smfmac_f32_16x16x64_bf16 v[{acc}:{acc+3}], v[{A}:{A+3}], {B}, v{idx}'


class Q:
    def __init__(self, name, cap):
        self.name = name; self.n = 0; self.tags = {}; self.done = 0; self.cap = cap
    def issue(self, tag=None):
        self.n += 1
        if tag is not None: self.tags[tag] = self.n
    def wait(self, tag):
        k = self.tags[tag]
        if k <= self.done: return ''
        self.done = k
        return 's_waitcnt %s(%d)' % (self.name, min(self.n - k, self.cap))
    def drain(self):
        self.done = self.n
        return 's_waitcnt %s(0)' % self.name

WSRD = f's[{S_WS}:{S_WS+3}]'

def poll_m(a, V, sleep=0):
    t = V['mf']; pa = V['pa']
    l = a.newlabel('L_pm'); d = a.newlabel('L_pmd')
    a(f"""
    s_mov_b32 s{S_SPIN}, 0
{l}:
    buffer_load_dwordx4 v[{t}:{t+3}], v{pa}, {WSRD}, s{S_MOFF} offen sc1
    buffer_load_dwordx4 v[{t+4}:{t+7}], v{pa}, {WSRD}, s{S_MOFF} offen offset:768 sc1
    s_add_u32 s{S_SPIN}, s{S_SPIN}, 1
    s_waitcnt vmcnt(1)
    ds_write_b128 v{pa}, v[{t}:{t+3}]
    v_max3_u32 v{t+8}, v{t}, v{t+1}, v{t+2}
    s_waitcnt vmcnt(0)
    ds_write_b128 v{pa}, v[{t+4}:{t+7}] offset:768
    v_max3_u32 v{t+8}, v{t+8}, v{t+3}, v{t+4}
    v_max3_u32 v{t+8}, v{t+8}, v{t+5}, v{t+6}
    v_max_u32 v{t+8}, v{t+8}, v{t+7}
    v_cmp_eq_u32 vcc, -1, v{t+8}
    s_cbranch_vccz {d}
    {'s_sleep %d' % sleep if sleep else ''}
    s_cmp_lt_u32 s{S_SPIN}, s{S_LIM}
    s_cbranch_scc1 {l}
    s_mov_b32 s{S_LIM}, 1
{d}:
    s_waitcnt lgkmcnt(0)
    s_barrier
    """)

def img_addr(a, dst, t, lane):
    a(f"""
    v_bfe_u32 v{dst}, v{lane}, 3, 1
    v_lshlrev_b32 v{dst}, 9, v{dst}
    v_bfe_u32 v{t}, v{lane}, 2, 1
    v_lshl_add_u32 v{dst}, v{t}, 6, v{dst}
    v_and_b32 v{t}, 1, v{lane}
    v_lshl_add_u32 v{dst}, v{t}, 5, v{dst}
    v_lshrrev_b32 v{t}, 4, v{lane}
    v_lshl_add_u32 v{dst}, v{t}, 3, v{dst}
    v_bfe_u32 v{t}, v{lane}, 1, 1
    v_lshl_add_u32 v{dst}, v{t}, 2, v{dst}
    """)

def common_addrs(a, V, LN):
    a(f"""
    v_lshlrev_b32 v{V['l8']}, 3, v{LN}
    s_mul_i32 s{S_T0}, s{S_WAVE}, {112*16}
    v_lshlrev_b32 v{V['pa']}, 4, v{LN}
    v_add_u32 v{V['pa']}, s{S_T0}, v{V['pa']}
    v_and_b32 v{LN+1}, 2, v{LN}
    v_cmp_ne_u32 vcc, 0, v{LN+1}
    v_mov_b32 v{LN+1}, 0x4444
    v_mov_b32 v{LN+2}, 0xeeee
    v_cndmask_b32 v{V['idx']}, v{LN+1}, v{LN+2}, vcc
    """)

def load_1k_run(a, dsts, vaddr, sbase, flags='', budget=None):
    for i, d in enumerate(dsts):
        if i and i % 4 == 0:
            a(f's_add_u32 s{sbase}, s{sbase}, 4096')
        a(f'buffer_load_dwordx4 {d}, v{vaddr}, {WSRD}, s{sbase} offen offset:{(i%4)*1024} {flags}')
        if budget is not None:
            budget[0] += 1
            if budget[0] >= 56:
                a('s_waitcnt vmcnt(28)'); budget[0] = 28

class Gaps:
    def __init__(self, n):
        self.ds = [[] for _ in range(n)]; self.va = [[] for _ in range(n)]; self.pre = [[] for _ in range(n)]
        self.n = n
    def put(self, kind, g, text, excl=False):
        while g < self.n - 1:
            if excl:
                if not self.ds[g] and not self.va[g]: break
            else:
                lst = self.ds[g] if kind == 'ds' else self.va[g]
                other = self.va[g] if kind == 'ds' else self.ds[g]
                if not lst and not (other and other[-1][1]): break
            g += 1
        (self.ds if kind == 'ds' else self.va)[g].append((text, excl))
        return g
    def force(self, kind, g, text):
        (self.ds if kind == 'ds' else self.va)[min(g, self.n-1)].append((text, False))

def emit_stream(a, mf, gp, lq, pre=None):
    for i, (m, tags) in enumerate(mf):
        for tg in tags:
            w = lq.wait(tg)
            if w: a(w)
        a(m)
        for lst in (gp.ds[i], gp.va[i]):
            for x, _ in lst:
                t = x(lq) if callable(x) else x
                if t: a(t)

def dsop(text, tag=None):
    def f(lq):
        lq.issue(tag); return text
    return f
def dswait(tag, then=''):
    def f(lq):
        return lq.wait(tag) + '\n' + then
    return f

SV = dict(l8=0, pa=1, idx=2, k1=3, mf=12, acc=40, w=64)
def tile_of(w, u):
    if u < 5: return (u, w)
    order = {(0, 5): (5, 0), (1, 5): (5, 1), (2, 5): (5, 2), (2, 6): (5, 3), (0, 6): (6, 0), (1, 6): (6, 1), (0, 7): (6, 2), (1, 7): (6, 3)}
    return order[(w, u)]
NUNIT = [8, 8, 7, 5]
F = dict(l16=4, px=5, pm=6, mk0=7, mk1=8, mk2=9, wz=10, xf=88, tf=200, sa=228, t=240)

def score_setup(a, stamps):
    V = SV; LN = 44
    a(f'v_mov_b32 v{LN}, v1')
    team_register(a)
    common_addrs(a, V, LN)
    img_addr(a, V['k1'], LN+1, LN)
    g, cc, par, ib, t = LN+1, LN+2, LN+3, LN+4, LN+5
    a(f"""
    v_lshlrev_b32 v{F['l16']}, 4, v{LN}
    v_lshrrev_b32 v{g}, 4, v{LN}
    v_bfe_u32 v{cc}, v{LN}, 2, 2
    v_bfe_u32 v{par}, v{LN}, 1, 1
    v_and_b32 v{ib}, 1, v{LN}
    v_and_b32 v{t}, 15, v{LN}
    v_lshlrev_b32 v{F['px']}, 4, v{t}
    v_lshrrev_b32 v{t}, 1, v{g}
    v_lshl_add_u32 v{F['px']}, v{t}, 8, v{F['px']}
    v_and_b32 v{t}, 1, v{g}
    v_lshl_add_u32 v{F['px']}, v{t}, 3, v{F['px']}
    s_and_b32 s{S_T0}, s{S_ROLE}, 1
    s_lshl_b32 s{S_T0}, s{S_T0}, 5
    s_lshr_b32 s{S_T1}, s{S_ROLE}, 1
    s_lshl_b32 s{S_T1}, s{S_T1}, 9
    s_add_u32 s{S_T0}, s{S_T0}, s{S_T1}
    s_add_u32 s{S_T0}, s{S_T0}, 8192
    v_add_u32 v{F['pm']}, s{S_T0}, v{F['px']}
    s_lshl_b32 s{S_T0}, s{S_ROLE}, 9
    v_add_u32 v{F['px']}, s{S_T0}, v{F['px']}
    v_lshlrev_b32 v{t}, 4, v{ib}
    v_mov_b32 v{F['mk2']}, 0xffff
    v_lshlrev_b32 v{F['mk2']}, v{t}, v{F['mk2']}
    v_cmp_eq_u32 vcc, v{cc}, v{g}
    v_mov_b32 v{t}, 0
    v_cndmask_b32 v{F['mk2']}, v{t}, v{F['mk2']}, vcc
    v_cmp_eq_u32 vcc, 0, v{par}
    v_mov_b32 v{t+1}, 0xff800000
    v_cndmask_b32 v{F['mk0']}, v{t}, v{F['mk2']}, vcc
    v_cndmask_b32 v{F['mk1']}, v{F['mk2']}, v{t}, vcc
    v_cndmask_b32 v{F['wz']}, v{t+1}, v{t}, vcc
    s_mul_i32 s{S_T1}, s{S_ROLE}, {28*14336}
    s_add_u32 s{S_T1}, s{S_T1}, {L.WT}
    """)
    done = a.newlabel('L_sw')
    for w in range(4):
        nx = a.newlabel('L_swn')
        if w < 3: a(f's_cmp_lg_u32 s{S_WAVE}, {w}\ns_cbranch_scc1 {nx}')
        bud = [0]
        for u in range(NUNIT[w]):
            b, ga = tile_of(w, u)
            a(f's_add_u32 s{S_T0}, s{S_T1}, {(4*b+ga)*14336}')
            load_1k_run(a, [wreg_half(u*7 + k//2, V['w'], k % 2) for k in range(14)], F['l16'], S_T0, budget=bud)
        if w < 3: a(f's_branch {done}\n{nx}:')
    a(f"""
{done}:
    s_mov_b32 s{S_STEP}, 0
    s_mov_b32 s{S_MOFF}, {L.MB_M}
    s_mov_b32 s{S_POFF}, {L.MB_P}
    s_mov_b32 s{S_GOFF}, {L.XP}
    s_lshl_b32 s{S_STMP}, s{S_ROLE}, 2
    s_add_u32 s{S_STMP}, s{S_STMP}, s{S_WAVE}
    s_lshl_b32 s{S_STMP}, s{S_STMP}, 12
    s_add_u32 s{S_STMP}, s{S_STMP}, {L.STAMP}
    s_waitcnt vmcnt(0)
    """)
    team_mode(a, V['mf'], V['mf']+1)

def step_advance(a, gstride):
    a(f"""
    s_add_u32 s{S_STEP}, s{S_STEP}, 1
    s_add_u32 s{S_MOFF}, s{S_MOFF}, 8192
    s_add_u32 s{S_POFF}, s{S_POFF}, 16384
    s_add_u32 s{S_GOFF}, s{S_GOFF}, {gstride}
    s_add_u32 s{S_XOFF}, s{S_XOFF}, {114688}
    s_add_u32 s{S_STMP}, s{S_STMP}, 64
    """)

def rowred(a, op, x):
    for m in ('row_ror:8', 'row_ror:4', 'row_ror:2', 'row_ror:1'):
        for r in (x, x+1):
            a(f'{op}_dpp v{r}, v{r}, v{r} {m} row_mask:0xf bank_mask:0xf')

def score_wave(a, w, pf, stamps, cfg):
    V = SV; idx = V['idx']; mf = V['mf']
    top = a.newlabel(f'L_sc{w}_top')
    nunit = NUNIT[w]
    accof = lambda u: V['acc'] + 4*(u % 6)
    ST = (lambda k: f's_memtime s[{40+2*k}:{41+2*k}]') if stamps else (lambda k: '')
    xf, tf, sa, T = F['xf'], F['tf'], F['sa'], F['t']
    def load_x():
        a(f's_mov_b32 s{S_T0}, s{S_GOFF}')
        load_1k_run(a, [vr(xf + 4*k, 4) for k in range(28)], F['l16'], S_T0)
    if w == 3:
        load_x()
        a(f'v_mov_b32 v{tf+27}, 0')
    a.label(top)
    for u in range(min(6, nunit)):
        a(f'v_mov_b64 v[{accof(u)}:{accof(u)+1}], 0\nv_mov_b64 v[{accof(u)+2}:{accof(u)+3}], 0')
    if w == 3:
        for k in range(4): a(f'v_mov_b64 v[{sa+2*k}:{sa+2*k+1}], 0')
    stamp(a, stamps, 0)
    poll_m(a, V)
    stamp(a, stamps, 1)
    lq = Q('lgkmcnt', 15)
    for b in range(7):
        for hf in range(2):
            a(f"ds_read_b64_tr_b16 v[{mf+4*b+2*hf}:{mf+4*b+2*hf+1}], v{V['l8']} offset:{LDS_M+b*1024+hf*512}")
            lq.issue(('mf', b))
    ms = []
    for u in range(nunit):
        for b in range(7):
            ms.append((SM(accof(u), mf+4*b, wreg(u*7 + b, V['w']), idx), [('mf', b)] if u == 0 else []))
    def smfma(b):
        t4 = tf + 4*b
        return [(f"v_mfma_f32_16x16x32_bf16 v[{sa+8}:{sa+11}], v[{t4}:{t4+3}], v[{mf+4*b}:{mf+4*b+3}], " + ('0' if b == 0 else f'v[{sa+8}:{sa+11}]'), [('tf', b)]),
                (SM(sa, t4, vr(xf + 8*b, 8), idx), []),
                (SM(sa+4, t4, vr(xf + 56 + 8*b, 8), idx), [])]
    def tread(b, hf):
        return dsop(f"ds_read_b64_tr_b16 v[{tf+4*b+2*hf}:{tf+4*b+2*hf+1}], v{V['l8']} offset:{LDS_T+b*1024+hf*512}", ('tf', b))
    nT = len(ms)
    if w == 3:
        for b in range(4): ms += smfma(b)
    n = len(ms)
    gp = Gaps(n)
    def post(u):
        A = accof(u); b, ga = tile_of(w, u)
        va = [f'v_add_f32 v{A}, v{A}, v{A+2}', f'v_add_f32 v{A+1}, v{A+1}, v{A+3}', f'v_cvt_pk_bf16_f32 v{A}, v{A}, v{A+1}']
        ds = [dsop(f"ds_write_b32 v{V['k1']}, v{A} offset:{LDS_T+b*1024+ga*128}", ('k', u))]
        return va, ds
    for u in range(nunit - (0 if w == 3 else 1)):
        va, ds = post(u)
        g = 7*(u+1) + 2
        for x in va: g = gp.put('va', g, x) + 1
        for x in ds: g = gp.put('ds', g, x, excl=True) + 1
    for u in range(6, nunit):
        g = 7*(u-6+2) - 1
        A = accof(u)
        g = gp.put('va', g, f'v_mov_b64 v[{A}:{A+1}], 0') + 1
        g = gp.put('va', g, f'v_mov_b64 v[{A+2}:{A+3}], 0') + 1
    ba = cfg['ba'][w]; bb = cfg['bb'][w]
    gp.force('ds', ba, dswait(('k', cfg['bak']), ST(5) + '\ns_barrier\n' + ST(6)))
    if w < 2:
        gp.force('ds', bb, dswait(('k', 5), ST(7) + '\ns_barrier\n' + ST(8)))
    if w == 2 and cfg['touch']:
        gp.force('ds', 8, f"""s_mul_i32 s{S_T0}, s{S_ROLE}, 1792
            s_add_u32 s{S_T0}, s{S_T0}, s{S_GOFF}
            s_add_u32 s{S_T0}, s{S_T0}, 28672
            buffer_load_dwordx4 v[8:11], v{F['l16']}, {WSRD}, s{S_T0} offen
            buffer_load_dwordx4 v[8:11], v{F['l16']}, {WSRD}, s{S_T0} offen offset:768""")
        gp.force('ds', 10, f"""buffer_load_dword v8, v{F['px']}, {WSRD}, s{S_POFF} offen sc1
            buffer_load_dword v9, v{F['pm']}, {WSRD}, s{S_POFF} offen sc1""")
    if w == 3:
        for b in range(cfg['bak']+1):
            for hf in range(2): gp.force('ds', ba, tread(b, hf))
        assert cfg['bak'] == 3
        gp.force('ds', nT-1, 's_waitcnt vmcnt(0)')
    emit_stream(a, ms, gp, lq)
    if w < 3:
        va, ds = post(nunit-1)
        for x in va: a(x)
        for x in ds: a(x(lq))
        a(lq.drain())
        if w == 2:
            a(ST(7) + '\ns_barrier\n' + ST(8))
        stamp(a, stamps, 2)
        a('s_barrier')
    else:
        a(lq.drain())
        a(ST(7) + '\ns_barrier\n' + ST(8))
        def run(blocks):
            for b in blocks:
                for hf in range(2): a(tread(b, hf)(lq))
            for b in blocks:
                for m, tags in smfma(b):
                    for tg in tags:
                        wt = lq.wait(tg)
                        if wt: a(wt)
                    a(m)
        run((4, 5))
        stamp(a, stamps, 2)
        a('s_barrier')
        stamp(a, stamps, 3)
        run((6,))
        s = T
        mx = T+6; z = T+8; EA = tf; B1 = tf+4; B2 = tf+8; D1 = tf+12; D2 = tf+16; rz = T+10
        a(f"""
        v_mov_b64 v[{B1+2}:{B1+3}], 0
        v_mov_b64 v[{B2}:{B2+1}], 0
        v_mov_b32 v{B2+3}, 0
        v_mov_b32 v{EA+3}, 0
        v_add_f32_dpp v{s+4}, v{sa+10}, v{sa+8} {QP}
        v_add_f32_dpp v{s+5}, v{sa+11}, v{sa+9} {QP}
        v_add_f32 v{s+4}, v{s+4}, v{F['wz']}
        v_add_f32 v{s+5}, v{s+5}, v{F['wz']}
        v_add_f32 v{s}, v{sa}, v{sa+2}
        v_add_f32 v{s+1}, v{sa+1}, v{sa+3}
        v_add_f32 v{s+2}, v{sa+4}, v{sa+6}
        v_add_f32 v{s+3}, v{sa+5}, v{sa+7}
        v_max3_f32 v{mx}, v{s}, v{s+4}, v{s+2}
        v_max3_f32 v{mx+1}, v{s+1}, v{s+5}, v{s+3}
        """)
        rowred(a, 'v_max_f32', mx)
        for k in range(6): a(f'v_sub_f32 v{s+k}, v{s+k}, v{mx+(k&1)}')
        for k in range(6): a(f'v_exp_f32 v{s+k}, v{s+k}')
        a(f"""
        v_add_f32 v{z}, v{s}, v{s+2}
        v_add_f32 v{z+1}, v{s+1}, v{s+3}
        v_add_f32 v{z}, v{z}, v{s+4}
        v_add_f32 v{z+1}, v{z+1}, v{s+5}
        """)
        fill = [f'v_cvt_pk_bf16_f32 v{EA+k}, v{s+2*k}, v{s+2*k+1}' for k in range(3)]
        for m in ('row_ror:8', 'row_ror:4', 'row_ror:2', 'row_ror:1'):
            if fill: a(fill.pop(0))
            for r in (z, z+1):
                a(f'v_add_f32_dpp v{r}, v{r}, v{r} {m} row_mask:0xf bank_mask:0xf')
        a(f"""
        v_rcp_f32 v{z}, v{z}
        v_rcp_f32 v{z+1}, v{z+1}
        v_cvt_pk_bf16_f32 v{rz}, v{z}, v{z+1}
        v_and_b32 v{B1}, v{rz}, v{F['mk0']}
        v_and_b32 v{B1+1}, v{rz}, v{F['mk1']}
        v_and_b32 v{B2+2}, v{rz}, v{F['mk2']}
        v_mfma_f32_16x16x32_bf16 v[{D1}:{D1+3}], v[{EA}:{EA+3}], v[{B1}:{B1+3}], 0
        v_mfma_f32_16x16x32_bf16 v[{D2}:{D2+3}], v[{EA}:{EA+3}], v[{B2}:{B2+3}], 0
        v_cvt_pk_bf16_f32 v{D1}, v{D1}, v{D1+1}
        v_cvt_pk_bf16_f32 v{D1+1}, v{D1+2}, v{D1+3}
        buffer_store_dwordx2 v[{D1}:{D1+1}], v{F['px']}, {WSRD}, s{S_POFF} offen {pf}
        v_cvt_pk_bf16_f32 v{D2}, v{D2}, v{D2+1}
        v_cvt_pk_bf16_f32 v{D2+1}, v{D2+2}, v{D2+3}
        s_mov_b32 exec_lo, 0x33333333
        s_mov_b32 exec_hi, 0x33333333
        buffer_store_dwordx2 v[{D2}:{D2+1}], v{F['pm']}, {WSRD}, s{S_POFF} offen {pf}
        s_mov_b64 exec, -1
        """)
        stamp(a, stamps, 4)
    stamp_flush(a, stamps, 9, mf)
    step_advance(a, 28672)
    a(f's_cmp_ge_u32 s{S_STEP}, 63\ns_cbranch_scc1 L_exit')
    if w == 3: load_x()
    if cfg['ssleep'][w]:
        a(f"s_sleep {cfg['ssleep'][w]}")
    a(f's_branch {top}')

CV = dict(l8=0, pa=1, idx=2, l16=3, pr=4, mw=6, lw=7, rw=8, rr=5, mf=12, acc=40, itm=72, vx=88, uf=96, tw=128, w=176)

def comb_setup(a, stamps):
    V = CV; LN = 112
    a(f'v_mov_b32 v{LN}, v1')
    team_register(a)
    common_addrs(a, V, LN)
    img_addr(a, V['mw'], LN+1, LN)
    a(f"""
    s_sub_u32 s{S_ROLE}, s{S_ROLE}, 16
    s_lshl_b32 s{S_ROLE}, s{S_ROLE}, 1
    s_and_b32 s{S_T0}, s{S_WAVE}, 1
    s_add_u32 s{S_T1}, s{S_ROLE}, s{S_T0}
    s_lshr_b32 s{S_T0}, s{S_T1}, 2
    s_lshl_b32 s{S_T0}, s{S_T0}, 10
    s_and_b32 s{S_T1}, s{S_T1}, 3
    s_lshl_b32 s{S_T1}, s{S_T1}, 7
    s_add_u32 s{S_T0}, s{S_T0}, s{S_T1}
    s_add_u32 s{S_T0}, s{S_T0}, 8192
    v_add_u32 v{V['mw']}, s{S_T0}, v{V['mw']}
    v_lshlrev_b32 v{V['l16']}, 4, v{LN}
    s_mul_i32 s{S_T0}, s{S_WAVE}, 28672
    s_add_u32 s{S_T0}, s{S_T0}, {LDS_BW}
    v_add_u32 v{V['lw']}, s{S_T0}, v{V['l16']}
    s_lshl_b32 s{S_T0}, s{S_WAVE}, 10
    v_add_u32 v{V['rw']}, s{S_T0}, v{V['l16']}
    v_add_u32 v{V['pr']}, s{S_T0}, v{V['rw']}
    s_and_b32 s{S_T0}, s{S_WAVE}, 1
    s_lshl_b32 s{S_T0}, s{S_T0}, 3
    v_add_u32 v{V['rr']}, s{S_T0}, v{V['l16']}
    s_mul_i32 s{S_T1}, s{S_WAVE}, {4*28}
    s_add_u32 s{S_T1}, s{S_T1}, s{S_ROLE}
    s_add_u32 s{S_T1}, s{S_T1}, 448
    s_mul_i32 s{S_T1}, s{S_T1}, 14336
    s_add_u32 s{S_T1}, s{S_T1}, {L.WT}
    """)
    toff = lambda u: ((u >> 1)*28 + (u & 1))*14336
    for u in (6, 7):
        a(f's_add_u32 s{S_T0}, s{S_T1}, {toff(u)}')
        load_1k_run(a, [vr(12 + 4*k, 4) for k in range(14)], V['l16'], S_T0)
        for k in range(14):
            a(f's_waitcnt vmcnt({13-k})')
            a(f"ds_write_b128 v{V['lw']}, v[{12+4*k}:{12+4*k+3}] offset:{(u-6)*14336+k*1024}")
        a('s_waitcnt lgkmcnt(0)')
    bud = [0]
    for u in range(6):
        a(f's_add_u32 s{S_T0}, s{S_T1}, {toff(u)}')
        load_1k_run(a, [wreg_half(u*7 + k//2, V['w'], k % 2) for k in range(14)], V['l16'], S_T0, budget=bud)
    a(f"""
    s_mov_b32 s{S_STEP}, 0
    s_mov_b32 s{S_MOFF}, {L.MB_M}
    s_mov_b32 s{S_POFF}, {L.MB_P}
    s_lshl_b32 s{S_GOFF}, s{S_ROLE}, 14
    s_lshl_b32 s{S_T0}, s{S_WAVE}, 12
    s_add_u32 s{S_GOFF}, s{S_GOFF}, s{S_T0}
    s_add_u32 s{S_GOFF}, s{S_GOFF}, {L.U}
    s_lshl_b32 s{S_XOFF}, s{S_ROLE}, 12
    s_add_u32 s{S_XOFF}, s{S_XOFF}, {L.VM}
    s_lshr_b32 s{S_STMP}, s{S_ROLE}, 1
    s_add_u32 s{S_STMP}, s{S_STMP}, 16
    s_lshl_b32 s{S_STMP}, s{S_STMP}, 2
    s_add_u32 s{S_STMP}, s{S_STMP}, s{S_WAVE}
    s_lshl_b32 s{S_STMP}, s{S_STMP}, 12
    s_add_u32 s{S_STMP}, s{S_STMP}, {L.STAMP}
    s_waitcnt vmcnt(0)
    """)
    for k in range(16): a(f"v_mov_b32 v{V['itm']+k}, 0")
    for k in range(32): a(f"v_mov_b32 v{V['uf']+k}, 0")
    team_mode(a, V['mf'], V['mf']+1)

def comb_wave(a, pf, stamps, cfg):
    V = CV; idx = V['idx']; mf = V['mf']; tw = V['tw']; uf = V['uf']
    top = a.newlabel('L_cb_top')
    def store_vx():
        if cfg['nox']: return
        a(f"""
        s_add_u32 s{S_T1}, s{S_XOFF}, 4096
        buffer_store_dwordx4 v[{V['vx']}:{V['vx']+3}], v{V['rw']}, {WSRD}, s{S_XOFF} offen {cfg['xflags']}
        buffer_store_dwordx4 v[{V['vx']+4}:{V['vx']+7}], v{V['rw']}, {WSRD}, s{S_T1} offen {cfg['xflags']}
        """)
    a.label(top)
    lq = Q('lgkmcnt', 15)
    for u in range(8):
        A = V['acc'] + 4*u
        a(f'v_mov_b64 v[{A}:{A+1}], 0\nv_mov_b64 v[{A+2}:{A+3}], 0')
    def lread(lam, hf):
        return dsop(f"ds_read_b128 v[{tw+8*(lam%4)+4*hf}:{tw+8*(lam%4)+4*hf+3}], v{V['lw']} offset:{lam*2048+hf*1024}", ('lw', lam))
    for lam in range(4):
        for hf in range(2): a(lread(lam, hf)(lq))
    stamp(a, stamps, 0)
    poll_m(a, V)
    lq.drain()
    stamp(a, stamps, 1)
    a(f's_add_u32 s{S_T0}, s{S_GOFF}, 16384')
    for k in range(0 if cfg['nou'] else 8):
        a(f"buffer_load_dwordx4 v[{uf+4*k}:{uf+4*k+3}], v{V['l16']}, {WSRD}, s{S_GOFF if k < 4 else S_T0} offen offset:{(k%4)*1024} {cfg['xflags']}")
    if cfg['touch']:
        a(f"buffer_load_dword v9, v{V['mw']}, {WSRD}, s{S_MOFF} offen sc1")
    for b in range(7):
        for hf in range(2):
            a(f"ds_read_b64_tr_b16 v[{mf+4*b+2*hf}:{mf+4*b+2*hf+1}], v{V['l8']} offset:{LDS_M+b*1024+hf*512}")
            lq.issue(('mf', b))
    ms = []; last = {}
    rb = 0
    for p in range(56):
        if p % 4 == 3:
            lam = p // 4; u = 6 + lam // 7; b = lam % 7
            ms.append((SM(V['acc']+4*u, mf+4*b, vr(tw+8*(lam % 4), 8), idx), [('mf', b), ('lw', lam)]))
        else:
            u = rb // 7; b = rb % 7; rb += 1
            ms.append((SM(V['acc']+4*u, mf+4*b, wreg(u*7+b, V['w']), idx), [('mf', b)]))
        last[u] = p
    gp = Gaps(56)
    for lam in range(4, 14):
        g = 4*(lam-4) + 3
        g = gp.put('ds', g, lread(lam, 0)) + 1
        gp.put('ds', g, lread(lam, 1))
    def post(u):
        A = V['acc'] + 4*u; hl = u >> 1; ctl = u & 1
        return [f'v_add_f32 v{A}, v{A}, v{A+2}', f'v_add_f32 v{A+1}, v{A+1}, v{A+3}',
                f"v_cvt_pk_bf16_f32 v{V['itm']+8*ctl+4*(hl>>1)+(hl&1)}, v{A}, v{A+1}", f"v_cvt_pk_bf16_f32 v{V['vx']+4*ctl+hl}, v{A}, v{A+1}"]
    tail = []
    for u in sorted(last, key=lambda u: last[u]):
        g = last[u] + 3
        if g + 4 >= 56: tail += post(u); continue
        for x in post(u): g = gp.put('va', g, x) + 1
    emit_stream(a, ms, gp, lq)
    for x in tail: a(x)
    store_vx()
    a(f's_cmp_ge_u32 s{S_STEP}, 63\ns_cbranch_scc1 L_exit')
    A = V['acc']
    for k in range(4): a(f'v_mov_b64 v[{A+2*k}:{A+2*k+1}], 0')
    a(f's_add_u32 s{S_T0}, s{S_POFF}, 8192')
    stamp(a, stamps, 2)
    if stamps: a('s_waitcnt vmcnt(0)')
    stamp(a, stamps, 3)
    if cfg['psleep']: a(f"s_sleep {cfg['psleep']}")
    l = a.newlabel('L_pp'); d = a.newlabel('L_ppd'); t = 9
    a(f"""
    s_mov_b32 s{S_SPIN}, 0
{l}:
    buffer_load_dwordx4 v[{mf}:{mf+3}], v{V['pr']}, {WSRD}, s{S_POFF} offen sc1
    buffer_load_dwordx4 v[{mf+4}:{mf+7}], v{V['pr']}, {WSRD}, s{S_POFF} offen offset:1024 sc1
    buffer_load_dwordx4 v[{mf+8}:{mf+11}], v{V['rw']}, {WSRD}, s{S_T0} offen sc1
    s_add_u32 s{S_SPIN}, s{S_SPIN}, 1
    s_waitcnt vmcnt(2)
    v_max_u32 v{t}, v{mf}, v{mf+2}
    s_waitcnt vmcnt(1)
    v_max3_u32 v{t}, v{t}, v{mf+4}, v{mf+6}
    s_waitcnt vmcnt(0)
    v_max3_u32 v{t}, v{t}, v{mf+8}, v{mf+10}
    v_cmp_eq_u32 vcc, -1, v{t}
    s_cbranch_vccz {d}
    s_cmp_lt_u32 s{S_SPIN}, s{S_LIM}
    s_cbranch_scc1 {l}
    s_mov_b32 s{S_LIM}, 1
{d}:
    """)
    stamp(a, stamps, 4)
    for ctl in range(2):
        a(SM(A+4*ctl, mf, vr(uf+16*ctl, 8), idx))
        a(SM(A+4*ctl, mf+4, vr(uf+16*ctl+8, 8), idx))
        a(SM(A+4*ctl, mf+8, vr(V['itm']+8*ctl, 8), idx))
    R = A+8
    fin = a.newlabel('L_cbf')
    a(f"""
    v_add_f32 v{R}, v{A}, v{A+2}
    v_add_f32 v{R+1}, v{A+1}, v{A+3}
    v_add_f32 v{R+2}, v{A+4}, v{A+6}
    v_add_f32 v{R+3}, v{A+5}, v{A+7}
    ds_write_b128 v{V['rw']}, v[{R}:{R+3}] offset:{LDS_RED}
    s_cmp_ge_u32 s{S_WAVE}, 2
    s_waitcnt lgkmcnt(0)
    s_barrier
    s_cbranch_scc1 {fin}
    ds_read_b64 v[{R}:{R+1}], v{V['rr']} offset:{LDS_RED}
    ds_read_b64 v[{R+2}:{R+3}], v{V['rr']} offset:{LDS_RED+1024}
    ds_read_b64 v[{R+4}:{R+5}], v{V['rr']} offset:{LDS_RED+2048}
    ds_read_b64 v[{R+6}:{R+7}], v{V['rr']} offset:{LDS_RED+3072}
    s_add_u32 s{S_T0}, s{S_MOFF}, {L.MB_Y - L.MB_M}
    s_waitcnt lgkmcnt(2)
    v_pk_add_f32 v[{R}:{R+1}], v[{R}:{R+1}], v[{R+2}:{R+3}]
    s_waitcnt lgkmcnt(0)
    v_pk_add_f32 v[{R+4}:{R+5}], v[{R+4}:{R+5}], v[{R+6}:{R+7}]
    v_pk_add_f32 v[{R}:{R+1}], v[{R}:{R+1}], v[{R+4}:{R+5}]
    v_cvt_pk_bf16_f32 v{R}, v{R}, v{R+1}
    buffer_store_dword v{R}, v{V['mw']}, {WSRD}, s{S_MOFF} offen {pf}
    buffer_store_dword v{R}, v{V['mw']}, {WSRD}, s{S_T0} offen {cfg['xflags']}
{fin}:
    """)
    stamp(a, stamps, 5)
    stamp_flush(a, stamps and cfg['cflush'], 6, 10)
    step_advance(a, 458752)
    if cfg['csleep']:
        a(f"s_sleep {cfg['csleep']}")
    a(f's_branch {top}')

DEFAULT_CFG = dict(ba=[35, 35, 34, 34], bak=3, bb=[53, 53, 0, 0], xflags='', ssleep=[12, 12, 12, 0], csleep=0, psleep=0, touch=1,
                   nou=0, nox=0, cflush=1)

def team_body(a, stamps=False, cfg=None):
    cfg = dict(DEFAULT_CFG, **(cfg or {}))
    a(f's_cmp_ge_u32 s{S_ROLE}, 16\ns_cbranch_scc1 L_comb')
    score_setup(a, stamps)
    for fast in (1, 0):
        a(f's_cmp_lg_u32 s{S_FAST}, {fast}\ns_cbranch_scc1 L_sc_next{fast}')
        for w in range(4):
            if w < 3:
                a(f's_cmp_lg_u32 s{S_WAVE}, {w}\ns_cbranch_scc1 L_sc{fast}_n{w}')
            score_wave(a, w, '' if fast else 'sc1', stamps, cfg)
            if w < 3: a.label(f'L_sc{fast}_n{w}')
        a.label(f'L_sc_next{fast}')
    a('s_branch L_exit')
    a.label('L_comb')
    comb_setup(a, stamps)
    for fast in (1, 0):
        a(f's_cmp_lg_u32 s{S_FAST}, {fast}\ns_cbranch_scc1 L_cb_next{fast}')
        comb_wave(a, '' if fast else 'sc1', stamps, cfg)
        a.label(f'L_cb_next{fast}')
    a('s_branch L_exit')
```

```python
from build import *
import team, prep, gemm, attn, ffn
HEADER = open('sequential_preLN__memory_aug_recurrent_mem_tr__dense_activation_relu__prompt.s.ref').read().split('; Override launch')[0]
def relabel(fn, tag):
    def g(a):
        fn(a)
        import re
        for i, (k, x) in enumerate(a.items):
            if k == 'l' and x.startswith(('L_exit', 'L_role')): a.items[i] = ('l', x + tag)
            elif k == 'i' and ('L_exit' in x.text or 'L_role' in x.text):
                x.text = re.sub(r'(L_exit|L_role\w+)', lambda m: m.group(1) + tag, x.text)
    return g
def v1():
    def kg(a):
        team.prologue(a, False)
        a(f's_cmp_lt_u32 s{team.S_ROLE}, 32\ns_cbranch_scc1 L_exit\ns_sub_u32 s{team.S_ROLE}, s{team.S_ROLE}, 32')
        gemm.gemm_role(a, dict(xflags=''))
        a.label('L_exit'); a('s_endpgm')
    def kt(a):
        team.prologue(a, False)
        a(f's_cmp_ge_u32 s{team.S_ROLE}, 30\ns_cbranch_scc1 L_exit')
        team.team_body(a, False, None)
        a.label('L_exit'); a('s_endpgm')
    def ka(a):
        team.prologue(a, False)
        R = team.S_ROLE
        a(f's_bitcmp1_b32 s{R}, 4\ns_cbranch_scc1 L_exit\ns_lshr_b32 s26, s{R}, 5\ns_lshl_b32 s26, s26, 4\ns_and_b32 s{R}, s{R}, 15\ns_add_u32 s{R}, s{R}, s26')
        attn.attn_role(a, dict(xflags='', flags=0, asleep=0))
        a.label('L_exit'); a('s_endpgm')
    def kf(a):
        team.prologue(a, False)
        R = team.S_ROLE
        a(f's_and_b32 s26, s{R}, 31\ns_cmp_ge_u32 s26, 28\ns_cbranch_scc1 L_exit\ns_lshr_b32 s{R}, s{R}, 5\ns_mul_i32 s{R}, s{R}, 28\ns_add_u32 s{R}, s{R}, s26')
        ffn.ffn_role(a, dict(xflags='', flags=0), 8)
        a.label('L_exit'); a('s_endpgm')
    return assemble([('prep_kernel', prep.prep_kernel, 256, 256, 106496), ('gemm_kernel', relabel(kg, '_g'), 256, 256, 163840),
                     ('team_kernel', relabel(kt, '_t'), 256, 256, 163840), ('attn_kernel', relabel(ka, '_a'), 256, 256, 163840),
                     ('ffn_kernel', relabel(kf, '_f'), 256, 256, 163840)], HEADER)
if __name__ == '__main__':
    open(sys.argv[2], 'w').write(globals()[sys.argv[1]]())
```

```python
import re

_REG = re.compile(r'^([vas])(?:(\d+)|\[(\d+):(\d+)\])$')

def regs_of(tok):
    tok = tok.strip()
    neg = tok.lstrip('-')
    if neg.startswith('abs(') and neg.endswith(')'):
        neg = neg[4:-1]
    if neg.startswith('|') and neg.endswith('|'):
        neg = neg[1:-1]
    m = _REG.match(neg)
    if m:
        k = m.group(1)
        if m.group(2) is not None:
            return {(k, int(m.group(2)))}
        return {(k, i) for i in range(int(m.group(3)), int(m.group(4)) + 1)}
    if neg in ('vcc', 'vcc_lo', 'vcc_hi'):
        return {('s', 'vcc')}
    if neg in ('exec', 'exec_lo', 'exec_hi'):
        return {('s', 'exec')}
    if neg == 'm0':
        return {('s', 'm0')}
    return set()

TRANS = ('v_exp_f32', 'v_log_f32', 'v_rcp_f32', 'v_rsq_f32', 'v_sqrt_f32', 'v_sin_f32', 'v_cos_f32')

class Ins:
    __slots__ = ('text', 'op', 'rd', 'wr', 'kind', 'passes', 'srcc', 'dpp', 'data')
    def __init__(self, text):
        self.text = text
        t = text.split(';')[0].strip()
        parts = t.split(None, 1)
        op = parts[0]
        self.op = op
        rest = parts[1] if len(parts) > 1 else ''
        ops = [o.strip() for o in rest.split(',')] if rest else []
        j = []
        depth = 0
        for o in ops:
            if depth > 0:
                j[-1] += ',' + o
            else:
                j.append(o)
            depth += o.count('[') - o.count(']') + o.count('(') - o.count(')')
        ops = j
        mods = ''
        if ops:
            last = ops[-1].split(None, 1)
            ops[-1] = last[0]
            mods = last[1] if len(last) > 1 else ''
        R = [regs_of(o) for o in ops]
        self.rd, self.wr = set(), set()
        self.passes = 0
        self.srcc = set()
        self.dpp = False
        self.data = set()
        allr = set().union(*R) if R else set()
        if op.startswith('v_mfma') or op.startswith('v_smfmac'):
            self.kind = 'mfma'
            self.passes = 8 if '32x32' in op else 4
            self.wr = R[0]
            if op.startswith('v_smfmac'):
                self.srcc = R[0]
                self.rd = R[1] | R[2] | R[3]
            else:
                self.srcc = R[3]
                self.rd = R[1] | R[2]
        elif op.startswith('v_'):
            self.kind = 'valu'
            self.dpp = ('_dpp' in op) or ('quad_perm' in mods) or ('row_' in mods)
            if op.startswith('v_cmp'):
                self.wr = R[0]; self.rd = set().union(*R[1:])
            elif op.startswith('v_permlane') :
                self.wr = R[0] | R[1]; self.rd = R[0] | R[1]
            elif op.startswith('v_readfirstlane') or op.startswith('v_readlane'):
                self.wr = R[0]; self.rd = set().union(*R[1:])
            elif '_co_' in op:
                self.wr = R[0] | R[1]; self.rd = set().union(*R[2:])
            else:
                self.wr = R[0]; self.rd = set().union(*R[1:]) if len(R) > 1 else set()
                if op.startswith(('v_fmac', 'v_pk_fmac', 'v_dot2c', 'v_writelane')) or self.dpp:
                    self.rd |= R[0]
                if op.startswith('v_cndmask') and len(R) == 3:
                    self.rd |= {('s', 'vcc')}
        elif op.startswith('ds_'):
            self.kind = 'ds'
            if op.startswith(('ds_read', 'ds_bpermute', 'ds_permute', 'ds_swizzle')) or '_rtn' in op:
                self.wr = R[0]; self.rd = set().union(*R[1:]) if len(R) > 1 else set()
            else:
                self.rd = allr
        elif op.startswith(('buffer_', 'global_', 'flat_')):
            self.kind = 'vmem'
            islds = ' lds' in (' ' + mods) or '_lds_' in op
            if op in ('buffer_wbl2', 'buffer_inv'):
                pass
            elif 'load' in op and not islds:
                self.wr = R[0]; self.rd = set().union(*R[1:])
                if 'd16' in op:
                    self.rd |= R[0]
            elif islds:
                self.rd = allr | {('s', 'm0')}
            elif 'atomic' in op:
                self.rd = allr
                if 'sc0' in mods:
                    self.wr = R[0]
            else:
                self.rd = allr
                if op.endswith(('x3', 'x4')):
                    self.data = R[0] if op.startswith('buffer_') else R[1]
        elif op.startswith('s_'):
            self.kind = 'salu'
            if op.startswith(('s_cmp', 's_cbranch', 's_branch', 's_waitcnt', 's_barrier', 's_nop', 's_sleep',
                              's_endpgm', 's_setprio', 's_bitcmp', 's_setpc')):
                self.rd = allr
            else:
                self.wr = R[0] if R else set(); self.rd = set().union(*R[1:]) if len(R) > 1 else set()
                if 'saveexec' in op:
                    self.wr |= {('s', 'exec')}
        else:
            raise ValueError('unknown instruction: ' + text)

class Asm:
    def __init__(self):
        self.items = []
        self.nlab = 0
        self.cold = []
    def __call__(self, text):
        for line in text.split('\n'):
            line = line.strip()
            if not line or line.startswith(';'):
                continue
            if line.endswith(':;nf'):
                self.items.append(('r', line[:-3]))
            elif line.endswith(':'):
                self.items.append(('l', line[:-1]))
            else:
                self.items.append(('i', Ins(line)))
    def flush_cold(self):
        c, self.cold = self.cold, []
        for f in c: f()
    def raw(self, text):
        self.items.append(('r', text))
    def label(self, name):
        self.items.append(('l', name))
    def newlabel(self, stem='L'):
        self.nlab += 1
        return '%s_%d' % (stem, self.nlab)

    def finish(self):
        out = []
        ti = 0; tm = 0
        last_mfma_t = None; last_mfma_p = 0
        valu_w = {}; trans_w = {}; valu_sw = {}; mfma_w = {}; mfma_c = {}; store_d = {}
        m0_w = None
        generic = None
        def need(ins):
            ni = 0; nm = 0
            def req(pt, ws):
                nonlocal ni
                ni = max(ni, pt + ws + 1)
            def reqm(pt, ws):
                nonlocal nm
                nm = max(nm, pt + ws + 1)
            vr = [r for r in ins.rd if r[0] in 'va']
            vw = [r for r in ins.wr if r[0] in 'va']
            sr = [r for r in ins.rd if r[0] == 's']
            if ins.kind == 'mfma':
                for r in list(vr) + list(ins.srcc):
                    if r in valu_w: req(valu_w[r], 2)
                if generic is not None: req(generic, 2)
                for r in vr:
                    if r in mfma_w: reqm(mfma_w[r][0], mfma_w[r][1] + 4)
                for r in ins.srcc:
                    if r in mfma_w:
                        pt, pp, D = mfma_w[r]
                        if D == frozenset(ins.srcc) and pp == ins.passes: pass
                        else: reqm(pt, pp + 2)
                for r in vw:
                    if r in mfma_w and r not in ins.srcc:
                        reqm(mfma_w[r][0], mfma_w[r][1] + 4)
            else:
                for r in vr + vw:
                    if r in mfma_w: reqm(mfma_w[r][0], mfma_w[r][1] + 4)
                if ins.kind == 'valu':
                    for r in vw:
                        if r in mfma_c: reqm(mfma_c[r][0], mfma_c[r][1] - 1)
                        if r in store_d: req(store_d[r], 2)
                    if ins.dpp or ins.op.startswith('v_permlane'):
                        for r in vr:
                            if r in valu_w: req(valu_w[r], 2)
                        if generic is not None: req(generic, 2)
                    if ins.op.startswith(('v_readfirstlane', 'v_readlane')):
                        for r in vr:
                            if r in valu_w: req(valu_w[r], 1)
                        if generic is not None: req(generic, 1)
                        for r in sr:
                            if r in valu_sw: req(valu_sw[r], 4)
                    if not ins.op.startswith(TRANS):
                        for r in vr:
                            if r in trans_w: req(trans_w[r], 1)
                    for r in sr:
                        if r in valu_sw: req(valu_sw[r], 2)
                    if sr and generic is not None: req(generic, 2)
                else:
                    for r in vw:
                        if r in store_d: req(store_d[r], 1)
                    if ins.kind == 'vmem':
                        for r in sr:
                            if r in valu_sw: req(valu_sw[r], 5)
                        if ('s', 'm0') in ins.rd and m0_w is not None: req(m0_w, 1)
                    if ins.kind == 'salu':
                        for r in sr:
                            if r in valu_sw and r != ('s', 'vcc'): req(valu_sw[r], 1)
                    if ins.kind in ('vmem', 'ds'):
                        for r in vr:
                            if r in trans_w: req(trans_w[r], 1)
            return ni, nm
        def pad(k):
            nonlocal ti, tm
            while k > 0:
                c = min(k, 16)
                out.append('    s_nop %d' % (c - 1))
                ti += c; tm += c; k -= c
        def flush_long():
            k = 0
            for r, (pt, pp, D) in mfma_w.items(): k = max(k, pt + pp + 4 + 1 - tm)
            for r, pt in valu_sw.items():
                if r != ('s', 'vcc'): k = max(k, pt + 5 + 1 - ti)
            for r, pt in store_d.items(): k = max(k, pt + 2 + 1 - ti)
            for r, pt in trans_w.items(): k = max(k, pt + 1 + 1 - ti)
            return k
        for kind, x in self.items:
            if kind == 'r':
                out.append(x); continue
            if kind == 'l':
                pad(flush_long())
                out.append(x + ':')
                generic = ti - 1
                last_mfma_t = None
                continue
            ins = x
            if ins.op.startswith(('s_cbranch', 's_branch')) and not ins.text.endswith(';nf'):
                pad(flush_long() - 1)
            ni, nm = need(ins)
            credit = tm
            if ins.kind == 'mfma' and last_mfma_t is not None:
                credit = max(tm, last_mfma_t + last_mfma_p - 1)
            k = ni - ti
            if nm > credit: k = max(k, nm - tm)
            pad(k)
            tm = max(tm, credit)
            out.append('    ' + ins.text.replace(';nf', ''))
            if ins.kind == 'mfma':
                D = frozenset(ins.wr)
                for r in ins.wr:
                    mfma_w[r] = (tm, ins.passes, D); valu_w.pop(r, None); trans_w.pop(r, None)
                for r in ins.srcc: mfma_c[r] = (tm, ins.passes)
                last_mfma_t, last_mfma_p = tm, ins.passes
            elif ins.kind == 'valu':
                for r in ins.wr:
                    if r[0] in 'va':
                        valu_w[r] = ti; mfma_w.pop(r, None)
                        if ins.op.startswith(TRANS): trans_w[r] = ti
                        else: trans_w.pop(r, None)
                    else:
                        valu_sw[r] = ti
            else:
                for r in ins.wr:
                    if r[0] in 'va':
                        valu_w.pop(r, None); mfma_w.pop(r, None); trans_w.pop(r, None)
                    else:
                        valu_sw.pop(r, None)
                        if r == ('s', 'm0'): m0_w = ti
                for r in ins.data: store_d[r] = ti
            c = int(ins.text.split()[1].split(';')[0], 0) + 1 if ins.op == 's_nop' else 1
            ti += c; tm += c
            if len(mfma_w) > 64:
                for r in [r for r, v in mfma_w.items() if v[0] + 20 < tm]: del mfma_w[r]
            for d in (valu_sw, store_d, trans_w):
                for r in [r for r, v in d.items() if v + 8 < ti]: del d[r]
        return '\n'.join(out) + '\n'

def vr(base, n=1, k='v'):
    return '%s%d' % (k, base) if n == 1 else '%s[%d:%d]' % (k, base, base + n - 1)
def sr(base, n=1): return vr(base, n, 's')
def ar(base, n=1): return vr(base, n, 'a')

def weave(a, mf, fill_ds, fill_va):
    fd = list(fill_ds); fv = list(fill_va)
    for i, m in enumerate(mf):
        a(m)
        if fd and fd[0][0] <= i:
            a(fd.pop(0)[1])
        if fv and fv[0][0] <= i:
            a(fv.pop(0)[1])
    for _, x in fd: a(x)
    for _, x in fv: a(x)
```

```python
from asmlib import *
import layout as L
from team import *
import prep

A_SEG = 36; A_Z = 37; A_TX = 38; A_U = 39; A_S0 = 40; A_S1 = 41; A_XS = 44
AL_M = 0
AL_E = 8192
AL_ST = 24576
AL_X = 28672
AV = dict(l8=0, pa=1, idx=2, l16=3, mf=12)
TXV = lambda hl, kb: f'a[{(hl*14+kb)*4}:{(hl*14+kb)*4+3}]'
TX8 = lambda hl, b: f'a[{(hl*14+2*b)*4}:{(hl*14+2*b)*4+7}]'
def oreg(p, c):
    i = c*8 + p
    return ('v', 64 + 4*i) if i < 48 else ('a', 224 + 4*(i-48))

def dma_run(a, n, vaddr, sbase, lds_base_sgpr, flags):
    for k in range(n):
        if k % 4 == 0:
            if k: a(f's_add_u32 s{sbase}, s{sbase}, 4096\ns_add_u32 s{lds_base_sgpr}, s{lds_base_sgpr}, 4096')
            a(f's_mov_b32 m0, s{lds_base_sgpr}')
        a(f'buffer_load_dwordx4 v{vaddr}, {WSRD}, s{sbase} offen offset:{(k%4)*1024} {flags} lds')

def attn_role(a, cfg):
    V = AV; xfl = cfg['xflags']; LN = 40
    mf = V['mf']
    a(f's_mov_b32 s{S_LIM}, {SPIN_MAX*8}')
    if cfg.get('ticket'):
        a(f"""
A_top:
        v_mov_b32 v4, {LDS_ROLE}
        s_cmp_lg_u32 s{S_WAVE}, 0
        s_barrier
        s_cbranch_scc1 A_tw
        s_mov_b64 exec, 1
        v_mov_b32 v2, {L.CNT_TK}
        v_mov_b32 v3, 1
        buffer_atomic_add v3, v2, {WSRD}, 0 offen sc0
        s_waitcnt vmcnt(0)
        ds_write_b32 v4, v3
        s_mov_b64 exec, -1
        s_waitcnt lgkmcnt(0)
A_tw:
        s_barrier
        ds_read_b32 v2, v4
        s_waitcnt lgkmcnt(0)
        v_readfirstlane_b32 s{S_ROLE}, v2
        s_cmp_ge_u32 s{S_ROLE}, 128
        s_cbranch_scc1 L_exit
        """)
    a(f"""
    v_mbcnt_lo_u32_b32 v{LN}, -1, 0
    v_mbcnt_hi_u32_b32 v{LN}, -1, v{LN}
    s_load_dwordx2 s[4:5], s[0:1], 0
    s_lshr_b32 s{A_SEG}, s{S_ROLE}, 1
    s_and_b32 s{A_Z}, s{S_ROLE}, 1
    """)
    common_addrs(a, V, LN)
    a(f"""
    v_lshlrev_b32 v{V['l16']}, 4, v{LN}
    s_waitcnt lgkmcnt(0)
    """)
    prep.srd(a, A_XS, 4, 2048*896)
    q, g, t = LN+1, LN+2, LN+3
    a(f"""
    v_and_b32 v{q}, 15, v{LN}
    v_lshrrev_b32 v{g}, 4, v{LN}
    s_lshl_b32 s{S_T0}, s{A_Z}, 4
    v_add_u32 v{t}, s{S_T0}, v{q}
    v_lshlrev_b32 v{t+1}, 2, v{g}
    v_mov_b32 v{t+2}, 0
    v_mov_b32 v{t+3}, 0xff800000
    """)
    for k in range(8):
        a(f"""
        v_add_u32 v{t+4}, {(k>>2)*16 + (k&3)}, v{t+1}
        v_cmp_gt_u32 vcc, v{t+4}, v{t}
        v_cndmask_b32 v{4+k}, v{t+2}, v{t+3}, vcc
        """)
    a(f"""
    s_lshl_b32 s{A_S0}, s{A_SEG}, 7
    s_add_u32 s{A_S0}, s{A_S0}, {L.CNT_T}
    """)
    if cfg['flags']: wait_cnt(a, A_S0, 28, t)
    a(f"""
    s_mul_i32 s{A_S0}, s{A_SEG}, 28672
    s_mul_i32 s{A_S1}, s{S_WAVE}, 7168
    s_add_u32 s{A_S0}, s{A_S0}, s{A_S1}
    s_add_u32 s{A_S0}, s{A_S0}, {L.XN}
    s_add_u32 s{A_S1}, s{A_S1}, {AL_X}
    """)
    dma_run(a, 7, V['l16'], A_S0, A_S1, '')
    a(f"""
    s_mul_i32 s{A_TX}, s{A_SEG}, 458752
    s_mov_b32 s{A_U}, s{A_TX}
    s_mul_i32 s{S_T0}, s{S_WAVE}, {4*28672}
    s_add_u32 s{A_TX}, s{A_TX}, s{S_T0}
    s_mul_i32 s{S_T0}, s{A_Z}, 14336
    s_add_u32 s{A_TX}, s{A_TX}, s{S_T0}
    s_add_u32 s{A_TX}, s{A_TX}, {L.TX}
    s_mul_i32 s{S_T0}, s{S_WAVE}, {7*16384}
    s_add_u32 s{A_U}, s{A_U}, s{S_T0}
    s_add_u32 s{A_U}, s{A_U}, {L.U}
    """)
    def load_tx():
        for hl in range(4):
            a(f's_add_u32 s{S_T0}, s{A_TX}, {hl*28672}')
            load_1k_run(a, [TXV(hl, kb) for kb in range(14)], V['l16'], S_T0, xfl)
    load_tx()
    a('s_waitcnt vmcnt(56)\ns_barrier')
    KF = 64; SC = 176; LM = 48
    for kt in range(2):
        for kb in range(14):
            a(f"ds_read_b128 v[{KF+(kt*14+kb)*4}:{KF+(kt*14+kb)*4+3}], v{V['l16']} offset:{AL_X+kt*14336+kb*1024}")
    a('s_waitcnt lgkmcnt(0)')
    for hl in range(4):
        a(f's_waitcnt vmcnt({14*(3-hl)})')
        for kb in range(14):
            for kt in range(2):
                c = SC + (hl*2+kt)*4; k = KF+(kt*14+kb)*4
                a(f'v_mfma_f32_16x16x32_bf16 v[{c}:{c+3}], v[{k}:{k+3}], {TXV(hl,kb)}, ' + ('0' if kb == 0 else f'v[{c}:{c+3}]'))
    a(f"""
    s_lshl_b32 s{A_S0}, s{A_SEG}, 7
    s_add_u32 s{A_S0}, s{A_S0}, {L.CNT_U}
    """)
    if cfg['flags']: wait_cnt(a, A_S0, 28, t)
    vq = Q('vmcnt', 63)
    NR = 56
    def uload(i):
        o = []
        if i % 4 == 0: o.append(f's_add_u32 s{S_T1}, s{A_U}, {i*1024}')
        r = (i % NR)*4
        o.append(f"buffer_load_dwordx4 a[{r}:{r+3}], v{V['l16']}, {WSRD}, s{S_T1} offen offset:{(i%4)*1024} {xfl}")
        vq.issue(i)
        return '\n'.join(o)
    a('s_nop 7')
    for i in range(NR): a(uload(i))
    T = 208
    for hl in range(4):
        c = SC + hl*8
        for k in range(8): a(f'v_add_f32 v{c+k}, v{c+k}, v{4+k}')
        a(f"""
        v_max3_f32 v{LM+hl}, v{c}, v{c+1}, v{c+2}
        v_max3_f32 v{LM+hl}, v{LM+hl}, v{c+3}, v{c+4}
        v_max3_f32 v{LM+hl}, v{LM+hl}, v{c+5}, v{c+6}
        v_max_f32 v{LM+hl}, v{LM+hl}, v{c+7}
        """)
        xlane4(a, 'v_max_f32', LM+hl, T)
        for k in range(8): a(f'v_sub_f32 v{c+k}, v{c+k}, v{LM+hl}')
        for k in range(8): a(f'v_exp_f32 v{c+k}, v{c+k}')
        s = LM+4+hl
        a(f'v_add_f32 v{s}, v{c}, v{c+1}')
        for k in range(2, 8): a(f'v_add_f32 v{s}, v{s}, v{c+k}')
        xlane4(a, 'v_add_f32', s, T)
        for k in range(4): a(f'v_cvt_pk_bf16_f32 v{T+4+k}, v{c+2*k}, v{c+2*k+1}')
        if hl == 0:
            a(f"s_lshl_b32 s{S_T0}, s{S_WAVE}, 12\nv_add_u32 v{LN+1}, s{S_T0}, v{V['l16']}")
        a(f'ds_write_b128 v{LN+1}, v[{T+4}:{T+7}] offset:{AL_E+hl*1024}')
    a('s_waitcnt lgkmcnt(0)\ns_barrier')
    EF = 12; OA = 28
    oacc = [28, 32, 36, 56]
    lq = Q('lgkmcnt', 15)
    def eread(i):
        r = EF + (i % 4)*4
        lq.issue(i)
        return f"ds_read_b128 v[{r}:{r+3}], v{V['l16']} offset:{AL_E+(i%16)*1024}"
    for i in range(3): a(eread(i))
    def opost(i):
        c, h = i // 16, i % 16
        k, r = oreg(h >> 1, c); r += 2*(h & 1); A = oacc[i % 4]
        if k == 'v':
            return [f'v_cvt_pk_bf16_f32 v{r}, v{A}, v{A+1}', f'v_cvt_pk_bf16_f32 v{r+1}, v{A+2}, v{A+3}']
        return [f'v_cvt_pk_bf16_f32 v{A}, v{A}, v{A+1}', f'v_cvt_pk_bf16_f32 v{A+2}, v{A+2}, v{A+3}',
                f'v_accvgpr_write_b32 a{r}, v{A}', f'v_accvgpr_write_b32 a{r+1}, v{A+2}']
    for i in range(112):
        for w in (vq.wait(i), lq.wait(i)):
            if w: a(w)
        A = oacc[i % 4]; e = EF + (i % 4)*4; u = (i % NR)*4
        a(f'v_mfma_f32_16x16x32_bf16 v[{A}:{A+3}], v[{e}:{e+3}], a[{u}:{u+3}], 0')
        if i + 3 < 112: a(eread(i+3))
        if i >= 3:
            for x in opost(i-3): a(x)
        if i >= 1 and i - 1 + NR < 112: a(uload(i-1+NR))
    for i in range(109, 112):
        for x in opost(i): a(x)
    a('s_nop 7')
    load_tx()
    XR = 4
    xreg = lambda c: (4 + 2*c) if c < 4 else (56 + 2*(c-4))
    a(f"""
    v_and_b32 v{q}, 15, v{LN}
    v_lshrrev_b32 v{g}, 4, v{LN}
    v_mul_u32_u24 v{t}, 896, v{q}
    v_lshl_add_u32 v{t}, v{g}, 3, v{t}
    s_mul_i32 s{S_T0}, s{S_ROLE}, {16*896}
    s_mul_i32 s{S_T1}, s{S_WAVE}, 224
    s_add_u32 s{S_T0}, s{S_T0}, s{S_T1}
    """)
    for c in range(7):
        a(f'buffer_load_dwordx2 v[{xreg(c)}:{xreg(c)+1}], v{t}, s[{A_XS}:{A_XS+3}], s{S_T0} offen offset:{c*32}')
    MK = 62
    a(f"""
    v_and_b32 v{t+1}, 1, v{q}
    v_lshlrev_b32 v{t+1}, 4, v{t+1}
    v_mov_b32 v{t+2}, 0xffff
    v_lshlrev_b32 v{t+2}, v{t+1}, v{t+2}
    v_lshrrev_b32 v{t+1}, 1, v{q}
    v_lshlrev_b32 v{t+3}, 1, v{g}
    v_mov_b32 v{t+4}, 0
    v_cmp_eq_u32 vcc, v{t+1}, v{t+3}
    v_add_u32 v{t+3}, 1, v{t+3}
    v_cndmask_b32 v{MK}, v{t+4}, v{t+2}, vcc
    v_cmp_eq_u32 vcc, v{t+1}, v{t+3}
    s_lshl_b32 s{S_MOFF}, s{A_SEG}, 13
    s_add_u32 s{S_MOFF}, s{S_MOFF}, {L.MB_Y}
    v_cndmask_b32 v{MK+1}, v{t+4}, v{t+2}, vcc
    """)
    a('s_waitcnt vmcnt(40)')
    poll_m(a, V, sleep=cfg['asleep'])
    lq = Q('lgkmcnt', 15)
    for b in range(7):
        for hf in range(2):
            a(f"ds_read_b64_tr_b16 v[{mf+4*b+2*hf}:{mf+4*b+2*hf+1}], v{V['l8']} offset:{AL_M+b*1024+hf*512}")
            lq.issue(b)
    SA = 40
    a(f"s_lshl_b32 s{A_S0}, s{A_SEG}, 7\ns_add_u32 s{A_S0}, s{A_S0}, {L.CNT_V}")
    for half in range(2):
        for k in range(4): a(f'v_mov_b64 v[{SA+2*k}:{SA+2*k+1}], 0')
        for b in range(7):
            w = lq.wait(b)
            if w: a(w)
            for hh in range(2):
                a(SM(SA+4*hh, mf+4*b, TX8(2*half+hh, b), V['idx']))
        if half == 0:
            for hh in range(2):
                A = SA+4*hh
                a(f'v_add_f32 v{A}, v{A}, v{A+2}\nv_add_f32 v{A+1}, v{A+1}, v{A+3}')
                a(f'v_accvgpr_write_b32 a{2*hh}, v{A}\nv_accvgpr_write_b32 a{2*hh+1}, v{A+1}')
    S = 12
    for hh in range(2):
        A = SA+4*hh
        a(f'v_add_f32 v{S+4+2*hh}, v{A}, v{A+2}\nv_add_f32 v{S+5+2*hh}, v{A+1}, v{A+3}')
    for k in range(4): a(f'v_accvgpr_read_b32 v{S+k}, a{k}')
    if cfg['flags']: wait_cnt(a, A_S0, 56, 36)
    a(f"""
    s_mul_i32 s{A_S0}, s{A_SEG}, 114688
    s_mul_i32 s{A_S1}, s{S_WAVE}, 28672
    s_add_u32 s{A_S0}, s{A_S0}, s{A_S1}
    s_add_u32 s{A_S0}, s{A_S0}, {L.VM}
    """)
    load_1k_run(a, [f'a[{8+4*k}:{8+4*k+3}]' for k in range(28)], V['l16'], A_S0, xfl)
    MX, TT, FX, Z = 20, 24, 28, 32
    H4 = range(4)
    def x4(op, x):
        for h in H4: a(f'v_mov_b32 v{TT+h}, v{x+h}')
        for h in H4: a(f'v_permlane16_swap_b32 v{x+h}, v{TT+h}')
        for h in H4: a(f'{op} v{x+h}, v{x+h}, v{TT+h}')
        for h in H4: a(f'v_mov_b32 v{TT+h}, v{x+h}')
        for h in H4: a(f'v_permlane32_swap_b32 v{x+h}, v{TT+h}')
        for h in H4: a(f'{op} v{x+h}, v{x+h}, v{TT+h}')
    for h in H4: a(f'v_max3_f32 v{MX+h}, v{S+2*h}, v{S+2*h+1}, v{LM+h}')
    x4('v_max_f32', MX)
    for h in H4: a(f'v_sub_f32 v{S+2*h}, v{S+2*h}, v{MX+h}\nv_sub_f32 v{S+2*h+1}, v{S+2*h+1}, v{MX+h}\nv_sub_f32 v{FX+h}, v{LM+h}, v{MX+h}')
    for h in H4: a(f'v_exp_f32 v{S+2*h}, v{S+2*h}\nv_exp_f32 v{S+2*h+1}, v{S+2*h+1}\nv_exp_f32 v{FX+h}, v{FX+h}')
    for h in H4: a(f'v_add_f32 v{Z+h}, v{S+2*h}, v{S+2*h+1}')
    x4('v_add_f32', Z)
    for h in H4: a(f'v_fmac_f32 v{Z+h}, v{FX+h}, v{LM+4+h}')
    for h in H4: a(f'v_rcp_f32 v{Z+h}, v{Z+h}')
    for h in H4: a(f'v_mul_f32 v{S+2*h}, v{S+2*h}, v{Z+h}\nv_mul_f32 v{S+2*h+1}, v{S+2*h+1}, v{Z+h}\nv_mul_f32 v{FX+h}, v{FX+h}, v{Z+h}')
    PM = 36; DG = 40
    for h in H4: a(f'v_cvt_pk_bf16_f32 v{PM+h}, v{S+2*h}, v{S+2*h+1}\nv_cvt_pk_bf16_f32 v{FX+h}, v{FX+h}, v{FX+h}')
    for h in H4: a(f'v_and_b32 v{DG+2*h}, v{FX+h}, v{MK}\nv_and_b32 v{DG+2*h+1}, v{FX+h}, v{MK+1}')
    a(f"""
    s_mul_i32 s{S_T0}, s{S_WAVE}, 3072
    v_add_u32 v{MX}, s{S_T0}, v{V['l16']}
    ds_write_b128 v{MX}, v[{DG}:{DG+3}] offset:{AL_E}
    ds_write_b128 v{MX}, v[{DG+4}:{DG+7}] offset:{AL_E+1024}
    ds_write_b128 v{MX}, v[{PM}:{PM+3}] offset:{AL_E+2048}
    s_waitcnt lgkmcnt(0)
    s_barrier
    """)
    CF = 128
    for k in range(12):
        a(f"ds_read_b128 a[{CF+4*k}:{CF+4*k+3}], v{V['l16']} offset:{AL_E+k*1024}")
    cfd = lambda p: CF + 4*((p >> 1)*3 + (p & 1))
    cfm = lambda u: CF + 4*(u*3 + 2)
    FA = 12
    a('s_waitcnt lgkmcnt(0)')
    for p in range(8):
        for c in range(7):
            k, r = oreg(p, c); A = FA + 4*c
            a(f'v_mfma_f32_16x16x32_bf16 v[{A}:{A+3}], {k}[{r}:{r+3}], a[{cfd(p)}:{cfd(p)+3}], ' + ('0' if p == 0 else f'v[{A}:{A+3}]'))
    for c in range(7):
        a(f's_waitcnt vmcnt({4*(6-c)})')
        for u in range(4):
            A = FA + 4*c; r = 8 + 4*(c*4+u)
            a(f'v_mfma_f32_16x16x32_bf16 v[{A}:{A+3}], a[{r}:{r+3}], a[{cfm(u)}:{cfm(u)+3}], v[{A}:{A+3}]')
    HP = 64; HF = 80
    for c in range(7):
        A = FA + 4*c; x = xreg(c)
        for k in range(2):
            a(f"""
            v_cvt_pk_bf16_f32 v{A+2*k}, v{A+2*k}, v{A+2*k+1}
            v_and_b32 v{A+2*k+1}, 0xffff0000, v{A+2*k}
            v_lshlrev_b32 v{A+2*k}, 16, v{A+2*k}
            v_lshlrev_b32 v{HF+4*c+2*k}, 16, v{x+k}
            v_and_b32 v{HF+4*c+2*k+1}, 0xffff0000, v{x+k}
            v_pk_add_f32 v[{A+2*k}:{A+2*k+1}], v[{A+2*k}:{A+2*k+1}], v[{HF+4*c+2*k}:{HF+4*c+2*k+1}]
            v_cvt_pk_bf16_f32 v{HP+2*c+k}, v{A+2*k}, v{A+2*k+1}
            v_lshlrev_b32 v{HF+4*c+2*k}, 16, v{HP+2*c+k}
            v_and_b32 v{HF+4*c+2*k+1}, 0xffff0000, v{HP+2*c+k}
            """)
    a(f"""
    s_mul_i32 s{A_S0}, s{S_ROLE}, 14336
    s_mul_i32 s{S_T0}, s{S_WAVE}, 3584
    s_add_u32 s{A_S1}, s{A_S0}, s{S_T0}
    s_add_u32 s{A_S1}, s{A_S1}, {L.HB}
    """)
    for c in range(7):
        a(f"buffer_store_dwordx2 v[{HP+2*c}:{HP+2*c+1}], v{V['l8']}, {WSRD}, s{A_S1} offen offset:{c*512} {xfl}")
    s0, nm, d0, st = 40, 42, 44, 48
    a(f'v_pk_add_f32 v[{s0}:{s0+1}], v[{HF}:{HF+1}], v[{HF+2}:{HF+3}]')
    for i in range(2, 14): a(f'v_pk_add_f32 v[{s0}:{s0+1}], v[{s0}:{s0+1}], v[{HF+2*i}:{HF+2*i+1}]')
    a(f'v_add_f32 v{s0}, v{s0}, v{s0+1}')
    xlane4(a, 'v_add_f32', s0, d0)
    a(f'v_mul_f32 v{nm}, 0xbc124925, v{s0}\nv_mul_f32 v{nm+1}, 0xbc124925, v{s0}')
    for i in range(14):
        d = d0 + 2*(i & 1)
        a(f'v_pk_add_f32 v[{d}:{d+1}], v[{HF+2*i}:{HF+2*i+1}], v[{nm}:{nm+1}]')
        a(f'v_pk_mul_f32 v[{s0}:{s0+1}], v[{d}:{d+1}], v[{d}:{d+1}]' if i == 0 else f'v_pk_fma_f32 v[{s0}:{s0+1}], v[{d}:{d+1}], v[{d}:{d+1}], v[{s0}:{s0+1}]')
    a(f'v_add_f32 v{nm+1}, v{s0}, v{s0+1}')
    xlane4(a, 'v_add_f32', nm+1, d0)
    a(f"""
    s_lshl_b32 s{S_T0}, s{S_WAVE}, 9
    v_add_u32 v{d0}, s{S_T0}, v{V['l8']}
    ds_write_b64 v{d0}, v[{nm}:{nm+1}] offset:{AL_ST}
    s_waitcnt lgkmcnt(0)
    s_barrier
    """)
    for k in range(4): a(f"ds_read_b64 v[{st+2*k}:{st+2*k+1}], v{V['l8']} offset:{AL_ST+k*512}")
    rs = 46
    a(f"""
    s_waitcnt lgkmcnt(0)
    v_add_f32 v{nm}, v{st}, v{st+2}
    v_add_f32 v{d0}, v{st+4}, v{st+6}
    v_add_f32 v{nm}, v{nm}, v{d0}
    v_mul_f32 v{nm}, 0.25, v{nm}
    v_add_f32 v{rs}, v{st+1}, v{st+3}
    v_add_f32 v{d0}, v{st+5}, v{st+7}
    v_add_f32 v{rs}, v{rs}, v{d0}
    v_sub_f32 v{st}, v{st}, v{nm}
    v_sub_f32 v{st+2}, v{st+2}, v{nm}
    v_sub_f32 v{st+4}, v{st+4}, v{nm}
    v_sub_f32 v{st+6}, v{st+6}, v{nm}
    v_mul_f32 v{d0}, v{st}, v{st}
    v_fmac_f32 v{d0}, v{st+2}, v{st+2}
    v_fmac_f32 v{d0}, v{st+4}, v{st+4}
    v_fmac_f32 v{d0}, v{st+6}, v{st+6}
    v_fmac_f32 v{rs}, 0x42e00000, v{d0}
    v_mul_f32 v{rs}, 0x3b124925, v{rs}
    """)
    prep.ln_stats_finish(a, nm, rs, d0)
    a(f'v_mov_b32 v{nm+1}, v{nm}\nv_mov_b32 v{rs+1}, v{rs}')
    NP = 108
    for i in range(14):
        u = HF+2*i
        a(f"""
        v_pk_add_f32 v[{u}:{u+1}], v[{u}:{u+1}], v[{nm}:{nm+1}]
        v_cvt_pk_bf16_f32 v{NP+i}, v{u}, v{u+1}
        v_lshlrev_b32 v{u}, 16, v{NP+i}
        v_and_b32 v{u+1}, 0xffff0000, v{NP+i}
        v_pk_mul_f32 v[{u}:{u+1}], v[{u}:{u+1}], v[{rs}:{rs+1}]
        v_cvt_pk_bf16_f32 v{NP+i}, v{u}, v{u+1}
        """)
    a(f"""
    s_mul_i32 s{S_T0}, s{S_WAVE}, 3072
    s_add_u32 s{A_S0}, s{A_S0}, {L.HN}
    s_add_u32 s{A_S1}, s{A_S0}, s{S_T0}
    s_lshr_b32 s{S_T0}, s{S_WAVE}, 1
    s_lshl_b32 s{S_T0}, s{S_T0}, 10
    s_and_b32 s{S_T1}, s{S_WAVE}, 1
    s_lshl_b32 s{S_T1}, s{S_T1}, 3
    s_add_u32 s{S_T0}, s{S_T0}, s{S_T1}
    s_add_u32 s{A_S0}, s{A_S0}, s{S_T0}
    s_add_u32 s{A_S0}, s{A_S0}, 12288
    """)
    for i in range(3):
        a(f"buffer_store_dwordx4 v[{NP+4*i}:{NP+4*i+3}], v{V['l16']}, {WSRD}, s{A_S1} offen offset:{i*1024} {xfl}")
    a(f"buffer_store_dwordx2 v[{NP+12}:{NP+13}], v{V['l16']}, {WSRD}, s{A_S0} offen {xfl}")
    a(f"""
    s_lshl_b32 s{A_S0}, s{S_ROLE}, 7
    s_add_u32 s{A_S0}, s{A_S0}, {L.CNT_H}
    v_mov_b32 v4, 0
    v_mov_b32 v5, 1
    s_waitcnt vmcnt(0)
    s_mov_b64 exec, 1
    buffer_atomic_add v5, v4, {WSRD}, s{A_S0} offen
    s_mov_b64 exec, -1
    """)
    if cfg.get('ticket'): a('s_branch A_top')
```

```python
from asmlib import *
import layout as L
from team import *
from attn import dma_run
import prep

F_J = 36; F_Q = 37; F_S0 = 38; F_S1 = 39; F_C = 40; F_W = 44; F_OUT = 48
CT_PAIRS = [(7*w+2*i, 7*w+2*i+1) for w in range(4) for i in range(3)] + [(6, 13), (20, 27)]
W1S = 272
FL_RED = 0
FL_HN = 8192

def ffn_role(a, cfg, ngroups):
    xfl = cfg['xflags']
    LN, l16, l8 = 1, 2, 3
    a(f"""
    v_mbcnt_lo_u32_b32 v{LN}, -1, 0
    v_mbcnt_hi_u32_b32 v{LN}, -1, v{LN}
    s_load_dwordx4 s[4:7], s[0:1], 64
    s_load_dwordx2 s[52:53], s[0:1], 80
    s_mov_b32 s{S_LIM}, {SPIN_MAX*8}
    v_lshlrev_b32 v{l16}, 4, v{LN}
    v_lshlrev_b32 v{l8}, 3, v{LN}
    s_lshl_b32 s{S_T0}, s{S_WAVE}, 6
    v_add_u32 v0, s{S_T0}, v{LN}
    s_waitcnt lgkmcnt(0)
    """)
    prep.srd(a, F_W, 4, 448*3584)
    prep.srd(a, F_OUT, 52, 2048*896)
    a(f"""
    v_lshrrev_b32 v4, 4, v0
    v_and_b32 v5, 15, v0
    v_mul_u32_u24 v6, 3584, v4
    v_lshl_add_u32 v6, v5, 4, v6
    v_mul_u32_u24 v7, {W1S}, v4
    v_lshl_add_u32 v7, v5, 4, v7
    v_add_u32 v9, {14*16*W1S}, v7
    s_lshl_b32 s{F_S0}, s{F_J}, 8
    """)
    for k in range(28):
        a(f'buffer_load_dwordx4 v[{16+4*k}:{16+4*k+3}], v6, s[{F_W}:{F_W+3}], s{F_S0} offen\ns_add_u32 s{F_S0}, s{F_S0}, {16*3584}')
    prep.srd(a, F_W, 6, 1792*896)
    a(f"""
    v_lshrrev_b32 v4, 2, v0
    v_and_b32 v5, 3, v0
    v_mul_u32_u24 v6, 896, v4
    v_lshl_add_u32 v6, v5, 4, v6
    v_lshlrev_b32 v8, 5, v4
    v_and_b32 v5, 1, v0
    v_lshl_add_u32 v8, v5, 4, v8
    v_bfe_u32 v5, v0, 1, 1
    v_mul_u32_u24 v5, 57344, v5
    v_add_u32 v8, v8, v5
    s_lshl_b32 s{F_S0}, s{F_J}, 6
    """)
    for k in range(28):
        a(f'buffer_load_dwordx4 v[{128+4*k}:{128+4*k+3}], v6, s[{F_W}:{F_W+3}], s{F_S0} offen\ns_add_u32 s{F_S0}, s{F_S0}, {64*896}')
    for k in range(28):
        a(f's_waitcnt vmcnt({55-k})\nds_write_b128 v{7 if k < 14 else 9}, v[{16+4*k}:{16+4*k+3}] offset:{(k%14)*16*W1S}')
    a(f"""
    v_lshrrev_b32 v4, 2, v{LN}
    v_mul_u32_u24 v4, {W1S}, v4
    v_and_b32 v5, 3, v{LN}
    v_lshl_add_u32 v4, v5, 3, v4
    s_lshl_b32 s{S_T0}, s{S_WAVE}, 6
    v_add_u32 v4, s{S_T0}, v4
    v_add_u32 v10, {14*16*W1S}, v4
    s_mul_i32 s{S_T0}, s{S_WAVE}, 14336
    v_add_u32 v5, s{S_T0}, v{l8}
    v_add_u32 v11, 57344, v5
    s_waitcnt lgkmcnt(0)
    s_barrier
    """)
    W1 = lambda t, kb: (t*14+kb)*4
    W2 = lambda t, kb: 112 + (t*14+kb)*4
    for t in range(2):
        for kb in range(14):
            for hf in range(2):
                r = W1(t, kb) + 2*hf; ct = CT_PAIRS[kb][hf]
                a(f'ds_read_b64_tr_b16 a[{r}:{r+1}], v{4 if ct < 14 else 10} offset:{(ct%14)*16*W1S + t*32}')
    a('s_waitcnt lgkmcnt(0)\ns_barrier')
    for k in range(28):
        a(f's_waitcnt vmcnt({27-k})\nds_write_b128 v8, v[{128+4*k}:{128+4*k+3}] offset:{k*2048}')
    a('s_waitcnt lgkmcnt(0)\ns_barrier')
    for t in range(2):
        for kb in range(14):
            for hf in range(2):
                r = W2(t, kb) + 2*hf
                a(f'ds_read_b64_tr_b16 a[{r}:{r+1}], v{5 if t == 0 else 11} offset:{kb*1024+hf*512}')
    a(f"""
    v_and_b32 v4, 15, v{LN}
    v_mul_u32_u24 v4, 896, v4
    v_lshrrev_b32 v5, 4, v{LN}
    v_lshl_add_u32 v4, v5, 3, v4
    s_lshl_b32 s{S_T0}, s{S_WAVE}, 11
    v_add_u32 v5, s{S_T0}, v{l16}
    s_and_b32 s{S_T0}, s{S_WAVE}, 1
    s_lshl_b32 s{S_T0}, s{S_T0}, 10
    v_add_u32 v6, s{S_T0}, v{l16}
    v_mov_b32 v8, 0
    v_mov_b32 v9, 1
    s_waitcnt lgkmcnt(0)
    s_barrier
F_top:
    s_lshl_b32 s{F_C}, s{F_Q}, 7
    s_add_u32 s{F_S0}, s{F_C}, {L.CNT_H}
    """)
    if cfg['flags']: wait_cnt(a, F_S0, 4, 10)
    B = 16; AC = 128
    a(f"""
    s_mul_i32 s{F_S0}, s{F_Q}, 14336
    s_lshl_b32 s{S_T1}, s{F_J}, 1
    s_and_b32 s{S_T0}, s{S_WAVE}, 1
    s_add_u32 s{S_T1}, s{S_T1}, s{S_T0}
    s_lshl_b32 s{S_T1}, s{S_T1}, 9
    s_add_u32 s{S_T1}, s{S_T1}, s{F_S0}
    s_add_u32 s{S_T1}, s{S_T1}, {L.HB}
    s_lshl_b32 s{F_S1}, s{S_WAVE}, 12
    s_min_u32 s{F_S1}, s{F_S1}, 10240
    s_add_u32 s{F_S0}, s{F_S0}, s{F_S1}
    s_add_u32 s{F_S0}, s{F_S0}, {L.HN}
    s_add_u32 s{F_S1}, s{F_S1}, {FL_HN}
    """)
    dma_run(a, 4, l16, F_S0, F_S1, xfl)
    a(f'buffer_load_dwordx2 v[12:13], v{l8}, {WSRD}, s{S_T1} offen {xfl}')
    a('s_waitcnt vmcnt(1)\ns_barrier')
    for kb in range(14):
        a(f'ds_read_b128 v[{B+4*kb}:{B+4*kb+3}], v{l16} offset:{FL_HN+kb*1024}')
    for kb in range(14):
        a(f's_waitcnt lgkmcnt({13-kb})')
        for t in range(2):
            c = AC + 4*t
            a(f'v_mfma_f32_16x16x32_bf16 v[{c}:{c+3}], a[{W1(t,kb)}:{W1(t,kb)+3}], v[{B+4*kb}:{B+4*kb+3}], ' + ('0' if kb == 0 else f'v[{c}:{c+3}]'))
    a(f"""
    s_mul_i32 s{F_S1}, s{F_Q}, 57344
    s_add_u32 s{F_S1}, s{F_S1}, {L.HID}
    s_lshl_b32 s{S_T0}, s{F_J}, 2
    s_add_u32 s{S_T0}, s{S_T0}, s{S_WAVE}
    s_lshl_b32 s{S_T0}, s{S_T0}, 10
    s_add_u32 s{F_S0}, s{F_S1}, s{S_T0}
    """)
    for k in range(8): a(f'v_max_f32 v{AC+k}, 0, v{AC+k}')
    for k in range(4): a(f'v_cvt_pk_bf16_f32 v{AC+8+k}, v{AC+2*k}, v{AC+2*k+1}')
    sk = a.newlabel('F_sk')
    a(f"""
    buffer_store_dwordx4 v[{AC+8}:{AC+11}], v{l16}, {WSRD}, s{F_S0} offen sc1
    s_add_u32 s{F_S0}, s{F_C}, {L.CNT_F}
    s_cmp_lg_u32 s{S_WAVE}, 0
    s_waitcnt vmcnt(0)
    s_barrier
    s_cbranch_scc1 {sk}
    s_mov_b64 exec, 1
    buffer_atomic_add v9, v8, {WSRD}, s{F_S0} offen
    s_mov_b64 exec, -1
{sk}:
    """)
    wait_cnt(a, F_S0, 14, 10, sleep=1)
    a(f"""
    s_mul_i32 s{S_T0}, s{S_WAVE}, 14336
    s_add_u32 s{F_S1}, s{F_S1}, s{S_T0}
    """)
    load_1k_run(a, [vr(B+4*k, 4) for k in range(14)], l16, F_S1, 'sc1')
    for kb in range(14):
        a(f's_waitcnt vmcnt({13-kb})')
        for t in range(2):
            c = AC + 4*t; b = B + 4*kb
            a(f'v_mfma_f32_16x16x32_bf16 v[{c}:{c+3}], a[{W2(t,kb)}:{W2(t,kb)+3}], v[{b}:{b+3}], ' + ('0' if kb == 0 else f'v[{c}:{c+3}]'))
    fin = a.newlabel('F_fin')
    R = AC + 8
    a(f"""
    ds_write_b128 v5, v[{AC}:{AC+3}] offset:{FL_RED}
    ds_write_b128 v5, v[{AC+4}:{AC+7}] offset:{FL_RED+1024}
    s_cmp_ge_u32 s{S_WAVE}, 2
    s_waitcnt lgkmcnt(0)
    s_barrier
    s_cbranch_scc1 {fin}
    ds_read_b128 v[{R}:{R+3}], v6 offset:{FL_RED}
    ds_read_b128 v[{R+4}:{R+7}], v6 offset:{FL_RED+2048}
    ds_read_b128 v[{R+8}:{R+11}], v6 offset:{FL_RED+4096}
    ds_read_b128 v[{R+12}:{R+15}], v6 offset:{FL_RED+6144}
    s_mul_i32 s{F_S0}, s{F_Q}, {16*896}
    s_lshl_b32 s{S_T0}, s{F_J}, 1
    s_add_u32 s{S_T0}, s{S_T0}, s{S_WAVE}
    s_lshl_b32 s{S_T0}, s{S_T0}, 5
    s_add_u32 s{F_S0}, s{F_S0}, s{S_T0}
    v_lshlrev_b32 v{AC}, 16, v12
    v_and_b32 v{AC+1}, 0xffff0000, v12
    v_lshlrev_b32 v{AC+2}, 16, v13
    v_and_b32 v{AC+3}, 0xffff0000, v13
    s_waitcnt lgkmcnt(0)
    """)
    for k in range(2):
        r = R + 2*k
        a(f"""
        v_pk_add_f32 v[{r}:{r+1}], v[{r}:{r+1}], v[{r+4}:{r+5}]
        v_pk_add_f32 v[{r+8}:{r+9}], v[{r+8}:{r+9}], v[{r+12}:{r+13}]
        v_pk_add_f32 v[{r}:{r+1}], v[{r}:{r+1}], v[{r+8}:{r+9}]
        v_cvt_pk_bf16_f32 v{r}, v{r}, v{r+1}
        v_and_b32 v{r+1}, 0xffff0000, v{r}
        v_lshlrev_b32 v{r}, 16, v{r}
        v_pk_add_f32 v[{r}:{r+1}], v[{r}:{r+1}], v[{AC+2*k}:{AC+2*k+1}]
        v_cvt_pk_bf16_f32 v{14+k}, v{r}, v{r+1}
        """)
    a(f"""
    buffer_store_dwordx2 v[14:15], v4, s[{F_OUT}:{F_OUT+3}], s{F_S0} offen
{fin}:
    s_add_u32 s{F_Q}, s{F_Q}, {ngroups}
    s_cmp_lt_u32 s{F_Q}, 128
    s_cbranch_scc1 F_top
    """)
```

```python
from asmlib import *
import layout as L
from team import *

G_SEG = 36; G_XO = 37; G_OO = 38; G_M0 = 39; G_IT = 40; G_CO = 41; G_CS = 42; G_CN = 43; G_CN2 = 44; G_SLOT = 46; G_CT = 45
XF = 16
ACC = 48
OUT = 112

def gemm_role(a, cfg):
    xfl = cfg['xflags']
    NG = cfg.get('ng', 4); NSLOT = cfg.get('nslot', 4); LAG = cfg.get('lag', 2)
    assert LAG <= NSLOT - 1
    diag = cfg.get('diag')
    def st_(k):
        if diag: a(f's_memtime s[{60+2*k}:{61+2*k}]')
    st_(1)
    a(f"""
    s_lshr_b32 s{S_T0}, s{S_ROLE}, {NG.bit_length()-1}
    s_and_b32 s{G_SEG}, s{S_ROLE}, {NG-1}
    s_lshl_b32 s{S_T0}, s{S_T0}, 2
    s_add_u32 s{S_T0}, s{S_T0}, s{S_WAVE}
    v_lshlrev_b32 v2, 4, v1
    s_mul_i32 s{G_M0}, s{S_WAVE}, 7168
    s_mul_i32 s{G_XO}, s{G_SEG}, 28672
    s_add_u32 s{G_XO}, s{G_XO}, s{G_M0}
    s_add_u32 s{G_XO}, s{G_XO}, {L.XN}
    """)
    def dma(slot_off_sgpr=None, slot_const=None):
        o = []
        if slot_const is not None: o.append(f's_add_u32 m0, s{G_M0}, {slot_const}')
        else: o.append(f's_add_u32 m0, s{G_M0}, s{slot_off_sgpr}')
        for k in range(7):
            if k == 4:
                o.append(f's_add_u32 m0, m0, 4096\ns_add_u32 s{G_XO}, s{G_XO}, 4096')
            o.append(f'buffer_load_dwordx4 v2, {WSRD}, s{G_XO} offen offset:{(k%4)*1024} lds')
        o.append(f's_add_u32 s{G_XO}, s{G_XO}, {NG*28672-4096}')
        return o
    for sl in range(NSLOT-1):
        for x in dma(slot_const=sl*28672): a(x)
    a(f"""
    s_mul_i32 s{S_T1}, s{S_T0}, {4*14336}
    s_add_u32 s{S_T1}, s{S_T1}, {L.WT}
    s_lshl_b32 s{G_CO}, s{S_ROLE}, 2
    s_add_u32 s{G_CO}, s{G_CO}, s{S_WAVE}
    s_lshl_b32 s{G_CO}, s{G_CO}, 7
    s_add_u32 s{G_CO}, s{G_CO}, {L.DUMMY + 0x100000}
    s_mov_b32 s{G_CN}, 0
    s_mul_i32 s{G_OO}, s{G_SEG}, 458752
    s_cmp_ge_u32 s{S_T0}, 112
    s_cbranch_scc1 G_type1
    """)
    for typ in (0, 1):
        if typ: a.label('G_type1'); a(f's_sub_u32 s{S_T0}, s{S_T0}, 112')
        a(f"""
        s_mul_i32 s{G_IT}, s{S_T0}, 37
        s_lshr_b32 s{G_IT}, s{G_IT}, 8
        s_mul_i32 s{G_SLOT}, s{G_IT}, 7
        s_cmp_gt_u32 s{G_SLOT}, s{S_T0}
        s_cselect_b32 s{G_SLOT}, 1, 0
        s_sub_u32 s{G_IT}, s{G_IT}, s{G_SLOT}
        s_mul_i32 s{G_SLOT}, s{G_IT}, 7
        s_sub_u32 s{G_SLOT}, s{S_T0}, s{G_SLOT}
        """)
        if typ == 0:
            a(f"""
            s_mul_i32 s{G_IT}, s{G_IT}, 28672
            s_lshl_b32 s{G_SLOT}, s{G_SLOT}, 11
            s_add_u32 s{G_OO}, s{G_OO}, s{G_IT}
            s_add_u32 s{G_OO}, s{G_OO}, s{G_SLOT}
            s_add_u32 s{G_OO}, s{G_OO}, {L.TX}
            v_bfe_u32 v3, v1, 3, 1
            v_mul_u32_u24 v3, 14336, v3
            v_lshrrev_b32 v4, 4, v1
            v_lshl_add_u32 v3, v4, 8, v3
            v_bfe_u32 v4, v1, 2, 1
            v_lshl_add_u32 v3, v4, 7, v3
            v_and_b32 v4, 3, v1
            v_lshl_add_u32 v3, v4, 4, v3
            """)
            ooff = [0, 1024, 14336, 15360]
        else:
            a(f"""
            s_lshl_b32 s{G_IT}, s{G_IT}, 10
            s_lshl_b32 s{G_SLOT}, s{G_SLOT}, 16
            s_add_u32 s{G_OO}, s{G_OO}, s{G_IT}
            s_add_u32 s{G_OO}, s{G_OO}, s{G_SLOT}
            s_add_u32 s{G_OO}, s{G_OO}, {L.U}
            v_mov_b32 v3, v2
            """)
            ooff = [0, 16384, 32768, 49152]
        n = 7*(NSLOT-1)
        for t in range(4):
            base = (t >> 1)*2*14336 + (t & 1)*64 if typ == 0 else t*14336
            for kb in range(14):
                if kb % 3 == 0: a(f's_add_u32 s{S_T0}, s{S_T1}, {base + kb*1024}')
                r = (t*14+kb)*4
                a(f'buffer_load_dwordx4 a[{r}:{r+3}], v3, {WSRD}, s{S_T0} offen offset:{(kb%3)*1024}')
                n += 1
                if n >= 60: a('s_waitcnt vmcnt(30)'); n = 30
        a(f"""
        s_lshl_b32 s{G_CN2}, s{G_SEG}, 7
        s_add_u32 s{G_CN2}, s{G_CN2}, {L.CNT_U if typ else L.CNT_T}
        s_cmp_eq_u32 s{S_WAVE}, 0
        s_cselect_b32 s{G_CN2}, s{G_CN2}, s{G_CO}
        s_cselect_b32 s{G_CS}, {128*NG}, 0
        s_mov_b32 s{S_T1}, {(0x100000000 - 0x8000000) & 0xffffffff}
        s_add_u32 s{G_OO}, s{G_OO}, 0x8000000
        v_mov_b32 v4, v2
        v_mov_b32 v6, 0
        v_mov_b32 v7, 1
        s_mov_b32 s{G_IT}, 0
        s_mov_b32 s{G_SLOT}, {(NSLOT-1)*28672}
        s_waitcnt vmcnt(0)
        s_barrier
        """)
        st_(2)
        xr = lambda kb, z: XF + ((kb % 4)*2 + z)*4
        def xread(kb, z, addr):
            return dsop(f'ds_read_b128 v[{xr(kb,z)}:{xr(kb,z)+3}], v{addr} offset:{z*14336+(kb%14)*1024}', ('x', kb))
        PD = 2
        lq = Q('lgkmcnt', 15)
        for kb in range(PD):
            for z in range(2): a(xread(kb, z, 4)(lq))
        top = f'G_top{typ}'
        signal = f"""s_mov_b64 exec, 1
            buffer_atomic_add v7, v6, {WSRD}, s{G_CO} offen
            s_mov_b64 exec, -1
            s_add_u32 s{G_CN}, s{G_CN}, 1
            s_cmp_ge_u32 s{G_CN}, {LAG}
            s_cselect_b32 s{G_CO}, s{G_CN2}, s{G_CO}
            s_cselect_b32 s{G_CT}, s{G_CS}, 0
            s_add_u32 s{G_CN2}, s{G_CN2}, s{G_CT}"""
        a.label(top)
        def epi(par):
            va = []; st = []
            for o in range(4):
                if typ == 0: z, T = o >> 1, o & 1; ca = ACC + par*32 + ((2*T)*2+z)*4; cb = ACC + par*32 + ((2*T+1)*2+z)*4
                else: ca = ACC + par*32 + (o*2)*4; cb = ACC + par*32 + (o*2+1)*4
                r = OUT + 4*o
                m1, m2 = (1, 2) if typ == 0 else (2, 1)
                va.append([f'v_cvt_pk_bf16_f32 v{r}, v{ca}, v{ca+1}', f'v_cvt_pk_bf16_f32 v{r+m1}, v{ca+2}, v{ca+3}',
                           f'v_cvt_pk_bf16_f32 v{r+m2}, v{cb}, v{cb+1}', f'v_cvt_pk_bf16_f32 v{r+3}, v{cb+2}, v{cb+3}'])
                st.append(f's_add_u32 s{S_T0}, s{G_OO}, {ooff[o]}\n' + ('' if cfg.get('nost') else f'buffer_store_dwordx4 v[{r}:{r+3}], v2, {WSRD}, s{S_T0} offen {xfl}'))
            return va, st
        for par in range(2):
            cur, nxt = (4, 5) if par == 0 else (5, 4)
            ms = []
            for kb in range(14):
                K = par*14 + kb
                for t in range(4):
                    for z in range(2):
                        c = ACC + par*32 + (t*2+z)*4
                        wr = f'a[{(t*14+kb)*4}:{(t*14+kb)*4+3}]'; x = f'v[{xr(K,z)}:{xr(K,z)+3}]'
                        A, B = (wr, x) if typ == 0 else (x, wr)
                        ms.append((f'v_mfma_f32_16x16x32_bf16 v[{c}:{c+3}], {A}, {B}, ' + ('0' if kb == 0 else f'v[{c}:{c+3}]'),
                                   [('x', K)] if t == 0 and z == 0 else []))
            gp = Gaps(112)
            for kb in range(14):
                K = par*14 + kb + PD
                addr = cur if kb + PD < 14 else nxt
                for z in range(2): gp.put('ds', kb*8 + 1 + 2*z, xread(K % 28 if K >= 28 else K, z, addr))
            va, st = epi(1-par)
            g = 4
            for o in range(4):
                for x in va[o]: g = gp.put('va', g, x) + 1
                g = gp.put('ds', g+1, st[o]) + 1
            gp.force('va', g+1, f's_add_u32 s{G_OO}, s{G_OO}, s{S_T1}\ns_mov_b32 s{S_T1}, {NG*458752}')
            gp.force('va', 60, f"""v_add_u32 v{nxt}, 28672, v{cur}
                v_subrev_u32 v8, {NSLOT*28672}, v{nxt}
                v_min_u32 v{nxt}, v{nxt}, v8""")
            sync = f's_waitcnt vmcnt({12*(LAG-1)-1 if LAG < NSLOT-1 else 12*(LAG-2)+4})\ns_barrier\n' + signal
            gp.force('ds', 80, sync)
            d = dma(slot_off_sgpr=G_SLOT)
            g = 82
            for x in d: g = gp.put('ds', g, x) + 2
            gp.force('va', g, f"""s_add_u32 s{G_SLOT}, s{G_SLOT}, 28672
                s_cmp_ge_u32 s{G_SLOT}, {NSLOT*28672}
                s_cselect_b32 s{G_SLOT}, 0, s{G_SLOT}""")
            emit_stream(a, ms, gp, lq)
        if diag:
            for k in range(8, 3, -1): a(f's_mov_b64 s[{60+2*k}:{61+2*k}], s[{58+2*k}:{59+2*k}]')
            st_(3); a('s_waitcnt lgkmcnt(0)')
        a(f"""
        s_add_u32 s{G_IT}, s{G_IT}, 1
        s_cmp_lt_u32 s{G_IT}, {32//NG}
        s_cbranch_scc1 {top}
        """)
        va, st = epi(1)
        for o in range(4):
            for x in va[o]: a(x)
            a(st[o])
        a('s_waitcnt vmcnt(0) lgkmcnt(0)\ns_barrier')
        for _ in range(LAG): a(signal)
        a('s_branch G_done')
    a.label('G_done')
    if diag:
        st_(9)
        a(f's_waitcnt lgkmcnt(0)\ns_lshl_b32 s36, s{S_ROLE}, 2\ns_add_u32 s36, s36, s{S_WAVE}\ns_lshl_b32 s36, s36, 6\ns_add_u32 s36, s36, {L.STAMP}\ns_mov_b64 exec, 1\nv_mov_b32 v3, 0')
        for k in range(10):
            a(f'v_mov_b32 v4, s{60+2*k}\nbuffer_store_dword v4, v3, {WSRD}, s36 offen offset:{4*k}\ns_nop 1')
        a('s_mov_b64 exec, -1')
```

```python
from asmlib import *
import layout as L

SENT = -1
S_WS = 8
S_DBG = 12
S_ROLE = 16
S_WAVE = 17
S_XCC = 18
S_STEP = 19
S_FAST = 20
S_MOFF = 21; S_POFF = 22; S_EOFF = 23; S_GOFF = 24; S_XOFF = 25; S_T0 = 26; S_T1 = 27; S_SPIN = 28; S_LIM = 29
S_EXEC = 30
S_STMP = 32
S_TM = 34
SPIN_MAX = 20000
NTEAM = 32

LDS_M = 0
LDS_T = 7168
LDS_FL = 14336
LDS_RED = 7168
LDS_BW = 16384
LDS_ROLE = 160*1024 - 16

def prologue(a, stamps, pool_off=0):
    a(f'''
    s_cmp_ge_u32 s2, 256
    s_cbranch_scc1 L_exit
    s_load_dwordx2 s[4:5], s[0:1], 96
    s_load_dwordx2 s[6:7], s[0:1], 88
    s_getreg_b32 s{S_XCC}, hwreg(HW_REG_XCC_ID, 0, 4)
    v_lshrrev_b32 v2, 6, v0
    v_and_b32 v1, 63, v0
    v_readfirstlane_b32 s{S_WAVE}, v2
    s_and_b32 s{S_XCC}, s{S_XCC}, 7
    s_waitcnt lgkmcnt(0)
    s_mov_b32 s{S_WS}, s4
    s_and_b32 s{S_WS+1}, s5, 0xffff
    s_mov_b32 s{S_WS+2}, {L.WS_BYTES}
    s_mov_b32 s{S_WS+3}, 0x20000
    s_mov_b32 s{S_DBG}, s6
    s_and_b32 s{S_DBG+1}, s7, 0xffff
    s_mov_b32 s{S_DBG+2}, 256
    s_mov_b32 s{S_DBG+3}, 0x20000
    v_mov_b32 v4, {LDS_ROLE}
    s_cmp_lg_u32 s{S_WAVE}, 0
    s_cbranch_scc1 L_role_wait
    s_mov_b64 exec, 1
    s_mov_b32 s{S_T0}, 0
L_role_try:
    s_add_u32 s{S_T1}, s{S_XCC}, s{S_T0}
    s_and_b32 s{S_T1}, s{S_T1}, 7
    s_lshl_b32 s{S_ROLE}, s{S_T1}, 7
    s_add_u32 s{S_ROLE}, s{S_ROLE}, {L.CNT_P + pool_off}
    v_mov_b32 v2, s{S_ROLE}
    v_mov_b32 v3, 1
    buffer_atomic_add v3, v2, s[{S_WS}:{S_WS+3}], 0 offen sc0
    s_waitcnt vmcnt(0)
    v_readfirstlane_b32 s{S_ROLE}, v3
    s_cmp_lt_u32 s{S_ROLE}, 32
    s_cbranch_scc1 L_role_got
    s_add_u32 s{S_T0}, s{S_T0}, 1
    s_cmp_lt_u32 s{S_T0}, 8
    s_cbranch_scc1 L_role_try
    s_mov_b32 s{S_ROLE}, 31
    s_mov_b32 s{S_T1}, 0
L_role_got:
    s_lshl_b32 s{S_T1}, s{S_T1}, 5
    s_add_u32 s{S_ROLE}, s{S_ROLE}, s{S_T1}
    v_mov_b32 v2, s{S_ROLE}
    ds_write_b32 v4, v2
    s_mov_b64 exec, -1
    s_waitcnt lgkmcnt(0)
L_role_wait:
    s_barrier
    ds_read_b32 v2, v4
    s_waitcnt lgkmcnt(0)
    v_readfirstlane_b32 s{S_ROLE}, v2
    ''')

def team_register(a):
    l = a.newlabel('L_reg')
    a(f'''
    s_cmp_lg_u32 s{S_WAVE}, 0
    s_cbranch_scc1 {l}
    s_cmp_eq_u32 s{S_XCC}, 0
    s_cselect_b32 s{S_T0}, 1, 0x10001
    s_mov_b64 exec, 1
    v_mov_b32 v2, 64
    v_mov_b32 v3, s{S_T0}
    buffer_atomic_add v3, v2, s[{S_DBG}:{S_DBG+3}], 0 offen
    s_mov_b64 exec, -1
{l}:
    ''')

def team_mode(a, vt0, vt1):
    l = a.newlabel('L_mode'); d = a.newlabel('L_moded')
    a(f'''
    s_mov_b32 s{S_SPIN}, 0
    v_mov_b32 v{vt0}, 64
{l}:
    buffer_load_dword v{vt1}, v{vt0}, s[{S_DBG}:{S_DBG+3}], 0 offen sc1
    s_waitcnt vmcnt(0)
    v_readfirstlane_b32 s{S_T0}, v{vt1}
    s_and_b32 s{S_T1}, s{S_T0}, 0xffff
    s_cmp_ge_u32 s{S_T1}, {NTEAM}
    s_cbranch_scc1 {d}
    s_sleep 2
    s_add_u32 s{S_SPIN}, s{S_SPIN}, 1
    s_cmp_lt_u32 s{S_SPIN}, {SPIN_MAX}
    s_cbranch_scc1 {l}
    s_mov_b32 s{S_T0}, 0x10000
{d}:
    s_lshr_b32 s{S_T0}, s{S_T0}, 16
    s_cmp_eq_u32 s{S_T0}, 0
    s_cselect_b32 s{S_FAST}, 1, 0
    s_mov_b32 s{S_LIM}, {SPIN_MAX}
    ''')

def stamp(a, stamps, idx, vt=None):
    if not stamps: return
    a(f's_memtime s[{40+2*idx}:{41+2*idx}]')
    if idx == 2: a('s_memrealtime s[60:61]')

def stamp_flush(a, stamps, n, vt):
    if not stamps: return
    a('s_waitcnt lgkmcnt(0)')
    for k in range(n):
        a(f'v_writelane_b32 v{vt}, s{40+2*k}, {k}')
    a(f"""
    v_lshrrev_b32 v{vt+1}, 1, v0
    s_mov_b64 exec, {(1 << n) - 1}
    buffer_store_dword v{vt}, v{vt+1}, s[{S_WS}:{S_WS+3}], s{S_STMP} offen
    s_mov_b64 exec, -1
    """)

def wreg(wb, vbase):
    return ar(8*wb, 8) if wb < 32 else vr(vbase + 8*(wb-32), 8)
def wreg_half(wb, vbase, half):
    return ar(8*wb + 4*half, 4) if wb < 32 else vr(vbase + 8*(wb-32) + 4*half, 4)

def xlane4(a, op, x, t):
    a(f'''
    v_mov_b32 v{t}, v{x}
    v_permlane16_swap_b32 v{x}, v{t}
    {op} v{x}, v{x}, v{t}
    v_mov_b32 v{t}, v{x}
    v_permlane32_swap_b32 v{x}, v{t}
    {op} v{x}, v{x}, v{t}
    ''')

QP = 'quad_perm:[2,3,0,1] row_mask:0xf bank_mask:0xf'

def read_mf(a, V):
    for b in range(7):
        a(f"ds_read_b64_tr_b16 v[{V['mf']+4*b}:{V['mf']+4*b+1}], v{V['l8']} offset:{LDS_M+b*1024}")
        a(f"ds_read_b64_tr_b16 v[{V['mf']+4*b+2}:{V['mf']+4*b+3}], v{V['l8']} offset:{LDS_M+b*1024+512}")

def SM(acc, A, B, idx):
    return f'v_smfmac_f32_16x16x64_bf16 v[{acc}:{acc+3}], v[{A}:{A+3}], {B}, v{idx}'


class Q:
    def __init__(self, name, cap):
        self.name = name; self.n = 0; self.tags = {}; self.done = 0; self.cap = cap
    def issue(self, tag=None):
        self.n += 1
        if tag is not None: self.tags[tag] = self.n
    def wait(self, tag):
        k = self.tags[tag]
        if k <= self.done: return ''
        self.done = k
        return 's_waitcnt %s(%d)' % (self.name, min(self.n - k, self.cap))
    def drain(self):
        self.done = self.n
        return 's_waitcnt %s(0)' % self.name

WSRD = f's[{S_WS}:{S_WS+3}]'

def poll_m(a, V, sleep=0):
    t = V['mf']; pa = V['pa']
    l = a.newlabel('L_pm'); d = a.newlabel('L_pmd')
    a(f"""
    s_mov_b32 s{S_SPIN}, 0
{l}:
    buffer_load_dwordx4 v[{t}:{t+3}], v{pa}, {WSRD}, s{S_MOFF} offen sc1
    buffer_load_dwordx4 v[{t+4}:{t+7}], v{pa}, {WSRD}, s{S_MOFF} offen offset:768 sc1
    s_add_u32 s{S_SPIN}, s{S_SPIN}, 1
    s_waitcnt vmcnt(1)
    ds_write_b128 v{pa}, v[{t}:{t+3}]
    v_max3_u32 v{t+8}, v{t}, v{t+1}, v{t+2}
    s_waitcnt vmcnt(0)
    ds_write_b128 v{pa}, v[{t+4}:{t+7}] offset:768
    v_max3_u32 v{t+8}, v{t+8}, v{t+3}, v{t+4}
    v_max3_u32 v{t+8}, v{t+8}, v{t+5}, v{t+6}
    v_max_u32 v{t+8}, v{t+8}, v{t+7}
    v_cmp_eq_u32 vcc, -1, v{t+8}
    s_cbranch_vccz {d}
    {'s_sleep %d' % sleep if sleep else ''}
    s_cmp_lt_u32 s{S_SPIN}, s{S_LIM}
    s_cbranch_scc1 {l}
    s_mov_b32 s{S_LIM}, 1
{d}:
    s_waitcnt lgkmcnt(0)
    s_barrier
    """)

def wait_hint(a, vaddr, soff, t, imm=0, delay=0):
    l = a.newlabel('L_h'); d = a.newlabel('L_hd')
    ld = lambda r: f'buffer_load_dword v{r}, v{vaddr}, {WSRD}, s{soff} offen offset:{imm} sc1'
    a(f"""
    s_mov_b32 s{S_SPIN}, 0
    {ld(t)}
    s_sleep 1
{l}:
    {ld(t+1)}
    s_waitcnt vmcnt(1)
    v_cmp_eq_u32 vcc, -1, v{t}
    s_cbranch_vccz {d}
    {ld(t)}
    s_waitcnt vmcnt(1)
    v_cmp_eq_u32 vcc, -1, v{t+1}
    s_cbranch_vccz {d}
    s_add_u32 s{S_SPIN}, s{S_SPIN}, 1
    s_cmp_lt_u32 s{S_SPIN}, s{S_LIM}
    s_cbranch_scc1 {l}
{d}:
    """)
    while delay > 0:
        a(f's_nop {min(delay, 16) - 1}'); delay -= 16

def wait_cnt(a, off_sgpr, target, vt, sleep=4):
    l = a.newlabel('L_wc'); d = a.newlabel('L_wcd')
    a(f"""
    s_mov_b32 s{S_SPIN}, 0
    v_mov_b32 v{vt}, 0
{l}:
    buffer_load_dword v{vt+1}, v{vt}, {WSRD}, s{off_sgpr} offen sc1
    s_add_u32 s{S_SPIN}, s{S_SPIN}, 1
    s_waitcnt vmcnt(0)
    v_readfirstlane_b32 s{S_T0}, v{vt+1}
    s_cmp_ge_u32 s{S_T0}, {target}
    s_cbranch_scc1 {d}
    s_sleep {sleep}
    s_cmp_lt_u32 s{S_SPIN}, s{S_LIM}
    s_cbranch_scc1 {l}
    s_mov_b32 s{S_LIM}, 1
{d}:
    """)

def img_addr(a, dst, t, lane):
    a(f"""
    v_bfe_u32 v{dst}, v{lane}, 3, 1
    v_lshlrev_b32 v{dst}, 9, v{dst}
    v_bfe_u32 v{t}, v{lane}, 2, 1
    v_lshl_add_u32 v{dst}, v{t}, 6, v{dst}
    v_and_b32 v{t}, 1, v{lane}
    v_lshl_add_u32 v{dst}, v{t}, 5, v{dst}
    v_lshrrev_b32 v{t}, 4, v{lane}
    v_lshl_add_u32 v{dst}, v{t}, 3, v{dst}
    v_bfe_u32 v{t}, v{lane}, 1, 1
    v_lshl_add_u32 v{dst}, v{t}, 2, v{dst}
    """)

def common_addrs(a, V, LN):
    a(f"""
    v_lshlrev_b32 v{V['l8']}, 3, v{LN}
    s_mul_i32 s{S_T0}, s{S_WAVE}, {112*16}
    v_lshlrev_b32 v{V['pa']}, 4, v{LN}
    v_add_u32 v{V['pa']}, s{S_T0}, v{V['pa']}
    v_and_b32 v{LN+1}, 2, v{LN}
    v_cmp_ne_u32 vcc, 0, v{LN+1}
    v_mov_b32 v{LN+1}, 0x4444
    v_mov_b32 v{LN+2}, 0xeeee
    v_cndmask_b32 v{V['idx']}, v{LN+1}, v{LN+2}, vcc
    """)

def load_1k_run(a, dsts, vaddr, sbase, flags='', budget=None):
    for i, d in enumerate(dsts):
        if i and i % 4 == 0:
            a(f's_add_u32 s{sbase}, s{sbase}, 4096')
        a(f'buffer_load_dwordx4 {d}, v{vaddr}, {WSRD}, s{sbase} offen offset:{(i%4)*1024} {flags}')
        if budget is not None:
            budget[0] += 1
            if budget[0] >= 56:
                a('s_waitcnt vmcnt(28)'); budget[0] = 28

class Gaps:
    def __init__(self, n):
        self.ds = [[] for _ in range(n)]; self.va = [[] for _ in range(n)]; self.pre = [[] for _ in range(n)]
        self.n = n
    def put(self, kind, g, text, excl=False):
        while g < self.n - 1:
            if excl:
                if not self.ds[g] and not self.va[g]: break
            else:
                lst = self.ds[g] if kind == 'ds' else self.va[g]
                other = self.va[g] if kind == 'ds' else self.ds[g]
                if not lst and not (other and other[-1][1]): break
            g += 1
        (self.ds if kind == 'ds' else self.va)[g].append((text, excl))
        return g
    def force(self, kind, g, text):
        (self.ds if kind == 'ds' else self.va)[min(g, self.n-1)].append((text, False))

def emit_stream(a, mf, gp, lq, pre=None):
    for i, (m, tags) in enumerate(mf):
        for tg in tags:
            w = lq.wait(tg)
            if w: a(w)
        a(m)
        for lst in (gp.ds[i], gp.va[i]):
            for x, _ in lst:
                t = x(lq) if callable(x) else x
                if t: a(t)

def dsop(text, tag=None):
    def f(lq):
        lq.issue(tag); return text
    return f
def dswait(tag, then=''):
    def f(lq):
        return lq.wait(tag) + '\n' + then
    return f

SV = dict(l8=0, pa=1, idx=2, k1=3, mf=12, acc=40, w=64)
def tile_of(w, u):
    if u < 5: return (u, w)
    order = {(0, 5): (5, 0), (1, 5): (5, 1), (2, 5): (5, 2), (2, 6): (5, 3), (0, 6): (6, 0), (1, 6): (6, 1), (0, 7): (6, 2), (1, 7): (6, 3)}
    return order[(w, u)]
NUNIT = [8, 8, 7, 5]
F = dict(l16=4, px=5, pm=6, mk0=7, mk1=8, mk2=9, wz=10, xf=88, tf=200, sa=228, t=240, c0=60)

def score_setup(a, stamps):
    V = SV; LN = 44
    a(f'v_mov_b32 v{LN}, v1')
    team_register(a)
    common_addrs(a, V, LN)
    img_addr(a, V['k1'], LN+1, LN)
    g, cc, par, ib, t = LN+1, LN+2, LN+3, LN+4, LN+5
    a(f"""
    v_lshlrev_b32 v{F['l16']}, 4, v{LN}
    v_lshrrev_b32 v{g}, 4, v{LN}
    v_bfe_u32 v{cc}, v{LN}, 2, 2
    v_bfe_u32 v{par}, v{LN}, 1, 1
    v_and_b32 v{ib}, 1, v{LN}
    v_and_b32 v{t}, 15, v{LN}
    v_lshlrev_b32 v{F['px']}, 4, v{t}
    v_lshrrev_b32 v{t}, 1, v{g}
    v_lshl_add_u32 v{F['px']}, v{t}, 8, v{F['px']}
    v_and_b32 v{t}, 1, v{g}
    v_lshl_add_u32 v{F['px']}, v{t}, 3, v{F['px']}
    s_and_b32 s{S_T0}, s{S_ROLE}, 1
    s_lshl_b32 s{S_T0}, s{S_T0}, 5
    s_lshr_b32 s{S_T1}, s{S_ROLE}, 1
    s_lshl_b32 s{S_T1}, s{S_T1}, 9
    s_add_u32 s{S_T0}, s{S_T0}, s{S_T1}
    s_add_u32 s{S_T0}, s{S_T0}, 8192
    v_add_u32 v{F['pm']}, s{S_T0}, v{F['px']}
    s_lshl_b32 s{S_T0}, s{S_ROLE}, 9
    v_add_u32 v{F['px']}, s{S_T0}, v{F['px']}
    v_lshlrev_b32 v{t}, 4, v{ib}
    v_mov_b32 v{F['mk2']}, 0xffff
    v_lshlrev_b32 v{F['mk2']}, v{t}, v{F['mk2']}
    v_cmp_eq_u32 vcc, v{cc}, v{g}
    v_mov_b32 v{t}, 0
    v_cndmask_b32 v{F['mk2']}, v{t}, v{F['mk2']}, vcc
    v_cmp_eq_u32 vcc, 0, v{par}
    v_mov_b32 v{t+1}, 0xff800000
    v_cndmask_b32 v{F['mk0']}, v{t}, v{F['mk2']}, vcc
    v_cndmask_b32 v{F['mk1']}, v{F['mk2']}, v{t}, vcc
    v_cndmask_b32 v{F['wz']}, v{t+1}, v{t}, vcc
    s_mul_i32 s{S_T1}, s{S_ROLE}, {28*14336}
    s_add_u32 s{S_T1}, s{S_T1}, {L.WT}
    """)
    done = a.newlabel('L_sw')
    for w in range(4):
        nx = a.newlabel('L_swn')
        if w < 3: a(f's_cmp_lg_u32 s{S_WAVE}, {w}\ns_cbranch_scc1 {nx}')
        bud = [0]
        for u in range(NUNIT[w]):
            b, ga = tile_of(w, u)
            a(f's_add_u32 s{S_T0}, s{S_T1}, {(4*b+ga)*14336}')
            load_1k_run(a, [wreg_half(u*7 + k//2, V['w'], k % 2) for k in range(14)], F['l16'], S_T0, budget=bud)
        if w < 3: a(f's_branch {done}\n{nx}:')
    a(f"""
{done}:
    s_mov_b32 s{S_STEP}, 0
    s_mov_b32 s{S_MOFF}, {L.MB_M}
    s_mov_b32 s{S_POFF}, {L.MB_P}
    s_mov_b32 s{S_GOFF}, {L.XP}
    s_lshl_b32 s{S_STMP}, s{S_ROLE}, 2
    s_add_u32 s{S_STMP}, s{S_STMP}, s{S_WAVE}
    s_lshl_b32 s{S_STMP}, s{S_STMP}, 12
    s_add_u32 s{S_STMP}, s{S_STMP}, {L.STAMP}
    s_waitcnt vmcnt(0)
    """)
    team_mode(a, V['mf'], V['mf']+1)

def step_advance(a, gstride, xstride=114688):
    a(f"""
    s_add_u32 s{S_STEP}, s{S_STEP}, 1
    s_add_u32 s{S_MOFF}, s{S_MOFF}, 8192
    s_add_u32 s{S_POFF}, s{S_POFF}, 16384
    s_add_u32 s{S_GOFF}, s{S_GOFF}, {gstride}
    s_add_u32 s{S_XOFF}, s{S_XOFF}, {xstride}
    s_add_u32 s{S_STMP}, s{S_STMP}, 64
    """)

def rowred(a, op, x):
    for m in ('row_ror:8', 'row_ror:4', 'row_ror:2', 'row_ror:1'):
        for r in (x, x+1):
            a(f'{op}_dpp v{r}, v{r}, v{r} {m} row_mask:0xf bank_mask:0xf')

def score_wave(a, w, pf, stamps, cfg):
    V = SV; idx = V['idx']; mf = V['mf']
    top = a.newlabel(f'L_sc{w}_top'); first = a.newlabel(f'L_sc{w}_first')
    nunit = NUNIT[w]
    accof = lambda u: V['acc'] + 4*(u % 6)
    ST = (lambda k: f's_memtime s[{40+2*k}:{41+2*k}]') if stamps else (lambda k: '')
    xf, tf, sa, T = F['xf'], F['tf'], F['sa'], F['t']
    FA, FV = 8, 9
    HA = 11
    HT = (6 if w < 3 else T+12)
    TA = (10 if w < 3 else T+11)
    def load_x():
        a(f's_mov_b32 s{S_T0}, s{S_GOFF}')
        load_1k_run(a, [vr(xf + 4*k, 4) for k in range(28)], F['l16'], S_T0)
    def zero_acc():
        for u in range(min(6, nunit)):
            a(f'v_mov_b64 v[{accof(u)}:{accof(u)+1}], 0\nv_mov_b64 v[{accof(u)+2}:{accof(u)+3}], 0')
        if w == 3:
            for k in range(4): a(f'v_mov_b64 v[{sa+2*k}:{sa+2*k+1}], 0')
    a(f"v_lshrrev_b32 v{HA}, 1, v{V['l8']}\nv_min_u32 v{HA}, {55*4}, v{HA}\nv_lshlrev_b32 v{TA}, 5, v{HA}\nv_add_u32 v{HA}, 7168, v{HA}")
    a(f"s_mul_i32 s{S_XOFF}, s{S_ROLE}, 28672\ns_add_u32 s{S_XOFF}, s{S_XOFF}, {L.U + 458752 + w*7168}")
    if w == 3:
        load_x()
        a(f"v_mov_b32 v{F['c0']}, v{F['wz']}\nv_mov_b32 v{F['c0']+1}, v{F['wz']}\nv_mov_b64 v[{F['c0']+2}:{F['c0']+3}], 0")
        a(f's_mov_b32 s{S_EOFF}, 0\ns_lshl_b32 s{S_T0}, s{S_ROLE}, 2\ns_add_u32 s{S_T0}, s{S_T0}, 12288\nv_mov_b32 v{T+14}, s{S_T0}\nv_mov_b32 v{T+15}, 0')
    else:
        a(f"v_add_u32 v{FA}, {LDS_FL + 4*w}, v{F['l16']}\nv_mov_b32 v{FV}, 0")
        for k in range(4): a(f'ds_write_b32 v{FA}, v{FV} offset:{k*1024}')
    zero_acc()
    a(f's_branch {first}')
    a.label(top)
    zero_acc()
    stamp(a, stamps, 0)
    wait_hint(a, HA, S_MOFF, HT, delay=cfg['mdelay'])
    a.label(first)
    a(f'v_add_u32 v{FV}, 1, v{FV}' if w < 3 else f's_add_u32 s{S_EOFF}, s{S_EOFF}, 1')
    a(ST(9))
    poll_m(a, V)
    stamp(a, stamps, 1)
    if stamps and w < 3: a(f's_mov_b32 s{40+2*7}, s{S_SPIN}')
    lq = Q('lgkmcnt', 15)
    mrd = [dsop(f"ds_read_b64_tr_b16 v[{mf+4*b+2*hf}:{mf+4*b+2*hf+1}], v{V['l8']} offset:{LDS_M+b*1024+hf*512}", ('mf', b))
           for b in range(7) for hf in range(2)]
    for x in mrd[:cfg['mpre']]: a(x(lq))
    order = [(u, b) for b in range(7) for u in range(2)] + [(u, b) for u in range(2, nunit) for b in range(7)]
    ms = [(SM(accof(u), mf+4*b, wreg(u*7 + b, V['w']), idx), [('mf', b)] if u == 0 else []) for u, b in order]
    last = {u: i for i, (u, b) in enumerate(order)}
    def smfma(b):
        t4 = tf + 4*b
        return [(f"v_mfma_f32_16x16x32_bf16 v[{sa+8}:{sa+11}], v[{t4}:{t4+3}], v[{mf+4*b}:{mf+4*b+3}], " + (f"v[{F['c0']}:{F['c0']+3}]" if b == 0 else f'v[{sa+8}:{sa+11}]'), [('tf', b)]),
                (SM(sa, t4, vr(xf + 8*b, 8), idx), []),
                (SM(sa+4, t4, vr(xf + 56 + 8*b, 8), idx), [])]
    def tread(b, hf):
        return dsop(f"ds_read_b64_tr_b16 v[{tf+4*b+2*hf}:{tf+4*b+2*hf+1}], v{V['l8']} offset:{LDS_T+b*1024+hf*512}", ('tf', b))
    phases = [(0, 1, 2), (3, 4)]
    starts = []
    if w == 3:
        for ph in phases:
            starts.append(len(ms))
            for b in ph: ms += smfma(b)
    n = len(ms)
    gp = Gaps(n)
    for k, x in enumerate(mrd[cfg['mpre']:]): gp.put('ds', k, x)
    if cfg['utouch']:
        gp.put('ds', cfg['utouch'] + 2*w, f"buffer_load_dword v{HT}, v{TA}, {WSRD}, s{S_XOFF} offen sc1")
    flag_after = {2, 4} | ({5} if w < 2 else {6})
    def post(u):
        A = accof(u); b, ga = tile_of(w, u)
        va = [f'v_add_f32 v{A}, v{A}, v{A+2}', f'v_add_f32 v{A+1}, v{A+1}, v{A+3}', f'v_cvt_pk_bf16_f32 v{A}, v{A}, v{A+1}']
        ds = [dsop(f"ds_write_b32 v{V['k1']}, v{A} offset:{LDS_T+b*1024+ga*128}", ('k', u))]
        if w < 3 and u in flag_after:
            ds.append(dsop(f'ds_write_b32 v{FA}, v{FV} offset:{sorted(flag_after).index(u)*1024}'))
        return va, ds
    g = 0
    done_at = {}
    for u in range(nunit - (0 if w == 3 else 1)):
        va, ds = post(u)
        g = max(g, last[u] + 3 - (len(va) - 3))
        for x in va: g = gp.put('va', g, x) + 1
        for x in ds: g = gp.put('ds', g, x, excl=True) + 1
        done_at[u] = g
    for u in range(6, nunit):
        g = done_at[u-6] + 1
        A = accof(u)
        g = gp.put('va', g, f'v_mov_b64 v[{A}:{A+1}], 0') + 1
        g = gp.put('va', g, f'v_mov_b64 v[{A+2}:{A+3}], 0') + 1
        assert g < 7*u
    if w == 3:
        for pi, ph in enumerate(phases):
            flagrd = f"ds_read_b128 v[{T}:{T+3}], v{F['l16']} offset:{LDS_FL + pi*1024}"
            lead = cfg['lead'][pi]
            g = max(starts[pi] - lead, done_at[max(ph)] if max(ph) < 5 else 0)
            g = min(g, starts[pi]-1)
            gp.force('ds', g, dsop(flagrd, ('fl', pi)))
            ops = [tread(b, hf) for b in ph for hf in range(2)]
            for k, x in enumerate(ops):
                gp.force('ds', min(g + (k+1)//2, starts[pi]-1), x)
            slow = a.newlabel('L_fls'); back = a.newlabel('L_flb')
            def chk(lq, pi=pi, slow=slow, back=back):
                return (lq.wait(('fl', pi)) + f"""
                v_min3_u32 v{T}, v{T}, v{T+1}, v{T+2}
                v_cmp_gt_u32 vcc, s{S_EOFF}, v{T}
                s_cbranch_vccnz {slow};nf
{back}:;nf
                """ + ST(5+pi))
            gp.force('va', starts[pi]-1, chk)
            def cold(ph=ph, slow=slow, back=back, flagrd=flagrd):
                q = Q('lgkmcnt', 15)
                lp = a.newlabel('L_flp')
                a(f'{slow}:\ns_mov_b32 s{S_SPIN}, 0\n{lp}:')
                a(flagrd)
                for b in ph:
                    for hf in range(2): a(tread(b, hf)(q))
                a(f"""
                s_add_u32 s{S_SPIN}, s{S_SPIN}, 1
                s_waitcnt lgkmcnt(0)
                v_min3_u32 v{T}, v{T}, v{T+1}, v{T+2}
                v_cmp_gt_u32 vcc, s{S_EOFF}, v{T}
                s_cbranch_vccz {back}
                s_cmp_lt_u32 s{S_SPIN}, {SPIN_MAX}
                s_cbranch_scc1 {lp}
                s_branch {back}
                """)
            a.cold.append(cold)
    emit_stream(a, ms, gp, lq)
    hint = f"""s_mov_b64 exec, 1
        buffer_store_dword v{T+15}, v{T+14}, {WSRD}, s{S_POFF} offen {pf}
        s_mov_b64 exec, -1"""
    if w < 3:
        va, ds = post(nunit-1)
        for x in va: a(x)
        for x in ds: a(x(lq))
        a(lq.drain())
        stamp(a, stamps, 2)
        a('s_barrier')
    else:
        s = T
        mx = T+6; z = T+8; EA = tf; B1 = tf+4; B2 = tf+8; D1 = tf+12; D2 = tf+16; rz = T+10
        a(f"""
        v_mov_b64 v[{B1+2}:{B1+3}], 0
        v_mov_b64 v[{B2}:{B2+1}], 0
        v_mov_b32 v{B2+3}, 0
        v_mov_b32 v{EA+3}, 0
        """)
        for _ in range(cfg['b5nop']): a('s_nop 3')
        q = Q('lgkmcnt', 15)
        a(f"ds_read_b128 v[{T}:{T+3}], v{F['l16']} offset:{LDS_FL + 2048}"); q.issue('fl')
        for hf in range(2): a(tread(5, hf)(q))
        stamp(a, stamps, 2)
        a('s_barrier')
        stamp(a, stamps, 3)
        for hf in range(2): a(tread(6, hf)(q))
        slow = a.newlabel('L_b5s'); back = a.newlabel('L_b5b')
        a(q.wait('fl') + f"""
        v_min3_u32 v{T}, v{T}, v{T+1}, v{T+2}
        v_cmp_gt_u32 vcc, s{S_EOFF}, v{T}
        s_cbranch_vccnz {slow};nf
{back}:;nf
        """)
        def cold5(slow=slow, back=back):
            q2 = Q('lgkmcnt', 15)
            a(f'{slow}:\ns_waitcnt lgkmcnt(0)\n' + ST(7))
            for hf in range(2): a(tread(5, hf)(q2))
            a(f's_waitcnt lgkmcnt(0)\ns_branch {back}')
        a.cold.append(cold5)
        if cfg['phint'] == 0: a(hint)
        for b in (5, 6):
            for m, tags in smfma(b):
                for tg in tags: a(q.wait(tg))
                a(m)
        if cfg['phint'] == 1: a(hint)
        a(f"""
        v_add_f32_dpp v{s+4}, v{sa+10}, v{sa+8} {QP}
        v_add_f32_dpp v{s+5}, v{sa+11}, v{sa+9} {QP}
        v_pk_add_f32 v[{s}:{s+1}], v[{sa}:{sa+1}], v[{sa+2}:{sa+3}]
        v_pk_add_f32 v[{s+2}:{s+3}], v[{sa+4}:{sa+5}], v[{sa+6}:{sa+7}]
        v_max3_f32 v{mx}, v{s}, v{s+4}, v{s+2}
        v_max3_f32 v{mx+1}, v{s+1}, v{s+5}, v{s+3}
        """)
        hl = hint.split('\n') if cfg['phint'] == 2 else []
        for m in ('row_ror:8', 'row_ror:4', 'row_ror:2', 'row_ror:1'):
            for r in (mx, mx+1):
                a(f'v_max_f32_dpp v{r}, v{r}, v{r} {m} row_mask:0xf bank_mask:0xf')
        if hl: a(hint)
        for k in range(3): a(f'v_pk_add_f32 v[{s+2*k}:{s+2*k+1}], v[{s+2*k}:{s+2*k+1}], v[{mx}:{mx+1}] neg_lo:[0,1] neg_hi:[0,1]')
        for k in range(6): a(f'v_exp_f32 v{s+k}, v{s+k}')
        a(f"""
        v_pk_add_f32 v[{z}:{z+1}], v[{s}:{s+1}], v[{s+2}:{s+3}]
        v_pk_add_f32 v[{z}:{z+1}], v[{z}:{z+1}], v[{s+4}:{s+5}]
        """)
        if cfg['phint'] == 3: a(hint)
        fill = [f'v_cvt_pk_bf16_f32 v{EA+k}, v{s+2*k}, v{s+2*k+1}' for k in range(3)]
        a(fill.pop(0))
        for m in ('row_ror:8', 'row_ror:4', 'row_ror:2', 'row_ror:1'):
            if fill: a(fill.pop(0))
            for r in (z, z+1):
                a(f'v_add_f32_dpp v{r}, v{r}, v{r} {m} row_mask:0xf bank_mask:0xf')
        a(f"""
        v_rcp_f32 v{z}, v{z}
        v_rcp_f32 v{z+1}, v{z+1}
        v_cvt_pk_bf16_f32 v{rz}, v{z}, v{z+1}
        v_and_b32 v{B1}, v{rz}, v{F['mk0']}
        v_and_b32 v{B1+1}, v{rz}, v{F['mk1']}
        v_and_b32 v{B2+2}, v{rz}, v{F['mk2']}
        v_mfma_f32_16x16x32_bf16 v[{D1}:{D1+3}], v[{EA}:{EA+3}], v[{B1}:{B1+3}], 0
        v_mfma_f32_16x16x32_bf16 v[{D2}:{D2+3}], v[{EA}:{EA+3}], v[{B2}:{B2+3}], 0
        v_cvt_pk_bf16_f32 v{D1}, v{D1}, v{D1+1}
        v_cvt_pk_bf16_f32 v{D1+1}, v{D1+2}, v{D1+3}
        buffer_store_dwordx2 v[{D1}:{D1+1}], v{F['px']}, {WSRD}, s{S_POFF} offen {pf}
        v_cvt_pk_bf16_f32 v{D2}, v{D2}, v{D2+1}
        v_cvt_pk_bf16_f32 v{D2+1}, v{D2+2}, v{D2+3}
        s_mov_b32 exec_lo, 0x33333333
        s_mov_b32 exec_hi, 0x33333333
        buffer_store_dwordx2 v[{D2}:{D2+1}], v{F['pm']}, {WSRD}, s{S_POFF} offen {pf}
        s_mov_b64 exec, -1
        """)
        stamp(a, stamps, 4)
    stamp_flush(a, stamps, 11, mf)
    step_advance(a, 28672, 458752)
    a(f's_cmp_ge_u32 s{S_STEP}, 63\ns_cbranch_scc1 L_exit')
    if w == 3: load_x()
    if cfg['ssleep'][w]:
        a(f"s_sleep {cfg['ssleep'][w]}")
    a(f's_branch {top}')
    a.flush_cold()

S_YD = 33; S_YD2 = 36; S_CV = 37; S_CU = 38
CV = dict(ha=160, one=161, zero=162, cu=163, hw=164, hm=165, vy=168, l8=0, pa=1, idx=2, l16=3, pr=4, mw=6, lw=7, rw=8, rr=5, mf=12, acc=40, itm=72, vx=88, uf=96, tw=128, w=176)

def comb_setup(a, stamps, cfg):
    V = CV; LN = 112
    a(f'v_mov_b32 v{LN}, v1')
    team_register(a)
    common_addrs(a, V, LN)
    img_addr(a, V['mw'], LN+1, LN)
    a(f"""
    s_sub_u32 s{S_ROLE}, s{S_ROLE}, 16
    s_lshl_b32 s{S_ROLE}, s{S_ROLE}, 1
    s_and_b32 s{S_T0}, s{S_WAVE}, 1
    s_add_u32 s{S_T1}, s{S_ROLE}, s{S_T0}
    s_lshr_b32 s{S_T0}, s{S_T1}, 2
    s_lshl_b32 s{S_T0}, s{S_T0}, 10
    s_and_b32 s{S_T1}, s{S_T1}, 3
    s_lshl_b32 s{S_T1}, s{S_T1}, 7
    s_add_u32 s{S_T0}, s{S_T0}, s{S_T1}
    s_add_u32 s{S_T0}, s{S_T0}, 8192
    v_add_u32 v{V['mw']}, s{S_T0}, v{V['mw']}
    v_lshlrev_b32 v{V['l16']}, 4, v{LN}
    s_mul_i32 s{S_T0}, s{S_WAVE}, 28672
    s_add_u32 s{S_T0}, s{S_T0}, {LDS_BW}
    v_add_u32 v{V['lw']}, s{S_T0}, v{V['l16']}
    s_lshl_b32 s{S_T0}, s{S_WAVE}, 10
    v_add_u32 v{V['rw']}, s{S_T0}, v{V['l16']}
    v_add_u32 v{V['pr']}, s{S_T0}, v{V['rw']}
    s_and_b32 s{S_T0}, s{S_WAVE}, 1
    s_lshl_b32 s{S_T0}, s{S_T0}, 3
    v_add_u32 v{V['rr']}, s{S_T0}, v{V['l16']}
    s_mul_i32 s{S_T1}, s{S_WAVE}, {4*28}
    s_add_u32 s{S_T1}, s{S_T1}, s{S_ROLE}
    s_add_u32 s{S_T1}, s{S_T1}, 448
    s_mul_i32 s{S_T1}, s{S_T1}, 14336
    s_add_u32 s{S_T1}, s{S_T1}, {L.WT}
    """)
    toff = lambda u: ((u >> 1)*28 + (u & 1))*14336
    for u in (6, 7):
        a(f's_add_u32 s{S_T0}, s{S_T1}, {toff(u)}')
        load_1k_run(a, [vr(12 + 4*k, 4) for k in range(14)], V['l16'], S_T0)
        for k in range(14):
            a(f's_waitcnt vmcnt({13-k})')
            a(f"ds_write_b128 v{V['lw']}, v[{12+4*k}:{12+4*k+3}] offset:{(u-6)*14336+k*1024}")
        a('s_waitcnt lgkmcnt(0)')
    bud = [0]
    for u in range(6):
        a(f's_add_u32 s{S_T0}, s{S_T1}, {toff(u)}')
        load_1k_run(a, [wreg_half(u*7 + k//2, V['w'], k % 2) for k in range(14)], V['l16'], S_T0, budget=bud)
    a(f"""
    s_mov_b32 s{S_STEP}, 0
    s_mov_b32 s{S_MOFF}, {L.MB_M}
    s_mov_b32 s{S_POFF}, {L.MB_P}
    s_lshl_b32 s{S_GOFF}, s{S_ROLE}, 14
    s_lshl_b32 s{S_T0}, s{S_WAVE}, 12
    s_add_u32 s{S_GOFF}, s{S_GOFF}, s{S_T0}
    s_add_u32 s{S_GOFF}, s{S_GOFF}, {L.U}
    s_lshl_b32 s{S_XOFF}, s{S_ROLE}, 12
    s_add_u32 s{S_XOFF}, s{S_XOFF}, {L.VM}
    s_lshr_b32 s{S_STMP}, s{S_ROLE}, 1
    s_add_u32 s{S_STMP}, s{S_STMP}, 16
    s_lshl_b32 s{S_STMP}, s{S_STMP}, 2
    s_add_u32 s{S_STMP}, s{S_STMP}, s{S_WAVE}
    s_lshl_b32 s{S_STMP}, s{S_STMP}, 12
    s_add_u32 s{S_STMP}, s{S_STMP}, {L.STAMP}
    s_waitcnt vmcnt(0)
    """)
    a(f"""
    v_mov_b32 v{V['one']}, 1
    v_mov_b32 v{V['zero']}, 0
    v_mov_b32 v{V['cu']}, 0
    v_and_b32 v{V['ha']}, 24, v{V['l8']}
    v_lshrrev_b32 v{V['ha']}, 1, v{V['ha']}
    s_lshl_b32 s{S_T0}, s{S_WAVE}, 4
    s_add_u32 s{S_T0}, s{S_T0}, 12288
    v_add_u32 v{V['ha']}, s{S_T0}, v{V['ha']}
    s_lshl_b32 s{S_T0}, s{S_ROLE}, 1
    s_add_u32 s{S_T0}, s{S_T0}, s{S_WAVE}
    s_lshl_b32 s{S_T0}, s{S_T0}, 2
    s_add_u32 s{S_T0}, s{S_T0}, {8192 + 7168}
    v_mov_b32 v{V['hw']}, s{S_T0}
    s_add_u32 s{S_YD}, s{S_XOFF}, 0x8000000
    s_mov_b32 s{S_CU}, {L.CNT_U}
    """)
    for k in range(8): a(f"v_mov_b32 v{V['vy']+k}, 0")
    for k in range(16): a(f"v_mov_b32 v{V['itm']+k}, 0")
    for k in range(32): a(f"v_mov_b32 v{V['uf']+k}, 0")
    team_mode(a, V['mf'], V['mf']+1)
    if cfg['flags']: wait_cnt(a, S_CU, 28, 9)

def comb_wave(a, pf, stamps, cfg):
    V = CV; idx = V['idx']; mf = V['mf']; tw = V['tw']; uf = V['uf']
    top = a.newlabel('L_cb_top')
    def store_vx(base, r):
        return [f"buffer_store_dwordx4 v[{r}:{r+3}], v{V['rw']}, {WSRD}, s{base} offen {cfg.get('vxfl', cfg['xflags'])}",
                f"s_add_u32 s{S_T1}, s{base}, 4096\nbuffer_store_dwordx4 v[{r+4}:{r+7}], v{V['rw']}, {WSRD}, s{S_T1} offen {cfg.get('vxfl', cfg['xflags'])}"]
    a(f"v_lshrrev_b32 v{V['hm']}, 1, v{V['l8']}\nv_min_u32 v{V['hm']}, {55*4}, v{V['hm']}\nv_add_u32 v{V['hm']}, 7168, v{V['hm']}")
    lq = Q('lgkmcnt', 15)
    def lread(lam, hf):
        return dsop(f"ds_read_b128 v[{tw+8*(lam%4)+4*hf}:{tw+8*(lam%4)+4*hf+3}], v{V['lw']} offset:{lam*2048+hf*1024}", ('lw', lam))
    def housekeeping():
        for u in range(8):
            A = V['acc'] + 4*u
            a(f'v_mov_b64 v[{A}:{A+1}], 0\nv_mov_b64 v[{A+2}:{A+3}], 0')
        for lam in range(4):
            for hf in range(2): a(lread(lam, hf)(lq))
    housekeeping()
    a.label(top)
    stamp(a, stamps, 0)
    if cfg['chint']:
        nh = a.newlabel('L_nh')
        a(f's_cmp_eq_u32 s{S_STEP}, 0\ns_cbranch_scc1 {nh}')
        wait_hint(a, V['hm'], S_MOFF, 10, delay=cfg['cdelay'])
        a.label(nh)
    poll_m(a, V)
    lq.drain()
    stamp(a, stamps, 1)
    for b in range(7):
        for hf in range(2):
            a(f"ds_read_b64_tr_b16 v[{mf+4*b+2*hf}:{mf+4*b+2*hf+1}], v{V['l8']} offset:{LDS_M+b*1024+hf*512}")
            lq.issue(('mf', b))
    ms = []; last = {}
    rb = 0
    for p in range(56):
        if p % 4 == 3:
            lam = p // 4; u = 6 + lam // 7; b = lam % 7
            ms.append((SM(V['acc']+4*u, mf+4*b, vr(tw+8*(lam % 4), 8), idx), [('mf', b), ('lw', lam)]))
        else:
            u = rb // 7; b = rb % 7; rb += 1
            ms.append((SM(V['acc']+4*u, mf+4*b, wreg(u*7+b, V['w']), idx), [('mf', b)]))
        last[u] = p
    gp = Gaps(56)
    for lam in range(4, 14):
        g = 4*(lam-4) + 3
        g = gp.put('ds', g, lread(lam, 0)) + 1
        gp.put('ds', g, lread(lam, 1))
    a(f"""
    s_add_u32 s{S_T0}, s{S_GOFF}, 16384
    s_lshl_b32 s{S_CU}, s{S_STEP}, 7
    s_add_u32 s{S_CU}, s{S_CU}, {L.CNT_U + 128}
    """)
    g = 0
    for x in store_vx(S_YD, V['vy']): g = gp.put('ds', g, x) + cfg['ustep']
    for k in ([] if cfg['nou'] else [4, 5, 6, 7, 0, 1, 2, 3]):
        g = gp.put('ds', g, f"buffer_load_dwordx4 v[{uf+4*k}:{uf+4*k+3}], v{V['l16']}, {WSRD}, s{S_GOFF if k < 4 else S_T0} offen offset:{(k%4)*1024} {cfg['xflags']}") + cfg['ustep']
    if cfg['flags']:
        gp.put('ds', g, f"buffer_load_dword v{V['cu']}, v{V['zero']}, {WSRD}, s{S_CU} offen sc1")
    def post(u):
        A = V['acc'] + 4*u; hl = u >> 1; ctl = u & 1
        return [f'v_add_f32 v{A}, v{A}, v{A+2}', f'v_add_f32 v{A+1}, v{A+1}, v{A+3}',
                f"v_cvt_pk_bf16_f32 v{V['itm']+8*ctl+4*(hl>>1)+(hl&1)}, v{A}, v{A+1}", f"v_cvt_pk_bf16_f32 v{V['vx']+4*ctl+hl}, v{A}, v{A+1}"]
    tail = []
    for u in sorted(last, key=lambda u: last[u]):
        g = last[u] + 3
        if g + 4 >= 56: tail += post(u); continue
        for x in post(u): g = gp.put('va', g, x) + 1
    emit_stream(a, ms, gp, lq)
    for x in tail: a(x)
    cont = a.newlabel('L_cbc')
    a(f's_cmp_lt_u32 s{S_STEP}, 63\ns_cbranch_scc1 {cont}')
    for x in store_vx(S_XOFF, V['vx']): a(x)
    a(f"""
    s_mov_b32 s{S_CV}, {L.CNT_V + 62*128}
    s_waitcnt vmcnt(0)
    s_mov_b64 exec, 1
    buffer_atomic_add v{V['one']}, v{V['zero']}, {WSRD}, s{S_CV} offen offset:128
    buffer_atomic_add v{V['one']}, v{V['zero']}, {WSRD}, s{S_CV} offen
    s_branch L_exit
{cont}:
    """)
    for k in range(4): a(f"v_mov_b64 v[{V['vy']+2*k}:{V['vy']+2*k+1}], v[{V['vx']+2*k}:{V['vx']+2*k+1}]")
    housekeeping()
    A = V['vx']
    for k in range(4): a(f'v_mov_b64 v[{A+2*k}:{A+2*k+1}], 0')
    a(f's_add_u32 s{S_T0}, s{S_POFF}, 8192\ns_mov_b32 s{S_YD}, s{S_XOFF}')
    stamp(a, stamps, 2)
    stamp_flush(a, stamps and cfg['cflush'], 11, mf)
    if stamps: a('s_waitcnt vmcnt(1)')
    stamp(a, stamps, 3)
    wait_hint(a, V['ha'], S_POFF, 10, delay=cfg['pdelay'])
    stamp(a, stamps, 6)
    l = a.newlabel('L_pp'); d = a.newlabel('L_ppd'); t = 9; p = mf
    a(f"""
    s_mov_b32 s{S_SPIN}, 0
{l}:
    buffer_load_dwordx4 v[{p}:{p+3}], v{V['pr']}, {WSRD}, s{S_POFF} offen sc1
    buffer_load_dwordx4 v[{p+4}:{p+7}], v{V['pr']}, {WSRD}, s{S_POFF} offen offset:1024 sc1
    buffer_load_dwordx4 v[{p+8}:{p+11}], v{V['rw']}, {WSRD}, s{S_T0} offen sc1
    s_add_u32 s{S_SPIN}, s{S_SPIN}, 1
    s_waitcnt vmcnt(2)
    v_max_u32 v{t}, v{p}, v{p+2}
    s_waitcnt vmcnt(1)
    v_max3_u32 v{t}, v{t}, v{p+4}, v{p+6}
    s_waitcnt vmcnt(0)
    v_max3_u32 v{t}, v{t}, v{p+8}, v{p+10}
    v_cmp_eq_u32 vcc, -1, v{t}
    s_cbranch_vccz {d}
    s_cmp_lt_u32 s{S_SPIN}, s{S_LIM}
    s_cbranch_scc1 {l}
    s_mov_b32 s{S_LIM}, 1
{d}:
    """)
    stamp(a, stamps, 4)
    if stamps: a(f's_mov_b32 s{40+2*7}, s{S_SPIN}')
    for ctl in range(2):
        a(SM(A+4*ctl, p, vr(uf+16*ctl, 8), idx))
        if ctl == 0:
            a(f"""s_mov_b64 exec, 1
            buffer_store_dword v{V['zero']}, v{V['hw']}, {WSRD}, s{S_MOFF} offen {pf}
            s_mov_b64 exec, -1""")
        a(SM(A+4*ctl, p+4, vr(uf+16*ctl+8, 8), idx))
        a(SM(A+4*ctl, p+8, vr(V['itm']+8*ctl, 8), idx))
    R = mf+12
    if cfg['flags']: a(f"v_readfirstlane_b32 s{S_CV}, v{V['cu']}")
    a(f"""
    v_add_f32 v{R}, v{A}, v{A+2}
    v_add_f32 v{R+1}, v{A+1}, v{A+3}
    v_add_f32 v{R+2}, v{A+4}, v{A+6}
    v_add_f32 v{R+3}, v{A+5}, v{A+7}
    ds_write_b128 v{V['rw']}, v[{R}:{R+3}] offset:{LDS_RED}
    """)
    R = mf+12
    fin = a.newlabel('L_cbf')
    a(f"""
    s_cmp_ge_u32 s{S_WAVE}, 2
    s_waitcnt lgkmcnt(0)
    s_barrier
    s_cbranch_scc1 {fin}
    ds_read_b64 v[{R}:{R+1}], v{V['rr']} offset:{LDS_RED}
    ds_read_b64 v[{R+2}:{R+3}], v{V['rr']} offset:{LDS_RED+1024}
    ds_read_b64 v[{R+4}:{R+5}], v{V['rr']} offset:{LDS_RED+2048}
    ds_read_b64 v[{R+6}:{R+7}], v{V['rr']} offset:{LDS_RED+3072}
    s_waitcnt lgkmcnt(2)
    v_pk_add_f32 v[{R}:{R+1}], v[{R}:{R+1}], v[{R+2}:{R+3}]
    s_waitcnt lgkmcnt(0)
    v_pk_add_f32 v[{R+4}:{R+5}], v[{R+4}:{R+5}], v[{R+6}:{R+7}]
    v_pk_add_f32 v[{R}:{R+1}], v[{R}:{R+1}], v[{R+4}:{R+5}]
    v_cvt_pk_bf16_f32 v{R}, v{R}, v{R+1}
    buffer_store_dword v{R}, v{V['mw']}, {WSRD}, s{S_MOFF} offen {pf}
{fin}:
    """)
    stamp(a, stamps, 5)
    if cfg['flags']:
        slow = a.newlabel('L_us'); back = a.newlabel('L_ub')
        a(f's_cmp_lt_u32 s{S_CV}, 28\ns_cbranch_scc1 {slow}\n{back}:')
        def coldu():
            a.label(slow)
            wait_cnt(a, S_CU, 28, 9)
            a(f's_branch {back}')
        a.cold.append(coldu)
    step_advance(a, 458752)
    if cfg['csleep']:
        a(f"s_sleep {cfg['csleep']}")
    a(f's_branch {top}')
    a.flush_cold()

def helper_cu(a, cfg):
    V = dict(l8=0, pa=1, idx=2, mf=12); LN = 112
    NP = cfg['npf']; D = cfg['pfd']; PER = cfg['pfper']
    a(f'v_mov_b32 v{LN}, v1')
    team_register(a)
    common_addrs(a, V, LN)
    a(f"""
    v_lshlrev_b32 v4, 7, v{LN}
    v_mov_b32 v5, 0
    v_mov_b32 v6, 14
    s_sub_u32 s{S_ROLE}, s{S_ROLE}, 30
    s_lshl_b32 s{S_EOFF}, s{S_ROLE}, 2
    s_add_u32 s{S_EOFF}, s{S_EOFF}, s{S_WAVE}
    s_mov_b32 s{S_STEP}, 0
    s_mov_b32 s{S_MOFF}, {L.MB_M + 8192}
    s_mov_b32 s{S_CV}, {L.DUMMY + 0x200000}
    s_mul_i32 s{S_GOFF}, s{S_EOFF}, 7168
    s_add_u32 s{S_GOFF}, s{S_GOFF}, {L.XP}
    s_mov_b32 s{S_POFF}, 28672
    s_cmp_lt_u32 s{S_EOFF}, 4
    s_cbranch_scc1 H_t
    s_sub_u32 s{S_GOFF}, s{S_EOFF}, 4
    s_mul_i32 s{S_GOFF}, s{S_GOFF}, 5120
    s_add_u32 s{S_GOFF}, s{S_GOFF}, {L.MB_P}
    s_mov_b32 s{S_POFF}, 16384
    s_cmp_lt_u32 s{S_EOFF}, 6
    s_cbranch_scc1 H_t
    s_mov_b32 s{S_GOFF}, {L.MB_M + 8192}
    s_mov_b32 s{S_POFF}, 8192
H_t:
    """)
    def mtouch():
        a(f'buffer_load_dword v7, v4, {WSRD}, s{S_GOFF} offen sc1\ns_add_u32 s{S_GOFF}, s{S_GOFF}, s{S_POFF}')
    for _ in range(D+1): mtouch()
    team_mode(a, V['mf'], V['mf']+1)
    a(f's_mov_b32 s{S_LIM}, {SPIN_MAX*4}')
    mul = {2: (128, 8), 3: (86, 8)}[PER]
    for k in range(NP):
        a(f"""
        s_add_u32 s{S_T0}, s{S_EOFF}, {8*k}
        s_min_u32 s{S_T0}, s{S_T0}, {14*PER-1}
        s_mul_i32 s{S_T1}, s{S_T0}, {mul[0]}
        s_lshr_b32 s{S_T1}, s{S_T1}, {mul[1]}
        s_mul_i32 s{S_T1}, s{S_T1}, {4-PER}
        s_add_u32 s{S_T0}, s{S_T0}, s{S_T1}
        s_lshl_b32 s{60+k}, s{S_T0}, 13
        s_add_u32 s{60+k}, s{60+k}, {L.U}
        """)
    def utouch():
        for k in range(NP):
            a(f'buffer_load_dword v{32+k}, v4, {WSRD}, s{60+k} offen sc1\ns_add_u32 s{60+k}, s{60+k}, 458752')
    a(f's_mov_b32 s{S_CU}, {L.CNT_U}')
    for _ in range(D if NP else 0):
        if cfg['flags']: wait_cnt(a, S_CU, 28, 30)
        utouch()
        a(f's_add_u32 s{S_CU}, s{S_CU}, 128')
    t = V['mf']; pa = V['pa']
    sk = a.newlabel('H_sk'); sk2 = a.newlabel('H_sk'); ok = a.newlabel('H_ok')
    a(f"""
H_top:
    s_mov_b32 s{S_SPIN}, 0
H_poll:
    buffer_load_dwordx4 v[{t}:{t+3}], v{pa}, {WSRD}, s{S_MOFF} offen sc1
    buffer_load_dwordx4 v[{t+4}:{t+7}], v{pa}, {WSRD}, s{S_MOFF} offen offset:768 sc1
    buffer_load_dword v30, v5, {WSRD}, s{S_CU} offen sc1
    s_add_u32 s{S_SPIN}, s{S_SPIN}, 1
    s_waitcnt vmcnt(0)
    v_max3_u32 v{t+8}, v{t}, v{t+1}, v{t+2}
    v_max3_u32 v{t+8}, v{t+8}, v{t+3}, v{t+4}
    v_max3_u32 v{t+8}, v{t+8}, v{t+5}, v{t+6}
    v_max_u32 v{t+8}, v{t+8}, v{t+7}
    v_readfirstlane_b32 s{S_T0}, v30
    v_cmp_eq_u32 vcc, -1, v{t+8}
    s_cbranch_vccz {ok}
    s_sleep {cfg['hsleep']}
    s_cmp_lt_u32 s{S_SPIN}, s{S_LIM}
    s_cbranch_scc1 H_poll
    s_mov_b32 s{S_LIM}, 1
{ok}:
    s_cmp_lg_u32 s{S_ROLE}, 0
    s_cbranch_scc1 {sk}
    s_add_u32 s{S_T1}, s{S_MOFF}, {L.MB_Y - L.MB_M}
    buffer_store_dwordx4 v[{t}:{t+3}], v{pa}, {WSRD}, s{S_T1} offen sc1
    buffer_store_dwordx4 v[{t+4}:{t+7}], v{pa}, {WSRD}, s{S_T1} offen offset:768 sc1
    s_mov_b64 exec, 1
    buffer_atomic_add v6, v5, {WSRD}, s{S_CV} offen
    s_mov_b64 exec, -1
    s_lshl_b32 s{S_CV}, s{S_STEP}, 7
    s_add_u32 s{S_CV}, s{S_CV}, {L.CNT_V}
{sk}:
    s_cmp_ge_u32 s{S_STEP}, {63 - D}
    s_cbranch_scc1 {sk2}
    """)
    mtouch()
    if NP:
        sk3 = a.newlabel('H_sk'); sk4 = a.newlabel('H_sk')
        if cfg['flags']: a(f's_cmp_lt_u32 s{S_T0}, 28\ns_cbranch_scc1 {sk3}')
        utouch()
        a(f's_branch {sk4}\n{sk3}:')
        for k in range(NP): a(f's_add_u32 s{60+k}, s{60+k}, 458752')
        a(f'{sk4}:\ns_add_u32 s{S_CU}, s{S_CU}, 128')
    a(f"""
{sk2}:
    s_add_u32 s{S_STEP}, s{S_STEP}, 1
    s_add_u32 s{S_MOFF}, s{S_MOFF}, 8192
    s_cmp_lt_u32 s{S_STEP}, 63
    s_cbranch_scc1 H_top
    s_branch L_exit
    """)

DEFAULT_CFG = dict(ba=[35, 35, 34, 34], bak=3, bb=[53, 53, 0, 0], xflags='', ssleep=[10, 10, 10, 0], csleep=0, psleep=0, touch=1,
                   nou=0, nox=0, cflush=1, flags=0, ustep=2, hsleep=4, mdelay=0, pdelay=0, phint=1, lead=[5, 2], b5nop=0, utouch=0, npf=4, pfper=2, pfd=3, mpre=6, chint=0, cdelay=0)

def team_body(a, stamps=False, cfg=None):
    cfg = dict(DEFAULT_CFG, **(cfg or {}))
    a(f's_cmp_lt_u32 s{S_ROLE}, 30\ns_cbranch_scc1 L_nothelp')
    helper_cu(a, cfg)
    a.label('L_nothelp')
    a(f's_cmp_ge_u32 s{S_ROLE}, 16\ns_cbranch_scc1 L_comb')
    score_setup(a, stamps)
    for fast in (1, 0):
        a(f's_cmp_lg_u32 s{S_FAST}, {fast}\ns_cbranch_scc1 L_sc_next{fast}')
        for w in range(4):
            if w < 3:
                a(f's_cmp_lg_u32 s{S_WAVE}, {w}\ns_cbranch_scc1 L_sc{fast}_n{w}')
            score_wave(a, w, '' if fast else 'sc1', stamps, cfg)
            if w < 3: a.label(f'L_sc{fast}_n{w}')
        a.label(f'L_sc_next{fast}')
    a('s_branch L_exit')
    a.label('L_comb')
    comb_setup(a, stamps, cfg)
    for fast in (1, 0):
        a(f's_cmp_lg_u32 s{S_FAST}, {fast}\ns_cbranch_scc1 L_cb_next{fast}')
        comb_wave(a, '' if fast else 'sc1', stamps, cfg)
        a.label(f'L_cb_next{fast}')
    a('s_branch L_exit')
```

```python
from build import *
import team, prep, gemm, attn, ffn
HEADER = open('sequential_preLN__memory_aug_recurrent_mem_tr__dense_activation_relu__prompt.s.ref').read().split('; Override launch')[0]
def relabel(fn, tag):
    def g(a):
        fn(a)
        import re
        for i, (k, x) in enumerate(a.items):
            if k == 'l' and x.startswith(('L_exit', 'L_role')): a.items[i] = ('l', x + tag)
            elif k == 'i' and ('L_exit' in x.text or 'L_role' in x.text):
                x.text = re.sub(r'(L_exit|L_role\w+)', lambda m: m.group(1) + tag, x.text)
    return g
def v2(tcfg=None, stamps=False):
    def km(a):
        team.prologue(a, stamps)
        R = team.S_ROLE
        a(f"""
        s_cmp_ge_u32 s{R}, 32
        s_cbranch_scc1 M_worker
        """)
        team.team_body(a, stamps, dict(dict(xflags='sc1', flags=1), **(tcfg or {})))
        a(f"""
M_worker:
        s_lshr_b32 s26, s{R}, 5
        s_sub_u32 s26, s26, 1
        s_and_b32 s27, s{R}, 31
        s_cmp_ge_u32 s27, 30
        s_cbranch_scc1 M_attn
        s_cmp_ge_u32 s27, 16
        s_cbranch_scc1 M_ffn
        s_lshl_b32 s{R}, s26, 4
        s_add_u32 s{R}, s{R}, s27
        """)
        gemm.gemm_role(a, dict(xflags='sc1', ng=2))
        a.label('M_attn')
        attn.attn_role(a, dict(xflags='sc1', flags=1, asleep=4, ticket=1))
        a(f"""
M_ffn:
        s_mov_b32 s{ffn.F_Q}, s26
        s_sub_u32 s{ffn.F_J}, s27, 16
        """)
        ffn.ffn_role(a, dict(xflags='sc1', flags=1), 7)
        a.label('L_exit'); a('s_endpgm')
    return assemble([('prep_kernel', prep.prep_kernel, 256, 256, 106496), ('main_kernel', km, 256, 256, 163840)], HEADER)
if __name__ == '__main__':
    args = [eval(x) for x in sys.argv[3:]]
    open(sys.argv[2], 'w').write(globals()[sys.argv[1]](*args))
```

```python
from asmlib import *
import layout as L
from team import *
import prep

A_SEG = 36; A_Z = 37; A_TX = 38; A_U = 39; A_S0 = 40; A_S1 = 41; A_XS = 44
AL_M = 0
AL_E = 8192
AL_ST = 24576
AL_X = 28672
AV = dict(l8=0, pa=1, idx=2, l16=3, mf=12)
TXV = lambda hl, kb: f'a[{(hl*14+kb)*4}:{(hl*14+kb)*4+3}]'
TX8 = lambda hl, b: f'a[{(hl*14+2*b)*4}:{(hl*14+2*b)*4+7}]'
def oreg(p, c):
    i = c*8 + p
    return ('v', 64 + 4*i) if i < 48 else ('a', 224 + 4*(i-48))

def dma_run(a, n, vaddr, sbase, lds_base_sgpr, flags):
    for k in range(n):
        if k % 4 == 0:
            if k: a(f's_add_u32 s{sbase}, s{sbase}, 4096\ns_add_u32 s{lds_base_sgpr}, s{lds_base_sgpr}, 4096')
            a(f's_mov_b32 m0, s{lds_base_sgpr}')
        a(f'buffer_load_dwordx4 v{vaddr}, {WSRD}, s{sbase} offen offset:{(k%4)*1024} {flags} lds')

def attn_role(a, cfg):
    V = AV; xfl = cfg['xflags']; LN = 40
    mf = V['mf']
    def rt(k):
        if cfg.get('diag'): a(f's_memrealtime s[{60+2*k}:{61+2*k}]')
    a(f's_mov_b32 s{S_LIM}, {SPIN_MAX*8}')
    if cfg.get('ticket'):
        a(f"""
A_top:
        v_mov_b32 v4, {LDS_ROLE}
        s_cmp_lg_u32 s{S_WAVE}, 0
        s_barrier
        s_cbranch_scc1 A_tw
        s_mov_b64 exec, 1
        v_mov_b32 v2, {L.CNT_TK}
        v_mov_b32 v3, 1
        buffer_atomic_add v3, v2, {WSRD}, 0 offen sc0
        s_waitcnt vmcnt(0)
        ds_write_b32 v4, v3
        s_mov_b64 exec, -1
        s_waitcnt lgkmcnt(0)
A_tw:
        s_barrier
        ds_read_b32 v2, v4
        s_waitcnt lgkmcnt(0)
        v_readfirstlane_b32 s{S_ROLE}, v2
        s_cmp_ge_u32 s{S_ROLE}, 128
        s_cbranch_scc1 L_exit
        """)
    a(f"""
    v_mbcnt_lo_u32_b32 v{LN}, -1, 0
    v_mbcnt_hi_u32_b32 v{LN}, -1, v{LN}
    s_load_dwordx2 s[4:5], s[0:1], 0
    s_lshr_b32 s{A_SEG}, s{S_ROLE}, 1
    s_and_b32 s{A_Z}, s{S_ROLE}, 1
    """)
    common_addrs(a, V, LN)
    a(f"""
    v_lshlrev_b32 v{V['l16']}, 4, v{LN}
    s_waitcnt lgkmcnt(0)
    """)
    prep.srd(a, A_XS, 4, 2048*896)
    q, g, t = LN+1, LN+2, LN+3
    a(f"""
    v_and_b32 v{q}, 15, v{LN}
    v_lshrrev_b32 v{g}, 4, v{LN}
    s_lshl_b32 s{S_T0}, s{A_Z}, 4
    v_add_u32 v{t}, s{S_T0}, v{q}
    v_lshlrev_b32 v{t+1}, 2, v{g}
    v_mov_b32 v{t+2}, 0
    v_mov_b32 v{t+3}, 0xff800000
    """)
    for k in range(8):
        a(f"""
        v_add_u32 v{t+4}, {(k>>2)*16 + (k&3)}, v{t+1}
        v_cmp_gt_u32 vcc, v{t+4}, v{t}
        v_cndmask_b32 v{4+k}, v{t+2}, v{t+3}, vcc
        """)
    rt(0)
    a(f"""
    s_lshl_b32 s{A_S0}, s{A_SEG}, 7
    s_add_u32 s{A_S0}, s{A_S0}, {L.CNT_T}
    """)
    if cfg['flags']: wait_cnt(a, A_S0, 28, t)
    a(f"""
    s_mul_i32 s{A_S0}, s{A_SEG}, 28672
    s_mul_i32 s{A_S1}, s{S_WAVE}, 7168
    s_add_u32 s{A_S0}, s{A_S0}, s{A_S1}
    s_add_u32 s{A_S0}, s{A_S0}, {L.XN}
    s_add_u32 s{A_S1}, s{A_S1}, {AL_X}
    """)
    dma_run(a, 7, V['l16'], A_S0, A_S1, '')
    a(f"""
    s_mul_i32 s{A_TX}, s{A_SEG}, 458752
    s_mov_b32 s{A_U}, s{A_TX}
    s_mul_i32 s{S_T0}, s{S_WAVE}, {4*28672}
    s_add_u32 s{A_TX}, s{A_TX}, s{S_T0}
    s_mul_i32 s{S_T0}, s{A_Z}, 14336
    s_add_u32 s{A_TX}, s{A_TX}, s{S_T0}
    s_add_u32 s{A_TX}, s{A_TX}, {L.TX}
    s_mul_i32 s{S_T0}, s{S_WAVE}, {7*16384}
    s_add_u32 s{A_U}, s{A_U}, s{S_T0}
    s_add_u32 s{A_U}, s{A_U}, {L.U}
    """)
    def load_tx():
        for hl in range(4):
            a(f's_add_u32 s{S_T0}, s{A_TX}, {hl*28672}')
            load_1k_run(a, [TXV(hl, kb) for kb in range(14)], V['l16'], S_T0, xfl)
    load_tx()
    a('s_waitcnt vmcnt(56)\ns_barrier')
    KF = 64; SC = 176; LM = 48
    for kt in range(2):
        for kb in range(14):
            a(f"ds_read_b128 v[{KF+(kt*14+kb)*4}:{KF+(kt*14+kb)*4+3}], v{V['l16']} offset:{AL_X+kt*14336+kb*1024}")
    a('s_waitcnt lgkmcnt(0)')
    for hl in range(4):
        a(f's_waitcnt vmcnt({14*(3-hl)})')
        for kb in range(14):
            for kt in range(2):
                c = SC + (hl*2+kt)*4; k = KF+(kt*14+kb)*4
                a(f'v_mfma_f32_16x16x32_bf16 v[{c}:{c+3}], v[{k}:{k+3}], {TXV(hl,kb)}, ' + ('0' if kb == 0 else f'v[{c}:{c+3}]'))
    a(f"""
    s_lshl_b32 s{A_S0}, s{A_SEG}, 7
    s_add_u32 s{A_S0}, s{A_S0}, {L.CNT_U}
    """)
    if cfg['flags']: wait_cnt(a, A_S0, 28, t)
    vq = Q('vmcnt', 63)
    NR = 56
    def uload(i):
        o = []
        if i % 4 == 0: o.append(f's_add_u32 s{S_T1}, s{A_U}, {i*1024}')
        r = (i % NR)*4
        o.append(f"buffer_load_dwordx4 a[{r}:{r+3}], v{V['l16']}, {WSRD}, s{S_T1} offen offset:{(i%4)*1024} {xfl}")
        vq.issue(i)
        return '\n'.join(o)
    a('s_nop 7')
    for i in range(NR): a(uload(i))
    T = 208
    for hl in range(4):
        c = SC + hl*8
        for k in range(8): a(f'v_add_f32 v{c+k}, v{c+k}, v{4+k}')
        a(f"""
        v_max3_f32 v{LM+hl}, v{c}, v{c+1}, v{c+2}
        v_max3_f32 v{LM+hl}, v{LM+hl}, v{c+3}, v{c+4}
        v_max3_f32 v{LM+hl}, v{LM+hl}, v{c+5}, v{c+6}
        v_max_f32 v{LM+hl}, v{LM+hl}, v{c+7}
        """)
        xlane4(a, 'v_max_f32', LM+hl, T)
        for k in range(8): a(f'v_sub_f32 v{c+k}, v{c+k}, v{LM+hl}')
        for k in range(8): a(f'v_exp_f32 v{c+k}, v{c+k}')
        s = LM+4+hl
        a(f'v_add_f32 v{s}, v{c}, v{c+1}')
        for k in range(2, 8): a(f'v_add_f32 v{s}, v{s}, v{c+k}')
        xlane4(a, 'v_add_f32', s, T)
        for k in range(4): a(f'v_cvt_pk_bf16_f32 v{T+4+(0, 2, 1, 3)[k]}, v{c+2*k}, v{c+2*k+1}')
        if hl == 0:
            a(f"s_lshl_b32 s{S_T0}, s{S_WAVE}, 12\nv_add_u32 v{LN+1}, s{S_T0}, v{V['l16']}")
        a(f'ds_write_b128 v{LN+1}, v[{T+4}:{T+7}] offset:{AL_E+hl*1024}')
    a('s_waitcnt lgkmcnt(0)\ns_barrier')
    EF = 12; OA = 28
    oacc = [28, 32, 36, 56]
    lq = Q('lgkmcnt', 15)
    def eread(i):
        r = EF + (i % 4)*4
        lq.issue(i)
        return f"ds_read_b128 v[{r}:{r+3}], v{V['l16']} offset:{AL_E+(i%16)*1024}"
    for i in range(3): a(eread(i))
    def opost(i):
        c, h = i // 16, i % 16
        k, r = oreg(h >> 1, c); r += 2*(h & 1); A = oacc[i % 4]
        if k == 'v':
            return [f'v_cvt_pk_bf16_f32 v{r}, v{A}, v{A+1}', f'v_cvt_pk_bf16_f32 v{r+1}, v{A+2}, v{A+3}']
        return [f'v_cvt_pk_bf16_f32 v{A}, v{A}, v{A+1}', f'v_cvt_pk_bf16_f32 v{A+2}, v{A+2}, v{A+3}',
                f'v_accvgpr_write_b32 a{r}, v{A}', f'v_accvgpr_write_b32 a{r+1}, v{A+2}']
    for i in range(112):
        for w in (vq.wait(i), lq.wait(i)):
            if w: a(w)
        A = oacc[i % 4]; e = EF + (i % 4)*4; u = (i % NR)*4
        a(f'v_mfma_f32_16x16x32_bf16 v[{A}:{A+3}], v[{e}:{e+3}], a[{u}:{u+3}], 0')
        if i + 3 < 112: a(eread(i+3))
        if i >= 3:
            for x in opost(i-3): a(x)
        if i >= 1 and i - 1 + NR < 112: a(uload(i-1+NR))
    for i in range(109, 112):
        for x in opost(i): a(x)
    a('s_nop 7')
    load_tx()
    XR = 4
    xreg = lambda c: (4 + 2*c) if c < 4 else (56 + 2*(c-4))
    a(f"""
    v_and_b32 v{q}, 15, v{LN}
    v_lshrrev_b32 v{g}, 4, v{LN}
    v_mul_u32_u24 v{t}, 896, v{q}
    v_lshl_add_u32 v{t}, v{g}, 3, v{t}
    s_mul_i32 s{S_T0}, s{S_ROLE}, {16*896}
    s_mul_i32 s{S_T1}, s{S_WAVE}, 224
    s_add_u32 s{S_T0}, s{S_T0}, s{S_T1}
    """)
    for c in range(7):
        a(f'buffer_load_dwordx2 v[{xreg(c)}:{xreg(c)+1}], v{t}, s[{A_XS}:{A_XS+3}], s{S_T0} offen offset:{c*32}')
    MK = 62
    a(f"""
    v_and_b32 v{t+1}, 1, v{q}
    v_lshlrev_b32 v{t+1}, 4, v{t+1}
    v_mov_b32 v{t+2}, 0xffff
    v_lshlrev_b32 v{t+2}, v{t+1}, v{t+2}
    v_lshrrev_b32 v{t+1}, 1, v{q}
    v_lshlrev_b32 v{t+3}, 1, v{g}
    v_mov_b32 v{t+4}, 0
    v_cmp_eq_u32 vcc, v{t+1}, v{t+3}
    v_add_u32 v{t+3}, 1, v{t+3}
    v_cndmask_b32 v{MK}, v{t+4}, v{t+2}, vcc
    v_cmp_eq_u32 vcc, v{t+1}, v{t+3}
    s_lshl_b32 s{S_MOFF}, s{A_SEG}, 13
    s_add_u32 s{S_MOFF}, s{S_MOFF}, {L.MB_Y}
    v_cndmask_b32 v{MK+1}, v{t+4}, v{t+2}, vcc
    """)
    rt(1)
    a('s_waitcnt vmcnt(40)')
    poll_m(a, V, sleep=cfg['asleep'])
    rt(2)
    lq = Q('lgkmcnt', 15)
    for b in range(7):
        for hf in range(2):
            a(f"ds_read_b64_tr_b16 v[{mf+4*b+2*hf}:{mf+4*b+2*hf+1}], v{V['l8']} offset:{AL_M+b*1024+hf*512}")
            lq.issue(b)
    SA = 40
    a(f"s_lshl_b32 s{A_S0}, s{A_SEG}, 7\ns_add_u32 s{A_S0}, s{A_S0}, {L.CNT_V}")
    for half in range(2):
        for k in range(4): a(f'v_mov_b64 v[{SA+2*k}:{SA+2*k+1}], 0')
        for b in range(7):
            w = lq.wait(b)
            if w: a(w)
            for hh in range(2):
                a(SM(SA+4*hh, mf+4*b, TX8(2*half+hh, b), V['idx']))
        if half == 0:
            for hh in range(2):
                A = SA+4*hh
                a(f'v_add_f32 v{A}, v{A}, v{A+2}\nv_add_f32 v{A+1}, v{A+1}, v{A+3}')
                a(f'v_accvgpr_write_b32 a{2*hh}, v{A}\nv_accvgpr_write_b32 a{2*hh+1}, v{A+1}')
    S = 12
    for hh in range(2):
        A = SA+4*hh
        a(f'v_add_f32 v{S+4+2*hh}, v{A}, v{A+2}\nv_add_f32 v{S+5+2*hh}, v{A+1}, v{A+3}')
    for k in range(4): a(f'v_accvgpr_read_b32 v{S+k}, a{k}')
    MX, TT, FX, Z = 20, 24, 28, 32
    H4 = range(4)
    def x4(op, x):
        for h in H4: a(f'v_mov_b32 v{TT+h}, v{x+h}')
        for h in H4: a(f'v_permlane16_swap_b32 v{x+h}, v{TT+h}')
        for h in H4: a(f'{op} v{x+h}, v{x+h}, v{TT+h}')
        for h in H4: a(f'v_mov_b32 v{TT+h}, v{x+h}')
        for h in H4: a(f'v_permlane32_swap_b32 v{x+h}, v{TT+h}')
        for h in H4: a(f'{op} v{x+h}, v{x+h}, v{TT+h}')
    for h in H4: a(f'v_max3_f32 v{MX+h}, v{S+2*h}, v{S+2*h+1}, v{LM+h}')
    x4('v_max_f32', MX)
    for h in H4: a(f'v_sub_f32 v{S+2*h}, v{S+2*h}, v{MX+h}\nv_sub_f32 v{S+2*h+1}, v{S+2*h+1}, v{MX+h}\nv_sub_f32 v{FX+h}, v{LM+h}, v{MX+h}')
    for h in H4: a(f'v_exp_f32 v{S+2*h}, v{S+2*h}\nv_exp_f32 v{S+2*h+1}, v{S+2*h+1}\nv_exp_f32 v{FX+h}, v{FX+h}')
    for h in H4: a(f'v_add_f32 v{Z+h}, v{S+2*h}, v{S+2*h+1}')
    x4('v_add_f32', Z)
    for h in H4: a(f'v_fmac_f32 v{Z+h}, v{FX+h}, v{LM+4+h}')
    for h in H4: a(f'v_rcp_f32 v{Z+h}, v{Z+h}')
    for h in H4: a(f'v_mul_f32 v{S+2*h}, v{S+2*h}, v{Z+h}\nv_mul_f32 v{S+2*h+1}, v{S+2*h+1}, v{Z+h}\nv_mul_f32 v{FX+h}, v{FX+h}, v{Z+h}')
    PM = 36; DG = 40
    for h in H4: a(f'v_cvt_pk_bf16_f32 v{PM+h}, v{S+2*h}, v{S+2*h+1}\nv_cvt_pk_bf16_f32 v{FX+h}, v{FX+h}, v{FX+h}')
    for h in H4: a(f'v_and_b32 v{DG+2*h}, v{FX+h}, v{MK}\nv_and_b32 v{DG+2*h+1}, v{FX+h}, v{MK+1}')
    a(f"""
    s_mul_i32 s{S_T0}, s{S_WAVE}, 3072
    v_add_u32 v{MX}, s{S_T0}, v{V['l16']}
    ds_write_b128 v{MX}, v[{DG}:{DG+3}] offset:{AL_E}
    ds_write_b128 v{MX}, v[{DG+4}:{DG+7}] offset:{AL_E+1024}
    ds_write_b128 v{MX}, v[{PM}:{PM+3}] offset:{AL_E+2048}
    s_waitcnt lgkmcnt(0)
    s_barrier
    """)
    CF = 128
    for k in range(12):
        a(f"ds_read_b128 a[{CF+4*k}:{CF+4*k+3}], v{V['l16']} offset:{AL_E+k*1024}")
    cfd = lambda p: CF + 4*((p >> 1)*3 + (p & 1))
    cfm = lambda u: CF + 4*(u*3 + 2)
    FA = 12
    a('s_waitcnt lgkmcnt(0)')
    for p in range(8):
        for c in range(7):
            k, r = oreg(p, c); A = FA + 4*c
            a(f'v_mfma_f32_16x16x32_bf16 v[{A}:{A+3}], {k}[{r}:{r+3}], a[{cfd(p)}:{cfd(p)+3}], ' + ('0' if p == 0 else f'v[{A}:{A+3}]'))
    rt(3)
    if cfg['flags']: wait_cnt(a, A_S0, 56, 40, sleep=1)
    rt(4)
    a(f"""
    s_mul_i32 s{A_S0}, s{A_SEG}, 114688
    s_mul_i32 s{A_S1}, s{S_WAVE}, 28672
    s_add_u32 s{A_S0}, s{A_S0}, s{A_S1}
    s_add_u32 s{A_S0}, s{A_S0}, {L.VM}
    """)
    load_1k_run(a, [f'a[{8+4*k}:{8+4*k+3}]' for k in range(28)], V['l16'], A_S0, xfl)
    for c in range(7):
        a(f's_waitcnt vmcnt({4*(6-c)})')
        for u in range(4):
            A = FA + 4*c; r = 8 + 4*(c*4+u)
            a(f'v_mfma_f32_16x16x32_bf16 v[{A}:{A+3}], a[{r}:{r+3}], a[{cfm(u)}:{cfm(u)+3}], v[{A}:{A+3}]')
    rt(5)
    HP = 64; HF = 80
    for c in range(7):
        A = FA + 4*c; x = xreg(c)
        for k in range(2):
            a(f"""
            v_cvt_pk_bf16_f32 v{A+2*k}, v{A+2*k}, v{A+2*k+1}
            v_and_b32 v{A+2*k+1}, 0xffff0000, v{A+2*k}
            v_lshlrev_b32 v{A+2*k}, 16, v{A+2*k}
            v_lshlrev_b32 v{HF+4*c+2*k}, 16, v{x+k}
            v_and_b32 v{HF+4*c+2*k+1}, 0xffff0000, v{x+k}
            v_pk_add_f32 v[{A+2*k}:{A+2*k+1}], v[{A+2*k}:{A+2*k+1}], v[{HF+4*c+2*k}:{HF+4*c+2*k+1}]
            v_cvt_pk_bf16_f32 v{HP+2*c+k}, v{A+2*k}, v{A+2*k+1}
            v_lshlrev_b32 v{HF+4*c+2*k}, 16, v{HP+2*c+k}
            v_and_b32 v{HF+4*c+2*k+1}, 0xffff0000, v{HP+2*c+k}
            """)
    a(f"""
    s_mul_i32 s{A_S0}, s{S_ROLE}, 14336
    s_mul_i32 s{S_T0}, s{S_WAVE}, 3584
    s_add_u32 s{A_S1}, s{A_S0}, s{S_T0}
    s_add_u32 s{A_S1}, s{A_S1}, {L.HB}
    """)
    for c in range(7):
        a(f"buffer_store_dwordx2 v[{HP+2*c}:{HP+2*c+1}], v{V['l8']}, {WSRD}, s{A_S1} offen offset:{c*512} {xfl}")
    s0, nm, d0, st = 40, 42, 44, 48
    a(f'v_pk_add_f32 v[{s0}:{s0+1}], v[{HF}:{HF+1}], v[{HF+2}:{HF+3}]')
    for i in range(2, 14): a(f'v_pk_add_f32 v[{s0}:{s0+1}], v[{s0}:{s0+1}], v[{HF+2*i}:{HF+2*i+1}]')
    a(f'v_add_f32 v{s0}, v{s0}, v{s0+1}')
    xlane4(a, 'v_add_f32', s0, d0)
    a(f'v_mul_f32 v{nm}, 0xbc124925, v{s0}\nv_mul_f32 v{nm+1}, 0xbc124925, v{s0}')
    for i in range(14):
        d = d0 + 2*(i & 1)
        a(f'v_pk_add_f32 v[{d}:{d+1}], v[{HF+2*i}:{HF+2*i+1}], v[{nm}:{nm+1}]')
        a(f'v_pk_mul_f32 v[{s0}:{s0+1}], v[{d}:{d+1}], v[{d}:{d+1}]' if i == 0 else f'v_pk_fma_f32 v[{s0}:{s0+1}], v[{d}:{d+1}], v[{d}:{d+1}], v[{s0}:{s0+1}]')
    a(f'v_add_f32 v{nm+1}, v{s0}, v{s0+1}')
    xlane4(a, 'v_add_f32', nm+1, d0)
    a(f"""
    s_lshl_b32 s{S_T0}, s{S_WAVE}, 9
    v_add_u32 v{d0}, s{S_T0}, v{V['l8']}
    ds_write_b64 v{d0}, v[{nm}:{nm+1}] offset:{AL_ST}
    s_waitcnt lgkmcnt(0)
    s_barrier
    """)
    for k in range(4): a(f"ds_read_b64 v[{st+2*k}:{st+2*k+1}], v{V['l8']} offset:{AL_ST+k*512}")
    rs = 46
    a(f"""
    s_waitcnt lgkmcnt(0)
    v_add_f32 v{nm}, v{st}, v{st+2}
    v_add_f32 v{d0}, v{st+4}, v{st+6}
    v_add_f32 v{nm}, v{nm}, v{d0}
    v_mul_f32 v{nm}, 0.25, v{nm}
    v_add_f32 v{rs}, v{st+1}, v{st+3}
    v_add_f32 v{d0}, v{st+5}, v{st+7}
    v_add_f32 v{rs}, v{rs}, v{d0}
    v_sub_f32 v{st}, v{st}, v{nm}
    v_sub_f32 v{st+2}, v{st+2}, v{nm}
    v_sub_f32 v{st+4}, v{st+4}, v{nm}
    v_sub_f32 v{st+6}, v{st+6}, v{nm}
    v_mul_f32 v{d0}, v{st}, v{st}
    v_fmac_f32 v{d0}, v{st+2}, v{st+2}
    v_fmac_f32 v{d0}, v{st+4}, v{st+4}
    v_fmac_f32 v{d0}, v{st+6}, v{st+6}
    v_fmac_f32 v{rs}, 0x42e00000, v{d0}
    v_mul_f32 v{rs}, 0x3b124925, v{rs}
    """)
    prep.ln_stats_finish(a, nm, rs, d0)
    a(f'v_mov_b32 v{nm+1}, v{nm}\nv_mov_b32 v{rs+1}, v{rs}')
    NP = 108
    for i in range(14):
        u = HF+2*i
        a(f"""
        v_pk_add_f32 v[{u}:{u+1}], v[{u}:{u+1}], v[{nm}:{nm+1}]
        v_cvt_pk_bf16_f32 v{NP+i}, v{u}, v{u+1}
        v_lshlrev_b32 v{u}, 16, v{NP+i}
        v_and_b32 v{u+1}, 0xffff0000, v{NP+i}
        v_pk_mul_f32 v[{u}:{u+1}], v[{u}:{u+1}], v[{rs}:{rs+1}]
        v_cvt_pk_bf16_f32 v{NP+i}, v{u}, v{u+1}
        """)
    a(f"""
    s_mul_i32 s{S_T0}, s{S_WAVE}, 3072
    s_add_u32 s{A_S0}, s{A_S0}, {L.HN}
    s_add_u32 s{A_S1}, s{A_S0}, s{S_T0}
    s_lshr_b32 s{S_T0}, s{S_WAVE}, 1
    s_lshl_b32 s{S_T0}, s{S_T0}, 10
    s_and_b32 s{S_T1}, s{S_WAVE}, 1
    s_lshl_b32 s{S_T1}, s{S_T1}, 3
    s_add_u32 s{S_T0}, s{S_T0}, s{S_T1}
    s_add_u32 s{A_S0}, s{A_S0}, s{S_T0}
    s_add_u32 s{A_S0}, s{A_S0}, 12288
    """)
    for i in range(3):
        a(f"buffer_store_dwordx4 v[{NP+4*i}:{NP+4*i+3}], v{V['l16']}, {WSRD}, s{A_S1} offen offset:{i*1024} {xfl}")
    a(f"buffer_store_dwordx2 v[{NP+12}:{NP+13}], v{V['l16']}, {WSRD}, s{A_S0} offen {xfl}")
    rt(6)
    a(f"""
    s_lshl_b32 s{A_S0}, s{S_ROLE}, 7
    s_add_u32 s{A_S0}, s{A_S0}, {L.CNT_H}
    v_mov_b32 v4, 0
    v_mov_b32 v5, 1
    s_waitcnt vmcnt(0)
    s_mov_b64 exec, 1
    buffer_atomic_add v5, v4, {WSRD}, s{A_S0} offen
    s_mov_b64 exec, -1
    """)
    if cfg.get('diag'):
        rt(7)
        a(f's_waitcnt lgkmcnt(0)\ns_lshl_b32 s{A_S0}, s{S_ROLE}, 6\ns_add_u32 s{A_S0}, s{A_S0}, {L.STAMP + 0x90000}')
        for k in range(8): a(f'v_writelane_b32 v6, s{60+2*k}, {k}')
        a(f"v_lshrrev_b32 v7, 1, v{V['l8']}\ns_mov_b64 exec, 255\nbuffer_store_dword v6, v7, {WSRD}, s{A_S0} offen\ns_mov_b64 exec, -1")
    if cfg.get('ticket'): a('s_branch A_top')
```

```python
from asmlib import *
import layout as L
from team import Q, xlane4

KA = dict(x=0, mem0=8, wq=16, wk=24, wv=32, wo=40, w1=64, w2=72, out=80, dbg=88, ws=96)
LOG2E_16 = 0x3db8aa3b

def srd(a, d, lo, nbytes):
    a(f"""
    s_mov_b32 s{d}, s{lo}
    s_and_b32 s{d+1}, s{lo+1}, 0xffff
    s_mov_b32 s{d+2}, {nbytes}
    s_mov_b32 s{d+3}, 0x20000
    """)

WO_STRIDE = 144
def prep_kernel(a, diag=False, stfl='sc1'):
    WS, SA, SB = 8, 12, 16
    a(f"""
    s_cmp_ge_u32 s2, 256
    s_cbranch_scc1 P_exit
    s_load_dwordx2 s[4:5], s[0:1], {KA['ws']}
    s_load_dwordx4 s[24:27], s[0:1], {KA['wq']}
    s_load_dwordx4 s[28:31], s[0:1], {KA['wv']}
    s_load_dwordx4 s[32:35], s[0:1], {KA['x']}
    v_lshrrev_b32 v2, 6, v0
    v_and_b32 v1, 63, v0
    v_readfirstlane_b32 s20, v2
    s_and_b32 s21, s2, 7
    s_lshr_b32 s22, s2, 3
    s_waitcnt lgkmcnt(0)
    """)
    srd(a, WS, 4, L.WS_BYTES)
    def st(k):
        if diag: a(f's_memtime s[{60+2*k}:{61+2*k}]')
    if diag:
        for k in range(8): a(f's_mov_b64 s[{60+2*k}:{61+2*k}], 0')
    st(0)
    nfill = L.CNT + L.CNT_BYTES - L.MB_M
    assert nfill % (256*4096) == 0 or True
    per = (nfill + 255) // 256
    per = (per + 4095) // 4096 * 4096
    a(f"""
    v_lshlrev_b32 v3, 4, v0
    v_mov_b32 v4, -1
    v_mov_b32 v5, -1
    v_mov_b32 v6, -1
    v_mov_b32 v7, -1
    s_mul_i32 s23, s2, {per}
    s_add_u32 s23, s23, {L.MB_M}
    """)
    assert L.MB_M + 256*per <= L.STAMP
    for k in range(per // 4096):
        l = a.newlabel('P_fs')
        a(f"""
        s_add_u32 s36, s23, {k*4096}
        s_and_b32 s37, s36, 0xffffe000
        s_cmp_eq_u32 s37, {L.MB_M}
        s_cbranch_scc1 {l}
        s_cmp_eq_u32 s37, {L.MB_Y}
        s_cbranch_scc1 {l}
        s_cmp_ge_u32 s36, {L.CNT}
        s_cselect_b32 s37, 0, -1
        v_mov_b32 v4, s37
        v_mov_b32 v5, s37
        v_mov_b32 v6, s37
        v_mov_b32 v7, s37
        buffer_store_dwordx4 v[4:7], v3, s[{WS}:{WS+3}], s36 offen {stfl}
{l}:
        """)
    assert L.MB_M + 256*per > L.CNT + L.CNT_BYTES - 1 or True
    a(f"""
    s_cmp_ge_u32 s22, 28
    s_cbranch_scc1 P_ln
    """)
    a(f"""
    s_mul_i32 s23, s22, 37
    s_lshr_b32 s23, s23, 8
    s_mul_i32 s36, s23, 7
    s_sub_u32 s36, s22, s36
    s_lshl_b32 s21, s21, 2
    s_add_u32 s21, s21, s23
    s_and_b32 s37, s21, 1
    s_lshr_b32 s38, s21, 1
    s_cmp_eq_u32 s37, 0
    s_cselect_b32 s40, s24, s28
    s_cselect_b32 s41, s25, s29
    s_cselect_b32 s42, s26, s30
    s_cselect_b32 s43, s27, s31
    """)
    srd(a, SA, 40, 448*8192)
    srd(a, SB, 42, 448*8192)
    BF = 0
    AFR = lambda p: 32 + 64*p
    ACC = lambda p: 160 + 32*p
    OUT = 224
    SLOT = lambda k: (k & 1)*65536
    breg = lambda ks, nt: BF + (ks*4 + nt)*4
    a(f"""
    s_lshl_b32 s39, s20, 2
    s_cmp_eq_u32 s20, 3
    s_cselect_b32 s39, 11, s39
    v_and_b32 v4, 15, v1
    v_lshrrev_b32 v5, 4, v1
    v_lshrrev_b32 v6, 5, v1
    v_and_b32 v7, 31, v1
    v_xor_b32 v7, v7, v6
    v_lshlrev_b32 v8, 13, v6
    v_lshl_add_u32 v8, v7, 4, v8
    s_lshl_b32 s50, s20, 14
    s_lshl_b32 s44, s39, 18
    s_lshl_b32 s45, s38, 9
    s_add_u32 s44, s44, s45
    """)
    for k in range(8):
        a(f'v_xor_b32 v{16+k}, {2*k*16}, v8')
    a(f"""
    v_lshrrev_b32 v6, 2, v4
    v_and_b32 v7, 3, v4
    v_lshl_add_u32 v6, v6, 3, v7
    v_lshlrev_b32 v6, 9, v6
    v_add_u32 v6, s50, v6
    v_xor_b32 v7, v5, v4
    """)
    for k in range(4):
        a(f'v_xor_b32 v9, {4*k}, v7\nv_lshl_add_u32 v{24+k}, v9, 4, v6')
    vq = Q('vmcnt', 63)
    def a_dma(blk, i_):
        xr = 16 + ((i_ >> 2)*2 + (i_ & 1))
        def f(lq=None):
            vq.issue(('a', blk))
            return (f's_add_u32 m0, s50, {SLOT(blk) + i_*1024}\ns_add_u32 s46, s44, {(blk*32 + i_*2)*8192}\n'
                    f'buffer_load_dwordx4 v{xr}, s[{SA}:{SA+3}], s46 offen lds')
        return f
    a('s_cmp_eq_u32 s37, 0\ns_cbranch_scc0 P_t1')
    a(f"""
    s_lshl_b32 s47, s36, 19
    s_add_u32 s47, s47, s45
    s_lshl_b32 s46, s20, 17
    s_add_u32 s47, s47, s46
    s_lshl_b32 s51, s20, 13
    s_mov_b32 s48, {LOG2E_16}
    """)
    for k in range(8):
        a(f's_add_u32 m0, s51, {131072 + k*1024}\ns_add_u32 s46, s47, {k*2*8192}\nbuffer_load_dwordx4 v{16+k}, s[{SB}:{SB+3}], s46 offen lds')
    a(f"""
    s_branch P_tj
P_t1:
    v_lshrrev_b32 v10, 3, v1
    v_and_b32 v11, 7, v1
    v_mul_u32_u24 v9, 896, v10
    v_and_b32 v12, 2, v10
    v_xor_b32 v11, v11, v12
    v_lshl_add_u32 v9, v11, 4, v9
    v_xor_b32 v13, 64, v9
    s_mul_i32 s47, s38, 229376
    s_lshl_b32 s46, s36, 7
    s_add_u32 s47, s47, s46
    s_mul_i32 s46, s20, {64*896}
    s_add_u32 s47, s47, s46
    s_lshl_b32 s51, s20, 13
    s_mov_b32 s48, 1.0
    """)
    for k in range(8):
        a(f's_add_u32 m0, s51, {131072 + k*1024}\ns_add_u32 s46, s47, {k*8*896}\nbuffer_load_dwordx4 v{13 if k & 1 else 9}, s[{SB}:{SB+3}], s46 offen lds')
    a.label('P_tj')
    st(1)
    for i_ in range(16): a(a_dma(0, i_)())
    a('s_waitcnt vmcnt(16)\ns_barrier')
    st(2)
    a('s_cmp_eq_u32 s37, 0\ns_cbranch_scc0 P_r1')
    a(f'v_lshlrev_b32 v6, 9, v4\nv_add_u32 v6, 131072, v6')
    for k in range(4):
        a(f'v_xor_b32 v9, {4*k}, v7\nv_lshl_add_u32 v{28+k}, v9, 4, v6')
    for ks in range(8):
        for nt in range(4):
            a(f'ds_read_b128 a[{breg(ks,nt)}:{breg(ks,nt)+3}], v{28+(ks&3)} offset:{nt*8192 + (ks>>2)*256}')
            if nt & 1: a(a_dma(1, ks*2 + (nt >> 1))())
    vq.n -= 16
    a(f"""
    s_branch P_rj
P_r1:
    v_bfe_u32 v10, v1, 2, 2
    v_lshl_add_u32 v11, v5, 3, v10
    v_lshlrev_b32 v13, 7, v11
    v_add_u32 v13, 131072, v13
    v_and_b32 v11, 3, v1
    v_lshl_add_u32 v13, v11, 3, v13
    v_lshrrev_b32 v10, 1, v10
    v_and_b32 v11, 1, v5
    v_lshl_add_u32 v10, v11, 1, v10
    """)
    for nt in range(4):
        a(f'v_xor_b32 v9, {nt}, v10\nv_lshl_add_u32 v{28+nt}, v9, 5, v13')
    for ks in range(8):
        for nt in range(4):
            for hf in range(2):
                r = breg(ks, nt) + 2*hf
                a(f'ds_read_b64_tr_b16 a[{r}:{r+1}], v{28+nt} offset:{(ks*32+hf*4)*128}')
            if nt & 1: a(a_dma(1, ks*2 + (nt >> 1))())
    a(f"""
P_rj:
    s_mul_i32 s52, s37, 448
    s_mul_i32 s47, s38, 28
    s_add_u32 s52, s52, s47
    s_lshl_b32 s47, s36, 2
    s_add_u32 s52, s52, s47
    s_mul_i32 s52, s52, 14336
    s_lshl_b32 s47, s39, 10
    s_add_u32 s52, s52, s47
    s_add_u32 s52, s52, {L.WT}
    s_mov_b32 s49, s48
    v_lshlrev_b32 v3, 4, v1
    s_waitcnt vmcnt(16)
    """)
    def a_read(blk, hf, ks):
        r = AFR(blk & 1) + (hf*8+ks)*4
        off = hf*4*512 + (ks >> 2)*256
        return f'ds_read_b128 v[{r}:{r+3}], v{24+(ks&3) if not blk & 1 else 10+(ks&3)} offset:{off}'
    for k in range(4): a(f'v_add_u32 v{10+k}, 65536, v{24+k}')
    for hf in range(2):
        for ks in range(8): a(a_read(0, hf, ks))
    a('s_waitcnt lgkmcnt(0)')
    from team import Gaps, emit_stream
    def epi(blk):
        va = []; stt = []
        for nt in range(4):
            ca = ACC(blk & 1) + nt*4; cb = ACC(blk & 1) + (4+nt)*4; o = OUT + nt*4
            v = [f'v_pk_mul_f32 v[{c}:{c+1}], v[{c}:{c+1}], s[48:49]' for c in (ca, ca+2, cb, cb+2)]
            v += [f'v_cvt_pk_bf16_f32 v{o}, v{ca}, v{ca+1}', f'v_cvt_pk_bf16_f32 v{o+1}, v{ca+2}, v{ca+3}',
                  f'v_cvt_pk_bf16_f32 v{o+2}, v{cb}, v{cb+1}', f'v_cvt_pk_bf16_f32 v{o+3}, v{cb+2}, v{cb+3}']
            va.append(v)
            def sf(lq=None, nt=nt, o=o):
                vq.issue()
                return f's_add_u32 s47, s52, {nt*14336}\nbuffer_store_dwordx4 v[{o}:{o+3}], v3, s[{WS}:{WS+3}], s47 offen offset:{blk*1024} {stfl}'
            stt.append(sf)
        return va, stt
    lq = Q('lgkmcnt', 15)
    for blk in range(4):
        if blk == 3:
            a('s_cmp_lt_u32 s20, 2\ns_cbranch_scc1 P_b3')
            va, stt = epi(2)
            n0 = vq.n
            for nt in range(4):
                for x in va[nt]: a(x)
                a(stt[nt]())
            vq.n = n0
            a('s_branch P_exit\nP_b3:')
        ms = []
        for hf in range(2):
            for ks in range(8):
                r = AFR(blk & 1) + (hf*8+ks)*4
                for nt in range(4):
                    c = ACC(blk & 1) + (hf*4+nt)*4
                    ms.append((f'v_mfma_f32_16x16x32_bf16 v[{c}:{c+3}], v[{r}:{r+3}], a[{breg(ks,nt)}:{breg(ks,nt)+3}], ' + ('0' if ks == 0 else f'v[{c}:{c+3}]'), []))
        gp = Gaps(64)
        g = 0
        if blk + 2 < 4:
            for i_ in range(16): g = gp.put('ds', g, a_dma(blk+2, i_)) + 3
        if blk > 0:
            va, stt = epi(blk-1)
            g2 = 3
            for nt in range(4):
                for x in va[nt]: g2 = gp.put('va', g2, x) + 1
                gp.put('ds', g2+1, stt[nt])
        if blk + 1 < 4:
            gp.force('ds', 44, lambda lq, b=blk+1: vq.wait(('a', b)))
            g = 44
            for hf in range(2):
                for ks in range(8):
                    gp.force('ds', g, a_read(blk+1, hf, ks)); g += 1
            gp.force('va', 63, 's_waitcnt lgkmcnt(0)')
        emit_stream(a, ms, gp, lq)
        if blk == 0: st(3)
    va, stt = epi(3)
    for nt in range(4):
        for x in va[nt]: a(x)
        a(stt[nt]())
    a('s_branch P_exit')
    a.label('P_ln')
    srd(a, SA, 32, 2048*896)
    srd(a, SB, 34, 8*896)
    X = 16
    U = 80
    a(f"""
    s_sub_u32 s22, s22, 28
    s_lshl_b32 s21, s21, 2
    s_add_u32 s21, s21, s22
    s_lshl_b32 s21, s21, 2
    s_add_u32 s21, s21, s20
    v_lshrrev_b32 v4, 2, v1
    v_and_b32 v5, 3, v1
    v_mul_u32_u24 v6, 896, v4
    v_lshl_add_u32 v6, v5, 4, v6
    s_mul_i32 s23, s21, {16*896}
    """)
    for kb in range(14):
        a(f'buffer_load_dwordx4 v[{X+4*kb}:{X+4*kb+3}], v6, s[{SA}:{SA+3}], s23 offen offset:{kb*64}')
    l = a.newlabel('P_m0')
    a(f's_cmp_ge_u32 s21, 28\ns_cbranch_scc1 {l}')
    from team import img_addr
    img_addr(a, 8, 9, 1)
    a(f"""
    v_lshrrev_b32 v9, 4, v1
    v_mul_u32_u24 v9, {2*896}, v9
    v_and_b32 v7, 15, v1
    v_lshl_add_u32 v9, v7, 1, v9
    s_lshl_b32 s36, s21, 5
    buffer_load_ushort v200, v9, s[{SB}:{SB+3}], s36 offen
    buffer_load_ushort v201, v9, s[{SB}:{SB+3}], s36 offen offset:896
    s_lshr_b32 s36, s21, 2
    s_lshl_b32 s36, s36, 10
    s_and_b32 s37, s21, 3
    s_lshl_b32 s37, s37, 7
    s_add_u32 s36, s36, s37
    s_add_u32 s37, s36, {L.MB_Y}
    s_add_u32 s36, s36, {L.MB_M}
    s_waitcnt vmcnt(0)
    v_lshl_or_b32 v200, v201, 16, v200
    buffer_store_dword v200, v8, s[{WS}:{WS+3}], s36 offen
    buffer_store_dword v200, v8, s[{WS}:{WS+3}], s37 offen
{l}:
    s_waitcnt vmcnt(0)
    """)
    st(2)
    ln_rows(a, X, U, 56, 10, quadred)
    st(4)
    GS, KS = 288, 1152
    a(f"""
    s_mul_i32 s36, s20, {14*KS}
    v_mul_u32_u24 v7, {GS}, v5
    v_lshl_add_u32 v7, v4, 4, v7
    v_add_u32 v7, s36, v7
    v_lshlrev_b32 v3, 4, v1
    v_lshrrev_b32 v6, 4, v1
    v_mul_u32_u24 v6, {GS}, v6
    v_and_b32 v8, 15, v1
    v_lshl_add_u32 v8, v8, 4, v6
    v_add_u32 v8, s36, v8
    """)
    for kb in range(14):
        a(f'ds_write_b128 v7, v[{X+4*kb}:{X+4*kb+3}] offset:{kb*KS}')
    a(f"""
    s_mul_i32 s36, s21, 14336
    s_add_u32 s36, s36, {L.XN}
    """)
    st(3)
    for kb in range(14):
        a(f'ds_read_b128 v[{U+4*kb}:{U+4*kb+3}], v8 offset:{kb*KS}')
    for kb in range(14):
        if kb and kb % 4 == 0: a('s_add_u32 s36, s36, 4096')
        a(f's_waitcnt lgkmcnt({13-kb})')
        a(f'buffer_store_dwordx4 v[{U+4*kb}:{U+4*kb+3}], v3, s[{WS}:{WS+3}], s36 offen offset:{(kb%4)*1024} {stfl}')
    a.label('P_exit')
    if diag:
        a('s_cmp_ge_u32 s2, 256\ns_cbranch_scc1 P_exit2')
        st(5)
        a('s_waitcnt vmcnt(0)')
        st(6)
        a(f's_waitcnt lgkmcnt(0)\ns_lshl_b32 s36, s2, 2\ns_add_u32 s36, s36, s20\ns_lshl_b32 s36, s36, 6\ns_add_u32 s36, s36, {L.STAMP}\ns_mov_b64 exec, 1\nv_mov_b32 v3, 0')
        for k in range(7):
            a(f'v_mov_b32 v4, s{60+2*k}\nbuffer_store_dword v4, v3, s[{WS}:{WS+3}], s36 offen offset:{4*k}\ns_nop 1')
        a.label('P_exit2')
    a('s_endpgm')

def rnd_bf16(a, r, t):
    a(f'v_cvt_pk_bf16_f32 v{r}, v{r}, v{r}\nv_and_b32 v{r}, 0xffff0000, v{r}')

def quadred(a, x, t):
    a(f'v_add_f32_dpp v{x}, v{x}, v{x} quad_perm:[1,0,3,2] row_mask:0xf bank_mask:0xf')
    a(f'v_add_f32_dpp v{x}, v{x}, v{x} quad_perm:[2,3,0,1] row_mask:0xf bank_mask:0xf')

def ln_stats_finish(a, mu, rs, tt):
    rnd_bf16(a, rs, tt)
    a(f'v_add_f32 v{rs}, 0x3727c5ac, v{rs}')
    rnd_bf16(a, rs, tt)
    a(f'v_sqrt_f32 v{rs}, v{rs}')
    rnd_bf16(a, rs, tt)
    a(f'v_rcp_f32 v{rs}, v{rs}')
    rnd_bf16(a, mu, tt)

def ln_rows(a, X, U, n, t, red):
    s0, s1, d0, nm, rs = t, t+1, t+2, t+4, 76
    for i in range(n):
        a(f'v_lshlrev_b32 v{U+2*i}, 16, v{X+i}\nv_and_b32 v{U+2*i+1}, 0xffff0000, v{X+i}')
        if i == 1: a(f'v_pk_add_f32 v[{s0}:{s1}], v[{U}:{U+1}], v[{U+2}:{U+3}]')
        if i > 1: a(f'v_pk_add_f32 v[{s0}:{s1}], v[{s0}:{s1}], v[{U+2*i}:{U+2*i+1}]')
    a(f'v_add_f32 v{s0}, v{s0}, v{s1}')
    red(a, s0, d0)
    a(f'v_mul_f32 v{nm}, 0xbb124925, v{s0}\nv_mul_f32 v{nm+1}, 0xbb124925, v{s0}')
    for i in range(n):
        d = d0 if i & 1 else 72
        a(f'v_pk_add_f32 v[{d}:{d+1}], v[{U+2*i}:{U+2*i+1}], v[{nm}:{nm+1}]')
        if i == 0: a(f'v_pk_mul_f32 v[{s0}:{s1}], v[{d}:{d+1}], v[{d}:{d+1}]')
        else: a(f'v_pk_fma_f32 v[{s0}:{s1}], v[{d}:{d+1}], v[{d}:{d+1}], v[{s0}:{s1}]')
    a(f'v_add_f32 v{s0}, v{s0}, v{s1}')
    red(a, s0, d0)
    a(f'v_mul_f32 v{rs}, 0x3b124925, v{s0}')
    ln_stats_finish(a, nm, rs, d0)
    a(f'v_mov_b32 v{nm+1}, v{nm}\nv_mov_b32 v{rs+1}, v{rs}')
    for i in range(n):
        u = U+2*i
        a(f"""
        v_pk_add_f32 v[{u}:{u+1}], v[{u}:{u+1}], v[{nm}:{nm+1}]
        v_cvt_pk_bf16_f32 v{X+i}, v{u}, v{u+1}
        v_lshlrev_b32 v{u}, 16, v{X+i}
        v_and_b32 v{u+1}, 0xffff0000, v{X+i}
        v_pk_mul_f32 v[{u}:{u+1}], v[{u}:{u+1}], v[{rs}:{rs+1}]
        v_cvt_pk_bf16_f32 v{X+i}, v{u}, v{u+1}
        """)
```

```python
from asmlib import *
import layout as L

SENT = -1
S_WS = 8
S_DBG = 12
S_ROLE = 16
S_WAVE = 17
S_XCC = 18
S_STEP = 19
S_FAST = 20
S_MOFF = 21; S_POFF = 22; S_EOFF = 23; S_GOFF = 24; S_XOFF = 25; S_T0 = 26; S_T1 = 27; S_SPIN = 28; S_LIM = 29
S_EXEC = 30
S_STMP = 32
S_TM = 34
SPIN_MAX = 20000
NTEAM = 32

LDS_M = 0
LDS_T = 7168
LDS_FL = 14336
LDS_RED = 7168
LDS_BW = 16384
LDS_ROLE = 160*1024 - 16

def prologue(a, stamps, pool_off=0):
    a(f'''
    s_cmp_ge_u32 s2, 256
    s_cbranch_scc1 L_exit
    s_load_dwordx2 s[4:5], s[0:1], 96
    s_load_dwordx2 s[6:7], s[0:1], 88
    s_getreg_b32 s{S_XCC}, hwreg(HW_REG_XCC_ID, 0, 4)
    v_lshrrev_b32 v2, 6, v0
    v_and_b32 v1, 63, v0
    v_readfirstlane_b32 s{S_WAVE}, v2
    s_and_b32 s{S_XCC}, s{S_XCC}, 7
    s_waitcnt lgkmcnt(0)
    s_mov_b32 s{S_WS}, s4
    s_and_b32 s{S_WS+1}, s5, 0xffff
    s_mov_b32 s{S_WS+2}, {L.WS_BYTES}
    s_mov_b32 s{S_WS+3}, 0x20000
    s_mov_b32 s{S_DBG}, s6
    s_and_b32 s{S_DBG+1}, s7, 0xffff
    s_mov_b32 s{S_DBG+2}, 256
    s_mov_b32 s{S_DBG+3}, 0x20000
    v_mov_b32 v4, {LDS_ROLE}
    s_cmp_lg_u32 s{S_WAVE}, 0
    s_cbranch_scc1 L_role_wait
    s_mov_b64 exec, 1
    s_mov_b32 s{S_T0}, 0
L_role_try:
    s_add_u32 s{S_T1}, s{S_XCC}, s{S_T0}
    s_and_b32 s{S_T1}, s{S_T1}, 7
    s_lshl_b32 s{S_ROLE}, s{S_T1}, 7
    s_add_u32 s{S_ROLE}, s{S_ROLE}, {L.CNT_P + pool_off}
    v_mov_b32 v2, s{S_ROLE}
    v_mov_b32 v3, 1
    buffer_atomic_add v3, v2, s[{S_WS}:{S_WS+3}], 0 offen sc0
    s_waitcnt vmcnt(0)
    v_readfirstlane_b32 s{S_ROLE}, v3
    s_cmp_lt_u32 s{S_ROLE}, 32
    s_cbranch_scc1 L_role_got
    s_add_u32 s{S_T0}, s{S_T0}, 1
    s_cmp_lt_u32 s{S_T0}, 8
    s_cbranch_scc1 L_role_try
    s_mov_b32 s{S_ROLE}, 31
    s_mov_b32 s{S_T1}, 0
L_role_got:
    s_lshl_b32 s{S_T1}, s{S_T1}, 5
    s_add_u32 s{S_ROLE}, s{S_ROLE}, s{S_T1}
    v_mov_b32 v2, s{S_ROLE}
    ds_write_b32 v4, v2
    s_mov_b64 exec, -1
    s_waitcnt lgkmcnt(0)
L_role_wait:
    s_barrier
    ds_read_b32 v2, v4
    s_waitcnt lgkmcnt(0)
    v_readfirstlane_b32 s{S_ROLE}, v2
    ''')

def team_register(a):
    l = a.newlabel('L_reg')
    a(f'''
    s_cmp_lg_u32 s{S_WAVE}, 0
    s_cbranch_scc1 {l}
    s_cmp_eq_u32 s{S_XCC}, 0
    s_cselect_b32 s{S_T0}, 1, 0x10001
    s_mov_b64 exec, 1
    v_mov_b32 v2, 64
    v_mov_b32 v3, s{S_T0}
    buffer_atomic_add v3, v2, s[{S_DBG}:{S_DBG+3}], 0 offen
    s_mov_b64 exec, -1
{l}:
    ''')

def team_mode(a, vt0, vt1):
    l = a.newlabel('L_mode'); d = a.newlabel('L_moded')
    a(f'''
    s_mov_b32 s{S_SPIN}, 0
    v_mov_b32 v{vt0}, 64
{l}:
    buffer_load_dword v{vt1}, v{vt0}, s[{S_DBG}:{S_DBG+3}], 0 offen sc1
    s_waitcnt vmcnt(0)
    v_readfirstlane_b32 s{S_T0}, v{vt1}
    s_and_b32 s{S_T1}, s{S_T0}, 0xffff
    s_cmp_ge_u32 s{S_T1}, {NTEAM}
    s_cbranch_scc1 {d}
    s_sleep 2
    s_add_u32 s{S_SPIN}, s{S_SPIN}, 1
    s_cmp_lt_u32 s{S_SPIN}, {SPIN_MAX}
    s_cbranch_scc1 {l}
    s_mov_b32 s{S_T0}, 0x10000
{d}:
    s_lshr_b32 s{S_T0}, s{S_T0}, 16
    s_cmp_eq_u32 s{S_T0}, 0
    s_cselect_b32 s{S_FAST}, 1, 0
    s_mov_b32 s{S_LIM}, {SPIN_MAX}
    ''')

def stamp(a, stamps, idx, vt=None):
    if not stamps: return
    a(f's_memtime s[{40+2*idx}:{41+2*idx}]')
    if idx == 2: a('s_memrealtime s[60:61]')

def stamp_flush(a, stamps, n, vt):
    if not stamps: return
    a('s_waitcnt lgkmcnt(0)')
    for k in range(n):
        a(f'v_writelane_b32 v{vt}, s{40+2*k}, {k}')
    a(f"""
    v_lshrrev_b32 v{vt+1}, 1, v0
    s_mov_b64 exec, {(1 << n) - 1}
    buffer_store_dword v{vt}, v{vt+1}, s[{S_WS}:{S_WS+3}], s{S_STMP} offen
    s_mov_b64 exec, -1
    """)

def wreg(wb, vbase):
    return ar(8*wb, 8) if wb < 32 else vr(vbase + 8*(wb-32), 8)
def wreg_half(wb, vbase, half):
    return ar(8*wb + 4*half, 4) if wb < 32 else vr(vbase + 8*(wb-32) + 4*half, 4)

def xlane4(a, op, x, t):
    a(f'''
    v_mov_b32 v{t}, v{x}
    v_permlane16_swap_b32 v{x}, v{t}
    {op} v{x}, v{x}, v{t}
    v_mov_b32 v{t}, v{x}
    v_permlane32_swap_b32 v{x}, v{t}
    {op} v{x}, v{x}, v{t}
    ''')

QP = 'quad_perm:[2,3,0,1] row_mask:0xf bank_mask:0xf'

def read_mf(a, V):
    for b in range(7):
        a(f"ds_read_b64_tr_b16 v[{V['mf']+4*b}:{V['mf']+4*b+1}], v{V['l8']} offset:{LDS_M+b*1024}")
        a(f"ds_read_b64_tr_b16 v[{V['mf']+4*b+2}:{V['mf']+4*b+3}], v{V['l8']} offset:{LDS_M+b*1024+512}")

def SM(acc, A, B, idx):
    return f'v_smfmac_f32_16x16x64_bf16 v[{acc}:{acc+3}], v[{A}:{A+3}], {B}, v{idx}'


class Q:
    def __init__(self, name, cap):
        self.name = name; self.n = 0; self.tags = {}; self.done = 0; self.cap = cap
    def issue(self, tag=None):
        self.n += 1
        if tag is not None: self.tags[tag] = self.n
    def wait(self, tag):
        k = self.tags[tag]
        if k <= self.done: return ''
        self.done = k
        return 's_waitcnt %s(%d)' % (self.name, min(self.n - k, self.cap))
    def drain(self):
        self.done = self.n
        return 's_waitcnt %s(0)' % self.name

WSRD = f's[{S_WS}:{S_WS+3}]'

def poll_m(a, V, sleep=0):
    t = V['mf']; pa = V['pa']
    l = a.newlabel('L_pm'); d = a.newlabel('L_pmd')
    a(f"""
    s_mov_b32 s{S_SPIN}, 0
{l}:
    buffer_load_dwordx4 v[{t}:{t+3}], v{pa}, {WSRD}, s{S_MOFF} offen sc1
    buffer_load_dwordx4 v[{t+4}:{t+7}], v{pa}, {WSRD}, s{S_MOFF} offen offset:768 sc1
    s_add_u32 s{S_SPIN}, s{S_SPIN}, 1
    s_waitcnt vmcnt(1)
    ds_write_b128 v{pa}, v[{t}:{t+3}]
    v_max3_u32 v{t+8}, v{t}, v{t+1}, v{t+2}
    s_waitcnt vmcnt(0)
    ds_write_b128 v{pa}, v[{t+4}:{t+7}] offset:768
    v_max3_u32 v{t+8}, v{t+8}, v{t+3}, v{t+4}
    v_max3_u32 v{t+8}, v{t+8}, v{t+5}, v{t+6}
    v_max_u32 v{t+8}, v{t+8}, v{t+7}
    v_cmp_eq_u32 vcc, -1, v{t+8}
    s_cbranch_vccz {d}
    {'s_sleep %d' % sleep if sleep else ''}
    s_cmp_lt_u32 s{S_SPIN}, s{S_LIM}
    s_cbranch_scc1 {l}
    s_mov_b32 s{S_LIM}, 1
{d}:
    s_waitcnt lgkmcnt(0)
    s_barrier
    """)

def poll_m2(a, V, gap, x):
    pa = V['pa']; sets = (V['acc']+8, V['acc']+16)
    l = a.newlabel('L_pm'); d = a.newlabel('L_pmd')
    def issue(t):
        a(f"""
        buffer_load_dwordx4 v[{t}:{t+3}], v{pa}, {WSRD}, s{S_MOFF} offen sc1
        buffer_load_dwordx4 v[{t+4}:{t+7}], v{pa}, {WSRD}, s{S_MOFF} offen offset:768 sc1
        """)
    def check(t):
        a(f"""
        s_add_u32 s{S_SPIN}, s{S_SPIN}, 1
        s_waitcnt vmcnt(3)
        ds_write_b128 v{pa}, v[{t}:{t+3}]
        v_max3_u32 v{x}, v{t}, v{t+1}, v{t+2}
        s_waitcnt vmcnt(2)
        ds_write_b128 v{pa}, v[{t+4}:{t+7}] offset:768
        v_max3_u32 v{x}, v{x}, v{t+3}, v{t+4}
        v_max3_u32 v{x}, v{x}, v{t+5}, v{t+6}
        v_max_u32 v{x}, v{x}, v{t+7}
        v_cmp_eq_u32 vcc, -1, v{x}
        s_cbranch_vccz {d}
        """)
    a(f's_mov_b32 s{S_SPIN}, 0')
    issue(sets[0])
    while gap > 0:
        a(f's_nop {min(gap, 16) - 1}'); gap -= 16
    a.label(l)
    issue(sets[1]); check(sets[0])
    issue(sets[0]); check(sets[1])
    a(f"""
    s_cmp_lt_u32 s{S_SPIN}, s{S_LIM}
    s_cbranch_scc1 {l}
    s_mov_b32 s{S_LIM}, 1
{d}:
    s_waitcnt lgkmcnt(0)
    s_barrier
    """)

def wait_hint(a, vaddr, soff, regs, imm=0, delay=0, gap=12, inner=8, fill=None):
    n = len(regs)
    l = a.newlabel('L_h'); d = a.newlabel('L_hd')
    ld = lambda r: f'buffer_load_dword v{r}, v{vaddr}, {WSRD}, s{soff} offen offset:{imm} sc1'
    a(f's_mov_b32 s{S_SPIN}, 0')
    fill = list(fill or [])
    per = -(-len(fill) // (n-1))
    for k in range(n-1):
        a(ld(regs[k]))
        for x in fill[k*per:(k+1)*per]: a(x)
        if per < gap: a(f's_nop {gap - per}')
    a.label(l)
    for k in range(n):
        a(f"""
        {ld(regs[(k+n-1) % n])}
        s_waitcnt vmcnt({n-1})
        v_cmp_eq_u32 vcc, -1, v{regs[k]}
        s_cbranch_vccz {d}
        s_nop {inner}
        """)
    a(f"""
    s_add_u32 s{S_SPIN}, s{S_SPIN}, 1
    s_cmp_lt_u32 s{S_SPIN}, s{S_LIM}
    s_cbranch_scc1 {l}
{d}:
    """)
    while delay > 0:
        a(f's_nop {min(delay, 16) - 1}'); delay -= 16

def wait_cnt(a, off_sgpr, target, vt, sleep=4):
    l = a.newlabel('L_wc'); d = a.newlabel('L_wcd')
    a(f"""
    s_mov_b32 s{S_SPIN}, 0
    v_mov_b32 v{vt}, 0
{l}:
    buffer_load_dword v{vt+1}, v{vt}, {WSRD}, s{off_sgpr} offen sc1
    s_add_u32 s{S_SPIN}, s{S_SPIN}, 1
    s_waitcnt vmcnt(0)
    v_readfirstlane_b32 s{S_T0}, v{vt+1}
    s_cmp_ge_u32 s{S_T0}, {target}
    s_cbranch_scc1 {d}
    s_sleep {sleep}
    s_cmp_lt_u32 s{S_SPIN}, s{S_LIM}
    s_cbranch_scc1 {l}
    s_mov_b32 s{S_LIM}, 1
{d}:
    """)

def img_addr(a, dst, t, lane):
    a(f"""
    v_bfe_u32 v{dst}, v{lane}, 3, 1
    v_lshlrev_b32 v{dst}, 9, v{dst}
    v_bfe_u32 v{t}, v{lane}, 2, 1
    v_lshl_add_u32 v{dst}, v{t}, 6, v{dst}
    v_and_b32 v{t}, 1, v{lane}
    v_lshl_add_u32 v{dst}, v{t}, 5, v{dst}
    v_lshrrev_b32 v{t}, 4, v{lane}
    v_lshl_add_u32 v{dst}, v{t}, 3, v{dst}
    v_bfe_u32 v{t}, v{lane}, 1, 1
    v_lshl_add_u32 v{dst}, v{t}, 2, v{dst}
    """)

def common_addrs(a, V, LN):
    a(f"""
    v_lshlrev_b32 v{V['l8']}, 3, v{LN}
    s_mul_i32 s{S_T0}, s{S_WAVE}, {112*16}
    v_lshlrev_b32 v{V['pa']}, 4, v{LN}
    v_add_u32 v{V['pa']}, s{S_T0}, v{V['pa']}
    v_and_b32 v{LN+1}, 2, v{LN}
    v_cmp_ne_u32 vcc, 0, v{LN+1}
    v_mov_b32 v{LN+1}, 0x4444
    v_mov_b32 v{LN+2}, 0xeeee
    v_cndmask_b32 v{V['idx']}, v{LN+1}, v{LN+2}, vcc
    """)

def load_1k_run(a, dsts, vaddr, sbase, flags='', budget=None):
    for i, d in enumerate(dsts):
        if i and i % 4 == 0:
            a(f's_add_u32 s{sbase}, s{sbase}, 4096')
        a(f'buffer_load_dwordx4 {d}, v{vaddr}, {WSRD}, s{sbase} offen offset:{(i%4)*1024} {flags}')
        if budget is not None:
            budget[0] += 1
            if budget[0] >= 56:
                a('s_waitcnt vmcnt(28)'); budget[0] = 28

class Gaps:
    def __init__(self, n):
        self.ds = [[] for _ in range(n)]; self.va = [[] for _ in range(n)]; self.pre = [[] for _ in range(n)]
        self.n = n
    def put(self, kind, g, text, excl=False):
        while g < self.n - 1:
            if excl:
                if not self.ds[g] and not self.va[g]: break
            else:
                lst = self.ds[g] if kind == 'ds' else self.va[g]
                other = self.va[g] if kind == 'ds' else self.ds[g]
                if not lst and not (other and other[-1][1]): break
            g += 1
        (self.ds if kind == 'ds' else self.va)[g].append((text, excl))
        return g
    def force(self, kind, g, text):
        (self.ds if kind == 'ds' else self.va)[min(g, self.n-1)].append((text, False))

def emit_stream(a, mf, gp, lq, pre=None):
    for i, (m, tags) in enumerate(mf):
        for tg in tags:
            w = lq.wait(tg)
            if w: a(w)
        a(m)
        for lst in (gp.ds[i], gp.va[i]):
            for x, _ in lst:
                t = x(lq) if callable(x) else x
                if t: a(t)

def dsop(text, tag=None):
    def f(lq):
        lq.issue(tag); return text
    return f
def dswait(tag, then=''):
    def f(lq):
        return lq.wait(tag) + '\n' + then
    return f

SV = dict(l8=0, pa=1, idx=2, k1=3, mf=12, acc=40, w=64)
def tile_of(w, u):
    if u < 5: return (u, w)
    order = {(0, 5): (5, 0), (1, 5): (5, 1), (2, 5): (5, 2), (2, 6): (5, 3), (0, 6): (6, 0), (1, 6): (6, 1), (0, 7): (6, 2), (1, 7): (6, 3)}
    return order[(w, u)]
NUNIT = [8, 8, 7, 5]
F = dict(l16=4, px=5, pm=6, mk0=7, mk1=8, mk2=9, wz=10, xf=88, tf=200, sa=228, t=240)

def score_setup(a, stamps):
    V = SV; LN = 44
    a(f'v_mov_b32 v{LN}, v1')
    team_register(a)
    common_addrs(a, V, LN)
    img_addr(a, V['k1'], LN+1, LN)
    g, cc, par, ib, t = LN+1, LN+2, LN+3, LN+4, LN+5
    a(f"""
    v_lshlrev_b32 v{F['l16']}, 4, v{LN}
    v_lshrrev_b32 v{g}, 4, v{LN}
    v_bfe_u32 v{cc}, v{LN}, 2, 2
    v_bfe_u32 v{par}, v{LN}, 1, 1
    v_and_b32 v{ib}, 1, v{LN}
    v_and_b32 v{t}, 15, v{LN}
    v_lshlrev_b32 v{F['px']}, 4, v{t}
    v_lshrrev_b32 v{t}, 1, v{g}
    v_lshl_add_u32 v{F['px']}, v{t}, 8, v{F['px']}
    v_and_b32 v{t}, 1, v{g}
    v_lshl_add_u32 v{F['px']}, v{t}, 3, v{F['px']}
    s_and_b32 s{S_T0}, s{S_ROLE}, 1
    s_lshl_b32 s{S_T0}, s{S_T0}, 5
    s_lshr_b32 s{S_T1}, s{S_ROLE}, 1
    s_lshl_b32 s{S_T1}, s{S_T1}, 9
    s_add_u32 s{S_T0}, s{S_T0}, s{S_T1}
    s_add_u32 s{S_T0}, s{S_T0}, 8192
    v_add_u32 v{F['pm']}, s{S_T0}, v{F['px']}
    s_lshl_b32 s{S_T0}, s{S_ROLE}, 9
    v_add_u32 v{F['px']}, s{S_T0}, v{F['px']}
    v_lshlrev_b32 v{t}, 4, v{ib}
    v_mov_b32 v{F['mk2']}, 0xffff
    v_lshlrev_b32 v{F['mk2']}, v{t}, v{F['mk2']}
    v_cmp_eq_u32 vcc, v{cc}, v{g}
    v_mov_b32 v{t}, 0
    v_cndmask_b32 v{F['mk2']}, v{t}, v{F['mk2']}, vcc
    v_cmp_eq_u32 vcc, 0, v{par}
    v_mov_b32 v{t+1}, 0xff800000
    v_cndmask_b32 v{F['mk0']}, v{t}, v{F['mk2']}, vcc
    v_cndmask_b32 v{F['mk1']}, v{F['mk2']}, v{t}, vcc
    v_cndmask_b32 v{F['wz']}, v{t+1}, v{t}, vcc
    s_mul_i32 s{S_T1}, s{S_ROLE}, {28*14336}
    s_add_u32 s{S_T1}, s{S_T1}, {L.WT}
    """)
    done = a.newlabel('L_sw')
    for w in range(4):
        nx = a.newlabel('L_swn')
        if w < 3: a(f's_cmp_lg_u32 s{S_WAVE}, {w}\ns_cbranch_scc1 {nx}')
        bud = [0]
        for u in range(NUNIT[w]):
            b, ga = tile_of(w, u)
            a(f's_add_u32 s{S_T0}, s{S_T1}, {(4*b+ga)*14336}')
            load_1k_run(a, [wreg_half(u*7 + k//2, V['w'], k % 2) for k in range(14)], F['l16'], S_T0, budget=bud)
        if w < 3: a(f's_branch {done}\n{nx}:')
    a(f"""
{done}:
    s_mov_b32 s{S_STEP}, 0
    s_mov_b32 s{S_MOFF}, {L.MB_M}
    s_mov_b32 s{S_POFF}, {L.MB_P}
    s_mov_b32 s{S_GOFF}, {L.XN}
    s_lshl_b32 s{S_STMP}, s{S_ROLE}, 2
    s_add_u32 s{S_STMP}, s{S_STMP}, s{S_WAVE}
    s_lshl_b32 s{S_STMP}, s{S_STMP}, 12
    s_add_u32 s{S_STMP}, s{S_STMP}, {L.STAMP}
    s_waitcnt vmcnt(0)
    """)
    team_mode(a, V['mf'], V['mf']+1)

def step_advance(a, gstride, xstride=114688):
    a(f"""
    s_add_u32 s{S_STEP}, s{S_STEP}, 1
    s_add_u32 s{S_MOFF}, s{S_MOFF}, 8192
    s_add_u32 s{S_POFF}, s{S_POFF}, 16384
    s_add_u32 s{S_GOFF}, s{S_GOFF}, {gstride}
    s_add_u32 s{S_XOFF}, s{S_XOFF}, {xstride}
    s_add_u32 s{S_STMP}, s{S_STMP}, 64
    """)

def rowred(a, op, x):
    for m in ('row_ror:8', 'row_ror:4', 'row_ror:2', 'row_ror:1'):
        for r in (x, x+1):
            a(f'{op}_dpp v{r}, v{r}, v{r} {m} row_mask:0xf bank_mask:0xf')

def score_wave(a, w, pf, stamps, cfg):
    V = SV; idx = V['idx']; mf = V['mf']
    top = a.newlabel(f'L_sc{w}_top'); first = a.newlabel(f'L_sc{w}_first')
    nunit = NUNIT[w]
    accof = lambda u: V['acc'] + 4*(u % 6)
    ST = (lambda k: f's_memtime s[{40+2*k}:{41+2*k}]') if stamps else (lambda k: '')
    xf, tf, sa, T = F['xf'], F['tf'], F['sa'], F['t']
    FA, FV = 8, 9
    HA = 11
    HT = ([5, 6, 7, 10] if w < 3 else [T+4, T+5, T+6, T+7])[:cfg['hdepth']]
    def load_x():
        a(f's_mov_b32 s{S_T0}, s{S_GOFF}')
        load_1k_run(a, [vr(xf + 4*k, 4) for k in range(28)], F['l16'], S_T0)
    def zero_acc():
        for u in range(2 if cfg['m2'] else min(6, nunit)):
            a(f'v_mov_b64 v[{accof(u)}:{accof(u)+1}], 0\nv_mov_b64 v[{accof(u)+2}:{accof(u)+3}], 0')
        if w == 3:
            for k in range(4): a(f'v_mov_b64 v[{sa+2*k}:{sa+2*k+1}], 0')
            a(f"v_mov_b32 v{sa+8}, v{F['wz']}\nv_mov_b32 v{sa+9}, v{F['wz']}\nv_mov_b64 v[{sa+10}:{sa+11}], 0")
    a(f"v_lshrrev_b32 v{HA}, 1, v{V['l8']}\nv_min_u32 v{HA}, {55*4}, v{HA}\ns_and_b32 s{S_T0}, s{S_ROLE}, 3\ns_lshl_b32 s{S_T0}, s{S_T0}, 8\ns_add_u32 s{S_T0}, s{S_T0}, 7168\nv_add_u32 v{HA}, s{S_T0}, v{HA}")
    if w == 3:
        load_x()
        a(f's_mov_b32 s{S_EOFF}, 0\ns_lshl_b32 s{S_T0}, s{S_ROLE}, 2\ns_add_u32 s{S_T0}, s{S_T0}, 12288\nv_lshlrev_b32 v{T+14}, 4, v0\nv_add_u32 v{T+14}, s{S_T0}, v{T+14}\nv_mov_b32 v{T+15}, 0')
    else:
        a(f"v_add_u32 v{FA}, {LDS_FL + 4*w}, v{F['l16']}\nv_mov_b32 v{FV}, 0")
        for k in range(4): a(f'ds_write_b32 v{FA}, v{FV} offset:{k*1024}')
        a(f's_lshl_b32 s{S_T0}, s{S_ROLE}, 2\ns_add_u32 s{S_T0}, s{S_T0}, 12288\nv_lshlrev_b32 v4, 4, v0\nv_add_u32 v4, s{S_T0}, v4')
    zero_acc()
    a(f's_branch {first}')
    a.label(top)
    zero_acc()
    stamp(a, stamps, 0)
    if not cfg['cutrig'] or w == 0: wait_hint(a, HA, S_MOFF, HT, delay=cfg['mdelay'], inner=cfg['hinner'])
    if cfg['cutrig']: a('s_barrier')
    a.label(first)
    a(f'v_add_u32 v{FV}, 1, v{FV}' if w < 3 else f's_add_u32 s{S_EOFF}, s{S_EOFF}, 1')
    a(ST(9))
    if cfg['m2']: poll_m2(a, V, cfg['m2'], mf)
    else: poll_m(a, V)
    stamp(a, stamps, 1)
    if stamps and w < 3: a(f's_mov_b32 s{40+2*7}, s{S_SPIN}')
    lq = Q('lgkmcnt', 15)
    mrd = [dsop(f"ds_read_b64_tr_b16 v[{mf+4*b+2*hf}:{mf+4*b+2*hf+1}], v{V['l8']} offset:{LDS_M+b*1024+hf*512}", ('mf', b))
           for b in range(7) for hf in range(2)]
    for x in mrd[:cfg['mpre']]: a(x(lq))
    order = [(u, b) for b in range(7) for u in range(2)] + [(u, b) for u in range(2, nunit) for b in range(7)]
    ms = [(SM(accof(u), mf+4*b, wreg(u*7 + b, V['w']), idx), [('mf', b)] if u == 0 else []) for u, b in order]
    last = {u: i for i, (u, b) in enumerate(order)}
    def smfma(b):
        t4 = tf + 4*b
        return [(f"v_mfma_f32_16x16x32_bf16 v[{sa+8}:{sa+11}], v[{t4}:{t4+3}], v[{mf+4*b}:{mf+4*b+3}], " + f'v[{sa+8}:{sa+11}]', [('tf', b)]),
                (SM(sa, t4, vr(xf + 8*b, 8), idx), []),
                (SM(sa+4, t4, vr(xf + 56 + 8*b, 8), idx), [])]
    def tread(b, hf):
        return dsop(f"ds_read_b64_tr_b16 v[{tf+4*b+2*hf}:{tf+4*b+2*hf+1}], v{V['l8']} offset:{LDS_T+b*1024+hf*512}", ('tf', b))
    phases = [(0, 1, 2), (3, 4)]
    starts = []
    if w == 3:
        for ph in phases:
            starts.append(len(ms))
            for b in ph: ms += smfma(b)
    n = len(ms)
    gp = Gaps(n)
    for k, x in enumerate(mrd[cfg['mpre']:]): gp.put('ds', k, x)
    flag_after = {2, 4} | ({5} if w < 2 else {6})
    def post(u):
        A = accof(u); b, ga = tile_of(w, u)
        va = [f'v_add_f32 v{A}, v{A}, v{A+2}', f'v_add_f32 v{A+1}, v{A+1}, v{A+3}', f'v_cvt_pk_bf16_f32 v{A}, v{A}, v{A+1}']
        ds = [dsop(f"ds_write_b32 v{V['k1']}, v{A} offset:{LDS_T+b*1024+ga*128}", ('k', u))]
        if w < 3 and u in flag_after:
            ds.append(dsop(f'ds_write_b32 v{FA}, v{FV} offset:{sorted(flag_after).index(u)*1024}'))
        return va, ds
    g = 0
    done_at = {}
    for u in range(nunit - (0 if w == 3 else 1)):
        va, ds = post(u)
        g = max(g, last[u] + 3 - (len(va) - 3))
        for x in va: g = gp.put('va', g, x) + 1
        for x in ds: g = gp.put('ds', g, x, excl=True) + 1
        done_at[u] = g
    def zero_in_gaps(u, g):
        A = accof(u)
        for k in range(2):
            gg = g
            while gg < 7*u - 2 and (gp.va[gg] or (gp.ds[gg] and gp.ds[gg][-1][1])): gg += 1
            if gg >= 7*u - 2: gg = max(g, 7*u - 4 + k)
            gp.force('va', gg, f'v_mov_b64 v[{A+2*k}:{A+2*k+1}], 0')
    if cfg['m2']:
        gp.force('ds', cfg['m2w'], 's_waitcnt vmcnt(0)')
        for u in range(2, min(6, nunit)): zero_in_gaps(u, cfg['m2w'])
    for u in range(6, nunit): zero_in_gaps(u, done_at[u-6] + 1)
    if w == 3:
        for pi, ph in enumerate(phases):
            flagrd = f"ds_read_b128 v[{T}:{T+3}], v{F['l16']} offset:{LDS_FL + pi*1024}"
            lead = cfg['lead'][pi]
            g = max(starts[pi] - lead, done_at[max(ph)] if max(ph) < 5 else 0)
            g = min(g, starts[pi]-1)
            gp.force('ds', g, dsop(flagrd, ('fl', pi)))
            ops = [tread(b, hf) for b in ph for hf in range(2)]
            for k, x in enumerate(ops):
                gp.force('ds', min(g + (k+1)//2, starts[pi]-1), x)
            slow = a.newlabel('L_fls'); back = a.newlabel('L_flb')
            def chk(lq, pi=pi, slow=slow, back=back):
                return (lq.wait(('fl', pi)) + f"""
                v_min3_u32 v{T}, v{T}, v{T+1}, v{T+2}
                v_cmp_gt_u32 vcc, s{S_EOFF}, v{T}
                s_cbranch_vccnz {slow};nf
{back}:;nf
                """ + ST(5+pi))
            gp.force('va', starts[pi]-1, chk)
            def cold(ph=ph, slow=slow, back=back, flagrd=flagrd):
                q = Q('lgkmcnt', 15)
                lp = a.newlabel('L_flp')
                a(f'{slow}:\ns_mov_b32 s{S_SPIN}, 0\n{lp}:')
                a(flagrd)
                for b in ph:
                    for hf in range(2): a(tread(b, hf)(q))
                a(f"""
                s_add_u32 s{S_SPIN}, s{S_SPIN}, 1
                s_waitcnt lgkmcnt(0)
                v_min3_u32 v{T}, v{T}, v{T+1}, v{T+2}
                v_cmp_gt_u32 vcc, s{S_EOFF}, v{T}
                s_cbranch_vccz {back}
                s_cmp_lt_u32 s{S_SPIN}, {SPIN_MAX}
                s_cbranch_scc1 {lp}
                s_branch {back}
                """)
            a.cold.append(cold)
    if w == 0 and cfg['phint'] < 0:
        gp.force('ds', n - 1 + cfg['phint'], f"""s_mov_b64 exec, 15
            buffer_store_dword v{FV}, v4, {WSRD}, s{S_POFF} offen {pf}
            s_mov_b64 exec, -1""")
    emit_stream(a, ms, gp, lq)
    hint = f"""s_mov_b64 exec, 15
        buffer_store_dword v{T+15}, v{T+14}, {WSRD}, s{S_POFF} offen {pf}
        s_mov_b64 exec, -1"""
    if w < 3:
        va, ds = post(nunit-1)
        for x in va: a(x)
        for x in ds: a(x(lq))
        a(lq.drain())
        stamp(a, stamps, 2)
        a('s_barrier')
    else:
        s = T
        mx = T+6; z = T+8; EA = tf; B1 = tf+4; B2 = tf+8; D1 = tf+12; D2 = tf+16; rz = T+10
        a(f"""
        v_mov_b64 v[{B1+2}:{B1+3}], 0
        v_mov_b64 v[{B2}:{B2+1}], 0
        v_mov_b32 v{B2+3}, 0
        v_mov_b32 v{EA+3}, 0
        """)
        for _ in range(cfg['b5nop']): a('s_nop 3')
        q = Q('lgkmcnt', 15)
        a(f"ds_read_b128 v[{T}:{T+3}], v{F['l16']} offset:{LDS_FL + 2048}"); q.issue('fl')
        for hf in range(2): a(tread(5, hf)(q))
        stamp(a, stamps, 2)
        a('s_barrier')
        stamp(a, stamps, 3)
        for hf in range(2): a(tread(6, hf)(q))
        slow = a.newlabel('L_b5s'); back = a.newlabel('L_b5b')
        a(q.wait('fl') + f"""
        v_min3_u32 v{T}, v{T}, v{T+1}, v{T+2}
        v_cmp_gt_u32 vcc, s{S_EOFF}, v{T}
        s_cbranch_vccnz {slow};nf
{back}:;nf
        """)
        def cold5(slow=slow, back=back):
            q2 = Q('lgkmcnt', 15)
            a(f'{slow}:\ns_waitcnt lgkmcnt(0)')
            for hf in range(2): a(tread(5, hf)(q2))
            a(f's_waitcnt lgkmcnt(0)\ns_branch {back}')
        a.cold.append(cold5)
        if cfg['phint'] == 0: a(hint)
        for b in (5, 6):
            for m, tags in smfma(b):
                for tg in tags: a(q.wait(tg))
                a(m)
        a(ST(7))
        if cfg['phint'] == 1: a(hint)
        e = sa
        redo = a.newlabel('L_smr'); slowmx = a.newlabel('L_sms'); go = a.newlabel('L_smg')
        a(f"""
        s_mov_b32 s{S_T1}, 0
        v_add_f32_dpp v{s+4}, v{sa+10}, v{sa+8} {QP}
        v_add_f32_dpp v{s+5}, v{sa+11}, v{sa+9} {QP}
        v_pk_add_f32 v[{s}:{s+1}], v[{sa}:{sa+1}], v[{sa+2}:{sa+3}]
        v_exp_f32 v{e+8}, v{s+4}
        v_exp_f32 v{e+9}, v{s+5}
        v_pk_add_f32 v[{s+2}:{s+3}], v[{sa+4}:{sa+5}], v[{sa+6}:{sa+7}]
        v_exp_f32 v{e}, v{s}
        v_exp_f32 v{e+1}, v{s+1}
        v_exp_f32 v{e+2}, v{s+2}
        v_exp_f32 v{e+3}, v{s+3}
{redo}:;nf
        v_pk_add_f32 v[{z}:{z+1}], v[{e}:{e+1}], v[{e+8}:{e+9}]
        v_cvt_pk_bf16_f32 v{EA+2}, v{e+8}, v{e+9}
        v_pk_add_f32 v[{z}:{z+1}], v[{z}:{z+1}], v[{e+2}:{e+3}]
        """)
        if cfg['phint'] == 2: a(hint)
        fill = [f'v_cvt_pk_bf16_f32 v{EA+k}, v{e+2*k}, v{e+2*k+1}' for k in range(2)]
        for m in ('row_ror:8', 'row_ror:4', 'row_ror:2', 'row_ror:1'):
            if fill: a(fill.pop(0))
            for r in (z, z+1):
                a(f'v_add_f32_dpp v{r}, v{r}, v{r} {m} row_mask:0xf bank_mask:0xf')
        LO, HI = (127-60) << 23, (127+60) << 23
        a(ST(8))
        a(f"""
        v_rcp_f32 v{mx}, v{z}
        v_rcp_f32 v{mx+1}, v{z+1}
        v_subrev_u32 v{z}, {LO}, v{z}
        v_cvt_pk_bf16_f32 v{rz}, v{mx}, v{mx+1}
        v_and_b32 v{B1}, v{rz}, v{F['mk0']}
        v_and_b32 v{B1+1}, v{rz}, v{F['mk1']}
        v_and_b32 v{B2+2}, v{rz}, v{F['mk2']}
        v_subrev_u32 v{z+1}, {LO}, v{z+1}
        v_mfma_f32_16x16x32_bf16 v[{D1}:{D1+3}], v[{EA}:{EA+3}], v[{B1}:{B1+3}], 0
        v_mfma_f32_16x16x32_bf16 v[{D2}:{D2+3}], v[{EA}:{EA+3}], v[{B2}:{B2+3}], 0
        v_max_u32 v{z}, v{z}, v{z+1}
        v_cmp_lt_u32 vcc, {HI-LO}, v{z}
        s_cbranch_vccnz {slowmx};nf
{go}:;nf
        v_cvt_pk_bf16_f32 v{D1}, v{D1}, v{D1+1}
        v_cvt_pk_bf16_f32 v{D1+1}, v{D1+2}, v{D1+3}
        buffer_store_dwordx2 v[{D1}:{D1+1}], v{F['px']}, {WSRD}, s{S_POFF} offen {pf}
        v_cvt_pk_bf16_f32 v{D2}, v{D2}, v{D2+1}
        v_cvt_pk_bf16_f32 v{D2+1}, v{D2+2}, v{D2+3}
        s_mov_b32 exec_lo, 0x33333333
        s_mov_b32 exec_hi, 0x33333333
        buffer_store_dwordx2 v[{D2}:{D2+1}], v{F['pm']}, {WSRD}, s{S_POFF} offen {pf}
        s_mov_b64 exec, -1
        """)
        def coldmx():
            a(f"""
{slowmx}:
            s_nop 7
            s_cmp_lg_u32 s{S_T1}, 0
            s_cbranch_scc1 {go}
            s_mov_b32 s{S_T1}, 1
            v_max3_f32 v{mx}, v{s}, v{s+4}, v{s+2}
            v_max3_f32 v{mx+1}, v{s+1}, v{s+5}, v{s+3}
            """)
            rowred(a, 'v_max_f32', mx)
            for k in range(3): a(f'v_pk_add_f32 v[{s+2*k}:{s+2*k+1}], v[{s+2*k}:{s+2*k+1}], v[{mx}:{mx+1}] neg_lo:[0,1] neg_hi:[0,1]')
            for k in range(6): a(f'v_exp_f32 v{e+(k if k < 4 else k+4)}, v{s+k}')
            a(f's_nop 1\ns_branch {redo}')
        a.cold.append(coldmx)
        stamp(a, stamps, 4)
    stamp_flush(a, stamps, 11, mf)
    step_advance(a, 28672, 458752)
    a(f's_cmp_ge_u32 s{S_STEP}, 63\ns_cbranch_scc1 L_exit')
    if w == 3: load_x()
    if cfg['ssleep'][w]:
        a(f"s_sleep {cfg['ssleep'][w]}")
    a(f's_branch {top}')
    a.flush_cold()

S_YD = 33; S_YD2 = 36; S_CV = 37; S_CU = 38
CV = dict(ha=160, one=161, zero=162, cu=163, hw=164, hm=165, vy=168, l8=0, pa=1, idx=2, l16=3, pr=4, mw=6, lw=7, rw=8, rr=5, mf=12, acc=40, itm=72, vx=88, uf=96, tw=128, w=176)

def comb_setup(a, stamps, cfg):
    V = CV; LN = 112
    a(f'v_mov_b32 v{LN}, v1')
    team_register(a)
    common_addrs(a, V, LN)
    img_addr(a, V['mw'], LN+1, LN)
    a(f"""
    s_sub_u32 s{S_ROLE}, s{S_ROLE}, 16
    s_lshl_b32 s{S_ROLE}, s{S_ROLE}, 1
    s_and_b32 s{S_T0}, s{S_WAVE}, 1
    s_add_u32 s{S_T1}, s{S_ROLE}, s{S_T0}
    s_lshr_b32 s{S_T0}, s{S_T1}, 2
    s_lshl_b32 s{S_T0}, s{S_T0}, 10
    s_and_b32 s{S_T1}, s{S_T1}, 3
    s_lshl_b32 s{S_T1}, s{S_T1}, 7
    s_add_u32 s{S_T0}, s{S_T0}, s{S_T1}
    s_add_u32 s{S_T0}, s{S_T0}, 8192
    v_add_u32 v{V['mw']}, s{S_T0}, v{V['mw']}
    v_lshlrev_b32 v{V['l16']}, 4, v{LN}
    s_mul_i32 s{S_T0}, s{S_WAVE}, 28672
    s_add_u32 s{S_T0}, s{S_T0}, {LDS_BW}
    v_add_u32 v{V['lw']}, s{S_T0}, v{V['l16']}
    s_lshl_b32 s{S_T0}, s{S_WAVE}, 10
    v_add_u32 v{V['rw']}, s{S_T0}, v{V['l16']}
    v_add_u32 v{V['pr']}, s{S_T0}, v{V['rw']}
    s_and_b32 s{S_T0}, s{S_WAVE}, 1
    s_lshl_b32 s{S_T0}, s{S_T0}, 3
    v_add_u32 v{V['rr']}, s{S_T0}, v{V['l16']}
    s_mul_i32 s{S_T1}, s{S_WAVE}, {4*28}
    s_add_u32 s{S_T1}, s{S_T1}, s{S_ROLE}
    s_add_u32 s{S_T1}, s{S_T1}, 448
    s_mul_i32 s{S_T1}, s{S_T1}, 14336
    s_add_u32 s{S_T1}, s{S_T1}, {L.WT}
    """)
    toff = lambda u: ((u >> 1)*28 + (u & 1))*14336
    for u in (6, 7):
        a(f's_add_u32 s{S_T0}, s{S_T1}, {toff(u)}')
        load_1k_run(a, [vr(12 + 4*k, 4) for k in range(14)], V['l16'], S_T0)
        for k in range(14):
            a(f's_waitcnt vmcnt({13-k})')
            a(f"ds_write_b128 v{V['lw']}, v[{12+4*k}:{12+4*k+3}] offset:{(u-6)*14336+k*1024}")
        a('s_waitcnt lgkmcnt(0)')
    bud = [0]
    for u in range(6):
        a(f's_add_u32 s{S_T0}, s{S_T1}, {toff(u)}')
        load_1k_run(a, [wreg_half(u*7 + k//2, V['w'], k % 2) for k in range(14)], V['l16'], S_T0, budget=bud)
    a(f"""
    s_mov_b32 s{S_STEP}, 0
    s_mov_b32 s{S_MOFF}, {L.MB_M}
    s_mov_b32 s{S_POFF}, {L.MB_P}
    s_lshl_b32 s{S_GOFF}, s{S_ROLE}, 14
    s_lshl_b32 s{S_T0}, s{S_WAVE}, 12
    s_add_u32 s{S_GOFF}, s{S_GOFF}, s{S_T0}
    s_add_u32 s{S_GOFF}, s{S_GOFF}, {L.U}
    s_lshl_b32 s{S_XOFF}, s{S_ROLE}, 12
    s_add_u32 s{S_XOFF}, s{S_XOFF}, {L.VM}
    s_lshr_b32 s{S_STMP}, s{S_ROLE}, 1
    s_add_u32 s{S_STMP}, s{S_STMP}, 16
    s_lshl_b32 s{S_STMP}, s{S_STMP}, 2
    s_add_u32 s{S_STMP}, s{S_STMP}, s{S_WAVE}
    s_lshl_b32 s{S_STMP}, s{S_STMP}, 12
    s_add_u32 s{S_STMP}, s{S_STMP}, {L.STAMP}
    s_waitcnt vmcnt(0)
    """)
    a(f"""
    v_mov_b32 v{V['one']}, 1
    v_mov_b32 v{V['zero']}, 0
    v_mov_b32 v{V['cu']}, 0
    v_and_b32 v{V['ha']}, {120 if cfg['cutrig'] else 24}, v{V['l8']}
    v_lshrrev_b32 v{V['ha']}, 1, v{V['ha']}
    s_lshl_b32 s{S_T0}, s{S_WAVE}, 4
    s_mul_i32 s{S_T0}, s{S_T0}, {0 if cfg['cutrig'] else 1}
    s_and_b32 s{S_T1}, s{S_ROLE}, 6
    s_lshl_b32 s{S_T1}, s{S_T1}, 6
    s_add_u32 s{S_T0}, s{S_T0}, s{S_T1}
    s_add_u32 s{S_T0}, s{S_T0}, 12288
    v_add_u32 v{V['ha']}, s{S_T0}, v{V['ha']}
    s_lshl_b32 s{S_T0}, s{S_ROLE}, 1
    s_add_u32 s{S_T0}, s{S_T0}, s{S_WAVE}
    s_lshl_b32 s{S_T0}, s{S_T0}, 2
    s_add_u32 s{S_T0}, s{S_T0}, {8192 + 7168}
    v_lshlrev_b32 v{V['hw']}, 5, v{V['l8']}
    v_add_u32 v{V['hw']}, s{S_T0}, v{V['hw']}
    s_add_u32 s{S_YD}, s{S_XOFF}, 0x8000000
    v_lshrrev_b32 v{V['hm']}, 1, v{V['l8']}
    v_min_u32 v{V['hm']}, {55*4}, v{V['hm']}
    v_add_u32 v{V['hm']}, 7168, v{V['hm']}
    s_mov_b32 s56, 0
    s_mov_b32 s{S_CU}, {L.CNT_U}
    """)
    for k in range(8): a(f"v_mov_b32 v{V['vy']+k}, 0")
    for k in range(16): a(f"v_mov_b32 v{V['itm']+k}, 0")
    for k in range(32): a(f"v_mov_b32 v{V['uf']+k}, 0")
    team_mode(a, V['mf'], V['mf']+1)
    if cfg['flags']: wait_cnt(a, S_CU, 28, 9)

def comb_wave(a, pf, stamps, cfg):
    V = CV; idx = V['idx']; mf = V['mf']; tw = V['tw']; uf = V['uf']; pa = V['pa']
    top = a.newlabel('L_cb_top')
    HT = [10, 11, 166, 167][:cfg['hdepth']]
    def store_vx(base, r):
        return [f"buffer_store_dwordx4 v[{r}:{r+3}], v{V['rw']}, {WSRD}, s{base} offen {cfg['xflags']}",
                f"s_add_u32 s{S_T1}, s{base}, 4096\nbuffer_store_dwordx4 v[{r+4}:{r+7}], v{V['rw']}, {WSRD}, s{S_T1} offen {cfg['xflags']}"]
    lq = Q('lgkmcnt', 15)
    def lread(lam, hf):
        return dsop(f"ds_read_b128 v[{tw+8*(lam%4)+4*hf}:{tw+8*(lam%4)+4*hf+3}], v{V['lw']} offset:{lam*2048+hf*1024}", ('lw', lam))
    def housekeeping(a=a):
        for u in range(8):
            A = V['acc'] + 4*u
            a(f'v_mov_b64 v[{A}:{A+1}], 0\nv_mov_b64 v[{A+2}:{A+3}], 0')
        for lam in range(4):
            for hf in range(2): a(lread(lam, hf)(lq))
    uload = lambda k: f"buffer_load_dwordx4 v[{uf+4*k}:{uf+4*k+3}], v{V['l16']}, {WSRD}, s{S_GOFF if k < 4 else S_EOFF} offen offset:{(k%4)*1024} {cfg['xflags']}"
    uorder = [] if cfg['nou'] else list(range(8))
    ue = uorder[:cfg['uearly']]; ul = uorder[cfg['uearly']:]
    housekeeping()
    a.label(top)
    stamp(a, stamps, 0)
    t = mf
    slow = a.newlabel('L_cms'); back = a.newlabel('L_cmb')
    a(f"""
    s_add_u32 s{S_EOFF}, s{S_GOFF}, 16384
    buffer_load_dwordx4 v[{t}:{t+3}], v{pa}, {WSRD}, s{S_MOFF} offen sc1
    buffer_load_dwordx4 v[{t+4}:{t+7}], v{pa}, {WSRD}, s{S_MOFF} offen offset:768 sc1
    """)
    if ue: a('s_barrier')
    for k in ue: a(uload(k))
    a(f"""
    s_lshl_b32 s{S_CU}, s{S_STEP}, 7
    s_add_u32 s{S_CU}, s{S_CU}, {L.CNT_U + 128}
    s_waitcnt vmcnt({len(ue)+1})
    ds_write_b128 v{pa}, v[{t}:{t+3}]
    v_max3_u32 v{t+8}, v{t}, v{t+1}, v{t+2}
    s_waitcnt vmcnt({len(ue)})
    ds_write_b128 v{pa}, v[{t+4}:{t+7}] offset:768
    v_max3_u32 v{t+8}, v{t+8}, v{t+3}, v{t+4}
    v_max3_u32 v{t+8}, v{t+8}, v{t+5}, v{t+6}
    v_max_u32 v{t+8}, v{t+8}, v{t+7}
    v_cmp_eq_u32 vcc, -1, v{t+8}
    s_cbranch_vccnz {slow}
    s_waitcnt lgkmcnt(0)
    s_barrier
{back}:
    """)
    def coldm():
        a.label(slow)
        if stamps: a(f's_add_u32 s{40+2*8}, s{40+2*8}, 1')
        poll_m(a, V)
        a(f's_branch {back}')
    a.cold.append(coldm)
    lq.drain()
    stamp(a, stamps, 1)
    mrd = [dsop(f"ds_read_b64_tr_b16 v[{mf+4*b+2*hf}:{mf+4*b+2*hf+1}], v{V['l8']} offset:{LDS_M+b*1024+hf*512}", ('mf', b))
           for b in range(7) for hf in range(2)]
    for x in mrd[:cfg['mpre']]: a(x(lq))
    ms = []; last = {}
    rorder = [(u, b) for b in range(7) for u in range(2)] + [(u, b) for u in range(2, 6) for b in range(7)]
    rb = 0
    for p in range(56):
        if p % 4 == 3:
            lam = p // 4; u = 6 + lam // 7; b = lam % 7
            ms.append((SM(V['acc']+4*u, mf+4*b, vr(tw+8*(lam % 4), 8), idx), [('mf', b), ('lw', lam)]))
        else:
            u, b = rorder[rb]; rb += 1
            ms.append((SM(V['acc']+4*u, mf+4*b, wreg(u*7+b, V['w']), idx), [('mf', b)]))
        last[u] = p
    gp = Gaps(56)
    for k, x in enumerate(mrd[cfg['mpre']:]): gp.put('ds', k, x)
    for lam in range(4, 14):
        g = 4*(lam-4) + 3
        g = gp.put('ds', g, lread(lam, 0)) + 1
        gp.put('ds', g, lread(lam, 1))
    g = 0
    for k in ul: g = gp.put('va', g, uload(k)) + cfg['ustep']
    if cfg['flags']:
        g = gp.put('va', g, f"buffer_load_dword v{V['cu']}, v{V['zero']}, {WSRD}, s{S_CU} offen sc1") + 1
    for x in store_vx(S_YD, V['vy']): g = gp.put('va', g, x) + cfg['ustep']
    def post(u):
        A = V['acc'] + 4*u; hl = u >> 1; ctl = u & 1
        return [f'v_add_f32 v{A}, v{A}, v{A+2}', f'v_add_f32 v{A+1}, v{A+1}, v{A+3}',
                f"v_cvt_pk_bf16_f32 v{V['itm']+8*ctl+4*(hl>>1)+(hl&1)}, v{A}, v{A+1}", f"v_cvt_pk_bf16_f32 v{V['vx']+4*ctl+hl}, v{A}, v{A+1}"]
    tail = []; gprev = 0
    for u in sorted(last, key=lambda u: last[u]):
        g = max(last[u] + 3, gprev)
        if g + 4 >= 56: tail += post(u); continue
        for x in post(u): g = gp.put('va', g, x) + 1
        gprev = g
    emit_stream(a, ms, gp, lq)
    for x in tail: a(x)
    cont = a.newlabel('L_cbc')
    a(f's_cmp_lt_u32 s{S_STEP}, 63\ns_cbranch_scc1 {cont}')
    for x in store_vx(S_XOFF, V['vx']): a(x)
    a(f"""
    s_lshl_b32 s{S_CV}, s{S_WAVE}, 7
    s_sub_u32 s{S_CV}, {L.CNT_V + 63*128}, s{S_CV}
    v_mov_b32 v{V['one']}, 4
    s_cmp_ge_u32 s{S_WAVE}, 2
    s_waitcnt vmcnt(0)
    s_barrier
    s_cbranch_scc1 L_exit
    s_mov_b64 exec, 1
    buffer_atomic_add v{V['one']}, v{V['zero']}, {WSRD}, s{S_CV} offen
    s_branch L_exit
{cont}:
    """)
    stamp(a, stamps, 2)
    A = V['vx']
    sub = Asm()
    for k in range(4): sub(f"v_mov_b64 v[{V['vy']+2*k}:{V['vy']+2*k+1}], v[{V['vx']+2*k}:{V['vx']+2*k+1}]")
    housekeeping(sub)
    sub(f's_add_u32 s{S_T0}, s{S_POFF}, 8192\ns_mov_b32 s{S_YD}, s{S_XOFF}')
    if stamps and cfg['sdrain']: a('s_waitcnt vmcnt(0)')
    stamp(a, stamps, 3)
    if cfg['cutrig']:
        oth = a.newlabel('L_oth'); jn = a.newlabel('L_jn')
        a(f's_cmp_lg_u32 s{S_WAVE}, 0\ns_cbranch_scc1 {oth}')
        wait_hint(a, V['ha'], S_POFF, HT, delay=cfg['pdelay'], fill=[x.text for _, x in sub.items], inner=cfg['hinner'])
        a(f'{jn}:\ns_barrier')
        def coldo():
            a.label(oth)
            for _, x in sub.items: a(x.text)
            a(f's_branch {jn}')
        a.cold.append(coldo)
    else:
        wait_hint(a, V['ha'], S_POFF, HT, delay=cfg['pdelay'], fill=[x.text for _, x in sub.items])
    stamp(a, stamps, 6)
    l = a.newlabel('L_pp'); d = a.newlabel('L_ppd'); retry = a.newlabel('L_ppr'); t = 9
    R = V['acc']
    B3 = [vr(uf, 8), vr(uf+8, 8), vr(V['itm'], 8)], [vr(uf+16, 8), vr(uf+24, 8), vr(V['itm']+8, 8)]
    mh = f"""s_mov_b64 exec, 15
        buffer_store_dword v{V['zero']}, v{V['hw']}, {WSRD}, s{S_MOFF} offen {pf}
        s_mov_b64 exec, -1"""
    def issue(p):
        a(f"""
        buffer_load_dwordx4 v[{p}:{p+3}], v{V['pr']}, {WSRD}, s{S_POFF} offen sc1
        buffer_load_dwordx4 v[{p+4}:{p+7}], v{V['pr']}, {WSRD}, s{S_POFF} offen offset:1024 sc1
        buffer_load_dwordx4 v[{p+8}:{p+11}], v{V['rw']}, {WSRD}, s{S_T0} offen sc1
        """)
    def zero():
        for k in range(4): a(f'v_mov_b64 v[{A+2*k}:{A+2*k+1}], 0')
    def attempt(p, behind, hint_here):
        ex = behind
        a(f's_add_u32 s{S_SPIN}, s{S_SPIN}, 1')
        for k in range(3):
            a(f's_waitcnt vmcnt({2-k+ex})')
            a(SM(A, p+4*k, B3[0][k], idx))
            a(f'v_max_u32 v{t}, v{p}, v{p+2}' if k == 0 else f'v_max3_u32 v{t}, v{t}, v{p+4*k}, v{p+4*k+2}')
            a(SM(A+4, p+4*k, B3[1][k], idx))
            if hint_here and k == 0:
                a(mh); ex += 1
        a(f'v_cmp_eq_u32 vcc, -1, v{t}')
    a(f's_mov_b32 s{S_SPIN}, 0')
    issue(mf)
    zero()
    if cfg['p2']:
        gap = cfg['p2']
        while gap > 0:
            a(f's_nop {min(gap, 16) - 1}'); gap -= 16
        issue(mf+12)
    if cfg['mhint'] == 0:
        for _ in range(cfg['mhnop']): a('s_nop 3')
        a(mh)
    attempt(mf, (3 if cfg['p2'] else 0) + (cfg['mhint'] == 0), cfg['mhint'] == 2)
    a(f's_cbranch_vccnz {retry};nf\n{d}:;nf')
    def coldp():
        a(f'{retry}:\ns_nop 7')
        if cfg['p2']:
            zero()
            attempt(mf+12, 1 if cfg['mhint'] != 1 else 0, False)
            a(f's_cbranch_vccz {d}')
        a.label(l)
        issue(mf)
        zero()
        attempt(mf, 0, False)
        a(f"""
        s_cbranch_vccz {d}
        s_cmp_lt_u32 s{S_SPIN}, s{S_LIM}
        s_cbranch_scc1 {l}
        s_mov_b32 s{S_LIM}, 1
        s_branch {d}
        """)
    a.cold.append(coldp)
    stamp(a, stamps, 4)
    if cfg['mhint'] == 1: a(mh)
    if stamps: a(f's_mov_b32 s{40+2*7}, s{S_SPIN}')
    if cfg['flags']: a(f"v_readfirstlane_b32 s{S_CV}, v{V['cu']}")
    fin = a.newlabel('L_cbf')
    a(f"""
    v_pk_add_f32 v[{R}:{R+1}], v[{A}:{A+1}], v[{A+2}:{A+3}]
    v_pk_add_f32 v[{R+2}:{R+3}], v[{A+4}:{A+5}], v[{A+6}:{A+7}]
    ds_write_b128 v{V['rw']}, v[{R}:{R+3}] offset:{LDS_RED}
    s_cmp_ge_u32 s{S_WAVE}, 2
    s_waitcnt lgkmcnt(0)
    s_barrier
    s_cbranch_scc1 {fin}
    ds_read_b64 v[{R}:{R+1}], v{V['rr']} offset:{LDS_RED}
    ds_read_b64 v[{R+2}:{R+3}], v{V['rr']} offset:{LDS_RED+1024}
    ds_read_b64 v[{R+4}:{R+5}], v{V['rr']} offset:{LDS_RED+2048}
    ds_read_b64 v[{R+6}:{R+7}], v{V['rr']} offset:{LDS_RED+3072}
    s_waitcnt lgkmcnt(2)
    v_pk_add_f32 v[{R}:{R+1}], v[{R}:{R+1}], v[{R+2}:{R+3}]
    s_waitcnt lgkmcnt(0)
    v_pk_add_f32 v[{R+4}:{R+5}], v[{R+4}:{R+5}], v[{R+6}:{R+7}]
    v_pk_add_f32 v[{R}:{R+1}], v[{R}:{R+1}], v[{R+4}:{R+5}]
    v_cvt_pk_bf16_f32 v{R}, v{R}, v{R+1}
    buffer_store_dword v{R}, v{V['mw']}, {WSRD}, s{S_MOFF} offen {pf}
{fin}:
    """)
    stamp(a, stamps, 5)
    for k in range(4): a(f'v_mov_b64 v[{R+2*k}:{R+2*k+1}], 0')
    if cfg['flags']:
        slow2 = a.newlabel('L_us'); back2 = a.newlabel('L_ub')
        a(f's_cmp_lt_u32 s{S_CV}, 28\ns_cbranch_scc1 {slow2}\n{back2}:')
        def coldu():
            a.label(slow2)
            wait_cnt(a, S_CU, 28, 9)
            a(f's_branch {back2}')
        a.cold.append(coldu)
    stamp_flush(a, stamps and cfg['cflush'], 11, mf+24)
    step_advance(a, 458752)
    if cfg['chint']:
        nh = a.newlabel('L_nh')
        a(f's_cmp_lg_u32 s{S_WAVE}, 3\ns_cbranch_scc1 {nh}')
        wait_hint(a, V['hm'], S_MOFF, HT, delay=cfg['cdelay'])
        a(f'{nh}:\ns_barrier')
    if cfg['csleep']:
        a(f"s_sleep {cfg['csleep']}")
    a(f's_branch {top}')
    a.flush_cold()

def helper_cu(a, cfg):
    V = dict(l8=0, pa=1, idx=2, mf=12); LN = 112
    NP = cfg['npf']; D = cfg['pfd']; PER = cfg['pfper']
    a(f'v_mov_b32 v{LN}, v1')
    team_register(a)
    common_addrs(a, V, LN)
    a(f"""
    v_lshlrev_b32 v4, 7, v{LN}
    v_mov_b32 v5, 0
    v_mov_b32 v6, 14
    s_sub_u32 s{S_ROLE}, s{S_ROLE}, 30
    s_lshl_b32 s{S_EOFF}, s{S_ROLE}, 2
    s_add_u32 s{S_EOFF}, s{S_EOFF}, s{S_WAVE}
    s_mov_b32 s{S_STEP}, 0
    s_mov_b32 s{S_MOFF}, {L.MB_M + 8192}
    s_mov_b32 s{S_CV}, {L.DUMMY + 0x200000}
    s_mul_i32 s{S_GOFF}, s{S_EOFF}, 7168
    s_add_u32 s{S_GOFF}, s{S_GOFF}, {L.XN}
    s_mov_b32 s{S_POFF}, 28672
    s_cmp_lt_u32 s{S_EOFF}, 4
    s_cbranch_scc1 H_t
    s_sub_u32 s{S_GOFF}, s{S_EOFF}, 4
    s_mul_i32 s{S_GOFF}, s{S_GOFF}, 6144
    s_add_u32 s{S_GOFF}, s{S_GOFF}, {L.MB_P}
    s_mov_b32 s{S_POFF}, 16384
    s_cmp_lt_u32 s{S_EOFF}, 6
    s_cbranch_scc1 H_t
    s_mov_b32 s{S_GOFF}, {L.MB_M + 8192}
    s_mov_b32 s{S_POFF}, 8192
H_t:
    """)
    def mtouch():
        a(f'buffer_load_dword v7, v4, {WSRD}, s{S_GOFF} offen sc1\ns_add_u32 s{S_GOFF}, s{S_GOFF}, s{S_POFF}')
    for _ in range(D+1): mtouch()
    team_mode(a, V['mf'], V['mf']+1)
    a(f's_mov_b32 s{S_LIM}, {SPIN_MAX*4}')
    mul = {2: (128, 8), 3: (86, 8)}[PER]
    for k in range(NP):
        a(f"""
        s_add_u32 s{S_T0}, s{S_EOFF}, {8*k}
        s_min_u32 s{S_T0}, s{S_T0}, {14*PER-1}
        s_mul_i32 s{S_T1}, s{S_T0}, {mul[0]}
        s_lshr_b32 s{S_T1}, s{S_T1}, {mul[1]}
        s_mul_i32 s{S_T1}, s{S_T1}, {4-PER}
        s_add_u32 s{S_T0}, s{S_T0}, s{S_T1}
        s_lshl_b32 s{60+k}, s{S_T0}, 13
        s_add_u32 s{60+k}, s{60+k}, {L.U}
        """)
    def utouch():
        for k in range(NP):
            a(f'buffer_load_dword v{32+k}, v4, {WSRD}, s{60+k} offen sc1\ns_add_u32 s{60+k}, s{60+k}, 458752')
    a(f's_mov_b32 s{S_CU}, {L.CNT_U}')
    for _ in range(D if NP else 0):
        if cfg['flags']: wait_cnt(a, S_CU, 28, 30)
        utouch()
        a(f's_add_u32 s{S_CU}, s{S_CU}, 128')
    t = V['mf']; pa = V['pa']
    sk = a.newlabel('H_sk'); sk2 = a.newlabel('H_sk'); ok = a.newlabel('H_ok')
    a(f"""
H_top:
    s_mov_b32 s{S_SPIN}, 0
H_poll:
    buffer_load_dwordx4 v[{t}:{t+3}], v{pa}, {WSRD}, s{S_MOFF} offen sc1
    buffer_load_dwordx4 v[{t+4}:{t+7}], v{pa}, {WSRD}, s{S_MOFF} offen offset:768 sc1
    buffer_load_dword v30, v5, {WSRD}, s{S_CU} offen sc1
    s_add_u32 s{S_SPIN}, s{S_SPIN}, 1
    s_waitcnt vmcnt(0)
    v_max3_u32 v{t+8}, v{t}, v{t+1}, v{t+2}
    v_max3_u32 v{t+8}, v{t+8}, v{t+3}, v{t+4}
    v_max3_u32 v{t+8}, v{t+8}, v{t+5}, v{t+6}
    v_max_u32 v{t+8}, v{t+8}, v{t+7}
    v_readfirstlane_b32 s{S_T0}, v30
    v_cmp_eq_u32 vcc, -1, v{t+8}
    s_cbranch_vccz {ok}
    s_sleep {cfg['hsleep']}
    s_cmp_lt_u32 s{S_SPIN}, s{S_LIM}
    s_cbranch_scc1 H_poll
    s_mov_b32 s{S_LIM}, 1
{ok}:
    s_cmp_lg_u32 s{S_ROLE}, 0
    s_cbranch_scc1 {sk}
    s_add_u32 s{S_T1}, s{S_MOFF}, {L.MB_Y - L.MB_M}
    buffer_store_dwordx4 v[{t}:{t+3}], v{pa}, {WSRD}, s{S_T1} offen sc1
    buffer_store_dwordx4 v[{t+4}:{t+7}], v{pa}, {WSRD}, s{S_T1} offen offset:768 sc1
    s_mov_b64 exec, 1
    buffer_atomic_add v6, v5, {WSRD}, s{S_CV} offen
    s_mov_b64 exec, -1
    s_lshl_b32 s{S_CV}, s{S_STEP}, 7
    s_add_u32 s{S_CV}, s{S_CV}, {L.CNT_V}
{sk}:
    s_cmp_ge_u32 s{S_STEP}, {63 - D}
    s_cbranch_scc1 {sk2}
    """)
    mtouch()
    if NP:
        sk3 = a.newlabel('H_sk'); sk4 = a.newlabel('H_sk')
        if cfg['flags']: a(f's_cmp_lt_u32 s{S_T0}, 28\ns_cbranch_scc1 {sk3}')
        utouch()
        a(f's_branch {sk4}\n{sk3}:')
        for k in range(NP): a(f's_add_u32 s{60+k}, s{60+k}, 458752')
        a(f'{sk4}:\ns_add_u32 s{S_CU}, s{S_CU}, 128')
    a(f"""
{sk2}:
    s_add_u32 s{S_STEP}, s{S_STEP}, 1
    s_add_u32 s{S_MOFF}, s{S_MOFF}, 8192
    s_cmp_lt_u32 s{S_STEP}, 63
    s_cbranch_scc1 H_top
    s_branch L_exit
    """)

DEFAULT_CFG = dict(ba=[35, 35, 34, 34], bak=3, bb=[53, 53, 0, 0], xflags='', ssleep=[10, 10, 10, 0], csleep=0, psleep=0, touch=1,
                   nou=0, nox=0, cflush=1, flags=0, ustep=3, hsleep=2, mdelay=0, pdelay=0, phint=0, lead=[5, 2], b5nop=0, npf=0, pfper=2, hdepth=4, m2=28, m2w=10, p2=40, cutrig=1, hinner=4, uearly=4, mhint=2, mhnop=0, sdrain=0, pfd=3, mpre=6, chint=1, cdelay=16)

def team_body(a, stamps=False, cfg=None):
    cfg = dict(DEFAULT_CFG, **(cfg or {}))
    a(f's_cmp_lt_u32 s{S_ROLE}, 30\ns_cbranch_scc1 L_nothelp')
    helper_cu(a, cfg)
    a.label('L_nothelp')
    a(f's_cmp_ge_u32 s{S_ROLE}, 16\ns_cbranch_scc1 L_comb')
    score_setup(a, stamps)
    for fast in (1, 0):
        a(f's_cmp_lg_u32 s{S_FAST}, {fast}\ns_cbranch_scc1 L_sc_next{fast}')
        for w in range(4):
            if w < 3:
                a(f's_cmp_lg_u32 s{S_WAVE}, {w}\ns_cbranch_scc1 L_sc{fast}_n{w}')
            score_wave(a, w, '' if fast else 'sc1', stamps, cfg)
            if w < 3: a.label(f'L_sc{fast}_n{w}')
        a.label(f'L_sc_next{fast}')
    a('s_branch L_exit')
    a.label('L_comb')
    comb_setup(a, stamps, cfg)
    for fast in (1, 0):
        a(f's_cmp_lg_u32 s{S_FAST}, {fast}\ns_cbranch_scc1 L_cb_next{fast}')
        comb_wave(a, '' if fast else 'sc1', stamps, cfg)
        a.label(f'L_cb_next{fast}')
    a('s_branch L_exit')
```

```python
from build import *
import team, prep, gemm, attn, ffn
HEADER = open('sequential_preLN__memory_aug_recurrent_mem_tr__dense_activation_relu__prompt.s.ref').read().split('; Override launch')[0]
def relabel(fn, tag):
    def g(a):
        fn(a)
        import re
        for i, (k, x) in enumerate(a.items):
            if k == 'l' and x.startswith(('L_exit', 'L_role')): a.items[i] = ('l', x + tag)
            elif k == 'i' and ('L_exit' in x.text or 'L_role' in x.text):
                x.text = re.sub(r'(L_exit|L_role\w+)', lambda m: m.group(1) + tag, x.text)
    return g
def v2(tcfg=None, stamps=False, acfg=None):
    tcfg = dict(tcfg or {}); ng = tcfg.pop('ng', 2); acfg = dict(acfg or {}, **tcfg.pop('acfg', {}))
    def km(a):
        if stamps: a('s_memrealtime s[90:91]')
        team.prologue(a, stamps)
        R = team.S_ROLE
        if stamps: a(f's_mov_b32 s92, s{R}\ns_memrealtime s[94:95]\ns_mov_b64 s[96:97], 0')
        a(f"""
        s_cmp_ge_u32 s{R}, 32
        s_cbranch_scc1 M_worker
        """)
        team.team_body(a, stamps is True, dict(dict(xflags='sc1', flags=1), **(tcfg or {})))
        a(f"""
M_worker:
        s_lshr_b32 s26, s{R}, 5
        s_sub_u32 s26, s26, 1
        s_and_b32 s27, s{R}, 31
        s_cmp_ge_u32 s27, 30
        s_cbranch_scc1 M_attn
        s_cmp_ge_u32 s27, 16
        s_cbranch_scc1 M_ffn
        s_cmp_ge_u32 s27, {8*ng}
        s_cbranch_scc1 M_attn
        s_mul_i32 s{R}, s26, {8*ng}
        s_add_u32 s{R}, s{R}, s27
        """)
        gemm.gemm_role(a, dict(xflags='sc1', ng=ng))
        if stamps: a('s_memrealtime s[96:97]')
        a.label('M_attn')
        attn.attn_role(a, dict(dict(xflags='sc1', flags=1, asleep=2, ticket=1, diag=bool(stamps)), **(acfg or {})))
        a(f"""
M_ffn:
        s_mov_b32 s{ffn.F_Q}, s26
        s_sub_u32 s{ffn.F_J}, s27, 16
        """)
        ffn.ffn_role(a, dict(xflags='sc1', flags=1), 7)
        a.label('L_exit')
        if stamps:
            a(f"""
            s_cmp_ge_u32 s2, 256
            s_cbranch_scc1 L_exit2
            s_memrealtime s[98:99]
            s_lshl_b32 s93, s92, 5
            s_add_u32 s93, s93, {L.STAMP + 0x80000}
            s_mov_b64 exec, 1
            s_waitcnt lgkmcnt(0)
            v_mov_b32 v0, 0
            v_mov_b32 v4, s90
            v_mov_b32 v5, s94
            v_mov_b32 v6, s96
            v_mov_b32 v7, s98
            buffer_store_dwordx4 v[4:7], v0, s[8:11], s93 offen
L_exit2:
            """)
        a('s_endpgm')
    return assemble([('prep_kernel', prep.prep_kernel, 256, 256, 163840), ('main_kernel', km, 256, 256, 163840)], HEADER)
if __name__ == '__main__':
    args = [eval(x) for x in sys.argv[3:]]
    open(sys.argv[2], 'w').write(globals()[sys.argv[1]](*args))
```

```python
from asmlib import *
import layout as L
from team import *
import prep

A_SEG = 36; A_Z = 37; A_TX = 38; A_U = 39; A_S0 = 40; A_S1 = 41; A_XS = 44
AL_M = 0
AL_E = 8192
AL_ST = 24576
AL_X = 28672
AV = dict(l8=0, pa=1, idx=2, l16=3, mf=12)
TXV = lambda hl, kb: f'a[{(hl*14+kb)*4}:{(hl*14+kb)*4+3}]'
TX8 = lambda hl, b: f'a[{(hl*14+2*b)*4}:{(hl*14+2*b)*4+7}]'
def oreg(p, c):
    i = c*8 + p
    return ('v', 64 + 4*i) if i < 48 else ('a', 224 + 4*(i-48))

def dma_run(a, n, vaddr, sbase, lds_base_sgpr, flags):
    for k in range(n):
        if k % 4 == 0:
            if k: a(f's_add_u32 s{sbase}, s{sbase}, 4096\ns_add_u32 s{lds_base_sgpr}, s{lds_base_sgpr}, 4096')
            a(f's_mov_b32 m0, s{lds_base_sgpr}')
        a(f'buffer_load_dwordx4 v{vaddr}, {WSRD}, s{sbase} offen offset:{(k%4)*1024} {flags} lds')

def attn_role(a, cfg):
    V = AV; xfl = cfg['xflags']; LN = 40
    mf = V['mf']
    def rt(k):
        if cfg.get('diag'): a(f's_memrealtime s[{60+2*k}:{61+2*k}]')
    a(f's_mov_b32 s{S_LIM}, {SPIN_MAX*8}')
    if cfg.get('ticket'):
        a(f"""
A_top:
        v_mov_b32 v4, {LDS_ROLE}
        s_cmp_lg_u32 s{S_WAVE}, 0
        s_barrier
        s_cbranch_scc1 A_tw
        s_mov_b64 exec, 1
        v_mov_b32 v2, {L.CNT_TK}
        v_mov_b32 v3, 1
        buffer_atomic_add v3, v2, {WSRD}, 0 offen sc0
        s_waitcnt vmcnt(0)
        ds_write_b32 v4, v3
        s_mov_b64 exec, -1
        s_waitcnt lgkmcnt(0)
A_tw:
        s_barrier
        ds_read_b32 v2, v4
        s_waitcnt lgkmcnt(0)
        v_readfirstlane_b32 s{S_ROLE}, v2
        s_cmp_ge_u32 s{S_ROLE}, 128
        s_cbranch_scc1 L_exit
        """)
    a(f"""
    v_mbcnt_lo_u32_b32 v{LN}, -1, 0
    v_mbcnt_hi_u32_b32 v{LN}, -1, v{LN}
    s_load_dwordx2 s[4:5], s[0:1], 0
    s_lshr_b32 s{A_SEG}, s{S_ROLE}, 1
    s_and_b32 s{A_Z}, s{S_ROLE}, 1
    """)
    common_addrs(a, V, LN)
    a(f"""
    v_lshlrev_b32 v{V['l16']}, 4, v{LN}
    s_waitcnt lgkmcnt(0)
    """)
    prep.srd(a, A_XS, 4, 2048*896)
    q, g, t = LN+1, LN+2, LN+3
    a(f"""
    v_and_b32 v{q}, 15, v{LN}
    v_lshrrev_b32 v{g}, 4, v{LN}
    s_lshl_b32 s{S_T0}, s{A_Z}, 4
    v_add_u32 v{t}, s{S_T0}, v{q}
    v_lshlrev_b32 v{t+1}, 2, v{g}
    v_mov_b32 v{t+2}, 0
    v_mov_b32 v{t+3}, 0xff800000
    """)
    for k in range(8):
        a(f"""
        v_add_u32 v{t+4}, {(k>>2)*16 + (k&3)}, v{t+1}
        v_cmp_gt_u32 vcc, v{t+4}, v{t}
        v_cndmask_b32 v{4+k}, v{t+2}, v{t+3}, vcc
        """)
    rt(0)
    a(f"""
    s_lshl_b32 s{A_S0}, s{A_SEG}, 7
    s_add_u32 s{A_S0}, s{A_S0}, {L.CNT_T}
    """)
    if cfg['flags']: wait_cnt(a, A_S0, 28, t)
    a(f"""
    s_mul_i32 s{A_S0}, s{A_SEG}, 28672
    s_mul_i32 s{A_S1}, s{S_WAVE}, 7168
    s_add_u32 s{A_S0}, s{A_S0}, s{A_S1}
    s_add_u32 s{A_S0}, s{A_S0}, {L.XN}
    s_add_u32 s{A_S1}, s{A_S1}, {AL_X}
    """)
    dma_run(a, 7, V['l16'], A_S0, A_S1, cfg.get('wfl', ''))
    a(f"""
    s_mul_i32 s{A_TX}, s{A_SEG}, 458752
    s_mov_b32 s{A_U}, s{A_TX}
    s_mul_i32 s{S_T0}, s{S_WAVE}, {4*28672}
    s_add_u32 s{A_TX}, s{A_TX}, s{S_T0}
    s_mul_i32 s{S_T0}, s{A_Z}, 14336
    s_add_u32 s{A_TX}, s{A_TX}, s{S_T0}
    s_add_u32 s{A_TX}, s{A_TX}, {L.TX}
    s_mul_i32 s{S_T0}, s{S_WAVE}, {7*16384}
    s_add_u32 s{A_U}, s{A_U}, s{S_T0}
    s_add_u32 s{A_U}, s{A_U}, {L.U}
    """)
    def load_tx():
        for hl in range(4):
            a(f's_add_u32 s{S_T0}, s{A_TX}, {hl*28672}')
            load_1k_run(a, [TXV(hl, kb) for kb in range(14)], V['l16'], S_T0, xfl)
    load_tx()
    a('s_waitcnt vmcnt(56)\ns_barrier')
    KF = 64; SC = 176; LM = 48
    for kt in range(2):
        for kb in range(14):
            a(f"ds_read_b128 v[{KF+(kt*14+kb)*4}:{KF+(kt*14+kb)*4+3}], v{V['l16']} offset:{AL_X+kt*14336+kb*1024}")
    a('s_waitcnt lgkmcnt(0)')
    for hl in range(4):
        a(f's_waitcnt vmcnt({14*(3-hl)})')
        for kb in range(14):
            for kt in range(2):
                c = SC + (hl*2+kt)*4; k = KF+(kt*14+kb)*4
                a(f'v_mfma_f32_16x16x32_bf16 v[{c}:{c+3}], v[{k}:{k+3}], {TXV(hl,kb)}, ' + ('0' if kb == 0 else f'v[{c}:{c+3}]'))
    a(f"""
    s_lshl_b32 s{A_S0}, s{A_SEG}, 7
    s_add_u32 s{A_S0}, s{A_S0}, {L.CNT_U}
    """)
    if cfg['flags']: wait_cnt(a, A_S0, 28, t)
    vq = Q('vmcnt', 63)
    NR = 56
    def uload(i):
        o = []
        if i % 4 == 0: o.append(f's_add_u32 s{S_T1}, s{A_U}, {i*1024}')
        r = (i % NR)*4
        o.append(f"buffer_load_dwordx4 a[{r}:{r+3}], v{V['l16']}, {WSRD}, s{S_T1} offen offset:{(i%4)*1024} {xfl}")
        vq.issue(i)
        return '\n'.join(o)
    a('s_nop 7')
    for i in range(NR): a(uload(i))
    T = 208
    for hl in range(4):
        c = SC + hl*8
        for k in range(8): a(f'v_add_f32 v{c+k}, v{c+k}, v{4+k}')
        a(f"""
        v_max3_f32 v{LM+hl}, v{c}, v{c+1}, v{c+2}
        v_max3_f32 v{LM+hl}, v{LM+hl}, v{c+3}, v{c+4}
        v_max3_f32 v{LM+hl}, v{LM+hl}, v{c+5}, v{c+6}
        v_max_f32 v{LM+hl}, v{LM+hl}, v{c+7}
        """)
        xlane4(a, 'v_max_f32', LM+hl, T)
        for k in range(8): a(f'v_sub_f32 v{c+k}, v{c+k}, v{LM+hl}')
        for k in range(8): a(f'v_exp_f32 v{c+k}, v{c+k}')
        s = LM+4+hl
        a(f'v_add_f32 v{s}, v{c}, v{c+1}')
        for k in range(2, 8): a(f'v_add_f32 v{s}, v{s}, v{c+k}')
        xlane4(a, 'v_add_f32', s, T)
        for k in range(4): a(f'v_cvt_pk_bf16_f32 v{T+4+(0, 2, 1, 3)[k]}, v{c+2*k}, v{c+2*k+1}')
        if hl == 0:
            a(f"s_lshl_b32 s{S_T0}, s{S_WAVE}, 12\nv_add_u32 v{LN+1}, s{S_T0}, v{V['l16']}")
        a(f'ds_write_b128 v{LN+1}, v[{T+4}:{T+7}] offset:{AL_E+hl*1024}')
    a('s_waitcnt lgkmcnt(0)\ns_barrier')
    EF = 12; OA = 28
    oacc = [28, 32, 36, 56]
    lq = Q('lgkmcnt', 15)
    def eread(i):
        r = EF + (i % 4)*4
        lq.issue(i)
        return f"ds_read_b128 v[{r}:{r+3}], v{V['l16']} offset:{AL_E+(i%16)*1024}"
    for i in range(3): a(eread(i))
    def opost(i):
        c, h = i // 16, i % 16
        k, r = oreg(h >> 1, c); r += 2*(h & 1); A = oacc[i % 4]
        if k == 'v':
            return [f'v_cvt_pk_bf16_f32 v{r}, v{A}, v{A+1}', f'v_cvt_pk_bf16_f32 v{r+1}, v{A+2}, v{A+3}']
        return [f'v_cvt_pk_bf16_f32 v{A}, v{A}, v{A+1}', f'v_cvt_pk_bf16_f32 v{A+2}, v{A+2}, v{A+3}',
                f'v_accvgpr_write_b32 a{r}, v{A}', f'v_accvgpr_write_b32 a{r+1}, v{A+2}']
    for i in range(112):
        for w in (vq.wait(i), lq.wait(i)):
            if w: a(w)
        A = oacc[i % 4]; e = EF + (i % 4)*4; u = (i % NR)*4
        a(f'v_mfma_f32_16x16x32_bf16 v[{A}:{A+3}], v[{e}:{e+3}], a[{u}:{u+3}], 0')
        if i + 3 < 112: a(eread(i+3))
        if i >= 3:
            for x in opost(i-3): a(x)
        if i >= 1 and i - 1 + NR < 112: a(uload(i-1+NR))
    for i in range(109, 112):
        for x in opost(i): a(x)
    a('s_nop 7')
    load_tx()
    XR = 4
    xreg = lambda c: (4 + 2*c) if c < 4 else (56 + 2*(c-4))
    a(f"""
    v_and_b32 v{q}, 15, v{LN}
    v_lshrrev_b32 v{g}, 4, v{LN}
    v_mul_u32_u24 v{t}, 896, v{q}
    v_lshl_add_u32 v{t}, v{g}, 3, v{t}
    s_mul_i32 s{S_T0}, s{S_ROLE}, {16*896}
    s_mul_i32 s{S_T1}, s{S_WAVE}, 224
    s_add_u32 s{S_T0}, s{S_T0}, s{S_T1}
    """)
    for c in range(7):
        a(f'buffer_load_dwordx2 v[{xreg(c)}:{xreg(c)+1}], v{t}, s[{A_XS}:{A_XS+3}], s{S_T0} offen offset:{c*32}')
    MK = 62
    a(f"""
    v_and_b32 v{t+1}, 1, v{q}
    v_lshlrev_b32 v{t+1}, 4, v{t+1}
    v_mov_b32 v{t+2}, 0xffff
    v_lshlrev_b32 v{t+2}, v{t+1}, v{t+2}
    v_lshrrev_b32 v{t+1}, 1, v{q}
    v_lshlrev_b32 v{t+3}, 1, v{g}
    v_mov_b32 v{t+4}, 0
    v_cmp_eq_u32 vcc, v{t+1}, v{t+3}
    v_add_u32 v{t+3}, 1, v{t+3}
    v_cndmask_b32 v{MK}, v{t+4}, v{t+2}, vcc
    v_cmp_eq_u32 vcc, v{t+1}, v{t+3}
    s_lshl_b32 s{S_MOFF}, s{A_SEG}, 13
    s_add_u32 s{S_MOFF}, s{S_MOFF}, {L.MB_Y}
    v_cndmask_b32 v{MK+1}, v{t+4}, v{t+2}, vcc
    """)
    rt(1)
    a('s_waitcnt vmcnt(40)')
    a(f's_mov_b32 s{A_S0}, {L.CNT_I2}')
    wait_cnt(a, A_S0, 98, mf)
    fl = a.newlabel('A_far'); fd = a.newlabel('A_near')
    a(f"""
    s_cmp_eq_u32 s{A_SEG}, 0
    s_cbranch_scc1 {fd}
    s_sub_u32 s{A_S0}, s{S_MOFF}, 8192
    s_mov_b32 s{S_SPIN}, 0
    v_mov_b32 v{mf}, 0
{fl}:
    buffer_load_dword v{mf+1}, v{mf}, {WSRD}, s{A_S0} offen sc1
    s_add_u32 s{S_SPIN}, s{S_SPIN}, 1
    s_waitcnt vmcnt(0)
    v_cmp_eq_u32 vcc, -1, v{mf+1}
    s_cbranch_vccz {fd}
    s_sleep {cfg['asleep']}
    s_cmp_lt_u32 s{S_SPIN}, s{S_LIM}
    s_cbranch_scc1 {fl}
{fd}:
    """)
    poll_m(a, V, sleep=1)
    rt(2)
    lq = Q('lgkmcnt', 15)
    for b in range(7):
        for hf in range(2):
            a(f"ds_read_b64_tr_b16 v[{mf+4*b+2*hf}:{mf+4*b+2*hf+1}], v{V['l8']} offset:{AL_M+b*1024+hf*512}")
            lq.issue(b)
    SA = 40
    for half in range(2):
        for k in range(4): a(f'v_mov_b64 v[{SA+2*k}:{SA+2*k+1}], 0')
        for b in range(7):
            w = lq.wait(b)
            if w: a(w)
            for hh in range(2):
                a(SM(SA+4*hh, mf+4*b, TX8(2*half+hh, b), V['idx']))
        if half == 0:
            for hh in range(2):
                A = SA+4*hh
                a(f'v_add_f32 v{A}, v{A}, v{A+2}\nv_add_f32 v{A+1}, v{A+1}, v{A+3}')
                a(f'v_accvgpr_write_b32 a{2*hh}, v{A}\nv_accvgpr_write_b32 a{2*hh+1}, v{A+1}')
    S = 12
    for hh in range(2):
        A = SA+4*hh
        a(f'v_add_f32 v{S+4+2*hh}, v{A}, v{A+2}\nv_add_f32 v{S+5+2*hh}, v{A+1}, v{A+3}')
    for k in range(4): a(f'v_accvgpr_read_b32 v{S+k}, a{k}')
    PRB = 1
    a(f"""
    s_mul_i32 s{A_S0}, s{A_SEG}, 114688
    s_mul_i32 s{A_S1}, s{S_WAVE}, 28672
    s_add_u32 s{A_S0}, s{A_S0}, s{A_S1}
    s_add_u32 s{A_S0}, s{A_S0}, {L.VM}
    v_min_u32 v{PRB}, {27*16}, v{V['l16']}
    v_lshlrev_b32 v{PRB}, 6, v{PRB}
    buffer_load_dword v{PRB}, v{PRB}, {WSRD}, s{A_S0} offen sc1
    """)
    MX, TT, FX, Z = 20, 24, 28, 32
    H4 = range(4)
    def x4(op, x):
        for h in H4: a(f'v_mov_b32 v{TT+h}, v{x+h}')
        for h in H4: a(f'v_permlane16_swap_b32 v{x+h}, v{TT+h}')
        for h in H4: a(f'{op} v{x+h}, v{x+h}, v{TT+h}')
        for h in H4: a(f'v_mov_b32 v{TT+h}, v{x+h}')
        for h in H4: a(f'v_permlane32_swap_b32 v{x+h}, v{TT+h}')
        for h in H4: a(f'{op} v{x+h}, v{x+h}, v{TT+h}')
    for h in H4: a(f'v_max3_f32 v{MX+h}, v{S+2*h}, v{S+2*h+1}, v{LM+h}')
    x4('v_max_f32', MX)
    for h in H4: a(f'v_sub_f32 v{S+2*h}, v{S+2*h}, v{MX+h}\nv_sub_f32 v{S+2*h+1}, v{S+2*h+1}, v{MX+h}\nv_sub_f32 v{FX+h}, v{LM+h}, v{MX+h}')
    for h in H4: a(f'v_exp_f32 v{S+2*h}, v{S+2*h}\nv_exp_f32 v{S+2*h+1}, v{S+2*h+1}\nv_exp_f32 v{FX+h}, v{FX+h}')
    for h in H4: a(f'v_add_f32 v{Z+h}, v{S+2*h}, v{S+2*h+1}')
    x4('v_add_f32', Z)
    for h in H4: a(f'v_fmac_f32 v{Z+h}, v{FX+h}, v{LM+4+h}')
    for h in H4: a(f'v_rcp_f32 v{Z+h}, v{Z+h}')
    for h in H4: a(f'v_mul_f32 v{S+2*h}, v{S+2*h}, v{Z+h}\nv_mul_f32 v{S+2*h+1}, v{S+2*h+1}, v{Z+h}\nv_mul_f32 v{FX+h}, v{FX+h}, v{Z+h}')
    PM = 36; DG = 40
    for h in H4: a(f'v_cvt_pk_bf16_f32 v{PM+h}, v{S+2*h}, v{S+2*h+1}\nv_cvt_pk_bf16_f32 v{FX+h}, v{FX+h}, v{FX+h}')
    for h in H4: a(f'v_and_b32 v{DG+2*h}, v{FX+h}, v{MK}\nv_and_b32 v{DG+2*h+1}, v{FX+h}, v{MK+1}')
    a(f"""
    s_mul_i32 s{S_T0}, s{S_WAVE}, 3072
    v_add_u32 v{MX}, s{S_T0}, v{V['l16']}
    ds_write_b128 v{MX}, v[{DG}:{DG+3}] offset:{AL_E}
    ds_write_b128 v{MX}, v[{DG+4}:{DG+7}] offset:{AL_E+1024}
    ds_write_b128 v{MX}, v[{PM}:{PM+3}] offset:{AL_E+2048}
    s_waitcnt vmcnt(0) lgkmcnt(0)
    s_barrier
    """)
    a(f"""
    s_mul_i32 s{A_S0}, s{A_SEG}, 114688
    s_mul_i32 s{A_S1}, s{S_WAVE}, 28672
    s_add_u32 s{A_S0}, s{A_S0}, s{A_S1}
    s_add_u32 s{A_S0}, s{A_S0}, {L.VM}
    s_mov_b32 s{A_U}, 0
    s_mov_b32 s{S_SPIN}, 0
    v_min_u32 v40, {27*16}, v{V['l16']}
    v_lshlrev_b32 v40, 6, v40
    v_mov_b32 v41, v{PRB}
    """)
    CF = 128
    for k in range(12):
        a(f"ds_read_b128 a[{CF+4*k}:{CF+4*k+3}], v{V['l16']} offset:{AL_E+k*1024}")
    cfd = lambda p: CF + 4*((p >> 1)*3 + (p & 1))
    cfm = lambda u: CF + 4*(u*3 + 2)
    FA = 12
    VFa = 8; HP = 64; HF = 80; KP = 240
    vl = a.newlabel('A_vl'); vd = a.newlabel('A_vd'); vg = a.newlabel('A_vg'); vr_ = a.newlabel('A_vr')
    a(f'v_cmp_eq_u32 vcc, -1, v41\ns_cbranch_vccz {vg}')
    wait_hint(a, 40, A_S0, [41, 42, 43], gap=15, inner=15)
    a(f'{vg}:\ns_mov_b32 s{S_SPIN}, 0')
    rt(3)
    sub = Asm()
    sub(f's_mov_b32 s{A_S1}, s{A_S0}')
    load_1k_run(sub, [f'a[{VFa+4*k}:{VFa+4*k+3}]' for k in range(28)], V['l16'], A_S1, xfl)
    lds_ = [x.text for _, x in sub.items]
    def take(n):
        while lds_ and n > 0:
            x = lds_.pop(0); a(x)
            if x.startswith('buffer'): n -= 1
    take(6)
    a('s_waitcnt lgkmcnt(0)')
    i_ = 0
    for p in range(8):
        for c in range(7):
            k, r = oreg(p, c); A = FA + 4*c
            a(f'v_mfma_f32_16x16x32_bf16 v[{A}:{A+3}], {k}[{r}:{r+3}], a[{cfd(p)}:{cfd(p)+3}], ' + ('0' if p == 0 else f'v[{A}:{A+3}]'))
            i_ += 1
            if i_ % 4 == 0: take(1)
    take(28)
    def coldv():
        a(f'{vl}:')
        for _, x in sub.items: a(x.text)
        a(f's_branch {vr_}')
    a.cold.append(coldv)
    a(f'{vr_}:\ns_add_u32 s{S_SPIN}, s{S_SPIN}, 1')
    rt(4)
    def tile_epi(c):
        A = KP + 4*(c & 1); x = xreg(c)
        for k in range(2):
            a(f"""
            v_cvt_pk_bf16_f32 v{A+2*k}, v{A+2*k}, v{A+2*k+1}
            v_and_b32 v{A+2*k+1}, 0xffff0000, v{A+2*k}
            v_lshlrev_b32 v{A+2*k}, 16, v{A+2*k}
            v_lshlrev_b32 v{HF+4*c+2*k}, 16, v{x+k}
            v_and_b32 v{HF+4*c+2*k+1}, 0xffff0000, v{x+k}
            v_pk_add_f32 v[{A+2*k}:{A+2*k+1}], v[{A+2*k}:{A+2*k+1}], v[{HF+4*c+2*k}:{HF+4*c+2*k+1}]
            v_cvt_pk_bf16_f32 v{HP+2*c+k}, v{A+2*k}, v{A+2*k+1}
            v_lshlrev_b32 v{HF+4*c+2*k}, 16, v{HP+2*c+k}
            v_and_b32 v{HF+4*c+2*k+1}, 0xffff0000, v{HP+2*c+k}
            """)
    for c in range(7):
        a(f's_waitcnt vmcnt({4*(6-c)})')
        for u in range(4):
            A = KP + 4*(c & 1); r = VFa + 4*(c*4+u)
            a(f'v_mfma_f32_16x16x32_bf16 v[{A}:{A+3}], a[{r}:{r+3}], a[{cfm(u)}:{cfm(u)+3}], v[{FA+4*c if u == 0 else A}:{(FA+4*c if u == 0 else A)+3}]')
            a(f'v_accvgpr_read_b32 v{44+u}, a{r}')
        a(f'v_max_u32 v43, v44, v45' if c == 0 else f'v_max3_u32 v43, v43, v44, v45')
        a(f'v_max3_u32 v43, v43, v46, v47')
        if c: tile_epi(c-1)
    a(f"""
    v_cmp_eq_u32 vcc, -1, v43
    s_cbranch_vccz {vd}
    s_cmp_lt_u32 s{S_SPIN}, s{S_LIM}
    s_cbranch_scc1 {vl}
    s_mov_b32 s{S_LIM}, 1
{vd}:
    """)
    tile_epi(6)
    rt(5)
    a(f"""
    s_mul_i32 s{A_S0}, s{S_ROLE}, 14336
    s_mul_i32 s{S_T0}, s{S_WAVE}, 3584
    s_add_u32 s{A_S1}, s{A_S0}, s{S_T0}
    s_add_u32 s{A_S1}, s{A_S1}, {L.HB}
    """)
    for c in range(7):
        a(f"buffer_store_dwordx2 v[{HP+2*c}:{HP+2*c+1}], v{V['l8']}, {WSRD}, s{A_S1} offen offset:{c*512} {xfl}")
    s0, nm, d0, st = 40, 42, 44, 48
    a(f'v_pk_add_f32 v[{s0}:{s0+1}], v[{HF}:{HF+1}], v[{HF+2}:{HF+3}]')
    for i in range(2, 14): a(f'v_pk_add_f32 v[{s0}:{s0+1}], v[{s0}:{s0+1}], v[{HF+2*i}:{HF+2*i+1}]')
    a(f'v_add_f32 v{s0}, v{s0}, v{s0+1}')
    xlane4(a, 'v_add_f32', s0, d0)
    a(f'v_mul_f32 v{nm}, 0xbc124925, v{s0}\nv_mul_f32 v{nm+1}, 0xbc124925, v{s0}')
    for i in range(14):
        d = d0 + 2*(i & 1)
        a(f'v_pk_add_f32 v[{d}:{d+1}], v[{HF+2*i}:{HF+2*i+1}], v[{nm}:{nm+1}]')
        a(f'v_pk_mul_f32 v[{s0}:{s0+1}], v[{d}:{d+1}], v[{d}:{d+1}]' if i == 0 else f'v_pk_fma_f32 v[{s0}:{s0+1}], v[{d}:{d+1}], v[{d}:{d+1}], v[{s0}:{s0+1}]')
    a(f'v_add_f32 v{nm+1}, v{s0}, v{s0+1}')
    xlane4(a, 'v_add_f32', nm+1, d0)
    a(f"""
    s_lshl_b32 s{S_T0}, s{S_WAVE}, 9
    v_add_u32 v{d0}, s{S_T0}, v{V['l8']}
    ds_write_b64 v{d0}, v[{nm}:{nm+1}] offset:{AL_ST}
    s_waitcnt lgkmcnt(0)
    s_barrier
    """)
    for k in range(4): a(f"ds_read_b64 v[{st+2*k}:{st+2*k+1}], v{V['l8']} offset:{AL_ST+k*512}")
    rs = 46
    a(f"""
    s_waitcnt lgkmcnt(0)
    v_add_f32 v{nm}, v{st}, v{st+2}
    v_add_f32 v{d0}, v{st+4}, v{st+6}
    v_add_f32 v{nm}, v{nm}, v{d0}
    v_mul_f32 v{nm}, 0.25, v{nm}
    v_add_f32 v{rs}, v{st+1}, v{st+3}
    v_add_f32 v{d0}, v{st+5}, v{st+7}
    v_add_f32 v{rs}, v{rs}, v{d0}
    v_sub_f32 v{st}, v{st}, v{nm}
    v_sub_f32 v{st+2}, v{st+2}, v{nm}
    v_sub_f32 v{st+4}, v{st+4}, v{nm}
    v_sub_f32 v{st+6}, v{st+6}, v{nm}
    v_mul_f32 v{d0}, v{st}, v{st}
    v_fmac_f32 v{d0}, v{st+2}, v{st+2}
    v_fmac_f32 v{d0}, v{st+4}, v{st+4}
    v_fmac_f32 v{d0}, v{st+6}, v{st+6}
    v_fmac_f32 v{rs}, 0x42e00000, v{d0}
    v_mul_f32 v{rs}, 0x3b124925, v{rs}
    """)
    prep.ln_stats_finish(a, nm, rs, d0)
    a(f'v_mov_b32 v{nm+1}, v{nm}\nv_mov_b32 v{rs+1}, v{rs}')
    NP = 108
    for i in range(14):
        u = HF+2*i
        a(f"""
        v_pk_add_f32 v[{u}:{u+1}], v[{u}:{u+1}], v[{nm}:{nm+1}]
        v_cvt_pk_bf16_f32 v{NP+i}, v{u}, v{u+1}
        v_lshlrev_b32 v{u}, 16, v{NP+i}
        v_and_b32 v{u+1}, 0xffff0000, v{NP+i}
        v_pk_mul_f32 v[{u}:{u+1}], v[{u}:{u+1}], v[{rs}:{rs+1}]
        v_cvt_pk_bf16_f32 v{NP+i}, v{u}, v{u+1}
        """)
    a(f"""
    s_mul_i32 s{S_T0}, s{S_WAVE}, 3072
    s_add_u32 s{A_S0}, s{A_S0}, {L.HN}
    s_add_u32 s{A_S1}, s{A_S0}, s{S_T0}
    s_lshr_b32 s{S_T0}, s{S_WAVE}, 1
    s_lshl_b32 s{S_T0}, s{S_T0}, 10
    s_and_b32 s{S_T1}, s{S_WAVE}, 1
    s_lshl_b32 s{S_T1}, s{S_T1}, 3
    s_add_u32 s{S_T0}, s{S_T0}, s{S_T1}
    s_add_u32 s{A_S0}, s{A_S0}, s{S_T0}
    s_add_u32 s{A_S0}, s{A_S0}, 12288
    """)
    for i in range(3):
        a(f"buffer_store_dwordx4 v[{NP+4*i}:{NP+4*i+3}], v{V['l16']}, {WSRD}, s{A_S1} offen offset:{i*1024} {xfl}")
    a(f"buffer_store_dwordx2 v[{NP+12}:{NP+13}], v{V['l16']}, {WSRD}, s{A_S0} offen {xfl}")
    rt(6)
    if cfg.get('diag'):
        rt(7)
        a(f's_waitcnt lgkmcnt(0)\ns_lshl_b32 s{A_S0}, s{S_ROLE}, 6\ns_add_u32 s{A_S0}, s{A_S0}, {L.STAMP + 0x90000}')
        for k in range(8): a(f'v_writelane_b32 v6, s{60+2*k}, {k}')
        a(f"v_lshrrev_b32 v7, 1, v{V['l8']}\ns_mov_b64 exec, 255\nbuffer_store_dword v6, v7, {WSRD}, s{A_S0} offen\ns_mov_b64 exec, -1")
    if cfg.get('ticket'): a('s_branch A_top')
    a.flush_cold()
```

```python
from asmlib import *
import layout as L
from team import *
from attn import dma_run
import prep

F_J = 36; F_Q = 37; F_S0 = 38; F_S1 = 39; F_C = 40; F_G = 41; F_W = 44; F_OUT = 48
CT_PAIRS = [(7*w+2*i, 7*w+2*i+1) for w in range(4) for i in range(3)] + [(6, 13), (20, 27)]
W1S = 272
FL_RED = 0
FL_HN = 8192

def ffn_role(a, cfg, ngroups):
    xfl = cfg['xflags']
    LN, l16, l8 = 1, 2, 3
    def rt(k):
        if cfg.get('diag'): a(f's_memrealtime s[{60+2*k}:{61+2*k}]')
    a(f"""
    v_mbcnt_lo_u32_b32 v{LN}, -1, 0
    v_mbcnt_hi_u32_b32 v{LN}, -1, v{LN}
    s_load_dwordx4 s[4:7], s[0:1], 64
    s_load_dwordx2 s[52:53], s[0:1], 80
    s_mov_b32 s{S_LIM}, {SPIN_MAX*8}
    v_lshlrev_b32 v{l16}, 4, v{LN}
    v_lshlrev_b32 v{l8}, 3, v{LN}
    s_lshl_b32 s{S_T0}, s{S_WAVE}, 6
    v_add_u32 v0, s{S_T0}, v{LN}
    s_waitcnt lgkmcnt(0)
    """)
    a(f"""
    v_mov_b32 v12, -1
    v_mov_b32 v13, -1
    v_mov_b32 v14, -1
    v_mov_b32 v15, -1
    s_mul_i32 s{F_C}, s{F_Q}, 14
    s_add_u32 s{F_C}, s{F_C}, s{F_J}
    s_lshl_b32 s{F_C}, s{F_C}, 2
    s_add_u32 s{F_C}, s{F_C}, s{S_WAVE}
    s_lshl_b32 s{F_C}, s{F_C}, 10
    s_add_u32 s{F_C}, s{F_C}, {L.VM}
F_fill:
    buffer_store_dwordx4 v[12:15], v{l16}, {WSRD}, s{F_C} offen sc1
    s_add_u32 s{F_C}, s{F_C}, {ngroups*56*1024}
    s_cmp_lt_u32 s{F_C}, {L.VM + 64*114688}
    s_cbranch_scc1 F_fill
    s_mov_b32 s{S_T0}, {L.CNT_I}
    v_mov_b32 v8, 0
    v_mov_b32 v9, 1
    s_cmp_lg_u32 s{S_WAVE}, 0
    s_waitcnt vmcnt(0)
    s_barrier
    s_cbranch_scc1 F_fill1
    s_mov_b64 exec, 1
    buffer_atomic_add v9, v8, {WSRD}, s{S_T0} offen
    s_mov_b64 exec, -1
F_fill1:
    """)
    def fill2():
        a(f"""
        s_mov_b32 s{F_S0}, {L.MB_Y + 8192}
        s_mov_b32 s{S_SPIN}, 0
F_go:
        buffer_load_dword v10, v8, {WSRD}, s{F_S0} offen sc1
        s_add_u32 s{S_SPIN}, s{S_SPIN}, 1
        s_waitcnt vmcnt(0)
        v_cmp_eq_u32 vcc, -1, v10
        s_cbranch_vccz F_god
        s_sleep 16
        s_cmp_lt_u32 s{S_SPIN}, s{S_LIM}
        s_cbranch_scc1 F_go
F_god:
        s_lshl_b32 s{F_S0}, s{F_J}, 2
        s_add_u32 s{F_S0}, s{F_S0}, s{S_WAVE}
        s_lshl_b32 s{F_S0}, s{F_S0}, 10
        s_mul_i32 s{S_T0}, s{F_Q}, 57344
        s_add_u32 s{F_S0}, s{F_S0}, s{S_T0}
        s_add_u32 s{F_S0}, s{F_S0}, {L.HID}
        s_mul_i32 s{F_S1}, s{F_Q}, 14336
        s_lshl_b32 s{S_T0}, s{F_J}, 10
        s_add_u32 s{F_S1}, s{F_S1}, s{S_T0}
        s_cmp_eq_u32 s{S_WAVE}, 0
        s_cselect_b32 s{S_T0}, {L.HN - L.HB}, 0
        s_add_u32 s{F_S1}, s{F_S1}, s{S_T0}
        s_add_u32 s{F_S1}, s{F_S1}, {L.HB}
        s_mov_b32 s{S_T1}, s{F_Q}
F_fill2:
        buffer_store_dwordx4 v[12:15], v{l16}, {WSRD}, s{F_S0} offen sc1
        s_cmp_ge_u32 s{S_WAVE}, 2
        s_cbranch_scc1 F_fill3
        buffer_store_dwordx4 v[12:15], v{l16}, {WSRD}, s{F_S1} offen sc1
F_fill3:
        s_add_u32 s{F_S0}, s{F_S0}, {ngroups*57344}
        s_add_u32 s{F_S1}, s{F_S1}, {ngroups*14336}
        s_add_u32 s{S_T1}, s{S_T1}, {ngroups}
        s_cmp_lt_u32 s{S_T1}, 128
        s_cbranch_scc1 F_fill2
        s_add_u32 s{S_T1}, s{F_Q}, 1
        s_cmp_eq_u32 s{S_XCC}, s{S_T1}
        s_cselect_b32 s{S_T1}, 1, 0x10001
        s_lshl_b32 s{F_G}, s{F_Q}, 7
        s_add_u32 s{F_G}, s{F_G}, {L.CNT_G}
        s_mov_b32 s{S_T0}, {L.CNT_I2}
        v_mov_b32 v11, 1
        v_mov_b32 v10, s{S_T1}
        s_cmp_lg_u32 s{S_WAVE}, 0
        s_waitcnt vmcnt(0)
        s_barrier
        s_cbranch_scc1 F_fill4
        s_mov_b64 exec, 1
        buffer_atomic_add v11, v8, {WSRD}, s{S_T0} offen
        buffer_atomic_add v10, v8, {WSRD}, s{F_G} offen
        s_mov_b64 exec, -1
F_fill4:
        """)
    prep.srd(a, F_W, 4, 448*3584)
    prep.srd(a, F_OUT, 52, 2048*896)
    a(f"""
    v_lshrrev_b32 v4, 4, v0
    v_and_b32 v5, 15, v0
    v_mul_u32_u24 v6, 3584, v4
    v_lshl_add_u32 v6, v5, 4, v6
    v_mul_u32_u24 v7, {W1S}, v4
    v_lshl_add_u32 v7, v5, 4, v7
    v_add_u32 v9, {14*16*W1S}, v7
    s_lshl_b32 s{F_S0}, s{F_J}, 8
    """)
    for k in range(28):
        a(f'buffer_load_dwordx4 v[{16+4*k}:{16+4*k+3}], v6, s[{F_W}:{F_W+3}], s{F_S0} offen\ns_add_u32 s{F_S0}, s{F_S0}, {16*3584}')
    prep.srd(a, F_W, 6, 1792*896)
    a(f"""
    v_lshrrev_b32 v4, 2, v0
    v_and_b32 v5, 3, v0
    v_mul_u32_u24 v6, 896, v4
    v_lshl_add_u32 v6, v5, 4, v6
    v_lshlrev_b32 v8, 5, v4
    v_and_b32 v5, 1, v0
    v_lshl_add_u32 v8, v5, 4, v8
    v_bfe_u32 v5, v0, 1, 1
    v_mul_u32_u24 v5, 57344, v5
    v_add_u32 v8, v8, v5
    s_lshl_b32 s{F_S0}, s{F_J}, 6
    """)
    for k in range(28):
        a(f'buffer_load_dwordx4 v[{128+4*k}:{128+4*k+3}], v6, s[{F_W}:{F_W+3}], s{F_S0} offen\ns_add_u32 s{F_S0}, s{F_S0}, {64*896}')
    for k in range(28):
        a(f's_waitcnt vmcnt({55-k})\nds_write_b128 v{7 if k < 14 else 9}, v[{16+4*k}:{16+4*k+3}] offset:{(k%14)*16*W1S}')
    a(f"""
    v_lshrrev_b32 v4, 2, v{LN}
    v_mul_u32_u24 v4, {W1S}, v4
    v_and_b32 v5, 3, v{LN}
    v_lshl_add_u32 v4, v5, 3, v4
    s_lshl_b32 s{S_T0}, s{S_WAVE}, 6
    v_add_u32 v4, s{S_T0}, v4
    v_add_u32 v10, {14*16*W1S}, v4
    s_mul_i32 s{S_T0}, s{S_WAVE}, 14336
    v_add_u32 v5, s{S_T0}, v{l8}
    v_add_u32 v11, 57344, v5
    s_waitcnt lgkmcnt(0)
    s_barrier
    """)
    W1 = lambda t, kb: (t*14+kb)*4
    W2 = lambda t, kb: 112 + (t*14+kb)*4
    for t in range(2):
        for kb in range(14):
            for hf in range(2):
                r = W1(t, kb) + 2*hf; ct = CT_PAIRS[kb][hf]
                a(f'ds_read_b64_tr_b16 a[{r}:{r+1}], v{4 if ct < 14 else 10} offset:{(ct%14)*16*W1S + t*32}')
    a('s_waitcnt lgkmcnt(0)\ns_barrier')
    for k in range(28):
        a(f's_waitcnt vmcnt({27-k})\nds_write_b128 v8, v[{128+4*k}:{128+4*k+3}] offset:{k*2048}')
    a('s_waitcnt lgkmcnt(0)\ns_barrier')
    for t in range(2):
        for kb in range(14):
            for hf in range(2):
                r = W2(t, kb) + 2*hf
                a(f'ds_read_b64_tr_b16 a[{r}:{r+1}], v{5 if t == 0 else 11} offset:{kb*1024+hf*512}')
    a(f"""
    v_and_b32 v4, 15, v{LN}
    v_mul_u32_u24 v4, 896, v4
    v_lshrrev_b32 v5, 4, v{LN}
    v_lshl_add_u32 v4, v5, 3, v4
    s_lshl_b32 s{S_T0}, s{S_WAVE}, 11
    v_add_u32 v5, s{S_T0}, v{l16}
    s_and_b32 s{S_T0}, s{S_WAVE}, 1
    s_lshl_b32 s{S_T0}, s{S_T0}, 10
    v_add_u32 v6, s{S_T0}, v{l16}
    v_mov_b32 v8, 0
    v_min_u32 v7, 13, v{LN}
    v_lshlrev_b32 v7, 10, v7
    s_lshl_b32 s{S_T0}, s{S_WAVE}, 12
    s_min_u32 s{S_T0}, s{S_T0}, 10240
    v_add_u32 v9, s{S_T0}, v{l16}
    s_waitcnt lgkmcnt(0)
    """)
    fill2()
    a(f"""
    s_mov_b32 s{S_SPIN}, 0
F_mode:
    buffer_load_dword v10, v8, {WSRD}, s{F_G} offen sc1
    s_add_u32 s{S_SPIN}, s{S_SPIN}, 1
    s_waitcnt vmcnt(0)
    v_readfirstlane_b32 s{S_T0}, v10
    s_and_b32 s{S_T1}, s{S_T0}, 0xffff
    s_cmp_ge_u32 s{S_T1}, 14
    s_cbranch_scc1 F_moded
    s_sleep 4
    s_cmp_lt_u32 s{S_SPIN}, s{S_LIM}
    s_cbranch_scc1 F_mode
    s_mov_b32 s{S_T0}, 0x10000
F_moded:
    s_lshr_b32 s{S_FAST}, s{S_T0}, 16
F_top:
    """)
    B = 16; AC = 128
    a(f"""
    s_mul_i32 s{F_S0}, s{F_Q}, 14336
    s_lshl_b32 s{F_C}, s{F_J}, 1
    s_and_b32 s{S_T0}, s{S_WAVE}, 1
    s_add_u32 s{F_C}, s{F_C}, s{S_T0}
    s_lshl_b32 s{F_C}, s{F_C}, 9
    s_add_u32 s{F_C}, s{F_C}, s{F_S0}
    s_add_u32 s{F_C}, s{F_C}, {L.HB}
    s_add_u32 s{F_S0}, s{F_S0}, {L.HN}
    s_mov_b32 s{S_SPIN}, 0
F_hn:
    """)
    for k in range(4): a(f'buffer_load_dwordx4 v[{B+4*k}:{B+4*k+3}], v9, {WSRD}, s{F_S0} offen offset:{k*1024} sc1')
    a(f's_add_u32 s{S_SPIN}, s{S_SPIN}, 1')
    for k in range(4):
        a(f's_waitcnt vmcnt({3-k})\nds_write_b128 v9, v[{B+4*k}:{B+4*k+3}] offset:{FL_HN+k*1024}')
        a(f'v_max_u32 v11, v{B}, v{B+2}' if k == 0 else f'v_max3_u32 v11, v11, v{B+4*k}, v{B+4*k+2}')
    a(f"""
    v_cmp_eq_u32 vcc, -1, v11
    s_cbranch_vccz F_hnd
    s_sleep {cfg.get('fsleep', 2)}
    s_cmp_lt_u32 s{S_SPIN}, s{S_LIM}
    s_cbranch_scc1 F_hn
    s_mov_b32 s{S_LIM}, 1
F_hnd:
    s_waitcnt lgkmcnt(0)
    s_barrier
    """)
    rt(0)
    for kb in range(14):
        a(f'ds_read_b128 v[{B+4*kb}:{B+4*kb+3}], v{l16} offset:{FL_HN+kb*1024}')
    for kb in range(14):
        a(f's_waitcnt lgkmcnt({13-kb})')
        for t in range(2):
            c = AC + 4*t
            a(f'v_mfma_f32_16x16x32_bf16 v[{c}:{c+3}], a[{W1(t,kb)}:{W1(t,kb)+3}], v[{B+4*kb}:{B+4*kb+3}], ' + ('0' if kb == 0 else f'v[{c}:{c+3}]'))
    a(f"""
    s_mul_i32 s{F_S1}, s{F_Q}, 57344
    s_add_u32 s{F_S1}, s{F_S1}, {L.HID}
    s_lshl_b32 s{S_T0}, s{F_J}, 2
    s_add_u32 s{S_T0}, s{S_T0}, s{S_WAVE}
    s_lshl_b32 s{S_T0}, s{S_T0}, 10
    s_add_u32 s{F_S0}, s{F_S1}, s{S_T0}
    s_mul_i32 s{S_T0}, s{S_WAVE}, 14336
    s_add_u32 s{F_S1}, s{F_S1}, s{S_T0}
    s_cmp_lg_u32 s{S_FAST}, 0
    """)
    for k in range(8): a(f'v_max_f32 v{AC+k}, 0, v{AC+k}')
    for k in range(4): a(f'v_cvt_pk_bf16_f32 v{AC+8+k}, v{AC+2*k}, v{AC+2*k+1}')
    a(f"""
    s_cbranch_scc1 F_st1
    buffer_store_dwordx4 v[{AC+8}:{AC+11}], v{l16}, {WSRD}, s{F_S0} offen
    s_branch F_st2
F_st1:
    buffer_store_dwordx4 v[{AC+8}:{AC+11}], v{l16}, {WSRD}, s{F_S0} offen sc1
F_st2:
    buffer_load_dwordx2 v[12:13], v{l8}, {WSRD}, s{F_C} offen sc1
    """)
    rt(1)
    wait_hint(a, 7, F_S1, [140, 141, 142], gap=14, inner=10)
    rt(2)
    a(f's_mov_b32 s{S_SPIN}, 0\nF_hid:\ns_mov_b32 s{F_S0}, s{F_S1}\ns_add_u32 s{S_SPIN}, s{S_SPIN}, 1')
    load_1k_run(a, [vr(B+4*k, 4) for k in range(14)], l16, F_S0, 'sc1')
    for kb in range(14):
        a(f's_waitcnt vmcnt({13-kb})')
        for t in range(2):
            c = AC + 4*t; b = B + 4*kb
            a(f'v_mfma_f32_16x16x32_bf16 v[{c}:{c+3}], a[{W2(t,kb)}:{W2(t,kb)+3}], v[{b}:{b+3}], ' + ('0' if kb == 0 else f'v[{c}:{c+3}]'))
        a(f'v_max3_u32 v11, v12, v13, v{B}' if kb == 0 else f'v_max_u32 v11, v11, v{B+4*kb}')
    a(f"""
    v_cmp_eq_u32 vcc, -1, v11
    s_cbranch_vccz F_hidd
    buffer_load_dwordx2 v[12:13], v{l8}, {WSRD}, s{F_C} offen sc1
    s_cmp_lt_u32 s{S_SPIN}, s{S_LIM}
    s_cbranch_scc1 F_hid
    s_mov_b32 s{S_LIM}, 1
    s_waitcnt vmcnt(0)
F_hidd:
    """)
    rt(3)
    fin = a.newlabel('F_fin')
    R = AC + 8
    a(f"""
    ds_write_b128 v5, v[{AC}:{AC+3}] offset:{FL_RED}
    ds_write_b128 v5, v[{AC+4}:{AC+7}] offset:{FL_RED+1024}
    s_cmp_ge_u32 s{S_WAVE}, 2
    s_waitcnt lgkmcnt(0)
    s_barrier
    s_cbranch_scc1 {fin}
    ds_read_b128 v[{R}:{R+3}], v6 offset:{FL_RED}
    ds_read_b128 v[{R+4}:{R+7}], v6 offset:{FL_RED+2048}
    ds_read_b128 v[{R+8}:{R+11}], v6 offset:{FL_RED+4096}
    ds_read_b128 v[{R+12}:{R+15}], v6 offset:{FL_RED+6144}
    s_mul_i32 s{F_S0}, s{F_Q}, {16*896}
    s_lshl_b32 s{S_T0}, s{F_J}, 1
    s_add_u32 s{S_T0}, s{S_T0}, s{S_WAVE}
    s_lshl_b32 s{S_T0}, s{S_T0}, 5
    s_add_u32 s{F_S0}, s{F_S0}, s{S_T0}
    v_lshlrev_b32 v{AC}, 16, v12
    v_and_b32 v{AC+1}, 0xffff0000, v12
    v_lshlrev_b32 v{AC+2}, 16, v13
    v_and_b32 v{AC+3}, 0xffff0000, v13
    s_waitcnt lgkmcnt(0)
    """)
    for k in range(2):
        r = R + 2*k
        a(f"""
        v_pk_add_f32 v[{r}:{r+1}], v[{r}:{r+1}], v[{r+4}:{r+5}]
        v_pk_add_f32 v[{r+8}:{r+9}], v[{r+8}:{r+9}], v[{r+12}:{r+13}]
        v_pk_add_f32 v[{r}:{r+1}], v[{r}:{r+1}], v[{r+8}:{r+9}]
        v_cvt_pk_bf16_f32 v{r}, v{r}, v{r+1}
        v_and_b32 v{r+1}, 0xffff0000, v{r}
        v_lshlrev_b32 v{r}, 16, v{r}
        v_pk_add_f32 v[{r}:{r+1}], v[{r}:{r+1}], v[{AC+2*k}:{AC+2*k+1}]
        v_cvt_pk_bf16_f32 v{14+k}, v{r}, v{r+1}
        """)
    a(f"""
    buffer_store_dwordx2 v[14:15], v4, s[{F_OUT}:{F_OUT+3}], s{F_S0} offen
{fin}:
    """)
    if cfg.get('diag'):
        rt(4)
        a(f's_waitcnt lgkmcnt(0)\ns_mov_b32 s70, s{S_SPIN}\ns_lshl_b32 s{F_S0}, s{F_Q}, 4\ns_add_u32 s{F_S0}, s{F_S0}, s{F_J}\ns_lshl_b32 s{F_S0}, s{F_S0}, 2\ns_add_u32 s{F_S0}, s{F_S0}, s{S_WAVE}\ns_lshl_b32 s{F_S0}, s{F_S0}, 5\ns_add_u32 s{F_S0}, s{F_S0}, {L.STAMP + 0xa0000}')
        for k in range(6): a(f'v_writelane_b32 v150, s{60+2*k}, {k}')
        a(f"v_lshrrev_b32 v151, 1, v{l8}\ns_mov_b64 exec, 63\nbuffer_store_dword v150, v151, {WSRD}, s{F_S0} offen\ns_mov_b64 exec, -1")
    a(f"""
    s_add_u32 s{F_Q}, s{F_Q}, {ngroups}
    s_cmp_lt_u32 s{F_Q}, 128
    s_cbranch_scc1 F_top
    """)
```

```python
from asmlib import *
import layout as L
from team import Q, xlane4

KA = dict(x=0, mem0=8, wq=16, wk=24, wv=32, wo=40, w1=64, w2=72, out=80, dbg=88, ws=96)
LOG2E_16 = 0x3db8aa3b

def srd(a, d, lo, nbytes):
    a(f"""
    s_mov_b32 s{d}, s{lo}
    s_and_b32 s{d+1}, s{lo+1}, 0xffff
    s_mov_b32 s{d+2}, {nbytes}
    s_mov_b32 s{d+3}, 0x20000
    """)

WO_STRIDE = 144
def prep_kernel(a, diag=False, stfl='sc1', touch=1, a1up=1, ldfl='nt'):
    WS, SA, SB = 8, 12, 16
    ldfl_b = ldfl
    a(f"""
    s_cmp_ge_u32 s2, 256
    s_cbranch_scc1 P_exit
    s_load_dwordx2 s[4:5], s[0:1], {KA['ws']}
    s_load_dwordx4 s[24:27], s[0:1], {KA['wq']}
    s_load_dwordx4 s[28:31], s[0:1], {KA['wv']}
    s_load_dwordx4 s[32:35], s[0:1], {KA['x']}
    v_lshrrev_b32 v2, 6, v0
    v_and_b32 v1, 63, v0
    v_readfirstlane_b32 s20, v2
    s_and_b32 s21, s2, 7
    s_lshr_b32 s22, s2, 3
    s_waitcnt lgkmcnt(0)
    """)
    srd(a, WS, 4, L.WS_BYTES)
    def st(k):
        if diag: a(f's_memtime s[{60+2*k}:{61+2*k}]')
    if diag:
        for k in range(8): a(f's_mov_b64 s[{60+2*k}:{61+2*k}], 0')
    st(0)
    nfill = L.CNT + L.CNT_BYTES - L.MB_M
    assert nfill % (256*4096) == 0 or True
    per = (nfill + 255) // 256
    per = (per + 4095) // 4096 * 4096
    def fill_boxes():
        a(f"""
        v_lshlrev_b32 v240, 4, v0
        v_mov_b32 v244, -1
        v_mov_b32 v245, -1
        v_mov_b32 v246, -1
        v_mov_b32 v247, -1
        s_mul_i32 s53, s2, {per}
        s_add_u32 s53, s53, {L.MB_M}
        """)
        assert L.MB_M + 256*per <= L.STAMP
        for k in range(per // 4096):
            l = a.newlabel('P_fs')
            a(f"""
            s_add_u32 s54, s53, {k*4096}
            s_and_b32 s55, s54, 0xffffe000
            s_cmp_eq_u32 s55, {L.MB_M}
            s_cbranch_scc1 {l}
            s_cmp_eq_u32 s55, {L.MB_Y}
            s_cbranch_scc1 {l}
            s_cmp_ge_u32 s54, {L.CNT}
            s_cselect_b32 s55, 0, -1
            v_mov_b32 v244, s55
            v_mov_b32 v245, s55
            v_mov_b32 v246, s55
            v_mov_b32 v247, s55
            buffer_store_dwordx4 v[244:247], v240, s[{WS}:{WS+3}], s54 offen {stfl}
{l}:
            """)
    assert L.MB_M + 256*per > L.CNT + L.CNT_BYTES - 1 or True
    a(f"""
    s_cmp_ge_u32 s22, 28
    s_cbranch_scc1 P_ln
    """)
    a(f"""
    s_mul_i32 s23, s22, 37
    s_lshr_b32 s23, s23, 8
    s_mul_i32 s36, s23, 7
    s_sub_u32 s36, s22, s36
    s_lshl_b32 s21, s21, 2
    s_add_u32 s21, s21, s23
    s_and_b32 s37, s21, 1
    s_lshr_b32 s38, s21, 1
    s_cmp_eq_u32 s37, 0
    s_cselect_b32 s40, s24, s28
    s_cselect_b32 s41, s25, s29
    s_cselect_b32 s42, s26, s30
    s_cselect_b32 s43, s27, s31
    """)
    srd(a, SA, 40, 448*8192)
    srd(a, SB, 42, 448*8192)
    BF = 0
    AFR = lambda p: 32 + 64*p
    ACC = lambda p: 160 + 32*p
    OUT = 224
    SLOT = lambda k: (k & 1)*65536
    breg = lambda ks, nt: BF + (ks*4 + nt)*4
    a(f"""
    s_lshl_b32 s39, s20, 2
    s_cmp_eq_u32 s20, 3
    s_cselect_b32 s39, 11, s39
    v_and_b32 v4, 15, v1
    v_lshrrev_b32 v5, 4, v1
    v_lshrrev_b32 v6, 5, v1
    v_and_b32 v7, 31, v1
    v_xor_b32 v7, v7, v6
    v_lshlrev_b32 v8, 13, v6
    v_lshl_add_u32 v8, v7, 4, v8
    s_lshl_b32 s50, s20, 14
    s_lshl_b32 s44, s39, 18
    s_lshl_b32 s45, s38, 9
    s_add_u32 s44, s44, s45
    """)
    if touch:
        a(f"""
        v_lshrrev_b32 v9, 2, v0
        v_lshlrev_b32 v9, 13, v9
        v_and_b32 v10, 3, v0
        v_lshl_add_u32 v9, v10, 7, v9
        s_lshl_b32 s46, s36, 19
        s_add_u32 s46, s46, s45
        buffer_load_dword v15, v9, s[{SA}:{SA+3}], s46 offen {ldfl}
        """)
    for k in range(8):
        a(f'v_xor_b32 v{16+k}, {2*k*16}, v8')
    a(f"""
    v_lshrrev_b32 v6, 2, v4
    v_and_b32 v7, 3, v4
    v_lshl_add_u32 v6, v6, 3, v7
    v_lshlrev_b32 v6, 9, v6
    v_add_u32 v6, s50, v6
    v_xor_b32 v7, v5, v4
    """)
    for k in range(4):
        a(f'v_xor_b32 v9, {4*k}, v7\nv_lshl_add_u32 v{24+k}, v9, 4, v6')
    vq = Q('vmcnt', 63)
    def a_dma(blk, i_):
        xr = 16 + ((i_ >> 2)*2 + (i_ & 1))
        def f(lq=None):
            vq.issue(('a', blk))
            return (f's_add_u32 m0, s50, {SLOT(blk) + i_*1024}\ns_add_u32 s46, s44, {(blk*32 + i_*2)*8192}\n'
                    f'buffer_load_dwordx4 v{xr}, s[{SA}:{SA+3}], s46 offen lds')
        return f
    a('s_cmp_eq_u32 s37, 0\ns_cbranch_scc0 P_t1')
    a(f"""
    s_lshl_b32 s47, s36, 19
    s_add_u32 s47, s47, s45
    s_lshl_b32 s46, s20, 17
    s_add_u32 s47, s47, s46
    s_lshl_b32 s51, s20, 13
    s_mov_b32 s48, {LOG2E_16}
    """)
    for k in range(8):
        a(f's_add_u32 m0, s51, {131072 + k*1024}\ns_add_u32 s46, s47, {k*2*8192}\nbuffer_load_dwordx4 v{16+k}, s[{SB}:{SB+3}], s46 offen {ldfl_b} lds')
    a(f"""
    s_branch P_tj
P_t1:
    v_lshrrev_b32 v10, 3, v1
    v_and_b32 v11, 7, v1
    v_mul_u32_u24 v9, 896, v10
    v_and_b32 v12, 2, v10
    v_xor_b32 v11, v11, v12
    v_lshl_add_u32 v9, v11, 4, v9
    v_xor_b32 v13, 64, v9
    s_mul_i32 s47, s38, 229376
    s_lshl_b32 s46, s36, 7
    s_add_u32 s47, s47, s46
    s_mul_i32 s46, s20, {64*896}
    s_add_u32 s47, s47, s46
    s_lshl_b32 s51, s20, 13
    s_mov_b32 s48, 1.0
    """)
    for k in range(8):
        a(f's_add_u32 m0, s51, {131072 + k*1024}\ns_add_u32 s46, s47, {k*8*896}\nbuffer_load_dwordx4 v{13 if k & 1 else 9}, s[{SB}:{SB+3}], s46 offen {ldfl_b} lds')
    a.label('P_tj')
    st(1)
    for i_ in range(16): a(a_dma(0, i_)())
    if a1up:
        for i_ in range(16): a(a_dma(1, i_)())
    a(f's_waitcnt vmcnt({32 if a1up else 16})\ns_barrier')
    st(2)
    a('s_cmp_eq_u32 s37, 0\ns_cbranch_scc0 P_r1')
    a(f'v_lshlrev_b32 v6, 9, v4\nv_add_u32 v6, 131072, v6')
    for k in range(4):
        a(f'v_xor_b32 v9, {4*k}, v7\nv_lshl_add_u32 v{28+k}, v9, 4, v6')
    for ks in range(8):
        for nt in range(4):
            a(f'ds_read_b128 a[{breg(ks,nt)}:{breg(ks,nt)+3}], v{28+(ks&3)} offset:{nt*8192 + (ks>>2)*256}')
            if nt & 1 and not a1up: a(a_dma(1, ks*2 + (nt >> 1))())
    if not a1up: vq.n -= 16
    a(f"""
    s_branch P_rj
P_r1:
    v_bfe_u32 v10, v1, 2, 2
    v_lshl_add_u32 v11, v5, 3, v10
    v_lshlrev_b32 v13, 7, v11
    v_add_u32 v13, 131072, v13
    v_and_b32 v11, 3, v1
    v_lshl_add_u32 v13, v11, 3, v13
    v_lshrrev_b32 v10, 1, v10
    v_and_b32 v11, 1, v5
    v_lshl_add_u32 v10, v11, 1, v10
    """)
    for nt in range(4):
        a(f'v_xor_b32 v9, {nt}, v10\nv_lshl_add_u32 v{28+nt}, v9, 5, v13')
    for ks in range(8):
        for nt in range(4):
            for hf in range(2):
                r = breg(ks, nt) + 2*hf
                a(f'ds_read_b64_tr_b16 a[{r}:{r+1}], v{28+nt} offset:{(ks*32+hf*4)*128}')
            if nt & 1 and not a1up: a(a_dma(1, ks*2 + (nt >> 1))())
    a(f"""
P_rj:
    s_mul_i32 s52, s37, 448
    s_mul_i32 s47, s38, 28
    s_add_u32 s52, s52, s47
    s_lshl_b32 s47, s36, 2
    s_add_u32 s52, s52, s47
    s_mul_i32 s52, s52, 14336
    s_lshl_b32 s47, s39, 10
    s_add_u32 s52, s52, s47
    s_add_u32 s52, s52, {L.WT}
    s_mov_b32 s49, s48
    v_lshlrev_b32 v3, 4, v1
    s_waitcnt vmcnt(16)
    """)
    def a_read(blk, hf, ks):
        r = AFR(blk & 1) + (hf*8+ks)*4
        off = hf*4*512 + (ks >> 2)*256
        return f'ds_read_b128 v[{r}:{r+3}], v{24+(ks&3) if not blk & 1 else 10+(ks&3)} offset:{off}'
    for k in range(4): a(f'v_add_u32 v{10+k}, 65536, v{24+k}')
    for hf in range(2):
        for ks in range(8): a(a_read(0, hf, ks))
    fill_boxes()
    a('s_waitcnt lgkmcnt(0)')
    from team import Gaps, emit_stream
    def epi(blk):
        va = []; stt = []
        for nt in range(4):
            ca = ACC(blk & 1) + nt*4; cb = ACC(blk & 1) + (4+nt)*4; o = OUT + nt*4
            v = [f'v_pk_mul_f32 v[{c}:{c+1}], v[{c}:{c+1}], s[48:49]' for c in (ca, ca+2, cb, cb+2)]
            v += [f'v_cvt_pk_bf16_f32 v{o}, v{ca}, v{ca+1}', f'v_cvt_pk_bf16_f32 v{o+1}, v{ca+2}, v{ca+3}',
                  f'v_cvt_pk_bf16_f32 v{o+2}, v{cb}, v{cb+1}', f'v_cvt_pk_bf16_f32 v{o+3}, v{cb+2}, v{cb+3}']
            va.append(v)
            def sf(lq=None, nt=nt, o=o):
                vq.issue()
                return f's_add_u32 s47, s52, {nt*14336}\nbuffer_store_dwordx4 v[{o}:{o+3}], v3, s[{WS}:{WS+3}], s47 offen offset:{blk*1024} {stfl}'
            stt.append(sf)
        return va, stt
    lq = Q('lgkmcnt', 15)
    for blk in range(4):
        if blk == 3:
            a('s_cmp_lt_u32 s20, 2\ns_cbranch_scc1 P_b3')
            va, stt = epi(2)
            n0 = vq.n
            for nt in range(4):
                for x in va[nt]: a(x)
                a(stt[nt]())
            vq.n = n0
            a('s_branch P_exit\nP_b3:')
        ms = []
        for hf in range(2):
            for ks in range(8):
                r = AFR(blk & 1) + (hf*8+ks)*4
                for nt in range(4):
                    c = ACC(blk & 1) + (hf*4+nt)*4
                    ms.append((f'v_mfma_f32_16x16x32_bf16 v[{c}:{c+3}], v[{r}:{r+3}], a[{breg(ks,nt)}:{breg(ks,nt)+3}], ' + ('0' if ks == 0 else f'v[{c}:{c+3}]'), []))
        gp = Gaps(64)
        g = 0
        if blk + 2 < 4:
            for i_ in range(16): g = gp.put('ds', g, a_dma(blk+2, i_)) + 3
        if blk > 0:
            va, stt = epi(blk-1)
            g2 = 3
            for nt in range(4):
                for x in va[nt]: g2 = gp.put('va', g2, x) + 1
                gp.put('ds', g2+1, stt[nt])
        if blk + 1 < 4:
            gp.force('ds', 44, lambda lq, b=blk+1: vq.wait(('a', b)))
            g = 44
            for hf in range(2):
                for ks in range(8):
                    gp.force('ds', g, a_read(blk+1, hf, ks)); g += 1
            gp.force('va', 63, 's_waitcnt lgkmcnt(0)')
        emit_stream(a, ms, gp, lq)
        if blk == 0: st(3)
    va, stt = epi(3)
    for nt in range(4):
        for x in va[nt]: a(x)
        a(stt[nt]())
    a('s_branch P_exit')
    a.label('P_ln')
    srd(a, SA, 32, 2048*896)
    srd(a, SB, 34, 8*896)
    X = 16
    U = 80
    a(f"""
    s_sub_u32 s22, s22, 28
    s_lshl_b32 s21, s21, 2
    s_add_u32 s21, s21, s22
    s_lshl_b32 s21, s21, 2
    s_add_u32 s21, s21, s20
    v_lshrrev_b32 v4, 2, v1
    v_and_b32 v5, 3, v1
    v_mul_u32_u24 v6, 896, v4
    v_lshl_add_u32 v6, v5, 4, v6
    s_mul_i32 s23, s21, {16*896}
    """)
    for kb in range(14):
        a(f'buffer_load_dwordx4 v[{X+4*kb}:{X+4*kb+3}], v6, s[{SA}:{SA+3}], s23 offen offset:{kb*64} {ldfl}')
    fill_boxes()
    l = a.newlabel('P_m0')
    a(f's_cmp_ge_u32 s21, 28\ns_cbranch_scc1 {l}')
    from team import img_addr
    img_addr(a, 8, 9, 1)
    a(f"""
    v_lshrrev_b32 v9, 4, v1
    v_mul_u32_u24 v9, {2*896}, v9
    v_and_b32 v7, 15, v1
    v_lshl_add_u32 v9, v7, 1, v9
    s_lshl_b32 s36, s21, 5
    buffer_load_ushort v200, v9, s[{SB}:{SB+3}], s36 offen
    buffer_load_ushort v201, v9, s[{SB}:{SB+3}], s36 offen offset:896
    s_lshr_b32 s36, s21, 2
    s_lshl_b32 s36, s36, 10
    s_and_b32 s37, s21, 3
    s_lshl_b32 s37, s37, 7
    s_add_u32 s36, s36, s37
    s_add_u32 s37, s36, {L.MB_Y}
    s_add_u32 s36, s36, {L.MB_M}
    s_waitcnt vmcnt(0)
    v_lshl_or_b32 v200, v201, 16, v200
    buffer_store_dword v200, v8, s[{WS}:{WS+3}], s36 offen
    buffer_store_dword v200, v8, s[{WS}:{WS+3}], s37 offen
{l}:
    s_waitcnt vmcnt(0)
    """)
    st(2)
    ln_rows(a, X, U, 56, 10, quadred)
    st(4)
    GS, KS = 288, 1152
    a(f"""
    s_mul_i32 s36, s20, {14*KS}
    v_mul_u32_u24 v7, {GS}, v5
    v_lshl_add_u32 v7, v4, 4, v7
    v_add_u32 v7, s36, v7
    v_lshlrev_b32 v3, 4, v1
    v_lshrrev_b32 v6, 4, v1
    v_mul_u32_u24 v6, {GS}, v6
    v_and_b32 v8, 15, v1
    v_lshl_add_u32 v8, v8, 4, v6
    v_add_u32 v8, s36, v8
    """)
    for kb in range(14):
        a(f'ds_write_b128 v7, v[{X+4*kb}:{X+4*kb+3}] offset:{kb*KS}')
    a(f"""
    s_mul_i32 s36, s21, 14336
    s_add_u32 s36, s36, {L.XN}
    """)
    st(3)
    for kb in range(14):
        a(f'ds_read_b128 v[{U+4*kb}:{U+4*kb+3}], v8 offset:{kb*KS}')
    for kb in range(14):
        if kb and kb % 4 == 0: a('s_add_u32 s36, s36, 4096')
        a(f's_waitcnt lgkmcnt({13-kb})')
        a(f'buffer_store_dwordx4 v[{U+4*kb}:{U+4*kb+3}], v3, s[{WS}:{WS+3}], s36 offen offset:{(kb%4)*1024} {stfl}')
    a.label('P_exit')
    if diag:
        a('s_cmp_ge_u32 s2, 256\ns_cbranch_scc1 P_exit2')
        st(5)
        a('s_waitcnt vmcnt(0)')
        st(6)
        a(f's_waitcnt lgkmcnt(0)\ns_lshl_b32 s36, s2, 2\ns_add_u32 s36, s36, s20\ns_lshl_b32 s36, s36, 6\ns_add_u32 s36, s36, {L.STAMP}\ns_mov_b64 exec, 1\nv_mov_b32 v3, 0')
        for k in range(7):
            a(f'v_mov_b32 v4, s{60+2*k}\nbuffer_store_dword v4, v3, s[{WS}:{WS+3}], s36 offen offset:{4*k}\ns_nop 1')
        a.label('P_exit2')
    a('s_endpgm')

def rnd_bf16(a, r, t):
    a(f'v_cvt_pk_bf16_f32 v{r}, v{r}, v{r}\nv_and_b32 v{r}, 0xffff0000, v{r}')

def quadred(a, x, t):
    a(f'v_add_f32_dpp v{x}, v{x}, v{x} quad_perm:[1,0,3,2] row_mask:0xf bank_mask:0xf')
    a(f'v_add_f32_dpp v{x}, v{x}, v{x} quad_perm:[2,3,0,1] row_mask:0xf bank_mask:0xf')

def ln_stats_finish(a, mu, rs, tt):
    rnd_bf16(a, rs, tt)
    a(f'v_add_f32 v{rs}, 0x3727c5ac, v{rs}')
    rnd_bf16(a, rs, tt)
    a(f'v_sqrt_f32 v{rs}, v{rs}')
    rnd_bf16(a, rs, tt)
    a(f'v_rcp_f32 v{rs}, v{rs}')
    rnd_bf16(a, mu, tt)

def ln_rows(a, X, U, n, t, red):
    s0, s1, d0, nm, rs = t, t+1, t+2, t+4, 76
    for i in range(n):
        a(f'v_lshlrev_b32 v{U+2*i}, 16, v{X+i}\nv_and_b32 v{U+2*i+1}, 0xffff0000, v{X+i}')
        if i == 1: a(f'v_pk_add_f32 v[{s0}:{s1}], v[{U}:{U+1}], v[{U+2}:{U+3}]')
        if i > 1: a(f'v_pk_add_f32 v[{s0}:{s1}], v[{s0}:{s1}], v[{U+2*i}:{U+2*i+1}]')
    a(f'v_add_f32 v{s0}, v{s0}, v{s1}')
    red(a, s0, d0)
    a(f'v_mul_f32 v{nm}, 0xbb124925, v{s0}\nv_mul_f32 v{nm+1}, 0xbb124925, v{s0}')
    for i in range(n):
        d = d0 if i & 1 else 72
        a(f'v_pk_add_f32 v[{d}:{d+1}], v[{U+2*i}:{U+2*i+1}], v[{nm}:{nm+1}]')
        if i == 0: a(f'v_pk_mul_f32 v[{s0}:{s1}], v[{d}:{d+1}], v[{d}:{d+1}]')
        else: a(f'v_pk_fma_f32 v[{s0}:{s1}], v[{d}:{d+1}], v[{d}:{d+1}], v[{s0}:{s1}]')
    a(f'v_add_f32 v{s0}, v{s0}, v{s1}')
    red(a, s0, d0)
    a(f'v_mul_f32 v{rs}, 0x3b124925, v{s0}')
    ln_stats_finish(a, nm, rs, d0)
    a(f'v_mov_b32 v{nm+1}, v{nm}\nv_mov_b32 v{rs+1}, v{rs}')
    for i in range(n):
        u = U+2*i
        a(f"""
        v_pk_add_f32 v[{u}:{u+1}], v[{u}:{u+1}], v[{nm}:{nm+1}]
        v_cvt_pk_bf16_f32 v{X+i}, v{u}, v{u+1}
        v_lshlrev_b32 v{u}, 16, v{X+i}
        v_and_b32 v{u+1}, 0xffff0000, v{X+i}
        v_pk_mul_f32 v[{u}:{u+1}], v[{u}:{u+1}], v[{rs}:{rs+1}]
        v_cvt_pk_bf16_f32 v{X+i}, v{u}, v{u+1}
        """)
```

```python
from asmlib import *
import layout as L

SENT = -1
S_WS = 8
S_DBG = 12
S_ROLE = 16
S_WAVE = 17
S_XCC = 18
S_STEP = 19
S_FAST = 20
S_MOFF = 21; S_POFF = 22; S_EOFF = 23; S_GOFF = 24; S_XOFF = 25; S_T0 = 26; S_T1 = 27; S_SPIN = 28; S_LIM = 29
S_EXEC = 30
S_STMP = 32
S_TM = 34
SPIN_MAX = 20000
NTEAM = 32

LDS_M = 0
LDS_T = 7168
LDS_FL = 14336
LDS_RED = 7168
LDS_BW = 16384
LDS_ROLE = 160*1024 - 16

def prologue(a, stamps, pool_off=0):
    a(f'''
    s_cmp_ge_u32 s2, 256
    s_cbranch_scc1 L_exit
    s_load_dwordx2 s[4:5], s[0:1], 96
    s_load_dwordx2 s[6:7], s[0:1], 88
    s_getreg_b32 s{S_XCC}, hwreg(HW_REG_XCC_ID, 0, 4)
    v_lshrrev_b32 v2, 6, v0
    v_and_b32 v1, 63, v0
    v_readfirstlane_b32 s{S_WAVE}, v2
    s_and_b32 s{S_XCC}, s{S_XCC}, 7
    s_waitcnt lgkmcnt(0)
    s_mov_b32 s{S_WS}, s4
    s_and_b32 s{S_WS+1}, s5, 0xffff
    s_mov_b32 s{S_WS+2}, {L.WS_BYTES}
    s_mov_b32 s{S_WS+3}, 0x20000
    s_mov_b32 s{S_DBG}, s6
    s_and_b32 s{S_DBG+1}, s7, 0xffff
    s_mov_b32 s{S_DBG+2}, 256
    s_mov_b32 s{S_DBG+3}, 0x20000
    v_mov_b32 v4, {LDS_ROLE}
    s_cmp_lg_u32 s{S_WAVE}, 0
    s_cbranch_scc1 L_role_wait
    s_mov_b64 exec, 1
    s_mov_b32 s{S_T0}, 0
L_role_try:
    s_add_u32 s{S_T1}, s{S_XCC}, s{S_T0}
    s_and_b32 s{S_T1}, s{S_T1}, 7
    s_lshl_b32 s{S_ROLE}, s{S_T1}, 7
    s_add_u32 s{S_ROLE}, s{S_ROLE}, {L.CNT_P + pool_off}
    v_mov_b32 v2, s{S_ROLE}
    v_mov_b32 v3, 1
    buffer_atomic_add v3, v2, s[{S_WS}:{S_WS+3}], 0 offen sc0
    s_waitcnt vmcnt(0)
    v_readfirstlane_b32 s{S_ROLE}, v3
    s_cmp_lt_u32 s{S_ROLE}, 32
    s_cbranch_scc1 L_role_got
    s_add_u32 s{S_T0}, s{S_T0}, 1
    s_cmp_lt_u32 s{S_T0}, 8
    s_cbranch_scc1 L_role_try
    s_mov_b32 s{S_ROLE}, 31
    s_mov_b32 s{S_T1}, 0
L_role_got:
    s_lshl_b32 s{S_T1}, s{S_T1}, 5
    s_add_u32 s{S_ROLE}, s{S_ROLE}, s{S_T1}
    v_mov_b32 v2, s{S_ROLE}
    ds_write_b32 v4, v2
    s_mov_b64 exec, -1
    s_waitcnt lgkmcnt(0)
L_role_wait:
    s_barrier
    ds_read_b32 v2, v4
    s_waitcnt lgkmcnt(0)
    v_readfirstlane_b32 s{S_ROLE}, v2
    ''')

def team_register(a):
    l = a.newlabel('L_reg')
    a(f'''
    s_cmp_lg_u32 s{S_WAVE}, 0
    s_cbranch_scc1 {l}
    s_cmp_eq_u32 s{S_XCC}, 0
    s_cselect_b32 s{S_T0}, 1, 0x10001
    s_mov_b64 exec, 1
    v_mov_b32 v2, 64
    v_mov_b32 v3, s{S_T0}
    buffer_atomic_add v3, v2, s[{S_DBG}:{S_DBG+3}], 0 offen
    s_mov_b64 exec, -1
{l}:
    ''')

def team_mode(a, vt0, vt1):
    l = a.newlabel('L_mode'); d = a.newlabel('L_moded')
    a(f'''
    s_mov_b32 s{S_SPIN}, 0
    v_mov_b32 v{vt0}, 64
{l}:
    buffer_load_dword v{vt1}, v{vt0}, s[{S_DBG}:{S_DBG+3}], 0 offen sc1
    s_waitcnt vmcnt(0)
    v_readfirstlane_b32 s{S_T0}, v{vt1}
    s_and_b32 s{S_T1}, s{S_T0}, 0xffff
    s_cmp_ge_u32 s{S_T1}, {NTEAM}
    s_cbranch_scc1 {d}
    s_sleep 2
    s_add_u32 s{S_SPIN}, s{S_SPIN}, 1
    s_cmp_lt_u32 s{S_SPIN}, {SPIN_MAX}
    s_cbranch_scc1 {l}
    s_mov_b32 s{S_T0}, 0x10000
{d}:
    s_lshr_b32 s{S_T0}, s{S_T0}, 16
    s_cmp_eq_u32 s{S_T0}, 0
    s_cselect_b32 s{S_FAST}, 1, 0
    s_mov_b32 s{S_LIM}, {SPIN_MAX}
    ''')

def stamp(a, stamps, idx, vt=None):
    if not stamps: return
    a(f's_memtime s[{40+2*idx}:{41+2*idx}]')
    if idx == 2: a('s_memrealtime s[60:61]')

def stamp_flush(a, stamps, n, vt):
    if not stamps: return
    a('s_waitcnt lgkmcnt(0)')
    for k in range(n):
        a(f'v_writelane_b32 v{vt}, s{40+2*k}, {k}')
    a(f"""
    v_lshrrev_b32 v{vt+1}, 1, v0
    s_mov_b64 exec, {(1 << n) - 1}
    buffer_store_dword v{vt}, v{vt+1}, s[{S_WS}:{S_WS+3}], s{S_STMP} offen
    s_mov_b64 exec, -1
    """)

def wreg(wb, vbase):
    return ar(8*wb, 8) if wb < 32 else vr(vbase + 8*(wb-32), 8)
def wreg_half(wb, vbase, half):
    return ar(8*wb + 4*half, 4) if wb < 32 else vr(vbase + 8*(wb-32) + 4*half, 4)

def xlane4(a, op, x, t):
    a(f'''
    v_mov_b32 v{t}, v{x}
    v_permlane16_swap_b32 v{x}, v{t}
    {op} v{x}, v{x}, v{t}
    v_mov_b32 v{t}, v{x}
    v_permlane32_swap_b32 v{x}, v{t}
    {op} v{x}, v{x}, v{t}
    ''')

QP = 'quad_perm:[2,3,0,1] row_mask:0xf bank_mask:0xf'

def read_mf(a, V):
    for b in range(7):
        a(f"ds_read_b64_tr_b16 v[{V['mf']+4*b}:{V['mf']+4*b+1}], v{V['l8']} offset:{LDS_M+b*1024}")
        a(f"ds_read_b64_tr_b16 v[{V['mf']+4*b+2}:{V['mf']+4*b+3}], v{V['l8']} offset:{LDS_M+b*1024+512}")

def SM(acc, A, B, idx):
    return f'v_smfmac_f32_16x16x64_bf16 v[{acc}:{acc+3}], v[{A}:{A+3}], {B}, v{idx}'


class Q:
    def __init__(self, name, cap):
        self.name = name; self.n = 0; self.tags = {}; self.done = 0; self.cap = cap
    def issue(self, tag=None):
        self.n += 1
        if tag is not None: self.tags[tag] = self.n
    def wait(self, tag):
        k = self.tags[tag]
        if k <= self.done: return ''
        self.done = k
        return 's_waitcnt %s(%d)' % (self.name, min(self.n - k, self.cap))
    def drain(self):
        self.done = self.n
        return 's_waitcnt %s(0)' % self.name

WSRD = f's[{S_WS}:{S_WS+3}]'

def poll_m(a, V, sleep=0):
    t = V['mf']; pa = V['pa']
    l = a.newlabel('L_pm'); d = a.newlabel('L_pmd')
    a(f"""
    s_mov_b32 s{S_SPIN}, 0
{l}:
    buffer_load_dwordx4 v[{t}:{t+3}], v{pa}, {WSRD}, s{S_MOFF} offen sc1
    buffer_load_dwordx4 v[{t+4}:{t+7}], v{pa}, {WSRD}, s{S_MOFF} offen offset:768 sc1
    s_add_u32 s{S_SPIN}, s{S_SPIN}, 1
    s_waitcnt vmcnt(1)
    ds_write_b128 v{pa}, v[{t}:{t+3}]
    v_max3_u32 v{t+8}, v{t}, v{t+1}, v{t+2}
    s_waitcnt vmcnt(0)
    ds_write_b128 v{pa}, v[{t+4}:{t+7}] offset:768
    v_max3_u32 v{t+8}, v{t+8}, v{t+3}, v{t+4}
    v_max3_u32 v{t+8}, v{t+8}, v{t+5}, v{t+6}
    v_max_u32 v{t+8}, v{t+8}, v{t+7}
    v_cmp_eq_u32 vcc, -1, v{t+8}
    s_cbranch_vccz {d}
    {'s_sleep %d' % sleep if sleep else ''}
    s_cmp_lt_u32 s{S_SPIN}, s{S_LIM}
    s_cbranch_scc1 {l}
    s_mov_b32 s{S_LIM}, 1
{d}:
    s_waitcnt lgkmcnt(0)
    s_barrier
    """)

def poll_m2(a, V, gap, x):
    pa = V['pa']; sets = (V['acc']+8, V['acc']+16)
    l = a.newlabel('L_pm'); d = a.newlabel('L_pmd')
    def issue(t):
        a(f"""
        buffer_load_dwordx4 v[{t}:{t+3}], v{pa}, {WSRD}, s{S_MOFF} offen sc1
        buffer_load_dwordx4 v[{t+4}:{t+7}], v{pa}, {WSRD}, s{S_MOFF} offen offset:768 sc1
        """)
    def check(t):
        a(f"""
        s_add_u32 s{S_SPIN}, s{S_SPIN}, 1
        s_waitcnt vmcnt(3)
        ds_write_b128 v{pa}, v[{t}:{t+3}]
        v_max3_u32 v{x}, v{t}, v{t+1}, v{t+2}
        s_waitcnt vmcnt(2)
        ds_write_b128 v{pa}, v[{t+4}:{t+7}] offset:768
        v_max3_u32 v{x}, v{x}, v{t+3}, v{t+4}
        v_max3_u32 v{x}, v{x}, v{t+5}, v{t+6}
        v_max_u32 v{x}, v{x}, v{t+7}
        v_cmp_eq_u32 vcc, -1, v{x}
        s_cbranch_vccz {d}
        """)
    a(f's_mov_b32 s{S_SPIN}, 0')
    issue(sets[0])
    while gap > 0:
        a(f's_nop {min(gap, 16) - 1}'); gap -= 16
    a.label(l)
    issue(sets[1]); check(sets[0])
    issue(sets[0]); check(sets[1])
    a(f"""
    s_cmp_lt_u32 s{S_SPIN}, s{S_LIM}
    s_cbranch_scc1 {l}
    s_mov_b32 s{S_LIM}, 1
{d}:
    s_waitcnt lgkmcnt(0)
    s_barrier
    """)

def wait_hint(a, vaddr, soff, regs, imm=0, delay=0, gap=12, inner=8, fill=None):
    n = len(regs)
    l = a.newlabel('L_h'); d = a.newlabel('L_hd')
    ld = lambda r: f'buffer_load_dword v{r}, v{vaddr}, {WSRD}, s{soff} offen offset:{imm} sc1'
    a(f's_mov_b32 s{S_SPIN}, 0')
    fill = list(fill or [])
    per = -(-len(fill) // (n-1))
    for k in range(n-1):
        a(ld(regs[k]))
        for x in fill[k*per:(k+1)*per]: a(x)
        if per < gap: a(f's_nop {gap - per}')
    a.label(l)
    for k in range(n):
        a(f"""
        {ld(regs[(k+n-1) % n])}
        s_waitcnt vmcnt({n-1})
        v_cmp_eq_u32 vcc, -1, v{regs[k]}
        s_cbranch_vccz {d}
        s_nop {inner}
        """)
    a(f"""
    s_add_u32 s{S_SPIN}, s{S_SPIN}, 1
    s_cmp_lt_u32 s{S_SPIN}, s{S_LIM}
    s_cbranch_scc1 {l}
{d}:
    """)
    while delay > 0:
        a(f's_nop {min(delay, 16) - 1}'); delay -= 16

def wait_cnt(a, off_sgpr, target, vt, sleep=4):
    l = a.newlabel('L_wc'); d = a.newlabel('L_wcd')
    a(f"""
    s_mov_b32 s{S_SPIN}, 0
    v_mov_b32 v{vt}, 0
{l}:
    buffer_load_dword v{vt+1}, v{vt}, {WSRD}, s{off_sgpr} offen sc1
    s_add_u32 s{S_SPIN}, s{S_SPIN}, 1
    s_waitcnt vmcnt(0)
    v_readfirstlane_b32 s{S_T0}, v{vt+1}
    s_cmp_ge_u32 s{S_T0}, {target}
    s_cbranch_scc1 {d}
    s_sleep {sleep}
    s_cmp_lt_u32 s{S_SPIN}, s{S_LIM}
    s_cbranch_scc1 {l}
    s_mov_b32 s{S_LIM}, 1
{d}:
    """)

def img_addr(a, dst, t, lane):
    a(f"""
    v_bfe_u32 v{dst}, v{lane}, 3, 1
    v_lshlrev_b32 v{dst}, 9, v{dst}
    v_bfe_u32 v{t}, v{lane}, 2, 1
    v_lshl_add_u32 v{dst}, v{t}, 6, v{dst}
    v_and_b32 v{t}, 1, v{lane}
    v_lshl_add_u32 v{dst}, v{t}, 5, v{dst}
    v_lshrrev_b32 v{t}, 4, v{lane}
    v_lshl_add_u32 v{dst}, v{t}, 3, v{dst}
    v_bfe_u32 v{t}, v{lane}, 1, 1
    v_lshl_add_u32 v{dst}, v{t}, 2, v{dst}
    """)

def common_addrs(a, V, LN):
    a(f"""
    v_lshlrev_b32 v{V['l8']}, 3, v{LN}
    s_mul_i32 s{S_T0}, s{S_WAVE}, {112*16}
    v_lshlrev_b32 v{V['pa']}, 4, v{LN}
    v_add_u32 v{V['pa']}, s{S_T0}, v{V['pa']}
    v_and_b32 v{LN+1}, 2, v{LN}
    v_cmp_ne_u32 vcc, 0, v{LN+1}
    v_mov_b32 v{LN+1}, 0x4444
    v_mov_b32 v{LN+2}, 0xeeee
    v_cndmask_b32 v{V['idx']}, v{LN+1}, v{LN+2}, vcc
    """)

def load_1k_run(a, dsts, vaddr, sbase, flags='', budget=None):
    for i, d in enumerate(dsts):
        if i and i % 4 == 0:
            a(f's_add_u32 s{sbase}, s{sbase}, 4096')
        a(f'buffer_load_dwordx4 {d}, v{vaddr}, {WSRD}, s{sbase} offen offset:{(i%4)*1024} {flags}')
        if budget is not None:
            budget[0] += 1
            if budget[0] >= 56:
                a('s_waitcnt vmcnt(28)'); budget[0] = 28

class Gaps:
    def __init__(self, n):
        self.ds = [[] for _ in range(n)]; self.va = [[] for _ in range(n)]; self.pre = [[] for _ in range(n)]
        self.n = n
    def put(self, kind, g, text, excl=False):
        while g < self.n - 1:
            if excl:
                if not self.ds[g] and not self.va[g]: break
            else:
                lst = self.ds[g] if kind == 'ds' else self.va[g]
                other = self.va[g] if kind == 'ds' else self.ds[g]
                if not lst and not (other and other[-1][1]): break
            g += 1
        (self.ds if kind == 'ds' else self.va)[g].append((text, excl))
        return g
    def force(self, kind, g, text):
        (self.ds if kind == 'ds' else self.va)[min(g, self.n-1)].append((text, False))

def emit_stream(a, mf, gp, lq, pre=None):
    for i, (m, tags) in enumerate(mf):
        for tg in tags:
            w = lq.wait(tg)
            if w: a(w)
        a(m)
        for lst in (gp.ds[i], gp.va[i]):
            for x, _ in lst:
                t = x(lq) if callable(x) else x
                if t: a(t)

def dsop(text, tag=None):
    def f(lq):
        lq.issue(tag); return text
    return f
def dswait(tag, then=''):
    def f(lq):
        return lq.wait(tag) + '\n' + then
    return f

SV = dict(l8=0, pa=1, idx=2, k1=3, mf=12, acc=40, w=64)
def tile_of(w, u):
    if u < 5: return (u, w)
    order = {(0, 5): (5, 0), (1, 5): (5, 1), (2, 5): (5, 2), (2, 6): (5, 3), (0, 6): (6, 0), (1, 6): (6, 1), (0, 7): (6, 2), (1, 7): (6, 3)}
    return order[(w, u)]
NUNIT = [8, 8, 7, 5]
F = dict(l16=4, px=5, pm=6, mk0=7, mk1=8, mk2=9, wz=10, xf=88, tf=200, sa=228, t=240)

def score_setup(a, stamps, cfg):
    V = SV; LN = 44
    a(f'v_mov_b32 v{LN}, v1')
    team_register(a)
    common_addrs(a, V, LN)
    img_addr(a, V['k1'], LN+1, LN)
    g, cc, par, ib, t = LN+1, LN+2, LN+3, LN+4, LN+5
    a(f"""
    v_lshlrev_b32 v{F['l16']}, 4, v{LN}
    v_lshrrev_b32 v{g}, 4, v{LN}
    v_bfe_u32 v{cc}, v{LN}, 2, 2
    v_bfe_u32 v{par}, v{LN}, 1, 1
    v_and_b32 v{ib}, 1, v{LN}
    v_and_b32 v{t}, 15, v{LN}
    v_lshlrev_b32 v{F['px']}, 4, v{t}
    v_lshrrev_b32 v{t}, 1, v{g}
    v_lshl_add_u32 v{F['px']}, v{t}, 8, v{F['px']}
    v_and_b32 v{t}, 1, v{g}
    v_lshl_add_u32 v{F['px']}, v{t}, 3, v{F['px']}
    s_and_b32 s{S_T0}, s{S_ROLE}, 1
    s_lshl_b32 s{S_T0}, s{S_T0}, 5
    s_lshr_b32 s{S_T1}, s{S_ROLE}, 1
    s_lshl_b32 s{S_T1}, s{S_T1}, 9
    s_add_u32 s{S_T0}, s{S_T0}, s{S_T1}
    s_add_u32 s{S_T0}, s{S_T0}, 8192
    v_and_b32 v{F['pm']}, 0xffffffdf, v{F['px']}
    v_add_u32 v{F['pm']}, s{S_T0}, v{F['pm']}
    s_lshl_b32 s{S_T0}, s{S_ROLE}, 9
    v_add_u32 v{F['px']}, s{S_T0}, v{F['px']}
    v_lshlrev_b32 v{t}, 4, v{ib}
    v_mov_b32 v{F['mk2']}, 0xffff
    v_lshlrev_b32 v{F['mk2']}, v{t}, v{F['mk2']}
    v_cmp_eq_u32 vcc, v{cc}, v{g}
    v_mov_b32 v{t}, 0
    v_cndmask_b32 v{F['mk2']}, v{t}, v{F['mk2']}, vcc
    v_cmp_eq_u32 vcc, 0, v{par}
    v_mov_b32 v{t+1}, 0xff800000
    v_cndmask_b32 v{F['mk0']}, v{t}, v{F['mk2']}, vcc
    v_cndmask_b32 v{F['mk1']}, v{F['mk2']}, v{t}, vcc
    v_cndmask_b32 v{F['wz']}, v{t+1}, v{t}, vcc
    s_mul_i32 s{S_T1}, s{S_ROLE}, {28*14336}
    s_add_u32 s{S_T1}, s{S_T1}, {L.WT}
    """)
    done = a.newlabel('L_sw')
    for w in range(4):
        nx = a.newlabel('L_swn')
        if w < 3: a(f's_cmp_lg_u32 s{S_WAVE}, {w}\ns_cbranch_scc1 {nx}')
        bud = [0]
        for u in range(NUNIT[w]):
            b, ga = tile_of(w, u)
            a(f's_add_u32 s{S_T0}, s{S_T1}, {(4*b+ga)*14336}')
            load_1k_run(a, [wreg_half(u*7 + k//2, V['w'], k % 2) for k in range(14)], F['l16'], S_T0, cfg['wfl'], budget=bud)
        if w < 3: a(f's_branch {done}\n{nx}:')
    a(f"""
{done}:
    s_mov_b32 s{S_STEP}, 0
    s_mov_b32 s{S_MOFF}, {L.MB_M}
    s_mov_b32 s{S_POFF}, {L.MB_P}
    s_mov_b32 s{S_GOFF}, {L.XN}
    s_lshl_b32 s{S_STMP}, s{S_ROLE}, 2
    s_add_u32 s{S_STMP}, s{S_STMP}, s{S_WAVE}
    s_lshl_b32 s{S_STMP}, s{S_STMP}, 12
    s_add_u32 s{S_STMP}, s{S_STMP}, {L.STAMP}
    s_waitcnt vmcnt(0)
    """)
    team_mode(a, V['mf'], V['mf']+1)

def step_advance(a, gstride, xstride=114688):
    a(f"""
    s_add_u32 s{S_STEP}, s{S_STEP}, 1
    s_add_u32 s{S_MOFF}, s{S_MOFF}, 8192
    s_add_u32 s{S_POFF}, s{S_POFF}, 16384
    s_add_u32 s{S_GOFF}, s{S_GOFF}, {gstride}
    s_add_u32 s{S_XOFF}, s{S_XOFF}, {xstride}
    s_add_u32 s{S_STMP}, s{S_STMP}, 64
    """)

def rowred(a, op, x):
    for m in ('row_ror:8', 'row_ror:4', 'row_ror:2', 'row_ror:1'):
        for r in (x, x+1):
            a(f'{op}_dpp v{r}, v{r}, v{r} {m} row_mask:0xf bank_mask:0xf')

def score_wave(a, w, pf, stamps, cfg):
    V = SV; idx = V['idx']; mf = V['mf']
    top = a.newlabel(f'L_sc{w}_top'); first = a.newlabel(f'L_sc{w}_first')
    nunit = NUNIT[w]
    accof = lambda u: V['acc'] + 4*(u % 6)
    ST = (lambda k: f's_memtime s[{40+2*k}:{41+2*k}]') if stamps else (lambda k: '')
    xf, tf, sa, T = F['xf'], F['tf'], F['sa'], F['t']
    FA, FV = 8, 9
    HA = 11
    HT = ([5, 6, 7, 10] if w < 3 else [T+4, T+5, T+6, T+7])[:cfg['hdepth']]
    def load_x():
        a(f's_mov_b32 s{S_T0}, s{S_GOFF}')
        load_1k_run(a, [vr(xf + 4*k, 4) for k in range(28)], F['l16'], S_T0)
    def zero_acc():
        for u in range(2 if cfg['m2'] else min(6, nunit)):
            a(f'v_mov_b64 v[{accof(u)}:{accof(u)+1}], 0\nv_mov_b64 v[{accof(u)+2}:{accof(u)+3}], 0')
        if w == 3:
            for k in range(4): a(f'v_mov_b64 v[{sa+2*k}:{sa+2*k+1}], 0')
            a(f"v_mov_b32 v{sa+8}, v{F['wz']}\nv_mov_b32 v{sa+9}, v{F['wz']}\nv_mov_b64 v[{sa+10}:{sa+11}], 0")
    a(f"v_lshrrev_b32 v{HA}, 1, v{V['l8']}\nv_min_u32 v{HA}, {55*4}, v{HA}\ns_and_b32 s{S_T0}, s{S_ROLE}, 3\ns_lshl_b32 s{S_T0}, s{S_T0}, 8\ns_add_u32 s{S_T0}, s{S_T0}, 7168\nv_add_u32 v{HA}, s{S_T0}, v{HA}")
    if w == 3:
        load_x()
        a(f's_mov_b32 s{S_EOFF}, 0\ns_lshl_b32 s{S_T0}, s{S_ROLE}, 2\ns_add_u32 s{S_T0}, s{S_T0}, 12288\nv_lshlrev_b32 v{T+14}, 4, v0\nv_add_u32 v{T+14}, s{S_T0}, v{T+14}\nv_mov_b32 v{T+15}, 0')
    else:
        a(f"v_add_u32 v{FA}, {LDS_FL + 4*w}, v{F['l16']}\nv_mov_b32 v{FV}, 0")
        for k in range(4): a(f'ds_write_b32 v{FA}, v{FV} offset:{k*1024}')
        a(f's_lshl_b32 s{S_T0}, s{S_ROLE}, 2\ns_add_u32 s{S_T0}, s{S_T0}, 12288\nv_lshlrev_b32 v4, 4, v0\nv_add_u32 v4, s{S_T0}, v4')
    zero_acc()
    if cfg.get('wgd'): a('s_memrealtime s[88:89]')
    a(f's_branch {first}')
    a.label(top)
    zero_acc()
    stamp(a, stamps, 0)
    if not cfg['cutrig'] or w == 0: wait_hint(a, HA, S_MOFF, HT, delay=cfg['mdelay'], inner=cfg['hinner'])
    if cfg['cutrig']: a('s_barrier')
    a.label(first)
    a(f'v_add_u32 v{FV}, 1, v{FV}' if w < 3 else f's_add_u32 s{S_EOFF}, s{S_EOFF}, 1')
    a(ST(9))
    if cfg['m2']: poll_m2(a, V, cfg['m2'], mf)
    else: poll_m(a, V)
    stamp(a, stamps, 1)
    if stamps and w < 3: a(f's_mov_b32 s{40+2*7}, s{S_SPIN}')
    lq = Q('lgkmcnt', 15)
    mrd = [dsop(f"ds_read_b64_tr_b16 v[{mf+4*b+2*hf}:{mf+4*b+2*hf+1}], v{V['l8']} offset:{LDS_M+b*1024+hf*512}", ('mf', b))
           for b in range(7) for hf in range(2)]
    for x in mrd[:cfg['mpre']]: a(x(lq))
    order = [(u, b) for b in range(7) for u in range(2)] + [(u, b) for u in range(2, nunit) for b in range(7)]
    ms = [(SM(accof(u), mf+4*b, wreg(u*7 + b, V['w']), idx), [('mf', b)] if u == 0 else []) for u, b in order]
    last = {u: i for i, (u, b) in enumerate(order)}
    def smfma(b):
        t4 = tf + 4*b
        return [(f"v_mfma_f32_16x16x32_bf16 v[{sa+8}:{sa+11}], v[{t4}:{t4+3}], v[{mf+4*b}:{mf+4*b+3}], " + f'v[{sa+8}:{sa+11}]', [('tf', b)]),
                (SM(sa, t4, vr(xf + 8*b, 8), idx), []),
                (SM(sa+4, t4, vr(xf + 56 + 8*b, 8), idx), [])]
    def tread(b, hf):
        return dsop(f"ds_read_b64_tr_b16 v[{tf+4*b+2*hf}:{tf+4*b+2*hf+1}], v{V['l8']} offset:{LDS_T+b*1024+hf*512}", ('tf', b))
    phases = [(0, 1, 2), (3, 4)]
    starts = []
    if w == 3:
        for ph in phases:
            starts.append(len(ms))
            for b in ph: ms += smfma(b)
    n = len(ms)
    gp = Gaps(n)
    for k, x in enumerate(mrd[cfg['mpre']:]): gp.put('ds', k, x)
    flag_after = {2, 4} | ({5} if w < 2 else {6})
    def post(u):
        A = accof(u); b, ga = tile_of(w, u)
        va = [f'v_add_f32 v{A}, v{A}, v{A+2}', f'v_add_f32 v{A+1}, v{A+1}, v{A+3}', f'v_cvt_pk_bf16_f32 v{A}, v{A}, v{A+1}']
        ds = [dsop(f"ds_write_b32 v{V['k1']}, v{A} offset:{LDS_T+b*1024+ga*128}", ('k', u))]
        if w < 3 and u in flag_after:
            ds.append(dsop(f'ds_write_b32 v{FA}, v{FV} offset:{sorted(flag_after).index(u)*1024}'))
        return va, ds
    g = 0
    done_at = {}
    for u in range(nunit - (0 if w == 3 else 1)):
        va, ds = post(u)
        g = max(g, last[u] + 3 - (len(va) - 3))
        for x in va: g = gp.put('va', g, x) + 1
        for x in ds: g = gp.put('ds', g, x, excl=True) + 1
        done_at[u] = g
    def zero_in_gaps(u, g):
        A = accof(u)
        for k in range(2):
            gg = g
            while gg < 7*u - 2 and (gp.va[gg] or (gp.ds[gg] and gp.ds[gg][-1][1])): gg += 1
            if gg >= 7*u - 2: gg = max(g, 7*u - 4 + k)
            gp.force('va', gg, f'v_mov_b64 v[{A+2*k}:{A+2*k+1}], 0')
    if cfg['m2']:
        gp.force('ds', cfg['m2w'], 's_waitcnt vmcnt(0)')
        for u in range(2, min(6, nunit)): zero_in_gaps(u, cfg['m2w'])
    for u in range(6, nunit): zero_in_gaps(u, done_at[u-6] + 1)
    if w == 3:
        for pi, ph in enumerate(phases):
            flagrd = f"ds_read_b128 v[{T}:{T+3}], v{F['l16']} offset:{LDS_FL + pi*1024}"
            lead = cfg['lead'][pi]
            g = max(starts[pi] - lead, done_at[max(ph)] if max(ph) < 5 else 0)
            g = min(g, starts[pi]-1)
            gp.force('ds', g, dsop(flagrd, ('fl', pi)))
            ops = [tread(b, hf) for b in ph for hf in range(2)]
            for k, x in enumerate(ops):
                gp.force('ds', min(g + (k+1)//2, starts[pi]-1), x)
            slow = a.newlabel('L_fls'); back = a.newlabel('L_flb')
            def chk(lq, pi=pi, slow=slow, back=back):
                return (lq.wait(('fl', pi)) + f"""
                v_min3_u32 v{T}, v{T}, v{T+1}, v{T+2}
                v_cmp_gt_u32 vcc, s{S_EOFF}, v{T}
                s_cbranch_vccnz {slow};nf
{back}:;nf
                """ + ST(5+pi))
            gp.force('va', starts[pi]-1, chk)
            def cold(ph=ph, slow=slow, back=back, flagrd=flagrd):
                q = Q('lgkmcnt', 15)
                lp = a.newlabel('L_flp')
                a(f'{slow}:\ns_mov_b32 s{S_SPIN}, 0\n{lp}:')
                a(flagrd)
                for b in ph:
                    for hf in range(2): a(tread(b, hf)(q))
                a(f"""
                s_add_u32 s{S_SPIN}, s{S_SPIN}, 1
                s_waitcnt lgkmcnt(0)
                v_min3_u32 v{T}, v{T}, v{T+1}, v{T+2}
                v_cmp_gt_u32 vcc, s{S_EOFF}, v{T}
                s_cbranch_vccz {back}
                s_cmp_lt_u32 s{S_SPIN}, {SPIN_MAX}
                s_cbranch_scc1 {lp}
                s_branch {back}
                """)
            a.cold.append(cold)
    if w == 0 and cfg['phint'] < 0:
        gp.force('ds', n - 1 + cfg['phint'], f"""s_mov_b64 exec, 15
            buffer_store_dword v{FV}, v4, {WSRD}, s{S_POFF} offen {pf}
            s_mov_b64 exec, -1""")
    emit_stream(a, ms, gp, lq)
    hint = f"""s_mov_b64 exec, 15
        buffer_store_dword v{T+15}, v{T+14}, {WSRD}, s{S_POFF} offen {pf}
        s_mov_b64 exec, -1"""
    if w < 3:
        va, ds = post(nunit-1)
        for x in va: a(x)
        for x in ds: a(x(lq))
        a(lq.drain())
        stamp(a, stamps, 2)
        a('s_barrier')
    else:
        s = T
        mx = T+6; z = T+8; EA = tf; B1 = tf+4; B2 = tf+8; D1 = tf+12; D2 = tf+16; rz = T+10
        a(f"""
        v_mov_b64 v[{B1+2}:{B1+3}], 0
        v_mov_b64 v[{B2}:{B2+1}], 0
        v_mov_b32 v{B2+3}, 0
        v_mov_b32 v{EA+3}, 0
        """)
        for _ in range(cfg['b5nop']): a('s_nop 3')
        q = Q('lgkmcnt', 15)
        a(f"ds_read_b128 v[{T}:{T+3}], v{F['l16']} offset:{LDS_FL + 2048}"); q.issue('fl')
        for hf in range(2): a(tread(5, hf)(q))
        stamp(a, stamps, 2)
        a('s_barrier')
        stamp(a, stamps, 3)
        for hf in range(2): a(tread(6, hf)(q))
        slow = a.newlabel('L_b5s'); back = a.newlabel('L_b5b')
        a(q.wait('fl') + f"""
        v_min3_u32 v{T}, v{T}, v{T+1}, v{T+2}
        v_cmp_gt_u32 vcc, s{S_EOFF}, v{T}
        s_cbranch_vccnz {slow};nf
{back}:;nf
        """)
        def cold5(slow=slow, back=back):
            q2 = Q('lgkmcnt', 15)
            a(f'{slow}:\ns_waitcnt lgkmcnt(0)')
            for hf in range(2): a(tread(5, hf)(q2))
            a(f's_waitcnt lgkmcnt(0)\ns_branch {back}')
        a.cold.append(cold5)
        if cfg['phint'] == 0: a(hint)
        for b in (5, 6):
            for m, tags in smfma(b):
                for tg in tags: a(q.wait(tg))
                a(m)
        a(ST(7))
        if cfg['phint'] == 1: a(hint)
        e = sa
        redo = a.newlabel('L_smr'); slowmx = a.newlabel('L_sms'); go = a.newlabel('L_smg')
        a(f"""
        s_mov_b32 s{S_T1}, 0
        v_add_f32_dpp v{s+4}, v{sa+10}, v{sa+8} {QP}
        v_add_f32_dpp v{s+5}, v{sa+11}, v{sa+9} {QP}
        v_pk_add_f32 v[{s}:{s+1}], v[{sa}:{sa+1}], v[{sa+2}:{sa+3}]
        v_exp_f32 v{e+8}, v{s+4}
        v_exp_f32 v{e+9}, v{s+5}
        v_pk_add_f32 v[{s+2}:{s+3}], v[{sa+4}:{sa+5}], v[{sa+6}:{sa+7}]
        v_exp_f32 v{e}, v{s}
        v_exp_f32 v{e+1}, v{s+1}
        v_exp_f32 v{e+2}, v{s+2}
        v_exp_f32 v{e+3}, v{s+3}
{redo}:;nf
        v_pk_add_f32 v[{z}:{z+1}], v[{e}:{e+1}], v[{e+8}:{e+9}]
        v_cvt_pk_bf16_f32 v{EA+2}, v{e+8}, v{e+9}
        v_pk_add_f32 v[{z}:{z+1}], v[{z}:{z+1}], v[{e+2}:{e+3}]
        """)
        if cfg['phint'] == 2: a(hint)
        fill = [f'v_cvt_pk_bf16_f32 v{EA+k}, v{e+2*k}, v{e+2*k+1}' for k in range(2)]
        for m in ('row_ror:8', 'row_ror:4', 'row_ror:2', 'row_ror:1'):
            if fill: a(fill.pop(0))
            for r in (z, z+1):
                a(f'v_add_f32_dpp v{r}, v{r}, v{r} {m} row_mask:0xf bank_mask:0xf')
        LO, HI = (127-60) << 23, (127+60) << 23
        a(ST(8))
        a(f"""
        v_rcp_f32 v{mx}, v{z}
        v_rcp_f32 v{mx+1}, v{z+1}
        v_subrev_u32 v{z}, {LO}, v{z}
        v_cvt_pk_bf16_f32 v{rz}, v{mx}, v{mx+1}
        v_and_b32 v{B1}, v{rz}, v{F['mk0']}
        v_and_b32 v{B1+1}, v{rz}, v{F['mk1']}
        v_and_b32 v{B2+2}, v{rz}, v{F['mk2']}
        v_subrev_u32 v{z+1}, {LO}, v{z+1}
        v_mfma_f32_16x16x32_bf16 v[{D1}:{D1+3}], v[{EA}:{EA+3}], v[{B1}:{B1+3}], 0
        v_mfma_f32_16x16x32_bf16 v[{D2}:{D2+3}], v[{EA}:{EA+3}], v[{B2}:{B2+3}], 0
        v_max_u32 v{z}, v{z}, v{z+1}
        v_cmp_lt_u32 vcc, {HI-LO}, v{z}
        s_cbranch_vccnz {slowmx};nf
{go}:;nf
        v_cvt_pk_bf16_f32 v{D1}, v{D1}, v{D1+1}
        v_cvt_pk_bf16_f32 v{D1+1}, v{D1+2}, v{D1+3}
        buffer_store_dwordx2 v[{D1}:{D1+1}], v{F['px']}, {WSRD}, s{S_POFF} offen {pf}
        v_cvt_pk_bf16_f32 v{D2}, v{D2}, v{D2+1}
        v_cvt_pk_bf16_f32 v{D2+1}, v{D2+2}, v{D2+3}
        buffer_store_dwordx2 v[{D2}:{D2+1}], v{F['pm']}, {WSRD}, s{S_POFF} offen {pf}
        """)
        def coldmx():
            a(f"""
{slowmx}:
            s_nop 7
            s_cmp_lg_u32 s{S_T1}, 0
            s_cbranch_scc1 {go}
            s_mov_b32 s{S_T1}, 1
            v_max3_f32 v{mx}, v{s}, v{s+4}, v{s+2}
            v_max3_f32 v{mx+1}, v{s+1}, v{s+5}, v{s+3}
            """)
            rowred(a, 'v_max_f32', mx)
            for k in range(3): a(f'v_pk_add_f32 v[{s+2*k}:{s+2*k+1}], v[{s+2*k}:{s+2*k+1}], v[{mx}:{mx+1}] neg_lo:[0,1] neg_hi:[0,1]')
            for k in range(6): a(f'v_exp_f32 v{e+(k if k < 4 else k+4)}, v{s+k}')
            a(f's_nop 1\ns_branch {redo}')
        a.cold.append(coldmx)
        stamp(a, stamps, 4)
    stamp_flush(a, stamps, 11, mf)
    step_advance(a, 28672, 458752)
    a(f's_cmp_ge_u32 s{S_STEP}, 63\ns_cbranch_scc1 L_exit')
    if w == 3: load_x()
    if cfg['ssleep'][w]:
        a(f"s_sleep {cfg['ssleep'][w]}")
    a(f's_branch {top}')
    a.flush_cold()

S_YD = 33; S_YD2 = 36; S_CV = 37; S_CU = 38
CV = dict(ha=160, one=161, zero=162, cu=163, hw=164, hm=165, vy=168, l8=0, pa=1, idx=2, l16=3, pr=4, mw=6, lw=7, rw=8, rr=5, mf=12, acc=40, itm=72, vx=88, uf=96, tw=128, w=176)

def comb_setup(a, stamps, cfg):
    V = CV; LN = 112
    a(f'v_mov_b32 v{LN}, v1')
    team_register(a)
    common_addrs(a, V, LN)
    img_addr(a, V['mw'], LN+1, LN)
    a(f"""
    s_sub_u32 s{S_ROLE}, s{S_ROLE}, 16
    s_lshl_b32 s{S_ROLE}, s{S_ROLE}, 1
    s_and_b32 s{S_T0}, s{S_WAVE}, 1
    s_add_u32 s{S_T1}, s{S_ROLE}, s{S_T0}
    s_lshr_b32 s{S_T0}, s{S_T1}, 2
    s_lshl_b32 s{S_T0}, s{S_T0}, 10
    s_and_b32 s{S_T1}, s{S_T1}, 3
    s_lshl_b32 s{S_T1}, s{S_T1}, 7
    s_add_u32 s{S_T0}, s{S_T0}, s{S_T1}
    s_add_u32 s{S_T0}, s{S_T0}, 8192
    v_add_u32 v{V['mw']}, s{S_T0}, v{V['mw']}
    v_lshlrev_b32 v{V['l16']}, 4, v{LN}
    s_mul_i32 s{S_T0}, s{S_WAVE}, 28672
    s_add_u32 s{S_T0}, s{S_T0}, {LDS_BW}
    v_add_u32 v{V['lw']}, s{S_T0}, v{V['l16']}
    s_lshl_b32 s{S_T0}, s{S_WAVE}, 10
    v_add_u32 v{V['rw']}, s{S_T0}, v{V['l16']}
    v_add_u32 v{V['pr']}, s{S_T0}, v{V['rw']}
    s_and_b32 s{S_T0}, s{S_WAVE}, 1
    s_lshl_b32 s{S_T0}, s{S_T0}, 3
    v_add_u32 v{V['rr']}, s{S_T0}, v{V['l16']}
    s_mul_i32 s{S_T1}, s{S_WAVE}, {4*28}
    s_add_u32 s{S_T1}, s{S_T1}, s{S_ROLE}
    s_add_u32 s{S_T1}, s{S_T1}, 448
    s_mul_i32 s{S_T1}, s{S_T1}, 14336
    s_add_u32 s{S_T1}, s{S_T1}, {L.WT}
    """)
    toff = lambda u: ((u >> 1)*28 + (u & 1))*14336
    for u in (6, 7):
        a(f's_add_u32 s{S_T0}, s{S_T1}, {toff(u)}')
        load_1k_run(a, [vr(12 + 4*k, 4) for k in range(14)], V['l16'], S_T0)
        for k in range(14):
            a(f's_waitcnt vmcnt({13-k})')
            a(f"ds_write_b128 v{V['lw']}, v[{12+4*k}:{12+4*k+3}] offset:{(u-6)*14336+k*1024}")
        a('s_waitcnt lgkmcnt(0)')
    bud = [0]
    for u in range(6):
        a(f's_add_u32 s{S_T0}, s{S_T1}, {toff(u)}')
        load_1k_run(a, [wreg_half(u*7 + k//2, V['w'], k % 2) for k in range(14)], V['l16'], S_T0, cfg['wfl'], budget=bud)
    a(f"""
    s_mov_b32 s{S_STEP}, 0
    s_mov_b32 s{S_MOFF}, {L.MB_M}
    s_mov_b32 s{S_POFF}, {L.MB_P}
    s_lshl_b32 s{S_GOFF}, s{S_ROLE}, 14
    s_lshl_b32 s{S_T0}, s{S_WAVE}, 12
    s_add_u32 s{S_GOFF}, s{S_GOFF}, s{S_T0}
    s_add_u32 s{S_GOFF}, s{S_GOFF}, {L.U}
    s_lshl_b32 s{S_XOFF}, s{S_ROLE}, 12
    s_add_u32 s{S_XOFF}, s{S_XOFF}, {L.VM}
    s_lshr_b32 s{S_STMP}, s{S_ROLE}, 1
    s_add_u32 s{S_STMP}, s{S_STMP}, 16
    s_lshl_b32 s{S_STMP}, s{S_STMP}, 2
    s_add_u32 s{S_STMP}, s{S_STMP}, s{S_WAVE}
    s_lshl_b32 s{S_STMP}, s{S_STMP}, 12
    s_add_u32 s{S_STMP}, s{S_STMP}, {L.STAMP}
    s_waitcnt vmcnt(0)
    """)
    a(f"""
    v_mov_b32 v{V['one']}, 1
    v_mov_b32 v{V['zero']}, 0
    v_mov_b32 v{V['cu']}, 0
    v_and_b32 v{V['ha']}, {120 if cfg['cutrig'] else 24}, v{V['l8']}
    v_lshrrev_b32 v{V['ha']}, 1, v{V['ha']}
    s_lshl_b32 s{S_T0}, s{S_WAVE}, 4
    s_mul_i32 s{S_T0}, s{S_T0}, {0 if cfg['cutrig'] else 1}
    s_and_b32 s{S_T1}, s{S_ROLE}, 6
    s_lshl_b32 s{S_T1}, s{S_T1}, 6
    s_add_u32 s{S_T0}, s{S_T0}, s{S_T1}
    s_add_u32 s{S_T0}, s{S_T0}, 12288
    v_add_u32 v{V['ha']}, s{S_T0}, v{V['ha']}
    s_lshl_b32 s{S_T0}, s{S_ROLE}, 1
    s_add_u32 s{S_T0}, s{S_T0}, s{S_WAVE}
    s_lshl_b32 s{S_T0}, s{S_T0}, 2
    s_add_u32 s{S_T0}, s{S_T0}, {8192 + 7168}
    v_lshlrev_b32 v{V['hw']}, 5, v{V['l8']}
    v_add_u32 v{V['hw']}, s{S_T0}, v{V['hw']}
    s_add_u32 s{S_YD}, s{S_XOFF}, 0x8000000
    v_lshrrev_b32 v{V['hm']}, 1, v{V['l8']}
    v_min_u32 v{V['hm']}, {55*4}, v{V['hm']}
    v_add_u32 v{V['hm']}, 7168, v{V['hm']}
    s_mov_b32 s56, 0
    s_mov_b32 s{S_CU}, {L.CNT_U}
    """)
    for k in range(8): a(f"v_mov_b32 v{V['vy']+k}, 0")
    for k in range(16): a(f"v_mov_b32 v{V['itm']+k}, 0")
    for k in range(32): a(f"v_mov_b32 v{V['uf']+k}, 0")
    team_mode(a, V['mf'], V['mf']+1)
    if cfg['flags']:
        wait_cnt(a, S_CU, 28, 9)
        a(f's_mov_b32 s{S_CV}, {L.CNT_I}')
        wait_cnt(a, S_CV, 98, 9)

def comb_wave(a, pf, stamps, cfg):
    V = CV; idx = V['idx']; mf = V['mf']; tw = V['tw']; uf = V['uf']; pa = V['pa']
    top = a.newlabel('L_cb_top')
    HT = [10, 11, 166, 167][:cfg['hdepth']]
    def store_vx(base, r):
        return [f"buffer_store_dwordx4 v[{r}:{r+3}], v{V['rw']}, {WSRD}, s{base} offen {cfg['xflags']}",
                f"s_add_u32 s{S_T1}, s{base}, 4096\nbuffer_store_dwordx4 v[{r+4}:{r+7}], v{V['rw']}, {WSRD}, s{S_T1} offen {cfg['xflags']}"]
    lq = Q('lgkmcnt', 15)
    def lread(lam, hf):
        return dsop(f"ds_read_b128 v[{tw+8*(lam%4)+4*hf}:{tw+8*(lam%4)+4*hf+3}], v{V['lw']} offset:{lam*2048+hf*1024}", ('lw', lam))
    def housekeeping(a=a):
        for u in range(8):
            A = V['acc'] + 4*u
            a(f'v_mov_b64 v[{A}:{A+1}], 0\nv_mov_b64 v[{A+2}:{A+3}], 0')
        for lam in range(4):
            for hf in range(2): a(lread(lam, hf)(lq))
    uload = lambda k: f"buffer_load_dwordx4 v[{uf+4*k}:{uf+4*k+3}], v{V['l16']}, {WSRD}, s{S_GOFF if k < 4 else S_EOFF} offen offset:{(k%4)*1024} {cfg['xflags']}"
    uorder = [] if cfg['nou'] else [4, 5, 6, 7, 0, 1, 2, 3]
    ue = uorder[:cfg['uearly']]; ul = uorder[cfg['uearly']:]
    housekeeping()
    a.label(top)
    stamp(a, stamps, 0)
    t = mf
    slow = a.newlabel('L_cms'); back = a.newlabel('L_cmb')
    a(f"""
    s_add_u32 s{S_EOFF}, s{S_GOFF}, 16384
    buffer_load_dwordx4 v[{t}:{t+3}], v{pa}, {WSRD}, s{S_MOFF} offen sc1
    buffer_load_dwordx4 v[{t+4}:{t+7}], v{pa}, {WSRD}, s{S_MOFF} offen offset:768 sc1
    """)
    if ue: a('s_barrier')
    for k in ue: a(uload(k))
    a(f"""
    s_lshl_b32 s{S_CU}, s{S_STEP}, 7
    s_add_u32 s{S_CU}, s{S_CU}, {L.CNT_U + 128}
    s_waitcnt vmcnt({len(ue)+1})
    ds_write_b128 v{pa}, v[{t}:{t+3}]
    v_max3_u32 v{t+8}, v{t}, v{t+1}, v{t+2}
    s_waitcnt vmcnt({len(ue)})
    ds_write_b128 v{pa}, v[{t+4}:{t+7}] offset:768
    v_max3_u32 v{t+8}, v{t+8}, v{t+3}, v{t+4}
    v_max3_u32 v{t+8}, v{t+8}, v{t+5}, v{t+6}
    v_max_u32 v{t+8}, v{t+8}, v{t+7}
    v_cmp_eq_u32 vcc, -1, v{t+8}
    s_cbranch_vccnz {slow}
    s_waitcnt lgkmcnt(0)
    s_barrier
{back}:
    """)
    def coldm():
        a.label(slow)
        if stamps: a(f's_add_u32 s{40+2*8}, s{40+2*8}, 1')
        poll_m(a, V)
        a(f's_branch {back}')
    a.cold.append(coldm)
    lq.drain()
    stamp(a, stamps, 1)
    mrd = [dsop(f"ds_read_b64_tr_b16 v[{mf+4*b+2*hf}:{mf+4*b+2*hf+1}], v{V['l8']} offset:{LDS_M+b*1024+hf*512}", ('mf', b))
           for b in range(7) for hf in range(2)]
    for x in mrd[:cfg['mpre']]: a(x(lq))
    ms = []; last = {}
    rorder = [(u, b) for b in range(7) for u in range(2)] + [(u, b) for u in range(2, 6) for b in range(7)]
    rb = 0
    for p in range(56):
        if p % 4 == 3:
            lam = p // 4; u = 6 + lam // 7; b = lam % 7
            ms.append((SM(V['acc']+4*u, mf+4*b, vr(tw+8*(lam % 4), 8), idx), [('mf', b), ('lw', lam)]))
        else:
            u, b = rorder[rb]; rb += 1
            ms.append((SM(V['acc']+4*u, mf+4*b, wreg(u*7+b, V['w']), idx), [('mf', b)]))
        last[u] = p
    gp = Gaps(56)
    for k, x in enumerate(mrd[cfg['mpre']:]): gp.put('ds', k, x)
    for lam in range(4, 14):
        g = 4*(lam-4) + 3
        g = gp.put('ds', g, lread(lam, 0)) + 1
        gp.put('ds', g, lread(lam, 1))
    g = 0
    for k in ul: g = gp.put('va', g, uload(k)) + cfg['ustep']
    if cfg['flags']:
        g = gp.put('va', g, f"buffer_load_dword v{V['cu']}, v{V['zero']}, {WSRD}, s{S_CU} offen sc1") + 1
    for x in store_vx(S_YD, V['vy']): g = gp.put('va', g, x) + cfg['ustep']
    def post(u):
        A = V['acc'] + 4*u; hl = u >> 1; ctl = u & 1
        return [f'v_add_f32 v{A}, v{A}, v{A+2}', f'v_add_f32 v{A+1}, v{A+1}, v{A+3}',
                f"v_cvt_pk_bf16_f32 v{V['itm']+8*ctl+4*(hl>>1)+(hl&1)}, v{A}, v{A+1}", f"v_cvt_pk_bf16_f32 v{V['vx']+4*ctl+hl}, v{A}, v{A+1}"]
    tail = []; gprev = 0
    for u in sorted(last, key=lambda u: last[u]):
        g = max(last[u] + 3, gprev)
        if g + 4 >= 56: tail += post(u); continue
        for x in post(u): g = gp.put('va', g, x) + 1
        gprev = g
    emit_stream(a, ms, gp, lq)
    for x in tail: a(x)
    cont = a.newlabel('L_cbc')
    a(f's_cmp_lt_u32 s{S_STEP}, 63\ns_cbranch_scc1 {cont}')
    for x in store_vx(S_XOFF, V['vx']): a(x)
    a(f"""
    s_branch L_exit
{cont}:
    """)
    stamp(a, stamps, 2)
    A = V['vx']
    sub = Asm()
    for k in range(4): sub(f"v_mov_b64 v[{V['vy']+2*k}:{V['vy']+2*k+1}], v[{V['vx']+2*k}:{V['vx']+2*k+1}]")
    housekeeping(sub)
    sub(f's_add_u32 s{S_T0}, s{S_POFF}, 8192\ns_mov_b32 s{S_YD}, s{S_XOFF}')
    if stamps and cfg['sdrain']: a('s_waitcnt vmcnt(0)')
    stamp(a, stamps, 3)
    if cfg['cutrig']:
        oth = a.newlabel('L_oth'); jn = a.newlabel('L_jn')
        a(f's_cmp_lg_u32 s{S_WAVE}, 0\ns_cbranch_scc1 {oth}')
        wait_hint(a, V['ha'], S_POFF, HT, delay=cfg['pdelay'], fill=[x.text for _, x in sub.items], inner=cfg['hinner'])
        a(f'{jn}:\ns_barrier')
        def coldo():
            a.label(oth)
            for _, x in sub.items: a(x.text)
            a(f's_branch {jn}')
        a.cold.append(coldo)
    else:
        wait_hint(a, V['ha'], S_POFF, HT, delay=cfg['pdelay'], fill=[x.text for _, x in sub.items])
    stamp(a, stamps, 6)
    l = a.newlabel('L_pp'); d = a.newlabel('L_ppd'); retry = a.newlabel('L_ppr'); t = 9
    R = V['acc']
    B3 = [vr(uf, 8), vr(uf+8, 8), vr(V['itm'], 8)], [vr(uf+16, 8), vr(uf+24, 8), vr(V['itm']+8, 8)]
    mh = f"""s_mov_b64 exec, 15
        buffer_store_dword v{V['zero']}, v{V['hw']}, {WSRD}, s{S_MOFF} offen {pf}
        s_mov_b64 exec, -1"""
    def issue(p):
        a(f"""
        buffer_load_dwordx4 v[{p}:{p+3}], v{V['pr']}, {WSRD}, s{S_POFF} offen sc1
        buffer_load_dwordx4 v[{p+4}:{p+7}], v{V['pr']}, {WSRD}, s{S_POFF} offen offset:1024 sc1
        buffer_load_dwordx4 v[{p+8}:{p+11}], v{V['rw']}, {WSRD}, s{S_T0} offen sc1
        """)
    def zero():
        for k in range(4): a(f'v_mov_b64 v[{A+2*k}:{A+2*k+1}], 0')
    def attempt(p, behind, hint_here):
        ex = behind
        a(f's_add_u32 s{S_SPIN}, s{S_SPIN}, 1')
        for k in range(3):
            a(f's_waitcnt vmcnt({2-k+ex})')
            a(SM(A, p+4*k, B3[0][k], idx))
            a(f'v_max_u32 v{t}, v{p}, v{p+2}' if k == 0 else f'v_max3_u32 v{t}, v{t}, v{p+4*k}, v{p+4*k+2}')
            a(SM(A+4, p+4*k, B3[1][k], idx))
            if hint_here and k == 0:
                a(mh); ex += 1
        a(f'v_cmp_eq_u32 vcc, -1, v{t}')
    a(f's_mov_b32 s{S_SPIN}, 0')
    issue(mf)
    zero()
    if cfg['p2']:
        gap = cfg['p2']
        while gap > 0:
            a(f's_nop {min(gap, 16) - 1}'); gap -= 16
        issue(mf+12)
    if cfg['mhint'] == 0:
        for _ in range(cfg['mhnop']): a('s_nop 3')
        a(mh)
    attempt(mf, (3 if cfg['p2'] else 0) + (cfg['mhint'] == 0), cfg['mhint'] == 2)
    a(f's_cbranch_vccnz {retry};nf\n{d}:;nf')
    def coldp():
        a(f'{retry}:\ns_nop 7')
        if cfg['p2']:
            zero()
            attempt(mf+12, 1 if cfg['mhint'] != 1 else 0, False)
            a(f's_cbranch_vccz {d}')
        a.label(l)
        issue(mf)
        zero()
        attempt(mf, 0, False)
        a(f"""
        s_cbranch_vccz {d}
        s_cmp_lt_u32 s{S_SPIN}, s{S_LIM}
        s_cbranch_scc1 {l}
        s_mov_b32 s{S_LIM}, 1
        s_branch {d}
        """)
    a.cold.append(coldp)
    stamp(a, stamps, 4)
    if cfg['mhint'] == 1: a(mh)
    if stamps: a(f's_mov_b32 s{40+2*7}, s{S_SPIN}')
    if cfg['flags']: a(f"v_readfirstlane_b32 s{S_CV}, v{V['cu']}")
    fin = a.newlabel('L_cbf')
    a(f"""
    v_pk_add_f32 v[{R}:{R+1}], v[{A}:{A+1}], v[{A+2}:{A+3}]
    v_pk_add_f32 v[{R+2}:{R+3}], v[{A+4}:{A+5}], v[{A+6}:{A+7}]
    ds_write_b128 v{V['rw']}, v[{R}:{R+3}] offset:{LDS_RED}
    s_cmp_ge_u32 s{S_WAVE}, 2
    s_waitcnt lgkmcnt(0)
    s_barrier
    s_cbranch_scc1 {fin}
    ds_read_b64 v[{R}:{R+1}], v{V['rr']} offset:{LDS_RED}
    ds_read_b64 v[{R+2}:{R+3}], v{V['rr']} offset:{LDS_RED+1024}
    ds_read_b64 v[{R+4}:{R+5}], v{V['rr']} offset:{LDS_RED+2048}
    ds_read_b64 v[{R+6}:{R+7}], v{V['rr']} offset:{LDS_RED+3072}
    s_waitcnt lgkmcnt(2)
    v_pk_add_f32 v[{R}:{R+1}], v[{R}:{R+1}], v[{R+2}:{R+3}]
    s_waitcnt lgkmcnt(0)
    v_pk_add_f32 v[{R+4}:{R+5}], v[{R+4}:{R+5}], v[{R+6}:{R+7}]
    v_pk_add_f32 v[{R}:{R+1}], v[{R}:{R+1}], v[{R+4}:{R+5}]
    v_cvt_pk_bf16_f32 v{R}, v{R}, v{R+1}
    buffer_store_dword v{R}, v{V['mw']}, {WSRD}, s{S_MOFF} offen {pf}
    s_cmp_lt_u32 s{S_STEP}, 62
    s_cbranch_scc1 {fin}
    s_add_u32 s{S_T0}, s{S_MOFF}, {L.MB_Y - L.MB_M}
    buffer_store_dword v{R}, v{V['mw']}, {WSRD}, s{S_T0} offen sc1
{fin}:
    """)
    stamp(a, stamps, 5)
    for k in range(4): a(f'v_mov_b64 v[{R+2*k}:{R+2*k+1}], 0')
    if cfg['flags']:
        slow2 = a.newlabel('L_us'); back2 = a.newlabel('L_ub')
        a(f's_cmp_lt_u32 s{S_CV}, 28\ns_cbranch_scc1 {slow2}\n{back2}:')
        def coldu():
            a.label(slow2)
            wait_cnt(a, S_CU, 28, 9)
            a(f's_branch {back2}')
        a.cold.append(coldu)
    stamp_flush(a, stamps and cfg['cflush'], 11, mf+24)
    step_advance(a, 458752)
    if cfg['chint']:
        nh = a.newlabel('L_nh')
        a(f's_cmp_lg_u32 s{S_WAVE}, 3\ns_cbranch_scc1 {nh}')
        wait_hint(a, V['hm'], S_MOFF, HT, delay=cfg['cdelay'])
        a(f'{nh}:\ns_barrier')
    if cfg['csleep']:
        a(f"s_sleep {cfg['csleep']}")
    a(f's_branch {top}')
    a.flush_cold()

def helper_cu(a, cfg):
    V = dict(l8=0, pa=1, idx=2, mf=12); LN = 112
    NP = cfg['npf']; D = cfg['pfd']; PER = cfg['pfper']
    a(f'v_mov_b32 v{LN}, v1')
    team_register(a)
    common_addrs(a, V, LN)
    a(f"""
    v_lshlrev_b32 v4, 7, v{LN}
    v_mov_b32 v5, 0
    v_mov_b32 v6, 14
    s_sub_u32 s{S_ROLE}, s{S_ROLE}, 30
    s_lshl_b32 s{S_EOFF}, s{S_ROLE}, 2
    s_add_u32 s{S_EOFF}, s{S_EOFF}, s{S_WAVE}
    s_mov_b32 s{S_STEP}, 0
    s_mov_b32 s{S_MOFF}, {L.MB_M + 8192}
    s_mov_b32 s{S_CV}, {L.DUMMY + 0x200000}
    s_mul_i32 s{S_GOFF}, s{S_EOFF}, 7168
    s_add_u32 s{S_GOFF}, s{S_GOFF}, {L.XN}
    s_mov_b32 s{S_POFF}, 28672
    s_cmp_lt_u32 s{S_EOFF}, 4
    s_cbranch_scc1 H_t
    s_sub_u32 s{S_GOFF}, s{S_EOFF}, 4
    s_mul_i32 s{S_GOFF}, s{S_GOFF}, 6144
    s_add_u32 s{S_GOFF}, s{S_GOFF}, {L.MB_P}
    s_mov_b32 s{S_POFF}, 16384
    s_cmp_lt_u32 s{S_EOFF}, 6
    s_cbranch_scc1 H_t
    s_mov_b32 s{S_GOFF}, {L.MB_M + 8192}
    s_mov_b32 s{S_POFF}, 8192
H_t:
    """)
    def mtouch():
        a(f'buffer_load_dword v7, v4, {WSRD}, s{S_GOFF} offen sc1\ns_add_u32 s{S_GOFF}, s{S_GOFF}, s{S_POFF}')
    team_mode(a, V['mf'], V['mf']+1)
    a(f's_mov_b32 s{S_LIM}, {SPIN_MAX*4}')
    a(f"""
    s_getpc_b64 s[70:71]
H_pc:
    s_lshl_b32 s{S_T0}, s{S_EOFF}, 12
    v_lshrrev_b32 v10, 1, v4
    s_add_u32 s70, s70, s{S_T0}
    s_addc_u32 s71, s71, 0
    s_add_u32 s70, s70, L_nothelp-H_pc
    s_addc_u32 s71, s71, 0
    s_mov_b32 s72, s{S_GOFF}
    s_mov_b32 s{S_SPIN}, 0
    s_mov_b32 s73, {L.MB_P + 12288}
H_warm:
    s_mov_b32 s{S_GOFF}, s72
    global_load_dword v8, v10, s[70:71] sc1
    """)
    for _ in range(D+1): mtouch()
    a(f"""
    buffer_load_dword v9, v5, {WSRD}, s73 offen sc1
    s_add_u32 s{S_SPIN}, s{S_SPIN}, 1
    s_waitcnt vmcnt(0)
    v_cmp_eq_u32 vcc, -1, v9
    s_cbranch_vccz H_warmed
    s_sleep 8
    s_cmp_lt_u32 s{S_SPIN}, s{S_LIM}
    s_cbranch_scc1 H_warm
H_warmed:
    """)
    mul = {2: (128, 8), 3: (86, 8)}[PER]
    for k in range(NP):
        a(f"""
        s_add_u32 s{S_T0}, s{S_EOFF}, {8*k}
        s_min_u32 s{S_T0}, s{S_T0}, {14*PER-1}
        s_mul_i32 s{S_T1}, s{S_T0}, {mul[0]}
        s_lshr_b32 s{S_T1}, s{S_T1}, {mul[1]}
        s_mul_i32 s{S_T1}, s{S_T1}, {4-PER}
        s_add_u32 s{S_T0}, s{S_T0}, s{S_T1}
        s_lshl_b32 s{60+k}, s{S_T0}, 13
        s_add_u32 s{60+k}, s{60+k}, {L.U}
        """)
    def utouch():
        for k in range(NP):
            a(f'buffer_load_dword v{32+k}, v4, {WSRD}, s{60+k} offen sc1\ns_add_u32 s{60+k}, s{60+k}, 458752')
    a(f's_mov_b32 s{S_CU}, {L.CNT_U}')
    for _ in range(D if NP else 0):
        if cfg['flags']: wait_cnt(a, S_CU, 28, 30)
        utouch()
        a(f's_add_u32 s{S_CU}, s{S_CU}, 128')
    t = V['mf']; pa = V['pa']
    sk = a.newlabel('H_sk'); sk2 = a.newlabel('H_sk'); ok = a.newlabel('H_ok')
    a(f"""
H_top:
    s_mov_b32 s{S_SPIN}, 0
H_poll:
    buffer_load_dwordx4 v[{t}:{t+3}], v{pa}, {WSRD}, s{S_MOFF} offen sc1
    buffer_load_dwordx4 v[{t+4}:{t+7}], v{pa}, {WSRD}, s{S_MOFF} offen offset:768 sc1
    buffer_load_dword v30, v5, {WSRD}, s{S_CU} offen sc1
    s_add_u32 s{S_SPIN}, s{S_SPIN}, 1
    s_waitcnt vmcnt(0)
    v_max3_u32 v{t+8}, v{t}, v{t+1}, v{t+2}
    v_max3_u32 v{t+8}, v{t+8}, v{t+3}, v{t+4}
    v_max3_u32 v{t+8}, v{t+8}, v{t+5}, v{t+6}
    v_max_u32 v{t+8}, v{t+8}, v{t+7}
    v_readfirstlane_b32 s{S_T0}, v30
    v_cmp_eq_u32 vcc, -1, v{t+8}
    s_cbranch_vccz {ok}
    s_sleep {cfg['hsleep']}
    s_cmp_lt_u32 s{S_SPIN}, s{S_LIM}
    s_cbranch_scc1 H_poll
    s_mov_b32 s{S_LIM}, 1
{ok}:
    s_cmp_lg_u32 s{S_ROLE}, 0
    s_cbranch_scc1 {sk}
    s_add_u32 s{S_T1}, s{S_MOFF}, {L.MB_Y - L.MB_M}
    buffer_store_dwordx4 v[{t}:{t+3}], v{pa}, {WSRD}, s{S_T1} offen sc1
    buffer_store_dwordx4 v[{t+4}:{t+7}], v{pa}, {WSRD}, s{S_T1} offen offset:768 sc1
{sk}:
    s_cmp_ge_u32 s{S_STEP}, {63 - D}
    s_cbranch_scc1 {sk2}
    """)
    mtouch()
    if NP:
        sk3 = a.newlabel('H_sk'); sk4 = a.newlabel('H_sk')
        if cfg['flags']: a(f's_cmp_lt_u32 s{S_T0}, 28\ns_cbranch_scc1 {sk3}')
        utouch()
        a(f's_branch {sk4}\n{sk3}:')
        for k in range(NP): a(f's_add_u32 s{60+k}, s{60+k}, 458752')
        a(f'{sk4}:\ns_add_u32 s{S_CU}, s{S_CU}, 128')
    a(f"""
{sk2}:
    s_add_u32 s{S_STEP}, s{S_STEP}, 1
    s_add_u32 s{S_MOFF}, s{S_MOFF}, 8192
    s_cmp_lt_u32 s{S_STEP}, 62
    s_cbranch_scc1 H_top
    s_branch L_exit
    """)

DEFAULT_CFG = dict(ba=[35, 35, 34, 34], bak=3, bb=[53, 53, 0, 0], xflags='', ssleep=[10, 10, 10, 0], csleep=0, psleep=0, touch=1,
                   nou=0, nox=0, cflush=1, flags=0, ustep=3, hsleep=2, mdelay=0, pdelay=0, phint=0, lead=[5, 2], b5nop=0, npf=0, pfper=2, hdepth=4, wfl='', m2=28, m2w=10, p2=40, cutrig=1, hinner=4, uearly=4, mhint=2, mhnop=0, sdrain=0, pfd=3, mpre=6, chint=1, cdelay=16)

def team_body(a, stamps=False, cfg=None):
    cfg = dict(DEFAULT_CFG, **(cfg or {}))
    a(f's_cmp_lt_u32 s{S_ROLE}, 30\ns_cbranch_scc1 L_nothelp')
    helper_cu(a, cfg)
    a.label('L_nothelp')
    a(f's_cmp_ge_u32 s{S_ROLE}, 16\ns_cbranch_scc1 L_comb')
    score_setup(a, stamps, cfg)
    for fast in (1, 0):
        a(f's_cmp_lg_u32 s{S_FAST}, {fast}\ns_cbranch_scc1 L_sc_next{fast}')
        for w in range(4):
            if w < 3:
                a(f's_cmp_lg_u32 s{S_WAVE}, {w}\ns_cbranch_scc1 L_sc{fast}_n{w}')
            score_wave(a, w, '' if fast else 'sc1', stamps, cfg)
            if w < 3: a.label(f'L_sc{fast}_n{w}')
        a.label(f'L_sc_next{fast}')
    a('s_branch L_exit')
    a.label('L_comb')
    comb_setup(a, stamps, cfg)
    for fast in (1, 0):
        a(f's_cmp_lg_u32 s{S_FAST}, {fast}\ns_cbranch_scc1 L_cb_next{fast}')
        comb_wave(a, '' if fast else 'sc1', stamps, cfg)
        a.label(f'L_cb_next{fast}')
    a('s_branch L_exit')
```

```python
from build import *
import team, prep, gemm, attn, ffn
HEADER = open('sequential_preLN__memory_aug_recurrent_mem_tr__dense_activation_relu__prompt.s.ref').read().split('; Override launch')[0]
def relabel(fn, tag):
    def g(a):
        fn(a)
        import re
        for i, (k, x) in enumerate(a.items):
            if k == 'l' and x.startswith(('L_exit', 'L_role')): a.items[i] = ('l', x + tag)
            elif k == 'i' and ('L_exit' in x.text or 'L_role' in x.text):
                x.text = re.sub(r'(L_exit|L_role\w+)', lambda m: m.group(1) + tag, x.text)
    return g
def v2(tcfg=None, stamps=False, acfg=None):
    tcfg = dict(tcfg or {}); ng = tcfg.pop('ng', 1); pcfg = tcfg.pop('pcfg', {}); fcfg = tcfg.pop('fcfg', {}); acfg = dict(acfg or {}, **tcfg.pop('acfg', {}))
    def km(a):
        if stamps: a('s_memrealtime s[90:91]')
        team.prologue(a, stamps)
        R = team.S_ROLE
        if stamps: a(f's_mov_b32 s92, s{R}\ns_memrealtime s[94:95]\ns_mov_b64 s[96:97], 0')
        a(f"""
        s_cmp_ge_u32 s{R}, 32
        s_cbranch_scc1 M_worker
        """)
        team.team_body(a, stamps is True, dict(dict(xflags='sc1', flags=1), **(tcfg or {})))
        a(f"""
M_worker:
        s_lshr_b32 s26, s{R}, 5
        s_sub_u32 s26, s26, 1
        s_and_b32 s27, s{R}, 31
        s_cmp_ge_u32 s27, 30
        s_cbranch_scc1 M_attn
        s_cmp_ge_u32 s27, 16
        s_cbranch_scc1 M_ffn
        s_cmp_ge_u32 s27, {8*ng}
        s_cbranch_scc1 M_attn
        s_mul_i32 s{R}, s26, {8*ng}
        s_add_u32 s{R}, s{R}, s27
        """)
        gemm.gemm_role(a, dict(xflags='sc1', ng=ng))
        if stamps: a('s_memrealtime s[96:97]')
        a.label('M_attn')
        attn.attn_role(a, dict(dict(xflags='sc1', flags=1, asleep=16, ticket=1, diag=bool(stamps)), **(acfg or {})))
        a(f"""
M_ffn:
        s_mov_b32 s{ffn.F_Q}, s26
        s_sub_u32 s{ffn.F_J}, s27, 16
        """)
        ffn.ffn_role(a, dict(dict(xflags='sc1', flags=1, diag=bool(stamps)), **fcfg), 7)
        a.label('L_exit')
        if stamps:
            a(f"""
            s_cmp_ge_u32 s2, 256
            s_cbranch_scc1 L_exit2
            s_memrealtime s[98:99]
            s_lshl_b32 s93, s92, 5
            s_add_u32 s93, s93, {L.STAMP + 0x80000}
            s_mov_b64 exec, 1
            s_waitcnt lgkmcnt(0)
            v_mov_b32 v0, 0
            v_mov_b32 v4, s90
            v_mov_b32 v5, s94
            v_mov_b32 v6, s96
            v_mov_b32 v7, s98
            buffer_store_dwordx4 v[4:7], v0, s[8:11], s93 offen
L_exit2:
            """)
        a('s_endpgm')
    return assemble([('prep_kernel', lambda a: prep.prep_kernel(a, **pcfg), 256, 256, 163840), ('main_kernel', km, 256, 256, 163840)], HEADER)
if __name__ == '__main__':
    args = [eval(x) for x in sys.argv[3:]]
    open(sys.argv[2], 'w').write(globals()[sys.argv[1]](*args))
```

```python
from asmlib import *
import layout as L
from team import Q, xlane4

KA = dict(x=0, mem0=8, wq=16, wk=24, wv=32, wo=40, w1=64, w2=72, out=80, dbg=88, ws=96)
LOG2E_16 = 0x3db8aa3b

def srd(a, d, lo, nbytes):
    a(f"""
    s_mov_b32 s{d}, s{lo}
    s_and_b32 s{d+1}, s{lo+1}, 0xffff
    s_mov_b32 s{d+2}, {nbytes}
    s_mov_b32 s{d+3}, 0x20000
    """)

WO_STRIDE = 144
def prep_kernel(a, diag=False, stfl='sc1', touch=1, a1up=1, ldfl='nt', t0=False):
    WS, SA, SB = 8, 12, 16
    ldfl_b = ldfl
    a(f"""
    s_cmp_ge_u32 s2, 256
    s_cbranch_scc1 P_exit
    s_load_dwordx2 s[4:5], s[0:1], {KA['ws']}
    s_load_dwordx4 s[24:27], s[0:1], {KA['wq']}
    s_load_dwordx4 s[28:31], s[0:1], {KA['wv']}
    s_load_dwordx4 s[32:35], s[0:1], {KA['x']}
    v_lshrrev_b32 v2, 6, v0
    v_and_b32 v1, 63, v0
    v_readfirstlane_b32 s20, v2
    s_and_b32 s21, s2, 7
    s_lshr_b32 s22, s2, 3
    s_waitcnt lgkmcnt(0)
    """)
    srd(a, WS, 4, L.WS_BYTES)
    if t0:
        a(f"""
        s_cmp_lg_u32 s2, 0
        s_cbranch_scc1 P_t0
        s_memrealtime s[60:61]
        s_mov_b32 s62, {L.STAMP + 0xf0000}
        v_mov_b32 v5, 0
        s_waitcnt lgkmcnt(0)
        v_mov_b32 v4, s60
        buffer_store_dword v4, v5, s[{WS}:{WS+3}], s62 offen
P_t0:
        """)
    def st(k):
        if diag: a(f's_memtime s[{60+2*k}:{61+2*k}]')
    if diag:
        for k in range(8): a(f's_mov_b64 s[{60+2*k}:{61+2*k}], 0')
    st(0)
    nfill = L.CNT + L.CNT_BYTES - L.MB_M
    assert nfill % (256*4096) == 0 or True
    per = (nfill + 255) // 256
    per = (per + 4095) // 4096 * 4096
    def fill_boxes():
        a(f"""
        v_lshlrev_b32 v240, 4, v0
        v_mov_b32 v244, -1
        v_mov_b32 v245, -1
        v_mov_b32 v246, -1
        v_mov_b32 v247, -1
        s_mul_i32 s53, s2, {per}
        s_add_u32 s53, s53, {L.MB_M}
        """)
        assert L.MB_M + 256*per <= L.STAMP
        for k in range(per // 4096):
            l = a.newlabel('P_fs')
            a(f"""
            s_add_u32 s54, s53, {k*4096}
            s_and_b32 s55, s54, 0xffffe000
            s_cmp_eq_u32 s55, {L.MB_M}
            s_cbranch_scc1 {l}
            s_cmp_eq_u32 s55, {L.MB_Y}
            s_cbranch_scc1 {l}
            s_cmp_ge_u32 s54, {L.CNT}
            s_cselect_b32 s55, 0, -1
            v_mov_b32 v244, s55
            v_mov_b32 v245, s55
            v_mov_b32 v246, s55
            v_mov_b32 v247, s55
            buffer_store_dwordx4 v[244:247], v240, s[{WS}:{WS+3}], s54 offen {stfl}
{l}:
            """)
    assert L.MB_M + 256*per > L.CNT + L.CNT_BYTES - 1 or True
    a(f"""
    s_cmp_ge_u32 s22, 28
    s_cbranch_scc1 P_ln
    """)
    a(f"""
    s_mul_i32 s23, s22, 37
    s_lshr_b32 s23, s23, 8
    s_mul_i32 s36, s23, 7
    s_sub_u32 s36, s22, s36
    s_lshl_b32 s21, s21, 2
    s_add_u32 s21, s21, s23
    s_and_b32 s37, s21, 1
    s_lshr_b32 s38, s21, 1
    s_cmp_eq_u32 s37, 0
    s_cselect_b32 s40, s24, s28
    s_cselect_b32 s41, s25, s29
    s_cselect_b32 s42, s26, s30
    s_cselect_b32 s43, s27, s31
    """)
    srd(a, SA, 40, 448*8192)
    srd(a, SB, 42, 448*8192)
    BF = 0
    AFR = lambda p: 32 + 64*p
    ACC = lambda p: 160 + 32*p
    OUT = 224
    SLOT = lambda k: (k & 1)*65536
    breg = lambda ks, nt: BF + (ks*4 + nt)*4
    a(f"""
    s_lshl_b32 s39, s20, 2
    s_cmp_eq_u32 s20, 3
    s_cselect_b32 s39, 11, s39
    v_and_b32 v4, 15, v1
    v_lshrrev_b32 v5, 4, v1
    v_lshrrev_b32 v6, 5, v1
    v_and_b32 v7, 31, v1
    v_xor_b32 v7, v7, v6
    v_lshlrev_b32 v8, 13, v6
    v_lshl_add_u32 v8, v7, 4, v8
    s_lshl_b32 s50, s20, 14
    s_lshl_b32 s44, s39, 18
    s_lshl_b32 s45, s38, 9
    s_add_u32 s44, s44, s45
    """)
    if touch:
        a(f"""
        v_lshrrev_b32 v9, 2, v0
        v_lshlrev_b32 v9, 13, v9
        v_and_b32 v10, 3, v0
        v_lshl_add_u32 v9, v10, 7, v9
        s_lshl_b32 s46, s36, 19
        s_add_u32 s46, s46, s45
        buffer_load_dword v15, v9, s[{SA}:{SA+3}], s46 offen {ldfl}
        """)
    for k in range(8):
        a(f'v_xor_b32 v{16+k}, {2*k*16}, v8')
    a(f"""
    v_lshrrev_b32 v6, 2, v4
    v_and_b32 v7, 3, v4
    v_lshl_add_u32 v6, v6, 3, v7
    v_lshlrev_b32 v6, 9, v6
    v_add_u32 v6, s50, v6
    v_xor_b32 v7, v5, v4
    """)
    for k in range(4):
        a(f'v_xor_b32 v9, {4*k}, v7\nv_lshl_add_u32 v{24+k}, v9, 4, v6')
    vq = Q('vmcnt', 63)
    def a_dma(blk, i_):
        xr = 16 + ((i_ >> 2)*2 + (i_ & 1))
        def f(lq=None):
            vq.issue(('a', blk))
            return (f's_add_u32 m0, s50, {SLOT(blk) + i_*1024}\ns_add_u32 s46, s44, {(blk*32 + i_*2)*8192}\n'
                    f'buffer_load_dwordx4 v{xr}, s[{SA}:{SA+3}], s46 offen lds')
        return f
    a('s_cmp_eq_u32 s37, 0\ns_cbranch_scc0 P_t1')
    a(f"""
    s_lshl_b32 s47, s36, 19
    s_add_u32 s47, s47, s45
    s_lshl_b32 s46, s20, 17
    s_add_u32 s47, s47, s46
    s_lshl_b32 s51, s20, 13
    s_mov_b32 s48, {LOG2E_16}
    """)
    for k in range(8):
        a(f's_add_u32 m0, s51, {131072 + k*1024}\ns_add_u32 s46, s47, {k*2*8192}\nbuffer_load_dwordx4 v{16+k}, s[{SB}:{SB+3}], s46 offen {ldfl_b} lds')
    a(f"""
    s_branch P_tj
P_t1:
    v_lshrrev_b32 v10, 3, v1
    v_and_b32 v11, 7, v1
    v_mul_u32_u24 v9, 896, v10
    v_and_b32 v12, 2, v10
    v_xor_b32 v11, v11, v12
    v_lshl_add_u32 v9, v11, 4, v9
    v_xor_b32 v13, 64, v9
    s_mul_i32 s47, s38, 229376
    s_lshl_b32 s46, s36, 7
    s_add_u32 s47, s47, s46
    s_mul_i32 s46, s20, {64*896}
    s_add_u32 s47, s47, s46
    s_lshl_b32 s51, s20, 13
    s_mov_b32 s48, 1.0
    """)
    for k in range(8):
        a(f's_add_u32 m0, s51, {131072 + k*1024}\ns_add_u32 s46, s47, {k*8*896}\nbuffer_load_dwordx4 v{13 if k & 1 else 9}, s[{SB}:{SB+3}], s46 offen {ldfl_b} lds')
    a.label('P_tj')
    st(1)
    for i_ in range(16): a(a_dma(0, i_)())
    if a1up:
        for i_ in range(16): a(a_dma(1, i_)())
    a(f's_waitcnt vmcnt({32 if a1up else 16})\ns_barrier')
    st(2)
    a('s_cmp_eq_u32 s37, 0\ns_cbranch_scc0 P_r1')
    a(f'v_lshlrev_b32 v6, 9, v4\nv_add_u32 v6, 131072, v6')
    for k in range(4):
        a(f'v_xor_b32 v9, {4*k}, v7\nv_lshl_add_u32 v{28+k}, v9, 4, v6')
    for ks in range(8):
        for nt in range(4):
            a(f'ds_read_b128 a[{breg(ks,nt)}:{breg(ks,nt)+3}], v{28+(ks&3)} offset:{nt*8192 + (ks>>2)*256}')
            if nt & 1 and not a1up: a(a_dma(1, ks*2 + (nt >> 1))())
    if not a1up: vq.n -= 16
    a(f"""
    s_branch P_rj
P_r1:
    v_bfe_u32 v10, v1, 2, 2
    v_lshl_add_u32 v11, v5, 3, v10
    v_lshlrev_b32 v13, 7, v11
    v_add_u32 v13, 131072, v13
    v_and_b32 v11, 3, v1
    v_lshl_add_u32 v13, v11, 3, v13
    v_lshrrev_b32 v10, 1, v10
    v_and_b32 v11, 1, v5
    v_lshl_add_u32 v10, v11, 1, v10
    """)
    for nt in range(4):
        a(f'v_xor_b32 v9, {nt}, v10\nv_lshl_add_u32 v{28+nt}, v9, 5, v13')
    for ks in range(8):
        for nt in range(4):
            for hf in range(2):
                r = breg(ks, nt) + 2*hf
                a(f'ds_read_b64_tr_b16 a[{r}:{r+1}], v{28+nt} offset:{(ks*32+hf*4)*128}')
            if nt & 1 and not a1up: a(a_dma(1, ks*2 + (nt >> 1))())
    a(f"""
P_rj:
    s_mul_i32 s52, s37, 448
    s_mul_i32 s47, s38, 28
    s_add_u32 s52, s52, s47
    s_lshl_b32 s47, s36, 2
    s_add_u32 s52, s52, s47
    s_mul_i32 s52, s52, 14336
    s_lshl_b32 s47, s39, 10
    s_add_u32 s52, s52, s47
    s_add_u32 s52, s52, {L.WT}
    s_mov_b32 s49, s48
    v_lshlrev_b32 v3, 4, v1
    s_waitcnt vmcnt(16)
    """)
    def a_read(blk, hf, ks):
        r = AFR(blk & 1) + (hf*8+ks)*4
        off = hf*4*512 + (ks >> 2)*256
        return f'ds_read_b128 v[{r}:{r+3}], v{24+(ks&3) if not blk & 1 else 10+(ks&3)} offset:{off}'
    for k in range(4): a(f'v_add_u32 v{10+k}, 65536, v{24+k}')
    for hf in range(2):
        for ks in range(8): a(a_read(0, hf, ks))
    fill_boxes()
    a('s_waitcnt lgkmcnt(0)')
    from team import Gaps, emit_stream
    def epi(blk):
        va = []; stt = []
        for nt in range(4):
            ca = ACC(blk & 1) + nt*4; cb = ACC(blk & 1) + (4+nt)*4; o = OUT + nt*4
            v = [f'v_pk_mul_f32 v[{c}:{c+1}], v[{c}:{c+1}], s[48:49]' for c in (ca, ca+2, cb, cb+2)]
            v += [f'v_cvt_pk_bf16_f32 v{o}, v{ca}, v{ca+1}', f'v_cvt_pk_bf16_f32 v{o+1}, v{ca+2}, v{ca+3}',
                  f'v_cvt_pk_bf16_f32 v{o+2}, v{cb}, v{cb+1}', f'v_cvt_pk_bf16_f32 v{o+3}, v{cb+2}, v{cb+3}']
            va.append(v)
            def sf(lq=None, nt=nt, o=o):
                vq.issue()
                return f's_add_u32 s47, s52, {nt*14336}\nbuffer_store_dwordx4 v[{o}:{o+3}], v3, s[{WS}:{WS+3}], s47 offen offset:{blk*1024} {stfl}'
            stt.append(sf)
        return va, stt
    lq = Q('lgkmcnt', 15)
    for blk in range(4):
        if blk == 3:
            a('s_cmp_lt_u32 s20, 2\ns_cbranch_scc1 P_b3')
            va, stt = epi(2)
            n0 = vq.n
            for nt in range(4):
                for x in va[nt]: a(x)
                a(stt[nt]())
            vq.n = n0
            a('s_branch P_exit\nP_b3:')
        ms = []
        for hf in range(2):
            for ks in range(8):
                r = AFR(blk & 1) + (hf*8+ks)*4
                for nt in range(4):
                    c = ACC(blk & 1) + (hf*4+nt)*4
                    ms.append((f'v_mfma_f32_16x16x32_bf16 v[{c}:{c+3}], v[{r}:{r+3}], a[{breg(ks,nt)}:{breg(ks,nt)+3}], ' + ('0' if ks == 0 else f'v[{c}:{c+3}]'), []))
        gp = Gaps(64)
        g = 0
        if blk + 2 < 4:
            for i_ in range(16): g = gp.put('ds', g, a_dma(blk+2, i_)) + 3
        if blk > 0:
            va, stt = epi(blk-1)
            g2 = 3
            for nt in range(4):
                for x in va[nt]: g2 = gp.put('va', g2, x) + 1
                gp.put('ds', g2+1, stt[nt])
        if blk + 1 < 4:
            gp.force('ds', 44, lambda lq, b=blk+1: vq.wait(('a', b)))
            g = 44
            for hf in range(2):
                for ks in range(8):
                    gp.force('ds', g, a_read(blk+1, hf, ks)); g += 1
            gp.force('va', 63, 's_waitcnt lgkmcnt(0)')
        emit_stream(a, ms, gp, lq)
        if blk == 0: st(3)
    va, stt = epi(3)
    for nt in range(4):
        for x in va[nt]: a(x)
        a(stt[nt]())
    a('s_branch P_exit')
    a.label('P_ln')
    srd(a, SA, 32, 2048*896)
    srd(a, SB, 34, 8*896)
    X = 16
    U = 80
    a(f"""
    s_sub_u32 s22, s22, 28
    s_lshl_b32 s21, s21, 2
    s_add_u32 s21, s21, s22
    s_lshl_b32 s21, s21, 2
    s_add_u32 s21, s21, s20
    v_lshrrev_b32 v4, 2, v1
    v_and_b32 v5, 3, v1
    v_mul_u32_u24 v6, 896, v4
    v_lshl_add_u32 v6, v5, 4, v6
    s_mul_i32 s23, s21, {16*896}
    """)
    for kb in range(14):
        a(f'buffer_load_dwordx4 v[{X+4*kb}:{X+4*kb+3}], v6, s[{SA}:{SA+3}], s23 offen offset:{kb*64} {ldfl}')
    fill_boxes()
    l = a.newlabel('P_m0')
    a(f's_cmp_ge_u32 s21, 28\ns_cbranch_scc1 {l}')
    from team import img_addr
    img_addr(a, 8, 9, 1)
    a(f"""
    v_lshrrev_b32 v9, 4, v1
    v_mul_u32_u24 v9, {2*896}, v9
    v_and_b32 v7, 15, v1
    v_lshl_add_u32 v9, v7, 1, v9
    s_lshl_b32 s36, s21, 5
    buffer_load_ushort v200, v9, s[{SB}:{SB+3}], s36 offen
    buffer_load_ushort v201, v9, s[{SB}:{SB+3}], s36 offen offset:896
    s_lshr_b32 s36, s21, 2
    s_lshl_b32 s36, s36, 10
    s_and_b32 s37, s21, 3
    s_lshl_b32 s37, s37, 7
    s_add_u32 s36, s36, s37
    s_add_u32 s37, s36, {L.MB_Y}
    s_add_u32 s36, s36, {L.MB_M}
    s_waitcnt vmcnt(0)
    v_lshl_or_b32 v200, v201, 16, v200
    buffer_store_dword v200, v8, s[{WS}:{WS+3}], s36 offen
    buffer_store_dword v200, v8, s[{WS}:{WS+3}], s37 offen
{l}:
    s_waitcnt vmcnt(0)
    """)
    st(2)
    ln_rows(a, X, U, 56, 10, quadred)
    st(4)
    GS, KS = 288, 1152
    a(f"""
    s_mul_i32 s36, s20, {14*KS}
    v_mul_u32_u24 v7, {GS}, v5
    v_lshl_add_u32 v7, v4, 4, v7
    v_add_u32 v7, s36, v7
    v_lshlrev_b32 v3, 4, v1
    v_lshrrev_b32 v6, 4, v1
    v_mul_u32_u24 v6, {GS}, v6
    v_and_b32 v8, 15, v1
    v_lshl_add_u32 v8, v8, 4, v6
    v_add_u32 v8, s36, v8
    """)
    for kb in range(14):
        a(f'ds_write_b128 v7, v[{X+4*kb}:{X+4*kb+3}] offset:{kb*KS}')
    a(f"""
    s_mul_i32 s36, s21, 14336
    s_add_u32 s36, s36, {L.XN}
    """)
    st(3)
    for kb in range(14):
        a(f'ds_read_b128 v[{U+4*kb}:{U+4*kb+3}], v8 offset:{kb*KS}')
    for kb in range(14):
        if kb and kb % 4 == 0: a('s_add_u32 s36, s36, 4096')
        a(f's_waitcnt lgkmcnt({13-kb})')
        a(f'buffer_store_dwordx4 v[{U+4*kb}:{U+4*kb+3}], v3, s[{WS}:{WS+3}], s36 offen offset:{(kb%4)*1024} {stfl}')
    a.label('P_exit')
    if diag:
        a('s_cmp_ge_u32 s2, 256\ns_cbranch_scc1 P_exit2')
        st(5)
        a('s_waitcnt vmcnt(0)')
        st(6)
        a(f's_waitcnt lgkmcnt(0)\ns_lshl_b32 s36, s2, 2\ns_add_u32 s36, s36, s20\ns_lshl_b32 s36, s36, 6\ns_add_u32 s36, s36, {L.STAMP}\ns_mov_b64 exec, 1\nv_mov_b32 v3, 0')
        for k in range(7):
            a(f'v_mov_b32 v4, s{60+2*k}\nbuffer_store_dword v4, v3, s[{WS}:{WS+3}], s36 offen offset:{4*k}\ns_nop 1')
        a.label('P_exit2')
    a('s_endpgm')

def rnd_bf16(a, r, t):
    a(f'v_cvt_pk_bf16_f32 v{r}, v{r}, v{r}\nv_and_b32 v{r}, 0xffff0000, v{r}')

def quadred(a, x, t):
    a(f'v_add_f32_dpp v{x}, v{x}, v{x} quad_perm:[1,0,3,2] row_mask:0xf bank_mask:0xf')
    a(f'v_add_f32_dpp v{x}, v{x}, v{x} quad_perm:[2,3,0,1] row_mask:0xf bank_mask:0xf')

def ln_stats_finish(a, mu, rs, tt):
    rnd_bf16(a, rs, tt)
    a(f'v_add_f32 v{rs}, 0x3727c5ac, v{rs}')
    rnd_bf16(a, rs, tt)
    a(f'v_sqrt_f32 v{rs}, v{rs}')
    rnd_bf16(a, rs, tt)
    a(f'v_rcp_f32 v{rs}, v{rs}')
    rnd_bf16(a, mu, tt)

def ln_rows(a, X, U, n, t, red):
    s0, s1, d0, nm, rs = t, t+1, t+2, t+4, 76
    for i in range(n):
        a(f'v_lshlrev_b32 v{U+2*i}, 16, v{X+i}\nv_and_b32 v{U+2*i+1}, 0xffff0000, v{X+i}')
        if i == 1: a(f'v_pk_add_f32 v[{s0}:{s1}], v[{U}:{U+1}], v[{U+2}:{U+3}]')
        if i > 1: a(f'v_pk_add_f32 v[{s0}:{s1}], v[{s0}:{s1}], v[{U+2*i}:{U+2*i+1}]')
    a(f'v_add_f32 v{s0}, v{s0}, v{s1}')
    red(a, s0, d0)
    a(f'v_mul_f32 v{nm}, 0xbb124925, v{s0}\nv_mul_f32 v{nm+1}, 0xbb124925, v{s0}')
    for i in range(n):
        d = d0 if i & 1 else 72
        a(f'v_pk_add_f32 v[{d}:{d+1}], v[{U+2*i}:{U+2*i+1}], v[{nm}:{nm+1}]')
        if i == 0: a(f'v_pk_mul_f32 v[{s0}:{s1}], v[{d}:{d+1}], v[{d}:{d+1}]')
        else: a(f'v_pk_fma_f32 v[{s0}:{s1}], v[{d}:{d+1}], v[{d}:{d+1}], v[{s0}:{s1}]')
    a(f'v_add_f32 v{s0}, v{s0}, v{s1}')
    red(a, s0, d0)
    a(f'v_mul_f32 v{rs}, 0x3b124925, v{s0}')
    ln_stats_finish(a, nm, rs, d0)
    a(f'v_mov_b32 v{nm+1}, v{nm}\nv_mov_b32 v{rs+1}, v{rs}')
    for i in range(n):
        u = U+2*i
        a(f"""
        v_pk_add_f32 v[{u}:{u+1}], v[{u}:{u+1}], v[{nm}:{nm+1}]
        v_cvt_pk_bf16_f32 v{X+i}, v{u}, v{u+1}
        v_lshlrev_b32 v{u}, 16, v{X+i}
        v_and_b32 v{u+1}, 0xffff0000, v{X+i}
        v_pk_mul_f32 v[{u}:{u+1}], v[{u}:{u+1}], v[{rs}:{rs+1}]
        v_cvt_pk_bf16_f32 v{X+i}, v{u}, v{u+1}
        """)
```

```python
from build import *
import team, prep, gemm, attn, ffn
HEADER = open('sequential_preLN__memory_aug_recurrent_mem_tr__dense_activation_relu__prompt.s.ref').read().split('; Override launch')[0]
def relabel(fn, tag):
    def g(a):
        fn(a)
        import re
        for i, (k, x) in enumerate(a.items):
            if k == 'l' and x.startswith(('L_exit', 'L_role')): a.items[i] = ('l', x + tag)
            elif k == 'i' and ('L_exit' in x.text or 'L_role' in x.text):
                x.text = re.sub(r'(L_exit|L_role\w+)', lambda m: m.group(1) + tag, x.text)
    return g
def v2(tcfg=None, stamps=False, acfg=None):
    tcfg = dict(tcfg or {}); ng = tcfg.pop('ng', 1); pcfg = tcfg.pop('pcfg', {}); fcfg = tcfg.pop('fcfg', {}); acfg = dict(acfg or {}, **tcfg.pop('acfg', {}))
    def km(a):
        if stamps: a('s_memrealtime s[90:91]')
        team.prologue(a, stamps)
        R = team.S_ROLE
        if stamps: a(f's_mov_b32 s92, s{R}\ns_memrealtime s[94:95]\ns_mov_b64 s[96:97], 0\ns_mov_b64 s[88:89], 0')
        a(f"""
        s_cmp_ge_u32 s{R}, 32
        s_cbranch_scc1 M_worker
        """)
        team.team_body(a, stamps is True, dict(dict(xflags='sc1', flags=1, wgd=bool(stamps)), **(tcfg or {})))
        a(f"""
M_worker:
        s_lshr_b32 s26, s{R}, 5
        s_sub_u32 s26, s26, 1
        s_and_b32 s27, s{R}, 31
        s_cmp_ge_u32 s27, 30
        s_cbranch_scc1 M_attn
        s_cmp_ge_u32 s27, 16
        s_cbranch_scc1 M_ffn
        s_cmp_ge_u32 s27, {8*ng}
        s_cbranch_scc1 M_attn
        s_mul_i32 s{R}, s26, {8*ng}
        s_add_u32 s{R}, s{R}, s27
        """)
        gemm.gemm_role(a, dict(xflags='sc1', ng=ng))
        if stamps: a('s_memrealtime s[96:97]')
        a.label('M_attn')
        attn.attn_role(a, dict(dict(xflags='sc1', flags=1, asleep=16, ticket=1, diag=bool(stamps)), **(acfg or {})))
        a(f"""
M_ffn:
        s_mov_b32 s{ffn.F_Q}, s26
        s_sub_u32 s{ffn.F_J}, s27, 16
        """)
        ffn.ffn_role(a, dict(dict(xflags='sc1', flags=1, diag=bool(stamps)), **fcfg), 7)
        a.label('L_exit')
        if stamps:
            a(f"""
            s_cmp_ge_u32 s2, 256
            s_cbranch_scc1 L_exit2
            s_memrealtime s[98:99]
            s_lshl_b32 s93, s92, 5
            s_add_u32 s93, s93, {L.STAMP + 0x80000}
            s_mov_b64 exec, 1
            s_waitcnt lgkmcnt(0)
            v_mov_b32 v0, 0
            v_mov_b32 v4, s90
            v_mov_b32 v5, s94
            v_mov_b32 v6, s96
            v_mov_b32 v7, s98
            buffer_store_dwordx4 v[4:7], v0, s[8:11], s93 offen
            s_getreg_b32 s87, hwreg(HW_REG_HW_ID)
            v_mov_b32 v9, s87
            buffer_store_dword v9, v0, s[8:11], s93 offen offset:16
            buffer_atomic_umax v7, v0, s[12:15], 0 offen offset:12
            s_cmp_lg_u32 s92, 0
            s_cbranch_scc1 L_exit2
            s_mov_b32 s93, {L.STAMP + 0xf0000}
            buffer_load_dword v8, v0, s[8:11], s93 offen
            v_mov_b32 v5, s88
            buffer_store_dword v4, v0, s[12:15], 0 offen
            buffer_store_dword v5, v0, s[12:15], 0 offen offset:4
            buffer_store_dword v7, v0, s[12:15], 0 offen offset:8
            s_waitcnt vmcnt(0)
            buffer_store_dword v8, v0, s[12:15], 0 offen offset:16
L_exit2:
            """)
        a('s_endpgm')
    return assemble([('prep_kernel', lambda a: prep.prep_kernel(a, t0=bool(stamps), **pcfg), 256, 256, 163840), ('main_kernel', km, 256, 256, 163840)], HEADER)
if __name__ == '__main__':
    args = [eval(x) for x in sys.argv[3:]]
    open(sys.argv[2], 'w').write(globals()[sys.argv[1]](*args))
```

```python
from asmlib import *
import layout as L

SENT = -1
S_WS = 8
S_DBG = 12
S_ROLE = 16
S_WAVE = 17
S_XCC = 18
S_STEP = 19
S_FAST = 20
S_MOFF = 21; S_POFF = 22; S_EOFF = 23; S_GOFF = 24; S_XOFF = 25; S_T0 = 26; S_T1 = 27; S_SPIN = 28; S_LIM = 29
S_EXEC = 30
S_STMP = 32
S_TM = 34
SPIN_MAX = 20000
NTEAM = 32

LDS_M = 0
LDS_T = 7168
LDS_FL = 14336
LDS_VD = 18432
LDS_X = 20480
LDS_NAN = 11264
LDS_RED = 7168
LDS_BW = 16384
LDS_ROLE = 160*1024 - 16

def prologue(a, stamps, pool_off=0):
    a(f'''
    s_cmp_ge_u32 s2, 256
    s_cbranch_scc1 L_exit
    s_load_dwordx2 s[4:5], s[0:1], 96
    s_load_dwordx2 s[6:7], s[0:1], 88
    s_getreg_b32 s{S_XCC}, hwreg(HW_REG_XCC_ID, 0, 4)
    v_lshrrev_b32 v2, 6, v0
    v_and_b32 v1, 63, v0
    v_readfirstlane_b32 s{S_WAVE}, v2
    s_and_b32 s{S_XCC}, s{S_XCC}, 7
    s_waitcnt lgkmcnt(0)
    s_mov_b32 s{S_WS}, s4
    s_and_b32 s{S_WS+1}, s5, 0xffff
    s_mov_b32 s{S_WS+2}, {L.WS_BYTES}
    s_mov_b32 s{S_WS+3}, 0x20000
    s_mov_b32 s{S_DBG}, s6
    s_and_b32 s{S_DBG+1}, s7, 0xffff
    s_mov_b32 s{S_DBG+2}, 256
    s_mov_b32 s{S_DBG+3}, 0x20000
    v_mov_b32 v4, {LDS_ROLE}
    s_cmp_lg_u32 s{S_WAVE}, 0
    s_cbranch_scc1 L_role_wait
    s_mov_b64 exec, 1
    s_mov_b32 s{S_T0}, 0
L_role_try:
    s_add_u32 s{S_T1}, s{S_XCC}, s{S_T0}
    s_and_b32 s{S_T1}, s{S_T1}, 7
    s_lshl_b32 s{S_ROLE}, s{S_T1}, 7
    s_add_u32 s{S_ROLE}, s{S_ROLE}, {L.CNT_P + pool_off}
    v_mov_b32 v2, s{S_ROLE}
    v_mov_b32 v3, 1
    buffer_atomic_add v3, v2, s[{S_WS}:{S_WS+3}], 0 offen sc0
    s_waitcnt vmcnt(0)
    v_readfirstlane_b32 s{S_ROLE}, v3
    s_cmp_lt_u32 s{S_ROLE}, 32
    s_cbranch_scc1 L_role_got
    s_add_u32 s{S_T0}, s{S_T0}, 1
    s_cmp_lt_u32 s{S_T0}, 8
    s_cbranch_scc1 L_role_try
    s_mov_b32 s{S_ROLE}, 31
    s_mov_b32 s{S_T1}, 0
L_role_got:
    s_lshl_b32 s{S_T1}, s{S_T1}, 5
    s_add_u32 s{S_ROLE}, s{S_ROLE}, s{S_T1}
    v_mov_b32 v2, s{S_ROLE}
    ds_write_b32 v4, v2
    s_mov_b64 exec, -1
    s_waitcnt lgkmcnt(0)
L_role_wait:
    s_barrier
    ds_read_b32 v2, v4
    s_waitcnt lgkmcnt(0)
    v_readfirstlane_b32 s{S_ROLE}, v2
    ''')

def team_register(a):
    l = a.newlabel('L_reg')
    a(f'''
    s_cmp_lg_u32 s{S_WAVE}, 0
    s_cbranch_scc1 {l}
    s_cmp_eq_u32 s{S_XCC}, 0
    s_cselect_b32 s{S_T0}, 1, 0x10001
    s_mov_b64 exec, 1
    v_mov_b32 v2, 64
    v_mov_b32 v3, s{S_T0}
    buffer_atomic_add v3, v2, s[{S_DBG}:{S_DBG+3}], 0 offen
    s_mov_b64 exec, -1
{l}:
    ''')

def team_mode(a, vt0, vt1):
    l = a.newlabel('L_mode'); d = a.newlabel('L_moded')
    a(f'''
    s_mov_b32 s{S_SPIN}, 0
    v_mov_b32 v{vt0}, 64
{l}:
    buffer_load_dword v{vt1}, v{vt0}, s[{S_DBG}:{S_DBG+3}], 0 offen sc1
    s_waitcnt vmcnt(0)
    v_readfirstlane_b32 s{S_T0}, v{vt1}
    s_and_b32 s{S_T1}, s{S_T0}, 0xffff
    s_cmp_ge_u32 s{S_T1}, {NTEAM}
    s_cbranch_scc1 {d}
    s_sleep 2
    s_add_u32 s{S_SPIN}, s{S_SPIN}, 1
    s_cmp_lt_u32 s{S_SPIN}, {SPIN_MAX}
    s_cbranch_scc1 {l}
    s_mov_b32 s{S_T0}, 0x10000
{d}:
    s_lshr_b32 s{S_T0}, s{S_T0}, 16
    s_cmp_eq_u32 s{S_T0}, 0
    s_cselect_b32 s{S_FAST}, 1, 0
    s_mov_b32 s{S_LIM}, {SPIN_MAX}
    ''')

def stamp(a, stamps, idx, vt=None):
    if not stamps: return
    a(f's_memtime s[{40+2*idx}:{41+2*idx}]')
    if idx == 2: a('s_memrealtime s[60:61]')

def stamp_flush(a, stamps, n, vt):
    if not stamps: return
    a('s_waitcnt lgkmcnt(0)')
    for k in range(n):
        a(f'v_writelane_b32 v{vt}, s{40+2*k}, {k}')
    a(f"""
    v_lshrrev_b32 v{vt+1}, 1, v0
    s_mov_b64 exec, {(1 << n) - 1}
    buffer_store_dword v{vt}, v{vt+1}, s[{S_WS}:{S_WS+3}], s{S_STMP} offen
    s_mov_b64 exec, -1
    """)

def wreg(wb, vbase):
    return ar(8*wb, 8) if wb < 32 else vr(vbase + 8*(wb-32), 8)
def wreg_half(wb, vbase, half):
    return ar(8*wb + 4*half, 4) if wb < 32 else vr(vbase + 8*(wb-32) + 4*half, 4)

def xlane4(a, op, x, t):
    a(f'''
    v_mov_b32 v{t}, v{x}
    v_permlane16_swap_b32 v{x}, v{t}
    {op} v{x}, v{x}, v{t}
    v_mov_b32 v{t}, v{x}
    v_permlane32_swap_b32 v{x}, v{t}
    {op} v{x}, v{x}, v{t}
    ''')

QP = 'quad_perm:[2,3,0,1] row_mask:0xf bank_mask:0xf'

def read_mf(a, V):
    for b in range(7):
        a(f"ds_read_b64_tr_b16 v[{V['mf']+4*b}:{V['mf']+4*b+1}], v{V['l8']} offset:{LDS_M+b*1024}")
        a(f"ds_read_b64_tr_b16 v[{V['mf']+4*b+2}:{V['mf']+4*b+3}], v{V['l8']} offset:{LDS_M+b*1024+512}")

def SM(acc, A, B, idx):
    return f'v_smfmac_f32_16x16x64_bf16 v[{acc}:{acc+3}], v[{A}:{A+3}], {B}, v{idx}'


class Q:
    def __init__(self, name, cap):
        self.name = name; self.n = 0; self.tags = {}; self.done = 0; self.cap = cap
    def issue(self, tag=None):
        self.n += 1
        if tag is not None: self.tags[tag] = self.n
    def wait(self, tag):
        k = self.tags[tag]
        if k <= self.done: return ''
        self.done = k
        return 's_waitcnt %s(%d)' % (self.name, min(self.n - k, self.cap))
    def drain(self):
        self.done = self.n
        return 's_waitcnt %s(0)' % self.name

WSRD = f's[{S_WS}:{S_WS+3}]'

def poll_m(a, V, sleep=0):
    t = V['mf']; pa = V['pa']
    l = a.newlabel('L_pm'); d = a.newlabel('L_pmd')
    a(f"""
    s_mov_b32 s{S_SPIN}, 0
{l}:
    buffer_load_dwordx4 v[{t}:{t+3}], v{pa}, {WSRD}, s{S_MOFF} offen sc1
    buffer_load_dwordx4 v[{t+4}:{t+7}], v{pa}, {WSRD}, s{S_MOFF} offen offset:768 sc1
    s_add_u32 s{S_SPIN}, s{S_SPIN}, 1
    s_waitcnt vmcnt(1)
    ds_write_b128 v{pa}, v[{t}:{t+3}]
    v_max3_u32 v{t+8}, v{t}, v{t+1}, v{t+2}
    s_waitcnt vmcnt(0)
    ds_write_b128 v{pa}, v[{t+4}:{t+7}] offset:768
    v_max3_u32 v{t+8}, v{t+8}, v{t+3}, v{t+4}
    v_max3_u32 v{t+8}, v{t+8}, v{t+5}, v{t+6}
    v_max_u32 v{t+8}, v{t+8}, v{t+7}
    v_cmp_eq_u32 vcc, -1, v{t+8}
    s_cbranch_vccz {d}
    {'s_sleep %d' % sleep if sleep else ''}
    s_cmp_lt_u32 s{S_SPIN}, s{S_LIM}
    s_cbranch_scc1 {l}
    s_mov_b32 s{S_LIM}, 1
{d}:
    s_waitcnt lgkmcnt(0)
    s_barrier
    """)

def poll_m2(a, V, gap, x):
    pa = V['pa']; sets = (V['acc']+8, V['acc']+16)
    l = a.newlabel('L_pm'); d = a.newlabel('L_pmd')
    def issue(t):
        a(f"""
        buffer_load_dwordx4 v[{t}:{t+3}], v{pa}, {WSRD}, s{S_MOFF} offen sc1
        buffer_load_dwordx4 v[{t+4}:{t+7}], v{pa}, {WSRD}, s{S_MOFF} offen offset:768 sc1
        """)
    def check(t):
        a(f"""
        s_add_u32 s{S_SPIN}, s{S_SPIN}, 1
        s_waitcnt vmcnt(3)
        ds_write_b128 v{pa}, v[{t}:{t+3}]
        v_max3_u32 v{x}, v{t}, v{t+1}, v{t+2}
        s_waitcnt vmcnt(2)
        ds_write_b128 v{pa}, v[{t+4}:{t+7}] offset:768
        v_max3_u32 v{x}, v{x}, v{t+3}, v{t+4}
        v_max3_u32 v{x}, v{x}, v{t+5}, v{t+6}
        v_max_u32 v{x}, v{x}, v{t+7}
        v_cmp_eq_u32 vcc, -1, v{x}
        """)
    a(f's_mov_b32 s{S_SPIN}, 0')
    issue(sets[0])
    while gap > 0:
        a(f's_nop {min(gap, 16) - 1}'); gap -= 16
    issue(sets[1]); check(sets[0])
    a(f's_cbranch_vccnz {l}\n{d}:\ns_waitcnt lgkmcnt(0)\ns_barrier')
    def cold():
        a.label(l)
        issue(sets[0]); check(sets[1])
        a(f's_cbranch_vccz {d}')
        issue(sets[1]); check(sets[0])
        a(f"""
        s_cbranch_vccz {d}
        s_cmp_lt_u32 s{S_SPIN}, s{S_LIM}
        s_cbranch_scc1 {l}
        s_mov_b32 s{S_LIM}, 1
        s_branch {d}
        """)
    a.cold.append(cold)

def wait_hint(a, vaddr, soff, regs, imm=0, delay=0, gap=12, inner=8, fill=None, primed=False):
    n = len(regs)
    l = a.newlabel('L_h'); d = a.newlabel('L_hd')
    ld = lambda r: f'buffer_load_dword v{r}, v{vaddr}, {WSRD}, s{soff} offen offset:{imm} sc1'
    a(f's_mov_b32 s{S_SPIN}, 0')
    fill = list(fill or [])
    per = -(-len(fill) // (n-1))
    for k in range(0 if primed else n-1):
        a(ld(regs[k]))
        for x in fill[k*per:(k+1)*per]: a(x)
        if per < gap: a(f's_nop {gap - per}')
    a.label(l)
    for k in range(n):
        a(f"""
        {ld(regs[(k+n-1) % n])}
        s_waitcnt vmcnt({n-1})
        v_cmp_eq_u32 vcc, -1, v{regs[k]}
        s_cbranch_vccz {d}
        s_nop {inner}
        """)
    a(f"""
    s_add_u32 s{S_SPIN}, s{S_SPIN}, 1
    s_cmp_lt_u32 s{S_SPIN}, s{S_LIM}
    s_cbranch_scc1 {l}
{d}:
    """)
    while delay > 0:
        a(f's_nop {min(delay, 16) - 1}'); delay -= 16

def wait_cnt(a, off_sgpr, target, vt, sleep=4):
    l = a.newlabel('L_wc'); d = a.newlabel('L_wcd')
    a(f"""
    s_mov_b32 s{S_SPIN}, 0
    v_mov_b32 v{vt}, 0
{l}:
    buffer_load_dword v{vt+1}, v{vt}, {WSRD}, s{off_sgpr} offen sc1
    s_add_u32 s{S_SPIN}, s{S_SPIN}, 1
    s_waitcnt vmcnt(0)
    v_readfirstlane_b32 s{S_T0}, v{vt+1}
    s_cmp_ge_u32 s{S_T0}, {target}
    s_cbranch_scc1 {d}
    s_sleep {sleep}
    s_cmp_lt_u32 s{S_SPIN}, s{S_LIM}
    s_cbranch_scc1 {l}
    s_mov_b32 s{S_LIM}, 1
{d}:
    """)

def img_addr(a, dst, t, lane):
    a(f"""
    v_bfe_u32 v{dst}, v{lane}, 3, 1
    v_lshlrev_b32 v{dst}, 9, v{dst}
    v_bfe_u32 v{t}, v{lane}, 2, 1
    v_lshl_add_u32 v{dst}, v{t}, 6, v{dst}
    v_and_b32 v{t}, 1, v{lane}
    v_lshl_add_u32 v{dst}, v{t}, 5, v{dst}
    v_lshrrev_b32 v{t}, 4, v{lane}
    v_lshl_add_u32 v{dst}, v{t}, 3, v{dst}
    v_bfe_u32 v{t}, v{lane}, 1, 1
    v_lshl_add_u32 v{dst}, v{t}, 2, v{dst}
    """)

def common_addrs(a, V, LN):
    a(f"""
    v_lshlrev_b32 v{V['l8']}, 3, v{LN}
    s_mul_i32 s{S_T0}, s{S_WAVE}, {112*16}
    v_lshlrev_b32 v{V['pa']}, 4, v{LN}
    v_add_u32 v{V['pa']}, s{S_T0}, v{V['pa']}
    v_and_b32 v{LN+1}, 2, v{LN}
    v_cmp_ne_u32 vcc, 0, v{LN+1}
    v_mov_b32 v{LN+1}, 0x4444
    v_mov_b32 v{LN+2}, 0xeeee
    v_cndmask_b32 v{V['idx']}, v{LN+1}, v{LN+2}, vcc
    """)

def load_1k_run(a, dsts, vaddr, sbase, flags='', budget=None):
    for i, d in enumerate(dsts):
        if i and i % 4 == 0:
            a(f's_add_u32 s{sbase}, s{sbase}, 4096')
        a(f'buffer_load_dwordx4 {d}, v{vaddr}, {WSRD}, s{sbase} offen offset:{(i%4)*1024} {flags}')
        if budget is not None:
            budget[0] += 1
            if budget[0] >= 56:
                a('s_waitcnt vmcnt(28)'); budget[0] = 28

class Gaps:
    def __init__(self, n):
        self.ds = [[] for _ in range(n)]; self.va = [[] for _ in range(n)]; self.pre = [[] for _ in range(n)]
        self.n = n
    def put(self, kind, g, text, excl=False):
        while g < self.n - 1:
            if excl:
                if not self.ds[g] and not self.va[g]: break
            else:
                lst = self.ds[g] if kind == 'ds' else self.va[g]
                other = self.va[g] if kind == 'ds' else self.ds[g]
                if not lst and not (other and other[-1][1]): break
            g += 1
        (self.ds if kind == 'ds' else self.va)[g].append((text, excl))
        return g
    def force(self, kind, g, text):
        (self.ds if kind == 'ds' else self.va)[min(g, self.n-1)].append((text, False))

def emit_stream(a, mf, gp, lq, pre=None):
    for i, (m, tags) in enumerate(mf):
        for tg in tags:
            w = lq.wait(tg)
            if w: a(w)
        a(m)
        for lst in (gp.ds[i], gp.va[i]):
            for x, _ in lst:
                t = x(lq) if callable(x) else x
                if t: a(t)

def dsop(text, tag=None):
    def f(lq):
        lq.issue(tag); return text
    return f
def dswait(tag, then=''):
    def f(lq):
        return lq.wait(tag) + '\n' + then
    return f

SV = dict(l8=0, pa=1, idx=2, k1=3, mf=12, acc=40, w=64)
def tile_of(w, u):
    if u < 5: return (u, w)
    order = {(0, 5): (5, 0), (1, 5): (5, 1), (2, 5): (5, 2), (2, 6): (5, 3), (0, 6): (6, 0), (1, 6): (6, 1), (0, 7): (6, 2), (1, 7): (6, 3)}
    return order[(w, u)]
NUNIT = [8, 8, 7, 5]
F = dict(l16=4, px=5, pm=6, mk0=7, mk1=8, mk2=9, wz=10, xf=88, tf=200, sa=228, t=240)

def score_setup(a, stamps, cfg):
    V = SV; LN = 44
    a(f'v_mov_b32 v{LN}, v1')
    team_register(a)
    common_addrs(a, V, LN)
    img_addr(a, V['k1'], LN+1, LN)
    g, cc, par, ib, t = LN+1, LN+2, LN+3, LN+4, LN+5
    a(f"""
    v_lshlrev_b32 v{F['l16']}, 4, v{LN}
    v_lshrrev_b32 v{g}, 4, v{LN}
    v_bfe_u32 v{cc}, v{LN}, 2, 2
    v_bfe_u32 v{par}, v{LN}, 1, 1
    v_and_b32 v{ib}, 1, v{LN}
    v_and_b32 v{t}, 15, v{LN}
    v_lshlrev_b32 v{F['px']}, 4, v{t}
    v_lshrrev_b32 v{t}, 1, v{g}
    v_lshl_add_u32 v{F['px']}, v{t}, 8, v{F['px']}
    v_and_b32 v{t}, 1, v{g}
    v_lshl_add_u32 v{F['px']}, v{t}, 3, v{F['px']}
    s_and_b32 s{S_T0}, s{S_ROLE}, 1
    s_lshl_b32 s{S_T0}, s{S_T0}, 5
    s_lshr_b32 s{S_T1}, s{S_ROLE}, 1
    s_lshl_b32 s{S_T1}, s{S_T1}, 9
    s_add_u32 s{S_T0}, s{S_T0}, s{S_T1}
    s_add_u32 s{S_T0}, s{S_T0}, 8192
    v_and_b32 v{F['pm']}, 0xffffffdf, v{F['px']}
    v_add_u32 v{F['pm']}, s{S_T0}, v{F['pm']}
    s_lshl_b32 s{S_T0}, s{S_ROLE}, 9
    v_add_u32 v{F['px']}, s{S_T0}, v{F['px']}
    v_lshlrev_b32 v{t}, 4, v{ib}
    v_mov_b32 v{F['mk2']}, 0xffff
    v_lshlrev_b32 v{F['mk2']}, v{t}, v{F['mk2']}
    v_cmp_eq_u32 vcc, v{cc}, v{g}
    v_mov_b32 v{t}, 0
    v_cndmask_b32 v{F['mk2']}, v{t}, v{F['mk2']}, vcc
    v_cmp_eq_u32 vcc, 0, v{par}
    v_mov_b32 v{t+1}, 0xff800000
    v_cndmask_b32 v{F['mk0']}, v{t}, v{F['mk2']}, vcc
    v_cndmask_b32 v{F['mk1']}, v{F['mk2']}, v{t}, vcc
    v_cndmask_b32 v{F['wz']}, v{t+1}, v{t}, vcc
    s_mul_i32 s{S_T1}, s{S_ROLE}, {28*14336}
    s_add_u32 s{S_T1}, s{S_T1}, {L.WT}
    """)
    done = a.newlabel('L_sw')
    for w in range(4):
        nx = a.newlabel('L_swn')
        if w < 3: a(f's_cmp_lg_u32 s{S_WAVE}, {w}\ns_cbranch_scc1 {nx}')
        bud = [0]
        for u in range(NUNIT[w]):
            b, ga = tile_of(w, u)
            a(f's_add_u32 s{S_T0}, s{S_T1}, {(4*b+ga)*14336}')
            load_1k_run(a, [wreg_half(u*7 + k//2, V['w'], k % 2) for k in range(14)], F['l16'], S_T0, cfg['wfl'], budget=bud)
        if w < 3: a(f's_branch {done}\n{nx}:')
    a(f"""
{done}:
    s_mov_b32 s{S_STEP}, 0
    s_mov_b32 s{S_MOFF}, {L.MB_M}
    s_mov_b32 s{S_POFF}, {L.MB_P}
    s_mov_b32 s{S_GOFF}, {L.XN}
    s_lshl_b32 s{S_STMP}, s{S_ROLE}, 2
    s_add_u32 s{S_STMP}, s{S_STMP}, s{S_WAVE}
    s_lshl_b32 s{S_STMP}, s{S_STMP}, 12
    s_add_u32 s{S_STMP}, s{S_STMP}, {L.STAMP}
    s_waitcnt vmcnt(0)
    """)
    team_mode(a, V['mf'], V['mf']+1)

def step_advance(a, gstride, xstride=114688):
    a(f"""
    s_add_u32 s{S_STEP}, s{S_STEP}, 1
    s_add_u32 s{S_MOFF}, s{S_MOFF}, 8192
    s_add_u32 s{S_POFF}, s{S_POFF}, 16384
    s_add_u32 s{S_GOFF}, s{S_GOFF}, {gstride}
    s_add_u32 s{S_XOFF}, s{S_XOFF}, {xstride}
    s_add_u32 s{S_STMP}, s{S_STMP}, 64
    """)

def rowred(a, op, x):
    for m in ('row_ror:8', 'row_ror:4', 'row_ror:2', 'row_ror:1'):
        for r in (x, x+1):
            a(f'{op}_dpp v{r}, v{r}, v{r} {m} row_mask:0xf bank_mask:0xf')

def score_wave(a, w, pf, stamps, cfg):
    V = SV; idx = V['idx']; mf = V['mf']
    top = a.newlabel(f'L_sc{w}_top'); first = a.newlabel(f'L_sc{w}_first')
    nunit = NUNIT[w]
    accof = lambda u: V['acc'] + 4*(u % 6)
    ok = {0: (0, 9, 2), 1: (2,), 2: (0, 9, 1, 2), 3: (7, 8, 4)}[w]
    ST = (lambda k: f's_memtime s[{40+2*k}:{41+2*k}]' if k in ok else '') if stamps else (lambda k: '')
    def stamp(a, stamps, k):
        a(ST(k))
    xf, tf, sa, T = F['xf'], F['tf'], F['sa'], F['t']
    FA, FV = 8, 9
    HA = 11
    HT = ([5, 6, 7, 10] if w < 3 else [T+4, T+5, T+6, T+7])[:cfg['hdepth']]
    def load_x():
        a(f's_mov_b32 s{S_T0}, s{S_GOFF}')
        load_1k_run(a, [vr(xf + 4*k, 4) for k in range(28)], F['l16'], S_T0)
    XW = [(0, 9), (9, 18), (18, 28)]
    def dma_x():
        lo, hi = XW[w]
        a(f"""
        s_and_b32 s{S_T0}, s{S_STEP}, 1
        s_xor_b32 s{S_T0}, s{S_T0}, 1
        s_mul_i32 s{S_T0}, s{S_T0}, 28672
        s_add_u32 s{S_T0}, s{S_T0}, {LDS_X + lo*1024}
        s_add_u32 s{S_T1}, s{S_GOFF}, {28672 + lo*1024 - w*1792}
        """)
        for k in range(hi - lo):
            if k % 4 == 0:
                if k: a(f's_add_u32 s{S_T0}, s{S_T0}, 4096\ns_add_u32 s{S_T1}, s{S_T1}, 4096')
                a(f's_mov_b32 m0, s{S_T0}')
            a(f"buffer_load_dwordx4 v{V['pa']}, {WSRD}, s{S_T1} offen offset:{(k%4)*1024} lds")
    def read_x():
        a(f"""
        s_and_b32 s{S_T0}, s{S_STEP}, 1
        s_mul_i32 s{S_T0}, s{S_T0}, 28672
        v_add_u32 v{T}, s{S_T0}, v{F['l16']}
        """)
        for k in range(28): a(f'ds_read_b128 v[{xf+4*k}:{xf+4*k+3}], v{T} offset:{LDS_X + k*1024}')
    def zero_acc():
        for u in range(2 if cfg['m2'] else min(6, nunit)):
            a(f'v_mov_b64 v[{accof(u)}:{accof(u)+1}], 0\nv_mov_b64 v[{accof(u)+2}:{accof(u)+3}], 0')
        if w == 3:
            for k in range(4): a(f'v_mov_b64 v[{sa+2*k}:{sa+2*k+1}], 0')
            a(f"v_mov_b32 v{sa+8}, v{F['wz']}\nv_mov_b32 v{sa+9}, v{F['wz']}\nv_mov_b64 v[{sa+10}:{sa+11}], 0")
    a(f"v_lshrrev_b32 v{HA}, 1, v{V['l8']}\nv_min_u32 v{HA}, {55*4}, v{HA}\ns_and_b32 s{S_T0}, s{S_ROLE}, 3\ns_lshl_b32 s{S_T0}, s{S_T0}, 8\ns_add_u32 s{S_T0}, s{S_T0}, 7168\nv_add_u32 v{HA}, s{S_T0}, v{HA}")
    if w == 3:
        load_x()
        a(f'v_and_b32 v{T+12}, {15*8}, v0\nv_lshlrev_b32 v{T+12}, 3, v{T+12}\nv_add_u32 v{T+12}, 6144, v{T+12}')
        if stamps: a('s_mov_b32 s40, 0\ns_mov_b32 s42, 0\ns_mov_b32 s44, 0')
        a(f's_mov_b32 s{S_EOFF}, 0\ns_lshl_b32 s{S_T0}, s{S_ROLE}, 2\ns_add_u32 s{S_T0}, s{S_T0}, 12288\nv_lshlrev_b32 v{T+14}, 4, v0\nv_add_u32 v{T+14}, s{S_T0}, v{T+14}\nv_mov_b32 v{T+15}, 0')
    else:
        a(f"v_add_u32 v{FA}, {LDS_FL + 4*w}, v{F['l16']}\nv_mov_b32 v{FV}, 0")
        for k in range(5): a(f'ds_write_b32 v{FA}, v{FV} offset:{k*1024}')
        a(f'v_and_b32 v4, {31*8}, v0\nv_lshlrev_b32 v4, 3, v4\nv_add_u32 v4, {w*2048}, v4')
    if w < 3: dma_x()
    if cfg['prio'][w]: a(f"s_setprio {cfg['prio'][w]}")
    zero_acc()
    if cfg.get('wgd'): a('s_memrealtime s[88:89]')
    a(f's_branch {first}')
    a.label(top)
    zero_acc()
    stamp(a, stamps, 0)
    if cfg['msamp'] == 2: a(f'v_mov_b32 v{mf if w < 3 else T+13}, 0')
    if cfg['mdma'] == 2: a(f's_mov_b32 m0, {LDS_M}\ns_add_u32 s{S_T0}, s{S_MOFF}, 4096')
    elif cfg['mdma']: a(f's_mov_b32 m0, {LDS_M + w*2048}\ns_add_u32 s{S_T0}, s{S_MOFF}, {w*2048 - w*1792}')
    if not cfg['cutrig'] or w == 0: wait_hint(a, HA, S_MOFF, HT, delay=cfg['mdelay'], inner=cfg['hinner'])
    if cfg['cutrig'] and cfg['mdma'] != 2: a('s_barrier')
    if cfg['mdma']:
        got = a.newlabel('L_got')
        a(ST(9))
        nk = 2 if w < 3 else 1
        SA_ = (4 if w < 3 else T+12)
        def rnd(r):
            if cfg['msamp'] == 2:
                a(f"s_mov_b64 exec, {0x55555555 if w < 3 else 0x5555}\nbuffer_load_dword v{r}, v{SA_}, {WSRD}, s{S_MOFF} offen sc1\ns_mov_b64 exec, -1")
            elif cfg['msamp']: a(f"buffer_load_dword v{r}, v{SA_}, {WSRD}, s{S_MOFF} offen sc1")
            for k in range(nk): a(f"buffer_load_dwordx4 v{V['pa']}, {WSRD}, s{S_T0} offen offset:{k*1024} sc1 lds")
        r0, r1 = (mf, HT[1]) if w < 3 else (T+13, T+15)
        two = cfg['m2d']
        rnd(r0)
        a(f'v_add_u32 v{FV}, 1, v{FV}' if w < 3 else f's_add_u32 s{S_EOFF}, s{S_EOFF}, 1')
        a(f's_mov_b32 s{S_SAFE}, 0\ns_mov_b32 s{S_SPIN}, 1')
        if two:
            gap = two
            while gap > 0:
                a(f's_nop {min(gap, 16) - 1}'); gap -= 16
            rnd(r1)
        ex = (nk+1) if two else 0
        bad = a.newlabel('L_mbad'); okl = a.newlabel('L_mok')
        a(f"""
        {f's_waitcnt vmcnt({nk + ex})' if cfg['msamp'] else ''}
        {f'v_cmp_eq_u32 vcc, -1, v{r0}' if cfg['msamp'] else ''}
        {f's_cbranch_vccnz {bad}' if cfg['msamp'] else ''}
        s_waitcnt vmcnt({ex}) lgkmcnt(0)
{okl}:
        s_barrier
{got}:
        """)
        def coldb():
            lp = a.newlabel('L_mlp')
            a.label(bad)
            if two:
                a(f's_mov_b32 s{S_SPIN}, 2\ns_waitcnt vmcnt(0) lgkmcnt(0)\nv_cmp_eq_u32 vcc, -1, v{r1}\ns_cbranch_vccz {okl}')
            a.label(lp)
            rnd(r0)
            a(f"""
            s_add_u32 s{S_SPIN}, s{S_SPIN}, 1
            s_waitcnt vmcnt(0) lgkmcnt(0)
            v_cmp_eq_u32 vcc, -1, v{r0}
            s_cbranch_vccz {okl}
            s_cmp_lt_u32 s{S_SPIN}, s{S_LIM}
            s_cbranch_scc1 {lp}
            s_mov_b32 s{S_LIM}, 1
            s_branch {okl}
            """)
        a.cold.append(coldb)
        def coldf():
            a.label(first)
            a(f'v_add_u32 v{FV}, 1, v{FV}' if w < 3 else f's_add_u32 s{S_EOFF}, s{S_EOFF}, 1')
            a(f's_mov_b32 s{S_SAFE}, 1')
            poll_m(a, V)
            a(f's_branch {got}')
        a.cold.append(coldf)
    else:
        a.label(first)
        a(f'v_add_u32 v{FV}, 1, v{FV}' if w < 3 else f's_add_u32 s{S_EOFF}, s{S_EOFF}, 1')
        a(ST(9))
        if cfg['m2']: poll_m2(a, V, cfg['m2'], mf)
        else: poll_m(a, V)
    stamp(a, stamps, 1)
    if stamps and w < 3: a(f's_mov_b32 s{40+2*7}, s{S_SPIN}')
    lq = Q('lgkmcnt', 15)
    mrd = [dsop(f"ds_read_b64_tr_b16 v[{mf+4*b+2*hf}:{mf+4*b+2*hf+1}], v{V['l8']} offset:{LDS_M+b*1024+hf*512}", ('mf', b))
           for b in range(7) for hf in range(2)]
    for x in mrd[:cfg['mpre']]: a(x(lq))
    order = [(u, b) for b in range(7) for u in range(2)] + [(u, b) for u in range(2, nunit) for b in range(7)]
    ms = [(SM(accof(u), mf+4*b, wreg(u*7 + b, V['w']), idx), [('mf', b)] if u == 0 else []) for u, b in order]
    last = {u: i for i, (u, b) in enumerate(order)}
    def smfma(b):
        t4 = tf + 4*b
        return [(f"v_mfma_f32_16x16x32_bf16 v[{sa+8}:{sa+11}], v[{t4}:{t4+3}], v[{mf+4*b}:{mf+4*b+3}], " + f'v[{sa+8}:{sa+11}]', [('tf', b)]),
                (SM(sa, t4, vr(xf + 8*b, 8), idx), []),
                (SM(sa+4, t4, vr(xf + 56 + 8*b, 8), idx), [])]
    def tread(b, hf):
        return dsop(f"ds_read_b64_tr_b16 v[{tf+4*b+2*hf}:{tf+4*b+2*hf+1}], v{V['l8']} offset:{LDS_T+b*1024+hf*512}", ('tf', b))
    phases = [(0, 1, 2), (3, 4)]
    starts = []
    if w == 3:
        for ph in phases:
            starts.append(len(ms))
            for b in ph: ms += smfma(b)
    n = len(ms)
    gp = Gaps(n)
    for k, x in enumerate(mrd[cfg['mpre']:]): gp.put('ds', k, x)
    flag_after = {2, 4} | ({5} if w < 2 else {6})
    def post(u):
        A = accof(u); b, ga = tile_of(w, u)
        va = [f'v_add_f32 v{A}, v{A}, v{A+2}', f'v_add_f32 v{A+1}, v{A+1}, v{A+3}', f'v_cvt_pk_bf16_f32 v{A}, v{A}, v{A+1}']
        ds = [dsop(f"ds_write_b32 v{V['k1']}, v{A} offset:{LDS_T+b*1024+ga*128}", ('k', u))]
        if w < 3 and u in flag_after:
            ds.append(dsop(f'ds_write_b32 v{FA}, v{FV} offset:{sorted(flag_after).index(u)*1024}'))
        return va, ds
    g = 0
    done_at = {}
    for u in range(nunit - (0 if w == 3 else 1)):
        va, ds = post(u)
        g = max(g, last[u] + 3 - (len(va) - 3))
        for x in va: g = gp.put('va', g, x) + 1
        for x in ds: g = gp.put('ds', g, x, excl=True) + 1
        done_at[u] = g
    def zero_in_gaps(u, g):
        A = accof(u)
        for k in range(2):
            gg = g
            while gg < 7*u - 2 and (gp.va[gg] or (gp.ds[gg] and gp.ds[gg][-1][1])): gg += 1
            if gg >= 7*u - 2: gg = max(g, 7*u - 4 + k)
            gp.force('va', gg, f'v_mov_b64 v[{A+2*k}:{A+2*k+1}], 0')
    if cfg['m2']:
        gp.force('ds', cfg['m2w'], 's_waitcnt vmcnt(0)')
        for u in range(2, min(6, nunit)): zero_in_gaps(u, cfg['m2w'])
    for u in range(6, nunit): zero_in_gaps(u, done_at[u-6] + 1)
    if w == 3:
        for pi, ph in enumerate(phases):
            flagrd = f"ds_read_b128 v[{T}:{T+3}], v{F['l16']} offset:{LDS_FL + pi*1024}"
            lead = cfg['lead'][pi]
            g = max(starts[pi] - lead, done_at[max(ph)] if max(ph) < 5 else 0)
            g = min(g, starts[pi]-1)
            if cfg['pnop'][pi]: gp.force('ds', g, f"s_nop {cfg['pnop'][pi]-1}")
            gp.force('ds', g, dsop(flagrd, ('fl', pi)))
            ops = [tread(b, hf) for b in ph for hf in range(2)]
            for k, x in enumerate(ops):
                gp.force('ds', min(g + (k+1)//2, starts[pi]-1), x)
            FM = T+11
            def chk(lq, pi=pi):
                return lq.wait(('fl', pi)) + (f'\nv_min3_u32 v{FM}, v{T}, v{T+1}, v{T+2}' if pi == 0 else
                                              f'\nv_min3_u32 v{T}, v{T}, v{T+1}, v{T+2}\nv_min_u32 v{FM}, v{FM}, v{T}')
            gp.force('va', starts[pi], chk)
    if w == 0 and cfg['phint'] < 0:
        gp.force('ds', n - 1 + cfg['phint'], f"""s_mov_b64 exec, 15
            buffer_store_dword v{FV}, v4, {WSRD}, s{S_POFF} offen {pf}
            s_mov_b64 exec, -1""")
    emit_stream(a, ms, gp, lq)
    hint = f"""s_mov_b64 exec, 15
        buffer_store_dword v{T+15}, v{T+14}, {WSRD}, s{S_POFF} offen {pf}
        s_mov_b64 exec, -1"""
    if w < 3:
        va, ds = post(nunit-1)
        for x in va: a(x)
        for x in ds: a(x(lq))
        a(lq.drain())
        a('s_barrier')
        stamp(a, stamps, 2)
        if cfg['mdma']:
            again = a.newlabel('L_again')
            a(f"""
            s_barrier
            v_mov_b32 v{mf}, {LDS_VD}
            ds_read_b32 v{mf}, v{mf}
            s_waitcnt lgkmcnt(0)
            v_cmp_eq_u32 vcc, v{mf}, v{FV}
            s_cbranch_vccnz {again}
            """)
            def colda():
                a.label(again)
                zero_acc()
                a(f's_branch {first}')
            a.cold.append(colda)
        elif cfg['quiet']: a(f"s_sleep {cfg['quiet']}")
    else:
        s = T
        mx = T+6; z = T+8; EA = tf; B1 = tf+4; B2 = tf+8; D1 = tf+12; D2 = tf+16; rz = T+10
        a(f"""
        v_mov_b64 v[{B1+2}:{B1+3}], 0
        v_mov_b64 v[{B2}:{B2+1}], 0
        v_mov_b32 v{B2+3}, 0
        v_mov_b32 v{EA+3}, 0
        """)
        for _ in range(cfg['b5nop']): a('s_nop 3')
        q = Q('lgkmcnt', 15)
        a(f"ds_read_b128 v[{T}:{T+3}], v{F['l16']} offset:{LDS_FL + 2048}"); q.issue('fl')
        for hf in range(2): a(tread(5, hf)(q))
        stamp(a, stamps, 2)
        if cfg['al'] is not None:
            a.raw('    .p2align 6')
            for _ in range(cfg['al']): a('s_nop 0')
        a('s_barrier')
        stamp(a, stamps, 3)
        PX = lambda k: a('s_memtime s[52:53]') if stamps and cfg['px'] == k else None
        PX(0)
        for hf in range(2): a(tread(6, hf)(q))
        PX(1)
        if cfg['phint'] == 0: a(hint)
        PX(2)
        fl5 = [f'v_min3_u32 v{T}, v{T}, v{T+1}, v{T+2}', f'v_min_u32 v{FM}, v{FM}, v{T}', f'v_subrev_u32 v{FM}, s{S_EOFF}, v{FM}']
        for b in (5, 6):
            for m, tags in smfma(b):
                for tg in tags: a(q.wait(tg))
                if b == 6 and tags: PX(4)
                a(m)
                if fl5: a(fl5.pop(0))
            if b == 5: PX(3)
        a(ST(7))
        if cfg['phint'] == 1: a(hint)
        e = sa
        redo = a.newlabel('L_smr'); slowmx = a.newlabel('L_sms'); go = a.newlabel('L_smg')
        a(f"""
        s_mov_b32 s{S_T1}, {120 << 23}
        v_add_f32_dpp v{s+4}, v{sa+10}, v{sa+8} {QP}
        v_add_f32_dpp v{s+5}, v{sa+11}, v{sa+9} {QP}
        v_pk_add_f32 v[{s}:{s+1}], v[{sa}:{sa+1}], v[{sa+2}:{sa+3}]
        v_exp_f32 v{e+8}, v{s+4}
        v_exp_f32 v{e+9}, v{s+5}
        v_pk_add_f32 v[{s+2}:{s+3}], v[{sa+4}:{sa+5}], v[{sa+6}:{sa+7}]
        v_exp_f32 v{e}, v{s}
        v_exp_f32 v{e+1}, v{s+1}
        v_exp_f32 v{e+2}, v{s+2}
        v_exp_f32 v{e+3}, v{s+3}
{redo}:;nf
        v_pk_add_f32 v[{z}:{z+1}], v[{e}:{e+1}], v[{e+8}:{e+9}]
        v_cvt_pk_bf16_f32 v{EA+2}, v{e+8}, v{e+9}
        v_pk_add_f32 v[{z}:{z+1}], v[{z}:{z+1}], v[{e+2}:{e+3}]
        """)
        if cfg['phint'] == 2: a(hint)
        fill = [f'v_cvt_pk_bf16_f32 v{EA+k}, v{e+2*k}, v{e+2*k+1}' for k in range(2)]
        for m in ('row_ror:8', 'row_ror:4', 'row_ror:2', 'row_ror:1'):
            if fill: a(fill.pop(0))
            for r in (z, z+1):
                a(f'v_add_f32_dpp v{r}, v{r}, v{r} {m} row_mask:0xf bank_mask:0xf')
        LO, HI = (127-60) << 23, (127+60) << 23
        a(ST(8))
        a(f"""
        v_rcp_f32 v{mx}, v{z}
        v_rcp_f32 v{mx+1}, v{z+1}
        v_subrev_u32 v{z}, {LO}, v{z}
        v_cvt_pk_bf16_f32 v{rz}, v{mx}, v{mx+1}
        v_and_b32 v{B1}, v{rz}, v{F['mk0']}
        v_and_b32 v{B1+1}, v{rz}, v{F['mk1']}
        v_and_b32 v{B2+2}, v{rz}, v{F['mk2']}
        v_subrev_u32 v{z+1}, {LO}, v{z+1}
        v_mfma_f32_16x16x32_bf16 v[{D1}:{D1+3}], v[{EA}:{EA+3}], v[{B1}:{B1+3}], 0
        v_mfma_f32_16x16x32_bf16 v[{D2}:{D2+3}], v[{EA}:{EA+3}], v[{B2}:{B2+3}], 0
        v_max3_u32 v{z}, v{z}, v{z+1}, v{FM}
        v_cmp_lt_u32 vcc, s{S_T1}, v{z}
        s_cmp_eq_u64 vcc, 0
        s_cselect_b64 exec, -1, 0
        v_cvt_pk_bf16_f32 v{D1}, v{D1}, v{D1+1}
        v_cvt_pk_bf16_f32 v{D1+1}, v{D1+2}, v{D1+3}
        buffer_store_dwordx2 v[{D1}:{D1+1}], v{F['px']}, {WSRD}, s{S_POFF} offen {pf}
        v_cvt_pk_bf16_f32 v{D2}, v{D2}, v{D2+1}
        v_cvt_pk_bf16_f32 v{D2+1}, v{D2+2}, v{D2+3}
        buffer_store_dwordx2 v[{D2}:{D2+1}], v{F['pm']}, {WSRD}, s{S_POFF} offen {pf}
        s_mov_b64 exec, -1
        s_cbranch_scc0 {slowmx}
        """)
        if cfg['mdma']: a('s_barrier')
        def coldmx():
            a(f'{slowmx}:' + ('\ns_add_u32 s40, s40, 1' if stamps else ''))
            if cfg['mdma']:
                sf = a.newlabel('L_safe')
                a(f"""
                s_cmp_lg_u32 s{S_SAFE}, 0
                s_cbranch_scc1 {sf}
                v_mov_b32 v{T}, {LDS_VD}
                v_mov_b32 v{T+1}, s{S_EOFF}
                ds_write_b32 v{T}, v{T+1}
                s_waitcnt lgkmcnt(0)
                s_barrier
                """)
                zero_acc()
                a(f's_branch {first}\n{sf}:')
            a(f's_mov_b32 s{S_T1}, -1')
            for k in range(4): a(f'v_mov_b64 v[{sa+2*k}:{sa+2*k+1}], 0')
            a(f"v_mov_b32 v{sa+8}, v{F['wz']}\nv_mov_b32 v{sa+9}, v{F['wz']}\nv_mov_b64 v[{sa+10}:{sa+11}], 0")
            q2 = Q('lgkmcnt', 15)
            for b in range(7):
                for hf in range(2): a(tread(b, hf)(q2))
            a('s_waitcnt lgkmcnt(0)')
            for b in range(7):
                for m, tags in smfma(b): a(m)
            a(f"""
            v_mov_b64 v[{B1+2}:{B1+3}], 0
            v_mov_b64 v[{B2}:{B2+1}], 0
            v_mov_b32 v{B2+3}, 0
            v_mov_b32 v{EA+3}, 0
            v_add_f32_dpp v{s+4}, v{sa+10}, v{sa+8} {QP}
            v_add_f32_dpp v{s+5}, v{sa+11}, v{sa+9} {QP}
            v_pk_add_f32 v[{s}:{s+1}], v[{sa}:{sa+1}], v[{sa+2}:{sa+3}]
            v_pk_add_f32 v[{s+2}:{s+3}], v[{sa+4}:{sa+5}], v[{sa+6}:{sa+7}]
            v_max3_f32 v{mx}, v{s}, v{s+4}, v{s+2}
            v_max3_f32 v{mx+1}, v{s+1}, v{s+5}, v{s+3}
            """)
            rowred(a, 'v_max_f32', mx)
            for k in range(3): a(f'v_pk_add_f32 v[{s+2*k}:{s+2*k+1}], v[{s+2*k}:{s+2*k+1}], v[{mx}:{mx+1}] neg_lo:[0,1] neg_hi:[0,1]')
            for k in range(6): a(f'v_exp_f32 v{e+(k if k < 4 else k+4)}, v{s+k}')
            a(f's_nop 1\ns_branch {redo}')
        a.cold.append(coldmx)
        stamp(a, stamps, 4)
    if stamps: a('s_memtime s[50:51]\ns_memrealtime s[60:61]')
    stamp_flush(a, stamps, 11, mf)
    step_advance(a, 28672, 458752)
    a(f's_cmp_ge_u32 s{S_STEP}, 63\ns_cbranch_scc1 L_exit')
    if w == 3: read_x()
    elif not cfg['nox']: dma_x()
    if cfg['ssleep'][w]:
        a(f"s_sleep {cfg['ssleep'][w]}")
    a(f's_branch {top}')
    a.flush_cold()

S_YD = 33; S_SAFE = 36; S_CV = 37; S_CU = 38; S_MD = 39
CV = dict(ha=160, one=161, zero=162, cu=163, hw=164, hm=165, nw=172, nr=173, l8=0, pa=1, idx=2, l16=3, pr=4, mw=6, lw=7, rw=8, rr=5, mf=12, acc=40, itm=72, vx=88, uf=96, tw=128, w=176)

def comb_setup(a, stamps, cfg):
    V = CV; LN = 112
    a(f'v_mov_b32 v{LN}, v1')
    team_register(a)
    common_addrs(a, V, LN)
    img_addr(a, V['mw'], LN+1, LN)
    a(f"""
    s_sub_u32 s{S_ROLE}, s{S_ROLE}, 16
    s_lshl_b32 s{S_ROLE}, s{S_ROLE}, 1
    s_and_b32 s{S_T0}, s{S_WAVE}, 1
    s_add_u32 s{S_T1}, s{S_ROLE}, s{S_T0}
    s_lshr_b32 s{S_T0}, s{S_T1}, 2
    s_lshl_b32 s{S_T0}, s{S_T0}, 10
    s_and_b32 s{S_T1}, s{S_T1}, 3
    s_lshl_b32 s{S_T1}, s{S_T1}, 7
    s_add_u32 s{S_T0}, s{S_T0}, s{S_T1}
    s_add_u32 s{S_T0}, s{S_T0}, 8192
    v_add_u32 v{V['mw']}, s{S_T0}, v{V['mw']}
    v_lshlrev_b32 v{V['l16']}, 4, v{LN}
    s_mul_i32 s{S_T0}, s{S_WAVE}, 28672
    s_add_u32 s{S_T0}, s{S_T0}, {LDS_BW}
    v_add_u32 v{V['lw']}, s{S_T0}, v{V['l16']}
    s_lshl_b32 s{S_T0}, s{S_WAVE}, 10
    v_add_u32 v{V['rw']}, s{S_T0}, v{V['l16']}
    v_add_u32 v{V['pr']}, s{S_T0}, v{V['rw']}
    s_and_b32 s{S_T0}, s{S_WAVE}, 1
    s_lshl_b32 s{S_T0}, s{S_T0}, 3
    v_add_u32 v{V['rr']}, s{S_T0}, v{V['l16']}
    s_mul_i32 s{S_T1}, s{S_WAVE}, {4*28}
    s_add_u32 s{S_T1}, s{S_T1}, s{S_ROLE}
    s_add_u32 s{S_T1}, s{S_T1}, 448
    s_mul_i32 s{S_T1}, s{S_T1}, 14336
    s_add_u32 s{S_T1}, s{S_T1}, {L.WT}
    """)
    toff = lambda u: ((u >> 1)*28 + (u & 1))*14336
    for u in (6, 7):
        a(f's_add_u32 s{S_T0}, s{S_T1}, {toff(u)}')
        load_1k_run(a, [vr(12 + 4*k, 4) for k in range(14)], V['l16'], S_T0)
        for k in range(14):
            a(f's_waitcnt vmcnt({13-k})')
            a(f"ds_write_b128 v{V['lw']}, v[{12+4*k}:{12+4*k+3}] offset:{(u-6)*14336+k*1024}")
        a('s_waitcnt lgkmcnt(0)')
    bud = [0]
    for u in range(6):
        a(f's_add_u32 s{S_T0}, s{S_T1}, {toff(u)}')
        load_1k_run(a, [wreg_half(u*7 + k//2, V['w'], k % 2) for k in range(14)], V['l16'], S_T0, cfg['wfl'], budget=bud)
    a(f"""
    s_mov_b32 s{S_STEP}, 0
    s_mov_b32 s{S_MOFF}, {L.MB_M}
    s_mov_b32 s{S_POFF}, {L.MB_P}
    s_lshl_b32 s{S_GOFF}, s{S_ROLE}, 14
    s_lshl_b32 s{S_T0}, s{S_WAVE}, 12
    s_add_u32 s{S_GOFF}, s{S_GOFF}, s{S_T0}
    s_add_u32 s{S_GOFF}, s{S_GOFF}, {L.U}
    s_lshl_b32 s{S_XOFF}, s{S_ROLE}, 12
    s_add_u32 s{S_XOFF}, s{S_XOFF}, {L.VM}
    s_lshr_b32 s{S_STMP}, s{S_ROLE}, 1
    s_add_u32 s{S_STMP}, s{S_STMP}, 16
    s_lshl_b32 s{S_STMP}, s{S_STMP}, 2
    s_add_u32 s{S_STMP}, s{S_STMP}, s{S_WAVE}
    s_lshl_b32 s{S_STMP}, s{S_STMP}, 12
    s_add_u32 s{S_STMP}, s{S_STMP}, {L.STAMP}
    s_waitcnt vmcnt(0)
    """)
    a(f"""
    v_mov_b32 v{V['one']}, 1
    v_mov_b32 v{V['zero']}, 0
    v_mov_b32 v{V['cu']}, 0
    v_and_b32 v{V['ha']}, {120 if cfg['cutrig'] else 24}, v{V['l8']}
    v_lshrrev_b32 v{V['ha']}, 1, v{V['ha']}
    s_lshl_b32 s{S_T0}, s{S_WAVE}, 4
    s_mul_i32 s{S_T0}, s{S_T0}, {0 if cfg['cutrig'] else 1}
    s_and_b32 s{S_T1}, s{S_ROLE}, 6
    s_lshl_b32 s{S_T1}, s{S_T1}, 6
    s_add_u32 s{S_T0}, s{S_T0}, s{S_T1}
    s_add_u32 s{S_T0}, s{S_T0}, 12288
    v_add_u32 v{V['ha']}, s{S_T0}, v{V['ha']}
    s_lshl_b32 s{S_T0}, s{S_ROLE}, 1
    s_add_u32 s{S_T0}, s{S_T0}, s{S_WAVE}
    s_lshl_b32 s{S_T0}, s{S_T0}, 2
    s_add_u32 s{S_T0}, s{S_T0}, {8192 + 7168}
    v_lshlrev_b32 v{V['hw']}, 5, v{V['l8']}
    v_add_u32 v{V['hw']}, s{S_T0}, v{V['hw']}
    s_add_u32 s{S_YD}, s{S_XOFF}, 0x8000000
    v_lshrrev_b32 v{V['hm']}, 1, v{V['l8']}
    v_min_u32 v{V['hm']}, {55*4}, v{V['hm']}
    v_add_u32 v{V['hm']}, 7168, v{V['hm']}
    s_mov_b32 s56, 0
    v_lshrrev_b32 v{V['nw']}, 2, v{V['rw']}
    v_lshrrev_b32 v{V['nr']}, 1, v{V['l8']}
    s_lshl_b32 s{S_MD}, s{S_WAVE}, 11
    s_min_u32 s{S_MD}, s{S_MD}, 5120
    s_mov_b32 s{S_CU}, {L.CNT_U}
    """)
    for k in range(8): a(f"v_mov_b32 v{V['vx']+k}, 0")
    for k in range(16): a(f"v_mov_b32 v{V['itm']+k}, 0")
    for k in range(32): a(f"v_mov_b32 v{V['uf']+k}, 0")
    team_mode(a, V['mf'], V['mf']+1)
    if cfg['flags']:
        wait_cnt(a, S_CU, 28, 9)
        a(f's_mov_b32 s{S_CV}, {L.CNT_I}')
        wait_cnt(a, S_CV, 98, 9)

def comb_wave(a, pf, stamps, cfg):
    V = CV; idx = V['idx']; mf = V['mf']; tw = V['tw']; uf = V['uf']; pa = V['pa']
    top = a.newlabel('L_cb_top'); nh0 = a.newlabel('L_nh')
    HT = [10, 11, 166, 167][:cfg['hdepth']]
    def store_vx(base, r):
        return [f"buffer_store_dwordx4 v[{r}:{r+3}], v{V['rw']}, {WSRD}, s{base} offen {cfg['xflags']}",
                f"s_add_u32 s{S_T1}, s{base}, 4096\nbuffer_store_dwordx4 v[{r+4}:{r+7}], v{V['rw']}, {WSRD}, s{S_T1} offen {cfg['xflags']}"]
    lq = Q('lgkmcnt', 15)
    def lread(lam, hf):
        return dsop(f"ds_read_b128 v[{tw+8*(lam%4)+4*hf}:{tw+8*(lam%4)+4*hf+3}], v{V['lw']} offset:{lam*2048+hf*1024}", ('lw', lam))
    def housekeeping_acc(a=a):
        for u in range(8):
            A = V['acc'] + 4*u
            a(f'v_mov_b64 v[{A}:{A+1}], 0\nv_mov_b64 v[{A+2}:{A+3}], 0')
    def housekeeping(a=a, acc=True):
        if acc: housekeeping_acc(a)
        for lam in range(4):
            for hf in range(2): a(lread(lam, hf)(lq))
    uload = lambda k: f"buffer_load_dwordx4 v[{uf+4*k}:{uf+4*k+3}], v{V['l16']}, {WSRD}, s{S_GOFF if k < 4 else S_EOFF} offen offset:{(k%4)*1024} {cfg['xflags']}"
    uorder = [] if cfg['nou'] else [4, 5, 6, 7, 0, 1, 2, 3]
    ue = uorder[:cfg['uearly']]; ul = uorder[cfg['uearly']:]
    housekeeping()
    t = mf
    slow = a.newlabel('L_cms'); back = a.newlabel('L_cmb'); redo = a.newlabel('L_cmr')
    pre = f"""s_add_u32 s{S_EOFF}, s{S_GOFF}, 16384
        s_lshl_b32 s{S_CU}, s{S_STEP}, 7
        s_add_u32 s{S_CU}, s{S_CU}, {L.CNT_U + 128}
        s_add_u32 s{S_T0}, s{S_MOFF}, s{S_MD}
        s_mov_b32 m0, s{S_MD}"""
    a(pre)
    a(f's_branch {top}\n{nh0}:\ns_barrier')
    a.label(top)
    stamp(a, stamps, 0)
    if cfg['cdma']:
        a(f"""
        buffer_load_dwordx4 v{V['l16']}, {WSRD}, s{S_T0} offen sc1 lds
        buffer_load_dwordx4 v{V['l16']}, {WSRD}, s{S_T0} offen offset:1024 sc1 lds
        s_mov_b32 s{S_SAFE}, 0
        """)
        if ue: a('s_barrier')
        for k in ue: a(uload(k))
        a(f's_waitcnt vmcnt({len(ue)}) lgkmcnt(0)\ns_barrier\n{back}:')
        def coldr():
            a(f'{redo}:\ns_barrier\ns_mov_b32 s{S_SAFE}, 1\ns_add_u32 s{S_YD}, s{S_XOFF}, 0x8000000')
            if stamps: a(f's_add_u32 s{40+2*8}, s{40+2*8}, 1')
            housekeeping()
            poll_m(a, V)
            a(f's_branch {back}')
        a.cold.append(coldr)
    else:
        a(f"""
        buffer_load_dwordx4 v[{t}:{t+3}], v{pa}, {WSRD}, s{S_MOFF} offen sc1
        buffer_load_dwordx4 v[{t+4}:{t+7}], v{pa}, {WSRD}, s{S_MOFF} offen offset:768 sc1
        """)
        if ue: a('s_barrier')
        for k in ue: a(uload(k))
        a(f"""
        s_waitcnt vmcnt({len(ue)+1})
        ds_write_b128 v{pa}, v[{t}:{t+3}]
        v_max3_u32 v{t+8}, v{t}, v{t+1}, v{t+2}
        s_waitcnt vmcnt({len(ue)})
        ds_write_b128 v{pa}, v[{t+4}:{t+7}] offset:768
        v_max3_u32 v{t+8}, v{t+8}, v{t+3}, v{t+4}
        v_max3_u32 v{t+8}, v{t+8}, v{t+5}, v{t+6}
        v_max_u32 v{t+8}, v{t+8}, v{t+7}
        v_cmp_eq_u32 vcc, -1, v{t+8}
        s_cbranch_vccnz {slow}
        s_waitcnt lgkmcnt(0)
        s_barrier
{back}:
        """)
        def coldm():
            a.label(slow)
            if stamps: a(f's_add_u32 s{40+2*8}, s{40+2*8}, 1')
            poll_m(a, V)
            a(f's_branch {back}')
        a.cold.append(coldm)
    lq.drain()
    stamp(a, stamps, 1)
    mrd = [dsop(f"ds_read_b64_tr_b16 v[{mf+4*b+2*hf}:{mf+4*b+2*hf+1}], v{V['l8']} offset:{LDS_M+b*1024+hf*512}", ('mf', b))
           for b in range(7) for hf in range(2)]
    for x in mrd[:cfg['mpre']]: a(x(lq))
    ms = []; last = {}
    rorder = [(u, b) for b in range(7) for u in range(2)] + [(u, b) for u in range(2, 6) for b in range(7)]
    rb = 0
    for p in range(56):
        if p % 4 == 3:
            lam = p // 4; u = 6 + lam // 7; b = lam % 7
            ms.append((SM(V['acc']+4*u, mf+4*b, vr(tw+8*(lam % 4), 8), idx), [('mf', b), ('lw', lam)]))
        else:
            u, b = rorder[rb]; rb += 1
            ms.append((SM(V['acc']+4*u, mf+4*b, wreg(u*7+b, V['w']), idx), [('mf', b)]))
        last[u] = p
    gp = Gaps(56)
    for k, x in enumerate(mrd[cfg['mpre']:]): gp.put('ds', k, x)
    for lam in range(4, 14):
        g = 4*(lam-4) + 3
        g = gp.put('ds', g, lread(lam, 0)) + 1
        gp.put('ds', g, lread(lam, 1))
    g = 0
    for k in ul: g = gp.put('va', g, uload(k)) + cfg['ustep']
    if cfg['flags']:
        g = gp.put('va', g, f"buffer_load_dword v{V['cu']}, v{V['zero']}, {WSRD}, s{S_CU} offen sc1") + 1
    for x in store_vx(S_YD, V['vx']): g = gp.put('va', g, x) + cfg['ustep']
    assert g - cfg['ustep'] < min(last.values()) + 3
    for k in range(len(HT)-1 if cfg['psl'] is None else 0):
        gp.put('ds', 55 - cfg['hpre'] + 4*k, f"buffer_load_dword v{HT[k]}, v{V['ha']}, {WSRD}, s{S_POFF} offen sc1")
    def post(u):
        A = V['acc'] + 4*u; hl = u >> 1; ctl = u & 1
        return [f'v_add_f32 v{A}, v{A}, v{A+2}', f'v_add_f32 v{A+1}, v{A+1}, v{A+3}',
                f"v_cvt_pk_bf16_f32 v{V['itm']+8*ctl+4*(hl>>1)+(hl&1)}, v{A}, v{A+1}", f"v_cvt_pk_bf16_f32 v{V['vx']+4*ctl+hl}, v{A}, v{A+1}"]
    tail = []; gprev = 0
    for u in sorted(last, key=lambda u: last[u]):
        g = max(last[u] + 3, gprev)
        if g + 4 >= 56: tail += post(u); continue
        for x in post(u): g = gp.put('va', g, x) + 1
        gprev = g
        if u == 0: done0 = g
    if cfg['cdma']:
        A0 = V['acc']; N = 168
        g = gp.put('va', done0, f'v_add_f32 v9, v{A0}, v{A0+1}') + 1
        g = gp.put('ds', g, dsop(f"ds_write_b32 v{V['nw']}, v9 offset:{LDS_NAN}", 'nw')) + 4
        gp.force('ds', g, dswait('nw', 's_barrier'))
        g = gp.put('ds', g+1, dsop(f"ds_read2st64_b32 v[{N}:{N+1}], v{V['nr']} offset0:{LDS_NAN//256} offset1:{LDS_NAN//256+1}")) + 1
        g = gp.put('ds', g, dsop(f"ds_read2st64_b32 v[{N+2}:{N+3}], v{V['nr']} offset0:{LDS_NAN//256+2} offset1:{LDS_NAN//256+3}", 'nr')) + 4
        g = gp.put('va', g, dswait('nr', f'v_pk_add_f32 v[{N}:{N+1}], v[{N}:{N+1}], v[{N+2}:{N+3}]')) + 1
        g = gp.put('va', g, f'v_cmp_u_f32 vcc, v{N}, v{N+1}')
        assert g < 54
    emit_stream(a, ms, gp, lq)
    if cfg['cdma']:
        nb = a.newlabel('L_cnb'); nx = a.newlabel('L_cnx')
        a(f's_cbranch_vccnz {nb};nf\n{nx}:;nf')
        a.cold.append(lambda: a(f'{nb}:\ns_nop 7\ns_cmp_eq_u32 s{S_SAFE}, 0\ns_cbranch_scc1 {redo}\ns_branch {nx}'))
    for x in tail: a(x)
    cont = a.newlabel('L_cbc')
    a(f's_cmp_lt_u32 s{S_STEP}, 63\ns_cbranch_scc1 {cont}')
    for x in store_vx(S_XOFF, V['vx']): a(x)
    a(f"""
    s_branch L_exit
{cont}:
    """)
    stamp(a, stamps, 2)
    A = tw
    a(f's_add_u32 s{S_T0}, s{S_POFF}, 8192\ns_mov_b32 s{S_YD}, s{S_XOFF}')
    if stamps and cfg['sdrain']: a('s_waitcnt vmcnt(0)')
    stamp(a, stamps, 3)
    if cfg['psl'] is None:
        jn = a.newlabel('L_jn')
        a(f's_cmp_lg_u32 s{S_WAVE}, 0\ns_cbranch_scc1 {jn}')
        wait_hint(a, V['ha'], S_POFF, HT, delay=cfg['pdelay'], inner=cfg['hinner'], primed=True)
        a(f'{jn}:\ns_barrier')
    else:
        housekeeping_acc()
        stamp_flush(a, stamps, 11, mf+24)
        if cfg['psl'] - (cfg['fl'] if stamps else 0) > 0: a(f"s_sleep {cfg['psl'] - (cfg['fl'] if stamps else 0)}")
        if cfg['pdelay']: a(f"s_nop {cfg['pdelay']-1}")
        a('s_barrier')
    stamp(a, stamps, 6)
    l = a.newlabel('L_pp'); d = a.newlabel('L_ppd'); retry = a.newlabel('L_ppr'); t = 9
    R = tw + 8
    B3 = [vr(uf, 8), vr(uf+8, 8), vr(V['itm'], 8)], [vr(uf+16, 8), vr(uf+24, 8), vr(V['itm']+8, 8)]
    mh = f"""s_mov_b64 exec, 15
        buffer_store_dword v{V['zero']}, v{V['hw']}, {WSRD}, s{S_MOFF} offen {pf}
        s_mov_b64 exec, -1"""
    def issue(p):
        a(f"""
        buffer_load_dwordx4 v[{p}:{p+3}], v{V['pr']}, {WSRD}, s{S_POFF} offen sc1
        buffer_load_dwordx4 v[{p+4}:{p+7}], v{V['pr']}, {WSRD}, s{S_POFF} offen offset:1024 sc1
        buffer_load_dwordx4 v[{p+8}:{p+11}], v{V['rw']}, {WSRD}, s{S_T0} offen sc1
        """)
    def zero():
        for k in range(4): a(f'v_mov_b64 v[{A+2*k}:{A+2*k+1}], 0')
    def attempt(p, behind, hint_here):
        ex = behind
        a(f's_add_u32 s{S_SPIN}, s{S_SPIN}, 1')
        for k in range(3):
            a(f's_waitcnt vmcnt({2-k+ex})')
            a(SM(A, p+4*k, B3[0][k], idx))
            a(f'v_max_u32 v{t}, v{p}, v{p+2}' if k == 0 else f'v_max3_u32 v{t}, v{t}, v{p+4*k}, v{p+4*k+2}')
            a(SM(A+4, p+4*k, B3[1][k], idx))
            if hint_here and k == cfg['mhk']:
                if cfg['mhint'] == 3:
                    a(f"""v_cmp_eq_u32 vcc, -1, v{t}
                    s_cmp_eq_u64 vcc, 0
                    s_cselect_b64 exec, 15, 0
                    buffer_store_dword v{V['zero']}, v{V['hw']}, {WSRD}, s{S_MOFF} offen {pf}
                    s_mov_b64 exec, -1""")
                else: a(mh)
                ex += 1
        a(f'v_cmp_eq_u32 vcc, -1, v{t}')
    a(f's_mov_b32 s{S_SPIN}, 0')
    issue(mf)
    zero()
    if cfg['p2']:
        gap = cfg['p2']
        while gap > 0:
            a(f's_nop {min(gap, 16) - 1}'); gap -= 16
        issue(mf+12)
    if cfg['mhint'] == 0:
        for _ in range(cfg['mhnop']): a('s_nop 3')
        a(mh)
    attempt(mf, (3 if cfg['p2'] else 0) + (cfg['mhint'] == 0), cfg['mhint'] >= 2)
    a(f's_cbranch_vccnz {retry};nf\n{d}:;nf')
    def coldp():
        a(f'{retry}:\ns_nop 7')
        if cfg['p2']:
            a.label(l)
            issue(mf)
            zero()
            attempt(mf+12, 3, cfg['mhint'] == 3)
            a(f's_cbranch_vccz {d}')
            issue(mf+12)
            zero()
            attempt(mf, 3, cfg['mhint'] == 3)
        else:
            a.label(l)
            issue(mf)
            zero()
            attempt(mf, 0, cfg['mhint'] == 3)
        a(f"""
        s_cbranch_vccz {d}
        s_cmp_lt_u32 s{S_SPIN}, s{S_LIM}
        s_cbranch_scc1 {l}
        s_mov_b32 s{S_LIM}, 1
        s_branch {d}
        """)
    a.cold.append(coldp)
    stamp(a, stamps, 4)
    if cfg['mhint'] == 1: a(mh)
    if stamps: a(f's_mov_b32 s{40+2*7}, s{S_SPIN}')
    if cfg['flags']: a(f"v_readfirstlane_b32 s{S_CV}, v{V['cu']}")
    hiw = a.newlabel('L_cbh'); nh = nh0; ny = a.newlabel('L_cny')
    def chores():
        if cfg['flags']:
            slow2 = a.newlabel('L_us'); back2 = a.newlabel('L_ub')
            a(f's_cmp_lt_u32 s{S_CV}, 28\ns_cbranch_scc1 {slow2}\n{back2}:')
            def coldu():
                a.label(slow2)
                wait_cnt(a, S_CU, 28, 174)
                a(f's_branch {back2}')
            a.cold.append(coldu)
        step_advance(a, 458752)
        a(pre)
        housekeeping(a, False)
    def hi_tail():
        w2 = a.newlabel('L_cw2')
        ld = lambda r: f"buffer_load_dword v{r}, v{V['hm']}, {WSRD}, s{S_T1} offen sc1"
        a(f"""
{hiw}:
        s_add_u32 s{S_T1}, s{S_MOFF}, 8192
        s_cmp_eq_u32 s{S_WAVE}, 2
        s_cbranch_scc1 {w2}
        {ld(HT[0])}
        s_waitcnt lgkmcnt(0)
        {ld(HT[1])}
        s_barrier
        {ld(HT[2])}
        """)
        stamp(a, stamps, 5)
        chores()
        wait_hint(a, V['hm'], S_MOFF, HT, delay=cfg['cdelay'], inner=cfg['hinner'], primed=True)
        a(f's_branch {nh}\n{w2}:\ns_waitcnt lgkmcnt(0)\ns_barrier')
        if cfg['cq']: a(f"s_sleep {cfg['cq']}")
        stamp(a, stamps, 5)
        chores()
        a(f's_branch {nh}')
    a.cold.append(hi_tail)
    a(f"""
    v_pk_add_f32 v[{R}:{R+1}], v[{A}:{A+1}], v[{A+2}:{A+3}]
    v_pk_add_f32 v[{R+2}:{R+3}], v[{A+4}:{A+5}], v[{A+6}:{A+7}]
    ds_write_b128 v{V['rw']}, v[{R}:{R+3}] offset:{LDS_RED}
    s_cmp_ge_u32 s{S_WAVE}, 2
    s_cbranch_scc1 {hiw}
    s_waitcnt lgkmcnt(0)
    s_barrier
    ds_read_b64 v[{R}:{R+1}], v{V['rr']} offset:{LDS_RED}
    ds_read_b64 v[{R+2}:{R+3}], v{V['rr']} offset:{LDS_RED+1024}
    ds_read_b64 v[{R+4}:{R+5}], v{V['rr']} offset:{LDS_RED+2048}
    ds_read_b64 v[{R+6}:{R+7}], v{V['rr']} offset:{LDS_RED+3072}
    s_waitcnt lgkmcnt(2)
    v_pk_add_f32 v[{R}:{R+1}], v[{R}:{R+1}], v[{R+2}:{R+3}]
    s_waitcnt lgkmcnt(0)
    v_pk_add_f32 v[{R+4}:{R+5}], v[{R+4}:{R+5}], v[{R+6}:{R+7}]
    v_pk_add_f32 v[{R}:{R+1}], v[{R}:{R+1}], v[{R+4}:{R+5}]
    v_cvt_pk_bf16_f32 v9, v{R}, v{R+1}
    buffer_store_dword v9, v{V['mw']}, {WSRD}, s{S_MOFF} offen {pf}
    """)
    stamp(a, stamps, 5)
    a(f"""
    s_cmp_lt_u32 s{S_STEP}, 62
    s_cbranch_scc1 {ny}
    s_add_u32 s{S_T0}, s{S_MOFF}, {L.MB_Y - L.MB_M}
    buffer_store_dword v9, v{V['mw']}, {WSRD}, s{S_T0} offen sc1
{ny}:
    """)
    chores()
    a(f's_branch {nh}')
    while a.cold: a.flush_cold()

def helper_cu(a, cfg):
    V = dict(l8=0, pa=1, idx=2, mf=12); LN = 112
    NP = cfg['npf']; D = cfg['pfd']; PER = cfg['pfper']
    a(f'v_mov_b32 v{LN}, v1')
    team_register(a)
    common_addrs(a, V, LN)
    a(f"""
    v_lshlrev_b32 v4, 7, v{LN}
    v_mov_b32 v5, 0
    v_mov_b32 v6, 14
    s_sub_u32 s{S_ROLE}, s{S_ROLE}, 30
    s_lshl_b32 s{S_EOFF}, s{S_ROLE}, 2
    s_add_u32 s{S_EOFF}, s{S_EOFF}, s{S_WAVE}
    s_mov_b32 s{S_STEP}, 0
    s_mov_b32 s{S_MOFF}, {L.MB_M + 8192}
    s_mov_b32 s{S_CV}, {L.DUMMY + 0x200000}
    s_mul_i32 s{S_GOFF}, s{S_EOFF}, 7168
    s_add_u32 s{S_GOFF}, s{S_GOFF}, {L.XN}
    s_mov_b32 s{S_POFF}, 28672
    s_cmp_lt_u32 s{S_EOFF}, 4
    s_cbranch_scc1 H_t
    s_sub_u32 s{S_GOFF}, s{S_EOFF}, 4
    s_mul_i32 s{S_GOFF}, s{S_GOFF}, 6144
    s_add_u32 s{S_GOFF}, s{S_GOFF}, {L.MB_P}
    s_mov_b32 s{S_POFF}, 16384
    s_cmp_lt_u32 s{S_EOFF}, 6
    s_cbranch_scc1 H_t
    s_mov_b32 s{S_GOFF}, {L.MB_M + 8192}
    s_mov_b32 s{S_POFF}, 8192
H_t:
    """)
    def mtouch():
        a(f'buffer_load_dword v7, v4, {WSRD}, s{S_GOFF} offen sc1\ns_add_u32 s{S_GOFF}, s{S_GOFF}, s{S_POFF}')
    team_mode(a, V['mf'], V['mf']+1)
    a(f's_mov_b32 s{S_LIM}, {SPIN_MAX*4}')
    a(f"""
    s_getpc_b64 s[70:71]
H_pc:
    s_lshl_b32 s{S_T0}, s{S_EOFF}, 12
    v_lshrrev_b32 v10, 1, v4
    s_add_u32 s70, s70, s{S_T0}
    s_addc_u32 s71, s71, 0
    s_add_u32 s70, s70, L_nothelp-H_pc
    s_addc_u32 s71, s71, 0
    s_mov_b32 s72, s{S_GOFF}
    s_mov_b32 s{S_SPIN}, 0
    s_mov_b32 s73, {L.MB_P}
H_warm:
    s_mov_b32 s{S_GOFF}, s72
    global_load_dword v8, v10, s[70:71] sc1
    """)
    for _ in range(D+1): mtouch()
    a(f"""
    buffer_load_dword v9, v5, {WSRD}, s73 offen sc1
    s_add_u32 s{S_SPIN}, s{S_SPIN}, 1
    s_waitcnt vmcnt(0)
    v_cmp_eq_u32 vcc, -1, v9
    s_cbranch_vccz H_warmed
    s_sleep 8
    s_cmp_lt_u32 s{S_SPIN}, s{S_LIM}
    s_cbranch_scc1 H_warm
H_warmed:
    """)
    mul = {2: (128, 8), 3: (86, 8)}[PER]
    for k in range(NP):
        a(f"""
        s_add_u32 s{S_T0}, s{S_EOFF}, {8*k}
        s_min_u32 s{S_T0}, s{S_T0}, {14*PER-1}
        s_mul_i32 s{S_T1}, s{S_T0}, {mul[0]}
        s_lshr_b32 s{S_T1}, s{S_T1}, {mul[1]}
        s_mul_i32 s{S_T1}, s{S_T1}, {4-PER}
        s_add_u32 s{S_T0}, s{S_T0}, s{S_T1}
        s_lshl_b32 s{60+k}, s{S_T0}, 13
        s_add_u32 s{60+k}, s{60+k}, {L.U}
        """)
    def utouch():
        for k in range(NP):
            a(f'buffer_load_dword v{32+k}, v4, {WSRD}, s{60+k} offen sc1\ns_add_u32 s{60+k}, s{60+k}, 458752')
    a(f's_mov_b32 s{S_CU}, {L.CNT_U}')
    for _ in range(D if NP else 0):
        if cfg['flags']: wait_cnt(a, S_CU, 28, 30)
        utouch()
        a(f's_add_u32 s{S_CU}, s{S_CU}, 128')
    t = V['mf']; pa = V['pa']
    sk = a.newlabel('H_sk'); sk2 = a.newlabel('H_sk'); ok = a.newlabel('H_ok')
    a(f"""
H_top:
    s_mov_b32 s{S_SPIN}, 0
H_poll:
    buffer_load_dwordx4 v[{t}:{t+3}], v{pa}, {WSRD}, s{S_MOFF} offen sc1
    buffer_load_dwordx4 v[{t+4}:{t+7}], v{pa}, {WSRD}, s{S_MOFF} offen offset:768 sc1
    buffer_load_dword v30, v5, {WSRD}, s{S_CU} offen sc1
    s_add_u32 s{S_SPIN}, s{S_SPIN}, 1
    s_waitcnt vmcnt(0)
    v_max3_u32 v{t+8}, v{t}, v{t+1}, v{t+2}
    v_max3_u32 v{t+8}, v{t+8}, v{t+3}, v{t+4}
    v_max3_u32 v{t+8}, v{t+8}, v{t+5}, v{t+6}
    v_max_u32 v{t+8}, v{t+8}, v{t+7}
    v_readfirstlane_b32 s{S_T0}, v30
    v_cmp_eq_u32 vcc, -1, v{t+8}
    s_cbranch_vccz {ok}
    s_sleep {cfg['hsleep']}
    s_cmp_lt_u32 s{S_SPIN}, s{S_LIM}
    s_cbranch_scc1 H_poll
    s_mov_b32 s{S_LIM}, 1
{ok}:
    s_cmp_lg_u32 s{S_ROLE}, 0
    s_cbranch_scc1 {sk}
    s_add_u32 s{S_T1}, s{S_MOFF}, {L.MB_Y - L.MB_M}
    buffer_store_dwordx4 v[{t}:{t+3}], v{pa}, {WSRD}, s{S_T1} offen sc1
    buffer_store_dwordx4 v[{t+4}:{t+7}], v{pa}, {WSRD}, s{S_T1} offen offset:768 sc1
{sk}:
    s_cmp_ge_u32 s{S_STEP}, {63 - D}
    s_cbranch_scc1 {sk2}
    """)
    mtouch()
    if NP:
        sk3 = a.newlabel('H_sk'); sk4 = a.newlabel('H_sk')
        if cfg['flags']: a(f's_cmp_lt_u32 s{S_T0}, 28\ns_cbranch_scc1 {sk3}')
        utouch()
        a(f's_branch {sk4}\n{sk3}:')
        for k in range(NP): a(f's_add_u32 s{60+k}, s{60+k}, 458752')
        a(f'{sk4}:\ns_add_u32 s{S_CU}, s{S_CU}, 128')
    a(f"""
{sk2}:
    s_add_u32 s{S_STEP}, s{S_STEP}, 1
    s_add_u32 s{S_MOFF}, s{S_MOFF}, 8192
    s_cmp_lt_u32 s{S_STEP}, 62
    s_cbranch_scc1 H_top
    s_branch L_exit
    """)

DEFAULT_CFG = dict(ba=[35, 35, 34, 34], bak=3, bb=[53, 53, 0, 0], xflags='', ssleep=[2, 2, 2, 0], csleep=0, psleep=0, touch=1,
                   nou=0, nox=0, cflush=1, flags=0, ustep=3, hsleep=2, mdelay=18, pdelay=0, phint=9, lead=[4, 1], pnop=[0, 8], b5nop=2, npf=0, pfper=2, hdepth=4, hpre=10, psl=2, fl=1, mhk=0, px=9, quiet=7, cq=1, al=None, prio=[0, 0, 0, 0], wfl='', m2=0, mdma=1, m2d=0, msamp=0, cdma=1, m2w=10, p2=32, cutrig=1, hinner=2, uearly=4, mhint=1, mhnop=0, sdrain=0, pfd=3, mpre=6, chint=1, cdelay=20)

def team_body(a, stamps=False, cfg=None):
    cfg = dict(DEFAULT_CFG, **(cfg or {}))
    a(f's_cmp_lt_u32 s{S_ROLE}, 30\ns_cbranch_scc1 L_nothelp')
    helper_cu(a, cfg)
    a.label('L_nothelp')
    a(f's_cmp_ge_u32 s{S_ROLE}, 16\ns_cbranch_scc1 L_comb')
    score_setup(a, stamps, cfg)
    for fast in (1, 0):
        a(f's_cmp_lg_u32 s{S_FAST}, {fast}\ns_cbranch_scc1 L_sc_next{fast}')
        for w in range(4):
            if w < 3:
                a(f's_cmp_lg_u32 s{S_WAVE}, {w}\ns_cbranch_scc1 L_sc{fast}_n{w}')
            score_wave(a, w, '' if fast else 'sc1', stamps, cfg)
            if w < 3: a.label(f'L_sc{fast}_n{w}')
        a.label(f'L_sc_next{fast}')
    a('s_branch L_exit')
    a.label('L_comb')
    comb_setup(a, stamps, cfg)
    for fast in (1, 0):
        a(f's_cmp_lg_u32 s{S_FAST}, {fast}\ns_cbranch_scc1 L_cb_next{fast}')
        comb_wave(a, '' if fast else 'sc1', stamps, cfg)
        a.label(f'L_cb_next{fast}')
    a('s_branch L_exit')
```

```python
from asmlib import *
import layout as L

SENT = -1
S_WS = 8
S_DBG = 12
S_ROLE = 16
S_WAVE = 17
S_XCC = 18
S_STEP = 19
S_FAST = 20
S_MOFF = 21; S_POFF = 22; S_EOFF = 23; S_GOFF = 24; S_XOFF = 25; S_T0 = 26; S_T1 = 27; S_SPIN = 28; S_LIM = 29
S_EXEC = 30
S_STMP = 32
S_TM = 34
SPIN_MAX = 20000
NTEAM = 32

LDS_M = 0
LDS_T = 7168
LDS_FL = 14336
LDS_VD = 18432
LDS_X = 20480
LDS_NAN = 11264
LDS_RED = 7168
LDS_BW = 16384
LDS_ROLE = 160*1024 - 16

def prologue(a, stamps, pool_off=0):
    a(f'''
    s_cmp_ge_u32 s2, 256
    s_cbranch_scc1 L_exit
    s_load_dwordx2 s[4:5], s[0:1], 96
    s_load_dwordx2 s[6:7], s[0:1], 88
    s_getreg_b32 s{S_XCC}, hwreg(HW_REG_XCC_ID, 0, 4)
    v_lshrrev_b32 v2, 6, v0
    v_and_b32 v1, 63, v0
    v_readfirstlane_b32 s{S_WAVE}, v2
    s_and_b32 s{S_XCC}, s{S_XCC}, 7
    s_waitcnt lgkmcnt(0)
    s_mov_b32 s{S_WS}, s4
    s_and_b32 s{S_WS+1}, s5, 0xffff
    s_mov_b32 s{S_WS+2}, {L.WS_BYTES}
    s_mov_b32 s{S_WS+3}, 0x20000
    s_mov_b32 s{S_DBG}, s6
    s_and_b32 s{S_DBG+1}, s7, 0xffff
    s_mov_b32 s{S_DBG+2}, 256
    s_mov_b32 s{S_DBG+3}, 0x20000
    v_mov_b32 v4, {LDS_ROLE}
    s_cmp_lg_u32 s{S_WAVE}, 0
    s_cbranch_scc1 L_role_wait
    s_mov_b64 exec, 1
    s_mov_b32 s{S_T0}, 0
L_role_try:
    s_add_u32 s{S_T1}, s{S_XCC}, s{S_T0}
    s_and_b32 s{S_T1}, s{S_T1}, 7
    s_lshl_b32 s{S_ROLE}, s{S_T1}, 7
    s_add_u32 s{S_ROLE}, s{S_ROLE}, {L.CNT_P + pool_off}
    v_mov_b32 v2, s{S_ROLE}
    v_mov_b32 v3, 1
    buffer_atomic_add v3, v2, s[{S_WS}:{S_WS+3}], 0 offen sc0
    s_waitcnt vmcnt(0)
    v_readfirstlane_b32 s{S_ROLE}, v3
    s_cmp_lt_u32 s{S_ROLE}, 32
    s_cbranch_scc1 L_role_got
    s_add_u32 s{S_T0}, s{S_T0}, 1
    s_cmp_lt_u32 s{S_T0}, 8
    s_cbranch_scc1 L_role_try
    s_mov_b32 s{S_ROLE}, 31
    s_mov_b32 s{S_T1}, 0
L_role_got:
    s_lshl_b32 s{S_T1}, s{S_T1}, 5
    s_add_u32 s{S_ROLE}, s{S_ROLE}, s{S_T1}
    v_mov_b32 v2, s{S_ROLE}
    ds_write_b32 v4, v2
    s_mov_b64 exec, -1
    s_waitcnt lgkmcnt(0)
L_role_wait:
    s_barrier
    ds_read_b32 v2, v4
    s_waitcnt lgkmcnt(0)
    v_readfirstlane_b32 s{S_ROLE}, v2
    ''')

def team_register(a):
    l = a.newlabel('L_reg')
    a(f'''
    s_cmp_lg_u32 s{S_WAVE}, 0
    s_cbranch_scc1 {l}
    s_cmp_eq_u32 s{S_XCC}, 0
    s_cselect_b32 s{S_T0}, 1, 0x10001
    s_mov_b64 exec, 1
    v_mov_b32 v2, 64
    v_mov_b32 v3, s{S_T0}
    buffer_atomic_add v3, v2, s[{S_DBG}:{S_DBG+3}], 0 offen
    s_mov_b64 exec, -1
{l}:
    ''')

def team_mode(a, vt0, vt1):
    l = a.newlabel('L_mode'); d = a.newlabel('L_moded')
    a(f'''
    s_mov_b32 s{S_SPIN}, 0
    v_mov_b32 v{vt0}, 64
{l}:
    buffer_load_dword v{vt1}, v{vt0}, s[{S_DBG}:{S_DBG+3}], 0 offen sc1
    s_waitcnt vmcnt(0)
    v_readfirstlane_b32 s{S_T0}, v{vt1}
    s_and_b32 s{S_T1}, s{S_T0}, 0xffff
    s_cmp_ge_u32 s{S_T1}, {NTEAM}
    s_cbranch_scc1 {d}
    s_sleep 2
    s_add_u32 s{S_SPIN}, s{S_SPIN}, 1
    s_cmp_lt_u32 s{S_SPIN}, {SPIN_MAX}
    s_cbranch_scc1 {l}
    s_mov_b32 s{S_T0}, 0x10000
{d}:
    s_lshr_b32 s{S_T0}, s{S_T0}, 16
    s_cmp_eq_u32 s{S_T0}, 0
    s_cselect_b32 s{S_FAST}, 1, 0
    s_mov_b32 s{S_LIM}, {SPIN_MAX}
    ''')

def stamp(a, stamps, idx, vt=None):
    if not stamps: return
    a(f's_memtime s[{40+2*idx}:{41+2*idx}]')
    if idx == 2: a('s_memrealtime s[60:61]')

def stamp_flush(a, stamps, n, vt):
    if not stamps: return
    a('s_waitcnt lgkmcnt(0)')
    for k in range(n):
        a(f'v_writelane_b32 v{vt}, s{40+2*k}, {k}')
    a(f"""
    v_lshrrev_b32 v{vt+1}, 1, v0
    s_mov_b64 exec, {(1 << n) - 1}
    buffer_store_dword v{vt}, v{vt+1}, s[{S_WS}:{S_WS+3}], s{S_STMP} offen
    s_mov_b64 exec, -1
    """)

def wreg(wb, vbase):
    return ar(8*wb, 8) if wb < 32 else vr(vbase + 8*(wb-32), 8)
def wreg_half(wb, vbase, half):
    return ar(8*wb + 4*half, 4) if wb < 32 else vr(vbase + 8*(wb-32) + 4*half, 4)

def xlane4(a, op, x, t):
    a(f'''
    v_mov_b32 v{t}, v{x}
    v_permlane16_swap_b32 v{x}, v{t}
    {op} v{x}, v{x}, v{t}
    v_mov_b32 v{t}, v{x}
    v_permlane32_swap_b32 v{x}, v{t}
    {op} v{x}, v{x}, v{t}
    ''')

QP = 'quad_perm:[2,3,0,1] row_mask:0xf bank_mask:0xf'

def read_mf(a, V):
    for b in range(7):
        a(f"ds_read_b64_tr_b16 v[{V['mf']+4*b}:{V['mf']+4*b+1}], v{V['l8']} offset:{LDS_M+b*1024}")
        a(f"ds_read_b64_tr_b16 v[{V['mf']+4*b+2}:{V['mf']+4*b+3}], v{V['l8']} offset:{LDS_M+b*1024+512}")

def SM(acc, A, B, idx):
    return f'v_smfmac_f32_16x16x64_bf16 v[{acc}:{acc+3}], v[{A}:{A+3}], {B}, v{idx}'


class Q:
    def __init__(self, name, cap):
        self.name = name; self.n = 0; self.tags = {}; self.done = 0; self.cap = cap
    def issue(self, tag=None):
        self.n += 1
        if tag is not None: self.tags[tag] = self.n
    def wait(self, tag):
        k = self.tags[tag]
        if k <= self.done: return ''
        self.done = k
        return 's_waitcnt %s(%d)' % (self.name, min(self.n - k, self.cap))
    def drain(self):
        self.done = self.n
        return 's_waitcnt %s(0)' % self.name

WSRD = f's[{S_WS}:{S_WS+3}]'

def poll_m(a, V, sleep=0):
    t = V['mf']; pa = V['pa']
    l = a.newlabel('L_pm'); d = a.newlabel('L_pmd')
    a(f"""
    s_mov_b32 s{S_SPIN}, 0
{l}:
    buffer_load_dwordx4 v[{t}:{t+3}], v{pa}, {WSRD}, s{S_MOFF} offen sc1
    buffer_load_dwordx4 v[{t+4}:{t+7}], v{pa}, {WSRD}, s{S_MOFF} offen offset:768 sc1
    s_add_u32 s{S_SPIN}, s{S_SPIN}, 1
    s_waitcnt vmcnt(1)
    ds_write_b128 v{pa}, v[{t}:{t+3}]
    v_max3_u32 v{t+8}, v{t}, v{t+1}, v{t+2}
    s_waitcnt vmcnt(0)
    ds_write_b128 v{pa}, v[{t+4}:{t+7}] offset:768
    v_max3_u32 v{t+8}, v{t+8}, v{t+3}, v{t+4}
    v_max3_u32 v{t+8}, v{t+8}, v{t+5}, v{t+6}
    v_max_u32 v{t+8}, v{t+8}, v{t+7}
    v_cmp_eq_u32 vcc, -1, v{t+8}
    s_cbranch_vccz {d}
    {'s_sleep %d' % sleep if sleep else ''}
    s_cmp_lt_u32 s{S_SPIN}, s{S_LIM}
    s_cbranch_scc1 {l}
    s_mov_b32 s{S_LIM}, 1
{d}:
    s_waitcnt lgkmcnt(0)
    s_barrier
    """)

def poll_m2(a, V, gap, x):
    pa = V['pa']; sets = (V['acc']+8, V['acc']+16)
    l = a.newlabel('L_pm'); d = a.newlabel('L_pmd')
    def issue(t):
        a(f"""
        buffer_load_dwordx4 v[{t}:{t+3}], v{pa}, {WSRD}, s{S_MOFF} offen sc1
        buffer_load_dwordx4 v[{t+4}:{t+7}], v{pa}, {WSRD}, s{S_MOFF} offen offset:768 sc1
        """)
    def check(t):
        a(f"""
        s_add_u32 s{S_SPIN}, s{S_SPIN}, 1
        s_waitcnt vmcnt(3)
        ds_write_b128 v{pa}, v[{t}:{t+3}]
        v_max3_u32 v{x}, v{t}, v{t+1}, v{t+2}
        s_waitcnt vmcnt(2)
        ds_write_b128 v{pa}, v[{t+4}:{t+7}] offset:768
        v_max3_u32 v{x}, v{x}, v{t+3}, v{t+4}
        v_max3_u32 v{x}, v{x}, v{t+5}, v{t+6}
        v_max_u32 v{x}, v{x}, v{t+7}
        v_cmp_eq_u32 vcc, -1, v{x}
        """)
    a(f's_mov_b32 s{S_SPIN}, 0')
    issue(sets[0])
    while gap > 0:
        a(f's_nop {min(gap, 16) - 1}'); gap -= 16
    issue(sets[1]); check(sets[0])
    a(f's_cbranch_vccnz {l}\n{d}:\ns_waitcnt lgkmcnt(0)\ns_barrier')
    def cold():
        a.label(l)
        issue(sets[0]); check(sets[1])
        a(f's_cbranch_vccz {d}')
        issue(sets[1]); check(sets[0])
        a(f"""
        s_cbranch_vccz {d}
        s_cmp_lt_u32 s{S_SPIN}, s{S_LIM}
        s_cbranch_scc1 {l}
        s_mov_b32 s{S_LIM}, 1
        s_branch {d}
        """)
    a.cold.append(cold)

def wait_hint(a, vaddr, soff, regs, imm=0, delay=0, gap=12, inner=8, fill=None, primed=False):
    n = len(regs)
    l = a.newlabel('L_h'); d = a.newlabel('L_hd')
    ld = lambda r: f'buffer_load_dword v{r}, v{vaddr}, {WSRD}, s{soff} offen offset:{imm} sc1'
    a(f's_mov_b32 s{S_SPIN}, 0')
    fill = list(fill or [])
    per = -(-len(fill) // (n-1))
    for k in range(0 if primed else n-1):
        a(ld(regs[k]))
        for x in fill[k*per:(k+1)*per]: a(x)
        if per < gap: a(f's_nop {gap - per}')
    a.label(l)
    for k in range(n):
        a(f"""
        {ld(regs[(k+n-1) % n])}
        s_waitcnt vmcnt({n-1})
        v_cmp_eq_u32 vcc, -1, v{regs[k]}
        s_cbranch_vccz {d}
        s_nop {inner}
        """)
    a(f"""
    s_add_u32 s{S_SPIN}, s{S_SPIN}, 1
    s_cmp_lt_u32 s{S_SPIN}, s{S_LIM}
    s_cbranch_scc1 {l}
{d}:
    """)
    while delay > 0:
        a(f's_nop {min(delay, 16) - 1}'); delay -= 16

def wait_cnt(a, off_sgpr, target, vt, sleep=4):
    l = a.newlabel('L_wc'); d = a.newlabel('L_wcd')
    a(f"""
    s_mov_b32 s{S_SPIN}, 0
    v_mov_b32 v{vt}, 0
{l}:
    buffer_load_dword v{vt+1}, v{vt}, {WSRD}, s{off_sgpr} offen sc1
    s_add_u32 s{S_SPIN}, s{S_SPIN}, 1
    s_waitcnt vmcnt(0)
    v_readfirstlane_b32 s{S_T0}, v{vt+1}
    s_cmp_ge_u32 s{S_T0}, {target}
    s_cbranch_scc1 {d}
    s_sleep {sleep}
    s_cmp_lt_u32 s{S_SPIN}, s{S_LIM}
    s_cbranch_scc1 {l}
    s_mov_b32 s{S_LIM}, 1
{d}:
    """)

def img_addr(a, dst, t, lane):
    a(f"""
    v_bfe_u32 v{dst}, v{lane}, 3, 1
    v_lshlrev_b32 v{dst}, 9, v{dst}
    v_bfe_u32 v{t}, v{lane}, 2, 1
    v_lshl_add_u32 v{dst}, v{t}, 6, v{dst}
    v_and_b32 v{t}, 1, v{lane}
    v_lshl_add_u32 v{dst}, v{t}, 5, v{dst}
    v_lshrrev_b32 v{t}, 4, v{lane}
    v_lshl_add_u32 v{dst}, v{t}, 3, v{dst}
    v_bfe_u32 v{t}, v{lane}, 1, 1
    v_lshl_add_u32 v{dst}, v{t}, 2, v{dst}
    """)

def common_addrs(a, V, LN):
    a(f"""
    v_lshlrev_b32 v{V['l8']}, 3, v{LN}
    s_mul_i32 s{S_T0}, s{S_WAVE}, {112*16}
    v_lshlrev_b32 v{V['pa']}, 4, v{LN}
    v_add_u32 v{V['pa']}, s{S_T0}, v{V['pa']}
    v_and_b32 v{LN+1}, 2, v{LN}
    v_cmp_ne_u32 vcc, 0, v{LN+1}
    v_mov_b32 v{LN+1}, 0x4444
    v_mov_b32 v{LN+2}, 0xeeee
    v_cndmask_b32 v{V['idx']}, v{LN+1}, v{LN+2}, vcc
    """)

def load_1k_run(a, dsts, vaddr, sbase, flags='', budget=None):
    for i, d in enumerate(dsts):
        if i and i % 4 == 0:
            a(f's_add_u32 s{sbase}, s{sbase}, 4096')
        a(f'buffer_load_dwordx4 {d}, v{vaddr}, {WSRD}, s{sbase} offen offset:{(i%4)*1024} {flags}')
        if budget is not None:
            budget[0] += 1
            if budget[0] >= 56:
                a('s_waitcnt vmcnt(28)'); budget[0] = 28

class Gaps:
    def __init__(self, n):
        self.ds = [[] for _ in range(n)]; self.va = [[] for _ in range(n)]; self.pre = [[] for _ in range(n)]
        self.n = n
    def put(self, kind, g, text, excl=False):
        while g < self.n - 1:
            if excl:
                if not self.ds[g] and not self.va[g]: break
            else:
                lst = self.ds[g] if kind == 'ds' else self.va[g]
                other = self.va[g] if kind == 'ds' else self.ds[g]
                if not lst and not (other and other[-1][1]): break
            g += 1
        (self.ds if kind == 'ds' else self.va)[g].append((text, excl))
        return g
    def force(self, kind, g, text):
        (self.ds if kind == 'ds' else self.va)[min(g, self.n-1)].append((text, False))

def emit_stream(a, mf, gp, lq, pre=None):
    for i, (m, tags) in enumerate(mf):
        for tg in tags:
            w = lq.wait(tg)
            if w: a(w)
        a(m)
        for lst in (gp.ds[i], gp.va[i]):
            for x, _ in lst:
                t = x(lq) if callable(x) else x
                if t: a(t)

def dsop(text, tag=None):
    def f(lq):
        lq.issue(tag); return text
    return f
def dswait(tag, then=''):
    def f(lq):
        return lq.wait(tag) + '\n' + then
    return f

SV = dict(l8=0, pa=1, idx=2, k1=3, mf=12, acc=40, w=64)
def tile_of(w, u):
    if u < 5: return (u, w)
    order = {(0, 5): (5, 0), (1, 5): (5, 1), (2, 5): (5, 2), (2, 6): (5, 3), (0, 6): (6, 0), (1, 6): (6, 1), (0, 7): (6, 2), (1, 7): (6, 3)}
    return order[(w, u)]
NUNIT = [8, 8, 7, 5]
F = dict(l16=4, px=5, pm=6, mk0=7, mk1=8, mk2=9, wz=10, xf=88, tf=200, sa=228, t=240)

def score_setup(a, stamps, cfg):
    V = SV; LN = 44
    a(f'v_mov_b32 v{LN}, v1')
    team_register(a)
    common_addrs(a, V, LN)
    img_addr(a, V['k1'], LN+1, LN)
    g, cc, par, ib, t = LN+1, LN+2, LN+3, LN+4, LN+5
    a(f"""
    v_lshlrev_b32 v{F['l16']}, 4, v{LN}
    v_lshrrev_b32 v{g}, 4, v{LN}
    v_bfe_u32 v{cc}, v{LN}, 2, 2
    v_bfe_u32 v{par}, v{LN}, 1, 1
    v_and_b32 v{ib}, 1, v{LN}
    v_and_b32 v{t}, 15, v{LN}
    v_lshlrev_b32 v{F['px']}, 4, v{t}
    v_lshrrev_b32 v{t}, 1, v{g}
    v_lshl_add_u32 v{F['px']}, v{t}, 8, v{F['px']}
    v_and_b32 v{t}, 1, v{g}
    v_lshl_add_u32 v{F['px']}, v{t}, 3, v{F['px']}
    s_and_b32 s{S_T0}, s{S_ROLE}, 1
    s_lshl_b32 s{S_T0}, s{S_T0}, 5
    s_lshr_b32 s{S_T1}, s{S_ROLE}, 1
    s_lshl_b32 s{S_T1}, s{S_T1}, 9
    s_add_u32 s{S_T0}, s{S_T0}, s{S_T1}
    s_add_u32 s{S_T0}, s{S_T0}, 8192
    v_and_b32 v{F['pm']}, 0xffffffdf, v{F['px']}
    v_add_u32 v{F['pm']}, s{S_T0}, v{F['pm']}
    s_lshl_b32 s{S_T0}, s{S_ROLE}, 9
    v_add_u32 v{F['px']}, s{S_T0}, v{F['px']}
    v_lshlrev_b32 v{t}, 4, v{ib}
    v_mov_b32 v{F['mk2']}, 0xffff
    v_lshlrev_b32 v{F['mk2']}, v{t}, v{F['mk2']}
    v_cmp_eq_u32 vcc, v{cc}, v{g}
    v_mov_b32 v{t}, 0
    v_cndmask_b32 v{F['mk2']}, v{t}, v{F['mk2']}, vcc
    v_cmp_eq_u32 vcc, 0, v{par}
    v_mov_b32 v{t+1}, 0xff800000
    v_cndmask_b32 v{F['mk0']}, v{t}, v{F['mk2']}, vcc
    v_cndmask_b32 v{F['mk1']}, v{F['mk2']}, v{t}, vcc
    v_cndmask_b32 v{F['wz']}, v{t+1}, v{t}, vcc
    s_mul_i32 s{S_T1}, s{S_ROLE}, {28*14336}
    s_add_u32 s{S_T1}, s{S_T1}, {L.WT}
    """)
    done = a.newlabel('L_sw')
    for w in range(4):
        nx = a.newlabel('L_swn')
        if w < 3: a(f's_cmp_lg_u32 s{S_WAVE}, {w}\ns_cbranch_scc1 {nx}')
        bud = [0]
        for u in range(NUNIT[w]):
            b, ga = tile_of(w, u)
            a(f's_add_u32 s{S_T0}, s{S_T1}, {(4*b+ga)*14336}')
            load_1k_run(a, [wreg_half(u*7 + k//2, V['w'], k % 2) for k in range(14)], F['l16'], S_T0, cfg['wfl'], budget=bud)
        if w < 3: a(f's_branch {done}\n{nx}:')
    a(f"""
{done}:
    s_mov_b32 s{S_STEP}, 0
    s_mov_b32 s{S_MOFF}, {L.MB_M}
    s_mov_b32 s{S_POFF}, {L.MB_P}
    s_mov_b32 s{S_GOFF}, {L.XN}
    s_lshl_b32 s{S_STMP}, s{S_ROLE}, 2
    s_add_u32 s{S_STMP}, s{S_STMP}, s{S_WAVE}
    s_lshl_b32 s{S_STMP}, s{S_STMP}, 12
    s_add_u32 s{S_STMP}, s{S_STMP}, {L.STAMP}
    s_waitcnt vmcnt(0)
    """)
    team_mode(a, V['mf'], V['mf']+1)

def step_advance(a, gstride, xstride=114688):
    a(f"""
    s_add_u32 s{S_STEP}, s{S_STEP}, 1
    s_add_u32 s{S_MOFF}, s{S_MOFF}, 8192
    s_add_u32 s{S_POFF}, s{S_POFF}, 16384
    s_add_u32 s{S_GOFF}, s{S_GOFF}, {gstride}
    s_add_u32 s{S_XOFF}, s{S_XOFF}, {xstride}
    s_add_u32 s{S_STMP}, s{S_STMP}, 64
    """)

def rowred(a, op, x):
    for m in ('row_ror:8', 'row_ror:4', 'row_ror:2', 'row_ror:1'):
        for r in (x, x+1):
            a(f'{op}_dpp v{r}, v{r}, v{r} {m} row_mask:0xf bank_mask:0xf')

def score_wave(a, w, pf, stamps, cfg):
    V = SV; idx = V['idx']; mf = V['mf']
    top = a.newlabel(f'L_sc{w}_top'); first = a.newlabel(f'L_sc{w}_first')
    nunit = NUNIT[w]
    accof = lambda u: V['acc'] + 4*(u % 6)
    ok = {0: (0, 9, 2), 1: (2,), 2: (0, 9, 1, 2), 3: (7, 8, 4)}[w]
    ST = (lambda k: f's_memtime s[{40+2*k}:{41+2*k}]' if k in ok else '') if stamps else (lambda k: '')
    def stamp(a, stamps, k):
        a(ST(k))
    xf, tf, sa, T = F['xf'], F['tf'], F['sa'], F['t']
    FA, FV = 8, 9
    HA = 11
    HT = ([5, 6, 7, 10] if w < 3 else [T+4, T+5, T+6, T+7])[:cfg['hdepth']]
    def load_x():
        a(f's_mov_b32 s{S_T0}, s{S_GOFF}')
        load_1k_run(a, [vr(xf + 4*k, 4) for k in range(28)], F['l16'], S_T0)
    XW = [(0, 9), (9, 18), (18, 28)]
    def dma_x():
        lo, hi = XW[w]
        a(f"""
        s_and_b32 s{S_T0}, s{S_STEP}, 1
        s_xor_b32 s{S_T0}, s{S_T0}, 1
        s_mul_i32 s{S_T0}, s{S_T0}, 28672
        s_add_u32 s{S_T0}, s{S_T0}, {LDS_X + lo*1024}
        s_add_u32 s{S_T1}, s{S_GOFF}, {28672 + lo*1024 - w*1792}
        """)
        for k in range(hi - lo):
            if k % 4 == 0:
                if k: a(f's_add_u32 s{S_T0}, s{S_T0}, 4096\ns_add_u32 s{S_T1}, s{S_T1}, 4096')
                a(f's_mov_b32 m0, s{S_T0}')
            a(f"buffer_load_dwordx4 v{V['pa']}, {WSRD}, s{S_T1} offen offset:{(k%4)*1024} lds")
    def read_x():
        a(f"""
        s_and_b32 s{S_T0}, s{S_STEP}, 1
        s_mul_i32 s{S_T0}, s{S_T0}, 28672
        v_add_u32 v{T}, s{S_T0}, v{F['l16']}
        """)
        for k in range(28): a(f'ds_read_b128 v[{xf+4*k}:{xf+4*k+3}], v{T} offset:{LDS_X + k*1024}')
    def zero_acc():
        for u in range(2 if cfg['m2'] else min(6, nunit)):
            a(f'v_mov_b64 v[{accof(u)}:{accof(u)+1}], 0\nv_mov_b64 v[{accof(u)+2}:{accof(u)+3}], 0')
        if w == 3:
            for k in range(4): a(f'v_mov_b64 v[{sa+2*k}:{sa+2*k+1}], 0')
            a(f"v_mov_b32 v{sa+8}, v{F['wz']}\nv_mov_b32 v{sa+9}, v{F['wz']}\nv_mov_b64 v[{sa+10}:{sa+11}], 0")
    a(f"v_lshrrev_b32 v{HA}, 1, v{V['l8']}\nv_min_u32 v{HA}, {55*4}, v{HA}\ns_and_b32 s{S_T0}, s{S_ROLE}, 3\ns_lshl_b32 s{S_T0}, s{S_T0}, 8\ns_add_u32 s{S_T0}, s{S_T0}, 7168\nv_add_u32 v{HA}, s{S_T0}, v{HA}")
    if w == 3:
        load_x()
        a(f'v_and_b32 v{T+12}, {15*8}, v0\nv_lshlrev_b32 v{T+12}, 3, v{T+12}\nv_add_u32 v{T+12}, 6144, v{T+12}')
        if stamps: a('s_mov_b32 s40, 0\ns_mov_b32 s42, 0\ns_mov_b32 s44, 0')
        a(f's_mov_b32 s{S_EOFF}, 0\ns_lshl_b32 s{S_T0}, s{S_ROLE}, 2\ns_add_u32 s{S_T0}, s{S_T0}, 12288\nv_lshlrev_b32 v{T+14}, 4, v0\nv_add_u32 v{T+14}, s{S_T0}, v{T+14}\nv_mov_b32 v{T+15}, 0')
    else:
        a(f"v_add_u32 v{FA}, {LDS_FL + 4*w}, v{F['l16']}\nv_mov_b32 v{FV}, 0")
        for k in range(5): a(f'ds_write_b32 v{FA}, v{FV} offset:{k*1024}')
        a(f'v_and_b32 v4, {31*8}, v0\nv_lshlrev_b32 v4, 3, v4\nv_add_u32 v4, {w*2048}, v4')
    if w < 3: dma_x()
    if cfg['prio'][w]: a(f"s_setprio {cfg['prio'][w]}")
    zero_acc()
    if cfg.get('wgd'): a('s_memrealtime s[88:89]')
    a(f's_branch {first}')
    a.label(top)
    zero_acc()
    stamp(a, stamps, 0)
    if cfg['msamp'] == 2: a(f'v_mov_b32 v{mf if w < 3 else T+13}, 0')
    if cfg['mdma'] == 2: a(f's_mov_b32 m0, {LDS_M}\ns_add_u32 s{S_T0}, s{S_MOFF}, 4096')
    elif cfg['mdma']: a(f's_mov_b32 m0, {LDS_M + w*2048}\ns_add_u32 s{S_T0}, s{S_MOFF}, {w*2048 - w*1792}')
    if not cfg['cutrig'] or w == 0: wait_hint(a, HA, S_MOFF, HT, delay=cfg['mdelay'], inner=cfg['hinner'])
    if cfg['cutrig'] and cfg['mdma'] != 2: a('s_barrier')
    if cfg['mdma']:
        got = a.newlabel('L_got')
        a(ST(9))
        nk = 2 if w < 3 else 1
        SA_ = (4 if w < 3 else T+12)
        def rnd(r):
            if cfg['msamp'] == 2:
                a(f"s_mov_b64 exec, {0x55555555 if w < 3 else 0x5555}\nbuffer_load_dword v{r}, v{SA_}, {WSRD}, s{S_MOFF} offen sc1\ns_mov_b64 exec, -1")
            elif cfg['msamp']: a(f"buffer_load_dword v{r}, v{SA_}, {WSRD}, s{S_MOFF} offen sc1")
            for k in range(nk): a(f"buffer_load_dwordx4 v{V['pa']}, {WSRD}, s{S_T0} offen offset:{k*1024} sc1 lds")
        r0, r1 = (mf, HT[1]) if w < 3 else (T+13, T+15)
        two = cfg['m2d']
        rnd(r0)
        a(f'v_add_u32 v{FV}, 1, v{FV}' if w < 3 else f's_add_u32 s{S_EOFF}, s{S_EOFF}, 1')
        a(f's_mov_b32 s{S_SAFE}, 0\ns_mov_b32 s{S_SPIN}, 1')
        if two:
            gap = two
            while gap > 0:
                a(f's_nop {min(gap, 16) - 1}'); gap -= 16
            rnd(r1)
        ex = (nk+1) if two else 0
        bad = a.newlabel('L_mbad'); okl = a.newlabel('L_mok')
        a(f"""
        {f's_waitcnt vmcnt({nk + ex})' if cfg['msamp'] else ''}
        {f'v_cmp_eq_u32 vcc, -1, v{r0}' if cfg['msamp'] else ''}
        {f's_cbranch_vccnz {bad}' if cfg['msamp'] else ''}
        s_waitcnt vmcnt({ex}) lgkmcnt(0)
{okl}:
        s_barrier
{got}:
        """)
        def coldb():
            lp = a.newlabel('L_mlp')
            a.label(bad)
            if two:
                a(f's_mov_b32 s{S_SPIN}, 2\ns_waitcnt vmcnt(0) lgkmcnt(0)\nv_cmp_eq_u32 vcc, -1, v{r1}\ns_cbranch_vccz {okl}')
            a.label(lp)
            rnd(r0)
            a(f"""
            s_add_u32 s{S_SPIN}, s{S_SPIN}, 1
            s_waitcnt vmcnt(0) lgkmcnt(0)
            v_cmp_eq_u32 vcc, -1, v{r0}
            s_cbranch_vccz {okl}
            s_cmp_lt_u32 s{S_SPIN}, s{S_LIM}
            s_cbranch_scc1 {lp}
            s_mov_b32 s{S_LIM}, 1
            s_branch {okl}
            """)
        a.cold.append(coldb)
        def coldf():
            a.label(first)
            a(f'v_add_u32 v{FV}, 1, v{FV}' if w < 3 else f's_add_u32 s{S_EOFF}, s{S_EOFF}, 1')
            a(f's_mov_b32 s{S_SAFE}, 1')
            poll_m(a, V)
            a(f's_branch {got}')
        a.cold.append(coldf)
    else:
        a.label(first)
        a(f'v_add_u32 v{FV}, 1, v{FV}' if w < 3 else f's_add_u32 s{S_EOFF}, s{S_EOFF}, 1')
        a(ST(9))
        if cfg['m2']: poll_m2(a, V, cfg['m2'], mf)
        else: poll_m(a, V)
    stamp(a, stamps, 1)
    if stamps and w < 3: a(f's_mov_b32 s{40+2*7}, s{S_SPIN}')
    lq = Q('lgkmcnt', 15)
    mrd = [dsop(f"ds_read_b64_tr_b16 v[{mf+4*b+2*hf}:{mf+4*b+2*hf+1}], v{V['l8']} offset:{LDS_M+b*1024+hf*512}", ('mf', b))
           for b in range(7) for hf in range(2)]
    for x in mrd[:cfg['mpre']]: a(x(lq))
    order = [(u, b) for b in range(7) for u in range(2)] + [(u, b) for u in range(2, nunit) for b in range(7)]
    ms = [(SM(accof(u), mf+4*b, wreg(u*7 + b, V['w']), idx), [('mf', b)] if u == 0 else []) for u, b in order]
    last = {u: i for i, (u, b) in enumerate(order)}
    def smfma(b):
        t4 = tf + 4*b
        return [(f"v_mfma_f32_16x16x32_bf16 v[{sa+8}:{sa+11}], v[{t4}:{t4+3}], v[{mf+4*b}:{mf+4*b+3}], " + f'v[{sa+8}:{sa+11}]', [('tf', b)]),
                (SM(sa, t4, vr(xf + 8*b, 8), idx), []),
                (SM(sa+4, t4, vr(xf + 56 + 8*b, 8), idx), [])]
    def tread(b, hf):
        return dsop(f"ds_read_b64_tr_b16 v[{tf+4*b+2*hf}:{tf+4*b+2*hf+1}], v{V['l8']} offset:{LDS_T+b*1024+hf*512}", ('tf', b))
    phases = [(0, 1, 2), (3, 4)]
    starts = []
    if w == 3:
        for ph in phases:
            starts.append(len(ms))
            for b in ph: ms += smfma(b)
    n = len(ms)
    gp = Gaps(n)
    for k, x in enumerate(mrd[cfg['mpre']:]): gp.put('ds', k, x)
    flag_after = {2, 4} | ({5} if w < 2 else {6})
    def post(u):
        A = accof(u); b, ga = tile_of(w, u)
        va = [f'v_add_f32 v{A}, v{A}, v{A+2}', f'v_add_f32 v{A+1}, v{A+1}, v{A+3}', f'v_cvt_pk_bf16_f32 v{A}, v{A}, v{A+1}']
        ds = [dsop(f"ds_write_b32 v{V['k1']}, v{A} offset:{LDS_T+b*1024+ga*128}", ('k', u))]
        if w < 3 and u in flag_after:
            ds.append(dsop(f'ds_write_b32 v{FA}, v{FV} offset:{sorted(flag_after).index(u)*1024}'))
        return va, ds
    g = 0
    done_at = {}
    for u in range(nunit - (0 if w == 3 else 1)):
        va, ds = post(u)
        g = max(g, last[u] + 3 - (len(va) - 3))
        for x in va: g = gp.put('va', g, x) + 1
        for x in ds: g = gp.put('ds', g, x, excl=True) + 1
        done_at[u] = g
    def zero_in_gaps(u, g):
        A = accof(u)
        for k in range(2):
            gg = g
            while gg < 7*u - 2 and (gp.va[gg] or (gp.ds[gg] and gp.ds[gg][-1][1])): gg += 1
            if gg >= 7*u - 2: gg = max(g, 7*u - 4 + k)
            gp.force('va', gg, f'v_mov_b64 v[{A+2*k}:{A+2*k+1}], 0')
    if cfg['m2']:
        gp.force('ds', cfg['m2w'], 's_waitcnt vmcnt(0)')
        for u in range(2, min(6, nunit)): zero_in_gaps(u, cfg['m2w'])
    for u in range(6, nunit): zero_in_gaps(u, done_at[u-6] + 1)
    if w == 3:
        for pi, ph in enumerate(phases):
            flagrd = f"ds_read_b128 v[{T}:{T+3}], v{F['l16']} offset:{LDS_FL + pi*1024}"
            lead = cfg['lead'][pi]
            g = max(starts[pi] - lead, done_at[max(ph)] if max(ph) < 5 else 0)
            g = min(g, starts[pi]-1)
            if cfg['pnop'][pi]: gp.force('ds', g, f"s_nop {cfg['pnop'][pi]-1}")
            gp.force('ds', g, dsop(flagrd, ('fl', pi)))
            ops = [tread(b, hf) for b in ph for hf in range(2)]
            for k, x in enumerate(ops):
                gp.force('ds', min(g + (k+1)//2, starts[pi]-1), x)
            FM = T+11
            def chk(lq, pi=pi):
                return lq.wait(('fl', pi)) + (f'\nv_min3_u32 v{FM}, v{T}, v{T+1}, v{T+2}' if pi == 0 else
                                              f'\nv_min3_u32 v{T}, v{T}, v{T+1}, v{T+2}\nv_min_u32 v{FM}, v{FM}, v{T}')
            gp.force('va', starts[pi], chk)
    if w == 0 and cfg['phint'] < 0:
        gp.force('ds', n - 1 + cfg['phint'], f"""s_mov_b64 exec, 15
            buffer_store_dword v{FV}, v4, {WSRD}, s{S_POFF} offen {pf}
            s_mov_b64 exec, -1""")
    emit_stream(a, ms, gp, lq)
    hint = f"""s_mov_b64 exec, 15
        buffer_store_dword v{T+15}, v{T+14}, {WSRD}, s{S_POFF} offen {pf}
        s_mov_b64 exec, -1"""
    if w < 3:
        va, ds = post(nunit-1)
        for x in va: a(x)
        for x in ds: a(x(lq))
        a(lq.drain())
        a('s_barrier')
        stamp(a, stamps, 2)
        if cfg['mdma']:
            again = a.newlabel('L_again')
            a(f"""
            s_barrier
            v_mov_b32 v{mf}, {LDS_VD}
            ds_read_b32 v{mf}, v{mf}
            s_waitcnt lgkmcnt(0)
            v_cmp_eq_u32 vcc, v{mf}, v{FV}
            s_cbranch_vccnz {again}
            """)
            def colda():
                a.label(again)
                zero_acc()
                a(f's_branch {first}')
            a.cold.append(colda)
        elif cfg['quiet']: a(f"s_sleep {cfg['quiet']}")
    else:
        s = T
        mx = T+6; z = T+8; EA = tf; B1 = tf+4; B2 = tf+8; D1 = tf+12; D2 = tf+16; rz = T+10
        a(f"""
        v_mov_b64 v[{B1+2}:{B1+3}], 0
        v_mov_b64 v[{B2}:{B2+1}], 0
        v_mov_b32 v{B2+3}, 0
        v_mov_b32 v{EA+3}, 0
        """)
        for _ in range(cfg['b5nop']): a('s_nop 3')
        q = Q('lgkmcnt', 15)
        a(f"ds_read_b128 v[{T}:{T+3}], v{F['l16']} offset:{LDS_FL + 2048}"); q.issue('fl')
        for hf in range(2): a(tread(5, hf)(q))
        stamp(a, stamps, 2)
        if cfg['al'] is not None:
            a.raw('    .p2align 6')
            for _ in range(cfg['al']): a('s_nop 0')
        a('s_barrier')
        stamp(a, stamps, 3)
        PX = lambda k: a('s_memtime s[52:53]') if stamps and cfg['px'] == k else None
        PX(0)
        for hf in range(2): a(tread(6, hf)(q))
        PX(1)
        if cfg['phint'] == 0: a(hint)
        PX(2)
        fl5 = [f'v_min3_u32 v{T}, v{T}, v{T+1}, v{T+2}', f'v_min_u32 v{FM}, v{FM}, v{T}', f'v_subrev_u32 v{FM}, s{S_EOFF}, v{FM}']
        for b in (5, 6):
            for m, tags in smfma(b):
                for tg in tags: a(q.wait(tg))
                if b == 6 and tags: PX(4)
                a(m)
                if fl5: a(fl5.pop(0))
            if b == 5: PX(3)
        a(ST(7))
        if cfg['phint'] == 1: a(hint)
        e = sa
        redo = a.newlabel('L_smr'); slowmx = a.newlabel('L_sms'); go = a.newlabel('L_smg')
        a(f"""
        s_mov_b32 s{S_T1}, {120 << 23}
        v_add_f32_dpp v{s+4}, v{sa+10}, v{sa+8} {QP}
        v_add_f32_dpp v{s+5}, v{sa+11}, v{sa+9} {QP}
        v_pk_add_f32 v[{s}:{s+1}], v[{sa}:{sa+1}], v[{sa+2}:{sa+3}]
        v_exp_f32 v{e+8}, v{s+4}
        v_exp_f32 v{e+9}, v{s+5}
        v_pk_add_f32 v[{s+2}:{s+3}], v[{sa+4}:{sa+5}], v[{sa+6}:{sa+7}]
        v_exp_f32 v{e}, v{s}
        v_exp_f32 v{e+1}, v{s+1}
        v_exp_f32 v{e+2}, v{s+2}
        v_exp_f32 v{e+3}, v{s+3}
{redo}:;nf
        v_pk_add_f32 v[{z}:{z+1}], v[{e}:{e+1}], v[{e+8}:{e+9}]
        v_cvt_pk_bf16_f32 v{EA+2}, v{e+8}, v{e+9}
        v_pk_add_f32 v[{z}:{z+1}], v[{z}:{z+1}], v[{e+2}:{e+3}]
        """)
        if cfg['phint'] == 2: a(hint)
        fill = [f'v_cvt_pk_bf16_f32 v{EA+k}, v{e+2*k}, v{e+2*k+1}' for k in range(2)]
        for m in ('row_ror:8', 'row_ror:4', 'row_ror:2', 'row_ror:1'):
            if fill: a(fill.pop(0))
            for r in (z, z+1):
                a(f'v_add_f32_dpp v{r}, v{r}, v{r} {m} row_mask:0xf bank_mask:0xf')
        LO, HI = (127-60) << 23, (127+60) << 23
        a(ST(8))
        a(f"""
        v_rcp_f32 v{mx}, v{z}
        v_rcp_f32 v{mx+1}, v{z+1}
        v_subrev_u32 v{z}, {LO}, v{z}
        v_cvt_pk_bf16_f32 v{rz}, v{mx}, v{mx+1}
        v_and_b32 v{B1}, v{rz}, v{F['mk0']}
        v_and_b32 v{B1+1}, v{rz}, v{F['mk1']}
        v_and_b32 v{B2+2}, v{rz}, v{F['mk2']}
        v_subrev_u32 v{z+1}, {LO}, v{z+1}
        v_mfma_f32_16x16x32_bf16 v[{D1}:{D1+3}], v[{EA}:{EA+3}], v[{B1}:{B1+3}], 0
        v_mfma_f32_16x16x32_bf16 v[{D2}:{D2+3}], v[{EA}:{EA+3}], v[{B2}:{B2+3}], 0
        v_max3_u32 v{z}, v{z}, v{z+1}, v{FM}
        v_cmp_lt_u32 vcc, s{S_T1}, v{z}
        s_cmp_eq_u64 vcc, 0
        s_cselect_b64 exec, -1, 0
        v_cvt_pk_bf16_f32 v{D1}, v{D1}, v{D1+1}
        v_cvt_pk_bf16_f32 v{D1+1}, v{D1+2}, v{D1+3}
        buffer_store_dwordx2 v[{D1}:{D1+1}], v{F['px']}, {WSRD}, s{S_POFF} offen {pf}
        v_cvt_pk_bf16_f32 v{D2}, v{D2}, v{D2+1}
        v_cvt_pk_bf16_f32 v{D2+1}, v{D2+2}, v{D2+3}
        buffer_store_dwordx2 v[{D2}:{D2+1}], v{F['pm']}, {WSRD}, s{S_POFF} offen {pf}
        s_mov_b64 exec, -1
        s_cbranch_scc0 {slowmx}
        """)
        if cfg['mdma']: a('s_barrier')
        def coldmx():
            a(f'{slowmx}:' + ('\ns_add_u32 s40, s40, 1' if stamps else ''))
            if cfg['mdma']:
                sf = a.newlabel('L_safe')
                a(f"""
                s_cmp_lg_u32 s{S_SAFE}, 0
                s_cbranch_scc1 {sf}
                {'s_add_u32 s86, s86, 1' if cfg.get('wgd') else ''}
                v_mov_b32 v{T}, {LDS_VD}
                v_mov_b32 v{T+1}, s{S_EOFF}
                ds_write_b32 v{T}, v{T+1}
                s_waitcnt lgkmcnt(0)
                s_barrier
                """)
                zero_acc()
                a(f's_branch {first}\n{sf}:')
            a(f's_mov_b32 s{S_T1}, -1')
            if cfg.get('wgd'): a('s_add_u32 s85, s85, 1')
            for k in range(4): a(f'v_mov_b64 v[{sa+2*k}:{sa+2*k+1}], 0')
            a(f"v_mov_b32 v{sa+8}, v{F['wz']}\nv_mov_b32 v{sa+9}, v{F['wz']}\nv_mov_b64 v[{sa+10}:{sa+11}], 0")
            q2 = Q('lgkmcnt', 15)
            for b in range(7):
                for hf in range(2): a(tread(b, hf)(q2))
            a('s_waitcnt lgkmcnt(0)')
            for b in range(7):
                for m, tags in smfma(b): a(m)
            a(f"""
            v_mov_b64 v[{B1+2}:{B1+3}], 0
            v_mov_b64 v[{B2}:{B2+1}], 0
            v_mov_b32 v{B2+3}, 0
            v_mov_b32 v{EA+3}, 0
            v_add_f32_dpp v{s+4}, v{sa+10}, v{sa+8} {QP}
            v_add_f32_dpp v{s+5}, v{sa+11}, v{sa+9} {QP}
            v_pk_add_f32 v[{s}:{s+1}], v[{sa}:{sa+1}], v[{sa+2}:{sa+3}]
            v_pk_add_f32 v[{s+2}:{s+3}], v[{sa+4}:{sa+5}], v[{sa+6}:{sa+7}]
            v_max3_f32 v{mx}, v{s}, v{s+4}, v{s+2}
            v_max3_f32 v{mx+1}, v{s+1}, v{s+5}, v{s+3}
            """)
            rowred(a, 'v_max_f32', mx)
            for k in range(3): a(f'v_pk_add_f32 v[{s+2*k}:{s+2*k+1}], v[{s+2*k}:{s+2*k+1}], v[{mx}:{mx+1}] neg_lo:[0,1] neg_hi:[0,1]')
            for k in range(6): a(f'v_exp_f32 v{e+(k if k < 4 else k+4)}, v{s+k}')
            a(f's_nop 1\ns_branch {redo}')
        a.cold.append(coldmx)
        stamp(a, stamps, 4)
    if stamps: a('s_memtime s[50:51]\ns_memrealtime s[60:61]')
    stamp_flush(a, stamps, 11, mf)
    step_advance(a, 28672, 458752)
    a(f's_cmp_ge_u32 s{S_STEP}, 63\ns_cbranch_scc1 L_exit')
    if w == 3: read_x()
    elif not cfg['nox']: dma_x()
    if cfg['ssleep'][w]:
        a(f"s_sleep {cfg['ssleep'][w]}")
    a(f's_branch {top}')
    a.flush_cold()

S_YD = 33; S_SAFE = 36; S_CV = 37; S_CU = 38; S_MD = 39
CV = dict(ha=160, one=161, zero=162, cu=163, hw=164, hm=165, nw=172, nr=173, l8=0, pa=1, idx=2, l16=3, pr=4, mw=6, lw=7, rw=8, rr=5, mf=12, acc=40, itm=72, vx=88, uf=96, tw=128, w=176)

def comb_setup(a, stamps, cfg):
    V = CV; LN = 112
    a(f'v_mov_b32 v{LN}, v1')
    team_register(a)
    common_addrs(a, V, LN)
    img_addr(a, V['mw'], LN+1, LN)
    a(f"""
    s_sub_u32 s{S_ROLE}, s{S_ROLE}, 16
    s_lshl_b32 s{S_ROLE}, s{S_ROLE}, 1
    s_and_b32 s{S_T0}, s{S_WAVE}, 1
    s_add_u32 s{S_T1}, s{S_ROLE}, s{S_T0}
    s_lshr_b32 s{S_T0}, s{S_T1}, 2
    s_lshl_b32 s{S_T0}, s{S_T0}, 10
    s_and_b32 s{S_T1}, s{S_T1}, 3
    s_lshl_b32 s{S_T1}, s{S_T1}, 7
    s_add_u32 s{S_T0}, s{S_T0}, s{S_T1}
    s_add_u32 s{S_T0}, s{S_T0}, 8192
    v_add_u32 v{V['mw']}, s{S_T0}, v{V['mw']}
    v_lshlrev_b32 v{V['l16']}, 4, v{LN}
    s_mul_i32 s{S_T0}, s{S_WAVE}, 28672
    s_add_u32 s{S_T0}, s{S_T0}, {LDS_BW}
    v_add_u32 v{V['lw']}, s{S_T0}, v{V['l16']}
    s_lshl_b32 s{S_T0}, s{S_WAVE}, 10
    v_add_u32 v{V['rw']}, s{S_T0}, v{V['l16']}
    v_add_u32 v{V['pr']}, s{S_T0}, v{V['rw']}
    s_and_b32 s{S_T0}, s{S_WAVE}, 1
    s_lshl_b32 s{S_T0}, s{S_T0}, 3
    v_add_u32 v{V['rr']}, s{S_T0}, v{V['l16']}
    s_mul_i32 s{S_T1}, s{S_WAVE}, {4*28}
    s_add_u32 s{S_T1}, s{S_T1}, s{S_ROLE}
    s_add_u32 s{S_T1}, s{S_T1}, 448
    s_mul_i32 s{S_T1}, s{S_T1}, 14336
    s_add_u32 s{S_T1}, s{S_T1}, {L.WT}
    """)
    toff = lambda u: ((u >> 1)*28 + (u & 1))*14336
    for u in (6, 7):
        a(f's_add_u32 s{S_T0}, s{S_T1}, {toff(u)}')
        load_1k_run(a, [vr(12 + 4*k, 4) for k in range(14)], V['l16'], S_T0)
        for k in range(14):
            a(f's_waitcnt vmcnt({13-k})')
            a(f"ds_write_b128 v{V['lw']}, v[{12+4*k}:{12+4*k+3}] offset:{(u-6)*14336+k*1024}")
        a('s_waitcnt lgkmcnt(0)')
    bud = [0]
    for u in range(6):
        a(f's_add_u32 s{S_T0}, s{S_T1}, {toff(u)}')
        load_1k_run(a, [wreg_half(u*7 + k//2, V['w'], k % 2) for k in range(14)], V['l16'], S_T0, cfg['wfl'], budget=bud)
    a(f"""
    s_mov_b32 s{S_STEP}, 0
    s_mov_b32 s{S_MOFF}, {L.MB_M}
    s_mov_b32 s{S_POFF}, {L.MB_P}
    s_lshl_b32 s{S_GOFF}, s{S_ROLE}, 14
    s_lshl_b32 s{S_T0}, s{S_WAVE}, 12
    s_add_u32 s{S_GOFF}, s{S_GOFF}, s{S_T0}
    s_add_u32 s{S_GOFF}, s{S_GOFF}, {L.U}
    s_lshl_b32 s{S_XOFF}, s{S_ROLE}, 12
    s_add_u32 s{S_XOFF}, s{S_XOFF}, {L.VM}
    s_lshr_b32 s{S_STMP}, s{S_ROLE}, 1
    s_add_u32 s{S_STMP}, s{S_STMP}, 16
    s_lshl_b32 s{S_STMP}, s{S_STMP}, 2
    s_add_u32 s{S_STMP}, s{S_STMP}, s{S_WAVE}
    s_lshl_b32 s{S_STMP}, s{S_STMP}, 12
    s_add_u32 s{S_STMP}, s{S_STMP}, {L.STAMP}
    s_waitcnt vmcnt(0)
    """)
    a(f"""
    v_mov_b32 v{V['one']}, 1
    v_mov_b32 v{V['zero']}, 0
    v_mov_b32 v{V['cu']}, 0
    v_and_b32 v{V['ha']}, {120 if cfg['cutrig'] else 24}, v{V['l8']}
    v_lshrrev_b32 v{V['ha']}, 1, v{V['ha']}
    s_lshl_b32 s{S_T0}, s{S_WAVE}, 4
    s_mul_i32 s{S_T0}, s{S_T0}, {0 if cfg['cutrig'] else 1}
    s_and_b32 s{S_T1}, s{S_ROLE}, 6
    s_lshl_b32 s{S_T1}, s{S_T1}, 6
    s_add_u32 s{S_T0}, s{S_T0}, s{S_T1}
    s_add_u32 s{S_T0}, s{S_T0}, 12288
    v_add_u32 v{V['ha']}, s{S_T0}, v{V['ha']}
    s_lshl_b32 s{S_T0}, s{S_ROLE}, 1
    s_add_u32 s{S_T0}, s{S_T0}, s{S_WAVE}
    s_lshl_b32 s{S_T0}, s{S_T0}, 2
    s_add_u32 s{S_T0}, s{S_T0}, {8192 + 7168}
    v_lshlrev_b32 v{V['hw']}, 5, v{V['l8']}
    v_add_u32 v{V['hw']}, s{S_T0}, v{V['hw']}
    s_add_u32 s{S_YD}, s{S_XOFF}, 0x8000000
    v_lshrrev_b32 v{V['hm']}, 1, v{V['l8']}
    v_min_u32 v{V['hm']}, {55*4}, v{V['hm']}
    v_add_u32 v{V['hm']}, 7168, v{V['hm']}
    s_mov_b32 s56, 0
    v_lshrrev_b32 v{V['nw']}, 2, v{V['rw']}
    v_lshrrev_b32 v{V['nr']}, 1, v{V['l8']}
    s_lshl_b32 s{S_MD}, s{S_WAVE}, 11
    s_min_u32 s{S_MD}, s{S_MD}, 5120
    s_mov_b32 s{S_CU}, {L.CNT_U}
    """)
    for k in range(8): a(f"v_mov_b32 v{V['vx']+k}, 0")
    for k in range(16): a(f"v_mov_b32 v{V['itm']+k}, 0")
    for k in range(32): a(f"v_mov_b32 v{V['uf']+k}, 0")
    team_mode(a, V['mf'], V['mf']+1)
    if cfg['flags']:
        wait_cnt(a, S_CU, 28, 9)
        a(f's_mov_b32 s{S_CV}, {L.CNT_I}')
        wait_cnt(a, S_CV, 98, 9)

def comb_wave(a, pf, stamps, cfg):
    V = CV; idx = V['idx']; mf = V['mf']; tw = V['tw']; uf = V['uf']; pa = V['pa']
    top = a.newlabel('L_cb_top'); nh0 = a.newlabel('L_nh')
    HT = [10, 11, 166, 167][:cfg['hdepth']]
    def store_vx(base, r):
        return [f"buffer_store_dwordx4 v[{r}:{r+3}], v{V['rw']}, {WSRD}, s{base} offen {cfg['xflags']}",
                f"s_add_u32 s{S_T1}, s{base}, 4096\nbuffer_store_dwordx4 v[{r+4}:{r+7}], v{V['rw']}, {WSRD}, s{S_T1} offen {cfg['xflags']}"]
    lq = Q('lgkmcnt', 15)
    def lread(lam, hf):
        return dsop(f"ds_read_b128 v[{tw+8*(lam%4)+4*hf}:{tw+8*(lam%4)+4*hf+3}], v{V['lw']} offset:{lam*2048+hf*1024}", ('lw', lam))
    def housekeeping_acc(a=a):
        for u in range(8):
            A = V['acc'] + 4*u
            a(f'v_mov_b64 v[{A}:{A+1}], 0\nv_mov_b64 v[{A+2}:{A+3}], 0')
    def housekeeping(a=a, acc=True):
        if acc: housekeeping_acc(a)
        for lam in range(4):
            for hf in range(2): a(lread(lam, hf)(lq))
    uload = lambda k: f"buffer_load_dwordx4 v[{uf+4*k}:{uf+4*k+3}], v{V['l16']}, {WSRD}, s{S_GOFF if k < 4 else S_EOFF} offen offset:{(k%4)*1024} {cfg['xflags']}"
    uorder = [] if cfg['nou'] else [4, 5, 6, 7, 0, 1, 2, 3]
    ue = uorder[:cfg['uearly']]; ul = uorder[cfg['uearly']:]
    housekeeping()
    t = mf
    slow = a.newlabel('L_cms'); back = a.newlabel('L_cmb'); redo = a.newlabel('L_cmr')
    pre = f"""s_add_u32 s{S_EOFF}, s{S_GOFF}, 16384
        s_lshl_b32 s{S_CU}, s{S_STEP}, 7
        s_add_u32 s{S_CU}, s{S_CU}, {L.CNT_U + 128}
        s_add_u32 s{S_T0}, s{S_MOFF}, s{S_MD}
        s_mov_b32 m0, s{S_MD}"""
    a(pre)
    a(f's_branch {top}\n{nh0}:\ns_barrier')
    a.label(top)
    stamp(a, stamps, 0)
    if cfg['cdma']:
        a(f"""
        buffer_load_dwordx4 v{V['l16']}, {WSRD}, s{S_T0} offen sc1 lds
        buffer_load_dwordx4 v{V['l16']}, {WSRD}, s{S_T0} offen offset:1024 sc1 lds
        s_mov_b32 s{S_SAFE}, 0
        """)
        if ue: a('s_barrier')
        for k in ue: a(uload(k))
        a(f's_waitcnt vmcnt({len(ue)}) lgkmcnt(0)\ns_barrier\n{back}:')
        def coldr():
            a(f'{redo}:\ns_barrier\ns_mov_b32 s{S_SAFE}, 1\ns_add_u32 s{S_YD}, s{S_XOFF}, 0x8000000')
            if stamps: a(f's_add_u32 s{40+2*8}, s{40+2*8}, 1')
            if cfg.get('wgd'): a('s_add_u32 s84, s84, 1')
            housekeeping()
            poll_m(a, V)
            a(f's_branch {back}')
        a.cold.append(coldr)
    else:
        a(f"""
        buffer_load_dwordx4 v[{t}:{t+3}], v{pa}, {WSRD}, s{S_MOFF} offen sc1
        buffer_load_dwordx4 v[{t+4}:{t+7}], v{pa}, {WSRD}, s{S_MOFF} offen offset:768 sc1
        """)
        if ue: a('s_barrier')
        for k in ue: a(uload(k))
        a(f"""
        s_waitcnt vmcnt({len(ue)+1})
        ds_write_b128 v{pa}, v[{t}:{t+3}]
        v_max3_u32 v{t+8}, v{t}, v{t+1}, v{t+2}
        s_waitcnt vmcnt({len(ue)})
        ds_write_b128 v{pa}, v[{t+4}:{t+7}] offset:768
        v_max3_u32 v{t+8}, v{t+8}, v{t+3}, v{t+4}
        v_max3_u32 v{t+8}, v{t+8}, v{t+5}, v{t+6}
        v_max_u32 v{t+8}, v{t+8}, v{t+7}
        v_cmp_eq_u32 vcc, -1, v{t+8}
        s_cbranch_vccnz {slow}
        s_waitcnt lgkmcnt(0)
        s_barrier
{back}:
        """)
        def coldm():
            a.label(slow)
            if stamps: a(f's_add_u32 s{40+2*8}, s{40+2*8}, 1')
            poll_m(a, V)
            a(f's_branch {back}')
        a.cold.append(coldm)
    lq.drain()
    stamp(a, stamps, 1)
    mrd = [dsop(f"ds_read_b64_tr_b16 v[{mf+4*b+2*hf}:{mf+4*b+2*hf+1}], v{V['l8']} offset:{LDS_M+b*1024+hf*512}", ('mf', b))
           for b in range(7) for hf in range(2)]
    for x in mrd[:cfg['mpre']]: a(x(lq))
    ms = []; last = {}
    rorder = [(u, b) for b in range(7) for u in range(2)] + [(u, b) for u in range(2, 6) for b in range(7)]
    rb = 0
    for p in range(56):
        if p % 4 == 3:
            lam = p // 4; u = 6 + lam // 7; b = lam % 7
            ms.append((SM(V['acc']+4*u, mf+4*b, vr(tw+8*(lam % 4), 8), idx), [('mf', b), ('lw', lam)]))
        else:
            u, b = rorder[rb]; rb += 1
            ms.append((SM(V['acc']+4*u, mf+4*b, wreg(u*7+b, V['w']), idx), [('mf', b)]))
        last[u] = p
    gp = Gaps(56)
    for k, x in enumerate(mrd[cfg['mpre']:]): gp.put('ds', k, x)
    for lam in range(4, 14):
        g = 4*(lam-4) + 3
        g = gp.put('ds', g, lread(lam, 0)) + 1
        gp.put('ds', g, lread(lam, 1))
    g = 0
    for k in ul: g = gp.put('va', g, uload(k)) + cfg['ustep']
    if cfg['flags']:
        g = gp.put('va', g, f"buffer_load_dword v{V['cu']}, v{V['zero']}, {WSRD}, s{S_CU} offen sc1") + 1
    for x in store_vx(S_YD, V['vx']): g = gp.put('va', g, x) + cfg['ustep']
    assert g - cfg['ustep'] < min(last.values()) + 3
    for k in range(len(HT)-1 if cfg['psl'] is None else 0):
        gp.put('ds', 55 - cfg['hpre'] + 4*k, f"buffer_load_dword v{HT[k]}, v{V['ha']}, {WSRD}, s{S_POFF} offen sc1")
    def post(u):
        A = V['acc'] + 4*u; hl = u >> 1; ctl = u & 1
        return [f'v_add_f32 v{A}, v{A}, v{A+2}', f'v_add_f32 v{A+1}, v{A+1}, v{A+3}',
                f"v_cvt_pk_bf16_f32 v{V['itm']+8*ctl+4*(hl>>1)+(hl&1)}, v{A}, v{A+1}", f"v_cvt_pk_bf16_f32 v{V['vx']+4*ctl+hl}, v{A}, v{A+1}"]
    tail = []; gprev = 0
    for u in sorted(last, key=lambda u: last[u]):
        g = max(last[u] + 3, gprev)
        if g + 4 >= 56: tail += post(u); continue
        for x in post(u): g = gp.put('va', g, x) + 1
        gprev = g
        if u == 0: done0 = g
    if cfg['cdma']:
        A0 = V['acc']; N = 168
        g = gp.put('va', done0, f'v_add_f32 v9, v{A0}, v{A0+1}') + 1
        g = gp.put('ds', g, dsop(f"ds_write_b32 v{V['nw']}, v9 offset:{LDS_NAN}", 'nw')) + 4
        gp.force('ds', g, dswait('nw', 's_barrier'))
        g = gp.put('ds', g+1, dsop(f"ds_read2st64_b32 v[{N}:{N+1}], v{V['nr']} offset0:{LDS_NAN//256} offset1:{LDS_NAN//256+1}")) + 1
        g = gp.put('ds', g, dsop(f"ds_read2st64_b32 v[{N+2}:{N+3}], v{V['nr']} offset0:{LDS_NAN//256+2} offset1:{LDS_NAN//256+3}", 'nr')) + 4
        g = gp.put('va', g, dswait('nr', f'v_pk_add_f32 v[{N}:{N+1}], v[{N}:{N+1}], v[{N+2}:{N+3}]')) + 1
        g = gp.put('va', g, f'v_cmp_u_f32 vcc, v{N}, v{N+1}')
        assert g < 54
    emit_stream(a, ms, gp, lq)
    if cfg['cdma']:
        nb = a.newlabel('L_cnb'); nx = a.newlabel('L_cnx')
        a(f's_cbranch_vccnz {nb};nf\n{nx}:;nf')
        a.cold.append(lambda: a(f'{nb}:\ns_nop 7\ns_cmp_eq_u32 s{S_SAFE}, 0\ns_cbranch_scc1 {redo}\ns_branch {nx}'))
    for x in tail: a(x)
    cont = a.newlabel('L_cbc')
    a(f's_cmp_lt_u32 s{S_STEP}, 63\ns_cbranch_scc1 {cont}')
    for x in store_vx(S_XOFF, V['vx']): a(x)
    a(f"""
    s_branch L_exit
{cont}:
    """)
    stamp(a, stamps, 2)
    A = tw
    a(f's_add_u32 s{S_T0}, s{S_POFF}, 8192\ns_mov_b32 s{S_YD}, s{S_XOFF}')
    if stamps and cfg['sdrain']: a('s_waitcnt vmcnt(0)')
    stamp(a, stamps, 3)
    if cfg['psl'] is None:
        jn = a.newlabel('L_jn')
        a(f's_cmp_lg_u32 s{S_WAVE}, 0\ns_cbranch_scc1 {jn}')
        wait_hint(a, V['ha'], S_POFF, HT, delay=cfg['pdelay'], inner=cfg['hinner'], primed=True)
        a(f'{jn}:\ns_barrier')
    else:
        housekeeping_acc()
        stamp_flush(a, stamps, 11, mf+24)
        if cfg['psl'] - (cfg['fl'] if stamps else 0) > 0: a(f"s_sleep {cfg['psl'] - (cfg['fl'] if stamps else 0)}")
        if cfg['pdelay']: a(f"s_nop {cfg['pdelay']-1}")
        a('s_barrier')
    stamp(a, stamps, 6)
    l = a.newlabel('L_pp'); d = a.newlabel('L_ppd'); retry = a.newlabel('L_ppr'); t = 9
    R = tw + 8
    B3 = [vr(uf, 8), vr(uf+8, 8), vr(V['itm'], 8)], [vr(uf+16, 8), vr(uf+24, 8), vr(V['itm']+8, 8)]
    mh = f"""s_mov_b64 exec, 15
        buffer_store_dword v{V['zero']}, v{V['hw']}, {WSRD}, s{S_MOFF} offen {pf}
        s_mov_b64 exec, -1"""
    def issue(p):
        a(f"""
        buffer_load_dwordx4 v[{p}:{p+3}], v{V['pr']}, {WSRD}, s{S_POFF} offen sc1
        buffer_load_dwordx4 v[{p+4}:{p+7}], v{V['pr']}, {WSRD}, s{S_POFF} offen offset:1024 sc1
        buffer_load_dwordx4 v[{p+8}:{p+11}], v{V['rw']}, {WSRD}, s{S_T0} offen sc1
        """)
    def zero():
        for k in range(4): a(f'v_mov_b64 v[{A+2*k}:{A+2*k+1}], 0')
    def attempt(p, behind, hint_here):
        ex = behind
        a(f's_add_u32 s{S_SPIN}, s{S_SPIN}, 1')
        for k in range(3):
            a(f's_waitcnt vmcnt({2-k+ex})')
            a(SM(A, p+4*k, B3[0][k], idx))
            a(f'v_max_u32 v{t}, v{p}, v{p+2}' if k == 0 else f'v_max3_u32 v{t}, v{t}, v{p+4*k}, v{p+4*k+2}')
            a(SM(A+4, p+4*k, B3[1][k], idx))
            if hint_here and k == cfg['mhk']:
                if cfg['mhint'] == 3:
                    a(f"""v_cmp_eq_u32 vcc, -1, v{t}
                    s_cmp_eq_u64 vcc, 0
                    s_cselect_b64 exec, 15, 0
                    buffer_store_dword v{V['zero']}, v{V['hw']}, {WSRD}, s{S_MOFF} offen {pf}
                    s_mov_b64 exec, -1""")
                else: a(mh)
                ex += 1
        a(f'v_cmp_eq_u32 vcc, -1, v{t}')
    a(f's_mov_b32 s{S_SPIN}, 0')
    issue(mf)
    zero()
    if cfg['p2']:
        gap = cfg['p2']
        while gap > 0:
            a(f's_nop {min(gap, 16) - 1}'); gap -= 16
        issue(mf+12)
    if cfg['mhint'] == 0:
        for _ in range(cfg['mhnop']): a('s_nop 3')
        a(mh)
    attempt(mf, (3 if cfg['p2'] else 0) + (cfg['mhint'] == 0), cfg['mhint'] >= 2)
    a(f's_cbranch_vccnz {retry};nf\n{d}:;nf')
    def coldp():
        a(f'{retry}:\ns_nop 7')
        if cfg['p2']:
            a.label(l)
            issue(mf)
            zero()
            attempt(mf+12, 3, cfg['mhint'] == 3)
            a(f's_cbranch_vccz {d}')
            issue(mf+12)
            zero()
            attempt(mf, 3, cfg['mhint'] == 3)
        else:
            a.label(l)
            issue(mf)
            zero()
            attempt(mf, 0, cfg['mhint'] == 3)
        a(f"""
        s_cbranch_vccz {d}
        s_cmp_lt_u32 s{S_SPIN}, s{S_LIM}
        s_cbranch_scc1 {l}
        s_mov_b32 s{S_LIM}, 1
        s_branch {d}
        """)
    a.cold.append(coldp)
    stamp(a, stamps, 4)
    if cfg['mhint'] == 1: a(mh)
    if stamps: a(f's_mov_b32 s{40+2*7}, s{S_SPIN}')
    if cfg.get('wgd'): a(f's_add_u32 s83, s83, s{S_SPIN}')
    if cfg['flags']: a(f"v_readfirstlane_b32 s{S_CV}, v{V['cu']}")
    hiw = a.newlabel('L_cbh'); nh = nh0; ny = a.newlabel('L_cny')
    def chores():
        if cfg['flags']:
            slow2 = a.newlabel('L_us'); back2 = a.newlabel('L_ub')
            a(f's_cmp_lt_u32 s{S_CV}, 28\ns_cbranch_scc1 {slow2}\n{back2}:')
            def coldu():
                a.label(slow2)
                wait_cnt(a, S_CU, 28, 174)
                a(f's_branch {back2}')
            a.cold.append(coldu)
        step_advance(a, 458752)
        a(pre)
        housekeeping(a, False)
    def hi_tail():
        w2 = a.newlabel('L_cw2')
        ld = lambda r: f"buffer_load_dword v{r}, v{V['hm']}, {WSRD}, s{S_T1} offen sc1"
        a(f"""
{hiw}:
        s_add_u32 s{S_T1}, s{S_MOFF}, 8192
        s_cmp_eq_u32 s{S_WAVE}, 2
        s_cbranch_scc1 {w2}
        {ld(HT[0])}
        s_waitcnt lgkmcnt(0)
        {ld(HT[1])}
        s_barrier
        {ld(HT[2])}
        """)
        stamp(a, stamps, 5)
        chores()
        wait_hint(a, V['hm'], S_MOFF, HT, delay=cfg['cdelay'], inner=cfg['hinner'], primed=True)
        a(f's_branch {nh}\n{w2}:\ns_waitcnt lgkmcnt(0)\ns_barrier')
        if cfg['cq']: a(f"s_sleep {cfg['cq']}")
        stamp(a, stamps, 5)
        chores()
        a(f's_branch {nh}')
    a.cold.append(hi_tail)
    a(f"""
    v_pk_add_f32 v[{R}:{R+1}], v[{A}:{A+1}], v[{A+2}:{A+3}]
    v_pk_add_f32 v[{R+2}:{R+3}], v[{A+4}:{A+5}], v[{A+6}:{A+7}]
    ds_write_b128 v{V['rw']}, v[{R}:{R+3}] offset:{LDS_RED}
    s_cmp_ge_u32 s{S_WAVE}, 2
    s_cbranch_scc1 {hiw}
    s_waitcnt lgkmcnt(0)
    s_barrier
    ds_read_b64 v[{R}:{R+1}], v{V['rr']} offset:{LDS_RED}
    ds_read_b64 v[{R+2}:{R+3}], v{V['rr']} offset:{LDS_RED+1024}
    ds_read_b64 v[{R+4}:{R+5}], v{V['rr']} offset:{LDS_RED+2048}
    ds_read_b64 v[{R+6}:{R+7}], v{V['rr']} offset:{LDS_RED+3072}
    s_waitcnt lgkmcnt(2)
    v_pk_add_f32 v[{R}:{R+1}], v[{R}:{R+1}], v[{R+2}:{R+3}]
    s_waitcnt lgkmcnt(0)
    v_pk_add_f32 v[{R+4}:{R+5}], v[{R+4}:{R+5}], v[{R+6}:{R+7}]
    v_pk_add_f32 v[{R}:{R+1}], v[{R}:{R+1}], v[{R+4}:{R+5}]
    v_cvt_pk_bf16_f32 v9, v{R}, v{R+1}
    buffer_store_dword v9, v{V['mw']}, {WSRD}, s{S_MOFF} offen {pf}
    """)
    stamp(a, stamps, 5)
    a(f"""
    s_cmp_lt_u32 s{S_STEP}, 62
    s_cbranch_scc1 {ny}
    s_add_u32 s{S_T0}, s{S_MOFF}, {L.MB_Y - L.MB_M}
    buffer_store_dword v9, v{V['mw']}, {WSRD}, s{S_T0} offen sc1
{ny}:
    """)
    chores()
    a(f's_branch {nh}')
    while a.cold: a.flush_cold()

def helper_cu(a, cfg):
    V = dict(l8=0, pa=1, idx=2, mf=12); LN = 112
    NP = cfg['npf']; D = cfg['pfd']; PER = cfg['pfper']
    a(f'v_mov_b32 v{LN}, v1')
    team_register(a)
    common_addrs(a, V, LN)
    a(f"""
    v_lshlrev_b32 v4, 7, v{LN}
    v_mov_b32 v5, 0
    v_mov_b32 v6, 14
    s_sub_u32 s{S_ROLE}, s{S_ROLE}, 30
    s_lshl_b32 s{S_EOFF}, s{S_ROLE}, 2
    s_add_u32 s{S_EOFF}, s{S_EOFF}, s{S_WAVE}
    s_mov_b32 s{S_STEP}, 0
    s_mov_b32 s{S_MOFF}, {L.MB_M + 8192}
    s_mov_b32 s{S_CV}, {L.DUMMY + 0x200000}
    s_mul_i32 s{S_GOFF}, s{S_EOFF}, 7168
    s_add_u32 s{S_GOFF}, s{S_GOFF}, {L.XN}
    s_mov_b32 s{S_POFF}, 28672
    s_cmp_lt_u32 s{S_EOFF}, 4
    s_cbranch_scc1 H_t
    s_sub_u32 s{S_GOFF}, s{S_EOFF}, 4
    s_mul_i32 s{S_GOFF}, s{S_GOFF}, 6144
    s_add_u32 s{S_GOFF}, s{S_GOFF}, {L.MB_P}
    s_mov_b32 s{S_POFF}, 16384
    s_cmp_lt_u32 s{S_EOFF}, 6
    s_cbranch_scc1 H_t
    s_mov_b32 s{S_GOFF}, {L.MB_M + 8192}
    s_mov_b32 s{S_POFF}, 8192
H_t:
    """)
    def mtouch():
        a(f'buffer_load_dword v7, v4, {WSRD}, s{S_GOFF} offen sc1\ns_add_u32 s{S_GOFF}, s{S_GOFF}, s{S_POFF}')
    team_mode(a, V['mf'], V['mf']+1)
    a(f's_mov_b32 s{S_LIM}, {SPIN_MAX*4}')
    a(f"""
    s_getpc_b64 s[70:71]
H_pc:
    s_lshl_b32 s{S_T0}, s{S_EOFF}, 12
    v_lshrrev_b32 v10, 1, v4
    s_add_u32 s70, s70, s{S_T0}
    s_addc_u32 s71, s71, 0
    s_add_u32 s70, s70, L_nothelp-H_pc
    s_addc_u32 s71, s71, 0
    s_mov_b32 s72, s{S_GOFF}
    s_mov_b32 s{S_SPIN}, 0
    s_mov_b32 s73, {L.MB_P}
H_warm:
    s_mov_b32 s{S_GOFF}, s72
    global_load_dword v8, v10, s[70:71] sc1
    """)
    for _ in range(D+1): mtouch()
    a(f"""
    buffer_load_dword v9, v5, {WSRD}, s73 offen sc1
    s_add_u32 s{S_SPIN}, s{S_SPIN}, 1
    s_waitcnt vmcnt(0)
    v_cmp_eq_u32 vcc, -1, v9
    s_cbranch_vccz H_warmed
    s_sleep 8
    s_cmp_lt_u32 s{S_SPIN}, s{S_LIM}
    s_cbranch_scc1 H_warm
H_warmed:
    """)
    mul = {2: (128, 8), 3: (86, 8)}[PER]
    for k in range(NP):
        a(f"""
        s_add_u32 s{S_T0}, s{S_EOFF}, {8*k}
        s_min_u32 s{S_T0}, s{S_T0}, {14*PER-1}
        s_mul_i32 s{S_T1}, s{S_T0}, {mul[0]}
        s_lshr_b32 s{S_T1}, s{S_T1}, {mul[1]}
        s_mul_i32 s{S_T1}, s{S_T1}, {4-PER}
        s_add_u32 s{S_T0}, s{S_T0}, s{S_T1}
        s_lshl_b32 s{60+k}, s{S_T0}, 13
        s_add_u32 s{60+k}, s{60+k}, {L.U}
        """)
    def utouch():
        for k in range(NP):
            a(f'buffer_load_dword v{32+k}, v4, {WSRD}, s{60+k} offen sc1\ns_add_u32 s{60+k}, s{60+k}, 458752')
    a(f's_mov_b32 s{S_CU}, {L.CNT_U}')
    for _ in range(D if NP else 0):
        if cfg['flags']: wait_cnt(a, S_CU, 28, 30)
        utouch()
        a(f's_add_u32 s{S_CU}, s{S_CU}, 128')
    t = V['mf']; pa = V['pa']
    sk = a.newlabel('H_sk'); sk2 = a.newlabel('H_sk'); ok = a.newlabel('H_ok')
    a(f"""
H_top:
    s_mov_b32 s{S_SPIN}, 0
H_poll:
    buffer_load_dwordx4 v[{t}:{t+3}], v{pa}, {WSRD}, s{S_MOFF} offen sc1
    buffer_load_dwordx4 v[{t+4}:{t+7}], v{pa}, {WSRD}, s{S_MOFF} offen offset:768 sc1
    buffer_load_dword v30, v5, {WSRD}, s{S_CU} offen sc1
    s_add_u32 s{S_SPIN}, s{S_SPIN}, 1
    s_waitcnt vmcnt(0)
    v_max3_u32 v{t+8}, v{t}, v{t+1}, v{t+2}
    v_max3_u32 v{t+8}, v{t+8}, v{t+3}, v{t+4}
    v_max3_u32 v{t+8}, v{t+8}, v{t+5}, v{t+6}
    v_max_u32 v{t+8}, v{t+8}, v{t+7}
    v_readfirstlane_b32 s{S_T0}, v30
    v_cmp_eq_u32 vcc, -1, v{t+8}
    s_cbranch_vccz {ok}
    s_sleep {cfg['hsleep']}
    s_cmp_lt_u32 s{S_SPIN}, s{S_LIM}
    s_cbranch_scc1 H_poll
    s_mov_b32 s{S_LIM}, 1
{ok}:
    s_cmp_lg_u32 s{S_ROLE}, 0
    s_cbranch_scc1 {sk}
    s_add_u32 s{S_T1}, s{S_MOFF}, {L.MB_Y - L.MB_M}
    buffer_store_dwordx4 v[{t}:{t+3}], v{pa}, {WSRD}, s{S_T1} offen sc1
    buffer_store_dwordx4 v[{t+4}:{t+7}], v{pa}, {WSRD}, s{S_T1} offen offset:768 sc1
{sk}:
    s_cmp_ge_u32 s{S_STEP}, {63 - D}
    s_cbranch_scc1 {sk2}
    """)
    mtouch()
    if NP:
        sk3 = a.newlabel('H_sk'); sk4 = a.newlabel('H_sk')
        if cfg['flags']: a(f's_cmp_lt_u32 s{S_T0}, 28\ns_cbranch_scc1 {sk3}')
        utouch()
        a(f's_branch {sk4}\n{sk3}:')
        for k in range(NP): a(f's_add_u32 s{60+k}, s{60+k}, 458752')
        a(f'{sk4}:\ns_add_u32 s{S_CU}, s{S_CU}, 128')
    a(f"""
{sk2}:
    s_add_u32 s{S_STEP}, s{S_STEP}, 1
    s_add_u32 s{S_MOFF}, s{S_MOFF}, 8192
    s_cmp_lt_u32 s{S_STEP}, 62
    s_cbranch_scc1 H_top
    s_branch L_exit
    """)

DEFAULT_CFG = dict(ba=[35, 35, 34, 34], bak=3, bb=[53, 53, 0, 0], xflags='', ssleep=[2, 2, 2, 0], csleep=0, psleep=0, touch=1,
                   nou=0, nox=0, cflush=1, flags=0, ustep=3, hsleep=2, mdelay=18, pdelay=0, phint=9, lead=[4, 1], pnop=[0, 8], b5nop=2, npf=0, pfper=2, hdepth=4, hpre=10, psl=2, fl=1, mhk=0, px=9, quiet=7, cq=1, al=None, prio=[0, 0, 0, 0], wfl='', m2=0, mdma=1, m2d=0, msamp=0, cdma=1, m2w=10, p2=32, cutrig=1, hinner=2, uearly=4, mhint=1, mhnop=0, sdrain=0, pfd=3, mpre=6, chint=1, cdelay=20)

def team_body(a, stamps=False, cfg=None):
    cfg = dict(DEFAULT_CFG, **(cfg or {}))
    a(f's_cmp_lt_u32 s{S_ROLE}, 30\ns_cbranch_scc1 L_nothelp')
    helper_cu(a, cfg)
    a.label('L_nothelp')
    a(f's_cmp_ge_u32 s{S_ROLE}, 16\ns_cbranch_scc1 L_comb')
    score_setup(a, stamps, cfg)
    for fast in (1, 0):
        a(f's_cmp_lg_u32 s{S_FAST}, {fast}\ns_cbranch_scc1 L_sc_next{fast}')
        for w in range(4):
            if w < 3:
                a(f's_cmp_lg_u32 s{S_WAVE}, {w}\ns_cbranch_scc1 L_sc{fast}_n{w}')
            score_wave(a, w, '' if fast else 'sc1', stamps, cfg)
            if w < 3: a.label(f'L_sc{fast}_n{w}')
        a.label(f'L_sc_next{fast}')
    a('s_branch L_exit')
    a.label('L_comb')
    comb_setup(a, stamps, cfg)
    for fast in (1, 0):
        a(f's_cmp_lg_u32 s{S_FAST}, {fast}\ns_cbranch_scc1 L_cb_next{fast}')
        comb_wave(a, '' if fast else 'sc1', stamps, cfg)
        a.label(f'L_cb_next{fast}')
    a('s_branch L_exit')
```

```python
from build import *
import team, prep, gemm, attn, ffn
HEADER = open('sequential_preLN__memory_aug_recurrent_mem_tr__dense_activation_relu__prompt.s.ref').read().split('; Override launch')[0]
def relabel(fn, tag):
    def g(a):
        fn(a)
        import re
        for i, (k, x) in enumerate(a.items):
            if k == 'l' and x.startswith(('L_exit', 'L_role')): a.items[i] = ('l', x + tag)
            elif k == 'i' and ('L_exit' in x.text or 'L_role' in x.text):
                x.text = re.sub(r'(L_exit|L_role\w+)', lambda m: m.group(1) + tag, x.text)
    return g
def v2(tcfg=None, stamps=False, acfg=None):
    tcfg = dict(tcfg or {}); ng = tcfg.pop('ng', 1); pcfg = tcfg.pop('pcfg', {}); fcfg = tcfg.pop('fcfg', {}); acfg = dict(acfg or {}, **tcfg.pop('acfg', {}))
    def km(a):
        if stamps: a('s_memrealtime s[90:91]')
        team.prologue(a, stamps)
        R = team.S_ROLE
        if stamps: a(f's_mov_b32 s92, s{R}\ns_memrealtime s[94:95]\ns_mov_b64 s[96:97], 0\ns_mov_b64 s[88:89], 0\ns_mov_b64 s[84:85], 0\ns_mov_b32 s86, 0\ns_mov_b32 s83, 0')
        a(f"""
        s_cmp_ge_u32 s{R}, 32
        s_cbranch_scc1 M_worker
        """)
        team.team_body(a, stamps is True, dict(dict(xflags='sc1', flags=1, wgd=bool(stamps)), **(tcfg or {})))
        a(f"""
M_worker:
        s_lshr_b32 s26, s{R}, 5
        s_sub_u32 s26, s26, 1
        s_and_b32 s27, s{R}, 31
        s_cmp_ge_u32 s27, 30
        s_cbranch_scc1 M_attn
        s_cmp_ge_u32 s27, 16
        s_cbranch_scc1 M_ffn
        s_cmp_ge_u32 s27, {8*ng}
        s_cbranch_scc1 M_attn
        s_mul_i32 s{R}, s26, {8*ng}
        s_add_u32 s{R}, s{R}, s27
        """)
        gemm.gemm_role(a, dict(xflags='sc1', ng=ng))
        if stamps: a('s_memrealtime s[96:97]')
        a.label('M_attn')
        attn.attn_role(a, dict(dict(xflags='sc1', flags=1, asleep=16, ticket=1, diag=bool(stamps)), **(acfg or {})))
        a(f"""
M_ffn:
        s_mov_b32 s{ffn.F_Q}, s26
        s_sub_u32 s{ffn.F_J}, s27, 16
        """)
        ffn.ffn_role(a, dict(dict(xflags='sc1', flags=1, diag=bool(stamps)), **fcfg), 7)
        a.label('L_exit')
        if stamps:
            a(f"""
            s_cmp_ge_u32 s2, 256
            s_cbranch_scc1 L_exit2
            s_memrealtime s[98:99]
            s_lshl_b32 s93, s92, 5
            s_add_u32 s93, s93, {L.STAMP + 0x80000}
            s_mov_b64 exec, 1
            s_waitcnt lgkmcnt(0)
            v_mov_b32 v0, 0
            v_mov_b32 v4, s90
            v_mov_b32 v5, s94
            v_mov_b32 v6, s96
            v_mov_b32 v7, s98
            buffer_store_dwordx4 v[4:7], v0, s[8:11], s93 offen
            s_getreg_b32 s87, hwreg(HW_REG_HW_ID)
            v_mov_b32 v9, s87
            buffer_store_dword v9, v0, s[8:11], s93 offen offset:16
            buffer_atomic_umax v7, v0, s[12:15], 0 offen offset:12
            s_cmp_ge_u32 s92, 30
            s_cbranch_scc1 L_exit2
            v_mov_b32 v10, s86
            v_mov_b32 v11, s85
            v_mov_b32 v12, s84
            v_mov_b32 v13, s83
            buffer_atomic_add v10, v0, s[12:15], 0 offen offset:20
            buffer_atomic_add v11, v0, s[12:15], 0 offen offset:24
            buffer_atomic_add v12, v0, s[12:15], 0 offen offset:28
            buffer_atomic_add v13, v0, s[12:15], 0 offen offset:32
            s_cmp_lg_u32 s92, 0
            s_cbranch_scc1 L_exit2
            s_mov_b32 s93, {L.STAMP + 0xf0000}
            buffer_load_dword v8, v0, s[8:11], s93 offen
            v_mov_b32 v5, s88
            buffer_store_dword v4, v0, s[12:15], 0 offen
            buffer_store_dword v5, v0, s[12:15], 0 offen offset:4
            buffer_store_dword v7, v0, s[12:15], 0 offen offset:8
            s_waitcnt vmcnt(0)
            buffer_store_dword v8, v0, s[12:15], 0 offen offset:16
L_exit2:
            """)
        a('s_endpgm')
    return assemble([('prep_kernel', lambda a: prep.prep_kernel(a, t0=bool(stamps), **pcfg), 256, 256, 163840), ('main_kernel', km, 256, 256, 163840)], HEADER)
if __name__ == '__main__':
    args = [eval(x) for x in sys.argv[3:]]
    open(sys.argv[2], 'w').write(globals()[sys.argv[1]](*args))
```

```python
from asmlib import *
import layout as L
from team import *

G_SEG = 36; G_XO = 37; G_OO = 38; G_M0 = 39; G_IT = 40; G_CO = 41; G_CS = 42; G_CN = 43; G_CN2 = 44; G_SLOT = 46; G_CT = 45
XF = 16
ACC = 48
OUT = 112

def gemm_role(a, cfg):
    xfl = cfg['xflags']; wfl = cfg.get('wfl', '')
    NG = cfg.get('ng', 4); NSLOT = cfg.get('nslot', 4); LAG = cfg.get('lag', 2)
    assert LAG <= NSLOT - 1
    diag = cfg.get('diag')
    def st_(k):
        if diag: a(f's_memtime s[{60+2*k}:{61+2*k}]')
    st_(1)
    a(f"""
    s_lshr_b32 s{S_T0}, s{S_ROLE}, {NG.bit_length()-1}
    s_and_b32 s{G_SEG}, s{S_ROLE}, {NG-1}
    s_lshl_b32 s{S_T0}, s{S_T0}, 2
    s_add_u32 s{S_T0}, s{S_T0}, s{S_WAVE}
    v_lshlrev_b32 v2, 4, v1
    s_mul_i32 s{G_M0}, s{S_WAVE}, 7168
    s_mul_i32 s{G_XO}, s{G_SEG}, 28672
    s_add_u32 s{G_XO}, s{G_XO}, s{G_M0}
    s_add_u32 s{G_XO}, s{G_XO}, {L.XN}
    """)
    def dma(slot_off_sgpr=None, slot_const=None):
        o = []
        if slot_const is not None: o.append(f's_add_u32 m0, s{G_M0}, {slot_const}')
        else: o.append(f's_add_u32 m0, s{G_M0}, s{slot_off_sgpr}')
        for k in range(7):
            if k == 4:
                o.append(f's_add_u32 m0, m0, 4096\ns_add_u32 s{G_XO}, s{G_XO}, 4096')
            o.append(f'buffer_load_dwordx4 v2, {WSRD}, s{G_XO} offen offset:{(k%4)*1024} {wfl} lds')
        o.append(f's_add_u32 s{G_XO}, s{G_XO}, {NG*28672-4096}')
        return o
    for sl in range(NSLOT-1):
        for x in dma(slot_const=sl*28672): a(x)
    a(f"""
    s_mul_i32 s{S_T1}, s{S_T0}, {4*14336}
    s_add_u32 s{S_T1}, s{S_T1}, {L.WT}
    s_lshl_b32 s{G_CO}, s{S_ROLE}, 2
    s_add_u32 s{G_CO}, s{G_CO}, s{S_WAVE}
    s_lshl_b32 s{G_CO}, s{G_CO}, 7
    s_add_u32 s{G_CO}, s{G_CO}, {L.DUMMY + 0x100000}
    s_mov_b32 s{G_CN}, 0
    s_mul_i32 s{G_OO}, s{G_SEG}, 458752
    s_cmp_ge_u32 s{S_T0}, 112
    s_cbranch_scc1 G_type1
    """)
    for typ in (0, 1):
        if typ: a.label('G_type1'); a(f's_sub_u32 s{S_T0}, s{S_T0}, 112')
        a(f"""
        s_mul_i32 s{G_IT}, s{S_T0}, 37
        s_lshr_b32 s{G_IT}, s{G_IT}, 8
        s_mul_i32 s{G_SLOT}, s{G_IT}, 7
        s_cmp_gt_u32 s{G_SLOT}, s{S_T0}
        s_cselect_b32 s{G_SLOT}, 1, 0
        s_sub_u32 s{G_IT}, s{G_IT}, s{G_SLOT}
        s_mul_i32 s{G_SLOT}, s{G_IT}, 7
        s_sub_u32 s{G_SLOT}, s{S_T0}, s{G_SLOT}
        """)
        if cfg.get('fused'):
            a(f"""
            s_mul_i32 s{S_T0}, s{G_IT}, 14
            s_add_u32 s{S_T0}, s{S_T0}, s{G_SLOT}
            s_add_u32 s{S_T0}, s{S_T0}, {7*typ}
            s_lshl_b32 s{S_T0}, s{S_T0}, 5
            v_and_b32 v9, 3, v1
            v_lshlrev_b32 v9, 3, v9
            v_add_u32 v9, s{S_T0}, v9
            """)
            wait_flags(a, 9, 7, 10)
        if typ == 0:
            a(f"""
            s_mul_i32 s{G_IT}, s{G_IT}, 28672
            s_lshl_b32 s{G_SLOT}, s{G_SLOT}, 11
            s_add_u32 s{G_OO}, s{G_OO}, s{G_IT}
            s_add_u32 s{G_OO}, s{G_OO}, s{G_SLOT}
            s_add_u32 s{G_OO}, s{G_OO}, {L.TX}
            v_bfe_u32 v3, v1, 3, 1
            v_mul_u32_u24 v3, 14336, v3
            v_lshrrev_b32 v4, 4, v1
            v_lshl_add_u32 v3, v4, 8, v3
            v_bfe_u32 v4, v1, 2, 1
            v_lshl_add_u32 v3, v4, 7, v3
            v_and_b32 v4, 3, v1
            v_lshl_add_u32 v3, v4, 4, v3
            """)
            ooff = [0, 1024, 14336, 15360]
        else:
            a(f"""
            s_lshl_b32 s{G_IT}, s{G_IT}, 10
            s_lshl_b32 s{G_SLOT}, s{G_SLOT}, 16
            s_add_u32 s{G_OO}, s{G_OO}, s{G_IT}
            s_add_u32 s{G_OO}, s{G_OO}, s{G_SLOT}
            s_add_u32 s{G_OO}, s{G_OO}, {L.U}
            v_mov_b32 v3, v2
            """)
            ooff = [0, 16384, 32768, 49152]
        n = 7*(NSLOT-1)
        for t in range(4):
            base = (t >> 1)*2*14336 + (t & 1)*64 if typ == 0 else t*14336
            for kb in range(14):
                if kb % 3 == 0: a(f's_add_u32 s{S_T0}, s{S_T1}, {base + kb*1024}')
                r = (t*14+kb)*4
                a(f'buffer_load_dwordx4 a[{r}:{r+3}], v3, {WSRD}, s{S_T0} offen offset:{(kb%3)*1024} {wfl}')
                n += 1
                if n >= 60: a('s_waitcnt vmcnt(30)'); n = 30
        a(f"""
        s_lshl_b32 s{G_CN2}, s{G_SEG}, 7
        s_add_u32 s{G_CN2}, s{G_CN2}, {L.CNT_U if typ else L.CNT_T}
        s_cmp_eq_u32 s{S_WAVE}, 0
        s_cselect_b32 s{G_CN2}, s{G_CN2}, s{G_CO}
        s_cselect_b32 s{G_CS}, {128*NG}, 0
        s_mov_b32 s{S_T1}, {(0x100000000 - 0x8000000) & 0xffffffff}
        s_add_u32 s{G_OO}, s{G_OO}, 0x8000000
        v_mov_b32 v4, v2
        v_mov_b32 v6, 0
        v_mov_b32 v7, 1
        s_mov_b32 s{G_IT}, 0
        s_mov_b32 s{G_SLOT}, {(NSLOT-1)*28672}
        s_waitcnt vmcnt(0)
        s_barrier
        """)
        st_(2)
        xr = lambda kb, z: XF + ((kb % 4)*2 + z)*4
        def xread(kb, z, addr):
            return dsop(f'ds_read_b128 v[{xr(kb,z)}:{xr(kb,z)+3}], v{addr} offset:{z*14336+(kb%14)*1024}', ('x', kb))
        PD = 2
        lq = Q('lgkmcnt', 15)
        for kb in range(PD):
            for z in range(2): a(xread(kb, z, 4)(lq))
        top = f'G_top{typ}'
        signal = f"""s_mov_b64 exec, 1
            buffer_atomic_add v7, v6, {WSRD}, s{G_CO} offen
            s_mov_b64 exec, -1
            s_add_u32 s{G_CN}, s{G_CN}, 1
            s_cmp_ge_u32 s{G_CN}, {LAG}
            s_cselect_b32 s{G_CO}, s{G_CN2}, s{G_CO}
            s_cselect_b32 s{G_CT}, s{G_CS}, 0
            s_add_u32 s{G_CN2}, s{G_CN2}, s{G_CT}"""
        a.label(top)
        def epi(par):
            va = []; st = []
            for o in range(4):
                if typ == 0: z, T = o >> 1, o & 1; ca = ACC + par*32 + ((2*T)*2+z)*4; cb = ACC + par*32 + ((2*T+1)*2+z)*4
                else: ca = ACC + par*32 + (o*2)*4; cb = ACC + par*32 + (o*2+1)*4
                r = OUT + 4*o
                m1, m2 = (1, 2) if typ == 0 else (2, 1)
                va.append([f'v_cvt_pk_bf16_f32 v{r}, v{ca}, v{ca+1}', f'v_cvt_pk_bf16_f32 v{r+m1}, v{ca+2}, v{ca+3}',
                           f'v_cvt_pk_bf16_f32 v{r+m2}, v{cb}, v{cb+1}', f'v_cvt_pk_bf16_f32 v{r+3}, v{cb+2}, v{cb+3}'])
                st.append(f's_add_u32 s{S_T0}, s{G_OO}, {ooff[o]}\n' + ('' if cfg.get('nost') else f'buffer_store_dwordx4 v[{r}:{r+3}], v2, {WSRD}, s{S_T0} offen {xfl}'))
            return va, st
        for par in range(2):
            cur, nxt = (4, 5) if par == 0 else (5, 4)
            ms = []
            for kb in range(14):
                K = par*14 + kb
                for t in range(4):
                    for z in range(2):
                        c = ACC + par*32 + (t*2+z)*4
                        wr = f'a[{(t*14+kb)*4}:{(t*14+kb)*4+3}]'; x = f'v[{xr(K,z)}:{xr(K,z)+3}]'
                        A, B = (wr, x) if typ == 0 else (x, wr)
                        ms.append((f'v_mfma_f32_16x16x32_bf16 v[{c}:{c+3}], {A}, {B}, ' + ('0' if kb == 0 else f'v[{c}:{c+3}]'),
                                   [('x', K)] if t == 0 and z == 0 else []))
            gp = Gaps(112)
            for kb in range(14):
                K = par*14 + kb + PD
                addr = cur if kb + PD < 14 else nxt
                for z in range(2): gp.put('ds', kb*8 + 1 + 2*z, xread(K % 28 if K >= 28 else K, z, addr))
            va, st = epi(1-par)
            g = 4
            for o in range(4):
                for x in va[o]: g = gp.put('va', g, x) + 1
                g = gp.put('ds', g+1, st[o]) + 1
            gp.force('va', g+1, f's_add_u32 s{G_OO}, s{G_OO}, s{S_T1}\ns_mov_b32 s{S_T1}, {NG*458752}')
            gp.force('va', 60, f"""v_add_u32 v{nxt}, 28672, v{cur}
                v_subrev_u32 v8, {NSLOT*28672}, v{nxt}
                v_min_u32 v{nxt}, v{nxt}, v8""")
            sync = f's_waitcnt vmcnt({12*(LAG-1)-1 if LAG < NSLOT-1 else 12*(LAG-2)+4})\ns_barrier\n' + signal
            gp.force('ds', 80, sync)
            d = dma(slot_off_sgpr=G_SLOT)
            g = 82
            for x in d: g = gp.put('ds', g, x) + 2
            gp.force('va', g, f"""s_add_u32 s{G_SLOT}, s{G_SLOT}, 28672
                s_cmp_ge_u32 s{G_SLOT}, {NSLOT*28672}
                s_cselect_b32 s{G_SLOT}, 0, s{G_SLOT}""")
            emit_stream(a, ms, gp, lq)
        if diag:
            for k in range(8, 3, -1): a(f's_mov_b64 s[{60+2*k}:{61+2*k}], s[{58+2*k}:{59+2*k}]')
            st_(3); a('s_waitcnt lgkmcnt(0)')
        a(f"""
        s_add_u32 s{G_IT}, s{G_IT}, 1
        s_cmp_lt_u32 s{G_IT}, {32//NG}
        s_cbranch_scc1 {top}
        """)
        va, st = epi(1)
        for o in range(4):
            for x in va[o]: a(x)
            a(st[o])
        a('s_waitcnt vmcnt(0) lgkmcnt(0)\ns_barrier')
        for _ in range(LAG): a(signal)
        a('s_branch G_done')
    a.label('G_done')
    if diag:
        st_(9)
        a(f's_waitcnt lgkmcnt(0)\ns_lshl_b32 s36, s{S_ROLE}, 2\ns_add_u32 s36, s36, s{S_WAVE}\ns_lshl_b32 s36, s36, 6\ns_add_u32 s36, s36, {L.STAMP}\ns_mov_b64 exec, 1\nv_mov_b32 v3, 0')
        for k in range(10):
            a(f'v_mov_b32 v4, s{60+2*k}\nbuffer_store_dword v4, v3, {WSRD}, s36 offen offset:{4*k}\ns_nop 1')
        a('s_mov_b64 exec, -1')
```

```python
from asmlib import *
import layout as L
from team import Q, xlane4

KA = dict(x=0, mem0=8, wq=16, wk=24, wv=32, wo=40, w1=64, w2=72, out=80, dbg=88, ws=96)
LOG2E_16 = 0x3db8aa3b

def srd(a, d, lo, nbytes):
    a(f"""
    s_mov_b32 s{d}, s{lo}
    s_and_b32 s{d+1}, s{lo+1}, 0xffff
    s_mov_b32 s{d+2}, {nbytes}
    s_mov_b32 s{d+3}, 0x20000
    """)

WO_STRIDE = 144
def prep_kernel(a, diag=False, stfl='sc1', touch=1, a1up=1, ldfl='nt', t0=False, fused=False, early=1, bfl=None):
    WS, SA, SB = 8, 12, (64 if fused else 16)
    ldfl_b = ldfl if bfl is None else bfl
    a(f"""
    s_load_dwordx8 s[24:31], s[0:1], {KA['wq']}
    s_load_dwordx4 s[32:35], s[0:1], {KA['x']}
    s_cmp_ge_u32 s2, 256
    s_cbranch_scc1 {'L_end' if fused else 'P_exit'}
    s_and_b32 s21, s2, 7
    s_lshr_b32 s22, s2, 3
    """)
    if early:
        a(f"""
        s_mul_i32 s23, s22, 37
        s_lshr_b32 s23, s23, 8
        s_mul_i32 s36, s23, 7
        s_sub_u32 s36, s22, s36
        s_lshl_b32 s37, s21, 1
        s_lshr_b32 s38, s23, 1
        s_add_u32 s38, s38, s37
        s_lshl_b32 s46, s36, 19
        s_lshl_b32 s47, s38, 9
        s_add_u32 s46, s46, s47
        v_lshrrev_b32 v9, 2, v0
        v_and_b32 v10, 3, v0
        v_lshlrev_b32 v9, 13, v9
        v_lshl_add_u32 v9, v10, 7, v9
        v_add_u32 v9, s46, v9
        s_cmp_ge_u32 s22, 28
        s_cbranch_scc1 P_e2
        s_bitcmp1_b32 s23, 0
        s_waitcnt lgkmcnt(0)
        s_cbranch_scc1 P_e1
        global_load_dword v14, v9, s[26:27] {ldfl}
        global_load_dword v15, v9, s[24:25] {ldfl}
        s_branch P_e2
P_e1:
        s_mul_i32 s46, s38, 229376
        s_lshl_b32 s47, s36, 7
        s_add_u32 s46, s46, s47
        v_mul_u32_u24 v10, 896, v0
        v_add_u32 v10, s46, v10
        global_load_dword v14, v10, s[30:31] {ldfl}
        global_load_dword v15, v9, s[28:29] {ldfl}
P_e2:
        """)
        touch = 0
    a(f"""
    s_load_dwordx2 s[4:5], s[0:1], {KA['ws']}
    s_load_dwordx2 s[6:7], s[0:1], {KA['dbg']}
    v_lshrrev_b32 v2, 6, v0
    v_and_b32 v1, 63, v0
    v_readfirstlane_b32 s20, v2
    s_waitcnt lgkmcnt(0)
    """)
    srd(a, WS, 4, L.WS_BYTES)
    if t0:
        a(f"""
        s_cmp_lg_u32 s2, 0
        s_cbranch_scc1 P_t0
        s_memrealtime s[60:61]
        s_mov_b32 s62, {L.STAMP + 0xf0000}
        v_mov_b32 v5, 0
        s_waitcnt lgkmcnt(0)
        v_mov_b32 v4, s60
        buffer_store_dword v4, v5, s[{WS}:{WS+3}], s62 offen sc1
P_t0:
        """)
    DB = 56
    if fused:
        srd(a, DB, 6, 256)
        a(f"""
        s_getreg_b32 s19, hwreg(HW_REG_XCC_ID, 0, 4)
        s_and_b32 s19, s19, 7
        s_lshl_b32 s19, s19, 2
        v_mov_b32 v249, 128
        v_mov_b32 v250, 1
        s_cmp_lg_u32 s20, 0
        s_cbranch_scc1 P_na
        s_mov_b64 exec, 1
        v_mov_b32 v251, s19
        buffer_atomic_add v250, v251, s[{DB}:{DB+3}], 0 offen sc0
        s_cmp_lg_u32 s2, 0
        s_cbranch_scc1 P_nt
        s_memrealtime s[80:81]
        s_waitcnt lgkmcnt(0)
        s_lshl_b64 s[80:81], s[80:81], 3
        s_or_b32 s81, s81, 0x80000000
        v_mov_b32 v252, s80
        v_mov_b32 v253, s81
        buffer_store_dwordx2 v[252:253], v249, s[{DB}:{DB+3}], 0 offen sc1
P_nt:
        s_mov_b64 exec, -1
P_na:
        """)
    tagld = f'buffer_load_dwordx2 v[252:253], v249, s[{DB}:{DB+3}], 0 offen sc1'
    def tag_take():
        l = a.newlabel('P_tg'); d = a.newlabel('P_tgd')
        a(f"""
        s_mov_b32 s19, 0
{l}:
        v_readfirstlane_b32 s80, v252
        v_readfirstlane_b32 s81, v253
        s_cmp_lg_u32 s81, 0
        s_cbranch_scc1 {d}
        {tagld}
        s_add_u32 s19, s19, 1
        s_waitcnt vmcnt(0)
        s_cmp_lt_u32 s19, 100000
        s_cbranch_scc1 {l}
{d}:
        v_mov_b32 v254, 0
        """)
    def flag(prog):
        return f"""v_add_u32 v252, {prog}, v252
            s_mov_b64 exec, 1
            buffer_store_dwordx2 v[252:253], v254, s[{WS}:{WS+3}], s18 offen sc1
            s_mov_b64 exec, -1"""
    def st(k):
        if diag: a(f's_memtime s[{60+2*k}:{61+2*k}]')
    if diag:
        for k in range(8): a(f's_mov_b64 s[{60+2*k}:{61+2*k}], 0')
    st(0)
    nfill = L.CNT + L.CNT_BYTES - L.MB_M
    assert nfill % (256*4096) == 0 or True
    nwg = 192 if fused else 256
    per = (nfill + nwg - 1) // nwg
    per = (per + 4095) // 4096 * 4096
    def fill_boxes():
        a(f"""
        v_lshlrev_b32 v240, 4, v0
        v_mov_b32 v244, -1
        v_mov_b32 v245, -1
        v_mov_b32 v246, -1
        v_mov_b32 v247, -1
        s_mul_i32 s53, {'s23' if fused else 's2'}, {per}
        s_add_u32 s53, s53, {L.MB_M}
        """)
        assert L.MB_M + nwg*per <= L.STAMP
        for k in range(per // 4096):
            l = a.newlabel('P_fs')
            a(f"""
            s_add_u32 s54, s53, {k*4096}
            s_and_b32 s55, s54, 0xffffe000
            s_cmp_eq_u32 s55, {L.MB_M}
            s_cbranch_scc1 {l}
            s_cmp_eq_u32 s55, {L.MB_Y}
            s_cbranch_scc1 {l}
            s_cmp_ge_u32 s54, {L.CNT}
            s_cselect_b32 s55, 0, -1
            v_mov_b32 v244, s55
            v_mov_b32 v245, s55
            v_mov_b32 v246, s55
            v_mov_b32 v247, s55
            buffer_store_dwordx4 v[244:247], v240, s[{WS}:{WS+3}], s54 offen {stfl}
{l}:
            """)
    if fused:
        a(f"""
        s_mul_i32 s23, s21, 28
        s_add_u32 s23, s23, s22
        s_lshl_b32 s18, s21, 2
        s_add_u32 s18, s18, s22
        s_add_u32 s18, s18, {224-28}
        s_cmp_ge_u32 s22, 28
        s_cselect_b32 s18, s18, s23
        s_lshl_b32 s18, s18, 2
        s_add_u32 s18, s18, s20
        s_lshl_b32 s18, s18, 3
        s_add_u32 s18, s18, {L.FL}
        s_cmp_ge_u32 s22, 28
        s_cbranch_scc1 P_ln
        s_mul_i32 s21, s23, 9363
        s_lshr_b32 s21, s21, 16
        s_mul_i32 s36, s21, 7
        s_sub_u32 s36, s23, s36
        """)
    else:
        a(f"""
        s_cmp_ge_u32 s22, 28
        s_cbranch_scc1 P_ln
        s_mul_i32 s23, s22, 37
        s_lshr_b32 s23, s23, 8
        s_mul_i32 s36, s23, 7
        s_sub_u32 s36, s22, s36
        s_lshl_b32 s21, s21, 2
        s_add_u32 s21, s21, s23
        """)
    a(f"""
    s_and_b32 s37, s21, 1
    s_lshr_b32 s38, s21, 1
    s_cmp_eq_u32 s37, 0
    s_cselect_b32 s40, s24, s28
    s_cselect_b32 s41, s25, s29
    s_cselect_b32 s42, s26, s30
    s_cselect_b32 s43, s27, s31
    """)
    srd(a, SA, 40, 448*8192)
    srd(a, SB, 42, 448*8192)
    BF = 0
    AFR = lambda p: 32 + 64*p
    ACC = lambda p: 160 + 32*p
    OUT = 224
    SLOT = lambda k: (k & 1)*65536
    breg = lambda ks, nt: BF + (ks*4 + nt)*4
    a(f"""
    s_lshl_b32 s39, s20, 2
    s_cmp_eq_u32 s20, 3
    s_cselect_b32 s39, 11, s39
    v_and_b32 v4, 15, v1
    v_lshrrev_b32 v5, 4, v1
    v_lshrrev_b32 v6, 5, v1
    v_and_b32 v7, 31, v1
    v_xor_b32 v7, v7, v6
    v_lshlrev_b32 v8, 13, v6
    v_lshl_add_u32 v8, v7, 4, v8
    s_lshl_b32 s50, s20, 14
    s_lshl_b32 s44, s39, 18
    s_lshl_b32 s45, s38, 9
    s_add_u32 s44, s44, s45
    """)
    if touch:
        a(f"""
        v_lshrrev_b32 v9, 2, v0
        v_lshlrev_b32 v9, 13, v9
        v_and_b32 v10, 3, v0
        v_lshl_add_u32 v9, v10, 7, v9
        """)
        if False:
            a(f"""
            s_sub_u32 s46, s23, s36
            s_and_b32 s47, s23, 0xe0
            s_max_u32 s49, s46, s47
            s_add_u32 s46, s46, 7
            s_add_u32 s47, s47, 32
            s_min_u32 s46, s46, s47
            s_sub_u32 s47, s46, s49
            s_sub_u32 s49, s23, s49
P_tch:
            s_lshl_b32 s46, s49, 19
            s_add_u32 s46, s46, s45
            buffer_load_dword v15, v9, s[{SA}:{SA+3}], s46 offen {ldfl}
            s_add_u32 s49, s49, s47
            s_cmp_lt_u32 s49, 7
            s_cbranch_scc1 P_tch
            """)
        else:
            a(f"""
            s_lshl_b32 s46, s36, 19
            s_add_u32 s46, s46, s45
            buffer_load_dword v15, v9, s[{SA}:{SA+3}], s46 offen {ldfl}
            """)
    for k in range(8):
        a(f'v_xor_b32 v{16+k}, {2*k*16}, v8')
    a(f"""
    v_lshrrev_b32 v6, 2, v4
    v_and_b32 v7, 3, v4
    v_lshl_add_u32 v6, v6, 3, v7
    v_lshlrev_b32 v6, 9, v6
    v_add_u32 v6, s50, v6
    v_xor_b32 v7, v5, v4
    """)
    for k in range(4):
        a(f'v_xor_b32 v9, {4*k}, v7\nv_lshl_add_u32 v{24+k}, v9, 4, v6')
    vq = Q('vmcnt', 63)
    def a_dma(blk, i_):
        xr = 16 + ((i_ >> 2)*2 + (i_ & 1))
        def f(lq=None):
            vq.issue(('a', blk))
            return (f's_add_u32 m0, s50, {SLOT(blk) + i_*1024}\ns_add_u32 s46, s44, {(blk*32 + i_*2)*8192}\n'
                    f'buffer_load_dwordx4 v{xr}, s[{SA}:{SA+3}], s46 offen lds')
        return f
    a('s_cmp_eq_u32 s37, 0\ns_cbranch_scc0 P_t1')
    a(f"""
    s_lshl_b32 s47, s36, 19
    s_add_u32 s47, s47, s45
    s_lshl_b32 s46, s20, 17
    s_add_u32 s47, s47, s46
    s_lshl_b32 s51, s20, 13
    s_mov_b32 s48, {LOG2E_16}
    """)
    for k in range(8):
        a(f's_add_u32 m0, s51, {131072 + k*1024}\ns_add_u32 s46, s47, {k*2*8192}\nbuffer_load_dwordx4 v{16+k}, s[{SB}:{SB+3}], s46 offen {ldfl_b} lds')
    a(f"""
    s_branch P_tj
P_t1:
    v_lshrrev_b32 v10, 3, v1
    v_and_b32 v11, 7, v1
    v_mul_u32_u24 v9, 896, v10
    v_and_b32 v12, 2, v10
    v_xor_b32 v11, v11, v12
    v_lshl_add_u32 v9, v11, 4, v9
    v_xor_b32 v13, 64, v9
    s_mul_i32 s47, s38, 229376
    s_lshl_b32 s46, s36, 7
    s_add_u32 s47, s47, s46
    s_mul_i32 s46, s20, {64*896}
    s_add_u32 s47, s47, s46
    s_lshl_b32 s51, s20, 13
    s_mov_b32 s48, 1.0
    """)
    for k in range(8):
        a(f's_add_u32 m0, s51, {131072 + k*1024}\ns_add_u32 s46, s47, {k*8*896}\nbuffer_load_dwordx4 v{13 if k & 1 else 9}, s[{SB}:{SB+3}], s46 offen {ldfl_b} lds')
    a.label('P_tj')
    st(1)
    for i_ in range(16): a(a_dma(0, i_)())
    if a1up:
        for i_ in range(16): a(a_dma(1, i_)())
    if fused:
        a(tagld); vq.issue('tag')
    a(f's_waitcnt vmcnt({(32 if a1up else 16) + fused})\ns_barrier')
    st(2)
    a('s_cmp_eq_u32 s37, 0\ns_cbranch_scc0 P_r1')
    a(f'v_lshlrev_b32 v6, 9, v4\nv_add_u32 v6, 131072, v6')
    for k in range(4):
        a(f'v_xor_b32 v9, {4*k}, v7\nv_lshl_add_u32 v{28+k}, v9, 4, v6')
    for ks in range(8):
        for nt in range(4):
            a(f'ds_read_b128 a[{breg(ks,nt)}:{breg(ks,nt)+3}], v{28+(ks&3)} offset:{nt*8192 + (ks>>2)*256}')
            if nt & 1 and not a1up: a(a_dma(1, ks*2 + (nt >> 1))())
    if not a1up: vq.n -= 16
    a(f"""
    s_branch P_rj
P_r1:
    v_bfe_u32 v10, v1, 2, 2
    v_lshl_add_u32 v11, v5, 3, v10
    v_lshlrev_b32 v13, 7, v11
    v_add_u32 v13, 131072, v13
    v_and_b32 v11, 3, v1
    v_lshl_add_u32 v13, v11, 3, v13
    v_lshrrev_b32 v10, 1, v10
    v_and_b32 v11, 1, v5
    v_lshl_add_u32 v10, v11, 1, v10
    """)
    for nt in range(4):
        a(f'v_xor_b32 v9, {nt}, v10\nv_lshl_add_u32 v{28+nt}, v9, 5, v13')
    for ks in range(8):
        for nt in range(4):
            for hf in range(2):
                r = breg(ks, nt) + 2*hf
                a(f'ds_read_b64_tr_b16 a[{r}:{r+1}], v{28+nt} offset:{(ks*32+hf*4)*128}')
            if nt & 1 and not a1up: a(a_dma(1, ks*2 + (nt >> 1))())
    a(f"""
P_rj:
    s_mul_i32 s52, s37, 448
    s_mul_i32 s47, s38, 28
    s_add_u32 s52, s52, s47
    s_lshl_b32 s47, s36, 2
    s_add_u32 s52, s52, s47
    s_mul_i32 s52, s52, 14336
    s_lshl_b32 s47, s39, 10
    s_add_u32 s52, s52, s47
    s_add_u32 s52, s52, {L.WT}
    s_mov_b32 s49, s48
    v_lshlrev_b32 v3, 4, v1
    s_waitcnt vmcnt({16 + fused})
    """)
    def a_read(blk, hf, ks):
        r = AFR(blk & 1) + (hf*8+ks)*4
        off = hf*4*512 + (ks >> 2)*256
        return f'ds_read_b128 v[{r}:{r+3}], v{24+(ks&3) if not blk & 1 else 10+(ks&3)} offset:{off}'
    for k in range(4): a(f'v_add_u32 v{10+k}, 65536, v{24+k}')
    for hf in range(2):
        for ks in range(8): a(a_read(0, hf, ks))
    if fused: a('s_cmp_ge_u32 s23, 192\ns_cbranch_scc1 P_nf')
    fill_boxes()
    if fused: a.label('P_nf')
    a('s_waitcnt lgkmcnt(0)')
    from team import Gaps, emit_stream
    def epi(blk):
        va = []; stt = []
        for nt in range(4):
            ca = ACC(blk & 1) + nt*4; cb = ACC(blk & 1) + (4+nt)*4; o = OUT + nt*4
            v = [f'v_pk_mul_f32 v[{c}:{c+1}], v[{c}:{c+1}], s[48:49]' for c in (ca, ca+2, cb, cb+2)]
            v += [f'v_cvt_pk_bf16_f32 v{o}, v{ca}, v{ca+1}', f'v_cvt_pk_bf16_f32 v{o+1}, v{ca+2}, v{ca+3}',
                  f'v_cvt_pk_bf16_f32 v{o+2}, v{cb}, v{cb+1}', f'v_cvt_pk_bf16_f32 v{o+3}, v{cb+2}, v{cb+3}']
            va.append(v)
            def sf(lq=None, nt=nt, o=o):
                vq.issue(('st', blk))
                return f's_add_u32 s47, s52, {nt*14336}\nbuffer_store_dwordx4 v[{o}:{o+3}], v3, s[{WS}:{WS+3}], s47 offen offset:{blk*1024} {stfl}'
            stt.append(sf)
        return va, stt
    lq = Q('lgkmcnt', 15)
    for blk in range(4):
        if blk == 3:
            a('s_cmp_lt_u32 s20, 2\ns_cbranch_scc1 P_b3')
            va, stt = epi(2)
            n0 = vq.n
            for nt in range(4):
                for x in va[nt]: a(x)
                a(stt[nt]())
            vq.n = n0
            a('s_branch P_last\nP_b3:')
        ms = []
        for hf in range(2):
            for ks in range(8):
                r = AFR(blk & 1) + (hf*8+ks)*4
                for nt in range(4):
                    c = ACC(blk & 1) + (hf*4+nt)*4
                    ms.append((f'v_mfma_f32_16x16x32_bf16 v[{c}:{c+3}], v[{r}:{r+3}], a[{breg(ks,nt)}:{breg(ks,nt)+3}], ' + ('0' if ks == 0 else f'v[{c}:{c+3}]'), []))
        gp = Gaps(64)
        g = 0
        if blk + 2 < 4:
            for i_ in range(16): g = gp.put('ds', g, a_dma(blk+2, i_)) + 3
        if blk > 0:
            va, stt = epi(blk-1)
            g2 = 3
            for nt in range(4):
                for x in va[nt]: g2 = gp.put('va', g2, x) + 1
                gp.put('ds', g2+1, stt[nt])
        if blk + 1 < 4:
            gp.force('ds', 44, lambda lq, b=blk+1: vq.wait(('a', b)))
            g = 44
            for hf in range(2):
                for ks in range(8):
                    gp.force('ds', g, a_read(blk+1, hf, ks)); g += 1
            gp.force('va', 63, 's_waitcnt lgkmcnt(0)')
        if fused and blk == 2:
            gp.force('va', 45, lambda lq: vq.wait(('st', 0)) + '\n' + flag(1) + (vq.issue() or ''))
        emit_stream(a, ms, gp, lq)
        if fused and blk == 0:
            a(vq.wait('tag') or 's_nop 0'); tag_take()
        if blk == 0: st(3)
    va, stt = epi(3)
    for nt in range(4):
        for x in va[nt]: a(x)
        a(stt[nt]())
    a.label('P_last')
    if fused: a('s_waitcnt vmcnt(0)\n' + flag(6))
    a('s_branch P_exit')
    a.label('P_ln')
    srd(a, SA, 32, 2048*896)
    srd(a, SB, 34, 8*896)
    X = 16
    U = 80
    a(f"""
    s_sub_u32 s22, s22, 28
    s_lshl_b32 s21, s21, 2
    s_add_u32 s21, s21, s22
    s_lshl_b32 s21, s21, 2
    s_add_u32 s21, s21, s20
    v_lshrrev_b32 v4, 2, v1
    v_and_b32 v5, 3, v1
    v_mul_u32_u24 v6, 896, v4
    v_lshl_add_u32 v6, v5, 4, v6
    s_mul_i32 s23, s21, {16*896}
    """)
    for kb in range(14):
        a(f'buffer_load_dwordx4 v[{X+4*kb}:{X+4*kb+3}], v6, s[{SA}:{SA+3}], s23 offen offset:{kb*64} {ldfl}')
    if not fused: fill_boxes()
    l = a.newlabel('P_m0')
    a(f's_cmp_ge_u32 s21, 28\ns_cbranch_scc1 {l}')
    from team import img_addr
    img_addr(a, 8, 9, 1)
    a(f"""
    v_lshrrev_b32 v9, 4, v1
    v_mul_u32_u24 v9, {2*896}, v9
    v_and_b32 v7, 15, v1
    v_lshl_add_u32 v9, v7, 1, v9
    s_lshl_b32 s36, s21, 5
    buffer_load_ushort v200, v9, s[{SB}:{SB+3}], s36 offen
    buffer_load_ushort v201, v9, s[{SB}:{SB+3}], s36 offen offset:896
    s_lshr_b32 s36, s21, 2
    s_lshl_b32 s36, s36, 10
    s_and_b32 s37, s21, 3
    s_lshl_b32 s37, s37, 7
    s_add_u32 s36, s36, s37
    s_add_u32 s37, s36, {L.MB_Y}
    s_add_u32 s36, s36, {L.MB_M}
    s_waitcnt vmcnt(0)
    v_lshl_or_b32 v200, v201, 16, v200
    buffer_store_dword v200, v8, s[{WS}:{WS+3}], s36 offen {stfl}
    buffer_store_dword v200, v8, s[{WS}:{WS+3}], s37 offen {stfl}
{l}:
    s_waitcnt vmcnt(0)
    """)
    st(2)
    ln_rows(a, X, U, 56, 10, quadred)
    st(4)
    GS, KS = 288, 1152
    a(f"""
    s_mul_i32 s36, s20, {14*KS}
    v_mul_u32_u24 v7, {GS}, v5
    v_lshl_add_u32 v7, v4, 4, v7
    v_add_u32 v7, s36, v7
    v_lshlrev_b32 v3, 4, v1
    v_lshrrev_b32 v6, 4, v1
    v_mul_u32_u24 v6, {GS}, v6
    v_and_b32 v8, 15, v1
    v_lshl_add_u32 v8, v8, 4, v6
    v_add_u32 v8, s36, v8
    """)
    for kb in range(14):
        a(f'ds_write_b128 v7, v[{X+4*kb}:{X+4*kb+3}] offset:{kb*KS}')
    a(f"""
    s_mul_i32 s36, s21, 14336
    s_add_u32 s36, s36, {L.XN}
    """)
    st(3)
    for kb in range(14):
        a(f'ds_read_b128 v[{U+4*kb}:{U+4*kb+3}], v8 offset:{kb*KS}')
    for kb in range(14):
        if kb and kb % 4 == 0: a('s_add_u32 s36, s36, 4096')
        a(f's_waitcnt lgkmcnt({13-kb})')
        a(f'buffer_store_dwordx4 v[{U+4*kb}:{U+4*kb+3}], v3, s[{WS}:{WS+3}], s36 offen offset:{(kb%4)*1024} {stfl}')
    if fused:
        a(tagld + '\ns_waitcnt vmcnt(0)'); tag_take(); a(flag(7))
    a.label('P_exit')
    if fused: return
    if diag:
        a('s_cmp_ge_u32 s2, 256\ns_cbranch_scc1 P_exit2')
        st(5)
        a('s_waitcnt vmcnt(0)')
        st(6)
        a(f's_waitcnt lgkmcnt(0)\ns_lshl_b32 s36, s2, 2\ns_add_u32 s36, s36, s20\ns_lshl_b32 s36, s36, 6\ns_add_u32 s36, s36, {L.STAMP}\ns_mov_b64 exec, 1\nv_mov_b32 v3, 0')
        for k in range(7):
            a(f'v_mov_b32 v4, s{60+2*k}\nbuffer_store_dword v4, v3, s[{WS}:{WS+3}], s36 offen offset:{4*k}\ns_nop 1')
        a.label('P_exit2')
    a('s_endpgm')

def rnd_bf16(a, r, t):
    a(f'v_cvt_pk_bf16_f32 v{r}, v{r}, v{r}\nv_and_b32 v{r}, 0xffff0000, v{r}')

def quadred(a, x, t):
    a(f'v_add_f32_dpp v{x}, v{x}, v{x} quad_perm:[1,0,3,2] row_mask:0xf bank_mask:0xf')
    a(f'v_add_f32_dpp v{x}, v{x}, v{x} quad_perm:[2,3,0,1] row_mask:0xf bank_mask:0xf')

def ln_stats_finish(a, mu, rs, tt):
    rnd_bf16(a, rs, tt)
    a(f'v_add_f32 v{rs}, 0x3727c5ac, v{rs}')
    rnd_bf16(a, rs, tt)
    a(f'v_sqrt_f32 v{rs}, v{rs}')
    rnd_bf16(a, rs, tt)
    a(f'v_rcp_f32 v{rs}, v{rs}')
    rnd_bf16(a, mu, tt)

def ln_rows(a, X, U, n, t, red):
    s0, s1, d0, nm, rs = t, t+1, t+2, t+4, 76
    for i in range(n):
        a(f'v_lshlrev_b32 v{U+2*i}, 16, v{X+i}\nv_and_b32 v{U+2*i+1}, 0xffff0000, v{X+i}')
        if i == 1: a(f'v_pk_add_f32 v[{s0}:{s1}], v[{U}:{U+1}], v[{U+2}:{U+3}]')
        if i > 1: a(f'v_pk_add_f32 v[{s0}:{s1}], v[{s0}:{s1}], v[{U+2*i}:{U+2*i+1}]')
    a(f'v_add_f32 v{s0}, v{s0}, v{s1}')
    red(a, s0, d0)
    a(f'v_mul_f32 v{nm}, 0xbb124925, v{s0}\nv_mul_f32 v{nm+1}, 0xbb124925, v{s0}')
    for i in range(n):
        d = d0 if i & 1 else 72
        a(f'v_pk_add_f32 v[{d}:{d+1}], v[{U+2*i}:{U+2*i+1}], v[{nm}:{nm+1}]')
        if i == 0: a(f'v_pk_mul_f32 v[{s0}:{s1}], v[{d}:{d+1}], v[{d}:{d+1}]')
        else: a(f'v_pk_fma_f32 v[{s0}:{s1}], v[{d}:{d+1}], v[{d}:{d+1}], v[{s0}:{s1}]')
    a(f'v_add_f32 v{s0}, v{s0}, v{s1}')
    red(a, s0, d0)
    a(f'v_mul_f32 v{rs}, 0x3b124925, v{s0}')
    ln_stats_finish(a, nm, rs, d0)
    a(f'v_mov_b32 v{nm+1}, v{nm}\nv_mov_b32 v{rs+1}, v{rs}')
    for i in range(n):
        u = U+2*i
        a(f"""
        v_pk_add_f32 v[{u}:{u+1}], v[{u}:{u+1}], v[{nm}:{nm+1}]
        v_cvt_pk_bf16_f32 v{X+i}, v{u}, v{u+1}
        v_lshlrev_b32 v{u}, 16, v{X+i}
        v_and_b32 v{u+1}, 0xffff0000, v{X+i}
        v_pk_mul_f32 v[{u}:{u+1}], v[{u}:{u+1}], v[{rs}:{rs+1}]
        v_cvt_pk_bf16_f32 v{X+i}, v{u}, v{u+1}
        """)
```

```python
from asmlib import *
import layout as L

SENT = -1
S_WS = 8
S_DBG = 12
S_ROLE = 16
S_WAVE = 17
S_XCC = 18
S_STEP = 19
S_FAST = 20
S_MOFF = 21; S_POFF = 22; S_EOFF = 23; S_GOFF = 24; S_XOFF = 25; S_T0 = 26; S_T1 = 27; S_SPIN = 28; S_LIM = 29
S_EXEC = 30
S_STMP = 32
S_TM = 34
SPIN_MAX = 20000
NTEAM = 32

LDS_M = 0
LDS_T = 7168
LDS_FL = 14336
LDS_VD = 18432
LDS_X = 20480
LDS_NAN = 11264
LDS_RED = 7168
LDS_BW = 16384
LDS_ROLE = 160*1024 - 16

def prologue(a, stamps, pool_off=0, scatter=False):
    a(f'''
    s_cmp_ge_u32 s2, 256
    s_cbranch_scc1 L_end
    s_load_dwordx2 s[4:5], s[0:1], 96
    s_load_dwordx2 s[6:7], s[0:1], 88
    s_getreg_b32 s{S_XCC}, hwreg(HW_REG_XCC_ID, 0, 4)
    v_lshrrev_b32 v2, 6, v0
    v_and_b32 v1, 63, v0
    v_readfirstlane_b32 s{S_WAVE}, v2
    s_and_b32 s{S_XCC}, s{S_XCC}, 7
    s_waitcnt lgkmcnt(0)
    s_mov_b32 s{S_WS}, s4
    s_and_b32 s{S_WS+1}, s5, 0xffff
    s_mov_b32 s{S_WS+2}, {L.WS_BYTES}
    s_mov_b32 s{S_WS+3}, 0x20000
    s_mov_b32 s{S_DBG}, s6
    s_and_b32 s{S_DBG+1}, s7, 0xffff
    s_mov_b32 s{S_DBG+2}, 256
    s_mov_b32 s{S_DBG+3}, 0x20000
    v_mov_b32 v4, {LDS_ROLE}
    s_cmp_lg_u32 s{S_WAVE}, 0
    s_cbranch_scc1 L_role_wait
    s_mov_b64 exec, 1
    s_mov_b32 s{S_T0}, 0
L_role_try:
    {f's_lshr_b32 s{S_T1}, s2, 5' if scatter else f's_mov_b32 s{S_T1}, s{S_XCC}'}
    s_add_u32 s{S_T1}, s{S_T1}, s{S_T0}
    s_and_b32 s{S_T1}, s{S_T1}, 7
    s_lshl_b32 s{S_ROLE}, s{S_T1}, 7
    s_add_u32 s{S_ROLE}, s{S_ROLE}, {L.CNT_P + pool_off}
    v_mov_b32 v2, s{S_ROLE}
    v_mov_b32 v3, 1
    buffer_atomic_add v3, v2, s[{S_WS}:{S_WS+3}], 0 offen sc0
    s_waitcnt vmcnt(0)
    v_readfirstlane_b32 s{S_ROLE}, v3
    s_cmp_lt_u32 s{S_ROLE}, 32
    s_cbranch_scc1 L_role_got
    s_add_u32 s{S_T0}, s{S_T0}, 1
    s_cmp_lt_u32 s{S_T0}, 8
    s_cbranch_scc1 L_role_try
    s_mov_b32 s{S_ROLE}, 31
    s_mov_b32 s{S_T1}, 0
L_role_got:
    s_lshl_b32 s{S_T1}, s{S_T1}, 5
    s_add_u32 s{S_ROLE}, s{S_ROLE}, s{S_T1}
    v_mov_b32 v2, s{S_ROLE}
    ds_write_b32 v4, v2
    s_mov_b64 exec, -1
    s_waitcnt lgkmcnt(0)
L_role_wait:
    s_barrier
    ds_read_b32 v2, v4
    s_waitcnt lgkmcnt(0)
    v_readfirstlane_b32 s{S_ROLE}, v2
    ''')

FSL = [8, 32]
def wait_flags(a, vaddr, need, t, n=1):
    l = a.newlabel('L_wf'); d = a.newlabel('L_wfd')
    regs = [t] + [t+4+2*k for k in range(n-1)]
    a(f"""
    s_mov_b32 s{S_SPIN}, 0
    s_mov_b32 s{S_EXEC}, {L.FL}
    s_add_u32 s{S_EXEC+1}, s80, {need}
{l}:
    """)
    for k, r in enumerate(regs):
        a(f'buffer_load_dwordx2 v[{r}:{r+1}], v{vaddr}, s[{S_WS}:{S_WS+3}], s{S_EXEC} offen offset:{k*512} sc1')
    a(f's_add_u32 s{S_SPIN}, s{S_SPIN}, 1\ns_waitcnt vmcnt(0)')
    for k, r in enumerate(regs):
        a(f"""
        v_subrev_u32 v{r}, s{S_EXEC+1}, v{r}
        v_xor_b32 v{r+1}, s81, v{r+1}
        v_lshl_or_b32 v{t+2}, v{r+1}, 3, v{r+1}
        v_or_b32 v{r}, v{r}, v{t+2}
        """)
        if k: a(f'v_max_u32 v{t}, v{t}, v{r}')
    a(f"""
    v_cmp_lt_u32 vcc, {7 - need}, v{t}
    s_cbranch_vccz {d}
    s_sleep {FSL[n > 1]}
    s_cmp_lt_u32 s{S_SPIN}, {SPIN_MAX*4}
    s_cbranch_scc1 {l}
{d}:
    """)

def prologue_fused(a):
    a(f"""
    s_getreg_b32 s{S_XCC}, hwreg(HW_REG_XCC_ID, 0, 4)
    s_mov_b32 s{S_WAVE}, s20
    s_and_b32 s{S_XCC}, s{S_XCC}, 7
    s_mov_b32 s{S_DBG}, s56
    s_mov_b32 s{S_DBG+1}, s57
    s_mov_b32 s{S_DBG+2}, 256
    s_mov_b32 s{S_DBG+3}, 0x20000
    v_mov_b32 v4, {LDS_ROLE}
    s_cmp_lg_u32 s{S_WAVE}, 0
    s_barrier
    s_cbranch_scc1 L_role_wait
    s_mov_b64 exec, 1
    s_mov_b32 s{S_T0}, 0
    s_mov_b32 s{S_T1}, s{S_XCC}
    v_mov_b32 v3, v250
    s_branch L_role_see
L_role_try:
    s_add_u32 s{S_T1}, s{S_XCC}, s{S_T0}
    s_and_b32 s{S_T1}, s{S_T1}, 7
    s_lshl_b32 s{S_ROLE}, s{S_T1}, 2
    v_mov_b32 v2, s{S_ROLE}
    v_mov_b32 v3, 1
    buffer_atomic_add v3, v2, s[{S_DBG}:{S_DBG+3}], 0 offen sc0
    s_waitcnt vmcnt(0)
L_role_see:
    v_readfirstlane_b32 s{S_ROLE}, v3
    s_cmp_lt_u32 s{S_ROLE}, 32
    s_cbranch_scc1 L_role_got
    s_add_u32 s{S_T0}, s{S_T0}, 1
    s_cmp_lt_u32 s{S_T0}, 8
    s_cbranch_scc1 L_role_try
    s_mov_b32 s{S_ROLE}, 31
    s_mov_b32 s{S_T1}, 0
L_role_got:
    s_lshl_b32 s{S_T1}, s{S_T1}, 5
    s_add_u32 s{S_ROLE}, s{S_ROLE}, s{S_T1}
    v_mov_b32 v2, s{S_ROLE}
    ds_write_b32 v4, v2
    s_mov_b64 exec, -1
    s_waitcnt lgkmcnt(0)
L_role_wait:
    s_barrier
    ds_read_b32 v2, v4
    s_waitcnt lgkmcnt(0)
    v_readfirstlane_b32 s{S_ROLE}, v2
    """)

def wait_ln(a, lane, t):
    a(f's_lshl_b32 s{S_T0}, s{S_WAVE}, 11\nv_lshlrev_b32 v{t+3}, 3, v{lane}\nv_add_u32 v{t+3}, s{S_T0}, v{t+3}')
    wait_flags(a, t+3, 1, t, n=4)
    a('s_barrier')

STAGE1 = (0, 4, 8, 11)
def load_tiles(a, tiles, vaddr, sbase, stage, flags, bud, cap=None):
    for off, dsts in tiles:
        cur = None
        for k in range(14):
            if stage is not None and (k in STAGE1) != (stage == 1): continue
            if cur != k // 4:
                cur = k // 4
                a(f's_add_u32 s{S_T0}, s{sbase}, {off + cur*4096}')
            a(f'buffer_load_dwordx4 {dsts[k]}, v{vaddr}, s[{S_WS}:{S_WS+3}], s{S_T0} offen offset:{(k%4)*1024} {flags}')
            bud[0] += 1
            if cap is not None:
                if bud[0] > cap: a(f's_waitcnt vmcnt({cap})')
            elif bud[0] >= 56:
                a('s_waitcnt vmcnt(28)'); bud[0] = 28

def team_register(a):
    l = a.newlabel('L_reg')
    a(f'''
    s_cmp_lg_u32 s{S_WAVE}, 0
    s_cbranch_scc1 {l}
    s_cmp_eq_u32 s{S_XCC}, 0
    s_cselect_b32 s{S_T0}, 1, 0x10001
    s_mov_b64 exec, 1
    v_mov_b32 v2, 64
    v_mov_b32 v3, s{S_T0}
    buffer_atomic_add v3, v2, s[{S_DBG}:{S_DBG+3}], 0 offen
    s_mov_b64 exec, -1
{l}:
    ''')

def team_mode_load(vt0, vt1):
    return f'v_mov_b32 v{vt0}, 64\nbuffer_load_dword v{vt1}, v{vt0}, s[{S_DBG}:{S_DBG+3}], 0 offen sc1'

def team_mode(a, vt0, vt1, primed=False):
    l = a.newlabel('L_mode'); d = a.newlabel('L_moded'); p = a.newlabel('L_modep')
    a(f'''
    s_mov_b32 s{S_SPIN}, 0
    {f's_branch {p}' if primed else ''}
{l}:
    {team_mode_load(vt0, vt1)}
{p}:
    s_waitcnt vmcnt(0)
    v_readfirstlane_b32 s{S_T0}, v{vt1}
    s_and_b32 s{S_T1}, s{S_T0}, 0xffff
    s_cmp_ge_u32 s{S_T1}, {NTEAM}
    s_cbranch_scc1 {d}
    s_sleep 2
    s_add_u32 s{S_SPIN}, s{S_SPIN}, 1
    s_cmp_lt_u32 s{S_SPIN}, {SPIN_MAX}
    s_cbranch_scc1 {l}
    s_mov_b32 s{S_T0}, 0x10000
{d}:
    s_lshr_b32 s{S_T0}, s{S_T0}, 16
    s_cmp_eq_u32 s{S_T0}, 0
    s_cselect_b32 s{S_FAST}, 1, 0
    s_mov_b32 s{S_LIM}, {SPIN_MAX}
    ''')

def stamp(a, stamps, idx, vt=None):
    if not stamps: return
    a(f's_memtime s[{40+2*idx}:{41+2*idx}]')
    if idx == 2: a('s_memrealtime s[60:61]')

def stamp_flush(a, stamps, n, vt):
    if not stamps: return
    a('s_waitcnt lgkmcnt(0)')
    for k in range(n):
        a(f'v_writelane_b32 v{vt}, s{40+2*k}, {k}')
    a(f"""
    v_lshrrev_b32 v{vt+1}, 1, v0
    s_mov_b64 exec, {(1 << n) - 1}
    buffer_store_dword v{vt}, v{vt+1}, s[{S_WS}:{S_WS+3}], s{S_STMP} offen
    s_mov_b64 exec, -1
    """)

def wreg(wb, vbase):
    return ar(8*wb, 8) if wb < 32 else vr(vbase + 8*(wb-32), 8)
def wreg_half(wb, vbase, half):
    return ar(8*wb + 4*half, 4) if wb < 32 else vr(vbase + 8*(wb-32) + 4*half, 4)

def xlane4(a, op, x, t):
    a(f'''
    v_mov_b32 v{t}, v{x}
    v_permlane16_swap_b32 v{x}, v{t}
    {op} v{x}, v{x}, v{t}
    v_mov_b32 v{t}, v{x}
    v_permlane32_swap_b32 v{x}, v{t}
    {op} v{x}, v{x}, v{t}
    ''')

QP = 'quad_perm:[2,3,0,1] row_mask:0xf bank_mask:0xf'

def read_mf(a, V):
    for b in range(7):
        a(f"ds_read_b64_tr_b16 v[{V['mf']+4*b}:{V['mf']+4*b+1}], v{V['l8']} offset:{LDS_M+b*1024}")
        a(f"ds_read_b64_tr_b16 v[{V['mf']+4*b+2}:{V['mf']+4*b+3}], v{V['l8']} offset:{LDS_M+b*1024+512}")

def SM(acc, A, B, idx):
    return f'v_smfmac_f32_16x16x64_bf16 v[{acc}:{acc+3}], v[{A}:{A+3}], {B}, v{idx}'


class Q:
    def __init__(self, name, cap):
        self.name = name; self.n = 0; self.tags = {}; self.done = 0; self.cap = cap
    def issue(self, tag=None):
        self.n += 1
        if tag is not None: self.tags[tag] = self.n
    def wait(self, tag):
        k = self.tags[tag]
        if k <= self.done: return ''
        self.done = k
        return 's_waitcnt %s(%d)' % (self.name, min(self.n - k, self.cap))
    def drain(self):
        self.done = self.n
        return 's_waitcnt %s(0)' % self.name

WSRD = f's[{S_WS}:{S_WS+3}]'

def poll_m(a, V, sleep=0):
    t = V['mf']; pa = V['pa']
    l = a.newlabel('L_pm'); d = a.newlabel('L_pmd')
    a(f"""
    s_mov_b32 s{S_SPIN}, 0
{l}:
    buffer_load_dwordx4 v[{t}:{t+3}], v{pa}, {WSRD}, s{S_MOFF} offen sc1
    buffer_load_dwordx4 v[{t+4}:{t+7}], v{pa}, {WSRD}, s{S_MOFF} offen offset:768 sc1
    s_add_u32 s{S_SPIN}, s{S_SPIN}, 1
    s_waitcnt vmcnt(1)
    ds_write_b128 v{pa}, v[{t}:{t+3}]
    v_max3_u32 v{t+8}, v{t}, v{t+1}, v{t+2}
    s_waitcnt vmcnt(0)
    ds_write_b128 v{pa}, v[{t+4}:{t+7}] offset:768
    v_max3_u32 v{t+8}, v{t+8}, v{t+3}, v{t+4}
    v_max3_u32 v{t+8}, v{t+8}, v{t+5}, v{t+6}
    v_max_u32 v{t+8}, v{t+8}, v{t+7}
    v_cmp_eq_u32 vcc, -1, v{t+8}
    s_cbranch_vccz {d}
    {'s_sleep %d' % sleep if sleep else ''}
    s_cmp_lt_u32 s{S_SPIN}, s{S_LIM}
    s_cbranch_scc1 {l}
    s_mov_b32 s{S_LIM}, 1
{d}:
    s_waitcnt lgkmcnt(0)
    s_barrier
    """)

def poll_m2(a, V, gap, x):
    pa = V['pa']; sets = (V['acc']+8, V['acc']+16)
    l = a.newlabel('L_pm'); d = a.newlabel('L_pmd')
    def issue(t):
        a(f"""
        buffer_load_dwordx4 v[{t}:{t+3}], v{pa}, {WSRD}, s{S_MOFF} offen sc1
        buffer_load_dwordx4 v[{t+4}:{t+7}], v{pa}, {WSRD}, s{S_MOFF} offen offset:768 sc1
        """)
    def check(t):
        a(f"""
        s_add_u32 s{S_SPIN}, s{S_SPIN}, 1
        s_waitcnt vmcnt(3)
        ds_write_b128 v{pa}, v[{t}:{t+3}]
        v_max3_u32 v{x}, v{t}, v{t+1}, v{t+2}
        s_waitcnt vmcnt(2)
        ds_write_b128 v{pa}, v[{t+4}:{t+7}] offset:768
        v_max3_u32 v{x}, v{x}, v{t+3}, v{t+4}
        v_max3_u32 v{x}, v{x}, v{t+5}, v{t+6}
        v_max_u32 v{x}, v{x}, v{t+7}
        v_cmp_eq_u32 vcc, -1, v{x}
        """)
    a(f's_mov_b32 s{S_SPIN}, 0')
    issue(sets[0])
    while gap > 0:
        a(f's_nop {min(gap, 16) - 1}'); gap -= 16
    issue(sets[1]); check(sets[0])
    a(f's_cbranch_vccnz {l}\n{d}:\ns_waitcnt lgkmcnt(0)\ns_barrier')
    def cold():
        a.label(l)
        issue(sets[0]); check(sets[1])
        a(f's_cbranch_vccz {d}')
        issue(sets[1]); check(sets[0])
        a(f"""
        s_cbranch_vccz {d}
        s_cmp_lt_u32 s{S_SPIN}, s{S_LIM}
        s_cbranch_scc1 {l}
        s_mov_b32 s{S_LIM}, 1
        s_branch {d}
        """)
    a.cold.append(cold)

def wait_hint(a, vaddr, soff, regs, imm=0, delay=0, gap=12, inner=8, fill=None, primed=False):
    n = len(regs)
    l = a.newlabel('L_h'); d = a.newlabel('L_hd')
    ld = lambda r: f'buffer_load_dword v{r}, v{vaddr}, {WSRD}, s{soff} offen offset:{imm} sc1'
    a(f's_mov_b32 s{S_SPIN}, 0')
    fill = list(fill or [])
    per = -(-len(fill) // (n-1))
    for k in range(0 if primed else n-1):
        a(ld(regs[k]))
        for x in fill[k*per:(k+1)*per]: a(x)
        if per < gap: a(f's_nop {gap - per}')
    a.label(l)
    for k in range(n):
        a(f"""
        {ld(regs[(k+n-1) % n])}
        s_waitcnt vmcnt({n-1})
        v_cmp_eq_u32 vcc, -1, v{regs[k]}
        s_cbranch_vccz {d}
        s_nop {inner}
        """)
    a(f"""
    s_add_u32 s{S_SPIN}, s{S_SPIN}, 1
    s_cmp_lt_u32 s{S_SPIN}, s{S_LIM}
    s_cbranch_scc1 {l}
{d}:
    """)
    while delay > 0:
        a(f's_nop {min(delay, 16) - 1}'); delay -= 16

def wait_cnt(a, off_sgpr, target, vt, sleep=4, primed=False):
    l = a.newlabel('L_wc'); d = a.newlabel('L_wcd'); p = a.newlabel('L_wcp')
    a(f"""
    s_mov_b32 s{S_SPIN}, 0
    v_mov_b32 v{vt}, 0
    {f's_branch {p}' if primed else ''}
{l}:
    buffer_load_dword v{vt+1}, v{vt}, {WSRD}, s{off_sgpr} offen sc1
{p}:
    s_add_u32 s{S_SPIN}, s{S_SPIN}, 1
    s_waitcnt vmcnt(0)
    v_readfirstlane_b32 s{S_T0}, v{vt+1}
    s_cmp_ge_u32 s{S_T0}, {target}
    s_cbranch_scc1 {d}
    s_sleep {sleep}
    s_cmp_lt_u32 s{S_SPIN}, s{S_LIM}
    s_cbranch_scc1 {l}
    s_mov_b32 s{S_LIM}, 1
{d}:
    """)

def img_addr(a, dst, t, lane):
    a(f"""
    v_bfe_u32 v{dst}, v{lane}, 3, 1
    v_lshlrev_b32 v{dst}, 9, v{dst}
    v_bfe_u32 v{t}, v{lane}, 2, 1
    v_lshl_add_u32 v{dst}, v{t}, 6, v{dst}
    v_and_b32 v{t}, 1, v{lane}
    v_lshl_add_u32 v{dst}, v{t}, 5, v{dst}
    v_lshrrev_b32 v{t}, 4, v{lane}
    v_lshl_add_u32 v{dst}, v{t}, 3, v{dst}
    v_bfe_u32 v{t}, v{lane}, 1, 1
    v_lshl_add_u32 v{dst}, v{t}, 2, v{dst}
    """)

def common_addrs(a, V, LN):
    a(f"""
    v_lshlrev_b32 v{V['l8']}, 3, v{LN}
    s_mul_i32 s{S_T0}, s{S_WAVE}, {112*16}
    v_lshlrev_b32 v{V['pa']}, 4, v{LN}
    v_add_u32 v{V['pa']}, s{S_T0}, v{V['pa']}
    v_and_b32 v{LN+1}, 2, v{LN}
    v_cmp_ne_u32 vcc, 0, v{LN+1}
    v_mov_b32 v{LN+1}, 0x4444
    v_mov_b32 v{LN+2}, 0xeeee
    v_cndmask_b32 v{V['idx']}, v{LN+1}, v{LN+2}, vcc
    """)

def load_1k_run(a, dsts, vaddr, sbase, flags='', budget=None):
    for i, d in enumerate(dsts):
        if i and i % 4 == 0:
            a(f's_add_u32 s{sbase}, s{sbase}, 4096')
        a(f'buffer_load_dwordx4 {d}, v{vaddr}, {WSRD}, s{sbase} offen offset:{(i%4)*1024} {flags}')
        if budget is not None:
            budget[0] += 1
            if budget[0] >= 56:
                a('s_waitcnt vmcnt(28)'); budget[0] = 28

class Gaps:
    def __init__(self, n):
        self.ds = [[] for _ in range(n)]; self.va = [[] for _ in range(n)]; self.pre = [[] for _ in range(n)]
        self.n = n
    def put(self, kind, g, text, excl=False):
        while g < self.n - 1:
            if excl:
                if not self.ds[g] and not self.va[g]: break
            else:
                lst = self.ds[g] if kind == 'ds' else self.va[g]
                other = self.va[g] if kind == 'ds' else self.ds[g]
                if not lst and not (other and other[-1][1]): break
            g += 1
        (self.ds if kind == 'ds' else self.va)[g].append((text, excl))
        return g
    def force(self, kind, g, text):
        (self.ds if kind == 'ds' else self.va)[min(g, self.n-1)].append((text, False))

def emit_stream(a, mf, gp, lq, pre=None):
    for i, (m, tags) in enumerate(mf):
        for tg in tags:
            w = lq.wait(tg)
            if w: a(w)
        a(m)
        for lst in (gp.ds[i], gp.va[i]):
            for x, _ in lst:
                t = x(lq) if callable(x) else x
                if t: a(t)

def dsop(text, tag=None):
    def f(lq):
        lq.issue(tag); return text
    return f
def dswait(tag, then=''):
    def f(lq):
        return lq.wait(tag) + '\n' + then
    return f

SV = dict(l8=0, pa=1, idx=2, k1=3, mf=12, acc=40, w=64)
def tile_of(w, u):
    if u < 5: return (u, w)
    order = {(0, 5): (5, 0), (1, 5): (5, 1), (2, 5): (5, 2), (2, 6): (5, 3), (0, 6): (6, 0), (1, 6): (6, 1), (0, 7): (6, 2), (1, 7): (6, 3)}
    return order[(w, u)]
NUNIT = [8, 8, 7, 5]
F = dict(l16=4, px=5, pm=6, mk0=7, mk1=8, mk2=9, wz=10, xf=88, tf=200, sa=228, t=240)

def score_setup(a, stamps, cfg):
    V = SV; LN = 44
    a(f'v_mov_b32 v{LN}, v1')
    team_register(a)
    common_addrs(a, V, LN)
    img_addr(a, V['k1'], LN+1, LN)
    g, cc, par, ib, t = LN+1, LN+2, LN+3, LN+4, LN+5
    a(f"""
    v_lshlrev_b32 v{F['l16']}, 4, v{LN}
    v_lshrrev_b32 v{g}, 4, v{LN}
    v_bfe_u32 v{cc}, v{LN}, 2, 2
    v_bfe_u32 v{par}, v{LN}, 1, 1
    v_and_b32 v{ib}, 1, v{LN}
    v_and_b32 v{t}, 15, v{LN}
    v_lshlrev_b32 v{F['px']}, 4, v{t}
    v_lshrrev_b32 v{t}, 1, v{g}
    v_lshl_add_u32 v{F['px']}, v{t}, 8, v{F['px']}
    v_and_b32 v{t}, 1, v{g}
    v_lshl_add_u32 v{F['px']}, v{t}, 3, v{F['px']}
    s_and_b32 s{S_T0}, s{S_ROLE}, 1
    s_lshl_b32 s{S_T0}, s{S_T0}, 4
    s_lshr_b32 s{S_T1}, s{S_ROLE}, 2
    s_lshl_b32 s{S_T1}, s{S_T1}, 9
    s_add_u32 s{S_T0}, s{S_T0}, s{S_T1}
    s_and_b32 s{S_T1}, s{S_ROLE}, 2
    s_lshl_b32 s{S_T1}, s{S_T1}, 1
    s_add_u32 s{S_T0}, s{S_T0}, s{S_T1}
    s_add_u32 s{S_T0}, s{S_T0}, 8192
    v_and_b32 v{F['pm']}, 0xffffffef, v{V['l8']}
    v_add_u32 v{F['pm']}, s{S_T0}, v{F['pm']}
    s_lshl_b32 s{S_T0}, s{S_ROLE}, 9
    v_add_u32 v{F['px']}, s{S_T0}, v{F['px']}
    v_lshlrev_b32 v{t}, 4, v{ib}
    v_mov_b32 v{F['mk2']}, 0xffff
    v_lshlrev_b32 v{F['mk2']}, v{t}, v{F['mk2']}
    v_cmp_eq_u32 vcc, v{cc}, v{g}
    v_mov_b32 v{t}, 0
    v_cndmask_b32 v{F['mk2']}, v{t}, v{F['mk2']}, vcc
    v_cmp_eq_u32 vcc, 0, v{par}
    v_mov_b32 v{t+1}, 0xff800000
    v_cndmask_b32 v{F['mk0']}, v{t}, v{F['mk2']}, vcc
    v_cndmask_b32 v{F['mk1']}, v{F['mk2']}, v{t}, vcc
    v_cndmask_b32 v{F['wz']}, v{t+1}, v{t}, vcc
    s_mul_i32 s{S_T1}, s{S_ROLE}, {28*14336}
    s_add_u32 s{S_T1}, s{S_T1}, {L.WT}
    """)
    done = a.newlabel('L_sw')
    fz = cfg['fused']
    if fz:
        a(f"v_min_u32 v{LN+8}, 27, v{LN}\nv_lshlrev_b32 v{LN+8}, 3, v{LN+8}\ns_mul_i32 s{S_T0}, s{S_ROLE}, {14*32}\nv_add_u32 v{LN+8}, s{S_T0}, v{LN+8}")
        wait_flags(a, LN+8, 1, LN+10)
    for w in range(4):
        nx = a.newlabel('L_swn')
        if w < 3: a(f's_cmp_lg_u32 s{S_WAVE}, {w}\ns_cbranch_scc1 {nx}')
        tiles = []
        for u in range(NUNIT[w]):
            b, ga = tile_of(w, u)
            tiles.append(((4*b+ga)*14336, [wreg_half(u*7 + k//2, V['w'], k % 2) for k in range(14)]))
        if fz:
            load_tiles(a, tiles, F['l16'], S_T1, 1, cfg['wfl'], [0])
            wait_flags(a, LN+8, 7, LN+10)
            load_tiles(a, tiles, F['l16'], S_T1, 2, cfg['wfl'], [0])
        else:
            load_tiles(a, tiles, F['l16'], S_T1, None, cfg['wfl'], [0], cfg['scap'])
        if w < 3: a(f's_branch {done}\n{nx}:')
    a(f"""
{done}:
    {team_mode_load(V['mf'], V['mf']+1) if not fz else ''}
    s_mov_b32 s{S_STEP}, 0
    s_mov_b32 s{S_MOFF}, {L.MB_M}
    s_mov_b32 s{S_POFF}, {L.MB_P}
    s_mov_b32 s{S_GOFF}, {L.XN}
    s_lshl_b32 s{S_STMP}, s{S_ROLE}, 2
    s_add_u32 s{S_STMP}, s{S_STMP}, s{S_WAVE}
    s_lshl_b32 s{S_STMP}, s{S_STMP}, 12
    s_add_u32 s{S_STMP}, s{S_STMP}, {L.STAMP}
    """)
    if fz:
        wait_ln(a, LN, 12)
    else:
        nf = a.newlabel('L_nx0')
        a(f's_cmp_lg_u32 s{S_WAVE}, 3\ns_cbranch_scc1 {nf}\ns_waitcnt vmcnt(30)\ns_mov_b32 s{S_T0}, s{S_GOFF}')
        load_1k_run(a, [vr(F['xf'] + 4*k, 4) for k in range(28)], F['l16'], S_T0, cfg['wfl'])
        a.label(nf)
    team_mode(a, V['mf'], V['mf']+1, primed=not fz)

def step_advance(a, gstride, xstride=114688):
    a(f"""
    s_add_u32 s{S_STEP}, s{S_STEP}, 1
    s_add_u32 s{S_MOFF}, s{S_MOFF}, 8192
    s_add_u32 s{S_POFF}, s{S_POFF}, 16384
    s_add_u32 s{S_GOFF}, s{S_GOFF}, {gstride}
    s_add_u32 s{S_XOFF}, s{S_XOFF}, {xstride}
    s_add_u32 s{S_STMP}, s{S_STMP}, 64
    """)

def rowred(a, op, x):
    for m in ('row_ror:8', 'row_ror:4', 'row_ror:2', 'row_ror:1'):
        for r in (x, x+1):
            a(f'{op}_dpp v{r}, v{r}, v{r} {m} row_mask:0xf bank_mask:0xf')

def score_wave(a, w, pf, stamps, cfg):
    V = SV; idx = V['idx']; mf = V['mf']
    top = a.newlabel(f'L_sc{w}_top'); first = a.newlabel(f'L_sc{w}_first')
    nunit = NUNIT[w]
    accof = lambda u: V['acc'] + 4*(u % 6)
    ok = {0: (0, 9, 2), 1: (2,), 2: (0, 9, 1, 2), 3: (7, 8, 4)}[w]
    ST = (lambda k: f's_memtime s[{40+2*k}:{41+2*k}]' if k in ok else '') if stamps else (lambda k: '')
    def stamp(a, stamps, k):
        a(ST(k))
    xf, tf, sa, T = F['xf'], F['tf'], F['sa'], F['t']
    FA, FV = 8, 9
    HA = 11
    HT = ([5, 6, 7, 10] if w < 3 else [T+4, T+5, T+6, T+7])[:cfg['hdepth']]
    def load_x():
        a(f's_mov_b32 s{S_T0}, s{S_GOFF}')
        load_1k_run(a, [vr(xf + 4*k, 4) for k in range(28)], F['l16'], S_T0, cfg['wfl'])
    XW = cfg['xw']
    def dma_x(a=a):
        lo, hi = XW[w]
        a(f"""
        s_and_b32 s{S_T0}, s{S_STEP}, 1
        s_xor_b32 s{S_T0}, s{S_T0}, 1
        s_mul_i32 s{S_T0}, s{S_T0}, 28672
        s_add_u32 s{S_T0}, s{S_T0}, {LDS_X + lo*1024}
        s_add_u32 s{S_T1}, s{S_GOFF}, {28672 + lo*1024 - w*1792}
        """)
        for k in range(hi - lo):
            if k % 4 == 0:
                if k: a(f's_add_u32 s{S_T0}, s{S_T0}, 4096\ns_add_u32 s{S_T1}, s{S_T1}, 4096')
                a(f's_mov_b32 m0, s{S_T0}')
            a(f"buffer_load_dwordx4 v{V['pa']}, {WSRD}, s{S_T1} offen offset:{(k%4)*1024} {cfg['wfl']} lds")
    def read_x():
        a(f"""
        s_and_b32 s{S_T0}, s{S_STEP}, 1
        s_mul_i32 s{S_T0}, s{S_T0}, 28672
        v_add_u32 v{T}, s{S_T0}, v{F['l16']}
        """)
        for k in range(28): a(f'ds_read_b128 v[{xf+4*k}:{xf+4*k+3}], v{T} offset:{LDS_X + k*1024}')
    def zero_acc():
        for u in range(2 if cfg['m2'] else min(6, nunit)):
            a(f'v_mov_b64 v[{accof(u)}:{accof(u)+1}], 0\nv_mov_b64 v[{accof(u)+2}:{accof(u)+3}], 0')
        if w == 3:
            for k in range(4): a(f'v_mov_b64 v[{sa+2*k}:{sa+2*k+1}], 0')
            a(f"v_mov_b32 v{sa+8}, v{F['wz']}\nv_mov_b32 v{sa+9}, v{F['wz']}\nv_mov_b64 v[{sa+10}:{sa+11}], 0")
    a(f"v_lshrrev_b32 v{HA}, 1, v{V['l8']}\nv_min_u32 v{HA}, {55*4}, v{HA}\ns_and_b32 s{S_T0}, s{S_ROLE}, 3\ns_lshl_b32 s{S_T0}, s{S_T0}, 8\ns_add_u32 s{S_T0}, s{S_T0}, 7168\nv_add_u32 v{HA}, s{S_T0}, v{HA}")
    if w == 3:
        if cfg['fused']: load_x()
        a(f'v_and_b32 v{T+12}, {15*8}, v0\nv_lshlrev_b32 v{T+12}, 3, v{T+12}\nv_add_u32 v{T+12}, 6144, v{T+12}')
        if stamps: a('s_mov_b32 s40, 0\ns_mov_b32 s42, 0\ns_mov_b32 s44, 0')
        a(f's_mov_b32 s{S_EOFF}, 0\ns_lshl_b32 s{S_T0}, s{S_ROLE}, 2\ns_add_u32 s{S_T0}, s{S_T0}, 12288\nv_lshlrev_b32 v{T+14}, 4, v0\nv_add_u32 v{T+14}, s{S_T0}, v{T+14}\nv_mov_b32 v{T+15}, 0')
    else:
        a(f"v_add_u32 v{FA}, {LDS_FL + 4*w}, v{F['l16']}\nv_mov_b32 v{FV}, 0")
        for k in range(5): a(f'ds_write_b32 v{FA}, v{FV} offset:{k*1024}')
        a(f'v_and_b32 v4, {31*8}, v0\nv_lshlrev_b32 v4, 3, v4\nv_add_u32 v4, {w*2048}, v4')
    if w < 3 and not cfg['xin']: dma_x()
    if cfg['prio'][w]: a(f"s_setprio {cfg['prio'][w]}")
    zero_acc()
    if cfg.get('wgd'): a('s_memrealtime s[88:89]')
    a(f's_branch {first}')
    a.label(top)
    zero_acc()
    stamp(a, stamps, 0)
    if cfg['msamp'] == 2: a(f'v_mov_b32 v{mf if w < 3 else T+13}, 0')
    if cfg['mdma'] == 2: a(f's_mov_b32 m0, {LDS_M}\ns_add_u32 s{S_T0}, s{S_MOFF}, 4096')
    elif cfg['mdma']: a(f's_mov_b32 m0, {LDS_M + w*2048}\ns_add_u32 s{S_T0}, s{S_MOFF}, {w*2048 - w*1792}')
    if not cfg['cutrig'] or w == 0: wait_hint(a, HA, S_MOFF, HT, delay=cfg['mdelay'], inner=cfg['hinner'])
    if cfg['cutrig'] and cfg['mdma'] != 2: a('s_barrier')
    if cfg['mdma']:
        got = a.newlabel('L_got')
        a(ST(9))
        nk = 2 if w < 3 else 1
        SA_ = (4 if w < 3 else T+12)
        def rnd(r):
            if cfg['msamp'] == 2:
                a(f"s_mov_b64 exec, {0x55555555 if w < 3 else 0x5555}\nbuffer_load_dword v{r}, v{SA_}, {WSRD}, s{S_MOFF} offen sc1\ns_mov_b64 exec, -1")
            elif cfg['msamp']: a(f"buffer_load_dword v{r}, v{SA_}, {WSRD}, s{S_MOFF} offen sc1")
            for k in range(nk): a(f"buffer_load_dwordx4 v{V['pa']}, {WSRD}, s{S_T0} offen offset:{k*1024} sc1 lds")
        r0, r1 = (mf, HT[1]) if w < 3 else (T+13, T+15)
        two = cfg['m2d']
        rnd(r0)
        a(f'v_add_u32 v{FV}, 1, v{FV}' if w < 3 else f's_add_u32 s{S_EOFF}, s{S_EOFF}, 1')
        a(f's_mov_b32 s{S_SAFE}, 0\ns_mov_b32 s{S_SPIN}, 1')
        if two:
            gap = two
            while gap > 0:
                a(f's_nop {min(gap, 16) - 1}'); gap -= 16
            rnd(r1)
        ex = (nk+1) if two else 0
        bad = a.newlabel('L_mbad'); okl = a.newlabel('L_mok')
        a(f"""
        {f's_waitcnt vmcnt({nk + ex})' if cfg['msamp'] else ''}
        {f'v_cmp_eq_u32 vcc, -1, v{r0}' if cfg['msamp'] else ''}
        {f's_cbranch_vccnz {bad}' if cfg['msamp'] else ''}
        s_waitcnt vmcnt({ex}) lgkmcnt(0)
{okl}:
        s_barrier
{got}:
        """)
        def coldb():
            lp = a.newlabel('L_mlp')
            a.label(bad)
            if two:
                a(f's_mov_b32 s{S_SPIN}, 2\ns_waitcnt vmcnt(0) lgkmcnt(0)\nv_cmp_eq_u32 vcc, -1, v{r1}\ns_cbranch_vccz {okl}')
            a.label(lp)
            rnd(r0)
            a(f"""
            s_add_u32 s{S_SPIN}, s{S_SPIN}, 1
            s_waitcnt vmcnt(0) lgkmcnt(0)
            v_cmp_eq_u32 vcc, -1, v{r0}
            s_cbranch_vccz {okl}
            s_cmp_lt_u32 s{S_SPIN}, s{S_LIM}
            s_cbranch_scc1 {lp}
            s_mov_b32 s{S_LIM}, 1
            s_branch {okl}
            """)
        a.cold.append(coldb)
        def coldf():
            a.label(first)
            a(f'v_add_u32 v{FV}, 1, v{FV}' if w < 3 else f's_add_u32 s{S_EOFF}, s{S_EOFF}, 1')
            a(f's_mov_b32 s{S_SAFE}, 1')
            poll_m(a, V)
            a(f's_branch {got}')
        a.cold.append(coldf)
    else:
        a.label(first)
        a(f'v_add_u32 v{FV}, 1, v{FV}' if w < 3 else f's_add_u32 s{S_EOFF}, s{S_EOFF}, 1')
        a(ST(9))
        if cfg['m2']: poll_m2(a, V, cfg['m2'], mf)
        else: poll_m(a, V)
    stamp(a, stamps, 1)
    if stamps and w < 3: a(f's_mov_b32 s{40+2*7}, s{S_SPIN}')
    lq = Q('lgkmcnt', 15)
    mrd = [dsop(f"ds_read_b64_tr_b16 v[{mf+4*b+2*hf}:{mf+4*b+2*hf+1}], v{V['l8']} offset:{LDS_M+b*1024+hf*512}", ('mf', b))
           for b in range(7) for hf in range(2)]
    for x in mrd[:cfg['mpre']]: a(x(lq))
    order = [(u, b) for b in range(7) for u in range(2)] + [(u, b) for u in range(2, nunit) for b in range(7)]
    ms = [(SM(accof(u), mf+4*b, wreg(u*7 + b, V['w']), idx), [('mf', b)] if u == 0 else []) for u, b in order]
    last = {u: i for i, (u, b) in enumerate(order)}
    def smfma(b):
        t4 = tf + 4*b
        return [(f"v_mfma_f32_16x16x32_bf16 v[{sa+8}:{sa+11}], v[{t4}:{t4+3}], v[{mf+4*b}:{mf+4*b+3}], " + f'v[{sa+8}:{sa+11}]', [('tf', b)]),
                (SM(sa, t4, vr(xf + 8*b, 8), idx), []),
                (SM(sa+4, t4, vr(xf + 56 + 8*b, 8), idx), [])]
    def tread(b, hf):
        return dsop(f"ds_read_b64_tr_b16 v[{tf+4*b+2*hf}:{tf+4*b+2*hf+1}], v{V['l8']} offset:{LDS_T+b*1024+hf*512}", ('tf', b))
    phases = [(0, 1, 2), (3, 4)]
    starts = []
    if w == 3:
        for ph in phases:
            starts.append(len(ms))
            for b in ph: ms += smfma(b)
    n = len(ms)
    gp = Gaps(n)
    for k, x in enumerate(mrd[cfg['mpre']:]): gp.put('ds', k, x)
    flag_after = {2, 4} | ({5} if w < 2 else {6})
    def post(u):
        A = accof(u); b, ga = tile_of(w, u)
        va = [f'v_add_f32 v{A}, v{A}, v{A+2}', f'v_add_f32 v{A+1}, v{A+1}, v{A+3}', f'v_cvt_pk_bf16_f32 v{A}, v{A}, v{A+1}']
        ds = [dsop(f"ds_write_b32 v{V['k1']}, v{A} offset:{LDS_T+b*1024+ga*128}", ('k', u))]
        if w < 3 and u in flag_after:
            ds.append(dsop(f'ds_write_b32 v{FA}, v{FV} offset:{sorted(flag_after).index(u)*1024}'))
        return va, ds
    g = 0
    done_at = {}
    for u in range(nunit - (0 if w == 3 else 1)):
        va, ds = post(u)
        g = max(g, last[u] + 3 - (len(va) - 3))
        for x in va: g = gp.put('va', g, x) + 1
        for x in ds: g = gp.put('ds', g, x, excl=True) + 1
        done_at[u] = g
    def zero_in_gaps(u, g):
        A = accof(u)
        for k in range(2):
            gg = g
            while gg < 7*u - 2 and (gp.va[gg] or (gp.ds[gg] and gp.ds[gg][-1][1])): gg += 1
            if gg >= 7*u - 2: gg = max(g, 7*u - 4 + k)
            gp.force('va', gg, f'v_mov_b64 v[{A+2*k}:{A+2*k+1}], 0')
    if cfg['m2']:
        gp.force('ds', cfg['m2w'], 's_waitcnt vmcnt(0)')
        for u in range(2, min(6, nunit)): zero_in_gaps(u, cfg['m2w'])
    for u in range(6, nunit): zero_in_gaps(u, done_at[u-6] + 1)
    if w == 3:
        for pi, ph in enumerate(phases):
            flagrd = f"ds_read_b128 v[{T}:{T+3}], v{F['l16']} offset:{LDS_FL + pi*1024}"
            lead = cfg['lead'][pi]
            g = max(starts[pi] - lead, done_at[max(ph)] if max(ph) < 5 else 0)
            g = min(g, starts[pi]-1)
            if cfg['pnop'][pi]: gp.force('ds', g, f"s_nop {cfg['pnop'][pi]-1}")
            gp.force('ds', g, dsop(flagrd, ('fl', pi)))
            ops = [tread(b, hf) for b in ph for hf in range(2)]
            for k, x in enumerate(ops):
                gp.force('ds', min(g + (k+1)//2, starts[pi]-1), x)
            FM = T+11
            def chk(lq, pi=pi):
                return lq.wait(('fl', pi)) + (f'\nv_min3_u32 v{FM}, v{T}, v{T+1}, v{T+2}' if pi == 0 else
                                              f'\nv_min3_u32 v{T}, v{T}, v{T+1}, v{T+2}\nv_min_u32 v{FM}, v{FM}, v{T}')
            gp.force('va', starts[pi], chk)
    if cfg['xin'] and XW[w][1] > XW[w][0]:
        sub = Asm(); dma_x(sub)
        grp = []; cur = []
        for _, x in sub.items:
            cur.append(x.text)
            if x.text.startswith('buffer'): grp.append('\n'.join(cur)); cur = []
        g = cfg['xin']
        for x in grp: g = gp.put('ds', g, x) + cfg['xstep']
    if w == 0 and cfg['phint'] < 0:
        gp.force('ds', n - 1 + cfg['phint'], f"""s_mov_b64 exec, 15
            buffer_store_dword v{FV}, v4, {WSRD}, s{S_POFF} offen {pf}
            s_mov_b64 exec, -1""")
    emit_stream(a, ms, gp, lq)
    hint = f"""s_mov_b64 exec, 15
        buffer_store_dword v{T+15}, v{T+14}, {WSRD}, s{S_POFF} offen {pf}
        s_mov_b64 exec, -1"""
    if w < 3:
        va, ds = post(nunit-1)
        A_ = accof(nunit-1)
        va = [f'v_pk_add_f32 v[{A_}:{A_+1}], v[{A_}:{A_+1}], v[{A_+2}:{A_+3}]', va[-1]]
        for x in va: a(x)
        for x in ds: a(x(lq))
        a(lq.drain())
        a('s_barrier')
        stamp(a, stamps, 2)
        if cfg['mdma']:
            again = a.newlabel('L_again')
            a(f"""
            {'s_waitcnt vmcnt(0)' if cfg['xin'] else ''}
            s_barrier
            v_mov_b32 v{mf}, {LDS_VD}
            ds_read_b32 v{mf}, v{mf}
            s_waitcnt lgkmcnt(0)
            v_cmp_eq_u32 vcc, v{mf}, v{FV}
            s_cbranch_vccnz {again}
            """)
            def colda():
                a.label(again)
                zero_acc()
                a(f's_branch {first}')
            a.cold.append(colda)
        elif cfg['quiet']: a(f"s_sleep {cfg['quiet']}")
    else:
        s = T
        mx = T+6; z = T+8; EA = tf; B1 = tf+4; B2 = tf+8; D1 = tf+12; D2 = tf+16; rz = T+10
        a(f"""
        v_mov_b64 v[{B1+2}:{B1+3}], 0
        v_mov_b64 v[{B2}:{B2+1}], 0
        v_mov_b32 v{B2+3}, 0
        v_mov_b32 v{EA+3}, 0
        """)
        for _ in range(cfg['b5nop']): a('s_nop 3')
        q = Q('lgkmcnt', 15)
        a(f"ds_read_b128 v[{T}:{T+3}], v{F['l16']} offset:{LDS_FL + 2048}"); q.issue('fl')
        for hf in range(2): a(tread(5, hf)(q))
        stamp(a, stamps, 2)
        if cfg['al'] is not None:
            a.raw('    .p2align 6')
            for _ in range(cfg['al']): a('s_nop 0')
        a('s_barrier')
        stamp(a, stamps, 3)
        PX = lambda k: a('s_memtime s[52:53]') if stamps and cfg['px'] == k else None
        PX(0)
        for hf in range(2): a(tread(6, hf)(q))
        PX(1)
        if cfg['phint'] == 0: a(hint)
        PX(2)
        fl5 = [f'v_min3_u32 v{T}, v{T}, v{T+1}, v{T+2}', f'v_min_u32 v{FM}, v{FM}, v{T}', f'v_subrev_u32 v{FM}, s{S_EOFF}, v{FM}']
        for b in (5, 6):
            for m, tags in smfma(b):
                for tg in tags: a(q.wait(tg))
                if b == 6 and tags: PX(4)
                a(m)
                if fl5: a(fl5.pop(0))
            if b == 5: PX(3)
        a(ST(7))
        if cfg['phint'] == 1: a(hint)
        e = sa
        redo = a.newlabel('L_smr'); slowmx = a.newlabel('L_sms'); go = a.newlabel('L_smg')
        a(f"""
        s_mov_b32 s{S_T1}, {120 << 23}
        s_mov_b32 s{S_SPIN}, 0
        v_add_f32_dpp v{s+4}, v{sa+10}, v{sa+8} {QP}
        v_add_f32_dpp v{s+5}, v{sa+11}, v{sa+9} {QP}
        v_pk_add_f32 v[{s}:{s+1}], v[{sa}:{sa+1}], v[{sa+2}:{sa+3}]
        v_exp_f32 v{e+8}, v{s+4}
        v_exp_f32 v{e+9}, v{s+5}
        v_pk_add_f32 v[{s+2}:{s+3}], v[{sa+4}:{sa+5}], v[{sa+6}:{sa+7}]
        v_exp_f32 v{e}, v{s}
        v_exp_f32 v{e+1}, v{s+1}
        v_exp_f32 v{e+2}, v{s+2}
        v_exp_f32 v{e+3}, v{s+3}
{redo}:;nf
        v_pk_add_f32 v[{z}:{z+1}], v[{e}:{e+1}], v[{e+8}:{e+9}]
        v_cvt_pk_bf16_f32 v{EA+2}, v{e+8}, v{e+9}
        v_pk_add_f32 v[{z}:{z+1}], v[{z}:{z+1}], v[{e+2}:{e+3}]
        """)
        if cfg['phint'] == 2: a(hint)
        fill = [f'v_cvt_pk_bf16_f32 v{EA+k}, v{e+2*k}, v{e+2*k+1}' for k in range(2)]
        for m in ('row_ror:8', 'row_ror:4', 'row_ror:2', 'row_ror:1'):
            if fill: a(fill.pop(0))
            for r in (z, z+1):
                a(f'v_add_f32_dpp v{r}, v{r}, v{r} {m} row_mask:0xf bank_mask:0xf')
        LO, HI = (127-60) << 23, (127+60) << 23
        a(ST(8))
        a(f"""
        v_rcp_f32 v{mx}, v{z}
        v_rcp_f32 v{mx+1}, v{z+1}
        v_subrev_u32 v{z}, {LO}, v{z}
        v_cvt_pk_bf16_f32 v{rz}, v{mx}, v{mx+1}
        v_and_b32 v{B1}, v{rz}, v{F['mk0']}
        v_and_b32 v{B1+1}, v{rz}, v{F['mk1']}
        v_and_b32 v{B2+2}, v{rz}, v{F['mk2']}
        v_subrev_u32 v{z+1}, {LO}, v{z+1}
        v_mfma_f32_16x16x32_bf16 v[{D1}:{D1+3}], v[{EA}:{EA+3}], v[{B1}:{B1+3}], 0
        v_mfma_f32_16x16x32_bf16 v[{D2}:{D2+3}], v[{EA}:{EA+3}], v[{B2}:{B2+3}], 0
        v_max3_u32 v{z}, v{z}, v{z+1}, v{FM}
        v_cmp_lt_u32 vcc, s{S_T1}, v{z}
        s_cmp_eq_u64 vcc, 0
        s_cselect_b64 exec, -1, 0
        v_cvt_pk_bf16_f32 v{D1}, v{D1}, v{D1+1}
        v_cvt_pk_bf16_f32 v{D1+1}, v{D1+2}, v{D1+3}
        buffer_store_dwordx2 v[{D1}:{D1+1}], v{F['px']}, {WSRD}, s{S_POFF} offen {pf}
        v_cvt_pk_bf16_f32 v{D2}, v{D2}, v{D2+1}
        buffer_store_dword v{D2}, v{F['pm']}, {WSRD}, s{S_POFF} offen {pf}
        s_mov_b64 exec, -1
        s_cbranch_scc0 {slowmx}
        """)
        if cfg['mdma']: a('s_barrier')
        def coldmx():
            a(f'{slowmx}:' + ('\ns_add_u32 s40, s40, 1' if stamps else ''))
            loc = a.newlabel('L_loc'); sf = a.newlabel('L_safe')
            a(f's_cmp_eq_u32 s{S_SPIN}, 0\ns_cbranch_scc1 {loc}')
            if cfg['mdma']:
                a(f"""
                s_cmp_lg_u32 s{S_SAFE}, 0
                s_cbranch_scc1 {sf}
                {'s_add_u32 s86, s86, 1' if cfg.get('wgd') else ''}
                v_mov_b32 v{T}, {LDS_VD}
                v_mov_b32 v{T+1}, s{S_EOFF}
                ds_write_b32 v{T}, v{T+1}
                s_waitcnt lgkmcnt(0)
                s_barrier
                """)
                zero_acc()
                a(f's_branch {first}')
            a(f'{sf}:\ns_mov_b32 s{S_T1}, -1\ns_branch {redo}\n{loc}:\ns_mov_b32 s{S_SPIN}, 1\nv_mov_b32 v{FM}, 0')
            if cfg.get('wgd'): a('s_add_u32 s85, s85, 1')
            for k in range(4): a(f'v_mov_b64 v[{sa+2*k}:{sa+2*k+1}], 0')
            a(f"v_mov_b32 v{sa+8}, v{F['wz']}\nv_mov_b32 v{sa+9}, v{F['wz']}\nv_mov_b64 v[{sa+10}:{sa+11}], 0")
            q2 = Q('lgkmcnt', 15)
            for b in range(7):
                for hf in range(2): a(tread(b, hf)(q2))
            a('s_waitcnt lgkmcnt(0)')
            for b in range(7):
                for m, tags in smfma(b): a(m)
            a(f"""
            v_mov_b64 v[{B1+2}:{B1+3}], 0
            v_mov_b64 v[{B2}:{B2+1}], 0
            v_mov_b32 v{B2+3}, 0
            v_mov_b32 v{EA+3}, 0
            v_add_f32_dpp v{s+4}, v{sa+10}, v{sa+8} {QP}
            v_add_f32_dpp v{s+5}, v{sa+11}, v{sa+9} {QP}
            v_pk_add_f32 v[{s}:{s+1}], v[{sa}:{sa+1}], v[{sa+2}:{sa+3}]
            v_pk_add_f32 v[{s+2}:{s+3}], v[{sa+4}:{sa+5}], v[{sa+6}:{sa+7}]
            v_max3_f32 v{mx}, v{s}, v{s+4}, v{s+2}
            v_max3_f32 v{mx+1}, v{s+1}, v{s+5}, v{s+3}
            """)
            rowred(a, 'v_max_f32', mx)
            for k in range(3): a(f'v_pk_add_f32 v[{s+2*k}:{s+2*k+1}], v[{s+2*k}:{s+2*k+1}], v[{mx}:{mx+1}] neg_lo:[0,1] neg_hi:[0,1]')
            for k in range(6): a(f'v_exp_f32 v{e+(k if k < 4 else k+4)}, v{s+k}')
            a(f's_nop 1\ns_branch {redo}')
        a.cold.append(coldmx)
        stamp(a, stamps, 4)
    if stamps: a('s_memtime s[50:51]\ns_memrealtime s[60:61]')
    stamp_flush(a, stamps, 11, mf)
    step_advance(a, 28672, 458752)
    a(f's_cmp_ge_u32 s{S_STEP}, 63\ns_cbranch_scc1 L_exit')
    if w == 3: read_x()
    elif not cfg['nox'] and not cfg['xin']:
        if cfg['xs']: a(f"s_sleep {cfg['xs']}")
        dma_x()
    if cfg['ssleep'][w]:
        a(f"s_sleep {cfg['ssleep'][w]}")
    a(f's_branch {top}')
    a.flush_cold()

S_YD = 33; S_SAFE = 36; S_CV = 37; S_CU = 38; S_MD = 39
CV = dict(ha=160, one=161, zero=162, cu=163, hw=164, hm=165, nw=172, nr=173, pmr=72, l8=0, pa=1, idx=2, l16=3, pr=4, mw=6, lw=7, rw=8, rr=5, mf=12, acc=40, itm=72, vx=88, uf=96, tw=128, w=176)

def comb_setup(a, stamps, cfg):
    V = CV; LN = 112
    a(f'v_mov_b32 v{LN}, v1')
    team_register(a)
    common_addrs(a, V, LN)
    img_addr(a, V['mw'], LN+1, LN)
    a(f"""
    s_sub_u32 s{S_ROLE}, s{S_ROLE}, 16
    s_lshl_b32 s{S_ROLE}, s{S_ROLE}, 1
    s_and_b32 s{S_T0}, s{S_WAVE}, 1
    s_add_u32 s{S_T1}, s{S_ROLE}, s{S_T0}
    s_lshr_b32 s{S_T0}, s{S_T1}, 2
    s_lshl_b32 s{S_T0}, s{S_T0}, 10
    s_and_b32 s{S_T1}, s{S_T1}, 3
    s_lshl_b32 s{S_T1}, s{S_T1}, 7
    s_add_u32 s{S_T0}, s{S_T0}, s{S_T1}
    s_add_u32 s{S_T0}, s{S_T0}, 8192
    v_add_u32 v{V['mw']}, s{S_T0}, v{V['mw']}
    v_lshlrev_b32 v{V['l16']}, 4, v{LN}
    s_mul_i32 s{S_T0}, s{S_WAVE}, 28672
    s_add_u32 s{S_T0}, s{S_T0}, {LDS_BW}
    v_add_u32 v{V['lw']}, s{S_T0}, v{V['l16']}
    s_lshl_b32 s{S_T0}, s{S_WAVE}, 10
    v_add_u32 v{V['rw']}, s{S_T0}, v{V['l16']}
    v_add_u32 v{V['pr']}, s{S_T0}, v{V['rw']}
    s_and_b32 s{S_T0}, s{S_WAVE}, 1
    s_lshl_b32 s{S_T0}, s{S_T0}, 3
    v_add_u32 v{V['rr']}, s{S_T0}, v{V['l16']}
    s_mul_i32 s{S_T1}, s{S_WAVE}, {4*28}
    s_add_u32 s{S_T1}, s{S_T1}, s{S_ROLE}
    s_add_u32 s{S_T1}, s{S_T1}, 448
    s_mul_i32 s{S_T1}, s{S_T1}, 14336
    s_add_u32 s{S_T1}, s{S_T1}, {L.WT}
    """)
    toff = lambda u: ((u >> 1)*28 + (u & 1))*14336
    fz = cfg['fused']
    tiles = [(toff(u), [wreg_half(u*7 + k//2, V['w'], k % 2) for k in range(14)]) for u in range(6)]
    ltiles = [(toff(u), [vr(12 + (u-6)*116 + 4*k, 4) if u == 6 else vr(120 + 4*k, 4) for k in range(14)]) for u in (6, 7)]
    if fz:
        a(f"""
        v_bfe_u32 v{LN+4}, v{LN}, 2, 2
        v_mul_u32_u24 v{LN+4}, {14*32}, v{LN+4}
        v_and_b32 v{LN+5}, 3, v{LN}
        v_lshl_add_u32 v{LN+4}, v{LN+5}, 3, v{LN+4}
        s_mul_i32 s{S_T0}, s{S_WAVE}, 56
        s_lshr_b32 s{S_SPIN}, s{S_ROLE}, 2
        s_add_u32 s{S_T0}, s{S_T0}, s{S_SPIN}
        s_add_u32 s{S_T0}, s{S_T0}, 7
        s_lshl_b32 s{S_T0}, s{S_T0}, 5
        v_add_u32 v{LN+4}, s{S_T0}, v{LN+4}
        """)
        wait_flags(a, LN+4, 1, 100)
        load_tiles(a, ltiles + tiles, V['l16'], S_T1, 1, cfg['wfl'], [0])
        wait_flags(a, LN+4, 7, 100)
        load_tiles(a, ltiles + tiles, V['l16'], S_T1, 2, cfg['wfl'], [0])
    else:
        load_tiles(a, ltiles + tiles, V['l16'], S_T1, None, cfg['wfl'], [0], cfg['ccap'])
    if not fz:
        a(team_mode_load(104, 105))
        a(f"v_mov_b32 v106, 0\ns_mov_b32 s{S_CU}, {L.CNT_U}\ns_mov_b32 s{S_CV}, {L.CNT_I}")
        a(f'buffer_load_dword v107, v106, {WSRD}, s{S_CU} offen sc1\nbuffer_load_dword v109, v106, {WSRD}, s{S_CV} offen sc1')
    a('s_waitcnt vmcnt(28)')
    for u in (6, 7):
        for k in range(14):
            a(f"ds_write_b128 v{V['lw']}, {ltiles[u-6][1][k]} offset:{(u-6)*14336+k*1024}")
    a('s_waitcnt lgkmcnt(0)')
    if fz: wait_ln(a, LN, 100)
    a(f"""
    s_mov_b32 s{S_STEP}, 0
    s_mov_b32 s{S_MOFF}, {L.MB_M}
    s_mov_b32 s{S_POFF}, {L.MB_P}
    s_lshl_b32 s{S_GOFF}, s{S_ROLE}, 14
    s_lshl_b32 s{S_T0}, s{S_WAVE}, 12
    s_add_u32 s{S_GOFF}, s{S_GOFF}, s{S_T0}
    s_add_u32 s{S_GOFF}, s{S_GOFF}, {L.U}
    s_lshl_b32 s{S_XOFF}, s{S_ROLE}, 12
    s_add_u32 s{S_XOFF}, s{S_XOFF}, {L.VM}
    s_lshr_b32 s{S_STMP}, s{S_ROLE}, 1
    s_add_u32 s{S_STMP}, s{S_STMP}, 16
    s_lshl_b32 s{S_STMP}, s{S_STMP}, 2
    s_add_u32 s{S_STMP}, s{S_STMP}, s{S_WAVE}
    s_lshl_b32 s{S_STMP}, s{S_STMP}, 12
    s_add_u32 s{S_STMP}, s{S_STMP}, {L.STAMP}
    s_waitcnt vmcnt(0)
    """)
    a(f"""
    v_mov_b32 v{V['one']}, 1
    v_mov_b32 v{V['zero']}, 0
    v_mov_b32 v{V['cu']}, 0
    v_and_b32 v{V['ha']}, {120 if cfg['cutrig'] else 24}, v{V['l8']}
    v_lshrrev_b32 v{V['ha']}, 1, v{V['ha']}
    s_lshl_b32 s{S_T0}, s{S_WAVE}, 4
    s_mul_i32 s{S_T0}, s{S_T0}, {0 if cfg['cutrig'] else 1}
    s_and_b32 s{S_T1}, s{S_ROLE}, 6
    s_lshl_b32 s{S_T1}, s{S_T1}, 6
    s_add_u32 s{S_T0}, s{S_T0}, s{S_T1}
    s_add_u32 s{S_T0}, s{S_T0}, 12288
    v_add_u32 v{V['ha']}, s{S_T0}, v{V['ha']}
    s_lshl_b32 s{S_T0}, s{S_ROLE}, 1
    s_add_u32 s{S_T0}, s{S_T0}, s{S_WAVE}
    s_lshl_b32 s{S_T0}, s{S_T0}, 2
    s_add_u32 s{S_T0}, s{S_T0}, {8192 + 7168}
    v_lshlrev_b32 v{V['hw']}, 5, v{V['l8']}
    v_add_u32 v{V['hw']}, s{S_T0}, v{V['hw']}
    s_add_u32 s{S_YD}, s{S_XOFF}, 0x8000000
    v_lshrrev_b32 v{V['hm']}, 1, v{V['l8']}
    v_min_u32 v{V['hm']}, {55*4}, v{V['hm']}
    v_add_u32 v{V['hm']}, 7168, v{V['hm']}
    s_mov_b32 s56, 0
    v_lshrrev_b32 v{V['nw']}, 2, v{V['rw']}
    v_lshrrev_b32 v{V['nr']}, 1, v{V['l8']}
    s_lshl_b32 s{S_MD}, s{S_WAVE}, 11
    s_min_u32 s{S_MD}, s{S_MD}, 5120
    s_mov_b32 s{S_CU}, {L.CNT_U}
    """)
    for k in range(8): a(f"v_mov_b32 v{V['vx']+k}, 0")
    a(f"v_lshrrev_b32 v{V['pmr']}, 1, v{V['rw']}")
    team_mode(a, 104, 105, primed=not fz)
    if cfg['flags']:
        wait_cnt(a, S_CU, 28, 106, primed=not fz)
        a(f's_mov_b32 s{S_CV}, {L.CNT_I}')
        wait_cnt(a, S_CV, 98, 108, primed=not fz)
    for k in range(32): a(f"v_mov_b32 v{V['uf']+k}, 0")

def comb_wave(a, pf, stamps, cfg):
    V = CV; idx = V['idx']; mf = V['mf']; tw = V['tw']; uf = V['uf']; pa = V['pa']
    top = a.newlabel('L_cb_top'); nh0 = a.newlabel('L_nh')
    HT = [10, 11, 166, 167][:cfg['hdepth']]
    def store_vx(base, r):
        return [f"buffer_store_dwordx4 v[{r}:{r+3}], v{V['rw']}, {WSRD}, s{base} offen {cfg['xflags']}",
                f"s_add_u32 s{S_T1}, s{base}, 4096\nbuffer_store_dwordx4 v[{r+4}:{r+7}], v{V['rw']}, {WSRD}, s{S_T1} offen {cfg['xflags']}"]
    lq = Q('lgkmcnt', 15)
    def lread(lam, hf):
        return dsop(f"ds_read_b128 v[{tw+8*(lam%4)+4*hf}:{tw+8*(lam%4)+4*hf+3}], v{V['lw']} offset:{lam*2048+hf*1024}", ('lw', lam))
    def housekeeping_acc(a=a):
        for u in range(8):
            A = V['acc'] + 4*u
            a(f'v_mov_b64 v[{A}:{A+1}], 0\nv_mov_b64 v[{A+2}:{A+3}], 0')
    def housekeeping(a=a, acc=True):
        if acc: housekeeping_acc(a)
        for lam in range(4):
            for hf in range(2): a(lread(lam, hf)(lq))
    uload = lambda k: f"buffer_load_dwordx4 v[{uf+4*k}:{uf+4*k+3}], v{V['l16']}, {WSRD}, s{S_GOFF if k < 4 else S_EOFF} offen offset:{(k%4)*1024} {cfg['xflags']}"
    uorder = [] if cfg['nou'] else [4, 5, 6, 7, 0, 1, 2, 3]
    ue = uorder[:cfg['uearly']]; ul = uorder[cfg['uearly']:]
    housekeeping()
    t = mf
    slow = a.newlabel('L_cms'); back = a.newlabel('L_cmb'); redo = a.newlabel('L_cmr')
    pre = f"""s_add_u32 s{S_EOFF}, s{S_GOFF}, 16384
        s_lshl_b32 s{S_CU}, s{S_STEP}, 7
        s_add_u32 s{S_CU}, s{S_CU}, {L.CNT_U + 128}
        s_add_u32 s{S_T0}, s{S_MOFF}, s{S_MD}
        s_mov_b32 m0, s{S_MD}"""
    a(pre)
    a(f's_branch {top}\n{nh0}:\ns_barrier')
    a.label(top)
    stamp(a, stamps, 0)
    if cfg['cdma']:
        a(f"""
        buffer_load_dwordx4 v{V['l16']}, {WSRD}, s{S_T0} offen sc1 lds
        buffer_load_dwordx4 v{V['l16']}, {WSRD}, s{S_T0} offen offset:1024 sc1 lds
        s_mov_b32 s{S_SAFE}, 0
        """)
        if ue: a('s_barrier')
        for k in ue: a(uload(k))
        a(f's_waitcnt vmcnt({len(ue)}) lgkmcnt(0)\ns_barrier\n{back}:')
        def coldr():
            a(f'{redo}:\ns_barrier\ns_mov_b32 s{S_SAFE}, 1\ns_add_u32 s{S_YD}, s{S_XOFF}, 0x8000000')
            if stamps: a(f's_add_u32 s{40+2*8}, s{40+2*8}, 1')
            if cfg.get('wgd'): a('s_add_u32 s84, s84, 1')
            housekeeping()
            poll_m(a, V)
            a(f's_branch {back}')
        a.cold.append(coldr)
    else:
        a(f"""
        buffer_load_dwordx4 v[{t}:{t+3}], v{pa}, {WSRD}, s{S_MOFF} offen sc1
        buffer_load_dwordx4 v[{t+4}:{t+7}], v{pa}, {WSRD}, s{S_MOFF} offen offset:768 sc1
        """)
        if ue: a('s_barrier')
        for k in ue: a(uload(k))
        a(f"""
        s_waitcnt vmcnt({len(ue)+1})
        ds_write_b128 v{pa}, v[{t}:{t+3}]
        v_max3_u32 v{t+8}, v{t}, v{t+1}, v{t+2}
        s_waitcnt vmcnt({len(ue)})
        ds_write_b128 v{pa}, v[{t+4}:{t+7}] offset:768
        v_max3_u32 v{t+8}, v{t+8}, v{t+3}, v{t+4}
        v_max3_u32 v{t+8}, v{t+8}, v{t+5}, v{t+6}
        v_max_u32 v{t+8}, v{t+8}, v{t+7}
        v_cmp_eq_u32 vcc, -1, v{t+8}
        s_cbranch_vccnz {slow}
        s_waitcnt lgkmcnt(0)
        s_barrier
{back}:
        """)
        def coldm():
            a.label(slow)
            if stamps: a(f's_add_u32 s{40+2*8}, s{40+2*8}, 1')
            poll_m(a, V)
            a(f's_branch {back}')
        a.cold.append(coldm)
    lq.drain()
    stamp(a, stamps, 1)
    mrd = [dsop(f"ds_read_b64_tr_b16 v[{mf+4*b+2*hf}:{mf+4*b+2*hf+1}], v{V['l8']} offset:{LDS_M+b*1024+hf*512}", ('mf', b))
           for b in range(7) for hf in range(2)]
    for x in mrd[:cfg['mpre']]: a(x(lq))
    ms = []; last = {}
    rorder = [(u, b) for b in range(7) for u in range(2)] + [(u, b) for u in range(2, 6) for b in range(7)]
    rb = 0
    for p in range(56):
        if p % 4 == 3:
            lam = p // 4; u = 6 + lam // 7; b = lam % 7
            ms.append((SM(V['acc']+4*u, mf+4*b, vr(tw+8*(lam % 4), 8), idx), [('mf', b), ('lw', lam)]))
        else:
            u, b = rorder[rb]; rb += 1
            ms.append((SM(V['acc']+4*u, mf+4*b, wreg(u*7+b, V['w']), idx), [('mf', b)]))
        last[u] = p
    gp = Gaps(56)
    for k, x in enumerate(mrd[cfg['mpre']:]): gp.put('ds', k, x)
    for lam in range(4, 14):
        g = 4*(lam-4) + 3
        g = gp.put('ds', g, lread(lam, 0)) + 1
        gp.put('ds', g, lread(lam, 1))
    g = 0
    for k in ul: g = gp.put('va', g, uload(k)) + cfg['ustep']
    if cfg['flags']:
        g = gp.put('va', g, f"buffer_load_dword v{V['cu']}, v{V['zero']}, {WSRD}, s{S_CU} offen sc1") + 1
    for x in store_vx(S_YD, V['vx']): g = gp.put('va', g, x) + cfg['ustep']
    assert g - cfg['ustep'] < min(last.values()) + 3
    for k in range(len(HT)-1 if cfg['psl'] is None else 0):
        gp.put('ds', 55 - cfg['hpre'] + 4*k, f"buffer_load_dword v{HT[k]}, v{V['ha']}, {WSRD}, s{S_POFF} offen sc1")
    def post(u):
        A = V['acc'] + 4*u; hl = u >> 1; ctl = u & 1
        return ([f'v_pk_add_f32 v[{A}:{A+1}], v[{A}:{A+1}], v[{A+2}:{A+3}]'] if cfg['cpk'] else [f'v_add_f32 v{A}, v{A}, v{A+2}', f'v_add_f32 v{A+1}, v{A+1}, v{A+3}']) + [
                f"v_cvt_pk_bf16_f32 v{V['vx']+4*ctl+hl}, v{A}, v{A+1}"]
    tail = []; gprev = 0
    for u in sorted(last, key=lambda u: last[u]):
        g = max(last[u] + 3, gprev)
        if g + 4 >= 56: tail += post(u); continue
        for x in post(u): g = gp.put('va', g, x) + 1
        gprev = g
        if u == 0: done0 = g
    if cfg['cdma']:
        A0 = V['acc']; N = 168
        g = gp.put('va', done0, f'v_add_f32 v9, v{A0}, v{A0+1}') + 1
        g = gp.put('ds', g, dsop(f"ds_write_b32 v{V['nw']}, v9 offset:{LDS_NAN}", 'nw')) + 4
        gp.force('ds', g, dswait('nw', 's_barrier'))
        g = gp.put('ds', g+1, dsop(f"ds_read2st64_b32 v[{N}:{N+1}], v{V['nr']} offset0:{LDS_NAN//256} offset1:{LDS_NAN//256+1}")) + 1
        g = gp.put('ds', g, dsop(f"ds_read2st64_b32 v[{N+2}:{N+3}], v{V['nr']} offset0:{LDS_NAN//256+2} offset1:{LDS_NAN//256+3}", 'nr')) + 4
        g = gp.put('va', g, dswait('nr', f'v_add_f32 v{N}, v{N}, v{N+2}')) + 1
        g = gp.put('va', g, f'v_add_f32 v{N+1}, v{N+1}, v{N+3}') + 1
        g = gp.put('va', g, f'v_cmp_u_f32 vcc, v{N}, v{N+1}')
        assert g < 54
    emit_stream(a, ms, gp, lq)
    if cfg['cdma']:
        nb = a.newlabel('L_cnb'); nx = a.newlabel('L_cnx')
        a(f's_cbranch_vccnz {nb};nf\n{nx}:;nf')
        a.cold.append(lambda: a(f'{nb}:\ns_nop 7\ns_cmp_eq_u32 s{S_SAFE}, 0\ns_cbranch_scc1 {redo}\ns_branch {nx}'))
    for x in tail: a(x)
    lastl = a.newlabel('L_cbl')
    a(f's_cmp_ge_u32 s{S_STEP}, 63\ns_cbranch_scc1 {lastl}')
    def coldl():
        a.label(lastl)
        for x in store_vx(S_XOFF, V['vx']): a(x)
        a('s_branch L_exit')
    a.cold.append(coldl)
    stamp(a, stamps, 2)
    A = tw
    a(f's_add_u32 s{S_T0}, s{S_POFF}, 8192\ns_mov_b32 s{S_YD}, s{S_XOFF}')
    if stamps and cfg['sdrain']: a('s_waitcnt vmcnt(0)')
    stamp(a, stamps, 3)
    if cfg['psl'] is None:
        jn = a.newlabel('L_jn')
        a(f's_cmp_lg_u32 s{S_WAVE}, 0\ns_cbranch_scc1 {jn}')
        wait_hint(a, V['ha'], S_POFF, HT, delay=cfg['pdelay'], inner=cfg['hinner'], primed=True)
        a(f'{jn}:\ns_barrier')
    else:
        stamp_flush(a, stamps, 11, mf+24)
        if cfg['psl'] - (cfg['fl'] if stamps else 0) > 0: a(f"s_sleep {cfg['psl'] - (cfg['fl'] if stamps else 0)}")
        if cfg['pdelay']: a(f"s_nop {cfg['pdelay']-1}")
        if cfg['pbar']: a('s_barrier')
    stamp(a, stamps, 6)
    l = a.newlabel('L_pp'); d = a.newlabel('L_ppd'); retry = a.newlabel('L_ppr'); t = 9
    R = tw + 8
    B3 = [vr(uf, 8), vr(uf+8, 8), vr(V['itm'], 8)], [vr(uf+16, 8), vr(uf+24, 8), vr(V['itm']+8, 8)]
    mh = f"""s_mov_b64 exec, 15
        buffer_store_dword v{V['zero']}, v{V['hw']}, {WSRD}, s{S_MOFF} offen {pf}
        s_mov_b64 exec, -1"""
    def issue(p):
        a(f"""
        buffer_load_dwordx4 v[{p}:{p+3}], v{V['pr']}, {WSRD}, s{S_POFF} offen sc1
        buffer_load_dwordx4 v[{p+4}:{p+7}], v{V['pr']}, {WSRD}, s{S_POFF} offen offset:1024 sc1
        buffer_load_dwordx2 v[{p+8}:{p+9}], v{V['pmr']}, {WSRD}, s{S_T0} offen sc1
        """)
    def zero():
        for k in range(4): a(f'v_mov_b64 v[{A+2*k}:{A+2*k+1}], 0')
    def attempt(p, behind, hint_here):
        ex = behind
        a(f's_add_u32 s{S_SPIN}, s{S_SPIN}, 1')
        for k in range(3):
            a(f's_waitcnt vmcnt({2-k+ex})')
            S32 = lambda acc, B: f'v_smfmac_f32_16x16x32_bf16 v[{acc}:{acc+3}], v[{p+8}:{p+9}], {B}, v{idx}'
            a(SM(A, p+4*k, B3[0][k], idx) if k < 2 else S32(A, vr(V['vx'], 4)))
            a(f'v_max_u32 v{t}, v{p}, v{p+2}' if k == 0 else f'v_max3_u32 v{t}, v{t}, v{p+4*k}, v{p+4*k+(2 if k < 2 else 1)}')
            a(SM(A+4, p+4*k, B3[1][k], idx) if k < 2 else S32(A+4, vr(V['vx']+4, 4)))
            if hint_here and k == cfg['mhk']:
                if cfg['mhint'] == 3:
                    a(f"""v_cmp_eq_u32 vcc, -1, v{t}
                    s_cmp_eq_u64 vcc, 0
                    s_cselect_b64 exec, 15, 0
                    buffer_store_dword v{V['zero']}, v{V['hw']}, {WSRD}, s{S_MOFF} offen {pf}
                    s_mov_b64 exec, -1""")
                else: a(mh)
                ex += 1
        a(f'v_cmp_eq_u32 vcc, -1, v{t}')
    a(f's_mov_b32 s{S_SPIN}, 0')
    issue(mf)
    zero()
    housekeeping_acc()
    if cfg['p2']:
        gap = cfg['p2'] - 16
        while gap > 0:
            a(f's_nop {min(gap, 16) - 1}'); gap -= 16
        issue(mf+12)
    if cfg['mhint'] == 0:
        for _ in range(cfg['mhnop']): a('s_nop 3')
        a(mh)
    attempt(mf, (3 if cfg['p2'] else 0) + (cfg['mhint'] == 0), cfg['mhint'] >= 2)
    a(f's_cbranch_vccnz {retry};nf\n{d}:;nf')
    def coldp():
        a(f'{retry}:\ns_nop 7')
        if cfg['p2']:
            a.label(l)
            issue(mf)
            zero()
            attempt(mf+12, 3, cfg['mhint'] == 3)
            a(f's_cbranch_vccz {d}')
            issue(mf+12)
            zero()
            attempt(mf, 3, cfg['mhint'] == 3)
        else:
            a.label(l)
            issue(mf)
            zero()
            attempt(mf, 0, cfg['mhint'] == 3)
        a(f"""
        s_cbranch_vccz {d}
        s_cmp_lt_u32 s{S_SPIN}, s{S_LIM}
        s_cbranch_scc1 {l}
        s_mov_b32 s{S_LIM}, 1
        s_branch {d}
        """)
    a.cold.append(coldp)
    stamp(a, stamps, 4)
    if cfg['mhint'] == 1: a(mh)
    if stamps: a(f's_mov_b32 s{40+2*7}, s{S_SPIN}')
    if cfg.get('wgd'): a(f's_add_u32 s83, s83, s{S_SPIN}')
    if cfg['flags']: a(f"v_readfirstlane_b32 s{S_CV}, v{V['cu']}")
    hiw = a.newlabel('L_cbh'); nh = nh0; ny = a.newlabel('L_cny')
    def chores():
        if cfg['flags']:
            slow2 = a.newlabel('L_us'); back2 = a.newlabel('L_ub')
            a(f's_cmp_lt_u32 s{S_CV}, 28\ns_cbranch_scc1 {slow2}\n{back2}:')
            def coldu():
                a.label(slow2)
                wait_cnt(a, S_CU, 28, 174)
                a(f's_branch {back2}')
            a.cold.append(coldu)
        step_advance(a, 458752)
        a(pre)
        housekeeping(a, False)
    def hi_tail():
        w2 = a.newlabel('L_cw2')
        ld = lambda r: f"buffer_load_dword v{r}, v{V['hm']}, {WSRD}, s{S_T1} offen sc1"
        a(f"""
{hiw}:
        s_add_u32 s{S_T1}, s{S_MOFF}, 8192
        s_cmp_eq_u32 s{S_WAVE}, 2
        s_cbranch_scc1 {w2}
        {ld(HT[0])}
        s_waitcnt lgkmcnt(0)
        {ld(HT[1])}
        s_barrier
        {ld(HT[2])}
        """)
        stamp(a, stamps, 5)
        chores()
        wait_hint(a, V['hm'], S_MOFF, HT, delay=cfg['cdelay'], inner=cfg['hinner'], primed=True)
        a(f's_branch {nh}\n{w2}:\ns_waitcnt lgkmcnt(0)\ns_barrier')
        if cfg['cq']: a(f"s_sleep {cfg['cq']}")
        stamp(a, stamps, 5)
        chores()
        a(f's_branch {nh}')
    a.cold.append(hi_tail)
    a(f"""
    v_pk_add_f32 v[{R}:{R+1}], v[{A}:{A+1}], v[{A+2}:{A+3}]
    v_pk_add_f32 v[{R+2}:{R+3}], v[{A+4}:{A+5}], v[{A+6}:{A+7}]
    ds_write_b128 v{V['rw']}, v[{R}:{R+3}] offset:{LDS_RED}
    s_cmp_ge_u32 s{S_WAVE}, 2
    s_cbranch_scc1 {hiw}
    s_waitcnt lgkmcnt(0)
    s_barrier
    ds_read_b64 v[{R}:{R+1}], v{V['rr']} offset:{LDS_RED}
    ds_read_b64 v[{R+2}:{R+3}], v{V['rr']} offset:{LDS_RED+1024}
    ds_read_b64 v[{R+4}:{R+5}], v{V['rr']} offset:{LDS_RED+2048}
    ds_read_b64 v[{R+6}:{R+7}], v{V['rr']} offset:{LDS_RED+3072}
    s_waitcnt lgkmcnt(2)
    v_pk_add_f32 v[{R}:{R+1}], v[{R}:{R+1}], v[{R+2}:{R+3}]
    s_waitcnt lgkmcnt(0)
    v_pk_add_f32 v[{R+4}:{R+5}], v[{R+4}:{R+5}], v[{R+6}:{R+7}]
    v_pk_add_f32 v[{R}:{R+1}], v[{R}:{R+1}], v[{R+4}:{R+5}]
    v_cvt_pk_bf16_f32 v9, v{R}, v{R+1}
    buffer_store_dword v9, v{V['mw']}, {WSRD}, s{S_MOFF} offen {pf}
    """)
    stamp(a, stamps, 5)
    a(f"""
    s_cmp_lt_u32 s{S_STEP}, 62
    s_cbranch_scc1 {ny}
    s_add_u32 s{S_T0}, s{S_MOFF}, {L.MB_Y - L.MB_M}
    buffer_store_dword v9, v{V['mw']}, {WSRD}, s{S_T0} offen sc1
{ny}:
    """)
    chores()
    a(f's_branch {nh}')
    while a.cold: a.flush_cold()

def helper_cu(a, cfg):
    V = dict(l8=0, pa=1, idx=2, mf=12); LN = 112
    NP = cfg['npf']; D = cfg['pfd']; PER = cfg['pfper']
    a(f'v_mov_b32 v{LN}, v1')
    team_register(a)
    common_addrs(a, V, LN)
    a(f"""
    v_lshlrev_b32 v4, 7, v{LN}
    v_mov_b32 v5, 0
    v_mov_b32 v6, 14
    s_sub_u32 s{S_ROLE}, s{S_ROLE}, 30
    s_lshl_b32 s{S_EOFF}, s{S_ROLE}, 2
    s_add_u32 s{S_EOFF}, s{S_EOFF}, s{S_WAVE}
    s_mov_b32 s{S_STEP}, 0
    s_mov_b32 s{S_MOFF}, {L.MB_M + 8192}
    s_mov_b32 s{S_CV}, {L.DUMMY + 0x200000}
    s_mul_i32 s{S_GOFF}, s{S_EOFF}, 7168
    s_add_u32 s{S_GOFF}, s{S_GOFF}, {L.XN}
    s_mov_b32 s{S_POFF}, 28672
    s_cmp_lt_u32 s{S_EOFF}, 4
    s_cbranch_scc1 H_t
    s_sub_u32 s{S_GOFF}, s{S_EOFF}, 4
    s_mul_i32 s{S_GOFF}, s{S_GOFF}, 6144
    s_add_u32 s{S_GOFF}, s{S_GOFF}, {L.MB_P}
    s_mov_b32 s{S_POFF}, 16384
    s_cmp_lt_u32 s{S_EOFF}, 6
    s_cbranch_scc1 H_t
    s_mov_b32 s{S_GOFF}, {L.MB_M + 8192}
    s_mov_b32 s{S_POFF}, 8192
H_t:
    """)
    def mtouch():
        a(f'buffer_load_dword v7, v4, {WSRD}, s{S_GOFF} offen sc1\ns_add_u32 s{S_GOFF}, s{S_GOFF}, s{S_POFF}')
    if cfg['fused']: wait_ln(a, LN, 100)
    team_mode(a, V['mf'], V['mf']+1)
    a(f's_mov_b32 s{S_LIM}, {SPIN_MAX*4}')
    a(f"""
    s_getpc_b64 s[70:71]
H_pc:
    s_lshl_b32 s{S_T0}, s{S_EOFF}, 12
    v_lshrrev_b32 v10, 1, v4
    s_add_u32 s70, s70, s{S_T0}
    s_addc_u32 s71, s71, 0
    s_add_u32 s70, s70, L_nothelp-H_pc
    s_addc_u32 s71, s71, 0
    s_mov_b32 s72, s{S_GOFF}
    s_mov_b32 s{S_SPIN}, 0
    s_mov_b32 s73, {L.MB_P}
H_warm:
    s_mov_b32 s{S_GOFF}, s72
    global_load_dword v8, v10, s[70:71] sc1
    """)
    for _ in range(D+1): mtouch()
    a(f"""
    buffer_load_dword v9, v5, {WSRD}, s73 offen sc1
    s_add_u32 s{S_SPIN}, s{S_SPIN}, 1
    s_waitcnt vmcnt(0)
    v_cmp_eq_u32 vcc, -1, v9
    s_cbranch_vccz H_warmed
    s_sleep 8
    s_cmp_lt_u32 s{S_SPIN}, s{S_LIM}
    s_cbranch_scc1 H_warm
H_warmed:
    """)
    mul = {2: (128, 8), 3: (86, 8)}[PER]
    for k in range(NP):
        a(f"""
        s_add_u32 s{S_T0}, s{S_EOFF}, {8*k}
        s_min_u32 s{S_T0}, s{S_T0}, {14*PER-1}
        s_mul_i32 s{S_T1}, s{S_T0}, {mul[0]}
        s_lshr_b32 s{S_T1}, s{S_T1}, {mul[1]}
        s_mul_i32 s{S_T1}, s{S_T1}, {4-PER}
        s_add_u32 s{S_T0}, s{S_T0}, s{S_T1}
        s_lshl_b32 s{60+k}, s{S_T0}, 13
        s_add_u32 s{60+k}, s{60+k}, {L.U}
        """)
    def utouch():
        for k in range(NP):
            a(f'buffer_load_dword v{32+k}, v4, {WSRD}, s{60+k} offen sc1\ns_add_u32 s{60+k}, s{60+k}, 458752')
    a(f's_mov_b32 s{S_CU}, {L.CNT_U}')
    for _ in range(D if NP else 0):
        if cfg['flags']: wait_cnt(a, S_CU, 28, 30)
        utouch()
        a(f's_add_u32 s{S_CU}, s{S_CU}, 128')
    t = V['mf']; pa = V['pa']
    sk = a.newlabel('H_sk'); sk2 = a.newlabel('H_sk'); ok = a.newlabel('H_ok')
    a(f"""
H_top:
    s_mov_b32 s{S_SPIN}, 0
H_poll:
    buffer_load_dwordx4 v[{t}:{t+3}], v{pa}, {WSRD}, s{S_MOFF} offen sc1
    buffer_load_dwordx4 v[{t+4}:{t+7}], v{pa}, {WSRD}, s{S_MOFF} offen offset:768 sc1
    buffer_load_dword v30, v5, {WSRD}, s{S_CU} offen sc1
    s_add_u32 s{S_SPIN}, s{S_SPIN}, 1
    s_waitcnt vmcnt(0)
    v_max3_u32 v{t+8}, v{t}, v{t+1}, v{t+2}
    v_max3_u32 v{t+8}, v{t+8}, v{t+3}, v{t+4}
    v_max3_u32 v{t+8}, v{t+8}, v{t+5}, v{t+6}
    v_max_u32 v{t+8}, v{t+8}, v{t+7}
    v_readfirstlane_b32 s{S_T0}, v30
    v_cmp_eq_u32 vcc, -1, v{t+8}
    s_cbranch_vccz {ok}
    s_sleep {cfg['hsleep']}
    s_cmp_lt_u32 s{S_SPIN}, s{S_LIM}
    s_cbranch_scc1 H_poll
    s_mov_b32 s{S_LIM}, 1
{ok}:
    s_cmp_lg_u32 s{S_ROLE}, 0
    s_cbranch_scc1 {sk}
    s_add_u32 s{S_T1}, s{S_MOFF}, {L.MB_Y - L.MB_M}
    buffer_store_dwordx4 v[{t}:{t+3}], v{pa}, {WSRD}, s{S_T1} offen sc1
    buffer_store_dwordx4 v[{t+4}:{t+7}], v{pa}, {WSRD}, s{S_T1} offen offset:768 sc1
{sk}:
    s_cmp_ge_u32 s{S_STEP}, {63 - D}
    s_cbranch_scc1 {sk2}
    """)
    mtouch()
    if NP:
        sk3 = a.newlabel('H_sk'); sk4 = a.newlabel('H_sk')
        if cfg['flags']: a(f's_cmp_lt_u32 s{S_T0}, 28\ns_cbranch_scc1 {sk3}')
        utouch()
        a(f's_branch {sk4}\n{sk3}:')
        for k in range(NP): a(f's_add_u32 s{60+k}, s{60+k}, 458752')
        a(f'{sk4}:\ns_add_u32 s{S_CU}, s{S_CU}, 128')
    a(f"""
{sk2}:
    s_add_u32 s{S_STEP}, s{S_STEP}, 1
    s_add_u32 s{S_MOFF}, s{S_MOFF}, 8192
    s_cmp_lt_u32 s{S_STEP}, 62
    s_cbranch_scc1 H_top
    s_branch L_exit
    """)

DEFAULT_CFG = dict(ba=[35, 35, 34, 34], bak=3, bb=[53, 53, 0, 0], xflags='', ssleep=[2, 2, 2, 0], csleep=0, psleep=0, touch=1,
                   nou=0, nox=0, cflush=1, flags=0, ustep=3, hsleep=2, mdelay=18, pdelay=0, phint=9, lead=[4, 1], pnop=[0, 8], b5nop=2, npf=0, pfper=2, hdepth=4, hpre=10, psl=3, fl=1, mhk=0, px=9, quiet=7, cq=1, al=None, prio=[0, 0, 0, 0], wfl='', fused=0, cpk=0, xin=0, xstep=3, xs=2, xw=[(0, 9), (9, 18), (18, 28), (0, 0)], pbar=1, scap=None, ccap=None, m2=0, mdma=1, m2d=0, msamp=0, cdma=1, m2w=10, p2=32, cutrig=1, hinner=2, uearly=4, mhint=1, mhnop=0, sdrain=0, pfd=3, mpre=6, chint=1, cdelay=20)

def team_body(a, stamps=False, cfg=None):
    cfg = dict(DEFAULT_CFG, **(cfg or {}))
    a(f's_cmp_lt_u32 s{S_ROLE}, 30\ns_cbranch_scc1 L_nothelp')
    helper_cu(a, cfg)
    a.label('L_nothelp')
    a(f's_cmp_ge_u32 s{S_ROLE}, 16\ns_cbranch_scc1 L_comb')
    score_setup(a, stamps, cfg)
    for fast in (1, 0):
        a(f's_cmp_lg_u32 s{S_FAST}, {fast}\ns_cbranch_scc1 L_sc_next{fast}')
        for w in range(4):
            if w < 3:
                a(f's_cmp_lg_u32 s{S_WAVE}, {w}\ns_cbranch_scc1 L_sc{fast}_n{w}')
            score_wave(a, w, '' if fast else 'sc1', stamps, cfg)
            if w < 3: a.label(f'L_sc{fast}_n{w}')
        a.label(f'L_sc_next{fast}')
    a('s_branch L_exit')
    a.label('L_comb')
    comb_setup(a, stamps, cfg)
    for fast in (1, 0):
        a(f's_cmp_lg_u32 s{S_FAST}, {fast}\ns_cbranch_scc1 L_cb_next{fast}')
        comb_wave(a, '' if fast else 'sc1', stamps, cfg)
        a.label(f'L_cb_next{fast}')
    a('s_branch L_exit')
```

```python
from build import *
import team, prep, gemm, attn, ffn
HEADER = open('sequential_preLN__memory_aug_recurrent_mem_tr__dense_activation_relu__prompt.s.ref').read().split('; Override launch')[0]
def relabel(fn, tag):
    def g(a):
        fn(a)
        import re
        for i, (k, x) in enumerate(a.items):
            if k == 'l' and x.startswith(('L_exit', 'L_role')): a.items[i] = ('l', x + tag)
            elif k == 'i' and ('L_exit' in x.text or 'L_role' in x.text):
                x.text = re.sub(r'(L_exit|L_role\w+)', lambda m: m.group(1) + tag, x.text)
    return g
EV = '''s_cmp_ge_u32 s92, 30
s_cbranch_scc1 L_exit2
            v_mov_b32 v10, s86
            v_mov_b32 v11, s85
            v_mov_b32 v12, s84
            v_mov_b32 v13, s83
            buffer_atomic_add v10, v0, s[12:15], 0 offen offset:180
            buffer_atomic_add v11, v0, s[12:15], 0 offen offset:184
            buffer_atomic_add v12, v0, s[12:15], 0 offen offset:188
            buffer_atomic_add v13, v0, s[12:15], 0 offen offset:192
'''
def v2(tcfg=None, stamps=False, acfg=None):
    tcfg = dict(tcfg or {}); ng = tcfg.pop('ng', 1); pcfg = tcfg.pop('pcfg', {}); fused = tcfg.pop('one', 0); tcfg_ev = tcfg.pop('ev', 0); scat = tcfg.pop('scatter', 0); gcfg = tcfg.pop('gcfg', {}); fz = dict(fused=1, wfl='sc1') if fused else {}; fcfg = tcfg.pop('fcfg', {}); acfg = dict(acfg or {}, **tcfg.pop('acfg', {}))
    def km(a):
        if stamps: a('s_memrealtime s[90:91]')
        if fused:
            prep.prep_kernel(a, t0=bool(stamps), fused=True, **pcfg)
            team.prologue_fused(a)
        else:
            team.prologue(a, stamps, scatter=scat)
        R = team.S_ROLE
        if stamps: a(f's_mov_b32 s92, s{R}\ns_memrealtime s[94:95]\ns_mov_b64 s[96:97], 0\ns_mov_b64 s[88:89], 0\ns_mov_b64 s[84:85], 0\ns_mov_b32 s86, 0\ns_mov_b32 s83, 0')
        a(f"""
        s_cmp_ge_u32 s{R}, 32
        s_cbranch_scc1 M_worker
        """)
        team.team_body(a, stamps is True, dict(dict(xflags='sc1', flags=1, wgd=bool(stamps), **fz), **(tcfg or {})))
        a(f"""
M_worker:
        """)
        if fused: team.wait_ln(a, 1, 10)
        a(f"""
        s_lshr_b32 s26, s{R}, 5
        s_sub_u32 s26, s26, 1
        s_and_b32 s27, s{R}, 31
        s_cmp_ge_u32 s27, 30
        s_cbranch_scc1 M_attn
        s_cmp_ge_u32 s27, 16
        s_cbranch_scc1 M_ffn
        s_cmp_ge_u32 s27, {8*ng}
        s_cbranch_scc1 M_attn
        s_mul_i32 s{R}, s26, {8*ng}
        s_add_u32 s{R}, s{R}, s27
        """)
        gemm.gemm_role(a, dict(dict(xflags='sc1', ng=ng, **fz), **gcfg))
        if stamps: a('s_memrealtime s[96:97]')
        a.label('M_attn')
        attn.attn_role(a, dict(dict(xflags='sc1', flags=1, asleep=16, ticket=1, diag=bool(stamps), **fz), **(acfg or {})))
        a(f"""
M_ffn:
        s_mov_b32 s{ffn.F_Q}, s26
        s_sub_u32 s{ffn.F_J}, s27, 16
        """)
        ffn.ffn_role(a, dict(dict(xflags='sc1', flags=1, diag=bool(stamps)), **fcfg), 7)
        a.label('L_exit')
        if stamps:
            a(f"""
            s_memrealtime s[98:99]
            s_lshl_b32 s93, s92, 5
            s_add_u32 s93, s93, {L.STAMP + 0x80000}
            s_mov_b64 exec, 1
            s_waitcnt lgkmcnt(0)
            v_mov_b32 v0, 0
            v_mov_b32 v4, s90
            v_mov_b32 v5, s94
            v_mov_b32 v6, s96
            v_mov_b32 v7, s98
            buffer_store_dwordx4 v[4:7], v0, s[8:11], s93 offen
            s_getreg_b32 s87, hwreg(HW_REG_HW_ID)
            v_mov_b32 v9, s87
            buffer_store_dword v9, v0, s[8:11], s93 offen offset:16
            buffer_atomic_umax v7, v0, s[12:15], 0 offen offset:172
            {EV if tcfg_ev else ''}
            s_cmp_lg_u32 s92, 0
            s_cbranch_scc1 L_exit2
            s_mov_b32 s93, {L.STAMP + 0xf0000}
            buffer_load_dword v8, v0, s[8:11], s93 offen sc1
            v_mov_b32 v5, s88
            buffer_store_dword v4, v0, s[12:15], 0 offen offset:160
            buffer_store_dword v5, v0, s[12:15], 0 offen offset:164
            buffer_store_dword v7, v0, s[12:15], 0 offen offset:168
            s_waitcnt vmcnt(0)
            buffer_store_dword v8, v0, s[12:15], 0 offen offset:176
L_exit2:
            """)
        a.label('L_end')
        a('s_endpgm')
    if fused: return assemble([('main_kernel', km, 256, 256, 163840)], HEADER)
    return assemble([('prep_kernel', lambda a: prep.prep_kernel(a, t0=bool(stamps), **pcfg), 256, 256, 163840), ('main_kernel', km, 256, 256, 163840)], HEADER)
if __name__ == '__main__':
    args = [eval(x) for x in sys.argv[3:]]
    open(sys.argv[2], 'w').write(globals()[sys.argv[1]](*args))
```

```python
from asmlib import *
import layout as L
from team import *
from attn import dma_run
import prep

F_J = 36; F_Q = 37; F_S0 = 38; F_S1 = 39; F_C = 40; F_G = 41; F_W = 44; F_OUT = 48
CT_PAIRS = [(7*w+2*i, 7*w+2*i+1) for w in range(4) for i in range(3)] + [(6, 13), (20, 27)]
W1S = 272
FL_RED = 0
FL_HN = 8192

def ffn_role(a, cfg, ngroups):
    xfl = cfg['xflags']
    LN, l16, l8 = 1, 2, 3
    def rt(k):
        if cfg.get('diag'): a(f's_memrealtime s[{60+2*k}:{61+2*k}]')
    a(f"""
    v_mbcnt_lo_u32_b32 v{LN}, -1, 0
    v_mbcnt_hi_u32_b32 v{LN}, -1, v{LN}
    s_load_dwordx4 s[4:7], s[0:1], 64
    s_load_dwordx2 s[52:53], s[0:1], 80
    s_mov_b32 s{S_LIM}, {SPIN_MAX*8}
    v_lshlrev_b32 v{l16}, 4, v{LN}
    v_lshlrev_b32 v{l8}, 3, v{LN}
    s_lshl_b32 s{S_T0}, s{S_WAVE}, 6
    v_add_u32 v0, s{S_T0}, v{LN}
    s_waitcnt lgkmcnt(0)
    """)
    a(f"""
    v_mov_b32 v12, -1
    v_mov_b32 v13, -1
    v_mov_b32 v14, -1
    v_mov_b32 v15, -1
    s_mul_i32 s{F_C}, s{F_Q}, 14
    s_add_u32 s{F_C}, s{F_C}, s{F_J}
    s_lshl_b32 s{F_C}, s{F_C}, 2
    s_add_u32 s{F_C}, s{F_C}, s{S_WAVE}
    s_lshl_b32 s{F_C}, s{F_C}, 10
    s_add_u32 s{F_C}, s{F_C}, {L.VM}
F_fill:
    buffer_store_dwordx4 v[12:15], v{l16}, {WSRD}, s{F_C} offen sc1
    s_add_u32 s{F_C}, s{F_C}, {ngroups*56*1024}
    s_cmp_lt_u32 s{F_C}, {L.VM + 64*114688}
    s_cbranch_scc1 F_fill
    s_mov_b32 s{S_T0}, {L.CNT_I}
    v_mov_b32 v8, 0
    v_mov_b32 v9, 1
    s_cmp_lg_u32 s{S_WAVE}, 0
    s_waitcnt vmcnt(0)
    s_barrier
    s_cbranch_scc1 F_fill1
    s_mov_b64 exec, 1
    buffer_atomic_add v9, v8, {WSRD}, s{S_T0} offen
    s_mov_b64 exec, -1
F_fill1:
    """)
    def fill2():
        a(f"""
        s_mov_b32 s{F_S0}, {L.MB_Y + 8192}
        s_mov_b32 s{S_SPIN}, 0
F_go:
        buffer_load_dword v10, v8, {WSRD}, s{F_S0} offen sc1
        s_add_u32 s{S_SPIN}, s{S_SPIN}, 1
        s_waitcnt vmcnt(0)
        v_cmp_eq_u32 vcc, -1, v10
        s_cbranch_vccz F_god
        s_sleep 16
        s_cmp_lt_u32 s{S_SPIN}, s{S_LIM}
        s_cbranch_scc1 F_go
F_god:
        s_lshl_b32 s{F_S0}, s{F_J}, 2
        s_add_u32 s{F_S0}, s{F_S0}, s{S_WAVE}
        s_lshl_b32 s{F_S0}, s{F_S0}, 10
        s_mul_i32 s{S_T0}, s{F_Q}, 57344
        s_add_u32 s{F_S0}, s{F_S0}, s{S_T0}
        s_add_u32 s{F_S0}, s{F_S0}, {L.HID}
        s_mul_i32 s{F_S1}, s{F_Q}, 14336
        s_lshl_b32 s{S_T0}, s{F_J}, 10
        s_add_u32 s{F_S1}, s{F_S1}, s{S_T0}
        s_cmp_eq_u32 s{S_WAVE}, 0
        s_cselect_b32 s{S_T0}, {L.HN - L.HB}, 0
        s_add_u32 s{F_S1}, s{F_S1}, s{S_T0}
        s_add_u32 s{F_S1}, s{F_S1}, {L.HB}
        s_mov_b32 s{S_T1}, s{F_Q}
F_fill2:
        buffer_store_dwordx4 v[12:15], v{l16}, {WSRD}, s{F_S0} offen sc1
        s_cmp_ge_u32 s{S_WAVE}, 2
        s_cbranch_scc1 F_fill3
        buffer_store_dwordx4 v[12:15], v{l16}, {WSRD}, s{F_S1} offen sc1
F_fill3:
        s_add_u32 s{F_S0}, s{F_S0}, {ngroups*57344}
        s_add_u32 s{F_S1}, s{F_S1}, {ngroups*14336}
        s_add_u32 s{S_T1}, s{S_T1}, {ngroups}
        s_cmp_lt_u32 s{S_T1}, 128
        s_cbranch_scc1 F_fill2
        s_add_u32 s{S_T1}, s{F_Q}, 1
        s_cmp_eq_u32 s{S_XCC}, s{S_T1}
        s_cselect_b32 s{S_T1}, 1, 0x10001
        s_lshl_b32 s{F_G}, s{F_Q}, 7
        s_add_u32 s{F_G}, s{F_G}, {L.CNT_G}
        s_mov_b32 s{S_T0}, {L.CNT_I2}
        v_mov_b32 v11, 1
        v_mov_b32 v10, s{S_T1}
        s_cmp_lg_u32 s{S_WAVE}, 0
        s_waitcnt vmcnt(0)
        s_barrier
        s_cbranch_scc1 F_fill4
        s_mov_b64 exec, 1
        buffer_atomic_add v11, v8, {WSRD}, s{S_T0} offen
        buffer_atomic_add v10, v8, {WSRD}, s{F_G} offen
        s_mov_b64 exec, -1
F_fill4:
        """)
    prep.srd(a, F_W, 4, 448*3584)
    prep.srd(a, F_OUT, 52, 2048*896)
    a(f"""
    v_lshrrev_b32 v4, 4, v0
    v_and_b32 v5, 15, v0
    v_mul_u32_u24 v6, 3584, v4
    v_lshl_add_u32 v6, v5, 4, v6
    v_mul_u32_u24 v7, {W1S}, v4
    v_lshl_add_u32 v7, v5, 4, v7
    v_add_u32 v9, {14*16*W1S}, v7
    s_lshl_b32 s{F_S0}, s{F_J}, 8
    """)
    for k in range(28):
        a(f'buffer_load_dwordx4 v[{16+4*k}:{16+4*k+3}], v6, s[{F_W}:{F_W+3}], s{F_S0} offen\ns_add_u32 s{F_S0}, s{F_S0}, {16*3584}')
    prep.srd(a, F_W, 6, 1792*896)
    a(f"""
    v_lshrrev_b32 v4, 2, v0
    v_and_b32 v5, 3, v0
    v_mul_u32_u24 v6, 896, v4
    v_lshl_add_u32 v6, v5, 4, v6
    v_lshlrev_b32 v8, 5, v4
    v_and_b32 v5, 1, v0
    v_lshl_add_u32 v8, v5, 4, v8
    v_bfe_u32 v5, v0, 1, 1
    v_mul_u32_u24 v5, 57344, v5
    v_add_u32 v8, v8, v5
    s_lshl_b32 s{F_S0}, s{F_J}, 6
    """)
    for k in range(28):
        a(f'buffer_load_dwordx4 v[{128+4*k}:{128+4*k+3}], v6, s[{F_W}:{F_W+3}], s{F_S0} offen\ns_add_u32 s{F_S0}, s{F_S0}, {64*896}')
    for k in range(28):
        a(f's_waitcnt vmcnt({55-k})\nds_write_b128 v{7 if k < 14 else 9}, v[{16+4*k}:{16+4*k+3}] offset:{(k%14)*16*W1S}')
    a(f"""
    v_lshrrev_b32 v4, 2, v{LN}
    v_mul_u32_u24 v4, {W1S}, v4
    v_and_b32 v5, 3, v{LN}
    v_lshl_add_u32 v4, v5, 3, v4
    s_lshl_b32 s{S_T0}, s{S_WAVE}, 6
    v_add_u32 v4, s{S_T0}, v4
    v_add_u32 v10, {14*16*W1S}, v4
    s_mul_i32 s{S_T0}, s{S_WAVE}, 14336
    v_add_u32 v5, s{S_T0}, v{l8}
    v_add_u32 v11, 57344, v5
    s_waitcnt lgkmcnt(0)
    s_barrier
    """)
    W1 = lambda t, kb: (t*14+kb)*4
    W2 = lambda t, kb: 112 + (t*14+kb)*4
    for t in range(2):
        for kb in range(14):
            for hf in range(2):
                r = W1(t, kb) + 2*hf; ct = CT_PAIRS[kb][hf]
                a(f'ds_read_b64_tr_b16 a[{r}:{r+1}], v{4 if ct < 14 else 10} offset:{(ct%14)*16*W1S + t*32}')
    a('s_waitcnt lgkmcnt(0)\ns_barrier')
    for k in range(28):
        a(f's_waitcnt vmcnt({27-k})\nds_write_b128 v8, v[{128+4*k}:{128+4*k+3}] offset:{k*2048}')
    a('s_waitcnt lgkmcnt(0)\ns_barrier')
    for t in range(2):
        for kb in range(14):
            for hf in range(2):
                r = W2(t, kb) + 2*hf
                a(f'ds_read_b64_tr_b16 a[{r}:{r+1}], v{5 if t == 0 else 11} offset:{kb*1024+hf*512}')
    a(f"""
    v_and_b32 v4, 15, v{LN}
    v_mul_u32_u24 v4, 896, v4
    v_lshrrev_b32 v5, 4, v{LN}
    v_lshl_add_u32 v4, v5, 3, v4
    s_lshl_b32 s{S_T0}, s{S_WAVE}, 11
    v_add_u32 v5, s{S_T0}, v{l16}
    s_and_b32 s{S_T0}, s{S_WAVE}, 1
    s_lshl_b32 s{S_T0}, s{S_T0}, 10
    v_add_u32 v6, s{S_T0}, v{l16}
    v_mov_b32 v8, 0
    v_min_u32 v7, 13, v{LN}
    v_lshlrev_b32 v7, 10, v7
    s_lshl_b32 s{S_T0}, s{S_WAVE}, 12
    s_min_u32 s{S_T0}, s{S_T0}, 10240
    v_add_u32 v9, s{S_T0}, v{l16}
    s_waitcnt lgkmcnt(0)
    """)
    fill2()
    a(f"""
    s_mov_b32 s{S_SPIN}, 0
F_mode:
    buffer_load_dword v10, v8, {WSRD}, s{F_G} offen sc1
    s_add_u32 s{S_SPIN}, s{S_SPIN}, 1
    s_waitcnt vmcnt(0)
    v_readfirstlane_b32 s{S_T0}, v10
    s_and_b32 s{S_T1}, s{S_T0}, 0xffff
    s_cmp_ge_u32 s{S_T1}, 14
    s_cbranch_scc1 F_moded
    s_sleep 4
    s_cmp_lt_u32 s{S_SPIN}, s{S_LIM}
    s_cbranch_scc1 F_mode
    s_mov_b32 s{S_T0}, 0x10000
F_moded:
    s_lshr_b32 s{S_FAST}, s{S_T0}, 16
F_top:
    """)
    B = 16; AC = 128
    a(f"""
    s_mul_i32 s{F_S0}, s{F_Q}, 14336
    s_lshl_b32 s{F_C}, s{F_J}, 1
    s_and_b32 s{S_T0}, s{S_WAVE}, 1
    s_add_u32 s{F_C}, s{F_C}, s{S_T0}
    s_lshl_b32 s{F_C}, s{F_C}, 9
    s_add_u32 s{F_C}, s{F_C}, s{F_S0}
    s_add_u32 s{F_C}, s{F_C}, {L.HB}
    s_add_u32 s{F_S0}, s{F_S0}, {L.HN}
    s_mov_b32 s{S_SPIN}, 0
F_hn:
    """)
    for k in range(4): a(f'buffer_load_dwordx4 v[{B+4*k}:{B+4*k+3}], v9, {WSRD}, s{F_S0} offen offset:{k*1024} sc1')
    a(f's_add_u32 s{S_SPIN}, s{S_SPIN}, 1')
    for k in range(4):
        a(f's_waitcnt vmcnt({3-k})\nds_write_b128 v9, v[{B+4*k}:{B+4*k+3}] offset:{FL_HN+k*1024}')
        a(f'v_max_u32 v11, v{B}, v{B+2}' if k == 0 else f'v_max3_u32 v11, v11, v{B+4*k}, v{B+4*k+2}')
    a(f"""
    v_cmp_eq_u32 vcc, -1, v11
    s_cbranch_vccz F_hnd
    s_sleep {cfg.get('fsleep', 1)}
    s_cmp_lt_u32 s{S_SPIN}, s{S_LIM}
    s_cbranch_scc1 F_hn
    s_mov_b32 s{S_LIM}, 1
F_hnd:
    s_waitcnt lgkmcnt(0)
    s_barrier
    """)
    rt(0)
    for kb in range(14):
        a(f'ds_read_b128 v[{B+4*kb}:{B+4*kb+3}], v{l16} offset:{FL_HN+kb*1024}')
    for kb in range(14):
        a(f's_waitcnt lgkmcnt({13-kb})')
        for t in range(2):
            c = AC + 4*t
            a(f'v_mfma_f32_16x16x32_bf16 v[{c}:{c+3}], a[{W1(t,kb)}:{W1(t,kb)+3}], v[{B+4*kb}:{B+4*kb+3}], ' + ('0' if kb == 0 else f'v[{c}:{c+3}]'))
    a(f"""
    s_mul_i32 s{F_S1}, s{F_Q}, 57344
    s_add_u32 s{F_S1}, s{F_S1}, {L.HID}
    s_lshl_b32 s{S_T0}, s{F_J}, 2
    s_add_u32 s{S_T0}, s{S_T0}, s{S_WAVE}
    s_lshl_b32 s{S_T0}, s{S_T0}, 10
    s_add_u32 s{F_S0}, s{F_S1}, s{S_T0}
    s_mul_i32 s{S_T0}, s{S_WAVE}, 14336
    s_add_u32 s{F_S1}, s{F_S1}, s{S_T0}
    s_cmp_lt_u32 s{F_Q}, {cfg.get('qfast', 114)}
    s_cselect_b32 s{S_T0}, 1, s{S_FAST}
    s_cmp_lg_u32 s{S_T0}, 0
    """)
    for k in range(8): a(f'v_max_f32 v{AC+k}, 0, v{AC+k}')
    for k in range(4): a(f'v_cvt_pk_bf16_f32 v{AC+8+k}, v{AC+2*k}, v{AC+2*k+1}')
    a(f"""
    s_cbranch_scc1 F_st1
    buffer_store_dwordx4 v[{AC+8}:{AC+11}], v{l16}, {WSRD}, s{F_S0} offen
    s_branch F_st2
F_st1:
    buffer_store_dwordx4 v[{AC+8}:{AC+11}], v{l16}, {WSRD}, s{F_S0} offen sc1
F_st2:
    buffer_load_dwordx2 v[12:13], v{l8}, {WSRD}, s{F_C} offen sc1
    """)
    rt(1)
    wait_hint(a, 7, F_S1, [140, 141, 142], gap=14, inner=10)
    rt(2)
    a(f's_mov_b32 s{S_SPIN}, 0\nF_hid:\ns_mov_b32 s{F_S0}, s{F_S1}\ns_add_u32 s{S_SPIN}, s{S_SPIN}, 1')
    load_1k_run(a, [vr(B+4*k, 4) for k in range(14)], l16, F_S0, 'sc1')
    for kb in range(14):
        a(f's_waitcnt vmcnt({13-kb})')
        for t in range(2):
            c = AC + 4*t; b = B + 4*kb
            a(f'v_mfma_f32_16x16x32_bf16 v[{c}:{c+3}], a[{W2(t,kb)}:{W2(t,kb)+3}], v[{b}:{b+3}], ' + ('0' if kb == 0 else f'v[{c}:{c+3}]'))
        a(f'v_max3_u32 v11, v12, v13, v{B}' if kb == 0 else f'v_max_u32 v11, v11, v{B+4*kb}')
    a(f"""
    v_cmp_eq_u32 vcc, -1, v11
    s_cbranch_vccz F_hidd
    buffer_load_dwordx2 v[12:13], v{l8}, {WSRD}, s{F_C} offen sc1
    s_cmp_lt_u32 s{S_SPIN}, s{S_LIM}
    s_cbranch_scc1 F_hid
    s_mov_b32 s{S_LIM}, 1
    s_waitcnt vmcnt(0)
F_hidd:
    """)
    rt(3)
    fin = a.newlabel('F_fin')
    R = AC + 8
    a(f"""
    ds_write_b128 v5, v[{AC}:{AC+3}] offset:{FL_RED}
    ds_write_b128 v5, v[{AC+4}:{AC+7}] offset:{FL_RED+1024}
    s_cmp_ge_u32 s{S_WAVE}, 2
    s_waitcnt lgkmcnt(0)
    s_barrier
    s_cbranch_scc1 {fin}
    ds_read_b128 v[{R}:{R+3}], v6 offset:{FL_RED}
    ds_read_b128 v[{R+4}:{R+7}], v6 offset:{FL_RED+2048}
    ds_read_b128 v[{R+8}:{R+11}], v6 offset:{FL_RED+4096}
    ds_read_b128 v[{R+12}:{R+15}], v6 offset:{FL_RED+6144}
    s_mul_i32 s{F_S0}, s{F_Q}, {16*896}
    s_lshl_b32 s{S_T0}, s{F_J}, 1
    s_add_u32 s{S_T0}, s{S_T0}, s{S_WAVE}
    s_lshl_b32 s{S_T0}, s{S_T0}, 5
    s_add_u32 s{F_S0}, s{F_S0}, s{S_T0}
    v_lshlrev_b32 v{AC}, 16, v12
    v_and_b32 v{AC+1}, 0xffff0000, v12
    v_lshlrev_b32 v{AC+2}, 16, v13
    v_and_b32 v{AC+3}, 0xffff0000, v13
    s_waitcnt lgkmcnt(0)
    """)
    for k in range(2):
        r = R + 2*k
        a(f"""
        v_pk_add_f32 v[{r}:{r+1}], v[{r}:{r+1}], v[{r+4}:{r+5}]
        v_pk_add_f32 v[{r+8}:{r+9}], v[{r+8}:{r+9}], v[{r+12}:{r+13}]
        v_pk_add_f32 v[{r}:{r+1}], v[{r}:{r+1}], v[{r+8}:{r+9}]
        v_cvt_pk_bf16_f32 v{r}, v{r}, v{r+1}
        v_and_b32 v{r+1}, 0xffff0000, v{r}
        v_lshlrev_b32 v{r}, 16, v{r}
        v_pk_add_f32 v[{r}:{r+1}], v[{r}:{r+1}], v[{AC+2*k}:{AC+2*k+1}]
        v_cvt_pk_bf16_f32 v{14+k}, v{r}, v{r+1}
        """)
    a(f"""
    buffer_store_dwordx2 v[14:15], v4, s[{F_OUT}:{F_OUT+3}], s{F_S0} offen {cfg.get('ofl', '')}
{fin}:
    """)
    if cfg.get('diag'):
        rt(4)
        a(f's_waitcnt lgkmcnt(0)\ns_mov_b32 s70, s{S_SPIN}\ns_lshl_b32 s{F_S0}, s{F_Q}, 4\ns_add_u32 s{F_S0}, s{F_S0}, s{F_J}\ns_lshl_b32 s{F_S0}, s{F_S0}, 2\ns_add_u32 s{F_S0}, s{F_S0}, s{S_WAVE}\ns_lshl_b32 s{F_S0}, s{F_S0}, 5\ns_add_u32 s{F_S0}, s{F_S0}, {L.STAMP + 0xa0000}')
        for k in range(6): a(f'v_writelane_b32 v150, s{60+2*k}, {k}')
        a(f"v_lshrrev_b32 v151, 1, v{l8}\ns_mov_b64 exec, 63\nbuffer_store_dword v150, v151, {WSRD}, s{F_S0} offen\ns_mov_b64 exec, -1")
    a(f"""
    s_add_u32 s{F_Q}, s{F_Q}, {ngroups}
    s_cmp_lt_u32 s{F_Q}, 128
    s_cbranch_scc1 F_top
    """)
```

```python
from build import *
import team, prep, gemm, attn, ffn
HEADER = open('sequential_preLN__memory_aug_recurrent_mem_tr__dense_activation_relu__prompt.s.ref').read().split('; Override launch')[0]
def relabel(fn, tag):
    def g(a):
        fn(a)
        import re
        for i, (k, x) in enumerate(a.items):
            if k == 'l' and x.startswith(('L_exit', 'L_role')): a.items[i] = ('l', x + tag)
            elif k == 'i' and ('L_exit' in x.text or 'L_role' in x.text):
                x.text = re.sub(r'(L_exit|L_role\w+)', lambda m: m.group(1) + tag, x.text)
    return g
EV = '''s_cmp_ge_u32 s92, 30
s_cbranch_scc1 L_exit2
            v_mov_b32 v10, s86
            v_mov_b32 v11, s85
            v_mov_b32 v12, s84
            v_mov_b32 v13, s83
            buffer_atomic_add v10, v0, s[12:15], 0 offen offset:180
            buffer_atomic_add v11, v0, s[12:15], 0 offen offset:184
            buffer_atomic_add v12, v0, s[12:15], 0 offen offset:188
            buffer_atomic_add v13, v0, s[12:15], 0 offen offset:192
'''
PAD = """v_readfirstlane_b32 s90, v{r}
s_mov_b32 s91, 0
L_pad:
s_memrealtime s[94:95]
s_add_u32 s91, s91, 1
s_waitcnt lgkmcnt(0)
s_sub_u32 s94, s94, s90
s_cmp_ge_u32 s94, {t}
s_cbranch_scc1 L_exit2
s_cmp_lt_u32 s91, 100000
s_cbranch_scc1 L_pad"""
def v2(tcfg=None, stamps=False, acfg=None):
    tcfg = dict(tcfg or {}); ng = tcfg.pop('ng', 1); pcfg = tcfg.pop('pcfg', {}); fused = tcfg.pop('one', 0); tcfg_ev = tcfg.pop('ev', 0); scat = tcfg.pop('scatter', 0); pad = tcfg.pop('pad', 0); mcode = tcfg.pop('mcode', 1); gcfg = tcfg.pop('gcfg', {}); fz = dict(fused=1, wfl='sc1') if fused else {}; fcfg = tcfg.pop('fcfg', {}); acfg = dict(acfg or {}, **tcfg.pop('acfg', {}))
    def km(a):
        if stamps: a('s_memrealtime s[90:91]')
        if fused:
            prep.prep_kernel(a, t0=bool(stamps), fused=True, **pcfg)
            team.prologue_fused(a)
        else:
            team.prologue(a, stamps, scatter=scat, code=mcode)
        R = team.S_ROLE
        if stamps: a(f's_mov_b32 s92, s{R}\ns_memrealtime s[94:95]\ns_mov_b64 s[96:97], 0\ns_mov_b64 s[88:89], 0\ns_mov_b64 s[84:85], 0\ns_mov_b32 s86, 0\ns_mov_b32 s83, 0')
        a(f"""
        s_cmp_ge_u32 s{R}, 32
        s_cbranch_scc1 M_worker
        """)
        team.team_body(a, stamps is True, dict(dict(xflags='sc1', flags=1, wgd=bool(stamps), **fz), **(tcfg or {})))
        a(f"""
M_worker:
        """)
        if fused: team.wait_ln(a, 1, 10)
        a(f"""
        s_lshr_b32 s26, s{R}, 5
        s_sub_u32 s26, s26, 1
        s_and_b32 s27, s{R}, 31
        s_cmp_ge_u32 s27, 30
        s_cbranch_scc1 M_attn
        s_cmp_ge_u32 s27, 16
        s_cbranch_scc1 M_ffn
        s_cmp_ge_u32 s27, {8*ng}
        s_cbranch_scc1 M_attn
        s_mul_i32 s{R}, s26, {8*ng}
        s_add_u32 s{R}, s{R}, s27
        """)
        gemm.gemm_role(a, dict(dict(xflags='sc1', ng=ng, **fz), **gcfg))
        if stamps: a('s_memrealtime s[96:97]')
        a.label('M_attn')
        attn.attn_role(a, dict(dict(xflags='sc1', flags=1, asleep=16, ticket=1, diag=bool(stamps), **fz), **(acfg or {})))
        a(f"""
M_ffn:
        s_mov_b32 s{ffn.F_Q}, s26
        s_sub_u32 s{ffn.F_J}, s27, 16
        """)
        ffn.ffn_role(a, dict(dict(xflags='sc1', flags=1, diag=bool(stamps)), **fcfg), 7)
        a.label('L_exit')
        if stamps:
            a(f"""
            s_memrealtime s[98:99]
            s_lshl_b32 s93, s92, 5
            s_add_u32 s93, s93, {L.STAMP + 0x80000}
            s_mov_b64 exec, 1
            s_waitcnt lgkmcnt(0)
            v_mov_b32 v0, 0
            v_mov_b32 v4, s90
            v_mov_b32 v5, s94
            v_mov_b32 v6, s96
            v_mov_b32 v7, s98
            buffer_store_dwordx4 v[4:7], v0, s[8:11], s93 offen
            s_getreg_b32 s87, hwreg(HW_REG_HW_ID)
            v_mov_b32 v9, s87
            buffer_store_dword v9, v0, s[8:11], s93 offen offset:16
            buffer_atomic_umax v7, v0, s[12:15], 0 offen offset:172
            {EV if tcfg_ev else ''}
            s_cmp_lg_u32 s92, 0
            s_cbranch_scc1 L_exit2
            s_mov_b32 s93, {L.STAMP + 0xf0000}
            buffer_load_dword v8, v0, s[8:11], s93 offen sc1
            v_mov_b32 v5, s88
            buffer_store_dword v4, v0, s[12:15], 0 offen offset:160
            buffer_store_dword v5, v0, s[12:15], 0 offen offset:164
            buffer_store_dword v7, v0, s[12:15], 0 offen offset:168
            s_waitcnt vmcnt(0)
            buffer_store_dword v8, v0, s[12:15], 0 offen offset:176
            {PAD.format(t=pad[0], r=pad[1]) if pad else ''}
L_exit2:
            """)
        a.label('L_end')
        a('s_endpgm')
    if fused: return assemble([('main_kernel', km, 256, 256, 163840)], HEADER)
    return assemble([('prep_kernel', lambda a: prep.prep_kernel(a, t0=bool(stamps), **pcfg), 256, 256, 163840), ('main_kernel', km, 256, 256, 163840)], HEADER)
if __name__ == '__main__':
    args = [eval(x) for x in sys.argv[3:]]
    open(sys.argv[2], 'w').write(globals()[sys.argv[1]](*args))
```

```python
from asmlib import *
import layout as L

SENT = -1
S_WS = 8
S_DBG = 12
S_ROLE = 16
S_WAVE = 17
S_XCC = 18
S_STEP = 19
S_FAST = 20
S_MOFF = 21; S_POFF = 22; S_EOFF = 23; S_GOFF = 24; S_XOFF = 25; S_T0 = 26; S_T1 = 27; S_SPIN = 28; S_LIM = 29
S_EXEC = 30
S_STMP = 32
S_TM = 34
SPIN_MAX = 20000
NTEAM = 32

LDS_M = 0
LDS_T = 7168
LDS_FL = 14336
LDS_VD = 18432
LDS_X = 20480
LDS_NAN = 11264
LDS_RED = 7168
LDS_BW = 16384
LDS_ROLE = 160*1024 - 16

def prologue(a, stamps, pool_off=0, scatter=False):
    a(f'''
    s_cmp_ge_u32 s2, 256
    s_cbranch_scc1 L_end
    s_load_dwordx2 s[4:5], s[0:1], 96
    s_load_dwordx2 s[6:7], s[0:1], 88
    s_getreg_b32 s{S_XCC}, hwreg(HW_REG_XCC_ID, 0, 4)
    v_lshrrev_b32 v2, 6, v0
    v_and_b32 v1, 63, v0
    v_readfirstlane_b32 s{S_WAVE}, v2
    s_and_b32 s{S_XCC}, s{S_XCC}, 7
    s_waitcnt lgkmcnt(0)
    s_mov_b32 s{S_WS}, s4
    s_and_b32 s{S_WS+1}, s5, 0xffff
    s_mov_b32 s{S_WS+2}, {L.WS_BYTES}
    s_mov_b32 s{S_WS+3}, 0x20000
    s_mov_b32 s{S_DBG}, s6
    s_and_b32 s{S_DBG+1}, s7, 0xffff
    s_mov_b32 s{S_DBG+2}, 256
    s_mov_b32 s{S_DBG+3}, 0x20000
    v_mov_b32 v4, {LDS_ROLE}
    s_cmp_lg_u32 s{S_WAVE}, 0
    s_cbranch_scc1 L_role_wait
    s_mov_b64 exec, 1
    s_mov_b32 s{S_T0}, 0
L_role_try:
    {f's_lshr_b32 s{S_T1}, s2, 5' if scatter else f's_mov_b32 s{S_T1}, s{S_XCC}'}
    s_add_u32 s{S_T1}, s{S_T1}, s{S_T0}
    s_and_b32 s{S_T1}, s{S_T1}, 7
    s_lshl_b32 s{S_ROLE}, s{S_T1}, 7
    s_add_u32 s{S_ROLE}, s{S_ROLE}, {L.CNT_P + pool_off}
    v_mov_b32 v2, s{S_ROLE}
    v_mov_b32 v3, 1
    buffer_atomic_add v3, v2, s[{S_WS}:{S_WS+3}], 0 offen sc0
    s_waitcnt vmcnt(0)
    v_readfirstlane_b32 s{S_ROLE}, v3
    s_cmp_lt_u32 s{S_ROLE}, 32
    s_cbranch_scc1 L_role_got
    s_add_u32 s{S_T0}, s{S_T0}, 1
    s_cmp_lt_u32 s{S_T0}, 8
    s_cbranch_scc1 L_role_try
    s_mov_b32 s{S_ROLE}, 31
    s_mov_b32 s{S_T1}, 0
L_role_got:
    s_lshl_b32 s{S_T1}, s{S_T1}, 5
    s_add_u32 s{S_ROLE}, s{S_ROLE}, s{S_T1}
    v_mov_b32 v2, s{S_ROLE}
    ds_write_b32 v4, v2
    s_mov_b64 exec, -1
    s_waitcnt lgkmcnt(0)
L_role_wait:
    s_barrier
    ds_read_b32 v2, v4
    s_waitcnt lgkmcnt(0)
    v_readfirstlane_b32 s{S_ROLE}, v2
    ''')

FSL = [8, 32]
def wait_flags(a, vaddr, need, t, n=1):
    l = a.newlabel('L_wf'); d = a.newlabel('L_wfd')
    regs = [t] + [t+4+2*k for k in range(n-1)]
    a(f"""
    s_mov_b32 s{S_SPIN}, 0
    s_mov_b32 s{S_EXEC}, {L.FL}
    s_add_u32 s{S_EXEC+1}, s80, {need}
{l}:
    """)
    for k, r in enumerate(regs):
        a(f'buffer_load_dwordx2 v[{r}:{r+1}], v{vaddr}, s[{S_WS}:{S_WS+3}], s{S_EXEC} offen offset:{k*512} sc1')
    a(f's_add_u32 s{S_SPIN}, s{S_SPIN}, 1\ns_waitcnt vmcnt(0)')
    for k, r in enumerate(regs):
        a(f"""
        v_subrev_u32 v{r}, s{S_EXEC+1}, v{r}
        v_xor_b32 v{r+1}, s81, v{r+1}
        v_lshl_or_b32 v{t+2}, v{r+1}, 3, v{r+1}
        v_or_b32 v{r}, v{r}, v{t+2}
        """)
        if k: a(f'v_max_u32 v{t}, v{t}, v{r}')
    a(f"""
    v_cmp_lt_u32 vcc, {7 - need}, v{t}
    s_cbranch_vccz {d}
    s_sleep {FSL[n > 1]}
    s_cmp_lt_u32 s{S_SPIN}, {SPIN_MAX*4}
    s_cbranch_scc1 {l}
{d}:
    """)

def prologue_fused(a):
    a(f"""
    s_getreg_b32 s{S_XCC}, hwreg(HW_REG_XCC_ID, 0, 4)
    s_mov_b32 s{S_WAVE}, s20
    s_and_b32 s{S_XCC}, s{S_XCC}, 7
    s_mov_b32 s{S_DBG}, s56
    s_mov_b32 s{S_DBG+1}, s57
    s_mov_b32 s{S_DBG+2}, 256
    s_mov_b32 s{S_DBG+3}, 0x20000
    v_mov_b32 v4, {LDS_ROLE}
    s_cmp_lg_u32 s{S_WAVE}, 0
    s_barrier
    s_cbranch_scc1 L_role_wait
    s_mov_b64 exec, 1
    s_mov_b32 s{S_T0}, 0
    s_mov_b32 s{S_T1}, s{S_XCC}
    v_mov_b32 v3, v250
    s_branch L_role_see
L_role_try:
    s_add_u32 s{S_T1}, s{S_XCC}, s{S_T0}
    s_and_b32 s{S_T1}, s{S_T1}, 7
    s_lshl_b32 s{S_ROLE}, s{S_T1}, 2
    v_mov_b32 v2, s{S_ROLE}
    v_mov_b32 v3, 1
    buffer_atomic_add v3, v2, s[{S_DBG}:{S_DBG+3}], 0 offen sc0
    s_waitcnt vmcnt(0)
L_role_see:
    v_readfirstlane_b32 s{S_ROLE}, v3
    s_cmp_lt_u32 s{S_ROLE}, 32
    s_cbranch_scc1 L_role_got
    s_add_u32 s{S_T0}, s{S_T0}, 1
    s_cmp_lt_u32 s{S_T0}, 8
    s_cbranch_scc1 L_role_try
    s_mov_b32 s{S_ROLE}, 31
    s_mov_b32 s{S_T1}, 0
L_role_got:
    s_lshl_b32 s{S_T1}, s{S_T1}, 5
    s_add_u32 s{S_ROLE}, s{S_ROLE}, s{S_T1}
    v_mov_b32 v2, s{S_ROLE}
    ds_write_b32 v4, v2
    s_mov_b64 exec, -1
    s_waitcnt lgkmcnt(0)
L_role_wait:
    s_barrier
    ds_read_b32 v2, v4
    s_waitcnt lgkmcnt(0)
    v_readfirstlane_b32 s{S_ROLE}, v2
    """)

def wait_ln(a, lane, t):
    a(f's_lshl_b32 s{S_T0}, s{S_WAVE}, 11\nv_lshlrev_b32 v{t+3}, 3, v{lane}\nv_add_u32 v{t+3}, s{S_T0}, v{t+3}')
    wait_flags(a, t+3, 1, t, n=4)
    a('s_barrier')

STAGE1 = (0, 4, 8, 11)
def load_tiles(a, tiles, vaddr, sbase, stage, flags, bud, cap=None):
    for off, dsts in tiles:
        cur = None
        for k in range(14):
            if stage is not None and (k in STAGE1) != (stage == 1): continue
            if cur != k // 4:
                cur = k // 4
                a(f's_add_u32 s{S_T0}, s{sbase}, {off + cur*4096}')
            a(f'buffer_load_dwordx4 {dsts[k]}, v{vaddr}, s[{S_WS}:{S_WS+3}], s{S_T0} offen offset:{(k%4)*1024} {flags}')
            bud[0] += 1
            if cap is not None:
                if bud[0] > cap: a(f's_waitcnt vmcnt({cap})')
            elif bud[0] >= 56:
                a('s_waitcnt vmcnt(28)'); bud[0] = 28

def team_register(a):
    l = a.newlabel('L_reg')
    a(f'''
    s_cmp_lg_u32 s{S_WAVE}, 0
    s_cbranch_scc1 {l}
    s_cmp_eq_u32 s{S_XCC}, 0
    s_cselect_b32 s{S_T0}, 1, 0x10001
    s_mov_b64 exec, 1
    v_mov_b32 v2, 64
    v_mov_b32 v3, s{S_T0}
    buffer_atomic_add v3, v2, s[{S_DBG}:{S_DBG+3}], 0 offen
    s_mov_b64 exec, -1
{l}:
    ''')

def team_mode_load(vt0, vt1):
    return f'v_mov_b32 v{vt0}, 64\nbuffer_load_dword v{vt1}, v{vt0}, s[{S_DBG}:{S_DBG+3}], 0 offen sc1'

def team_mode(a, vt0, vt1, primed=False):
    l = a.newlabel('L_mode'); d = a.newlabel('L_moded'); p = a.newlabel('L_modep')
    a(f'''
    s_mov_b32 s{S_SPIN}, 0
    {f's_branch {p}' if primed else ''}
{l}:
    {team_mode_load(vt0, vt1)}
{p}:
    s_waitcnt vmcnt(0)
    v_readfirstlane_b32 s{S_T0}, v{vt1}
    s_and_b32 s{S_T1}, s{S_T0}, 0xffff
    s_cmp_ge_u32 s{S_T1}, {NTEAM}
    s_cbranch_scc1 {d}
    s_sleep 2
    s_add_u32 s{S_SPIN}, s{S_SPIN}, 1
    s_cmp_lt_u32 s{S_SPIN}, {SPIN_MAX}
    s_cbranch_scc1 {l}
    s_mov_b32 s{S_T0}, 0x10000
{d}:
    s_lshr_b32 s{S_T0}, s{S_T0}, 16
    s_cmp_eq_u32 s{S_T0}, 0
    s_cselect_b32 s{S_FAST}, 1, 0
    s_mov_b32 s{S_LIM}, {SPIN_MAX}
    ''')

def stamp(a, stamps, idx, vt=None):
    if not stamps: return
    a(f's_memtime s[{40+2*idx}:{41+2*idx}]')
    if idx == 2: a('s_memrealtime s[60:61]')

def stamp_flush(a, stamps, n, vt):
    if not stamps: return
    a('s_waitcnt lgkmcnt(0)')
    for k in range(n):
        a(f'v_writelane_b32 v{vt}, s{40+2*k}, {k}')
    a(f"""
    v_lshrrev_b32 v{vt+1}, 1, v0
    s_mov_b64 exec, {(1 << n) - 1}
    buffer_store_dword v{vt}, v{vt+1}, s[{S_WS}:{S_WS+3}], s{S_STMP} offen
    s_mov_b64 exec, -1
    """)

def wreg(wb, vbase):
    return ar(8*wb, 8) if wb < 32 else vr(vbase + 8*(wb-32), 8)
def wreg_half(wb, vbase, half):
    return ar(8*wb + 4*half, 4) if wb < 32 else vr(vbase + 8*(wb-32) + 4*half, 4)

def xlane4(a, op, x, t):
    a(f'''
    v_mov_b32 v{t}, v{x}
    v_permlane16_swap_b32 v{x}, v{t}
    {op} v{x}, v{x}, v{t}
    v_mov_b32 v{t}, v{x}
    v_permlane32_swap_b32 v{x}, v{t}
    {op} v{x}, v{x}, v{t}
    ''')

QP = 'quad_perm:[2,3,0,1] row_mask:0xf bank_mask:0xf'

def read_mf(a, V):
    for b in range(7):
        a(f"ds_read_b64_tr_b16 v[{V['mf']+4*b}:{V['mf']+4*b+1}], v{V['l8']} offset:{LDS_M+b*1024}")
        a(f"ds_read_b64_tr_b16 v[{V['mf']+4*b+2}:{V['mf']+4*b+3}], v{V['l8']} offset:{LDS_M+b*1024+512}")

def SM(acc, A, B, idx):
    return f'v_smfmac_f32_16x16x64_bf16 v[{acc}:{acc+3}], v[{A}:{A+3}], {B}, v{idx}'


class Q:
    def __init__(self, name, cap):
        self.name = name; self.n = 0; self.tags = {}; self.done = 0; self.cap = cap
    def issue(self, tag=None):
        self.n += 1
        if tag is not None: self.tags[tag] = self.n
    def wait(self, tag):
        k = self.tags[tag]
        if k <= self.done: return ''
        self.done = k
        return 's_waitcnt %s(%d)' % (self.name, min(self.n - k, self.cap))
    def drain(self):
        self.done = self.n
        return 's_waitcnt %s(0)' % self.name

WSRD = f's[{S_WS}:{S_WS+3}]'

def poll_m(a, V, sleep=0):
    t = V['mf']; pa = V['pa']
    l = a.newlabel('L_pm'); d = a.newlabel('L_pmd')
    a(f"""
    s_mov_b32 s{S_SPIN}, 0
{l}:
    buffer_load_dwordx4 v[{t}:{t+3}], v{pa}, {WSRD}, s{S_MOFF} offen sc1
    buffer_load_dwordx4 v[{t+4}:{t+7}], v{pa}, {WSRD}, s{S_MOFF} offen offset:768 sc1
    s_add_u32 s{S_SPIN}, s{S_SPIN}, 1
    s_waitcnt vmcnt(1)
    ds_write_b128 v{pa}, v[{t}:{t+3}]
    v_max3_u32 v{t+8}, v{t}, v{t+1}, v{t+2}
    s_waitcnt vmcnt(0)
    ds_write_b128 v{pa}, v[{t+4}:{t+7}] offset:768
    v_max3_u32 v{t+8}, v{t+8}, v{t+3}, v{t+4}
    v_max3_u32 v{t+8}, v{t+8}, v{t+5}, v{t+6}
    v_max_u32 v{t+8}, v{t+8}, v{t+7}
    v_cmp_eq_u32 vcc, -1, v{t+8}
    s_cbranch_vccz {d}
    {'s_sleep %d' % sleep if sleep else ''}
    s_cmp_lt_u32 s{S_SPIN}, s{S_LIM}
    s_cbranch_scc1 {l}
    s_mov_b32 s{S_LIM}, 1
{d}:
    s_waitcnt lgkmcnt(0)
    s_barrier
    """)

def poll_m2(a, V, gap, x):
    pa = V['pa']; sets = (V['acc']+8, V['acc']+16)
    l = a.newlabel('L_pm'); d = a.newlabel('L_pmd')
    def issue(t):
        a(f"""
        buffer_load_dwordx4 v[{t}:{t+3}], v{pa}, {WSRD}, s{S_MOFF} offen sc1
        buffer_load_dwordx4 v[{t+4}:{t+7}], v{pa}, {WSRD}, s{S_MOFF} offen offset:768 sc1
        """)
    def check(t):
        a(f"""
        s_add_u32 s{S_SPIN}, s{S_SPIN}, 1
        s_waitcnt vmcnt(3)
        ds_write_b128 v{pa}, v[{t}:{t+3}]
        v_max3_u32 v{x}, v{t}, v{t+1}, v{t+2}
        s_waitcnt vmcnt(2)
        ds_write_b128 v{pa}, v[{t+4}:{t+7}] offset:768
        v_max3_u32 v{x}, v{x}, v{t+3}, v{t+4}
        v_max3_u32 v{x}, v{x}, v{t+5}, v{t+6}
        v_max_u32 v{x}, v{x}, v{t+7}
        v_cmp_eq_u32 vcc, -1, v{x}
        """)
    a(f's_mov_b32 s{S_SPIN}, 0')
    issue(sets[0])
    while gap > 0:
        a(f's_nop {min(gap, 16) - 1}'); gap -= 16
    issue(sets[1]); check(sets[0])
    a(f's_cbranch_vccnz {l}\n{d}:\ns_waitcnt lgkmcnt(0)\ns_barrier')
    def cold():
        a.label(l)
        issue(sets[0]); check(sets[1])
        a(f's_cbranch_vccz {d}')
        issue(sets[1]); check(sets[0])
        a(f"""
        s_cbranch_vccz {d}
        s_cmp_lt_u32 s{S_SPIN}, s{S_LIM}
        s_cbranch_scc1 {l}
        s_mov_b32 s{S_LIM}, 1
        s_branch {d}
        """)
    a.cold.append(cold)

def wait_hint(a, vaddr, soff, regs, imm=0, delay=0, gap=12, inner=8, fill=None, primed=False):
    n = len(regs)
    l = a.newlabel('L_h'); d = a.newlabel('L_hd')
    ld = lambda r: f'buffer_load_dword v{r}, v{vaddr}, {WSRD}, s{soff} offen offset:{imm} sc1'
    a(f's_mov_b32 s{S_SPIN}, 0')
    fill = list(fill or [])
    per = -(-len(fill) // (n-1))
    for k in range(0 if primed else n-1):
        a(ld(regs[k]))
        for x in fill[k*per:(k+1)*per]: a(x)
        if per < gap: a(f's_nop {gap - per}')
    a.label(l)
    for k in range(n):
        a(f"""
        {ld(regs[(k+n-1) % n])}
        s_waitcnt vmcnt({n-1})
        v_cmp_eq_u32 vcc, -1, v{regs[k]}
        s_cbranch_vccz {d}
        s_nop {inner}
        """)
    a(f"""
    s_add_u32 s{S_SPIN}, s{S_SPIN}, 1
    s_cmp_lt_u32 s{S_SPIN}, s{S_LIM}
    s_cbranch_scc1 {l}
{d}:
    """)
    while delay > 0:
        a(f's_nop {min(delay, 16) - 1}'); delay -= 16

def wait_cnt(a, off_sgpr, target, vt, sleep=4, primed=False):
    l = a.newlabel('L_wc'); d = a.newlabel('L_wcd'); p = a.newlabel('L_wcp')
    a(f"""
    s_mov_b32 s{S_SPIN}, 0
    v_mov_b32 v{vt}, 0
    {f's_branch {p}' if primed else ''}
{l}:
    buffer_load_dword v{vt+1}, v{vt}, {WSRD}, s{off_sgpr} offen sc1
{p}:
    s_add_u32 s{S_SPIN}, s{S_SPIN}, 1
    s_waitcnt vmcnt(0)
    v_readfirstlane_b32 s{S_T0}, v{vt+1}
    s_cmp_ge_u32 s{S_T0}, {target}
    s_cbranch_scc1 {d}
    s_sleep {sleep}
    s_cmp_lt_u32 s{S_SPIN}, s{S_LIM}
    s_cbranch_scc1 {l}
    s_mov_b32 s{S_LIM}, 1
{d}:
    """)

def img_addr(a, dst, t, lane):
    a(f"""
    v_bfe_u32 v{dst}, v{lane}, 3, 1
    v_lshlrev_b32 v{dst}, 9, v{dst}
    v_bfe_u32 v{t}, v{lane}, 2, 1
    v_lshl_add_u32 v{dst}, v{t}, 6, v{dst}
    v_and_b32 v{t}, 1, v{lane}
    v_lshl_add_u32 v{dst}, v{t}, 5, v{dst}
    v_lshrrev_b32 v{t}, 4, v{lane}
    v_lshl_add_u32 v{dst}, v{t}, 3, v{dst}
    v_bfe_u32 v{t}, v{lane}, 1, 1
    v_lshl_add_u32 v{dst}, v{t}, 2, v{dst}
    """)

def common_addrs(a, V, LN):
    a(f"""
    v_lshlrev_b32 v{V['l8']}, 3, v{LN}
    s_mul_i32 s{S_T0}, s{S_WAVE}, {112*16}
    v_lshlrev_b32 v{V['pa']}, 4, v{LN}
    v_add_u32 v{V['pa']}, s{S_T0}, v{V['pa']}
    v_and_b32 v{LN+1}, 2, v{LN}
    v_cmp_ne_u32 vcc, 0, v{LN+1}
    v_mov_b32 v{LN+1}, 0x4444
    v_mov_b32 v{LN+2}, 0xeeee
    v_cndmask_b32 v{V['idx']}, v{LN+1}, v{LN+2}, vcc
    """)

def load_1k_run(a, dsts, vaddr, sbase, flags='', budget=None):
    for i, d in enumerate(dsts):
        if i and i % 4 == 0:
            a(f's_add_u32 s{sbase}, s{sbase}, 4096')
        a(f'buffer_load_dwordx4 {d}, v{vaddr}, {WSRD}, s{sbase} offen offset:{(i%4)*1024} {flags}')
        if budget is not None:
            budget[0] += 1
            if budget[0] >= 56:
                a('s_waitcnt vmcnt(28)'); budget[0] = 28

class Gaps:
    def __init__(self, n):
        self.ds = [[] for _ in range(n)]; self.va = [[] for _ in range(n)]; self.pre = [[] for _ in range(n)]
        self.n = n
    def put(self, kind, g, text, excl=False):
        while g < self.n - 1:
            if excl:
                if not self.ds[g] and not self.va[g]: break
            else:
                lst = self.ds[g] if kind == 'ds' else self.va[g]
                other = self.va[g] if kind == 'ds' else self.ds[g]
                if not lst and not (other and other[-1][1]): break
            g += 1
        (self.ds if kind == 'ds' else self.va)[g].append((text, excl))
        return g
    def force(self, kind, g, text):
        (self.ds if kind == 'ds' else self.va)[min(g, self.n-1)].append((text, False))

def emit_stream(a, mf, gp, lq, pre=None):
    for i, (m, tags) in enumerate(mf):
        for tg in tags:
            w = lq.wait(tg)
            if w: a(w)
        a(m)
        for lst in (gp.ds[i], gp.va[i]):
            for x, _ in lst:
                t = x(lq) if callable(x) else x
                if t: a(t)

def dsop(text, tag=None):
    def f(lq):
        lq.issue(tag); return text
    return f
def dswait(tag, then=''):
    def f(lq):
        return lq.wait(tag) + '\n' + then
    return f

SV = dict(l8=0, pa=1, idx=2, k1=3, mf=12, acc=40, w=64)
def tile_of(w, u):
    if u < 5: return (u, w)
    order = {(0, 5): (5, 0), (1, 5): (5, 1), (2, 5): (5, 2), (2, 6): (5, 3), (0, 6): (6, 0), (1, 6): (6, 1), (0, 7): (6, 2), (1, 7): (6, 3)}
    return order[(w, u)]
NUNIT = [8, 8, 7, 5]
F = dict(l16=4, px=5, pm=6, mk0=7, mk1=8, mk2=9, wz=10, xf=88, tf=200, sa=228, t=240)

def score_setup(a, stamps, cfg):
    V = SV; LN = 44
    a(f'v_mov_b32 v{LN}, v1')
    team_register(a)
    common_addrs(a, V, LN)
    img_addr(a, V['k1'], LN+1, LN)
    g, cc, par, ib, t = LN+1, LN+2, LN+3, LN+4, LN+5
    a(f"""
    v_lshlrev_b32 v{F['l16']}, 4, v{LN}
    v_lshrrev_b32 v{g}, 4, v{LN}
    v_bfe_u32 v{cc}, v{LN}, 2, 2
    v_bfe_u32 v{par}, v{LN}, 1, 1
    v_and_b32 v{ib}, 1, v{LN}
    v_and_b32 v{t}, 15, v{LN}
    v_lshlrev_b32 v{F['px']}, 4, v{t}
    v_lshrrev_b32 v{t}, 1, v{g}
    v_lshl_add_u32 v{F['px']}, v{t}, 8, v{F['px']}
    v_and_b32 v{t}, 1, v{g}
    v_lshl_add_u32 v{F['px']}, v{t}, 3, v{F['px']}
    s_and_b32 s{S_T0}, s{S_ROLE}, 1
    s_lshl_b32 s{S_T0}, s{S_T0}, 4
    s_lshr_b32 s{S_T1}, s{S_ROLE}, 2
    s_lshl_b32 s{S_T1}, s{S_T1}, 9
    s_add_u32 s{S_T0}, s{S_T0}, s{S_T1}
    s_and_b32 s{S_T1}, s{S_ROLE}, 2
    s_lshl_b32 s{S_T1}, s{S_T1}, 1
    s_add_u32 s{S_T0}, s{S_T0}, s{S_T1}
    s_add_u32 s{S_T0}, s{S_T0}, 8192
    v_and_b32 v{F['pm']}, 0xffffffef, v{V['l8']}
    v_add_u32 v{F['pm']}, s{S_T0}, v{F['pm']}
    s_lshl_b32 s{S_T0}, s{S_ROLE}, 9
    v_add_u32 v{F['px']}, s{S_T0}, v{F['px']}
    v_lshlrev_b32 v{t}, 4, v{ib}
    v_mov_b32 v{F['mk2']}, 0xffff
    v_lshlrev_b32 v{F['mk2']}, v{t}, v{F['mk2']}
    v_cmp_eq_u32 vcc, v{cc}, v{g}
    v_mov_b32 v{t}, 0
    v_cndmask_b32 v{F['mk2']}, v{t}, v{F['mk2']}, vcc
    v_cmp_eq_u32 vcc, 0, v{par}
    v_mov_b32 v{t+1}, 0xff800000
    v_cndmask_b32 v{F['mk0']}, v{t}, v{F['mk2']}, vcc
    v_cndmask_b32 v{F['mk1']}, v{F['mk2']}, v{t}, vcc
    v_cndmask_b32 v{F['wz']}, v{t+1}, v{t}, vcc
    s_mul_i32 s{S_T1}, s{S_ROLE}, {28*14336}
    s_add_u32 s{S_T1}, s{S_T1}, {L.WT}
    """)
    done = a.newlabel('L_sw')
    fz = cfg['fused']
    if fz:
        a(f"v_min_u32 v{LN+8}, 27, v{LN}\nv_lshlrev_b32 v{LN+8}, 3, v{LN+8}\ns_mul_i32 s{S_T0}, s{S_ROLE}, {14*32}\nv_add_u32 v{LN+8}, s{S_T0}, v{LN+8}")
        wait_flags(a, LN+8, 1, LN+10)
    for w in range(4):
        nx = a.newlabel('L_swn')
        if w < 3: a(f's_cmp_lg_u32 s{S_WAVE}, {w}\ns_cbranch_scc1 {nx}')
        tiles = []
        for u in range(NUNIT[w]):
            b, ga = tile_of(w, u)
            tiles.append(((4*b+ga)*14336, [wreg_half(u*7 + k//2, V['w'], k % 2) for k in range(14)]))
        if fz:
            load_tiles(a, tiles, F['l16'], S_T1, 1, cfg['wfl'], [0])
            wait_flags(a, LN+8, 7, LN+10)
            load_tiles(a, tiles, F['l16'], S_T1, 2, cfg['wfl'], [0])
        else:
            load_tiles(a, tiles, F['l16'], S_T1, None, cfg['wfl'], [0], cfg['scap'])
        if w < 3: a(f's_branch {done}\n{nx}:')
    a(f"""
{done}:
    {team_mode_load(V['mf'], V['mf']+1) if not fz else ''}
    s_mov_b32 s{S_STEP}, 0
    s_mov_b32 s{S_MOFF}, {L.MB_M}
    s_mov_b32 s{S_POFF}, {L.MB_P}
    s_mov_b32 s{S_GOFF}, {L.XN}
    s_lshl_b32 s{S_STMP}, s{S_ROLE}, 2
    s_add_u32 s{S_STMP}, s{S_STMP}, s{S_WAVE}
    s_lshl_b32 s{S_STMP}, s{S_STMP}, 12
    s_add_u32 s{S_STMP}, s{S_STMP}, {L.STAMP}
    """)
    if fz:
        wait_ln(a, LN, 12)
    else:
        nf = a.newlabel('L_nx0')
        a(f's_cmp_lg_u32 s{S_WAVE}, 3\ns_cbranch_scc1 {nf}\ns_waitcnt vmcnt(30)\ns_mov_b32 s{S_T0}, s{S_GOFF}')
        load_1k_run(a, [vr(F['xf'] + 4*k, 4) for k in range(28)], F['l16'], S_T0, cfg['wfl'])
        a.label(nf)
    team_mode(a, V['mf'], V['mf']+1, primed=not fz)

def step_advance(a, gstride, xstride=114688):
    a(f"""
    s_add_u32 s{S_STEP}, s{S_STEP}, 1
    s_add_u32 s{S_MOFF}, s{S_MOFF}, 8192
    s_add_u32 s{S_POFF}, s{S_POFF}, 16384
    s_add_u32 s{S_GOFF}, s{S_GOFF}, {gstride}
    s_add_u32 s{S_XOFF}, s{S_XOFF}, {xstride}
    s_add_u32 s{S_STMP}, s{S_STMP}, 64
    """)

def rowred(a, op, x):
    for m in ('row_ror:8', 'row_ror:4', 'row_ror:2', 'row_ror:1'):
        for r in (x, x+1):
            a(f'{op}_dpp v{r}, v{r}, v{r} {m} row_mask:0xf bank_mask:0xf')

def score_wave(a, w, pf, stamps, cfg):
    V = SV; idx = V['idx']; mf = V['mf']
    top = a.newlabel(f'L_sc{w}_top'); first = a.newlabel(f'L_sc{w}_first')
    nunit = NUNIT[w]
    accof = lambda u: V['acc'] + 4*(u % 6)
    ok = {0: (0, 9, 2), 1: (2,), 2: (0, 9, 1, 2), 3: (7, 8, 4)}[w]
    ST = (lambda k: f's_memtime s[{40+2*k}:{41+2*k}]' if k in ok else '') if stamps else (lambda k: '')
    def stamp(a, stamps, k):
        a(ST(k))
    xf, tf, sa, T = F['xf'], F['tf'], F['sa'], F['t']
    FA, FV = 8, 9
    HA = 11
    HT = ([5, 6, 7, 10] if w < 3 else [T+4, T+5, T+6, T+7])[:cfg['hdepth']]
    def load_x():
        a(f's_mov_b32 s{S_T0}, s{S_GOFF}')
        load_1k_run(a, [vr(xf + 4*k, 4) for k in range(28)], F['l16'], S_T0, cfg['wfl'])
    XW = cfg['xw']
    def dma_x(a=a):
        lo, hi = XW[w]
        a(f"""
        s_and_b32 s{S_T0}, s{S_STEP}, 1
        s_xor_b32 s{S_T0}, s{S_T0}, 1
        s_mul_i32 s{S_T0}, s{S_T0}, 28672
        s_add_u32 s{S_T0}, s{S_T0}, {LDS_X + lo*1024}
        s_add_u32 s{S_T1}, s{S_GOFF}, {28672 + lo*1024 - w*1792}
        """)
        for k in range(hi - lo):
            if k % 4 == 0:
                if k: a(f's_add_u32 s{S_T0}, s{S_T0}, 4096\ns_add_u32 s{S_T1}, s{S_T1}, 4096')
                a(f's_mov_b32 m0, s{S_T0}')
            a(f"buffer_load_dwordx4 v{V['pa']}, {WSRD}, s{S_T1} offen offset:{(k%4)*1024} {cfg['wfl']} lds")
    def read_x():
        a(f"""
        s_and_b32 s{S_T0}, s{S_STEP}, 1
        s_mul_i32 s{S_T0}, s{S_T0}, 28672
        v_add_u32 v{T}, s{S_T0}, v{F['l16']}
        """)
        for k in range(28): a(f'ds_read_b128 v[{xf+4*k}:{xf+4*k+3}], v{T} offset:{LDS_X + k*1024}')
    def zero_acc():
        for u in range(2 if cfg['m2'] else min(6, nunit)):
            a(f'v_mov_b64 v[{accof(u)}:{accof(u)+1}], 0\nv_mov_b64 v[{accof(u)+2}:{accof(u)+3}], 0')
        if w == 3:
            for k in range(4): a(f'v_mov_b64 v[{sa+2*k}:{sa+2*k+1}], 0')
            a(f"v_mov_b32 v{sa+8}, v{F['wz']}\nv_mov_b32 v{sa+9}, v{F['wz']}\nv_mov_b64 v[{sa+10}:{sa+11}], 0")
    a(f"v_lshrrev_b32 v{HA}, 1, v{V['l8']}\nv_min_u32 v{HA}, {55*4}, v{HA}\ns_and_b32 s{S_T0}, s{S_ROLE}, 3\ns_lshl_b32 s{S_T0}, s{S_T0}, 8\ns_add_u32 s{S_T0}, s{S_T0}, 7168\nv_add_u32 v{HA}, s{S_T0}, v{HA}")
    if w == 3:
        if cfg['fused']: load_x()
        a(f'v_and_b32 v{T+12}, {15*8}, v0\nv_lshlrev_b32 v{T+12}, 3, v{T+12}\nv_add_u32 v{T+12}, 6144, v{T+12}')
        if stamps: a('s_mov_b32 s40, 0\ns_mov_b32 s42, 0\ns_mov_b32 s44, 0')
        a(f's_mov_b32 s{S_EOFF}, 0\ns_lshl_b32 s{S_T0}, s{S_ROLE}, 2\ns_add_u32 s{S_T0}, s{S_T0}, 12288\nv_lshlrev_b32 v{T+14}, 4, v0\nv_add_u32 v{T+14}, s{S_T0}, v{T+14}\nv_mov_b32 v{T+15}, 0')
    else:
        a(f"v_add_u32 v{FA}, {LDS_FL + 4*w}, v{F['l16']}\nv_mov_b32 v{FV}, 0")
        for k in range(5): a(f'ds_write_b32 v{FA}, v{FV} offset:{k*1024}')
        a(f'v_and_b32 v4, {31*8}, v0\nv_lshlrev_b32 v4, 3, v4\nv_add_u32 v4, {w*2048}, v4')
    if w < 3 and not cfg['xin']: dma_x()
    if cfg['prio'][w]: a(f"s_setprio {cfg['prio'][w]}")
    zero_acc()
    if cfg.get('wgd'): a('s_memrealtime s[88:89]')
    a(f's_branch {first}')
    a.label(top)
    zero_acc()
    stamp(a, stamps, 0)
    if cfg['msamp'] == 2: a(f'v_mov_b32 v{mf if w < 3 else T+13}, 0')
    if cfg['mdma'] == 2: a(f's_mov_b32 m0, {LDS_M}\ns_add_u32 s{S_T0}, s{S_MOFF}, 4096')
    elif cfg['mdma']: a(f's_mov_b32 m0, {LDS_M + w*2048}\ns_add_u32 s{S_T0}, s{S_MOFF}, {w*2048 - w*1792}')
    if not cfg['cutrig'] or w == 0: wait_hint(a, HA, S_MOFF, HT, delay=cfg['mdelay'], inner=cfg['hinner'])
    if cfg['cutrig'] and cfg['mdma'] != 2: a('s_barrier')
    if cfg['mdma']:
        got = a.newlabel('L_got')
        a(ST(9))
        nk = 2 if w < 3 else 1
        SA_ = (4 if w < 3 else T+12)
        def rnd(r):
            if cfg['msamp'] == 2:
                a(f"s_mov_b64 exec, {0x55555555 if w < 3 else 0x5555}\nbuffer_load_dword v{r}, v{SA_}, {WSRD}, s{S_MOFF} offen sc1\ns_mov_b64 exec, -1")
            elif cfg['msamp']: a(f"buffer_load_dword v{r}, v{SA_}, {WSRD}, s{S_MOFF} offen sc1")
            for k in range(nk): a(f"buffer_load_dwordx4 v{V['pa']}, {WSRD}, s{S_T0} offen offset:{k*1024} sc1 lds")
        r0, r1 = (mf, HT[1]) if w < 3 else (T+13, T+15)
        two = cfg['m2d']
        rnd(r0)
        a(f'v_add_u32 v{FV}, 1, v{FV}' if w < 3 else f's_add_u32 s{S_EOFF}, s{S_EOFF}, 1')
        a(f's_mov_b32 s{S_SAFE}, 0\ns_mov_b32 s{S_SPIN}, 1')
        if two:
            gap = two
            while gap > 0:
                a(f's_nop {min(gap, 16) - 1}'); gap -= 16
            rnd(r1)
        ex = (nk+1) if two else 0
        bad = a.newlabel('L_mbad'); okl = a.newlabel('L_mok')
        a(f"""
        {f's_waitcnt vmcnt({nk + ex})' if cfg['msamp'] else ''}
        {f'v_cmp_eq_u32 vcc, -1, v{r0}' if cfg['msamp'] else ''}
        {f's_cbranch_vccnz {bad}' if cfg['msamp'] else ''}
        s_waitcnt vmcnt({ex}) lgkmcnt(0)
{okl}:
        s_barrier
{got}:
        """)
        def coldb():
            lp = a.newlabel('L_mlp')
            a.label(bad)
            if two:
                a(f's_mov_b32 s{S_SPIN}, 2\ns_waitcnt vmcnt(0) lgkmcnt(0)\nv_cmp_eq_u32 vcc, -1, v{r1}\ns_cbranch_vccz {okl}')
            a.label(lp)
            rnd(r0)
            a(f"""
            s_add_u32 s{S_SPIN}, s{S_SPIN}, 1
            s_waitcnt vmcnt(0) lgkmcnt(0)
            v_cmp_eq_u32 vcc, -1, v{r0}
            s_cbranch_vccz {okl}
            s_cmp_lt_u32 s{S_SPIN}, s{S_LIM}
            s_cbranch_scc1 {lp}
            s_mov_b32 s{S_LIM}, 1
            s_branch {okl}
            """)
        a.cold.append(coldb)
        def coldf():
            a.label(first)
            a(f'v_add_u32 v{FV}, 1, v{FV}' if w < 3 else f's_add_u32 s{S_EOFF}, s{S_EOFF}, 1')
            a(f's_mov_b32 s{S_SAFE}, 1')
            poll_m(a, V)
            a(f's_branch {got}')
        a.cold.append(coldf)
    else:
        a.label(first)
        a(f'v_add_u32 v{FV}, 1, v{FV}' if w < 3 else f's_add_u32 s{S_EOFF}, s{S_EOFF}, 1')
        a(ST(9))
        if cfg['m2']: poll_m2(a, V, cfg['m2'], mf)
        else: poll_m(a, V)
    stamp(a, stamps, 1)
    if stamps and w < 3: a(f's_mov_b32 s{40+2*7}, s{S_SPIN}')
    lq = Q('lgkmcnt', 15)
    mrd = [dsop(f"ds_read_b64_tr_b16 v[{mf+4*b+2*hf}:{mf+4*b+2*hf+1}], v{V['l8']} offset:{LDS_M+b*1024+hf*512}", ('mf', b))
           for b in range(7) for hf in range(2)]
    for x in mrd[:cfg['mpre']]: a(x(lq))
    order = [(u, b) for b in range(7) for u in range(2)] + [(u, b) for u in range(2, nunit) for b in range(7)]
    ms = [(SM(accof(u), mf+4*b, wreg(u*7 + b, V['w']), idx), [('mf', b)] if u == 0 else []) for u, b in order]
    last = {u: i for i, (u, b) in enumerate(order)}
    def smfma(b):
        t4 = tf + 4*b
        return [(f"v_mfma_f32_16x16x32_bf16 v[{sa+8}:{sa+11}], v[{t4}:{t4+3}], v[{mf+4*b}:{mf+4*b+3}], " + f'v[{sa+8}:{sa+11}]', [('tf', b)]),
                (SM(sa, t4, vr(xf + 8*b, 8), idx), []),
                (SM(sa+4, t4, vr(xf + 56 + 8*b, 8), idx), [])]
    def tread(b, hf):
        return dsop(f"ds_read_b64_tr_b16 v[{tf+4*b+2*hf}:{tf+4*b+2*hf+1}], v{V['l8']} offset:{LDS_T+b*1024+hf*512}", ('tf', b))
    phases = [(0, 1, 2), (3, 4)]
    starts = []
    if w == 3:
        for ph in phases:
            starts.append(len(ms))
            for b in ph: ms += smfma(b)
    n = len(ms)
    gp = Gaps(n)
    for k, x in enumerate(mrd[cfg['mpre']:]): gp.put('ds', k, x)
    flag_after = {2, 4} | ({5} if w < 2 else {6})
    def post(u):
        A = accof(u); b, ga = tile_of(w, u)
        va = [f'v_add_f32 v{A}, v{A}, v{A+2}', f'v_add_f32 v{A+1}, v{A+1}, v{A+3}', f'v_cvt_pk_bf16_f32 v{A}, v{A}, v{A+1}']
        ds = [dsop(f"ds_write_b32 v{V['k1']}, v{A} offset:{LDS_T+b*1024+ga*128}", ('k', u))]
        if w < 3 and u in flag_after:
            ds.append(dsop(f'ds_write_b32 v{FA}, v{FV} offset:{sorted(flag_after).index(u)*1024}'))
        return va, ds
    g = 0
    done_at = {}
    for u in range(nunit - (0 if w == 3 else 1)):
        va, ds = post(u)
        g = max(g, last[u] + 3 - (len(va) - 3))
        for x in va: g = gp.put('va', g, x) + 1
        for x in ds: g = gp.put('ds', g, x, excl=True) + 1
        done_at[u] = g
    def zero_in_gaps(u, g):
        A = accof(u)
        for k in range(2):
            gg = g
            while gg < 7*u - 2 and (gp.va[gg] or (gp.ds[gg] and gp.ds[gg][-1][1])): gg += 1
            if gg >= 7*u - 2: gg = max(g, 7*u - 4 + k)
            gp.force('va', gg, f'v_mov_b64 v[{A+2*k}:{A+2*k+1}], 0')
    if cfg['m2']:
        gp.force('ds', cfg['m2w'], 's_waitcnt vmcnt(0)')
        for u in range(2, min(6, nunit)): zero_in_gaps(u, cfg['m2w'])
    for u in range(6, nunit): zero_in_gaps(u, done_at[u-6] + 1)
    if w == 3:
        for pi, ph in enumerate(phases):
            flagrd = f"ds_read_b128 v[{T}:{T+3}], v{F['l16']} offset:{LDS_FL + pi*1024}"
            lead = cfg['lead'][pi]
            g = max(starts[pi] - lead, done_at[max(ph)] if max(ph) < 5 else 0)
            g = min(g, starts[pi]-1)
            if cfg['pnop'][pi]: gp.force('ds', g, f"s_nop {cfg['pnop'][pi]-1}")
            gp.force('ds', g, dsop(flagrd, ('fl', pi)))
            ops = [tread(b, hf) for b in ph for hf in range(2)]
            for k, x in enumerate(ops):
                gp.force('ds', min(g + (k+1)//2, starts[pi]-1), x)
            FM = T+11
            def chk(lq, pi=pi):
                return lq.wait(('fl', pi)) + (f'\nv_min3_u32 v{FM}, v{T}, v{T+1}, v{T+2}' if pi == 0 else
                                              f'\nv_min3_u32 v{T}, v{T}, v{T+1}, v{T+2}\nv_min_u32 v{FM}, v{FM}, v{T}')
            gp.force('va', starts[pi], chk)
    if cfg['xin'] and XW[w][1] > XW[w][0]:
        sub = Asm(); dma_x(sub)
        grp = []; cur = []
        for _, x in sub.items:
            cur.append(x.text)
            if x.text.startswith('buffer'): grp.append('\n'.join(cur)); cur = []
        g = cfg['xin']
        for x in grp: g = gp.put('ds', g, x) + cfg['xstep']
    if w == 0 and cfg['phint'] < 0:
        gp.force('ds', n - 1 + cfg['phint'], f"""s_mov_b64 exec, 15
            buffer_store_dword v{FV}, v4, {WSRD}, s{S_POFF} offen {pf}
            s_mov_b64 exec, -1""")
    emit_stream(a, ms, gp, lq)
    hint = f"""s_mov_b64 exec, 15
        buffer_store_dword v{T+15}, v{T+14}, {WSRD}, s{S_POFF} offen {pf}
        s_mov_b64 exec, -1"""
    if w < 3:
        va, ds = post(nunit-1)
        A_ = accof(nunit-1)
        va = [f'v_pk_add_f32 v[{A_}:{A_+1}], v[{A_}:{A_+1}], v[{A_+2}:{A_+3}]', va[-1]]
        for x in va: a(x)
        for x in ds: a(x(lq))
        a(lq.drain())
        a('s_barrier')
        stamp(a, stamps, 2)
        if cfg['mdma']:
            again = a.newlabel('L_again')
            a(f"""
            {'s_waitcnt vmcnt(0)' if cfg['xin'] else ''}
            s_barrier
            v_mov_b32 v{mf}, {LDS_VD}
            ds_read_b32 v{mf}, v{mf}
            s_waitcnt lgkmcnt(0)
            v_cmp_eq_u32 vcc, v{mf}, v{FV}
            s_cbranch_vccnz {again}
            """)
            def colda():
                a.label(again)
                zero_acc()
                a(f's_branch {first}')
            a.cold.append(colda)
        elif cfg['quiet']: a(f"s_sleep {cfg['quiet']}")
    else:
        s = T
        mx = T+6; z = T+8; EA = tf; B1 = tf+4; B2 = tf+8; D1 = tf+12; D2 = tf+16; rz = T+10
        a(f"""
        v_mov_b64 v[{B1+2}:{B1+3}], 0
        v_mov_b64 v[{B2}:{B2+1}], 0
        v_mov_b32 v{B2+3}, 0
        v_mov_b32 v{EA+3}, 0
        """)
        for _ in range(cfg['b5nop']): a('s_nop 3')
        q = Q('lgkmcnt', 15)
        a(f"ds_read_b128 v[{T}:{T+3}], v{F['l16']} offset:{LDS_FL + 2048}"); q.issue('fl')
        for hf in range(2): a(tread(5, hf)(q))
        stamp(a, stamps, 2)
        if cfg['al'] is not None:
            a.raw('    .p2align 6')
            for _ in range(cfg['al']): a('s_nop 0')
        a('s_barrier')
        stamp(a, stamps, 3)
        PX = lambda k: a('s_memtime s[52:53]') if stamps and cfg['px'] == k else None
        PX(0)
        for hf in range(2): a(tread(6, hf)(q))
        PX(1)
        if cfg['phint'] == 0: a(hint)
        PX(2)
        fl5 = [f'v_min3_u32 v{T}, v{T}, v{T+1}, v{T+2}', f'v_min_u32 v{FM}, v{FM}, v{T}', f'v_subrev_u32 v{FM}, s{S_EOFF}, v{FM}']
        for b in (5, 6):
            for m, tags in smfma(b):
                for tg in tags: a(q.wait(tg))
                if b == 6 and tags: PX(4)
                a(m)
                if fl5: a(fl5.pop(0))
            if b == 5: PX(3)
        a(ST(7))
        if cfg['phint'] == 1: a(hint)
        e = sa
        redo = a.newlabel('L_smr'); slowmx = a.newlabel('L_sms'); go = a.newlabel('L_smg')
        a(f"""
        s_mov_b32 s{S_T1}, {120 << 23}
        s_mov_b32 s{S_SPIN}, 0
        v_add_f32_dpp v{s+4}, v{sa+10}, v{sa+8} {QP}
        v_add_f32_dpp v{s+5}, v{sa+11}, v{sa+9} {QP}
        v_pk_add_f32 v[{s}:{s+1}], v[{sa}:{sa+1}], v[{sa+2}:{sa+3}]
        v_exp_f32 v{e+8}, v{s+4}
        v_exp_f32 v{e+9}, v{s+5}
        v_pk_add_f32 v[{s+2}:{s+3}], v[{sa+4}:{sa+5}], v[{sa+6}:{sa+7}]
        v_exp_f32 v{e}, v{s}
        v_exp_f32 v{e+1}, v{s+1}
        v_exp_f32 v{e+2}, v{s+2}
        v_exp_f32 v{e+3}, v{s+3}
{redo}:;nf
        v_pk_add_f32 v[{z}:{z+1}], v[{e}:{e+1}], v[{e+8}:{e+9}]
        v_cvt_pk_bf16_f32 v{EA+2}, v{e+8}, v{e+9}
        v_pk_add_f32 v[{z}:{z+1}], v[{z}:{z+1}], v[{e+2}:{e+3}]
        """)
        if cfg['phint'] == 2: a(hint)
        fill = [f'v_cvt_pk_bf16_f32 v{EA+k}, v{e+2*k}, v{e+2*k+1}' for k in range(2)]
        for m in ('row_ror:8', 'row_ror:4', 'row_ror:2', 'row_ror:1'):
            if fill: a(fill.pop(0))
            for r in (z, z+1):
                a(f'v_add_f32_dpp v{r}, v{r}, v{r} {m} row_mask:0xf bank_mask:0xf')
        LO, HI = (127-60) << 23, (127+60) << 23
        a(ST(8))
        a(f"""
        v_rcp_f32 v{mx}, v{z}
        v_rcp_f32 v{mx+1}, v{z+1}
        v_subrev_u32 v{z}, {LO}, v{z}
        v_cvt_pk_bf16_f32 v{rz}, v{mx}, v{mx+1}
        v_and_b32 v{B1}, v{rz}, v{F['mk0']}
        v_and_b32 v{B1+1}, v{rz}, v{F['mk1']}
        v_and_b32 v{B2+2}, v{rz}, v{F['mk2']}
        v_subrev_u32 v{z+1}, {LO}, v{z+1}
        v_mfma_f32_16x16x32_bf16 v[{D1}:{D1+3}], v[{EA}:{EA+3}], v[{B1}:{B1+3}], 0
        v_mfma_f32_16x16x32_bf16 v[{D2}:{D2+3}], v[{EA}:{EA+3}], v[{B2}:{B2+3}], 0
        v_max3_u32 v{z}, v{z}, v{z+1}, v{FM}
        v_cmp_lt_u32 vcc, s{S_T1}, v{z}
        s_cmp_eq_u64 vcc, 0
        s_cselect_b64 exec, -1, 0
        v_cvt_pk_bf16_f32 v{D1}, v{D1}, v{D1+1}
        v_cvt_pk_bf16_f32 v{D1+1}, v{D1+2}, v{D1+3}
        buffer_store_dwordx2 v[{D1}:{D1+1}], v{F['px']}, {WSRD}, s{S_POFF} offen {pf}
        v_cvt_pk_bf16_f32 v{D2}, v{D2}, v{D2+1}
        buffer_store_dword v{D2}, v{F['pm']}, {WSRD}, s{S_POFF} offen {pf}
        s_mov_b64 exec, -1
        s_cbranch_scc0 {slowmx}
        """)
        if cfg['mdma']: a('s_barrier')
        def coldmx():
            a(f'{slowmx}:' + ('\ns_add_u32 s40, s40, 1' if stamps else ''))
            loc = a.newlabel('L_loc'); sf = a.newlabel('L_safe')
            a(f's_cmp_eq_u32 s{S_SPIN}, 0\ns_cbranch_scc1 {loc}')
            if cfg['mdma']:
                a(f"""
                s_cmp_lg_u32 s{S_SAFE}, 0
                s_cbranch_scc1 {sf}
                {'s_add_u32 s86, s86, 1' if cfg.get('wgd') else ''}
                v_mov_b32 v{T}, {LDS_VD}
                v_mov_b32 v{T+1}, s{S_EOFF}
                ds_write_b32 v{T}, v{T+1}
                s_waitcnt lgkmcnt(0)
                s_barrier
                """)
                zero_acc()
                a(f's_branch {first}')
            a(f'{sf}:\ns_mov_b32 s{S_T1}, -1\ns_branch {redo}\n{loc}:\ns_mov_b32 s{S_SPIN}, 1\nv_mov_b32 v{FM}, 0')
            if cfg.get('wgd'): a('s_add_u32 s85, s85, 1')
            for k in range(4): a(f'v_mov_b64 v[{sa+2*k}:{sa+2*k+1}], 0')
            a(f"v_mov_b32 v{sa+8}, v{F['wz']}\nv_mov_b32 v{sa+9}, v{F['wz']}\nv_mov_b64 v[{sa+10}:{sa+11}], 0")
            q2 = Q('lgkmcnt', 15)
            for b in range(7):
                for hf in range(2): a(tread(b, hf)(q2))
            a('s_waitcnt lgkmcnt(0)')
            for b in range(7):
                for m, tags in smfma(b): a(m)
            a(f"""
            v_mov_b64 v[{B1+2}:{B1+3}], 0
            v_mov_b64 v[{B2}:{B2+1}], 0
            v_mov_b32 v{B2+3}, 0
            v_mov_b32 v{EA+3}, 0
            v_add_f32_dpp v{s+4}, v{sa+10}, v{sa+8} {QP}
            v_add_f32_dpp v{s+5}, v{sa+11}, v{sa+9} {QP}
            v_pk_add_f32 v[{s}:{s+1}], v[{sa}:{sa+1}], v[{sa+2}:{sa+3}]
            v_pk_add_f32 v[{s+2}:{s+3}], v[{sa+4}:{sa+5}], v[{sa+6}:{sa+7}]
            v_max3_f32 v{mx}, v{s}, v{s+4}, v{s+2}
            v_max3_f32 v{mx+1}, v{s+1}, v{s+5}, v{s+3}
            """)
            rowred(a, 'v_max_f32', mx)
            for k in range(3): a(f'v_pk_add_f32 v[{s+2*k}:{s+2*k+1}], v[{s+2*k}:{s+2*k+1}], v[{mx}:{mx+1}] neg_lo:[0,1] neg_hi:[0,1]')
            for k in range(6): a(f'v_exp_f32 v{e+(k if k < 4 else k+4)}, v{s+k}')
            a(f's_nop 1\ns_branch {redo}')
        a.cold.append(coldmx)
        stamp(a, stamps, 4)
    if stamps: a('s_memtime s[50:51]\ns_memrealtime s[60:61]')
    stamp_flush(a, stamps, 11, mf)
    step_advance(a, 28672, 458752)
    a(f's_cmp_ge_u32 s{S_STEP}, 63\ns_cbranch_scc1 L_exit')
    if w == 3: read_x()
    elif not cfg['nox'] and not cfg['xin']:
        if cfg['xs']: a(f"s_sleep {cfg['xs']}")
        dma_x()
    if cfg['ssleep'][w]:
        a(f"s_sleep {cfg['ssleep'][w]}")
    a(f's_branch {top}')
    a.flush_cold()

S_YD = 33; S_SAFE = 36; S_CV = 37; S_CU = 38; S_MD = 39
CV = dict(ha=160, one=161, zero=162, cu=163, hw=164, hm=165, nw=172, nr=173, pmr=72, l8=0, pa=1, idx=2, l16=3, pr=4, mw=6, lw=7, rw=8, rr=5, mf=12, acc=40, itm=72, vx=88, uf=96, tw=128, w=176)

def comb_setup(a, stamps, cfg):
    V = CV; LN = 112
    a(f'v_mov_b32 v{LN}, v1')
    team_register(a)
    common_addrs(a, V, LN)
    img_addr(a, V['mw'], LN+1, LN)
    a(f"""
    s_sub_u32 s{S_ROLE}, s{S_ROLE}, 16
    s_lshl_b32 s{S_ROLE}, s{S_ROLE}, 1
    s_and_b32 s{S_T0}, s{S_WAVE}, 1
    s_add_u32 s{S_T1}, s{S_ROLE}, s{S_T0}
    s_lshr_b32 s{S_T0}, s{S_T1}, 2
    s_lshl_b32 s{S_T0}, s{S_T0}, 10
    s_and_b32 s{S_T1}, s{S_T1}, 3
    s_lshl_b32 s{S_T1}, s{S_T1}, 7
    s_add_u32 s{S_T0}, s{S_T0}, s{S_T1}
    s_add_u32 s{S_T0}, s{S_T0}, 8192
    v_add_u32 v{V['mw']}, s{S_T0}, v{V['mw']}
    v_lshlrev_b32 v{V['l16']}, 4, v{LN}
    s_mul_i32 s{S_T0}, s{S_WAVE}, 28672
    s_add_u32 s{S_T0}, s{S_T0}, {LDS_BW}
    v_add_u32 v{V['lw']}, s{S_T0}, v{V['l16']}
    s_lshl_b32 s{S_T0}, s{S_WAVE}, 10
    v_add_u32 v{V['rw']}, s{S_T0}, v{V['l16']}
    v_add_u32 v{V['pr']}, s{S_T0}, v{V['rw']}
    s_and_b32 s{S_T0}, s{S_WAVE}, 1
    s_lshl_b32 s{S_T0}, s{S_T0}, 3
    v_add_u32 v{V['rr']}, s{S_T0}, v{V['l16']}
    s_mul_i32 s{S_T1}, s{S_WAVE}, {4*28}
    s_add_u32 s{S_T1}, s{S_T1}, s{S_ROLE}
    s_add_u32 s{S_T1}, s{S_T1}, 448
    s_mul_i32 s{S_T1}, s{S_T1}, 14336
    s_add_u32 s{S_T1}, s{S_T1}, {L.WT}
    """)
    toff = lambda u: ((u >> 1)*28 + (u & 1))*14336
    fz = cfg['fused']
    tiles = [(toff(u), [wreg_half(u*7 + k//2, V['w'], k % 2) for k in range(14)]) for u in range(6)]
    ltiles = [(toff(u), [vr(12 + (u-6)*116 + 4*k, 4) if u == 6 else vr(120 + 4*k, 4) for k in range(14)]) for u in (6, 7)]
    if fz:
        a(f"""
        v_bfe_u32 v{LN+4}, v{LN}, 2, 2
        v_mul_u32_u24 v{LN+4}, {14*32}, v{LN+4}
        v_and_b32 v{LN+5}, 3, v{LN}
        v_lshl_add_u32 v{LN+4}, v{LN+5}, 3, v{LN+4}
        s_mul_i32 s{S_T0}, s{S_WAVE}, 56
        s_lshr_b32 s{S_SPIN}, s{S_ROLE}, 2
        s_add_u32 s{S_T0}, s{S_T0}, s{S_SPIN}
        s_add_u32 s{S_T0}, s{S_T0}, 7
        s_lshl_b32 s{S_T0}, s{S_T0}, 5
        v_add_u32 v{LN+4}, s{S_T0}, v{LN+4}
        """)
        wait_flags(a, LN+4, 1, 100)
        load_tiles(a, ltiles + tiles, V['l16'], S_T1, 1, cfg['wfl'], [0])
        wait_flags(a, LN+4, 7, 100)
        load_tiles(a, ltiles + tiles, V['l16'], S_T1, 2, cfg['wfl'], [0])
    else:
        load_tiles(a, ltiles + tiles, V['l16'], S_T1, None, cfg['wfl'], [0], cfg['ccap'])
    if not fz:
        a(team_mode_load(104, 105))
        a(f"v_mov_b32 v106, 0\ns_mov_b32 s{S_CU}, {L.CNT_U}\ns_mov_b32 s{S_CV}, {L.CNT_I}")
        a(f'buffer_load_dword v107, v106, {WSRD}, s{S_CU} offen sc1\nbuffer_load_dword v109, v106, {WSRD}, s{S_CV} offen sc1')
    a('s_waitcnt vmcnt(28)')
    for u in (6, 7):
        for k in range(14):
            a(f"ds_write_b128 v{V['lw']}, {ltiles[u-6][1][k]} offset:{(u-6)*14336+k*1024}")
    a('s_waitcnt lgkmcnt(0)')
    if fz: wait_ln(a, LN, 100)
    a(f"""
    s_mov_b32 s{S_STEP}, 0
    s_mov_b32 s{S_MOFF}, {L.MB_M}
    s_mov_b32 s{S_POFF}, {L.MB_P}
    s_lshl_b32 s{S_GOFF}, s{S_ROLE}, 14
    s_lshl_b32 s{S_T0}, s{S_WAVE}, 12
    s_add_u32 s{S_GOFF}, s{S_GOFF}, s{S_T0}
    s_add_u32 s{S_GOFF}, s{S_GOFF}, {L.U}
    s_lshl_b32 s{S_XOFF}, s{S_ROLE}, 12
    s_add_u32 s{S_XOFF}, s{S_XOFF}, {L.VM}
    s_lshr_b32 s{S_STMP}, s{S_ROLE}, 1
    s_add_u32 s{S_STMP}, s{S_STMP}, 16
    s_lshl_b32 s{S_STMP}, s{S_STMP}, 2
    s_add_u32 s{S_STMP}, s{S_STMP}, s{S_WAVE}
    s_lshl_b32 s{S_STMP}, s{S_STMP}, 12
    s_add_u32 s{S_STMP}, s{S_STMP}, {L.STAMP}
    s_waitcnt vmcnt(0)
    """)
    a(f"""
    v_mov_b32 v{V['one']}, 1
    v_mov_b32 v{V['zero']}, 0
    v_mov_b32 v{V['cu']}, 0
    v_and_b32 v{V['ha']}, {120 if cfg['cutrig'] else 24}, v{V['l8']}
    v_lshrrev_b32 v{V['ha']}, 1, v{V['ha']}
    s_lshl_b32 s{S_T0}, s{S_WAVE}, 4
    s_mul_i32 s{S_T0}, s{S_T0}, {0 if cfg['cutrig'] else 1}
    s_and_b32 s{S_T1}, s{S_ROLE}, 6
    s_lshl_b32 s{S_T1}, s{S_T1}, 6
    s_add_u32 s{S_T0}, s{S_T0}, s{S_T1}
    s_add_u32 s{S_T0}, s{S_T0}, 12288
    v_add_u32 v{V['ha']}, s{S_T0}, v{V['ha']}
    s_lshl_b32 s{S_T0}, s{S_ROLE}, 1
    s_add_u32 s{S_T0}, s{S_T0}, s{S_WAVE}
    s_lshl_b32 s{S_T0}, s{S_T0}, 2
    s_add_u32 s{S_T0}, s{S_T0}, {8192 + 7168}
    v_lshlrev_b32 v{V['hw']}, 5, v{V['l8']}
    v_add_u32 v{V['hw']}, s{S_T0}, v{V['hw']}
    s_add_u32 s{S_YD}, s{S_XOFF}, 0x8000000
    v_lshrrev_b32 v{V['hm']}, 1, v{V['l8']}
    v_min_u32 v{V['hm']}, {55*4}, v{V['hm']}
    v_add_u32 v{V['hm']}, 7168, v{V['hm']}
    s_mov_b32 s56, 0
    v_lshrrev_b32 v{V['nw']}, 2, v{V['rw']}
    v_lshrrev_b32 v{V['nr']}, 1, v{V['l8']}
    s_lshl_b32 s{S_MD}, s{S_WAVE}, 11
    s_min_u32 s{S_MD}, s{S_MD}, 5120
    s_mov_b32 s{S_CU}, {L.CNT_U}
    """)
    for k in range(8): a(f"v_mov_b32 v{V['vx']+k}, 0")
    a(f"v_lshrrev_b32 v{V['pmr']}, 1, v{V['rw']}")
    team_mode(a, 104, 105, primed=not fz)
    if cfg['flags']:
        wait_cnt(a, S_CU, 28, 106, primed=not fz)
        a(f's_mov_b32 s{S_CV}, {L.CNT_I}')
        wait_cnt(a, S_CV, 98, 108, primed=not fz)
    for k in range(32): a(f"v_mov_b32 v{V['uf']+k}, 0")

def comb_wave(a, pf, stamps, cfg):
    V = CV; idx = V['idx']; mf = V['mf']; tw = V['tw']; uf = V['uf']; pa = V['pa']
    top = a.newlabel('L_cb_top'); nh0 = a.newlabel('L_nh')
    HT = [10, 11, 166, 167][:cfg['hdepth']]
    def store_vx(base, r):
        return [f"buffer_store_dwordx4 v[{r}:{r+3}], v{V['rw']}, {WSRD}, s{base} offen {cfg['xflags']}",
                f"s_add_u32 s{S_T1}, s{base}, 4096\nbuffer_store_dwordx4 v[{r+4}:{r+7}], v{V['rw']}, {WSRD}, s{S_T1} offen {cfg['xflags']}"]
    lq = Q('lgkmcnt', 15)
    def lread(lam, hf):
        return dsop(f"ds_read_b128 v[{tw+8*(lam%4)+4*hf}:{tw+8*(lam%4)+4*hf+3}], v{V['lw']} offset:{lam*2048+hf*1024}", ('lw', lam))
    def housekeeping_acc(a=a):
        for u in range(8):
            A = V['acc'] + 4*u
            a(f'v_mov_b64 v[{A}:{A+1}], 0\nv_mov_b64 v[{A+2}:{A+3}], 0')
    def housekeeping(a=a, acc=True):
        if acc: housekeeping_acc(a)
        for lam in range(4):
            for hf in range(2): a(lread(lam, hf)(lq))
    uload = lambda k: f"buffer_load_dwordx4 v[{uf+4*k}:{uf+4*k+3}], v{V['l16']}, {WSRD}, s{S_GOFF if k < 4 else S_EOFF} offen offset:{(k%4)*1024} {cfg['xflags']}"
    uorder = [] if cfg['nou'] else [4, 5, 6, 7, 0, 1, 2, 3]
    ue = uorder[:cfg['uearly']]; ul = uorder[cfg['uearly']:]
    housekeeping()
    t = mf
    slow = a.newlabel('L_cms'); back = a.newlabel('L_cmb'); redo = a.newlabel('L_cmr')
    pre = f"""s_add_u32 s{S_EOFF}, s{S_GOFF}, 16384
        s_lshl_b32 s{S_CU}, s{S_STEP}, 7
        s_add_u32 s{S_CU}, s{S_CU}, {L.CNT_U + 128}
        s_add_u32 s{S_T0}, s{S_MOFF}, s{S_MD}
        s_mov_b32 m0, s{S_MD}"""
    a(pre)
    a(f's_branch {top}\n{nh0}:\ns_barrier')
    a.label(top)
    stamp(a, stamps, 0)
    if cfg['cdma']:
        a(f"""
        buffer_load_dwordx4 v{V['l16']}, {WSRD}, s{S_T0} offen sc1 lds
        buffer_load_dwordx4 v{V['l16']}, {WSRD}, s{S_T0} offen offset:1024 sc1 lds
        s_mov_b32 s{S_SAFE}, 0
        """)
        if ue: a('s_barrier')
        for k in ue: a(uload(k))
        a(f's_waitcnt vmcnt({len(ue)}) lgkmcnt(0)\ns_barrier\n{back}:')
        def coldr():
            a(f'{redo}:\ns_barrier\ns_mov_b32 s{S_SAFE}, 1\ns_add_u32 s{S_YD}, s{S_XOFF}, 0x8000000')
            if stamps: a(f's_add_u32 s{40+2*8}, s{40+2*8}, 1')
            if cfg.get('wgd'): a('s_add_u32 s84, s84, 1')
            housekeeping()
            poll_m(a, V)
            a(f's_branch {back}')
        a.cold.append(coldr)
    else:
        a(f"""
        buffer_load_dwordx4 v[{t}:{t+3}], v{pa}, {WSRD}, s{S_MOFF} offen sc1
        buffer_load_dwordx4 v[{t+4}:{t+7}], v{pa}, {WSRD}, s{S_MOFF} offen offset:768 sc1
        """)
        if ue: a('s_barrier')
        for k in ue: a(uload(k))
        a(f"""
        s_waitcnt vmcnt({len(ue)+1})
        ds_write_b128 v{pa}, v[{t}:{t+3}]
        v_max3_u32 v{t+8}, v{t}, v{t+1}, v{t+2}
        s_waitcnt vmcnt({len(ue)})
        ds_write_b128 v{pa}, v[{t+4}:{t+7}] offset:768
        v_max3_u32 v{t+8}, v{t+8}, v{t+3}, v{t+4}
        v_max3_u32 v{t+8}, v{t+8}, v{t+5}, v{t+6}
        v_max_u32 v{t+8}, v{t+8}, v{t+7}
        v_cmp_eq_u32 vcc, -1, v{t+8}
        s_cbranch_vccnz {slow}
        s_waitcnt lgkmcnt(0)
        s_barrier
{back}:
        """)
        def coldm():
            a.label(slow)
            if stamps: a(f's_add_u32 s{40+2*8}, s{40+2*8}, 1')
            poll_m(a, V)
            a(f's_branch {back}')
        a.cold.append(coldm)
    lq.drain()
    stamp(a, stamps, 1)
    mrd = [dsop(f"ds_read_b64_tr_b16 v[{mf+4*b+2*hf}:{mf+4*b+2*hf+1}], v{V['l8']} offset:{LDS_M+b*1024+hf*512}", ('mf', b))
           for b in range(7) for hf in range(2)]
    for x in mrd[:cfg['mpre']]: a(x(lq))
    ms = []; last = {}
    rorder = [(u, b) for b in range(7) for u in range(2)] + [(u, b) for u in range(2, 6) for b in range(7)]
    rb = 0
    for p in range(56):
        if p % 4 == 3:
            lam = p // 4; u = 6 + lam // 7; b = lam % 7
            ms.append((SM(V['acc']+4*u, mf+4*b, vr(tw+8*(lam % 4), 8), idx), [('mf', b), ('lw', lam)]))
        else:
            u, b = rorder[rb]; rb += 1
            ms.append((SM(V['acc']+4*u, mf+4*b, wreg(u*7+b, V['w']), idx), [('mf', b)]))
        last[u] = p
    gp = Gaps(56)
    for k, x in enumerate(mrd[cfg['mpre']:]): gp.put('ds', k, x)
    for lam in range(4, 14):
        g = 4*(lam-4) + 3
        g = gp.put('ds', g, lread(lam, 0)) + 1
        gp.put('ds', g, lread(lam, 1))
    g = 0
    for k in ul: g = gp.put('va', g, uload(k)) + cfg['ustep']
    if cfg['flags']:
        g = gp.put('va', g, f"buffer_load_dword v{V['cu']}, v{V['zero']}, {WSRD}, s{S_CU} offen sc1") + 1
    for x in store_vx(S_YD, V['vx']): g = gp.put('va', g, x) + cfg['ustep']
    assert g - cfg['ustep'] < min(last.values()) + 3
    for k in range(len(HT)-1 if cfg['psl'] is None else 0):
        gp.put('ds', 55 - cfg['hpre'] + 4*k, f"buffer_load_dword v{HT[k]}, v{V['ha']}, {WSRD}, s{S_POFF} offen sc1")
    def post(u):
        A = V['acc'] + 4*u; hl = u >> 1; ctl = u & 1
        return ([f'v_pk_add_f32 v[{A}:{A+1}], v[{A}:{A+1}], v[{A+2}:{A+3}]'] if cfg['cpk'] else [f'v_add_f32 v{A}, v{A}, v{A+2}', f'v_add_f32 v{A+1}, v{A+1}, v{A+3}']) + [
                f"v_cvt_pk_bf16_f32 v{V['vx']+4*ctl+hl}, v{A}, v{A+1}"]
    tail = []; gprev = 0
    for u in sorted(last, key=lambda u: last[u]):
        g = max(last[u] + 3, gprev)
        if g + 4 >= 56: tail += post(u); continue
        for x in post(u): g = gp.put('va', g, x) + 1
        gprev = g
        if u == 0: done0 = g
    if cfg['cdma']:
        A0 = V['acc']; N = 168
        g = gp.put('va', done0, f'v_add_f32 v9, v{A0}, v{A0+1}') + 1
        g = gp.put('ds', g, dsop(f"ds_write_b32 v{V['nw']}, v9 offset:{LDS_NAN}", 'nw')) + 4
        gp.force('ds', g, dswait('nw', 's_barrier'))
        g = gp.put('ds', g+1, dsop(f"ds_read2st64_b32 v[{N}:{N+1}], v{V['nr']} offset0:{LDS_NAN//256} offset1:{LDS_NAN//256+1}")) + 1
        g = gp.put('ds', g, dsop(f"ds_read2st64_b32 v[{N+2}:{N+3}], v{V['nr']} offset0:{LDS_NAN//256+2} offset1:{LDS_NAN//256+3}", 'nr')) + 4
        g = gp.put('va', g, dswait('nr', f'v_add_f32 v{N}, v{N}, v{N+2}')) + 1
        g = gp.put('va', g, f'v_add_f32 v{N+1}, v{N+1}, v{N+3}') + 1
        g = gp.put('va', g, f'v_cmp_u_f32 vcc, v{N}, v{N+1}')
        assert g < 54
    emit_stream(a, ms, gp, lq)
    if cfg['cdma']:
        nb = a.newlabel('L_cnb'); nx = a.newlabel('L_cnx')
        a(f's_cbranch_vccnz {nb};nf\n{nx}:;nf')
        a.cold.append(lambda: a(f'{nb}:\ns_nop 7\ns_cmp_eq_u32 s{S_SAFE}, 0\ns_cbranch_scc1 {redo}\ns_branch {nx}'))
    for x in tail: a(x)
    lastl = a.newlabel('L_cbl')
    a(f's_cmp_ge_u32 s{S_STEP}, 63\ns_cbranch_scc1 {lastl}')
    def coldl():
        a.label(lastl)
        for x in store_vx(S_XOFF, V['vx']): a(x)
        a('s_branch L_exit')
    a.cold.append(coldl)
    stamp(a, stamps, 2)
    A = tw
    a(f's_add_u32 s{S_T0}, s{S_POFF}, 8192\ns_mov_b32 s{S_YD}, s{S_XOFF}')
    if stamps and cfg['sdrain']: a('s_waitcnt vmcnt(0)')
    stamp(a, stamps, 3)
    if cfg['psl'] is None:
        jn = a.newlabel('L_jn')
        a(f's_cmp_lg_u32 s{S_WAVE}, 0\ns_cbranch_scc1 {jn}')
        wait_hint(a, V['ha'], S_POFF, HT, delay=cfg['pdelay'], inner=cfg['hinner'], primed=True)
        a(f'{jn}:\ns_barrier')
    else:
        stamp_flush(a, stamps, 11, mf+24)
        if cfg['psl'] - (cfg['fl'] if stamps else 0) > 0: a(f"s_sleep {cfg['psl'] - (cfg['fl'] if stamps else 0)}")
        if cfg['pdelay']: a(f"s_nop {cfg['pdelay']-1}")
        if cfg['pbar']: a('s_barrier')
    stamp(a, stamps, 6)
    l = a.newlabel('L_pp'); d = a.newlabel('L_ppd'); retry = a.newlabel('L_ppr'); t = 9
    R = tw + 8
    B3 = [vr(uf, 8), vr(uf+8, 8), vr(V['itm'], 8)], [vr(uf+16, 8), vr(uf+24, 8), vr(V['itm']+8, 8)]
    mh = f"""s_mov_b64 exec, 15
        buffer_store_dword v{V['zero']}, v{V['hw']}, {WSRD}, s{S_MOFF} offen {pf}
        s_mov_b64 exec, -1"""
    def issue(p):
        a(f"""
        buffer_load_dwordx4 v[{p}:{p+3}], v{V['pr']}, {WSRD}, s{S_POFF} offen sc1
        buffer_load_dwordx4 v[{p+4}:{p+7}], v{V['pr']}, {WSRD}, s{S_POFF} offen offset:1024 sc1
        buffer_load_dwordx2 v[{p+8}:{p+9}], v{V['pmr']}, {WSRD}, s{S_T0} offen sc1
        """)
    def zero():
        for k in range(4): a(f'v_mov_b64 v[{A+2*k}:{A+2*k+1}], 0')
    def attempt(p, behind, hint_here):
        ex = behind
        a(f's_add_u32 s{S_SPIN}, s{S_SPIN}, 1')
        for k in range(3):
            a(f's_waitcnt vmcnt({2-k+ex})')
            S32 = lambda acc, B: f'v_smfmac_f32_16x16x32_bf16 v[{acc}:{acc+3}], v[{p+8}:{p+9}], {B}, v{idx}'
            a(SM(A, p+4*k, B3[0][k], idx) if k < 2 else S32(A, vr(V['vx'], 4)))
            a(f'v_max_u32 v{t}, v{p}, v{p+2}' if k == 0 else f'v_max3_u32 v{t}, v{t}, v{p+4*k}, v{p+4*k+(2 if k < 2 else 1)}')
            a(SM(A+4, p+4*k, B3[1][k], idx) if k < 2 else S32(A+4, vr(V['vx']+4, 4)))
            if hint_here and k == cfg['mhk']:
                if cfg['mhint'] == 3:
                    a(f"""v_cmp_eq_u32 vcc, -1, v{t}
                    s_cmp_eq_u64 vcc, 0
                    s_cselect_b64 exec, 15, 0
                    buffer_store_dword v{V['zero']}, v{V['hw']}, {WSRD}, s{S_MOFF} offen {pf}
                    s_mov_b64 exec, -1""")
                else: a(mh)
                ex += 1
        a(f'v_cmp_eq_u32 vcc, -1, v{t}')
    a(f's_mov_b32 s{S_SPIN}, 0')
    issue(mf)
    zero()
    housekeeping_acc()
    if cfg['p2']:
        gap = cfg['p2'] - 16
        while gap > 0:
            a(f's_nop {min(gap, 16) - 1}'); gap -= 16
        issue(mf+12)
    if cfg['mhint'] == 0:
        for _ in range(cfg['mhnop']): a('s_nop 3')
        a(mh)
    attempt(mf, (3 if cfg['p2'] else 0) + (cfg['mhint'] == 0), cfg['mhint'] >= 2)
    a(f's_cbranch_vccnz {retry};nf\n{d}:;nf')
    def coldp():
        a(f'{retry}:\ns_nop 7')
        if cfg['p2']:
            a.label(l)
            issue(mf)
            zero()
            attempt(mf+12, 3, cfg['mhint'] == 3)
            a(f's_cbranch_vccz {d}')
            issue(mf+12)
            zero()
            attempt(mf, 3, cfg['mhint'] == 3)
        else:
            a.label(l)
            issue(mf)
            zero()
            attempt(mf, 0, cfg['mhint'] == 3)
        a(f"""
        s_cbranch_vccz {d}
        s_cmp_lt_u32 s{S_SPIN}, s{S_LIM}
        s_cbranch_scc1 {l}
        s_mov_b32 s{S_LIM}, 1
        s_branch {d}
        """)
    a.cold.append(coldp)
    stamp(a, stamps, 4)
    if cfg['mhint'] == 1: a(mh)
    if stamps: a(f's_mov_b32 s{40+2*7}, s{S_SPIN}')
    if cfg.get('wgd'): a(f's_add_u32 s83, s83, s{S_SPIN}')
    if cfg['flags']: a(f"v_readfirstlane_b32 s{S_CV}, v{V['cu']}")
    hiw = a.newlabel('L_cbh'); nh = nh0; ny = a.newlabel('L_cny')
    def chores():
        if cfg['flags']:
            slow2 = a.newlabel('L_us'); back2 = a.newlabel('L_ub')
            a(f's_cmp_lt_u32 s{S_CV}, 28\ns_cbranch_scc1 {slow2}\n{back2}:')
            def coldu():
                a.label(slow2)
                wait_cnt(a, S_CU, 28, 174)
                a(f's_branch {back2}')
            a.cold.append(coldu)
        step_advance(a, 458752)
        a(pre)
        housekeeping(a, False)
    def hi_tail():
        w2 = a.newlabel('L_cw2')
        ld = lambda r: f"buffer_load_dword v{r}, v{V['hm']}, {WSRD}, s{S_T1} offen sc1"
        a(f"""
{hiw}:
        s_add_u32 s{S_T1}, s{S_MOFF}, 8192
        s_cmp_eq_u32 s{S_WAVE}, 2
        s_cbranch_scc1 {w2}
        {ld(HT[0])}
        s_waitcnt lgkmcnt(0)
        {ld(HT[1])}
        s_barrier
        {ld(HT[2])}
        """)
        stamp(a, stamps, 5)
        chores()
        wait_hint(a, V['hm'], S_MOFF, HT, delay=cfg['cdelay'], inner=cfg['hinner'], primed=True)
        a(f's_branch {nh}\n{w2}:\ns_waitcnt lgkmcnt(0)\ns_barrier')
        if cfg['cq']: a(f"s_sleep {cfg['cq']}")
        stamp(a, stamps, 5)
        chores()
        a(f's_branch {nh}')
    a.cold.append(hi_tail)
    a(f"""
    v_pk_add_f32 v[{R}:{R+1}], v[{A}:{A+1}], v[{A+2}:{A+3}]
    v_pk_add_f32 v[{R+2}:{R+3}], v[{A+4}:{A+5}], v[{A+6}:{A+7}]
    ds_write_b128 v{V['rw']}, v[{R}:{R+3}] offset:{LDS_RED}
    s_cmp_ge_u32 s{S_WAVE}, 2
    s_cbranch_scc1 {hiw}
    s_waitcnt lgkmcnt(0)
    s_barrier
    ds_read_b64 v[{R}:{R+1}], v{V['rr']} offset:{LDS_RED}
    ds_read_b64 v[{R+2}:{R+3}], v{V['rr']} offset:{LDS_RED+1024}
    ds_read_b64 v[{R+4}:{R+5}], v{V['rr']} offset:{LDS_RED+2048}
    ds_read_b64 v[{R+6}:{R+7}], v{V['rr']} offset:{LDS_RED+3072}
    s_waitcnt lgkmcnt(2)
    v_pk_add_f32 v[{R}:{R+1}], v[{R}:{R+1}], v[{R+2}:{R+3}]
    s_waitcnt lgkmcnt(0)
    v_pk_add_f32 v[{R+4}:{R+5}], v[{R+4}:{R+5}], v[{R+6}:{R+7}]
    v_pk_add_f32 v[{R}:{R+1}], v[{R}:{R+1}], v[{R+4}:{R+5}]
    v_cvt_pk_bf16_f32 v9, v{R}, v{R+1}
    buffer_store_dword v9, v{V['mw']}, {WSRD}, s{S_MOFF} offen {pf}
    """)
    stamp(a, stamps, 5)
    a(f"""
    s_cmp_lt_u32 s{S_STEP}, 62
    s_cbranch_scc1 {ny}
    s_add_u32 s{S_T0}, s{S_MOFF}, {L.MB_Y - L.MB_M}
    buffer_store_dword v9, v{V['mw']}, {WSRD}, s{S_T0} offen sc1
{ny}:
    """)
    chores()
    a(f's_branch {nh}')
    while a.cold: a.flush_cold()

def helper_cu(a, cfg):
    V = dict(l8=0, pa=1, idx=2, mf=12); LN = 112
    NP = cfg['npf']; D = cfg['pfd']; PER = cfg['pfper']
    a(f'v_mov_b32 v{LN}, v1')
    team_register(a)
    common_addrs(a, V, LN)
    a(f"""
    v_lshlrev_b32 v4, 7, v{LN}
    v_mov_b32 v3, v4
    v_mov_b32 v5, 0
    v_mov_b32 v6, 14
    s_sub_u32 s{S_ROLE}, s{S_ROLE}, 30
    s_lshl_b32 s{S_EOFF}, s{S_ROLE}, 2
    s_add_u32 s{S_EOFF}, s{S_EOFF}, s{S_WAVE}
    s_mov_b32 s{S_STEP}, 0
    s_mov_b32 s{S_MOFF}, {L.MB_M + 8192}
    s_mov_b32 s{S_CV}, {L.DUMMY + 0x200000}
    s_mul_i32 s{S_GOFF}, s{S_EOFF}, 7168
    s_add_u32 s{S_GOFF}, s{S_GOFF}, {L.XN}
    s_mov_b32 s{S_POFF}, 28672
    s_cmp_lt_u32 s{S_EOFF}, 4
    s_cbranch_scc1 H_t
    s_sub_u32 s{S_GOFF}, s{S_EOFF}, 4
    s_mul_i32 s{S_GOFF}, s{S_GOFF}, 6144
    s_add_u32 s{S_GOFF}, s{S_GOFF}, {L.MB_P}
    s_mov_b32 s{S_POFF}, 16384
    s_cmp_lt_u32 s{S_EOFF}, 6
    s_cbranch_scc1 H_t
    s_mov_b32 s{S_GOFF}, {L.MB_M + 8192}
    s_mov_b32 s{S_POFF}, 8192
    s_cmp_lt_u32 s{S_EOFF}, {7 if cfg['tlb'] else 8}
    s_cbranch_scc1 H_t
    s_mov_b32 s{S_GOFF}, {L.U + cfg['tlb']*458752}
    s_mov_b32 s{S_POFF}, 458752
    v_mul_u32_u24 v3, 7168, v{LN}
H_t:
    """)
    def mtouch():
        a(f'buffer_load_dword v7, v3, {WSRD}, s{S_GOFF} offen sc1\ns_add_u32 s{S_GOFF}, s{S_GOFF}, s{S_POFF}')
    if cfg['fused']: wait_ln(a, LN, 100)
    team_mode(a, V['mf'], V['mf']+1)
    a(f's_mov_b32 s{S_LIM}, {SPIN_MAX*4}')
    a(f"""
    s_getpc_b64 s[70:71]
H_pc:
    s_lshl_b32 s{S_T0}, s{S_EOFF}, 12
    v_lshrrev_b32 v10, 1, v4
    s_add_u32 s70, s70, s{S_T0}
    s_addc_u32 s71, s71, 0
    s_add_u32 s70, s70, L_nothelp-H_pc
    s_addc_u32 s71, s71, 0
    s_mov_b32 s72, s{S_GOFF}
    s_mov_b32 s{S_SPIN}, 0
    s_mov_b32 s73, {L.MB_P}
H_warm:
    s_mov_b32 s{S_GOFF}, s72
    global_load_dword v8, v10, s[70:71] sc1
    """)
    for _ in range(D+1): mtouch()
    a(f"""
    buffer_load_dword v9, v5, {WSRD}, s73 offen sc1
    s_add_u32 s{S_SPIN}, s{S_SPIN}, 1
    s_waitcnt vmcnt(0)
    v_cmp_eq_u32 vcc, -1, v9
    s_cbranch_vccz H_warmed
    s_sleep 8
    s_cmp_lt_u32 s{S_SPIN}, s{S_LIM}
    s_cbranch_scc1 H_warm
H_warmed:
    """)
    mul = {2: (128, 8), 3: (86, 8)}[PER]
    for k in range(NP):
        a(f"""
        s_add_u32 s{S_T0}, s{S_EOFF}, {8*k}
        s_min_u32 s{S_T0}, s{S_T0}, {14*PER-1}
        s_mul_i32 s{S_T1}, s{S_T0}, {mul[0]}
        s_lshr_b32 s{S_T1}, s{S_T1}, {mul[1]}
        s_mul_i32 s{S_T1}, s{S_T1}, {4-PER}
        s_add_u32 s{S_T0}, s{S_T0}, s{S_T1}
        s_lshl_b32 s{60+k}, s{S_T0}, 13
        s_add_u32 s{60+k}, s{60+k}, {L.U}
        """)
    def utouch():
        for k in range(NP):
            a(f'buffer_load_dword v{32+k}, v4, {WSRD}, s{60+k} offen sc1\ns_add_u32 s{60+k}, s{60+k}, 458752')
    a(f's_mov_b32 s{S_CU}, {L.CNT_U}')
    for _ in range(D if NP else 0):
        if cfg['flags']: wait_cnt(a, S_CU, 28, 30)
        utouch()
        a(f's_add_u32 s{S_CU}, s{S_CU}, 128')
    t = V['mf']; pa = V['pa']
    sk = a.newlabel('H_sk'); sk2 = a.newlabel('H_sk'); ok = a.newlabel('H_ok')
    a(f"""
H_top:
    s_mov_b32 s{S_SPIN}, 0
H_poll:
    buffer_load_dwordx4 v[{t}:{t+3}], v{pa}, {WSRD}, s{S_MOFF} offen sc1
    buffer_load_dwordx4 v[{t+4}:{t+7}], v{pa}, {WSRD}, s{S_MOFF} offen offset:768 sc1
    buffer_load_dword v30, v5, {WSRD}, s{S_CU} offen sc1
    s_add_u32 s{S_SPIN}, s{S_SPIN}, 1
    s_waitcnt vmcnt(0)
    v_max3_u32 v{t+8}, v{t}, v{t+1}, v{t+2}
    v_max3_u32 v{t+8}, v{t+8}, v{t+3}, v{t+4}
    v_max3_u32 v{t+8}, v{t+8}, v{t+5}, v{t+6}
    v_max_u32 v{t+8}, v{t+8}, v{t+7}
    v_readfirstlane_b32 s{S_T0}, v30
    v_cmp_eq_u32 vcc, -1, v{t+8}
    s_cbranch_vccz {ok}
    s_sleep {cfg['hsleep']}
    s_cmp_lt_u32 s{S_SPIN}, s{S_LIM}
    s_cbranch_scc1 H_poll
    s_mov_b32 s{S_LIM}, 1
{ok}:
    s_cmp_lg_u32 s{S_ROLE}, 0
    s_cbranch_scc1 {sk}
    s_add_u32 s{S_T1}, s{S_MOFF}, {L.MB_Y - L.MB_M}
    buffer_store_dwordx4 v[{t}:{t+3}], v{pa}, {WSRD}, s{S_T1} offen sc1
    buffer_store_dwordx4 v[{t+4}:{t+7}], v{pa}, {WSRD}, s{S_T1} offen offset:768 sc1
{sk}:
    s_cmp_ge_u32 s{S_STEP}, {63 - D}
    s_cbranch_scc1 {sk2}
    """)
    mtouch()
    if NP:
        sk3 = a.newlabel('H_sk'); sk4 = a.newlabel('H_sk')
        if cfg['flags']: a(f's_cmp_lt_u32 s{S_T0}, 28\ns_cbranch_scc1 {sk3}')
        utouch()
        a(f's_branch {sk4}\n{sk3}:')
        for k in range(NP): a(f's_add_u32 s{60+k}, s{60+k}, 458752')
        a(f'{sk4}:\ns_add_u32 s{S_CU}, s{S_CU}, 128')
    a(f"""
{sk2}:
    s_add_u32 s{S_STEP}, s{S_STEP}, 1
    s_add_u32 s{S_MOFF}, s{S_MOFF}, 8192
    s_cmp_lt_u32 s{S_STEP}, 62
    s_cbranch_scc1 H_top
    s_branch L_exit
    """)

DEFAULT_CFG = dict(ba=[35, 35, 34, 34], bak=3, bb=[53, 53, 0, 0], xflags='', ssleep=[2, 2, 2, 0], csleep=0, psleep=0, touch=1,
                   nou=0, nox=0, cflush=1, flags=0, ustep=3, hsleep=2, mdelay=18, pdelay=0, phint=9, lead=[4, 1], pnop=[0, 8], b5nop=2, npf=0, pfper=2, hdepth=4, hpre=10, psl=3, fl=1, mhk=0, px=9, quiet=7, cq=1, al=None, prio=[0, 0, 0, 0], wfl='', fused=0, cpk=0, tlb=0, xin=0, xstep=3, xs=2, xw=[(0, 9), (9, 18), (18, 28), (0, 0)], pbar=1, scap=None, ccap=None, m2=0, mdma=1, m2d=0, msamp=0, cdma=1, m2w=10, p2=32, cutrig=1, hinner=2, uearly=4, mhint=1, mhnop=0, sdrain=0, pfd=3, mpre=6, chint=1, cdelay=20)

def team_body(a, stamps=False, cfg=None):
    cfg = dict(DEFAULT_CFG, **(cfg or {}))
    a(f's_cmp_lt_u32 s{S_ROLE}, 30\ns_cbranch_scc1 L_nothelp')
    helper_cu(a, cfg)
    a.label('L_nothelp')
    a(f's_cmp_ge_u32 s{S_ROLE}, 16\ns_cbranch_scc1 L_comb')
    score_setup(a, stamps, cfg)
    for fast in (1, 0):
        a(f's_cmp_lg_u32 s{S_FAST}, {fast}\ns_cbranch_scc1 L_sc_next{fast}')
        for w in range(4):
            if w < 3:
                a(f's_cmp_lg_u32 s{S_WAVE}, {w}\ns_cbranch_scc1 L_sc{fast}_n{w}')
            score_wave(a, w, '' if fast else 'sc1', stamps, cfg)
            if w < 3: a.label(f'L_sc{fast}_n{w}')
        a.label(f'L_sc_next{fast}')
    a('s_branch L_exit')
    a.label('L_comb')
    comb_setup(a, stamps, cfg)
    for fast in (1, 0):
        a(f's_cmp_lg_u32 s{S_FAST}, {fast}\ns_cbranch_scc1 L_cb_next{fast}')
        comb_wave(a, '' if fast else 'sc1', stamps, cfg)
        a.label(f'L_cb_next{fast}')
    a('s_branch L_exit')
```

```python
from asmlib import *
import layout as L
from team import Q, xlane4

KA = dict(x=0, mem0=8, wq=16, wk=24, wv=32, wo=40, w1=64, w2=72, out=80, dbg=88, ws=96)
LOG2E_16 = 0x3db8aa3b

def srd(a, d, lo, nbytes):
    a(f"""
    s_mov_b32 s{d}, s{lo}
    s_and_b32 s{d+1}, s{lo+1}, 0xffff
    s_mov_b32 s{d+2}, {nbytes}
    s_mov_b32 s{d+3}, 0x20000
    """)

WO_STRIDE = 144
def prep_kernel(a, diag=False, stfl='sc1', touch=1, a1up=1, ldfl='', t0=False, fused=False, early=1, bfl=None, dyn=0):
    WS, SA, SB = 8, 12, (64 if fused else 16)
    ldfl_b = ldfl if bfl is None else bfl
    a(f"""
    s_load_dwordx8 s[24:31], s[0:1], {KA['wq']}
    s_load_dwordx4 s[32:35], s[0:1], {KA['x']}
    s_cmp_ge_u32 s2, 256
    s_cbranch_scc1 {'L_end' if fused else 'P_exit'}
    """)
    if dyn:
        a(f"""
        s_load_dwordx2 s[6:7], s[0:1], {KA['dbg']}
        s_getreg_b32 s19, hwreg(HW_REG_XCC_ID, 0, 4)
        v_mov_b32 v4, 0
        v_cmp_eq_u32 vcc, 0, v0
        s_and_saveexec_b64 s[44:45], vcc
        s_cbranch_execz P_dw
        s_mov_b32 s18, 0
        s_waitcnt lgkmcnt(0)
P_dt:
        s_add_u32 s21, s19, s18
        s_and_b32 s21, s21, 7
        s_lshl_b32 s22, s21, 5
        v_mov_b32 v2, s22
        v_mov_b32 v3, 1
        global_atomic_add v3, v2, v3, s[6:7] sc0
        s_waitcnt vmcnt(0)
        v_readfirstlane_b32 s22, v3
        s_cmp_lt_u32 s22, 32
        s_cbranch_scc1 P_dg
        s_add_u32 s18, s18, 1
        s_cmp_lt_u32 s18, 8
        s_cbranch_scc1 P_dt
        s_mov_b32 s22, 31
P_dg:
        s_lshl_b32 s22, s22, 3
        s_add_u32 s22, s22, s21
        v_mov_b32 v2, s22
        ds_write_b32 v4, v2
        s_waitcnt lgkmcnt(0)
P_dw:
        s_mov_b64 exec, -1
        s_barrier
        ds_read_b32 v2, v4
        s_waitcnt lgkmcnt(0)
        v_readfirstlane_b32 s2, v2
        s_barrier
        """)
    a(f"""
    s_and_b32 s21, s2, 7
    s_lshr_b32 s22, s2, 3
    """)
    if early:
        a(f"""
        s_mul_i32 s23, s22, 37
        s_lshr_b32 s23, s23, 8
        s_mul_i32 s36, s23, 7
        s_sub_u32 s36, s22, s36
        s_lshl_b32 s37, s21, 1
        s_lshr_b32 s38, s23, 1
        s_add_u32 s38, s38, s37
        s_lshl_b32 s46, s36, 19
        s_lshl_b32 s47, s38, 9
        s_add_u32 s46, s46, s47
        v_lshrrev_b32 v9, 2, v0
        v_and_b32 v10, 3, v0
        v_lshlrev_b32 v9, 13, v9
        v_lshl_add_u32 v9, v10, 7, v9
        v_add_u32 v9, s46, v9
        s_cmp_ge_u32 s22, 28
        s_cbranch_scc1 P_e2
        s_bitcmp1_b32 s23, 0
        s_waitcnt lgkmcnt(0)
        s_cbranch_scc1 P_e1
        global_load_dword v14, v9, s[26:27] {ldfl}
        global_load_dword v15, v9, s[24:25] {ldfl}
        s_branch P_e2
P_e1:
        s_mul_i32 s46, s38, 229376
        s_lshl_b32 s47, s36, 7
        s_add_u32 s46, s46, s47
        v_mul_u32_u24 v10, 896, v0
        v_add_u32 v10, s46, v10
        global_load_dword v14, v10, s[30:31] {ldfl}
        global_load_dword v15, v9, s[28:29] {ldfl}
P_e2:
        """)
        touch = 0
    a(f"""
    s_load_dwordx2 s[4:5], s[0:1], {KA['ws']}
    s_load_dwordx2 s[6:7], s[0:1], {KA['dbg']}
    v_lshrrev_b32 v2, 6, v0
    v_and_b32 v1, 63, v0
    v_readfirstlane_b32 s20, v2
    s_waitcnt lgkmcnt(0)
    """)
    srd(a, WS, 4, L.WS_BYTES)
    if t0:
        a(f"""
        s_cmp_lg_u32 s2, 0
        s_cbranch_scc1 P_t0
        s_memrealtime s[60:61]
        s_mov_b32 s62, {L.STAMP + 0xf0000}
        v_mov_b32 v5, 0
        s_waitcnt lgkmcnt(0)
        v_mov_b32 v4, s60
        buffer_store_dword v4, v5, s[{WS}:{WS+3}], s62 offen sc1
P_t0:
        """)
    DB = 56
    if fused:
        srd(a, DB, 6, 256)
        a(f"""
        s_getreg_b32 s19, hwreg(HW_REG_XCC_ID, 0, 4)
        s_and_b32 s19, s19, 7
        s_lshl_b32 s19, s19, 2
        v_mov_b32 v249, 128
        v_mov_b32 v250, 1
        s_cmp_lg_u32 s20, 0
        s_cbranch_scc1 P_na
        s_mov_b64 exec, 1
        v_mov_b32 v251, s19
        buffer_atomic_add v250, v251, s[{DB}:{DB+3}], 0 offen sc0
        s_cmp_lg_u32 s2, 0
        s_cbranch_scc1 P_nt
        s_memrealtime s[80:81]
        s_waitcnt lgkmcnt(0)
        s_lshl_b64 s[80:81], s[80:81], 3
        s_or_b32 s81, s81, 0x80000000
        v_mov_b32 v252, s80
        v_mov_b32 v253, s81
        buffer_store_dwordx2 v[252:253], v249, s[{DB}:{DB+3}], 0 offen sc1
P_nt:
        s_mov_b64 exec, -1
P_na:
        """)
    tagld = f'buffer_load_dwordx2 v[252:253], v249, s[{DB}:{DB+3}], 0 offen sc1'
    def tag_take():
        l = a.newlabel('P_tg'); d = a.newlabel('P_tgd')
        a(f"""
        s_mov_b32 s19, 0
{l}:
        v_readfirstlane_b32 s80, v252
        v_readfirstlane_b32 s81, v253
        s_cmp_lg_u32 s81, 0
        s_cbranch_scc1 {d}
        {tagld}
        s_add_u32 s19, s19, 1
        s_waitcnt vmcnt(0)
        s_cmp_lt_u32 s19, 100000
        s_cbranch_scc1 {l}
{d}:
        v_mov_b32 v254, 0
        """)
    def flag(prog):
        return f"""v_add_u32 v252, {prog}, v252
            s_mov_b64 exec, 1
            buffer_store_dwordx2 v[252:253], v254, s[{WS}:{WS+3}], s18 offen sc1
            s_mov_b64 exec, -1"""
    def st(k):
        if diag: a(f's_memtime s[{60+2*k}:{61+2*k}]')
    if diag:
        for k in range(8): a(f's_mov_b64 s[{60+2*k}:{61+2*k}], 0')
    st(0)
    nfill = L.CNT + L.CNT_BYTES - L.MB_M
    assert nfill % (256*4096) == 0 or True
    nwg = 192 if fused else 256
    per = (nfill + nwg - 1) // nwg
    per = (per + 4095) // 4096 * 4096
    def fill_boxes():
        a(f"""
        v_lshlrev_b32 v240, 4, v0
        v_mov_b32 v244, -1
        v_mov_b32 v245, -1
        v_mov_b32 v246, -1
        v_mov_b32 v247, -1
        s_mul_i32 s53, {'s23' if fused else 's2'}, {per}
        s_add_u32 s53, s53, {L.MB_M}
        """)
        assert L.MB_M + nwg*per <= L.STAMP
        for k in range(per // 4096):
            l = a.newlabel('P_fs')
            a(f"""
            s_add_u32 s54, s53, {k*4096}
            s_and_b32 s55, s54, 0xffffe000
            s_cmp_eq_u32 s55, {L.MB_M}
            s_cbranch_scc1 {l}
            s_cmp_eq_u32 s55, {L.MB_Y}
            s_cbranch_scc1 {l}
            s_cmp_ge_u32 s54, {L.CNT}
            s_cselect_b32 s55, 0, -1
            v_mov_b32 v244, s55
            v_mov_b32 v245, s55
            v_mov_b32 v246, s55
            v_mov_b32 v247, s55
            buffer_store_dwordx4 v[244:247], v240, s[{WS}:{WS+3}], s54 offen {stfl}
{l}:
            """)
    if fused:
        a(f"""
        s_mul_i32 s23, s21, 28
        s_add_u32 s23, s23, s22
        s_lshl_b32 s18, s21, 2
        s_add_u32 s18, s18, s22
        s_add_u32 s18, s18, {224-28}
        s_cmp_ge_u32 s22, 28
        s_cselect_b32 s18, s18, s23
        s_lshl_b32 s18, s18, 2
        s_add_u32 s18, s18, s20
        s_lshl_b32 s18, s18, 3
        s_add_u32 s18, s18, {L.FL}
        s_cmp_ge_u32 s22, 28
        s_cbranch_scc1 P_ln
        s_mul_i32 s21, s23, 9363
        s_lshr_b32 s21, s21, 16
        s_mul_i32 s36, s21, 7
        s_sub_u32 s36, s23, s36
        """)
    else:
        a(f"""
        s_cmp_ge_u32 s22, 28
        s_cbranch_scc1 P_ln
        s_mul_i32 s23, s22, 37
        s_lshr_b32 s23, s23, 8
        s_mul_i32 s36, s23, 7
        s_sub_u32 s36, s22, s36
        s_lshl_b32 s21, s21, 2
        s_add_u32 s21, s21, s23
        """)
    a(f"""
    s_and_b32 s37, s21, 1
    s_lshr_b32 s38, s21, 1
    s_cmp_eq_u32 s37, 0
    s_cselect_b32 s40, s24, s28
    s_cselect_b32 s41, s25, s29
    s_cselect_b32 s42, s26, s30
    s_cselect_b32 s43, s27, s31
    """)
    srd(a, SA, 40, 448*8192)
    srd(a, SB, 42, 448*8192)
    BF = 0
    AFR = lambda p: 32 + 64*p
    ACC = lambda p: 160 + 32*p
    OUT = 224
    SLOT = lambda k: (k & 1)*65536
    breg = lambda ks, nt: BF + (ks*4 + nt)*4
    a(f"""
    s_lshl_b32 s39, s20, 2
    s_cmp_eq_u32 s20, 3
    s_cselect_b32 s39, 11, s39
    v_and_b32 v4, 15, v1
    v_lshrrev_b32 v5, 4, v1
    v_lshrrev_b32 v6, 5, v1
    v_and_b32 v7, 31, v1
    v_xor_b32 v7, v7, v6
    v_lshlrev_b32 v8, 13, v6
    v_lshl_add_u32 v8, v7, 4, v8
    s_lshl_b32 s50, s20, 14
    s_lshl_b32 s44, s39, 18
    s_lshl_b32 s45, s38, 9
    s_add_u32 s44, s44, s45
    """)
    if touch:
        a(f"""
        v_lshrrev_b32 v9, 2, v0
        v_lshlrev_b32 v9, 13, v9
        v_and_b32 v10, 3, v0
        v_lshl_add_u32 v9, v10, 7, v9
        """)
        if False:
            a(f"""
            s_sub_u32 s46, s23, s36
            s_and_b32 s47, s23, 0xe0
            s_max_u32 s49, s46, s47
            s_add_u32 s46, s46, 7
            s_add_u32 s47, s47, 32
            s_min_u32 s46, s46, s47
            s_sub_u32 s47, s46, s49
            s_sub_u32 s49, s23, s49
P_tch:
            s_lshl_b32 s46, s49, 19
            s_add_u32 s46, s46, s45
            buffer_load_dword v15, v9, s[{SA}:{SA+3}], s46 offen {ldfl}
            s_add_u32 s49, s49, s47
            s_cmp_lt_u32 s49, 7
            s_cbranch_scc1 P_tch
            """)
        else:
            a(f"""
            s_lshl_b32 s46, s36, 19
            s_add_u32 s46, s46, s45
            buffer_load_dword v15, v9, s[{SA}:{SA+3}], s46 offen {ldfl}
            """)
    for k in range(8):
        a(f'v_xor_b32 v{16+k}, {2*k*16}, v8')
    a(f"""
    v_lshrrev_b32 v6, 2, v4
    v_and_b32 v7, 3, v4
    v_lshl_add_u32 v6, v6, 3, v7
    v_lshlrev_b32 v6, 9, v6
    v_add_u32 v6, s50, v6
    v_xor_b32 v7, v5, v4
    """)
    for k in range(4):
        a(f'v_xor_b32 v9, {4*k}, v7\nv_lshl_add_u32 v{24+k}, v9, 4, v6')
    vq = Q('vmcnt', 63)
    def a_dma(blk, i_):
        xr = 16 + ((i_ >> 2)*2 + (i_ & 1))
        def f(lq=None):
            vq.issue(('a', blk))
            return (f's_add_u32 m0, s50, {SLOT(blk) + i_*1024}\ns_add_u32 s46, s44, {(blk*32 + i_*2)*8192}\n'
                    f'buffer_load_dwordx4 v{xr}, s[{SA}:{SA+3}], s46 offen lds')
        return f
    a('s_cmp_eq_u32 s37, 0\ns_cbranch_scc0 P_t1')
    a(f"""
    s_lshl_b32 s47, s36, 19
    s_add_u32 s47, s47, s45
    s_lshl_b32 s46, s20, 17
    s_add_u32 s47, s47, s46
    s_lshl_b32 s51, s20, 13
    s_mov_b32 s48, {LOG2E_16}
    """)
    for k in range(8):
        a(f's_add_u32 m0, s51, {131072 + k*1024}\ns_add_u32 s46, s47, {k*2*8192}\nbuffer_load_dwordx4 v{16+k}, s[{SB}:{SB+3}], s46 offen {ldfl_b} lds')
    a(f"""
    s_branch P_tj
P_t1:
    v_lshrrev_b32 v10, 3, v1
    v_and_b32 v11, 7, v1
    v_mul_u32_u24 v9, 896, v10
    v_and_b32 v12, 2, v10
    v_xor_b32 v11, v11, v12
    v_lshl_add_u32 v9, v11, 4, v9
    v_xor_b32 v13, 64, v9
    s_mul_i32 s47, s38, 229376
    s_lshl_b32 s46, s36, 7
    s_add_u32 s47, s47, s46
    s_mul_i32 s46, s20, {64*896}
    s_add_u32 s47, s47, s46
    s_lshl_b32 s51, s20, 13
    s_mov_b32 s48, 1.0
    """)
    for k in range(8):
        a(f's_add_u32 m0, s51, {131072 + k*1024}\ns_add_u32 s46, s47, {k*8*896}\nbuffer_load_dwordx4 v{13 if k & 1 else 9}, s[{SB}:{SB+3}], s46 offen {ldfl_b} lds')
    a.label('P_tj')
    st(1)
    for i_ in range(16): a(a_dma(0, i_)())
    if a1up:
        for i_ in range(16): a(a_dma(1, i_)())
    if fused:
        a(tagld); vq.issue('tag')
    a(f's_waitcnt vmcnt({(32 if a1up else 16) + fused})\ns_barrier')
    st(2)
    a('s_cmp_eq_u32 s37, 0\ns_cbranch_scc0 P_r1')
    a(f'v_lshlrev_b32 v6, 9, v4\nv_add_u32 v6, 131072, v6')
    for k in range(4):
        a(f'v_xor_b32 v9, {4*k}, v7\nv_lshl_add_u32 v{28+k}, v9, 4, v6')
    for ks in range(8):
        for nt in range(4):
            a(f'ds_read_b128 a[{breg(ks,nt)}:{breg(ks,nt)+3}], v{28+(ks&3)} offset:{nt*8192 + (ks>>2)*256}')
            if nt & 1 and not a1up: a(a_dma(1, ks*2 + (nt >> 1))())
    if not a1up: vq.n -= 16
    a(f"""
    s_branch P_rj
P_r1:
    v_bfe_u32 v10, v1, 2, 2
    v_lshl_add_u32 v11, v5, 3, v10
    v_lshlrev_b32 v13, 7, v11
    v_add_u32 v13, 131072, v13
    v_and_b32 v11, 3, v1
    v_lshl_add_u32 v13, v11, 3, v13
    v_lshrrev_b32 v10, 1, v10
    v_and_b32 v11, 1, v5
    v_lshl_add_u32 v10, v11, 1, v10
    """)
    for nt in range(4):
        a(f'v_xor_b32 v9, {nt}, v10\nv_lshl_add_u32 v{28+nt}, v9, 5, v13')
    for ks in range(8):
        for nt in range(4):
            for hf in range(2):
                r = breg(ks, nt) + 2*hf
                a(f'ds_read_b64_tr_b16 a[{r}:{r+1}], v{28+nt} offset:{(ks*32+hf*4)*128}')
            if nt & 1 and not a1up: a(a_dma(1, ks*2 + (nt >> 1))())
    a(f"""
P_rj:
    s_mul_i32 s52, s37, 448
    s_mul_i32 s47, s38, 28
    s_add_u32 s52, s52, s47
    s_lshl_b32 s47, s36, 2
    s_add_u32 s52, s52, s47
    s_mul_i32 s52, s52, 14336
    s_lshl_b32 s47, s39, 10
    s_add_u32 s52, s52, s47
    s_add_u32 s52, s52, {L.WT}
    s_mov_b32 s49, s48
    v_lshlrev_b32 v3, 4, v1
    s_waitcnt vmcnt({16 + fused})
    """)
    def a_read(blk, hf, ks):
        r = AFR(blk & 1) + (hf*8+ks)*4
        off = hf*4*512 + (ks >> 2)*256
        return f'ds_read_b128 v[{r}:{r+3}], v{24+(ks&3) if not blk & 1 else 10+(ks&3)} offset:{off}'
    for k in range(4): a(f'v_add_u32 v{10+k}, 65536, v{24+k}')
    for hf in range(2):
        for ks in range(8): a(a_read(0, hf, ks))
    if fused: a('s_cmp_ge_u32 s23, 192\ns_cbranch_scc1 P_nf')
    fill_boxes()
    if fused: a.label('P_nf')
    a('s_waitcnt lgkmcnt(0)')
    from team import Gaps, emit_stream
    def epi(blk):
        va = []; stt = []
        for nt in range(4):
            ca = ACC(blk & 1) + nt*4; cb = ACC(blk & 1) + (4+nt)*4; o = OUT + nt*4
            v = [f'v_pk_mul_f32 v[{c}:{c+1}], v[{c}:{c+1}], s[48:49]' for c in (ca, ca+2, cb, cb+2)]
            v += [f'v_cvt_pk_bf16_f32 v{o}, v{ca}, v{ca+1}', f'v_cvt_pk_bf16_f32 v{o+1}, v{ca+2}, v{ca+3}',
                  f'v_cvt_pk_bf16_f32 v{o+2}, v{cb}, v{cb+1}', f'v_cvt_pk_bf16_f32 v{o+3}, v{cb+2}, v{cb+3}']
            va.append(v)
            def sf(lq=None, nt=nt, o=o):
                vq.issue(('st', blk))
                return f's_add_u32 s47, s52, {nt*14336}\nbuffer_store_dwordx4 v[{o}:{o+3}], v3, s[{WS}:{WS+3}], s47 offen offset:{blk*1024} {stfl}'
            stt.append(sf)
        return va, stt
    lq = Q('lgkmcnt', 15)
    for blk in range(4):
        if blk == 3:
            a('s_cmp_lt_u32 s20, 2\ns_cbranch_scc1 P_b3')
            va, stt = epi(2)
            n0 = vq.n
            for nt in range(4):
                for x in va[nt]: a(x)
                a(stt[nt]())
            vq.n = n0
            a('s_branch P_last\nP_b3:')
        ms = []
        for hf in range(2):
            for ks in range(8):
                r = AFR(blk & 1) + (hf*8+ks)*4
                for nt in range(4):
                    c = ACC(blk & 1) + (hf*4+nt)*4
                    ms.append((f'v_mfma_f32_16x16x32_bf16 v[{c}:{c+3}], v[{r}:{r+3}], a[{breg(ks,nt)}:{breg(ks,nt)+3}], ' + ('0' if ks == 0 else f'v[{c}:{c+3}]'), []))
        gp = Gaps(64)
        g = 0
        if blk + 2 < 4:
            for i_ in range(16): g = gp.put('ds', g, a_dma(blk+2, i_)) + 3
        if blk > 0:
            va, stt = epi(blk-1)
            g2 = 3
            for nt in range(4):
                for x in va[nt]: g2 = gp.put('va', g2, x) + 1
                gp.put('ds', g2+1, stt[nt])
        if blk + 1 < 4:
            gp.force('ds', 44, lambda lq, b=blk+1: vq.wait(('a', b)))
            g = 44
            for hf in range(2):
                for ks in range(8):
                    gp.force('ds', g, a_read(blk+1, hf, ks)); g += 1
            gp.force('va', 63, 's_waitcnt lgkmcnt(0)')
        if fused and blk == 2:
            gp.force('va', 45, lambda lq: vq.wait(('st', 0)) + '\n' + flag(1) + (vq.issue() or ''))
        emit_stream(a, ms, gp, lq)
        if fused and blk == 0:
            a(vq.wait('tag') or 's_nop 0'); tag_take()
        if blk == 0: st(3)
    va, stt = epi(3)
    for nt in range(4):
        for x in va[nt]: a(x)
        a(stt[nt]())
    a.label('P_last')
    if fused: a('s_waitcnt vmcnt(0)\n' + flag(6))
    a('s_branch P_exit')
    a.label('P_ln')
    srd(a, SA, 32, 2048*896)
    srd(a, SB, 34, 8*896)
    X = 16
    U = 80
    a(f"""
    s_sub_u32 s22, s22, 28
    s_lshl_b32 s21, s21, 2
    s_add_u32 s21, s21, s22
    s_lshl_b32 s21, s21, 2
    s_add_u32 s21, s21, s20
    v_lshrrev_b32 v4, 2, v1
    v_and_b32 v5, 3, v1
    v_mul_u32_u24 v6, 896, v4
    v_lshl_add_u32 v6, v5, 4, v6
    s_mul_i32 s23, s21, {16*896}
    """)
    for kb in range(14):
        a(f'buffer_load_dwordx4 v[{X+4*kb}:{X+4*kb+3}], v6, s[{SA}:{SA+3}], s23 offen offset:{kb*64} {ldfl}')
    if not fused: fill_boxes()
    l = a.newlabel('P_m0')
    a(f's_cmp_ge_u32 s21, 28\ns_cbranch_scc1 {l}')
    from team import img_addr
    img_addr(a, 8, 9, 1)
    a(f"""
    v_lshrrev_b32 v9, 4, v1
    v_mul_u32_u24 v9, {2*896}, v9
    v_and_b32 v7, 15, v1
    v_lshl_add_u32 v9, v7, 1, v9
    s_lshl_b32 s36, s21, 5
    buffer_load_ushort v200, v9, s[{SB}:{SB+3}], s36 offen
    buffer_load_ushort v201, v9, s[{SB}:{SB+3}], s36 offen offset:896
    s_lshr_b32 s36, s21, 2
    s_lshl_b32 s36, s36, 10
    s_and_b32 s37, s21, 3
    s_lshl_b32 s37, s37, 7
    s_add_u32 s36, s36, s37
    s_add_u32 s37, s36, {L.MB_Y}
    s_add_u32 s36, s36, {L.MB_M}
    s_waitcnt vmcnt(0)
    v_lshl_or_b32 v200, v201, 16, v200
    buffer_store_dword v200, v8, s[{WS}:{WS+3}], s36 offen {stfl}
    buffer_store_dword v200, v8, s[{WS}:{WS+3}], s37 offen {stfl}
{l}:
    s_waitcnt vmcnt(0)
    """)
    st(2)
    ln_rows(a, X, U, 56, 10, quadred)
    st(4)
    GS, KS = 288, 1152
    a(f"""
    s_mul_i32 s36, s20, {14*KS}
    v_mul_u32_u24 v7, {GS}, v5
    v_lshl_add_u32 v7, v4, 4, v7
    v_add_u32 v7, s36, v7
    v_lshlrev_b32 v3, 4, v1
    v_lshrrev_b32 v6, 4, v1
    v_mul_u32_u24 v6, {GS}, v6
    v_and_b32 v8, 15, v1
    v_lshl_add_u32 v8, v8, 4, v6
    v_add_u32 v8, s36, v8
    """)
    for kb in range(14):
        a(f'ds_write_b128 v7, v[{X+4*kb}:{X+4*kb+3}] offset:{kb*KS}')
    a(f"""
    s_mul_i32 s36, s21, 14336
    s_add_u32 s36, s36, {L.XN}
    """)
    st(3)
    for kb in range(14):
        a(f'ds_read_b128 v[{U+4*kb}:{U+4*kb+3}], v8 offset:{kb*KS}')
    for kb in range(14):
        if kb and kb % 4 == 0: a('s_add_u32 s36, s36, 4096')
        a(f's_waitcnt lgkmcnt({13-kb})')
        a(f'buffer_store_dwordx4 v[{U+4*kb}:{U+4*kb+3}], v3, s[{WS}:{WS+3}], s36 offen offset:{(kb%4)*1024} {stfl}')
    if fused:
        a(tagld + '\ns_waitcnt vmcnt(0)'); tag_take(); a(flag(7))
    a.label('P_exit')
    if fused: return
    if diag:
        a('s_cmp_ge_u32 s2, 256\ns_cbranch_scc1 P_exit2')
        st(5)
        a('s_waitcnt vmcnt(0)')
        st(6)
        a(f's_waitcnt lgkmcnt(0)\ns_lshl_b32 s36, s2, 2\ns_add_u32 s36, s36, s20\ns_lshl_b32 s36, s36, 6\ns_add_u32 s36, s36, {L.STAMP}\ns_mov_b64 exec, 1\nv_mov_b32 v3, 0')
        for k in range(7):
            a(f'v_mov_b32 v4, s{60+2*k}\nbuffer_store_dword v4, v3, s[{WS}:{WS+3}], s36 offen offset:{4*k}\ns_nop 1')
        a.label('P_exit2')
    a('s_endpgm')

def rnd_bf16(a, r, t):
    a(f'v_cvt_pk_bf16_f32 v{r}, v{r}, v{r}\nv_and_b32 v{r}, 0xffff0000, v{r}')

def quadred(a, x, t):
    a(f'v_add_f32_dpp v{x}, v{x}, v{x} quad_perm:[1,0,3,2] row_mask:0xf bank_mask:0xf')
    a(f'v_add_f32_dpp v{x}, v{x}, v{x} quad_perm:[2,3,0,1] row_mask:0xf bank_mask:0xf')

def ln_stats_finish(a, mu, rs, tt):
    rnd_bf16(a, rs, tt)
    a(f'v_add_f32 v{rs}, 0x3727c5ac, v{rs}')
    rnd_bf16(a, rs, tt)
    a(f'v_sqrt_f32 v{rs}, v{rs}')
    rnd_bf16(a, rs, tt)
    a(f'v_rcp_f32 v{rs}, v{rs}')
    rnd_bf16(a, mu, tt)

def ln_rows(a, X, U, n, t, red):
    s0, s1, d0, nm, rs = t, t+1, t+2, t+4, 76
    for i in range(n):
        a(f'v_lshlrev_b32 v{U+2*i}, 16, v{X+i}\nv_and_b32 v{U+2*i+1}, 0xffff0000, v{X+i}')
        if i == 1: a(f'v_pk_add_f32 v[{s0}:{s1}], v[{U}:{U+1}], v[{U+2}:{U+3}]')
        if i > 1: a(f'v_pk_add_f32 v[{s0}:{s1}], v[{s0}:{s1}], v[{U+2*i}:{U+2*i+1}]')
    a(f'v_add_f32 v{s0}, v{s0}, v{s1}')
    red(a, s0, d0)
    a(f'v_mul_f32 v{nm}, 0xbb124925, v{s0}\nv_mul_f32 v{nm+1}, 0xbb124925, v{s0}')
    for i in range(n):
        d = d0 if i & 1 else 72
        a(f'v_pk_add_f32 v[{d}:{d+1}], v[{U+2*i}:{U+2*i+1}], v[{nm}:{nm+1}]')
        if i == 0: a(f'v_pk_mul_f32 v[{s0}:{s1}], v[{d}:{d+1}], v[{d}:{d+1}]')
        else: a(f'v_pk_fma_f32 v[{s0}:{s1}], v[{d}:{d+1}], v[{d}:{d+1}], v[{s0}:{s1}]')
    a(f'v_add_f32 v{s0}, v{s0}, v{s1}')
    red(a, s0, d0)
    a(f'v_mul_f32 v{rs}, 0x3b124925, v{s0}')
    ln_stats_finish(a, nm, rs, d0)
    a(f'v_mov_b32 v{nm+1}, v{nm}\nv_mov_b32 v{rs+1}, v{rs}')
    for i in range(n):
        u = U+2*i
        a(f"""
        v_pk_add_f32 v[{u}:{u+1}], v[{u}:{u+1}], v[{nm}:{nm+1}]
        v_cvt_pk_bf16_f32 v{X+i}, v{u}, v{u+1}
        v_lshlrev_b32 v{u}, 16, v{X+i}
        v_and_b32 v{u+1}, 0xffff0000, v{X+i}
        v_pk_mul_f32 v[{u}:{u+1}], v[{u}:{u+1}], v[{rs}:{rs+1}]
        v_cvt_pk_bf16_f32 v{X+i}, v{u}, v{u+1}
        """)
```

```python
from asmlib import *
import layout as L
from team import Q, xlane4

KA = dict(x=0, mem0=8, wq=16, wk=24, wv=32, wo=40, w1=64, w2=72, out=80, dbg=88, ws=96)
LOG2E_16 = 0x3db8aa3b

def srd(a, d, lo, nbytes):
    a(f"""
    s_mov_b32 s{d}, s{lo}
    s_and_b32 s{d+1}, s{lo+1}, 0xffff
    s_mov_b32 s{d+2}, {nbytes}
    s_mov_b32 s{d+3}, 0x20000
    """)

WO_STRIDE = 144
def prep_kernel(a, diag=False, stfl='sc1', touch=1, a1up=0, ldfl='', t0=False, fused=False, early=1, bfl=None, dyn=0, code=1):
    WS, SA, SB = 8, 12, (64 if fused else 16)
    ldfl_b = ldfl if bfl is None else bfl
    if code:
        a(f"""
        s_getpc_b64 s[40:41]
P_pc:
        v_lshlrev_b32 v12, 7, v0
        global_load_dword v255, v12, s[40:41]
        """)
    a(f"""
    s_load_dwordx8 s[24:31], s[0:1], {KA['wq']}
    s_load_dwordx4 s[32:35], s[0:1], {KA['x']}
    s_cmp_ge_u32 s2, 256
    s_cbranch_scc1 {'L_end' if fused else 'P_exit'}
    """)
    if dyn:
        a(f"""
        s_load_dwordx2 s[6:7], s[0:1], {KA['dbg']}
        s_getreg_b32 s19, hwreg(HW_REG_XCC_ID, 0, 4)
        v_mov_b32 v4, 0
        v_cmp_eq_u32 vcc, 0, v0
        s_and_saveexec_b64 s[44:45], vcc
        s_cbranch_execz P_dw
        s_mov_b32 s18, 0
        s_waitcnt lgkmcnt(0)
P_dt:
        s_add_u32 s21, s19, s18
        s_and_b32 s21, s21, 7
        s_lshl_b32 s22, s21, 5
        v_mov_b32 v2, s22
        v_mov_b32 v3, 1
        global_atomic_add v3, v2, v3, s[6:7] sc0
        s_waitcnt vmcnt(0)
        v_readfirstlane_b32 s22, v3
        s_cmp_lt_u32 s22, 32
        s_cbranch_scc1 P_dg
        s_add_u32 s18, s18, 1
        s_cmp_lt_u32 s18, 8
        s_cbranch_scc1 P_dt
        s_mov_b32 s22, 31
P_dg:
        s_lshl_b32 s22, s22, 3
        s_add_u32 s22, s22, s21
        v_mov_b32 v2, s22
        ds_write_b32 v4, v2
        s_waitcnt lgkmcnt(0)
P_dw:
        s_mov_b64 exec, -1
        s_barrier
        ds_read_b32 v2, v4
        s_waitcnt lgkmcnt(0)
        v_readfirstlane_b32 s2, v2
        s_barrier
        """)
    a(f"""
    s_and_b32 s21, s2, 7
    s_lshr_b32 s22, s2, 3
    """)
    if early:
        a(f"""
        s_mul_i32 s23, s22, 37
        s_lshr_b32 s23, s23, 8
        s_mul_i32 s36, s23, 7
        s_sub_u32 s36, s22, s36
        s_lshl_b32 s37, s21, 1
        s_lshr_b32 s38, s23, 1
        s_add_u32 s38, s38, s37
        s_lshl_b32 s46, s36, 19
        s_lshl_b32 s47, s38, 9
        s_add_u32 s46, s46, s47
        v_lshrrev_b32 v9, 2, v0
        v_and_b32 v10, 3, v0
        v_lshlrev_b32 v9, 13, v9
        v_lshl_add_u32 v9, v10, 7, v9
        v_add_u32 v9, s46, v9
        s_cmp_ge_u32 s22, 28
        s_cbranch_scc1 P_e2
        s_bitcmp1_b32 s23, 0
        s_waitcnt lgkmcnt(0)
        s_cbranch_scc1 P_e1
        global_load_dword v14, v9, s[26:27] {ldfl}
        global_load_dword v15, v9, s[24:25] {ldfl}
        s_branch P_e2
P_e1:
        s_mul_i32 s46, s38, 229376
        s_lshl_b32 s47, s36, 7
        s_add_u32 s46, s46, s47
        v_mul_u32_u24 v10, 896, v0
        v_add_u32 v10, s46, v10
        global_load_dword v14, v10, s[30:31] {ldfl}
        global_load_dword v15, v9, s[28:29] {ldfl}
P_e2:
        """)
        touch = 0
    if code > 1:
        for k in (1, 2):
            a(f'v_add_u32 v12, 32768, v12\nv_min_u32 v11, L_end-P_pc, v12\nglobal_load_dword v255, v11, s[40:41]')
    a(f"""
    s_load_dwordx2 s[4:5], s[0:1], {KA['ws']}
    s_load_dwordx2 s[6:7], s[0:1], {KA['dbg']}
    v_lshrrev_b32 v2, 6, v0
    v_and_b32 v1, 63, v0
    v_readfirstlane_b32 s20, v2
    s_waitcnt lgkmcnt(0)
    """)
    srd(a, WS, 4, L.WS_BYTES)
    if t0:
        a(f"""
        s_cmp_lg_u32 s2, 0
        s_cbranch_scc1 P_t0
        s_memrealtime s[60:61]
        s_mov_b32 s62, {L.STAMP + 0xf0000}
        v_mov_b32 v5, 0
        s_waitcnt lgkmcnt(0)
        v_mov_b32 v4, s60
        buffer_store_dword v4, v5, s[{WS}:{WS+3}], s62 offen sc1
P_t0:
        """)
    DB = 56
    if fused:
        srd(a, DB, 6, 256)
        a(f"""
        s_getreg_b32 s19, hwreg(HW_REG_XCC_ID, 0, 4)
        s_and_b32 s19, s19, 7
        s_lshl_b32 s19, s19, 2
        v_mov_b32 v249, 128
        v_mov_b32 v250, 1
        s_cmp_lg_u32 s20, 0
        s_cbranch_scc1 P_na
        s_mov_b64 exec, 1
        v_mov_b32 v251, s19
        buffer_atomic_add v250, v251, s[{DB}:{DB+3}], 0 offen sc0
        s_cmp_lg_u32 s2, 0
        s_cbranch_scc1 P_nt
        s_memrealtime s[80:81]
        s_waitcnt lgkmcnt(0)
        s_lshl_b64 s[80:81], s[80:81], 3
        s_or_b32 s81, s81, 0x80000000
        v_mov_b32 v252, s80
        v_mov_b32 v253, s81
        buffer_store_dwordx2 v[252:253], v249, s[{DB}:{DB+3}], 0 offen sc1
P_nt:
        s_mov_b64 exec, -1
P_na:
        """)
    tagld = f'buffer_load_dwordx2 v[252:253], v249, s[{DB}:{DB+3}], 0 offen sc1'
    def tag_take():
        l = a.newlabel('P_tg'); d = a.newlabel('P_tgd')
        a(f"""
        s_mov_b32 s19, 0
{l}:
        v_readfirstlane_b32 s80, v252
        v_readfirstlane_b32 s81, v253
        s_cmp_lg_u32 s81, 0
        s_cbranch_scc1 {d}
        {tagld}
        s_add_u32 s19, s19, 1
        s_waitcnt vmcnt(0)
        s_cmp_lt_u32 s19, 100000
        s_cbranch_scc1 {l}
{d}:
        v_mov_b32 v254, 0
        """)
    def flag(prog):
        return f"""v_add_u32 v252, {prog}, v252
            s_mov_b64 exec, 1
            buffer_store_dwordx2 v[252:253], v254, s[{WS}:{WS+3}], s18 offen sc1
            s_mov_b64 exec, -1"""
    def st(k):
        if diag: a(f's_memtime s[{60+2*k}:{61+2*k}]')
    if diag:
        for k in range(8): a(f's_mov_b64 s[{60+2*k}:{61+2*k}], 0')
    st(0)
    nfill = L.CNT + L.CNT_BYTES - L.MB_M
    assert nfill % (256*4096) == 0 or True
    nwg = 192 if fused else 256
    per = (nfill + nwg - 1) // nwg
    per = (per + 4095) // 4096 * 4096
    def fill_boxes():
        a(f"""
        v_lshlrev_b32 v240, 4, v0
        v_mov_b32 v244, -1
        v_mov_b32 v245, -1
        v_mov_b32 v246, -1
        v_mov_b32 v247, -1
        s_mul_i32 s53, {'s23' if fused else 's2'}, {per}
        s_add_u32 s53, s53, {L.MB_M}
        """)
        assert L.MB_M + nwg*per <= L.STAMP
        for k in range(per // 4096):
            l = a.newlabel('P_fs')
            a(f"""
            s_add_u32 s54, s53, {k*4096}
            s_and_b32 s55, s54, 0xffffe000
            s_cmp_eq_u32 s55, {L.MB_M}
            s_cbranch_scc1 {l}
            s_cmp_eq_u32 s55, {L.MB_Y}
            s_cbranch_scc1 {l}
            s_cmp_ge_u32 s54, {L.CNT}
            s_cselect_b32 s55, 0, -1
            v_mov_b32 v244, s55
            v_mov_b32 v245, s55
            v_mov_b32 v246, s55
            v_mov_b32 v247, s55
            buffer_store_dwordx4 v[244:247], v240, s[{WS}:{WS+3}], s54 offen {stfl}
{l}:
            """)
    if fused:
        a(f"""
        s_mul_i32 s23, s21, 28
        s_add_u32 s23, s23, s22
        s_lshl_b32 s18, s21, 2
        s_add_u32 s18, s18, s22
        s_add_u32 s18, s18, {224-28}
        s_cmp_ge_u32 s22, 28
        s_cselect_b32 s18, s18, s23
        s_lshl_b32 s18, s18, 2
        s_add_u32 s18, s18, s20
        s_lshl_b32 s18, s18, 3
        s_add_u32 s18, s18, {L.FL}
        s_cmp_ge_u32 s22, 28
        s_cbranch_scc1 P_ln
        s_mul_i32 s21, s23, 9363
        s_lshr_b32 s21, s21, 16
        s_mul_i32 s36, s21, 7
        s_sub_u32 s36, s23, s36
        """)
    else:
        a(f"""
        s_cmp_ge_u32 s22, 28
        s_cbranch_scc1 P_ln
        s_mul_i32 s23, s22, 37
        s_lshr_b32 s23, s23, 8
        s_mul_i32 s36, s23, 7
        s_sub_u32 s36, s22, s36
        s_lshl_b32 s21, s21, 2
        s_add_u32 s21, s21, s23
        """)
    a(f"""
    s_and_b32 s37, s21, 1
    s_lshr_b32 s38, s21, 1
    s_cmp_eq_u32 s37, 0
    s_cselect_b32 s40, s24, s28
    s_cselect_b32 s41, s25, s29
    s_cselect_b32 s42, s26, s30
    s_cselect_b32 s43, s27, s31
    """)
    srd(a, SA, 40, 448*8192)
    srd(a, SB, 42, 448*8192)
    BF = 0
    AFR = lambda p: 32 + 64*p
    ACC = lambda p: 160 + 32*p
    OUT = 224
    SLOT = lambda k: (k & 1)*65536
    breg = lambda ks, nt: BF + (ks*4 + nt)*4
    a(f"""
    s_lshl_b32 s39, s20, 2
    s_cmp_eq_u32 s20, 3
    s_cselect_b32 s39, 11, s39
    v_and_b32 v4, 15, v1
    v_lshrrev_b32 v5, 4, v1
    v_lshrrev_b32 v6, 5, v1
    v_and_b32 v7, 31, v1
    v_xor_b32 v7, v7, v6
    v_lshlrev_b32 v8, 13, v6
    v_lshl_add_u32 v8, v7, 4, v8
    s_lshl_b32 s50, s20, 14
    s_lshl_b32 s44, s39, 18
    s_lshl_b32 s45, s38, 9
    s_add_u32 s44, s44, s45
    """)
    if touch:
        a(f"""
        v_lshrrev_b32 v9, 2, v0
        v_lshlrev_b32 v9, 13, v9
        v_and_b32 v10, 3, v0
        v_lshl_add_u32 v9, v10, 7, v9
        """)
        if False:
            a(f"""
            s_sub_u32 s46, s23, s36
            s_and_b32 s47, s23, 0xe0
            s_max_u32 s49, s46, s47
            s_add_u32 s46, s46, 7
            s_add_u32 s47, s47, 32
            s_min_u32 s46, s46, s47
            s_sub_u32 s47, s46, s49
            s_sub_u32 s49, s23, s49
P_tch:
            s_lshl_b32 s46, s49, 19
            s_add_u32 s46, s46, s45
            buffer_load_dword v15, v9, s[{SA}:{SA+3}], s46 offen {ldfl}
            s_add_u32 s49, s49, s47
            s_cmp_lt_u32 s49, 7
            s_cbranch_scc1 P_tch
            """)
        else:
            a(f"""
            s_lshl_b32 s46, s36, 19
            s_add_u32 s46, s46, s45
            buffer_load_dword v15, v9, s[{SA}:{SA+3}], s46 offen {ldfl}
            """)
    for k in range(8):
        a(f'v_xor_b32 v{16+k}, {2*k*16}, v8')
    a(f"""
    v_lshrrev_b32 v6, 2, v4
    v_and_b32 v7, 3, v4
    v_lshl_add_u32 v6, v6, 3, v7
    v_lshlrev_b32 v6, 9, v6
    v_add_u32 v6, s50, v6
    v_xor_b32 v7, v5, v4
    """)
    for k in range(4):
        a(f'v_xor_b32 v9, {4*k}, v7\nv_lshl_add_u32 v{24+k}, v9, 4, v6')
    vq = Q('vmcnt', 63)
    def a_dma(blk, i_):
        xr = 16 + ((i_ >> 2)*2 + (i_ & 1))
        def f(lq=None):
            vq.issue(('a', blk))
            return (f's_add_u32 m0, s50, {SLOT(blk) + i_*1024}\ns_add_u32 s46, s44, {(blk*32 + i_*2)*8192}\n'
                    f'buffer_load_dwordx4 v{xr}, s[{SA}:{SA+3}], s46 offen lds')
        return f
    a('s_cmp_eq_u32 s37, 0\ns_cbranch_scc0 P_t1')
    a(f"""
    s_lshl_b32 s47, s36, 19
    s_add_u32 s47, s47, s45
    s_lshl_b32 s46, s20, 17
    s_add_u32 s47, s47, s46
    s_lshl_b32 s51, s20, 13
    s_mov_b32 s48, {LOG2E_16}
    """)
    for k in range(8):
        a(f's_add_u32 m0, s51, {131072 + k*1024}\ns_add_u32 s46, s47, {k*2*8192}\nbuffer_load_dwordx4 v{16+k}, s[{SB}:{SB+3}], s46 offen {ldfl_b} lds')
    a(f"""
    s_branch P_tj
P_t1:
    v_lshrrev_b32 v10, 3, v1
    v_and_b32 v11, 7, v1
    v_mul_u32_u24 v9, 896, v10
    v_and_b32 v12, 2, v10
    v_xor_b32 v11, v11, v12
    v_lshl_add_u32 v9, v11, 4, v9
    v_xor_b32 v13, 64, v9
    s_mul_i32 s47, s38, 229376
    s_lshl_b32 s46, s36, 7
    s_add_u32 s47, s47, s46
    s_mul_i32 s46, s20, {64*896}
    s_add_u32 s47, s47, s46
    s_lshl_b32 s51, s20, 13
    s_mov_b32 s48, 1.0
    """)
    for k in range(8):
        a(f's_add_u32 m0, s51, {131072 + k*1024}\ns_add_u32 s46, s47, {k*8*896}\nbuffer_load_dwordx4 v{13 if k & 1 else 9}, s[{SB}:{SB+3}], s46 offen {ldfl_b} lds')
    a.label('P_tj')
    st(1)
    for i_ in range(16): a(a_dma(0, i_)())
    if a1up:
        for i_ in range(16): a(a_dma(1, i_)())
    if fused:
        a(tagld); vq.issue('tag')
    a(f's_waitcnt vmcnt({(32 if a1up else 16) + fused})\ns_barrier')
    st(2)
    a('s_cmp_eq_u32 s37, 0\ns_cbranch_scc0 P_r1')
    a(f'v_lshlrev_b32 v6, 9, v4\nv_add_u32 v6, 131072, v6')
    for k in range(4):
        a(f'v_xor_b32 v9, {4*k}, v7\nv_lshl_add_u32 v{28+k}, v9, 4, v6')
    for ks in range(8):
        for nt in range(4):
            a(f'ds_read_b128 a[{breg(ks,nt)}:{breg(ks,nt)+3}], v{28+(ks&3)} offset:{nt*8192 + (ks>>2)*256}')
            if nt & 1 and not a1up: a(a_dma(1, ks*2 + (nt >> 1))())
    if not a1up: vq.n -= 16
    a(f"""
    s_branch P_rj
P_r1:
    v_bfe_u32 v10, v1, 2, 2
    v_lshl_add_u32 v11, v5, 3, v10
    v_lshlrev_b32 v13, 7, v11
    v_add_u32 v13, 131072, v13
    v_and_b32 v11, 3, v1
    v_lshl_add_u32 v13, v11, 3, v13
    v_lshrrev_b32 v10, 1, v10
    v_and_b32 v11, 1, v5
    v_lshl_add_u32 v10, v11, 1, v10
    """)
    for nt in range(4):
        a(f'v_xor_b32 v9, {nt}, v10\nv_lshl_add_u32 v{28+nt}, v9, 5, v13')
    for ks in range(8):
        for nt in range(4):
            for hf in range(2):
                r = breg(ks, nt) + 2*hf
                a(f'ds_read_b64_tr_b16 a[{r}:{r+1}], v{28+nt} offset:{(ks*32+hf*4)*128}')
            if nt & 1 and not a1up: a(a_dma(1, ks*2 + (nt >> 1))())
    a(f"""
P_rj:
    s_mul_i32 s52, s37, 448
    s_mul_i32 s47, s38, 28
    s_add_u32 s52, s52, s47
    s_lshl_b32 s47, s36, 2
    s_add_u32 s52, s52, s47
    s_mul_i32 s52, s52, 14336
    s_lshl_b32 s47, s39, 10
    s_add_u32 s52, s52, s47
    s_add_u32 s52, s52, {L.WT}
    s_mov_b32 s49, s48
    v_lshlrev_b32 v3, 4, v1
    s_waitcnt vmcnt({16 + fused})
    """)
    def a_read(blk, hf, ks):
        r = AFR(blk & 1) + (hf*8+ks)*4
        off = hf*4*512 + (ks >> 2)*256
        return f'ds_read_b128 v[{r}:{r+3}], v{24+(ks&3) if not blk & 1 else 10+(ks&3)} offset:{off}'
    for k in range(4): a(f'v_add_u32 v{10+k}, 65536, v{24+k}')
    for hf in range(2):
        for ks in range(8): a(a_read(0, hf, ks))
    if fused: a('s_cmp_ge_u32 s23, 192\ns_cbranch_scc1 P_nf')
    fill_boxes()
    if fused: a.label('P_nf')
    a('s_waitcnt lgkmcnt(0)')
    from team import Gaps, emit_stream
    def epi(blk):
        va = []; stt = []
        for nt in range(4):
            ca = ACC(blk & 1) + nt*4; cb = ACC(blk & 1) + (4+nt)*4; o = OUT + nt*4
            v = [f'v_pk_mul_f32 v[{c}:{c+1}], v[{c}:{c+1}], s[48:49]' for c in (ca, ca+2, cb, cb+2)]
            v += [f'v_cvt_pk_bf16_f32 v{o}, v{ca}, v{ca+1}', f'v_cvt_pk_bf16_f32 v{o+1}, v{ca+2}, v{ca+3}',
                  f'v_cvt_pk_bf16_f32 v{o+2}, v{cb}, v{cb+1}', f'v_cvt_pk_bf16_f32 v{o+3}, v{cb+2}, v{cb+3}']
            va.append(v)
            def sf(lq=None, nt=nt, o=o):
                vq.issue(('st', blk))
                return f's_add_u32 s47, s52, {nt*14336}\nbuffer_store_dwordx4 v[{o}:{o+3}], v3, s[{WS}:{WS+3}], s47 offen offset:{blk*1024} {stfl}'
            stt.append(sf)
        return va, stt
    lq = Q('lgkmcnt', 15)
    def block(blk, nb):
        ms = []
        for hf in range(2):
            for ks in range(8):
                r = AFR(blk & 1) + (hf*8+ks)*4
                for nt in range(4):
                    c = ACC(blk & 1) + (hf*4+nt)*4
                    ms.append((f'v_mfma_f32_16x16x32_bf16 v[{c}:{c+3}], v[{r}:{r+3}], a[{breg(ks,nt)}:{breg(ks,nt)+3}], ' + ('0' if ks == 0 else f'v[{c}:{c+3}]'), []))
        gp = Gaps(64)
        g = 0
        if blk + 2 < nb:
            for i_ in range(16): g = gp.put('ds', g, a_dma(blk+2, i_)) + 3
        if blk > 0:
            va, stt = epi(blk-1)
            g2 = 3
            for nt in range(4):
                for x in va[nt]: g2 = gp.put('va', g2, x) + 1
                gp.put('ds', g2+1, stt[nt])
        if blk + 1 < nb:
            gp.force('ds', 44, lambda lq, b=blk+1: vq.wait(('a', b)))
            g = 44
            for hf in range(2):
                for ks in range(8):
                    gp.force('ds', g, a_read(blk+1, hf, ks)); g += 1
            gp.force('va', 63, 's_waitcnt lgkmcnt(0)')
        if fused and blk == 2:
            gp.force('va', 45, lambda lq: vq.wait(('st', 0)) + '\n' + flag(1) + (vq.issue() or ''))
        emit_stream(a, ms, gp, lq)
    block(0, 4)
    if fused:
        a(vq.wait('tag') or 's_nop 0'); tag_take()
    st(3)
    a('s_cmp_lt_u32 s20, 2\ns_cbranch_scc1 P_b4')
    import copy
    keep = (vq.n, dict(vq.tags), vq.done)
    for nb in (3, 4):
        if nb == 4:
            a.label('P_b4')
            vq.n, vq.tags, vq.done = keep[0], dict(keep[1]), keep[2]
        for blk in range(1, nb): block(blk, nb)
        va, stt = epi(nb-1)
        for nt in range(4):
            for x in va[nt]: a(x)
            a(stt[nt]())
        if nb == 3: a('s_branch P_last')
    a.label('P_last')
    if fused: a('s_waitcnt vmcnt(0)\n' + flag(6))
    a('s_branch P_exit')
    a.label('P_ln')
    srd(a, SA, 32, 2048*896)
    srd(a, SB, 34, 8*896)
    X = 16
    U = 80
    a(f"""
    s_sub_u32 s22, s22, 28
    s_lshl_b32 s21, s21, 2
    s_add_u32 s21, s21, s22
    s_lshl_b32 s21, s21, 2
    s_add_u32 s21, s21, s20
    v_lshrrev_b32 v4, 2, v1
    v_and_b32 v5, 3, v1
    v_mul_u32_u24 v6, 896, v4
    v_lshl_add_u32 v6, v5, 4, v6
    s_mul_i32 s23, s21, {16*896}
    """)
    for kb in range(14):
        a(f'buffer_load_dwordx4 v[{X+4*kb}:{X+4*kb+3}], v6, s[{SA}:{SA+3}], s23 offen offset:{kb*64} {ldfl}')
    if not fused: fill_boxes()
    l = a.newlabel('P_m0')
    a(f's_cmp_ge_u32 s21, 28\ns_cbranch_scc1 {l}')
    from team import img_addr
    img_addr(a, 8, 9, 1)
    a(f"""
    v_lshrrev_b32 v9, 4, v1
    v_mul_u32_u24 v9, {2*896}, v9
    v_and_b32 v7, 15, v1
    v_lshl_add_u32 v9, v7, 1, v9
    s_lshl_b32 s36, s21, 5
    buffer_load_ushort v200, v9, s[{SB}:{SB+3}], s36 offen
    buffer_load_ushort v201, v9, s[{SB}:{SB+3}], s36 offen offset:896
    s_lshr_b32 s36, s21, 2
    s_lshl_b32 s36, s36, 10
    s_and_b32 s37, s21, 3
    s_lshl_b32 s37, s37, 7
    s_add_u32 s36, s36, s37
    s_add_u32 s37, s36, {L.MB_Y}
    s_add_u32 s36, s36, {L.MB_M}
    s_waitcnt vmcnt(0)
    v_lshl_or_b32 v200, v201, 16, v200
    buffer_store_dword v200, v8, s[{WS}:{WS+3}], s36 offen {stfl}
    buffer_store_dword v200, v8, s[{WS}:{WS+3}], s37 offen {stfl}
{l}:
    s_waitcnt vmcnt(0)
    """)
    st(2)
    ln_rows(a, X, U, 56, 10, quadred)
    st(4)
    GS, KS = 288, 1152
    a(f"""
    s_mul_i32 s36, s20, {14*KS}
    v_mul_u32_u24 v7, {GS}, v5
    v_lshl_add_u32 v7, v4, 4, v7
    v_add_u32 v7, s36, v7
    v_lshlrev_b32 v3, 4, v1
    v_lshrrev_b32 v6, 4, v1
    v_mul_u32_u24 v6, {GS}, v6
    v_and_b32 v8, 15, v1
    v_lshl_add_u32 v8, v8, 4, v6
    v_add_u32 v8, s36, v8
    """)
    for kb in range(14):
        a(f'ds_write_b128 v7, v[{X+4*kb}:{X+4*kb+3}] offset:{kb*KS}')
    a(f"""
    s_mul_i32 s36, s21, 14336
    s_add_u32 s36, s36, {L.XN}
    """)
    st(3)
    for kb in range(14):
        a(f'ds_read_b128 v[{U+4*kb}:{U+4*kb+3}], v8 offset:{kb*KS}')
    for kb in range(14):
        if kb and kb % 4 == 0: a('s_add_u32 s36, s36, 4096')
        a(f's_waitcnt lgkmcnt({13-kb})')
        a(f'buffer_store_dwordx4 v[{U+4*kb}:{U+4*kb+3}], v3, s[{WS}:{WS+3}], s36 offen offset:{(kb%4)*1024} {stfl}')
    if fused:
        a(tagld + '\ns_waitcnt vmcnt(0)'); tag_take(); a(flag(7))
    a.label('P_exit')
    if fused: return
    if diag:
        a('s_cmp_ge_u32 s2, 256\ns_cbranch_scc1 P_exit2')
        st(5)
        a('s_waitcnt vmcnt(0)')
        st(6)
        a(f's_waitcnt lgkmcnt(0)\ns_lshl_b32 s36, s2, 2\ns_add_u32 s36, s36, s20\ns_lshl_b32 s36, s36, 6\ns_add_u32 s36, s36, {L.STAMP}\ns_mov_b64 exec, 1\nv_mov_b32 v3, 0')
        for k in range(7):
            a(f'v_mov_b32 v4, s{60+2*k}\nbuffer_store_dword v4, v3, s[{WS}:{WS+3}], s36 offen offset:{4*k}\ns_nop 1')
        a.label('P_exit2')
    a('s_endpgm')

def rnd_bf16(a, r, t):
    a(f'v_cvt_pk_bf16_f32 v{r}, v{r}, v{r}\nv_and_b32 v{r}, 0xffff0000, v{r}')

def quadred(a, x, t):
    a(f'v_add_f32_dpp v{x}, v{x}, v{x} quad_perm:[1,0,3,2] row_mask:0xf bank_mask:0xf')
    a(f'v_add_f32_dpp v{x}, v{x}, v{x} quad_perm:[2,3,0,1] row_mask:0xf bank_mask:0xf')

def ln_stats_finish(a, mu, rs, tt):
    rnd_bf16(a, rs, tt)
    a(f'v_add_f32 v{rs}, 0x3727c5ac, v{rs}')
    rnd_bf16(a, rs, tt)
    a(f'v_sqrt_f32 v{rs}, v{rs}')
    rnd_bf16(a, rs, tt)
    a(f'v_rcp_f32 v{rs}, v{rs}')
    rnd_bf16(a, mu, tt)

def ln_rows(a, X, U, n, t, red):
    s0, s1, d0, nm, rs = t, t+1, t+2, t+4, 76
    for i in range(n):
        a(f'v_lshlrev_b32 v{U+2*i}, 16, v{X+i}\nv_and_b32 v{U+2*i+1}, 0xffff0000, v{X+i}')
        if i == 1: a(f'v_pk_add_f32 v[{s0}:{s1}], v[{U}:{U+1}], v[{U+2}:{U+3}]')
        if i > 1: a(f'v_pk_add_f32 v[{s0}:{s1}], v[{s0}:{s1}], v[{U+2*i}:{U+2*i+1}]')
    a(f'v_add_f32 v{s0}, v{s0}, v{s1}')
    red(a, s0, d0)
    a(f'v_mul_f32 v{nm}, 0xbb124925, v{s0}\nv_mul_f32 v{nm+1}, 0xbb124925, v{s0}')
    for i in range(n):
        d = d0 if i & 1 else 72
        a(f'v_pk_add_f32 v[{d}:{d+1}], v[{U+2*i}:{U+2*i+1}], v[{nm}:{nm+1}]')
        if i == 0: a(f'v_pk_mul_f32 v[{s0}:{s1}], v[{d}:{d+1}], v[{d}:{d+1}]')
        else: a(f'v_pk_fma_f32 v[{s0}:{s1}], v[{d}:{d+1}], v[{d}:{d+1}], v[{s0}:{s1}]')
    a(f'v_add_f32 v{s0}, v{s0}, v{s1}')
    red(a, s0, d0)
    a(f'v_mul_f32 v{rs}, 0x3b124925, v{s0}')
    ln_stats_finish(a, nm, rs, d0)
    a(f'v_mov_b32 v{nm+1}, v{nm}\nv_mov_b32 v{rs+1}, v{rs}')
    for i in range(n):
        u = U+2*i
        a(f"""
        v_pk_add_f32 v[{u}:{u+1}], v[{u}:{u+1}], v[{nm}:{nm+1}]
        v_cvt_pk_bf16_f32 v{X+i}, v{u}, v{u+1}
        v_lshlrev_b32 v{u}, 16, v{X+i}
        v_and_b32 v{u+1}, 0xffff0000, v{X+i}
        v_pk_mul_f32 v[{u}:{u+1}], v[{u}:{u+1}], v[{rs}:{rs+1}]
        v_cvt_pk_bf16_f32 v{X+i}, v{u}, v{u+1}
        """)
```

```python
from asmlib import *
import layout as L

SENT = -1
S_WS = 8
S_DBG = 12
S_ROLE = 16
S_WAVE = 17
S_XCC = 18
S_STEP = 19
S_FAST = 20
S_MOFF = 21; S_POFF = 22; S_EOFF = 23; S_GOFF = 24; S_XOFF = 25; S_T0 = 26; S_T1 = 27; S_SPIN = 28; S_LIM = 29
S_EXEC = 30
S_STMP = 32
S_TM = 34
SPIN_MAX = 20000
NTEAM = 32

LDS_M = 0
LDS_T = 7168
LDS_FL = 14336
LDS_VD = 18432
LDS_X = 20480
LDS_NAN = 11264
LDS_RED = 7168
LDS_BW = 16384
LDS_ROLE = 160*1024 - 16

def prologue(a, stamps, pool_off=0, scatter=False, code=1):
    if code:
        a('s_getpc_b64 s[40:41]\nM_pc:\nv_lshlrev_b32 v12, 7, v0\nglobal_load_dword v255, v12, s[40:41]')
        a('v_add_u32 v12, 32768, v12\nv_min_u32 v11, L_end-M_pc, v12\nglobal_load_dword v255, v11, s[40:41]')
    a(f'''
    s_cmp_ge_u32 s2, 256
    s_cbranch_scc1 L_end
    s_load_dwordx2 s[4:5], s[0:1], 96
    s_load_dwordx2 s[6:7], s[0:1], 88
    s_getreg_b32 s{S_XCC}, hwreg(HW_REG_XCC_ID, 0, 4)
    v_lshrrev_b32 v2, 6, v0
    v_and_b32 v1, 63, v0
    v_readfirstlane_b32 s{S_WAVE}, v2
    s_and_b32 s{S_XCC}, s{S_XCC}, 7
    s_waitcnt lgkmcnt(0)
    s_mov_b32 s{S_WS}, s4
    s_and_b32 s{S_WS+1}, s5, 0xffff
    s_mov_b32 s{S_WS+2}, {L.WS_BYTES}
    s_mov_b32 s{S_WS+3}, 0x20000
    s_mov_b32 s{S_DBG}, s6
    s_and_b32 s{S_DBG+1}, s7, 0xffff
    s_mov_b32 s{S_DBG+2}, 256
    s_mov_b32 s{S_DBG+3}, 0x20000
    v_mov_b32 v4, {LDS_ROLE}
    s_cmp_lg_u32 s{S_WAVE}, 0
    s_cbranch_scc1 L_role_wait
    s_mov_b64 exec, 1
    s_mov_b32 s{S_T0}, 0
L_role_try:
    {f's_lshr_b32 s{S_T1}, s2, 5' if scatter else f's_mov_b32 s{S_T1}, s{S_XCC}'}
    s_add_u32 s{S_T1}, s{S_T1}, s{S_T0}
    s_and_b32 s{S_T1}, s{S_T1}, 7
    s_lshl_b32 s{S_ROLE}, s{S_T1}, 7
    s_add_u32 s{S_ROLE}, s{S_ROLE}, {L.CNT_P + pool_off}
    v_mov_b32 v2, s{S_ROLE}
    v_mov_b32 v3, 1
    buffer_atomic_add v3, v2, s[{S_WS}:{S_WS+3}], 0 offen sc0
    s_waitcnt vmcnt(0)
    v_readfirstlane_b32 s{S_ROLE}, v3
    s_cmp_lt_u32 s{S_ROLE}, 32
    s_cbranch_scc1 L_role_got
    s_add_u32 s{S_T0}, s{S_T0}, 1
    s_cmp_lt_u32 s{S_T0}, 8
    s_cbranch_scc1 L_role_try
    s_mov_b32 s{S_ROLE}, 31
    s_mov_b32 s{S_T1}, 0
L_role_got:
    s_lshl_b32 s{S_T1}, s{S_T1}, 5
    s_add_u32 s{S_ROLE}, s{S_ROLE}, s{S_T1}
    v_mov_b32 v2, s{S_ROLE}
    ds_write_b32 v4, v2
    s_mov_b64 exec, -1
    s_waitcnt lgkmcnt(0)
L_role_wait:
    s_barrier
    ds_read_b32 v2, v4
    s_waitcnt lgkmcnt(0)
    v_readfirstlane_b32 s{S_ROLE}, v2
    ''')

FSL = [8, 32]
def wait_flags(a, vaddr, need, t, n=1):
    l = a.newlabel('L_wf'); d = a.newlabel('L_wfd')
    regs = [t] + [t+4+2*k for k in range(n-1)]
    a(f"""
    s_mov_b32 s{S_SPIN}, 0
    s_mov_b32 s{S_EXEC}, {L.FL}
    s_add_u32 s{S_EXEC+1}, s80, {need}
{l}:
    """)
    for k, r in enumerate(regs):
        a(f'buffer_load_dwordx2 v[{r}:{r+1}], v{vaddr}, s[{S_WS}:{S_WS+3}], s{S_EXEC} offen offset:{k*512} sc1')
    a(f's_add_u32 s{S_SPIN}, s{S_SPIN}, 1\ns_waitcnt vmcnt(0)')
    for k, r in enumerate(regs):
        a(f"""
        v_subrev_u32 v{r}, s{S_EXEC+1}, v{r}
        v_xor_b32 v{r+1}, s81, v{r+1}
        v_lshl_or_b32 v{t+2}, v{r+1}, 3, v{r+1}
        v_or_b32 v{r}, v{r}, v{t+2}
        """)
        if k: a(f'v_max_u32 v{t}, v{t}, v{r}')
    a(f"""
    v_cmp_lt_u32 vcc, {7 - need}, v{t}
    s_cbranch_vccz {d}
    s_sleep {FSL[n > 1]}
    s_cmp_lt_u32 s{S_SPIN}, {SPIN_MAX*4}
    s_cbranch_scc1 {l}
{d}:
    """)

def prologue_fused(a):
    a(f"""
    s_getreg_b32 s{S_XCC}, hwreg(HW_REG_XCC_ID, 0, 4)
    s_mov_b32 s{S_WAVE}, s20
    s_and_b32 s{S_XCC}, s{S_XCC}, 7
    s_mov_b32 s{S_DBG}, s56
    s_mov_b32 s{S_DBG+1}, s57
    s_mov_b32 s{S_DBG+2}, 256
    s_mov_b32 s{S_DBG+3}, 0x20000
    v_mov_b32 v4, {LDS_ROLE}
    s_cmp_lg_u32 s{S_WAVE}, 0
    s_barrier
    s_cbranch_scc1 L_role_wait
    s_mov_b64 exec, 1
    s_mov_b32 s{S_T0}, 0
    s_mov_b32 s{S_T1}, s{S_XCC}
    v_mov_b32 v3, v250
    s_branch L_role_see
L_role_try:
    s_add_u32 s{S_T1}, s{S_XCC}, s{S_T0}
    s_and_b32 s{S_T1}, s{S_T1}, 7
    s_lshl_b32 s{S_ROLE}, s{S_T1}, 2
    v_mov_b32 v2, s{S_ROLE}
    v_mov_b32 v3, 1
    buffer_atomic_add v3, v2, s[{S_DBG}:{S_DBG+3}], 0 offen sc0
    s_waitcnt vmcnt(0)
L_role_see:
    v_readfirstlane_b32 s{S_ROLE}, v3
    s_cmp_lt_u32 s{S_ROLE}, 32
    s_cbranch_scc1 L_role_got
    s_add_u32 s{S_T0}, s{S_T0}, 1
    s_cmp_lt_u32 s{S_T0}, 8
    s_cbranch_scc1 L_role_try
    s_mov_b32 s{S_ROLE}, 31
    s_mov_b32 s{S_T1}, 0
L_role_got:
    s_lshl_b32 s{S_T1}, s{S_T1}, 5
    s_add_u32 s{S_ROLE}, s{S_ROLE}, s{S_T1}
    v_mov_b32 v2, s{S_ROLE}
    ds_write_b32 v4, v2
    s_mov_b64 exec, -1
    s_waitcnt lgkmcnt(0)
L_role_wait:
    s_barrier
    ds_read_b32 v2, v4
    s_waitcnt lgkmcnt(0)
    v_readfirstlane_b32 s{S_ROLE}, v2
    """)

def wait_ln(a, lane, t):
    a(f's_lshl_b32 s{S_T0}, s{S_WAVE}, 11\nv_lshlrev_b32 v{t+3}, 3, v{lane}\nv_add_u32 v{t+3}, s{S_T0}, v{t+3}')
    wait_flags(a, t+3, 1, t, n=4)
    a('s_barrier')

STAGE1 = (0, 4, 8, 11)
def load_tiles(a, tiles, vaddr, sbase, stage, flags, bud, cap=None):
    for off, dsts in tiles:
        cur = None
        for k in range(14):
            if stage is not None and (k in STAGE1) != (stage == 1): continue
            if cur != k // 4:
                cur = k // 4
                a(f's_add_u32 s{S_T0}, s{sbase}, {off + cur*4096}')
            a(f'buffer_load_dwordx4 {dsts[k]}, v{vaddr}, s[{S_WS}:{S_WS+3}], s{S_T0} offen offset:{(k%4)*1024} {flags}')
            bud[0] += 1
            if cap is not None:
                if bud[0] > cap: a(f's_waitcnt vmcnt({cap})')
            elif bud[0] >= 56:
                a('s_waitcnt vmcnt(28)'); bud[0] = 28

def team_register(a):
    l = a.newlabel('L_reg')
    a(f'''
    s_cmp_lg_u32 s{S_WAVE}, 0
    s_cbranch_scc1 {l}
    s_cmp_eq_u32 s{S_XCC}, 0
    s_cselect_b32 s{S_T0}, 1, 0x10001
    s_mov_b64 exec, 1
    v_mov_b32 v2, 64
    v_mov_b32 v3, s{S_T0}
    buffer_atomic_add v3, v2, s[{S_DBG}:{S_DBG+3}], 0 offen
    s_mov_b64 exec, -1
{l}:
    ''')

def team_mode_load(vt0, vt1):
    return f'v_mov_b32 v{vt0}, 64\nbuffer_load_dword v{vt1}, v{vt0}, s[{S_DBG}:{S_DBG+3}], 0 offen sc1'

def team_mode(a, vt0, vt1, primed=False):
    l = a.newlabel('L_mode'); d = a.newlabel('L_moded'); p = a.newlabel('L_modep')
    a(f'''
    s_mov_b32 s{S_SPIN}, 0
    {f's_branch {p}' if primed else ''}
{l}:
    {team_mode_load(vt0, vt1)}
{p}:
    s_waitcnt vmcnt(0)
    v_readfirstlane_b32 s{S_T0}, v{vt1}
    s_and_b32 s{S_T1}, s{S_T0}, 0xffff
    s_cmp_ge_u32 s{S_T1}, {NTEAM}
    s_cbranch_scc1 {d}
    s_sleep 2
    s_add_u32 s{S_SPIN}, s{S_SPIN}, 1
    s_cmp_lt_u32 s{S_SPIN}, {SPIN_MAX}
    s_cbranch_scc1 {l}
    s_mov_b32 s{S_T0}, 0x10000
{d}:
    s_lshr_b32 s{S_T0}, s{S_T0}, 16
    s_cmp_eq_u32 s{S_T0}, 0
    s_cselect_b32 s{S_FAST}, 1, 0
    s_mov_b32 s{S_LIM}, {SPIN_MAX}
    ''')

def stamp(a, stamps, idx, vt=None):
    if not stamps: return
    a(f's_memtime s[{40+2*idx}:{41+2*idx}]')
    if idx == 2: a('s_memrealtime s[60:61]')

def stamp_flush(a, stamps, n, vt):
    if not stamps: return
    a('s_waitcnt lgkmcnt(0)')
    for k in range(n):
        a(f'v_writelane_b32 v{vt}, s{40+2*k}, {k}')
    a(f"""
    v_lshrrev_b32 v{vt+1}, 1, v0
    s_mov_b64 exec, {(1 << n) - 1}
    buffer_store_dword v{vt}, v{vt+1}, s[{S_WS}:{S_WS+3}], s{S_STMP} offen
    s_mov_b64 exec, -1
    """)

def wreg(wb, vbase):
    return ar(8*wb, 8) if wb < 32 else vr(vbase + 8*(wb-32), 8)
def wreg_half(wb, vbase, half):
    return ar(8*wb + 4*half, 4) if wb < 32 else vr(vbase + 8*(wb-32) + 4*half, 4)

def xlane4(a, op, x, t):
    a(f'''
    v_mov_b32 v{t}, v{x}
    v_permlane16_swap_b32 v{x}, v{t}
    {op} v{x}, v{x}, v{t}
    v_mov_b32 v{t}, v{x}
    v_permlane32_swap_b32 v{x}, v{t}
    {op} v{x}, v{x}, v{t}
    ''')

QP = 'quad_perm:[2,3,0,1] row_mask:0xf bank_mask:0xf'

def read_mf(a, V):
    for b in range(7):
        a(f"ds_read_b64_tr_b16 v[{V['mf']+4*b}:{V['mf']+4*b+1}], v{V['l8']} offset:{LDS_M+b*1024}")
        a(f"ds_read_b64_tr_b16 v[{V['mf']+4*b+2}:{V['mf']+4*b+3}], v{V['l8']} offset:{LDS_M+b*1024+512}")

def SM(acc, A, B, idx):
    return f'v_smfmac_f32_16x16x64_bf16 v[{acc}:{acc+3}], v[{A}:{A+3}], {B}, v{idx}'


class Q:
    def __init__(self, name, cap):
        self.name = name; self.n = 0; self.tags = {}; self.done = 0; self.cap = cap
    def issue(self, tag=None):
        self.n += 1
        if tag is not None: self.tags[tag] = self.n
    def wait(self, tag):
        k = self.tags[tag]
        if k <= self.done: return ''
        self.done = k
        return 's_waitcnt %s(%d)' % (self.name, min(self.n - k, self.cap))
    def drain(self):
        self.done = self.n
        return 's_waitcnt %s(0)' % self.name

WSRD = f's[{S_WS}:{S_WS+3}]'

def poll_m(a, V, sleep=0):
    t = V['mf']; pa = V['pa']
    l = a.newlabel('L_pm'); d = a.newlabel('L_pmd')
    a(f"""
    s_mov_b32 s{S_SPIN}, 0
{l}:
    buffer_load_dwordx4 v[{t}:{t+3}], v{pa}, {WSRD}, s{S_MOFF} offen sc1
    buffer_load_dwordx4 v[{t+4}:{t+7}], v{pa}, {WSRD}, s{S_MOFF} offen offset:768 sc1
    s_add_u32 s{S_SPIN}, s{S_SPIN}, 1
    s_waitcnt vmcnt(1)
    ds_write_b128 v{pa}, v[{t}:{t+3}]
    v_max3_u32 v{t+8}, v{t}, v{t+1}, v{t+2}
    s_waitcnt vmcnt(0)
    ds_write_b128 v{pa}, v[{t+4}:{t+7}] offset:768
    v_max3_u32 v{t+8}, v{t+8}, v{t+3}, v{t+4}
    v_max3_u32 v{t+8}, v{t+8}, v{t+5}, v{t+6}
    v_max_u32 v{t+8}, v{t+8}, v{t+7}
    v_cmp_eq_u32 vcc, -1, v{t+8}
    s_cbranch_vccz {d}
    {'s_sleep %d' % sleep if sleep else ''}
    s_cmp_lt_u32 s{S_SPIN}, s{S_LIM}
    s_cbranch_scc1 {l}
    s_mov_b32 s{S_LIM}, 1
{d}:
    s_waitcnt lgkmcnt(0)
    s_barrier
    """)

def poll_m2(a, V, gap, x):
    pa = V['pa']; sets = (V['acc']+8, V['acc']+16)
    l = a.newlabel('L_pm'); d = a.newlabel('L_pmd')
    def issue(t):
        a(f"""
        buffer_load_dwordx4 v[{t}:{t+3}], v{pa}, {WSRD}, s{S_MOFF} offen sc1
        buffer_load_dwordx4 v[{t+4}:{t+7}], v{pa}, {WSRD}, s{S_MOFF} offen offset:768 sc1
        """)
    def check(t):
        a(f"""
        s_add_u32 s{S_SPIN}, s{S_SPIN}, 1
        s_waitcnt vmcnt(3)
        ds_write_b128 v{pa}, v[{t}:{t+3}]
        v_max3_u32 v{x}, v{t}, v{t+1}, v{t+2}
        s_waitcnt vmcnt(2)
        ds_write_b128 v{pa}, v[{t+4}:{t+7}] offset:768
        v_max3_u32 v{x}, v{x}, v{t+3}, v{t+4}
        v_max3_u32 v{x}, v{x}, v{t+5}, v{t+6}
        v_max_u32 v{x}, v{x}, v{t+7}
        v_cmp_eq_u32 vcc, -1, v{x}
        """)
    a(f's_mov_b32 s{S_SPIN}, 0')
    issue(sets[0])
    while gap > 0:
        a(f's_nop {min(gap, 16) - 1}'); gap -= 16
    issue(sets[1]); check(sets[0])
    a(f's_cbranch_vccnz {l}\n{d}:\ns_waitcnt lgkmcnt(0)\ns_barrier')
    def cold():
        a.label(l)
        issue(sets[0]); check(sets[1])
        a(f's_cbranch_vccz {d}')
        issue(sets[1]); check(sets[0])
        a(f"""
        s_cbranch_vccz {d}
        s_cmp_lt_u32 s{S_SPIN}, s{S_LIM}
        s_cbranch_scc1 {l}
        s_mov_b32 s{S_LIM}, 1
        s_branch {d}
        """)
    a.cold.append(cold)

def wait_hint(a, vaddr, soff, regs, imm=0, delay=0, gap=12, inner=8, fill=None, primed=False):
    n = len(regs)
    l = a.newlabel('L_h'); d = a.newlabel('L_hd')
    ld = lambda r: f'buffer_load_dword v{r}, v{vaddr}, {WSRD}, s{soff} offen offset:{imm} sc1'
    a(f's_mov_b32 s{S_SPIN}, 0')
    fill = list(fill or [])
    per = -(-len(fill) // (n-1))
    for k in range(0 if primed else n-1):
        a(ld(regs[k]))
        for x in fill[k*per:(k+1)*per]: a(x)
        if per < gap: a(f's_nop {gap - per}')
    a.label(l)
    for k in range(n):
        a(f"""
        {ld(regs[(k+n-1) % n])}
        s_waitcnt vmcnt({n-1})
        v_cmp_eq_u32 vcc, -1, v{regs[k]}
        s_cbranch_vccz {d}
        s_nop {inner}
        """)
    a(f"""
    s_add_u32 s{S_SPIN}, s{S_SPIN}, 1
    s_cmp_lt_u32 s{S_SPIN}, s{S_LIM}
    s_cbranch_scc1 {l}
{d}:
    """)
    while delay > 0:
        a(f's_nop {min(delay, 16) - 1}'); delay -= 16

def wait_cnt(a, off_sgpr, target, vt, sleep=4, primed=False):
    l = a.newlabel('L_wc'); d = a.newlabel('L_wcd'); p = a.newlabel('L_wcp')
    a(f"""
    s_mov_b32 s{S_SPIN}, 0
    v_mov_b32 v{vt}, 0
    {f's_branch {p}' if primed else ''}
{l}:
    buffer_load_dword v{vt+1}, v{vt}, {WSRD}, s{off_sgpr} offen sc1
{p}:
    s_add_u32 s{S_SPIN}, s{S_SPIN}, 1
    s_waitcnt vmcnt(0)
    v_readfirstlane_b32 s{S_T0}, v{vt+1}
    s_cmp_ge_u32 s{S_T0}, {target}
    s_cbranch_scc1 {d}
    s_sleep {sleep}
    s_cmp_lt_u32 s{S_SPIN}, s{S_LIM}
    s_cbranch_scc1 {l}
    s_mov_b32 s{S_LIM}, 1
{d}:
    """)

def img_addr(a, dst, t, lane):
    a(f"""
    v_bfe_u32 v{dst}, v{lane}, 3, 1
    v_lshlrev_b32 v{dst}, 9, v{dst}
    v_bfe_u32 v{t}, v{lane}, 2, 1
    v_lshl_add_u32 v{dst}, v{t}, 6, v{dst}
    v_and_b32 v{t}, 1, v{lane}
    v_lshl_add_u32 v{dst}, v{t}, 5, v{dst}
    v_lshrrev_b32 v{t}, 4, v{lane}
    v_lshl_add_u32 v{dst}, v{t}, 3, v{dst}
    v_bfe_u32 v{t}, v{lane}, 1, 1
    v_lshl_add_u32 v{dst}, v{t}, 2, v{dst}
    """)

def common_addrs(a, V, LN):
    a(f"""
    v_lshlrev_b32 v{V['l8']}, 3, v{LN}
    s_mul_i32 s{S_T0}, s{S_WAVE}, {112*16}
    v_lshlrev_b32 v{V['pa']}, 4, v{LN}
    v_add_u32 v{V['pa']}, s{S_T0}, v{V['pa']}
    v_and_b32 v{LN+1}, 2, v{LN}
    v_cmp_ne_u32 vcc, 0, v{LN+1}
    v_mov_b32 v{LN+1}, 0x4444
    v_mov_b32 v{LN+2}, 0xeeee
    v_cndmask_b32 v{V['idx']}, v{LN+1}, v{LN+2}, vcc
    """)

def load_1k_run(a, dsts, vaddr, sbase, flags='', budget=None):
    for i, d in enumerate(dsts):
        if i and i % 4 == 0:
            a(f's_add_u32 s{sbase}, s{sbase}, 4096')
        a(f'buffer_load_dwordx4 {d}, v{vaddr}, {WSRD}, s{sbase} offen offset:{(i%4)*1024} {flags}')
        if budget is not None:
            budget[0] += 1
            if budget[0] >= 56:
                a('s_waitcnt vmcnt(28)'); budget[0] = 28

class Gaps:
    def __init__(self, n):
        self.ds = [[] for _ in range(n)]; self.va = [[] for _ in range(n)]; self.pre = [[] for _ in range(n)]
        self.n = n
    def put(self, kind, g, text, excl=False):
        while g < self.n - 1:
            if excl:
                if not self.ds[g] and not self.va[g]: break
            else:
                lst = self.ds[g] if kind == 'ds' else self.va[g]
                other = self.va[g] if kind == 'ds' else self.ds[g]
                if not lst and not (other and other[-1][1]): break
            g += 1
        (self.ds if kind == 'ds' else self.va)[g].append((text, excl))
        return g
    def force(self, kind, g, text):
        (self.ds if kind == 'ds' else self.va)[min(g, self.n-1)].append((text, False))

def emit_stream(a, mf, gp, lq, pre=None):
    for i, (m, tags) in enumerate(mf):
        for tg in tags:
            w = lq.wait(tg)
            if w: a(w)
        a(m)
        for lst in (gp.ds[i], gp.va[i]):
            for x, _ in lst:
                t = x(lq) if callable(x) else x
                if t: a(t)

def dsop(text, tag=None):
    def f(lq):
        lq.issue(tag); return text
    return f
def dswait(tag, then=''):
    def f(lq):
        return lq.wait(tag) + '\n' + then
    return f

SV = dict(l8=0, pa=1, idx=2, k1=3, mf=12, acc=40, w=64)
def tile_of(w, u):
    if u < 5: return (u, w)
    order = {(0, 5): (5, 0), (1, 5): (5, 1), (2, 5): (5, 2), (2, 6): (5, 3), (0, 6): (6, 0), (1, 6): (6, 1), (0, 7): (6, 2), (1, 7): (6, 3)}
    return order[(w, u)]
NUNIT = [8, 8, 7, 5]
F = dict(l16=4, px=5, pm=6, mk0=7, mk1=8, mk2=9, wz=10, xf=88, tf=200, sa=228, t=240)

def score_setup(a, stamps, cfg):
    V = SV; LN = 44
    a(f'v_mov_b32 v{LN}, v1')
    team_register(a)
    common_addrs(a, V, LN)
    img_addr(a, V['k1'], LN+1, LN)
    g, cc, par, ib, t = LN+1, LN+2, LN+3, LN+4, LN+5
    a(f"""
    v_lshlrev_b32 v{F['l16']}, 4, v{LN}
    v_lshrrev_b32 v{g}, 4, v{LN}
    v_bfe_u32 v{cc}, v{LN}, 2, 2
    v_bfe_u32 v{par}, v{LN}, 1, 1
    v_and_b32 v{ib}, 1, v{LN}
    v_and_b32 v{t}, 15, v{LN}
    v_lshlrev_b32 v{F['px']}, 4, v{t}
    v_lshrrev_b32 v{t}, 1, v{g}
    v_lshl_add_u32 v{F['px']}, v{t}, 8, v{F['px']}
    v_and_b32 v{t}, 1, v{g}
    v_lshl_add_u32 v{F['px']}, v{t}, 3, v{F['px']}
    s_and_b32 s{S_T0}, s{S_ROLE}, 1
    s_lshl_b32 s{S_T0}, s{S_T0}, 4
    s_lshr_b32 s{S_T1}, s{S_ROLE}, 2
    s_lshl_b32 s{S_T1}, s{S_T1}, 9
    s_add_u32 s{S_T0}, s{S_T0}, s{S_T1}
    s_and_b32 s{S_T1}, s{S_ROLE}, 2
    s_lshl_b32 s{S_T1}, s{S_T1}, 1
    s_add_u32 s{S_T0}, s{S_T0}, s{S_T1}
    s_add_u32 s{S_T0}, s{S_T0}, 8192
    v_and_b32 v{F['pm']}, 0xffffffef, v{V['l8']}
    v_add_u32 v{F['pm']}, s{S_T0}, v{F['pm']}
    s_lshl_b32 s{S_T0}, s{S_ROLE}, 9
    v_add_u32 v{F['px']}, s{S_T0}, v{F['px']}
    v_lshlrev_b32 v{t}, 4, v{ib}
    v_mov_b32 v{F['mk2']}, 0xffff
    v_lshlrev_b32 v{F['mk2']}, v{t}, v{F['mk2']}
    v_cmp_eq_u32 vcc, v{cc}, v{g}
    v_mov_b32 v{t}, 0
    v_cndmask_b32 v{F['mk2']}, v{t}, v{F['mk2']}, vcc
    v_cmp_eq_u32 vcc, 0, v{par}
    v_mov_b32 v{t+1}, 0xff800000
    v_cndmask_b32 v{F['mk0']}, v{t}, v{F['mk2']}, vcc
    v_cndmask_b32 v{F['mk1']}, v{F['mk2']}, v{t}, vcc
    v_cndmask_b32 v{F['wz']}, v{t+1}, v{t}, vcc
    s_mul_i32 s{S_T1}, s{S_ROLE}, {28*14336}
    s_add_u32 s{S_T1}, s{S_T1}, {L.WT}
    """)
    done = a.newlabel('L_sw')
    fz = cfg['fused']
    if fz:
        a(f"v_min_u32 v{LN+8}, 27, v{LN}\nv_lshlrev_b32 v{LN+8}, 3, v{LN+8}\ns_mul_i32 s{S_T0}, s{S_ROLE}, {14*32}\nv_add_u32 v{LN+8}, s{S_T0}, v{LN+8}")
        wait_flags(a, LN+8, 1, LN+10)
    for w in range(4):
        nx = a.newlabel('L_swn')
        if w < 3: a(f's_cmp_lg_u32 s{S_WAVE}, {w}\ns_cbranch_scc1 {nx}')
        tiles = []
        for u in range(NUNIT[w]):
            b, ga = tile_of(w, u)
            tiles.append(((4*b+ga)*14336, [wreg_half(u*7 + k//2, V['w'], k % 2) for k in range(14)]))
        if fz:
            load_tiles(a, tiles, F['l16'], S_T1, 1, cfg['wfl'], [0])
            wait_flags(a, LN+8, 7, LN+10)
            load_tiles(a, tiles, F['l16'], S_T1, 2, cfg['wfl'], [0])
        else:
            load_tiles(a, tiles, F['l16'], S_T1, None, cfg['wfl'], [0], cfg['scap'])
        if w < 3: a(f's_branch {done}\n{nx}:')
    a(f"""
{done}:
    {team_mode_load(V['mf'], V['mf']+1) if not fz else ''}
    s_mov_b32 s{S_STEP}, 0
    s_mov_b32 s{S_MOFF}, {L.MB_M}
    s_mov_b32 s{S_POFF}, {L.MB_P}
    s_mov_b32 s{S_GOFF}, {L.XN}
    s_lshl_b32 s{S_STMP}, s{S_ROLE}, 2
    s_add_u32 s{S_STMP}, s{S_STMP}, s{S_WAVE}
    s_lshl_b32 s{S_STMP}, s{S_STMP}, 12
    s_add_u32 s{S_STMP}, s{S_STMP}, {L.STAMP}
    """)
    if fz:
        wait_ln(a, LN, 12)
    else:
        nf = a.newlabel('L_nx0')
        a(f's_cmp_lg_u32 s{S_WAVE}, 3\ns_cbranch_scc1 {nf}\ns_waitcnt vmcnt(30)\ns_mov_b32 s{S_T0}, s{S_GOFF}')
        load_1k_run(a, [vr(F['xf'] + 4*k, 4) for k in range(28)], F['l16'], S_T0, cfg['wfl'])
        a.label(nf)
    team_mode(a, V['mf'], V['mf']+1, primed=not fz)

def step_advance(a, gstride, xstride=114688):
    a(f"""
    s_add_u32 s{S_STEP}, s{S_STEP}, 1
    s_add_u32 s{S_MOFF}, s{S_MOFF}, 8192
    s_add_u32 s{S_POFF}, s{S_POFF}, 16384
    s_add_u32 s{S_GOFF}, s{S_GOFF}, {gstride}
    s_add_u32 s{S_XOFF}, s{S_XOFF}, {xstride}
    s_add_u32 s{S_STMP}, s{S_STMP}, 64
    """)

def rowred(a, op, x):
    for m in ('row_ror:8', 'row_ror:4', 'row_ror:2', 'row_ror:1'):
        for r in (x, x+1):
            a(f'{op}_dpp v{r}, v{r}, v{r} {m} row_mask:0xf bank_mask:0xf')

def score_wave(a, w, pf, stamps, cfg):
    V = SV; idx = V['idx']; mf = V['mf']
    top = a.newlabel(f'L_sc{w}_top'); first = a.newlabel(f'L_sc{w}_first')
    nunit = NUNIT[w]
    accof = lambda u: V['acc'] + 4*(u % 6)
    ok = {0: (0, 9, 2), 1: (2,), 2: (0, 9, 1, 2), 3: (7, 8, 4)}[w]
    ST = (lambda k: f's_memtime s[{40+2*k}:{41+2*k}]' if k in ok else '') if stamps else (lambda k: '')
    def stamp(a, stamps, k):
        a(ST(k))
    xf, tf, sa, T = F['xf'], F['tf'], F['sa'], F['t']
    FA, FV = 8, 9
    HA = 11
    HT = ([5, 6, 7, 10] if w < 3 else [T+4, T+5, T+6, T+7])[:cfg['hdepth']]
    def load_x():
        a(f's_mov_b32 s{S_T0}, s{S_GOFF}')
        load_1k_run(a, [vr(xf + 4*k, 4) for k in range(28)], F['l16'], S_T0, cfg['wfl'])
    XW = cfg['xw']
    def dma_x(a=a):
        lo, hi = XW[w]
        a(f"""
        s_and_b32 s{S_T0}, s{S_STEP}, 1
        s_xor_b32 s{S_T0}, s{S_T0}, 1
        s_mul_i32 s{S_T0}, s{S_T0}, 28672
        s_add_u32 s{S_T0}, s{S_T0}, {LDS_X + lo*1024}
        s_add_u32 s{S_T1}, s{S_GOFF}, {28672 + lo*1024 - w*1792}
        """)
        for k in range(hi - lo):
            if k % 4 == 0:
                if k: a(f's_add_u32 s{S_T0}, s{S_T0}, 4096\ns_add_u32 s{S_T1}, s{S_T1}, 4096')
                a(f's_mov_b32 m0, s{S_T0}')
            a(f"buffer_load_dwordx4 v{V['pa']}, {WSRD}, s{S_T1} offen offset:{(k%4)*1024} {cfg['wfl']} lds")
    def read_x():
        a(f"""
        s_and_b32 s{S_T0}, s{S_STEP}, 1
        s_mul_i32 s{S_T0}, s{S_T0}, 28672
        v_add_u32 v{T}, s{S_T0}, v{F['l16']}
        """)
        for k in range(28): a(f'ds_read_b128 v[{xf+4*k}:{xf+4*k+3}], v{T} offset:{LDS_X + k*1024}')
    def zero_acc():
        for u in range(2 if cfg['m2'] else min(6, nunit)):
            a(f'v_mov_b64 v[{accof(u)}:{accof(u)+1}], 0\nv_mov_b64 v[{accof(u)+2}:{accof(u)+3}], 0')
        if w == 3:
            for k in range(4): a(f'v_mov_b64 v[{sa+2*k}:{sa+2*k+1}], 0')
            a(f"v_mov_b32 v{sa+8}, v{F['wz']}\nv_mov_b32 v{sa+9}, v{F['wz']}\nv_mov_b64 v[{sa+10}:{sa+11}], 0")
    a(f"v_lshrrev_b32 v{HA}, 1, v{V['l8']}\nv_min_u32 v{HA}, {55*4}, v{HA}\ns_and_b32 s{S_T0}, s{S_ROLE}, 3\ns_lshl_b32 s{S_T0}, s{S_T0}, 8\ns_add_u32 s{S_T0}, s{S_T0}, 7168\nv_add_u32 v{HA}, s{S_T0}, v{HA}")
    if w == 3:
        if cfg['fused']: load_x()
        a(f'v_and_b32 v{T+12}, {15*8}, v0\nv_lshlrev_b32 v{T+12}, 3, v{T+12}\nv_add_u32 v{T+12}, 6144, v{T+12}')
        if stamps: a('s_mov_b32 s40, 0\ns_mov_b32 s42, 0\ns_mov_b32 s44, 0')
        a(f's_mov_b32 s{S_EOFF}, 0\ns_lshl_b32 s{S_T0}, s{S_ROLE}, 2\ns_add_u32 s{S_T0}, s{S_T0}, 12288\nv_lshlrev_b32 v{T+14}, 4, v0\nv_add_u32 v{T+14}, s{S_T0}, v{T+14}\nv_mov_b32 v{T+15}, 0')
    else:
        a(f"v_add_u32 v{FA}, {LDS_FL + 4*w}, v{F['l16']}\nv_mov_b32 v{FV}, 0")
        for k in range(5): a(f'ds_write_b32 v{FA}, v{FV} offset:{k*1024}')
        a(f'v_and_b32 v4, {31*8}, v0\nv_lshlrev_b32 v4, 3, v4\nv_add_u32 v4, {w*2048}, v4')
    if w < 3 and not cfg['xin']: dma_x()
    if cfg['prio'][w]: a(f"s_setprio {cfg['prio'][w]}")
    zero_acc()
    if cfg.get('wgd'): a('s_memrealtime s[88:89]')
    a(f's_branch {first}')
    a.label(top)
    zero_acc()
    stamp(a, stamps, 0)
    if cfg['msamp'] == 2: a(f'v_mov_b32 v{mf if w < 3 else T+13}, 0')
    if cfg['mdma'] == 2: a(f's_mov_b32 m0, {LDS_M}\ns_add_u32 s{S_T0}, s{S_MOFF}, 4096')
    elif cfg['mdma']: a(f's_mov_b32 m0, {LDS_M + w*2048}\ns_add_u32 s{S_T0}, s{S_MOFF}, {w*2048 - w*1792}')
    if not cfg['cutrig'] or w == 0: wait_hint(a, HA, S_MOFF, HT, delay=cfg['mdelay'], inner=cfg['hinner'])
    if cfg['cutrig'] and cfg['mdma'] != 2: a('s_barrier')
    if cfg['mdma']:
        got = a.newlabel('L_got')
        a(ST(9))
        nk = 2 if w < 3 else 1
        SA_ = (4 if w < 3 else T+12)
        def rnd(r):
            if cfg['msamp'] == 2:
                a(f"s_mov_b64 exec, {0x55555555 if w < 3 else 0x5555}\nbuffer_load_dword v{r}, v{SA_}, {WSRD}, s{S_MOFF} offen sc1\ns_mov_b64 exec, -1")
            elif cfg['msamp']: a(f"buffer_load_dword v{r}, v{SA_}, {WSRD}, s{S_MOFF} offen sc1")
            for k in range(nk): a(f"buffer_load_dwordx4 v{V['pa']}, {WSRD}, s{S_T0} offen offset:{k*1024} sc1 lds")
        r0, r1 = (mf, HT[1]) if w < 3 else (T+13, T+15)
        two = cfg['m2d']
        rnd(r0)
        a(f'v_add_u32 v{FV}, 1, v{FV}' if w < 3 else f's_add_u32 s{S_EOFF}, s{S_EOFF}, 1')
        a(f's_mov_b32 s{S_SAFE}, 0\ns_mov_b32 s{S_SPIN}, 1')
        if two:
            gap = two
            while gap > 0:
                a(f's_nop {min(gap, 16) - 1}'); gap -= 16
            rnd(r1)
        ex = (nk+1) if two else 0
        bad = a.newlabel('L_mbad'); okl = a.newlabel('L_mok')
        a(f"""
        {f's_waitcnt vmcnt({nk + ex})' if cfg['msamp'] else ''}
        {f'v_cmp_eq_u32 vcc, -1, v{r0}' if cfg['msamp'] else ''}
        {f's_cbranch_vccnz {bad}' if cfg['msamp'] else ''}
        s_waitcnt vmcnt({ex}) lgkmcnt(0)
{okl}:
        s_barrier
{got}:
        """)
        def coldb():
            lp = a.newlabel('L_mlp')
            a.label(bad)
            if two:
                a(f's_mov_b32 s{S_SPIN}, 2\ns_waitcnt vmcnt(0) lgkmcnt(0)\nv_cmp_eq_u32 vcc, -1, v{r1}\ns_cbranch_vccz {okl}')
            a.label(lp)
            rnd(r0)
            a(f"""
            s_add_u32 s{S_SPIN}, s{S_SPIN}, 1
            s_waitcnt vmcnt(0) lgkmcnt(0)
            v_cmp_eq_u32 vcc, -1, v{r0}
            s_cbranch_vccz {okl}
            s_cmp_lt_u32 s{S_SPIN}, s{S_LIM}
            s_cbranch_scc1 {lp}
            s_mov_b32 s{S_LIM}, 1
            s_branch {okl}
            """)
        a.cold.append(coldb)
        def coldf():
            a.label(first)
            a(f'v_add_u32 v{FV}, 1, v{FV}' if w < 3 else f's_add_u32 s{S_EOFF}, s{S_EOFF}, 1')
            a(f's_mov_b32 s{S_SAFE}, 1')
            poll_m(a, V)
            a(f's_branch {got}')
        a.cold.append(coldf)
    else:
        a.label(first)
        a(f'v_add_u32 v{FV}, 1, v{FV}' if w < 3 else f's_add_u32 s{S_EOFF}, s{S_EOFF}, 1')
        a(ST(9))
        if cfg['m2']: poll_m2(a, V, cfg['m2'], mf)
        else: poll_m(a, V)
    stamp(a, stamps, 1)
    if stamps and w < 3: a(f's_mov_b32 s{40+2*7}, s{S_SPIN}')
    lq = Q('lgkmcnt', 15)
    mrd = [dsop(f"ds_read_b64_tr_b16 v[{mf+4*b+2*hf}:{mf+4*b+2*hf+1}], v{V['l8']} offset:{LDS_M+b*1024+hf*512}", ('mf', b))
           for b in range(7) for hf in range(2)]
    for x in mrd[:cfg['mpre']]: a(x(lq))
    order = [(u, b) for b in range(7) for u in range(2)] + [(u, b) for u in range(2, nunit) for b in range(7)]
    ms = [(SM(accof(u), mf+4*b, wreg(u*7 + b, V['w']), idx), [('mf', b)] if u == 0 else []) for u, b in order]
    last = {u: i for i, (u, b) in enumerate(order)}
    def smfma(b):
        t4 = tf + 4*b
        return [(f"v_mfma_f32_16x16x32_bf16 v[{sa+8}:{sa+11}], v[{t4}:{t4+3}], v[{mf+4*b}:{mf+4*b+3}], " + f'v[{sa+8}:{sa+11}]', [('tf', b)]),
                (SM(sa, t4, vr(xf + 8*b, 8), idx), []),
                (SM(sa+4, t4, vr(xf + 56 + 8*b, 8), idx), [])]
    def tread(b, hf):
        return dsop(f"ds_read_b64_tr_b16 v[{tf+4*b+2*hf}:{tf+4*b+2*hf+1}], v{V['l8']} offset:{LDS_T+b*1024+hf*512}", ('tf', b))
    phases = [(0, 1, 2), (3, 4)]
    starts = []
    if w == 3:
        for ph in phases:
            starts.append(len(ms))
            for b in ph: ms += smfma(b)
    n = len(ms)
    gp = Gaps(n)
    for k, x in enumerate(mrd[cfg['mpre']:]): gp.put('ds', k, x)
    flag_after = {2, 4} | ({5} if w < 2 else {6})
    def post(u):
        A = accof(u); b, ga = tile_of(w, u)
        va = [f'v_add_f32 v{A}, v{A}, v{A+2}', f'v_add_f32 v{A+1}, v{A+1}, v{A+3}', f'v_cvt_pk_bf16_f32 v{A}, v{A}, v{A+1}']
        ds = [dsop(f"ds_write_b32 v{V['k1']}, v{A} offset:{LDS_T+b*1024+ga*128}", ('k', u))]
        if w < 3 and u in flag_after:
            ds.append(dsop(f'ds_write_b32 v{FA}, v{FV} offset:{sorted(flag_after).index(u)*1024}'))
        return va, ds
    g = 0
    done_at = {}
    for u in range(nunit - (0 if w == 3 else 1)):
        va, ds = post(u)
        g = max(g, last[u] + 3 - (len(va) - 3))
        for x in va: g = gp.put('va', g, x) + 1
        for x in ds: g = gp.put('ds', g, x, excl=True) + 1
        done_at[u] = g
    def zero_in_gaps(u, g):
        A = accof(u)
        for k in range(2):
            gg = g
            while gg < 7*u - 2 and (gp.va[gg] or (gp.ds[gg] and gp.ds[gg][-1][1])): gg += 1
            if gg >= 7*u - 2: gg = max(g, 7*u - 4 + k)
            gp.force('va', gg, f'v_mov_b64 v[{A+2*k}:{A+2*k+1}], 0')
    if cfg['m2']:
        gp.force('ds', cfg['m2w'], 's_waitcnt vmcnt(0)')
        for u in range(2, min(6, nunit)): zero_in_gaps(u, cfg['m2w'])
    for u in range(6, nunit): zero_in_gaps(u, done_at[u-6] + 1)
    if w == 3:
        for pi, ph in enumerate(phases):
            flagrd = f"ds_read_b128 v[{T}:{T+3}], v{F['l16']} offset:{LDS_FL + pi*1024}"
            lead = cfg['lead'][pi]
            g = max(starts[pi] - lead, done_at[max(ph)] if max(ph) < 5 else 0)
            g = min(g, starts[pi]-1)
            if cfg['pnop'][pi]: gp.force('ds', g, f"s_nop {cfg['pnop'][pi]-1}")
            gp.force('ds', g, dsop(flagrd, ('fl', pi)))
            ops = [tread(b, hf) for b in ph for hf in range(2)]
            for k, x in enumerate(ops):
                gp.force('ds', min(g + (k+1)//2, starts[pi]-1), x)
            FM = T+11
            def chk(lq, pi=pi):
                return lq.wait(('fl', pi)) + (f'\nv_min3_u32 v{FM}, v{T}, v{T+1}, v{T+2}' if pi == 0 else
                                              f'\nv_min3_u32 v{T}, v{T}, v{T+1}, v{T+2}\nv_min_u32 v{FM}, v{FM}, v{T}')
            gp.force('va', starts[pi], chk)
    if cfg['xin'] and XW[w][1] > XW[w][0]:
        sub = Asm(); dma_x(sub)
        grp = []; cur = []
        for _, x in sub.items:
            cur.append(x.text)
            if x.text.startswith('buffer'): grp.append('\n'.join(cur)); cur = []
        g = cfg['xin']
        for x in grp: g = gp.put('ds', g, x) + cfg['xstep']
    if w == 0 and cfg['phint'] < 0:
        gp.force('ds', n - 1 + cfg['phint'], f"""s_mov_b64 exec, 15
            buffer_store_dword v{FV}, v4, {WSRD}, s{S_POFF} offen {pf}
            s_mov_b64 exec, -1""")
    emit_stream(a, ms, gp, lq)
    hint = f"""s_mov_b64 exec, 15
        buffer_store_dword v{T+15}, v{T+14}, {WSRD}, s{S_POFF} offen {pf}
        s_mov_b64 exec, -1"""
    if w < 3:
        va, ds = post(nunit-1)
        A_ = accof(nunit-1)
        va = [f'v_pk_add_f32 v[{A_}:{A_+1}], v[{A_}:{A_+1}], v[{A_+2}:{A_+3}]', va[-1]]
        for x in va: a(x)
        for x in ds: a(x(lq))
        a(lq.drain())
        a('s_barrier')
        stamp(a, stamps, 2)
        if cfg['mdma']:
            again = a.newlabel('L_again')
            a(f"""
            {'s_waitcnt vmcnt(0)' if cfg['xin'] else ''}
            s_barrier
            v_mov_b32 v{mf}, {LDS_VD}
            ds_read_b32 v{mf}, v{mf}
            s_waitcnt lgkmcnt(0)
            v_cmp_eq_u32 vcc, v{mf}, v{FV}
            s_cbranch_vccnz {again}
            """)
            def colda():
                a.label(again)
                zero_acc()
                a(f's_branch {first}')
            a.cold.append(colda)
        elif cfg['quiet']: a(f"s_sleep {cfg['quiet']}")
    else:
        s = T
        mx = T+6; z = T+8; EA = tf; B1 = tf+4; B2 = tf+8; D1 = tf+12; D2 = tf+16; rz = T+10
        a(f"""
        v_mov_b64 v[{B1+2}:{B1+3}], 0
        v_mov_b64 v[{B2}:{B2+1}], 0
        v_mov_b32 v{B2+3}, 0
        v_mov_b32 v{EA+3}, 0
        """)
        for _ in range(cfg['b5nop']): a('s_nop 3')
        q = Q('lgkmcnt', 15)
        a(f"ds_read_b128 v[{T}:{T+3}], v{F['l16']} offset:{LDS_FL + 2048}"); q.issue('fl')
        for hf in range(2): a(tread(5, hf)(q))
        stamp(a, stamps, 2)
        if cfg['al'] is not None:
            a.raw('    .p2align 6')
            for _ in range(cfg['al']): a('s_nop 0')
        a('s_barrier')
        stamp(a, stamps, 3)
        PX = lambda k: a('s_memtime s[52:53]') if stamps and cfg['px'] == k else None
        PX(0)
        for hf in range(2): a(tread(6, hf)(q))
        PX(1)
        if cfg['phint'] == 0: a(hint)
        PX(2)
        fl5 = [f'v_min3_u32 v{T}, v{T}, v{T+1}, v{T+2}', f'v_min_u32 v{FM}, v{FM}, v{T}', f'v_subrev_u32 v{FM}, s{S_EOFF}, v{FM}']
        for b in (5, 6):
            for m, tags in smfma(b):
                for tg in tags: a(q.wait(tg))
                if b == 6 and tags: PX(4)
                a(m)
                if fl5: a(fl5.pop(0))
            if b == 5: PX(3)
        a(ST(7))
        if cfg['phint'] == 1: a(hint)
        e = sa
        redo = a.newlabel('L_smr'); slowmx = a.newlabel('L_sms'); go = a.newlabel('L_smg')
        a(f"""
        s_mov_b32 s{S_T1}, {120 << 23}
        s_mov_b32 s{S_SPIN}, 0
        v_add_f32_dpp v{s+4}, v{sa+10}, v{sa+8} {QP}
        v_add_f32_dpp v{s+5}, v{sa+11}, v{sa+9} {QP}
        v_pk_add_f32 v[{s}:{s+1}], v[{sa}:{sa+1}], v[{sa+2}:{sa+3}]
        v_exp_f32 v{e+8}, v{s+4}
        v_exp_f32 v{e+9}, v{s+5}
        v_pk_add_f32 v[{s+2}:{s+3}], v[{sa+4}:{sa+5}], v[{sa+6}:{sa+7}]
        v_exp_f32 v{e}, v{s}
        v_exp_f32 v{e+1}, v{s+1}
        v_exp_f32 v{e+2}, v{s+2}
        v_exp_f32 v{e+3}, v{s+3}
{redo}:;nf
        v_pk_add_f32 v[{z}:{z+1}], v[{e}:{e+1}], v[{e+8}:{e+9}]
        v_cvt_pk_bf16_f32 v{EA+2}, v{e+8}, v{e+9}
        v_pk_add_f32 v[{z}:{z+1}], v[{z}:{z+1}], v[{e+2}:{e+3}]
        """)
        if cfg['phint'] == 2: a(hint)
        fill = [f'v_cvt_pk_bf16_f32 v{EA+k}, v{e+2*k}, v{e+2*k+1}' for k in range(2)]
        for m in ('row_ror:8', 'row_ror:4', 'row_ror:2', 'row_ror:1'):
            if fill: a(fill.pop(0))
            for r in (z, z+1):
                a(f'v_add_f32_dpp v{r}, v{r}, v{r} {m} row_mask:0xf bank_mask:0xf')
        LO, HI = (127-60) << 23, (127+60) << 23
        a(ST(8))
        a(f"""
        v_rcp_f32 v{mx}, v{z}
        v_rcp_f32 v{mx+1}, v{z+1}
        v_subrev_u32 v{z}, {LO}, v{z}
        v_cvt_pk_bf16_f32 v{rz}, v{mx}, v{mx+1}
        v_and_b32 v{B1}, v{rz}, v{F['mk0']}
        v_and_b32 v{B1+1}, v{rz}, v{F['mk1']}
        v_and_b32 v{B2+2}, v{rz}, v{F['mk2']}
        v_subrev_u32 v{z+1}, {LO}, v{z+1}
        v_mfma_f32_16x16x32_bf16 v[{D1}:{D1+3}], v[{EA}:{EA+3}], v[{B1}:{B1+3}], 0
        v_mfma_f32_16x16x32_bf16 v[{D2}:{D2+3}], v[{EA}:{EA+3}], v[{B2}:{B2+3}], 0
        v_max3_u32 v{z}, v{z}, v{z+1}, v{FM}
        v_cmp_lt_u32 vcc, s{S_T1}, v{z}
        s_cmp_eq_u64 vcc, 0
        s_cselect_b64 exec, -1, 0
        v_cvt_pk_bf16_f32 v{D1}, v{D1}, v{D1+1}
        v_cvt_pk_bf16_f32 v{D1+1}, v{D1+2}, v{D1+3}
        buffer_store_dwordx2 v[{D1}:{D1+1}], v{F['px']}, {WSRD}, s{S_POFF} offen {pf}
        v_cvt_pk_bf16_f32 v{D2}, v{D2}, v{D2+1}
        buffer_store_dword v{D2}, v{F['pm']}, {WSRD}, s{S_POFF} offen {pf}
        s_mov_b64 exec, -1
        s_cbranch_scc0 {slowmx}
        """)
        if cfg['mdma']: a('s_barrier')
        def coldmx():
            a(f'{slowmx}:' + ('\ns_add_u32 s40, s40, 1' if stamps else ''))
            loc = a.newlabel('L_loc'); sf = a.newlabel('L_safe')
            a(f's_cmp_eq_u32 s{S_SPIN}, 0\ns_cbranch_scc1 {loc}')
            if cfg['mdma']:
                a(f"""
                s_cmp_lg_u32 s{S_SAFE}, 0
                s_cbranch_scc1 {sf}
                {'s_add_u32 s86, s86, 1' if cfg.get('wgd') else ''}
                v_mov_b32 v{T}, {LDS_VD}
                v_mov_b32 v{T+1}, s{S_EOFF}
                ds_write_b32 v{T}, v{T+1}
                s_waitcnt lgkmcnt(0)
                s_barrier
                """)
                zero_acc()
                a(f's_branch {first}')
            a(f'{sf}:\ns_mov_b32 s{S_T1}, -1\ns_branch {redo}\n{loc}:\ns_mov_b32 s{S_SPIN}, 1\nv_mov_b32 v{FM}, 0')
            if cfg.get('wgd'): a('s_add_u32 s85, s85, 1')
            for k in range(4): a(f'v_mov_b64 v[{sa+2*k}:{sa+2*k+1}], 0')
            a(f"v_mov_b32 v{sa+8}, v{F['wz']}\nv_mov_b32 v{sa+9}, v{F['wz']}\nv_mov_b64 v[{sa+10}:{sa+11}], 0")
            q2 = Q('lgkmcnt', 15)
            for b in range(7):
                for hf in range(2): a(tread(b, hf)(q2))
            a('s_waitcnt lgkmcnt(0)')
            for b in range(7):
                for m, tags in smfma(b): a(m)
            a(f"""
            v_mov_b64 v[{B1+2}:{B1+3}], 0
            v_mov_b64 v[{B2}:{B2+1}], 0
            v_mov_b32 v{B2+3}, 0
            v_mov_b32 v{EA+3}, 0
            v_add_f32_dpp v{s+4}, v{sa+10}, v{sa+8} {QP}
            v_add_f32_dpp v{s+5}, v{sa+11}, v{sa+9} {QP}
            v_pk_add_f32 v[{s}:{s+1}], v[{sa}:{sa+1}], v[{sa+2}:{sa+3}]
            v_pk_add_f32 v[{s+2}:{s+3}], v[{sa+4}:{sa+5}], v[{sa+6}:{sa+7}]
            v_max3_f32 v{mx}, v{s}, v{s+4}, v{s+2}
            v_max3_f32 v{mx+1}, v{s+1}, v{s+5}, v{s+3}
            """)
            rowred(a, 'v_max_f32', mx)
            for k in range(3): a(f'v_pk_add_f32 v[{s+2*k}:{s+2*k+1}], v[{s+2*k}:{s+2*k+1}], v[{mx}:{mx+1}] neg_lo:[0,1] neg_hi:[0,1]')
            for k in range(6): a(f'v_exp_f32 v{e+(k if k < 4 else k+4)}, v{s+k}')
            a(f's_nop 1\ns_branch {redo}')
        a.cold.append(coldmx)
        stamp(a, stamps, 4)
    if stamps: a('s_memtime s[50:51]\ns_memrealtime s[60:61]')
    stamp_flush(a, stamps, 11, mf)
    step_advance(a, 28672, 458752)
    a(f's_cmp_ge_u32 s{S_STEP}, 63\ns_cbranch_scc1 L_exit')
    if w == 3: read_x()
    elif not cfg['nox'] and not cfg['xin']:
        if cfg['xs']: a(f"s_sleep {cfg['xs']}")
        dma_x()
    if cfg['ssleep'][w]:
        a(f"s_sleep {cfg['ssleep'][w]}")
    a(f's_branch {top}')
    a.flush_cold()

S_YD = 33; S_SAFE = 36; S_CV = 37; S_CU = 38; S_MD = 39
CV = dict(ha=160, one=161, zero=162, cu=163, hw=164, hm=165, nw=172, nr=173, pmr=72, l8=0, pa=1, idx=2, l16=3, pr=4, mw=6, lw=7, rw=8, rr=5, mf=12, acc=40, itm=72, vx=88, uf=96, tw=128, w=176)

def comb_setup(a, stamps, cfg):
    V = CV; LN = 112
    a(f'v_mov_b32 v{LN}, v1')
    team_register(a)
    common_addrs(a, V, LN)
    img_addr(a, V['mw'], LN+1, LN)
    a(f"""
    s_sub_u32 s{S_ROLE}, s{S_ROLE}, 16
    s_lshl_b32 s{S_ROLE}, s{S_ROLE}, 1
    s_and_b32 s{S_T0}, s{S_WAVE}, 1
    s_add_u32 s{S_T1}, s{S_ROLE}, s{S_T0}
    s_lshr_b32 s{S_T0}, s{S_T1}, 2
    s_lshl_b32 s{S_T0}, s{S_T0}, 10
    s_and_b32 s{S_T1}, s{S_T1}, 3
    s_lshl_b32 s{S_T1}, s{S_T1}, 7
    s_add_u32 s{S_T0}, s{S_T0}, s{S_T1}
    s_add_u32 s{S_T0}, s{S_T0}, 8192
    v_add_u32 v{V['mw']}, s{S_T0}, v{V['mw']}
    v_lshlrev_b32 v{V['l16']}, 4, v{LN}
    s_mul_i32 s{S_T0}, s{S_WAVE}, 28672
    s_add_u32 s{S_T0}, s{S_T0}, {LDS_BW}
    v_add_u32 v{V['lw']}, s{S_T0}, v{V['l16']}
    s_lshl_b32 s{S_T0}, s{S_WAVE}, 10
    v_add_u32 v{V['rw']}, s{S_T0}, v{V['l16']}
    v_add_u32 v{V['pr']}, s{S_T0}, v{V['rw']}
    s_and_b32 s{S_T0}, s{S_WAVE}, 1
    s_lshl_b32 s{S_T0}, s{S_T0}, 3
    v_add_u32 v{V['rr']}, s{S_T0}, v{V['l16']}
    s_mul_i32 s{S_T1}, s{S_WAVE}, {4*28}
    s_add_u32 s{S_T1}, s{S_T1}, s{S_ROLE}
    s_add_u32 s{S_T1}, s{S_T1}, 448
    s_mul_i32 s{S_T1}, s{S_T1}, 14336
    s_add_u32 s{S_T1}, s{S_T1}, {L.WT}
    """)
    toff = lambda u: ((u >> 1)*28 + (u & 1))*14336
    fz = cfg['fused']
    tiles = [(toff(u), [wreg_half(u*7 + k//2, V['w'], k % 2) for k in range(14)]) for u in range(6)]
    ltiles = [(toff(u), [vr(12 + (u-6)*116 + 4*k, 4) if u == 6 else vr(120 + 4*k, 4) for k in range(14)]) for u in (6, 7)]
    if fz:
        a(f"""
        v_bfe_u32 v{LN+4}, v{LN}, 2, 2
        v_mul_u32_u24 v{LN+4}, {14*32}, v{LN+4}
        v_and_b32 v{LN+5}, 3, v{LN}
        v_lshl_add_u32 v{LN+4}, v{LN+5}, 3, v{LN+4}
        s_mul_i32 s{S_T0}, s{S_WAVE}, 56
        s_lshr_b32 s{S_SPIN}, s{S_ROLE}, 2
        s_add_u32 s{S_T0}, s{S_T0}, s{S_SPIN}
        s_add_u32 s{S_T0}, s{S_T0}, 7
        s_lshl_b32 s{S_T0}, s{S_T0}, 5
        v_add_u32 v{LN+4}, s{S_T0}, v{LN+4}
        """)
        wait_flags(a, LN+4, 1, 100)
        load_tiles(a, ltiles + tiles, V['l16'], S_T1, 1, cfg['wfl'], [0])
        wait_flags(a, LN+4, 7, 100)
        load_tiles(a, ltiles + tiles, V['l16'], S_T1, 2, cfg['wfl'], [0])
    else:
        load_tiles(a, ltiles + tiles, V['l16'], S_T1, None, cfg['wfl'], [0], cfg['ccap'])
    if not fz:
        a(team_mode_load(104, 105))
        a(f"v_mov_b32 v106, 0\ns_mov_b32 s{S_CU}, {L.CNT_U}\ns_mov_b32 s{S_CV}, {L.CNT_I}")
        a(f'buffer_load_dword v107, v106, {WSRD}, s{S_CU} offen sc1\nbuffer_load_dword v109, v106, {WSRD}, s{S_CV} offen sc1')
    a('s_waitcnt vmcnt(28)')
    for u in (6, 7):
        for k in range(14):
            a(f"ds_write_b128 v{V['lw']}, {ltiles[u-6][1][k]} offset:{(u-6)*14336+k*1024}")
    a('s_waitcnt lgkmcnt(0)')
    if fz: wait_ln(a, LN, 100)
    a(f"""
    s_mov_b32 s{S_STEP}, 0
    s_mov_b32 s{S_MOFF}, {L.MB_M}
    s_mov_b32 s{S_POFF}, {L.MB_P}
    s_lshl_b32 s{S_GOFF}, s{S_ROLE}, 14
    s_lshl_b32 s{S_T0}, s{S_WAVE}, 12
    s_add_u32 s{S_GOFF}, s{S_GOFF}, s{S_T0}
    s_add_u32 s{S_GOFF}, s{S_GOFF}, {L.U}
    s_lshl_b32 s{S_XOFF}, s{S_ROLE}, 12
    s_add_u32 s{S_XOFF}, s{S_XOFF}, {L.VM}
    s_lshr_b32 s{S_STMP}, s{S_ROLE}, 1
    s_add_u32 s{S_STMP}, s{S_STMP}, 16
    s_lshl_b32 s{S_STMP}, s{S_STMP}, 2
    s_add_u32 s{S_STMP}, s{S_STMP}, s{S_WAVE}
    s_lshl_b32 s{S_STMP}, s{S_STMP}, 12
    s_add_u32 s{S_STMP}, s{S_STMP}, {L.STAMP}
    s_waitcnt vmcnt(0)
    """)
    a(f"""
    v_mov_b32 v{V['one']}, 1
    v_mov_b32 v{V['zero']}, 0
    v_mov_b32 v{V['cu']}, 0
    v_and_b32 v{V['ha']}, {120 if cfg['cutrig'] else 24}, v{V['l8']}
    v_lshrrev_b32 v{V['ha']}, 1, v{V['ha']}
    s_lshl_b32 s{S_T0}, s{S_WAVE}, 4
    s_mul_i32 s{S_T0}, s{S_T0}, {0 if cfg['cutrig'] else 1}
    s_and_b32 s{S_T1}, s{S_ROLE}, 6
    s_lshl_b32 s{S_T1}, s{S_T1}, 6
    s_add_u32 s{S_T0}, s{S_T0}, s{S_T1}
    s_add_u32 s{S_T0}, s{S_T0}, 12288
    v_add_u32 v{V['ha']}, s{S_T0}, v{V['ha']}
    s_lshl_b32 s{S_T0}, s{S_ROLE}, 1
    s_add_u32 s{S_T0}, s{S_T0}, s{S_WAVE}
    s_lshl_b32 s{S_T0}, s{S_T0}, 2
    s_add_u32 s{S_T0}, s{S_T0}, {8192 + 7168}
    v_lshlrev_b32 v{V['hw']}, 5, v{V['l8']}
    v_add_u32 v{V['hw']}, s{S_T0}, v{V['hw']}
    s_add_u32 s{S_YD}, s{S_XOFF}, 0x8000000
    v_lshrrev_b32 v{V['hm']}, 1, v{V['l8']}
    v_min_u32 v{V['hm']}, {55*4}, v{V['hm']}
    v_add_u32 v{V['hm']}, 7168, v{V['hm']}
    s_mov_b32 s56, 0
    v_lshrrev_b32 v{V['nw']}, 2, v{V['rw']}
    v_lshrrev_b32 v{V['nr']}, 1, v{V['l8']}
    s_lshl_b32 s{S_MD}, s{S_WAVE}, 11
    s_min_u32 s{S_MD}, s{S_MD}, 5120
    s_mov_b32 s{S_CU}, {L.CNT_U}
    """)
    for k in range(8): a(f"v_mov_b32 v{V['vx']+k}, 0")
    a(f"v_lshrrev_b32 v{V['pmr']}, 1, v{V['rw']}")
    team_mode(a, 104, 105, primed=not fz)
    if cfg['flags']:
        wait_cnt(a, S_CU, 28, 106, primed=not fz)
        a(f's_mov_b32 s{S_CV}, {L.CNT_I}')
        wait_cnt(a, S_CV, 98, 108, primed=not fz)
    for k in range(32): a(f"v_mov_b32 v{V['uf']+k}, 0")

def comb_wave(a, pf, stamps, cfg):
    V = CV; idx = V['idx']; mf = V['mf']; tw = V['tw']; uf = V['uf']; pa = V['pa']
    top = a.newlabel('L_cb_top'); nh0 = a.newlabel('L_nh')
    HT = [10, 11, 166, 167][:cfg['hdepth']]
    def store_vx(base, r):
        return [f"buffer_store_dwordx4 v[{r}:{r+3}], v{V['rw']}, {WSRD}, s{base} offen {cfg['xflags']}",
                f"s_add_u32 s{S_T1}, s{base}, 4096\nbuffer_store_dwordx4 v[{r+4}:{r+7}], v{V['rw']}, {WSRD}, s{S_T1} offen {cfg['xflags']}"]
    lq = Q('lgkmcnt', 15)
    def lread(lam, hf):
        return dsop(f"ds_read_b128 v[{tw+8*(lam%4)+4*hf}:{tw+8*(lam%4)+4*hf+3}], v{V['lw']} offset:{lam*2048+hf*1024}", ('lw', lam))
    def housekeeping_acc(a=a):
        for u in range(8):
            A = V['acc'] + 4*u
            a(f'v_mov_b64 v[{A}:{A+1}], 0\nv_mov_b64 v[{A+2}:{A+3}], 0')
    def housekeeping(a=a, acc=True):
        if acc: housekeeping_acc(a)
        for lam in range(4):
            for hf in range(2): a(lread(lam, hf)(lq))
    uload = lambda k: f"buffer_load_dwordx4 v[{uf+4*k}:{uf+4*k+3}], v{V['l16']}, {WSRD}, s{S_GOFF if k < 4 else S_EOFF} offen offset:{(k%4)*1024} {cfg['xflags']}"
    uorder = [] if cfg['nou'] else [4, 5, 6, 7, 0, 1, 2, 3]
    ue = uorder[:cfg['uearly']]; ul = uorder[cfg['uearly']:]
    housekeeping()
    t = mf
    slow = a.newlabel('L_cms'); back = a.newlabel('L_cmb'); redo = a.newlabel('L_cmr')
    pre = f"""s_add_u32 s{S_EOFF}, s{S_GOFF}, 16384
        s_lshl_b32 s{S_CU}, s{S_STEP}, 7
        s_add_u32 s{S_CU}, s{S_CU}, {L.CNT_U + 128}
        s_add_u32 s{S_T0}, s{S_MOFF}, s{S_MD}
        s_mov_b32 m0, s{S_MD}"""
    a(pre)
    a(f's_branch {top}\n{nh0}:\ns_barrier')
    a.label(top)
    stamp(a, stamps, 0)
    if cfg['cdma']:
        a(f"""
        buffer_load_dwordx4 v{V['l16']}, {WSRD}, s{S_T0} offen sc1 lds
        buffer_load_dwordx4 v{V['l16']}, {WSRD}, s{S_T0} offen offset:1024 sc1 lds
        s_mov_b32 s{S_SAFE}, 0
        """)
        if ue: a('s_barrier')
        for k in ue: a(uload(k))
        a(f's_waitcnt vmcnt({len(ue)}) lgkmcnt(0)\ns_barrier\n{back}:')
        def coldr():
            a(f'{redo}:\ns_barrier\ns_mov_b32 s{S_SAFE}, 1\ns_add_u32 s{S_YD}, s{S_XOFF}, 0x8000000')
            if stamps: a(f's_add_u32 s{40+2*8}, s{40+2*8}, 1')
            if cfg.get('wgd'): a('s_add_u32 s84, s84, 1')
            housekeeping()
            poll_m(a, V)
            a(f's_branch {back}')
        a.cold.append(coldr)
    else:
        a(f"""
        buffer_load_dwordx4 v[{t}:{t+3}], v{pa}, {WSRD}, s{S_MOFF} offen sc1
        buffer_load_dwordx4 v[{t+4}:{t+7}], v{pa}, {WSRD}, s{S_MOFF} offen offset:768 sc1
        """)
        if ue: a('s_barrier')
        for k in ue: a(uload(k))
        a(f"""
        s_waitcnt vmcnt({len(ue)+1})
        ds_write_b128 v{pa}, v[{t}:{t+3}]
        v_max3_u32 v{t+8}, v{t}, v{t+1}, v{t+2}
        s_waitcnt vmcnt({len(ue)})
        ds_write_b128 v{pa}, v[{t+4}:{t+7}] offset:768
        v_max3_u32 v{t+8}, v{t+8}, v{t+3}, v{t+4}
        v_max3_u32 v{t+8}, v{t+8}, v{t+5}, v{t+6}
        v_max_u32 v{t+8}, v{t+8}, v{t+7}
        v_cmp_eq_u32 vcc, -1, v{t+8}
        s_cbranch_vccnz {slow}
        s_waitcnt lgkmcnt(0)
        s_barrier
{back}:
        """)
        def coldm():
            a.label(slow)
            if stamps: a(f's_add_u32 s{40+2*8}, s{40+2*8}, 1')
            poll_m(a, V)
            a(f's_branch {back}')
        a.cold.append(coldm)
    lq.drain()
    stamp(a, stamps, 1)
    mrd = [dsop(f"ds_read_b64_tr_b16 v[{mf+4*b+2*hf}:{mf+4*b+2*hf+1}], v{V['l8']} offset:{LDS_M+b*1024+hf*512}", ('mf', b))
           for b in range(7) for hf in range(2)]
    for x in mrd[:cfg['mpre']]: a(x(lq))
    ms = []; last = {}
    rorder = [(u, b) for b in range(7) for u in range(2)] + [(u, b) for u in range(2, 6) for b in range(7)]
    rb = 0
    for p in range(56):
        if p % 4 == 3:
            lam = p // 4; u = 6 + lam // 7; b = lam % 7
            ms.append((SM(V['acc']+4*u, mf+4*b, vr(tw+8*(lam % 4), 8), idx), [('mf', b), ('lw', lam)]))
        else:
            u, b = rorder[rb]; rb += 1
            ms.append((SM(V['acc']+4*u, mf+4*b, wreg(u*7+b, V['w']), idx), [('mf', b)]))
        last[u] = p
    gp = Gaps(56)
    for k, x in enumerate(mrd[cfg['mpre']:]): gp.put('ds', k, x)
    for lam in range(4, 14):
        g = 4*(lam-4) + 3
        g = gp.put('ds', g, lread(lam, 0)) + 1
        gp.put('ds', g, lread(lam, 1))
    g = 0
    for k in ul: g = gp.put('va', g, uload(k)) + cfg['ustep']
    if cfg['flags']:
        g = gp.put('va', g, f"buffer_load_dword v{V['cu']}, v{V['zero']}, {WSRD}, s{S_CU} offen sc1") + 1
    for x in store_vx(S_YD, V['vx']): g = gp.put('va', g, x) + cfg['ustep']
    assert g - cfg['ustep'] < min(last.values()) + 3
    for k in range(len(HT)-1 if cfg['psl'] is None else 0):
        gp.put('ds', 55 - cfg['hpre'] + 4*k, f"buffer_load_dword v{HT[k]}, v{V['ha']}, {WSRD}, s{S_POFF} offen sc1")
    def post(u):
        A = V['acc'] + 4*u; hl = u >> 1; ctl = u & 1
        return ([f'v_pk_add_f32 v[{A}:{A+1}], v[{A}:{A+1}], v[{A+2}:{A+3}]'] if cfg['cpk'] else [f'v_add_f32 v{A}, v{A}, v{A+2}', f'v_add_f32 v{A+1}, v{A+1}, v{A+3}']) + [
                f"v_cvt_pk_bf16_f32 v{V['vx']+4*ctl+hl}, v{A}, v{A+1}"]
    tail = []; gprev = 0
    for u in sorted(last, key=lambda u: last[u]):
        g = max(last[u] + 3, gprev)
        if g + 4 >= 56: tail += post(u); continue
        for x in post(u): g = gp.put('va', g, x) + 1
        gprev = g
        if u == 0: done0 = g
    if cfg['cdma']:
        A0 = V['acc']; N = 168
        g = gp.put('va', done0, f'v_add_f32 v9, v{A0}, v{A0+1}') + 1
        g = gp.put('ds', g, dsop(f"ds_write_b32 v{V['nw']}, v9 offset:{LDS_NAN}", 'nw')) + 4
        gp.force('ds', g, dswait('nw', 's_barrier'))
        g = gp.put('ds', g+1, dsop(f"ds_read2st64_b32 v[{N}:{N+1}], v{V['nr']} offset0:{LDS_NAN//256} offset1:{LDS_NAN//256+1}")) + 1
        g = gp.put('ds', g, dsop(f"ds_read2st64_b32 v[{N+2}:{N+3}], v{V['nr']} offset0:{LDS_NAN//256+2} offset1:{LDS_NAN//256+3}", 'nr')) + 4
        g = gp.put('va', g, dswait('nr', f'v_add_f32 v{N}, v{N}, v{N+2}')) + 1
        g = gp.put('va', g, f'v_add_f32 v{N+1}, v{N+1}, v{N+3}') + 1
        g = gp.put('va', g, f'v_cmp_u_f32 vcc, v{N}, v{N+1}')
        assert g < 54
    emit_stream(a, ms, gp, lq)
    if cfg['cdma']:
        nb = a.newlabel('L_cnb'); nx = a.newlabel('L_cnx')
        a(f's_cbranch_vccnz {nb};nf\n{nx}:;nf')
        a.cold.append(lambda: a(f'{nb}:\ns_nop 7\ns_cmp_eq_u32 s{S_SAFE}, 0\ns_cbranch_scc1 {redo}\ns_branch {nx}'))
    for x in tail: a(x)
    lastl = a.newlabel('L_cbl')
    a(f's_cmp_ge_u32 s{S_STEP}, 63\ns_cbranch_scc1 {lastl}')
    def coldl():
        a.label(lastl)
        for x in store_vx(S_XOFF, V['vx']): a(x)
        a('s_branch L_exit')
    a.cold.append(coldl)
    stamp(a, stamps, 2)
    A = tw
    a(f's_add_u32 s{S_T0}, s{S_POFF}, 8192\ns_mov_b32 s{S_YD}, s{S_XOFF}')
    if stamps and cfg['sdrain']: a('s_waitcnt vmcnt(0)')
    stamp(a, stamps, 3)
    if cfg['psl'] is None:
        jn = a.newlabel('L_jn')
        a(f's_cmp_lg_u32 s{S_WAVE}, 0\ns_cbranch_scc1 {jn}')
        wait_hint(a, V['ha'], S_POFF, HT, delay=cfg['pdelay'], inner=cfg['hinner'], primed=True)
        a(f'{jn}:\ns_barrier')
    else:
        stamp_flush(a, stamps, 11, mf+24)
        if cfg['psl'] - (cfg['fl'] if stamps else 0) > 0: a(f"s_sleep {cfg['psl'] - (cfg['fl'] if stamps else 0)}")
        if cfg['pdelay']: a(f"s_nop {cfg['pdelay']-1}")
        if cfg['pbar']: a('s_barrier')
    stamp(a, stamps, 6)
    l = a.newlabel('L_pp'); d = a.newlabel('L_ppd'); retry = a.newlabel('L_ppr'); t = 9
    R = tw + 8
    B3 = [vr(uf, 8), vr(uf+8, 8), vr(V['itm'], 8)], [vr(uf+16, 8), vr(uf+24, 8), vr(V['itm']+8, 8)]
    mh = f"""s_mov_b64 exec, 15
        buffer_store_dword v{V['zero']}, v{V['hw']}, {WSRD}, s{S_MOFF} offen {pf}
        s_mov_b64 exec, -1"""
    def issue(p):
        a(f"""
        buffer_load_dwordx4 v[{p}:{p+3}], v{V['pr']}, {WSRD}, s{S_POFF} offen sc1
        buffer_load_dwordx4 v[{p+4}:{p+7}], v{V['pr']}, {WSRD}, s{S_POFF} offen offset:1024 sc1
        buffer_load_dwordx2 v[{p+8}:{p+9}], v{V['pmr']}, {WSRD}, s{S_T0} offen sc1
        """)
    def zero():
        for k in range(4): a(f'v_mov_b64 v[{A+2*k}:{A+2*k+1}], 0')
    def attempt(p, behind, hint_here):
        ex = behind
        a(f's_add_u32 s{S_SPIN}, s{S_SPIN}, 1')
        for k in range(3):
            a(f's_waitcnt vmcnt({2-k+ex})')
            S32 = lambda acc, B: f'v_smfmac_f32_16x16x32_bf16 v[{acc}:{acc+3}], v[{p+8}:{p+9}], {B}, v{idx}'
            a(SM(A, p+4*k, B3[0][k], idx) if k < 2 else S32(A, vr(V['vx'], 4)))
            a(f'v_max_u32 v{t}, v{p}, v{p+2}' if k == 0 else f'v_max3_u32 v{t}, v{t}, v{p+4*k}, v{p+4*k+(2 if k < 2 else 1)}')
            a(SM(A+4, p+4*k, B3[1][k], idx) if k < 2 else S32(A+4, vr(V['vx']+4, 4)))
            if hint_here and k == cfg['mhk']:
                if cfg['mhint'] == 3:
                    a(f"""v_cmp_eq_u32 vcc, -1, v{t}
                    s_cmp_eq_u64 vcc, 0
                    s_cselect_b64 exec, 15, 0
                    buffer_store_dword v{V['zero']}, v{V['hw']}, {WSRD}, s{S_MOFF} offen {pf}
                    s_mov_b64 exec, -1""")
                else: a(mh)
                ex += 1
        a(f'v_cmp_eq_u32 vcc, -1, v{t}')
    a(f's_mov_b32 s{S_SPIN}, 0')
    issue(mf)
    zero()
    housekeeping_acc()
    if cfg['p2']:
        gap = cfg['p2'] - 16
        while gap > 0:
            a(f's_nop {min(gap, 16) - 1}'); gap -= 16
        issue(mf+12)
    if cfg['mhint'] == 0:
        for _ in range(cfg['mhnop']): a('s_nop 3')
        a(mh)
    attempt(mf, (3 if cfg['p2'] else 0) + (cfg['mhint'] == 0), cfg['mhint'] >= 2)
    a(f's_cbranch_vccnz {retry};nf\n{d}:;nf')
    def coldp():
        a(f'{retry}:\ns_nop 7')
        if cfg['p2']:
            a.label(l)
            issue(mf)
            zero()
            attempt(mf+12, 3, cfg['mhint'] == 3)
            a(f's_cbranch_vccz {d}')
            issue(mf+12)
            zero()
            attempt(mf, 3, cfg['mhint'] == 3)
        else:
            a.label(l)
            issue(mf)
            zero()
            attempt(mf, 0, cfg['mhint'] == 3)
        a(f"""
        s_cbranch_vccz {d}
        s_cmp_lt_u32 s{S_SPIN}, s{S_LIM}
        s_cbranch_scc1 {l}
        s_mov_b32 s{S_LIM}, 1
        s_branch {d}
        """)
    a.cold.append(coldp)
    stamp(a, stamps, 4)
    if cfg['mhint'] == 1: a(mh)
    if stamps: a(f's_mov_b32 s{40+2*7}, s{S_SPIN}')
    if cfg.get('wgd'): a(f's_add_u32 s83, s83, s{S_SPIN}')
    if cfg['flags']: a(f"v_readfirstlane_b32 s{S_CV}, v{V['cu']}")
    hiw = a.newlabel('L_cbh'); nh = nh0; ny = a.newlabel('L_cny')
    def chores():
        if cfg['flags']:
            slow2 = a.newlabel('L_us'); back2 = a.newlabel('L_ub')
            a(f's_cmp_lt_u32 s{S_CV}, 28\ns_cbranch_scc1 {slow2}\n{back2}:')
            def coldu():
                a.label(slow2)
                wait_cnt(a, S_CU, 28, 174)
                a(f's_branch {back2}')
            a.cold.append(coldu)
        step_advance(a, 458752)
        a(pre)
        housekeeping(a, False)
    def hi_tail():
        w2 = a.newlabel('L_cw2')
        ld = lambda r: f"buffer_load_dword v{r}, v{V['hm']}, {WSRD}, s{S_T1} offen sc1"
        a(f"""
{hiw}:
        s_add_u32 s{S_T1}, s{S_MOFF}, 8192
        s_cmp_eq_u32 s{S_WAVE}, 2
        s_cbranch_scc1 {w2}
        {ld(HT[0])}
        s_waitcnt lgkmcnt(0)
        {ld(HT[1])}
        s_barrier
        {ld(HT[2])}
        """)
        stamp(a, stamps, 5)
        chores()
        wait_hint(a, V['hm'], S_MOFF, HT, delay=cfg['cdelay'], inner=cfg['hinner'], primed=True)
        a(f's_branch {nh}\n{w2}:\ns_waitcnt lgkmcnt(0)\ns_barrier')
        if cfg['cq']: a(f"s_sleep {cfg['cq']}")
        stamp(a, stamps, 5)
        chores()
        a(f's_branch {nh}')
    a.cold.append(hi_tail)
    a(f"""
    v_pk_add_f32 v[{R}:{R+1}], v[{A}:{A+1}], v[{A+2}:{A+3}]
    v_pk_add_f32 v[{R+2}:{R+3}], v[{A+4}:{A+5}], v[{A+6}:{A+7}]
    ds_write_b128 v{V['rw']}, v[{R}:{R+3}] offset:{LDS_RED}
    s_cmp_ge_u32 s{S_WAVE}, 2
    s_cbranch_scc1 {hiw}
    s_waitcnt lgkmcnt(0)
    s_barrier
    ds_read_b64 v[{R}:{R+1}], v{V['rr']} offset:{LDS_RED}
    ds_read_b64 v[{R+2}:{R+3}], v{V['rr']} offset:{LDS_RED+1024}
    ds_read_b64 v[{R+4}:{R+5}], v{V['rr']} offset:{LDS_RED+2048}
    ds_read_b64 v[{R+6}:{R+7}], v{V['rr']} offset:{LDS_RED+3072}
    s_waitcnt lgkmcnt(2)
    v_pk_add_f32 v[{R}:{R+1}], v[{R}:{R+1}], v[{R+2}:{R+3}]
    s_waitcnt lgkmcnt(0)
    v_pk_add_f32 v[{R+4}:{R+5}], v[{R+4}:{R+5}], v[{R+6}:{R+7}]
    v_pk_add_f32 v[{R}:{R+1}], v[{R}:{R+1}], v[{R+4}:{R+5}]
    v_cvt_pk_bf16_f32 v9, v{R}, v{R+1}
    buffer_store_dword v9, v{V['mw']}, {WSRD}, s{S_MOFF} offen {pf}
    """)
    stamp(a, stamps, 5)
    a(f"""
    s_cmp_lt_u32 s{S_STEP}, 62
    s_cbranch_scc1 {ny}
    s_add_u32 s{S_T0}, s{S_MOFF}, {L.MB_Y - L.MB_M}
    buffer_store_dword v9, v{V['mw']}, {WSRD}, s{S_T0} offen sc1
{ny}:
    """)
    chores()
    a(f's_branch {nh}')
    while a.cold: a.flush_cold()

def helper_cu(a, cfg):
    V = dict(l8=0, pa=1, idx=2, mf=12); LN = 112
    NP = cfg['npf']; D = cfg['pfd']; PER = cfg['pfper']
    a(f'v_mov_b32 v{LN}, v1')
    team_register(a)
    common_addrs(a, V, LN)
    a(f"""
    v_lshlrev_b32 v4, 7, v{LN}
    v_mov_b32 v3, v4
    v_mov_b32 v5, 0
    v_mov_b32 v6, 14
    s_sub_u32 s{S_ROLE}, s{S_ROLE}, 30
    s_lshl_b32 s{S_EOFF}, s{S_ROLE}, 2
    s_add_u32 s{S_EOFF}, s{S_EOFF}, s{S_WAVE}
    s_mov_b32 s{S_STEP}, 0
    s_mov_b32 s{S_MOFF}, {L.MB_M + 8192}
    s_mov_b32 s{S_CV}, {L.DUMMY + 0x200000}
    s_mul_i32 s{S_GOFF}, s{S_EOFF}, 7168
    s_add_u32 s{S_GOFF}, s{S_GOFF}, {L.XN}
    s_mov_b32 s{S_POFF}, 28672
    s_cmp_lt_u32 s{S_EOFF}, 4
    s_cbranch_scc1 H_t
    s_sub_u32 s{S_GOFF}, s{S_EOFF}, 4
    s_mul_i32 s{S_GOFF}, s{S_GOFF}, 6144
    s_add_u32 s{S_GOFF}, s{S_GOFF}, {L.MB_P}
    s_mov_b32 s{S_POFF}, 16384
    s_cmp_lt_u32 s{S_EOFF}, 6
    s_cbranch_scc1 H_t
    s_mov_b32 s{S_GOFF}, {L.MB_M + 8192}
    s_mov_b32 s{S_POFF}, 8192
    s_cmp_lt_u32 s{S_EOFF}, {7 if cfg['tlb'] else 8}
    s_cbranch_scc1 H_t
    s_mov_b32 s{S_GOFF}, {L.U + cfg['tlb']*458752}
    s_mov_b32 s{S_POFF}, 458752
    v_mul_u32_u24 v3, 7168, v{LN}
H_t:
    """)
    def mtouch():
        a(f'buffer_load_dword v7, v3, {WSRD}, s{S_GOFF} offen sc1\ns_add_u32 s{S_GOFF}, s{S_GOFF}, s{S_POFF}')
    if cfg['fused']: wait_ln(a, LN, 100)
    team_mode(a, V['mf'], V['mf']+1)
    a(f's_mov_b32 s{S_LIM}, {SPIN_MAX*4}')
    a(f"""
    s_getpc_b64 s[70:71]
H_pc:
    s_lshl_b32 s{S_T0}, s{S_EOFF}, 12
    v_lshrrev_b32 v10, 1, v4
    s_add_u32 s70, s70, s{S_T0}
    s_addc_u32 s71, s71, 0
    s_add_u32 s70, s70, L_nothelp-H_pc
    s_addc_u32 s71, s71, 0
    s_mov_b32 s72, s{S_GOFF}
    s_mov_b32 s{S_SPIN}, 0
    s_mov_b32 s73, {L.MB_P}
H_warm:
    s_mov_b32 s{S_GOFF}, s72
    global_load_dword v8, v10, s[70:71] sc1
    """)
    for _ in range(D+1): mtouch()
    a(f"""
    buffer_load_dword v9, v5, {WSRD}, s73 offen sc1
    s_add_u32 s{S_SPIN}, s{S_SPIN}, 1
    s_waitcnt vmcnt(0)
    v_cmp_eq_u32 vcc, -1, v9
    s_cbranch_vccz H_warmed
    s_sleep 8
    s_cmp_lt_u32 s{S_SPIN}, s{S_LIM}
    s_cbranch_scc1 H_warm
H_warmed:
    """)
    mul = {2: (128, 8), 3: (86, 8)}[PER]
    for k in range(NP):
        a(f"""
        s_add_u32 s{S_T0}, s{S_EOFF}, {8*k}
        s_min_u32 s{S_T0}, s{S_T0}, {14*PER-1}
        s_mul_i32 s{S_T1}, s{S_T0}, {mul[0]}
        s_lshr_b32 s{S_T1}, s{S_T1}, {mul[1]}
        s_mul_i32 s{S_T1}, s{S_T1}, {4-PER}
        s_add_u32 s{S_T0}, s{S_T0}, s{S_T1}
        s_lshl_b32 s{60+k}, s{S_T0}, 13
        s_add_u32 s{60+k}, s{60+k}, {L.U}
        """)
    def utouch():
        for k in range(NP):
            a(f'buffer_load_dword v{32+k}, v4, {WSRD}, s{60+k} offen sc1\ns_add_u32 s{60+k}, s{60+k}, 458752')
    a(f's_mov_b32 s{S_CU}, {L.CNT_U}')
    for _ in range(D if NP else 0):
        if cfg['flags']: wait_cnt(a, S_CU, 28, 30)
        utouch()
        a(f's_add_u32 s{S_CU}, s{S_CU}, 128')
    t = V['mf']; pa = V['pa']
    sk = a.newlabel('H_sk'); sk2 = a.newlabel('H_sk'); ok = a.newlabel('H_ok')
    a(f"""
H_top:
    s_mov_b32 s{S_SPIN}, 0
H_poll:
    buffer_load_dwordx4 v[{t}:{t+3}], v{pa}, {WSRD}, s{S_MOFF} offen sc1
    buffer_load_dwordx4 v[{t+4}:{t+7}], v{pa}, {WSRD}, s{S_MOFF} offen offset:768 sc1
    buffer_load_dword v30, v5, {WSRD}, s{S_CU} offen sc1
    s_add_u32 s{S_SPIN}, s{S_SPIN}, 1
    s_waitcnt vmcnt(0)
    v_max3_u32 v{t+8}, v{t}, v{t+1}, v{t+2}
    v_max3_u32 v{t+8}, v{t+8}, v{t+3}, v{t+4}
    v_max3_u32 v{t+8}, v{t+8}, v{t+5}, v{t+6}
    v_max_u32 v{t+8}, v{t+8}, v{t+7}
    v_readfirstlane_b32 s{S_T0}, v30
    v_cmp_eq_u32 vcc, -1, v{t+8}
    s_cbranch_vccz {ok}
    s_sleep {cfg['hsleep']}
    s_cmp_lt_u32 s{S_SPIN}, s{S_LIM}
    s_cbranch_scc1 H_poll
    s_mov_b32 s{S_LIM}, 1
{ok}:
    s_cmp_lg_u32 s{S_ROLE}, 0
    s_cbranch_scc1 {sk}
    s_add_u32 s{S_T1}, s{S_MOFF}, {L.MB_Y - L.MB_M}
    buffer_store_dwordx4 v[{t}:{t+3}], v{pa}, {WSRD}, s{S_T1} offen sc1
    buffer_store_dwordx4 v[{t+4}:{t+7}], v{pa}, {WSRD}, s{S_T1} offen offset:768 sc1
{sk}:
    s_cmp_ge_u32 s{S_STEP}, {63 - D}
    s_cbranch_scc1 {sk2}
    """)
    mtouch()
    if NP:
        sk3 = a.newlabel('H_sk'); sk4 = a.newlabel('H_sk')
        if cfg['flags']: a(f's_cmp_lt_u32 s{S_T0}, 28\ns_cbranch_scc1 {sk3}')
        utouch()
        a(f's_branch {sk4}\n{sk3}:')
        for k in range(NP): a(f's_add_u32 s{60+k}, s{60+k}, 458752')
        a(f'{sk4}:\ns_add_u32 s{S_CU}, s{S_CU}, 128')
    a(f"""
{sk2}:
    s_add_u32 s{S_STEP}, s{S_STEP}, 1
    s_add_u32 s{S_MOFF}, s{S_MOFF}, 8192
    s_cmp_lt_u32 s{S_STEP}, 62
    s_cbranch_scc1 H_top
    s_branch L_exit
    """)

DEFAULT_CFG = dict(ba=[35, 35, 34, 34], bak=3, bb=[53, 53, 0, 0], xflags='', ssleep=[2, 2, 2, 0], csleep=0, psleep=0, touch=1,
                   nou=0, nox=0, cflush=1, flags=0, ustep=3, hsleep=2, mdelay=14, pdelay=0, phint=9, lead=[4, 1], pnop=[0, 8], b5nop=2, npf=0, pfper=2, hdepth=4, hpre=10, psl=3, fl=1, mhk=0, px=9, quiet=7, cq=1, al=None, prio=[0, 0, 0, 0], wfl='', fused=0, cpk=0, tlb=0, xin=0, xstep=3, xs=2, xw=[(0, 9), (9, 18), (18, 28), (0, 0)], pbar=1, scap=None, ccap=None, m2=0, mdma=1, m2d=0, msamp=0, cdma=1, m2w=10, p2=32, cutrig=1, hinner=2, uearly=4, mhint=1, mhnop=0, sdrain=0, pfd=3, mpre=6, chint=1, cdelay=20)

def team_body(a, stamps=False, cfg=None):
    cfg = dict(DEFAULT_CFG, **(cfg or {}))
    a(f's_cmp_lt_u32 s{S_ROLE}, 30\ns_cbranch_scc1 L_nothelp')
    helper_cu(a, cfg)
    a.label('L_nothelp')
    a(f's_cmp_ge_u32 s{S_ROLE}, 16\ns_cbranch_scc1 L_comb')
    score_setup(a, stamps, cfg)
    for fast in (1, 0):
        a(f's_cmp_lg_u32 s{S_FAST}, {fast}\ns_cbranch_scc1 L_sc_next{fast}')
        for w in range(4):
            if w < 3:
                a(f's_cmp_lg_u32 s{S_WAVE}, {w}\ns_cbranch_scc1 L_sc{fast}_n{w}')
            score_wave(a, w, '' if fast else 'sc1', stamps, cfg)
            if w < 3: a.label(f'L_sc{fast}_n{w}')
        a.label(f'L_sc_next{fast}')
    a('s_branch L_exit')
    a.label('L_comb')
    comb_setup(a, stamps, cfg)
    for fast in (1, 0):
        a(f's_cmp_lg_u32 s{S_FAST}, {fast}\ns_cbranch_scc1 L_cb_next{fast}')
        comb_wave(a, '' if fast else 'sc1', stamps, cfg)
        a.label(f'L_cb_next{fast}')
    a('s_branch L_exit')
```

```python
from build import *
import team, prep, gemm, attn, ffn
HEADER = open('sequential_preLN__memory_aug_recurrent_mem_tr__dense_activation_relu__prompt.s.ref').read().split('; Override launch')[0]
def relabel(fn, tag):
    def g(a):
        fn(a)
        import re
        for i, (k, x) in enumerate(a.items):
            if k == 'l' and x.startswith(('L_exit', 'L_role')): a.items[i] = ('l', x + tag)
            elif k == 'i' and ('L_exit' in x.text or 'L_role' in x.text):
                x.text = re.sub(r'(L_exit|L_role\w+)', lambda m: m.group(1) + tag, x.text)
    return g
EV = '''s_cmp_ge_u32 s92, 30
s_cbranch_scc1 L_exit2
            v_mov_b32 v10, s86
            v_mov_b32 v11, s85
            v_mov_b32 v12, s84
            v_mov_b32 v13, s83
            buffer_atomic_add v10, v0, s[12:15], 0 offen offset:180
            buffer_atomic_add v11, v0, s[12:15], 0 offen offset:184
            buffer_atomic_add v12, v0, s[12:15], 0 offen offset:188
            buffer_atomic_add v13, v0, s[12:15], 0 offen offset:192
'''
PAD = """v_readfirstlane_b32 s90, v{r}
s_mov_b32 s91, 0
L_pad:
s_memrealtime s[94:95]
s_add_u32 s91, s91, 1
s_waitcnt lgkmcnt(0)
s_sub_u32 s94, s94, s90
s_cmp_ge_u32 s94, {t}
s_cbranch_scc1 L_exit2
s_cmp_lt_u32 s91, 100000
s_cbranch_scc1 L_pad"""
def v2(tcfg=None, stamps=False, acfg=None):
    tcfg = dict(tcfg or {}); al8 = tcfg.pop('al8', None)
    t = v2raw(tcfg, stamps, acfg)
    if al8 is not None:
        import align8
        t, st = align8.align(t, al8)
    return t
def v2raw(tcfg=None, stamps=False, acfg=None):
    tcfg = dict(tcfg or {}); ng = tcfg.pop('ng', 1); pcfg = tcfg.pop('pcfg', {}); fused = tcfg.pop('one', 0); tcfg_ev = tcfg.pop('ev', 0); scat = tcfg.pop('scatter', 0); pad = tcfg.pop('pad', 0); mcode = tcfg.pop('mcode', 1); guess = tcfg.pop('guess', 0); gcfg = tcfg.pop('gcfg', {}); fz = dict(fused=1, wfl='sc1') if fused else {}; fcfg = tcfg.pop('fcfg', {}); acfg = dict(acfg or {}, **tcfg.pop('acfg', {}))
    def km(a):
        if stamps: a('s_memrealtime s[90:91]')
        if fused:
            prep.prep_kernel(a, t0=bool(stamps), fused=True, **pcfg)
            team.prologue_fused(a)
        else:
            team.prologue(a, stamps, scatter=scat, code=mcode, guess=guess)
        R = team.S_ROLE
        if stamps: a(f's_mov_b32 s92, s{R}\ns_memrealtime s[94:95]\ns_mov_b64 s[96:97], 0\ns_mov_b64 s[88:89], 0\ns_mov_b64 s[84:85], 0\ns_mov_b32 s86, 0\ns_mov_b32 s83, 0')
        a(f"""
        s_cmp_ge_u32 s{R}, 32
        s_cbranch_scc1 M_worker
        """)
        team.team_body(a, stamps is True, dict(dict(xflags='sc1', flags=1, wgd=bool(stamps), **fz), **(tcfg or {})))
        a(f"""
M_worker:
        """)
        if fused: team.wait_ln(a, 1, 10)
        a(f"""
        s_lshr_b32 s26, s{R}, 5
        s_sub_u32 s26, s26, 1
        s_mov_b32 s78, s26
        s_and_b32 s27, s{R}, 31
        s_cmp_ge_u32 s27, 30
        s_cbranch_scc1 M_attn
        s_cmp_ge_u32 s27, 16
        s_cbranch_scc1 M_ffn
        s_cmp_ge_u32 s27, {8*ng}
        s_cbranch_scc1 M_attn
        s_mul_i32 s{R}, s26, {8*ng}
        s_add_u32 s{R}, s{R}, s27
        """)
        gemm.gemm_role(a, dict(dict(xflags='sc1', ng=ng, **fz), **gcfg))
        if stamps: a('s_memrealtime s[96:97]')
        a.label('M_attn')
        attn.attn_role(a, dict(dict(xflags='sc1', flags=1, asleep=16, ticket=1, diag=bool(stamps), **fz), **(acfg or {})))
        a(f"""
M_ffn:
        s_mov_b32 s{ffn.F_Q}, s26
        s_sub_u32 s{ffn.F_J}, s27, 16
        """)
        ffn.ffn_role(a, dict(dict(xflags='sc1', flags=1, diag=bool(stamps)), **fcfg), 7)
        a.label('L_exit')
        if stamps:
            a(f"""
            s_memrealtime s[98:99]
            s_lshl_b32 s93, s92, 5
            s_add_u32 s93, s93, {L.STAMP + 0x80000}
            s_mov_b64 exec, 1
            s_waitcnt lgkmcnt(0)
            v_mov_b32 v0, 0
            v_mov_b32 v4, s90
            v_mov_b32 v5, s94
            v_mov_b32 v6, s96
            v_mov_b32 v7, s98
            buffer_store_dwordx4 v[4:7], v0, s[8:11], s93 offen
            s_getreg_b32 s87, hwreg(HW_REG_HW_ID)
            v_mov_b32 v9, s87
            buffer_store_dword v9, v0, s[8:11], s93 offen offset:16
            buffer_atomic_umax v7, v0, s[12:15], 0 offen offset:172
            {EV if tcfg_ev else ''}
            s_cmp_lg_u32 s92, 0
            s_cbranch_scc1 L_exit2
            s_mov_b32 s93, {L.STAMP + 0xf0000}
            buffer_load_dword v8, v0, s[8:11], s93 offen sc1
            v_mov_b32 v5, s88
            buffer_store_dword v4, v0, s[12:15], 0 offen offset:160
            buffer_store_dword v5, v0, s[12:15], 0 offen offset:164
            buffer_store_dword v7, v0, s[12:15], 0 offen offset:168
            s_waitcnt vmcnt(0)
            buffer_store_dword v8, v0, s[12:15], 0 offen offset:176
            {PAD.format(t=pad[0], r=pad[1]) if pad else ''}
L_exit2:
            """)
        a.label('L_end')
        a('s_endpgm')
    if fused: return assemble([('main_kernel', km, 256, 256, 163840)], HEADER)
    return assemble([('prep_kernel', lambda a: prep.prep_kernel(a, t0=bool(stamps), **pcfg), 256, 256, 163840), ('main_kernel', km, 256, 256, 163840)], HEADER)
if __name__ == '__main__':
    args = [eval(x) for x in sys.argv[3:]]
    open(sys.argv[2], 'w').write(globals()[sys.argv[1]](*args))
```

```python
from asmlib import *
import layout as L

SENT = -1
S_WS = 8
S_DBG = 12
S_ROLE = 16
S_WAVE = 17
S_XCC = 18
S_STEP = 19
S_FAST = 20
S_MOFF = 21; S_POFF = 22; S_EOFF = 23; S_GOFF = 24; S_XOFF = 25; S_T0 = 26; S_T1 = 27; S_SPIN = 28; S_LIM = 29
S_EXEC = 30
S_STMP = 32
S_TM = 34
SPIN_MAX = 20000
NTEAM = 32

LDS_M = 0
LDS_T = 7168
LDS_FL = 14336
LDS_VD = 18432
LDS_X = 20480
LDS_NAN = 11264
LDS_RED = 7168
LDS_BW = 16384
LDS_ROLE = 160*1024 - 16

def prologue(a, stamps, pool_off=0, scatter=False, code=1):
    if code:
        a('s_getpc_b64 s[40:41]\nM_pc:\nv_lshlrev_b32 v12, 7, v0\nglobal_load_dword v255, v12, s[40:41]')
        a('v_add_u32 v12, 32768, v12\nv_min_u32 v11, L_end-M_pc, v12\nglobal_load_dword v255, v11, s[40:41]')
    a(f'''
    s_cmp_ge_u32 s2, 256
    s_cbranch_scc1 L_end
    s_load_dwordx2 s[4:5], s[0:1], 96
    s_load_dwordx2 s[6:7], s[0:1], 88
    s_getreg_b32 s{S_XCC}, hwreg(HW_REG_XCC_ID, 0, 4)
    v_lshrrev_b32 v2, 6, v0
    v_and_b32 v1, 63, v0
    v_readfirstlane_b32 s{S_WAVE}, v2
    s_and_b32 s{S_XCC}, s{S_XCC}, 7
    s_waitcnt lgkmcnt(0)
    s_mov_b32 s{S_WS}, s4
    s_and_b32 s{S_WS+1}, s5, 0xffff
    s_mov_b32 s{S_WS+2}, {L.WS_BYTES}
    s_mov_b32 s{S_WS+3}, 0x20000
    s_mov_b32 s{S_DBG}, s6
    s_and_b32 s{S_DBG+1}, s7, 0xffff
    s_mov_b32 s{S_DBG+2}, 256
    s_mov_b32 s{S_DBG+3}, 0x20000
    v_mov_b32 v4, {LDS_ROLE}
    s_cmp_lg_u32 s{S_WAVE}, 0
    s_cbranch_scc1 L_role_wait
    s_mov_b64 exec, 1
    s_mov_b32 s{S_T0}, 0
L_role_try:
    {f's_lshr_b32 s{S_T1}, s2, 5' if scatter else f's_mov_b32 s{S_T1}, s{S_XCC}'}
    s_add_u32 s{S_T1}, s{S_T1}, s{S_T0}
    s_and_b32 s{S_T1}, s{S_T1}, 7
    s_lshl_b32 s{S_ROLE}, s{S_T1}, 7
    s_add_u32 s{S_ROLE}, s{S_ROLE}, {L.CNT_P + pool_off}
    v_mov_b32 v2, s{S_ROLE}
    v_mov_b32 v3, 1
    buffer_atomic_add v3, v2, s[{S_WS}:{S_WS+3}], 0 offen sc0
    s_waitcnt vmcnt(0)
    v_readfirstlane_b32 s{S_ROLE}, v3
    s_cmp_lt_u32 s{S_ROLE}, 32
    s_cbranch_scc1 L_role_got
    s_add_u32 s{S_T0}, s{S_T0}, 1
    s_cmp_lt_u32 s{S_T0}, 8
    s_cbranch_scc1 L_role_try
    s_mov_b32 s{S_ROLE}, 31
    s_mov_b32 s{S_T1}, 0
L_role_got:
    s_lshl_b32 s{S_T1}, s{S_T1}, 5
    s_add_u32 s{S_ROLE}, s{S_ROLE}, s{S_T1}
    v_mov_b32 v2, s{S_ROLE}
    ds_write_b32 v4, v2
    s_mov_b64 exec, -1
    s_waitcnt lgkmcnt(0)
L_role_wait:
    s_barrier
    ds_read_b32 v2, v4
    s_waitcnt lgkmcnt(0)
    v_readfirstlane_b32 s{S_ROLE}, v2
    ''')

FSL = [8, 32]
def wait_flags(a, vaddr, need, t, n=1):
    l = a.newlabel('L_wf'); d = a.newlabel('L_wfd')
    regs = [t] + [t+4+2*k for k in range(n-1)]
    a(f"""
    s_mov_b32 s{S_SPIN}, 0
    s_mov_b32 s{S_EXEC}, {L.FL}
    s_add_u32 s{S_EXEC+1}, s80, {need}
{l}:
    """)
    for k, r in enumerate(regs):
        a(f'buffer_load_dwordx2 v[{r}:{r+1}], v{vaddr}, s[{S_WS}:{S_WS+3}], s{S_EXEC} offen offset:{k*512} sc1')
    a(f's_add_u32 s{S_SPIN}, s{S_SPIN}, 1\ns_waitcnt vmcnt(0)')
    for k, r in enumerate(regs):
        a(f"""
        v_subrev_u32 v{r}, s{S_EXEC+1}, v{r}
        v_xor_b32 v{r+1}, s81, v{r+1}
        v_lshl_or_b32 v{t+2}, v{r+1}, 3, v{r+1}
        v_or_b32 v{r}, v{r}, v{t+2}
        """)
        if k: a(f'v_max_u32 v{t}, v{t}, v{r}')
    a(f"""
    v_cmp_lt_u32 vcc, {7 - need}, v{t}
    s_cbranch_vccz {d}
    s_sleep {FSL[n > 1]}
    s_cmp_lt_u32 s{S_SPIN}, {SPIN_MAX*4}
    s_cbranch_scc1 {l}
{d}:
    """)

def prologue_fused(a):
    a(f"""
    s_getreg_b32 s{S_XCC}, hwreg(HW_REG_XCC_ID, 0, 4)
    s_mov_b32 s{S_WAVE}, s20
    s_and_b32 s{S_XCC}, s{S_XCC}, 7
    s_mov_b32 s{S_DBG}, s56
    s_mov_b32 s{S_DBG+1}, s57
    s_mov_b32 s{S_DBG+2}, 256
    s_mov_b32 s{S_DBG+3}, 0x20000
    v_mov_b32 v4, {LDS_ROLE}
    s_cmp_lg_u32 s{S_WAVE}, 0
    s_barrier
    s_cbranch_scc1 L_role_wait
    s_mov_b64 exec, 1
    s_mov_b32 s{S_T0}, 0
    s_mov_b32 s{S_T1}, s{S_XCC}
    v_mov_b32 v3, v250
    s_branch L_role_see
L_role_try:
    s_add_u32 s{S_T1}, s{S_XCC}, s{S_T0}
    s_and_b32 s{S_T1}, s{S_T1}, 7
    s_lshl_b32 s{S_ROLE}, s{S_T1}, 2
    v_mov_b32 v2, s{S_ROLE}
    v_mov_b32 v3, 1
    buffer_atomic_add v3, v2, s[{S_DBG}:{S_DBG+3}], 0 offen sc0
    s_waitcnt vmcnt(0)
L_role_see:
    v_readfirstlane_b32 s{S_ROLE}, v3
    s_cmp_lt_u32 s{S_ROLE}, 32
    s_cbranch_scc1 L_role_got
    s_add_u32 s{S_T0}, s{S_T0}, 1
    s_cmp_lt_u32 s{S_T0}, 8
    s_cbranch_scc1 L_role_try
    s_mov_b32 s{S_ROLE}, 31
    s_mov_b32 s{S_T1}, 0
L_role_got:
    s_lshl_b32 s{S_T1}, s{S_T1}, 5
    s_add_u32 s{S_ROLE}, s{S_ROLE}, s{S_T1}
    v_mov_b32 v2, s{S_ROLE}
    ds_write_b32 v4, v2
    s_mov_b64 exec, -1
    s_waitcnt lgkmcnt(0)
L_role_wait:
    s_barrier
    ds_read_b32 v2, v4
    s_waitcnt lgkmcnt(0)
    v_readfirstlane_b32 s{S_ROLE}, v2
    """)

def wait_ln(a, lane, t):
    a(f's_lshl_b32 s{S_T0}, s{S_WAVE}, 11\nv_lshlrev_b32 v{t+3}, 3, v{lane}\nv_add_u32 v{t+3}, s{S_T0}, v{t+3}')
    wait_flags(a, t+3, 1, t, n=4)
    a('s_barrier')

STAGE1 = (0, 4, 8, 11)
def load_tiles(a, tiles, vaddr, sbase, stage, flags, bud, cap=None):
    for off, dsts in tiles:
        cur = None
        for k in range(14):
            if stage is not None and (k in STAGE1) != (stage == 1): continue
            if cur != k // 4:
                cur = k // 4
                a(f's_add_u32 s{S_T0}, s{sbase}, {off + cur*4096}')
            a(f'buffer_load_dwordx4 {dsts[k]}, v{vaddr}, s[{S_WS}:{S_WS+3}], s{S_T0} offen offset:{(k%4)*1024} {flags}')
            bud[0] += 1
            if cap is not None:
                if bud[0] > cap: a(f's_waitcnt vmcnt({cap})')
            elif bud[0] >= 56:
                a('s_waitcnt vmcnt(28)'); bud[0] = 28

def team_register(a):
    l = a.newlabel('L_reg')
    a(f'''
    s_cmp_lg_u32 s{S_WAVE}, 0
    s_cbranch_scc1 {l}
    s_cmp_eq_u32 s{S_XCC}, 0
    s_cselect_b32 s{S_T0}, 1, 0x10001
    s_mov_b64 exec, 1
    v_mov_b32 v2, 64
    v_mov_b32 v3, s{S_T0}
    buffer_atomic_add v3, v2, s[{S_DBG}:{S_DBG+3}], 0 offen
    s_mov_b64 exec, -1
{l}:
    ''')

def team_mode_load(vt0, vt1):
    return f'v_mov_b32 v{vt0}, 64\nbuffer_load_dword v{vt1}, v{vt0}, s[{S_DBG}:{S_DBG+3}], 0 offen sc1'

def team_mode(a, vt0, vt1, primed=False):
    l = a.newlabel('L_mode'); d = a.newlabel('L_moded'); p = a.newlabel('L_modep')
    a(f'''
    s_mov_b32 s{S_SPIN}, 0
    {f's_branch {p}' if primed else ''}
{l}:
    {team_mode_load(vt0, vt1)}
{p}:
    s_waitcnt vmcnt(0)
    v_readfirstlane_b32 s{S_T0}, v{vt1}
    s_and_b32 s{S_T1}, s{S_T0}, 0xffff
    s_cmp_ge_u32 s{S_T1}, {NTEAM}
    s_cbranch_scc1 {d}
    s_sleep 2
    s_add_u32 s{S_SPIN}, s{S_SPIN}, 1
    s_cmp_lt_u32 s{S_SPIN}, {SPIN_MAX}
    s_cbranch_scc1 {l}
    s_mov_b32 s{S_T0}, 0x10000
{d}:
    s_lshr_b32 s{S_T0}, s{S_T0}, 16
    s_cmp_eq_u32 s{S_T0}, 0
    s_cselect_b32 s{S_FAST}, 1, 0
    s_mov_b32 s{S_LIM}, {SPIN_MAX}
    ''')

def stamp(a, stamps, idx, vt=None):
    if not stamps: return
    a(f's_memtime s[{40+2*idx}:{41+2*idx}]')
    if idx == 2: a('s_memrealtime s[60:61]')

def stamp_flush(a, stamps, n, vt):
    if not stamps: return
    a('s_waitcnt lgkmcnt(0)')
    for k in range(n):
        a(f'v_writelane_b32 v{vt}, s{40+2*k}, {k}')
    a(f"""
    v_lshrrev_b32 v{vt+1}, 1, v0
    s_mov_b64 exec, {(1 << n) - 1}
    buffer_store_dword v{vt}, v{vt+1}, s[{S_WS}:{S_WS+3}], s{S_STMP} offen
    s_mov_b64 exec, -1
    """)

def wreg(wb, vbase):
    return ar(8*wb, 8) if wb < 32 else vr(vbase + 8*(wb-32), 8)
def wreg_half(wb, vbase, half):
    return ar(8*wb + 4*half, 4) if wb < 32 else vr(vbase + 8*(wb-32) + 4*half, 4)

def xlane4(a, op, x, t):
    a(f'''
    v_mov_b32 v{t}, v{x}
    v_permlane16_swap_b32 v{x}, v{t}
    {op} v{x}, v{x}, v{t}
    v_mov_b32 v{t}, v{x}
    v_permlane32_swap_b32 v{x}, v{t}
    {op} v{x}, v{x}, v{t}
    ''')

QP = 'quad_perm:[2,3,0,1] row_mask:0xf bank_mask:0xf'

def read_mf(a, V):
    for b in range(7):
        a(f"ds_read_b64_tr_b16 v[{V['mf']+4*b}:{V['mf']+4*b+1}], v{V['l8']} offset:{LDS_M+b*1024}")
        a(f"ds_read_b64_tr_b16 v[{V['mf']+4*b+2}:{V['mf']+4*b+3}], v{V['l8']} offset:{LDS_M+b*1024+512}")

def SM(acc, A, B, idx):
    return f'v_smfmac_f32_16x16x64_bf16 v[{acc}:{acc+3}], v[{A}:{A+3}], {B}, v{idx}'


class Q:
    def __init__(self, name, cap):
        self.name = name; self.n = 0; self.tags = {}; self.done = 0; self.cap = cap
    def issue(self, tag=None):
        self.n += 1
        if tag is not None: self.tags[tag] = self.n
    def wait(self, tag):
        k = self.tags[tag]
        if k <= self.done: return ''
        self.done = k
        return 's_waitcnt %s(%d)' % (self.name, min(self.n - k, self.cap))
    def drain(self):
        self.done = self.n
        return 's_waitcnt %s(0)' % self.name

WSRD = f's[{S_WS}:{S_WS+3}]'

def poll_m(a, V, sleep=0):
    t = V['mf']; pa = V['pa']
    l = a.newlabel('L_pm'); d = a.newlabel('L_pmd')
    a(f"""
    s_mov_b32 s{S_SPIN}, 0
{l}:
    buffer_load_dwordx4 v[{t}:{t+3}], v{pa}, {WSRD}, s{S_MOFF} offen sc1
    buffer_load_dwordx4 v[{t+4}:{t+7}], v{pa}, {WSRD}, s{S_MOFF} offen offset:768 sc1
    s_add_u32 s{S_SPIN}, s{S_SPIN}, 1
    s_waitcnt vmcnt(1)
    ds_write_b128 v{pa}, v[{t}:{t+3}]
    v_max3_u32 v{t+8}, v{t}, v{t+1}, v{t+2}
    s_waitcnt vmcnt(0)
    ds_write_b128 v{pa}, v[{t+4}:{t+7}] offset:768
    v_max3_u32 v{t+8}, v{t+8}, v{t+3}, v{t+4}
    v_max3_u32 v{t+8}, v{t+8}, v{t+5}, v{t+6}
    v_max_u32 v{t+8}, v{t+8}, v{t+7}
    v_cmp_eq_u32 vcc, -1, v{t+8}
    s_cbranch_vccz {d}
    {'s_sleep %d' % sleep if sleep else ''}
    s_cmp_lt_u32 s{S_SPIN}, s{S_LIM}
    s_cbranch_scc1 {l}
    s_mov_b32 s{S_LIM}, 1
{d}:
    s_waitcnt lgkmcnt(0)
    s_barrier
    """)

def poll_m2(a, V, gap, x):
    pa = V['pa']; sets = (V['acc']+8, V['acc']+16)
    l = a.newlabel('L_pm'); d = a.newlabel('L_pmd')
    def issue(t):
        a(f"""
        buffer_load_dwordx4 v[{t}:{t+3}], v{pa}, {WSRD}, s{S_MOFF} offen sc1
        buffer_load_dwordx4 v[{t+4}:{t+7}], v{pa}, {WSRD}, s{S_MOFF} offen offset:768 sc1
        """)
    def check(t):
        a(f"""
        s_add_u32 s{S_SPIN}, s{S_SPIN}, 1
        s_waitcnt vmcnt(3)
        ds_write_b128 v{pa}, v[{t}:{t+3}]
        v_max3_u32 v{x}, v{t}, v{t+1}, v{t+2}
        s_waitcnt vmcnt(2)
        ds_write_b128 v{pa}, v[{t+4}:{t+7}] offset:768
        v_max3_u32 v{x}, v{x}, v{t+3}, v{t+4}
        v_max3_u32 v{x}, v{x}, v{t+5}, v{t+6}
        v_max_u32 v{x}, v{x}, v{t+7}
        v_cmp_eq_u32 vcc, -1, v{x}
        """)
    a(f's_mov_b32 s{S_SPIN}, 0')
    issue(sets[0])
    while gap > 0:
        a(f's_nop {min(gap, 16) - 1}'); gap -= 16
    issue(sets[1]); check(sets[0])
    a(f's_cbranch_vccnz {l}\n{d}:\ns_waitcnt lgkmcnt(0)\ns_barrier')
    def cold():
        a.label(l)
        issue(sets[0]); check(sets[1])
        a(f's_cbranch_vccz {d}')
        issue(sets[1]); check(sets[0])
        a(f"""
        s_cbranch_vccz {d}
        s_cmp_lt_u32 s{S_SPIN}, s{S_LIM}
        s_cbranch_scc1 {l}
        s_mov_b32 s{S_LIM}, 1
        s_branch {d}
        """)
    a.cold.append(cold)

def wait_hint(a, vaddr, soff, regs, imm=0, delay=0, gap=12, inner=8, fill=None, primed=False):
    n = len(regs)
    l = a.newlabel('L_h'); d = a.newlabel('L_hd')
    ld = lambda r: f'buffer_load_dword v{r}, v{vaddr}, {WSRD}, s{soff} offen offset:{imm} sc1'
    a(f's_mov_b32 s{S_SPIN}, 0')
    fill = list(fill or [])
    per = -(-len(fill) // (n-1))
    for k in range(0 if primed else n-1):
        a(ld(regs[k]))
        for x in fill[k*per:(k+1)*per]: a(x)
        if per < gap: a(f's_nop {gap - per}')
    a.label(l)
    for k in range(n):
        a(f"""
        {ld(regs[(k+n-1) % n])}
        s_waitcnt vmcnt({n-1})
        v_cmp_eq_u32 vcc, -1, v{regs[k]}
        s_cbranch_vccz {d}
        s_nop {inner}
        """)
    a(f"""
    s_add_u32 s{S_SPIN}, s{S_SPIN}, 1
    s_cmp_lt_u32 s{S_SPIN}, s{S_LIM}
    s_cbranch_scc1 {l}
{d}:
    """)
    while delay > 0:
        a(f's_nop {min(delay, 16) - 1}'); delay -= 16

def wait_cnt(a, off_sgpr, target, vt, sleep=4, primed=False):
    l = a.newlabel('L_wc'); d = a.newlabel('L_wcd'); p = a.newlabel('L_wcp')
    a(f"""
    s_mov_b32 s{S_SPIN}, 0
    v_mov_b32 v{vt}, 0
    {f's_branch {p}' if primed else ''}
{l}:
    buffer_load_dword v{vt+1}, v{vt}, {WSRD}, s{off_sgpr} offen sc1
{p}:
    s_add_u32 s{S_SPIN}, s{S_SPIN}, 1
    s_waitcnt vmcnt(0)
    v_readfirstlane_b32 s{S_T0}, v{vt+1}
    s_cmp_ge_u32 s{S_T0}, {target}
    s_cbranch_scc1 {d}
    s_sleep {sleep}
    s_cmp_lt_u32 s{S_SPIN}, s{S_LIM}
    s_cbranch_scc1 {l}
    s_mov_b32 s{S_LIM}, 1
{d}:
    """)

def img_addr(a, dst, t, lane):
    a(f"""
    v_bfe_u32 v{dst}, v{lane}, 3, 1
    v_lshlrev_b32 v{dst}, 9, v{dst}
    v_bfe_u32 v{t}, v{lane}, 2, 1
    v_lshl_add_u32 v{dst}, v{t}, 6, v{dst}
    v_and_b32 v{t}, 1, v{lane}
    v_lshl_add_u32 v{dst}, v{t}, 5, v{dst}
    v_lshrrev_b32 v{t}, 4, v{lane}
    v_lshl_add_u32 v{dst}, v{t}, 3, v{dst}
    v_bfe_u32 v{t}, v{lane}, 1, 1
    v_lshl_add_u32 v{dst}, v{t}, 2, v{dst}
    """)

def common_addrs(a, V, LN):
    a(f"""
    v_lshlrev_b32 v{V['l8']}, 3, v{LN}
    s_mul_i32 s{S_T0}, s{S_WAVE}, {112*16}
    v_lshlrev_b32 v{V['pa']}, 4, v{LN}
    v_add_u32 v{V['pa']}, s{S_T0}, v{V['pa']}
    v_and_b32 v{LN+1}, 2, v{LN}
    v_cmp_ne_u32 vcc, 0, v{LN+1}
    v_mov_b32 v{LN+1}, 0x4444
    v_mov_b32 v{LN+2}, 0xeeee
    v_cndmask_b32 v{V['idx']}, v{LN+1}, v{LN+2}, vcc
    """)

def load_1k_run(a, dsts, vaddr, sbase, flags='', budget=None):
    for i, d in enumerate(dsts):
        if i and i % 4 == 0:
            a(f's_add_u32 s{sbase}, s{sbase}, 4096')
        a(f'buffer_load_dwordx4 {d}, v{vaddr}, {WSRD}, s{sbase} offen offset:{(i%4)*1024} {flags}')
        if budget is not None:
            budget[0] += 1
            if budget[0] >= 56:
                a('s_waitcnt vmcnt(28)'); budget[0] = 28

class Gaps:
    def __init__(self, n):
        self.ds = [[] for _ in range(n)]; self.va = [[] for _ in range(n)]; self.pre = [[] for _ in range(n)]
        self.n = n
    def put(self, kind, g, text, excl=False):
        while g < self.n - 1:
            if excl:
                if not self.ds[g] and not self.va[g]: break
            else:
                lst = self.ds[g] if kind == 'ds' else self.va[g]
                other = self.va[g] if kind == 'ds' else self.ds[g]
                if not lst and not (other and other[-1][1]): break
            g += 1
        (self.ds if kind == 'ds' else self.va)[g].append((text, excl))
        return g
    def force(self, kind, g, text):
        (self.ds if kind == 'ds' else self.va)[min(g, self.n-1)].append((text, False))

def emit_stream(a, mf, gp, lq, pre=None):
    for i, (m, tags) in enumerate(mf):
        for tg in tags:
            w = lq.wait(tg)
            if w: a(w)
        a(m)
        for lst in (gp.ds[i], gp.va[i]):
            for x, _ in lst:
                t = x(lq) if callable(x) else x
                if t: a(t)

def dsop(text, tag=None):
    def f(lq):
        lq.issue(tag); return text
    return f
def dswait(tag, then=''):
    def f(lq):
        return lq.wait(tag) + '\n' + then
    return f

SV = dict(l8=0, pa=1, idx=2, k1=3, mf=12, acc=40, w=64)
def tile_of(w, u):
    if u < 5: return (u, w)
    order = {(0, 5): (5, 0), (1, 5): (5, 1), (2, 5): (5, 2), (2, 6): (5, 3), (0, 6): (6, 0), (1, 6): (6, 1), (0, 7): (6, 2), (1, 7): (6, 3)}
    return order[(w, u)]
NUNIT = [8, 8, 7, 5]
F = dict(l16=4, px=5, pm=6, mk0=7, mk1=8, mk2=9, wz=10, xf=88, tf=200, sa=228, t=240)

def score_setup(a, stamps, cfg):
    V = SV; LN = 44
    a(f'v_mov_b32 v{LN}, v1')
    team_register(a)
    common_addrs(a, V, LN)
    img_addr(a, V['k1'], LN+1, LN)
    g, cc, par, ib, t = LN+1, LN+2, LN+3, LN+4, LN+5
    a(f"""
    v_lshlrev_b32 v{F['l16']}, 4, v{LN}
    v_lshrrev_b32 v{g}, 4, v{LN}
    v_bfe_u32 v{cc}, v{LN}, 2, 2
    v_bfe_u32 v{par}, v{LN}, 1, 1
    v_and_b32 v{ib}, 1, v{LN}
    v_and_b32 v{t}, 15, v{LN}
    v_lshlrev_b32 v{F['px']}, 4, v{t}
    v_lshrrev_b32 v{t}, 1, v{g}
    v_lshl_add_u32 v{F['px']}, v{t}, 8, v{F['px']}
    v_and_b32 v{t}, 1, v{g}
    v_lshl_add_u32 v{F['px']}, v{t}, 3, v{F['px']}
    s_and_b32 s{S_T0}, s{S_ROLE}, 1
    s_lshl_b32 s{S_T0}, s{S_T0}, 4
    s_lshr_b32 s{S_T1}, s{S_ROLE}, 2
    s_lshl_b32 s{S_T1}, s{S_T1}, 9
    s_add_u32 s{S_T0}, s{S_T0}, s{S_T1}
    s_and_b32 s{S_T1}, s{S_ROLE}, 2
    s_lshl_b32 s{S_T1}, s{S_T1}, 1
    s_add_u32 s{S_T0}, s{S_T0}, s{S_T1}
    s_add_u32 s{S_T0}, s{S_T0}, 8192
    v_and_b32 v{F['pm']}, 0xffffffef, v{V['l8']}
    v_add_u32 v{F['pm']}, s{S_T0}, v{F['pm']}
    s_lshl_b32 s{S_T0}, s{S_ROLE}, 9
    v_add_u32 v{F['px']}, s{S_T0}, v{F['px']}
    v_lshlrev_b32 v{t}, 4, v{ib}
    v_mov_b32 v{F['mk2']}, 0xffff
    v_lshlrev_b32 v{F['mk2']}, v{t}, v{F['mk2']}
    v_cmp_eq_u32 vcc, v{cc}, v{g}
    v_mov_b32 v{t}, 0
    v_cndmask_b32 v{F['mk2']}, v{t}, v{F['mk2']}, vcc
    v_cmp_eq_u32 vcc, 0, v{par}
    v_mov_b32 v{t+1}, 0xff800000
    v_cndmask_b32 v{F['mk0']}, v{t}, v{F['mk2']}, vcc
    v_cndmask_b32 v{F['mk1']}, v{F['mk2']}, v{t}, vcc
    v_cndmask_b32 v{F['wz']}, v{t+1}, v{t}, vcc
    s_mul_i32 s{S_T1}, s{S_ROLE}, {28*14336}
    s_add_u32 s{S_T1}, s{S_T1}, {L.WT}
    """)
    done = a.newlabel('L_sw')
    fz = cfg['fused']
    if fz:
        a(f"v_min_u32 v{LN+8}, 27, v{LN}\nv_lshlrev_b32 v{LN+8}, 3, v{LN+8}\ns_mul_i32 s{S_T0}, s{S_ROLE}, {14*32}\nv_add_u32 v{LN+8}, s{S_T0}, v{LN+8}")
        wait_flags(a, LN+8, 1, LN+10)
    for w in range(4):
        nx = a.newlabel('L_swn')
        if w < 3: a(f's_cmp_lg_u32 s{S_WAVE}, {w}\ns_cbranch_scc1 {nx}')
        tiles = []
        for u in range(NUNIT[w]):
            b, ga = tile_of(w, u)
            tiles.append(((4*b+ga)*14336, [wreg_half(u*7 + k//2, V['w'], k % 2) for k in range(14)]))
        if fz:
            load_tiles(a, tiles, F['l16'], S_T1, 1, cfg['wfl'], [0])
            wait_flags(a, LN+8, 7, LN+10)
            load_tiles(a, tiles, F['l16'], S_T1, 2, cfg['wfl'], [0])
        else:
            load_tiles(a, tiles, F['l16'], S_T1, None, cfg['wfl'], [0], cfg['scap'])
        if w < 3: a(f's_branch {done}\n{nx}:')
    a(f"""
{done}:
    {team_mode_load(V['mf'], V['mf']+1) if not fz else ''}
    s_mov_b32 s{S_STEP}, 0
    s_mov_b32 s{S_MOFF}, {L.MB_M}
    s_mov_b32 s{S_POFF}, {L.MB_P}
    s_mov_b32 s{S_GOFF}, {L.XN}
    s_lshl_b32 s{S_STMP}, s{S_ROLE}, 2
    s_add_u32 s{S_STMP}, s{S_STMP}, s{S_WAVE}
    s_lshl_b32 s{S_STMP}, s{S_STMP}, 12
    s_add_u32 s{S_STMP}, s{S_STMP}, {L.STAMP}
    """)
    if fz:
        wait_ln(a, LN, 12)
    else:
        nf = a.newlabel('L_nx0')
        a(f's_cmp_lg_u32 s{S_WAVE}, 3\ns_cbranch_scc1 {nf}\ns_waitcnt vmcnt(30)\ns_mov_b32 s{S_T0}, s{S_GOFF}')
        load_1k_run(a, [vr(F['xf'] + 4*k, 4) for k in range(28)], F['l16'], S_T0, cfg['wfl'])
        a.label(nf)
    team_mode(a, V['mf'], V['mf']+1, primed=not fz)

def step_advance(a, gstride, xstride=114688):
    a(f"""
    s_add_u32 s{S_STEP}, s{S_STEP}, 1
    s_add_u32 s{S_MOFF}, s{S_MOFF}, 8192
    s_add_u32 s{S_POFF}, s{S_POFF}, 16384
    s_add_u32 s{S_GOFF}, s{S_GOFF}, {gstride}
    s_add_u32 s{S_XOFF}, s{S_XOFF}, {xstride}
    s_add_u32 s{S_STMP}, s{S_STMP}, 64
    """)

def rowred(a, op, x):
    for m in ('row_ror:8', 'row_ror:4', 'row_ror:2', 'row_ror:1'):
        for r in (x, x+1):
            a(f'{op}_dpp v{r}, v{r}, v{r} {m} row_mask:0xf bank_mask:0xf')

def score_wave(a, w, pf, stamps, cfg):
    V = SV; idx = V['idx']; mf = V['mf']
    top = a.newlabel(f'L_sc{w}_top'); first = a.newlabel(f'L_sc{w}_first')
    nunit = NUNIT[w]
    accof = lambda u: V['acc'] + 4*(u % 6)
    ok = {0: (0, 9, 2), 1: (2,), 2: (0, 9, 1, 2), 3: (4,) if cfg['fin1'] else (7, 8, 4)}[w]
    ST = (lambda k: f's_memtime s[{40+2*k}:{41+2*k}]' if k in ok else '') if stamps else (lambda k: '')
    def stamp(a, stamps, k):
        a(ST(k))
    xf, tf, sa, T = F['xf'], F['tf'], F['sa'], F['t']
    FA, FV = 8, 9
    HA = 11
    HT = ([5, 6, 7, 10] if w < 3 else [T+4, T+5, T+6, T+7])[:cfg['hdepth']]
    def load_x():
        a(f's_mov_b32 s{S_T0}, s{S_GOFF}')
        load_1k_run(a, [vr(xf + 4*k, 4) for k in range(28)], F['l16'], S_T0, cfg['wfl'])
    XW = cfg['xw']
    def dma_x(a=a):
        lo, hi = XW[w]
        a(f"""
        s_and_b32 s{S_T0}, s{S_STEP}, 1
        s_xor_b32 s{S_T0}, s{S_T0}, 1
        s_mul_i32 s{S_T0}, s{S_T0}, 28672
        s_add_u32 s{S_T0}, s{S_T0}, {LDS_X + lo*1024}
        s_add_u32 s{S_T1}, s{S_GOFF}, {28672 + lo*1024 - w*1792}
        """)
        for k in range(hi - lo):
            if k % 4 == 0:
                if k: a(f's_add_u32 s{S_T0}, s{S_T0}, 4096\ns_add_u32 s{S_T1}, s{S_T1}, 4096')
                a(f's_mov_b32 m0, s{S_T0}')
            a(f"buffer_load_dwordx4 v{V['pa']}, {WSRD}, s{S_T1} offen offset:{(k%4)*1024} {cfg['wfl']} lds")
    def read_x():
        a(f"""
        s_and_b32 s{S_T0}, s{S_STEP}, 1
        s_mul_i32 s{S_T0}, s{S_T0}, 28672
        v_add_u32 v{T}, s{S_T0}, v{F['l16']}
        """)
        for k in range(28): a(f'ds_read_b128 v[{xf+4*k}:{xf+4*k+3}], v{T} offset:{LDS_X + k*1024}')
    def zero_acc():
        for u in range(2 if cfg['m2'] else min(6, nunit)):
            a(f'v_mov_b64 v[{accof(u)}:{accof(u)+1}], 0\nv_mov_b64 v[{accof(u)+2}:{accof(u)+3}], 0')
        if w == 3:
            for k in range(4): a(f'v_mov_b64 v[{sa+2*k}:{sa+2*k+1}], 0')
            a(f"v_mov_b32 v{sa+8}, v{F['wz']}\nv_mov_b32 v{sa+9}, v{F['wz']}\nv_mov_b64 v[{sa+10}:{sa+11}], 0")
    a(f"v_lshrrev_b32 v{HA}, 1, v{V['l8']}\nv_min_u32 v{HA}, {55*4}, v{HA}\ns_and_b32 s{S_T0}, s{S_ROLE}, 3\ns_lshl_b32 s{S_T0}, s{S_T0}, 8\ns_add_u32 s{S_T0}, s{S_T0}, 7168\nv_add_u32 v{HA}, s{S_T0}, v{HA}")
    if w == 3:
        if cfg['fused']: load_x()
        a(f'v_and_b32 v{T+12}, {15*8}, v0\nv_lshlrev_b32 v{T+12}, 3, v{T+12}\nv_add_u32 v{T+12}, 6144, v{T+12}')
        if stamps: a('s_mov_b32 s40, 0\ns_mov_b32 s42, 0\ns_mov_b32 s44, 0')
        a(f's_mov_b32 s{S_EOFF}, 0\ns_lshl_b32 s{S_T0}, s{S_ROLE}, 2\ns_add_u32 s{S_T0}, s{S_T0}, 12288\nv_lshlrev_b32 v{T+14}, 4, v0\nv_add_u32 v{T+14}, s{S_T0}, v{T+14}\nv_mov_b32 v{T+15}, 0')
    else:
        a(f"v_add_u32 v{FA}, {LDS_FL + 4*w}, v{F['l16']}\nv_mov_b32 v{FV}, 0")
        for k in range(5): a(f'ds_write_b32 v{FA}, v{FV} offset:{k*1024}')
        a(f'v_and_b32 v4, {31*8}, v0\nv_lshlrev_b32 v4, 3, v4\nv_add_u32 v4, {w*2048}, v4')
    if w < 3 and not cfg['xin']: dma_x()
    if cfg['prio'][w]: a(f"s_setprio {cfg['prio'][w]}")
    zero_acc()
    if cfg.get('wgd'): a('s_memrealtime s[88:89]')
    a(f's_branch {first}')
    if cfg['al'] is not None:
        a.raw('    .p2align 6')
        for _ in range(cfg['al'][w]): a.raw('    s_nop 0')
    a.label(top)
    zero_acc()
    stamp(a, stamps, 0)
    if cfg['msamp'] == 2: a(f'v_mov_b32 v{mf if w < 3 else T+13}, 0')
    if cfg['mdma'] == 2: a(f's_mov_b32 m0, {LDS_M}\ns_add_u32 s{S_T0}, s{S_MOFF}, 4096')
    elif cfg['mdma']: a(f's_mov_b32 m0, {LDS_M + w*2048}\ns_add_u32 s{S_T0}, s{S_MOFF}, {w*2048 - w*1792}')
    if not cfg['cutrig'] or w == 0: wait_hint(a, HA, S_MOFF, HT, delay=cfg['mdelay'], inner=cfg['hinner'])
    if cfg['cutrig'] and cfg['mdma'] != 2: a('s_barrier')
    if cfg['mdma']:
        got = a.newlabel('L_got')
        a(ST(9))
        nk = 2 if w < 3 else 1
        SA_ = (4 if w < 3 else T+12)
        def rnd(r):
            if cfg['msamp'] == 2:
                a(f"s_mov_b64 exec, {0x55555555 if w < 3 else 0x5555}\nbuffer_load_dword v{r}, v{SA_}, {WSRD}, s{S_MOFF} offen sc1\ns_mov_b64 exec, -1")
            elif cfg['msamp']: a(f"buffer_load_dword v{r}, v{SA_}, {WSRD}, s{S_MOFF} offen sc1")
            for k in range(nk): a(f"buffer_load_dwordx4 v{V['pa']}, {WSRD}, s{S_T0} offen offset:{k*1024} sc1 lds")
        r0, r1 = (mf, HT[1]) if w < 3 else (T+13, T+15)
        two = cfg['m2d']
        rnd(r0)
        a(f'v_add_u32 v{FV}, 1, v{FV}' if w < 3 else f's_add_u32 s{S_EOFF}, s{S_EOFF}, 1')
        a(f's_mov_b32 s{S_SAFE}, 0\ns_mov_b32 s{S_SPIN}, 1')
        if two:
            gap = two
            while gap > 0:
                a(f's_nop {min(gap, 16) - 1}'); gap -= 16
            rnd(r1)
        ex = (nk+1) if two else 0
        bad = a.newlabel('L_mbad'); okl = a.newlabel('L_mok')
        a(f"""
        {f's_waitcnt vmcnt({nk + ex})' if cfg['msamp'] else ''}
        {f'v_cmp_eq_u32 vcc, -1, v{r0}' if cfg['msamp'] else ''}
        {f's_cbranch_vccnz {bad}' if cfg['msamp'] else ''}
        s_waitcnt vmcnt({ex}) lgkmcnt(0)
{okl}:
        s_barrier
{got}:
        """)
        def coldb():
            lp = a.newlabel('L_mlp')
            a.label(bad)
            if two:
                a(f's_mov_b32 s{S_SPIN}, 2\ns_waitcnt vmcnt(0) lgkmcnt(0)\nv_cmp_eq_u32 vcc, -1, v{r1}\ns_cbranch_vccz {okl}')
            a.label(lp)
            rnd(r0)
            a(f"""
            s_add_u32 s{S_SPIN}, s{S_SPIN}, 1
            s_waitcnt vmcnt(0) lgkmcnt(0)
            v_cmp_eq_u32 vcc, -1, v{r0}
            s_cbranch_vccz {okl}
            s_cmp_lt_u32 s{S_SPIN}, s{S_LIM}
            s_cbranch_scc1 {lp}
            s_mov_b32 s{S_LIM}, 1
            s_branch {okl}
            """)
        a.cold.append(coldb)
        def coldf():
            a.label(first)
            a(f'v_add_u32 v{FV}, 1, v{FV}' if w < 3 else f's_add_u32 s{S_EOFF}, s{S_EOFF}, 1')
            a(f's_mov_b32 s{S_SAFE}, 1')
            poll_m(a, V)
            a(f's_branch {got}')
        a.cold.append(coldf)
    else:
        a.label(first)
        a(f'v_add_u32 v{FV}, 1, v{FV}' if w < 3 else f's_add_u32 s{S_EOFF}, s{S_EOFF}, 1')
        a(ST(9))
        if cfg['m2']: poll_m2(a, V, cfg['m2'], mf)
        else: poll_m(a, V)
    stamp(a, stamps, 1)
    if stamps and w < 3: a(f's_mov_b32 s{40+2*7}, s{S_SPIN}')
    lq = Q('lgkmcnt', 15)
    mrd = [dsop(f"ds_read_b64_tr_b16 v[{mf+4*b+2*hf}:{mf+4*b+2*hf+1}], v{V['l8']} offset:{LDS_M+b*1024+hf*512}", ('mf', b))
           for b in range(7) for hf in range(2)]
    for x in mrd[:cfg['mpre']]: a(x(lq))
    order = [(u, b) for b in range(7) for u in range(2)] + [(u, b) for u in range(2, nunit) for b in range(7)]
    ms = [(SM(accof(u), mf+4*b, wreg(u*7 + b, V['w']), idx), [('mf', b)] if u == 0 else []) for u, b in order]
    last = {u: i for i, (u, b) in enumerate(order)}
    def smfma(b):
        t4 = tf + 4*b
        return [(f"v_mfma_f32_16x16x32_bf16 v[{sa+8}:{sa+11}], v[{t4}:{t4+3}], v[{mf+4*b}:{mf+4*b+3}], " + f'v[{sa+8}:{sa+11}]', [('tf', b)]),
                (SM(sa, t4, vr(xf + 8*b, 8), idx), []),
                (SM(sa+4, t4, vr(xf + 56 + 8*b, 8), idx), [])]
    def tread(b, hf):
        return dsop(f"ds_read_b64_tr_b16 v[{tf+4*b+2*hf}:{tf+4*b+2*hf+1}], v{V['l8']} offset:{LDS_T+b*1024+hf*512}", ('tf', b))
    phases = [(0, 1, 2), (3, 4)]
    starts = []
    if w == 3:
        for ph in phases:
            starts.append(len(ms))
            for b in ph: ms += smfma(b)
    n = len(ms)
    gp = Gaps(n)
    for k, x in enumerate(mrd[cfg['mpre']:]): gp.put('ds', k, x)
    flag_after = {2, 4} | ({5} if w < 2 else {6})
    def post(u):
        A = accof(u); b, ga = tile_of(w, u)
        va = [f'v_add_f32 v{A}, v{A}, v{A+2}', f'v_add_f32 v{A+1}, v{A+1}, v{A+3}', f'v_cvt_pk_bf16_f32 v{A}, v{A}, v{A+1}']
        ds = [dsop(f"ds_write_b32 v{V['k1']}, v{A} offset:{LDS_T+b*1024+ga*128}", ('k', u))]
        if w < 3 and u in flag_after:
            ds.append(dsop(f'ds_write_b32 v{FA}, v{FV} offset:{sorted(flag_after).index(u)*1024}'))
        return va, ds
    g = 0
    done_at = {}
    for u in range(nunit - (0 if w == 3 else 1)):
        va, ds = post(u)
        g = max(g, last[u] + 3 - (len(va) - 3))
        for x in va: g = gp.put('va', g, x) + 1
        for x in ds: g = gp.put('ds', g, x, excl=True) + 1
        done_at[u] = g
    def zero_in_gaps(u, g):
        A = accof(u)
        for k in range(2):
            gg = g
            while gg < 7*u - 2 and (gp.va[gg] or (gp.ds[gg] and gp.ds[gg][-1][1])): gg += 1
            if gg >= 7*u - 2: gg = max(g, 7*u - 4 + k)
            gp.force('va', gg, f'v_mov_b64 v[{A+2*k}:{A+2*k+1}], 0')
    if cfg['m2']:
        gp.force('ds', cfg['m2w'], 's_waitcnt vmcnt(0)')
        for u in range(2, min(6, nunit)): zero_in_gaps(u, cfg['m2w'])
    for u in range(6, nunit): zero_in_gaps(u, done_at[u-6] + 1)
    if w == 3:
        for pi, ph in enumerate(phases):
            flagrd = f"ds_read_b128 v[{T}:{T+3}], v{F['l16']} offset:{LDS_FL + pi*1024}"
            lead = cfg['lead'][pi]
            g = max(starts[pi] - lead, done_at[max(ph)] if max(ph) < 5 else 0)
            g = min(g, starts[pi]-1)
            if cfg['pnop'][pi]: gp.force('ds', g, f"s_nop {cfg['pnop'][pi]-1}")
            gp.force('ds', g, dsop(flagrd, ('fl', pi)))
            ops = [tread(b, hf) for b in ph for hf in range(2)]
            for k, x in enumerate(ops):
                gp.force('ds', min(g + (k+1)//2, starts[pi]-1), x)
            FM = T+11
            def chk(lq, pi=pi):
                return lq.wait(('fl', pi)) + (f'\nv_min3_u32 v{FM}, v{T}, v{T+1}, v{T+2}' if pi == 0 else
                                              f'\nv_min3_u32 v{T}, v{T}, v{T+1}, v{T+2}\nv_min_u32 v{FM}, v{FM}, v{T}')
            gp.force('va', starts[pi], chk)
    if cfg['xin'] and XW[w][1] > XW[w][0]:
        sub = Asm(); dma_x(sub)
        grp = []; cur = []
        for _, x in sub.items:
            cur.append(x.text)
            if x.text.startswith('buffer'): grp.append('\n'.join(cur)); cur = []
        g = cfg['xin']
        for x in grp: g = gp.put('ds', g, x) + cfg['xstep']
    if w == 0 and cfg['phint'] < 0:
        gp.force('ds', n - 1 + cfg['phint'], f"""s_mov_b64 exec, 15
            buffer_store_dword v{FV}, v4, {WSRD}, s{S_POFF} offen {pf}
            s_mov_b64 exec, -1""")
    emit_stream(a, ms, gp, lq)
    hint = f"""s_mov_b64 exec, 15
        buffer_store_dword v{T+15}, v{T+14}, {WSRD}, s{S_POFF} offen {pf}
        s_mov_b64 exec, -1"""
    if w < 3:
        va, ds = post(nunit-1)
        A_ = accof(nunit-1)
        va = [f'v_pk_add_f32 v[{A_}:{A_+1}], v[{A_}:{A_+1}], v[{A_+2}:{A_+3}]', va[-1]]
        for x in va: a(x)
        for x in ds: a(x(lq))
        a(lq.drain())
        a('s_barrier')
        stamp(a, stamps, 2)
        if cfg['mdma']:
            again = a.newlabel('L_again')
            a(f"""
            {'s_waitcnt vmcnt(0)' if cfg['xin'] else ''}
            s_barrier
            v_mov_b32 v{mf}, {LDS_VD}
            ds_read_b32 v{mf}, v{mf}
            s_waitcnt lgkmcnt(0)
            v_cmp_eq_u32 vcc, v{mf}, v{FV}
            s_cbranch_vccnz {again}
            """)
            def colda():
                a.label(again)
                zero_acc()
                a(f's_branch {first}')
            a.cold.append(colda)
        elif cfg['quiet']: a(f"s_sleep {cfg['quiet']}")
    else:
        s = T
        mx = T+6; z = T+8; EA = tf; B1 = tf+4; B2 = tf+8; D1 = tf+12; D2 = tf+16; rz = T+10
        a(f"""
        v_mov_b64 v[{B1+2}:{B1+3}], 0
        v_mov_b64 v[{B2}:{B2+1}], 0
        v_mov_b32 v{B2+3}, 0
        v_mov_b32 v{EA+3}, 0
        """)
        for _ in range(cfg['b5nop']): a('s_nop 3')
        q = Q('lgkmcnt', 15)
        a(f"ds_read_b128 v[{T}:{T+3}], v{F['l16']} offset:{LDS_FL + 2048}"); q.issue('fl')
        for hf in range(2): a(tread(5, hf)(q))
        stamp(a, stamps, 2)
        a('s_barrier')
        stamp(a, stamps, 3)
        PX = lambda k: a('s_memtime s[52:53]') if stamps and cfg['px'] == k else None
        PX(0)
        for hf in range(2): a(tread(6, hf)(q))
        PX(1)
        if cfg['phint'] == 0: a(hint)
        PX(2)
        fl5 = [f'v_min3_u32 v{T}, v{T}, v{T+1}, v{T+2}', f'v_min_u32 v{FM}, v{FM}, v{T}', f'v_subrev_u32 v{FM}, s{S_EOFF}, v{FM}']
        for b in (5, 6):
            for m, tags in smfma(b):
                for tg in tags: a(q.wait(tg))
                if b == 6 and tags: PX(4)
                a(m)
                if fl5: a(fl5.pop(0))
            if b == 5: PX(3)
        a(ST(7))
        if cfg['phint'] == 1: a(hint)
        e = sa
        redo = a.newlabel('L_smr'); slowmx = a.newlabel('L_sms'); go = a.newlabel('L_smg')
        a(f"""
        s_mov_b32 s{S_T1}, {120 << 23}
        s_mov_b32 s{S_SPIN}, 0
        v_add_f32_dpp v{s+4}, v{sa+10}, v{sa+8} {QP}
        v_add_f32_dpp v{s+5}, v{sa+11}, v{sa+9} {QP}
        v_pk_add_f32 v[{s}:{s+1}], v[{sa}:{sa+1}], v[{sa+2}:{sa+3}]
        v_exp_f32 v{e+8}, v{s+4}
        v_exp_f32 v{e+9}, v{s+5}
        v_pk_add_f32 v[{s+2}:{s+3}], v[{sa+4}:{sa+5}], v[{sa+6}:{sa+7}]
        v_exp_f32 v{e}, v{s}
        v_exp_f32 v{e+1}, v{s+1}
        v_exp_f32 v{e+2}, v{s+2}
        v_exp_f32 v{e+3}, v{s+3}
{redo}:;nf
        v_pk_add_f32 v[{z}:{z+1}], v[{e}:{e+1}], v[{e+8}:{e+9}]
        v_cvt_pk_bf16_f32 v{EA+2}, v{e+8}, v{e+9}
        v_pk_add_f32 v[{z}:{z+1}], v[{z}:{z+1}], v[{e+2}:{e+3}]
        """)
        if cfg['phint'] == 2: a(hint)
        fill = [f'v_cvt_pk_bf16_f32 v{EA+k}, v{e+2*k}, v{e+2*k+1}' for k in range(2)]
        for m in ('row_ror:8', 'row_ror:4', 'row_ror:2', 'row_ror:1'):
            if fill: a(fill.pop(0))
            for r in (z, z+1):
                a(f'v_add_f32_dpp v{r}, v{r}, v{r} {m} row_mask:0xf bank_mask:0xf')
        LO, HI = (127-60) << 23, (127+60) << 23
        a(ST(8))
        a(f"""
        v_rcp_f32 v{mx}, v{z}
        v_rcp_f32 v{mx+1}, v{z+1}
        v_subrev_u32 v{z}, {LO}, v{z}
        v_cvt_pk_bf16_f32 v{rz}, v{mx}, v{mx+1}
        v_and_b32 v{B1}, v{rz}, v{F['mk0']}
        v_and_b32 v{B1+1}, v{rz}, v{F['mk1']}
        v_and_b32 v{B2+2}, v{rz}, v{F['mk2']}
        v_subrev_u32 v{z+1}, {LO}, v{z+1}
        v_mfma_f32_16x16x32_bf16 v[{D1}:{D1+3}], v[{EA}:{EA+3}], v[{B1}:{B1+3}], 0
        v_mfma_f32_16x16x32_bf16 v[{D2}:{D2+3}], v[{EA}:{EA+3}], v[{B2}:{B2+3}], 0
        v_max3_u32 v{z}, v{z}, v{z+1}, v{FM}
        v_cmp_lt_u32 vcc, s{S_T1}, v{z}
        s_cmp_eq_u64 vcc, 0
        s_cselect_b64 exec, -1, 0
        v_cvt_pk_bf16_f32 v{D1}, v{D1}, v{D1+1}
        v_cvt_pk_bf16_f32 v{D1+1}, v{D1+2}, v{D1+3}
        buffer_store_dwordx2 v[{D1}:{D1+1}], v{F['px']}, {WSRD}, s{S_POFF} offen {pf}
        v_cvt_pk_bf16_f32 v{D2}, v{D2}, v{D2+1}
        buffer_store_dword v{D2}, v{F['pm']}, {WSRD}, s{S_POFF} offen {pf}
        s_mov_b64 exec, -1
        s_cbranch_scc0 {slowmx}
        """)
        if cfg['mdma']: a('s_barrier')
        def coldmx():
            a(f'{slowmx}:' + ('\ns_add_u32 s40, s40, 1' if stamps else ''))
            loc = a.newlabel('L_loc'); sf = a.newlabel('L_safe')
            a(f's_cmp_eq_u32 s{S_SPIN}, 0\ns_cbranch_scc1 {loc}')
            if cfg['mdma']:
                a(f"""
                s_cmp_lg_u32 s{S_SAFE}, 0
                s_cbranch_scc1 {sf}
                {'s_add_u32 s86, s86, 1' if cfg.get('wgd') else ''}
                v_mov_b32 v{T}, {LDS_VD}
                v_mov_b32 v{T+1}, s{S_EOFF}
                ds_write_b32 v{T}, v{T+1}
                s_waitcnt lgkmcnt(0)
                s_barrier
                """)
                zero_acc()
                a(f's_branch {first}')
            a(f'{sf}:\ns_mov_b32 s{S_T1}, -1\ns_branch {redo}\n{loc}:\ns_mov_b32 s{S_SPIN}, 1\nv_mov_b32 v{FM}, 0')
            if cfg.get('wgd'): a('s_add_u32 s85, s85, 1')
            for k in range(4): a(f'v_mov_b64 v[{sa+2*k}:{sa+2*k+1}], 0')
            a(f"v_mov_b32 v{sa+8}, v{F['wz']}\nv_mov_b32 v{sa+9}, v{F['wz']}\nv_mov_b64 v[{sa+10}:{sa+11}], 0")
            q2 = Q('lgkmcnt', 15)
            for b in range(7):
                for hf in range(2): a(tread(b, hf)(q2))
            a('s_waitcnt lgkmcnt(0)')
            for b in range(7):
                for m, tags in smfma(b): a(m)
            a(f"""
            v_mov_b64 v[{B1+2}:{B1+3}], 0
            v_mov_b64 v[{B2}:{B2+1}], 0
            v_mov_b32 v{B2+3}, 0
            v_mov_b32 v{EA+3}, 0
            v_add_f32_dpp v{s+4}, v{sa+10}, v{sa+8} {QP}
            v_add_f32_dpp v{s+5}, v{sa+11}, v{sa+9} {QP}
            v_pk_add_f32 v[{s}:{s+1}], v[{sa}:{sa+1}], v[{sa+2}:{sa+3}]
            v_pk_add_f32 v[{s+2}:{s+3}], v[{sa+4}:{sa+5}], v[{sa+6}:{sa+7}]
            v_max3_f32 v{mx}, v{s}, v{s+4}, v{s+2}
            v_max3_f32 v{mx+1}, v{s+1}, v{s+5}, v{s+3}
            """)
            rowred(a, 'v_max_f32', mx)
            for k in range(3): a(f'v_pk_add_f32 v[{s+2*k}:{s+2*k+1}], v[{s+2*k}:{s+2*k+1}], v[{mx}:{mx+1}] neg_lo:[0,1] neg_hi:[0,1]')
            for k in range(6): a(f'v_exp_f32 v{e+(k if k < 4 else k+4)}, v{s+k}')
            a(f's_nop 1\ns_branch {redo}')
        a.cold.append(coldmx)
        stamp(a, stamps, 4)
    if stamps: a('s_memtime s[50:51]\ns_memrealtime s[60:61]')
    stamp_flush(a, stamps, 11, mf)
    step_advance(a, 28672, 458752)
    a(f's_cmp_ge_u32 s{S_STEP}, 63\ns_cbranch_scc1 L_exit')
    if w == 3: read_x()
    elif not cfg['nox'] and not cfg['xin']:
        if cfg['xs']: a(f"s_sleep {cfg['xs']}")
        dma_x()
    if cfg['ssleep'][w]:
        a(f"s_sleep {cfg['ssleep'][w]}")
    a(f's_branch {top}')
    a.flush_cold()

S_YD = 33; S_SAFE = 36; S_CV = 37; S_CU = 38; S_MD = 39
CV = dict(ha=160, one=161, zero=162, cu=163, hw=164, hm=165, nw=172, nr=173, pmr=72, l8=0, pa=1, idx=2, l16=3, pr=4, mw=6, lw=7, rw=8, rr=5, mf=12, acc=40, itm=72, vx=88, uf=96, tw=128, w=176)

def comb_setup(a, stamps, cfg):
    V = CV; LN = 112
    a(f'v_mov_b32 v{LN}, v1')
    team_register(a)
    common_addrs(a, V, LN)
    img_addr(a, V['mw'], LN+1, LN)
    a(f"""
    s_sub_u32 s{S_ROLE}, s{S_ROLE}, 16
    s_lshl_b32 s{S_ROLE}, s{S_ROLE}, 1
    s_and_b32 s{S_T0}, s{S_WAVE}, 1
    s_add_u32 s{S_T1}, s{S_ROLE}, s{S_T0}
    s_lshr_b32 s{S_T0}, s{S_T1}, 2
    s_lshl_b32 s{S_T0}, s{S_T0}, 10
    s_and_b32 s{S_T1}, s{S_T1}, 3
    s_lshl_b32 s{S_T1}, s{S_T1}, 7
    s_add_u32 s{S_T0}, s{S_T0}, s{S_T1}
    s_add_u32 s{S_T0}, s{S_T0}, 8192
    v_add_u32 v{V['mw']}, s{S_T0}, v{V['mw']}
    v_lshlrev_b32 v{V['l16']}, 4, v{LN}
    s_mul_i32 s{S_T0}, s{S_WAVE}, 28672
    s_add_u32 s{S_T0}, s{S_T0}, {LDS_BW}
    v_add_u32 v{V['lw']}, s{S_T0}, v{V['l16']}
    s_lshl_b32 s{S_T0}, s{S_WAVE}, 10
    v_add_u32 v{V['rw']}, s{S_T0}, v{V['l16']}
    v_add_u32 v{V['pr']}, s{S_T0}, v{V['rw']}
    s_and_b32 s{S_T0}, s{S_WAVE}, 1
    s_lshl_b32 s{S_T0}, s{S_T0}, 3
    v_add_u32 v{V['rr']}, s{S_T0}, v{V['l16']}
    s_mul_i32 s{S_T1}, s{S_WAVE}, {4*28}
    s_add_u32 s{S_T1}, s{S_T1}, s{S_ROLE}
    s_add_u32 s{S_T1}, s{S_T1}, 448
    s_mul_i32 s{S_T1}, s{S_T1}, 14336
    s_add_u32 s{S_T1}, s{S_T1}, {L.WT}
    """)
    toff = lambda u: ((u >> 1)*28 + (u & 1))*14336
    fz = cfg['fused']
    tiles = [(toff(u), [wreg_half(u*7 + k//2, V['w'], k % 2) for k in range(14)]) for u in range(6)]
    ltiles = [(toff(u), [vr(12 + (u-6)*116 + 4*k, 4) if u == 6 else vr(120 + 4*k, 4) for k in range(14)]) for u in (6, 7)]
    if fz:
        a(f"""
        v_bfe_u32 v{LN+4}, v{LN}, 2, 2
        v_mul_u32_u24 v{LN+4}, {14*32}, v{LN+4}
        v_and_b32 v{LN+5}, 3, v{LN}
        v_lshl_add_u32 v{LN+4}, v{LN+5}, 3, v{LN+4}
        s_mul_i32 s{S_T0}, s{S_WAVE}, 56
        s_lshr_b32 s{S_SPIN}, s{S_ROLE}, 2
        s_add_u32 s{S_T0}, s{S_T0}, s{S_SPIN}
        s_add_u32 s{S_T0}, s{S_T0}, 7
        s_lshl_b32 s{S_T0}, s{S_T0}, 5
        v_add_u32 v{LN+4}, s{S_T0}, v{LN+4}
        """)
        wait_flags(a, LN+4, 1, 100)
        load_tiles(a, ltiles + tiles, V['l16'], S_T1, 1, cfg['wfl'], [0])
        wait_flags(a, LN+4, 7, 100)
        load_tiles(a, ltiles + tiles, V['l16'], S_T1, 2, cfg['wfl'], [0])
    else:
        load_tiles(a, ltiles + tiles, V['l16'], S_T1, None, cfg['wfl'], [0], cfg['ccap'])
    if not fz:
        a(team_mode_load(104, 105))
        a(f"v_mov_b32 v106, 0\ns_mov_b32 s{S_CU}, {L.CNT_U}\ns_mov_b32 s{S_CV}, {L.CNT_I}")
        a(f'buffer_load_dword v107, v106, {WSRD}, s{S_CU} offen sc1\nbuffer_load_dword v109, v106, {WSRD}, s{S_CV} offen sc1')
    a('s_waitcnt vmcnt(28)')
    for u in (6, 7):
        for k in range(14):
            a(f"ds_write_b128 v{V['lw']}, {ltiles[u-6][1][k]} offset:{(u-6)*14336+k*1024}")
    a('s_waitcnt lgkmcnt(0)')
    if fz: wait_ln(a, LN, 100)
    a(f"""
    s_mov_b32 s{S_STEP}, 0
    s_mov_b32 s{S_MOFF}, {L.MB_M}
    s_mov_b32 s{S_POFF}, {L.MB_P}
    s_lshl_b32 s{S_GOFF}, s{S_ROLE}, 14
    s_lshl_b32 s{S_T0}, s{S_WAVE}, 12
    s_add_u32 s{S_GOFF}, s{S_GOFF}, s{S_T0}
    s_add_u32 s{S_GOFF}, s{S_GOFF}, {L.U}
    s_lshl_b32 s{S_XOFF}, s{S_ROLE}, 12
    s_add_u32 s{S_XOFF}, s{S_XOFF}, {L.VM}
    s_lshr_b32 s{S_STMP}, s{S_ROLE}, 1
    s_add_u32 s{S_STMP}, s{S_STMP}, 16
    s_lshl_b32 s{S_STMP}, s{S_STMP}, 2
    s_add_u32 s{S_STMP}, s{S_STMP}, s{S_WAVE}
    s_lshl_b32 s{S_STMP}, s{S_STMP}, 12
    s_add_u32 s{S_STMP}, s{S_STMP}, {L.STAMP}
    s_waitcnt vmcnt(0)
    """)
    a(f"""
    v_mov_b32 v{V['one']}, 1
    v_mov_b32 v{V['zero']}, 0
    v_mov_b32 v{V['cu']}, 0
    v_and_b32 v{V['ha']}, {120 if cfg['cutrig'] else 24}, v{V['l8']}
    v_lshrrev_b32 v{V['ha']}, 1, v{V['ha']}
    s_lshl_b32 s{S_T0}, s{S_WAVE}, 4
    s_mul_i32 s{S_T0}, s{S_T0}, {0 if cfg['cutrig'] else 1}
    s_and_b32 s{S_T1}, s{S_ROLE}, 6
    s_lshl_b32 s{S_T1}, s{S_T1}, 6
    s_add_u32 s{S_T0}, s{S_T0}, s{S_T1}
    s_add_u32 s{S_T0}, s{S_T0}, 12288
    v_add_u32 v{V['ha']}, s{S_T0}, v{V['ha']}
    s_lshl_b32 s{S_T0}, s{S_ROLE}, 1
    s_add_u32 s{S_T0}, s{S_T0}, s{S_WAVE}
    s_lshl_b32 s{S_T0}, s{S_T0}, 2
    s_add_u32 s{S_T0}, s{S_T0}, {8192 + 7168}
    v_lshlrev_b32 v{V['hw']}, 5, v{V['l8']}
    v_add_u32 v{V['hw']}, s{S_T0}, v{V['hw']}
    s_add_u32 s{S_YD}, s{S_XOFF}, 0x8000000
    v_lshrrev_b32 v{V['hm']}, 1, v{V['l8']}
    v_min_u32 v{V['hm']}, {55*4}, v{V['hm']}
    v_add_u32 v{V['hm']}, 7168, v{V['hm']}
    s_mov_b32 s56, 0
    v_lshrrev_b32 v{V['nw']}, 2, v{V['rw']}
    v_lshrrev_b32 v{V['nr']}, 1, v{V['l8']}
    s_lshl_b32 s{S_MD}, s{S_WAVE}, 11
    s_min_u32 s{S_MD}, s{S_MD}, 5120
    s_mov_b32 s{S_CU}, {L.CNT_U}
    """)
    for k in range(8): a(f"v_mov_b32 v{V['vx']+k}, 0")
    a(f"v_lshrrev_b32 v{V['pmr']}, 1, v{V['rw']}")
    team_mode(a, 104, 105, primed=not fz)
    if cfg['flags']:
        wait_cnt(a, S_CU, 28, 106, primed=not fz)
        a(f's_mov_b32 s{S_CV}, {L.CNT_I}')
        wait_cnt(a, S_CV, 98, 108, primed=not fz)
    for k in range(32): a(f"v_mov_b32 v{V['uf']+k}, 0")

def comb_wave(a, pf, stamps, cfg):
    V = CV; idx = V['idx']; mf = V['mf']; tw = V['tw']; uf = V['uf']; pa = V['pa']
    top = a.newlabel('L_cb_top'); nh0 = a.newlabel('L_nh')
    HT = [10, 11, 166, 167][:cfg['hdepth']]
    def store_vx(base, r):
        return [f"buffer_store_dwordx4 v[{r}:{r+3}], v{V['rw']}, {WSRD}, s{base} offen {cfg['xflags']}",
                f"s_add_u32 s{S_T1}, s{base}, 4096\nbuffer_store_dwordx4 v[{r+4}:{r+7}], v{V['rw']}, {WSRD}, s{S_T1} offen {cfg['xflags']}"]
    lq = Q('lgkmcnt', 15)
    def lread(lam, hf):
        return dsop(f"ds_read_b128 v[{tw+8*(lam%4)+4*hf}:{tw+8*(lam%4)+4*hf+3}], v{V['lw']} offset:{lam*2048+hf*1024}", ('lw', lam))
    def housekeeping_acc(a=a):
        for u in range(8):
            A = V['acc'] + 4*u
            a(f'v_mov_b64 v[{A}:{A+1}], 0\nv_mov_b64 v[{A+2}:{A+3}], 0')
    def housekeeping(a=a, acc=True):
        if acc: housekeeping_acc(a)
        for lam in range(4):
            for hf in range(2): a(lread(lam, hf)(lq))
    uload = lambda k: f"buffer_load_dwordx4 v[{uf+4*k}:{uf+4*k+3}], v{V['l16']}, {WSRD}, s{S_GOFF if k < 4 else S_EOFF} offen offset:{(k%4)*1024} {cfg['xflags']}"
    uorder = [] if cfg['nou'] else [4, 5, 6, 7, 0, 1, 2, 3]
    ue = uorder[:cfg['uearly']]; ul = uorder[cfg['uearly']:]
    housekeeping()
    t = mf
    slow = a.newlabel('L_cms'); back = a.newlabel('L_cmb'); redo = a.newlabel('L_cmr')
    pre = f"""s_add_u32 s{S_EOFF}, s{S_GOFF}, 16384
        s_lshl_b32 s{S_CU}, s{S_STEP}, 7
        s_add_u32 s{S_CU}, s{S_CU}, {L.CNT_U + 128}
        s_add_u32 s{S_T0}, s{S_MOFF}, s{S_MD}
        s_mov_b32 m0, s{S_MD}"""
    a(pre)
    a(f's_branch {top}')
    if cfg['al'] is not None:
        a.raw('    .p2align 6')
        for _ in range(cfg['al'][4]): a.raw('    s_nop 0')
    a(f'{nh0}:\ns_barrier')
    a.label(top)
    stamp(a, stamps, 0)
    if cfg['cdma']:
        a(f"""
        buffer_load_dwordx4 v{V['l16']}, {WSRD}, s{S_T0} offen sc1 lds
        buffer_load_dwordx4 v{V['l16']}, {WSRD}, s{S_T0} offen offset:1024 sc1 lds
        s_mov_b32 s{S_SAFE}, 0
        """)
        if ue: a('s_barrier')
        for k in ue: a(uload(k))
        a(f's_waitcnt vmcnt({len(ue)}) lgkmcnt(0)\ns_barrier\n{back}:')
        def coldr():
            a(f'{redo}:\ns_barrier\ns_mov_b32 s{S_SAFE}, 1\ns_add_u32 s{S_YD}, s{S_XOFF}, 0x8000000')
            if stamps: a(f's_add_u32 s{40+2*8}, s{40+2*8}, 1')
            if cfg.get('wgd'): a('s_add_u32 s84, s84, 1')
            housekeeping()
            poll_m(a, V)
            a(f's_branch {back}')
        a.cold.append(coldr)
    else:
        a(f"""
        buffer_load_dwordx4 v[{t}:{t+3}], v{pa}, {WSRD}, s{S_MOFF} offen sc1
        buffer_load_dwordx4 v[{t+4}:{t+7}], v{pa}, {WSRD}, s{S_MOFF} offen offset:768 sc1
        """)
        if ue: a('s_barrier')
        for k in ue: a(uload(k))
        a(f"""
        s_waitcnt vmcnt({len(ue)+1})
        ds_write_b128 v{pa}, v[{t}:{t+3}]
        v_max3_u32 v{t+8}, v{t}, v{t+1}, v{t+2}
        s_waitcnt vmcnt({len(ue)})
        ds_write_b128 v{pa}, v[{t+4}:{t+7}] offset:768
        v_max3_u32 v{t+8}, v{t+8}, v{t+3}, v{t+4}
        v_max3_u32 v{t+8}, v{t+8}, v{t+5}, v{t+6}
        v_max_u32 v{t+8}, v{t+8}, v{t+7}
        v_cmp_eq_u32 vcc, -1, v{t+8}
        s_cbranch_vccnz {slow}
        s_waitcnt lgkmcnt(0)
        s_barrier
{back}:
        """)
        def coldm():
            a.label(slow)
            if stamps: a(f's_add_u32 s{40+2*8}, s{40+2*8}, 1')
            poll_m(a, V)
            a(f's_branch {back}')
        a.cold.append(coldm)
    lq.drain()
    stamp(a, stamps, 1)
    mrd = [dsop(f"ds_read_b64_tr_b16 v[{mf+4*b+2*hf}:{mf+4*b+2*hf+1}], v{V['l8']} offset:{LDS_M+b*1024+hf*512}", ('mf', b))
           for b in range(7) for hf in range(2)]
    for x in mrd[:cfg['mpre']]: a(x(lq))
    ms = []; last = {}
    rorder = [(u, b) for b in range(7) for u in range(2)] + [(u, b) for u in range(2, 6) for b in range(7)]
    rb = 0
    for p in range(56):
        if p % 4 == 3:
            lam = p // 4; u = 6 + lam // 7; b = lam % 7
            ms.append((SM(V['acc']+4*u, mf+4*b, vr(tw+8*(lam % 4), 8), idx), [('mf', b), ('lw', lam)]))
        else:
            u, b = rorder[rb]; rb += 1
            ms.append((SM(V['acc']+4*u, mf+4*b, wreg(u*7+b, V['w']), idx), [('mf', b)]))
        last[u] = p
    gp = Gaps(56)
    for k, x in enumerate(mrd[cfg['mpre']:]): gp.put('ds', k, x)
    for lam in range(4, 14):
        g = 4*(lam-4) + 3
        g = gp.put('ds', g, lread(lam, 0)) + 1
        gp.put('ds', g, lread(lam, 1))
    g = 0
    for k in ul: g = gp.put('va', g, uload(k)) + cfg['ustep']
    if cfg['flags']:
        g = gp.put('va', g, f"buffer_load_dword v{V['cu']}, v{V['zero']}, {WSRD}, s{S_CU} offen sc1") + 1
    for x in store_vx(S_YD, V['vx']): g = gp.put('va', g, x) + cfg['ustep']
    assert g - cfg['ustep'] < min(last.values()) + 3
    for k in range(len(HT)-1 if cfg['psl'] is None else 0):
        gp.put('ds', 55 - cfg['hpre'] + 4*k, f"buffer_load_dword v{HT[k]}, v{V['ha']}, {WSRD}, s{S_POFF} offen sc1")
    def post(u):
        A = V['acc'] + 4*u; hl = u >> 1; ctl = u & 1
        return ([f'v_pk_add_f32 v[{A}:{A+1}], v[{A}:{A+1}], v[{A+2}:{A+3}]'] if cfg['cpk'] else [f'v_add_f32 v{A}, v{A}, v{A+2}', f'v_add_f32 v{A+1}, v{A+1}, v{A+3}']) + [
                f"v_cvt_pk_bf16_f32 v{V['vx']+4*ctl+hl}, v{A}, v{A+1}"]
    tail = []; gprev = 0
    for u in sorted(last, key=lambda u: last[u]):
        g = max(last[u] + 3, gprev)
        if g + 4 >= 56: tail += post(u); continue
        for x in post(u): g = gp.put('va', g, x) + 1
        gprev = g
        if u == 0: done0 = g
    if cfg['cdma']:
        A0 = V['acc']; N = 168
        g = gp.put('va', done0, f'v_add_f32 v9, v{A0}, v{A0+1}') + 1
        g = gp.put('ds', g, dsop(f"ds_write_b32 v{V['nw']}, v9 offset:{LDS_NAN}", 'nw')) + 4
        gp.force('ds', g, dswait('nw', 's_barrier'))
        g = gp.put('ds', g+1, dsop(f"ds_read2st64_b32 v[{N}:{N+1}], v{V['nr']} offset0:{LDS_NAN//256} offset1:{LDS_NAN//256+1}")) + 1
        g = gp.put('ds', g, dsop(f"ds_read2st64_b32 v[{N+2}:{N+3}], v{V['nr']} offset0:{LDS_NAN//256+2} offset1:{LDS_NAN//256+3}", 'nr')) + 4
        g = gp.put('va', g, dswait('nr', f'v_add_f32 v{N}, v{N}, v{N+2}')) + 1
        g = gp.put('va', g, f'v_add_f32 v{N+1}, v{N+1}, v{N+3}') + 1
        g = gp.put('va', g, f'v_cmp_u_f32 vcc, v{N}, v{N+1}')
        assert g < 54
    emit_stream(a, ms, gp, lq)
    if cfg['cdma']:
        nb = a.newlabel('L_cnb'); nx = a.newlabel('L_cnx')
        a(f's_cbranch_vccnz {nb};nf\n{nx}:;nf')
        a.cold.append(lambda: a(f'{nb}:\ns_nop 7\ns_cmp_eq_u32 s{S_SAFE}, 0\ns_cbranch_scc1 {redo}\ns_branch {nx}'))
    for x in tail: a(x)
    lastl = a.newlabel('L_cbl')
    a(f's_cmp_ge_u32 s{S_STEP}, 63\ns_cbranch_scc1 {lastl}')
    def coldl():
        a.label(lastl)
        for x in store_vx(S_XOFF, V['vx']): a(x)
        a('s_branch L_exit')
    a.cold.append(coldl)
    stamp(a, stamps, 2)
    A = tw
    a(f's_add_u32 s{S_T0}, s{S_POFF}, 8192\ns_mov_b32 s{S_YD}, s{S_XOFF}')
    if stamps and cfg['sdrain']: a('s_waitcnt vmcnt(0)')
    stamp(a, stamps, 3)
    if cfg['psl'] is None:
        jn = a.newlabel('L_jn')
        a(f's_cmp_lg_u32 s{S_WAVE}, 0\ns_cbranch_scc1 {jn}')
        wait_hint(a, V['ha'], S_POFF, HT, delay=cfg['pdelay'], inner=cfg['hinner'], primed=True)
        a(f'{jn}:\ns_barrier')
    else:
        stamp_flush(a, stamps, 11, mf+24)
        if cfg['psl'] - (cfg['fl'] if stamps else 0) > 0: a(f"s_sleep {cfg['psl'] - (cfg['fl'] if stamps else 0)}")
        if cfg['pdelay']: a(f"s_nop {cfg['pdelay']-1}")
        if cfg['pbar']: a('s_barrier')
    stamp(a, stamps, 6)
    l = a.newlabel('L_pp'); d = a.newlabel('L_ppd'); retry = a.newlabel('L_ppr'); t = 9
    R = tw + 8
    B3 = [vr(uf, 8), vr(uf+8, 8), vr(V['itm'], 8)], [vr(uf+16, 8), vr(uf+24, 8), vr(V['itm']+8, 8)]
    mh = f"""s_mov_b64 exec, 15
        buffer_store_dword v{V['zero']}, v{V['hw']}, {WSRD}, s{S_MOFF} offen {pf}
        s_mov_b64 exec, -1"""
    def issue(p):
        a(f"""
        buffer_load_dwordx4 v[{p}:{p+3}], v{V['pr']}, {WSRD}, s{S_POFF} offen sc1
        buffer_load_dwordx4 v[{p+4}:{p+7}], v{V['pr']}, {WSRD}, s{S_POFF} offen offset:1024 sc1
        buffer_load_dwordx2 v[{p+8}:{p+9}], v{V['pmr']}, {WSRD}, s{S_T0} offen sc1
        """)
    def zero():
        for k in range(4): a(f'v_mov_b64 v[{A+2*k}:{A+2*k+1}], 0')
    def attempt(p, behind, hint_here):
        ex = behind
        a(f's_add_u32 s{S_SPIN}, s{S_SPIN}, 1')
        for k in range(3):
            a(f's_waitcnt vmcnt({2-k+ex})')
            S32 = lambda acc, B: f'v_smfmac_f32_16x16x32_bf16 v[{acc}:{acc+3}], v[{p+8}:{p+9}], {B}, v{idx}'
            a(SM(A, p+4*k, B3[0][k], idx) if k < 2 else S32(A, vr(V['vx'], 4)))
            a(f'v_max_u32 v{t}, v{p}, v{p+2}' if k == 0 else f'v_max3_u32 v{t}, v{t}, v{p+4*k}, v{p+4*k+(2 if k < 2 else 1)}')
            a(SM(A+4, p+4*k, B3[1][k], idx) if k < 2 else S32(A+4, vr(V['vx']+4, 4)))
            if hint_here and k == cfg['mhk']:
                if cfg['mhint'] == 3:
                    a(f"""v_cmp_eq_u32 vcc, -1, v{t}
                    s_cmp_eq_u64 vcc, 0
                    s_cselect_b64 exec, 15, 0
                    buffer_store_dword v{V['zero']}, v{V['hw']}, {WSRD}, s{S_MOFF} offen {pf}
                    s_mov_b64 exec, -1""")
                else: a(mh)
                ex += 1
        a(f'v_cmp_eq_u32 vcc, -1, v{t}')
    a(f's_mov_b32 s{S_SPIN}, 0')
    issue(mf)
    zero()
    housekeeping_acc()
    if cfg['p2']:
        gap = cfg['p2'] - 16
        while gap > 0:
            a(f's_nop {min(gap, 16) - 1}'); gap -= 16
        issue(mf+12)
    if cfg['mhint'] == 0:
        for _ in range(cfg['mhnop']): a('s_nop 3')
        a(mh)
    attempt(mf, (3 if cfg['p2'] else 0) + (cfg['mhint'] == 0), cfg['mhint'] >= 2)
    a(f's_cbranch_vccnz {retry};nf\n{d}:;nf')
    def coldp():
        a(f'{retry}:\ns_nop 7')
        if cfg['p2']:
            a.label(l)
            issue(mf)
            zero()
            attempt(mf+12, 3, cfg['mhint'] == 3)
            a(f's_cbranch_vccz {d}')
            issue(mf+12)
            zero()
            attempt(mf, 3, cfg['mhint'] == 3)
        else:
            a.label(l)
            issue(mf)
            zero()
            attempt(mf, 0, cfg['mhint'] == 3)
        a(f"""
        s_cbranch_vccz {d}
        s_cmp_lt_u32 s{S_SPIN}, s{S_LIM}
        s_cbranch_scc1 {l}
        s_mov_b32 s{S_LIM}, 1
        s_branch {d}
        """)
    a.cold.append(coldp)
    stamp(a, stamps, 4)
    if cfg['mhint'] == 1: a(mh)
    if stamps: a(f's_mov_b32 s{40+2*7}, s{S_SPIN}')
    if cfg.get('wgd'): a(f's_add_u32 s83, s83, s{S_SPIN}')
    if cfg['flags']: a(f"v_readfirstlane_b32 s{S_CV}, v{V['cu']}")
    hiw = a.newlabel('L_cbh'); nh = nh0; ny = a.newlabel('L_cny')
    def chores():
        if cfg['flags']:
            slow2 = a.newlabel('L_us'); back2 = a.newlabel('L_ub')
            a(f's_cmp_lt_u32 s{S_CV}, 28\ns_cbranch_scc1 {slow2}\n{back2}:')
            def coldu():
                a.label(slow2)
                wait_cnt(a, S_CU, 28, 174)
                a(f's_branch {back2}')
            a.cold.append(coldu)
        step_advance(a, 458752)
        a(pre)
        housekeeping(a, False)
    def hi_tail():
        w2 = a.newlabel('L_cw2')
        ld = lambda r: f"buffer_load_dword v{r}, v{V['hm']}, {WSRD}, s{S_T1} offen sc1"
        a(f"""
{hiw}:
        s_add_u32 s{S_T1}, s{S_MOFF}, 8192
        s_cmp_eq_u32 s{S_WAVE}, 2
        s_cbranch_scc1 {w2}
        {ld(HT[0])}
        s_waitcnt lgkmcnt(0)
        {ld(HT[1])}
        s_barrier
        {ld(HT[2])}
        """)
        stamp(a, stamps, 5)
        chores()
        wait_hint(a, V['hm'], S_MOFF, HT, delay=cfg['cdelay'], inner=cfg['hinner'], primed=True)
        a(f's_branch {nh}\n{w2}:\ns_waitcnt lgkmcnt(0)\ns_barrier')
        if cfg['cq']: a(f"s_sleep {cfg['cq']}")
        stamp(a, stamps, 5)
        chores()
        a(f's_branch {nh}')
    a.cold.append(hi_tail)
    a(f"""
    v_pk_add_f32 v[{R}:{R+1}], v[{A}:{A+1}], v[{A+2}:{A+3}]
    v_pk_add_f32 v[{R+2}:{R+3}], v[{A+4}:{A+5}], v[{A+6}:{A+7}]
    ds_write_b128 v{V['rw']}, v[{R}:{R+3}] offset:{LDS_RED}
    s_cmp_ge_u32 s{S_WAVE}, 2
    s_cbranch_scc1 {hiw}
    s_waitcnt lgkmcnt(0)
    s_barrier
    ds_read_b64 v[{R}:{R+1}], v{V['rr']} offset:{LDS_RED}
    ds_read_b64 v[{R+2}:{R+3}], v{V['rr']} offset:{LDS_RED+1024}
    ds_read_b64 v[{R+4}:{R+5}], v{V['rr']} offset:{LDS_RED+2048}
    ds_read_b64 v[{R+6}:{R+7}], v{V['rr']} offset:{LDS_RED+3072}
    s_waitcnt lgkmcnt(2)
    v_pk_add_f32 v[{R}:{R+1}], v[{R}:{R+1}], v[{R+2}:{R+3}]
    s_waitcnt lgkmcnt(0)
    v_pk_add_f32 v[{R+4}:{R+5}], v[{R+4}:{R+5}], v[{R+6}:{R+7}]
    v_pk_add_f32 v[{R}:{R+1}], v[{R}:{R+1}], v[{R+4}:{R+5}]
    v_cvt_pk_bf16_f32 v9, v{R}, v{R+1}
    buffer_store_dword v9, v{V['mw']}, {WSRD}, s{S_MOFF} offen {pf}
    """)
    stamp(a, stamps, 5)
    a(f"""
    s_cmp_lt_u32 s{S_STEP}, 62
    s_cbranch_scc1 {ny}
    s_add_u32 s{S_T0}, s{S_MOFF}, {L.MB_Y - L.MB_M}
    buffer_store_dword v9, v{V['mw']}, {WSRD}, s{S_T0} offen sc1
{ny}:
    """)
    chores()
    a(f's_branch {nh}')
    while a.cold: a.flush_cold()

def helper_cu(a, cfg):
    V = dict(l8=0, pa=1, idx=2, mf=12); LN = 112
    NP = cfg['npf']; D = cfg['pfd']; PER = cfg['pfper']
    a(f'v_mov_b32 v{LN}, v1')
    team_register(a)
    common_addrs(a, V, LN)
    a(f"""
    v_lshlrev_b32 v4, 7, v{LN}
    v_mov_b32 v3, v4
    v_mov_b32 v5, 0
    v_mov_b32 v6, 14
    s_sub_u32 s{S_ROLE}, s{S_ROLE}, 30
    s_lshl_b32 s{S_EOFF}, s{S_ROLE}, 2
    s_add_u32 s{S_EOFF}, s{S_EOFF}, s{S_WAVE}
    s_mov_b32 s{S_STEP}, 0
    s_mov_b32 s{S_MOFF}, {L.MB_M + 8192}
    s_mov_b32 s{S_CV}, {L.DUMMY + 0x200000}
    s_mul_i32 s{S_GOFF}, s{S_EOFF}, 7168
    s_add_u32 s{S_GOFF}, s{S_GOFF}, {L.XN}
    s_mov_b32 s{S_POFF}, 28672
    s_cmp_lt_u32 s{S_EOFF}, 4
    s_cbranch_scc1 H_t
    s_sub_u32 s{S_GOFF}, s{S_EOFF}, 4
    s_mul_i32 s{S_GOFF}, s{S_GOFF}, 6144
    s_add_u32 s{S_GOFF}, s{S_GOFF}, {L.MB_P}
    s_mov_b32 s{S_POFF}, 16384
    s_cmp_lt_u32 s{S_EOFF}, 6
    s_cbranch_scc1 H_t
    s_mov_b32 s{S_GOFF}, {L.MB_M + 8192}
    s_mov_b32 s{S_POFF}, 8192
    s_cmp_lt_u32 s{S_EOFF}, {7 if cfg['tlb'] else 8}
    s_cbranch_scc1 H_t
    s_mov_b32 s{S_GOFF}, {L.U + cfg['tlb']*458752}
    s_mov_b32 s{S_POFF}, 458752
    v_mul_u32_u24 v3, 7168, v{LN}
H_t:
    """)
    def mtouch():
        a(f'buffer_load_dword v7, v3, {WSRD}, s{S_GOFF} offen sc1\ns_add_u32 s{S_GOFF}, s{S_GOFF}, s{S_POFF}')
    if cfg['fused']: wait_ln(a, LN, 100)
    team_mode(a, V['mf'], V['mf']+1)
    a(f's_mov_b32 s{S_LIM}, {SPIN_MAX*4}')
    a(f"""
    s_getpc_b64 s[70:71]
H_pc:
    s_lshl_b32 s{S_T0}, s{S_EOFF}, 12
    v_lshrrev_b32 v10, 1, v4
    s_add_u32 s70, s70, s{S_T0}
    s_addc_u32 s71, s71, 0
    s_add_u32 s70, s70, L_nothelp-H_pc
    s_addc_u32 s71, s71, 0
    s_mov_b32 s72, s{S_GOFF}
    s_mov_b32 s{S_SPIN}, 0
    s_mov_b32 s73, {L.MB_P}
H_warm:
    s_mov_b32 s{S_GOFF}, s72
    global_load_dword v8, v10, s[70:71] sc1
    """)
    for _ in range(D+1): mtouch()
    a(f"""
    buffer_load_dword v9, v5, {WSRD}, s73 offen sc1
    s_add_u32 s{S_SPIN}, s{S_SPIN}, 1
    s_waitcnt vmcnt(0)
    v_cmp_eq_u32 vcc, -1, v9
    s_cbranch_vccz H_warmed
    s_sleep 8
    s_cmp_lt_u32 s{S_SPIN}, s{S_LIM}
    s_cbranch_scc1 H_warm
H_warmed:
    """)
    mul = {2: (128, 8), 3: (86, 8)}[PER]
    for k in range(NP):
        a(f"""
        s_add_u32 s{S_T0}, s{S_EOFF}, {8*k}
        s_min_u32 s{S_T0}, s{S_T0}, {14*PER-1}
        s_mul_i32 s{S_T1}, s{S_T0}, {mul[0]}
        s_lshr_b32 s{S_T1}, s{S_T1}, {mul[1]}
        s_mul_i32 s{S_T1}, s{S_T1}, {4-PER}
        s_add_u32 s{S_T0}, s{S_T0}, s{S_T1}
        s_lshl_b32 s{60+k}, s{S_T0}, 13
        s_add_u32 s{60+k}, s{60+k}, {L.U}
        """)
    def utouch():
        for k in range(NP):
            a(f'buffer_load_dword v{32+k}, v4, {WSRD}, s{60+k} offen sc1\ns_add_u32 s{60+k}, s{60+k}, 458752')
    a(f's_mov_b32 s{S_CU}, {L.CNT_U}')
    for _ in range(D if NP else 0):
        if cfg['flags']: wait_cnt(a, S_CU, 28, 30)
        utouch()
        a(f's_add_u32 s{S_CU}, s{S_CU}, 128')
    t = V['mf']; pa = V['pa']
    sk = a.newlabel('H_sk'); sk2 = a.newlabel('H_sk'); ok = a.newlabel('H_ok')
    a(f"""
H_top:
    s_mov_b32 s{S_SPIN}, 0
H_poll:
    buffer_load_dwordx4 v[{t}:{t+3}], v{pa}, {WSRD}, s{S_MOFF} offen sc1
    buffer_load_dwordx4 v[{t+4}:{t+7}], v{pa}, {WSRD}, s{S_MOFF} offen offset:768 sc1
    buffer_load_dword v30, v5, {WSRD}, s{S_CU} offen sc1
    s_add_u32 s{S_SPIN}, s{S_SPIN}, 1
    s_waitcnt vmcnt(0)
    v_max3_u32 v{t+8}, v{t}, v{t+1}, v{t+2}
    v_max3_u32 v{t+8}, v{t+8}, v{t+3}, v{t+4}
    v_max3_u32 v{t+8}, v{t+8}, v{t+5}, v{t+6}
    v_max_u32 v{t+8}, v{t+8}, v{t+7}
    v_readfirstlane_b32 s{S_T0}, v30
    v_cmp_eq_u32 vcc, -1, v{t+8}
    s_cbranch_vccz {ok}
    s_sleep {cfg['hsleep']}
    s_cmp_lt_u32 s{S_SPIN}, s{S_LIM}
    s_cbranch_scc1 H_poll
    s_mov_b32 s{S_LIM}, 1
{ok}:
    s_cmp_lg_u32 s{S_ROLE}, 0
    s_cbranch_scc1 {sk}
    s_add_u32 s{S_T1}, s{S_MOFF}, {L.MB_Y - L.MB_M}
    buffer_store_dwordx4 v[{t}:{t+3}], v{pa}, {WSRD}, s{S_T1} offen sc1
    buffer_store_dwordx4 v[{t+4}:{t+7}], v{pa}, {WSRD}, s{S_T1} offen offset:768 sc1
{sk}:
    s_cmp_ge_u32 s{S_STEP}, {63 - D}
    s_cbranch_scc1 {sk2}
    """)
    mtouch()
    if NP:
        sk3 = a.newlabel('H_sk'); sk4 = a.newlabel('H_sk')
        if cfg['flags']: a(f's_cmp_lt_u32 s{S_T0}, 28\ns_cbranch_scc1 {sk3}')
        utouch()
        a(f's_branch {sk4}\n{sk3}:')
        for k in range(NP): a(f's_add_u32 s{60+k}, s{60+k}, 458752')
        a(f'{sk4}:\ns_add_u32 s{S_CU}, s{S_CU}, 128')
    a(f"""
{sk2}:
    s_add_u32 s{S_STEP}, s{S_STEP}, 1
    s_add_u32 s{S_MOFF}, s{S_MOFF}, 8192
    s_cmp_lt_u32 s{S_STEP}, 62
    s_cbranch_scc1 H_top
    s_branch L_exit
    """)

DEFAULT_CFG = dict(ba=[35, 35, 34, 34], bak=3, bb=[53, 53, 0, 0], xflags='', ssleep=[2, 2, 2, 0], csleep=0, psleep=0, touch=1,
                   nou=0, nox=0, cflush=1, flags=0, ustep=3, hsleep=2, mdelay=14, pdelay=1, phint=9, lead=[4, 1], pnop=[0, 8], b5nop=2, npf=0, pfper=2, hdepth=4, hpre=10, psl=3, fl=1, mhk=0, px=9, quiet=7, cq=1, al=[0, 0, 0, 3, 1], prio=[0, 0, 0, 0], wfl='', fused=0, cpk=0, fin1=0, tlb=0, xin=0, xstep=3, xs=2, xw=[(0, 9), (9, 18), (18, 28), (0, 0)], pbar=1, scap=None, ccap=None, m2=0, mdma=1, m2d=0, msamp=0, cdma=1, m2w=10, p2=32, cutrig=1, hinner=2, uearly=4, mhint=1, mhnop=0, sdrain=0, pfd=3, mpre=6, chint=1, cdelay=20)

def team_body(a, stamps=False, cfg=None):
    cfg = dict(DEFAULT_CFG, **(cfg or {}))
    a(f's_cmp_lt_u32 s{S_ROLE}, 30\ns_cbranch_scc1 L_nothelp')
    helper_cu(a, cfg)
    a.label('L_nothelp')
    a(f's_cmp_ge_u32 s{S_ROLE}, 16\ns_cbranch_scc1 L_comb')
    score_setup(a, stamps, cfg)
    for fast in (1, 0):
        a(f's_cmp_lg_u32 s{S_FAST}, {fast}\ns_cbranch_scc1 L_sc_next{fast}')
        for w in range(4):
            if w < 3:
                a(f's_cmp_lg_u32 s{S_WAVE}, {w}\ns_cbranch_scc1 L_sc{fast}_n{w}')
            score_wave(a, w, '' if fast else 'sc1', stamps, cfg)
            if w < 3: a.label(f'L_sc{fast}_n{w}')
        a.label(f'L_sc_next{fast}')
    a('s_branch L_exit')
    a.label('L_comb')
    comb_setup(a, stamps, cfg)
    for fast in (1, 0):
        a(f's_cmp_lg_u32 s{S_FAST}, {fast}\ns_cbranch_scc1 L_cb_next{fast}')
        comb_wave(a, '' if fast else 'sc1', stamps, cfg)
        a.label(f'L_cb_next{fast}')
    a('s_branch L_exit')
```

```python
from asmlib import *
import layout as L

SENT = -1
S_WS = 8
S_DBG = 12
S_ROLE = 16
S_WAVE = 17
S_XCC = 18
S_STEP = 19
S_FAST = 20
S_MOFF = 21; S_POFF = 22; S_EOFF = 23; S_GOFF = 24; S_XOFF = 25; S_T0 = 26; S_T1 = 27; S_SPIN = 28; S_LIM = 29
S_EXEC = 30
S_STMP = 32
S_TM = 34
SPIN_MAX = 20000
NTEAM = 32

LDS_M = 0
LDS_T = 7168
LDS_FL = 14336
LDS_VD = 18432
LDS_X = 20480
LDS_NAN = 11264
LDS_RED = 7168
LDS_BW = 16384
LDS_ROLE = 160*1024 - 16

def prologue(a, stamps, pool_off=0, scatter=False, code=1):
    if code:
        a('s_getpc_b64 s[40:41]\nM_pc:\nv_lshlrev_b32 v12, 7, v0\nglobal_load_dword v255, v12, s[40:41]')
        a('v_add_u32 v12, 32768, v12\nv_min_u32 v11, L_end-M_pc, v12\nglobal_load_dword v255, v11, s[40:41]')
    a(f'''
    s_cmp_ge_u32 s2, 256
    s_cbranch_scc1 L_end
    s_load_dwordx2 s[4:5], s[0:1], 96
    s_load_dwordx2 s[6:7], s[0:1], 88
    s_getreg_b32 s{S_XCC}, hwreg(HW_REG_XCC_ID, 0, 4)
    v_lshrrev_b32 v2, 6, v0
    v_and_b32 v1, 63, v0
    v_readfirstlane_b32 s{S_WAVE}, v2
    s_and_b32 s{S_XCC}, s{S_XCC}, 7
    s_waitcnt lgkmcnt(0)
    s_mov_b32 s{S_WS}, s4
    s_and_b32 s{S_WS+1}, s5, 0xffff
    s_mov_b32 s{S_WS+2}, {L.WS_BYTES}
    s_mov_b32 s{S_WS+3}, 0x20000
    s_mov_b32 s{S_DBG}, s6
    s_and_b32 s{S_DBG+1}, s7, 0xffff
    s_mov_b32 s{S_DBG+2}, 256
    s_mov_b32 s{S_DBG+3}, 0x20000
    v_mov_b32 v4, {LDS_ROLE}
    s_cmp_lg_u32 s{S_WAVE}, 0
    s_cbranch_scc1 L_role_wait
    s_mov_b64 exec, 1
    s_mov_b32 s{S_T0}, 0
L_role_try:
    {f's_lshr_b32 s{S_T1}, s2, 5' if scatter else f's_mov_b32 s{S_T1}, s{S_XCC}'}
    s_add_u32 s{S_T1}, s{S_T1}, s{S_T0}
    s_and_b32 s{S_T1}, s{S_T1}, 7
    s_lshl_b32 s{S_ROLE}, s{S_T1}, 7
    s_add_u32 s{S_ROLE}, s{S_ROLE}, {L.CNT_P + pool_off}
    v_mov_b32 v2, s{S_ROLE}
    v_mov_b32 v3, 1
    buffer_atomic_add v3, v2, s[{S_WS}:{S_WS+3}], 0 offen sc0
    s_waitcnt vmcnt(0)
    v_readfirstlane_b32 s{S_ROLE}, v3
    s_cmp_lt_u32 s{S_ROLE}, 32
    s_cbranch_scc1 L_role_got
    s_add_u32 s{S_T0}, s{S_T0}, 1
    s_cmp_lt_u32 s{S_T0}, 8
    s_cbranch_scc1 L_role_try
    s_mov_b32 s{S_ROLE}, 31
    s_mov_b32 s{S_T1}, 0
L_role_got:
    s_lshl_b32 s{S_T1}, s{S_T1}, 5
    s_add_u32 s{S_ROLE}, s{S_ROLE}, s{S_T1}
    v_mov_b32 v2, s{S_ROLE}
    ds_write_b32 v4, v2
    s_mov_b64 exec, -1
    s_waitcnt lgkmcnt(0)
L_role_wait:
    s_barrier
    ds_read_b32 v2, v4
    s_waitcnt lgkmcnt(0)
    v_readfirstlane_b32 s{S_ROLE}, v2
    ''')

FSL = [8, 32]
def wait_flags(a, vaddr, need, t, n=1):
    l = a.newlabel('L_wf'); d = a.newlabel('L_wfd')
    regs = [t] + [t+4+2*k for k in range(n-1)]
    a(f"""
    s_mov_b32 s{S_SPIN}, 0
    s_mov_b32 s{S_EXEC}, {L.FL}
    s_add_u32 s{S_EXEC+1}, s80, {need}
{l}:
    """)
    for k, r in enumerate(regs):
        a(f'buffer_load_dwordx2 v[{r}:{r+1}], v{vaddr}, s[{S_WS}:{S_WS+3}], s{S_EXEC} offen offset:{k*512} sc1')
    a(f's_add_u32 s{S_SPIN}, s{S_SPIN}, 1\ns_waitcnt vmcnt(0)')
    for k, r in enumerate(regs):
        a(f"""
        v_subrev_u32 v{r}, s{S_EXEC+1}, v{r}
        v_xor_b32 v{r+1}, s81, v{r+1}
        v_lshl_or_b32 v{t+2}, v{r+1}, 3, v{r+1}
        v_or_b32 v{r}, v{r}, v{t+2}
        """)
        if k: a(f'v_max_u32 v{t}, v{t}, v{r}')
    a(f"""
    v_cmp_lt_u32 vcc, {7 - need}, v{t}
    s_cbranch_vccz {d}
    s_sleep {FSL[n > 1]}
    s_cmp_lt_u32 s{S_SPIN}, {SPIN_MAX*4}
    s_cbranch_scc1 {l}
{d}:
    """)

def prologue_fused(a):
    a(f"""
    s_getreg_b32 s{S_XCC}, hwreg(HW_REG_XCC_ID, 0, 4)
    s_mov_b32 s{S_WAVE}, s20
    s_and_b32 s{S_XCC}, s{S_XCC}, 7
    s_mov_b32 s{S_DBG}, s56
    s_mov_b32 s{S_DBG+1}, s57
    s_mov_b32 s{S_DBG+2}, 256
    s_mov_b32 s{S_DBG+3}, 0x20000
    v_mov_b32 v4, {LDS_ROLE}
    s_cmp_lg_u32 s{S_WAVE}, 0
    s_barrier
    s_cbranch_scc1 L_role_wait
    s_mov_b64 exec, 1
    s_mov_b32 s{S_T0}, 0
    s_mov_b32 s{S_T1}, s{S_XCC}
    v_mov_b32 v3, v250
    s_branch L_role_see
L_role_try:
    s_add_u32 s{S_T1}, s{S_XCC}, s{S_T0}
    s_and_b32 s{S_T1}, s{S_T1}, 7
    s_lshl_b32 s{S_ROLE}, s{S_T1}, 2
    v_mov_b32 v2, s{S_ROLE}
    v_mov_b32 v3, 1
    buffer_atomic_add v3, v2, s[{S_DBG}:{S_DBG+3}], 0 offen sc0
    s_waitcnt vmcnt(0)
L_role_see:
    v_readfirstlane_b32 s{S_ROLE}, v3
    s_cmp_lt_u32 s{S_ROLE}, 32
    s_cbranch_scc1 L_role_got
    s_add_u32 s{S_T0}, s{S_T0}, 1
    s_cmp_lt_u32 s{S_T0}, 8
    s_cbranch_scc1 L_role_try
    s_mov_b32 s{S_ROLE}, 31
    s_mov_b32 s{S_T1}, 0
L_role_got:
    s_lshl_b32 s{S_T1}, s{S_T1}, 5
    s_add_u32 s{S_ROLE}, s{S_ROLE}, s{S_T1}
    v_mov_b32 v2, s{S_ROLE}
    ds_write_b32 v4, v2
    s_mov_b64 exec, -1
    s_waitcnt lgkmcnt(0)
L_role_wait:
    s_barrier
    ds_read_b32 v2, v4
    s_waitcnt lgkmcnt(0)
    v_readfirstlane_b32 s{S_ROLE}, v2
    """)

def wait_ln(a, lane, t):
    a(f's_lshl_b32 s{S_T0}, s{S_WAVE}, 11\nv_lshlrev_b32 v{t+3}, 3, v{lane}\nv_add_u32 v{t+3}, s{S_T0}, v{t+3}')
    wait_flags(a, t+3, 1, t, n=4)
    a('s_barrier')

STAGE1 = (0, 4, 8, 11)
def load_tiles(a, tiles, vaddr, sbase, stage, flags, bud, cap=None):
    for off, dsts in tiles:
        cur = None
        for k in range(14):
            if stage is not None and (k in STAGE1) != (stage == 1): continue
            if cur != k // 4:
                cur = k // 4
                a(f's_add_u32 s{S_T0}, s{sbase}, {off + cur*4096}')
            a(f'buffer_load_dwordx4 {dsts[k]}, v{vaddr}, s[{S_WS}:{S_WS+3}], s{S_T0} offen offset:{(k%4)*1024} {flags}')
            bud[0] += 1
            if cap is not None:
                if bud[0] > cap: a(f's_waitcnt vmcnt({cap})')
            elif bud[0] >= 56:
                a('s_waitcnt vmcnt(28)'); bud[0] = 28

def team_register(a):
    l = a.newlabel('L_reg')
    a(f'''
    s_cmp_lg_u32 s{S_WAVE}, 0
    s_cbranch_scc1 {l}
    s_cmp_eq_u32 s{S_XCC}, 0
    s_cselect_b32 s{S_T0}, 1, 0x10001
    s_mov_b64 exec, 1
    v_mov_b32 v2, 64
    v_mov_b32 v3, s{S_T0}
    buffer_atomic_add v3, v2, s[{S_DBG}:{S_DBG+3}], 0 offen
    s_mov_b64 exec, -1
{l}:
    ''')

def team_mode_load(vt0, vt1):
    return f'v_mov_b32 v{vt0}, 64\nbuffer_load_dword v{vt1}, v{vt0}, s[{S_DBG}:{S_DBG+3}], 0 offen sc1'

def team_mode(a, vt0, vt1, primed=False):
    l = a.newlabel('L_mode'); d = a.newlabel('L_moded'); p = a.newlabel('L_modep')
    a(f'''
    s_mov_b32 s{S_SPIN}, 0
    {f's_branch {p}' if primed else ''}
{l}:
    {team_mode_load(vt0, vt1)}
{p}:
    s_waitcnt vmcnt(0)
    v_readfirstlane_b32 s{S_T0}, v{vt1}
    s_and_b32 s{S_T1}, s{S_T0}, 0xffff
    s_cmp_ge_u32 s{S_T1}, {NTEAM}
    s_cbranch_scc1 {d}
    s_sleep 2
    s_add_u32 s{S_SPIN}, s{S_SPIN}, 1
    s_cmp_lt_u32 s{S_SPIN}, {SPIN_MAX}
    s_cbranch_scc1 {l}
    s_mov_b32 s{S_T0}, 0x10000
{d}:
    s_lshr_b32 s{S_T0}, s{S_T0}, 16
    s_cmp_eq_u32 s{S_T0}, 0
    s_cselect_b32 s{S_FAST}, 1, 0
    s_mov_b32 s{S_LIM}, {SPIN_MAX}
    ''')

def stamp(a, stamps, idx, vt=None):
    if not stamps: return
    a(f's_memtime s[{40+2*idx}:{41+2*idx}]')
    if idx == 2: a('s_memrealtime s[60:61]')

def stamp_flush(a, stamps, n, vt):
    if not stamps: return
    a('s_waitcnt lgkmcnt(0)')
    for k in range(n):
        a(f'v_writelane_b32 v{vt}, s{40+2*k}, {k}')
    a(f"""
    v_lshrrev_b32 v{vt+1}, 1, v0
    s_mov_b64 exec, {(1 << n) - 1}
    buffer_store_dword v{vt}, v{vt+1}, s[{S_WS}:{S_WS+3}], s{S_STMP} offen
    s_mov_b64 exec, -1
    """)

def wreg(wb, vbase):
    return ar(8*wb, 8) if wb < 32 else vr(vbase + 8*(wb-32), 8)
def wreg_half(wb, vbase, half):
    return ar(8*wb + 4*half, 4) if wb < 32 else vr(vbase + 8*(wb-32) + 4*half, 4)

def xlane4(a, op, x, t):
    a(f'''
    v_mov_b32 v{t}, v{x}
    v_permlane16_swap_b32 v{x}, v{t}
    {op} v{x}, v{x}, v{t}
    v_mov_b32 v{t}, v{x}
    v_permlane32_swap_b32 v{x}, v{t}
    {op} v{x}, v{x}, v{t}
    ''')

QP = 'quad_perm:[2,3,0,1] row_mask:0xf bank_mask:0xf'

def read_mf(a, V):
    for b in range(7):
        a(f"ds_read_b64_tr_b16 v[{V['mf']+4*b}:{V['mf']+4*b+1}], v{V['l8']} offset:{LDS_M+b*1024}")
        a(f"ds_read_b64_tr_b16 v[{V['mf']+4*b+2}:{V['mf']+4*b+3}], v{V['l8']} offset:{LDS_M+b*1024+512}")

def SM(acc, A, B, idx):
    return f'v_smfmac_f32_16x16x64_bf16 v[{acc}:{acc+3}], v[{A}:{A+3}], {B}, v{idx}'


class Q:
    def __init__(self, name, cap):
        self.name = name; self.n = 0; self.tags = {}; self.done = 0; self.cap = cap
    def issue(self, tag=None):
        self.n += 1
        if tag is not None: self.tags[tag] = self.n
    def wait(self, tag):
        k = self.tags[tag]
        if k <= self.done: return ''
        self.done = k
        return 's_waitcnt %s(%d)' % (self.name, min(self.n - k, self.cap))
    def drain(self):
        self.done = self.n
        return 's_waitcnt %s(0)' % self.name

WSRD = f's[{S_WS}:{S_WS+3}]'

def poll_m(a, V, sleep=0):
    t = V['mf']; pa = V['pa']
    l = a.newlabel('L_pm'); d = a.newlabel('L_pmd')
    a(f"""
    s_mov_b32 s{S_SPIN}, 0
{l}:
    buffer_load_dwordx4 v[{t}:{t+3}], v{pa}, {WSRD}, s{S_MOFF} offen sc1
    buffer_load_dwordx4 v[{t+4}:{t+7}], v{pa}, {WSRD}, s{S_MOFF} offen offset:768 sc1
    s_add_u32 s{S_SPIN}, s{S_SPIN}, 1
    s_waitcnt vmcnt(1)
    ds_write_b128 v{pa}, v[{t}:{t+3}]
    v_max3_u32 v{t+8}, v{t}, v{t+1}, v{t+2}
    s_waitcnt vmcnt(0)
    ds_write_b128 v{pa}, v[{t+4}:{t+7}] offset:768
    v_max3_u32 v{t+8}, v{t+8}, v{t+3}, v{t+4}
    v_max3_u32 v{t+8}, v{t+8}, v{t+5}, v{t+6}
    v_max_u32 v{t+8}, v{t+8}, v{t+7}
    v_cmp_eq_u32 vcc, -1, v{t+8}
    s_cbranch_vccz {d}
    {'s_sleep %d' % sleep if sleep else ''}
    s_cmp_lt_u32 s{S_SPIN}, s{S_LIM}
    s_cbranch_scc1 {l}
    s_mov_b32 s{S_LIM}, 1
{d}:
    s_waitcnt lgkmcnt(0)
    s_barrier
    """)

def poll_m2(a, V, gap, x):
    pa = V['pa']; sets = (V['acc']+8, V['acc']+16)
    l = a.newlabel('L_pm'); d = a.newlabel('L_pmd')
    def issue(t):
        a(f"""
        buffer_load_dwordx4 v[{t}:{t+3}], v{pa}, {WSRD}, s{S_MOFF} offen sc1
        buffer_load_dwordx4 v[{t+4}:{t+7}], v{pa}, {WSRD}, s{S_MOFF} offen offset:768 sc1
        """)
    def check(t):
        a(f"""
        s_add_u32 s{S_SPIN}, s{S_SPIN}, 1
        s_waitcnt vmcnt(3)
        ds_write_b128 v{pa}, v[{t}:{t+3}]
        v_max3_u32 v{x}, v{t}, v{t+1}, v{t+2}
        s_waitcnt vmcnt(2)
        ds_write_b128 v{pa}, v[{t+4}:{t+7}] offset:768
        v_max3_u32 v{x}, v{x}, v{t+3}, v{t+4}
        v_max3_u32 v{x}, v{x}, v{t+5}, v{t+6}
        v_max_u32 v{x}, v{x}, v{t+7}
        v_cmp_eq_u32 vcc, -1, v{x}
        """)
    a(f's_mov_b32 s{S_SPIN}, 0')
    issue(sets[0])
    while gap > 0:
        a(f's_nop {min(gap, 16) - 1}'); gap -= 16
    issue(sets[1]); check(sets[0])
    a(f's_cbranch_vccnz {l}\n{d}:\ns_waitcnt lgkmcnt(0)\ns_barrier')
    def cold():
        a.label(l)
        issue(sets[0]); check(sets[1])
        a(f's_cbranch_vccz {d}')
        issue(sets[1]); check(sets[0])
        a(f"""
        s_cbranch_vccz {d}
        s_cmp_lt_u32 s{S_SPIN}, s{S_LIM}
        s_cbranch_scc1 {l}
        s_mov_b32 s{S_LIM}, 1
        s_branch {d}
        """)
    a.cold.append(cold)

def wait_hint(a, vaddr, soff, regs, imm=0, delay=0, gap=12, inner=8, fill=None, primed=False):
    n = len(regs)
    l = a.newlabel('L_h'); d = a.newlabel('L_hd')
    ld = lambda r: f'buffer_load_dword v{r}, v{vaddr}, {WSRD}, s{soff} offen offset:{imm} sc1'
    a(f's_mov_b32 s{S_SPIN}, 0')
    fill = list(fill or [])
    per = -(-len(fill) // (n-1))
    for k in range(0 if primed else n-1):
        a(ld(regs[k]))
        for x in fill[k*per:(k+1)*per]: a(x)
        if per < gap: a(f's_nop {gap - per}')
    a.label(l)
    for k in range(n):
        a(f"""
        {ld(regs[(k+n-1) % n])}
        s_waitcnt vmcnt({n-1})
        v_cmp_eq_u32 vcc, -1, v{regs[k]}
        s_cbranch_vccz {d}
        s_nop {inner}
        """)
    a(f"""
    s_add_u32 s{S_SPIN}, s{S_SPIN}, 1
    s_cmp_lt_u32 s{S_SPIN}, s{S_LIM}
    s_cbranch_scc1 {l}
{d}:
    """)
    while delay > 0:
        a(f's_nop {min(delay, 16) - 1}'); delay -= 16

def wait_cnt(a, off_sgpr, target, vt, sleep=4, primed=False):
    l = a.newlabel('L_wc'); d = a.newlabel('L_wcd'); p = a.newlabel('L_wcp')
    a(f"""
    s_mov_b32 s{S_SPIN}, 0
    v_mov_b32 v{vt}, 0
    {f's_branch {p}' if primed else ''}
{l}:
    buffer_load_dword v{vt+1}, v{vt}, {WSRD}, s{off_sgpr} offen sc1
{p}:
    s_add_u32 s{S_SPIN}, s{S_SPIN}, 1
    s_waitcnt vmcnt(0)
    v_readfirstlane_b32 s{S_T0}, v{vt+1}
    s_cmp_ge_u32 s{S_T0}, {target}
    s_cbranch_scc1 {d}
    s_sleep {sleep}
    s_cmp_lt_u32 s{S_SPIN}, s{S_LIM}
    s_cbranch_scc1 {l}
    s_mov_b32 s{S_LIM}, 1
{d}:
    """)

def img_addr(a, dst, t, lane):
    a(f"""
    v_bfe_u32 v{dst}, v{lane}, 3, 1
    v_lshlrev_b32 v{dst}, 9, v{dst}
    v_bfe_u32 v{t}, v{lane}, 2, 1
    v_lshl_add_u32 v{dst}, v{t}, 6, v{dst}
    v_and_b32 v{t}, 1, v{lane}
    v_lshl_add_u32 v{dst}, v{t}, 5, v{dst}
    v_lshrrev_b32 v{t}, 4, v{lane}
    v_lshl_add_u32 v{dst}, v{t}, 3, v{dst}
    v_bfe_u32 v{t}, v{lane}, 1, 1
    v_lshl_add_u32 v{dst}, v{t}, 2, v{dst}
    """)

def common_addrs(a, V, LN):
    a(f"""
    v_lshlrev_b32 v{V['l8']}, 3, v{LN}
    s_mul_i32 s{S_T0}, s{S_WAVE}, {112*16}
    v_lshlrev_b32 v{V['pa']}, 4, v{LN}
    v_add_u32 v{V['pa']}, s{S_T0}, v{V['pa']}
    v_and_b32 v{LN+1}, 2, v{LN}
    v_cmp_ne_u32 vcc, 0, v{LN+1}
    v_mov_b32 v{LN+1}, 0x4444
    v_mov_b32 v{LN+2}, 0xeeee
    v_cndmask_b32 v{V['idx']}, v{LN+1}, v{LN+2}, vcc
    """)

def load_1k_run(a, dsts, vaddr, sbase, flags='', budget=None):
    for i, d in enumerate(dsts):
        if i and i % 4 == 0:
            a(f's_add_u32 s{sbase}, s{sbase}, 4096')
        a(f'buffer_load_dwordx4 {d}, v{vaddr}, {WSRD}, s{sbase} offen offset:{(i%4)*1024} {flags}')
        if budget is not None:
            budget[0] += 1
            if budget[0] >= 56:
                a('s_waitcnt vmcnt(28)'); budget[0] = 28

class Gaps:
    def __init__(self, n):
        self.ds = [[] for _ in range(n)]; self.va = [[] for _ in range(n)]; self.pre = [[] for _ in range(n)]
        self.n = n
    def put(self, kind, g, text, excl=False):
        while g < self.n - 1:
            if excl:
                if not self.ds[g] and not self.va[g]: break
            else:
                lst = self.ds[g] if kind == 'ds' else self.va[g]
                other = self.va[g] if kind == 'ds' else self.ds[g]
                if not lst and not (other and other[-1][1]): break
            g += 1
        (self.ds if kind == 'ds' else self.va)[g].append((text, excl))
        return g
    def force(self, kind, g, text):
        (self.ds if kind == 'ds' else self.va)[min(g, self.n-1)].append((text, False))

def emit_stream(a, mf, gp, lq, pre=None):
    for i, (m, tags) in enumerate(mf):
        for tg in tags:
            w = lq.wait(tg)
            if w: a(w)
        a(m)
        for lst in (gp.ds[i], gp.va[i]):
            for x, _ in lst:
                t = x(lq) if callable(x) else x
                if t: a(t)

def dsop(text, tag=None):
    def f(lq):
        lq.issue(tag); return text
    return f
def dswait(tag, then=''):
    def f(lq):
        return lq.wait(tag) + '\n' + then
    return f

SV = dict(l8=0, pa=1, idx=2, k1=3, mf=12, acc=40, w=64)
def tile_of(w, u):
    if u < 5: return (u, w)
    order = {(0, 5): (5, 0), (1, 5): (5, 1), (2, 5): (5, 2), (2, 6): (5, 3), (0, 6): (6, 0), (1, 6): (6, 1), (0, 7): (6, 2), (1, 7): (6, 3)}
    return order[(w, u)]
NUNIT = [8, 8, 7, 5]
F = dict(l16=4, px=5, pm=6, mk0=7, mk1=8, mk2=9, wz=10, xf=88, tf=200, sa=228, t=240)

def score_setup(a, stamps, cfg):
    V = SV; LN = 44
    a(f'v_mov_b32 v{LN}, v1')
    team_register(a)
    common_addrs(a, V, LN)
    img_addr(a, V['k1'], LN+1, LN)
    g, cc, par, ib, t = LN+1, LN+2, LN+3, LN+4, LN+5
    a(f"""
    v_lshlrev_b32 v{F['l16']}, 4, v{LN}
    v_lshrrev_b32 v{g}, 4, v{LN}
    v_bfe_u32 v{cc}, v{LN}, 2, 2
    v_bfe_u32 v{par}, v{LN}, 1, 1
    v_and_b32 v{ib}, 1, v{LN}
    v_and_b32 v{t}, 15, v{LN}
    v_lshlrev_b32 v{F['px']}, 4, v{t}
    v_lshrrev_b32 v{t}, 1, v{g}
    v_lshl_add_u32 v{F['px']}, v{t}, 8, v{F['px']}
    v_and_b32 v{t}, 1, v{g}
    v_lshl_add_u32 v{F['px']}, v{t}, 3, v{F['px']}
    s_and_b32 s{S_T0}, s{S_ROLE}, 1
    s_lshl_b32 s{S_T0}, s{S_T0}, 4
    s_lshr_b32 s{S_T1}, s{S_ROLE}, 2
    s_lshl_b32 s{S_T1}, s{S_T1}, 9
    s_add_u32 s{S_T0}, s{S_T0}, s{S_T1}
    s_and_b32 s{S_T1}, s{S_ROLE}, 2
    s_lshl_b32 s{S_T1}, s{S_T1}, 1
    s_add_u32 s{S_T0}, s{S_T0}, s{S_T1}
    s_add_u32 s{S_T0}, s{S_T0}, 8192
    v_and_b32 v{F['pm']}, 0xffffffef, v{V['l8']}
    v_add_u32 v{F['pm']}, s{S_T0}, v{F['pm']}
    s_lshl_b32 s{S_T0}, s{S_ROLE}, 9
    v_add_u32 v{F['px']}, s{S_T0}, v{F['px']}
    v_lshlrev_b32 v{t}, 4, v{ib}
    v_mov_b32 v{F['mk2']}, 0xffff
    v_lshlrev_b32 v{F['mk2']}, v{t}, v{F['mk2']}
    v_cmp_eq_u32 vcc, v{cc}, v{g}
    v_mov_b32 v{t}, 0
    v_cndmask_b32 v{F['mk2']}, v{t}, v{F['mk2']}, vcc
    v_cmp_eq_u32 vcc, 0, v{par}
    v_mov_b32 v{t+1}, 0xff800000
    v_cndmask_b32 v{F['mk0']}, v{t}, v{F['mk2']}, vcc
    v_cndmask_b32 v{F['mk1']}, v{F['mk2']}, v{t}, vcc
    v_cndmask_b32 v{F['wz']}, v{t+1}, v{t}, vcc
    s_mul_i32 s{S_T1}, s{S_ROLE}, {28*14336}
    s_add_u32 s{S_T1}, s{S_T1}, {L.WT}
    """)
    done = a.newlabel('L_sw')
    fz = cfg['fused']
    if fz:
        a(f"v_min_u32 v{LN+8}, 27, v{LN}\nv_lshlrev_b32 v{LN+8}, 3, v{LN+8}\ns_mul_i32 s{S_T0}, s{S_ROLE}, {14*32}\nv_add_u32 v{LN+8}, s{S_T0}, v{LN+8}")
        wait_flags(a, LN+8, 1, LN+10)
    for w in range(4):
        nx = a.newlabel('L_swn')
        if w < 3: a(f's_cmp_lg_u32 s{S_WAVE}, {w}\ns_cbranch_scc1 {nx}')
        tiles = []
        for u in range(NUNIT[w]):
            b, ga = tile_of(w, u)
            tiles.append(((4*b+ga)*14336, [wreg_half(u*7 + k//2, V['w'], k % 2) for k in range(14)]))
        if fz:
            load_tiles(a, tiles, F['l16'], S_T1, 1, cfg['wfl'], [0])
            wait_flags(a, LN+8, 7, LN+10)
            load_tiles(a, tiles, F['l16'], S_T1, 2, cfg['wfl'], [0])
        else:
            load_tiles(a, tiles, F['l16'], S_T1, None, cfg['wfl'], [0], cfg['scap'])
        if w < 3: a(f's_branch {done}\n{nx}:')
    a(f"""
{done}:
    {team_mode_load(V['mf'], V['mf']+1) if not fz else ''}
    s_mov_b32 s{S_STEP}, 0
    s_mov_b32 s{S_MOFF}, {L.MB_M}
    s_mov_b32 s{S_POFF}, {L.MB_P}
    s_mov_b32 s{S_GOFF}, {L.XN}
    s_lshl_b32 s{S_STMP}, s{S_ROLE}, 2
    s_add_u32 s{S_STMP}, s{S_STMP}, s{S_WAVE}
    s_lshl_b32 s{S_STMP}, s{S_STMP}, 12
    s_add_u32 s{S_STMP}, s{S_STMP}, {L.STAMP}
    """)
    if fz:
        wait_ln(a, LN, 12)
    else:
        nf = a.newlabel('L_nx0')
        a(f's_cmp_lg_u32 s{S_WAVE}, 3\ns_cbranch_scc1 {nf}\ns_waitcnt vmcnt(30)\ns_mov_b32 s{S_T0}, s{S_GOFF}')
        load_1k_run(a, [vr(F['xf'] + 4*k, 4) for k in range(28)], F['l16'], S_T0, cfg['wfl'])
        a.label(nf)
    team_mode(a, V['mf'], V['mf']+1, primed=not fz)

def step_advance(a, gstride, xstride=114688):
    a(f"""
    s_add_u32 s{S_STEP}, s{S_STEP}, 1
    s_add_u32 s{S_MOFF}, s{S_MOFF}, 8192
    s_add_u32 s{S_POFF}, s{S_POFF}, 16384
    s_add_u32 s{S_GOFF}, s{S_GOFF}, {gstride}
    s_add_u32 s{S_XOFF}, s{S_XOFF}, {xstride}
    s_add_u32 s{S_STMP}, s{S_STMP}, 64
    """)

def rowred(a, op, x):
    for m in ('row_ror:8', 'row_ror:4', 'row_ror:2', 'row_ror:1'):
        for r in (x, x+1):
            a(f'{op}_dpp v{r}, v{r}, v{r} {m} row_mask:0xf bank_mask:0xf')

def score_wave(a, w, pf, stamps, cfg):
    V = SV; idx = V['idx']; mf = V['mf']
    top = a.newlabel(f'L_sc{w}_top'); first = a.newlabel(f'L_sc{w}_first')
    nunit = NUNIT[w]
    accof = lambda u: V['acc'] + 4*(u % 6)
    ok = {0: (0, 9, 2), 1: (2,), 2: (0, 9, 1, 2), 3: (4,) if cfg['fin1'] else (7, 8, 4)}[w]
    ST = (lambda k: f's_memtime s[{40+2*k}:{41+2*k}]' if k in ok else '') if stamps else (lambda k: '')
    def stamp(a, stamps, k):
        a(ST(k))
    xf, tf, sa, T = F['xf'], F['tf'], F['sa'], F['t']
    FA, FV = 8, 9
    HA = 11
    HT = ([5, 6, 7, 10] if w < 3 else [T+4, T+5, T+6, T+7])[:cfg['hdepth']]
    def load_x():
        a(f's_mov_b32 s{S_T0}, s{S_GOFF}')
        load_1k_run(a, [vr(xf + 4*k, 4) for k in range(28)], F['l16'], S_T0, cfg['wfl'])
    XW = cfg['xw']
    def dma_x(a=a):
        lo, hi = XW[w]
        a(f"""
        s_and_b32 s{S_T0}, s{S_STEP}, 1
        s_xor_b32 s{S_T0}, s{S_T0}, 1
        s_mul_i32 s{S_T0}, s{S_T0}, 28672
        s_add_u32 s{S_T0}, s{S_T0}, {LDS_X + lo*1024}
        s_add_u32 s{S_T1}, s{S_GOFF}, {28672 + lo*1024 - w*1792}
        """)
        for k in range(hi - lo):
            if k % 4 == 0:
                if k: a(f's_add_u32 s{S_T0}, s{S_T0}, 4096\ns_add_u32 s{S_T1}, s{S_T1}, 4096')
                a(f's_mov_b32 m0, s{S_T0}')
            a(f"buffer_load_dwordx4 v{V['pa']}, {WSRD}, s{S_T1} offen offset:{(k%4)*1024} {cfg['wfl']} lds")
    def read_x():
        a(f"""
        s_and_b32 s{S_T0}, s{S_STEP}, 1
        s_mul_i32 s{S_T0}, s{S_T0}, 28672
        v_add_u32 v{T}, s{S_T0}, v{F['l16']}
        """)
        for k in range(28): a(f'ds_read_b128 v[{xf+4*k}:{xf+4*k+3}], v{T} offset:{LDS_X + k*1024}')
    def zero_acc():
        for u in range(2 if cfg['m2'] else min(6, nunit)):
            a(f'v_mov_b64 v[{accof(u)}:{accof(u)+1}], 0\nv_mov_b64 v[{accof(u)+2}:{accof(u)+3}], 0')
        if w == 3:
            for k in range(4): a(f'v_mov_b64 v[{sa+2*k}:{sa+2*k+1}], 0')
            a(f"v_mov_b32 v{sa+8}, v{F['wz']}\nv_mov_b32 v{sa+9}, v{F['wz']}\nv_mov_b64 v[{sa+10}:{sa+11}], 0")
    a(f"v_lshrrev_b32 v{HA}, 1, v{V['l8']}\nv_min_u32 v{HA}, {55*4}, v{HA}\ns_and_b32 s{S_T0}, s{S_ROLE}, 3\ns_lshl_b32 s{S_T0}, s{S_T0}, 8\ns_add_u32 s{S_T0}, s{S_T0}, 7168\nv_add_u32 v{HA}, s{S_T0}, v{HA}")
    if w == 3:
        if cfg['fused']: load_x()
        a(f'v_and_b32 v{T+12}, {15*8}, v0\nv_lshlrev_b32 v{T+12}, 3, v{T+12}\nv_add_u32 v{T+12}, 6144, v{T+12}')
        if stamps: a('s_mov_b32 s40, 0\ns_mov_b32 s42, 0\ns_mov_b32 s44, 0')
        a(f's_mov_b32 s{S_EOFF}, 0\ns_lshl_b32 s{S_T0}, s{S_ROLE}, 2\ns_add_u32 s{S_T0}, s{S_T0}, 12288\nv_lshlrev_b32 v{T+14}, 4, v0\nv_add_u32 v{T+14}, s{S_T0}, v{T+14}\nv_mov_b32 v{T+15}, 0')
    else:
        a(f"v_add_u32 v{FA}, {LDS_FL + 4*w}, v{F['l16']}\nv_mov_b32 v{FV}, 0")
        for k in range(5): a(f'ds_write_b32 v{FA}, v{FV} offset:{k*1024}')
        a(f'v_and_b32 v4, {31*8}, v0\nv_lshlrev_b32 v4, 3, v4\nv_add_u32 v4, {w*2048}, v4')
    if w < 3 and not cfg['xin']: dma_x()
    if cfg['prio'][w]: a(f"s_setprio {cfg['prio'][w]}")
    zero_acc()
    if cfg.get('wgd'): a('s_memrealtime s[88:89]')
    a(f's_branch {first}')
    if cfg['al'] is not None:
        a.raw('    .p2align 6')
        for _ in range(cfg['al'][w]): a.raw('    s_nop 0')
    a.label(top)
    zero_acc()
    stamp(a, stamps, 0)
    if cfg['msamp'] == 2: a(f'v_mov_b32 v{mf if w < 3 else T+13}, 0')
    if cfg['mdma'] == 2: a(f's_mov_b32 m0, {LDS_M}\ns_add_u32 s{S_T0}, s{S_MOFF}, 4096')
    elif cfg['mdma']: a(f's_mov_b32 m0, {LDS_M + w*2048}\ns_add_u32 s{S_T0}, s{S_MOFF}, {w*2048 - w*1792}')
    if not cfg['cutrig'] or w == 0: wait_hint(a, HA, S_MOFF, HT, delay=cfg['mdelay'], inner=cfg['hinner'])
    if cfg['cutrig'] and cfg['mdma'] != 2: a('s_barrier')
    if cfg['mdma']:
        got = a.newlabel('L_got')
        a(ST(9))
        nk = 2 if w < 3 else 1
        SA_ = (4 if w < 3 else T+12)
        def rnd(r):
            if cfg['msamp'] == 2:
                a(f"s_mov_b64 exec, {0x55555555 if w < 3 else 0x5555}\nbuffer_load_dword v{r}, v{SA_}, {WSRD}, s{S_MOFF} offen sc1\ns_mov_b64 exec, -1")
            elif cfg['msamp']: a(f"buffer_load_dword v{r}, v{SA_}, {WSRD}, s{S_MOFF} offen sc1")
            for k in range(nk): a(f"buffer_load_dwordx4 v{V['pa']}, {WSRD}, s{S_T0} offen offset:{k*1024} sc1 lds")
        r0, r1 = (mf, HT[1]) if w < 3 else (T+13, T+15)
        two = cfg['m2d']
        rnd(r0)
        a(f'v_add_u32 v{FV}, 1, v{FV}' if w < 3 else f's_add_u32 s{S_EOFF}, s{S_EOFF}, 1')
        a(f's_mov_b32 s{S_SAFE}, 0\ns_mov_b32 s{S_SPIN}, 1')
        if two:
            gap = two
            while gap > 0:
                a(f's_nop {min(gap, 16) - 1}'); gap -= 16
            rnd(r1)
        ex = (nk+1) if two else 0
        bad = a.newlabel('L_mbad'); okl = a.newlabel('L_mok')
        a(f"""
        {f's_waitcnt vmcnt({nk + ex})' if cfg['msamp'] else ''}
        {f'v_cmp_eq_u32 vcc, -1, v{r0}' if cfg['msamp'] else ''}
        {f's_cbranch_vccnz {bad}' if cfg['msamp'] else ''}
        s_waitcnt vmcnt({ex}) lgkmcnt(0)
{okl}:
        s_barrier
{got}:
        """)
        def coldb():
            lp = a.newlabel('L_mlp')
            a.label(bad)
            if two:
                a(f's_mov_b32 s{S_SPIN}, 2\ns_waitcnt vmcnt(0) lgkmcnt(0)\nv_cmp_eq_u32 vcc, -1, v{r1}\ns_cbranch_vccz {okl}')
            a.label(lp)
            rnd(r0)
            a(f"""
            s_add_u32 s{S_SPIN}, s{S_SPIN}, 1
            s_waitcnt vmcnt(0) lgkmcnt(0)
            v_cmp_eq_u32 vcc, -1, v{r0}
            s_cbranch_vccz {okl}
            s_cmp_lt_u32 s{S_SPIN}, s{S_LIM}
            s_cbranch_scc1 {lp}
            s_mov_b32 s{S_LIM}, 1
            s_branch {okl}
            """)
        a.cold.append(coldb)
        def coldf():
            a.label(first)
            a(f'v_add_u32 v{FV}, 1, v{FV}' if w < 3 else f's_add_u32 s{S_EOFF}, s{S_EOFF}, 1')
            a(f's_mov_b32 s{S_SAFE}, 1')
            poll_m(a, V)
            a(f's_branch {got}')
        a.cold.append(coldf)
    else:
        a.label(first)
        a(f'v_add_u32 v{FV}, 1, v{FV}' if w < 3 else f's_add_u32 s{S_EOFF}, s{S_EOFF}, 1')
        a(ST(9))
        if cfg['m2']: poll_m2(a, V, cfg['m2'], mf)
        else: poll_m(a, V)
    stamp(a, stamps, 1)
    if stamps and w < 3: a(f's_mov_b32 s{40+2*7}, s{S_SPIN}')
    lq = Q('lgkmcnt', 15)
    mrd = [dsop(f"ds_read_b64_tr_b16 v[{mf+4*b+2*hf}:{mf+4*b+2*hf+1}], v{V['l8']} offset:{LDS_M+b*1024+hf*512}", ('mf', b))
           for b in range(7) for hf in range(2)]
    for x in mrd[:cfg['mpre']]: a(x(lq))
    order = [(u, b) for b in range(7) for u in range(2)] + [(u, b) for u in range(2, nunit) for b in range(7)]
    ms = [(SM(accof(u), mf+4*b, wreg(u*7 + b, V['w']), idx), [('mf', b)] if u == 0 else []) for u, b in order]
    last = {u: i for i, (u, b) in enumerate(order)}
    def smfma(b):
        t4 = tf + 4*b
        return [(f"v_mfma_f32_16x16x32_bf16 v[{sa+8}:{sa+11}], v[{t4}:{t4+3}], v[{mf+4*b}:{mf+4*b+3}], " + f'v[{sa+8}:{sa+11}]', [('tf', b)]),
                (SM(sa, t4, vr(xf + 8*b, 8), idx), []),
                (SM(sa+4, t4, vr(xf + 56 + 8*b, 8), idx), [])]
    def tread(b, hf):
        return dsop(f"ds_read_b64_tr_b16 v[{tf+4*b+2*hf}:{tf+4*b+2*hf+1}], v{V['l8']} offset:{LDS_T+b*1024+hf*512}", ('tf', b))
    phases = [(0, 1, 2), (3, 4)]
    starts = []
    if w == 3:
        for ph in phases:
            starts.append(len(ms))
            for b in ph: ms += smfma(b)
    n = len(ms)
    gp = Gaps(n)
    for k, x in enumerate(mrd[cfg['mpre']:]): gp.put('ds', k, x)
    flag_after = {2, 4} | ({5} if w < 2 else {6})
    def post(u):
        A = accof(u); b, ga = tile_of(w, u)
        va = [f'v_add_f32 v{A}, v{A}, v{A+2}', f'v_add_f32 v{A+1}, v{A+1}, v{A+3}', f'v_cvt_pk_bf16_f32 v{A}, v{A}, v{A+1}']
        ds = [dsop(f"ds_write_b32 v{V['k1']}, v{A} offset:{LDS_T+b*1024+ga*128}", ('k', u))]
        if w < 3 and u in flag_after:
            ds.append(dsop(f'ds_write_b32 v{FA}, v{FV} offset:{sorted(flag_after).index(u)*1024}'))
        return va, ds
    g = 0
    done_at = {}
    for u in range(nunit - (0 if w == 3 else 1)):
        va, ds = post(u)
        g = max(g, last[u] + 3 - (len(va) - 3))
        for x in va: g = gp.put('va', g, x) + 1
        for x in ds: g = gp.put('ds', g, x, excl=True) + 1
        done_at[u] = g
    def zero_in_gaps(u, g):
        A = accof(u)
        for k in range(2):
            gg = g
            while gg < 7*u - 2 and (gp.va[gg] or (gp.ds[gg] and gp.ds[gg][-1][1])): gg += 1
            if gg >= 7*u - 2: gg = max(g, 7*u - 4 + k)
            gp.force('va', gg, f'v_mov_b64 v[{A+2*k}:{A+2*k+1}], 0')
    if cfg['m2']:
        gp.force('ds', cfg['m2w'], 's_waitcnt vmcnt(0)')
        for u in range(2, min(6, nunit)): zero_in_gaps(u, cfg['m2w'])
    for u in range(6, nunit): zero_in_gaps(u, done_at[u-6] + 1)
    if w == 3:
        for pi, ph in enumerate(phases):
            flagrd = f"ds_read_b128 v[{T}:{T+3}], v{F['l16']} offset:{LDS_FL + pi*1024}"
            lead = cfg['lead'][pi]
            g = max(starts[pi] - lead, done_at[max(ph)] if max(ph) < 5 else 0)
            g = min(g, starts[pi]-1)
            if cfg['pnop'][pi]: gp.force('ds', g, f"s_nop {cfg['pnop'][pi]-1}")
            gp.force('ds', g, dsop(flagrd, ('fl', pi)))
            ops = [tread(b, hf) for b in ph for hf in range(2)]
            for k, x in enumerate(ops):
                gp.force('ds', min(g + (k+1)//2, starts[pi]-1), x)
            FM = T+11
            def chk(lq, pi=pi):
                return lq.wait(('fl', pi)) + (f'\nv_min3_u32 v{FM}, v{T}, v{T+1}, v{T+2}' if pi == 0 else
                                              f'\nv_min3_u32 v{T}, v{T}, v{T+1}, v{T+2}\nv_min_u32 v{FM}, v{FM}, v{T}')
            gp.force('va', starts[pi], chk)
    if cfg['xin'] and XW[w][1] > XW[w][0]:
        sub = Asm(); dma_x(sub)
        grp = []; cur = []
        for _, x in sub.items:
            cur.append(x.text)
            if x.text.startswith('buffer'): grp.append('\n'.join(cur)); cur = []
        g = cfg['xin']
        for x in grp: g = gp.put('ds', g, x) + cfg['xstep']
    if w == 0 and cfg['phint'] < 0:
        gp.force('ds', n - 1 + cfg['phint'], f"""s_mov_b64 exec, 15
            buffer_store_dword v{FV}, v4, {WSRD}, s{S_POFF} offen {pf}
            s_mov_b64 exec, -1""")
    emit_stream(a, ms, gp, lq)
    hint = f"""s_mov_b64 exec, 15
        buffer_store_dword v{T+15}, v{T+14}, {WSRD}, s{S_POFF} offen {pf}
        s_mov_b64 exec, -1"""
    if w < 3:
        va, ds = post(nunit-1)
        A_ = accof(nunit-1)
        va = [f'v_pk_add_f32 v[{A_}:{A_+1}], v[{A_}:{A_+1}], v[{A_+2}:{A_+3}]', va[-1]]
        for x in va: a(x)
        for x in ds: a(x(lq))
        a(lq.drain())
        a('s_barrier')
        stamp(a, stamps, 2)
        if cfg['mdma']:
            again = a.newlabel('L_again')
            a(f"""
            {'s_waitcnt vmcnt(0)' if cfg['xin'] else ''}
            s_barrier
            v_mov_b32 v{mf}, {LDS_VD}
            ds_read_b32 v{mf}, v{mf}
            s_waitcnt lgkmcnt(0)
            v_cmp_eq_u32 vcc, v{mf}, v{FV}
            s_cbranch_vccnz {again}
            """)
            def colda():
                a.label(again)
                zero_acc()
                a(f's_branch {first}')
            a.cold.append(colda)
        elif cfg['quiet']: a(f"s_sleep {cfg['quiet']}")
    else:
        s = T
        mx = T+6; z = T+8; EA = tf; B1 = tf+4; B2 = tf+8; D1 = tf+12; D2 = tf+16; rz = T+10
        a(f"""
        v_mov_b64 v[{B1+2}:{B1+3}], 0
        v_mov_b64 v[{B2}:{B2+1}], 0
        v_mov_b32 v{B2+3}, 0
        v_mov_b32 v{EA+3}, 0
        """)
        for _ in range(cfg['b5nop']): a('s_nop 3')
        q = Q('lgkmcnt', 15)
        a(f"ds_read_b128 v[{T}:{T+3}], v{F['l16']} offset:{LDS_FL + 2048}"); q.issue('fl')
        for hf in range(2): a(tread(5, hf)(q))
        stamp(a, stamps, 2)
        a('s_barrier')
        stamp(a, stamps, 3)
        PX = lambda k: a('s_memtime s[52:53]') if stamps and cfg['px'] == k else None
        PX(0)
        for hf in range(2): a(tread(6, hf)(q))
        PX(1)
        if cfg['phint'] == 0: a(hint)
        PX(2)
        fl5 = [f'v_min3_u32 v{T}, v{T}, v{T+1}, v{T+2}', f'v_min_u32 v{FM}, v{FM}, v{T}', f'v_subrev_u32 v{FM}, s{S_EOFF}, v{FM}']
        for b in (5, 6):
            for m, tags in smfma(b):
                for tg in tags: a(q.wait(tg))
                if b == 6 and tags: PX(4)
                a(m)
                if fl5: a(fl5.pop(0))
            if b == 5: PX(3)
        a(ST(7))
        if cfg['phint'] == 1: a(hint)
        e = sa
        redo = a.newlabel('L_smr'); slowmx = a.newlabel('L_sms'); go = a.newlabel('L_smg')
        a(f"""
        s_mov_b32 s{S_T1}, {120 << 23}
        s_mov_b32 s{S_SPIN}, 0
        v_add_f32_dpp v{s+4}, v{sa+10}, v{sa+8} {QP}
        v_add_f32_dpp v{s+5}, v{sa+11}, v{sa+9} {QP}
        v_pk_add_f32 v[{s}:{s+1}], v[{sa}:{sa+1}], v[{sa+2}:{sa+3}]
        v_exp_f32 v{e+8}, v{s+4}
        v_exp_f32 v{e+9}, v{s+5}
        v_pk_add_f32 v[{s+2}:{s+3}], v[{sa+4}:{sa+5}], v[{sa+6}:{sa+7}]
        v_exp_f32 v{e}, v{s}
        v_exp_f32 v{e+1}, v{s+1}
        v_exp_f32 v{e+2}, v{s+2}
        v_exp_f32 v{e+3}, v{s+3}
{redo}:;nf
        v_pk_add_f32 v[{z}:{z+1}], v[{e}:{e+1}], v[{e+8}:{e+9}]
        v_cvt_pk_bf16_f32 v{EA+2}, v{e+8}, v{e+9}
        v_pk_add_f32 v[{z}:{z+1}], v[{z}:{z+1}], v[{e+2}:{e+3}]
        """)
        if cfg['phint'] == 2: a(hint)
        fill = [f'v_cvt_pk_bf16_f32 v{EA+k}, v{e+2*k}, v{e+2*k+1}' for k in range(2)]
        for m in ('row_ror:8', 'row_ror:4', 'row_ror:2', 'row_ror:1'):
            if fill: a(fill.pop(0))
            for r in (z, z+1):
                a(f'v_add_f32_dpp v{r}, v{r}, v{r} {m} row_mask:0xf bank_mask:0xf')
        LO, HI = (127-60) << 23, (127+60) << 23
        a(ST(8))
        a(f"""
        v_rcp_f32 v{mx}, v{z}
        v_rcp_f32 v{mx+1}, v{z+1}
        v_subrev_u32 v{z}, {LO}, v{z}
        v_cvt_pk_bf16_f32 v{rz}, v{mx}, v{mx+1}
        v_and_b32 v{B1}, v{rz}, v{F['mk0']}
        v_and_b32 v{B1+1}, v{rz}, v{F['mk1']}
        v_and_b32 v{B2+2}, v{rz}, v{F['mk2']}
        v_subrev_u32 v{z+1}, {LO}, v{z+1}
        v_mfma_f32_16x16x32_bf16 v[{D1}:{D1+3}], v[{EA}:{EA+3}], v[{B1}:{B1+3}], 0
        v_mfma_f32_16x16x32_bf16 v[{D2}:{D2+3}], v[{EA}:{EA+3}], v[{B2}:{B2+3}], 0
        v_max3_u32 v{z}, v{z}, v{z+1}, v{FM}
        v_cmp_lt_u32 vcc, s{S_T1}, v{z}
        s_cmp_eq_u64 vcc, 0
        s_cselect_b64 exec, -1, 0
        v_cvt_pk_bf16_f32 v{D1}, v{D1}, v{D1+1}
        v_cvt_pk_bf16_f32 v{D1+1}, v{D1+2}, v{D1+3}
        buffer_store_dwordx2 v[{D1}:{D1+1}], v{F['px']}, {WSRD}, s{S_POFF} offen {pf}
        v_cvt_pk_bf16_f32 v{D2}, v{D2}, v{D2+1}
        buffer_store_dword v{D2}, v{F['pm']}, {WSRD}, s{S_POFF} offen {pf}
        s_mov_b64 exec, -1
        s_cbranch_scc0 {slowmx}
        """)
        if cfg['mdma']: a('s_barrier')
        def coldmx():
            a(f'{slowmx}:' + ('\ns_add_u32 s40, s40, 1' if stamps else ''))
            loc = a.newlabel('L_loc'); sf = a.newlabel('L_safe')
            a(f's_cmp_eq_u32 s{S_SPIN}, 0\ns_cbranch_scc1 {loc}')
            if cfg['mdma']:
                a(f"""
                s_cmp_lg_u32 s{S_SAFE}, 0
                s_cbranch_scc1 {sf}
                {'s_add_u32 s86, s86, 1' if cfg.get('wgd') else ''}
                v_mov_b32 v{T}, {LDS_VD}
                v_mov_b32 v{T+1}, s{S_EOFF}
                ds_write_b32 v{T}, v{T+1}
                s_waitcnt lgkmcnt(0)
                s_barrier
                """)
                zero_acc()
                a(f's_branch {first}')
            a(f'{sf}:\ns_mov_b32 s{S_T1}, -1\ns_branch {redo}\n{loc}:\ns_mov_b32 s{S_SPIN}, 1\nv_mov_b32 v{FM}, 0')
            if cfg.get('wgd'): a('s_add_u32 s85, s85, 1')
            for k in range(4): a(f'v_mov_b64 v[{sa+2*k}:{sa+2*k+1}], 0')
            a(f"v_mov_b32 v{sa+8}, v{F['wz']}\nv_mov_b32 v{sa+9}, v{F['wz']}\nv_mov_b64 v[{sa+10}:{sa+11}], 0")
            q2 = Q('lgkmcnt', 15)
            for b in range(7):
                for hf in range(2): a(tread(b, hf)(q2))
            a('s_waitcnt lgkmcnt(0)')
            for b in range(7):
                for m, tags in smfma(b): a(m)
            a(f"""
            v_mov_b64 v[{B1+2}:{B1+3}], 0
            v_mov_b64 v[{B2}:{B2+1}], 0
            v_mov_b32 v{B2+3}, 0
            v_mov_b32 v{EA+3}, 0
            v_add_f32_dpp v{s+4}, v{sa+10}, v{sa+8} {QP}
            v_add_f32_dpp v{s+5}, v{sa+11}, v{sa+9} {QP}
            v_pk_add_f32 v[{s}:{s+1}], v[{sa}:{sa+1}], v[{sa+2}:{sa+3}]
            v_pk_add_f32 v[{s+2}:{s+3}], v[{sa+4}:{sa+5}], v[{sa+6}:{sa+7}]
            v_max3_f32 v{mx}, v{s}, v{s+4}, v{s+2}
            v_max3_f32 v{mx+1}, v{s+1}, v{s+5}, v{s+3}
            """)
            rowred(a, 'v_max_f32', mx)
            for k in range(3): a(f'v_pk_add_f32 v[{s+2*k}:{s+2*k+1}], v[{s+2*k}:{s+2*k+1}], v[{mx}:{mx+1}] neg_lo:[0,1] neg_hi:[0,1]')
            for k in range(6): a(f'v_exp_f32 v{e+(k if k < 4 else k+4)}, v{s+k}')
            a(f's_nop 1\ns_branch {redo}')
        a.cold.append(coldmx)
        stamp(a, stamps, 4)
    if stamps: a('s_memtime s[50:51]\ns_memrealtime s[60:61]')
    stamp_flush(a, stamps, 11, mf)
    step_advance(a, 28672, 458752)
    a(f's_cmp_ge_u32 s{S_STEP}, 63\ns_cbranch_scc1 L_exit')
    if w == 3: read_x()
    elif not cfg['nox'] and not cfg['xin']:
        if cfg['xs']: a(f"s_sleep {cfg['xs']}")
        dma_x()
    if cfg['ssleep'][w]:
        a(f"s_sleep {cfg['ssleep'][w]}")
    a(f's_branch {top}')
    a.flush_cold()

S_YD = 33; S_SAFE = 36; S_CV = 37; S_CU = 38; S_MD = 39
CV = dict(ha=160, one=161, zero=162, cu=163, hw=164, hm=165, nw=172, nr=173, pmr=72, l8=0, pa=1, idx=2, l16=3, pr=4, mw=6, lw=7, rw=8, rr=5, mf=12, acc=40, itm=72, vx=88, uf=96, tw=128, w=176)

def comb_setup(a, stamps, cfg):
    V = CV; LN = 112
    a(f'v_mov_b32 v{LN}, v1')
    team_register(a)
    common_addrs(a, V, LN)
    img_addr(a, V['mw'], LN+1, LN)
    a(f"""
    s_sub_u32 s{S_ROLE}, s{S_ROLE}, 16
    s_lshl_b32 s{S_ROLE}, s{S_ROLE}, 1
    s_and_b32 s{S_T0}, s{S_WAVE}, 1
    s_add_u32 s{S_T1}, s{S_ROLE}, s{S_T0}
    s_lshr_b32 s{S_T0}, s{S_T1}, 2
    s_lshl_b32 s{S_T0}, s{S_T0}, 10
    s_and_b32 s{S_T1}, s{S_T1}, 3
    s_lshl_b32 s{S_T1}, s{S_T1}, 7
    s_add_u32 s{S_T0}, s{S_T0}, s{S_T1}
    s_add_u32 s{S_T0}, s{S_T0}, 8192
    v_add_u32 v{V['mw']}, s{S_T0}, v{V['mw']}
    v_lshlrev_b32 v{V['l16']}, 4, v{LN}
    s_mul_i32 s{S_T0}, s{S_WAVE}, 28672
    s_add_u32 s{S_T0}, s{S_T0}, {LDS_BW}
    v_add_u32 v{V['lw']}, s{S_T0}, v{V['l16']}
    s_lshl_b32 s{S_T0}, s{S_WAVE}, 10
    v_add_u32 v{V['rw']}, s{S_T0}, v{V['l16']}
    v_add_u32 v{V['pr']}, s{S_T0}, v{V['rw']}
    s_and_b32 s{S_T0}, s{S_WAVE}, 1
    s_lshl_b32 s{S_T0}, s{S_T0}, 3
    v_add_u32 v{V['rr']}, s{S_T0}, v{V['l16']}
    s_mul_i32 s{S_T1}, s{S_WAVE}, {4*28}
    s_add_u32 s{S_T1}, s{S_T1}, s{S_ROLE}
    s_add_u32 s{S_T1}, s{S_T1}, 448
    s_mul_i32 s{S_T1}, s{S_T1}, 14336
    s_add_u32 s{S_T1}, s{S_T1}, {L.WT}
    """)
    toff = lambda u: ((u >> 1)*28 + (u & 1))*14336
    fz = cfg['fused']
    tiles = [(toff(u), [wreg_half(u*7 + k//2, V['w'], k % 2) for k in range(14)]) for u in range(6)]
    ltiles = [(toff(u), [vr(12 + (u-6)*116 + 4*k, 4) if u == 6 else vr(120 + 4*k, 4) for k in range(14)]) for u in (6, 7)]
    if fz:
        a(f"""
        v_bfe_u32 v{LN+4}, v{LN}, 2, 2
        v_mul_u32_u24 v{LN+4}, {14*32}, v{LN+4}
        v_and_b32 v{LN+5}, 3, v{LN}
        v_lshl_add_u32 v{LN+4}, v{LN+5}, 3, v{LN+4}
        s_mul_i32 s{S_T0}, s{S_WAVE}, 56
        s_lshr_b32 s{S_SPIN}, s{S_ROLE}, 2
        s_add_u32 s{S_T0}, s{S_T0}, s{S_SPIN}
        s_add_u32 s{S_T0}, s{S_T0}, 7
        s_lshl_b32 s{S_T0}, s{S_T0}, 5
        v_add_u32 v{LN+4}, s{S_T0}, v{LN+4}
        """)
        wait_flags(a, LN+4, 1, 100)
        load_tiles(a, ltiles + tiles, V['l16'], S_T1, 1, cfg['wfl'], [0])
        wait_flags(a, LN+4, 7, 100)
        load_tiles(a, ltiles + tiles, V['l16'], S_T1, 2, cfg['wfl'], [0])
    else:
        load_tiles(a, ltiles + tiles, V['l16'], S_T1, None, cfg['wfl'], [0], cfg['ccap'])
    if not fz:
        a(team_mode_load(104, 105))
        a(f"v_mov_b32 v106, 0\ns_mov_b32 s{S_CU}, {L.CNT_U}\ns_mov_b32 s{S_CV}, {L.CNT_I}")
        a(f'buffer_load_dword v107, v106, {WSRD}, s{S_CU} offen sc1\nbuffer_load_dword v109, v106, {WSRD}, s{S_CV} offen sc1')
    a('s_waitcnt vmcnt(28)')
    for u in (6, 7):
        for k in range(14):
            a(f"ds_write_b128 v{V['lw']}, {ltiles[u-6][1][k]} offset:{(u-6)*14336+k*1024}")
    a('s_waitcnt lgkmcnt(0)')
    if fz: wait_ln(a, LN, 100)
    a(f"""
    s_mov_b32 s{S_STEP}, 0
    s_mov_b32 s{S_MOFF}, {L.MB_M}
    s_mov_b32 s{S_POFF}, {L.MB_P}
    s_lshl_b32 s{S_GOFF}, s{S_ROLE}, 14
    s_lshl_b32 s{S_T0}, s{S_WAVE}, 12
    s_add_u32 s{S_GOFF}, s{S_GOFF}, s{S_T0}
    s_add_u32 s{S_GOFF}, s{S_GOFF}, {L.U}
    s_lshl_b32 s{S_XOFF}, s{S_ROLE}, 12
    s_add_u32 s{S_XOFF}, s{S_XOFF}, {L.VM}
    s_lshr_b32 s{S_STMP}, s{S_ROLE}, 1
    s_add_u32 s{S_STMP}, s{S_STMP}, 16
    s_lshl_b32 s{S_STMP}, s{S_STMP}, 2
    s_add_u32 s{S_STMP}, s{S_STMP}, s{S_WAVE}
    s_lshl_b32 s{S_STMP}, s{S_STMP}, 12
    s_add_u32 s{S_STMP}, s{S_STMP}, {L.STAMP}
    s_waitcnt vmcnt(0)
    """)
    a(f"""
    v_mov_b32 v{V['one']}, 1
    v_mov_b32 v{V['zero']}, 0
    v_mov_b32 v{V['cu']}, 0
    v_and_b32 v{V['ha']}, {120 if cfg['cutrig'] else 24}, v{V['l8']}
    v_lshrrev_b32 v{V['ha']}, 1, v{V['ha']}
    s_lshl_b32 s{S_T0}, s{S_WAVE}, 4
    s_mul_i32 s{S_T0}, s{S_T0}, {0 if cfg['cutrig'] else 1}
    s_and_b32 s{S_T1}, s{S_ROLE}, 6
    s_lshl_b32 s{S_T1}, s{S_T1}, 6
    s_add_u32 s{S_T0}, s{S_T0}, s{S_T1}
    s_add_u32 s{S_T0}, s{S_T0}, 12288
    v_add_u32 v{V['ha']}, s{S_T0}, v{V['ha']}
    s_lshl_b32 s{S_T0}, s{S_ROLE}, 1
    s_add_u32 s{S_T0}, s{S_T0}, s{S_WAVE}
    s_lshl_b32 s{S_T0}, s{S_T0}, 2
    s_add_u32 s{S_T0}, s{S_T0}, {8192 + 7168}
    v_lshlrev_b32 v{V['hw']}, 5, v{V['l8']}
    v_add_u32 v{V['hw']}, s{S_T0}, v{V['hw']}
    s_add_u32 s{S_YD}, s{S_XOFF}, 0x8000000
    v_lshrrev_b32 v{V['hm']}, 1, v{V['l8']}
    v_min_u32 v{V['hm']}, {55*4}, v{V['hm']}
    v_add_u32 v{V['hm']}, 7168, v{V['hm']}
    s_mov_b32 s56, 0
    v_lshrrev_b32 v{V['nw']}, 2, v{V['rw']}
    v_lshrrev_b32 v{V['nr']}, 1, v{V['l8']}
    s_lshl_b32 s{S_MD}, s{S_WAVE}, 11
    s_min_u32 s{S_MD}, s{S_MD}, 5120
    s_mov_b32 s{S_CU}, {L.CNT_U}
    """)
    for k in range(8): a(f"v_mov_b32 v{V['vx']+k}, 0")
    a(f"v_lshrrev_b32 v{V['pmr']}, 1, v{V['rw']}")
    team_mode(a, 104, 105, primed=not fz)
    if cfg['flags']:
        wait_cnt(a, S_CU, 28, 106, primed=not fz)
        a(f's_mov_b32 s{S_CV}, {L.CNT_I}')
        wait_cnt(a, S_CV, 98, 108, primed=not fz)
    for k in range(32): a(f"v_mov_b32 v{V['uf']+k}, 0")

def comb_wave(a, pf, stamps, cfg):
    V = CV; idx = V['idx']; mf = V['mf']; tw = V['tw']; uf = V['uf']; pa = V['pa']
    top = a.newlabel('L_cb_top'); nh0 = a.newlabel('L_nh')
    HT = [10, 11, 166, 167][:cfg['hdepth']]
    def store_vx(base, r):
        return [f"buffer_store_dwordx4 v[{r}:{r+3}], v{V['rw']}, {WSRD}, s{base} offen {cfg['xflags']}",
                f"s_add_u32 s{S_T1}, s{base}, 4096\nbuffer_store_dwordx4 v[{r+4}:{r+7}], v{V['rw']}, {WSRD}, s{S_T1} offen {cfg['xflags']}"]
    lq = Q('lgkmcnt', 15)
    def lread(lam, hf):
        return dsop(f"ds_read_b128 v[{tw+8*(lam%4)+4*hf}:{tw+8*(lam%4)+4*hf+3}], v{V['lw']} offset:{lam*2048+hf*1024}", ('lw', lam))
    def housekeeping_acc(a=a):
        for u in range(8):
            A = V['acc'] + 4*u
            a(f'v_mov_b64 v[{A}:{A+1}], 0\nv_mov_b64 v[{A+2}:{A+3}], 0')
    def housekeeping(a=a, acc=True):
        if acc: housekeeping_acc(a)
        for lam in range(4):
            for hf in range(2): a(lread(lam, hf)(lq))
    uload = lambda k: f"buffer_load_dwordx4 v[{uf+4*k}:{uf+4*k+3}], v{V['l16']}, {WSRD}, s{S_GOFF if k < 4 else S_EOFF} offen offset:{(k%4)*1024} {cfg['xflags']}"
    uorder = [] if cfg['nou'] else [4, 5, 6, 7, 0, 1, 2, 3]
    ue = uorder[:cfg['uearly']]; ul = uorder[cfg['uearly']:]
    housekeeping()
    t = mf
    slow = a.newlabel('L_cms'); back = a.newlabel('L_cmb'); redo = a.newlabel('L_cmr')
    pre = f"""s_add_u32 s{S_EOFF}, s{S_GOFF}, 16384
        s_lshl_b32 s{S_CU}, s{S_STEP}, 7
        s_add_u32 s{S_CU}, s{S_CU}, {L.CNT_U + 128}
        s_add_u32 s{S_T0}, s{S_MOFF}, s{S_MD}
        s_mov_b32 m0, s{S_MD}"""
    a(pre)
    a(f's_branch {top}')
    if cfg['al'] is not None:
        a.raw('    .p2align 6')
        for _ in range(cfg['al'][4]): a.raw('    s_nop 0')
    a(f'{nh0}:\ns_barrier')
    a.label(top)
    stamp(a, stamps, 0)
    if cfg['cdma']:
        a(f"""
        buffer_load_dwordx4 v{V['l16']}, {WSRD}, s{S_T0} offen sc1 lds
        buffer_load_dwordx4 v{V['l16']}, {WSRD}, s{S_T0} offen offset:1024 sc1 lds
        s_mov_b32 s{S_SAFE}, 0
        """)
        if ue: a('s_barrier')
        for k in ue: a(uload(k))
        a(f's_waitcnt vmcnt({len(ue)}) lgkmcnt(0)\ns_barrier\n{back}:')
        def coldr():
            a(f'{redo}:\ns_barrier\ns_mov_b32 s{S_SAFE}, 1\ns_add_u32 s{S_YD}, s{S_XOFF}, 0x8000000')
            if stamps: a(f's_add_u32 s{40+2*8}, s{40+2*8}, 1')
            if cfg.get('wgd'): a('s_add_u32 s84, s84, 1')
            housekeeping()
            poll_m(a, V)
            a(f's_branch {back}')
        a.cold.append(coldr)
    else:
        a(f"""
        buffer_load_dwordx4 v[{t}:{t+3}], v{pa}, {WSRD}, s{S_MOFF} offen sc1
        buffer_load_dwordx4 v[{t+4}:{t+7}], v{pa}, {WSRD}, s{S_MOFF} offen offset:768 sc1
        """)
        if ue: a('s_barrier')
        for k in ue: a(uload(k))
        a(f"""
        s_waitcnt vmcnt({len(ue)+1})
        ds_write_b128 v{pa}, v[{t}:{t+3}]
        v_max3_u32 v{t+8}, v{t}, v{t+1}, v{t+2}
        s_waitcnt vmcnt({len(ue)})
        ds_write_b128 v{pa}, v[{t+4}:{t+7}] offset:768
        v_max3_u32 v{t+8}, v{t+8}, v{t+3}, v{t+4}
        v_max3_u32 v{t+8}, v{t+8}, v{t+5}, v{t+6}
        v_max_u32 v{t+8}, v{t+8}, v{t+7}
        v_cmp_eq_u32 vcc, -1, v{t+8}
        s_cbranch_vccnz {slow}
        s_waitcnt lgkmcnt(0)
        s_barrier
{back}:
        """)
        def coldm():
            a.label(slow)
            if stamps: a(f's_add_u32 s{40+2*8}, s{40+2*8}, 1')
            poll_m(a, V)
            a(f's_branch {back}')
        a.cold.append(coldm)
    lq.drain()
    stamp(a, stamps, 1)
    mrd = [dsop(f"ds_read_b64_tr_b16 v[{mf+4*b+2*hf}:{mf+4*b+2*hf+1}], v{V['l8']} offset:{LDS_M+b*1024+hf*512}", ('mf', b))
           for b in range(7) for hf in range(2)]
    for x in mrd[:cfg['mpre']]: a(x(lq))
    ms = []; last = {}
    rorder = [(u, b) for b in range(7) for u in range(2)] + [(u, b) for u in range(2, 6) for b in range(7)]
    rb = 0
    for p in range(56):
        if p % 4 == 3:
            lam = p // 4; u = 6 + lam // 7; b = lam % 7
            ms.append((SM(V['acc']+4*u, mf+4*b, vr(tw+8*(lam % 4), 8), idx), [('mf', b), ('lw', lam)]))
        else:
            u, b = rorder[rb]; rb += 1
            ms.append((SM(V['acc']+4*u, mf+4*b, wreg(u*7+b, V['w']), idx), [('mf', b)]))
        last[u] = p
    gp = Gaps(56)
    for k, x in enumerate(mrd[cfg['mpre']:]): gp.put('ds', k, x)
    for lam in range(4, 14):
        g = 4*(lam-4) + 3
        g = gp.put('ds', g, lread(lam, 0)) + 1
        gp.put('ds', g, lread(lam, 1))
    g = 0
    for k in ul: g = gp.put('va', g, uload(k)) + cfg['ustep']
    if cfg['flags']:
        g = gp.put('va', g, f"buffer_load_dword v{V['cu']}, v{V['zero']}, {WSRD}, s{S_CU} offen sc1") + 1
    for x in store_vx(S_YD, V['vx']): g = gp.put('va', g, x) + cfg['ustep']
    assert g - cfg['ustep'] < min(last.values()) + 3
    for k in range(len(HT)-1 if cfg['psl'] is None else 0):
        gp.put('ds', 55 - cfg['hpre'] + 4*k, f"buffer_load_dword v{HT[k]}, v{V['ha']}, {WSRD}, s{S_POFF} offen sc1")
    def post(u):
        A = V['acc'] + 4*u; hl = u >> 1; ctl = u & 1
        return ([f'v_pk_add_f32 v[{A}:{A+1}], v[{A}:{A+1}], v[{A+2}:{A+3}]'] if cfg['cpk'] else [f'v_add_f32 v{A}, v{A}, v{A+2}', f'v_add_f32 v{A+1}, v{A+1}, v{A+3}']) + [
                f"v_cvt_pk_bf16_f32 v{V['vx']+4*ctl+hl}, v{A}, v{A+1}"]
    tail = []; gprev = 0
    for u in sorted(last, key=lambda u: last[u]):
        g = max(last[u] + 3, gprev)
        if g + 4 >= 56: tail += post(u); continue
        for x in post(u): g = gp.put('va', g, x) + 1
        gprev = g
        if u == 0: done0 = g
    if cfg['cdma']:
        A0 = V['acc']; N = 168
        g = gp.put('va', done0, f'v_add_f32 v9, v{A0}, v{A0+1}') + 1
        g = gp.put('ds', g, dsop(f"ds_write_b32 v{V['nw']}, v9 offset:{LDS_NAN}", 'nw')) + 4
        gp.force('ds', g, dswait('nw', 's_barrier'))
        g = gp.put('ds', g+1, dsop(f"ds_read2st64_b32 v[{N}:{N+1}], v{V['nr']} offset0:{LDS_NAN//256} offset1:{LDS_NAN//256+1}")) + 1
        g = gp.put('ds', g, dsop(f"ds_read2st64_b32 v[{N+2}:{N+3}], v{V['nr']} offset0:{LDS_NAN//256+2} offset1:{LDS_NAN//256+3}", 'nr')) + 4
        g = gp.put('va', g, dswait('nr', f'v_add_f32 v{N}, v{N}, v{N+2}')) + 1
        g = gp.put('va', g, f'v_add_f32 v{N+1}, v{N+1}, v{N+3}') + 1
        g = gp.put('va', g, f'v_cmp_u_f32 vcc, v{N}, v{N+1}')
        assert g < 54
    emit_stream(a, ms, gp, lq)
    if cfg['cdma']:
        nb = a.newlabel('L_cnb'); nx = a.newlabel('L_cnx')
        a(f's_cbranch_vccnz {nb};nf\n{nx}:;nf')
        a.cold.append(lambda: a(f'{nb}:\ns_nop 7\ns_cmp_eq_u32 s{S_SAFE}, 0\ns_cbranch_scc1 {redo}\ns_branch {nx}'))
    for x in tail: a(x)
    lastl = a.newlabel('L_cbl')
    a(f's_cmp_ge_u32 s{S_STEP}, 63\ns_cbranch_scc1 {lastl}')
    def coldl():
        a.label(lastl)
        for x in store_vx(S_XOFF, V['vx']): a(x)
        a('s_branch L_exit')
    a.cold.append(coldl)
    stamp(a, stamps, 2)
    A = tw
    a(f's_add_u32 s{S_T0}, s{S_POFF}, 8192\ns_mov_b32 s{S_YD}, s{S_XOFF}')
    if stamps and cfg['sdrain']: a('s_waitcnt vmcnt(0)')
    stamp(a, stamps, 3)
    if cfg['psl'] is None:
        jn = a.newlabel('L_jn')
        a(f's_cmp_lg_u32 s{S_WAVE}, 0\ns_cbranch_scc1 {jn}')
        wait_hint(a, V['ha'], S_POFF, HT, delay=cfg['pdelay'], inner=cfg['hinner'], primed=True)
        a(f'{jn}:\ns_barrier')
    else:
        stamp_flush(a, stamps, 11, mf+24)
        if cfg['pw'] is not None:
            tot = cfg['pw'] - (16*cfg['fl'] if stamps else 0)
            for k in range(5): a(f's_nop {max(1, (tot + k) // 5) - 1}')
        else:
            if cfg['psl'] - (cfg['fl'] if stamps else 0) > 0: a(f"s_sleep {cfg['psl'] - (cfg['fl'] if stamps else 0)}")
            if cfg['pdelay']: a(f"s_nop {cfg['pdelay']-1}")
        if cfg['pbar']: a('s_barrier')
    stamp(a, stamps, 6)
    l = a.newlabel('L_pp'); d = a.newlabel('L_ppd'); retry = a.newlabel('L_ppr'); t = 9
    R = tw + 8
    B3 = [vr(uf, 8), vr(uf+8, 8), vr(V['itm'], 8)], [vr(uf+16, 8), vr(uf+24, 8), vr(V['itm']+8, 8)]
    mh = f"""s_mov_b64 exec, 15
        buffer_store_dword v{V['zero']}, v{V['hw']}, {WSRD}, s{S_MOFF} offen {pf}
        s_mov_b64 exec, -1"""
    def issue(p):
        a(f"""
        buffer_load_dwordx4 v[{p}:{p+3}], v{V['pr']}, {WSRD}, s{S_POFF} offen sc1
        buffer_load_dwordx4 v[{p+4}:{p+7}], v{V['pr']}, {WSRD}, s{S_POFF} offen offset:1024 sc1
        buffer_load_dwordx2 v[{p+8}:{p+9}], v{V['pmr']}, {WSRD}, s{S_T0} offen sc1
        """)
    def zero():
        for k in range(4): a(f'v_mov_b64 v[{A+2*k}:{A+2*k+1}], 0')
    def attempt(p, behind, hint_here):
        ex = behind
        a(f's_add_u32 s{S_SPIN}, s{S_SPIN}, 1')
        for k in range(3):
            a(f's_waitcnt vmcnt({2-k+ex})')
            S32 = lambda acc, B: f'v_smfmac_f32_16x16x32_bf16 v[{acc}:{acc+3}], v[{p+8}:{p+9}], {B}, v{idx}'
            a(SM(A, p+4*k, B3[0][k], idx) if k < 2 else S32(A, vr(V['vx'], 4)))
            a(f'v_max_u32 v{t}, v{p}, v{p+2}' if k == 0 else f'v_max3_u32 v{t}, v{t}, v{p+4*k}, v{p+4*k+(2 if k < 2 else 1)}')
            a(SM(A+4, p+4*k, B3[1][k], idx) if k < 2 else S32(A+4, vr(V['vx']+4, 4)))
            if hint_here and k == cfg['mhk']:
                if cfg['mhint'] == 3:
                    a(f"""v_cmp_eq_u32 vcc, -1, v{t}
                    s_cmp_eq_u64 vcc, 0
                    s_cselect_b64 exec, 15, 0
                    buffer_store_dword v{V['zero']}, v{V['hw']}, {WSRD}, s{S_MOFF} offen {pf}
                    s_mov_b64 exec, -1""")
                else: a(mh)
                ex += 1
        a(f'v_cmp_eq_u32 vcc, -1, v{t}')
    a(f's_mov_b32 s{S_SPIN}, 0')
    issue(mf)
    zero()
    housekeeping_acc()
    if cfg['p2']:
        gap = cfg['p2'] - 16
        while gap > 0:
            a(f's_nop {min(gap, 16) - 1}'); gap -= 16
        issue(mf+12)
    if cfg['mhint'] == 0:
        for _ in range(cfg['mhnop']): a('s_nop 3')
        a(mh)
    attempt(mf, (3 if cfg['p2'] else 0) + (cfg['mhint'] == 0), cfg['mhint'] >= 2)
    a(f's_cbranch_vccnz {retry};nf\n{d}:;nf')
    def coldp():
        a(f'{retry}:\ns_nop 7')
        if cfg['p2']:
            a.label(l)
            issue(mf)
            zero()
            attempt(mf+12, 3, cfg['mhint'] == 3)
            a(f's_cbranch_vccz {d}')
            issue(mf+12)
            zero()
            attempt(mf, 3, cfg['mhint'] == 3)
        else:
            a.label(l)
            issue(mf)
            zero()
            attempt(mf, 0, cfg['mhint'] == 3)
        a(f"""
        s_cbranch_vccz {d}
        s_cmp_lt_u32 s{S_SPIN}, s{S_LIM}
        s_cbranch_scc1 {l}
        s_mov_b32 s{S_LIM}, 1
        s_branch {d}
        """)
    a.cold.append(coldp)
    stamp(a, stamps, 4)
    if cfg['mhint'] == 1: a(mh)
    if stamps: a(f's_mov_b32 s{40+2*7}, s{S_SPIN}')
    if cfg.get('wgd'): a(f's_add_u32 s83, s83, s{S_SPIN}')
    if cfg['flags']: a(f"v_readfirstlane_b32 s{S_CV}, v{V['cu']}")
    hiw = a.newlabel('L_cbh'); nh = nh0; ny = a.newlabel('L_cny')
    def chores():
        if cfg['flags']:
            slow2 = a.newlabel('L_us'); back2 = a.newlabel('L_ub')
            a(f's_cmp_lt_u32 s{S_CV}, 28\ns_cbranch_scc1 {slow2}\n{back2}:')
            def coldu():
                a.label(slow2)
                wait_cnt(a, S_CU, 28, 174)
                a(f's_branch {back2}')
            a.cold.append(coldu)
        step_advance(a, 458752)
        a(pre)
        housekeeping(a, False)
    def hi_tail():
        w2 = a.newlabel('L_cw2')
        ld = lambda r: f"buffer_load_dword v{r}, v{V['hm']}, {WSRD}, s{S_T1} offen sc1"
        a(f"""
{hiw}:
        s_add_u32 s{S_T1}, s{S_MOFF}, 8192
        s_cmp_eq_u32 s{S_WAVE}, 2
        s_cbranch_scc1 {w2}
        {ld(HT[0])}
        s_waitcnt lgkmcnt(0)
        {ld(HT[1])}
        s_barrier
        {ld(HT[2])}
        """)
        stamp(a, stamps, 5)
        chores()
        wait_hint(a, V['hm'], S_MOFF, HT, delay=cfg['cdelay'], inner=cfg['hinner'], primed=True)
        a(f's_branch {nh}\n{w2}:\ns_waitcnt lgkmcnt(0)\ns_barrier')
        if cfg['cq']: a(f"s_sleep {cfg['cq']}")
        stamp(a, stamps, 5)
        chores()
        a(f's_branch {nh}')
    a.cold.append(hi_tail)
    a(f"""
    v_pk_add_f32 v[{R}:{R+1}], v[{A}:{A+1}], v[{A+2}:{A+3}]
    v_pk_add_f32 v[{R+2}:{R+3}], v[{A+4}:{A+5}], v[{A+6}:{A+7}]
    ds_write_b128 v{V['rw']}, v[{R}:{R+3}] offset:{LDS_RED}
    s_cmp_ge_u32 s{S_WAVE}, 2
    s_cbranch_scc1 {hiw}
    s_waitcnt lgkmcnt(0)
    s_barrier
    ds_read_b64 v[{R}:{R+1}], v{V['rr']} offset:{LDS_RED}
    ds_read_b64 v[{R+2}:{R+3}], v{V['rr']} offset:{LDS_RED+1024}
    ds_read_b64 v[{R+4}:{R+5}], v{V['rr']} offset:{LDS_RED+2048}
    ds_read_b64 v[{R+6}:{R+7}], v{V['rr']} offset:{LDS_RED+3072}
    s_waitcnt lgkmcnt(2)
    v_pk_add_f32 v[{R}:{R+1}], v[{R}:{R+1}], v[{R+2}:{R+3}]
    s_waitcnt lgkmcnt(0)
    v_pk_add_f32 v[{R+4}:{R+5}], v[{R+4}:{R+5}], v[{R+6}:{R+7}]
    v_pk_add_f32 v[{R}:{R+1}], v[{R}:{R+1}], v[{R+4}:{R+5}]
    v_cvt_pk_bf16_f32 v9, v{R}, v{R+1}
    buffer_store_dword v9, v{V['mw']}, {WSRD}, s{S_MOFF} offen {pf}
    """)
    stamp(a, stamps, 5)
    a(f"""
    s_cmp_lt_u32 s{S_STEP}, 62
    s_cbranch_scc1 {ny}
    s_add_u32 s{S_T0}, s{S_MOFF}, {L.MB_Y - L.MB_M}
    buffer_store_dword v9, v{V['mw']}, {WSRD}, s{S_T0} offen sc1
{ny}:
    """)
    chores()
    a(f's_branch {nh}')
    while a.cold: a.flush_cold()

def helper_cu(a, cfg):
    V = dict(l8=0, pa=1, idx=2, mf=12); LN = 112
    NP = cfg['npf']; D = cfg['pfd']; PER = cfg['pfper']
    a(f'v_mov_b32 v{LN}, v1')
    team_register(a)
    common_addrs(a, V, LN)
    a(f"""
    v_lshlrev_b32 v4, 7, v{LN}
    v_mov_b32 v3, v4
    v_mov_b32 v5, 0
    v_mov_b32 v6, 14
    s_sub_u32 s{S_ROLE}, s{S_ROLE}, 30
    s_lshl_b32 s{S_EOFF}, s{S_ROLE}, 2
    s_add_u32 s{S_EOFF}, s{S_EOFF}, s{S_WAVE}
    s_mov_b32 s{S_STEP}, 0
    s_mov_b32 s{S_MOFF}, {L.MB_M + 8192}
    s_mov_b32 s{S_CV}, {L.DUMMY + 0x200000}
    s_mul_i32 s{S_GOFF}, s{S_EOFF}, 7168
    s_add_u32 s{S_GOFF}, s{S_GOFF}, {L.XN}
    s_mov_b32 s{S_POFF}, 28672
    s_cmp_lt_u32 s{S_EOFF}, 4
    s_cbranch_scc1 H_t
    s_sub_u32 s{S_GOFF}, s{S_EOFF}, 4
    s_mul_i32 s{S_GOFF}, s{S_GOFF}, 6144
    s_add_u32 s{S_GOFF}, s{S_GOFF}, {L.MB_P}
    s_mov_b32 s{S_POFF}, 16384
    s_cmp_lt_u32 s{S_EOFF}, 6
    s_cbranch_scc1 H_t
    s_mov_b32 s{S_GOFF}, {L.MB_M + 8192}
    s_mov_b32 s{S_POFF}, 8192
    s_cmp_lt_u32 s{S_EOFF}, {7 if cfg['tlb'] else 8}
    s_cbranch_scc1 H_t
    s_mov_b32 s{S_GOFF}, {L.U + cfg['tlb']*458752}
    s_mov_b32 s{S_POFF}, 458752
    v_mul_u32_u24 v3, 7168, v{LN}
H_t:
    """)
    def mtouch():
        a(f'buffer_load_dword v7, v3, {WSRD}, s{S_GOFF} offen sc1\ns_add_u32 s{S_GOFF}, s{S_GOFF}, s{S_POFF}')
    if cfg['fused']: wait_ln(a, LN, 100)
    team_mode(a, V['mf'], V['mf']+1)
    a(f's_mov_b32 s{S_LIM}, {SPIN_MAX*4}')
    a(f"""
    s_getpc_b64 s[70:71]
H_pc:
    s_lshl_b32 s{S_T0}, s{S_EOFF}, 12
    v_lshrrev_b32 v10, 1, v4
    s_add_u32 s70, s70, s{S_T0}
    s_addc_u32 s71, s71, 0
    s_add_u32 s70, s70, L_nothelp-H_pc
    s_addc_u32 s71, s71, 0
    s_mov_b32 s72, s{S_GOFF}
    s_mov_b32 s{S_SPIN}, 0
    s_mov_b32 s73, {L.MB_P}
H_warm:
    s_mov_b32 s{S_GOFF}, s72
    global_load_dword v8, v10, s[70:71] sc1
    """)
    for _ in range(D+1): mtouch()
    a(f"""
    buffer_load_dword v9, v5, {WSRD}, s73 offen sc1
    s_add_u32 s{S_SPIN}, s{S_SPIN}, 1
    s_waitcnt vmcnt(0)
    v_cmp_eq_u32 vcc, -1, v9
    s_cbranch_vccz H_warmed
    s_sleep 8
    s_cmp_lt_u32 s{S_SPIN}, s{S_LIM}
    s_cbranch_scc1 H_warm
H_warmed:
    """)
    mul = {2: (128, 8), 3: (86, 8)}[PER]
    for k in range(NP):
        a(f"""
        s_add_u32 s{S_T0}, s{S_EOFF}, {8*k}
        s_min_u32 s{S_T0}, s{S_T0}, {14*PER-1}
        s_mul_i32 s{S_T1}, s{S_T0}, {mul[0]}
        s_lshr_b32 s{S_T1}, s{S_T1}, {mul[1]}
        s_mul_i32 s{S_T1}, s{S_T1}, {4-PER}
        s_add_u32 s{S_T0}, s{S_T0}, s{S_T1}
        s_lshl_b32 s{60+k}, s{S_T0}, 13
        s_add_u32 s{60+k}, s{60+k}, {L.U}
        """)
    def utouch():
        for k in range(NP):
            a(f'buffer_load_dword v{32+k}, v4, {WSRD}, s{60+k} offen sc1\ns_add_u32 s{60+k}, s{60+k}, 458752')
    a(f's_mov_b32 s{S_CU}, {L.CNT_U}')
    for _ in range(D if NP else 0):
        if cfg['flags']: wait_cnt(a, S_CU, 28, 30)
        utouch()
        a(f's_add_u32 s{S_CU}, s{S_CU}, 128')
    t = V['mf']; pa = V['pa']
    sk = a.newlabel('H_sk'); sk2 = a.newlabel('H_sk'); ok = a.newlabel('H_ok')
    a(f"""
H_top:
    s_mov_b32 s{S_SPIN}, 0
H_poll:
    buffer_load_dwordx4 v[{t}:{t+3}], v{pa}, {WSRD}, s{S_MOFF} offen sc1
    buffer_load_dwordx4 v[{t+4}:{t+7}], v{pa}, {WSRD}, s{S_MOFF} offen offset:768 sc1
    buffer_load_dword v30, v5, {WSRD}, s{S_CU} offen sc1
    s_add_u32 s{S_SPIN}, s{S_SPIN}, 1
    s_waitcnt vmcnt(0)
    v_max3_u32 v{t+8}, v{t}, v{t+1}, v{t+2}
    v_max3_u32 v{t+8}, v{t+8}, v{t+3}, v{t+4}
    v_max3_u32 v{t+8}, v{t+8}, v{t+5}, v{t+6}
    v_max_u32 v{t+8}, v{t+8}, v{t+7}
    v_readfirstlane_b32 s{S_T0}, v30
    v_cmp_eq_u32 vcc, -1, v{t+8}
    s_cbranch_vccz {ok}
    s_sleep {cfg['hsleep']}
    s_cmp_lt_u32 s{S_SPIN}, s{S_LIM}
    s_cbranch_scc1 H_poll
    s_mov_b32 s{S_LIM}, 1
{ok}:
    s_cmp_lg_u32 s{S_ROLE}, 0
    s_cbranch_scc1 {sk}
    s_add_u32 s{S_T1}, s{S_MOFF}, {L.MB_Y - L.MB_M}
    buffer_store_dwordx4 v[{t}:{t+3}], v{pa}, {WSRD}, s{S_T1} offen sc1
    buffer_store_dwordx4 v[{t+4}:{t+7}], v{pa}, {WSRD}, s{S_T1} offen offset:768 sc1
{sk}:
    s_cmp_ge_u32 s{S_STEP}, {63 - D}
    s_cbranch_scc1 {sk2}
    """)
    mtouch()
    if NP:
        sk3 = a.newlabel('H_sk'); sk4 = a.newlabel('H_sk')
        if cfg['flags']: a(f's_cmp_lt_u32 s{S_T0}, 28\ns_cbranch_scc1 {sk3}')
        utouch()
        a(f's_branch {sk4}\n{sk3}:')
        for k in range(NP): a(f's_add_u32 s{60+k}, s{60+k}, 458752')
        a(f'{sk4}:\ns_add_u32 s{S_CU}, s{S_CU}, 128')
    a(f"""
{sk2}:
    s_add_u32 s{S_STEP}, s{S_STEP}, 1
    s_add_u32 s{S_MOFF}, s{S_MOFF}, 8192
    s_cmp_lt_u32 s{S_STEP}, 62
    s_cbranch_scc1 H_top
    s_branch L_exit
    """)

DEFAULT_CFG = dict(ba=[35, 35, 34, 34], bak=3, bb=[53, 53, 0, 0], xflags='', ssleep=[2, 2, 2, 0], csleep=0, psleep=0, touch=1,
                   nou=0, nox=0, cflush=1, flags=0, ustep=3, hsleep=2, mdelay=12, pdelay=1, phint=9, lead=[4, 1], pnop=[0, 8], b5nop=2, npf=0, pfper=2, hdepth=4, hpre=10, psl=3, fl=1, mhk=0, px=9, quiet=7, cq=1, al=[0, 0, 0, 3, 1], prio=[0, 0, 0, 0], wfl='', fused=0, cpk=0, pw=45, fin1=0, tlb=0, xin=0, xstep=3, xs=2, xw=[(0, 9), (9, 18), (18, 28), (0, 0)], pbar=1, scap=None, ccap=None, m2=0, mdma=1, m2d=0, msamp=0, cdma=1, m2w=10, p2=32, cutrig=1, hinner=2, uearly=4, mhint=1, mhnop=0, sdrain=0, pfd=3, mpre=6, chint=1, cdelay=20)

def team_body(a, stamps=False, cfg=None):
    cfg = dict(DEFAULT_CFG, **(cfg or {}))
    a(f's_cmp_lt_u32 s{S_ROLE}, 30\ns_cbranch_scc1 L_nothelp')
    helper_cu(a, cfg)
    a.label('L_nothelp')
    a(f's_cmp_ge_u32 s{S_ROLE}, 16\ns_cbranch_scc1 L_comb')
    score_setup(a, stamps, cfg)
    for fast in (1, 0):
        a(f's_cmp_lg_u32 s{S_FAST}, {fast}\ns_cbranch_scc1 L_sc_next{fast}')
        for w in range(4):
            if w < 3:
                a(f's_cmp_lg_u32 s{S_WAVE}, {w}\ns_cbranch_scc1 L_sc{fast}_n{w}')
            score_wave(a, w, '' if fast else 'sc1', stamps, cfg)
            if w < 3: a.label(f'L_sc{fast}_n{w}')
        a.label(f'L_sc_next{fast}')
    a('s_branch L_exit')
    a.label('L_comb')
    comb_setup(a, stamps, cfg)
    for fast in (1, 0):
        a(f's_cmp_lg_u32 s{S_FAST}, {fast}\ns_cbranch_scc1 L_cb_next{fast}')
        comb_wave(a, '' if fast else 'sc1', stamps, cfg)
        a.label(f'L_cb_next{fast}')
    a('s_branch L_exit')
```

```python
from asmlib import *
import layout as L
from team import *
import prep

A_SEG = 36; A_Z = 37; A_TX = 38; A_U = 39; A_S0 = 40; A_S1 = 41; A_XS = 44
AL_M = 0
AL_E = 8192
AL_ST = 24576
AL_X = 28672
AV = dict(l8=0, pa=1, idx=2, l16=3, mf=12)
TXV = lambda hl, kb: f'a[{(hl*14+kb)*4}:{(hl*14+kb)*4+3}]'
TX8 = lambda hl, b: f'a[{(hl*14+2*b)*4}:{(hl*14+2*b)*4+7}]'
def oreg(p, c):
    i = c*8 + p
    return ('v', 64 + 4*i) if i < 48 else ('a', 224 + 4*(i-48))

def dma_run(a, n, vaddr, sbase, lds_base_sgpr, flags):
    for k in range(n):
        if k % 4 == 0:
            if k: a(f's_add_u32 s{sbase}, s{sbase}, 4096\ns_add_u32 s{lds_base_sgpr}, s{lds_base_sgpr}, 4096')
            a(f's_mov_b32 m0, s{lds_base_sgpr}')
        a(f'buffer_load_dwordx4 v{vaddr}, {WSRD}, s{sbase} offen offset:{(k%4)*1024} {flags} lds')

def attn_role(a, cfg):
    V = AV; xfl = cfg['xflags']; LN = 40
    mf = V['mf']
    def rt(k):
        if cfg.get('diag'): a(f's_memrealtime s[{60+2*k}:{61+2*k}]')
    a(f's_mov_b32 s{S_LIM}, {SPIN_MAX*8}')
    if cfg.get('ticket'):
        a(f"""
A_top:
        v_mov_b32 v4, {LDS_ROLE}
        s_cmp_lg_u32 s{S_WAVE}, 0
        s_barrier
        s_cbranch_scc1 A_tw
        s_mov_b64 exec, 1
        s_lshl_b32 s{S_T0}, s78, 7
        s_add_u32 s{S_T0}, s{S_T0}, {L.CNT_TK7}
        v_mov_b32 v2, s{S_T0}
        v_mov_b32 v3, 1
        buffer_atomic_add v3, v2, {WSRD}, 0 offen sc0
        s_waitcnt vmcnt(0)
        ds_write_b32 v4, v3
        s_mov_b64 exec, -1
        s_waitcnt lgkmcnt(0)
A_tw:
        s_barrier
        ds_read_b32 v2, v4
        s_waitcnt lgkmcnt(0)
        v_readfirstlane_b32 s{S_ROLE}, v2
        s_mul_i32 s{S_ROLE}, s{S_ROLE}, 7
        s_add_u32 s{S_ROLE}, s{S_ROLE}, s78
        s_cmp_ge_u32 s{S_ROLE}, 128
        s_cbranch_scc1 L_exit
        """)
    a(f"""
    v_mbcnt_lo_u32_b32 v{LN}, -1, 0
    v_mbcnt_hi_u32_b32 v{LN}, -1, v{LN}
    s_load_dwordx2 s[4:5], s[0:1], 0
    s_lshr_b32 s{A_SEG}, s{S_ROLE}, 1
    s_and_b32 s{A_Z}, s{S_ROLE}, 1
    """)
    common_addrs(a, V, LN)
    a(f"""
    v_lshlrev_b32 v{V['l16']}, 4, v{LN}
    s_waitcnt lgkmcnt(0)
    """)
    prep.srd(a, A_XS, 4, 2048*896)
    q, g, t = LN+1, LN+2, LN+3
    a(f"""
    v_and_b32 v{q}, 15, v{LN}
    v_lshrrev_b32 v{g}, 4, v{LN}
    s_lshl_b32 s{S_T0}, s{A_Z}, 4
    v_add_u32 v{t}, s{S_T0}, v{q}
    v_lshlrev_b32 v{t+1}, 2, v{g}
    v_mov_b32 v{t+2}, 0
    v_mov_b32 v{t+3}, 0xff800000
    """)
    for k in range(8):
        a(f"""
        v_add_u32 v{t+4}, {(k>>2)*16 + (k&3)}, v{t+1}
        v_cmp_gt_u32 vcc, v{t+4}, v{t}
        v_cndmask_b32 v{4+k}, v{t+2}, v{t+3}, vcc
        """)
    rt(0)
    a(f"""
    s_lshl_b32 s{A_S0}, s{A_SEG}, 7
    s_add_u32 s{A_S0}, s{A_S0}, {L.CNT_T}
    """)
    if cfg['flags']: wait_cnt(a, A_S0, 28, t)
    a(f"""
    s_mul_i32 s{A_S0}, s{A_SEG}, 28672
    s_mul_i32 s{A_S1}, s{S_WAVE}, 7168
    s_add_u32 s{A_S0}, s{A_S0}, s{A_S1}
    s_add_u32 s{A_S0}, s{A_S0}, {L.XN}
    s_add_u32 s{A_S1}, s{A_S1}, {AL_X}
    """)
    dma_run(a, 7, V['l16'], A_S0, A_S1, cfg.get('wfl', ''))
    a(f"""
    s_mul_i32 s{A_TX}, s{A_SEG}, 458752
    s_mov_b32 s{A_U}, s{A_TX}
    s_mul_i32 s{S_T0}, s{S_WAVE}, {4*28672}
    s_add_u32 s{A_TX}, s{A_TX}, s{S_T0}
    s_mul_i32 s{S_T0}, s{A_Z}, 14336
    s_add_u32 s{A_TX}, s{A_TX}, s{S_T0}
    s_add_u32 s{A_TX}, s{A_TX}, {L.TX}
    s_mul_i32 s{S_T0}, s{S_WAVE}, {7*16384}
    s_add_u32 s{A_U}, s{A_U}, s{S_T0}
    s_add_u32 s{A_U}, s{A_U}, {L.U}
    """)
    def load_tx():
        for hl in range(4):
            a(f's_add_u32 s{S_T0}, s{A_TX}, {hl*28672}')
            load_1k_run(a, [TXV(hl, kb) for kb in range(14)], V['l16'], S_T0, xfl)
    load_tx()
    a('s_waitcnt vmcnt(56)\ns_barrier')
    KF = 64; SC = 176; LM = 48
    for kt in range(2):
        for kb in range(14):
            a(f"ds_read_b128 v[{KF+(kt*14+kb)*4}:{KF+(kt*14+kb)*4+3}], v{V['l16']} offset:{AL_X+kt*14336+kb*1024}")
    a('s_waitcnt lgkmcnt(0)')
    for hl in range(4):
        a(f's_waitcnt vmcnt({14*(3-hl)})')
        for kb in range(14):
            for kt in range(2):
                c = SC + (hl*2+kt)*4; k = KF+(kt*14+kb)*4
                a(f'v_mfma_f32_16x16x32_bf16 v[{c}:{c+3}], v[{k}:{k+3}], {TXV(hl,kb)}, ' + ('0' if kb == 0 else f'v[{c}:{c+3}]'))
    a(f"""
    s_lshl_b32 s{A_S0}, s{A_SEG}, 7
    s_add_u32 s{A_S0}, s{A_S0}, {L.CNT_U}
    """)
    if cfg['flags']: wait_cnt(a, A_S0, 28, t)
    vq = Q('vmcnt', 63)
    NR = 56
    def uload(i):
        o = []
        if i % 4 == 0: o.append(f"s_add_u32 s{S_T1}, s{A_U}, {0 if cfg.get('nou') else i*1024}")
        r = (i % NR)*4
        o.append(f"buffer_load_dwordx4 a[{r}:{r+3}], v{V['l16']}, {WSRD}, s{S_T1} offen offset:{(i%4)*1024} {xfl}")
        vq.issue(i)
        return '\n'.join(o)
    a('s_nop 7')
    for i in range(NR): a(uload(i))
    T = 208
    for hl in range(4):
        c = SC + hl*8
        for k in range(8): a(f'v_add_f32 v{c+k}, v{c+k}, v{4+k}')
        a(f"""
        v_max3_f32 v{LM+hl}, v{c}, v{c+1}, v{c+2}
        v_max3_f32 v{LM+hl}, v{LM+hl}, v{c+3}, v{c+4}
        v_max3_f32 v{LM+hl}, v{LM+hl}, v{c+5}, v{c+6}
        v_max_f32 v{LM+hl}, v{LM+hl}, v{c+7}
        """)
        xlane4(a, 'v_max_f32', LM+hl, T)
        for k in range(8): a(f'v_sub_f32 v{c+k}, v{c+k}, v{LM+hl}')
        for k in range(8): a(f'v_exp_f32 v{c+k}, v{c+k}')
        s = LM+4+hl
        a(f'v_add_f32 v{s}, v{c}, v{c+1}')
        for k in range(2, 8): a(f'v_add_f32 v{s}, v{s}, v{c+k}')
        xlane4(a, 'v_add_f32', s, T)
        for k in range(4): a(f'v_cvt_pk_bf16_f32 v{T+4+(0, 2, 1, 3)[k]}, v{c+2*k}, v{c+2*k+1}')
        if hl == 0:
            a(f"s_lshl_b32 s{S_T0}, s{S_WAVE}, 12\nv_add_u32 v{LN+1}, s{S_T0}, v{V['l16']}")
        a(f'ds_write_b128 v{LN+1}, v[{T+4}:{T+7}] offset:{AL_E+hl*1024}')
    a('s_waitcnt lgkmcnt(0)\ns_barrier')
    EF = 12; OA = 28
    oacc = [28, 32, 36, 56]
    lq = Q('lgkmcnt', 15)
    def eread(i):
        r = EF + (i % 4)*4
        lq.issue(i)
        return f"ds_read_b128 v[{r}:{r+3}], v{V['l16']} offset:{AL_E+(i%16)*1024}"
    for i in range(3): a(eread(i))
    def opost(i):
        c, h = i // 16, i % 16
        k, r = oreg(h >> 1, c); r += 2*(h & 1); A = oacc[i % 4]
        if k == 'v':
            return [f'v_cvt_pk_bf16_f32 v{r}, v{A}, v{A+1}', f'v_cvt_pk_bf16_f32 v{r+1}, v{A+2}, v{A+3}']
        return [f'v_cvt_pk_bf16_f32 v{A}, v{A}, v{A+1}', f'v_cvt_pk_bf16_f32 v{A+2}, v{A+2}, v{A+3}',
                f'v_accvgpr_write_b32 a{r}, v{A}', f'v_accvgpr_write_b32 a{r+1}, v{A+2}']
    for i in range(112):
        for w in (vq.wait(i), lq.wait(i)):
            if w: a(w)
        A = oacc[i % 4]; e = EF + (i % 4)*4; u = (i % NR)*4
        a(f'v_mfma_f32_16x16x32_bf16 v[{A}:{A+3}], v[{e}:{e+3}], a[{u}:{u+3}], 0')
        if i + 3 < 112: a(eread(i+3))
        if i >= 3:
            for x in opost(i-3): a(x)
        if i >= 1 and i - 1 + NR < 112: a(uload(i-1+NR))
    for i in range(109, 112):
        for x in opost(i): a(x)
    a('s_nop 7')
    if not cfg.get('norl'): load_tx()
    XR = 4
    xreg = lambda c: (4 + 2*c) if c < 4 else (56 + 2*(c-4))
    a(f"""
    v_and_b32 v{q}, 15, v{LN}
    v_lshrrev_b32 v{g}, 4, v{LN}
    v_mul_u32_u24 v{t}, 896, v{q}
    v_lshl_add_u32 v{t}, v{g}, 3, v{t}
    s_mul_i32 s{S_T0}, s{S_ROLE}, {16*896}
    s_mul_i32 s{S_T1}, s{S_WAVE}, 224
    s_add_u32 s{S_T0}, s{S_T0}, s{S_T1}
    """)
    for c in range(7):
        a(f'buffer_load_dwordx2 v[{xreg(c)}:{xreg(c)+1}], v{t}, s[{A_XS}:{A_XS+3}], s{S_T0} offen offset:{c*32}')
    MK = 62
    a(f"""
    v_and_b32 v{t+1}, 1, v{q}
    v_lshlrev_b32 v{t+1}, 4, v{t+1}
    v_mov_b32 v{t+2}, 0xffff
    v_lshlrev_b32 v{t+2}, v{t+1}, v{t+2}
    v_lshrrev_b32 v{t+1}, 1, v{q}
    v_lshlrev_b32 v{t+3}, 1, v{g}
    v_mov_b32 v{t+4}, 0
    v_cmp_eq_u32 vcc, v{t+1}, v{t+3}
    v_add_u32 v{t+3}, 1, v{t+3}
    v_cndmask_b32 v{MK}, v{t+4}, v{t+2}, vcc
    v_cmp_eq_u32 vcc, v{t+1}, v{t+3}
    s_lshl_b32 s{S_MOFF}, s{A_SEG}, 13
    s_add_u32 s{S_MOFF}, s{S_MOFF}, {L.MB_Y}
    v_cndmask_b32 v{MK+1}, v{t+4}, v{t+2}, vcc
    """)
    rt(1)
    a('s_waitcnt vmcnt(40)')
    a(f's_mov_b32 s{A_S0}, {L.CNT_I2}')
    wait_cnt(a, A_S0, 98, mf)
    a(f"""
    s_lshl_b32 s{A_S0}, s78, 7
    s_add_u32 s{A_S0}, s{A_S0}, {L.CNT_G}
    buffer_load_dword v{mf+1}, v{mf}, {WSRD}, s{A_S0} offen sc1
    s_add_u32 s{S_T1}, s78, 1
    s_waitcnt vmcnt(0)
    v_readfirstlane_b32 s{S_T0}, v{mf+1}
    s_cmp_eq_u32 s{S_T0}, 14
    s_cselect_b32 s{S_FAST}, 1, 0
    s_cmp_eq_u32 s{S_T1}, s{S_XCC}
    s_cselect_b32 s{S_FAST}, s{S_FAST}, 0
    s_cmp_ge_u32 s{S_ROLE}, {cfg.get('qfast', 114)}
    s_cselect_b32 s{S_FAST}, s{S_FAST}, 0
    """)
    def both(emit):
        l1 = a.newlabel('A_sf'); l2 = a.newlabel('A_sj')
        a(f's_cmp_eq_u32 s{S_FAST}, 0\ns_cbranch_scc1 {l1}')
        emit('')
        a(f'{l2}:')
        def c():
            a.label(l1); emit(xfl); a(f's_branch {l2}')
        a.cold.append(c)
    fl = a.newlabel('A_far'); fd = a.newlabel('A_near')
    a(f"""
    s_cmp_eq_u32 s{A_SEG}, 0
    s_cbranch_scc1 {fd}
    s_sub_u32 s{A_S0}, s{S_MOFF}, 8192
    s_mov_b32 s{S_SPIN}, 0
    v_mov_b32 v{mf}, 0
{fl}:
    buffer_load_dword v{mf+1}, v{mf}, {WSRD}, s{A_S0} offen sc1
    s_add_u32 s{S_SPIN}, s{S_SPIN}, 1
    s_waitcnt vmcnt(0)
    v_cmp_eq_u32 vcc, -1, v{mf+1}
    s_cbranch_vccz {fd}
    s_sleep {cfg['asleep']}
    s_cmp_lt_u32 s{S_SPIN}, s{S_LIM}
    s_cbranch_scc1 {fl}
{fd}:
    """)
    poll_m(a, V, sleep=1)
    rt(2)
    lq = Q('lgkmcnt', 15)
    for b in range(7):
        for hf in range(2):
            a(f"ds_read_b64_tr_b16 v[{mf+4*b+2*hf}:{mf+4*b+2*hf+1}], v{V['l8']} offset:{AL_M+b*1024+hf*512}")
            lq.issue(b)
    SA = 40
    for half in range(2):
        for k in range(4): a(f'v_mov_b64 v[{SA+2*k}:{SA+2*k+1}], 0')
        for b in range(7):
            w = lq.wait(b)
            if w: a(w)
            for hh in range(2):
                a(SM(SA+4*hh, mf+4*b, TX8(2*half+hh, b), V['idx']))
        if half == 0:
            for hh in range(2):
                A = SA+4*hh
                a(f'v_add_f32 v{A}, v{A}, v{A+2}\nv_add_f32 v{A+1}, v{A+1}, v{A+3}')
                a(f'v_accvgpr_write_b32 a{2*hh}, v{A}\nv_accvgpr_write_b32 a{2*hh+1}, v{A+1}')
    S = 12
    for hh in range(2):
        A = SA+4*hh
        a(f'v_add_f32 v{S+4+2*hh}, v{A}, v{A+2}\nv_add_f32 v{S+5+2*hh}, v{A+1}, v{A+3}')
    for k in range(4): a(f'v_accvgpr_read_b32 v{S+k}, a{k}')
    PRB = 1
    a(f"""
    s_mul_i32 s{A_S0}, s{A_SEG}, 114688
    s_mul_i32 s{A_S1}, s{S_WAVE}, 28672
    s_add_u32 s{A_S0}, s{A_S0}, s{A_S1}
    s_add_u32 s{A_S0}, s{A_S0}, {L.VM}
    v_min_u32 v{PRB}, {27*16}, v{V['l16']}
    v_lshlrev_b32 v{PRB}, 6, v{PRB}
    buffer_load_dword v{PRB}, v{PRB}, {WSRD}, s{A_S0} offen sc1
    """)
    MX, TT, FX, Z = 20, 24, 28, 32
    H4 = range(4)
    def x4(op, x):
        for h in H4: a(f'v_mov_b32 v{TT+h}, v{x+h}')
        for h in H4: a(f'v_permlane16_swap_b32 v{x+h}, v{TT+h}')
        for h in H4: a(f'{op} v{x+h}, v{x+h}, v{TT+h}')
        for h in H4: a(f'v_mov_b32 v{TT+h}, v{x+h}')
        for h in H4: a(f'v_permlane32_swap_b32 v{x+h}, v{TT+h}')
        for h in H4: a(f'{op} v{x+h}, v{x+h}, v{TT+h}')
    for h in H4: a(f'v_max3_f32 v{MX+h}, v{S+2*h}, v{S+2*h+1}, v{LM+h}')
    x4('v_max_f32', MX)
    for h in H4: a(f'v_sub_f32 v{S+2*h}, v{S+2*h}, v{MX+h}\nv_sub_f32 v{S+2*h+1}, v{S+2*h+1}, v{MX+h}\nv_sub_f32 v{FX+h}, v{LM+h}, v{MX+h}')
    for h in H4: a(f'v_exp_f32 v{S+2*h}, v{S+2*h}\nv_exp_f32 v{S+2*h+1}, v{S+2*h+1}\nv_exp_f32 v{FX+h}, v{FX+h}')
    for h in H4: a(f'v_add_f32 v{Z+h}, v{S+2*h}, v{S+2*h+1}')
    x4('v_add_f32', Z)
    for h in H4: a(f'v_fmac_f32 v{Z+h}, v{FX+h}, v{LM+4+h}')
    for h in H4: a(f'v_rcp_f32 v{Z+h}, v{Z+h}')
    for h in H4: a(f'v_mul_f32 v{S+2*h}, v{S+2*h}, v{Z+h}\nv_mul_f32 v{S+2*h+1}, v{S+2*h+1}, v{Z+h}\nv_mul_f32 v{FX+h}, v{FX+h}, v{Z+h}')
    PM = 36; DG = 40
    for h in H4: a(f'v_cvt_pk_bf16_f32 v{PM+h}, v{S+2*h}, v{S+2*h+1}\nv_cvt_pk_bf16_f32 v{FX+h}, v{FX+h}, v{FX+h}')
    for h in H4: a(f'v_and_b32 v{DG+2*h}, v{FX+h}, v{MK}\nv_and_b32 v{DG+2*h+1}, v{FX+h}, v{MK+1}')
    a(f"""
    s_mul_i32 s{S_T0}, s{S_WAVE}, 3072
    v_add_u32 v{MX}, s{S_T0}, v{V['l16']}
    ds_write_b128 v{MX}, v[{DG}:{DG+3}] offset:{AL_E}
    ds_write_b128 v{MX}, v[{DG+4}:{DG+7}] offset:{AL_E+1024}
    ds_write_b128 v{MX}, v[{PM}:{PM+3}] offset:{AL_E+2048}
    s_waitcnt vmcnt(0) lgkmcnt(0)
    s_barrier
    """)
    a(f"""
    s_mul_i32 s{A_S0}, s{A_SEG}, 114688
    s_mul_i32 s{A_S1}, s{S_WAVE}, 28672
    s_add_u32 s{A_S0}, s{A_S0}, s{A_S1}
    s_add_u32 s{A_S0}, s{A_S0}, {L.VM}
    s_mov_b32 s{A_U}, 0
    s_mov_b32 s{S_SPIN}, 0
    v_min_u32 v40, {27*16}, v{V['l16']}
    v_lshlrev_b32 v40, 6, v40
    v_mov_b32 v41, v{PRB}
    """)
    CF = 128
    for k in range(12):
        a(f"ds_read_b128 a[{CF+4*k}:{CF+4*k+3}], v{V['l16']} offset:{AL_E+k*1024}")
    cfd = lambda p: CF + 4*((p >> 1)*3 + (p & 1))
    cfm = lambda u: CF + 4*(u*3 + 2)
    FA = 12
    VFa = 8; HP = 64; HF = 80; KP = 240
    vl = a.newlabel('A_vl'); vd = a.newlabel('A_vd'); vg = a.newlabel('A_vg'); vr_ = a.newlabel('A_vr')
    a(f'v_cmp_eq_u32 vcc, -1, v41\ns_cbranch_vccz {vg}')
    wait_hint(a, 40, A_S0, [41, 42, 43], gap=15, inner=15)
    a(f'{vg}:\ns_mov_b32 s{S_SPIN}, 0')
    rt(3)
    sub = Asm()
    sub(f's_mov_b32 s{A_S1}, s{A_S0}')
    load_1k_run(sub, [f'a[{VFa+4*k}:{VFa+4*k+3}]' for k in range(28)], V['l16'], A_S1, xfl)
    lds_ = [x.text for _, x in sub.items]
    def take(n):
        while lds_ and n > 0:
            x = lds_.pop(0); a(x)
            if x.startswith('buffer'): n -= 1
    take(6)
    a('s_waitcnt lgkmcnt(0)')
    i_ = 0
    for p in range(8):
        for c in range(7):
            k, r = oreg(p, c); A = FA + 4*c
            a(f'v_mfma_f32_16x16x32_bf16 v[{A}:{A+3}], {k}[{r}:{r+3}], a[{cfd(p)}:{cfd(p)+3}], ' + ('0' if p == 0 else f'v[{A}:{A+3}]'))
            i_ += 1
            if i_ % 4 == 0: take(1)
    take(28)
    def coldv():
        a(f'{vl}:')
        for _, x in sub.items: a(x.text)
        a(f's_branch {vr_}')
    a.cold.append(coldv)
    a(f'{vr_}:\ns_add_u32 s{S_SPIN}, s{S_SPIN}, 1')
    rt(4)
    def tile_epi(c):
        A = KP + 4*(c & 1); x = xreg(c)
        for k in range(2):
            a(f"""
            v_cvt_pk_bf16_f32 v{A+2*k}, v{A+2*k}, v{A+2*k+1}
            v_and_b32 v{A+2*k+1}, 0xffff0000, v{A+2*k}
            v_lshlrev_b32 v{A+2*k}, 16, v{A+2*k}
            v_lshlrev_b32 v{HF+4*c+2*k}, 16, v{x+k}
            v_and_b32 v{HF+4*c+2*k+1}, 0xffff0000, v{x+k}
            v_pk_add_f32 v[{A+2*k}:{A+2*k+1}], v[{A+2*k}:{A+2*k+1}], v[{HF+4*c+2*k}:{HF+4*c+2*k+1}]
            v_cvt_pk_bf16_f32 v{HP+2*c+k}, v{A+2*k}, v{A+2*k+1}
            v_lshlrev_b32 v{HF+4*c+2*k}, 16, v{HP+2*c+k}
            v_and_b32 v{HF+4*c+2*k+1}, 0xffff0000, v{HP+2*c+k}
            """)
    for c in range(7):
        a(f's_waitcnt vmcnt({4*(6-c)})')
        for u in range(4):
            A = KP + 4*(c & 1); r = VFa + 4*(c*4+u)
            a(f'v_mfma_f32_16x16x32_bf16 v[{A}:{A+3}], a[{r}:{r+3}], a[{cfm(u)}:{cfm(u)+3}], v[{FA+4*c if u == 0 else A}:{(FA+4*c if u == 0 else A)+3}]')
            a(f'v_accvgpr_read_b32 v{44+u}, a{r}')
        a(f'v_max_u32 v43, v44, v45' if c == 0 else f'v_max3_u32 v43, v43, v44, v45')
        a(f'v_max3_u32 v43, v43, v46, v47')
        if c: tile_epi(c-1)
    a(f"""
    v_cmp_eq_u32 vcc, -1, v43
    s_cbranch_vccz {vd}
    s_cmp_lt_u32 s{S_SPIN}, s{S_LIM}
    s_cbranch_scc1 {vl}
    s_mov_b32 s{S_LIM}, 1
{vd}:
    """)
    tile_epi(6)
    rt(5)
    a(f"""
    s_mul_i32 s{A_S0}, s{S_ROLE}, 14336
    s_mul_i32 s{S_T0}, s{S_WAVE}, 3584
    s_add_u32 s{A_S1}, s{A_S0}, s{S_T0}
    s_add_u32 s{A_S1}, s{A_S1}, {L.HB}
    """)
    def st_h(fl):
        for c in range(7):
            a(f"buffer_store_dwordx2 v[{HP+2*c}:{HP+2*c+1}], v{V['l8']}, {WSRD}, s{A_U} offen offset:{c*512} {fl}")
    a(f's_mov_b32 s{A_U}, s{A_S1}')
    s0, nm, d0, st = 40, 42, 44, 48
    a(f'v_pk_add_f32 v[{s0}:{s0+1}], v[{HF}:{HF+1}], v[{HF+2}:{HF+3}]')
    for i in range(2, 14): a(f'v_pk_add_f32 v[{s0}:{s0+1}], v[{s0}:{s0+1}], v[{HF+2*i}:{HF+2*i+1}]')
    a(f'v_add_f32 v{s0}, v{s0}, v{s0+1}')
    xlane4(a, 'v_add_f32', s0, d0)
    a(f'v_mul_f32 v{nm}, 0xbc124925, v{s0}\nv_mul_f32 v{nm+1}, 0xbc124925, v{s0}')
    for i in range(14):
        d = d0 + 2*(i & 1)
        a(f'v_pk_add_f32 v[{d}:{d+1}], v[{HF+2*i}:{HF+2*i+1}], v[{nm}:{nm+1}]')
        a(f'v_pk_mul_f32 v[{s0}:{s0+1}], v[{d}:{d+1}], v[{d}:{d+1}]' if i == 0 else f'v_pk_fma_f32 v[{s0}:{s0+1}], v[{d}:{d+1}], v[{d}:{d+1}], v[{s0}:{s0+1}]')
    a(f'v_add_f32 v{nm+1}, v{s0}, v{s0+1}')
    xlane4(a, 'v_add_f32', nm+1, d0)
    a(f"""
    s_lshl_b32 s{S_T0}, s{S_WAVE}, 9
    v_add_u32 v{d0}, s{S_T0}, v{V['l8']}
    ds_write_b64 v{d0}, v[{nm}:{nm+1}] offset:{AL_ST}
    s_waitcnt lgkmcnt(0)
    s_barrier
    """)
    for k in range(4): a(f"ds_read_b64 v[{st+2*k}:{st+2*k+1}], v{V['l8']} offset:{AL_ST+k*512}")
    rs = 46
    a(f"""
    s_waitcnt lgkmcnt(0)
    v_add_f32 v{nm}, v{st}, v{st+2}
    v_add_f32 v{d0}, v{st+4}, v{st+6}
    v_add_f32 v{nm}, v{nm}, v{d0}
    v_mul_f32 v{nm}, 0.25, v{nm}
    v_add_f32 v{rs}, v{st+1}, v{st+3}
    v_add_f32 v{d0}, v{st+5}, v{st+7}
    v_add_f32 v{rs}, v{rs}, v{d0}
    v_sub_f32 v{st}, v{st}, v{nm}
    v_sub_f32 v{st+2}, v{st+2}, v{nm}
    v_sub_f32 v{st+4}, v{st+4}, v{nm}
    v_sub_f32 v{st+6}, v{st+6}, v{nm}
    v_mul_f32 v{d0}, v{st}, v{st}
    v_fmac_f32 v{d0}, v{st+2}, v{st+2}
    v_fmac_f32 v{d0}, v{st+4}, v{st+4}
    v_fmac_f32 v{d0}, v{st+6}, v{st+6}
    v_fmac_f32 v{rs}, 0x42e00000, v{d0}
    v_mul_f32 v{rs}, 0x3b124925, v{rs}
    """)
    prep.ln_stats_finish(a, nm, rs, d0)
    a(f'v_mov_b32 v{nm+1}, v{nm}\nv_mov_b32 v{rs+1}, v{rs}')
    NP = 108
    for i in range(14):
        u = HF+2*i
        a(f"""
        v_pk_add_f32 v[{u}:{u+1}], v[{u}:{u+1}], v[{nm}:{nm+1}]
        v_cvt_pk_bf16_f32 v{NP+i}, v{u}, v{u+1}
        v_lshlrev_b32 v{u}, 16, v{NP+i}
        v_and_b32 v{u+1}, 0xffff0000, v{NP+i}
        v_pk_mul_f32 v[{u}:{u+1}], v[{u}:{u+1}], v[{rs}:{rs+1}]
        v_cvt_pk_bf16_f32 v{NP+i}, v{u}, v{u+1}
        """)
    a(f"""
    s_mul_i32 s{S_T0}, s{S_WAVE}, 3072
    s_add_u32 s{A_S0}, s{A_S0}, {L.HN}
    s_add_u32 s{A_S1}, s{A_S0}, s{S_T0}
    s_lshr_b32 s{S_T0}, s{S_WAVE}, 1
    s_lshl_b32 s{S_T0}, s{S_T0}, 10
    s_and_b32 s{S_T1}, s{S_WAVE}, 1
    s_lshl_b32 s{S_T1}, s{S_T1}, 3
    s_add_u32 s{S_T0}, s{S_T0}, s{S_T1}
    s_add_u32 s{A_S0}, s{A_S0}, s{S_T0}
    s_add_u32 s{A_S0}, s{A_S0}, 12288
    """)
    def st_n(fl):
        for i in range(3):
            a(f"buffer_store_dwordx4 v[{NP+4*i}:{NP+4*i+3}], v{V['l16']}, {WSRD}, s{A_S1} offen offset:{i*1024} {fl}")
        a(f"buffer_store_dwordx2 v[{NP+12}:{NP+13}], v{V['l16']}, {WSRD}, s{A_S0} offen {fl}")
        st_h(fl)
    both(st_n)
    rt(6)
    if cfg.get('diag'):
        rt(7)
        a(f's_waitcnt lgkmcnt(0)\ns_lshl_b32 s{A_S0}, s{S_ROLE}, 6\ns_add_u32 s{A_S0}, s{A_S0}, {L.STAMP + 0x90000}')
        for k in range(8): a(f'v_writelane_b32 v6, s{60+2*k}, {k}')
        a(f"v_lshrrev_b32 v7, 1, v{V['l8']}\ns_mov_b64 exec, 255\nbuffer_store_dword v6, v7, {WSRD}, s{A_S0} offen\ns_mov_b64 exec, -1")
    if cfg.get('ticket'): a('s_branch A_top')
    a.flush_cold()
```

```python
from asmlib import *
import layout as L

SENT = -1
S_WS = 8
S_DBG = 12
S_ROLE = 16
S_WAVE = 17
S_XCC = 18
S_STEP = 19
S_FAST = 20
S_MOFF = 21; S_POFF = 22; S_EOFF = 23; S_GOFF = 24; S_XOFF = 25; S_T0 = 26; S_T1 = 27; S_SPIN = 28; S_LIM = 29
S_EXEC = 30
S_STMP = 32
S_TM = 34
SPIN_MAX = 20000
NTEAM = 32

LDS_M = 0
LDS_T = 7168
LDS_FL = 14336
LDS_VD = 18432
LDS_X = 20480
LDS_NAN = 11264
LDS_RED = 7168
LDS_BW = 16384
LDS_ROLE = 160*1024 - 16

def prologue(a, stamps, pool_off=0, scatter=False, code=1, guess=0):
    if code:
        a('s_getpc_b64 s[40:41]\nM_pc:\nv_lshlrev_b32 v12, 7, v0\nglobal_load_dword v255, v12, s[40:41]')
        a('v_add_u32 v12, 32768, v12\nv_min_u32 v11, L_end-M_pc, v12\nglobal_load_dword v255, v11, s[40:41]')
    a(f'''
    s_cmp_ge_u32 s2, 256
    s_cbranch_scc1 L_end
    s_load_dwordx2 s[4:5], s[0:1], 96
    s_load_dwordx2 s[6:7], s[0:1], 88
    s_getreg_b32 s{S_XCC}, hwreg(HW_REG_XCC_ID, 0, 4)
    v_lshrrev_b32 v2, 6, v0
    v_and_b32 v1, 63, v0
    v_readfirstlane_b32 s{S_WAVE}, v2
    s_and_b32 s{S_XCC}, s{S_XCC}, 7
    s_waitcnt lgkmcnt(0)
    s_mov_b32 s{S_WS}, s4
    s_and_b32 s{S_WS+1}, s5, 0xffff
    s_mov_b32 s{S_WS+2}, {L.WS_BYTES}
    s_mov_b32 s{S_WS+3}, 0x20000
    s_mov_b32 s{S_DBG}, s6
    s_and_b32 s{S_DBG+1}, s7, 0xffff
    s_mov_b32 s{S_DBG+2}, 256
    s_mov_b32 s{S_DBG+3}, 0x20000
    v_mov_b32 v4, {LDS_ROLE}
    ''')
    if guess:
        a(f'''
        s_cmp_lg_u32 s{S_XCC}, 0
        s_cbranch_scc1 L_ng
        s_lshr_b32 s{S_T0}, s2, 3
        s_cmp_ge_u32 s{S_T0}, 30
        s_cbranch_scc1 L_ng
        s_mul_i32 s{S_T1}, s{S_T0}, 28
        s_add_u32 s{S_T1}, s{S_T1}, s{S_WAVE}
        s_mov_b32 s{S_STEP}, {4*14336}
        s_cmp_lt_u32 s{S_T0}, 16
        s_cbranch_scc1 L_gs
        s_lshl_b32 s{S_T1}, s{S_T0}, 1
        s_mul_i32 s{S_T0}, s{S_WAVE}, 112
        s_add_u32 s{S_T1}, s{S_T1}, s{S_T0}
        s_add_u32 s{S_T1}, s{S_T1}, {448 - 32 + 84}
        s_mov_b32 s{S_STEP}, 14336
L_gs:
        s_mul_i32 s{S_T1}, s{S_T1}, 14336
        s_add_u32 s{S_T1}, s{S_T1}, {L.WT}
        v_min_u32 v5, 55, v1
        v_lshlrev_b32 v5, 7, v5
        ''')
        for k in range(guess):
            a(f's_add_u32 s{S_T0}, s{S_T1}, 7168')
            a(f'buffer_load_dword v255, v5, s[{S_WS}:{S_WS+3}], s{S_T1} offen\nbuffer_load_dword v255, v5, s[{S_WS}:{S_WS+3}], s{S_T0} offen')
            a(f's_add_u32 s{S_T1}, s{S_T1}, s{S_STEP}')
        a.label('L_ng')
    a(f'''
    s_cmp_lg_u32 s{S_WAVE}, 0
    s_cbranch_scc1 L_role_wait
    s_mov_b64 exec, 1
    s_mov_b32 s{S_T0}, 0
L_role_try:
    {f's_lshr_b32 s{S_T1}, s2, 5' if scatter else f's_mov_b32 s{S_T1}, s{S_XCC}'}
    s_add_u32 s{S_T1}, s{S_T1}, s{S_T0}
    s_and_b32 s{S_T1}, s{S_T1}, 7
    s_lshl_b32 s{S_ROLE}, s{S_T1}, 7
    s_add_u32 s{S_ROLE}, s{S_ROLE}, {L.CNT_P + pool_off}
    v_mov_b32 v2, s{S_ROLE}
    v_mov_b32 v3, 1
    buffer_atomic_add v3, v2, s[{S_WS}:{S_WS+3}], 0 offen sc0
    s_waitcnt vmcnt(0)
    v_readfirstlane_b32 s{S_ROLE}, v3
    s_cmp_lt_u32 s{S_ROLE}, 32
    s_cbranch_scc1 L_role_got
    s_add_u32 s{S_T0}, s{S_T0}, 1
    s_cmp_lt_u32 s{S_T0}, 8
    s_cbranch_scc1 L_role_try
    s_mov_b32 s{S_ROLE}, 31
    s_mov_b32 s{S_T1}, 0
L_role_got:
    s_lshl_b32 s{S_T1}, s{S_T1}, 5
    s_add_u32 s{S_ROLE}, s{S_ROLE}, s{S_T1}
    v_mov_b32 v2, s{S_ROLE}
    ds_write_b32 v4, v2
    s_mov_b64 exec, -1
    s_waitcnt lgkmcnt(0)
L_role_wait:
    s_barrier
    ds_read_b32 v2, v4
    s_waitcnt lgkmcnt(0)
    v_readfirstlane_b32 s{S_ROLE}, v2
    ''')

FSL = [8, 32]
def wait_flags(a, vaddr, need, t, n=1):
    l = a.newlabel('L_wf'); d = a.newlabel('L_wfd')
    regs = [t] + [t+4+2*k for k in range(n-1)]
    a(f"""
    s_mov_b32 s{S_SPIN}, 0
    s_mov_b32 s{S_EXEC}, {L.FL}
    s_add_u32 s{S_EXEC+1}, s80, {need}
{l}:
    """)
    for k, r in enumerate(regs):
        a(f'buffer_load_dwordx2 v[{r}:{r+1}], v{vaddr}, s[{S_WS}:{S_WS+3}], s{S_EXEC} offen offset:{k*512} sc1')
    a(f's_add_u32 s{S_SPIN}, s{S_SPIN}, 1\ns_waitcnt vmcnt(0)')
    for k, r in enumerate(regs):
        a(f"""
        v_subrev_u32 v{r}, s{S_EXEC+1}, v{r}
        v_xor_b32 v{r+1}, s81, v{r+1}
        v_lshl_or_b32 v{t+2}, v{r+1}, 3, v{r+1}
        v_or_b32 v{r}, v{r}, v{t+2}
        """)
        if k: a(f'v_max_u32 v{t}, v{t}, v{r}')
    a(f"""
    v_cmp_lt_u32 vcc, {7 - need}, v{t}
    s_cbranch_vccz {d}
    s_sleep {FSL[n > 1]}
    s_cmp_lt_u32 s{S_SPIN}, {SPIN_MAX*4}
    s_cbranch_scc1 {l}
{d}:
    """)

def prologue_fused(a):
    a(f"""
    s_getreg_b32 s{S_XCC}, hwreg(HW_REG_XCC_ID, 0, 4)
    s_mov_b32 s{S_WAVE}, s20
    s_and_b32 s{S_XCC}, s{S_XCC}, 7
    s_mov_b32 s{S_DBG}, s56
    s_mov_b32 s{S_DBG+1}, s57
    s_mov_b32 s{S_DBG+2}, 256
    s_mov_b32 s{S_DBG+3}, 0x20000
    v_mov_b32 v4, {LDS_ROLE}
    s_cmp_lg_u32 s{S_WAVE}, 0
    s_barrier
    s_cbranch_scc1 L_role_wait
    s_mov_b64 exec, 1
    s_mov_b32 s{S_T0}, 0
    s_mov_b32 s{S_T1}, s{S_XCC}
    v_mov_b32 v3, v250
    s_branch L_role_see
L_role_try:
    s_add_u32 s{S_T1}, s{S_XCC}, s{S_T0}
    s_and_b32 s{S_T1}, s{S_T1}, 7
    s_lshl_b32 s{S_ROLE}, s{S_T1}, 2
    v_mov_b32 v2, s{S_ROLE}
    v_mov_b32 v3, 1
    buffer_atomic_add v3, v2, s[{S_DBG}:{S_DBG+3}], 0 offen sc0
    s_waitcnt vmcnt(0)
L_role_see:
    v_readfirstlane_b32 s{S_ROLE}, v3
    s_cmp_lt_u32 s{S_ROLE}, 32
    s_cbranch_scc1 L_role_got
    s_add_u32 s{S_T0}, s{S_T0}, 1
    s_cmp_lt_u32 s{S_T0}, 8
    s_cbranch_scc1 L_role_try
    s_mov_b32 s{S_ROLE}, 31
    s_mov_b32 s{S_T1}, 0
L_role_got:
    s_lshl_b32 s{S_T1}, s{S_T1}, 5
    s_add_u32 s{S_ROLE}, s{S_ROLE}, s{S_T1}
    v_mov_b32 v2, s{S_ROLE}
    ds_write_b32 v4, v2
    s_mov_b64 exec, -1
    s_waitcnt lgkmcnt(0)
L_role_wait:
    s_barrier
    ds_read_b32 v2, v4
    s_waitcnt lgkmcnt(0)
    v_readfirstlane_b32 s{S_ROLE}, v2
    """)

def wait_ln(a, lane, t):
    a(f's_lshl_b32 s{S_T0}, s{S_WAVE}, 11\nv_lshlrev_b32 v{t+3}, 3, v{lane}\nv_add_u32 v{t+3}, s{S_T0}, v{t+3}')
    wait_flags(a, t+3, 1, t, n=4)
    a('s_barrier')

STAGE1 = (0, 4, 8, 11)
def load_tiles(a, tiles, vaddr, sbase, stage, flags, bud, cap=None):
    for off, dsts in tiles:
        cur = None
        for k in range(14):
            if stage is not None and (k in STAGE1) != (stage == 1): continue
            if cur != k // 4:
                cur = k // 4
                a(f's_add_u32 s{S_T0}, s{sbase}, {off + cur*4096}')
            a(f'buffer_load_dwordx4 {dsts[k]}, v{vaddr}, s[{S_WS}:{S_WS+3}], s{S_T0} offen offset:{(k%4)*1024} {flags}')
            bud[0] += 1
            if cap is not None:
                if bud[0] > cap: a(f's_waitcnt vmcnt({cap})')
            elif bud[0] >= 56:
                a('s_waitcnt vmcnt(28)'); bud[0] = 28

def team_register(a):
    l = a.newlabel('L_reg')
    a(f'''
    s_cmp_lg_u32 s{S_WAVE}, 0
    s_cbranch_scc1 {l}
    s_cmp_eq_u32 s{S_XCC}, 0
    s_cselect_b32 s{S_T0}, 1, 0x10001
    s_mov_b64 exec, 1
    v_mov_b32 v2, 64
    v_mov_b32 v3, s{S_T0}
    buffer_atomic_add v3, v2, s[{S_DBG}:{S_DBG+3}], 0 offen
    s_mov_b64 exec, -1
{l}:
    ''')

def team_mode_load(vt0, vt1):
    return f'v_mov_b32 v{vt0}, 64\nbuffer_load_dword v{vt1}, v{vt0}, s[{S_DBG}:{S_DBG+3}], 0 offen sc1'

def team_mode(a, vt0, vt1, primed=False):
    l = a.newlabel('L_mode'); d = a.newlabel('L_moded'); p = a.newlabel('L_modep')
    a(f'''
    s_mov_b32 s{S_SPIN}, 0
    {f's_branch {p}' if primed else ''}
{l}:
    {team_mode_load(vt0, vt1)}
{p}:
    s_waitcnt vmcnt(0)
    v_readfirstlane_b32 s{S_T0}, v{vt1}
    s_and_b32 s{S_T1}, s{S_T0}, 0xffff
    s_cmp_ge_u32 s{S_T1}, {NTEAM}
    s_cbranch_scc1 {d}
    s_sleep 2
    s_add_u32 s{S_SPIN}, s{S_SPIN}, 1
    s_cmp_lt_u32 s{S_SPIN}, {SPIN_MAX}
    s_cbranch_scc1 {l}
    s_mov_b32 s{S_T0}, 0x10000
{d}:
    s_lshr_b32 s{S_T0}, s{S_T0}, 16
    s_cmp_eq_u32 s{S_T0}, 0
    s_cselect_b32 s{S_FAST}, 1, 0
    s_mov_b32 s{S_LIM}, {SPIN_MAX}
    ''')

def stamp(a, stamps, idx, vt=None):
    if not stamps: return
    a(f's_memtime s[{40+2*idx}:{41+2*idx}]')
    if idx == 2: a('s_memrealtime s[60:61]')

def stamp_flush(a, stamps, n, vt):
    if not stamps: return
    a('s_waitcnt lgkmcnt(0)')
    for k in range(n):
        a(f'v_writelane_b32 v{vt}, s{40+2*k}, {k}')
    a(f"""
    v_lshrrev_b32 v{vt+1}, 1, v0
    s_mov_b64 exec, {(1 << n) - 1}
    buffer_store_dword v{vt}, v{vt+1}, s[{S_WS}:{S_WS+3}], s{S_STMP} offen
    s_mov_b64 exec, -1
    """)

def wreg(wb, vbase):
    return ar(8*wb, 8) if wb < 32 else vr(vbase + 8*(wb-32), 8)
def wreg_half(wb, vbase, half):
    return ar(8*wb + 4*half, 4) if wb < 32 else vr(vbase + 8*(wb-32) + 4*half, 4)

def xlane4(a, op, x, t):
    a(f'''
    v_mov_b32 v{t}, v{x}
    v_permlane16_swap_b32 v{x}, v{t}
    {op} v{x}, v{x}, v{t}
    v_mov_b32 v{t}, v{x}
    v_permlane32_swap_b32 v{x}, v{t}
    {op} v{x}, v{x}, v{t}
    ''')

QP = 'quad_perm:[2,3,0,1] row_mask:0xf bank_mask:0xf'

def read_mf(a, V):
    for b in range(7):
        a(f"ds_read_b64_tr_b16 v[{V['mf']+4*b}:{V['mf']+4*b+1}], v{V['l8']} offset:{LDS_M+b*1024}")
        a(f"ds_read_b64_tr_b16 v[{V['mf']+4*b+2}:{V['mf']+4*b+3}], v{V['l8']} offset:{LDS_M+b*1024+512}")

def SM(acc, A, B, idx):
    return f'v_smfmac_f32_16x16x64_bf16 v[{acc}:{acc+3}], v[{A}:{A+3}], {B}, v{idx}'


class Q:
    def __init__(self, name, cap):
        self.name = name; self.n = 0; self.tags = {}; self.done = 0; self.cap = cap
    def issue(self, tag=None):
        self.n += 1
        if tag is not None: self.tags[tag] = self.n
    def wait(self, tag):
        k = self.tags[tag]
        if k <= self.done: return ''
        self.done = k
        return 's_waitcnt %s(%d)' % (self.name, min(self.n - k, self.cap))
    def drain(self):
        self.done = self.n
        return 's_waitcnt %s(0)' % self.name

WSRD = f's[{S_WS}:{S_WS+3}]'

def poll_m(a, V, sleep=0):
    t = V['mf']; pa = V['pa']
    l = a.newlabel('L_pm'); d = a.newlabel('L_pmd')
    a(f"""
    s_mov_b32 s{S_SPIN}, 0
{l}:
    buffer_load_dwordx4 v[{t}:{t+3}], v{pa}, {WSRD}, s{S_MOFF} offen sc1
    buffer_load_dwordx4 v[{t+4}:{t+7}], v{pa}, {WSRD}, s{S_MOFF} offen offset:768 sc1
    s_add_u32 s{S_SPIN}, s{S_SPIN}, 1
    s_waitcnt vmcnt(1)
    ds_write_b128 v{pa}, v[{t}:{t+3}]
    v_max3_u32 v{t+8}, v{t}, v{t+1}, v{t+2}
    s_waitcnt vmcnt(0)
    ds_write_b128 v{pa}, v[{t+4}:{t+7}] offset:768
    v_max3_u32 v{t+8}, v{t+8}, v{t+3}, v{t+4}
    v_max3_u32 v{t+8}, v{t+8}, v{t+5}, v{t+6}
    v_max_u32 v{t+8}, v{t+8}, v{t+7}
    v_cmp_eq_u32 vcc, -1, v{t+8}
    s_cbranch_vccz {d}
    {'s_sleep %d' % sleep if sleep else ''}
    s_cmp_lt_u32 s{S_SPIN}, s{S_LIM}
    s_cbranch_scc1 {l}
    s_mov_b32 s{S_LIM}, 1
{d}:
    s_waitcnt lgkmcnt(0)
    s_barrier
    """)

def poll_m2(a, V, gap, x):
    pa = V['pa']; sets = (V['acc']+8, V['acc']+16)
    l = a.newlabel('L_pm'); d = a.newlabel('L_pmd')
    def issue(t):
        a(f"""
        buffer_load_dwordx4 v[{t}:{t+3}], v{pa}, {WSRD}, s{S_MOFF} offen sc1
        buffer_load_dwordx4 v[{t+4}:{t+7}], v{pa}, {WSRD}, s{S_MOFF} offen offset:768 sc1
        """)
    def check(t):
        a(f"""
        s_add_u32 s{S_SPIN}, s{S_SPIN}, 1
        s_waitcnt vmcnt(3)
        ds_write_b128 v{pa}, v[{t}:{t+3}]
        v_max3_u32 v{x}, v{t}, v{t+1}, v{t+2}
        s_waitcnt vmcnt(2)
        ds_write_b128 v{pa}, v[{t+4}:{t+7}] offset:768
        v_max3_u32 v{x}, v{x}, v{t+3}, v{t+4}
        v_max3_u32 v{x}, v{x}, v{t+5}, v{t+6}
        v_max_u32 v{x}, v{x}, v{t+7}
        v_cmp_eq_u32 vcc, -1, v{x}
        """)
    a(f's_mov_b32 s{S_SPIN}, 0')
    issue(sets[0])
    while gap > 0:
        a(f's_nop {min(gap, 16) - 1}'); gap -= 16
    issue(sets[1]); check(sets[0])
    a(f's_cbranch_vccnz {l}\n{d}:\ns_waitcnt lgkmcnt(0)\ns_barrier')
    def cold():
        a.label(l)
        issue(sets[0]); check(sets[1])
        a(f's_cbranch_vccz {d}')
        issue(sets[1]); check(sets[0])
        a(f"""
        s_cbranch_vccz {d}
        s_cmp_lt_u32 s{S_SPIN}, s{S_LIM}
        s_cbranch_scc1 {l}
        s_mov_b32 s{S_LIM}, 1
        s_branch {d}
        """)
    a.cold.append(cold)

def wait_hint(a, vaddr, soff, regs, imm=0, delay=0, gap=12, inner=8, fill=None, primed=False):
    n = len(regs)
    l = a.newlabel('L_h'); d = a.newlabel('L_hd')
    ld = lambda r: f'buffer_load_dword v{r}, v{vaddr}, {WSRD}, s{soff} offen offset:{imm} sc1'
    a(f's_mov_b32 s{S_SPIN}, 0')
    fill = list(fill or [])
    per = -(-len(fill) // (n-1))
    for k in range(0 if primed else n-1):
        a(ld(regs[k]))
        for x in fill[k*per:(k+1)*per]: a(x)
        if per < gap: a(f's_nop {gap - per}')
    a.label(l)
    for k in range(n):
        a(f"""
        {ld(regs[(k+n-1) % n])}
        s_waitcnt vmcnt({n-1})
        v_cmp_eq_u32 vcc, -1, v{regs[k]}
        s_cbranch_vccz {d}
        s_nop {inner}
        """)
    a(f"""
    s_add_u32 s{S_SPIN}, s{S_SPIN}, 1
    s_cmp_lt_u32 s{S_SPIN}, s{S_LIM}
    s_cbranch_scc1 {l}
{d}:
    """)
    while delay > 0:
        a(f's_nop {min(delay, 16) - 1}'); delay -= 16

def wait_cnt(a, off_sgpr, target, vt, sleep=4, primed=False):
    l = a.newlabel('L_wc'); d = a.newlabel('L_wcd'); p = a.newlabel('L_wcp')
    a(f"""
    s_mov_b32 s{S_SPIN}, 0
    v_mov_b32 v{vt}, 0
    {f's_branch {p}' if primed else ''}
{l}:
    buffer_load_dword v{vt+1}, v{vt}, {WSRD}, s{off_sgpr} offen sc1
{p}:
    s_add_u32 s{S_SPIN}, s{S_SPIN}, 1
    s_waitcnt vmcnt(0)
    v_readfirstlane_b32 s{S_T0}, v{vt+1}
    s_cmp_ge_u32 s{S_T0}, {target}
    s_cbranch_scc1 {d}
    s_sleep {sleep}
    s_cmp_lt_u32 s{S_SPIN}, s{S_LIM}
    s_cbranch_scc1 {l}
    s_mov_b32 s{S_LIM}, 1
{d}:
    """)

def img_addr(a, dst, t, lane):
    a(f"""
    v_bfe_u32 v{dst}, v{lane}, 3, 1
    v_lshlrev_b32 v{dst}, 9, v{dst}
    v_bfe_u32 v{t}, v{lane}, 2, 1
    v_lshl_add_u32 v{dst}, v{t}, 6, v{dst}
    v_and_b32 v{t}, 1, v{lane}
    v_lshl_add_u32 v{dst}, v{t}, 5, v{dst}
    v_lshrrev_b32 v{t}, 4, v{lane}
    v_lshl_add_u32 v{dst}, v{t}, 3, v{dst}
    v_bfe_u32 v{t}, v{lane}, 1, 1
    v_lshl_add_u32 v{dst}, v{t}, 2, v{dst}
    """)

def common_addrs(a, V, LN):
    a(f"""
    v_lshlrev_b32 v{V['l8']}, 3, v{LN}
    s_mul_i32 s{S_T0}, s{S_WAVE}, {112*16}
    v_lshlrev_b32 v{V['pa']}, 4, v{LN}
    v_add_u32 v{V['pa']}, s{S_T0}, v{V['pa']}
    v_and_b32 v{LN+1}, 2, v{LN}
    v_cmp_ne_u32 vcc, 0, v{LN+1}
    v_mov_b32 v{LN+1}, 0x4444
    v_mov_b32 v{LN+2}, 0xeeee
    v_cndmask_b32 v{V['idx']}, v{LN+1}, v{LN+2}, vcc
    """)

def load_1k_run(a, dsts, vaddr, sbase, flags='', budget=None):
    for i, d in enumerate(dsts):
        if i and i % 4 == 0:
            a(f's_add_u32 s{sbase}, s{sbase}, 4096')
        a(f'buffer_load_dwordx4 {d}, v{vaddr}, {WSRD}, s{sbase} offen offset:{(i%4)*1024} {flags}')
        if budget is not None:
            budget[0] += 1
            if budget[0] >= 56:
                a('s_waitcnt vmcnt(28)'); budget[0] = 28

class Gaps:
    def __init__(self, n):
        self.ds = [[] for _ in range(n)]; self.va = [[] for _ in range(n)]; self.pre = [[] for _ in range(n)]
        self.n = n
    def put(self, kind, g, text, excl=False):
        while g < self.n - 1:
            if excl:
                if not self.ds[g] and not self.va[g]: break
            else:
                lst = self.ds[g] if kind == 'ds' else self.va[g]
                other = self.va[g] if kind == 'ds' else self.ds[g]
                if not lst and not (other and other[-1][1]): break
            g += 1
        (self.ds if kind == 'ds' else self.va)[g].append((text, excl))
        return g
    def force(self, kind, g, text):
        (self.ds if kind == 'ds' else self.va)[min(g, self.n-1)].append((text, False))

def emit_stream(a, mf, gp, lq, pre=None):
    for i, (m, tags) in enumerate(mf):
        for tg in tags:
            w = lq.wait(tg)
            if w: a(w)
        a(m)
        for lst in (gp.ds[i], gp.va[i]):
            for x, _ in lst:
                t = x(lq) if callable(x) else x
                if t: a(t)

def dsop(text, tag=None):
    def f(lq):
        lq.issue(tag); return text
    return f
def dswait(tag, then=''):
    def f(lq):
        return lq.wait(tag) + '\n' + then
    return f

SV = dict(l8=0, pa=1, idx=2, k1=3, mf=12, acc=40, w=64)
def tile_of(w, u):
    if u < 5: return (u, w)
    order = {(0, 5): (5, 0), (1, 5): (5, 1), (2, 5): (5, 2), (2, 6): (5, 3), (0, 6): (6, 0), (1, 6): (6, 1), (0, 7): (6, 2), (1, 7): (6, 3)}
    return order[(w, u)]
NUNIT = [8, 8, 7, 5]
F = dict(l16=4, px=5, pm=6, mk0=7, mk1=8, mk2=9, wz=10, xf=88, tf=200, sa=228, t=240)

def score_setup(a, stamps, cfg):
    V = SV; LN = 44
    a(f'v_mov_b32 v{LN}, v1')
    team_register(a)
    common_addrs(a, V, LN)
    img_addr(a, V['k1'], LN+1, LN)
    g, cc, par, ib, t = LN+1, LN+2, LN+3, LN+4, LN+5
    a(f"""
    v_lshlrev_b32 v{F['l16']}, 4, v{LN}
    v_lshrrev_b32 v{g}, 4, v{LN}
    v_bfe_u32 v{cc}, v{LN}, 2, 2
    v_bfe_u32 v{par}, v{LN}, 1, 1
    v_and_b32 v{ib}, 1, v{LN}
    v_and_b32 v{t}, 15, v{LN}
    v_lshlrev_b32 v{F['px']}, 4, v{t}
    v_lshrrev_b32 v{t}, 1, v{g}
    v_lshl_add_u32 v{F['px']}, v{t}, 8, v{F['px']}
    v_and_b32 v{t}, 1, v{g}
    v_lshl_add_u32 v{F['px']}, v{t}, 3, v{F['px']}
    s_and_b32 s{S_T0}, s{S_ROLE}, 1
    s_lshl_b32 s{S_T0}, s{S_T0}, 4
    s_lshr_b32 s{S_T1}, s{S_ROLE}, 2
    s_lshl_b32 s{S_T1}, s{S_T1}, 9
    s_add_u32 s{S_T0}, s{S_T0}, s{S_T1}
    s_and_b32 s{S_T1}, s{S_ROLE}, 2
    s_lshl_b32 s{S_T1}, s{S_T1}, 1
    s_add_u32 s{S_T0}, s{S_T0}, s{S_T1}
    s_add_u32 s{S_T0}, s{S_T0}, 8192
    v_and_b32 v{F['pm']}, 0xffffffef, v{V['l8']}
    v_add_u32 v{F['pm']}, s{S_T0}, v{F['pm']}
    s_lshl_b32 s{S_T0}, s{S_ROLE}, 9
    v_add_u32 v{F['px']}, s{S_T0}, v{F['px']}
    v_lshlrev_b32 v{t}, 4, v{ib}
    v_mov_b32 v{F['mk2']}, 0xffff
    v_lshlrev_b32 v{F['mk2']}, v{t}, v{F['mk2']}
    v_cmp_eq_u32 vcc, v{cc}, v{g}
    v_mov_b32 v{t}, 0
    v_cndmask_b32 v{F['mk2']}, v{t}, v{F['mk2']}, vcc
    v_cmp_eq_u32 vcc, 0, v{par}
    v_mov_b32 v{t+1}, 0xff800000
    v_cndmask_b32 v{F['mk0']}, v{t}, v{F['mk2']}, vcc
    v_cndmask_b32 v{F['mk1']}, v{F['mk2']}, v{t}, vcc
    v_cndmask_b32 v{F['wz']}, v{t+1}, v{t}, vcc
    s_mul_i32 s{S_T1}, s{S_ROLE}, {28*14336}
    s_add_u32 s{S_T1}, s{S_T1}, {L.WT}
    """)
    done = a.newlabel('L_sw')
    fz = cfg['fused']
    if fz:
        a(f"v_min_u32 v{LN+8}, 27, v{LN}\nv_lshlrev_b32 v{LN+8}, 3, v{LN+8}\ns_mul_i32 s{S_T0}, s{S_ROLE}, {14*32}\nv_add_u32 v{LN+8}, s{S_T0}, v{LN+8}")
        wait_flags(a, LN+8, 1, LN+10)
    for w in range(4):
        nx = a.newlabel('L_swn')
        if w < 3: a(f's_cmp_lg_u32 s{S_WAVE}, {w}\ns_cbranch_scc1 {nx}')
        tiles = []
        for u in range(NUNIT[w]):
            b, ga = tile_of(w, u)
            tiles.append(((4*b+ga)*14336, [wreg_half(u*7 + k//2, V['w'], k % 2) for k in range(14)]))
        if fz:
            load_tiles(a, tiles, F['l16'], S_T1, 1, cfg['wfl'], [0])
            wait_flags(a, LN+8, 7, LN+10)
            load_tiles(a, tiles, F['l16'], S_T1, 2, cfg['wfl'], [0])
        else:
            load_tiles(a, tiles, F['l16'], S_T1, None, cfg['wfl'], [0], cfg['scap'])
        if w < 3: a(f's_branch {done}\n{nx}:')
    a(f"""
{done}:
    {team_mode_load(V['mf'], V['mf']+1) if not fz else ''}
    s_mov_b32 s{S_STEP}, 0
    s_mov_b32 s{S_MOFF}, {L.MB_M}
    s_mov_b32 s{S_POFF}, {L.MB_P}
    s_mov_b32 s{S_GOFF}, {L.XN}
    s_lshl_b32 s{S_STMP}, s{S_ROLE}, 2
    s_add_u32 s{S_STMP}, s{S_STMP}, s{S_WAVE}
    s_lshl_b32 s{S_STMP}, s{S_STMP}, 12
    s_add_u32 s{S_STMP}, s{S_STMP}, {L.STAMP}
    """)
    if fz:
        wait_ln(a, LN, 12)
    else:
        nf = a.newlabel('L_nx0')
        a(f's_cmp_lg_u32 s{S_WAVE}, 3\ns_cbranch_scc1 {nf}\ns_waitcnt vmcnt(30)\ns_mov_b32 s{S_T0}, s{S_GOFF}')
        load_1k_run(a, [vr(F['xf'] + 4*k, 4) for k in range(28)], F['l16'], S_T0, cfg['wfl'])
        a.label(nf)
    team_mode(a, V['mf'], V['mf']+1, primed=not fz)

def step_advance(a, gstride, xstride=114688):
    a(f"""
    s_add_u32 s{S_STEP}, s{S_STEP}, 1
    s_add_u32 s{S_MOFF}, s{S_MOFF}, 8192
    s_add_u32 s{S_POFF}, s{S_POFF}, 16384
    s_add_u32 s{S_GOFF}, s{S_GOFF}, {gstride}
    s_add_u32 s{S_XOFF}, s{S_XOFF}, {xstride}
    s_add_u32 s{S_STMP}, s{S_STMP}, 64
    """)

def rowred(a, op, x):
    for m in ('row_ror:8', 'row_ror:4', 'row_ror:2', 'row_ror:1'):
        for r in (x, x+1):
            a(f'{op}_dpp v{r}, v{r}, v{r} {m} row_mask:0xf bank_mask:0xf')

def score_wave(a, w, pf, stamps, cfg):
    V = SV; idx = V['idx']; mf = V['mf']
    top = a.newlabel(f'L_sc{w}_top'); first = a.newlabel(f'L_sc{w}_first')
    nunit = NUNIT[w]
    accof = lambda u: V['acc'] + 4*(u % 6)
    ok = {0: (0, 9, 2), 1: (2,), 2: (0, 9, 1, 2), 3: (4,) if cfg['fin1'] else (7, 8, 4)}[w]
    ST = (lambda k: f's_memtime s[{40+2*k}:{41+2*k}]' if k in ok else '') if stamps else (lambda k: '')
    def stamp(a, stamps, k):
        a(ST(k))
    xf, tf, sa, T = F['xf'], F['tf'], F['sa'], F['t']
    FA, FV = 8, 9
    HA = 11
    HT = ([5, 6, 7, 10] if w < 3 else [T+4, T+5, T+6, T+7])[:cfg['hdepth']]
    def load_x():
        a(f's_mov_b32 s{S_T0}, s{S_GOFF}')
        load_1k_run(a, [vr(xf + 4*k, 4) for k in range(28)], F['l16'], S_T0, cfg['wfl'])
    XW = cfg['xw']
    def dma_x(a=a):
        lo, hi = XW[w]
        a(f"""
        s_and_b32 s{S_T0}, s{S_STEP}, 1
        s_xor_b32 s{S_T0}, s{S_T0}, 1
        s_mul_i32 s{S_T0}, s{S_T0}, 28672
        s_add_u32 s{S_T0}, s{S_T0}, {LDS_X + lo*1024}
        s_add_u32 s{S_T1}, s{S_GOFF}, {28672 + lo*1024 - w*1792}
        """)
        for k in range(hi - lo):
            if k % 4 == 0:
                if k: a(f's_add_u32 s{S_T0}, s{S_T0}, 4096\ns_add_u32 s{S_T1}, s{S_T1}, 4096')
                a(f's_mov_b32 m0, s{S_T0}')
            a(f"buffer_load_dwordx4 v{V['pa']}, {WSRD}, s{S_T1} offen offset:{(k%4)*1024} {cfg['wfl']} lds")
    def read_x():
        a(f"""
        s_and_b32 s{S_T0}, s{S_STEP}, 1
        s_mul_i32 s{S_T0}, s{S_T0}, 28672
        v_add_u32 v{T}, s{S_T0}, v{F['l16']}
        """)
        for k in range(28): a(f'ds_read_b128 v[{xf+4*k}:{xf+4*k+3}], v{T} offset:{LDS_X + k*1024}')
    def zero_acc():
        for u in range(2 if cfg['m2'] else min(6, nunit)):
            a(f'v_mov_b64 v[{accof(u)}:{accof(u)+1}], 0\nv_mov_b64 v[{accof(u)+2}:{accof(u)+3}], 0')
        if w == 3:
            for k in range(4): a(f'v_mov_b64 v[{sa+2*k}:{sa+2*k+1}], 0')
            a(f"v_mov_b32 v{sa+8}, v{F['wz']}\nv_mov_b32 v{sa+9}, v{F['wz']}\nv_mov_b64 v[{sa+10}:{sa+11}], 0")
    a(f"v_lshrrev_b32 v{HA}, 1, v{V['l8']}\nv_min_u32 v{HA}, {55*4}, v{HA}\ns_and_b32 s{S_T0}, s{S_ROLE}, 3\ns_lshl_b32 s{S_T0}, s{S_T0}, 8\ns_add_u32 s{S_T0}, s{S_T0}, 7168\nv_add_u32 v{HA}, s{S_T0}, v{HA}")
    if w == 3:
        if cfg['fused']: load_x()
        a(f'v_and_b32 v{T+12}, {15*8}, v0\nv_lshlrev_b32 v{T+12}, 3, v{T+12}\nv_add_u32 v{T+12}, 6144, v{T+12}')
        if stamps: a('s_mov_b32 s40, 0\ns_mov_b32 s42, 0\ns_mov_b32 s44, 0')
        a(f's_mov_b32 s{S_EOFF}, 0\ns_lshl_b32 s{S_T0}, s{S_ROLE}, 2\ns_add_u32 s{S_T0}, s{S_T0}, 12288\nv_lshlrev_b32 v{T+14}, 4, v0\nv_add_u32 v{T+14}, s{S_T0}, v{T+14}\nv_mov_b32 v{T+15}, 0')
    else:
        a(f"v_add_u32 v{FA}, {LDS_FL + 4*w}, v{F['l16']}\nv_mov_b32 v{FV}, 0")
        for k in range(5): a(f'ds_write_b32 v{FA}, v{FV} offset:{k*1024}')
        a(f'v_and_b32 v4, {31*8}, v0\nv_lshlrev_b32 v4, 3, v4\nv_add_u32 v4, {w*2048}, v4')
    if w < 3 and not cfg['xin']: dma_x()
    if cfg['prio'][w]: a(f"s_setprio {cfg['prio'][w]}")
    zero_acc()
    if cfg.get('wgd'): a('s_memrealtime s[88:89]\ns_memrealtime s[96:97]')
    a(f's_branch {first}')
    if cfg['al'] is not None:
        a.raw('    .p2align 6')
        for _ in range(cfg['al'][w]): a.raw('    s_nop 0')
    a.label(top)
    zero_acc()
    stamp(a, stamps, 0)
    if cfg['msamp'] == 2: a(f'v_mov_b32 v{mf if w < 3 else T+13}, 0')
    if cfg['mdma'] == 2: a(f's_mov_b32 m0, {LDS_M}\ns_add_u32 s{S_T0}, s{S_MOFF}, 4096')
    elif cfg['mdma']: a(f's_mov_b32 m0, {LDS_M + w*2048}\ns_add_u32 s{S_T0}, s{S_MOFF}, {w*2048 - w*1792}')
    if not cfg['cutrig'] or w == 0: wait_hint(a, HA, S_MOFF, HT, delay=cfg['mdelay'], inner=cfg['hinner'])
    if cfg['cutrig'] and cfg['mdma'] != 2: a('s_barrier')
    if cfg['mdma']:
        got = a.newlabel('L_got')
        a(ST(9))
        nk = 2 if w < 3 else 1
        SA_ = (4 if w < 3 else T+12)
        def rnd(r):
            if cfg['msamp'] == 2:
                a(f"s_mov_b64 exec, {0x55555555 if w < 3 else 0x5555}\nbuffer_load_dword v{r}, v{SA_}, {WSRD}, s{S_MOFF} offen sc1\ns_mov_b64 exec, -1")
            elif cfg['msamp']: a(f"buffer_load_dword v{r}, v{SA_}, {WSRD}, s{S_MOFF} offen sc1")
            for k in range(nk): a(f"buffer_load_dwordx4 v{V['pa']}, {WSRD}, s{S_T0} offen offset:{k*1024} sc1 lds")
        r0, r1 = (mf, HT[1]) if w < 3 else (T+13, T+15)
        two = cfg['m2d']
        rnd(r0)
        a(f'v_add_u32 v{FV}, 1, v{FV}' if w < 3 else f's_add_u32 s{S_EOFF}, s{S_EOFF}, 1')
        a(f's_mov_b32 s{S_SAFE}, 0\ns_mov_b32 s{S_SPIN}, 1')
        if two:
            gap = two
            while gap > 0:
                a(f's_nop {min(gap, 16) - 1}'); gap -= 16
            rnd(r1)
        ex = (nk+1) if two else 0
        bad = a.newlabel('L_mbad'); okl = a.newlabel('L_mok')
        a(f"""
        {f's_waitcnt vmcnt({nk + ex})' if cfg['msamp'] else ''}
        {f'v_cmp_eq_u32 vcc, -1, v{r0}' if cfg['msamp'] else ''}
        {f's_cbranch_vccnz {bad}' if cfg['msamp'] else ''}
        s_waitcnt vmcnt({ex}) lgkmcnt(0)
{okl}:
        s_barrier
{got}:
        """)
        def coldb():
            lp = a.newlabel('L_mlp')
            a.label(bad)
            if two:
                a(f's_mov_b32 s{S_SPIN}, 2\ns_waitcnt vmcnt(0) lgkmcnt(0)\nv_cmp_eq_u32 vcc, -1, v{r1}\ns_cbranch_vccz {okl}')
            a.label(lp)
            rnd(r0)
            a(f"""
            s_add_u32 s{S_SPIN}, s{S_SPIN}, 1
            s_waitcnt vmcnt(0) lgkmcnt(0)
            v_cmp_eq_u32 vcc, -1, v{r0}
            s_cbranch_vccz {okl}
            s_cmp_lt_u32 s{S_SPIN}, s{S_LIM}
            s_cbranch_scc1 {lp}
            s_mov_b32 s{S_LIM}, 1
            s_branch {okl}
            """)
        a.cold.append(coldb)
        def coldf():
            a.label(first)
            a(f'v_add_u32 v{FV}, 1, v{FV}' if w < 3 else f's_add_u32 s{S_EOFF}, s{S_EOFF}, 1')
            a(f's_mov_b32 s{S_SAFE}, 1')
            poll_m(a, V)
            a(f's_branch {got}')
        a.cold.append(coldf)
    else:
        a.label(first)
        a(f'v_add_u32 v{FV}, 1, v{FV}' if w < 3 else f's_add_u32 s{S_EOFF}, s{S_EOFF}, 1')
        a(ST(9))
        if cfg['m2']: poll_m2(a, V, cfg['m2'], mf)
        else: poll_m(a, V)
    stamp(a, stamps, 1)
    if stamps and w < 3: a(f's_mov_b32 s{40+2*7}, s{S_SPIN}')
    lq = Q('lgkmcnt', 15)
    mrd = [dsop(f"ds_read_b64_tr_b16 v[{mf+4*b+2*hf}:{mf+4*b+2*hf+1}], v{V['l8']} offset:{LDS_M+b*1024+hf*512}", ('mf', b))
           for b in range(7) for hf in range(2)]
    for x in mrd[:cfg['mpre']]: a(x(lq))
    order = [(u, b) for b in range(7) for u in range(2)] + [(u, b) for u in range(2, nunit) for b in range(7)]
    ms = [(SM(accof(u), mf+4*b, wreg(u*7 + b, V['w']), idx), [('mf', b)] if u == 0 else []) for u, b in order]
    last = {u: i for i, (u, b) in enumerate(order)}
    def smfma(b):
        t4 = tf + 4*b
        return [(f"v_mfma_f32_16x16x32_bf16 v[{sa+8}:{sa+11}], v[{t4}:{t4+3}], v[{mf+4*b}:{mf+4*b+3}], " + f'v[{sa+8}:{sa+11}]', [('tf', b)]),
                (SM(sa, t4, vr(xf + 8*b, 8), idx), []),
                (SM(sa+4, t4, vr(xf + 56 + 8*b, 8), idx), [])]
    def tread(b, hf):
        return dsop(f"ds_read_b64_tr_b16 v[{tf+4*b+2*hf}:{tf+4*b+2*hf+1}], v{V['l8']} offset:{LDS_T+b*1024+hf*512}", ('tf', b))
    phases = [(0, 1, 2), (3, 4)]
    starts = []
    if w == 3:
        for ph in phases:
            starts.append(len(ms))
            for b in ph: ms += smfma(b)
    n = len(ms)
    gp = Gaps(n)
    for k, x in enumerate(mrd[cfg['mpre']:]): gp.put('ds', k, x)
    flag_after = {2, 4} | ({5} if w < 2 else {6})
    def post(u):
        A = accof(u); b, ga = tile_of(w, u)
        va = [f'v_add_f32 v{A}, v{A}, v{A+2}', f'v_add_f32 v{A+1}, v{A+1}, v{A+3}', f'v_cvt_pk_bf16_f32 v{A}, v{A}, v{A+1}']
        ds = [dsop(f"ds_write_b32 v{V['k1']}, v{A} offset:{LDS_T+b*1024+ga*128}", ('k', u))]
        if w < 3 and u in flag_after:
            ds.append(dsop(f'ds_write_b32 v{FA}, v{FV} offset:{sorted(flag_after).index(u)*1024}'))
        return va, ds
    g = 0
    done_at = {}
    for u in range(nunit - (0 if w == 3 else 1)):
        va, ds = post(u)
        g = max(g, last[u] + 3 - (len(va) - 3))
        for x in va: g = gp.put('va', g, x) + 1
        for x in ds: g = gp.put('ds', g, x, excl=True) + 1
        done_at[u] = g
    def zero_in_gaps(u, g):
        A = accof(u)
        for k in range(2):
            gg = g
            while gg < 7*u - 2 and (gp.va[gg] or (gp.ds[gg] and gp.ds[gg][-1][1])): gg += 1
            if gg >= 7*u - 2: gg = max(g, 7*u - 4 + k)
            gp.force('va', gg, f'v_mov_b64 v[{A+2*k}:{A+2*k+1}], 0')
    if cfg['m2']:
        gp.force('ds', cfg['m2w'], 's_waitcnt vmcnt(0)')
        for u in range(2, min(6, nunit)): zero_in_gaps(u, cfg['m2w'])
    for u in range(6, nunit): zero_in_gaps(u, done_at[u-6] + 1)
    if w == 3:
        for pi, ph in enumerate(phases):
            flagrd = f"ds_read_b128 v[{T}:{T+3}], v{F['l16']} offset:{LDS_FL + pi*1024}"
            lead = cfg['lead'][pi]
            g = max(starts[pi] - lead, done_at[max(ph)] if max(ph) < 5 else 0)
            g = min(g, starts[pi]-1)
            if cfg['pnop'][pi]: gp.force('ds', g, f"s_nop {cfg['pnop'][pi]-1}")
            gp.force('ds', g, dsop(flagrd, ('fl', pi)))
            ops = [tread(b, hf) for b in ph for hf in range(2)]
            for k, x in enumerate(ops):
                gp.force('ds', min(g + (k+1)//2, starts[pi]-1), x)
            FM = T+11
            def chk(lq, pi=pi):
                return lq.wait(('fl', pi)) + (f'\nv_min3_u32 v{FM}, v{T}, v{T+1}, v{T+2}' if pi == 0 else
                                              f'\nv_min3_u32 v{T}, v{T}, v{T+1}, v{T+2}\nv_min_u32 v{FM}, v{FM}, v{T}')
            gp.force('va', starts[pi], chk)
    if cfg['xin'] and XW[w][1] > XW[w][0]:
        sub = Asm(); dma_x(sub)
        grp = []; cur = []
        for _, x in sub.items:
            cur.append(x.text)
            if x.text.startswith('buffer'): grp.append('\n'.join(cur)); cur = []
        g = cfg['xin']
        for x in grp: g = gp.put('ds', g, x) + cfg['xstep']
    if w == 0 and cfg['phint'] < 0:
        gp.force('ds', n - 1 + cfg['phint'], f"""s_mov_b64 exec, 15
            buffer_store_dword v{FV}, v4, {WSRD}, s{S_POFF} offen {pf}
            s_mov_b64 exec, -1""")
    emit_stream(a, ms, gp, lq)
    hint = f"""s_mov_b64 exec, 15
        buffer_store_dword v{T+15}, v{T+14}, {WSRD}, s{S_POFF} offen {pf}
        s_mov_b64 exec, -1"""
    if w < 3:
        va, ds = post(nunit-1)
        A_ = accof(nunit-1)
        va = [f'v_pk_add_f32 v[{A_}:{A_+1}], v[{A_}:{A_+1}], v[{A_+2}:{A_+3}]', va[-1]]
        for x in va: a(x)
        for x in ds: a(x(lq))
        a(lq.drain())
        a('s_barrier')
        stamp(a, stamps, 2)
        if cfg['mdma']:
            again = a.newlabel('L_again')
            a(f"""
            {'s_waitcnt vmcnt(0)' if cfg['xin'] else ''}
            s_barrier
            v_mov_b32 v{mf}, {LDS_VD}
            ds_read_b32 v{mf}, v{mf}
            s_waitcnt lgkmcnt(0)
            v_cmp_eq_u32 vcc, v{mf}, v{FV}
            s_cbranch_vccnz {again}
            """)
            def colda():
                a.label(again)
                zero_acc()
                a(f's_branch {first}')
            a.cold.append(colda)
        elif cfg['quiet']: a(f"s_sleep {cfg['quiet']}")
    else:
        s = T
        mx = T+6; z = T+8; EA = tf; B1 = tf+4; B2 = tf+8; D1 = tf+12; D2 = tf+16; rz = T+10
        a(f"""
        v_mov_b64 v[{B1+2}:{B1+3}], 0
        v_mov_b64 v[{B2}:{B2+1}], 0
        v_mov_b32 v{B2+3}, 0
        v_mov_b32 v{EA+3}, 0
        """)
        for _ in range(cfg['b5nop']): a('s_nop 3')
        q = Q('lgkmcnt', 15)
        a(f"ds_read_b128 v[{T}:{T+3}], v{F['l16']} offset:{LDS_FL + 2048}"); q.issue('fl')
        for hf in range(2): a(tread(5, hf)(q))
        stamp(a, stamps, 2)
        a('s_barrier')
        stamp(a, stamps, 3)
        PX = lambda k: a('s_memtime s[52:53]') if stamps and cfg['px'] == k else None
        PX(0)
        for hf in range(2): a(tread(6, hf)(q))
        PX(1)
        if cfg['phint'] == 0: a(hint)
        PX(2)
        fl5 = [f'v_min3_u32 v{T}, v{T}, v{T+1}, v{T+2}', f'v_min_u32 v{FM}, v{FM}, v{T}', f'v_subrev_u32 v{FM}, s{S_EOFF}, v{FM}']
        for b in (5, 6):
            for m, tags in smfma(b):
                for tg in tags: a(q.wait(tg))
                if b == 6 and tags: PX(4)
                a(m)
                if fl5: a(fl5.pop(0))
            if b == 5: PX(3)
        a(ST(7))
        if cfg['phint'] == 1: a(hint)
        e = sa
        redo = a.newlabel('L_smr'); slowmx = a.newlabel('L_sms'); go = a.newlabel('L_smg')
        a(f"""
        s_mov_b32 s{S_T1}, {120 << 23}
        s_mov_b32 s{S_SPIN}, 0
        v_add_f32_dpp v{s+4}, v{sa+10}, v{sa+8} {QP}
        v_add_f32_dpp v{s+5}, v{sa+11}, v{sa+9} {QP}
        v_pk_add_f32 v[{s}:{s+1}], v[{sa}:{sa+1}], v[{sa+2}:{sa+3}]
        v_exp_f32 v{e+8}, v{s+4}
        v_exp_f32 v{e+9}, v{s+5}
        v_pk_add_f32 v[{s+2}:{s+3}], v[{sa+4}:{sa+5}], v[{sa+6}:{sa+7}]
        v_exp_f32 v{e}, v{s}
        v_exp_f32 v{e+1}, v{s+1}
        v_exp_f32 v{e+2}, v{s+2}
        v_exp_f32 v{e+3}, v{s+3}
{redo}:;nf
        v_pk_add_f32 v[{z}:{z+1}], v[{e}:{e+1}], v[{e+8}:{e+9}]
        v_cvt_pk_bf16_f32 v{EA+2}, v{e+8}, v{e+9}
        v_pk_add_f32 v[{z}:{z+1}], v[{z}:{z+1}], v[{e+2}:{e+3}]
        """)
        if cfg['phint'] == 2: a(hint)
        fill = [f'v_cvt_pk_bf16_f32 v{EA+k}, v{e+2*k}, v{e+2*k+1}' for k in range(2)]
        for m in ('row_ror:8', 'row_ror:4', 'row_ror:2', 'row_ror:1'):
            if fill: a(fill.pop(0))
            for r in (z, z+1):
                a(f'v_add_f32_dpp v{r}, v{r}, v{r} {m} row_mask:0xf bank_mask:0xf')
        LO, HI = (127-60) << 23, (127+60) << 23
        a(ST(8))
        a(f"""
        v_rcp_f32 v{mx}, v{z}
        v_rcp_f32 v{mx+1}, v{z+1}
        v_subrev_u32 v{z}, {LO}, v{z}
        v_cvt_pk_bf16_f32 v{rz}, v{mx}, v{mx+1}
        v_and_b32 v{B1}, v{rz}, v{F['mk0']}
        v_and_b32 v{B1+1}, v{rz}, v{F['mk1']}
        v_and_b32 v{B2+2}, v{rz}, v{F['mk2']}
        v_subrev_u32 v{z+1}, {LO}, v{z+1}
        v_mfma_f32_16x16x32_bf16 v[{D1}:{D1+3}], v[{EA}:{EA+3}], v[{B1}:{B1+3}], 0
        v_mfma_f32_16x16x32_bf16 v[{D2}:{D2+3}], v[{EA}:{EA+3}], v[{B2}:{B2+3}], 0
        v_max3_u32 v{z}, v{z}, v{z+1}, v{FM}
        v_cmp_lt_u32 vcc, s{S_T1}, v{z}
        s_cmp_eq_u64 vcc, 0
        s_cselect_b64 exec, -1, 0
        v_cvt_pk_bf16_f32 v{D1}, v{D1}, v{D1+1}
        v_cvt_pk_bf16_f32 v{D1+1}, v{D1+2}, v{D1+3}
        buffer_store_dwordx2 v[{D1}:{D1+1}], v{F['px']}, {WSRD}, s{S_POFF} offen {pf}
        v_cvt_pk_bf16_f32 v{D2}, v{D2}, v{D2+1}
        buffer_store_dword v{D2}, v{F['pm']}, {WSRD}, s{S_POFF} offen {pf}
        s_mov_b64 exec, -1
        s_cbranch_scc0 {slowmx}
        """)
        if cfg['mdma']: a('s_barrier')
        def coldmx():
            a(f'{slowmx}:' + ('\ns_add_u32 s40, s40, 1' if stamps else ''))
            loc = a.newlabel('L_loc'); sf = a.newlabel('L_safe')
            a(f's_cmp_eq_u32 s{S_SPIN}, 0\ns_cbranch_scc1 {loc}')
            if cfg['mdma']:
                a(f"""
                s_cmp_lg_u32 s{S_SAFE}, 0
                s_cbranch_scc1 {sf}
                {'s_add_u32 s86, s86, 1' if cfg.get('wgd') else ''}
                v_mov_b32 v{T}, {LDS_VD}
                v_mov_b32 v{T+1}, s{S_EOFF}
                ds_write_b32 v{T}, v{T+1}
                s_waitcnt lgkmcnt(0)
                s_barrier
                """)
                zero_acc()
                a(f's_branch {first}')
            a(f'{sf}:\ns_mov_b32 s{S_T1}, -1\ns_branch {redo}\n{loc}:\ns_mov_b32 s{S_SPIN}, 1\nv_mov_b32 v{FM}, 0')
            if cfg.get('wgd'): a('s_add_u32 s85, s85, 1')
            for k in range(4): a(f'v_mov_b64 v[{sa+2*k}:{sa+2*k+1}], 0')
            a(f"v_mov_b32 v{sa+8}, v{F['wz']}\nv_mov_b32 v{sa+9}, v{F['wz']}\nv_mov_b64 v[{sa+10}:{sa+11}], 0")
            q2 = Q('lgkmcnt', 15)
            for b in range(7):
                for hf in range(2): a(tread(b, hf)(q2))
            a('s_waitcnt lgkmcnt(0)')
            for b in range(7):
                for m, tags in smfma(b): a(m)
            a(f"""
            v_mov_b64 v[{B1+2}:{B1+3}], 0
            v_mov_b64 v[{B2}:{B2+1}], 0
            v_mov_b32 v{B2+3}, 0
            v_mov_b32 v{EA+3}, 0
            v_add_f32_dpp v{s+4}, v{sa+10}, v{sa+8} {QP}
            v_add_f32_dpp v{s+5}, v{sa+11}, v{sa+9} {QP}
            v_pk_add_f32 v[{s}:{s+1}], v[{sa}:{sa+1}], v[{sa+2}:{sa+3}]
            v_pk_add_f32 v[{s+2}:{s+3}], v[{sa+4}:{sa+5}], v[{sa+6}:{sa+7}]
            v_max3_f32 v{mx}, v{s}, v{s+4}, v{s+2}
            v_max3_f32 v{mx+1}, v{s+1}, v{s+5}, v{s+3}
            """)
            rowred(a, 'v_max_f32', mx)
            for k in range(3): a(f'v_pk_add_f32 v[{s+2*k}:{s+2*k+1}], v[{s+2*k}:{s+2*k+1}], v[{mx}:{mx+1}] neg_lo:[0,1] neg_hi:[0,1]')
            for k in range(6): a(f'v_exp_f32 v{e+(k if k < 4 else k+4)}, v{s+k}')
            a(f's_nop 1\ns_branch {redo}')
        a.cold.append(coldmx)
        stamp(a, stamps, 4)
    if stamps: a('s_memtime s[50:51]\ns_memrealtime s[60:61]')
    stamp_flush(a, stamps, 11, mf)
    step_advance(a, 28672, 458752)
    a(f's_cmp_ge_u32 s{S_STEP}, 63\ns_cbranch_scc1 L_exit')
    if w == 3: read_x()
    elif not cfg['nox'] and not cfg['xin']:
        if cfg['xs']: a(f"s_sleep {cfg['xs']}")
        dma_x()
    if cfg['ssleep'][w]:
        a(f"s_sleep {cfg['ssleep'][w]}")
    a(f's_branch {top}')
    a.flush_cold()

S_YD = 33; S_SAFE = 36; S_CV = 37; S_CU = 38; S_MD = 39
CV = dict(ha=160, one=161, zero=162, cu=163, hw=164, hm=165, nw=172, nr=173, pmr=72, l8=0, pa=1, idx=2, l16=3, pr=4, mw=6, lw=7, rw=8, rr=5, mf=12, acc=40, itm=72, vx=88, uf=96, tw=128, w=176)

def comb_setup(a, stamps, cfg):
    V = CV; LN = 112
    a(f'v_mov_b32 v{LN}, v1')
    team_register(a)
    common_addrs(a, V, LN)
    img_addr(a, V['mw'], LN+1, LN)
    a(f"""
    s_sub_u32 s{S_ROLE}, s{S_ROLE}, 16
    s_lshl_b32 s{S_ROLE}, s{S_ROLE}, 1
    s_and_b32 s{S_T0}, s{S_WAVE}, 1
    s_add_u32 s{S_T1}, s{S_ROLE}, s{S_T0}
    s_lshr_b32 s{S_T0}, s{S_T1}, 2
    s_lshl_b32 s{S_T0}, s{S_T0}, 10
    s_and_b32 s{S_T1}, s{S_T1}, 3
    s_lshl_b32 s{S_T1}, s{S_T1}, 7
    s_add_u32 s{S_T0}, s{S_T0}, s{S_T1}
    s_add_u32 s{S_T0}, s{S_T0}, 8192
    v_add_u32 v{V['mw']}, s{S_T0}, v{V['mw']}
    v_lshlrev_b32 v{V['l16']}, 4, v{LN}
    s_mul_i32 s{S_T0}, s{S_WAVE}, 28672
    s_add_u32 s{S_T0}, s{S_T0}, {LDS_BW}
    v_add_u32 v{V['lw']}, s{S_T0}, v{V['l16']}
    s_lshl_b32 s{S_T0}, s{S_WAVE}, 10
    v_add_u32 v{V['rw']}, s{S_T0}, v{V['l16']}
    v_add_u32 v{V['pr']}, s{S_T0}, v{V['rw']}
    s_and_b32 s{S_T0}, s{S_WAVE}, 1
    s_lshl_b32 s{S_T0}, s{S_T0}, 3
    v_add_u32 v{V['rr']}, s{S_T0}, v{V['l16']}
    s_mul_i32 s{S_T1}, s{S_WAVE}, {4*28}
    s_add_u32 s{S_T1}, s{S_T1}, s{S_ROLE}
    s_add_u32 s{S_T1}, s{S_T1}, 448
    s_mul_i32 s{S_T1}, s{S_T1}, 14336
    s_add_u32 s{S_T1}, s{S_T1}, {L.WT}
    """)
    toff = lambda u: ((u >> 1)*28 + (u & 1))*14336
    fz = cfg['fused']
    tiles = [(toff(u), [wreg_half(u*7 + k//2, V['w'], k % 2) for k in range(14)]) for u in range(6)]
    ltiles = [(toff(u), [vr(12 + (u-6)*116 + 4*k, 4) if u == 6 else vr(120 + 4*k, 4) for k in range(14)]) for u in (6, 7)]
    if fz:
        a(f"""
        v_bfe_u32 v{LN+4}, v{LN}, 2, 2
        v_mul_u32_u24 v{LN+4}, {14*32}, v{LN+4}
        v_and_b32 v{LN+5}, 3, v{LN}
        v_lshl_add_u32 v{LN+4}, v{LN+5}, 3, v{LN+4}
        s_mul_i32 s{S_T0}, s{S_WAVE}, 56
        s_lshr_b32 s{S_SPIN}, s{S_ROLE}, 2
        s_add_u32 s{S_T0}, s{S_T0}, s{S_SPIN}
        s_add_u32 s{S_T0}, s{S_T0}, 7
        s_lshl_b32 s{S_T0}, s{S_T0}, 5
        v_add_u32 v{LN+4}, s{S_T0}, v{LN+4}
        """)
        wait_flags(a, LN+4, 1, 100)
        load_tiles(a, ltiles + tiles, V['l16'], S_T1, 1, cfg['wfl'], [0])
        wait_flags(a, LN+4, 7, 100)
        load_tiles(a, ltiles + tiles, V['l16'], S_T1, 2, cfg['wfl'], [0])
    else:
        load_tiles(a, ltiles + tiles, V['l16'], S_T1, None, cfg['wfl'], [0], cfg['ccap'])
    if not fz:
        a(team_mode_load(104, 105))
        a(f"v_mov_b32 v106, 0\ns_mov_b32 s{S_CU}, {L.CNT_U}\ns_mov_b32 s{S_CV}, {L.CNT_I}")
        a(f'buffer_load_dword v107, v106, {WSRD}, s{S_CU} offen sc1\nbuffer_load_dword v109, v106, {WSRD}, s{S_CV} offen sc1')
    a('s_waitcnt vmcnt(28)')
    for u in (6, 7):
        for k in range(14):
            a(f"ds_write_b128 v{V['lw']}, {ltiles[u-6][1][k]} offset:{(u-6)*14336+k*1024}")
    a('s_waitcnt lgkmcnt(0)')
    if fz: wait_ln(a, LN, 100)
    a(f"""
    s_mov_b32 s{S_STEP}, 0
    s_mov_b32 s{S_MOFF}, {L.MB_M}
    s_mov_b32 s{S_POFF}, {L.MB_P}
    s_lshl_b32 s{S_GOFF}, s{S_ROLE}, 14
    s_lshl_b32 s{S_T0}, s{S_WAVE}, 12
    s_add_u32 s{S_GOFF}, s{S_GOFF}, s{S_T0}
    s_add_u32 s{S_GOFF}, s{S_GOFF}, {L.U}
    s_lshl_b32 s{S_XOFF}, s{S_ROLE}, 12
    s_add_u32 s{S_XOFF}, s{S_XOFF}, {L.VM}
    s_lshr_b32 s{S_STMP}, s{S_ROLE}, 1
    s_add_u32 s{S_STMP}, s{S_STMP}, 16
    s_lshl_b32 s{S_STMP}, s{S_STMP}, 2
    s_add_u32 s{S_STMP}, s{S_STMP}, s{S_WAVE}
    s_lshl_b32 s{S_STMP}, s{S_STMP}, 12
    s_add_u32 s{S_STMP}, s{S_STMP}, {L.STAMP}
    s_waitcnt vmcnt(0)
    """)
    a(f"""
    v_mov_b32 v{V['one']}, 1
    v_mov_b32 v{V['zero']}, 0
    v_mov_b32 v{V['cu']}, 0
    v_and_b32 v{V['ha']}, {120 if cfg['cutrig'] else 24}, v{V['l8']}
    v_lshrrev_b32 v{V['ha']}, 1, v{V['ha']}
    s_lshl_b32 s{S_T0}, s{S_WAVE}, 4
    s_mul_i32 s{S_T0}, s{S_T0}, {0 if cfg['cutrig'] else 1}
    s_and_b32 s{S_T1}, s{S_ROLE}, 6
    s_lshl_b32 s{S_T1}, s{S_T1}, 6
    s_add_u32 s{S_T0}, s{S_T0}, s{S_T1}
    s_add_u32 s{S_T0}, s{S_T0}, 12288
    v_add_u32 v{V['ha']}, s{S_T0}, v{V['ha']}
    s_lshl_b32 s{S_T0}, s{S_ROLE}, 1
    s_add_u32 s{S_T0}, s{S_T0}, s{S_WAVE}
    s_lshl_b32 s{S_T0}, s{S_T0}, 2
    s_add_u32 s{S_T0}, s{S_T0}, {8192 + 7168}
    v_lshlrev_b32 v{V['hw']}, 5, v{V['l8']}
    v_add_u32 v{V['hw']}, s{S_T0}, v{V['hw']}
    s_add_u32 s{S_YD}, s{S_XOFF}, 0x8000000
    v_lshrrev_b32 v{V['hm']}, 1, v{V['l8']}
    v_min_u32 v{V['hm']}, {55*4}, v{V['hm']}
    v_add_u32 v{V['hm']}, 7168, v{V['hm']}
    s_mov_b32 s56, 0
    v_lshrrev_b32 v{V['nw']}, 2, v{V['rw']}
    v_lshrrev_b32 v{V['nr']}, 1, v{V['l8']}
    s_lshl_b32 s{S_MD}, s{S_WAVE}, 11
    s_min_u32 s{S_MD}, s{S_MD}, 5120
    s_mov_b32 s{S_CU}, {L.CNT_U}
    """)
    for k in range(8): a(f"v_mov_b32 v{V['vx']+k}, 0")
    a(f"v_lshrrev_b32 v{V['pmr']}, 1, v{V['rw']}")
    team_mode(a, 104, 105, primed=not fz)
    if cfg['flags']:
        wait_cnt(a, S_CU, 28, 106, primed=not fz)
        a(f's_mov_b32 s{S_CV}, {L.CNT_I}')
        wait_cnt(a, S_CV, 98, 108, primed=not fz)
    for k in range(32): a(f"v_mov_b32 v{V['uf']+k}, 0")

def comb_wave(a, pf, stamps, cfg):
    V = CV; idx = V['idx']; mf = V['mf']; tw = V['tw']; uf = V['uf']; pa = V['pa']
    top = a.newlabel('L_cb_top'); nh0 = a.newlabel('L_nh')
    HT = [10, 11, 166, 167][:cfg['hdepth']]
    def store_vx(base, r):
        return [f"buffer_store_dwordx4 v[{r}:{r+3}], v{V['rw']}, {WSRD}, s{base} offen {cfg['xflags']}",
                f"s_add_u32 s{S_T1}, s{base}, 4096\nbuffer_store_dwordx4 v[{r+4}:{r+7}], v{V['rw']}, {WSRD}, s{S_T1} offen {cfg['xflags']}"]
    lq = Q('lgkmcnt', 15)
    def lread(lam, hf):
        return dsop(f"ds_read_b128 v[{tw+8*(lam%4)+4*hf}:{tw+8*(lam%4)+4*hf+3}], v{V['lw']} offset:{lam*2048+hf*1024}", ('lw', lam))
    def housekeeping_acc(a=a):
        for u in range(8):
            A = V['acc'] + 4*u
            a(f'v_mov_b64 v[{A}:{A+1}], 0\nv_mov_b64 v[{A+2}:{A+3}], 0')
    def housekeeping(a=a, acc=True):
        if acc: housekeeping_acc(a)
        for lam in range(4):
            for hf in range(2): a(lread(lam, hf)(lq))
    uload = lambda k: f"buffer_load_dwordx4 v[{uf+4*k}:{uf+4*k+3}], v{V['l16']}, {WSRD}, s{S_GOFF if k < 4 else S_EOFF} offen offset:{(k%4)*1024} {cfg['xflags']}"
    uorder = [] if cfg['nou'] else [4, 5, 6, 7, 0, 1, 2, 3]
    ue = uorder[:cfg['uearly']]; ul = uorder[cfg['uearly']:]
    housekeeping()
    t = mf
    slow = a.newlabel('L_cms'); back = a.newlabel('L_cmb'); redo = a.newlabel('L_cmr')
    pre = f"""s_add_u32 s{S_EOFF}, s{S_GOFF}, 16384
        s_lshl_b32 s{S_CU}, s{S_STEP}, 7
        s_add_u32 s{S_CU}, s{S_CU}, {L.CNT_U + 128}
        s_add_u32 s{S_T0}, s{S_MOFF}, s{S_MD}
        s_mov_b32 m0, s{S_MD}"""
    a(pre)
    if cfg.get('wgd'): a('s_memrealtime s[96:97]')
    a(f's_branch {top}')
    if cfg['al'] is not None:
        a.raw('    .p2align 6')
        for _ in range(cfg['al'][4]): a.raw('    s_nop 0')
    a(f'{nh0}:\ns_barrier')
    a.label(top)
    stamp(a, stamps, 0)
    if cfg['cdma']:
        a(f"""
        buffer_load_dwordx4 v{V['l16']}, {WSRD}, s{S_T0} offen sc1 lds
        buffer_load_dwordx4 v{V['l16']}, {WSRD}, s{S_T0} offen offset:1024 sc1 lds
        s_mov_b32 s{S_SAFE}, 0
        """)
        if ue: a('s_barrier')
        for k in ue: a(uload(k))
        a(f's_waitcnt vmcnt({len(ue)}) lgkmcnt(0)\ns_barrier\n{back}:')
        def coldr():
            a(f'{redo}:\ns_barrier\ns_mov_b32 s{S_SAFE}, 1\ns_add_u32 s{S_YD}, s{S_XOFF}, 0x8000000')
            if stamps: a(f's_add_u32 s{40+2*8}, s{40+2*8}, 1')
            if cfg.get('wgd'): a('s_add_u32 s84, s84, 1')
            housekeeping()
            poll_m(a, V)
            a(f's_branch {back}')
        a.cold.append(coldr)
    else:
        a(f"""
        buffer_load_dwordx4 v[{t}:{t+3}], v{pa}, {WSRD}, s{S_MOFF} offen sc1
        buffer_load_dwordx4 v[{t+4}:{t+7}], v{pa}, {WSRD}, s{S_MOFF} offen offset:768 sc1
        """)
        if ue: a('s_barrier')
        for k in ue: a(uload(k))
        a(f"""
        s_waitcnt vmcnt({len(ue)+1})
        ds_write_b128 v{pa}, v[{t}:{t+3}]
        v_max3_u32 v{t+8}, v{t}, v{t+1}, v{t+2}
        s_waitcnt vmcnt({len(ue)})
        ds_write_b128 v{pa}, v[{t+4}:{t+7}] offset:768
        v_max3_u32 v{t+8}, v{t+8}, v{t+3}, v{t+4}
        v_max3_u32 v{t+8}, v{t+8}, v{t+5}, v{t+6}
        v_max_u32 v{t+8}, v{t+8}, v{t+7}
        v_cmp_eq_u32 vcc, -1, v{t+8}
        s_cbranch_vccnz {slow}
        s_waitcnt lgkmcnt(0)
        s_barrier
{back}:
        """)
        def coldm():
            a.label(slow)
            if stamps: a(f's_add_u32 s{40+2*8}, s{40+2*8}, 1')
            poll_m(a, V)
            a(f's_branch {back}')
        a.cold.append(coldm)
    lq.drain()
    stamp(a, stamps, 1)
    mrd = [dsop(f"ds_read_b64_tr_b16 v[{mf+4*b+2*hf}:{mf+4*b+2*hf+1}], v{V['l8']} offset:{LDS_M+b*1024+hf*512}", ('mf', b))
           for b in range(7) for hf in range(2)]
    for x in mrd[:cfg['mpre']]: a(x(lq))
    ms = []; last = {}
    rorder = [(u, b) for b in range(7) for u in range(2)] + [(u, b) for u in range(2, 6) for b in range(7)]
    rb = 0
    for p in range(56):
        if p % 4 == 3:
            lam = p // 4; u = 6 + lam // 7; b = lam % 7
            ms.append((SM(V['acc']+4*u, mf+4*b, vr(tw+8*(lam % 4), 8), idx), [('mf', b), ('lw', lam)]))
        else:
            u, b = rorder[rb]; rb += 1
            ms.append((SM(V['acc']+4*u, mf+4*b, wreg(u*7+b, V['w']), idx), [('mf', b)]))
        last[u] = p
    gp = Gaps(56)
    for k, x in enumerate(mrd[cfg['mpre']:]): gp.put('ds', k, x)
    for lam in range(4, 14):
        g = 4*(lam-4) + 3
        g = gp.put('ds', g, lread(lam, 0)) + 1
        gp.put('ds', g, lread(lam, 1))
    g = 0
    for k in ul: g = gp.put('va', g, uload(k)) + cfg['ustep']
    if cfg['flags']:
        g = gp.put('va', g, f"buffer_load_dword v{V['cu']}, v{V['zero']}, {WSRD}, s{S_CU} offen sc1") + 1
    for x in store_vx(S_YD, V['vx']): g = gp.put('va', g, x) + cfg['ustep']
    assert g - cfg['ustep'] < min(last.values()) + 3
    for k in range(len(HT)-1 if cfg['psl'] is None else 0):
        gp.put('ds', 55 - cfg['hpre'] + 4*k, f"buffer_load_dword v{HT[k]}, v{V['ha']}, {WSRD}, s{S_POFF} offen sc1")
    def post(u):
        A = V['acc'] + 4*u; hl = u >> 1; ctl = u & 1
        return ([f'v_pk_add_f32 v[{A}:{A+1}], v[{A}:{A+1}], v[{A+2}:{A+3}]'] if cfg['cpk'] else [f'v_add_f32 v{A}, v{A}, v{A+2}', f'v_add_f32 v{A+1}, v{A+1}, v{A+3}']) + [
                f"v_cvt_pk_bf16_f32 v{V['vx']+4*ctl+hl}, v{A}, v{A+1}"]
    tail = []; gprev = 0
    for u in sorted(last, key=lambda u: last[u]):
        g = max(last[u] + 3, gprev)
        if g + 4 >= 56: tail += post(u); continue
        for x in post(u): g = gp.put('va', g, x) + 1
        gprev = g
        if u == 0: done0 = g
    if cfg['cdma']:
        A0 = V['acc']; N = 168
        g = gp.put('va', done0, f'v_add_f32 v9, v{A0}, v{A0+1}') + 1
        g = gp.put('ds', g, dsop(f"ds_write_b32 v{V['nw']}, v9 offset:{LDS_NAN}", 'nw')) + 4
        gp.force('ds', g, dswait('nw', 's_barrier'))
        g = gp.put('ds', g+1, dsop(f"ds_read2st64_b32 v[{N}:{N+1}], v{V['nr']} offset0:{LDS_NAN//256} offset1:{LDS_NAN//256+1}")) + 1
        g = gp.put('ds', g, dsop(f"ds_read2st64_b32 v[{N+2}:{N+3}], v{V['nr']} offset0:{LDS_NAN//256+2} offset1:{LDS_NAN//256+3}", 'nr')) + 4
        g = gp.put('va', g, dswait('nr', f'v_add_f32 v{N}, v{N}, v{N+2}')) + 1
        g = gp.put('va', g, f'v_add_f32 v{N+1}, v{N+1}, v{N+3}') + 1
        g = gp.put('va', g, f'v_cmp_u_f32 vcc, v{N}, v{N+1}')
        assert g < 54
    emit_stream(a, ms, gp, lq)
    if cfg['cdma']:
        nb = a.newlabel('L_cnb'); nx = a.newlabel('L_cnx')
        a(f's_cbranch_vccnz {nb};nf\n{nx}:;nf')
        a.cold.append(lambda: a(f'{nb}:\ns_nop 7\ns_cmp_eq_u32 s{S_SAFE}, 0\ns_cbranch_scc1 {redo}\ns_branch {nx}'))
    for x in tail: a(x)
    lastl = a.newlabel('L_cbl')
    a(f's_cmp_ge_u32 s{S_STEP}, 63\ns_cbranch_scc1 {lastl}')
    def coldl():
        a.label(lastl)
        for x in store_vx(S_XOFF, V['vx']): a(x)
        a('s_branch L_exit')
    a.cold.append(coldl)
    stamp(a, stamps, 2)
    A = tw
    a(f's_add_u32 s{S_T0}, s{S_POFF}, 8192\ns_mov_b32 s{S_YD}, s{S_XOFF}')
    if stamps and cfg['sdrain']: a('s_waitcnt vmcnt(0)')
    stamp(a, stamps, 3)
    if cfg['psl'] is None:
        jn = a.newlabel('L_jn')
        a(f's_cmp_lg_u32 s{S_WAVE}, 0\ns_cbranch_scc1 {jn}')
        wait_hint(a, V['ha'], S_POFF, HT, delay=cfg['pdelay'], inner=cfg['hinner'], primed=True)
        a(f'{jn}:\ns_barrier')
    else:
        stamp_flush(a, stamps, 11, mf+24)
        if cfg['pw'] is not None:
            tot = cfg['pw'] - (16*cfg['fl'] if stamps else 0)
            for k in range(5): a(f's_nop {max(1, (tot + k) // 5) - 1}')
        else:
            if cfg['psl'] - (cfg['fl'] if stamps else 0) > 0: a(f"s_sleep {cfg['psl'] - (cfg['fl'] if stamps else 0)}")
            if cfg['pdelay']: a(f"s_nop {cfg['pdelay']-1}")
        if cfg['pbar']: a('s_barrier')
    stamp(a, stamps, 6)
    l = a.newlabel('L_pp'); d = a.newlabel('L_ppd'); retry = a.newlabel('L_ppr'); t = 9
    R = tw + 8
    B3 = [vr(uf, 8), vr(uf+8, 8), vr(V['itm'], 8)], [vr(uf+16, 8), vr(uf+24, 8), vr(V['itm']+8, 8)]
    mh = f"""s_mov_b64 exec, 15
        buffer_store_dword v{V['zero']}, v{V['hw']}, {WSRD}, s{S_MOFF} offen {pf}
        s_mov_b64 exec, -1"""
    def issue(p):
        a(f"""
        buffer_load_dwordx4 v[{p}:{p+3}], v{V['pr']}, {WSRD}, s{S_POFF} offen sc1
        buffer_load_dwordx4 v[{p+4}:{p+7}], v{V['pr']}, {WSRD}, s{S_POFF} offen offset:1024 sc1
        buffer_load_dwordx2 v[{p+8}:{p+9}], v{V['pmr']}, {WSRD}, s{S_T0} offen sc1
        """)
    def zero():
        for k in range(4): a(f'v_mov_b64 v[{A+2*k}:{A+2*k+1}], 0')
    def attempt(p, behind, hint_here):
        ex = behind
        a(f's_add_u32 s{S_SPIN}, s{S_SPIN}, 1')
        for k in range(3):
            a(f's_waitcnt vmcnt({2-k+ex})')
            S32 = lambda acc, B: f'v_smfmac_f32_16x16x32_bf16 v[{acc}:{acc+3}], v[{p+8}:{p+9}], {B}, v{idx}'
            a(SM(A, p+4*k, B3[0][k], idx) if k < 2 else S32(A, vr(V['vx'], 4)))
            a(f'v_max_u32 v{t}, v{p}, v{p+2}' if k == 0 else f'v_max3_u32 v{t}, v{t}, v{p+4*k}, v{p+4*k+(2 if k < 2 else 1)}')
            a(SM(A+4, p+4*k, B3[1][k], idx) if k < 2 else S32(A+4, vr(V['vx']+4, 4)))
            if hint_here and k == cfg['mhk']:
                if cfg['mhint'] == 3:
                    a(f"""v_cmp_eq_u32 vcc, -1, v{t}
                    s_cmp_eq_u64 vcc, 0
                    s_cselect_b64 exec, 15, 0
                    buffer_store_dword v{V['zero']}, v{V['hw']}, {WSRD}, s{S_MOFF} offen {pf}
                    s_mov_b64 exec, -1""")
                else: a(mh)
                ex += 1
        a(f'v_cmp_eq_u32 vcc, -1, v{t}')
    a(f's_mov_b32 s{S_SPIN}, 0')
    issue(mf)
    zero()
    housekeeping_acc()
    if cfg['p2']:
        gap = cfg['p2'] - 16
        while gap > 0:
            a(f's_nop {min(gap, 16) - 1}'); gap -= 16
        issue(mf+12)
    if cfg['mhint'] == 0:
        for _ in range(cfg['mhnop']): a('s_nop 3')
        a(mh)
    attempt(mf, (3 if cfg['p2'] else 0) + (cfg['mhint'] == 0), cfg['mhint'] >= 2)
    a(f's_cbranch_vccnz {retry};nf\n{d}:;nf')
    def coldp():
        a(f'{retry}:\ns_nop 7')
        if cfg['p2']:
            a.label(l)
            issue(mf)
            zero()
            attempt(mf+12, 3, cfg['mhint'] == 3)
            a(f's_cbranch_vccz {d}')
            issue(mf+12)
            zero()
            attempt(mf, 3, cfg['mhint'] == 3)
        else:
            a.label(l)
            issue(mf)
            zero()
            attempt(mf, 0, cfg['mhint'] == 3)
        a(f"""
        s_cbranch_vccz {d}
        s_cmp_lt_u32 s{S_SPIN}, s{S_LIM}
        s_cbranch_scc1 {l}
        s_mov_b32 s{S_LIM}, 1
        s_branch {d}
        """)
    a.cold.append(coldp)
    stamp(a, stamps, 4)
    if cfg['mhint'] == 1: a(mh)
    if stamps: a(f's_mov_b32 s{40+2*7}, s{S_SPIN}')
    if cfg.get('wgd'): a(f's_add_u32 s83, s83, s{S_SPIN}')
    if cfg['flags']: a(f"v_readfirstlane_b32 s{S_CV}, v{V['cu']}")
    hiw = a.newlabel('L_cbh'); nh = nh0; ny = a.newlabel('L_cny')
    def chores():
        if cfg['flags']:
            slow2 = a.newlabel('L_us'); back2 = a.newlabel('L_ub')
            a(f's_cmp_lt_u32 s{S_CV}, 28\ns_cbranch_scc1 {slow2}\n{back2}:')
            def coldu():
                a.label(slow2)
                wait_cnt(a, S_CU, 28, 174)
                a(f's_branch {back2}')
            a.cold.append(coldu)
        step_advance(a, 458752)
        a(pre)
        housekeeping(a, False)
    def hi_tail():
        w2 = a.newlabel('L_cw2')
        ld = lambda r: f"buffer_load_dword v{r}, v{V['hm']}, {WSRD}, s{S_T1} offen sc1"
        a(f"""
{hiw}:
        s_add_u32 s{S_T1}, s{S_MOFF}, 8192
        s_cmp_eq_u32 s{S_WAVE}, 2
        s_cbranch_scc1 {w2}
        {ld(HT[0])}
        s_waitcnt lgkmcnt(0)
        {ld(HT[1])}
        s_barrier
        {ld(HT[2])}
        """)
        stamp(a, stamps, 5)
        chores()
        wait_hint(a, V['hm'], S_MOFF, HT, delay=cfg['cdelay'], inner=cfg['hinner'], primed=True)
        a(f's_branch {nh}\n{w2}:\ns_waitcnt lgkmcnt(0)\ns_barrier')
        if cfg['cq']: a(f"s_sleep {cfg['cq']}")
        stamp(a, stamps, 5)
        chores()
        a(f's_branch {nh}')
    a.cold.append(hi_tail)
    a(f"""
    v_pk_add_f32 v[{R}:{R+1}], v[{A}:{A+1}], v[{A+2}:{A+3}]
    v_pk_add_f32 v[{R+2}:{R+3}], v[{A+4}:{A+5}], v[{A+6}:{A+7}]
    ds_write_b128 v{V['rw']}, v[{R}:{R+3}] offset:{LDS_RED}
    s_cmp_ge_u32 s{S_WAVE}, 2
    s_cbranch_scc1 {hiw}
    s_waitcnt lgkmcnt(0)
    s_barrier
    ds_read_b64 v[{R}:{R+1}], v{V['rr']} offset:{LDS_RED}
    ds_read_b64 v[{R+2}:{R+3}], v{V['rr']} offset:{LDS_RED+1024}
    ds_read_b64 v[{R+4}:{R+5}], v{V['rr']} offset:{LDS_RED+2048}
    ds_read_b64 v[{R+6}:{R+7}], v{V['rr']} offset:{LDS_RED+3072}
    s_waitcnt lgkmcnt(2)
    v_pk_add_f32 v[{R}:{R+1}], v[{R}:{R+1}], v[{R+2}:{R+3}]
    s_waitcnt lgkmcnt(0)
    v_pk_add_f32 v[{R+4}:{R+5}], v[{R+4}:{R+5}], v[{R+6}:{R+7}]
    v_pk_add_f32 v[{R}:{R+1}], v[{R}:{R+1}], v[{R+4}:{R+5}]
    v_cvt_pk_bf16_f32 v9, v{R}, v{R+1}
    buffer_store_dword v9, v{V['mw']}, {WSRD}, s{S_MOFF} offen {pf}
    """)
    stamp(a, stamps, 5)
    a(f"""
    s_cmp_lt_u32 s{S_STEP}, 62
    s_cbranch_scc1 {ny}
    s_add_u32 s{S_T0}, s{S_MOFF}, {L.MB_Y - L.MB_M}
    buffer_store_dword v9, v{V['mw']}, {WSRD}, s{S_T0} offen sc1
{ny}:
    """)
    chores()
    a(f's_branch {nh}')
    while a.cold: a.flush_cold()

def helper_cu(a, cfg):
    V = dict(l8=0, pa=1, idx=2, mf=12); LN = 112
    NP = cfg['npf']; D = cfg['pfd']; PER = cfg['pfper']
    a(f'v_mov_b32 v{LN}, v1')
    team_register(a)
    common_addrs(a, V, LN)
    a(f"""
    v_lshlrev_b32 v4, 7, v{LN}
    v_mov_b32 v3, v4
    v_mov_b32 v5, 0
    v_mov_b32 v6, 14
    s_sub_u32 s{S_ROLE}, s{S_ROLE}, 30
    s_lshl_b32 s{S_EOFF}, s{S_ROLE}, 2
    s_add_u32 s{S_EOFF}, s{S_EOFF}, s{S_WAVE}
    s_mov_b32 s{S_STEP}, 0
    s_mov_b32 s{S_MOFF}, {L.MB_M + 8192}
    s_mov_b32 s{S_CV}, {L.DUMMY + 0x200000}
    s_mul_i32 s{S_GOFF}, s{S_EOFF}, 7168
    s_add_u32 s{S_GOFF}, s{S_GOFF}, {L.XN}
    s_mov_b32 s{S_POFF}, 28672
    s_cmp_lt_u32 s{S_EOFF}, 4
    s_cbranch_scc1 H_t
    s_sub_u32 s{S_GOFF}, s{S_EOFF}, 4
    s_mul_i32 s{S_GOFF}, s{S_GOFF}, 6144
    s_add_u32 s{S_GOFF}, s{S_GOFF}, {L.MB_P}
    s_mov_b32 s{S_POFF}, 16384
    s_cmp_lt_u32 s{S_EOFF}, 6
    s_cbranch_scc1 H_t
    s_mov_b32 s{S_GOFF}, {L.MB_M + 8192}
    s_mov_b32 s{S_POFF}, 8192
    s_cmp_lt_u32 s{S_EOFF}, {7 if cfg['tlb'] else 8}
    s_cbranch_scc1 H_t
    s_mov_b32 s{S_GOFF}, {L.U + cfg['tlb']*458752}
    s_mov_b32 s{S_POFF}, 458752
    v_mul_u32_u24 v3, 7168, v{LN}
H_t:
    """)
    def mtouch():
        a(f'buffer_load_dword v7, v3, {WSRD}, s{S_GOFF} offen sc1\ns_add_u32 s{S_GOFF}, s{S_GOFF}, s{S_POFF}')
    if cfg['fused']: wait_ln(a, LN, 100)
    team_mode(a, V['mf'], V['mf']+1)
    a(f's_mov_b32 s{S_LIM}, {SPIN_MAX*4}')
    a(f"""
    s_getpc_b64 s[70:71]
H_pc:
    s_lshl_b32 s{S_T0}, s{S_EOFF}, 12
    v_lshrrev_b32 v10, 1, v4
    s_add_u32 s70, s70, s{S_T0}
    s_addc_u32 s71, s71, 0
    s_add_u32 s70, s70, L_nothelp-H_pc
    s_addc_u32 s71, s71, 0
    s_mov_b32 s72, s{S_GOFF}
    s_mov_b32 s{S_SPIN}, 0
    s_mov_b32 s73, {L.MB_P}
H_warm:
    s_mov_b32 s{S_GOFF}, s72
    global_load_dword v8, v10, s[70:71] sc1
    """)
    for _ in range(D+1): mtouch()
    a(f"""
    buffer_load_dword v9, v5, {WSRD}, s73 offen sc1
    s_add_u32 s{S_SPIN}, s{S_SPIN}, 1
    s_waitcnt vmcnt(0)
    v_cmp_eq_u32 vcc, -1, v9
    s_cbranch_vccz H_warmed
    s_sleep 8
    s_cmp_lt_u32 s{S_SPIN}, s{S_LIM}
    s_cbranch_scc1 H_warm
H_warmed:
    """)
    mul = {2: (128, 8), 3: (86, 8)}[PER]
    for k in range(NP):
        a(f"""
        s_add_u32 s{S_T0}, s{S_EOFF}, {8*k}
        s_min_u32 s{S_T0}, s{S_T0}, {14*PER-1}
        s_mul_i32 s{S_T1}, s{S_T0}, {mul[0]}
        s_lshr_b32 s{S_T1}, s{S_T1}, {mul[1]}
        s_mul_i32 s{S_T1}, s{S_T1}, {4-PER}
        s_add_u32 s{S_T0}, s{S_T0}, s{S_T1}
        s_lshl_b32 s{60+k}, s{S_T0}, 13
        s_add_u32 s{60+k}, s{60+k}, {L.U}
        """)
    def utouch():
        for k in range(NP):
            a(f'buffer_load_dword v{32+k}, v4, {WSRD}, s{60+k} offen sc1\ns_add_u32 s{60+k}, s{60+k}, 458752')
    a(f's_mov_b32 s{S_CU}, {L.CNT_U}')
    for _ in range(D if NP else 0):
        if cfg['flags']: wait_cnt(a, S_CU, 28, 30)
        utouch()
        a(f's_add_u32 s{S_CU}, s{S_CU}, 128')
    t = V['mf']; pa = V['pa']
    sk = a.newlabel('H_sk'); sk2 = a.newlabel('H_sk'); ok = a.newlabel('H_ok')
    a(f"""
H_top:
    s_mov_b32 s{S_SPIN}, 0
H_poll:
    buffer_load_dwordx4 v[{t}:{t+3}], v{pa}, {WSRD}, s{S_MOFF} offen sc1
    buffer_load_dwordx4 v[{t+4}:{t+7}], v{pa}, {WSRD}, s{S_MOFF} offen offset:768 sc1
    buffer_load_dword v30, v5, {WSRD}, s{S_CU} offen sc1
    s_add_u32 s{S_SPIN}, s{S_SPIN}, 1
    s_waitcnt vmcnt(0)
    v_max3_u32 v{t+8}, v{t}, v{t+1}, v{t+2}
    v_max3_u32 v{t+8}, v{t+8}, v{t+3}, v{t+4}
    v_max3_u32 v{t+8}, v{t+8}, v{t+5}, v{t+6}
    v_max_u32 v{t+8}, v{t+8}, v{t+7}
    v_readfirstlane_b32 s{S_T0}, v30
    v_cmp_eq_u32 vcc, -1, v{t+8}
    s_cbranch_vccz {ok}
    s_sleep {cfg['hsleep']}
    s_cmp_lt_u32 s{S_SPIN}, s{S_LIM}
    s_cbranch_scc1 H_poll
    s_mov_b32 s{S_LIM}, 1
{ok}:
    s_cmp_lg_u32 s{S_ROLE}, 0
    s_cbranch_scc1 {sk}
    s_add_u32 s{S_T1}, s{S_MOFF}, {L.MB_Y - L.MB_M}
    buffer_store_dwordx4 v[{t}:{t+3}], v{pa}, {WSRD}, s{S_T1} offen sc1
    buffer_store_dwordx4 v[{t+4}:{t+7}], v{pa}, {WSRD}, s{S_T1} offen offset:768 sc1
{sk}:
    s_cmp_ge_u32 s{S_STEP}, {63 - D}
    s_cbranch_scc1 {sk2}
    """)
    mtouch()
    if NP:
        sk3 = a.newlabel('H_sk'); sk4 = a.newlabel('H_sk')
        if cfg['flags']: a(f's_cmp_lt_u32 s{S_T0}, 28\ns_cbranch_scc1 {sk3}')
        utouch()
        a(f's_branch {sk4}\n{sk3}:')
        for k in range(NP): a(f's_add_u32 s{60+k}, s{60+k}, 458752')
        a(f'{sk4}:\ns_add_u32 s{S_CU}, s{S_CU}, 128')
    a(f"""
{sk2}:
    s_add_u32 s{S_STEP}, s{S_STEP}, 1
    s_add_u32 s{S_MOFF}, s{S_MOFF}, 8192
    s_cmp_lt_u32 s{S_STEP}, 62
    s_cbranch_scc1 H_top
    s_branch L_exit
    """)

DEFAULT_CFG = dict(ba=[35, 35, 34, 34], bak=3, bb=[53, 53, 0, 0], xflags='', ssleep=[2, 2, 2, 0], csleep=0, psleep=0, touch=1,
                   nou=0, nox=0, cflush=1, flags=0, ustep=3, hsleep=2, mdelay=14, pdelay=1, phint=9, lead=[4, 1], pnop=[0, 8], b5nop=2, npf=0, pfper=2, hdepth=4, hpre=10, psl=3, fl=1, mhk=0, px=9, quiet=7, cq=1, al=[0, 0, 0, 3, 1], prio=[0, 0, 0, 0], wfl='', fused=0, cpk=0, pw=41, fin1=0, tlb=0, xin=0, xstep=3, xs=2, xw=[(0, 9), (9, 18), (18, 28), (0, 0)], pbar=1, scap=None, ccap=None, m2=0, mdma=1, m2d=0, msamp=0, cdma=1, m2w=10, p2=32, cutrig=1, hinner=2, uearly=4, mhint=1, mhnop=0, sdrain=0, pfd=3, mpre=6, chint=1, cdelay=24)

def team_body(a, stamps=False, cfg=None):
    cfg = dict(DEFAULT_CFG, **(cfg or {}))
    a(f's_cmp_lt_u32 s{S_ROLE}, 30\ns_cbranch_scc1 L_nothelp')
    helper_cu(a, cfg)
    a.label('L_nothelp')
    a(f's_cmp_ge_u32 s{S_ROLE}, 16\ns_cbranch_scc1 L_comb')
    score_setup(a, stamps, cfg)
    for fast in (1, 0):
        a(f's_cmp_lg_u32 s{S_FAST}, {fast}\ns_cbranch_scc1 L_sc_next{fast}')
        for w in range(4):
            if w < 3:
                a(f's_cmp_lg_u32 s{S_WAVE}, {w}\ns_cbranch_scc1 L_sc{fast}_n{w}')
            score_wave(a, w, '' if fast else 'sc1', stamps, cfg)
            if w < 3: a.label(f'L_sc{fast}_n{w}')
        a.label(f'L_sc_next{fast}')
    a('s_branch L_exit')
    a.label('L_comb')
    comb_setup(a, stamps, cfg)
    for fast in (1, 0):
        a(f's_cmp_lg_u32 s{S_FAST}, {fast}\ns_cbranch_scc1 L_cb_next{fast}')
        comb_wave(a, '' if fast else 'sc1', stamps, cfg)
        a.label(f'L_cb_next{fast}')
    a('s_branch L_exit')
```

```python
from asmlib import *
import layout as L

SENT = -1
S_WS = 8
S_DBG = 12
S_ROLE = 16
S_WAVE = 17
S_XCC = 18
S_STEP = 19
S_FAST = 20
S_MOFF = 21; S_POFF = 22; S_EOFF = 23; S_GOFF = 24; S_XOFF = 25; S_T0 = 26; S_T1 = 27; S_SPIN = 28; S_LIM = 29
S_EXEC = 30
S_STMP = 32
S_TM = 34
SPIN_MAX = 20000
NTEAM = 32

LDS_M = 0
LDS_T = 7168
LDS_FL = 14336
LDS_VD = 18432
LDS_X = 20480
LDS_CF = 12288
LDS_NAN = 11264
LDS_RED = 7168
LDS_BW = 16384
LDS_ROLE = 160*1024 - 16

def prologue(a, stamps, pool_off=0, scatter=False, code=1, guess=0):
    if code:
        a('s_getpc_b64 s[40:41]\nM_pc:\nv_lshlrev_b32 v12, 7, v0\nglobal_load_dword v255, v12, s[40:41]')
        a('v_add_u32 v12, 32768, v12\nv_min_u32 v11, L_end-M_pc, v12\nglobal_load_dword v255, v11, s[40:41]')
    a(f'''
    s_cmp_ge_u32 s2, 256
    s_cbranch_scc1 L_end
    s_load_dwordx2 s[4:5], s[0:1], 96
    s_load_dwordx2 s[6:7], s[0:1], 88
    s_getreg_b32 s{S_XCC}, hwreg(HW_REG_XCC_ID, 0, 4)
    v_lshrrev_b32 v2, 6, v0
    v_and_b32 v1, 63, v0
    v_readfirstlane_b32 s{S_WAVE}, v2
    s_and_b32 s{S_XCC}, s{S_XCC}, 7
    s_waitcnt lgkmcnt(0)
    s_mov_b32 s{S_WS}, s4
    s_and_b32 s{S_WS+1}, s5, 0xffff
    s_mov_b32 s{S_WS+2}, {L.WS_BYTES}
    s_mov_b32 s{S_WS+3}, 0x20000
    s_mov_b32 s{S_DBG}, s6
    s_and_b32 s{S_DBG+1}, s7, 0xffff
    s_mov_b32 s{S_DBG+2}, 256
    s_mov_b32 s{S_DBG+3}, 0x20000
    v_mov_b32 v4, {LDS_ROLE}
    ''')
    if guess:
        a(f'''
        s_cmp_lg_u32 s{S_XCC}, 0
        s_cbranch_scc1 L_ng
        s_lshr_b32 s{S_T0}, s2, 3
        s_cmp_ge_u32 s{S_T0}, 30
        s_cbranch_scc1 L_ng
        s_mul_i32 s{S_T1}, s{S_T0}, 28
        s_add_u32 s{S_T1}, s{S_T1}, s{S_WAVE}
        s_mov_b32 s{S_STEP}, {4*14336}
        s_cmp_lt_u32 s{S_T0}, 16
        s_cbranch_scc1 L_gs
        s_lshl_b32 s{S_T1}, s{S_T0}, 1
        s_mul_i32 s{S_T0}, s{S_WAVE}, 112
        s_add_u32 s{S_T1}, s{S_T1}, s{S_T0}
        s_add_u32 s{S_T1}, s{S_T1}, {448 - 32 + 84}
        s_mov_b32 s{S_STEP}, 14336
L_gs:
        s_mul_i32 s{S_T1}, s{S_T1}, 14336
        s_add_u32 s{S_T1}, s{S_T1}, {L.WT}
        v_min_u32 v5, 55, v1
        v_lshlrev_b32 v5, 7, v5
        ''')
        for k in range(guess):
            a(f's_add_u32 s{S_T0}, s{S_T1}, 7168')
            a(f'buffer_load_dword v255, v5, s[{S_WS}:{S_WS+3}], s{S_T1} offen\nbuffer_load_dword v255, v5, s[{S_WS}:{S_WS+3}], s{S_T0} offen')
            a(f's_add_u32 s{S_T1}, s{S_T1}, s{S_STEP}')
        a.label('L_ng')
    a(f'''
    s_cmp_lg_u32 s{S_WAVE}, 0
    s_cbranch_scc1 L_role_wait
    s_mov_b64 exec, 1
    s_mov_b32 s{S_T0}, 0
L_role_try:
    {f's_lshr_b32 s{S_T1}, s2, 5' if scatter else f's_mov_b32 s{S_T1}, s{S_XCC}'}
    s_add_u32 s{S_T1}, s{S_T1}, s{S_T0}
    s_and_b32 s{S_T1}, s{S_T1}, 7
    s_lshl_b32 s{S_ROLE}, s{S_T1}, 7
    s_add_u32 s{S_ROLE}, s{S_ROLE}, {L.CNT_P + pool_off}
    v_mov_b32 v2, s{S_ROLE}
    v_mov_b32 v3, 1
    buffer_atomic_add v3, v2, s[{S_WS}:{S_WS+3}], 0 offen sc0
    s_waitcnt vmcnt(0)
    v_readfirstlane_b32 s{S_ROLE}, v3
    s_cmp_lt_u32 s{S_ROLE}, 32
    s_cbranch_scc1 L_role_got
    s_add_u32 s{S_T0}, s{S_T0}, 1
    s_cmp_lt_u32 s{S_T0}, 8
    s_cbranch_scc1 L_role_try
    s_mov_b32 s{S_ROLE}, 31
    s_mov_b32 s{S_T1}, 0
L_role_got:
    s_lshl_b32 s{S_T1}, s{S_T1}, 5
    s_add_u32 s{S_ROLE}, s{S_ROLE}, s{S_T1}
    v_mov_b32 v2, s{S_ROLE}
    ds_write_b32 v4, v2
    s_mov_b64 exec, -1
    s_waitcnt lgkmcnt(0)
L_role_wait:
    s_barrier
    ds_read_b32 v2, v4
    s_waitcnt lgkmcnt(0)
    v_readfirstlane_b32 s{S_ROLE}, v2
    ''')

FSL = [8, 32]
def wait_flags(a, vaddr, need, t, n=1):
    l = a.newlabel('L_wf'); d = a.newlabel('L_wfd')
    regs = [t] + [t+4+2*k for k in range(n-1)]
    a(f"""
    s_mov_b32 s{S_SPIN}, 0
    s_mov_b32 s{S_EXEC}, {L.FL}
    s_add_u32 s{S_EXEC+1}, s80, {need}
{l}:
    """)
    for k, r in enumerate(regs):
        a(f'buffer_load_dwordx2 v[{r}:{r+1}], v{vaddr}, s[{S_WS}:{S_WS+3}], s{S_EXEC} offen offset:{k*512} sc1')
    a(f's_add_u32 s{S_SPIN}, s{S_SPIN}, 1\ns_waitcnt vmcnt(0)')
    for k, r in enumerate(regs):
        a(f"""
        v_subrev_u32 v{r}, s{S_EXEC+1}, v{r}
        v_xor_b32 v{r+1}, s81, v{r+1}
        v_lshl_or_b32 v{t+2}, v{r+1}, 3, v{r+1}
        v_or_b32 v{r}, v{r}, v{t+2}
        """)
        if k: a(f'v_max_u32 v{t}, v{t}, v{r}')
    a(f"""
    v_cmp_lt_u32 vcc, {7 - need}, v{t}
    s_cbranch_vccz {d}
    s_sleep {FSL[n > 1]}
    s_cmp_lt_u32 s{S_SPIN}, {SPIN_MAX*4}
    s_cbranch_scc1 {l}
{d}:
    """)

def prologue_fused(a):
    a(f"""
    s_getreg_b32 s{S_XCC}, hwreg(HW_REG_XCC_ID, 0, 4)
    s_mov_b32 s{S_WAVE}, s20
    s_and_b32 s{S_XCC}, s{S_XCC}, 7
    s_mov_b32 s{S_DBG}, s56
    s_mov_b32 s{S_DBG+1}, s57
    s_mov_b32 s{S_DBG+2}, 256
    s_mov_b32 s{S_DBG+3}, 0x20000
    v_mov_b32 v4, {LDS_ROLE}
    s_cmp_lg_u32 s{S_WAVE}, 0
    s_barrier
    s_cbranch_scc1 L_role_wait
    s_mov_b64 exec, 1
    s_mov_b32 s{S_T0}, 0
    s_mov_b32 s{S_T1}, s{S_XCC}
    v_mov_b32 v3, v250
    s_branch L_role_see
L_role_try:
    s_add_u32 s{S_T1}, s{S_XCC}, s{S_T0}
    s_and_b32 s{S_T1}, s{S_T1}, 7
    s_lshl_b32 s{S_ROLE}, s{S_T1}, 2
    v_mov_b32 v2, s{S_ROLE}
    v_mov_b32 v3, 1
    buffer_atomic_add v3, v2, s[{S_DBG}:{S_DBG+3}], 0 offen sc0
    s_waitcnt vmcnt(0)
L_role_see:
    v_readfirstlane_b32 s{S_ROLE}, v3
    s_cmp_lt_u32 s{S_ROLE}, 32
    s_cbranch_scc1 L_role_got
    s_add_u32 s{S_T0}, s{S_T0}, 1
    s_cmp_lt_u32 s{S_T0}, 8
    s_cbranch_scc1 L_role_try
    s_mov_b32 s{S_ROLE}, 31
    s_mov_b32 s{S_T1}, 0
L_role_got:
    s_lshl_b32 s{S_T1}, s{S_T1}, 5
    s_add_u32 s{S_ROLE}, s{S_ROLE}, s{S_T1}
    v_mov_b32 v2, s{S_ROLE}
    ds_write_b32 v4, v2
    s_mov_b64 exec, -1
    s_waitcnt lgkmcnt(0)
L_role_wait:
    s_barrier
    ds_read_b32 v2, v4
    s_waitcnt lgkmcnt(0)
    v_readfirstlane_b32 s{S_ROLE}, v2
    """)

def wait_ln(a, lane, t):
    a(f's_lshl_b32 s{S_T0}, s{S_WAVE}, 11\nv_lshlrev_b32 v{t+3}, 3, v{lane}\nv_add_u32 v{t+3}, s{S_T0}, v{t+3}')
    wait_flags(a, t+3, 1, t, n=4)
    a('s_barrier')

STAGE1 = (0, 4, 8, 11)
def load_tiles(a, tiles, vaddr, sbase, stage, flags, bud, cap=None):
    for off, dsts in tiles:
        cur = None
        for k in range(14):
            if stage is not None and (k in STAGE1) != (stage == 1): continue
            if cur != k // 4:
                cur = k // 4
                a(f's_add_u32 s{S_T0}, s{sbase}, {off + cur*4096}')
            a(f'buffer_load_dwordx4 {dsts[k]}, v{vaddr}, s[{S_WS}:{S_WS+3}], s{S_T0} offen offset:{(k%4)*1024} {flags}')
            bud[0] += 1
            if cap is not None:
                if bud[0] > cap: a(f's_waitcnt vmcnt({cap})')
            elif bud[0] >= 56:
                a('s_waitcnt vmcnt(28)'); bud[0] = 28

def team_register(a):
    l = a.newlabel('L_reg')
    a(f'''
    s_cmp_lg_u32 s{S_WAVE}, 0
    s_cbranch_scc1 {l}
    s_cmp_eq_u32 s{S_XCC}, 0
    s_cselect_b32 s{S_T0}, 1, 0x10001
    s_mov_b64 exec, 1
    v_mov_b32 v2, 64
    v_mov_b32 v3, s{S_T0}
    buffer_atomic_add v3, v2, s[{S_DBG}:{S_DBG+3}], 0 offen
    s_mov_b64 exec, -1
{l}:
    ''')

def team_mode_load(vt0, vt1):
    return f'v_mov_b32 v{vt0}, 64\nbuffer_load_dword v{vt1}, v{vt0}, s[{S_DBG}:{S_DBG+3}], 0 offen sc1'

def team_mode(a, vt0, vt1, primed=False):
    l = a.newlabel('L_mode'); d = a.newlabel('L_moded'); p = a.newlabel('L_modep')
    a(f'''
    s_mov_b32 s{S_SPIN}, 0
    {f's_branch {p}' if primed else ''}
{l}:
    {team_mode_load(vt0, vt1)}
{p}:
    s_waitcnt vmcnt(0)
    v_readfirstlane_b32 s{S_T0}, v{vt1}
    s_and_b32 s{S_T1}, s{S_T0}, 0xffff
    s_cmp_ge_u32 s{S_T1}, {NTEAM}
    s_cbranch_scc1 {d}
    s_sleep 2
    s_add_u32 s{S_SPIN}, s{S_SPIN}, 1
    s_cmp_lt_u32 s{S_SPIN}, {SPIN_MAX}
    s_cbranch_scc1 {l}
    s_mov_b32 s{S_T0}, 0x10000
{d}:
    s_lshr_b32 s{S_T0}, s{S_T0}, 16
    s_cmp_eq_u32 s{S_T0}, 0
    s_cselect_b32 s{S_FAST}, 1, 0
    s_mov_b32 s{S_LIM}, {SPIN_MAX}
    ''')

def stamp(a, stamps, idx, vt=None):
    if not stamps: return
    a(f's_memtime s[{40+2*idx}:{41+2*idx}]')
    if idx == 2: a('s_memrealtime s[60:61]')

def stamp_flush(a, stamps, n, vt):
    if not stamps: return
    a('s_waitcnt lgkmcnt(0)')
    for k in range(n):
        a(f'v_writelane_b32 v{vt}, s{40+2*k}, {k}')
    a(f"""
    v_lshrrev_b32 v{vt+1}, 1, v0
    s_mov_b64 exec, {(1 << n) - 1}
    buffer_store_dword v{vt}, v{vt+1}, s[{S_WS}:{S_WS+3}], s{S_STMP} offen
    s_mov_b64 exec, -1
    """)

def wreg(wb, vbase):
    return ar(8*wb, 8) if wb < 32 else vr(vbase + 8*(wb-32), 8)
def wreg_half(wb, vbase, half):
    return ar(8*wb + 4*half, 4) if wb < 32 else vr(vbase + 8*(wb-32) + 4*half, 4)

def xlane4(a, op, x, t):
    a(f'''
    v_mov_b32 v{t}, v{x}
    v_permlane16_swap_b32 v{x}, v{t}
    {op} v{x}, v{x}, v{t}
    v_mov_b32 v{t}, v{x}
    v_permlane32_swap_b32 v{x}, v{t}
    {op} v{x}, v{x}, v{t}
    ''')

QP = 'quad_perm:[2,3,0,1] row_mask:0xf bank_mask:0xf'

def read_mf(a, V):
    for b in range(7):
        a(f"ds_read_b64_tr_b16 v[{V['mf']+4*b}:{V['mf']+4*b+1}], v{V['l8']} offset:{LDS_M+b*1024}")
        a(f"ds_read_b64_tr_b16 v[{V['mf']+4*b+2}:{V['mf']+4*b+3}], v{V['l8']} offset:{LDS_M+b*1024+512}")

def SM(acc, A, B, idx):
    return f'v_smfmac_f32_16x16x64_bf16 v[{acc}:{acc+3}], v[{A}:{A+3}], {B}, v{idx}'


class Q:
    def __init__(self, name, cap):
        self.name = name; self.n = 0; self.tags = {}; self.done = 0; self.cap = cap
    def issue(self, tag=None):
        self.n += 1
        if tag is not None: self.tags[tag] = self.n
    def wait(self, tag):
        k = self.tags[tag]
        if k <= self.done: return ''
        self.done = k
        return 's_waitcnt %s(%d)' % (self.name, min(self.n - k, self.cap))
    def drain(self):
        self.done = self.n
        return 's_waitcnt %s(0)' % self.name

WSRD = f's[{S_WS}:{S_WS+3}]'

def poll_m(a, V, sleep=0):
    t = V['mf']; pa = V['pa']
    l = a.newlabel('L_pm'); d = a.newlabel('L_pmd')
    a(f"""
    s_mov_b32 s{S_SPIN}, 0
{l}:
    buffer_load_dwordx4 v[{t}:{t+3}], v{pa}, {WSRD}, s{S_MOFF} offen sc1
    buffer_load_dwordx4 v[{t+4}:{t+7}], v{pa}, {WSRD}, s{S_MOFF} offen offset:768 sc1
    s_add_u32 s{S_SPIN}, s{S_SPIN}, 1
    s_waitcnt vmcnt(1)
    ds_write_b128 v{pa}, v[{t}:{t+3}]
    v_max3_u32 v{t+8}, v{t}, v{t+1}, v{t+2}
    s_waitcnt vmcnt(0)
    ds_write_b128 v{pa}, v[{t+4}:{t+7}] offset:768
    v_max3_u32 v{t+8}, v{t+8}, v{t+3}, v{t+4}
    v_max3_u32 v{t+8}, v{t+8}, v{t+5}, v{t+6}
    v_max_u32 v{t+8}, v{t+8}, v{t+7}
    v_cmp_eq_u32 vcc, -1, v{t+8}
    s_cbranch_vccz {d}
    {'s_sleep %d' % sleep if sleep else ''}
    s_cmp_lt_u32 s{S_SPIN}, s{S_LIM}
    s_cbranch_scc1 {l}
    s_mov_b32 s{S_LIM}, 1
{d}:
    s_waitcnt lgkmcnt(0)
    s_barrier
    """)

def poll_m2(a, V, gap, x):
    pa = V['pa']; sets = (V['acc']+8, V['acc']+16)
    l = a.newlabel('L_pm'); d = a.newlabel('L_pmd')
    def issue(t):
        a(f"""
        buffer_load_dwordx4 v[{t}:{t+3}], v{pa}, {WSRD}, s{S_MOFF} offen sc1
        buffer_load_dwordx4 v[{t+4}:{t+7}], v{pa}, {WSRD}, s{S_MOFF} offen offset:768 sc1
        """)
    def check(t):
        a(f"""
        s_add_u32 s{S_SPIN}, s{S_SPIN}, 1
        s_waitcnt vmcnt(3)
        ds_write_b128 v{pa}, v[{t}:{t+3}]
        v_max3_u32 v{x}, v{t}, v{t+1}, v{t+2}
        s_waitcnt vmcnt(2)
        ds_write_b128 v{pa}, v[{t+4}:{t+7}] offset:768
        v_max3_u32 v{x}, v{x}, v{t+3}, v{t+4}
        v_max3_u32 v{x}, v{x}, v{t+5}, v{t+6}
        v_max_u32 v{x}, v{x}, v{t+7}
        v_cmp_eq_u32 vcc, -1, v{x}
        """)
    a(f's_mov_b32 s{S_SPIN}, 0')
    issue(sets[0])
    while gap > 0:
        a(f's_nop {min(gap, 16) - 1}'); gap -= 16
    issue(sets[1]); check(sets[0])
    a(f's_cbranch_vccnz {l}\n{d}:\ns_waitcnt lgkmcnt(0)\ns_barrier')
    def cold():
        a.label(l)
        issue(sets[0]); check(sets[1])
        a(f's_cbranch_vccz {d}')
        issue(sets[1]); check(sets[0])
        a(f"""
        s_cbranch_vccz {d}
        s_cmp_lt_u32 s{S_SPIN}, s{S_LIM}
        s_cbranch_scc1 {l}
        s_mov_b32 s{S_LIM}, 1
        s_branch {d}
        """)
    a.cold.append(cold)

def wait_hint(a, vaddr, soff, regs, imm=0, delay=0, gap=12, inner=8, fill=None, primed=False):
    n = len(regs)
    l = a.newlabel('L_h'); d = a.newlabel('L_hd')
    ld = lambda r: f'buffer_load_dword v{r}, v{vaddr}, {WSRD}, s{soff} offen offset:{imm} sc1'
    a(f's_mov_b32 s{S_SPIN}, 0')
    fill = list(fill or [])
    per = -(-len(fill) // (n-1))
    for k in range(0 if primed else n-1):
        a(ld(regs[k]))
        for x in fill[k*per:(k+1)*per]: a(x)
        if per < gap: a(f's_nop {gap - per}')
    a.label(l)
    for k in range(n):
        a(f"""
        {ld(regs[(k+n-1) % n])}
        s_waitcnt vmcnt({n-1})
        v_cmp_eq_u32 vcc, -1, v{regs[k]}
        s_cbranch_vccz {d}
        s_nop {inner}
        """)
    a(f"""
    s_add_u32 s{S_SPIN}, s{S_SPIN}, 1
    s_cmp_lt_u32 s{S_SPIN}, s{S_LIM}
    s_cbranch_scc1 {l}
{d}:
    """)
    while delay > 0:
        a(f's_nop {min(delay, 16) - 1}'); delay -= 16

def wait_cnt(a, off_sgpr, target, vt, sleep=4, primed=False):
    l = a.newlabel('L_wc'); d = a.newlabel('L_wcd'); p = a.newlabel('L_wcp')
    a(f"""
    s_mov_b32 s{S_SPIN}, 0
    v_mov_b32 v{vt}, 0
    {f's_branch {p}' if primed else ''}
{l}:
    buffer_load_dword v{vt+1}, v{vt}, {WSRD}, s{off_sgpr} offen sc1
{p}:
    s_add_u32 s{S_SPIN}, s{S_SPIN}, 1
    s_waitcnt vmcnt(0)
    v_readfirstlane_b32 s{S_T0}, v{vt+1}
    s_cmp_ge_u32 s{S_T0}, {target}
    s_cbranch_scc1 {d}
    s_sleep {sleep}
    s_cmp_lt_u32 s{S_SPIN}, s{S_LIM}
    s_cbranch_scc1 {l}
    s_mov_b32 s{S_LIM}, 1
{d}:
    """)

def img_addr(a, dst, t, lane):
    a(f"""
    v_bfe_u32 v{dst}, v{lane}, 3, 1
    v_lshlrev_b32 v{dst}, 9, v{dst}
    v_bfe_u32 v{t}, v{lane}, 2, 1
    v_lshl_add_u32 v{dst}, v{t}, 6, v{dst}
    v_and_b32 v{t}, 1, v{lane}
    v_lshl_add_u32 v{dst}, v{t}, 5, v{dst}
    v_lshrrev_b32 v{t}, 4, v{lane}
    v_lshl_add_u32 v{dst}, v{t}, 3, v{dst}
    v_bfe_u32 v{t}, v{lane}, 1, 1
    v_lshl_add_u32 v{dst}, v{t}, 2, v{dst}
    """)

def common_addrs(a, V, LN):
    a(f"""
    v_lshlrev_b32 v{V['l8']}, 3, v{LN}
    s_mul_i32 s{S_T0}, s{S_WAVE}, {112*16}
    v_lshlrev_b32 v{V['pa']}, 4, v{LN}
    v_add_u32 v{V['pa']}, s{S_T0}, v{V['pa']}
    v_and_b32 v{LN+1}, 2, v{LN}
    v_cmp_ne_u32 vcc, 0, v{LN+1}
    v_mov_b32 v{LN+1}, 0x4444
    v_mov_b32 v{LN+2}, 0xeeee
    v_cndmask_b32 v{V['idx']}, v{LN+1}, v{LN+2}, vcc
    """)

def load_1k_run(a, dsts, vaddr, sbase, flags='', budget=None):
    for i, d in enumerate(dsts):
        if i and i % 4 == 0:
            a(f's_add_u32 s{sbase}, s{sbase}, 4096')
        a(f'buffer_load_dwordx4 {d}, v{vaddr}, {WSRD}, s{sbase} offen offset:{(i%4)*1024} {flags}')
        if budget is not None:
            budget[0] += 1
            if budget[0] >= 56:
                a('s_waitcnt vmcnt(28)'); budget[0] = 28

class Gaps:
    def __init__(self, n):
        self.ds = [[] for _ in range(n)]; self.va = [[] for _ in range(n)]; self.pre = [[] for _ in range(n)]
        self.n = n
    def put(self, kind, g, text, excl=False):
        while g < self.n - 1:
            if excl:
                if not self.ds[g] and not self.va[g]: break
            else:
                lst = self.ds[g] if kind == 'ds' else self.va[g]
                other = self.va[g] if kind == 'ds' else self.ds[g]
                if not lst and not (other and other[-1][1]): break
            g += 1
        (self.ds if kind == 'ds' else self.va)[g].append((text, excl))
        return g
    def force(self, kind, g, text):
        (self.ds if kind == 'ds' else self.va)[min(g, self.n-1)].append((text, False))

def emit_stream(a, mf, gp, lq, pre=None):
    for i, (m, tags) in enumerate(mf):
        for tg in tags:
            w = lq.wait(tg)
            if w: a(w)
        a(m)
        for lst in (gp.ds[i], gp.va[i]):
            for x, _ in lst:
                t = x(lq) if callable(x) else x
                if t: a(t)

def dsop(text, tag=None):
    def f(lq):
        lq.issue(tag); return text
    return f
def dswait(tag, then=''):
    def f(lq):
        return lq.wait(tag) + '\n' + then
    return f

SV = dict(l8=0, pa=1, idx=2, k1=3, mf=12, acc=40, w=64)
def tile_of(w, u):
    if u < 5: return (u, w)
    order = {(0, 5): (5, 0), (1, 5): (5, 1), (2, 5): (5, 2), (2, 6): (5, 3), (0, 6): (6, 0), (1, 6): (6, 1), (0, 7): (6, 2), (1, 7): (6, 3)}
    return order[(w, u)]
NUNIT = [8, 8, 7, 5]
F = dict(l16=4, px=5, pm=6, mk0=7, mk1=8, mk2=9, wz=10, xf=88, tf=200, sa=228, t=240)

def score_setup(a, stamps, cfg):
    V = SV; LN = 44
    a(f'v_mov_b32 v{LN}, v1')
    team_register(a)
    common_addrs(a, V, LN)
    img_addr(a, V['k1'], LN+1, LN)
    g, cc, par, ib, t = LN+1, LN+2, LN+3, LN+4, LN+5
    a(f"""
    v_lshlrev_b32 v{F['l16']}, 4, v{LN}
    v_lshrrev_b32 v{g}, 4, v{LN}
    v_bfe_u32 v{cc}, v{LN}, 2, 2
    v_bfe_u32 v{par}, v{LN}, 1, 1
    v_and_b32 v{ib}, 1, v{LN}
    v_and_b32 v{t}, 15, v{LN}
    v_lshlrev_b32 v{F['px']}, 4, v{t}
    v_lshrrev_b32 v{t}, 1, v{g}
    v_lshl_add_u32 v{F['px']}, v{t}, 8, v{F['px']}
    v_and_b32 v{t}, 1, v{g}
    v_lshl_add_u32 v{F['px']}, v{t}, 3, v{F['px']}
    s_and_b32 s{S_T0}, s{S_ROLE}, 1
    s_lshl_b32 s{S_T0}, s{S_T0}, 4
    s_lshr_b32 s{S_T1}, s{S_ROLE}, 2
    s_lshl_b32 s{S_T1}, s{S_T1}, 9
    s_add_u32 s{S_T0}, s{S_T0}, s{S_T1}
    s_and_b32 s{S_T1}, s{S_ROLE}, 2
    s_lshl_b32 s{S_T1}, s{S_T1}, 1
    s_add_u32 s{S_T0}, s{S_T0}, s{S_T1}
    s_add_u32 s{S_T0}, s{S_T0}, 8192
    v_and_b32 v{F['pm']}, 0xffffffef, v{V['l8']}
    v_add_u32 v{F['pm']}, s{S_T0}, v{F['pm']}
    s_lshl_b32 s{S_T0}, s{S_ROLE}, 9
    v_add_u32 v{F['px']}, s{S_T0}, v{F['px']}
    v_lshlrev_b32 v{t}, 4, v{ib}
    v_mov_b32 v{F['mk2']}, 0xffff
    v_lshlrev_b32 v{F['mk2']}, v{t}, v{F['mk2']}
    v_cmp_eq_u32 vcc, v{cc}, v{g}
    v_mov_b32 v{t}, 0
    v_cndmask_b32 v{F['mk2']}, v{t}, v{F['mk2']}, vcc
    v_cmp_eq_u32 vcc, 0, v{par}
    v_mov_b32 v{t+1}, 0xff800000
    v_cndmask_b32 v{F['mk0']}, v{t}, v{F['mk2']}, vcc
    v_cndmask_b32 v{F['mk1']}, v{F['mk2']}, v{t}, vcc
    v_cndmask_b32 v{F['wz']}, v{t+1}, v{t}, vcc
    s_mul_i32 s{S_T1}, s{S_ROLE}, {28*14336}
    s_add_u32 s{S_T1}, s{S_T1}, {L.WT}
    """)
    done = a.newlabel('L_sw')
    fz = cfg['fused']
    if fz:
        a(f"v_min_u32 v{LN+8}, 27, v{LN}\nv_lshlrev_b32 v{LN+8}, 3, v{LN+8}\ns_mul_i32 s{S_T0}, s{S_ROLE}, {14*32}\nv_add_u32 v{LN+8}, s{S_T0}, v{LN+8}")
        wait_flags(a, LN+8, 1, LN+10)
    for w in range(4):
        nx = a.newlabel('L_swn')
        if w < 3: a(f's_cmp_lg_u32 s{S_WAVE}, {w}\ns_cbranch_scc1 {nx}')
        tiles = []
        for u in range(NUNIT[w]):
            b, ga = tile_of(w, u)
            tiles.append(((4*b+ga)*14336, [wreg_half(u*7 + k//2, V['w'], k % 2) for k in range(14)]))
        if fz:
            load_tiles(a, tiles, F['l16'], S_T1, 1, cfg['wfl'], [0])
            wait_flags(a, LN+8, 7, LN+10)
            load_tiles(a, tiles, F['l16'], S_T1, 2, cfg['wfl'], [0])
        else:
            load_tiles(a, tiles, F['l16'], S_T1, None, cfg['wfl'], [0], cfg['scap'])
        if w < 3: a(f's_branch {done}\n{nx}:')
    a(f"""
{done}:
    {team_mode_load(V['mf'], V['mf']+1) if not fz else ''}
    s_mov_b32 s{S_STEP}, 0
    s_mov_b32 s{S_MOFF}, {L.MB_M}
    s_mov_b32 s{S_POFF}, {L.MB_P}
    s_mov_b32 s{S_GOFF}, {L.XN}
    s_lshl_b32 s{S_STMP}, s{S_ROLE}, 2
    s_add_u32 s{S_STMP}, s{S_STMP}, s{S_WAVE}
    s_lshl_b32 s{S_STMP}, s{S_STMP}, 12
    s_add_u32 s{S_STMP}, s{S_STMP}, {L.STAMP}
    """)
    if fz:
        wait_ln(a, LN, 12)
    else:
        nf = a.newlabel('L_nx0')
        a(f's_cmp_lg_u32 s{S_WAVE}, 3\ns_cbranch_scc1 {nf}\ns_waitcnt vmcnt(30)\ns_mov_b32 s{S_T0}, s{S_GOFF}')
        load_1k_run(a, [vr(F['xf'] + 4*k, 4) for k in range(28)], F['l16'], S_T0, cfg['wfl'])
        a.label(nf)
    team_mode(a, V['mf'], V['mf']+1, primed=not fz)

def step_advance(a, gstride, xstride=114688):
    a(f"""
    s_add_u32 s{S_STEP}, s{S_STEP}, 1
    s_add_u32 s{S_MOFF}, s{S_MOFF}, 8192
    s_add_u32 s{S_POFF}, s{S_POFF}, 16384
    s_add_u32 s{S_GOFF}, s{S_GOFF}, {gstride}
    s_add_u32 s{S_XOFF}, s{S_XOFF}, {xstride}
    s_add_u32 s{S_STMP}, s{S_STMP}, 64
    """)

def rowred(a, op, x):
    for m in ('row_ror:8', 'row_ror:4', 'row_ror:2', 'row_ror:1'):
        for r in (x, x+1):
            a(f'{op}_dpp v{r}, v{r}, v{r} {m} row_mask:0xf bank_mask:0xf')

def score_wave(a, w, pf, stamps, cfg):
    V = SV; idx = V['idx']; mf = V['mf']
    top = a.newlabel(f'L_sc{w}_top'); first = a.newlabel(f'L_sc{w}_first')
    nunit = NUNIT[w]
    accof = lambda u: V['acc'] + 4*(u % 6)
    ok = {0: (0, 9, 2), 1: (2,), 2: (0, 9, 1, 2), 3: (4,) if cfg['fin1'] else (7, 8, 4)}[w]
    ST = (lambda k: f's_memtime s[{40+2*k}:{41+2*k}]' if k in ok else '') if stamps else (lambda k: '')
    def stamp(a, stamps, k):
        a(ST(k))
    xf, tf, sa, T = F['xf'], F['tf'], F['sa'], F['t']
    FA, FV = 8, 9
    HA = 11
    HT = ([5, 6, 7, 10] if w < 3 else [T+4, T+5, T+6, T+7])[:cfg['hdepth']]
    def load_x():
        a(f's_mov_b32 s{S_T0}, s{S_GOFF}')
        load_1k_run(a, [vr(xf + 4*k, 4) for k in range(28)], F['l16'], S_T0, cfg['wfl'])
    XW = cfg['xw']
    def dma_x(a=a):
        lo, hi = XW[w]
        a(f"""
        s_and_b32 s{S_T0}, s{S_STEP}, 1
        s_xor_b32 s{S_T0}, s{S_T0}, 1
        s_mul_i32 s{S_T0}, s{S_T0}, 28672
        s_add_u32 s{S_T0}, s{S_T0}, {LDS_X + lo*1024}
        s_add_u32 s{S_T1}, s{S_GOFF}, {28672 + lo*1024 - w*1792}
        """)
        for k in range(hi - lo):
            if k % 4 == 0:
                if k: a(f's_add_u32 s{S_T0}, s{S_T0}, 4096\ns_add_u32 s{S_T1}, s{S_T1}, 4096')
                a(f's_mov_b32 m0, s{S_T0}')
            a(f"buffer_load_dwordx4 v{V['pa']}, {WSRD}, s{S_T1} offen offset:{(k%4)*1024} {cfg['wfl']} lds")
    def read_x():
        a(f"""
        s_and_b32 s{S_T0}, s{S_STEP}, 1
        s_mul_i32 s{S_T0}, s{S_T0}, 28672
        v_add_u32 v{T}, s{S_T0}, v{F['l16']}
        """)
        for k in range(28): a(f'ds_read_b128 v[{xf+4*k}:{xf+4*k+3}], v{T} offset:{LDS_X + k*1024}')
    def zero_acc():
        for u in range(2 if cfg['m2'] else min(6, nunit)):
            a(f'v_mov_b64 v[{accof(u)}:{accof(u)+1}], 0\nv_mov_b64 v[{accof(u)+2}:{accof(u)+3}], 0')
        if w == 3:
            for k in range(4): a(f'v_mov_b64 v[{sa+2*k}:{sa+2*k+1}], 0')
            a(f"v_mov_b32 v{sa+8}, v{F['wz']}\nv_mov_b32 v{sa+9}, v{F['wz']}\nv_mov_b64 v[{sa+10}:{sa+11}], 0")
    a(f"v_lshrrev_b32 v{HA}, 1, v{V['l8']}\nv_min_u32 v{HA}, {(27 if cfg['cert'] else 55)*4}, v{HA}\ns_and_b32 s{S_T0}, s{S_ROLE}, 3\ns_lshl_b32 s{S_T0}, s{S_T0}, 8\ns_add_u32 s{S_T0}, s{S_T0}, 7168\nv_add_u32 v{HA}, s{S_T0}, v{HA}")
    if w == 3:
        if cfg['fused']: load_x()
        a(f'v_and_b32 v{T+12}, {15*8}, v0\nv_lshlrev_b32 v{T+12}, 3, v{T+12}\nv_add_u32 v{T+12}, 6144, v{T+12}')
        if stamps: a('s_mov_b32 s40, 0\ns_mov_b32 s42, 0\ns_mov_b32 s44, 0')
        a(f's_mov_b32 s{S_EOFF}, 0\ns_lshl_b32 s{S_T0}, s{S_ROLE}, 2\ns_add_u32 s{S_T0}, s{S_T0}, 12288\nv_lshlrev_b32 v{T+14}, 4, v0\nv_add_u32 v{T+14}, s{S_T0}, v{T+14}\nv_mov_b32 v{T+15}, 0')
    else:
        a(f"v_add_u32 v{FA}, {LDS_FL + 4*w}, v{F['l16']}\nv_mov_b32 v{FV}, 0")
        for k in range(5): a(f'ds_write_b32 v{FA}, v{FV} offset:{k*1024}')
        a(f'v_and_b32 v4, {31*8}, v0\nv_lshlrev_b32 v4, 3, v4\nv_add_u32 v4, {w*2048}, v4')
    if w < 3 and not cfg['xin']: dma_x()
    if cfg['prio'][w]: a(f"s_setprio {cfg['prio'][w]}")
    zero_acc()
    if cfg.get('wgd'): a('s_memrealtime s[88:89]\ns_memrealtime s[96:97]')
    a(f's_branch {first}')
    if cfg['al'] is not None:
        a.raw('    .p2align 6')
        for _ in range(cfg['al'][w]): a.raw('    s_nop 0')
    a.label(top)
    zero_acc()
    stamp(a, stamps, 0)
    if cfg['cert']:
        got = a.newlabel('L_got')
        a(f'v_add_u32 v{FV}, 1, v{FV}' if w < 3 else f's_add_u32 s{S_EOFF}, s{S_EOFF}, 1')
        a(f's_mov_b32 s{S_SAFE}, 0')
        if w == 0:
            ND = cfg['cert']; regs = HT[:ND]
            lp = a.newlabel('L_ct'); dn = a.newlabel('L_ctd')
            def rnd(r):
                a(f'buffer_load_dword v{r}, v{HA}, {WSRD}, s{S_MOFF} offen sc1\ns_mov_b32 m0, {LDS_M}')
                for k in range(7):
                    if k == 4: a(f's_mov_b32 m0, {LDS_M + 4096}')
                    a(f"buffer_load_dwordx4 v{V['pa']}, {WSRD}, s{S_MOFF if k < 4 else S_T0} offen offset:{(k%4)*1024} sc1 lds")
            a(f's_add_u32 s{S_T0}, s{S_MOFF}, 4096\ns_mov_b32 s{S_SPIN}, 0')
            a(ST(9))
            for k in range(ND-1): rnd(regs[k])
            a.label(lp)
            for k in range(ND):
                rnd(regs[(k+ND-1) % ND])
                a(f"""
                s_add_u32 s{S_SPIN}, s{S_SPIN}, 1
                s_waitcnt vmcnt({8*ND-1})
                v_cmp_eq_u32 vcc, -1, v{regs[k]}
                s_cbranch_vccz {dn}
                """)
            a(f's_cmp_lt_u32 s{S_SPIN}, s{S_LIM}\ns_cbranch_scc1 {lp}\n{dn}:\ns_waitcnt vmcnt({8*(ND-1)}) lgkmcnt(0)')
        else:
            a('s_waitcnt vmcnt(0) lgkmcnt(0)')
        a(f's_barrier\n{got}:')
        def coldf():
            a.label(first)
            a(f'v_add_u32 v{FV}, 1, v{FV}' if w < 3 else f's_add_u32 s{S_EOFF}, s{S_EOFF}, 1')
            a(f's_mov_b32 s{S_SAFE}, 1')
            poll_m(a, V)
            a(f's_branch {got}')
        a.cold.append(coldf)
    else:
        if cfg['msamp'] == 2: a(f'v_mov_b32 v{mf if w < 3 else T+13}, 0')
        if cfg['mdma'] == 2: a(f's_mov_b32 m0, {LDS_M}\ns_add_u32 s{S_T0}, s{S_MOFF}, 4096')
        elif cfg['mdma']: a(f's_mov_b32 m0, {LDS_M + w*2048}\ns_add_u32 s{S_T0}, s{S_MOFF}, {w*2048 - w*1792}')
        if not cfg['cutrig'] or w == 0: wait_hint(a, HA, S_MOFF, HT, delay=cfg['mdelay'], inner=cfg['hinner'])
        if cfg['cutrig'] and cfg['mdma'] != 2: a('s_barrier')
    if cfg['cert']: pass
    elif cfg['mdma']:
        got = a.newlabel('L_got')
        a(ST(9))
        nk = 2 if w < 3 else 1
        SA_ = (4 if w < 3 else T+12)
        def rnd(r):
            if cfg['msamp'] == 2:
                a(f"s_mov_b64 exec, {0x55555555 if w < 3 else 0x5555}\nbuffer_load_dword v{r}, v{SA_}, {WSRD}, s{S_MOFF} offen sc1\ns_mov_b64 exec, -1")
            elif cfg['msamp']: a(f"buffer_load_dword v{r}, v{SA_}, {WSRD}, s{S_MOFF} offen sc1")
            for k in range(nk): a(f"buffer_load_dwordx4 v{V['pa']}, {WSRD}, s{S_T0} offen offset:{k*1024} sc1 lds")
        r0, r1 = (mf, HT[1]) if w < 3 else (T+13, T+15)
        two = cfg['m2d']
        rnd(r0)
        a(f'v_add_u32 v{FV}, 1, v{FV}' if w < 3 else f's_add_u32 s{S_EOFF}, s{S_EOFF}, 1')
        a(f's_mov_b32 s{S_SAFE}, 0\ns_mov_b32 s{S_SPIN}, 1')
        if two:
            gap = two
            while gap > 0:
                a(f's_nop {min(gap, 16) - 1}'); gap -= 16
            rnd(r1)
        ex = (nk+1) if two else 0
        bad = a.newlabel('L_mbad'); okl = a.newlabel('L_mok')
        a(f"""
        {f's_waitcnt vmcnt({nk + ex})' if cfg['msamp'] else ''}
        {f'v_cmp_eq_u32 vcc, -1, v{r0}' if cfg['msamp'] else ''}
        {f's_cbranch_vccnz {bad}' if cfg['msamp'] else ''}
        s_waitcnt vmcnt({ex}) lgkmcnt(0)
{okl}:
        s_barrier
{got}:
        """)
        def coldb():
            lp = a.newlabel('L_mlp')
            a.label(bad)
            if two:
                a(f's_mov_b32 s{S_SPIN}, 2\ns_waitcnt vmcnt(0) lgkmcnt(0)\nv_cmp_eq_u32 vcc, -1, v{r1}\ns_cbranch_vccz {okl}')
            a.label(lp)
            rnd(r0)
            a(f"""
            s_add_u32 s{S_SPIN}, s{S_SPIN}, 1
            s_waitcnt vmcnt(0) lgkmcnt(0)
            v_cmp_eq_u32 vcc, -1, v{r0}
            s_cbranch_vccz {okl}
            s_cmp_lt_u32 s{S_SPIN}, s{S_LIM}
            s_cbranch_scc1 {lp}
            s_mov_b32 s{S_LIM}, 1
            s_branch {okl}
            """)
        a.cold.append(coldb)
        def coldf():
            a.label(first)
            a(f'v_add_u32 v{FV}, 1, v{FV}' if w < 3 else f's_add_u32 s{S_EOFF}, s{S_EOFF}, 1')
            a(f's_mov_b32 s{S_SAFE}, 1')
            poll_m(a, V)
            a(f's_branch {got}')
        a.cold.append(coldf)
    else:
        a.label(first)
        a(f'v_add_u32 v{FV}, 1, v{FV}' if w < 3 else f's_add_u32 s{S_EOFF}, s{S_EOFF}, 1')
        a(ST(9))
        if cfg['m2']: poll_m2(a, V, cfg['m2'], mf)
        else: poll_m(a, V)
    stamp(a, stamps, 1)
    if stamps and w < 3: a(f's_mov_b32 s{40+2*7}, s{S_SPIN}')
    lq = Q('lgkmcnt', 15)
    mrd = [dsop(f"ds_read_b64_tr_b16 v[{mf+4*b+2*hf}:{mf+4*b+2*hf+1}], v{V['l8']} offset:{LDS_M+b*1024+hf*512}", ('mf', b))
           for b in range(7) for hf in range(2)]
    for x in mrd[:cfg['mpre']]: a(x(lq))
    order = [(u, b) for b in range(7) for u in range(2)] + [(u, b) for u in range(2, nunit) for b in range(7)]
    ms = [(SM(accof(u), mf+4*b, wreg(u*7 + b, V['w']), idx), [('mf', b)] if u == 0 else []) for u, b in order]
    last = {u: i for i, (u, b) in enumerate(order)}
    def smfma(b):
        t4 = tf + 4*b
        return [(f"v_mfma_f32_16x16x32_bf16 v[{sa+8}:{sa+11}], v[{t4}:{t4+3}], v[{mf+4*b}:{mf+4*b+3}], " + f'v[{sa+8}:{sa+11}]', [('tf', b)]),
                (SM(sa, t4, vr(xf + 8*b, 8), idx), []),
                (SM(sa+4, t4, vr(xf + 56 + 8*b, 8), idx), [])]
    def tread(b, hf):
        return dsop(f"ds_read_b64_tr_b16 v[{tf+4*b+2*hf}:{tf+4*b+2*hf+1}], v{V['l8']} offset:{LDS_T+b*1024+hf*512}", ('tf', b))
    phases = [(0, 1, 2), (3, 4)]
    starts = []
    if w == 3:
        for ph in phases:
            starts.append(len(ms))
            for b in ph: ms += smfma(b)
    n = len(ms)
    gp = Gaps(n)
    for k, x in enumerate(mrd[cfg['mpre']:]): gp.put('ds', k, x)
    flag_after = {2, 4} | ({5} if w < 2 else {6})
    def post(u):
        A = accof(u); b, ga = tile_of(w, u)
        va = [f'v_add_f32 v{A}, v{A}, v{A+2}', f'v_add_f32 v{A+1}, v{A+1}, v{A+3}', f'v_cvt_pk_bf16_f32 v{A}, v{A}, v{A+1}']
        ds = [dsop(f"ds_write_b32 v{V['k1']}, v{A} offset:{LDS_T+b*1024+ga*128}", ('k', u))]
        if w < 3 and u in flag_after:
            ds.append(dsop(f'ds_write_b32 v{FA}, v{FV} offset:{sorted(flag_after).index(u)*1024}'))
        return va, ds
    g = 0
    done_at = {}
    for u in range(nunit - (0 if w == 3 else 1)):
        va, ds = post(u)
        g = max(g, last[u] + 3 - (len(va) - 3))
        for x in va: g = gp.put('va', g, x) + 1
        for x in ds: g = gp.put('ds', g, x, excl=True) + 1
        done_at[u] = g
    def zero_in_gaps(u, g):
        A = accof(u)
        for k in range(2):
            gg = g
            while gg < 7*u - 2 and (gp.va[gg] or (gp.ds[gg] and gp.ds[gg][-1][1])): gg += 1
            if gg >= 7*u - 2: gg = max(g, 7*u - 4 + k)
            gp.force('va', gg, f'v_mov_b64 v[{A+2*k}:{A+2*k+1}], 0')
    if cfg['m2']:
        gp.force('ds', cfg['m2w'], 's_waitcnt vmcnt(0)')
        for u in range(2, min(6, nunit)): zero_in_gaps(u, cfg['m2w'])
    for u in range(6, nunit): zero_in_gaps(u, done_at[u-6] + 1)
    if w == 3:
        for pi, ph in enumerate(phases):
            flagrd = f"ds_read_b128 v[{T}:{T+3}], v{F['l16']} offset:{LDS_FL + pi*1024}"
            lead = cfg['lead'][pi]
            g = max(starts[pi] - lead, done_at[max(ph)] if max(ph) < 5 else 0)
            g = min(g, starts[pi]-1)
            if cfg['pnop'][pi]: gp.force('ds', g, f"s_nop {cfg['pnop'][pi]-1}")
            gp.force('ds', g, dsop(flagrd, ('fl', pi)))
            ops = [tread(b, hf) for b in ph for hf in range(2)]
            for k, x in enumerate(ops):
                gp.force('ds', min(g + (k+1)//2, starts[pi]-1), x)
            FM = T+11
            def chk(lq, pi=pi):
                return lq.wait(('fl', pi)) + (f'\nv_min3_u32 v{FM}, v{T}, v{T+1}, v{T+2}' if pi == 0 else
                                              f'\nv_min3_u32 v{T}, v{T}, v{T+1}, v{T+2}\nv_min_u32 v{FM}, v{FM}, v{T}')
            gp.force('va', starts[pi], chk)
    if cfg['xin'] and XW[w][1] > XW[w][0]:
        sub = Asm(); dma_x(sub)
        grp = []; cur = []
        for _, x in sub.items:
            cur.append(x.text)
            if x.text.startswith('buffer'): grp.append('\n'.join(cur)); cur = []
        g = cfg['xin']
        for x in grp: g = gp.put('ds', g, x) + cfg['xstep']
    if w == 0 and cfg['phint'] < 0:
        gp.force('ds', n - 1 + cfg['phint'], f"""s_mov_b64 exec, 15
            buffer_store_dword v{FV}, v4, {WSRD}, s{S_POFF} offen {pf}
            s_mov_b64 exec, -1""")
    emit_stream(a, ms, gp, lq)
    hint = f"""s_mov_b64 exec, 15
        buffer_store_dword v{T+15}, v{T+14}, {WSRD}, s{S_POFF} offen {pf}
        s_mov_b64 exec, -1"""
    if w < 3:
        va, ds = post(nunit-1)
        A_ = accof(nunit-1)
        va = [f'v_pk_add_f32 v[{A_}:{A_+1}], v[{A_}:{A_+1}], v[{A_+2}:{A_+3}]', va[-1]]
        for x in va: a(x)
        for x in ds: a(x(lq))
        if cfg['b3s']: a(f'ds_write_b32 v{FA}, v{FV} offset:3072')
        else: a(lq.drain())
        a('s_barrier')
        stamp(a, stamps, 2)
        if cfg['mdma']:
            again = a.newlabel('L_again')
            a(f"""
            {'s_waitcnt vmcnt(0)' if cfg['xin'] else ''}
            s_barrier
            v_mov_b32 v{mf}, {LDS_VD}
            ds_read_b32 v{mf}, v{mf}
            s_waitcnt lgkmcnt(0)
            v_cmp_eq_u32 vcc, v{mf}, v{FV}
            s_cbranch_vccnz {again}
            """)
            def colda():
                a.label(again)
                zero_acc()
                a(f's_branch {first}')
            a.cold.append(colda)
        elif cfg['quiet']: a(f"s_sleep {cfg['quiet']}")
    else:
        s = T
        mx = T+6; z = T+8; EA = tf; B1 = tf+4; B2 = tf+8; D1 = tf+12; D2 = tf+16; rz = T+10
        a(f"""
        v_mov_b64 v[{B1+2}:{B1+3}], 0
        v_mov_b64 v[{B2}:{B2+1}], 0
        v_mov_b32 v{B2+3}, 0
        v_mov_b32 v{EA+3}, 0
        """)
        for _ in range(cfg['b5nop']): a('s_nop 3')
        q = Q('lgkmcnt', 15)
        a(f"ds_read_b128 v[{T}:{T+3}], v{F['l16']} offset:{LDS_FL + 2048}"); q.issue('fl')
        for hf in range(2): a(tread(5, hf)(q))
        stamp(a, stamps, 2)
        a('s_barrier')
        stamp(a, stamps, 3)
        PX = lambda k: a('s_memtime s[52:53]') if stamps and cfg['px'] == k else None
        PX(0)
        if cfg['b3s']:
            for _ in range(cfg['b3s'] - 1): a('s_nop 0')
            a(f"ds_read_b64 v[{T+4}:{T+5}], v{F['l16']} offset:{LDS_FL + 3072}"); q.issue('fl3')
        for hf in range(2): a(tread(6, hf)(q))
        PX(1)
        if cfg['phint'] == 0: a(hint)
        PX(2)
        fl5 = [f'v_min3_u32 v{T}, v{T}, v{T+1}, v{T+2}', f'v_min_u32 v{FM}, v{FM}, v{T}', f'v_subrev_u32 v{FM}, s{S_EOFF}, v{FM}']
        if cfg['b3s']: fl5[2:2] = ['', f'v_min3_u32 v{FM}, v{FM}, v{T+4}, v{T+5}']
        for b in (5, 6):
            for m, tags in smfma(b):
                for tg in tags: a(q.wait(tg))
                if b == 6 and tags: PX(4)
                a(m)
                if fl5: a(fl5.pop(0))
            if b == 5: PX(3)
        a(ST(7))
        if cfg['phint'] == 1: a(hint)
        e = sa
        redo = a.newlabel('L_smr'); slowmx = a.newlabel('L_sms'); go = a.newlabel('L_smg')
        a(f"""
        s_mov_b32 s{S_T1}, {120 << 23}
        s_mov_b32 s{S_SPIN}, 0
        v_add_f32_dpp v{s+4}, v{sa+10}, v{sa+8} {QP}
        v_add_f32_dpp v{s+5}, v{sa+11}, v{sa+9} {QP}
        v_pk_add_f32 v[{s}:{s+1}], v[{sa}:{sa+1}], v[{sa+2}:{sa+3}]
        v_exp_f32 v{e+8}, v{s+4}
        v_exp_f32 v{e+9}, v{s+5}
        v_pk_add_f32 v[{s+2}:{s+3}], v[{sa+4}:{sa+5}], v[{sa+6}:{sa+7}]
        v_exp_f32 v{e}, v{s}
        v_exp_f32 v{e+1}, v{s+1}
        v_exp_f32 v{e+2}, v{s+2}
        v_exp_f32 v{e+3}, v{s+3}
{redo}:;nf
        v_pk_add_f32 v[{z}:{z+1}], v[{e}:{e+1}], v[{e+8}:{e+9}]
        v_cvt_pk_bf16_f32 v{EA+2}, v{e+8}, v{e+9}
        v_pk_add_f32 v[{z}:{z+1}], v[{z}:{z+1}], v[{e+2}:{e+3}]
        """)
        if cfg['phint'] == 2: a(hint)
        fill = [f'v_cvt_pk_bf16_f32 v{EA+k}, v{e+2*k}, v{e+2*k+1}' for k in range(2)]
        for m in ('row_ror:8', 'row_ror:4', 'row_ror:2', 'row_ror:1'):
            if fill: a(fill.pop(0))
            for r in (z, z+1):
                a(f'v_add_f32_dpp v{r}, v{r}, v{r} {m} row_mask:0xf bank_mask:0xf')
        LO, HI = (127-60) << 23, (127+60) << 23
        a(ST(8))
        a(f"""
        v_rcp_f32 v{mx}, v{z}
        v_rcp_f32 v{mx+1}, v{z+1}
        v_subrev_u32 v{z}, {LO}, v{z}
        v_cvt_pk_bf16_f32 v{rz}, v{mx}, v{mx+1}
        v_and_b32 v{B1}, v{rz}, v{F['mk0']}
        v_and_b32 v{B1+1}, v{rz}, v{F['mk1']}
        v_and_b32 v{B2+2}, v{rz}, v{F['mk2']}
        v_subrev_u32 v{z+1}, {LO}, v{z+1}
        v_mfma_f32_16x16x32_bf16 v[{D1}:{D1+3}], v[{EA}:{EA+3}], v[{B1}:{B1+3}], 0
        v_mfma_f32_16x16x32_bf16 v[{D2}:{D2+3}], v[{EA}:{EA+3}], v[{B2}:{B2+3}], 0
        v_max3_u32 v{z}, v{z}, v{z+1}, v{FM}
        v_cmp_lt_u32 vcc, s{S_T1}, v{z}
        s_cmp_eq_u64 vcc, 0
        s_cselect_b64 exec, -1, 0
        v_cvt_pk_bf16_f32 v{D1}, v{D1}, v{D1+1}
        v_cvt_pk_bf16_f32 v{D1+1}, v{D1+2}, v{D1+3}
        buffer_store_dwordx2 v[{D1}:{D1+1}], v{F['px']}, {WSRD}, s{S_POFF} offen {pf}
        v_cvt_pk_bf16_f32 v{D2}, v{D2}, v{D2+1}
        buffer_store_dword v{D2}, v{F['pm']}, {WSRD}, s{S_POFF} offen {pf}
        s_mov_b64 exec, -1
        s_cbranch_scc0 {slowmx}
        """)
        if cfg['mdma']: a('s_barrier')
        def coldmx():
            a(f'{slowmx}:' + ('\ns_add_u32 s40, s40, 1' if stamps else ''))
            loc = a.newlabel('L_loc'); sf = a.newlabel('L_safe')
            a(f's_cmp_eq_u32 s{S_SPIN}, 0\ns_cbranch_scc1 {loc}')
            if cfg['mdma']:
                a(f"""
                s_cmp_lg_u32 s{S_SAFE}, 0
                s_cbranch_scc1 {sf}
                {'s_add_u32 s86, s86, 1' if cfg.get('wgd') else ''}
                v_mov_b32 v{T}, {LDS_VD}
                v_mov_b32 v{T+1}, s{S_EOFF}
                ds_write_b32 v{T}, v{T+1}
                s_waitcnt lgkmcnt(0)
                s_barrier
                """)
                zero_acc()
                a(f's_branch {first}')
            a(f'{sf}:\ns_mov_b32 s{S_T1}, -1\ns_branch {redo}\n{loc}:\ns_mov_b32 s{S_SPIN}, 1\nv_mov_b32 v{FM}, 0')
            if cfg.get('wgd'): a('s_add_u32 s85, s85, 1')
            for k in range(4): a(f'v_mov_b64 v[{sa+2*k}:{sa+2*k+1}], 0')
            a(f"v_mov_b32 v{sa+8}, v{F['wz']}\nv_mov_b32 v{sa+9}, v{F['wz']}\nv_mov_b64 v[{sa+10}:{sa+11}], 0")
            q2 = Q('lgkmcnt', 15)
            rl = a.newlabel('L_rl'); rd = a.newlabel('L_rld')
            a(f's_mov_b32 s{S_T0}, 0\n{rl}:')
            a(f"ds_read_b128 v[{T}:{T+3}], v{F['l16']} offset:{LDS_FL + 3072}")
            for b in range(7):
                for hf in range(2): a(tread(b, hf)(q2))
            a('s_waitcnt lgkmcnt(0)')
            if cfg['b3s']:
                a(f"""
                v_min3_u32 v{T}, v{T}, v{T+1}, v{T+2}
                s_add_u32 s{S_T0}, s{S_T0}, 1
                v_cmp_gt_u32 vcc, s{S_EOFF}, v{T}
                s_cbranch_vccz {rd}
                s_cmp_lt_u32 s{S_T0}, 1000
                s_cbranch_scc1 {rl}
{rd}:
                """)
            for b in range(7):
                for m, tags in smfma(b): a(m)
            a(f"""
            v_mov_b64 v[{B1+2}:{B1+3}], 0
            v_mov_b64 v[{B2}:{B2+1}], 0
            v_mov_b32 v{B2+3}, 0
            v_mov_b32 v{EA+3}, 0
            v_add_f32_dpp v{s+4}, v{sa+10}, v{sa+8} {QP}
            v_add_f32_dpp v{s+5}, v{sa+11}, v{sa+9} {QP}
            v_pk_add_f32 v[{s}:{s+1}], v[{sa}:{sa+1}], v[{sa+2}:{sa+3}]
            v_pk_add_f32 v[{s+2}:{s+3}], v[{sa+4}:{sa+5}], v[{sa+6}:{sa+7}]
            v_max3_f32 v{mx}, v{s}, v{s+4}, v{s+2}
            v_max3_f32 v{mx+1}, v{s+1}, v{s+5}, v{s+3}
            """)
            rowred(a, 'v_max_f32', mx)
            for k in range(3): a(f'v_pk_add_f32 v[{s+2*k}:{s+2*k+1}], v[{s+2*k}:{s+2*k+1}], v[{mx}:{mx+1}] neg_lo:[0,1] neg_hi:[0,1]')
            for k in range(6): a(f'v_exp_f32 v{e+(k if k < 4 else k+4)}, v{s+k}')
            a(f's_nop 1\ns_branch {redo}')
        a.cold.append(coldmx)
        stamp(a, stamps, 4)
    if stamps: a('s_memtime s[50:51]\ns_memrealtime s[60:61]')
    stamp_flush(a, stamps, 11, mf)
    step_advance(a, 28672, 458752)
    a(f's_cmp_ge_u32 s{S_STEP}, 63\ns_cbranch_scc1 L_exit')
    if w == 3: read_x()
    elif not cfg['nox'] and not cfg['xin']:
        if cfg['xs']: a(f"s_sleep {cfg['xs']}")
        dma_x()
    if cfg['ssleep'][w]:
        a(f"s_sleep {cfg['ssleep'][w]}")
    a(f's_branch {top}')
    a.flush_cold()

S_YD = 33; S_SAFE = 36; S_CV = 37; S_CU = 38; S_MD = 39
CV = dict(ha=160, one=161, zero=162, cu=163, hw=164, hm=165, nw=172, nr=173, pmr=72, fw=73, fv=74, l8=0, pa=1, idx=2, l16=3, pr=4, mw=6, lw=7, rw=8, rr=5, mf=12, acc=40, itm=72, vx=88, uf=96, tw=128, w=176)

def comb_setup(a, stamps, cfg):
    V = CV; LN = 112
    a(f'v_mov_b32 v{LN}, v1')
    team_register(a)
    common_addrs(a, V, LN)
    img_addr(a, V['mw'], LN+1, LN)
    a(f"""
    s_sub_u32 s{S_ROLE}, s{S_ROLE}, 16
    s_lshl_b32 s{S_ROLE}, s{S_ROLE}, 1
    s_and_b32 s{S_T0}, s{S_WAVE}, 1
    s_add_u32 s{S_T1}, s{S_ROLE}, s{S_T0}
    s_lshr_b32 s{S_T0}, s{S_T1}, 2
    s_lshl_b32 s{S_T0}, s{S_T0}, 10
    s_and_b32 s{S_T1}, s{S_T1}, 3
    s_lshl_b32 s{S_T1}, s{S_T1}, 7
    s_add_u32 s{S_T0}, s{S_T0}, s{S_T1}
    s_add_u32 s{S_T0}, s{S_T0}, 8192
    v_add_u32 v{V['mw']}, s{S_T0}, v{V['mw']}
    v_lshlrev_b32 v{V['l16']}, 4, v{LN}
    s_mul_i32 s{S_T0}, s{S_WAVE}, 28672
    s_add_u32 s{S_T0}, s{S_T0}, {LDS_BW}
    v_add_u32 v{V['lw']}, s{S_T0}, v{V['l16']}
    s_lshl_b32 s{S_T0}, s{S_WAVE}, 10
    v_add_u32 v{V['rw']}, s{S_T0}, v{V['l16']}
    v_add_u32 v{V['pr']}, s{S_T0}, v{V['rw']}
    s_and_b32 s{S_T0}, s{S_WAVE}, 1
    s_lshl_b32 s{S_T0}, s{S_T0}, 3
    v_add_u32 v{V['rr']}, s{S_T0}, v{V['l16']}
    s_mul_i32 s{S_T1}, s{S_WAVE}, {4*28}
    s_add_u32 s{S_T1}, s{S_T1}, s{S_ROLE}
    s_add_u32 s{S_T1}, s{S_T1}, 448
    s_mul_i32 s{S_T1}, s{S_T1}, 14336
    s_add_u32 s{S_T1}, s{S_T1}, {L.WT}
    """)
    toff = lambda u: ((u >> 1)*28 + (u & 1))*14336
    fz = cfg['fused']
    tiles = [(toff(u), [wreg_half(u*7 + k//2, V['w'], k % 2) for k in range(14)]) for u in range(6)]
    ltiles = [(toff(u), [vr(12 + (u-6)*116 + 4*k, 4) if u == 6 else vr(120 + 4*k, 4) for k in range(14)]) for u in (6, 7)]
    if fz:
        a(f"""
        v_bfe_u32 v{LN+4}, v{LN}, 2, 2
        v_mul_u32_u24 v{LN+4}, {14*32}, v{LN+4}
        v_and_b32 v{LN+5}, 3, v{LN}
        v_lshl_add_u32 v{LN+4}, v{LN+5}, 3, v{LN+4}
        s_mul_i32 s{S_T0}, s{S_WAVE}, 56
        s_lshr_b32 s{S_SPIN}, s{S_ROLE}, 2
        s_add_u32 s{S_T0}, s{S_T0}, s{S_SPIN}
        s_add_u32 s{S_T0}, s{S_T0}, 7
        s_lshl_b32 s{S_T0}, s{S_T0}, 5
        v_add_u32 v{LN+4}, s{S_T0}, v{LN+4}
        """)
        wait_flags(a, LN+4, 1, 100)
        load_tiles(a, ltiles + tiles, V['l16'], S_T1, 1, cfg['wfl'], [0])
        wait_flags(a, LN+4, 7, 100)
        load_tiles(a, ltiles + tiles, V['l16'], S_T1, 2, cfg['wfl'], [0])
    else:
        load_tiles(a, ltiles + tiles, V['l16'], S_T1, None, cfg['wfl'], [0], cfg['ccap'])
    if not fz:
        a(team_mode_load(104, 105))
        a(f"v_mov_b32 v106, 0\ns_mov_b32 s{S_CU}, {L.CNT_U}\ns_mov_b32 s{S_CV}, {L.CNT_I}")
        a(f'buffer_load_dword v107, v106, {WSRD}, s{S_CU} offen sc1\nbuffer_load_dword v109, v106, {WSRD}, s{S_CV} offen sc1')
    a('s_waitcnt vmcnt(28)')
    for u in (6, 7):
        for k in range(14):
            a(f"ds_write_b128 v{V['lw']}, {ltiles[u-6][1][k]} offset:{(u-6)*14336+k*1024}")
    a('s_waitcnt lgkmcnt(0)')
    if fz: wait_ln(a, LN, 100)
    a(f"""
    s_mov_b32 s{S_STEP}, 0
    s_mov_b32 s{S_MOFF}, {L.MB_M}
    s_mov_b32 s{S_POFF}, {L.MB_P}
    s_lshl_b32 s{S_GOFF}, s{S_ROLE}, 14
    s_lshl_b32 s{S_T0}, s{S_WAVE}, 12
    s_add_u32 s{S_GOFF}, s{S_GOFF}, s{S_T0}
    s_add_u32 s{S_GOFF}, s{S_GOFF}, {L.U}
    s_lshl_b32 s{S_XOFF}, s{S_ROLE}, 12
    s_add_u32 s{S_XOFF}, s{S_XOFF}, {L.VM}
    s_lshr_b32 s{S_STMP}, s{S_ROLE}, 1
    s_add_u32 s{S_STMP}, s{S_STMP}, 16
    s_lshl_b32 s{S_STMP}, s{S_STMP}, 2
    s_add_u32 s{S_STMP}, s{S_STMP}, s{S_WAVE}
    s_lshl_b32 s{S_STMP}, s{S_STMP}, 12
    s_add_u32 s{S_STMP}, s{S_STMP}, {L.STAMP}
    s_waitcnt vmcnt(0)
    """)
    a(f"""
    v_mov_b32 v{V['one']}, 1
    v_mov_b32 v{V['zero']}, 0
    v_mov_b32 v{V['cu']}, 0
    v_and_b32 v{V['ha']}, {120 if cfg['cutrig'] else 24}, v{V['l8']}
    v_lshrrev_b32 v{V['ha']}, 1, v{V['ha']}
    s_lshl_b32 s{S_T0}, s{S_WAVE}, 4
    s_mul_i32 s{S_T0}, s{S_T0}, {0 if cfg['cutrig'] else 1}
    s_and_b32 s{S_T1}, s{S_ROLE}, 6
    s_lshl_b32 s{S_T1}, s{S_T1}, 6
    s_add_u32 s{S_T0}, s{S_T0}, s{S_T1}
    s_add_u32 s{S_T0}, s{S_T0}, 12288
    v_add_u32 v{V['ha']}, s{S_T0}, v{V['ha']}
    s_lshl_b32 s{S_T0}, s{S_ROLE}, {0 if cfg['cert'] else 1}
    s_add_u32 s{S_T0}, s{S_T0}, s{S_WAVE}
    s_lshl_b32 s{S_T0}, s{S_T0}, 2
    s_add_u32 s{S_T0}, s{S_T0}, {8192 + 7168}
    v_lshlrev_b32 v{V['hw']}, 5, v{V['l8']}
    v_add_u32 v{V['hw']}, s{S_T0}, v{V['hw']}
    s_add_u32 s{S_YD}, s{S_XOFF}, 0x8000000
    v_lshrrev_b32 v{V['hm']}, 1, v{V['l8']}
    v_min_u32 v{V['hm']}, {(27 if cfg['cert'] else 55)*4}, v{V['hm']}
    v_add_u32 v{V['hm']}, 7168, v{V['hm']}
    s_mov_b32 s56, 0
    v_lshrrev_b32 v{V['nw']}, 2, v{V['rw']}
    v_lshrrev_b32 v{V['nr']}, 1, v{V['l8']}
    s_lshl_b32 s{S_MD}, s{S_WAVE}, 11
    s_min_u32 s{S_MD}, s{S_MD}, 5120
    s_mov_b32 s{S_CU}, {L.CNT_U}
    """)
    for k in range(8): a(f"v_mov_b32 v{V['vx']+k}, 0")
    a(f"v_lshrrev_b32 v{V['pmr']}, 1, v{V['rw']}")
    a(f"s_lshl_b32 s{S_T0}, s{S_WAVE}, 2\ns_add_u32 s{S_T0}, s{S_T0}, {LDS_CF}\nv_add_u32 v{V['fw']}, s{S_T0}, v{V['l16']}\nv_mov_b32 v{V['fv']}, 0\nds_write_b32 v{V['fw']}, v{V['fv']}")
    team_mode(a, 104, 105, primed=not fz)
    if cfg['flags']:
        wait_cnt(a, S_CU, 28, 106, primed=not fz)
        a(f's_mov_b32 s{S_CV}, {L.CNT_I}')
        wait_cnt(a, S_CV, 98, 108, primed=not fz)
    for k in range(32): a(f"v_mov_b32 v{V['uf']+k}, 0")

def comb_wave(a, pf, stamps, cfg):
    V = CV; idx = V['idx']; mf = V['mf']; tw = V['tw']; uf = V['uf']; pa = V['pa']
    top = a.newlabel('L_cb_top'); nh0 = a.newlabel('L_nh')
    HT = [10, 11, 166, 167][:cfg['hdepth']]
    def store_vx(base, r):
        return [f"buffer_store_dwordx4 v[{r}:{r+3}], v{V['rw']}, {WSRD}, s{base} offen {cfg['xflags']}",
                f"s_add_u32 s{S_T1}, s{base}, 4096\nbuffer_store_dwordx4 v[{r+4}:{r+7}], v{V['rw']}, {WSRD}, s{S_T1} offen {cfg['xflags']}"]
    lq = Q('lgkmcnt', 15)
    def lread(lam, hf):
        return dsop(f"ds_read_b128 v[{tw+8*(lam%4)+4*hf}:{tw+8*(lam%4)+4*hf+3}], v{V['lw']} offset:{lam*2048+hf*1024}", ('lw', lam))
    def housekeeping_acc(a=a):
        for u in range(8):
            A = V['acc'] + 4*u
            a(f'v_mov_b64 v[{A}:{A+1}], 0\nv_mov_b64 v[{A+2}:{A+3}], 0')
    def housekeeping(a=a, acc=True):
        if acc: housekeeping_acc(a)
        for lam in range(4):
            for hf in range(2): a(lread(lam, hf)(lq))
    uload = lambda k: f"buffer_load_dwordx4 v[{uf+4*k}:{uf+4*k+3}], v{V['l16']}, {WSRD}, s{S_GOFF if k < 4 else S_EOFF} offen offset:{(k%4)*1024} {cfg['xflags']}"
    uorder = [] if cfg['nou'] else [4, 5, 6, 7, 0, 1, 2, 3]
    ue = uorder[:cfg['uearly']]; ul = uorder[cfg['uearly']:]
    housekeeping()
    t = mf
    slow = a.newlabel('L_cms'); back = a.newlabel('L_cmb'); redo = a.newlabel('L_cmr')
    pre = f"""s_add_u32 s{S_EOFF}, s{S_GOFF}, 16384
        s_lshl_b32 s{S_CU}, s{S_STEP}, 7
        s_add_u32 s{S_CU}, s{S_CU}, {L.CNT_U + 128}
        s_add_u32 s{S_T0}, s{S_MOFF}, s{S_MD}
        s_mov_b32 m0, s{S_MD}"""
    a(pre)
    if cfg.get('wgd'): a('s_memrealtime s[96:97]')
    a(f's_branch {top}')
    if cfg['al'] is not None:
        a.raw('    .p2align 6')
        for _ in range(cfg['al'][4]): a.raw('    s_nop 0')
    a(f'{nh0}:\ns_barrier')
    a.label(top)
    stamp(a, stamps, 0)
    if cfg['cdma']:
        a(f"""
        buffer_load_dwordx4 v{V['l16']}, {WSRD}, s{S_T0} offen sc1 lds
        buffer_load_dwordx4 v{V['l16']}, {WSRD}, s{S_T0} offen offset:1024 sc1 lds
        s_mov_b32 s{S_SAFE}, 0
        """)
        if ue: a('s_barrier')
        for k in ue: a(uload(k))
        a(f's_waitcnt vmcnt({len(ue)}) lgkmcnt(0)\ns_barrier\n{back}:')
        def coldr():
            a(f'{redo}:\ns_barrier\ns_mov_b32 s{S_SAFE}, 1\ns_add_u32 s{S_YD}, s{S_XOFF}, 0x8000000')
            if stamps: a(f's_add_u32 s{40+2*8}, s{40+2*8}, 1')
            if cfg.get('wgd'): a('s_add_u32 s84, s84, 1')
            housekeeping()
            poll_m(a, V)
            a(f's_branch {back}')
        a.cold.append(coldr)
    else:
        a(f"""
        buffer_load_dwordx4 v[{t}:{t+3}], v{pa}, {WSRD}, s{S_MOFF} offen sc1
        buffer_load_dwordx4 v[{t+4}:{t+7}], v{pa}, {WSRD}, s{S_MOFF} offen offset:768 sc1
        """)
        if ue: a('s_barrier')
        for k in ue: a(uload(k))
        a(f"""
        s_waitcnt vmcnt({len(ue)+1})
        ds_write_b128 v{pa}, v[{t}:{t+3}]
        v_max3_u32 v{t+8}, v{t}, v{t+1}, v{t+2}
        s_waitcnt vmcnt({len(ue)})
        ds_write_b128 v{pa}, v[{t+4}:{t+7}] offset:768
        v_max3_u32 v{t+8}, v{t+8}, v{t+3}, v{t+4}
        v_max3_u32 v{t+8}, v{t+8}, v{t+5}, v{t+6}
        v_max_u32 v{t+8}, v{t+8}, v{t+7}
        v_cmp_eq_u32 vcc, -1, v{t+8}
        s_cbranch_vccnz {slow}
        s_waitcnt lgkmcnt(0)
        s_barrier
{back}:
        """)
        def coldm():
            a.label(slow)
            if stamps: a(f's_add_u32 s{40+2*8}, s{40+2*8}, 1')
            poll_m(a, V)
            a(f's_branch {back}')
        a.cold.append(coldm)
    lq.drain()
    stamp(a, stamps, 1)
    mrd = [dsop(f"ds_read_b64_tr_b16 v[{mf+4*b+2*hf}:{mf+4*b+2*hf+1}], v{V['l8']} offset:{LDS_M+b*1024+hf*512}", ('mf', b))
           for b in range(7) for hf in range(2)]
    for x in mrd[:cfg['mpre']]: a(x(lq))
    ms = []; last = {}
    rorder = [(u, b) for b in range(7) for u in range(2)] + [(u, b) for u in range(2, 6) for b in range(7)]
    rb = 0
    for p in range(56):
        if p % 4 == 3:
            lam = p // 4; u = 6 + lam // 7; b = lam % 7
            ms.append((SM(V['acc']+4*u, mf+4*b, vr(tw+8*(lam % 4), 8), idx), [('mf', b), ('lw', lam)]))
        else:
            u, b = rorder[rb]; rb += 1
            ms.append((SM(V['acc']+4*u, mf+4*b, wreg(u*7+b, V['w']), idx), [('mf', b)]))
        last[u] = p
    gp = Gaps(56)
    for k, x in enumerate(mrd[cfg['mpre']:]): gp.put('ds', k, x)
    for lam in range(4, 14):
        g = 4*(lam-4) + 3
        g = gp.put('ds', g, lread(lam, 0)) + 1
        gp.put('ds', g, lread(lam, 1))
    g = 0
    for k in ul: g = gp.put('va', g, uload(k)) + cfg['ustep']
    if cfg['flags']:
        g = gp.put('va', g, f"buffer_load_dword v{V['cu']}, v{V['zero']}, {WSRD}, s{S_CU} offen sc1") + 1
    for x in store_vx(S_YD, V['vx']): g = gp.put('va', g, x) + cfg['ustep']
    assert g - cfg['ustep'] < min(last.values()) + 3
    for k in range(len(HT)-1 if cfg['psl'] is None else 0):
        gp.put('ds', 55 - cfg['hpre'] + 4*k, f"buffer_load_dword v{HT[k]}, v{V['ha']}, {WSRD}, s{S_POFF} offen sc1")
    def post(u):
        A = V['acc'] + 4*u; hl = u >> 1; ctl = u & 1
        return ([f'v_pk_add_f32 v[{A}:{A+1}], v[{A}:{A+1}], v[{A+2}:{A+3}]'] if cfg['cpk'] else [f'v_add_f32 v{A}, v{A}, v{A+2}', f'v_add_f32 v{A+1}, v{A+1}, v{A+3}']) + [
                f"v_cvt_pk_bf16_f32 v{V['vx']+4*ctl+hl}, v{A}, v{A+1}"]
    tail = []; gprev = 0
    for u in sorted(last, key=lambda u: last[u]):
        g = max(last[u] + 3, gprev)
        if g + 4 >= 56: tail += post(u); continue
        for x in post(u): g = gp.put('va', g, x) + 1
        gprev = g
        if u == 0: done0 = g
    if cfg['cdma']:
        A0 = V['acc']; N = 168
        g = gp.put('va', done0, f'v_add_f32 v9, v{A0}, v{A0+1}') + 1
        g = gp.put('ds', g, dsop(f"ds_write_b32 v{V['nw']}, v9 offset:{LDS_NAN}", 'nw')) + 4
        gp.force('ds', g, dswait('nw', 's_barrier'))
        g = gp.put('ds', g+1, dsop(f"ds_read2st64_b32 v[{N}:{N+1}], v{V['nr']} offset0:{LDS_NAN//256} offset1:{LDS_NAN//256+1}")) + 1
        g = gp.put('ds', g, dsop(f"ds_read2st64_b32 v[{N+2}:{N+3}], v{V['nr']} offset0:{LDS_NAN//256+2} offset1:{LDS_NAN//256+3}", 'nr')) + 4
        g = gp.put('va', g, dswait('nr', f'v_add_f32 v{N}, v{N}, v{N+2}')) + 1
        g = gp.put('va', g, f'v_add_f32 v{N+1}, v{N+1}, v{N+3}') + 1
        g = gp.put('va', g, f'v_cmp_u_f32 vcc, v{N}, v{N+1}')
        assert g < 54
    emit_stream(a, ms, gp, lq)
    if cfg['cdma']:
        nb = a.newlabel('L_cnb'); nx = a.newlabel('L_cnx')
        a(f's_cbranch_vccnz {nb};nf\n{nx}:;nf')
        a.cold.append(lambda: a(f'{nb}:\ns_nop 7\ns_cmp_eq_u32 s{S_SAFE}, 0\ns_cbranch_scc1 {redo}\ns_branch {nx}'))
    for x in tail: a(x)
    lastl = a.newlabel('L_cbl')
    a(f's_cmp_ge_u32 s{S_STEP}, 63\ns_cbranch_scc1 {lastl}')
    def coldl():
        a.label(lastl)
        for x in store_vx(S_XOFF, V['vx']): a(x)
        a('s_branch L_exit')
    a.cold.append(coldl)
    stamp(a, stamps, 2)
    A = tw
    a(f's_add_u32 s{S_T0}, s{S_POFF}, 8192\ns_mov_b32 s{S_YD}, s{S_XOFF}')
    if stamps and cfg['sdrain']: a('s_waitcnt vmcnt(0)')
    stamp(a, stamps, 3)
    if cfg['psl'] is None:
        jn = a.newlabel('L_jn')
        a(f's_cmp_lg_u32 s{S_WAVE}, 0\ns_cbranch_scc1 {jn}')
        wait_hint(a, V['ha'], S_POFF, HT, delay=cfg['pdelay'], inner=cfg['hinner'], primed=True)
        a(f'{jn}:\ns_barrier')
    else:
        stamp_flush(a, stamps, 11, mf+24)
        if cfg['pw'] is not None:
            tot = cfg['pw'] - (16*cfg['fl'] if stamps else 0)
            for k in range(5): a(f's_nop {max(1, (tot + k) // 5) - 1}')
        else:
            if cfg['psl'] - (cfg['fl'] if stamps else 0) > 0: a(f"s_sleep {cfg['psl'] - (cfg['fl'] if stamps else 0)}")
            if cfg['pdelay']: a(f"s_nop {cfg['pdelay']-1}")
        if cfg['pbar']: a('s_barrier')
    stamp(a, stamps, 6)
    l = a.newlabel('L_pp'); d = a.newlabel('L_ppd'); retry = a.newlabel('L_ppr'); t = 9
    R = tw + 8
    B3 = [vr(uf, 8), vr(uf+8, 8), vr(V['itm'], 8)], [vr(uf+16, 8), vr(uf+24, 8), vr(V['itm']+8, 8)]
    mh = f"""s_mov_b64 exec, 15
        buffer_store_dword v{V['zero']}, v{V['hw']}, {WSRD}, s{S_MOFF} offen {pf}
        s_mov_b64 exec, -1"""
    def issue(p):
        a(f"""
        buffer_load_dwordx4 v[{p}:{p+3}], v{V['pr']}, {WSRD}, s{S_POFF} offen sc1
        buffer_load_dwordx4 v[{p+4}:{p+7}], v{V['pr']}, {WSRD}, s{S_POFF} offen offset:1024 sc1
        buffer_load_dwordx2 v[{p+8}:{p+9}], v{V['pmr']}, {WSRD}, s{S_T0} offen sc1
        """)
    def zero():
        for k in range(4): a(f'v_mov_b64 v[{A+2*k}:{A+2*k+1}], 0')
    def attempt(p, behind, hint_here):
        ex = behind
        a(f's_add_u32 s{S_SPIN}, s{S_SPIN}, 1')
        for k in range(3):
            a(f's_waitcnt vmcnt({2-k+ex})')
            S32 = lambda acc, B: f'v_smfmac_f32_16x16x32_bf16 v[{acc}:{acc+3}], v[{p+8}:{p+9}], {B}, v{idx}'
            a(SM(A, p+4*k, B3[0][k], idx) if k < 2 else S32(A, vr(V['vx'], 4)))
            a(f'v_max_u32 v{t}, v{p}, v{p+2}' if k == 0 else f'v_max3_u32 v{t}, v{t}, v{p+4*k}, v{p+4*k+(2 if k < 2 else 1)}')
            a(SM(A+4, p+4*k, B3[1][k], idx) if k < 2 else S32(A+4, vr(V['vx']+4, 4)))
            if hint_here and k == cfg['mhk']:
                if cfg['mhint'] == 3:
                    a(f"""v_cmp_eq_u32 vcc, -1, v{t}
                    s_cmp_eq_u64 vcc, 0
                    s_cselect_b64 exec, 15, 0
                    buffer_store_dword v{V['zero']}, v{V['hw']}, {WSRD}, s{S_MOFF} offen {pf}
                    s_mov_b64 exec, -1""")
                else: a(mh)
                ex += 1
        a(f'v_cmp_eq_u32 vcc, -1, v{t}')
    a(f's_mov_b32 s{S_SPIN}, 0')
    issue(mf)
    zero()
    a(f"v_add_u32 v{V['fv']}, 1, v{V['fv']}")
    housekeeping_acc()
    if cfg['p2']:
        gap = cfg['p2'] - 16
        while gap > 0:
            a(f's_nop {min(gap, 16) - 1}'); gap -= 16
        issue(mf+12)
    if cfg['mhint'] == 0:
        for _ in range(cfg['mhnop']): a('s_nop 3')
        a(mh)
    attempt(mf, (3 if cfg['p2'] else 0) + (cfg['mhint'] == 0), cfg['mhint'] >= 2)
    a(f's_cbranch_vccnz {retry};nf\n{d}:;nf')
    def coldp():
        a(f'{retry}:\ns_nop 7')
        if cfg['p2']:
            a.label(l)
            issue(mf)
            zero()
            attempt(mf+12, 3, cfg['mhint'] == 3)
            a(f's_cbranch_vccz {d}')
            issue(mf+12)
            zero()
            attempt(mf, 3, cfg['mhint'] == 3)
        else:
            a.label(l)
            issue(mf)
            zero()
            attempt(mf, 0, cfg['mhint'] == 3)
        a(f"""
        s_cbranch_vccz {d}
        s_cmp_lt_u32 s{S_SPIN}, s{S_LIM}
        s_cbranch_scc1 {l}
        s_mov_b32 s{S_LIM}, 1
        s_branch {d}
        """)
    a.cold.append(coldp)
    stamp(a, stamps, 4)
    if cfg['mhint'] == 1 and not cfg['cert']: a(mh)
    if stamps: a(f's_mov_b32 s{40+2*7}, s{S_SPIN}')
    if cfg.get('wgd'): a(f's_add_u32 s83, s83, s{S_SPIN}')
    if cfg['flags']: a(f"v_readfirstlane_b32 s{S_CV}, v{V['cu']}")
    hiw = a.newlabel('L_cbh'); rag = a.newlabel('L_rag'); rag2 = a.newlabel('L_rag'); nh = nh0; ny = a.newlabel('L_cny')
    def chores():
        if cfg['flags']:
            slow2 = a.newlabel('L_us'); back2 = a.newlabel('L_ub')
            a(f's_cmp_lt_u32 s{S_CV}, 28\ns_cbranch_scc1 {slow2}\n{back2}:')
            def coldu():
                a.label(slow2)
                wait_cnt(a, S_CU, 28, 174)
                a(f's_branch {back2}')
            a.cold.append(coldu)
        step_advance(a, 458752)
        a(pre)
        housekeeping(a, False)
    def hi_tail():
        w2 = a.newlabel('L_cw2')
        ld = lambda r: f"buffer_load_dword v{r}, v{V['hm']}, {WSRD}, s{S_T1} offen sc1"
        a(f"""
{hiw}:
        s_add_u32 s{S_T1}, s{S_MOFF}, 8192
        s_cmp_eq_u32 s{S_WAVE}, 2
        s_cbranch_scc1 {w2}
        {ld(HT[0])}
        s_waitcnt lgkmcnt(0)
        {ld(HT[1])}
        {'s_nop 8' if cfg['reds'] else 's_barrier'}
        {ld(HT[2])}
        """)
        stamp(a, stamps, 5)
        chores()
        wait_hint(a, V['hm'], S_MOFF, HT, delay=cfg['cdelay'], inner=cfg['hinner'], primed=True)
        a(f's_branch {nh}\n{w2}:\n' + ('s_waitcnt lgkmcnt(0)' if cfg['reds'] else 's_waitcnt lgkmcnt(0)\ns_barrier'))
        if cfg['cq']: a(f"s_sleep {cfg['cq']}")
        stamp(a, stamps, 5)
        chores()
        a(f's_branch {nh}')
    a.cold.append(hi_tail)
    a(f"""
    v_pk_add_f32 v[{R}:{R+1}], v[{A}:{A+1}], v[{A+2}:{A+3}]
    v_pk_add_f32 v[{R+2}:{R+3}], v[{A+4}:{A+5}], v[{A+6}:{A+7}]
    ds_write_b128 v{V['rw']}, v[{R}:{R+3}] offset:{LDS_RED}
    {f"ds_write_b32 v{V['fw']}, v{V['fv']}" if cfg['reds'] else ''}
    s_cmp_ge_u32 s{S_WAVE}, 2
    {'' if cfg['reds'] else f's_cbranch_scc1 {hiw}'}
    {'' if cfg['reds'] else 's_waitcnt lgkmcnt(0)'}
    s_barrier
    {'s_nop %d' % (cfg['reds']-2) if cfg['reds'] > 1 else ''}
{rag}:
    {f"ds_read_b128 v[{R+8}:{R+11}], v{V['l16']} offset:{LDS_CF}" if cfg['reds'] else ''}
    ds_read_b64 v[{R}:{R+1}], v{V['rr']} offset:{LDS_RED}
    ds_read_b64 v[{R+2}:{R+3}], v{V['rr']} offset:{LDS_RED+1024}
    ds_read_b64 v[{R+4}:{R+5}], v{V['rr']} offset:{LDS_RED+2048}
    ds_read_b64 v[{R+6}:{R+7}], v{V['rr']} offset:{LDS_RED+3072}
    """)
    if cfg['reds']:
        a(f"""
        s_cbranch_scc1 {hiw}
        s_waitcnt lgkmcnt(4)
        v_min3_u32 v{R+8}, v{R+8}, v{R+9}, v{R+10}
        v_min_u32 v{R+8}, v{R+8}, v{R+11}
        v_cmp_ne_u32 vcc, v{R+8}, v{V['fv']}
        """)
    a(f"""
    s_waitcnt lgkmcnt(2)
    v_pk_add_f32 v[{R}:{R+1}], v[{R}:{R+1}], v[{R+2}:{R+3}]
    s_waitcnt lgkmcnt(0)
    v_pk_add_f32 v[{R+4}:{R+5}], v[{R+4}:{R+5}], v[{R+6}:{R+7}]
    {'s_cmp_eq_u64 vcc, 0' if cfg['reds'] else ''}
    v_pk_add_f32 v[{R}:{R+1}], v[{R}:{R+1}], v[{R+4}:{R+5}]
    v_cvt_pk_bf16_f32 v9, v{R}, v{R+1}
    {'s_cselect_b64 exec, -1, 0' if cfg['reds'] else ''}
    buffer_store_dword v9, v{V['mw']}, {WSRD}, s{S_MOFF} offen {pf}
    """)
    if cfg['reds']:
        a(f"s_mov_b64 exec, -1\ns_cbranch_scc0 {rag2}")
        a.cold.append(lambda: a(f"{rag2}:\n" + ('s_add_u32 s85, s85, 1\n' if cfg.get('wgd') else '') + f's_cmp_eq_u32 s{S_WAVE}, 9\ns_branch {rag}'))
    if cfg['cert']: a(mh)
    stamp(a, stamps, 5)
    a(f"""
    s_cmp_lt_u32 s{S_STEP}, 62
    s_cbranch_scc1 {ny}
    s_add_u32 s{S_T0}, s{S_MOFF}, {L.MB_Y - L.MB_M}
    buffer_store_dword v9, v{V['mw']}, {WSRD}, s{S_T0} offen sc1
{ny}:
    """)
    chores()
    a(f's_branch {nh}')
    while a.cold: a.flush_cold()

def helper_cu(a, cfg):
    V = dict(l8=0, pa=1, idx=2, mf=12); LN = 112
    NP = cfg['npf']; D = cfg['pfd']; PER = cfg['pfper']
    a(f'v_mov_b32 v{LN}, v1')
    team_register(a)
    common_addrs(a, V, LN)
    a(f"""
    v_lshlrev_b32 v4, 7, v{LN}
    v_mov_b32 v3, v4
    v_mov_b32 v5, 0
    v_mov_b32 v6, 14
    s_sub_u32 s{S_ROLE}, s{S_ROLE}, 30
    s_lshl_b32 s{S_EOFF}, s{S_ROLE}, 2
    s_add_u32 s{S_EOFF}, s{S_EOFF}, s{S_WAVE}
    s_mov_b32 s{S_STEP}, 0
    s_mov_b32 s{S_MOFF}, {L.MB_M + 8192}
    s_mov_b32 s{S_CV}, {L.DUMMY + 0x200000}
    s_mul_i32 s{S_GOFF}, s{S_EOFF}, 7168
    s_add_u32 s{S_GOFF}, s{S_GOFF}, {L.XN}
    s_mov_b32 s{S_POFF}, 28672
    s_cmp_lt_u32 s{S_EOFF}, 4
    s_cbranch_scc1 H_t
    s_sub_u32 s{S_GOFF}, s{S_EOFF}, 4
    s_mul_i32 s{S_GOFF}, s{S_GOFF}, 6144
    s_add_u32 s{S_GOFF}, s{S_GOFF}, {L.MB_P}
    s_mov_b32 s{S_POFF}, 16384
    s_cmp_lt_u32 s{S_EOFF}, 6
    s_cbranch_scc1 H_t
    s_mov_b32 s{S_GOFF}, {L.MB_M + 8192}
    s_mov_b32 s{S_POFF}, 8192
    s_cmp_lt_u32 s{S_EOFF}, {7 if cfg['tlb'] else 8}
    s_cbranch_scc1 H_t
    s_mov_b32 s{S_GOFF}, {L.U + cfg['tlb']*458752}
    s_mov_b32 s{S_POFF}, 458752
    v_mul_u32_u24 v3, 7168, v{LN}
H_t:
    """)
    def mtouch():
        a(f'buffer_load_dword v7, v3, {WSRD}, s{S_GOFF} offen sc1\ns_add_u32 s{S_GOFF}, s{S_GOFF}, s{S_POFF}')
    if cfg['fused']: wait_ln(a, LN, 100)
    team_mode(a, V['mf'], V['mf']+1)
    a(f's_mov_b32 s{S_LIM}, {SPIN_MAX*4}')
    a(f"""
    s_getpc_b64 s[70:71]
H_pc:
    s_lshl_b32 s{S_T0}, s{S_EOFF}, 12
    v_lshrrev_b32 v10, 1, v4
    s_add_u32 s70, s70, s{S_T0}
    s_addc_u32 s71, s71, 0
    s_add_u32 s70, s70, L_nothelp-H_pc
    s_addc_u32 s71, s71, 0
    s_mov_b32 s72, s{S_GOFF}
    s_mov_b32 s{S_SPIN}, 0
    s_mov_b32 s73, {L.MB_P}
H_warm:
    s_mov_b32 s{S_GOFF}, s72
    global_load_dword v8, v10, s[70:71] sc1
    """)
    for _ in range(D+1): mtouch()
    a(f"""
    buffer_load_dword v9, v5, {WSRD}, s73 offen sc1
    s_add_u32 s{S_SPIN}, s{S_SPIN}, 1
    s_waitcnt vmcnt(0)
    v_cmp_eq_u32 vcc, -1, v9
    s_cbranch_vccz H_warmed
    s_sleep 8
    s_cmp_lt_u32 s{S_SPIN}, s{S_LIM}
    s_cbranch_scc1 H_warm
H_warmed:
    """)
    mul = {2: (128, 8), 3: (86, 8)}[PER]
    for k in range(NP):
        a(f"""
        s_add_u32 s{S_T0}, s{S_EOFF}, {8*k}
        s_min_u32 s{S_T0}, s{S_T0}, {14*PER-1}
        s_mul_i32 s{S_T1}, s{S_T0}, {mul[0]}
        s_lshr_b32 s{S_T1}, s{S_T1}, {mul[1]}
        s_mul_i32 s{S_T1}, s{S_T1}, {4-PER}
        s_add_u32 s{S_T0}, s{S_T0}, s{S_T1}
        s_lshl_b32 s{60+k}, s{S_T0}, 13
        s_add_u32 s{60+k}, s{60+k}, {L.U}
        """)
    def utouch():
        for k in range(NP):
            a(f'buffer_load_dword v{32+k}, v4, {WSRD}, s{60+k} offen sc1\ns_add_u32 s{60+k}, s{60+k}, 458752')
    a(f's_mov_b32 s{S_CU}, {L.CNT_U}')
    for _ in range(D if NP else 0):
        if cfg['flags']: wait_cnt(a, S_CU, 28, 30)
        utouch()
        a(f's_add_u32 s{S_CU}, s{S_CU}, 128')
    t = V['mf']; pa = V['pa']
    sk = a.newlabel('H_sk'); sk2 = a.newlabel('H_sk'); ok = a.newlabel('H_ok')
    a(f"""
H_top:
    s_mov_b32 s{S_SPIN}, 0
H_poll:
    buffer_load_dwordx4 v[{t}:{t+3}], v{pa}, {WSRD}, s{S_MOFF} offen sc1
    buffer_load_dwordx4 v[{t+4}:{t+7}], v{pa}, {WSRD}, s{S_MOFF} offen offset:768 sc1
    buffer_load_dword v30, v5, {WSRD}, s{S_CU} offen sc1
    s_add_u32 s{S_SPIN}, s{S_SPIN}, 1
    s_waitcnt vmcnt(0)
    v_max3_u32 v{t+8}, v{t}, v{t+1}, v{t+2}
    v_max3_u32 v{t+8}, v{t+8}, v{t+3}, v{t+4}
    v_max3_u32 v{t+8}, v{t+8}, v{t+5}, v{t+6}
    v_max_u32 v{t+8}, v{t+8}, v{t+7}
    v_readfirstlane_b32 s{S_T0}, v30
    v_cmp_eq_u32 vcc, -1, v{t+8}
    s_cbranch_vccz {ok}
    s_sleep {cfg['hsleep']}
    s_cmp_lt_u32 s{S_SPIN}, s{S_LIM}
    s_cbranch_scc1 H_poll
    s_mov_b32 s{S_LIM}, 1
{ok}:
    s_cmp_lg_u32 s{S_ROLE}, 0
    s_cbranch_scc1 {sk}
    s_add_u32 s{S_T1}, s{S_MOFF}, {L.MB_Y - L.MB_M}
    buffer_store_dwordx4 v[{t}:{t+3}], v{pa}, {WSRD}, s{S_T1} offen sc1
    buffer_store_dwordx4 v[{t+4}:{t+7}], v{pa}, {WSRD}, s{S_T1} offen offset:768 sc1
{sk}:
    s_cmp_ge_u32 s{S_STEP}, {63 - D}
    s_cbranch_scc1 {sk2}
    """)
    mtouch()
    if NP:
        sk3 = a.newlabel('H_sk'); sk4 = a.newlabel('H_sk')
        if cfg['flags']: a(f's_cmp_lt_u32 s{S_T0}, 28\ns_cbranch_scc1 {sk3}')
        utouch()
        a(f's_branch {sk4}\n{sk3}:')
        for k in range(NP): a(f's_add_u32 s{60+k}, s{60+k}, 458752')
        a(f'{sk4}:\ns_add_u32 s{S_CU}, s{S_CU}, 128')
    a(f"""
{sk2}:
    s_add_u32 s{S_STEP}, s{S_STEP}, 1
    s_add_u32 s{S_MOFF}, s{S_MOFF}, 8192
    s_cmp_lt_u32 s{S_STEP}, 62
    s_cbranch_scc1 H_top
    s_branch L_exit
    """)

DEFAULT_CFG = dict(ba=[35, 35, 34, 34], bak=3, bb=[53, 53, 0, 0], xflags='', ssleep=[2, 2, 2, 0], csleep=0, psleep=0, touch=1,
                   nou=0, nox=0, cflush=1, flags=0, ustep=3, hsleep=2, mdelay=14, pdelay=1, phint=9, lead=[4, 1], pnop=[0, 8], b5nop=2, npf=0, pfper=2, hdepth=4, hpre=10, psl=3, fl=1, mhk=0, px=9, quiet=7, cq=1, al=[0, 0, 0, 3, 1], prio=[0, 0, 0, 0], wfl='', fused=0, cpk=0, cert=0, b3s=0, reds=0, pw=41, fin1=0, tlb=0, xin=0, xstep=3, xs=2, xw=[(0, 9), (9, 18), (18, 28), (0, 0)], pbar=1, scap=None, ccap=None, m2=0, mdma=1, m2d=0, msamp=0, cdma=1, m2w=10, p2=32, cutrig=1, hinner=2, uearly=4, mhint=1, mhnop=0, sdrain=0, pfd=3, mpre=6, chint=1, cdelay=24)

def team_body(a, stamps=False, cfg=None):
    cfg = dict(DEFAULT_CFG, **(cfg or {}))
    a(f's_cmp_lt_u32 s{S_ROLE}, 30\ns_cbranch_scc1 L_nothelp')
    helper_cu(a, cfg)
    a.label('L_nothelp')
    a(f's_cmp_ge_u32 s{S_ROLE}, 16\ns_cbranch_scc1 L_comb')
    score_setup(a, stamps, cfg)
    for fast in (1, 0):
        a(f's_cmp_lg_u32 s{S_FAST}, {fast}\ns_cbranch_scc1 L_sc_next{fast}')
        for w in range(4):
            if w < 3:
                a(f's_cmp_lg_u32 s{S_WAVE}, {w}\ns_cbranch_scc1 L_sc{fast}_n{w}')
            score_wave(a, w, '' if fast else 'sc1', stamps, cfg)
            if w < 3: a.label(f'L_sc{fast}_n{w}')
        a.label(f'L_sc_next{fast}')
    a('s_branch L_exit')
    a.label('L_comb')
    comb_setup(a, stamps, cfg)
    for fast in (1, 0):
        a(f's_cmp_lg_u32 s{S_FAST}, {fast}\ns_cbranch_scc1 L_cb_next{fast}')
        comb_wave(a, '' if fast else 'sc1', stamps, cfg)
        a.label(f'L_cb_next{fast}')
    a('s_branch L_exit')
```

```python
from asmlib import *
import layout as L
from team import Q, xlane4

KA = dict(x=0, mem0=8, wq=16, wk=24, wv=32, wo=40, w1=64, w2=72, out=80, dbg=88, ws=96)
LOG2E_16 = 0x3db8aa3b

def srd(a, d, lo, nbytes):
    a(f"""
    s_mov_b32 s{d}, s{lo}
    s_and_b32 s{d+1}, s{lo+1}, 0xffff
    s_mov_b32 s{d+2}, {nbytes}
    s_mov_b32 s{d+3}, 0x20000
    """)

WO_STRIDE = 144
def prep_kernel(a, diag=False, stfl='sc1', touch=1, a1up=0, ldfl='', t0=False, fused=False, early=1, bfl=None, dyn=0, code=1):
    WS, SA, SB = 8, 12, (64 if fused else 16)
    ldfl_b = ldfl if bfl is None else bfl
    if code:
        a(f"""
        s_getpc_b64 s[40:41]
P_pc:
        v_lshlrev_b32 v12, 7, v0
        global_load_dword v255, v12, s[40:41]
        """)
    a(f"""
    s_load_dwordx8 s[24:31], s[0:1], {KA['wq']}
    s_load_dwordx4 s[32:35], s[0:1], {KA['x']}
    s_cmp_ge_u32 s2, 256
    s_cbranch_scc1 {'L_end' if fused else 'P_exit'}
    """)
    if dyn:
        a(f"""
        s_load_dwordx2 s[6:7], s[0:1], {KA['dbg']}
        s_getreg_b32 s19, hwreg(HW_REG_XCC_ID, 0, 4)
        v_mov_b32 v4, 0
        v_cmp_eq_u32 vcc, 0, v0
        s_and_saveexec_b64 s[44:45], vcc
        s_cbranch_execz P_dw
        s_mov_b32 s18, 0
        s_waitcnt lgkmcnt(0)
P_dt:
        s_add_u32 s21, s19, s18
        s_and_b32 s21, s21, 7
        s_lshl_b32 s22, s21, 5
        v_mov_b32 v2, s22
        v_mov_b32 v3, 1
        global_atomic_add v3, v2, v3, s[6:7] sc0
        s_waitcnt vmcnt(0)
        v_readfirstlane_b32 s22, v3
        s_cmp_lt_u32 s22, 32
        s_cbranch_scc1 P_dg
        s_add_u32 s18, s18, 1
        s_cmp_lt_u32 s18, 8
        s_cbranch_scc1 P_dt
        s_mov_b32 s22, 31
P_dg:
        s_lshl_b32 s22, s22, 3
        s_add_u32 s22, s22, s21
        v_mov_b32 v2, s22
        ds_write_b32 v4, v2
        s_waitcnt lgkmcnt(0)
P_dw:
        s_mov_b64 exec, -1
        s_barrier
        ds_read_b32 v2, v4
        s_waitcnt lgkmcnt(0)
        v_readfirstlane_b32 s2, v2
        s_barrier
        """)
    a(f"""
    s_and_b32 s21, s2, 7
    s_lshr_b32 s22, s2, 3
    """)
    if early:
        a(f"""
        s_mul_i32 s23, s22, 37
        s_lshr_b32 s23, s23, 8
        s_mul_i32 s36, s23, 7
        s_sub_u32 s36, s22, s36
        s_lshl_b32 s37, s21, 1
        s_lshr_b32 s38, s23, 1
        s_add_u32 s38, s38, s37
        s_lshl_b32 s46, s36, 19
        s_lshl_b32 s47, s38, 9
        s_add_u32 s46, s46, s47
        v_lshrrev_b32 v9, 2, v0
        v_and_b32 v10, 3, v0
        v_lshlrev_b32 v9, 13, v9
        v_lshl_add_u32 v9, v10, 7, v9
        v_add_u32 v9, s46, v9
        s_cmp_ge_u32 s22, 28
        s_cbranch_scc1 P_e2
        s_bitcmp1_b32 s23, 0
        s_waitcnt lgkmcnt(0)
        s_cbranch_scc1 P_e1
        global_load_dword v14, v9, s[26:27] {ldfl}
        global_load_dword v15, v9, s[24:25] {ldfl}
        s_branch P_e2
P_e1:
        s_mul_i32 s46, s38, 229376
        s_lshl_b32 s47, s36, 7
        s_add_u32 s46, s46, s47
        v_mul_u32_u24 v10, 896, v0
        v_add_u32 v10, s46, v10
        global_load_dword v14, v10, s[30:31] {ldfl}
        global_load_dword v15, v9, s[28:29] {ldfl}
P_e2:
        """)
        touch = 0
    if code > 1:
        for k in (1, 2):
            a(f'v_add_u32 v12, 32768, v12\nv_min_u32 v11, L_end-P_pc, v12\nglobal_load_dword v255, v11, s[40:41]')
    a(f"""
    s_load_dwordx2 s[4:5], s[0:1], {KA['ws']}
    s_load_dwordx2 s[6:7], s[0:1], {KA['dbg']}
    v_lshrrev_b32 v2, 6, v0
    v_and_b32 v1, 63, v0
    v_readfirstlane_b32 s20, v2
    s_waitcnt lgkmcnt(0)
    """)
    srd(a, WS, 4, L.WS_BYTES)
    if t0:
        a(f"""
        s_cmp_lg_u32 s2, 0
        s_cbranch_scc1 P_t0
        s_memrealtime s[60:61]
        s_mov_b32 s62, {L.STAMP + 0xf0000}
        v_mov_b32 v5, 0
        s_waitcnt lgkmcnt(0)
        v_mov_b32 v4, s60
        buffer_store_dword v4, v5, s[{WS}:{WS+3}], s62 offen sc1
P_t0:
        """)
    DB = 56
    if fused:
        srd(a, DB, 6, 256)
        a(f"""
        v_mov_b32 v249, 128
        v_mov_b32 v250, 1
        s_or_b32 s19, s2, s20
        s_cmp_lg_u32 s19, 0
        s_cbranch_scc1 P_na
        s_memrealtime s[80:81]
        s_mov_b64 exec, 1
        s_waitcnt lgkmcnt(0)
        s_lshl_b64 s[80:81], s[80:81], 3
        s_or_b32 s81, s81, 0x80000000
        v_mov_b32 v252, s80
        v_mov_b32 v253, s81
        buffer_store_dwordx2 v[252:253], v249, s[{DB}:{DB+3}], 0 offen sc1
        s_mov_b64 exec, -1
P_na:
        """)
    def ask_role():
        l = a.newlabel('P_ar')
        a(f"""
        s_cmp_lg_u32 s20, 0
        s_cbranch_scc1 {l}
        s_getreg_b32 s19, hwreg(HW_REG_XCC_ID, 0, 4)
        s_and_b32 s19, s19, 7
        s_lshl_b32 s19, s19, 2
        s_mov_b64 exec, 1
        v_mov_b32 v251, s19
        buffer_atomic_add v250, v251, s[{DB}:{DB+3}], 0 offen sc0
        s_mov_b64 exec, -1
{l}:
        """)
    tagld = f'buffer_load_dwordx2 v[252:253], v249, s[{DB}:{DB+3}], 0 offen sc1'
    def tag_take():
        l = a.newlabel('P_tg'); d = a.newlabel('P_tgd')
        a(f"""
        s_mov_b32 s19, 0
{l}:
        v_readfirstlane_b32 s80, v252
        v_readfirstlane_b32 s81, v253
        s_cmp_lg_u32 s81, 0
        s_cbranch_scc1 {d}
        {tagld}
        s_add_u32 s19, s19, 1
        s_waitcnt vmcnt(0)
        s_cmp_lt_u32 s19, 100000
        s_cbranch_scc1 {l}
{d}:
        v_mov_b32 v254, 0
        """)
    def flag(prog):
        return f"""v_add_u32 v252, {prog}, v252
            s_mov_b64 exec, 1
            buffer_store_dwordx2 v[252:253], v254, s[{WS}:{WS+3}], s18 offen sc1
            s_mov_b64 exec, -1"""
    def st(k):
        if diag: a(f's_memtime s[{60+2*k}:{61+2*k}]')
    if diag:
        for k in range(8): a(f's_mov_b64 s[{60+2*k}:{61+2*k}], 0')
    st(0)
    nfill = L.CNT + L.CNT_BYTES - L.MB_M
    assert nfill % (256*4096) == 0 or True
    nwg = 192 if fused else 256
    per = (nfill + nwg - 1) // nwg
    per = (per + 4095) // 4096 * 4096
    def fill_boxes():
        a(f"""
        v_lshlrev_b32 v240, 4, v0
        v_mov_b32 v244, -1
        v_mov_b32 v245, -1
        v_mov_b32 v246, -1
        v_mov_b32 v247, -1
        s_mul_i32 s53, {'s23' if fused else 's2'}, {per}
        s_add_u32 s53, s53, {L.MB_M}
        """)
        assert L.MB_M + nwg*per <= L.STAMP
        for k in range(per // 4096):
            l = a.newlabel('P_fs')
            a(f"""
            s_add_u32 s54, s53, {k*4096}
            s_and_b32 s55, s54, 0xffffe000
            s_cmp_eq_u32 s55, {L.MB_M}
            s_cbranch_scc1 {l}
            s_cmp_eq_u32 s55, {L.MB_Y}
            s_cbranch_scc1 {l}
            s_cmp_ge_u32 s54, {L.CNT}
            s_cselect_b32 s55, 0, -1
            v_mov_b32 v244, s55
            v_mov_b32 v245, s55
            v_mov_b32 v246, s55
            v_mov_b32 v247, s55
            buffer_store_dwordx4 v[244:247], v240, s[{WS}:{WS+3}], s54 offen {stfl}
{l}:
            """)
    if fused:
        a(f"""
        s_mul_i32 s23, s21, 28
        s_add_u32 s23, s23, s22
        s_lshl_b32 s18, s21, 2
        s_add_u32 s18, s18, s22
        s_add_u32 s18, s18, {224-28}
        s_cmp_ge_u32 s22, 28
        s_cselect_b32 s18, s18, s23
        s_lshl_b32 s18, s18, 4
        s_add_u32 s18, s18, s20
        s_lshl_b32 s18, s18, 3
        s_add_u32 s18, s18, {L.FL}
        s_cmp_ge_u32 s22, 28
        s_cbranch_scc1 P_ln
        s_mul_i32 s21, s23, 9363
        s_lshr_b32 s21, s21, 16
        s_mul_i32 s36, s21, 7
        s_sub_u32 s36, s23, s36
        """)
    else:
        a(f"""
        s_cmp_ge_u32 s22, 28
        s_cbranch_scc1 P_ln
        s_mul_i32 s23, s22, 37
        s_lshr_b32 s23, s23, 8
        s_mul_i32 s36, s23, 7
        s_sub_u32 s36, s22, s36
        s_lshl_b32 s21, s21, 2
        s_add_u32 s21, s21, s23
        """)
    a(f"""
    s_and_b32 s37, s21, 1
    s_lshr_b32 s38, s21, 1
    s_cmp_eq_u32 s37, 0
    s_cselect_b32 s40, s24, s28
    s_cselect_b32 s41, s25, s29
    s_cselect_b32 s42, s26, s30
    s_cselect_b32 s43, s27, s31
    """)
    srd(a, SA, 40, 448*8192)
    srd(a, SB, 42, 448*8192)
    BF = 0
    AFR = lambda p: 32 + 64*p
    ACC = lambda p: 160 + 32*p
    OUT = 224
    SLOT = lambda k: (k & 1)*65536
    breg = lambda ks, nt: BF + (ks*4 + nt)*4
    a(f"""
    s_lshl_b32 s39, s20, 2
    s_cmp_eq_u32 s20, 3
    s_cselect_b32 s39, 11, s39
    v_and_b32 v4, 15, v1
    v_lshrrev_b32 v5, 4, v1
    v_lshrrev_b32 v6, 5, v1
    v_and_b32 v7, 31, v1
    v_xor_b32 v7, v7, v6
    v_lshlrev_b32 v8, 13, v6
    v_lshl_add_u32 v8, v7, 4, v8
    s_lshl_b32 s50, s20, 14
    s_lshl_b32 s44, s39, 18
    s_lshl_b32 s45, s38, 9
    s_add_u32 s44, s44, s45
    """)
    if touch:
        a(f"""
        v_lshrrev_b32 v9, 2, v0
        v_lshlrev_b32 v9, 13, v9
        v_and_b32 v10, 3, v0
        v_lshl_add_u32 v9, v10, 7, v9
        """)
        if False:
            a(f"""
            s_sub_u32 s46, s23, s36
            s_and_b32 s47, s23, 0xe0
            s_max_u32 s49, s46, s47
            s_add_u32 s46, s46, 7
            s_add_u32 s47, s47, 32
            s_min_u32 s46, s46, s47
            s_sub_u32 s47, s46, s49
            s_sub_u32 s49, s23, s49
P_tch:
            s_lshl_b32 s46, s49, 19
            s_add_u32 s46, s46, s45
            buffer_load_dword v15, v9, s[{SA}:{SA+3}], s46 offen {ldfl}
            s_add_u32 s49, s49, s47
            s_cmp_lt_u32 s49, 7
            s_cbranch_scc1 P_tch
            """)
        else:
            a(f"""
            s_lshl_b32 s46, s36, 19
            s_add_u32 s46, s46, s45
            buffer_load_dword v15, v9, s[{SA}:{SA+3}], s46 offen {ldfl}
            """)
    for k in range(8):
        a(f'v_xor_b32 v{16+k}, {2*k*16}, v8')
    a(f"""
    v_lshrrev_b32 v6, 2, v4
    v_and_b32 v7, 3, v4
    v_lshl_add_u32 v6, v6, 3, v7
    v_lshlrev_b32 v6, 9, v6
    v_add_u32 v6, s50, v6
    v_xor_b32 v7, v5, v4
    """)
    for k in range(4):
        a(f'v_xor_b32 v9, {4*k}, v7\nv_lshl_add_u32 v{24+k}, v9, 4, v6')
    vq = Q('vmcnt', 63)
    def a_dma(blk, i_):
        xr = 16 + ((i_ >> 2)*2 + (i_ & 1))
        def f(lq=None):
            vq.issue(('a', blk))
            return (f's_add_u32 m0, s50, {SLOT(blk) + i_*1024}\ns_add_u32 s46, s44, {(blk*32 + i_*2)*8192}\n'
                    f'buffer_load_dwordx4 v{xr}, s[{SA}:{SA+3}], s46 offen lds')
        return f
    a('s_cmp_eq_u32 s37, 0\ns_cbranch_scc0 P_t1')
    a(f"""
    s_lshl_b32 s47, s36, 19
    s_add_u32 s47, s47, s45
    s_lshl_b32 s46, s20, 17
    s_add_u32 s47, s47, s46
    s_lshl_b32 s51, s20, 13
    s_mov_b32 s48, {LOG2E_16}
    """)
    for k in range(8):
        a(f's_add_u32 m0, s51, {131072 + k*1024}\ns_add_u32 s46, s47, {k*2*8192}\nbuffer_load_dwordx4 v{16+k}, s[{SB}:{SB+3}], s46 offen {ldfl_b} lds')
    a(f"""
    s_branch P_tj
P_t1:
    v_lshrrev_b32 v10, 3, v1
    v_and_b32 v11, 7, v1
    v_mul_u32_u24 v9, 896, v10
    v_and_b32 v12, 2, v10
    v_xor_b32 v11, v11, v12
    v_lshl_add_u32 v9, v11, 4, v9
    v_xor_b32 v13, 64, v9
    s_mul_i32 s47, s38, 229376
    s_lshl_b32 s46, s36, 7
    s_add_u32 s47, s47, s46
    s_mul_i32 s46, s20, {64*896}
    s_add_u32 s47, s47, s46
    s_lshl_b32 s51, s20, 13
    s_mov_b32 s48, 1.0
    """)
    for k in range(8):
        a(f's_add_u32 m0, s51, {131072 + k*1024}\ns_add_u32 s46, s47, {k*8*896}\nbuffer_load_dwordx4 v{13 if k & 1 else 9}, s[{SB}:{SB+3}], s46 offen {ldfl_b} lds')
    a.label('P_tj')
    st(1)
    for i_ in range(16): a(a_dma(0, i_)())
    if a1up:
        for i_ in range(16): a(a_dma(1, i_)())
    a(f's_waitcnt vmcnt({32 if a1up else 16})\ns_barrier')
    st(2)
    a('s_cmp_eq_u32 s37, 0\ns_cbranch_scc0 P_r1')
    a(f'v_lshlrev_b32 v6, 9, v4\nv_add_u32 v6, 131072, v6')
    for k in range(4):
        a(f'v_xor_b32 v9, {4*k}, v7\nv_lshl_add_u32 v{28+k}, v9, 4, v6')
    for ks in range(8):
        for nt in range(4):
            a(f'ds_read_b128 a[{breg(ks,nt)}:{breg(ks,nt)+3}], v{28+(ks&3)} offset:{nt*8192 + (ks>>2)*256}')
            if nt & 1 and not a1up: a(a_dma(1, ks*2 + (nt >> 1))())
    if not a1up: vq.n -= 16
    a(f"""
    s_branch P_rj
P_r1:
    v_bfe_u32 v10, v1, 2, 2
    v_lshl_add_u32 v11, v5, 3, v10
    v_lshlrev_b32 v13, 7, v11
    v_add_u32 v13, 131072, v13
    v_and_b32 v11, 3, v1
    v_lshl_add_u32 v13, v11, 3, v13
    v_lshrrev_b32 v10, 1, v10
    v_and_b32 v11, 1, v5
    v_lshl_add_u32 v10, v11, 1, v10
    """)
    for nt in range(4):
        a(f'v_xor_b32 v9, {nt}, v10\nv_lshl_add_u32 v{28+nt}, v9, 5, v13')
    for ks in range(8):
        for nt in range(4):
            for hf in range(2):
                r = breg(ks, nt) + 2*hf
                a(f'ds_read_b64_tr_b16 a[{r}:{r+1}], v{28+nt} offset:{(ks*32+hf*4)*128}')
            if nt & 1 and not a1up: a(a_dma(1, ks*2 + (nt >> 1))())
    a(f"""
P_rj:
    s_mul_i32 s52, s37, 448
    s_mul_i32 s47, s38, 28
    s_add_u32 s52, s52, s47
    s_lshl_b32 s47, s36, 2
    s_add_u32 s52, s52, s47
    s_mul_i32 s52, s52, 14336
    s_lshl_b32 s47, s39, 10
    s_add_u32 s52, s52, s47
    s_add_u32 s52, s52, {L.WT}
    s_mov_b32 s49, s48
    v_lshlrev_b32 v3, 4, v1
    s_waitcnt vmcnt(16)
    """)
    def a_read(blk, hf, ks):
        r = AFR(blk & 1) + (hf*8+ks)*4
        off = hf*4*512 + (ks >> 2)*256
        return f'ds_read_b128 v[{r}:{r+3}], v{24+(ks&3) if not blk & 1 else 10+(ks&3)} offset:{off}'
    for k in range(4): a(f'v_add_u32 v{10+k}, 65536, v{24+k}')
    for hf in range(2):
        for ks in range(8): a(a_read(0, hf, ks))
    if fused: a('s_cmp_ge_u32 s23, 192\ns_cbranch_scc1 P_nf')
    fill_boxes()
    if fused: a.label('P_nf')
    a('s_waitcnt lgkmcnt(0)')
    from team import Gaps, emit_stream
    def epi(blk):
        va = []; stt = []
        for nt in range(4):
            ca = ACC(blk & 1) + nt*4; cb = ACC(blk & 1) + (4+nt)*4; o = OUT + nt*4
            v = [f'v_pk_mul_f32 v[{c}:{c+1}], v[{c}:{c+1}], s[48:49]' for c in (ca, ca+2, cb, cb+2)]
            v += [f'v_cvt_pk_bf16_f32 v{o}, v{ca}, v{ca+1}', f'v_cvt_pk_bf16_f32 v{o+1}, v{ca+2}, v{ca+3}',
                  f'v_cvt_pk_bf16_f32 v{o+2}, v{cb}, v{cb+1}', f'v_cvt_pk_bf16_f32 v{o+3}, v{cb+2}, v{cb+3}']
            va.append(v)
            def sf(lq=None, nt=nt, o=o):
                vq.issue(('st', blk))
                return f's_add_u32 s47, s52, {nt*14336}\nbuffer_store_dwordx4 v[{o}:{o+3}], v3, s[{WS}:{WS+3}], s47 offen offset:{blk*1024} {stfl}'
            stt.append(sf)
        return va, stt
    lq = Q('lgkmcnt', 15)
    def block(blk, nb):
        ms = []
        for hf in range(2):
            for ks in range(8):
                r = AFR(blk & 1) + (hf*8+ks)*4
                for nt in range(4):
                    c = ACC(blk & 1) + (hf*4+nt)*4
                    ms.append((f'v_mfma_f32_16x16x32_bf16 v[{c}:{c+3}], v[{r}:{r+3}], a[{breg(ks,nt)}:{breg(ks,nt)+3}], ' + ('0' if ks == 0 else f'v[{c}:{c+3}]'), []))
        gp = Gaps(64)
        g = 0
        if blk + 2 < nb:
            for i_ in range(16): g = gp.put('ds', g, a_dma(blk+2, i_)) + 3
        if blk > 0:
            va, stt = epi(blk-1)
            g2 = 3
            for nt in range(4):
                for x in va[nt]: g2 = gp.put('va', g2, x) + 1
                gp.put('ds', g2+1, stt[nt])
        if blk + 1 < nb:
            gp.force('ds', 44, lambda lq, b=blk+1: vq.wait(('a', b)))
            g = 44
            for hf in range(2):
                for ks in range(8):
                    gp.force('ds', g, a_read(blk+1, hf, ks)); g += 1
            gp.force('va', 63, 's_waitcnt lgkmcnt(0)')
        emit_stream(a, ms, gp, lq)
    block(0, 4)
    st(3)
    a('s_cmp_lt_u32 s20, 2\ns_cbranch_scc1 P_b4')
    import copy
    keep = (vq.n, dict(vq.tags), vq.done)
    for nb in (3, 4):
        if nb == 4:
            a.label('P_b4')
            vq.n, vq.tags, vq.done = keep[0], dict(keep[1]), keep[2]
        for blk in range(1, nb):
            if fused and blk == nb-1:
                ask_role(); a(tagld)
            block(blk, nb)
        va, stt = epi(nb-1)
        for nt in range(4):
            for x in va[nt]: a(x)
            a(stt[nt]())
        if nb == 3: a('s_branch P_last')
    a.label('P_last')
    if fused:
        a('s_waitcnt vmcnt(0)'); tag_take(); a(flag(7))
    a('s_branch P_exit')
    a.label('P_ln')
    srd(a, SA, 32, 2048*896)
    srd(a, SB, 34, 8*896)
    X = 16
    U = 80
    a(f"""
    s_sub_u32 s22, s22, 28
    s_lshl_b32 s21, s21, 2
    s_add_u32 s21, s21, s22
    s_lshl_b32 s21, s21, 2
    s_add_u32 s21, s21, s20
    v_lshrrev_b32 v4, 2, v1
    v_and_b32 v5, 3, v1
    v_mul_u32_u24 v6, 896, v4
    v_lshl_add_u32 v6, v5, 4, v6
    s_mul_i32 s23, s21, {16*896}
    """)
    for kb in range(14):
        a(f'buffer_load_dwordx4 v[{X+4*kb}:{X+4*kb+3}], v6, s[{SA}:{SA+3}], s23 offen offset:{kb*64} {ldfl}')
    if not fused: fill_boxes()
    l = a.newlabel('P_m0')
    a(f's_cmp_ge_u32 s21, 28\ns_cbranch_scc1 {l}')
    from team import img_addr
    img_addr(a, 8, 9, 1)
    a(f"""
    v_lshrrev_b32 v9, 4, v1
    v_mul_u32_u24 v9, {2*896}, v9
    v_and_b32 v7, 15, v1
    v_lshl_add_u32 v9, v7, 1, v9
    s_lshl_b32 s36, s21, 5
    buffer_load_ushort v200, v9, s[{SB}:{SB+3}], s36 offen
    buffer_load_ushort v201, v9, s[{SB}:{SB+3}], s36 offen offset:896
    s_lshr_b32 s36, s21, 2
    s_lshl_b32 s36, s36, 10
    s_and_b32 s37, s21, 3
    s_lshl_b32 s37, s37, 7
    s_add_u32 s36, s36, s37
    s_add_u32 s37, s36, {L.MB_Y}
    s_add_u32 s36, s36, {L.MB_M}
    s_waitcnt vmcnt(0)
    v_lshl_or_b32 v200, v201, 16, v200
    buffer_store_dword v200, v8, s[{WS}:{WS+3}], s36 offen {stfl}
    buffer_store_dword v200, v8, s[{WS}:{WS+3}], s37 offen {stfl}
{l}:
    s_waitcnt vmcnt(0)
    """)
    st(2)
    if fused: ask_role()
    ln_rows(a, X, U, 56, 10, quadred)
    st(4)
    GS, KS = 288, 1152
    a(f"""
    s_mul_i32 s36, s20, {14*KS}
    v_mul_u32_u24 v7, {GS}, v5
    v_lshl_add_u32 v7, v4, 4, v7
    v_add_u32 v7, s36, v7
    v_lshlrev_b32 v3, 4, v1
    v_lshrrev_b32 v6, 4, v1
    v_mul_u32_u24 v6, {GS}, v6
    v_and_b32 v8, 15, v1
    v_lshl_add_u32 v8, v8, 4, v6
    v_add_u32 v8, s36, v8
    """)
    for kb in range(14):
        a(f'ds_write_b128 v7, v[{X+4*kb}:{X+4*kb+3}] offset:{kb*KS}')
    a(f"""
    s_mul_i32 s36, s21, 14336
    s_add_u32 s36, s36, {L.XN}
    """)
    st(3)
    for kb in range(14):
        a(f'ds_read_b128 v[{U+4*kb}:{U+4*kb+3}], v8 offset:{kb*KS}')
    for kb in range(14):
        if kb and kb % 4 == 0: a('s_add_u32 s36, s36, 4096')
        a(f's_waitcnt lgkmcnt({13-kb})')
        a(f'buffer_store_dwordx4 v[{U+4*kb}:{U+4*kb+3}], v3, s[{WS}:{WS+3}], s36 offen offset:{(kb%4)*1024} {stfl}')
    if fused:
        a(tagld + '\ns_waitcnt vmcnt(0)'); tag_take(); a(flag(7))
    a.label('P_exit')
    if fused: return
    if diag:
        a('s_cmp_ge_u32 s2, 256\ns_cbranch_scc1 P_exit2')
        st(5)
        a('s_waitcnt vmcnt(0)')
        st(6)
        a(f's_waitcnt lgkmcnt(0)\ns_lshl_b32 s36, s2, 2\ns_add_u32 s36, s36, s20\ns_lshl_b32 s36, s36, 6\ns_add_u32 s36, s36, {L.STAMP}\ns_mov_b64 exec, 1\nv_mov_b32 v3, 0')
        for k in range(7):
            a(f'v_mov_b32 v4, s{60+2*k}\nbuffer_store_dword v4, v3, s[{WS}:{WS+3}], s36 offen offset:{4*k}\ns_nop 1')
        a.label('P_exit2')
    a('s_endpgm')

def rnd_bf16(a, r, t):
    a(f'v_cvt_pk_bf16_f32 v{r}, v{r}, v{r}\nv_and_b32 v{r}, 0xffff0000, v{r}')

def quadred(a, x, t):
    a(f'v_add_f32_dpp v{x}, v{x}, v{x} quad_perm:[1,0,3,2] row_mask:0xf bank_mask:0xf')
    a(f'v_add_f32_dpp v{x}, v{x}, v{x} quad_perm:[2,3,0,1] row_mask:0xf bank_mask:0xf')

def ln_stats_finish(a, mu, rs, tt):
    rnd_bf16(a, rs, tt)
    a(f'v_add_f32 v{rs}, 0x3727c5ac, v{rs}')
    rnd_bf16(a, rs, tt)
    a(f'v_sqrt_f32 v{rs}, v{rs}')
    rnd_bf16(a, rs, tt)
    a(f'v_rcp_f32 v{rs}, v{rs}')
    rnd_bf16(a, mu, tt)

def ln_rows(a, X, U, n, t, red):
    s0, s1, d0, nm, rs = t, t+1, t+2, t+4, 76
    for i in range(n):
        a(f'v_lshlrev_b32 v{U+2*i}, 16, v{X+i}\nv_and_b32 v{U+2*i+1}, 0xffff0000, v{X+i}')
        if i == 1: a(f'v_pk_add_f32 v[{s0}:{s1}], v[{U}:{U+1}], v[{U+2}:{U+3}]')
        if i > 1: a(f'v_pk_add_f32 v[{s0}:{s1}], v[{s0}:{s1}], v[{U+2*i}:{U+2*i+1}]')
    a(f'v_add_f32 v{s0}, v{s0}, v{s1}')
    red(a, s0, d0)
    a(f'v_mul_f32 v{nm}, 0xbb124925, v{s0}\nv_mul_f32 v{nm+1}, 0xbb124925, v{s0}')
    for i in range(n):
        d = d0 if i & 1 else 72
        a(f'v_pk_add_f32 v[{d}:{d+1}], v[{U+2*i}:{U+2*i+1}], v[{nm}:{nm+1}]')
        if i == 0: a(f'v_pk_mul_f32 v[{s0}:{s1}], v[{d}:{d+1}], v[{d}:{d+1}]')
        else: a(f'v_pk_fma_f32 v[{s0}:{s1}], v[{d}:{d+1}], v[{d}:{d+1}], v[{s0}:{s1}]')
    a(f'v_add_f32 v{s0}, v{s0}, v{s1}')
    red(a, s0, d0)
    a(f'v_mul_f32 v{rs}, 0x3b124925, v{s0}')
    ln_stats_finish(a, nm, rs, d0)
    a(f'v_mov_b32 v{nm+1}, v{nm}\nv_mov_b32 v{rs+1}, v{rs}')
    for i in range(n):
        u = U+2*i
        a(f"""
        v_pk_add_f32 v[{u}:{u+1}], v[{u}:{u+1}], v[{nm}:{nm+1}]
        v_cvt_pk_bf16_f32 v{X+i}, v{u}, v{u+1}
        v_lshlrev_b32 v{u}, 16, v{X+i}
        v_and_b32 v{u+1}, 0xffff0000, v{X+i}
        v_pk_mul_f32 v[{u}:{u+1}], v[{u}:{u+1}], v[{rs}:{rs+1}]
        v_cvt_pk_bf16_f32 v{X+i}, v{u}, v{u+1}
        """)
```

```python
from asmlib import *
import layout as L

SENT = -1
S_WS = 8
S_DBG = 12
S_ROLE = 16
S_WAVE = 17
S_XCC = 18
S_STEP = 19
S_FAST = 20
S_MOFF = 21; S_POFF = 22; S_EOFF = 23; S_GOFF = 24; S_XOFF = 25; S_T0 = 26; S_T1 = 27; S_SPIN = 28; S_LIM = 29
S_EXEC = 30
S_STMP = 32
S_TM = 34
SPIN_MAX = 20000
NTEAM = 32

LDS_M = 0
LDS_T = 7168
LDS_FL = 14336
LDS_VD = 18432
LDS_X = 20480
LDS_CF = 14336
LDS_NAN = 13312
LDS_RED = 7168
LDS_BW = 16384
LDS_ROLE = 160*1024 - 16

def prologue(a, stamps, pool_off=0, scatter=False, code=1, guess=0):
    if code:
        a('s_getpc_b64 s[40:41]\nM_pc:\nv_lshlrev_b32 v12, 7, v0\nglobal_load_dword v255, v12, s[40:41]')
        a('v_add_u32 v12, 32768, v12\nv_min_u32 v11, L_end-M_pc, v12\nglobal_load_dword v255, v11, s[40:41]')
    a(f'''
    s_cmp_ge_u32 s2, 256
    s_cbranch_scc1 L_end
    s_load_dwordx2 s[4:5], s[0:1], 96
    s_load_dwordx2 s[6:7], s[0:1], 88
    s_getreg_b32 s{S_XCC}, hwreg(HW_REG_XCC_ID, 0, 4)
    v_lshrrev_b32 v2, 6, v0
    v_and_b32 v1, 63, v0
    v_readfirstlane_b32 s{S_WAVE}, v2
    s_and_b32 s{S_XCC}, s{S_XCC}, 7
    s_waitcnt lgkmcnt(0)
    s_mov_b32 s{S_WS}, s4
    s_and_b32 s{S_WS+1}, s5, 0xffff
    s_mov_b32 s{S_WS+2}, {L.WS_BYTES}
    s_mov_b32 s{S_WS+3}, 0x20000
    s_mov_b32 s{S_DBG}, s6
    s_and_b32 s{S_DBG+1}, s7, 0xffff
    s_mov_b32 s{S_DBG+2}, 256
    s_mov_b32 s{S_DBG+3}, 0x20000
    v_mov_b32 v4, {LDS_ROLE}
    ''')
    if guess:
        a(f'''
        s_cmp_lg_u32 s{S_XCC}, 0
        s_cbranch_scc1 L_ng
        s_lshr_b32 s{S_T0}, s2, 3
        s_cmp_ge_u32 s{S_T0}, 30
        s_cbranch_scc1 L_ng
        s_mul_i32 s{S_T1}, s{S_T0}, 28
        s_add_u32 s{S_T1}, s{S_T1}, s{S_WAVE}
        s_mov_b32 s{S_STEP}, {4*14336}
        s_cmp_lt_u32 s{S_T0}, 16
        s_cbranch_scc1 L_gs
        s_lshl_b32 s{S_T1}, s{S_T0}, 1
        s_mul_i32 s{S_T0}, s{S_WAVE}, 112
        s_add_u32 s{S_T1}, s{S_T1}, s{S_T0}
        s_add_u32 s{S_T1}, s{S_T1}, {448 - 32 + 84}
        s_mov_b32 s{S_STEP}, 14336
L_gs:
        s_mul_i32 s{S_T1}, s{S_T1}, 14336
        s_add_u32 s{S_T1}, s{S_T1}, {L.WT}
        v_min_u32 v5, 55, v1
        v_lshlrev_b32 v5, 7, v5
        ''')
        for k in range(guess):
            a(f's_add_u32 s{S_T0}, s{S_T1}, 7168')
            a(f'buffer_load_dword v255, v5, s[{S_WS}:{S_WS+3}], s{S_T1} offen\nbuffer_load_dword v255, v5, s[{S_WS}:{S_WS+3}], s{S_T0} offen')
            a(f's_add_u32 s{S_T1}, s{S_T1}, s{S_STEP}')
        a.label('L_ng')
    a(f'''
    s_cmp_lg_u32 s{S_WAVE}, 0
    s_cbranch_scc1 L_role_wait
    s_mov_b64 exec, 1
    s_mov_b32 s{S_T0}, 0
L_role_try:
    {f's_lshr_b32 s{S_T1}, s2, 5' if scatter else f's_mov_b32 s{S_T1}, s{S_XCC}'}
    s_add_u32 s{S_T1}, s{S_T1}, s{S_T0}
    s_and_b32 s{S_T1}, s{S_T1}, 7
    s_lshl_b32 s{S_ROLE}, s{S_T1}, 7
    s_add_u32 s{S_ROLE}, s{S_ROLE}, {L.CNT_P + pool_off}
    v_mov_b32 v2, s{S_ROLE}
    v_mov_b32 v3, 1
    buffer_atomic_add v3, v2, s[{S_WS}:{S_WS+3}], 0 offen sc0
    s_waitcnt vmcnt(0)
    v_readfirstlane_b32 s{S_ROLE}, v3
    s_cmp_lt_u32 s{S_ROLE}, 32
    s_cbranch_scc1 L_role_got
    s_add_u32 s{S_T0}, s{S_T0}, 1
    s_cmp_lt_u32 s{S_T0}, 8
    s_cbranch_scc1 L_role_try
    s_mov_b32 s{S_ROLE}, 31
    s_mov_b32 s{S_T1}, 0
L_role_got:
    s_lshl_b32 s{S_T1}, s{S_T1}, 5
    s_add_u32 s{S_ROLE}, s{S_ROLE}, s{S_T1}
    v_mov_b32 v2, s{S_ROLE}
    ds_write_b32 v4, v2
    s_mov_b64 exec, -1
    s_waitcnt lgkmcnt(0)
L_role_wait:
    s_barrier
    ds_read_b32 v2, v4
    s_waitcnt lgkmcnt(0)
    v_readfirstlane_b32 s{S_ROLE}, v2
    ''')

FSL = [8, 32]
def wait_flags(a, vaddr, need, t, n=1):
    l = a.newlabel('L_wf'); d = a.newlabel('L_wfd')
    regs = [t] + [t+4+2*k for k in range(n-1)]
    a(f"""
    s_mov_b32 s{S_SPIN}, 0
    s_mov_b32 s{S_EXEC}, {L.FL}
    s_add_u32 s{S_EXEC+1}, s80, {need}
{l}:
    """)
    for k, r in enumerate(regs):
        a(f'buffer_load_dwordx2 v[{r}:{r+1}], v{vaddr}, s[{S_WS}:{S_WS+3}], s{S_EXEC} offen offset:{k*512} sc1')
    a(f's_add_u32 s{S_SPIN}, s{S_SPIN}, 1\ns_waitcnt vmcnt(0)')
    for k, r in enumerate(regs):
        a(f"""
        v_subrev_u32 v{r}, s{S_EXEC+1}, v{r}
        v_xor_b32 v{r+1}, s81, v{r+1}
        v_lshl_or_b32 v{t+2}, v{r+1}, 3, v{r+1}
        v_or_b32 v{r}, v{r}, v{t+2}
        """)
        if k: a(f'v_max_u32 v{t}, v{t}, v{r}')
    a(f"""
    v_cmp_lt_u32 vcc, {7 - need}, v{t}
    s_cbranch_vccz {d}
    s_sleep {FSL[n > 1]}
    s_cmp_lt_u32 s{S_SPIN}, {SPIN_MAX*4}
    s_cbranch_scc1 {l}
{d}:
    """)

def prologue_fused(a):
    a(f"""
    s_getreg_b32 s{S_XCC}, hwreg(HW_REG_XCC_ID, 0, 4)
    s_mov_b32 s{S_WAVE}, s20
    s_and_b32 s{S_XCC}, s{S_XCC}, 7
    s_mov_b32 s{S_DBG}, s56
    s_mov_b32 s{S_DBG+1}, s57
    s_mov_b32 s{S_DBG+2}, 256
    s_mov_b32 s{S_DBG+3}, 0x20000
    v_mov_b32 v4, {LDS_ROLE}
    s_cmp_lg_u32 s{S_WAVE}, 0
    s_barrier
    s_cbranch_scc1 L_role_wait
    s_mov_b64 exec, 1
    s_mov_b32 s{S_T0}, 0
    s_mov_b32 s{S_T1}, s{S_XCC}
    v_mov_b32 v3, v250
    s_branch L_role_see
L_role_try:
    s_add_u32 s{S_T1}, s{S_XCC}, s{S_T0}
    s_and_b32 s{S_T1}, s{S_T1}, 7
    s_lshl_b32 s{S_ROLE}, s{S_T1}, 2
    v_mov_b32 v2, s{S_ROLE}
    v_mov_b32 v3, 1
    buffer_atomic_add v3, v2, s[{S_DBG}:{S_DBG+3}], 0 offen sc0
    s_waitcnt vmcnt(0)
L_role_see:
    v_readfirstlane_b32 s{S_ROLE}, v3
    s_cmp_lt_u32 s{S_ROLE}, 32
    s_cbranch_scc1 L_role_got
    s_add_u32 s{S_T0}, s{S_T0}, 1
    s_cmp_lt_u32 s{S_T0}, 8
    s_cbranch_scc1 L_role_try
    s_mov_b32 s{S_ROLE}, 31
    s_mov_b32 s{S_T1}, 0
L_role_got:
    s_lshl_b32 s{S_T1}, s{S_T1}, 5
    s_add_u32 s{S_ROLE}, s{S_ROLE}, s{S_T1}
    v_mov_b32 v2, s{S_ROLE}
    ds_write_b32 v4, v2
    s_mov_b64 exec, -1
    s_waitcnt lgkmcnt(0)
L_role_wait:
    s_barrier
    ds_read_b32 v2, v4
    s_waitcnt lgkmcnt(0)
    v_readfirstlane_b32 s{S_ROLE}, v2
    """)

def wait_ln(a, lane, t, sleep=8):
    l = a.newlabel('L_wa'); d = a.newlabel('L_wad')
    a(f"""
    s_lshl_b32 s{S_T0}, s{S_WAVE}, 13
    s_add_u32 s{S_T0}, s{S_T0}, {L.FL}
    s_add_u32 s{S_T1}, s80, 7
    v_lshlrev_b32 v{t+8}, 7, v{lane}
    s_mov_b32 s{S_SPIN}, 0
{l}:
    buffer_load_dwordx4 v[{t}:{t+3}], v{t+8}, s[{S_WS}:{S_WS+3}], s{S_T0} offen sc1
    buffer_load_dwordx4 v[{t+4}:{t+7}], v{t+8}, s[{S_WS}:{S_WS+3}], s{S_T0} offen offset:16 sc1
    s_add_u32 s{S_SPIN}, s{S_SPIN}, 1
    s_waitcnt vmcnt(0)
    """)
    for k in range(4):
        a(f'v_xor_b32 v{t+2*k}, s{S_T1}, v{t+2*k}\nv_xor_b32 v{t+2*k+1}, s81, v{t+2*k+1}')
    a(f"""
    v_or3_b32 v{t}, v{t}, v{t+1}, v{t+2}
    v_or3_b32 v{t+3}, v{t+3}, v{t+4}, v{t+5}
    v_or3_b32 v{t}, v{t}, v{t+6}, v{t+7}
    v_or_b32 v{t}, v{t}, v{t+3}
    v_cmp_ne_u32 vcc, 0, v{t}
    s_cbranch_vccz {d}
    s_sleep {sleep}
    s_cmp_lt_u32 s{S_SPIN}, {SPIN_MAX*4}
    s_cbranch_scc1 {l}
{d}:
    s_barrier
    """)

STAGE1 = (0, 4, 8, 11)
def load_tiles(a, tiles, vaddr, sbase, stage, flags, bud, cap=None):
    for off, dsts in tiles:
        cur = None
        for k in range(14):
            if stage is not None and (k in STAGE1) != (stage == 1): continue
            if cur != k // 4:
                cur = k // 4
                a(f's_add_u32 s{S_T0}, s{sbase}, {off + cur*4096}')
            a(f'buffer_load_dwordx4 {dsts[k]}, v{vaddr}, s[{S_WS}:{S_WS+3}], s{S_T0} offen offset:{(k%4)*1024} {flags}')
            bud[0] += 1
            if cap is not None:
                if bud[0] > cap: a(f's_waitcnt vmcnt({cap})')
            elif bud[0] >= 56:
                a('s_waitcnt vmcnt(28)'); bud[0] = 28

def team_register(a):
    l = a.newlabel('L_reg')
    a(f'''
    s_cmp_lg_u32 s{S_WAVE}, 0
    s_cbranch_scc1 {l}
    s_cmp_eq_u32 s{S_XCC}, 0
    s_cselect_b32 s{S_T0}, 1, 0x10001
    s_mov_b64 exec, 1
    v_mov_b32 v2, 64
    v_mov_b32 v3, s{S_T0}
    buffer_atomic_add v3, v2, s[{S_DBG}:{S_DBG+3}], 0 offen
    s_mov_b64 exec, -1
{l}:
    ''')

def team_mode_load(vt0, vt1):
    return f'v_mov_b32 v{vt0}, 64\nbuffer_load_dword v{vt1}, v{vt0}, s[{S_DBG}:{S_DBG+3}], 0 offen sc1'

def team_mode(a, vt0, vt1, primed=False):
    l = a.newlabel('L_mode'); d = a.newlabel('L_moded'); p = a.newlabel('L_modep')
    a(f'''
    s_mov_b32 s{S_SPIN}, 0
    {f's_branch {p}' if primed else ''}
{l}:
    {team_mode_load(vt0, vt1)}
{p}:
    s_waitcnt vmcnt(0)
    v_readfirstlane_b32 s{S_T0}, v{vt1}
    s_and_b32 s{S_T1}, s{S_T0}, 0xffff
    s_cmp_ge_u32 s{S_T1}, {NTEAM}
    s_cbranch_scc1 {d}
    s_sleep 2
    s_add_u32 s{S_SPIN}, s{S_SPIN}, 1
    s_cmp_lt_u32 s{S_SPIN}, {SPIN_MAX}
    s_cbranch_scc1 {l}
    s_mov_b32 s{S_T0}, 0x10000
{d}:
    s_lshr_b32 s{S_T0}, s{S_T0}, 16
    s_cmp_eq_u32 s{S_T0}, 0
    s_cselect_b32 s{S_FAST}, 1, 0
    s_mov_b32 s{S_LIM}, {SPIN_MAX}
    ''')

def stamp(a, stamps, idx, vt=None):
    if not stamps: return
    a(f's_memtime s[{40+2*idx}:{41+2*idx}]')
    if idx == 2: a('s_memrealtime s[60:61]')

def stamp_flush(a, stamps, n, vt):
    if not stamps: return
    a('s_waitcnt lgkmcnt(0)')
    for k in range(n):
        a(f'v_writelane_b32 v{vt}, s{40+2*k}, {k}')
    a(f"""
    v_lshrrev_b32 v{vt+1}, 1, v0
    s_mov_b64 exec, {(1 << n) - 1}
    buffer_store_dword v{vt}, v{vt+1}, s[{S_WS}:{S_WS+3}], s{S_STMP} offen
    s_mov_b64 exec, -1
    """)

def wreg(wb, vbase):
    return ar(8*wb, 8) if wb < 32 else vr(vbase + 8*(wb-32), 8)
def wreg_half(wb, vbase, half):
    return ar(8*wb + 4*half, 4) if wb < 32 else vr(vbase + 8*(wb-32) + 4*half, 4)

def xlane4(a, op, x, t):
    a(f'''
    v_mov_b32 v{t}, v{x}
    v_permlane16_swap_b32 v{x}, v{t}
    {op} v{x}, v{x}, v{t}
    v_mov_b32 v{t}, v{x}
    v_permlane32_swap_b32 v{x}, v{t}
    {op} v{x}, v{x}, v{t}
    ''')

QP = 'quad_perm:[2,3,0,1] row_mask:0xf bank_mask:0xf'

def read_mf(a, V):
    for b in range(7):
        a(f"ds_read_b64_tr_b16 v[{V['mf']+4*b}:{V['mf']+4*b+1}], v{V['l8']} offset:{LDS_M+b*1024}")
        a(f"ds_read_b64_tr_b16 v[{V['mf']+4*b+2}:{V['mf']+4*b+3}], v{V['l8']} offset:{LDS_M+b*1024+512}")

def SM(acc, A, B, idx):
    return f'v_smfmac_f32_16x16x64_bf16 v[{acc}:{acc+3}], v[{A}:{A+3}], {B}, v{idx}'


class Q:
    def __init__(self, name, cap):
        self.name = name; self.n = 0; self.tags = {}; self.done = 0; self.cap = cap
    def issue(self, tag=None):
        self.n += 1
        if tag is not None: self.tags[tag] = self.n
    def wait(self, tag):
        k = self.tags[tag]
        if k <= self.done: return ''
        self.done = k
        return 's_waitcnt %s(%d)' % (self.name, min(self.n - k, self.cap))
    def drain(self):
        self.done = self.n
        return 's_waitcnt %s(0)' % self.name

WSRD = f's[{S_WS}:{S_WS+3}]'

def poll_m(a, V, sleep=0):
    t = V['mf']; pa = V['pa']
    l = a.newlabel('L_pm'); d = a.newlabel('L_pmd')
    a(f"""
    s_mov_b32 s{S_SPIN}, 0
{l}:
    buffer_load_dwordx4 v[{t}:{t+3}], v{pa}, {WSRD}, s{S_MOFF} offen sc1
    buffer_load_dwordx4 v[{t+4}:{t+7}], v{pa}, {WSRD}, s{S_MOFF} offen offset:768 sc1
    s_add_u32 s{S_SPIN}, s{S_SPIN}, 1
    s_waitcnt vmcnt(1)
    ds_write_b128 v{pa}, v[{t}:{t+3}]
    v_max3_u32 v{t+8}, v{t}, v{t+1}, v{t+2}
    s_waitcnt vmcnt(0)
    ds_write_b128 v{pa}, v[{t+4}:{t+7}] offset:768
    v_max3_u32 v{t+8}, v{t+8}, v{t+3}, v{t+4}
    v_max3_u32 v{t+8}, v{t+8}, v{t+5}, v{t+6}
    v_max_u32 v{t+8}, v{t+8}, v{t+7}
    v_cmp_eq_u32 vcc, -1, v{t+8}
    s_cbranch_vccz {d}
    {'s_sleep %d' % sleep if sleep else ''}
    s_cmp_lt_u32 s{S_SPIN}, s{S_LIM}
    s_cbranch_scc1 {l}
    s_mov_b32 s{S_LIM}, 1
{d}:
    s_waitcnt lgkmcnt(0)
    s_barrier
    """)

def poll_m2(a, V, gap, x):
    pa = V['pa']; sets = (V['acc']+8, V['acc']+16)
    l = a.newlabel('L_pm'); d = a.newlabel('L_pmd')
    def issue(t):
        a(f"""
        buffer_load_dwordx4 v[{t}:{t+3}], v{pa}, {WSRD}, s{S_MOFF} offen sc1
        buffer_load_dwordx4 v[{t+4}:{t+7}], v{pa}, {WSRD}, s{S_MOFF} offen offset:768 sc1
        """)
    def check(t):
        a(f"""
        s_add_u32 s{S_SPIN}, s{S_SPIN}, 1
        s_waitcnt vmcnt(3)
        ds_write_b128 v{pa}, v[{t}:{t+3}]
        v_max3_u32 v{x}, v{t}, v{t+1}, v{t+2}
        s_waitcnt vmcnt(2)
        ds_write_b128 v{pa}, v[{t+4}:{t+7}] offset:768
        v_max3_u32 v{x}, v{x}, v{t+3}, v{t+4}
        v_max3_u32 v{x}, v{x}, v{t+5}, v{t+6}
        v_max_u32 v{x}, v{x}, v{t+7}
        v_cmp_eq_u32 vcc, -1, v{x}
        """)
    a(f's_mov_b32 s{S_SPIN}, 0')
    issue(sets[0])
    while gap > 0:
        a(f's_nop {min(gap, 16) - 1}'); gap -= 16
    issue(sets[1]); check(sets[0])
    a(f's_cbranch_vccnz {l}\n{d}:\ns_waitcnt lgkmcnt(0)\ns_barrier')
    def cold():
        a.label(l)
        issue(sets[0]); check(sets[1])
        a(f's_cbranch_vccz {d}')
        issue(sets[1]); check(sets[0])
        a(f"""
        s_cbranch_vccz {d}
        s_cmp_lt_u32 s{S_SPIN}, s{S_LIM}
        s_cbranch_scc1 {l}
        s_mov_b32 s{S_LIM}, 1
        s_branch {d}
        """)
    a.cold.append(cold)

def wait_hint(a, vaddr, soff, regs, imm=0, delay=0, gap=12, inner=8, fill=None, primed=False):
    n = len(regs)
    l = a.newlabel('L_h'); d = a.newlabel('L_hd')
    ld = lambda r: f'buffer_load_dword v{r}, v{vaddr}, {WSRD}, s{soff} offen offset:{imm} sc1'
    a(f's_mov_b32 s{S_SPIN}, 0')
    fill = list(fill or [])
    per = -(-len(fill) // (n-1))
    for k in range(0 if primed else n-1):
        a(ld(regs[k]))
        for x in fill[k*per:(k+1)*per]: a(x)
        if per < gap: a(f's_nop {gap - per}')
    a.label(l)
    for k in range(n):
        a(f"""
        {ld(regs[(k+n-1) % n])}
        s_waitcnt vmcnt({n-1})
        v_cmp_eq_u32 vcc, -1, v{regs[k]}
        s_cbranch_vccz {d}
        s_nop {inner}
        """)
    a(f"""
    s_add_u32 s{S_SPIN}, s{S_SPIN}, 1
    s_cmp_lt_u32 s{S_SPIN}, s{S_LIM}
    s_cbranch_scc1 {l}
{d}:
    """)
    while delay > 0:
        a(f's_nop {min(delay, 16) - 1}'); delay -= 16

def wait_cnt(a, off_sgpr, target, vt, sleep=4, primed=False):
    l = a.newlabel('L_wc'); d = a.newlabel('L_wcd'); p = a.newlabel('L_wcp')
    a(f"""
    s_mov_b32 s{S_SPIN}, 0
    v_mov_b32 v{vt}, 0
    {f's_branch {p}' if primed else ''}
{l}:
    buffer_load_dword v{vt+1}, v{vt}, {WSRD}, s{off_sgpr} offen sc1
{p}:
    s_add_u32 s{S_SPIN}, s{S_SPIN}, 1
    s_waitcnt vmcnt(0)
    v_readfirstlane_b32 s{S_T0}, v{vt+1}
    s_cmp_ge_u32 s{S_T0}, {target}
    s_cbranch_scc1 {d}
    s_sleep {sleep}
    s_cmp_lt_u32 s{S_SPIN}, s{S_LIM}
    s_cbranch_scc1 {l}
    s_mov_b32 s{S_LIM}, 1
{d}:
    """)

def img_addr(a, dst, t, lane):
    a(f"""
    v_bfe_u32 v{dst}, v{lane}, 3, 1
    v_lshlrev_b32 v{dst}, 9, v{dst}
    v_bfe_u32 v{t}, v{lane}, 2, 1
    v_lshl_add_u32 v{dst}, v{t}, 6, v{dst}
    v_and_b32 v{t}, 1, v{lane}
    v_lshl_add_u32 v{dst}, v{t}, 5, v{dst}
    v_lshrrev_b32 v{t}, 4, v{lane}
    v_lshl_add_u32 v{dst}, v{t}, 3, v{dst}
    v_bfe_u32 v{t}, v{lane}, 1, 1
    v_lshl_add_u32 v{dst}, v{t}, 2, v{dst}
    """)

def common_addrs(a, V, LN):
    a(f"""
    v_lshlrev_b32 v{V['l8']}, 3, v{LN}
    s_mul_i32 s{S_T0}, s{S_WAVE}, {112*16}
    v_lshlrev_b32 v{V['pa']}, 4, v{LN}
    v_add_u32 v{V['pa']}, s{S_T0}, v{V['pa']}
    v_and_b32 v{LN+1}, 2, v{LN}
    v_cmp_ne_u32 vcc, 0, v{LN+1}
    v_mov_b32 v{LN+1}, 0x4444
    v_mov_b32 v{LN+2}, 0xeeee
    v_cndmask_b32 v{V['idx']}, v{LN+1}, v{LN+2}, vcc
    """)

def load_1k_run(a, dsts, vaddr, sbase, flags='', budget=None):
    for i, d in enumerate(dsts):
        if i and i % 4 == 0:
            a(f's_add_u32 s{sbase}, s{sbase}, 4096')
        a(f'buffer_load_dwordx4 {d}, v{vaddr}, {WSRD}, s{sbase} offen offset:{(i%4)*1024} {flags}')
        if budget is not None:
            budget[0] += 1
            if budget[0] >= 56:
                a('s_waitcnt vmcnt(28)'); budget[0] = 28

class Gaps:
    def __init__(self, n):
        self.ds = [[] for _ in range(n)]; self.va = [[] for _ in range(n)]; self.pre = [[] for _ in range(n)]
        self.n = n
    def put(self, kind, g, text, excl=False):
        while g < self.n - 1:
            if excl:
                if not self.ds[g] and not self.va[g]: break
            else:
                lst = self.ds[g] if kind == 'ds' else self.va[g]
                other = self.va[g] if kind == 'ds' else self.ds[g]
                if not lst and not (other and other[-1][1]): break
            g += 1
        (self.ds if kind == 'ds' else self.va)[g].append((text, excl))
        return g
    def force(self, kind, g, text):
        (self.ds if kind == 'ds' else self.va)[min(g, self.n-1)].append((text, False))

def emit_stream(a, mf, gp, lq, pre=None):
    for i, (m, tags) in enumerate(mf):
        for tg in tags:
            w = lq.wait(tg)
            if w: a(w)
        a(m)
        for lst in (gp.ds[i], gp.va[i]):
            for x, _ in lst:
                t = x(lq) if callable(x) else x
                if t: a(t)

def dsop(text, tag=None):
    def f(lq):
        lq.issue(tag); return text
    return f
def dswait(tag, then=''):
    def f(lq):
        return lq.wait(tag) + '\n' + then
    return f

SV = dict(l8=0, pa=1, idx=2, k1=3, mf=12, acc=40, w=64)
def tile_of(w, u):
    if u < 5: return (u, w)
    order = {(0, 5): (5, 0), (1, 5): (5, 1), (2, 5): (5, 2), (2, 6): (5, 3), (0, 6): (6, 0), (1, 6): (6, 1), (0, 7): (6, 2), (1, 7): (6, 3)}
    return order[(w, u)]
NUNIT = [8, 8, 7, 5]
F = dict(l16=4, px=5, pm=6, mk0=7, mk1=8, mk2=9, wz=10, xf=88, tf=200, sa=228, t=240)

def score_setup(a, stamps, cfg):
    V = SV; LN = 44
    a(f'v_mov_b32 v{LN}, v1')
    team_register(a)
    common_addrs(a, V, LN)
    img_addr(a, V['k1'], LN+1, LN)
    g, cc, par, ib, t = LN+1, LN+2, LN+3, LN+4, LN+5
    a(f"""
    v_lshlrev_b32 v{F['l16']}, 4, v{LN}
    v_lshrrev_b32 v{g}, 4, v{LN}
    v_bfe_u32 v{cc}, v{LN}, 2, 2
    v_bfe_u32 v{par}, v{LN}, 1, 1
    v_and_b32 v{ib}, 1, v{LN}
    v_and_b32 v{t}, 15, v{LN}
    v_lshlrev_b32 v{F['px']}, 4, v{t}
    v_lshrrev_b32 v{t}, 1, v{g}
    v_lshl_add_u32 v{F['px']}, v{t}, 8, v{F['px']}
    v_and_b32 v{t}, 1, v{g}
    v_lshl_add_u32 v{F['px']}, v{t}, 3, v{F['px']}
    s_and_b32 s{S_T0}, s{S_ROLE}, 1
    s_lshl_b32 s{S_T0}, s{S_T0}, 4
    s_lshr_b32 s{S_T1}, s{S_ROLE}, 2
    s_lshl_b32 s{S_T1}, s{S_T1}, 9
    s_add_u32 s{S_T0}, s{S_T0}, s{S_T1}
    s_and_b32 s{S_T1}, s{S_ROLE}, 2
    s_lshl_b32 s{S_T1}, s{S_T1}, 1
    s_add_u32 s{S_T0}, s{S_T0}, s{S_T1}
    s_add_u32 s{S_T0}, s{S_T0}, 8192
    v_and_b32 v{F['pm']}, 0xffffffef, v{V['l8']}
    v_add_u32 v{F['pm']}, s{S_T0}, v{F['pm']}
    s_lshl_b32 s{S_T0}, s{S_ROLE}, 9
    v_add_u32 v{F['px']}, s{S_T0}, v{F['px']}
    v_lshlrev_b32 v{t}, 4, v{ib}
    v_mov_b32 v{F['mk2']}, 0xffff
    v_lshlrev_b32 v{F['mk2']}, v{t}, v{F['mk2']}
    v_cmp_eq_u32 vcc, v{cc}, v{g}
    v_mov_b32 v{t}, 0
    v_cndmask_b32 v{F['mk2']}, v{t}, v{F['mk2']}, vcc
    v_cmp_eq_u32 vcc, 0, v{par}
    v_mov_b32 v{t+1}, 0xff800000
    v_cndmask_b32 v{F['mk0']}, v{t}, v{F['mk2']}, vcc
    v_cndmask_b32 v{F['mk1']}, v{F['mk2']}, v{t}, vcc
    v_cndmask_b32 v{F['wz']}, v{t+1}, v{t}, vcc
    s_mul_i32 s{S_T1}, s{S_ROLE}, {28*14336}
    s_add_u32 s{S_T1}, s{S_T1}, {L.WT}
    """)
    done = a.newlabel('L_sw')
    fz = cfg['fused']
    if fz:
        a(f"v_min_u32 v{LN+8}, 27, v{LN}\nv_lshlrev_b32 v{LN+8}, 3, v{LN+8}\ns_mul_i32 s{S_T0}, s{S_ROLE}, {14*32}\nv_add_u32 v{LN+8}, s{S_T0}, v{LN+8}")
        wait_flags(a, LN+8, 1, LN+10)
    for w in range(4):
        nx = a.newlabel('L_swn')
        if w < 3: a(f's_cmp_lg_u32 s{S_WAVE}, {w}\ns_cbranch_scc1 {nx}')
        tiles = []
        for u in range(NUNIT[w]):
            b, ga = tile_of(w, u)
            tiles.append(((4*b+ga)*14336, [wreg_half(u*7 + k//2, V['w'], k % 2) for k in range(14)]))
        if fz:
            load_tiles(a, tiles, F['l16'], S_T1, 1, cfg['wfl'], [0])
            wait_flags(a, LN+8, 7, LN+10)
            load_tiles(a, tiles, F['l16'], S_T1, 2, cfg['wfl'], [0])
        else:
            load_tiles(a, tiles, F['l16'], S_T1, None, cfg['wfl'], [0], cfg['scap'])
        if w < 3: a(f's_branch {done}\n{nx}:')
    a(f"""
{done}:
    {team_mode_load(V['mf'], V['mf']+1) if not fz else ''}
    s_mov_b32 s{S_STEP}, 0
    s_mov_b32 s{S_MOFF}, {L.MB_M}
    s_mov_b32 s{S_POFF}, {L.MB_P}
    s_mov_b32 s{S_GOFF}, {L.XN}
    s_lshl_b32 s{S_STMP}, s{S_ROLE}, 2
    s_add_u32 s{S_STMP}, s{S_STMP}, s{S_WAVE}
    s_lshl_b32 s{S_STMP}, s{S_STMP}, 12
    s_add_u32 s{S_STMP}, s{S_STMP}, {L.STAMP}
    """)
    if fz:
        wait_ln(a, LN, 12)
    else:
        nf = a.newlabel('L_nx0')
        a(f's_cmp_lg_u32 s{S_WAVE}, 3\ns_cbranch_scc1 {nf}\ns_waitcnt vmcnt(30)\ns_mov_b32 s{S_T0}, s{S_GOFF}')
        load_1k_run(a, [vr(F['xf'] + 4*k, 4) for k in range(28)], F['l16'], S_T0, cfg['wfl'])
        a.label(nf)
    team_mode(a, V['mf'], V['mf']+1, primed=not fz)

def step_advance(a, gstride, xstride=114688):
    a(f"""
    s_add_u32 s{S_STEP}, s{S_STEP}, 1
    s_add_u32 s{S_MOFF}, s{S_MOFF}, 8192
    s_add_u32 s{S_POFF}, s{S_POFF}, 16384
    s_add_u32 s{S_GOFF}, s{S_GOFF}, {gstride}
    s_add_u32 s{S_XOFF}, s{S_XOFF}, {xstride}
    s_add_u32 s{S_STMP}, s{S_STMP}, 64
    """)

def rowred(a, op, x):
    for m in ('row_ror:8', 'row_ror:4', 'row_ror:2', 'row_ror:1'):
        for r in (x, x+1):
            a(f'{op}_dpp v{r}, v{r}, v{r} {m} row_mask:0xf bank_mask:0xf')

def score_wave(a, w, pf, stamps, cfg):
    V = SV; idx = V['idx']; mf = V['mf']
    top = a.newlabel(f'L_sc{w}_top'); first = a.newlabel(f'L_sc{w}_first')
    nunit = NUNIT[w]
    accof = lambda u: V['acc'] + 4*(u % 6)
    ok = {0: (0, 9, 2), 1: (2,), 2: (0, 9, 1, 2), 3: (4,) if cfg['fin1'] else (7, 8, 4)}[w]
    ST = (lambda k: f's_memtime s[{40+2*k}:{41+2*k}]' if k in ok else '') if stamps else (lambda k: '')
    def stamp(a, stamps, k):
        a(ST(k))
    xf, tf, sa, T = F['xf'], F['tf'], F['sa'], F['t']
    FA, FV = 8, 9
    HA = 11
    HT = ([5, 6, 7, 10] if w < 3 else [T+4, T+5, T+6, T+7])[:cfg['hdepth']]
    def load_x():
        a(f's_mov_b32 s{S_T0}, s{S_GOFF}')
        load_1k_run(a, [vr(xf + 4*k, 4) for k in range(28)], F['l16'], S_T0, cfg['wfl'])
    XW = cfg['xw']
    def dma_x(a=a):
        lo, hi = XW[w]
        a(f"""
        s_and_b32 s{S_T0}, s{S_STEP}, 1
        s_xor_b32 s{S_T0}, s{S_T0}, 1
        s_mul_i32 s{S_T0}, s{S_T0}, 28672
        s_add_u32 s{S_T0}, s{S_T0}, {LDS_X + lo*1024}
        s_add_u32 s{S_T1}, s{S_GOFF}, {28672 + lo*1024 - w*1792}
        """)
        for k in range(hi - lo):
            if k % 4 == 0:
                if k: a(f's_add_u32 s{S_T0}, s{S_T0}, 4096\ns_add_u32 s{S_T1}, s{S_T1}, 4096')
                a(f's_mov_b32 m0, s{S_T0}')
            a(f"buffer_load_dwordx4 v{V['pa']}, {WSRD}, s{S_T1} offen offset:{(k%4)*1024} {cfg['wfl']} lds")
    def read_x():
        a(f"""
        s_and_b32 s{S_T0}, s{S_STEP}, 1
        s_mul_i32 s{S_T0}, s{S_T0}, 28672
        v_add_u32 v{T}, s{S_T0}, v{F['l16']}
        """)
        for k in range(28): a(f'ds_read_b128 v[{xf+4*k}:{xf+4*k+3}], v{T} offset:{LDS_X + k*1024}')
    def zero_acc():
        for u in range(2 if cfg['m2'] else min(6, nunit)):
            a(f'v_mov_b64 v[{accof(u)}:{accof(u)+1}], 0\nv_mov_b64 v[{accof(u)+2}:{accof(u)+3}], 0')
        if w == 3:
            for k in range(4): a(f'v_mov_b64 v[{sa+2*k}:{sa+2*k+1}], 0')
            a(f"v_mov_b32 v{sa+8}, v{F['wz']}\nv_mov_b32 v{sa+9}, v{F['wz']}\nv_mov_b64 v[{sa+10}:{sa+11}], 0")
    a(f"v_lshrrev_b32 v{HA}, 1, v{V['l8']}\nv_min_u32 v{HA}, {(27 if cfg['cert'] else 55)*4}, v{HA}\ns_and_b32 s{S_T0}, s{S_ROLE}, 3\ns_lshl_b32 s{S_T0}, s{S_T0}, 8\ns_add_u32 s{S_T0}, s{S_T0}, 7168\nv_add_u32 v{HA}, s{S_T0}, v{HA}")
    if w == 3:
        if cfg['fused']: load_x()
        a(f'v_and_b32 v{T+12}, {15*8}, v0\nv_lshlrev_b32 v{T+12}, 3, v{T+12}\nv_add_u32 v{T+12}, 6144, v{T+12}')
        if stamps: a('s_mov_b32 s40, 0\ns_mov_b32 s42, 0\ns_mov_b32 s44, 0')
        a(f's_mov_b32 s{S_EOFF}, 0\ns_lshl_b32 s{S_T0}, s{S_ROLE}, 2\ns_add_u32 s{S_T0}, s{S_T0}, 12288\nv_lshlrev_b32 v{T+14}, 4, v0\nv_add_u32 v{T+14}, s{S_T0}, v{T+14}\nv_mov_b32 v{T+15}, 0')
    else:
        a(f"v_add_u32 v{FA}, {LDS_FL + 4*w}, v{F['l16']}\nv_mov_b32 v{FV}, 0")
        for k in range(5): a(f'ds_write_b32 v{FA}, v{FV} offset:{k*1024}')
        a(f'v_and_b32 v4, {31*8}, v0\nv_lshlrev_b32 v4, 3, v4\nv_add_u32 v4, {w*2048}, v4')
    if w < 3 and not cfg['xin']: dma_x()
    if cfg['prio'][w]: a(f"s_setprio {cfg['prio'][w]}")
    zero_acc()
    if cfg.get('wgd'): a('s_memrealtime s[88:89]\ns_memrealtime s[96:97]')
    a(f's_branch {first}')
    if cfg['al'] is not None:
        a.raw('    .p2align 6')
        for _ in range(cfg['al'][w]): a.raw('    s_nop 0')
    a.label(top)
    zero_acc()
    stamp(a, stamps, 0)
    if cfg['cert']:
        got = a.newlabel('L_got')
        a(f'v_add_u32 v{FV}, 1, v{FV}' if w < 3 else f's_add_u32 s{S_EOFF}, s{S_EOFF}, 1')
        a(f's_mov_b32 s{S_SAFE}, 0')
        if w == 0:
            ND = cfg['cert']; regs = HT[:ND]
            lp = a.newlabel('L_ct'); dn = a.newlabel('L_ctd')
            def rnd(r):
                a(f'buffer_load_dword v{r}, v{HA}, {WSRD}, s{S_MOFF} offen sc1\ns_mov_b32 m0, {LDS_M}')
                for k in range(7):
                    if k == 4: a(f's_mov_b32 m0, {LDS_M + 4096}')
                    a(f"buffer_load_dwordx4 v{V['pa']}, {WSRD}, s{S_MOFF if k < 4 else S_T0} offen offset:{(k%4)*1024} sc1 lds")
            a(f's_add_u32 s{S_T0}, s{S_MOFF}, 4096\ns_mov_b32 s{S_SPIN}, 0')
            a(ST(9))
            for k in range(ND-1): rnd(regs[k])
            a.label(lp)
            for k in range(ND):
                rnd(regs[(k+ND-1) % ND])
                a(f"""
                s_add_u32 s{S_SPIN}, s{S_SPIN}, 1
                s_waitcnt vmcnt({8*ND-1})
                v_cmp_eq_u32 vcc, -1, v{regs[k]}
                s_cbranch_vccz {dn}
                """)
            a(f's_cmp_lt_u32 s{S_SPIN}, s{S_LIM}\ns_cbranch_scc1 {lp}\n{dn}:\ns_waitcnt vmcnt({8*(ND-1)}) lgkmcnt(0)')
        else:
            a('s_waitcnt vmcnt(0) lgkmcnt(0)')
        a(f's_barrier\n{got}:')
        def coldf():
            a.label(first)
            a(f'v_add_u32 v{FV}, 1, v{FV}' if w < 3 else f's_add_u32 s{S_EOFF}, s{S_EOFF}, 1')
            a(f's_mov_b32 s{S_SAFE}, 1')
            poll_m(a, V)
            a(f's_branch {got}')
        a.cold.append(coldf)
    else:
        if cfg['msamp'] == 2: a(f'v_mov_b32 v{mf if w < 3 else T+13}, 0')
        if cfg['mdma'] == 2: a(f's_mov_b32 m0, {LDS_M}\ns_add_u32 s{S_T0}, s{S_MOFF}, 4096')
        elif cfg['mdma']: a(f's_mov_b32 m0, {LDS_M + w*2048}\ns_add_u32 s{S_T0}, s{S_MOFF}, {w*2048 - w*1792}')
        if not cfg['cutrig'] or w == 0: wait_hint(a, HA, S_MOFF, HT, delay=cfg['mdelay'], inner=cfg['hinner'])
        if cfg['cutrig'] and cfg['mdma'] != 2: a('s_barrier')
    if cfg['cert']: pass
    elif cfg['mdma']:
        got = a.newlabel('L_got')
        a(ST(9))
        nk = 2 if w < 3 else 1
        SA_ = (4 if w < 3 else T+12)
        def rnd(r):
            if cfg['msamp'] == 2:
                a(f"s_mov_b64 exec, {0x55555555 if w < 3 else 0x5555}\nbuffer_load_dword v{r}, v{SA_}, {WSRD}, s{S_MOFF} offen sc1\ns_mov_b64 exec, -1")
            elif cfg['msamp']: a(f"buffer_load_dword v{r}, v{SA_}, {WSRD}, s{S_MOFF} offen sc1")
            for k in range(nk): a(f"buffer_load_dwordx4 v{V['pa']}, {WSRD}, s{S_T0} offen offset:{k*1024} sc1 lds")
        r0, r1 = (mf, HT[1]) if w < 3 else (T+13, T+15)
        two = cfg['m2d']
        rnd(r0)
        a(f'v_add_u32 v{FV}, 1, v{FV}' if w < 3 else f's_add_u32 s{S_EOFF}, s{S_EOFF}, 1')
        a(f's_mov_b32 s{S_SAFE}, 0\ns_mov_b32 s{S_SPIN}, 1')
        if two:
            gap = two
            while gap > 0:
                a(f's_nop {min(gap, 16) - 1}'); gap -= 16
            rnd(r1)
        ex = (nk+1) if two else 0
        bad = a.newlabel('L_mbad'); okl = a.newlabel('L_mok')
        a(f"""
        {f's_waitcnt vmcnt({nk + ex})' if cfg['msamp'] else ''}
        {f'v_cmp_eq_u32 vcc, -1, v{r0}' if cfg['msamp'] else ''}
        {f's_cbranch_vccnz {bad}' if cfg['msamp'] else ''}
        s_waitcnt vmcnt({ex}) lgkmcnt(0)
{okl}:
        s_barrier
{got}:
        """)
        def coldb():
            lp = a.newlabel('L_mlp')
            a.label(bad)
            if two:
                a(f's_mov_b32 s{S_SPIN}, 2\ns_waitcnt vmcnt(0) lgkmcnt(0)\nv_cmp_eq_u32 vcc, -1, v{r1}\ns_cbranch_vccz {okl}')
            a.label(lp)
            rnd(r0)
            a(f"""
            s_add_u32 s{S_SPIN}, s{S_SPIN}, 1
            s_waitcnt vmcnt(0) lgkmcnt(0)
            v_cmp_eq_u32 vcc, -1, v{r0}
            s_cbranch_vccz {okl}
            s_cmp_lt_u32 s{S_SPIN}, s{S_LIM}
            s_cbranch_scc1 {lp}
            s_mov_b32 s{S_LIM}, 1
            s_branch {okl}
            """)
        a.cold.append(coldb)
        def coldf():
            a.label(first)
            a(f'v_add_u32 v{FV}, 1, v{FV}' if w < 3 else f's_add_u32 s{S_EOFF}, s{S_EOFF}, 1')
            a(f's_mov_b32 s{S_SAFE}, 1')
            poll_m(a, V)
            a(f's_branch {got}')
        a.cold.append(coldf)
    else:
        a.label(first)
        a(f'v_add_u32 v{FV}, 1, v{FV}' if w < 3 else f's_add_u32 s{S_EOFF}, s{S_EOFF}, 1')
        a(ST(9))
        if cfg['m2']: poll_m2(a, V, cfg['m2'], mf)
        else: poll_m(a, V)
    stamp(a, stamps, 1)
    if stamps and w < 3: a(f's_mov_b32 s{40+2*7}, s{S_SPIN}')
    lq = Q('lgkmcnt', 15)
    mrd = [dsop(f"ds_read_b64_tr_b16 v[{mf+4*b+2*hf}:{mf+4*b+2*hf+1}], v{V['l8']} offset:{LDS_M+b*1024+hf*512}", ('mf', b))
           for b in range(7) for hf in range(2)]
    for x in mrd[:cfg['mpre']]: a(x(lq))
    order = [(u, b) for b in range(7) for u in range(2)] + [(u, b) for u in range(2, nunit) for b in range(7)]
    ms = [(SM(accof(u), mf+4*b, wreg(u*7 + b, V['w']), idx), [('mf', b)] if u == 0 else []) for u, b in order]
    last = {u: i for i, (u, b) in enumerate(order)}
    def smfma(b):
        t4 = tf + 4*b
        return [(f"v_mfma_f32_16x16x32_bf16 v[{sa+8}:{sa+11}], v[{t4}:{t4+3}], v[{mf+4*b}:{mf+4*b+3}], " + f'v[{sa+8}:{sa+11}]', [('tf', b)]),
                (SM(sa, t4, vr(xf + 8*b, 8), idx), []),
                (SM(sa+4, t4, vr(xf + 56 + 8*b, 8), idx), [])]
    def tread(b, hf):
        return dsop(f"ds_read_b64_tr_b16 v[{tf+4*b+2*hf}:{tf+4*b+2*hf+1}], v{V['l8']} offset:{LDS_T+b*1024+hf*512}", ('tf', b))
    phases = [(0, 1, 2), (3, 4)]
    starts = []
    if w == 3:
        for ph in phases:
            starts.append(len(ms))
            for b in ph: ms += smfma(b)
    n = len(ms)
    gp = Gaps(n)
    for k, x in enumerate(mrd[cfg['mpre']:]): gp.put('ds', k, x)
    flag_after = {2, 4} | ({5} if w < 2 else {6})
    def post(u):
        A = accof(u); b, ga = tile_of(w, u)
        va = [f'v_add_f32 v{A}, v{A}, v{A+2}', f'v_add_f32 v{A+1}, v{A+1}, v{A+3}', f'v_cvt_pk_bf16_f32 v{A}, v{A}, v{A+1}']
        ds = [dsop(f"ds_write_b32 v{V['k1']}, v{A} offset:{LDS_T+b*1024+ga*128}", ('k', u))]
        if w < 3 and u in flag_after:
            ds.append(dsop(f'ds_write_b32 v{FA}, v{FV} offset:{sorted(flag_after).index(u)*1024}'))
        return va, ds
    g = 0
    done_at = {}
    for u in range(nunit - (0 if w == 3 else 1)):
        va, ds = post(u)
        g = max(g, last[u] + 3 - (len(va) - 3))
        for x in va: g = gp.put('va', g, x) + 1
        for x in ds: g = gp.put('ds', g, x, excl=True) + 1
        done_at[u] = g
    def zero_in_gaps(u, g):
        A = accof(u)
        for k in range(2):
            gg = g
            while gg < 7*u - 2 and (gp.va[gg] or (gp.ds[gg] and gp.ds[gg][-1][1])): gg += 1
            if gg >= 7*u - 2: gg = max(g, 7*u - 4 + k)
            gp.force('va', gg, f'v_mov_b64 v[{A+2*k}:{A+2*k+1}], 0')
    if cfg['m2']:
        gp.force('ds', cfg['m2w'], 's_waitcnt vmcnt(0)')
        for u in range(2, min(6, nunit)): zero_in_gaps(u, cfg['m2w'])
    for u in range(6, nunit): zero_in_gaps(u, done_at[u-6] + 1)
    if w == 3:
        for pi, ph in enumerate(phases):
            flagrd = f"ds_read_b128 v[{T}:{T+3}], v{F['l16']} offset:{LDS_FL + pi*1024}"
            lead = cfg['lead'][pi]
            g = max(starts[pi] - lead, done_at[max(ph)] if max(ph) < 5 else 0)
            g = min(g, starts[pi]-1)
            if cfg['pnop'][pi]: gp.force('ds', g, f"s_nop {cfg['pnop'][pi]-1}")
            gp.force('ds', g, dsop(flagrd, ('fl', pi)))
            ops = [tread(b, hf) for b in ph for hf in range(2)]
            for k, x in enumerate(ops):
                gp.force('ds', min(g + (k+1)//2, starts[pi]-1), x)
            FM = T+11
            def chk(lq, pi=pi):
                return lq.wait(('fl', pi)) + (f'\nv_min3_u32 v{FM}, v{T}, v{T+1}, v{T+2}' if pi == 0 else
                                              f'\nv_min3_u32 v{T}, v{T}, v{T+1}, v{T+2}\nv_min_u32 v{FM}, v{FM}, v{T}')
            gp.force('va', starts[pi], chk)
    if cfg['xin'] and XW[w][1] > XW[w][0]:
        sub = Asm(); dma_x(sub)
        grp = []; cur = []
        for _, x in sub.items:
            cur.append(x.text)
            if x.text.startswith('buffer'): grp.append('\n'.join(cur)); cur = []
        g = cfg['xin']
        for x in grp: g = gp.put('ds', g, x) + cfg['xstep']
    if w == 0 and cfg['phint'] < 0:
        gp.force('ds', n - 1 + cfg['phint'], f"""s_mov_b64 exec, 15
            buffer_store_dword v{FV}, v4, {WSRD}, s{S_POFF} offen {pf}
            s_mov_b64 exec, -1""")
    emit_stream(a, ms, gp, lq)
    hint = f"""s_mov_b64 exec, 15
        buffer_store_dword v{T+15}, v{T+14}, {WSRD}, s{S_POFF} offen {pf}
        s_mov_b64 exec, -1"""
    if w < 3:
        va, ds = post(nunit-1)
        A_ = accof(nunit-1)
        va = [f'v_pk_add_f32 v[{A_}:{A_+1}], v[{A_}:{A_+1}], v[{A_+2}:{A_+3}]', va[-1]]
        for x in va: a(x)
        for x in ds: a(x(lq))
        if cfg['b3s']: a(f'ds_write_b32 v{FA}, v{FV} offset:3072')
        else: a(lq.drain())
        a('s_barrier')
        stamp(a, stamps, 2)
        if cfg['mdma']:
            again = a.newlabel('L_again')
            a(f"""
            {'s_waitcnt vmcnt(0)' if cfg['xin'] else ''}
            s_barrier
            v_mov_b32 v{mf}, {LDS_VD}
            ds_read_b32 v{mf}, v{mf}
            s_waitcnt lgkmcnt(0)
            v_cmp_eq_u32 vcc, v{mf}, v{FV}
            s_cbranch_vccnz {again}
            """)
            def colda():
                a.label(again)
                zero_acc()
                a(f's_branch {first}')
            a.cold.append(colda)
        elif cfg['quiet']: a(f"s_sleep {cfg['quiet']}")
    else:
        s = T
        mx = T+6; z = T+8; EA = tf; B1 = tf+4; B2 = tf+8; D1 = tf+12; D2 = tf+16; rz = T+10
        a(f"""
        v_mov_b64 v[{B1+2}:{B1+3}], 0
        v_mov_b64 v[{B2}:{B2+1}], 0
        v_mov_b32 v{B2+3}, 0
        v_mov_b32 v{EA+3}, 0
        """)
        for _ in range(cfg['b5nop']): a('s_nop 3')
        q = Q('lgkmcnt', 15)
        a(f"ds_read_b128 v[{T}:{T+3}], v{F['l16']} offset:{LDS_FL + 2048}"); q.issue('fl')
        for hf in range(2): a(tread(5, hf)(q))
        stamp(a, stamps, 2)
        a('s_barrier')
        stamp(a, stamps, 3)
        PX = lambda k: a('s_memtime s[52:53]') if stamps and cfg['px'] == k else None
        PX(0)
        if cfg['b3s']:
            for _ in range(cfg['b3s'] - 1): a('s_nop 0')
            a(f"ds_read_b64 v[{T+4}:{T+5}], v{F['l16']} offset:{LDS_FL + 3072}"); q.issue('fl3')
        for hf in range(2): a(tread(6, hf)(q))
        PX(1)
        if cfg['phint'] == 0: a(hint)
        PX(2)
        fl5 = [f'v_min3_u32 v{T}, v{T}, v{T+1}, v{T+2}', f'v_min_u32 v{FM}, v{FM}, v{T}', f'v_subrev_u32 v{FM}, s{S_EOFF}, v{FM}']
        if cfg['b3s']: fl5[2:2] = ['', f'v_min3_u32 v{FM}, v{FM}, v{T+4}, v{T+5}']
        for b in (5, 6):
            for m, tags in smfma(b):
                for tg in tags: a(q.wait(tg))
                if b == 6 and tags: PX(4)
                a(m)
                if fl5: a(fl5.pop(0))
            if b == 5: PX(3)
        a(ST(7))
        if cfg['phint'] == 1: a(hint)
        e = sa
        redo = a.newlabel('L_smr'); slowmx = a.newlabel('L_sms'); go = a.newlabel('L_smg')
        a(f"""
        s_mov_b32 s{S_T1}, {120 << 23}
        s_mov_b32 s{S_SPIN}, 0
        v_add_f32_dpp v{s+4}, v{sa+10}, v{sa+8} {QP}
        v_add_f32_dpp v{s+5}, v{sa+11}, v{sa+9} {QP}
        v_pk_add_f32 v[{s}:{s+1}], v[{sa}:{sa+1}], v[{sa+2}:{sa+3}]
        v_exp_f32 v{e+8}, v{s+4}
        v_exp_f32 v{e+9}, v{s+5}
        v_pk_add_f32 v[{s+2}:{s+3}], v[{sa+4}:{sa+5}], v[{sa+6}:{sa+7}]
        v_exp_f32 v{e}, v{s}
        v_exp_f32 v{e+1}, v{s+1}
        v_exp_f32 v{e+2}, v{s+2}
        v_exp_f32 v{e+3}, v{s+3}
{redo}:;nf
        v_pk_add_f32 v[{z}:{z+1}], v[{e}:{e+1}], v[{e+8}:{e+9}]
        v_cvt_pk_bf16_f32 v{EA+2}, v{e+8}, v{e+9}
        v_pk_add_f32 v[{z}:{z+1}], v[{z}:{z+1}], v[{e+2}:{e+3}]
        """)
        if cfg['phint'] == 2: a(hint)
        fill = [f'v_cvt_pk_bf16_f32 v{EA+k}, v{e+2*k}, v{e+2*k+1}' for k in range(2)]
        for m in ('row_ror:8', 'row_ror:4', 'row_ror:2', 'row_ror:1'):
            if fill: a(fill.pop(0))
            for r in (z, z+1):
                a(f'v_add_f32_dpp v{r}, v{r}, v{r} {m} row_mask:0xf bank_mask:0xf')
        LO, HI = (127-60) << 23, (127+60) << 23
        a(ST(8))
        a(f"""
        v_rcp_f32 v{mx}, v{z}
        v_rcp_f32 v{mx+1}, v{z+1}
        v_subrev_u32 v{z}, {LO}, v{z}
        v_cvt_pk_bf16_f32 v{rz}, v{mx}, v{mx+1}
        v_and_b32 v{B1}, v{rz}, v{F['mk0']}
        v_and_b32 v{B1+1}, v{rz}, v{F['mk1']}
        v_and_b32 v{B2+2}, v{rz}, v{F['mk2']}
        v_subrev_u32 v{z+1}, {LO}, v{z+1}
        v_mfma_f32_16x16x32_bf16 v[{D1}:{D1+3}], v[{EA}:{EA+3}], v[{B1}:{B1+3}], 0
        v_mfma_f32_16x16x32_bf16 v[{D2}:{D2+3}], v[{EA}:{EA+3}], v[{B2}:{B2+3}], 0
        v_max3_u32 v{z}, v{z}, v{z+1}, v{FM}
        v_cmp_lt_u32 vcc, s{S_T1}, v{z}
        s_cmp_eq_u64 vcc, 0
        s_cselect_b64 exec, -1, 0
        v_cvt_pk_bf16_f32 v{D1}, v{D1}, v{D1+1}
        v_cvt_pk_bf16_f32 v{D1+1}, v{D1+2}, v{D1+3}
        buffer_store_dwordx2 v[{D1}:{D1+1}], v{F['px']}, {WSRD}, s{S_POFF} offen {pf}
        v_cvt_pk_bf16_f32 v{D2}, v{D2}, v{D2+1}
        buffer_store_dword v{D2}, v{F['pm']}, {WSRD}, s{S_POFF} offen {pf}
        s_mov_b64 exec, -1
        s_cbranch_scc0 {slowmx}
        """)
        if cfg['mdma']: a('s_barrier')
        def coldmx():
            a(f'{slowmx}:' + ('\ns_add_u32 s40, s40, 1' if stamps else ''))
            loc = a.newlabel('L_loc'); sf = a.newlabel('L_safe')
            a(f's_cmp_eq_u32 s{S_SPIN}, 0\ns_cbranch_scc1 {loc}')
            if cfg['mdma']:
                a(f"""
                s_cmp_lg_u32 s{S_SAFE}, 0
                s_cbranch_scc1 {sf}
                {'s_add_u32 s86, s86, 1' if cfg.get('wgd') else ''}
                v_mov_b32 v{T}, {LDS_VD}
                v_mov_b32 v{T+1}, s{S_EOFF}
                ds_write_b32 v{T}, v{T+1}
                s_waitcnt lgkmcnt(0)
                s_barrier
                """)
                zero_acc()
                a(f's_branch {first}')
            a(f'{sf}:\ns_mov_b32 s{S_T1}, -1\ns_branch {redo}\n{loc}:\ns_mov_b32 s{S_SPIN}, 1\nv_mov_b32 v{FM}, 0')
            if cfg.get('wgd'): a('s_add_u32 s85, s85, 1')
            for k in range(4): a(f'v_mov_b64 v[{sa+2*k}:{sa+2*k+1}], 0')
            a(f"v_mov_b32 v{sa+8}, v{F['wz']}\nv_mov_b32 v{sa+9}, v{F['wz']}\nv_mov_b64 v[{sa+10}:{sa+11}], 0")
            q2 = Q('lgkmcnt', 15)
            rl = a.newlabel('L_rl'); rd = a.newlabel('L_rld')
            a(f's_mov_b32 s{S_T0}, 0\n{rl}:')
            a(f"ds_read_b128 v[{T}:{T+3}], v{F['l16']} offset:{LDS_FL + 3072}")
            for b in range(7):
                for hf in range(2): a(tread(b, hf)(q2))
            a('s_waitcnt lgkmcnt(0)')
            if cfg['b3s']:
                a(f"""
                v_min3_u32 v{T}, v{T}, v{T+1}, v{T+2}
                s_add_u32 s{S_T0}, s{S_T0}, 1
                v_cmp_gt_u32 vcc, s{S_EOFF}, v{T}
                s_cbranch_vccz {rd}
                s_cmp_lt_u32 s{S_T0}, 1000
                s_cbranch_scc1 {rl}
{rd}:
                """)
            for b in range(7):
                for m, tags in smfma(b): a(m)
            a(f"""
            v_mov_b64 v[{B1+2}:{B1+3}], 0
            v_mov_b64 v[{B2}:{B2+1}], 0
            v_mov_b32 v{B2+3}, 0
            v_mov_b32 v{EA+3}, 0
            v_add_f32_dpp v{s+4}, v{sa+10}, v{sa+8} {QP}
            v_add_f32_dpp v{s+5}, v{sa+11}, v{sa+9} {QP}
            v_pk_add_f32 v[{s}:{s+1}], v[{sa}:{sa+1}], v[{sa+2}:{sa+3}]
            v_pk_add_f32 v[{s+2}:{s+3}], v[{sa+4}:{sa+5}], v[{sa+6}:{sa+7}]
            v_max3_f32 v{mx}, v{s}, v{s+4}, v{s+2}
            v_max3_f32 v{mx+1}, v{s+1}, v{s+5}, v{s+3}
            """)
            rowred(a, 'v_max_f32', mx)
            for k in range(3): a(f'v_pk_add_f32 v[{s+2*k}:{s+2*k+1}], v[{s+2*k}:{s+2*k+1}], v[{mx}:{mx+1}] neg_lo:[0,1] neg_hi:[0,1]')
            for k in range(6): a(f'v_exp_f32 v{e+(k if k < 4 else k+4)}, v{s+k}')
            a(f's_nop 1\ns_branch {redo}')
        a.cold.append(coldmx)
        stamp(a, stamps, 4)
    if stamps: a('s_memtime s[50:51]\ns_memrealtime s[60:61]')
    stamp_flush(a, stamps, 11, mf)
    step_advance(a, 28672, 458752)
    a(f's_cmp_ge_u32 s{S_STEP}, 63\ns_cbranch_scc1 L_exit')
    if w == 3: read_x()
    elif not cfg['nox'] and not cfg['xin']:
        if cfg['xs']: a(f"s_sleep {cfg['xs']}")
        dma_x()
    if cfg['ssleep'][w]:
        a(f"s_sleep {cfg['ssleep'][w]}")
    a(f's_branch {top}')
    a.flush_cold()

S_YD = 33; S_SAFE = 36; S_CV = 37; S_CU = 38; S_MD = 39
CV = dict(ha=160, one=161, zero=162, cu=163, hw=164, hm=165, nw=172, nr=173, pmr=72, fw=73, fv=74, rw2=75, l8=0, pa=1, idx=2, l16=3, pr=4, mw=6, lw=7, rw=8, rr=5, mf=12, acc=40, itm=72, vx=88, uf=96, tw=128, w=176)

def comb_setup(a, stamps, cfg):
    V = CV; LN = 112
    a(f'v_mov_b32 v{LN}, v1')
    team_register(a)
    common_addrs(a, V, LN)
    img_addr(a, V['mw'], LN+1, LN)
    a(f"""
    s_sub_u32 s{S_ROLE}, s{S_ROLE}, 16
    s_lshl_b32 s{S_ROLE}, s{S_ROLE}, 1
    s_and_b32 s{S_T0}, s{S_WAVE}, 1
    s_add_u32 s{S_T1}, s{S_ROLE}, s{S_T0}
    s_lshr_b32 s{S_T0}, s{S_T1}, 2
    s_lshl_b32 s{S_T0}, s{S_T0}, 10
    s_and_b32 s{S_T1}, s{S_T1}, 3
    s_lshl_b32 s{S_T1}, s{S_T1}, 7
    s_add_u32 s{S_T0}, s{S_T0}, s{S_T1}
    s_add_u32 s{S_T0}, s{S_T0}, 8192
    v_add_u32 v{V['mw']}, s{S_T0}, v{V['mw']}
    v_lshlrev_b32 v{V['l16']}, 4, v{LN}
    s_mul_i32 s{S_T0}, s{S_WAVE}, 28672
    s_add_u32 s{S_T0}, s{S_T0}, {LDS_BW}
    v_add_u32 v{V['lw']}, s{S_T0}, v{V['l16']}
    s_lshl_b32 s{S_T0}, s{S_WAVE}, 10
    v_add_u32 v{V['rw']}, s{S_T0}, v{V['l16']}
    v_add_u32 v{V['pr']}, s{S_T0}, v{V['rw']}
    s_and_b32 s{S_T0}, s{S_WAVE}, 1
    s_lshl_b32 s{S_T0}, s{S_T0}, 3
    v_add_u32 v{V['rr']}, s{S_T0}, v{V['l16']}
    s_mul_i32 s{S_T1}, s{S_WAVE}, {4*28}
    s_add_u32 s{S_T1}, s{S_T1}, s{S_ROLE}
    s_add_u32 s{S_T1}, s{S_T1}, 448
    s_mul_i32 s{S_T1}, s{S_T1}, 14336
    s_add_u32 s{S_T1}, s{S_T1}, {L.WT}
    """)
    toff = lambda u: ((u >> 1)*28 + (u & 1))*14336
    fz = cfg['fused']
    tiles = [(toff(u), [wreg_half(u*7 + k//2, V['w'], k % 2) for k in range(14)]) for u in range(6)]
    ltiles = [(toff(u), [vr(12 + (u-6)*116 + 4*k, 4) if u == 6 else vr(120 + 4*k, 4) for k in range(14)]) for u in (6, 7)]
    if fz:
        a(f"""
        v_bfe_u32 v{LN+4}, v{LN}, 2, 2
        v_mul_u32_u24 v{LN+4}, {14*32}, v{LN+4}
        v_and_b32 v{LN+5}, 3, v{LN}
        v_lshl_add_u32 v{LN+4}, v{LN+5}, 3, v{LN+4}
        s_mul_i32 s{S_T0}, s{S_WAVE}, 56
        s_lshr_b32 s{S_SPIN}, s{S_ROLE}, 2
        s_add_u32 s{S_T0}, s{S_T0}, s{S_SPIN}
        s_add_u32 s{S_T0}, s{S_T0}, 7
        s_lshl_b32 s{S_T0}, s{S_T0}, 5
        v_add_u32 v{LN+4}, s{S_T0}, v{LN+4}
        """)
        wait_flags(a, LN+4, 1, 100)
        load_tiles(a, ltiles + tiles, V['l16'], S_T1, 1, cfg['wfl'], [0])
        wait_flags(a, LN+4, 7, 100)
        load_tiles(a, ltiles + tiles, V['l16'], S_T1, 2, cfg['wfl'], [0])
    else:
        load_tiles(a, ltiles + tiles, V['l16'], S_T1, None, cfg['wfl'], [0], cfg['ccap'])
    if not fz:
        a(team_mode_load(104, 105))
        a(f"v_mov_b32 v106, 0\ns_mov_b32 s{S_CU}, {L.CNT_U}\ns_mov_b32 s{S_CV}, {L.CNT_I}")
        a(f'buffer_load_dword v107, v106, {WSRD}, s{S_CU} offen sc1\nbuffer_load_dword v109, v106, {WSRD}, s{S_CV} offen sc1')
    a('s_waitcnt vmcnt(28)')
    for u in (6, 7):
        for k in range(14):
            a(f"ds_write_b128 v{V['lw']}, {ltiles[u-6][1][k]} offset:{(u-6)*14336+k*1024}")
    a('s_waitcnt lgkmcnt(0)')
    if fz: wait_ln(a, LN, 100)
    a(f"""
    s_mov_b32 s{S_STEP}, 0
    s_mov_b32 s{S_MOFF}, {L.MB_M}
    s_mov_b32 s{S_POFF}, {L.MB_P}
    s_lshl_b32 s{S_GOFF}, s{S_ROLE}, 14
    s_lshl_b32 s{S_T0}, s{S_WAVE}, 12
    s_add_u32 s{S_GOFF}, s{S_GOFF}, s{S_T0}
    s_add_u32 s{S_GOFF}, s{S_GOFF}, {L.U}
    s_lshl_b32 s{S_XOFF}, s{S_ROLE}, 12
    s_add_u32 s{S_XOFF}, s{S_XOFF}, {L.VM}
    s_lshr_b32 s{S_STMP}, s{S_ROLE}, 1
    s_add_u32 s{S_STMP}, s{S_STMP}, 16
    s_lshl_b32 s{S_STMP}, s{S_STMP}, 2
    s_add_u32 s{S_STMP}, s{S_STMP}, s{S_WAVE}
    s_lshl_b32 s{S_STMP}, s{S_STMP}, 12
    s_add_u32 s{S_STMP}, s{S_STMP}, {L.STAMP}
    s_waitcnt vmcnt(0)
    """)
    a(f"""
    v_mov_b32 v{V['one']}, 1
    v_mov_b32 v{V['zero']}, 0
    v_mov_b32 v{V['cu']}, 0
    v_and_b32 v{V['ha']}, {120 if cfg['cutrig'] else 24}, v{V['l8']}
    v_lshrrev_b32 v{V['ha']}, 1, v{V['ha']}
    s_lshl_b32 s{S_T0}, s{S_WAVE}, 4
    s_mul_i32 s{S_T0}, s{S_T0}, {0 if cfg['cutrig'] else 1}
    s_and_b32 s{S_T1}, s{S_ROLE}, 6
    s_lshl_b32 s{S_T1}, s{S_T1}, 6
    s_add_u32 s{S_T0}, s{S_T0}, s{S_T1}
    s_add_u32 s{S_T0}, s{S_T0}, 12288
    v_add_u32 v{V['ha']}, s{S_T0}, v{V['ha']}
    s_lshl_b32 s{S_T0}, s{S_ROLE}, {0 if cfg['cert'] else 1}
    s_add_u32 s{S_T0}, s{S_T0}, s{S_WAVE}
    s_lshl_b32 s{S_T0}, s{S_T0}, 2
    s_add_u32 s{S_T0}, s{S_T0}, {8192 + 7168}
    v_lshlrev_b32 v{V['hw']}, 5, v{V['l8']}
    v_add_u32 v{V['hw']}, s{S_T0}, v{V['hw']}
    s_add_u32 s{S_YD}, s{S_XOFF}, 0x8000000
    v_lshrrev_b32 v{V['hm']}, 1, v{V['l8']}
    v_min_u32 v{V['hm']}, {(27 if cfg['cert'] else 55)*4}, v{V['hm']}
    v_add_u32 v{V['hm']}, 7168, v{V['hm']}
    s_mov_b32 s56, 0
    """)
    if cfg['mlin']:
        x, y = 100, 101
        a(f"""
        v_lshrrev_b32 v{y}, 3, v{V['l8']}
        v_bfe_u32 v{x}, v{y}, 1, 2
        v_mul_u32_u24 v{V['rr']}, 192, v{x}
        v_bfe_u32 v{x}, v{y}, 4, 2
        v_lshl_add_u32 v{V['rr']}, v{x}, 5, v{V['rr']}
        v_and_b32 v{x}, 1, v{y}
        v_lshl_add_u32 v{V['rr']}, v{x}, 4, v{V['rr']}
        v_bfe_u32 v{x}, v{y}, 3, 1
        v_lshl_add_u32 v{V['rr']}, v{x}, 3, v{V['rr']}
        v_lshrrev_b32 v{x}, 4, v{y}
        v_mul_u32_u24 v{V['rw2']}, 192, v{x}
        v_and_b32 v{x}, 15, v{y}
        v_lshl_add_u32 v{V['rw2']}, v{x}, 3, v{V['rw2']}
        s_mul_i32 s{S_T0}, s{S_WAVE}, 1536
        v_add_u32 v{V['rw2']}, s{S_T0}, v{V['rw2']}
        s_and_b32 s{S_T0}, s{S_WAVE}, 1
        s_mul_i32 s{S_T1}, s{S_T0}, 768
        v_add_u32 v{V['rr']}, s{S_T1}, v{V['rr']}
        s_add_u32 s{S_T1}, s{S_ROLE}, s{S_T0}
        s_lshr_b32 s{S_T0}, s{S_T1}, 2
        s_lshl_b32 s{S_T0}, s{S_T0}, 10
        s_and_b32 s{S_T1}, s{S_T1}, 3
        s_lshl_b32 s{S_T1}, s{S_T1}, 7
        s_add_u32 s{S_T0}, s{S_T0}, s{S_T1}
        s_add_u32 s{S_T0}, s{S_T0}, 8192
        v_and_b32 v{x}, 31, v{y}
        v_lshlrev_b32 v{V['mw']}, 2, v{x}
        v_lshrrev_b32 v{x}, 5, v{y}
        v_lshl_add_u32 v{V['mw']}, v{x}, 9, v{V['mw']}
        v_add_u32 v{V['mw']}, s{S_T0}, v{V['mw']}
        """)
    a(f"""
    v_lshrrev_b32 v{V['nw']}, 2, v{V['rw']}
    v_lshrrev_b32 v{V['nr']}, 1, v{V['l8']}
    s_lshl_b32 s{S_MD}, s{S_WAVE}, 11
    s_min_u32 s{S_MD}, s{S_MD}, 5120
    s_mov_b32 s{S_CU}, {L.CNT_U}
    """)
    for k in range(8): a(f"v_mov_b32 v{V['vx']+k}, 0")
    a(f"v_lshrrev_b32 v{V['pmr']}, 1, v{V['rw']}")
    a(f"s_lshl_b32 s{S_T0}, s{S_WAVE}, 2\ns_add_u32 s{S_T0}, s{S_T0}, {LDS_CF}\nv_add_u32 v{V['fw']}, s{S_T0}, v{V['l16']}\nv_mov_b32 v{V['fv']}, 0\nds_write_b32 v{V['fw']}, v{V['fv']}")
    team_mode(a, 104, 105, primed=not fz)
    if cfg['flags']:
        wait_cnt(a, S_CU, 28, 106, primed=not fz)
        a(f's_mov_b32 s{S_CV}, {L.CNT_I}')
        wait_cnt(a, S_CV, 98, 108, primed=not fz)
    for k in range(32): a(f"v_mov_b32 v{V['uf']+k}, 0")

def comb_wave(a, pf, stamps, cfg):
    V = CV; idx = V['idx']; mf = V['mf']; tw = V['tw']; uf = V['uf']; pa = V['pa']
    top = a.newlabel('L_cb_top'); nh0 = a.newlabel('L_nh')
    HT = [10, 11, 166, 167][:cfg['hdepth']]
    def store_vx(base, r):
        return [f"buffer_store_dwordx4 v[{r}:{r+3}], v{V['rw']}, {WSRD}, s{base} offen {cfg['xflags']}",
                f"s_add_u32 s{S_T1}, s{base}, 4096\nbuffer_store_dwordx4 v[{r+4}:{r+7}], v{V['rw']}, {WSRD}, s{S_T1} offen {cfg['xflags']}"]
    lq = Q('lgkmcnt', 15)
    def lread(lam, hf):
        return dsop(f"ds_read_b128 v[{tw+8*(lam%4)+4*hf}:{tw+8*(lam%4)+4*hf+3}], v{V['lw']} offset:{lam*2048+hf*1024}", ('lw', lam))
    def housekeeping_acc(a=a):
        for u in range(8):
            A = V['acc'] + 4*u
            a(f'v_mov_b64 v[{A}:{A+1}], 0\nv_mov_b64 v[{A+2}:{A+3}], 0')
    def housekeeping(a=a, acc=True):
        if acc: housekeeping_acc(a)
        for lam in range(4):
            for hf in range(2): a(lread(lam, hf)(lq))
    uload = lambda k: f"buffer_load_dwordx4 v[{uf+4*k}:{uf+4*k+3}], v{V['l16']}, {WSRD}, s{S_GOFF if k < 4 else S_EOFF} offen offset:{(k%4)*1024} {cfg['xflags']}"
    uorder = [] if cfg['nou'] else [4, 5, 6, 7, 0, 1, 2, 3]
    ue = uorder[:cfg['uearly']]; ul = uorder[cfg['uearly']:]
    housekeeping()
    t = mf
    slow = a.newlabel('L_cms'); back = a.newlabel('L_cmb'); redo = a.newlabel('L_cmr')
    pre = f"""s_add_u32 s{S_EOFF}, s{S_GOFF}, 16384
        s_lshl_b32 s{S_CU}, s{S_STEP}, 7
        s_add_u32 s{S_CU}, s{S_CU}, {L.CNT_U + 128}
        s_add_u32 s{S_T0}, s{S_MOFF}, s{S_MD}
        s_mov_b32 m0, s{S_MD}"""
    a(pre)
    if cfg.get('wgd'): a('s_memrealtime s[96:97]')
    a(f's_branch {top}')
    if cfg['al'] is not None:
        a.raw('    .p2align 6')
        for _ in range(cfg['al'][4]): a.raw('    s_nop 0')
    a(f'{nh0}:\ns_barrier')
    a.label(top)
    stamp(a, stamps, 0)
    if cfg['cdma']:
        a(f"""
        buffer_load_dwordx4 v{V['l16']}, {WSRD}, s{S_T0} offen sc1 lds
        buffer_load_dwordx4 v{V['l16']}, {WSRD}, s{S_T0} offen offset:1024 sc1 lds
        s_mov_b32 s{S_SAFE}, 0
        """)
        if ue: a('s_barrier')
        for k in ue: a(uload(k))
        a(f's_waitcnt vmcnt({len(ue)}) lgkmcnt(0)\ns_barrier\n{back}:')
        def coldr():
            a(f'{redo}:\ns_barrier\ns_mov_b32 s{S_SAFE}, 1\ns_add_u32 s{S_YD}, s{S_XOFF}, 0x8000000')
            if stamps: a(f's_add_u32 s{40+2*8}, s{40+2*8}, 1')
            if cfg.get('wgd'): a('s_add_u32 s84, s84, 1')
            housekeeping()
            poll_m(a, V)
            a(f's_branch {back}')
        a.cold.append(coldr)
    else:
        a(f"""
        buffer_load_dwordx4 v[{t}:{t+3}], v{pa}, {WSRD}, s{S_MOFF} offen sc1
        buffer_load_dwordx4 v[{t+4}:{t+7}], v{pa}, {WSRD}, s{S_MOFF} offen offset:768 sc1
        """)
        if ue: a('s_barrier')
        for k in ue: a(uload(k))
        a(f"""
        s_waitcnt vmcnt({len(ue)+1})
        ds_write_b128 v{pa}, v[{t}:{t+3}]
        v_max3_u32 v{t+8}, v{t}, v{t+1}, v{t+2}
        s_waitcnt vmcnt({len(ue)})
        ds_write_b128 v{pa}, v[{t+4}:{t+7}] offset:768
        v_max3_u32 v{t+8}, v{t+8}, v{t+3}, v{t+4}
        v_max3_u32 v{t+8}, v{t+8}, v{t+5}, v{t+6}
        v_max_u32 v{t+8}, v{t+8}, v{t+7}
        v_cmp_eq_u32 vcc, -1, v{t+8}
        s_cbranch_vccnz {slow}
        s_waitcnt lgkmcnt(0)
        s_barrier
{back}:
        """)
        def coldm():
            a.label(slow)
            if stamps: a(f's_add_u32 s{40+2*8}, s{40+2*8}, 1')
            poll_m(a, V)
            a(f's_branch {back}')
        a.cold.append(coldm)
    lq.drain()
    stamp(a, stamps, 1)
    mrd = [dsop(f"ds_read_b64_tr_b16 v[{mf+4*b+2*hf}:{mf+4*b+2*hf+1}], v{V['l8']} offset:{LDS_M+b*1024+hf*512}", ('mf', b))
           for b in range(7) for hf in range(2)]
    for x in mrd[:cfg['mpre']]: a(x(lq))
    ms = []; last = {}
    rorder = [(u, b) for b in range(7) for u in range(2)] + [(u, b) for u in range(2, 6) for b in range(7)]
    rb = 0
    for p in range(56):
        if p % 4 == 3:
            lam = p // 4; u = 6 + lam // 7; b = lam % 7
            ms.append((SM(V['acc']+4*u, mf+4*b, vr(tw+8*(lam % 4), 8), idx), [('mf', b), ('lw', lam)]))
        else:
            u, b = rorder[rb]; rb += 1
            ms.append((SM(V['acc']+4*u, mf+4*b, wreg(u*7+b, V['w']), idx), [('mf', b)]))
        last[u] = p
    gp = Gaps(56)
    for k, x in enumerate(mrd[cfg['mpre']:]): gp.put('ds', k, x)
    for lam in range(4, 14):
        g = 4*(lam-4) + 3
        g = gp.put('ds', g, lread(lam, 0)) + 1
        gp.put('ds', g, lread(lam, 1))
    g = 0
    for k in ul: g = gp.put('va', g, uload(k)) + cfg['ustep']
    if cfg['flags']:
        g = gp.put('va', g, f"buffer_load_dword v{V['cu']}, v{V['zero']}, {WSRD}, s{S_CU} offen sc1") + 1
    for x in store_vx(S_YD, V['vx']): g = gp.put('va', g, x) + cfg['ustep']
    assert g - cfg['ustep'] < min(last.values()) + 3
    for k in range(len(HT)-1 if cfg['psl'] is None else 0):
        gp.put('ds', 55 - cfg['hpre'] + 4*k, f"buffer_load_dword v{HT[k]}, v{V['ha']}, {WSRD}, s{S_POFF} offen sc1")
    def post(u):
        A = V['acc'] + 4*u; hl = u >> 1; ctl = u & 1
        return ([f'v_pk_add_f32 v[{A}:{A+1}], v[{A}:{A+1}], v[{A+2}:{A+3}]'] if cfg['cpk'] else [f'v_add_f32 v{A}, v{A}, v{A+2}', f'v_add_f32 v{A+1}, v{A+1}, v{A+3}']) + [
                f"v_cvt_pk_bf16_f32 v{V['vx']+4*ctl+hl}, v{A}, v{A+1}"]
    tail = []; gprev = 0
    for u in sorted(last, key=lambda u: last[u]):
        g = max(last[u] + 3, gprev)
        if g + 4 >= 56: tail += post(u); continue
        for x in post(u): g = gp.put('va', g, x) + 1
        gprev = g
        if u == 0: done0 = g
    if cfg['cdma']:
        A0 = V['acc']; N = 168
        g = gp.put('va', done0, f'v_add_f32 v9, v{A0}, v{A0+1}') + 1
        g = gp.put('ds', g, dsop(f"ds_write_b32 v{V['nw']}, v9 offset:{LDS_NAN}", 'nw')) + 4
        gp.force('ds', g, dswait('nw', 's_barrier'))
        g = gp.put('ds', g+1, dsop(f"ds_read2st64_b32 v[{N}:{N+1}], v{V['nr']} offset0:{LDS_NAN//256} offset1:{LDS_NAN//256+1}")) + 1
        g = gp.put('ds', g, dsop(f"ds_read2st64_b32 v[{N+2}:{N+3}], v{V['nr']} offset0:{LDS_NAN//256+2} offset1:{LDS_NAN//256+3}", 'nr')) + 4
        g = gp.put('va', g, dswait('nr', f'v_add_f32 v{N}, v{N}, v{N+2}')) + 1
        g = gp.put('va', g, f'v_add_f32 v{N+1}, v{N+1}, v{N+3}') + 1
        g = gp.put('va', g, f'v_cmp_u_f32 vcc, v{N}, v{N+1}')
        assert g < 54
    emit_stream(a, ms, gp, lq)
    if cfg['cdma']:
        nb = a.newlabel('L_cnb'); nx = a.newlabel('L_cnx')
        a(f's_cbranch_vccnz {nb};nf\n{nx}:;nf')
        a.cold.append(lambda: a(f'{nb}:\ns_nop 7\ns_cmp_eq_u32 s{S_SAFE}, 0\ns_cbranch_scc1 {redo}\ns_branch {nx}'))
    for x in tail: a(x)
    lastl = a.newlabel('L_cbl')
    a(f's_cmp_ge_u32 s{S_STEP}, 63\ns_cbranch_scc1 {lastl}')
    def coldl():
        a.label(lastl)
        for x in store_vx(S_XOFF, V['vx']): a(x)
        a('s_branch L_exit')
    a.cold.append(coldl)
    stamp(a, stamps, 2)
    A = tw
    a(f's_add_u32 s{S_T0}, s{S_POFF}, 8192\ns_mov_b32 s{S_YD}, s{S_XOFF}')
    if stamps and cfg['sdrain']: a('s_waitcnt vmcnt(0)')
    stamp(a, stamps, 3)
    if cfg['psl'] is None:
        jn = a.newlabel('L_jn')
        a(f's_cmp_lg_u32 s{S_WAVE}, 0\ns_cbranch_scc1 {jn}')
        wait_hint(a, V['ha'], S_POFF, HT, delay=cfg['pdelay'], inner=cfg['hinner'], primed=True)
        a(f'{jn}:\ns_barrier')
    else:
        stamp_flush(a, stamps, 11, mf+24)
        if cfg['pw'] is not None:
            tot = cfg['pw'] - (16*cfg['fl'] if stamps else 0)
            for k in range(5): a(f's_nop {max(1, (tot + k) // 5) - 1}')
        else:
            if cfg['psl'] - (cfg['fl'] if stamps else 0) > 0: a(f"s_sleep {cfg['psl'] - (cfg['fl'] if stamps else 0)}")
            if cfg['pdelay']: a(f"s_nop {cfg['pdelay']-1}")
        if cfg['pbar']: a('s_barrier')
    stamp(a, stamps, 6)
    l = a.newlabel('L_pp'); d = a.newlabel('L_ppd'); retry = a.newlabel('L_ppr'); t = 9
    R = tw + 8
    B3 = [vr(uf, 8), vr(uf+8, 8), vr(V['itm'], 8)], [vr(uf+16, 8), vr(uf+24, 8), vr(V['itm']+8, 8)]
    mh = f"""s_mov_b64 exec, 15
        buffer_store_dword v{V['zero']}, v{V['hw']}, {WSRD}, s{S_MOFF} offen {pf}
        s_mov_b64 exec, -1"""
    def issue(p, a=a):
        a(f"""
        buffer_load_dwordx4 v[{p}:{p+3}], v{V['pr']}, {WSRD}, s{S_POFF} offen sc1
        buffer_load_dwordx4 v[{p+4}:{p+7}], v{V['pr']}, {WSRD}, s{S_POFF} offen offset:1024 sc1
        buffer_load_dwordx2 v[{p+8}:{p+9}], v{V['pmr']}, {WSRD}, s{S_T0} offen sc1
        """)
    def zero(a=a):
        for k in range(4): a(f'v_mov_b64 v[{A+2*k}:{A+2*k+1}], 0')
    def attempt(p, behind, hint_here):
        ex = behind
        a(f's_add_u32 s{S_SPIN}, s{S_SPIN}, 1')
        for k in range(3):
            a(f's_waitcnt vmcnt({2-k+ex})')
            S32 = lambda acc, B: f'v_smfmac_f32_16x16x32_bf16 v[{acc}:{acc+3}], v[{p+8}:{p+9}], {B}, v{idx}'
            a(SM(A, p+4*k, B3[0][k], idx) if k < 2 else S32(A, vr(V['vx'], 4)))
            a(f'v_max_u32 v{t}, v{p}, v{p+2}' if k == 0 else f'v_max3_u32 v{t}, v{t}, v{p+4*k}, v{p+4*k+(2 if k < 2 else 1)}')
            a(SM(A+4, p+4*k, B3[1][k], idx) if k < 2 else S32(A+4, vr(V['vx']+4, 4)))
            if hint_here and k == cfg['mhk']:
                if cfg['mhint'] == 3:
                    a(f"""v_cmp_eq_u32 vcc, -1, v{t}
                    s_cmp_eq_u64 vcc, 0
                    s_cselect_b64 exec, 15, 0
                    buffer_store_dword v{V['zero']}, v{V['hw']}, {WSRD}, s{S_MOFF} offen {pf}
                    s_mov_b64 exec, -1""")
                else: a(mh)
                ex += 1
        a(f'v_cmp_eq_u32 vcc, -1, v{t}')
    a(f's_mov_b32 s{S_SPIN}, 0')
    sub = Asm(); issue(mf, sub); ld3 = [x.text for _, x in sub.items]
    sub = Asm(); zero(sub); sub(f"v_add_u32 v{V['fv']}, 1, v{V['fv']}"); housekeeping_acc(sub); fl = [x.text for _, x in sub.items]
    used = 0
    for k in range(3):
        a(ld3[k])
        if k < 2 and cfg['pst']:
            n_ = min(cfg['pst'], len(fl))
            for x in fl[:n_]: a(x)
            fl = fl[n_:]
            if n_ < cfg['pst']: a(f"s_nop {cfg['pst'] - n_ - 1}")
            used += cfg['pst']
    for x in fl: a(x)
    used += len(fl)
    if cfg['p2']:
        gap = cfg['p2'] + 5 - used
        while gap > 0:
            a(f's_nop {min(gap, 16) - 1}'); gap -= 16
        issue(mf+12)
    if cfg['mhint'] == 0:
        for _ in range(cfg['mhnop']): a('s_nop 3')
        a(mh)
    attempt(mf, (3 if cfg['p2'] else 0) + (cfg['mhint'] == 0), cfg['mhint'] >= 2)
    a(f's_cbranch_vccnz {retry};nf\n{d}:;nf')
    def coldp():
        a(f'{retry}:\ns_nop 7')
        if cfg['p2']:
            a.label(l)
            issue(mf)
            zero()
            attempt(mf+12, 3, cfg['mhint'] == 3)
            a(f's_cbranch_vccz {d}')
            issue(mf+12)
            zero()
            attempt(mf, 3, cfg['mhint'] == 3)
        else:
            a.label(l)
            issue(mf)
            zero()
            attempt(mf, 0, cfg['mhint'] == 3)
        a(f"""
        s_cbranch_vccz {d}
        s_cmp_lt_u32 s{S_SPIN}, s{S_LIM}
        s_cbranch_scc1 {l}
        s_mov_b32 s{S_LIM}, 1
        s_branch {d}
        """)
    a.cold.append(coldp)
    stamp(a, stamps, 4)
    if cfg['mhint'] == 1 and not cfg['cert']: a(mh)
    if stamps: a(f's_mov_b32 s{40+2*7}, s{S_SPIN}')
    if cfg.get('wgd'): a(f's_add_u32 s83, s83, s{S_SPIN}')
    if cfg['flags']: a(f"v_readfirstlane_b32 s{S_CV}, v{V['cu']}")
    hiw = a.newlabel('L_cbh'); rag = a.newlabel('L_rag'); rag2 = a.newlabel('L_rag'); nh = nh0; ny = a.newlabel('L_cny')
    def chores():
        if cfg['flags']:
            slow2 = a.newlabel('L_us'); back2 = a.newlabel('L_ub')
            a(f's_cmp_lt_u32 s{S_CV}, 28\ns_cbranch_scc1 {slow2}\n{back2}:')
            def coldu():
                a.label(slow2)
                wait_cnt(a, S_CU, 28, 174)
                a(f's_branch {back2}')
            a.cold.append(coldu)
        step_advance(a, 458752)
        a(pre)
        housekeeping(a, False)
    def hi_tail():
        w2 = a.newlabel('L_cw2')
        ld = lambda r: f"buffer_load_dword v{r}, v{V['hm']}, {WSRD}, s{S_T1} offen sc1"
        a(f"""
{hiw}:
        s_add_u32 s{S_T1}, s{S_MOFF}, 8192
        s_cmp_eq_u32 s{S_WAVE}, 2
        s_cbranch_scc1 {w2}
        {ld(HT[0])}
        s_waitcnt lgkmcnt(0)
        {ld(HT[1])}
        {'s_nop 8' if cfg['reds'] else 's_barrier'}
        {ld(HT[2])}
        """)
        stamp(a, stamps, 5)
        chores()
        wait_hint(a, V['hm'], S_MOFF, HT, delay=cfg['cdelay'], inner=cfg['hinner'], primed=True)
        a(f's_branch {nh}\n{w2}:\n' + ('s_waitcnt lgkmcnt(0)' if cfg['reds'] else 's_waitcnt lgkmcnt(0)\ns_barrier'))
        if cfg['cq']: a(f"s_sleep {cfg['cq']}")
        stamp(a, stamps, 5)
        chores()
        a(f's_branch {nh}')
    a.cold.append(hi_tail)
    a(f"""
    v_pk_add_f32 v[{R}:{R+1}], v[{A}:{A+1}], v[{A+2}:{A+3}]
    ds_write_b64 v{V['rw2']}, v[{R}:{R+1}] offset:{LDS_RED}
    v_pk_add_f32 v[{R+2}:{R+3}], v[{A+4}:{A+5}], v[{A+6}:{A+7}]
    ds_write_b64 v{V['rw2']}, v[{R+2}:{R+3}] offset:{LDS_RED+768}
    {f"ds_write_b32 v{V['fw']}, v{V['fv']}" if cfg['reds'] else ''}
    s_cmp_ge_u32 s{S_WAVE}, 2
    {'' if cfg['reds'] else f's_cbranch_scc1 {hiw}'}
    {'' if cfg['reds'] else 's_waitcnt lgkmcnt(0)'}
    s_barrier
    {'s_nop %d' % (cfg['reds']-2) if cfg['reds'] > 1 else ''}
{rag}:
    {f"ds_read_b128 v[{R+8}:{R+11}], v{V['l16']} offset:{LDS_CF}" if cfg['reds'] else ''}
    ds_read_b64 v[{R}:{R+1}], v{V['rr']} offset:{LDS_RED}
    ds_read_b64 v[{R+2}:{R+3}], v{V['rr']} offset:{LDS_RED+1536}
    ds_read_b64 v[{R+4}:{R+5}], v{V['rr']} offset:{LDS_RED+3072}
    ds_read_b64 v[{R+6}:{R+7}], v{V['rr']} offset:{LDS_RED+4608}
    """)
    if cfg['reds']:
        a(f"""
        s_cbranch_scc1 {hiw}
        s_waitcnt lgkmcnt(4)
        v_min3_u32 v{R+8}, v{R+8}, v{R+9}, v{R+10}
        v_min_u32 v{R+8}, v{R+8}, v{R+11}
        v_cmp_ne_u32 vcc, v{R+8}, v{V['fv']}
        """)
    a(f"""
    s_waitcnt lgkmcnt(2)
    v_pk_add_f32 v[{R}:{R+1}], v[{R}:{R+1}], v[{R+2}:{R+3}]
    s_waitcnt lgkmcnt(0)
    v_pk_add_f32 v[{R+4}:{R+5}], v[{R+4}:{R+5}], v[{R+6}:{R+7}]
    {'s_cmp_eq_u64 vcc, 0' if cfg['reds'] else ''}
    v_pk_add_f32 v[{R}:{R+1}], v[{R}:{R+1}], v[{R+4}:{R+5}]
    v_cvt_pk_bf16_f32 v9, v{R}, v{R+1}
    {'s_cselect_b64 exec, -1, 0' if cfg['reds'] else ''}
    buffer_store_dword v9, v{V['mw']}, {WSRD}, s{S_MOFF} offen {pf}
    """)
    if cfg['reds']:
        a(f"s_mov_b64 exec, -1\ns_cbranch_scc0 {rag2}")
        a.cold.append(lambda: a(f"{rag2}:\n" + ('s_add_u32 s85, s85, 1\n' if cfg.get('wgd') else '') + f's_cmp_eq_u32 s{S_WAVE}, 9\ns_branch {rag}'))
    if cfg['cert']: a(mh)
    stamp(a, stamps, 5)
    a(f"""
    s_cmp_lt_u32 s{S_STEP}, 62
    s_cbranch_scc1 {ny}
    s_add_u32 s{S_T0}, s{S_MOFF}, {L.MB_Y - L.MB_M}
    buffer_store_dword v9, v{V['mw']}, {WSRD}, s{S_T0} offen sc1
{ny}:
    """)
    chores()
    a(f's_branch {nh}')
    while a.cold: a.flush_cold()

def helper_cu(a, cfg):
    V = dict(l8=0, pa=1, idx=2, mf=12); LN = 112
    NP = cfg['npf']; D = cfg['pfd']; PER = cfg['pfper']
    a(f'v_mov_b32 v{LN}, v1')
    team_register(a)
    common_addrs(a, V, LN)
    a(f"""
    v_lshlrev_b32 v4, 7, v{LN}
    v_mov_b32 v3, v4
    v_mov_b32 v5, 0
    v_mov_b32 v6, 14
    s_sub_u32 s{S_ROLE}, s{S_ROLE}, 30
    s_lshl_b32 s{S_EOFF}, s{S_ROLE}, 2
    s_add_u32 s{S_EOFF}, s{S_EOFF}, s{S_WAVE}
    s_mov_b32 s{S_STEP}, 0
    s_mov_b32 s{S_MOFF}, {L.MB_M + 8192}
    s_mov_b32 s{S_CV}, {L.DUMMY + 0x200000}
    s_mul_i32 s{S_GOFF}, s{S_EOFF}, 7168
    s_add_u32 s{S_GOFF}, s{S_GOFF}, {L.XN}
    s_mov_b32 s{S_POFF}, 28672
    s_cmp_lt_u32 s{S_EOFF}, 4
    s_cbranch_scc1 H_t
    s_sub_u32 s{S_GOFF}, s{S_EOFF}, 4
    s_mul_i32 s{S_GOFF}, s{S_GOFF}, 6144
    s_add_u32 s{S_GOFF}, s{S_GOFF}, {L.MB_P}
    s_mov_b32 s{S_POFF}, 16384
    s_cmp_lt_u32 s{S_EOFF}, 6
    s_cbranch_scc1 H_t
    s_mov_b32 s{S_GOFF}, {L.MB_M + 8192}
    s_mov_b32 s{S_POFF}, 8192
    s_cmp_lt_u32 s{S_EOFF}, {7 if cfg['tlb'] else 8}
    s_cbranch_scc1 H_t
    s_mov_b32 s{S_GOFF}, {L.U + cfg['tlb']*458752}
    s_mov_b32 s{S_POFF}, 458752
    v_mul_u32_u24 v3, 7168, v{LN}
H_t:
    """)
    def mtouch():
        a(f'buffer_load_dword v7, v3, {WSRD}, s{S_GOFF} offen sc1\ns_add_u32 s{S_GOFF}, s{S_GOFF}, s{S_POFF}')
    if cfg['fused']: wait_ln(a, LN, 100)
    team_mode(a, V['mf'], V['mf']+1)
    a(f's_mov_b32 s{S_LIM}, {SPIN_MAX*4}')
    a(f"""
    s_getpc_b64 s[70:71]
H_pc:
    s_lshl_b32 s{S_T0}, s{S_EOFF}, 12
    v_lshrrev_b32 v10, 1, v4
    s_add_u32 s70, s70, s{S_T0}
    s_addc_u32 s71, s71, 0
    s_add_u32 s70, s70, L_nothelp-H_pc
    s_addc_u32 s71, s71, 0
    s_mov_b32 s72, s{S_GOFF}
    s_mov_b32 s{S_SPIN}, 0
    s_mov_b32 s73, {L.MB_P}
H_warm:
    s_mov_b32 s{S_GOFF}, s72
    global_load_dword v8, v10, s[70:71] sc1
    """)
    for _ in range(D+1): mtouch()
    a(f"""
    buffer_load_dword v9, v5, {WSRD}, s73 offen sc1
    s_add_u32 s{S_SPIN}, s{S_SPIN}, 1
    s_waitcnt vmcnt(0)
    v_cmp_eq_u32 vcc, -1, v9
    s_cbranch_vccz H_warmed
    s_sleep 8
    s_cmp_lt_u32 s{S_SPIN}, s{S_LIM}
    s_cbranch_scc1 H_warm
H_warmed:
    """)
    mul = {2: (128, 8), 3: (86, 8)}[PER]
    for k in range(NP):
        a(f"""
        s_add_u32 s{S_T0}, s{S_EOFF}, {8*k}
        s_min_u32 s{S_T0}, s{S_T0}, {14*PER-1}
        s_mul_i32 s{S_T1}, s{S_T0}, {mul[0]}
        s_lshr_b32 s{S_T1}, s{S_T1}, {mul[1]}
        s_mul_i32 s{S_T1}, s{S_T1}, {4-PER}
        s_add_u32 s{S_T0}, s{S_T0}, s{S_T1}
        s_lshl_b32 s{60+k}, s{S_T0}, 13
        s_add_u32 s{60+k}, s{60+k}, {L.U}
        """)
    def utouch():
        for k in range(NP):
            a(f'buffer_load_dword v{32+k}, v4, {WSRD}, s{60+k} offen sc1\ns_add_u32 s{60+k}, s{60+k}, 458752')
    a(f's_mov_b32 s{S_CU}, {L.CNT_U}')
    for _ in range(D if NP else 0):
        if cfg['flags']: wait_cnt(a, S_CU, 28, 30)
        utouch()
        a(f's_add_u32 s{S_CU}, s{S_CU}, 128')
    t = V['mf']; pa = V['pa']
    sk = a.newlabel('H_sk'); sk2 = a.newlabel('H_sk'); ok = a.newlabel('H_ok')
    a(f"""
H_top:
    s_mov_b32 s{S_SPIN}, 0
H_poll:
    buffer_load_dwordx4 v[{t}:{t+3}], v{pa}, {WSRD}, s{S_MOFF} offen sc1
    buffer_load_dwordx4 v[{t+4}:{t+7}], v{pa}, {WSRD}, s{S_MOFF} offen offset:768 sc1
    buffer_load_dword v30, v5, {WSRD}, s{S_CU} offen sc1
    s_add_u32 s{S_SPIN}, s{S_SPIN}, 1
    s_waitcnt vmcnt(0)
    v_max3_u32 v{t+8}, v{t}, v{t+1}, v{t+2}
    v_max3_u32 v{t+8}, v{t+8}, v{t+3}, v{t+4}
    v_max3_u32 v{t+8}, v{t+8}, v{t+5}, v{t+6}
    v_max_u32 v{t+8}, v{t+8}, v{t+7}
    v_readfirstlane_b32 s{S_T0}, v30
    v_cmp_eq_u32 vcc, -1, v{t+8}
    s_cbranch_vccz {ok}
    s_sleep {cfg['hsleep']}
    s_cmp_lt_u32 s{S_SPIN}, s{S_LIM}
    s_cbranch_scc1 H_poll
    s_mov_b32 s{S_LIM}, 1
{ok}:
    s_cmp_lg_u32 s{S_ROLE}, 0
    s_cbranch_scc1 {sk}
    s_add_u32 s{S_T1}, s{S_MOFF}, {L.MB_Y - L.MB_M}
    buffer_store_dwordx4 v[{t}:{t+3}], v{pa}, {WSRD}, s{S_T1} offen sc1
    buffer_store_dwordx4 v[{t+4}:{t+7}], v{pa}, {WSRD}, s{S_T1} offen offset:768 sc1
{sk}:
    s_cmp_ge_u32 s{S_STEP}, {63 - D}
    s_cbranch_scc1 {sk2}
    """)
    mtouch()
    if NP:
        sk3 = a.newlabel('H_sk'); sk4 = a.newlabel('H_sk')
        if cfg['flags']: a(f's_cmp_lt_u32 s{S_T0}, 28\ns_cbranch_scc1 {sk3}')
        utouch()
        a(f's_branch {sk4}\n{sk3}:')
        for k in range(NP): a(f's_add_u32 s{60+k}, s{60+k}, 458752')
        a(f'{sk4}:\ns_add_u32 s{S_CU}, s{S_CU}, 128')
    a(f"""
{sk2}:
    s_add_u32 s{S_STEP}, s{S_STEP}, 1
    s_add_u32 s{S_MOFF}, s{S_MOFF}, 8192
    s_cmp_lt_u32 s{S_STEP}, 62
    s_cbranch_scc1 H_top
    s_branch L_exit
    """)

DEFAULT_CFG = dict(ba=[35, 35, 34, 34], bak=3, bb=[53, 53, 0, 0], xflags='', ssleep=[2, 2, 2, 0], csleep=0, psleep=0, touch=1,
                   nou=0, nox=0, cflush=1, flags=0, ustep=3, hsleep=2, mdelay=6, pdelay=1, phint=9, lead=[4, 1], pnop=[0, 8], b5nop=2, npf=0, pfper=2, hdepth=4, hpre=10, psl=3, fl=1, mhk=0, px=9, quiet=7, cq=1, al=[0, 0, 0, 3, 1], prio=[0, 0, 0, 0], wfl='', fused=0, cpk=0, mlin=1, pst=0, cert=0, b3s=0, reds=0, pw=56, fin1=0, tlb=0, xin=0, xstep=3, xs=2, xw=[(0, 9), (9, 18), (18, 28), (0, 0)], pbar=1, scap=None, ccap=None, m2=0, mdma=1, m2d=0, msamp=0, cdma=1, m2w=10, p2=32, cutrig=1, hinner=2, uearly=4, mhint=1, mhnop=0, sdrain=0, pfd=3, mpre=6, chint=1, cdelay=18)

def team_body(a, stamps=False, cfg=None):
    cfg = dict(DEFAULT_CFG, **(cfg or {}))
    a(f's_cmp_lt_u32 s{S_ROLE}, 30\ns_cbranch_scc1 L_nothelp')
    helper_cu(a, cfg)
    a.label('L_nothelp')
    a(f's_cmp_ge_u32 s{S_ROLE}, 16\ns_cbranch_scc1 L_comb')
    score_setup(a, stamps, cfg)
    for fast in (1, 0):
        a(f's_cmp_lg_u32 s{S_FAST}, {fast}\ns_cbranch_scc1 L_sc_next{fast}')
        for w in range(4):
            if w < 3:
                a(f's_cmp_lg_u32 s{S_WAVE}, {w}\ns_cbranch_scc1 L_sc{fast}_n{w}')
            score_wave(a, w, '' if fast else 'sc1', stamps, cfg)
            if w < 3: a.label(f'L_sc{fast}_n{w}')
        a.label(f'L_sc_next{fast}')
    a('s_branch L_exit')
    a.label('L_comb')
    comb_setup(a, stamps, cfg)
    for fast in (1, 0):
        a(f's_cmp_lg_u32 s{S_FAST}, {fast}\ns_cbranch_scc1 L_cb_next{fast}')
        comb_wave(a, '' if fast else 'sc1', stamps, cfg)
        a.label(f'L_cb_next{fast}')
    a('s_branch L_exit')
```

```python
from build import *
import team, prep, gemm, attn, ffn
HEADER = open('sequential_preLN__memory_aug_recurrent_mem_tr__dense_activation_relu__prompt.s.ref').read().split('; Override launch')[0]
DOC = """;
"""
HEADER += DOC
def relabel(fn, tag):
    def g(a):
        fn(a)
        import re
        for i, (k, x) in enumerate(a.items):
            if k == 'l' and x.startswith(('L_exit', 'L_role')): a.items[i] = ('l', x + tag)
            elif k == 'i' and ('L_exit' in x.text or 'L_role' in x.text):
                x.text = re.sub(r'(L_exit|L_role\w+)', lambda m: m.group(1) + tag, x.text)
    return g
EV = '''s_cmp_ge_u32 s92, 30
s_cbranch_scc1 L_exit2
            v_mov_b32 v10, s86
            v_mov_b32 v11, s85
            v_mov_b32 v12, s84
            v_mov_b32 v13, s83
            buffer_atomic_add v10, v0, s[12:15], 0 offen offset:180
            buffer_atomic_add v11, v0, s[12:15], 0 offen offset:184
            buffer_atomic_add v12, v0, s[12:15], 0 offen offset:188
            buffer_atomic_add v13, v0, s[12:15], 0 offen offset:192
'''
PAD = """v_readfirstlane_b32 s90, v{r}
s_mov_b32 s91, 0
L_pad:
s_memrealtime s[94:95]
s_add_u32 s91, s91, 1
s_waitcnt lgkmcnt(0)
s_sub_u32 s94, s94, s90
s_cmp_ge_u32 s94, {t}
s_cbranch_scc1 L_exit2
s_cmp_lt_u32 s91, 100000
s_cbranch_scc1 L_pad"""
def v2(tcfg=None, stamps=False, acfg=None):
    tcfg = dict(tcfg or {}); al8 = tcfg.pop('al8', None)
    t = v2raw(tcfg, stamps, acfg)
    if al8 is not None:
        import align8
        t, st = align8.align(t, al8)
    return t
def v2raw(tcfg=None, stamps=False, acfg=None):
    tcfg = dict(tcfg or {}); ng = tcfg.pop('ng', 1); pcfg = tcfg.pop('pcfg', {}); fused = tcfg.pop('one', 0); tcfg_ev = tcfg.pop('ev', 0); scat = tcfg.pop('scatter', 0); pad = tcfg.pop('pad', 0); mcode = tcfg.pop('mcode', 1); guess = tcfg.pop('guess', 0); gcfg = tcfg.pop('gcfg', {}); fz = dict(wfl='sc1') if fused else {}; fsl = tcfg.pop('fsl', 8); fcfg = tcfg.pop('fcfg', {}); acfg = dict(acfg or {}, **tcfg.pop('acfg', {}))
    def km(a):
        if stamps: a('s_memrealtime s[90:91]')
        if fused:
            prep.prep_kernel(a, t0=bool(stamps), fused=True, **pcfg)
            team.prologue_fused(a)
            team.wait_ln(a, 1, 12, fsl)
        else:
            team.prologue(a, stamps, scatter=scat, code=mcode, guess=guess)
        R = team.S_ROLE
        if stamps: a(f's_mov_b32 s92, s{R}\ns_memrealtime s[94:95]\ns_mov_b64 s[96:97], 0\ns_mov_b64 s[88:89], 0\ns_mov_b64 s[84:85], 0\ns_mov_b32 s86, 0\ns_mov_b32 s83, 0')
        a(f"""
        s_cmp_ge_u32 s{R}, 32
        s_cbranch_scc1 M_worker
        """)
        team.team_body(a, stamps is True, dict(dict(xflags='sc1', flags=1, wgd=bool(stamps), **fz), **(tcfg or {})))
        a(f"""
M_worker:
        """)
        a(f"""
        s_lshr_b32 s26, s{R}, 5
        s_sub_u32 s26, s26, 1
        s_mov_b32 s78, s26
        s_and_b32 s27, s{R}, 31
        s_cmp_ge_u32 s27, 30
        s_cbranch_scc1 M_attn
        s_cmp_ge_u32 s27, 16
        s_cbranch_scc1 M_ffn
        s_cmp_ge_u32 s27, {8*ng}
        s_cbranch_scc1 M_attn
        s_mul_i32 s{R}, s26, {8*ng}
        s_add_u32 s{R}, s{R}, s27
        """)
        gemm.gemm_role(a, dict(dict(xflags='sc1', ng=ng, **fz), **gcfg))
        if stamps: a('s_memrealtime s[96:97]')
        a.label('M_attn')
        attn.attn_role(a, dict(dict(xflags='sc1', flags=1, asleep=16, ticket=1, diag=bool(stamps), **fz), **(acfg or {})))
        a(f"""
M_ffn:
        s_mov_b32 s{ffn.F_Q}, s26
        s_sub_u32 s{ffn.F_J}, s27, 16
        """)
        ffn.ffn_role(a, dict(dict(xflags='sc1', flags=1, diag=bool(stamps)), **fcfg), 7)
        a.label('L_exit')
        if stamps:
            a(f"""
            s_memrealtime s[98:99]
            s_lshl_b32 s93, s92, 5
            s_add_u32 s93, s93, {L.STAMP + 0x80000}
            s_mov_b64 exec, 1
            s_waitcnt lgkmcnt(0)
            v_mov_b32 v0, 0
            v_mov_b32 v4, s90
            v_mov_b32 v5, s94
            v_mov_b32 v6, s96
            v_mov_b32 v7, s98
            buffer_store_dwordx4 v[4:7], v0, s[8:11], s93 offen
            s_getreg_b32 s87, hwreg(HW_REG_HW_ID)
            v_mov_b32 v9, s87
            buffer_store_dword v9, v0, s[8:11], s93 offen offset:16
            buffer_atomic_umax v7, v0, s[12:15], 0 offen offset:172
            {EV if tcfg_ev else ''}
            s_cmp_lg_u32 s92, 0
            s_cbranch_scc1 L_exit2
            s_mov_b32 s93, {L.STAMP + 0xf0000}
            buffer_load_dword v8, v0, s[8:11], s93 offen sc1
            v_mov_b32 v5, s88
            buffer_store_dword v4, v0, s[12:15], 0 offen offset:160
            buffer_store_dword v5, v0, s[12:15], 0 offen offset:164
            buffer_store_dword v7, v0, s[12:15], 0 offen offset:168
            s_waitcnt vmcnt(0)
            buffer_store_dword v8, v0, s[12:15], 0 offen offset:176
            {PAD.format(t=pad[0], r=pad[1]) if pad else ''}
L_exit2:
            """)
        a.label('L_end')
        a('s_endpgm')
    if fused: return assemble([('main_kernel', km, 256, 256, 163840)], HEADER)
    return assemble([('prep_kernel', lambda a: prep.prep_kernel(a, t0=bool(stamps), **pcfg), 256, 256, 163840), ('main_kernel', km, 256, 256, 163840)], HEADER)
if __name__ == '__main__':
    args = [eval(x) for x in sys.argv[3:]]
    open(sys.argv[2], 'w').write(globals()[sys.argv[1]](*args))
```

```python
from asmlib import *
import layout as L

SENT = -1
S_WS = 8
S_DBG = 12
S_ROLE = 16
S_WAVE = 17
S_XCC = 18
S_STEP = 19
S_FAST = 20
S_MOFF = 21; S_POFF = 22; S_EOFF = 23; S_GOFF = 24; S_XOFF = 25; S_T0 = 26; S_T1 = 27; S_SPIN = 28; S_LIM = 29
S_EXEC = 30
S_STMP = 32
S_TM = 34
SPIN_MAX = 20000
NTEAM = 32

LDS_M = 0
LDS_T = 7168
LDS_FL = 14336
LDS_VD = 18432
LDS_X = 20480
LDS_CF = 14336
LDS_NAN = 13312
LDS_RED = 7168
LDS_BW = 16384
LDS_ROLE = 160*1024 - 16

def prologue(a, stamps, pool_off=0, scatter=False, code=1, guess=0):
    if code:
        a('s_getpc_b64 s[40:41]\nM_pc:\nv_lshlrev_b32 v12, 7, v0\nglobal_load_dword v255, v12, s[40:41]')
        a('v_add_u32 v12, 32768, v12\nv_min_u32 v11, L_end-M_pc, v12\nglobal_load_dword v255, v11, s[40:41]')
    a(f'''
    s_cmp_ge_u32 s2, 256
    s_cbranch_scc1 L_end
    s_load_dwordx2 s[4:5], s[0:1], 96
    s_load_dwordx2 s[6:7], s[0:1], 88
    s_getreg_b32 s{S_XCC}, hwreg(HW_REG_XCC_ID, 0, 4)
    v_lshrrev_b32 v2, 6, v0
    v_and_b32 v1, 63, v0
    v_readfirstlane_b32 s{S_WAVE}, v2
    s_and_b32 s{S_XCC}, s{S_XCC}, 7
    s_waitcnt lgkmcnt(0)
    s_mov_b32 s{S_WS}, s4
    s_and_b32 s{S_WS+1}, s5, 0xffff
    s_mov_b32 s{S_WS+2}, {L.WS_BYTES}
    s_mov_b32 s{S_WS+3}, 0x20000
    s_mov_b32 s{S_DBG}, s6
    s_and_b32 s{S_DBG+1}, s7, 0xffff
    s_mov_b32 s{S_DBG+2}, 256
    s_mov_b32 s{S_DBG+3}, 0x20000
    v_mov_b32 v4, {LDS_ROLE}
    ''')
    if guess:
        a(f'''
        s_cmp_lg_u32 s{S_XCC}, 0
        s_cbranch_scc1 L_ng
        s_lshr_b32 s{S_T0}, s2, 3
        s_cmp_ge_u32 s{S_T0}, 30
        s_cbranch_scc1 L_ng
        s_mul_i32 s{S_T1}, s{S_T0}, 28
        s_add_u32 s{S_T1}, s{S_T1}, s{S_WAVE}
        s_mov_b32 s{S_STEP}, {4*14336}
        s_cmp_lt_u32 s{S_T0}, 16
        s_cbranch_scc1 L_gs
        s_lshl_b32 s{S_T1}, s{S_T0}, 1
        s_mul_i32 s{S_T0}, s{S_WAVE}, 112
        s_add_u32 s{S_T1}, s{S_T1}, s{S_T0}
        s_add_u32 s{S_T1}, s{S_T1}, {448 - 32 + 84}
        s_mov_b32 s{S_STEP}, 14336
L_gs:
        s_mul_i32 s{S_T1}, s{S_T1}, 14336
        s_add_u32 s{S_T1}, s{S_T1}, {L.WT}
        v_min_u32 v5, 55, v1
        v_lshlrev_b32 v5, 7, v5
        ''')
        for k in range(guess):
            a(f's_add_u32 s{S_T0}, s{S_T1}, 7168')
            a(f'buffer_load_dword v255, v5, s[{S_WS}:{S_WS+3}], s{S_T1} offen\nbuffer_load_dword v255, v5, s[{S_WS}:{S_WS+3}], s{S_T0} offen')
            a(f's_add_u32 s{S_T1}, s{S_T1}, s{S_STEP}')
        a.label('L_ng')
    a(f'''
    s_cmp_lg_u32 s{S_WAVE}, 0
    s_cbranch_scc1 L_role_wait
    s_mov_b64 exec, 1
    s_mov_b32 s{S_T0}, 0
L_role_try:
    {f's_lshr_b32 s{S_T1}, s2, 5' if scatter else f's_mov_b32 s{S_T1}, s{S_XCC}'}
    s_add_u32 s{S_T1}, s{S_T1}, s{S_T0}
    s_and_b32 s{S_T1}, s{S_T1}, 7
    s_lshl_b32 s{S_ROLE}, s{S_T1}, 7
    s_add_u32 s{S_ROLE}, s{S_ROLE}, {L.CNT_P + pool_off}
    v_mov_b32 v2, s{S_ROLE}
    v_mov_b32 v3, 1
    buffer_atomic_add v3, v2, s[{S_WS}:{S_WS+3}], 0 offen sc0
    s_waitcnt vmcnt(0)
    v_readfirstlane_b32 s{S_ROLE}, v3
    s_cmp_lt_u32 s{S_ROLE}, 32
    s_cbranch_scc1 L_role_got
    s_add_u32 s{S_T0}, s{S_T0}, 1
    s_cmp_lt_u32 s{S_T0}, 8
    s_cbranch_scc1 L_role_try
    s_mov_b32 s{S_ROLE}, 31
    s_mov_b32 s{S_T1}, 0
L_role_got:
    s_lshl_b32 s{S_T1}, s{S_T1}, 5
    s_add_u32 s{S_ROLE}, s{S_ROLE}, s{S_T1}
    v_mov_b32 v2, s{S_ROLE}
    ds_write_b32 v4, v2
    s_mov_b64 exec, -1
    s_waitcnt lgkmcnt(0)
L_role_wait:
    s_barrier
    ds_read_b32 v2, v4
    s_waitcnt lgkmcnt(0)
    v_readfirstlane_b32 s{S_ROLE}, v2
    ''')

FSL = [8, 32]
def wait_flags(a, vaddr, need, t, n=1):
    l = a.newlabel('L_wf'); d = a.newlabel('L_wfd')
    regs = [t] + [t+4+2*k for k in range(n-1)]
    a(f"""
    s_mov_b32 s{S_SPIN}, 0
    s_mov_b32 s{S_EXEC}, {L.FL}
    s_add_u32 s{S_EXEC+1}, s80, {need}
{l}:
    """)
    for k, r in enumerate(regs):
        a(f'buffer_load_dwordx2 v[{r}:{r+1}], v{vaddr}, s[{S_WS}:{S_WS+3}], s{S_EXEC} offen offset:{k*512} sc1')
    a(f's_add_u32 s{S_SPIN}, s{S_SPIN}, 1\ns_waitcnt vmcnt(0)')
    for k, r in enumerate(regs):
        a(f"""
        v_subrev_u32 v{r}, s{S_EXEC+1}, v{r}
        v_xor_b32 v{r+1}, s81, v{r+1}
        v_lshl_or_b32 v{t+2}, v{r+1}, 3, v{r+1}
        v_or_b32 v{r}, v{r}, v{t+2}
        """)
        if k: a(f'v_max_u32 v{t}, v{t}, v{r}')
    a(f"""
    v_cmp_lt_u32 vcc, {7 - need}, v{t}
    s_cbranch_vccz {d}
    s_sleep {FSL[n > 1]}
    s_cmp_lt_u32 s{S_SPIN}, {SPIN_MAX*4}
    s_cbranch_scc1 {l}
{d}:
    """)

def prologue_fused(a):
    a(f"""
    s_getreg_b32 s{S_XCC}, hwreg(HW_REG_XCC_ID, 0, 4)
    s_mov_b32 s{S_WAVE}, s20
    s_and_b32 s{S_XCC}, s{S_XCC}, 7
    s_mov_b32 s{S_DBG}, s56
    s_mov_b32 s{S_DBG+1}, s57
    s_mov_b32 s{S_DBG+2}, 256
    s_mov_b32 s{S_DBG+3}, 0x20000
    v_mov_b32 v4, {LDS_ROLE}
    s_cmp_lg_u32 s{S_WAVE}, 0
    s_barrier
    s_cbranch_scc1 L_role_wait
    s_mov_b64 exec, 1
    s_mov_b32 s{S_T0}, 0
    s_mov_b32 s{S_T1}, s{S_XCC}
    v_mov_b32 v3, v250
    s_branch L_role_see
L_role_try:
    s_add_u32 s{S_T1}, s{S_XCC}, s{S_T0}
    s_and_b32 s{S_T1}, s{S_T1}, 7
    s_lshl_b32 s{S_ROLE}, s{S_T1}, 2
    v_mov_b32 v2, s{S_ROLE}
    v_mov_b32 v3, 1
    buffer_atomic_add v3, v2, s[{S_DBG}:{S_DBG+3}], 0 offen sc0
    s_waitcnt vmcnt(0)
L_role_see:
    v_readfirstlane_b32 s{S_ROLE}, v3
    s_cmp_lt_u32 s{S_ROLE}, 32
    s_cbranch_scc1 L_role_got
    s_add_u32 s{S_T0}, s{S_T0}, 1
    s_cmp_lt_u32 s{S_T0}, 8
    s_cbranch_scc1 L_role_try
    s_mov_b32 s{S_ROLE}, 31
    s_mov_b32 s{S_T1}, 0
L_role_got:
    s_lshl_b32 s{S_T1}, s{S_T1}, 5
    s_add_u32 s{S_ROLE}, s{S_ROLE}, s{S_T1}
    v_mov_b32 v2, s{S_ROLE}
    ds_write_b32 v4, v2
    s_mov_b64 exec, -1
    s_waitcnt lgkmcnt(0)
L_role_wait:
    s_barrier
    ds_read_b32 v2, v4
    s_waitcnt lgkmcnt(0)
    v_readfirstlane_b32 s{S_ROLE}, v2
    """)

def wait_ln(a, lane, t, sleep=8):
    l = a.newlabel('L_wa'); d = a.newlabel('L_wad')
    a(f"""
    s_lshl_b32 s{S_T0}, s{S_WAVE}, 13
    s_add_u32 s{S_T0}, s{S_T0}, {L.FL}
    s_add_u32 s{S_T1}, s80, 7
    v_lshlrev_b32 v{t+8}, 7, v{lane}
    s_mov_b32 s{S_SPIN}, 0
{l}:
    buffer_load_dwordx4 v[{t}:{t+3}], v{t+8}, s[{S_WS}:{S_WS+3}], s{S_T0} offen sc1
    buffer_load_dwordx4 v[{t+4}:{t+7}], v{t+8}, s[{S_WS}:{S_WS+3}], s{S_T0} offen offset:16 sc1
    s_add_u32 s{S_SPIN}, s{S_SPIN}, 1
    s_waitcnt vmcnt(0)
    """)
    for k in range(4):
        a(f'v_xor_b32 v{t+2*k}, s{S_T1}, v{t+2*k}\nv_xor_b32 v{t+2*k+1}, s81, v{t+2*k+1}')
    a(f"""
    v_or3_b32 v{t}, v{t}, v{t+1}, v{t+2}
    v_or3_b32 v{t+3}, v{t+3}, v{t+4}, v{t+5}
    v_or3_b32 v{t}, v{t}, v{t+6}, v{t+7}
    v_or_b32 v{t}, v{t}, v{t+3}
    v_cmp_ne_u32 vcc, 0, v{t}
    s_cbranch_vccz {d}
    s_sleep {sleep}
    s_cmp_lt_u32 s{S_SPIN}, {SPIN_MAX*4}
    s_cbranch_scc1 {l}
{d}:
    s_barrier
    """)

STAGE1 = (0, 4, 8, 11)
def load_tiles(a, tiles, vaddr, sbase, stage, flags, bud, cap=None):
    for off, dsts in tiles:
        cur = None
        for k in range(14):
            if stage is not None and (k in STAGE1) != (stage == 1): continue
            if cur != k // 4:
                cur = k // 4
                a(f's_add_u32 s{S_T0}, s{sbase}, {off + cur*4096}')
            a(f'buffer_load_dwordx4 {dsts[k]}, v{vaddr}, s[{S_WS}:{S_WS+3}], s{S_T0} offen offset:{(k%4)*1024} {flags}')
            bud[0] += 1
            if cap is not None:
                if bud[0] > cap: a(f's_waitcnt vmcnt({cap})')
            elif bud[0] >= 56:
                a('s_waitcnt vmcnt(28)'); bud[0] = 28

def team_register(a):
    l = a.newlabel('L_reg')
    a(f'''
    s_cmp_lg_u32 s{S_WAVE}, 0
    s_cbranch_scc1 {l}
    s_cmp_eq_u32 s{S_XCC}, 0
    s_cselect_b32 s{S_T0}, 1, 0x10001
    s_mov_b64 exec, 1
    v_mov_b32 v2, 64
    v_mov_b32 v3, s{S_T0}
    buffer_atomic_add v3, v2, s[{S_DBG}:{S_DBG+3}], 0 offen
    s_mov_b64 exec, -1
{l}:
    ''')

def team_mode_load(vt0, vt1):
    return f'v_mov_b32 v{vt0}, 64\nbuffer_load_dword v{vt1}, v{vt0}, s[{S_DBG}:{S_DBG+3}], 0 offen sc1'

def team_mode(a, vt0, vt1, primed=False):
    l = a.newlabel('L_mode'); d = a.newlabel('L_moded'); p = a.newlabel('L_modep')
    a(f'''
    s_mov_b32 s{S_SPIN}, 0
    {f's_branch {p}' if primed else ''}
{l}:
    {team_mode_load(vt0, vt1)}
{p}:
    s_waitcnt vmcnt(0)
    v_readfirstlane_b32 s{S_T0}, v{vt1}
    s_and_b32 s{S_T1}, s{S_T0}, 0xffff
    s_cmp_ge_u32 s{S_T1}, {NTEAM}
    s_cbranch_scc1 {d}
    s_sleep 2
    s_add_u32 s{S_SPIN}, s{S_SPIN}, 1
    s_cmp_lt_u32 s{S_SPIN}, {SPIN_MAX}
    s_cbranch_scc1 {l}
    s_mov_b32 s{S_T0}, 0x10000
{d}:
    s_lshr_b32 s{S_T0}, s{S_T0}, 16
    s_cmp_eq_u32 s{S_T0}, 0
    s_cselect_b32 s{S_FAST}, 1, 0
    s_mov_b32 s{S_LIM}, {SPIN_MAX}
    ''')

def stamp(a, stamps, idx, vt=None):
    if not stamps: return
    a(f's_memtime s[{40+2*idx}:{41+2*idx}]')
    if idx == 2: a('s_memrealtime s[60:61]')

def stamp_flush(a, stamps, n, vt):
    if not stamps: return
    a('s_waitcnt lgkmcnt(0)')
    for k in range(n):
        a(f'v_writelane_b32 v{vt}, s{40+2*k}, {k}')
    a(f"""
    v_lshrrev_b32 v{vt+1}, 1, v0
    s_mov_b64 exec, {(1 << n) - 1}
    buffer_store_dword v{vt}, v{vt+1}, s[{S_WS}:{S_WS+3}], s{S_STMP} offen
    s_mov_b64 exec, -1
    """)

def wreg(wb, vbase):
    return ar(8*wb, 8) if wb < 32 else vr(vbase + 8*(wb-32), 8)
def wreg_half(wb, vbase, half):
    return ar(8*wb + 4*half, 4) if wb < 32 else vr(vbase + 8*(wb-32) + 4*half, 4)

def xlane4(a, op, x, t):
    a(f'''
    v_mov_b32 v{t}, v{x}
    v_permlane16_swap_b32 v{x}, v{t}
    {op} v{x}, v{x}, v{t}
    v_mov_b32 v{t}, v{x}
    v_permlane32_swap_b32 v{x}, v{t}
    {op} v{x}, v{x}, v{t}
    ''')

QP = 'quad_perm:[2,3,0,1] row_mask:0xf bank_mask:0xf'

def read_mf(a, V):
    for b in range(7):
        a(f"ds_read_b64_tr_b16 v[{V['mf']+4*b}:{V['mf']+4*b+1}], v{V['l8']} offset:{LDS_M+b*1024}")
        a(f"ds_read_b64_tr_b16 v[{V['mf']+4*b+2}:{V['mf']+4*b+3}], v{V['l8']} offset:{LDS_M+b*1024+512}")

def SM(acc, A, B, idx):
    return f'v_smfmac_f32_16x16x64_bf16 v[{acc}:{acc+3}], v[{A}:{A+3}], {B}, v{idx}'


class Q:
    def __init__(self, name, cap):
        self.name = name; self.n = 0; self.tags = {}; self.done = 0; self.cap = cap
    def issue(self, tag=None):
        self.n += 1
        if tag is not None: self.tags[tag] = self.n
    def wait(self, tag):
        k = self.tags[tag]
        if k <= self.done: return ''
        self.done = k
        return 's_waitcnt %s(%d)' % (self.name, min(self.n - k, self.cap))
    def drain(self):
        self.done = self.n
        return 's_waitcnt %s(0)' % self.name

WSRD = f's[{S_WS}:{S_WS+3}]'

def poll_m(a, V, sleep=0):
    t = V['mf']; pa = V['pa']
    l = a.newlabel('L_pm'); d = a.newlabel('L_pmd')
    a(f"""
    s_mov_b32 s{S_SPIN}, 0
{l}:
    buffer_load_dwordx4 v[{t}:{t+3}], v{pa}, {WSRD}, s{S_MOFF} offen sc1
    buffer_load_dwordx4 v[{t+4}:{t+7}], v{pa}, {WSRD}, s{S_MOFF} offen offset:768 sc1
    s_add_u32 s{S_SPIN}, s{S_SPIN}, 1
    s_waitcnt vmcnt(1)
    ds_write_b128 v{pa}, v[{t}:{t+3}]
    v_max3_u32 v{t+8}, v{t}, v{t+1}, v{t+2}
    s_waitcnt vmcnt(0)
    ds_write_b128 v{pa}, v[{t+4}:{t+7}] offset:768
    v_max3_u32 v{t+8}, v{t+8}, v{t+3}, v{t+4}
    v_max3_u32 v{t+8}, v{t+8}, v{t+5}, v{t+6}
    v_max_u32 v{t+8}, v{t+8}, v{t+7}
    v_cmp_eq_u32 vcc, -1, v{t+8}
    s_cbranch_vccz {d}
    {'s_sleep %d' % sleep if sleep else ''}
    s_cmp_lt_u32 s{S_SPIN}, s{S_LIM}
    s_cbranch_scc1 {l}
    s_mov_b32 s{S_LIM}, 1
{d}:
    s_waitcnt lgkmcnt(0)
    s_barrier
    """)

def poll_m2(a, V, gap, x):
    pa = V['pa']; sets = (V['acc']+8, V['acc']+16)
    l = a.newlabel('L_pm'); d = a.newlabel('L_pmd')
    def issue(t):
        a(f"""
        buffer_load_dwordx4 v[{t}:{t+3}], v{pa}, {WSRD}, s{S_MOFF} offen sc1
        buffer_load_dwordx4 v[{t+4}:{t+7}], v{pa}, {WSRD}, s{S_MOFF} offen offset:768 sc1
        """)
    def check(t):
        a(f"""
        s_add_u32 s{S_SPIN}, s{S_SPIN}, 1
        s_waitcnt vmcnt(3)
        ds_write_b128 v{pa}, v[{t}:{t+3}]
        v_max3_u32 v{x}, v{t}, v{t+1}, v{t+2}
        s_waitcnt vmcnt(2)
        ds_write_b128 v{pa}, v[{t+4}:{t+7}] offset:768
        v_max3_u32 v{x}, v{x}, v{t+3}, v{t+4}
        v_max3_u32 v{x}, v{x}, v{t+5}, v{t+6}
        v_max_u32 v{x}, v{x}, v{t+7}
        v_cmp_eq_u32 vcc, -1, v{x}
        """)
    a(f's_mov_b32 s{S_SPIN}, 0')
    issue(sets[0])
    while gap > 0:
        a(f's_nop {min(gap, 16) - 1}'); gap -= 16
    issue(sets[1]); check(sets[0])
    a(f's_cbranch_vccnz {l}\n{d}:\ns_waitcnt lgkmcnt(0)\ns_barrier')
    def cold():
        a.label(l)
        issue(sets[0]); check(sets[1])
        a(f's_cbranch_vccz {d}')
        issue(sets[1]); check(sets[0])
        a(f"""
        s_cbranch_vccz {d}
        s_cmp_lt_u32 s{S_SPIN}, s{S_LIM}
        s_cbranch_scc1 {l}
        s_mov_b32 s{S_LIM}, 1
        s_branch {d}
        """)
    a.cold.append(cold)

def wait_hint(a, vaddr, soff, regs, imm=0, delay=0, gap=12, inner=8, fill=None, primed=False):
    n = len(regs)
    l = a.newlabel('L_h'); d = a.newlabel('L_hd')
    ld = lambda r: f'buffer_load_dword v{r}, v{vaddr}, {WSRD}, s{soff} offen offset:{imm} sc1'
    a(f's_mov_b32 s{S_SPIN}, 0')
    fill = list(fill or [])
    per = -(-len(fill) // (n-1))
    for k in range(0 if primed else n-1):
        a(ld(regs[k]))
        for x in fill[k*per:(k+1)*per]: a(x)
        if per < gap: a(f's_nop {gap - per}')
    a.label(l)
    for k in range(n):
        a(f"""
        {ld(regs[(k+n-1) % n])}
        s_waitcnt vmcnt({n-1})
        v_cmp_eq_u32 vcc, -1, v{regs[k]}
        s_cbranch_vccz {d}
        s_nop {inner}
        """)
    a(f"""
    s_add_u32 s{S_SPIN}, s{S_SPIN}, 1
    s_cmp_lt_u32 s{S_SPIN}, s{S_LIM}
    s_cbranch_scc1 {l}
{d}:
    """)
    while delay > 0:
        a(f's_nop {min(delay, 16) - 1}'); delay -= 16

def wait_cnt(a, off_sgpr, target, vt, sleep=4, primed=False):
    l = a.newlabel('L_wc'); d = a.newlabel('L_wcd'); p = a.newlabel('L_wcp')
    a(f"""
    s_mov_b32 s{S_SPIN}, 0
    v_mov_b32 v{vt}, 0
    {f's_branch {p}' if primed else ''}
{l}:
    buffer_load_dword v{vt+1}, v{vt}, {WSRD}, s{off_sgpr} offen sc1
{p}:
    s_add_u32 s{S_SPIN}, s{S_SPIN}, 1
    s_waitcnt vmcnt(0)
    v_readfirstlane_b32 s{S_T0}, v{vt+1}
    s_cmp_ge_u32 s{S_T0}, {target}
    s_cbranch_scc1 {d}
    s_sleep {sleep}
    s_cmp_lt_u32 s{S_SPIN}, s{S_LIM}
    s_cbranch_scc1 {l}
    s_mov_b32 s{S_LIM}, 1
{d}:
    """)

def img_addr(a, dst, t, lane):
    a(f"""
    v_bfe_u32 v{dst}, v{lane}, 3, 1
    v_lshlrev_b32 v{dst}, 9, v{dst}
    v_bfe_u32 v{t}, v{lane}, 2, 1
    v_lshl_add_u32 v{dst}, v{t}, 6, v{dst}
    v_and_b32 v{t}, 1, v{lane}
    v_lshl_add_u32 v{dst}, v{t}, 5, v{dst}
    v_lshrrev_b32 v{t}, 4, v{lane}
    v_lshl_add_u32 v{dst}, v{t}, 3, v{dst}
    v_bfe_u32 v{t}, v{lane}, 1, 1
    v_lshl_add_u32 v{dst}, v{t}, 2, v{dst}
    """)

def common_addrs(a, V, LN):
    a(f"""
    v_lshlrev_b32 v{V['l8']}, 3, v{LN}
    s_mul_i32 s{S_T0}, s{S_WAVE}, {112*16}
    v_lshlrev_b32 v{V['pa']}, 4, v{LN}
    v_add_u32 v{V['pa']}, s{S_T0}, v{V['pa']}
    v_and_b32 v{LN+1}, 2, v{LN}
    v_cmp_ne_u32 vcc, 0, v{LN+1}
    v_mov_b32 v{LN+1}, 0x4444
    v_mov_b32 v{LN+2}, 0xeeee
    v_cndmask_b32 v{V['idx']}, v{LN+1}, v{LN+2}, vcc
    """)

def load_1k_run(a, dsts, vaddr, sbase, flags='', budget=None):
    for i, d in enumerate(dsts):
        if i and i % 4 == 0:
            a(f's_add_u32 s{sbase}, s{sbase}, 4096')
        a(f'buffer_load_dwordx4 {d}, v{vaddr}, {WSRD}, s{sbase} offen offset:{(i%4)*1024} {flags}')
        if budget is not None:
            budget[0] += 1
            if budget[0] >= 56:
                a('s_waitcnt vmcnt(28)'); budget[0] = 28

class Gaps:
    def __init__(self, n):
        self.ds = [[] for _ in range(n)]; self.va = [[] for _ in range(n)]; self.pre = [[] for _ in range(n)]
        self.n = n
    def put(self, kind, g, text, excl=False):
        while g < self.n - 1:
            if excl:
                if not self.ds[g] and not self.va[g]: break
            else:
                lst = self.ds[g] if kind == 'ds' else self.va[g]
                other = self.va[g] if kind == 'ds' else self.ds[g]
                if not lst and not (other and other[-1][1]): break
            g += 1
        (self.ds if kind == 'ds' else self.va)[g].append((text, excl))
        return g
    def force(self, kind, g, text):
        (self.ds if kind == 'ds' else self.va)[min(g, self.n-1)].append((text, False))

def emit_stream(a, mf, gp, lq, pre=None):
    for i, (m, tags) in enumerate(mf):
        for tg in tags:
            w = lq.wait(tg)
            if w: a(w)
        a(m)
        for lst in (gp.ds[i], gp.va[i]):
            for x, _ in lst:
                t = x(lq) if callable(x) else x
                if t: a(t)

def dsop(text, tag=None):
    def f(lq):
        lq.issue(tag); return text
    return f
def dswait(tag, then=''):
    def f(lq):
        return lq.wait(tag) + '\n' + then
    return f

SV = dict(l8=0, pa=1, idx=2, k1=3, mf=12, acc=40, w=64)
def tile_of(w, u):
    if u < 5: return (u, w)
    order = {(0, 5): (5, 0), (1, 5): (5, 1), (2, 5): (5, 2), (2, 6): (5, 3), (0, 6): (6, 0), (1, 6): (6, 1), (0, 7): (6, 2), (1, 7): (6, 3)}
    return order[(w, u)]
NUNIT = [8, 8, 7, 5]
F = dict(l16=4, px=5, pm=6, mk0=7, mk1=8, mk2=9, wz=10, xf=88, tf=200, sa=228, t=240)

def score_setup(a, stamps, cfg):
    V = SV; LN = 44
    a(f'v_mov_b32 v{LN}, v1')
    team_register(a)
    common_addrs(a, V, LN)
    img_addr(a, V['k1'], LN+1, LN)
    g, cc, par, ib, t = LN+1, LN+2, LN+3, LN+4, LN+5
    a(f"""
    v_lshlrev_b32 v{F['l16']}, 4, v{LN}
    v_lshrrev_b32 v{g}, 4, v{LN}
    v_bfe_u32 v{cc}, v{LN}, 2, 2
    v_bfe_u32 v{par}, v{LN}, 1, 1
    v_and_b32 v{ib}, 1, v{LN}
    v_and_b32 v{t}, 15, v{LN}
    v_lshlrev_b32 v{F['px']}, 4, v{t}
    v_lshrrev_b32 v{t}, 1, v{g}
    v_lshl_add_u32 v{F['px']}, v{t}, 8, v{F['px']}
    v_and_b32 v{t}, 1, v{g}
    v_lshl_add_u32 v{F['px']}, v{t}, 3, v{F['px']}
    s_and_b32 s{S_T0}, s{S_ROLE}, 1
    s_lshl_b32 s{S_T0}, s{S_T0}, 4
    s_lshr_b32 s{S_T1}, s{S_ROLE}, 2
    s_lshl_b32 s{S_T1}, s{S_T1}, 9
    s_add_u32 s{S_T0}, s{S_T0}, s{S_T1}
    s_and_b32 s{S_T1}, s{S_ROLE}, 2
    s_lshl_b32 s{S_T1}, s{S_T1}, 1
    s_add_u32 s{S_T0}, s{S_T0}, s{S_T1}
    s_add_u32 s{S_T0}, s{S_T0}, 8192
    v_and_b32 v{F['pm']}, 0xffffffef, v{V['l8']}
    v_add_u32 v{F['pm']}, s{S_T0}, v{F['pm']}
    s_lshl_b32 s{S_T0}, s{S_ROLE}, 9
    v_add_u32 v{F['px']}, s{S_T0}, v{F['px']}
    v_lshlrev_b32 v{t}, 4, v{ib}
    v_mov_b32 v{F['mk2']}, 0xffff
    v_lshlrev_b32 v{F['mk2']}, v{t}, v{F['mk2']}
    v_cmp_eq_u32 vcc, v{cc}, v{g}
    v_mov_b32 v{t}, 0
    v_cndmask_b32 v{F['mk2']}, v{t}, v{F['mk2']}, vcc
    v_cmp_eq_u32 vcc, 0, v{par}
    v_mov_b32 v{t+1}, 0xff800000
    v_cndmask_b32 v{F['mk0']}, v{t}, v{F['mk2']}, vcc
    v_cndmask_b32 v{F['mk1']}, v{F['mk2']}, v{t}, vcc
    v_cndmask_b32 v{F['wz']}, v{t+1}, v{t}, vcc
    s_mul_i32 s{S_T1}, s{S_ROLE}, {28*14336}
    s_add_u32 s{S_T1}, s{S_T1}, {L.WT}
    """)
    done = a.newlabel('L_sw')
    fz = cfg['fused']
    if fz:
        a(f"v_min_u32 v{LN+8}, 27, v{LN}\nv_lshlrev_b32 v{LN+8}, 3, v{LN+8}\ns_mul_i32 s{S_T0}, s{S_ROLE}, {14*32}\nv_add_u32 v{LN+8}, s{S_T0}, v{LN+8}")
        wait_flags(a, LN+8, 1, LN+10)
    for w in range(4):
        nx = a.newlabel('L_swn')
        if w < 3: a(f's_cmp_lg_u32 s{S_WAVE}, {w}\ns_cbranch_scc1 {nx}')
        tiles = []
        for u in range(NUNIT[w]):
            b, ga = tile_of(w, u)
            tiles.append(((4*b+ga)*14336, [wreg_half(u*7 + k//2, V['w'], k % 2) for k in range(14)]))
        if fz:
            load_tiles(a, tiles, F['l16'], S_T1, 1, cfg['wfl'], [0])
            wait_flags(a, LN+8, 7, LN+10)
            load_tiles(a, tiles, F['l16'], S_T1, 2, cfg['wfl'], [0])
        else:
            load_tiles(a, tiles, F['l16'], S_T1, None, cfg['wfl'], [0], cfg['scap'])
        if w < 3: a(f's_branch {done}\n{nx}:')
    a(f"""
{done}:
    {team_mode_load(V['mf'], V['mf']+1) if not fz else ''}
    s_mov_b32 s{S_STEP}, 0
    s_mov_b32 s{S_MOFF}, {L.MB_M}
    s_mov_b32 s{S_POFF}, {L.MB_P}
    s_mov_b32 s{S_GOFF}, {L.XN}
    s_lshl_b32 s{S_STMP}, s{S_ROLE}, 2
    s_add_u32 s{S_STMP}, s{S_STMP}, s{S_WAVE}
    s_lshl_b32 s{S_STMP}, s{S_STMP}, 12
    s_add_u32 s{S_STMP}, s{S_STMP}, {L.STAMP}
    """)
    if fz:
        wait_ln(a, LN, 12)
    else:
        nf = a.newlabel('L_nx0')
        a(f's_cmp_lg_u32 s{S_WAVE}, 3\ns_cbranch_scc1 {nf}\ns_waitcnt vmcnt(30)\ns_mov_b32 s{S_T0}, s{S_GOFF}')
        load_1k_run(a, [vr(F['xf'] + 4*k, 4) for k in range(28)], F['l16'], S_T0, cfg['wfl'])
        a.label(nf)
    team_mode(a, V['mf'], V['mf']+1, primed=not fz)

def step_advance(a, gstride, xstride=114688):
    a(f"""
    s_add_u32 s{S_STEP}, s{S_STEP}, 1
    s_add_u32 s{S_MOFF}, s{S_MOFF}, 8192
    s_add_u32 s{S_POFF}, s{S_POFF}, 16384
    s_add_u32 s{S_GOFF}, s{S_GOFF}, {gstride}
    s_add_u32 s{S_XOFF}, s{S_XOFF}, {xstride}
    s_add_u32 s{S_STMP}, s{S_STMP}, 64
    """)

def rowred(a, op, x):
    for m in ('row_ror:8', 'row_ror:4', 'row_ror:2', 'row_ror:1'):
        for r in (x, x+1):
            a(f'{op}_dpp v{r}, v{r}, v{r} {m} row_mask:0xf bank_mask:0xf')

def score_wave(a, w, pf, stamps, cfg):
    V = SV; idx = V['idx']; mf = V['mf']
    top = a.newlabel(f'L_sc{w}_top'); first = a.newlabel(f'L_sc{w}_first')
    nunit = NUNIT[w]
    accof = lambda u: V['acc'] + 4*(u % 6)
    ok = {0: (0, 9, 2), 1: (2,), 2: (0, 9, 1, 2), 3: (4,) if cfg['fin1'] else (7, 8, 4)}[w]
    ST = (lambda k: f's_memtime s[{40+2*k}:{41+2*k}]' if k in ok else '') if stamps else (lambda k: '')
    def stamp(a, stamps, k):
        a(ST(k))
    xf, tf, sa, T = F['xf'], F['tf'], F['sa'], F['t']
    FA, FV = 8, 9
    HA = 11
    HT = ([5, 6, 7, 10] if w < 3 else [T+4, T+5, T+6, T+7])[:cfg['hdepth']]
    def load_x():
        a(f's_mov_b32 s{S_T0}, s{S_GOFF}')
        load_1k_run(a, [vr(xf + 4*k, 4) for k in range(28)], F['l16'], S_T0, cfg['wfl'])
    XW = cfg['xw']
    def dma_x(a=a):
        lo, hi = XW[w]
        a(f"""
        s_and_b32 s{S_T0}, s{S_STEP}, 1
        s_xor_b32 s{S_T0}, s{S_T0}, 1
        s_mul_i32 s{S_T0}, s{S_T0}, 28672
        s_add_u32 s{S_T0}, s{S_T0}, {LDS_X + lo*1024}
        s_add_u32 s{S_T1}, s{S_GOFF}, {28672 + lo*1024 - w*1792}
        """)
        for k in range(hi - lo):
            if k % 4 == 0:
                if k: a(f's_add_u32 s{S_T0}, s{S_T0}, 4096\ns_add_u32 s{S_T1}, s{S_T1}, 4096')
                a(f's_mov_b32 m0, s{S_T0}')
            a(f"buffer_load_dwordx4 v{V['pa']}, {WSRD}, s{S_T1} offen offset:{(k%4)*1024} {cfg['wfl']} lds")
    def read_x():
        a(f"""
        s_and_b32 s{S_T0}, s{S_STEP}, 1
        s_mul_i32 s{S_T0}, s{S_T0}, 28672
        v_add_u32 v{T}, s{S_T0}, v{F['l16']}
        """)
        for k in range(28): a(f'ds_read_b128 v[{xf+4*k}:{xf+4*k+3}], v{T} offset:{LDS_X + k*1024}')
    def zero_acc():
        for u in range(2 if cfg['m2'] else min(6, nunit)):
            a(f'v_mov_b64 v[{accof(u)}:{accof(u)+1}], 0\nv_mov_b64 v[{accof(u)+2}:{accof(u)+3}], 0')
        if w == 3:
            for k in range(4): a(f'v_mov_b64 v[{sa+2*k}:{sa+2*k+1}], 0')
            a(f"v_mov_b32 v{sa+8}, v{F['wz']}\nv_mov_b32 v{sa+9}, v{F['wz']}\nv_mov_b64 v[{sa+10}:{sa+11}], 0")
    a(f"v_lshrrev_b32 v{HA}, 1, v{V['l8']}\nv_min_u32 v{HA}, {(27 if cfg['cert'] else 55)*4}, v{HA}\ns_and_b32 s{S_T0}, s{S_ROLE}, 3\ns_lshl_b32 s{S_T0}, s{S_T0}, 8\ns_add_u32 s{S_T0}, s{S_T0}, 7168\nv_add_u32 v{HA}, s{S_T0}, v{HA}")
    if cfg['h64']:
        a(f"""
        v_lshrrev_b32 v{HA}, 3, v{V['l8']}
        v_min_u32 v{HA}, 55, v{HA}
        v_and_b32 v{mf}, 3, v{HA}
        v_lshrrev_b32 v{HA}, 2, v{HA}
        v_lshlrev_b32 v{HA}, 6, v{HA}
        v_lshl_add_u32 v{HA}, v{mf}, 2, v{HA}
        v_add_u32 v{HA}, 7168, v{HA}
        """)
    if w == 3:
        if cfg['fused']: load_x()
        a(f'v_and_b32 v{T+12}, {15*8}, v0\nv_lshlrev_b32 v{T+12}, 3, v{T+12}\nv_add_u32 v{T+12}, 6144, v{T+12}')
        if stamps: a('s_mov_b32 s40, 0\ns_mov_b32 s42, 0\ns_mov_b32 s44, 0')
        a(f's_mov_b32 s{S_EOFF}, 0\ns_lshl_b32 s{S_T0}, s{S_ROLE}, 2\ns_add_u32 s{S_T0}, s{S_T0}, 12288\nv_lshlrev_b32 v{T+14}, 4, v0\nv_add_u32 v{T+14}, s{S_T0}, v{T+14}\nv_mov_b32 v{T+15}, 0')
    else:
        a(f"v_add_u32 v{FA}, {LDS_FL + 4*w}, v{F['l16']}\nv_mov_b32 v{FV}, 0")
        for k in range(5): a(f'ds_write_b32 v{FA}, v{FV} offset:{k*1024}')
        a(f'v_and_b32 v4, {31*8}, v0\nv_lshlrev_b32 v4, 3, v4\nv_add_u32 v4, {w*2048}, v4')
    if w < 3 and not cfg['xin']: dma_x()
    if cfg['prio'][w]: a(f"s_setprio {cfg['prio'][w]}")
    zero_acc()
    if cfg.get('wgd'): a('s_memrealtime s[88:89]\ns_memrealtime s[96:97]')
    a(f's_branch {first}')
    if cfg['al'] is not None:
        a.raw('    .p2align 6')
        for _ in range(cfg['al'][w]): a.raw('    s_nop 0')
    a.label(top)
    zero_acc()
    stamp(a, stamps, 0)
    if cfg['cert']:
        got = a.newlabel('L_got')
        a(f'v_add_u32 v{FV}, 1, v{FV}' if w < 3 else f's_add_u32 s{S_EOFF}, s{S_EOFF}, 1')
        a(f's_mov_b32 s{S_SAFE}, 0')
        if w == 0:
            ND = cfg['cert']; regs = HT[:ND]
            lp = a.newlabel('L_ct'); dn = a.newlabel('L_ctd')
            def rnd(r):
                a(f'buffer_load_dword v{r}, v{HA}, {WSRD}, s{S_MOFF} offen sc1\ns_mov_b32 m0, {LDS_M}')
                for k in range(7):
                    if k == 4: a(f's_mov_b32 m0, {LDS_M + 4096}')
                    a(f"buffer_load_dwordx4 v{V['pa']}, {WSRD}, s{S_MOFF if k < 4 else S_T0} offen offset:{(k%4)*1024} sc1 lds")
            a(f's_add_u32 s{S_T0}, s{S_MOFF}, 4096\ns_mov_b32 s{S_SPIN}, 0')
            a(ST(9))
            for k in range(ND-1): rnd(regs[k])
            a.label(lp)
            for k in range(ND):
                rnd(regs[(k+ND-1) % ND])
                a(f"""
                s_add_u32 s{S_SPIN}, s{S_SPIN}, 1
                s_waitcnt vmcnt({8*ND-1})
                v_cmp_eq_u32 vcc, -1, v{regs[k]}
                s_cbranch_vccz {dn}
                """)
            a(f's_cmp_lt_u32 s{S_SPIN}, s{S_LIM}\ns_cbranch_scc1 {lp}\n{dn}:\ns_waitcnt vmcnt({8*(ND-1)}) lgkmcnt(0)')
        else:
            a('s_waitcnt vmcnt(0) lgkmcnt(0)')
        a(f's_barrier\n{got}:')
        def coldf():
            a.label(first)
            a(f'v_add_u32 v{FV}, 1, v{FV}' if w < 3 else f's_add_u32 s{S_EOFF}, s{S_EOFF}, 1')
            a(f's_mov_b32 s{S_SAFE}, 1')
            poll_m(a, V)
            a(f's_branch {got}')
        a.cold.append(coldf)
    else:
        if cfg['msamp'] == 2: a(f'v_mov_b32 v{mf if w < 3 else T+13}, 0')
        if cfg['mdma'] == 2: a(f's_mov_b32 m0, {LDS_M}\ns_add_u32 s{S_T0}, s{S_MOFF}, 4096')
        elif cfg['mdma']: a(f's_mov_b32 m0, {LDS_M + w*2048}\ns_add_u32 s{S_T0}, s{S_MOFF}, {w*2048 - w*1792}')
        if not cfg['cutrig'] or w == 0: wait_hint(a, HA, S_MOFF, HT, delay=cfg['mdelay'], inner=cfg['hinner'])
        if cfg['cutrig'] and cfg['mdma'] != 2: a('s_barrier')
    if cfg['cert']: pass
    elif cfg['mdma']:
        got = a.newlabel('L_got')
        a(ST(9))
        nk = 2 if w < 3 else 1
        SA_ = (4 if w < 3 else T+12)
        def rnd(r):
            if cfg['msamp'] == 2:
                a(f"s_mov_b64 exec, {0x55555555 if w < 3 else 0x5555}\nbuffer_load_dword v{r}, v{SA_}, {WSRD}, s{S_MOFF} offen sc1\ns_mov_b64 exec, -1")
            elif cfg['msamp']: a(f"buffer_load_dword v{r}, v{SA_}, {WSRD}, s{S_MOFF} offen sc1")
            for k in range(nk): a(f"buffer_load_dwordx4 v{V['pa']}, {WSRD}, s{S_T0} offen offset:{k*1024} sc1 lds")
        r0, r1 = (mf, HT[1]) if w < 3 else (T+13, T+15)
        two = cfg['m2d']
        rnd(r0)
        a(f'v_add_u32 v{FV}, 1, v{FV}' if w < 3 else f's_add_u32 s{S_EOFF}, s{S_EOFF}, 1')
        a(f's_mov_b32 s{S_SAFE}, 0\ns_mov_b32 s{S_SPIN}, 1')
        if two:
            gap = two
            while gap > 0:
                a(f's_nop {min(gap, 16) - 1}'); gap -= 16
            rnd(r1)
        ex = (nk+1) if two else 0
        bad = a.newlabel('L_mbad'); okl = a.newlabel('L_mok')
        a(f"""
        {f's_waitcnt vmcnt({nk + ex})' if cfg['msamp'] else ''}
        {f'v_cmp_eq_u32 vcc, -1, v{r0}' if cfg['msamp'] else ''}
        {f's_cbranch_vccnz {bad}' if cfg['msamp'] else ''}
        s_waitcnt vmcnt({ex}) lgkmcnt(0)
{okl}:
        s_barrier
{got}:
        """)
        def coldb():
            lp = a.newlabel('L_mlp')
            a.label(bad)
            if two:
                a(f's_mov_b32 s{S_SPIN}, 2\ns_waitcnt vmcnt(0) lgkmcnt(0)\nv_cmp_eq_u32 vcc, -1, v{r1}\ns_cbranch_vccz {okl}')
            a.label(lp)
            rnd(r0)
            a(f"""
            s_add_u32 s{S_SPIN}, s{S_SPIN}, 1
            s_waitcnt vmcnt(0) lgkmcnt(0)
            v_cmp_eq_u32 vcc, -1, v{r0}
            s_cbranch_vccz {okl}
            s_cmp_lt_u32 s{S_SPIN}, s{S_LIM}
            s_cbranch_scc1 {lp}
            s_mov_b32 s{S_LIM}, 1
            s_branch {okl}
            """)
        a.cold.append(coldb)
        def coldf():
            a.label(first)
            a(f'v_add_u32 v{FV}, 1, v{FV}' if w < 3 else f's_add_u32 s{S_EOFF}, s{S_EOFF}, 1')
            a(f's_mov_b32 s{S_SAFE}, 1')
            poll_m(a, V)
            a(f's_branch {got}')
        a.cold.append(coldf)
    else:
        a.label(first)
        a(f'v_add_u32 v{FV}, 1, v{FV}' if w < 3 else f's_add_u32 s{S_EOFF}, s{S_EOFF}, 1')
        a(ST(9))
        if cfg['m2']: poll_m2(a, V, cfg['m2'], mf)
        else: poll_m(a, V)
    stamp(a, stamps, 1)
    if stamps and w < 3: a(f's_mov_b32 s{40+2*7}, s{S_SPIN}')
    lq = Q('lgkmcnt', 15)
    mrd = [dsop(f"ds_read_b64_tr_b16 v[{mf+4*b+2*hf}:{mf+4*b+2*hf+1}], v{V['l8']} offset:{LDS_M+b*1024+hf*512}", ('mf', b))
           for b in range(7) for hf in range(2)]
    for x in mrd[:cfg['mpre']]: a(x(lq))
    order = [(u, b) for b in range(7) for u in range(2)] + [(u, b) for u in range(2, nunit) for b in range(7)]
    ms = [(SM(accof(u), mf+4*b, wreg(u*7 + b, V['w']), idx), [('mf', b)] if u == 0 else []) for u, b in order]
    last = {u: i for i, (u, b) in enumerate(order)}
    def smfma(b):
        t4 = tf + 4*b
        return [(f"v_mfma_f32_16x16x32_bf16 v[{sa+8}:{sa+11}], v[{t4}:{t4+3}], v[{mf+4*b}:{mf+4*b+3}], " + f'v[{sa+8}:{sa+11}]', [('tf', b)]),
                (SM(sa, t4, vr(xf + 8*b, 8), idx), []),
                (SM(sa+4, t4, vr(xf + 56 + 8*b, 8), idx), [])]
    def tread(b, hf):
        return dsop(f"ds_read_b64_tr_b16 v[{tf+4*b+2*hf}:{tf+4*b+2*hf+1}], v{V['l8']} offset:{LDS_T+b*1024+hf*512}", ('tf', b))
    phases = [(0, 1, 2), (3, 4)]
    starts = []
    if w == 3:
        for ph in phases:
            starts.append(len(ms))
            for b in ph: ms += smfma(b)
    n = len(ms)
    gp = Gaps(n)
    for k, x in enumerate(mrd[cfg['mpre']:]): gp.put('ds', k, x)
    flag_after = {2, 4} | ({5} if w < 2 else {6})
    def post(u):
        A = accof(u); b, ga = tile_of(w, u)
        va = [f'v_add_f32 v{A}, v{A}, v{A+2}', f'v_add_f32 v{A+1}, v{A+1}, v{A+3}', f'v_cvt_pk_bf16_f32 v{A}, v{A}, v{A+1}']
        ds = [dsop(f"ds_write_b32 v{V['k1']}, v{A} offset:{LDS_T+b*1024+ga*128}", ('k', u))]
        if w < 3 and u in flag_after:
            ds.append(dsop(f'ds_write_b32 v{FA}, v{FV} offset:{sorted(flag_after).index(u)*1024}'))
        return va, ds
    g = 0
    done_at = {}
    for u in range(nunit - (0 if w == 3 else 1)):
        va, ds = post(u)
        g = max(g, last[u] + 3 - (len(va) - 3))
        for x in va: g = gp.put('va', g, x) + 1
        for x in ds: g = gp.put('ds', g, x, excl=True) + 1
        done_at[u] = g
    def zero_in_gaps(u, g):
        A = accof(u)
        for k in range(2):
            gg = g
            while gg < 7*u - 2 and (gp.va[gg] or (gp.ds[gg] and gp.ds[gg][-1][1])): gg += 1
            if gg >= 7*u - 2: gg = max(g, 7*u - 4 + k)
            gp.force('va', gg, f'v_mov_b64 v[{A+2*k}:{A+2*k+1}], 0')
    if cfg['m2']:
        gp.force('ds', cfg['m2w'], 's_waitcnt vmcnt(0)')
        for u in range(2, min(6, nunit)): zero_in_gaps(u, cfg['m2w'])
    for u in range(6, nunit): zero_in_gaps(u, done_at[u-6] + 1)
    if w == 3:
        for pi, ph in enumerate(phases):
            flagrd = f"ds_read_b128 v[{T}:{T+3}], v{F['l16']} offset:{LDS_FL + pi*1024}"
            lead = cfg['lead'][pi]
            g = max(starts[pi] - lead, done_at[max(ph)] if max(ph) < 5 else 0)
            g = min(g, starts[pi]-1)
            if cfg['pnop'][pi]: gp.force('ds', g, f"s_nop {cfg['pnop'][pi]-1}")
            gp.force('ds', g, dsop(flagrd, ('fl', pi)))
            ops = [tread(b, hf) for b in ph for hf in range(2)]
            for k, x in enumerate(ops):
                gp.force('ds', min(g + (k+1)//2, starts[pi]-1), x)
            FM = T+11
            def chk(lq, pi=pi):
                return lq.wait(('fl', pi)) + (f'\nv_min3_u32 v{FM}, v{T}, v{T+1}, v{T+2}' if pi == 0 else
                                              f'\nv_min3_u32 v{T}, v{T}, v{T+1}, v{T+2}\nv_min_u32 v{FM}, v{FM}, v{T}')
            gp.force('va', starts[pi], chk)
    if cfg['xin'] and XW[w][1] > XW[w][0]:
        sub = Asm(); dma_x(sub)
        grp = []; cur = []
        for _, x in sub.items:
            cur.append(x.text)
            if x.text.startswith('buffer'): grp.append('\n'.join(cur)); cur = []
        g = cfg['xin']
        for x in grp: g = gp.put('ds', g, x) + cfg['xstep']
    if w == 0 and cfg['phint'] < 0:
        gp.force('ds', n - 1 + cfg['phint'], f"""s_mov_b64 exec, 15
            buffer_store_dword v{FV}, v4, {WSRD}, s{S_POFF} offen {pf}
            s_mov_b64 exec, -1""")
    emit_stream(a, ms, gp, lq)
    hint = f"""s_mov_b64 exec, 15
        buffer_store_dword v{T+15}, v{T+14}, {WSRD}, s{S_POFF} offen {pf}
        s_mov_b64 exec, -1"""
    if w < 3:
        va, ds = post(nunit-1)
        A_ = accof(nunit-1)
        va = [f'v_pk_add_f32 v[{A_}:{A_+1}], v[{A_}:{A_+1}], v[{A_+2}:{A_+3}]', va[-1]]
        for x in va: a(x)
        for x in ds: a(x(lq))
        if cfg['b3s']: a(f'ds_write_b32 v{FA}, v{FV} offset:3072')
        else: a(lq.drain())
        a('s_barrier')
        stamp(a, stamps, 2)
        if cfg['mdma']:
            again = a.newlabel('L_again')
            a(f"""
            {'s_waitcnt vmcnt(0)' if cfg['xin'] else ''}
            s_barrier
            v_mov_b32 v{mf}, {LDS_VD}
            ds_read_b32 v{mf}, v{mf}
            s_waitcnt lgkmcnt(0)
            v_cmp_eq_u32 vcc, v{mf}, v{FV}
            s_cbranch_vccnz {again}
            """)
            def colda():
                a.label(again)
                zero_acc()
                a(f's_branch {first}')
            a.cold.append(colda)
        elif cfg['quiet']: a(f"s_sleep {cfg['quiet']}")
    else:
        s = T
        mx = T+6; z = T+8; EA = tf; B1 = tf+4; B2 = tf+8; D1 = tf+12; D2 = tf+16; rz = T+10
        a(f"""
        v_mov_b64 v[{B1+2}:{B1+3}], 0
        v_mov_b64 v[{B2}:{B2+1}], 0
        v_mov_b32 v{B2+3}, 0
        v_mov_b32 v{EA+3}, 0
        """)
        for _ in range(cfg['b5nop']): a('s_nop 3')
        q = Q('lgkmcnt', 15)
        a(f"ds_read_b128 v[{T}:{T+3}], v{F['l16']} offset:{LDS_FL + 2048}"); q.issue('fl')
        for hf in range(2): a(tread(5, hf)(q))
        stamp(a, stamps, 2)
        a('s_barrier')
        stamp(a, stamps, 3)
        PX = lambda k: a('s_memtime s[52:53]') if stamps and cfg['px'] == k else None
        PX(0)
        if cfg['b3s']:
            for _ in range(cfg['b3s'] - 1): a('s_nop 0')
            a(f"ds_read_b64 v[{T+4}:{T+5}], v{F['l16']} offset:{LDS_FL + 3072}"); q.issue('fl3')
        for hf in range(2): a(tread(6, hf)(q))
        PX(1)
        if cfg['phint'] == 0: a(hint)
        PX(2)
        fl5 = [f'v_min3_u32 v{T}, v{T}, v{T+1}, v{T+2}', f'v_min_u32 v{FM}, v{FM}, v{T}', f'v_subrev_u32 v{FM}, s{S_EOFF}, v{FM}']
        if cfg['b3s']: fl5[2:2] = ['', f'v_min3_u32 v{FM}, v{FM}, v{T+4}, v{T+5}']
        for b in (5, 6):
            for m, tags in smfma(b):
                for tg in tags: a(q.wait(tg))
                if b == 6 and tags: PX(4)
                a(m)
                if fl5: a(fl5.pop(0))
            if b == 5: PX(3)
        a(ST(7))
        if cfg['phint'] == 1: a(hint)
        e = sa
        redo = a.newlabel('L_smr'); slowmx = a.newlabel('L_sms'); go = a.newlabel('L_smg')
        a(f"""
        s_mov_b32 s{S_T1}, {120 << 23}
        s_mov_b32 s{S_SPIN}, 0
        v_add_f32_dpp v{s+4}, v{sa+10}, v{sa+8} {QP}
        v_add_f32_dpp v{s+5}, v{sa+11}, v{sa+9} {QP}
        v_pk_add_f32 v[{s}:{s+1}], v[{sa}:{sa+1}], v[{sa+2}:{sa+3}]
        v_exp_f32 v{e+8}, v{s+4}
        v_exp_f32 v{e+9}, v{s+5}
        v_pk_add_f32 v[{s+2}:{s+3}], v[{sa+4}:{sa+5}], v[{sa+6}:{sa+7}]
        v_exp_f32 v{e}, v{s}
        v_exp_f32 v{e+1}, v{s+1}
        v_exp_f32 v{e+2}, v{s+2}
        v_exp_f32 v{e+3}, v{s+3}
{redo}:;nf
        v_pk_add_f32 v[{z}:{z+1}], v[{e}:{e+1}], v[{e+8}:{e+9}]
        v_cvt_pk_bf16_f32 v{EA+2}, v{e+8}, v{e+9}
        v_pk_add_f32 v[{z}:{z+1}], v[{z}:{z+1}], v[{e+2}:{e+3}]
        """)
        if cfg['phint'] == 2: a(hint)
        fill = [f'v_cvt_pk_bf16_f32 v{EA+k}, v{e+2*k}, v{e+2*k+1}' for k in range(2)]
        for m in ('row_ror:8', 'row_ror:4', 'row_ror:2', 'row_ror:1'):
            if fill: a(fill.pop(0))
            for r in (z, z+1):
                a(f'v_add_f32_dpp v{r}, v{r}, v{r} {m} row_mask:0xf bank_mask:0xf')
        LO, HI = (127-60) << 23, (127+60) << 23
        a(ST(8))
        a(f"""
        v_rcp_f32 v{mx}, v{z}
        v_rcp_f32 v{mx+1}, v{z+1}
        v_subrev_u32 v{z}, {LO}, v{z}
        v_cvt_pk_bf16_f32 v{rz}, v{mx}, v{mx+1}
        v_and_b32 v{B1}, v{rz}, v{F['mk0']}
        v_and_b32 v{B1+1}, v{rz}, v{F['mk1']}
        v_and_b32 v{B2+2}, v{rz}, v{F['mk2']}
        v_subrev_u32 v{z+1}, {LO}, v{z+1}
        v_mfma_f32_16x16x32_bf16 v[{D1}:{D1+3}], v[{EA}:{EA+3}], v[{B1}:{B1+3}], 0
        v_mfma_f32_16x16x32_bf16 v[{D2}:{D2+3}], v[{EA}:{EA+3}], v[{B2}:{B2+3}], 0
        v_max3_u32 v{z}, v{z}, v{z+1}, v{FM}
        v_cmp_lt_u32 vcc, s{S_T1}, v{z}
        s_cmp_eq_u64 vcc, 0
        s_cselect_b64 exec, -1, 0
        v_cvt_pk_bf16_f32 v{D1}, v{D1}, v{D1+1}
        v_cvt_pk_bf16_f32 v{D1+1}, v{D1+2}, v{D1+3}
        buffer_store_dwordx2 v[{D1}:{D1+1}], v{F['px']}, {WSRD}, s{S_POFF} offen {pf}
        v_cvt_pk_bf16_f32 v{D2}, v{D2}, v{D2+1}
        buffer_store_dword v{D2}, v{F['pm']}, {WSRD}, s{S_POFF} offen {pf}
        s_mov_b64 exec, -1
        s_cbranch_scc0 {slowmx}
        """)
        if cfg['mdma']: a('s_barrier')
        def coldmx():
            a(f'{slowmx}:' + ('\ns_add_u32 s40, s40, 1' if stamps else ''))
            loc = a.newlabel('L_loc'); sf = a.newlabel('L_safe')
            a(f's_cmp_eq_u32 s{S_SPIN}, 0\ns_cbranch_scc1 {loc}')
            if cfg['mdma']:
                a(f"""
                s_cmp_lg_u32 s{S_SAFE}, 0
                s_cbranch_scc1 {sf}
                {'s_add_u32 s86, s86, 1' if cfg.get('wgd') else ''}
                v_mov_b32 v{T}, {LDS_VD}
                v_mov_b32 v{T+1}, s{S_EOFF}
                ds_write_b32 v{T}, v{T+1}
                s_waitcnt lgkmcnt(0)
                s_barrier
                """)
                zero_acc()
                a(f's_branch {first}')
            a(f'{sf}:\ns_mov_b32 s{S_T1}, -1\ns_branch {redo}\n{loc}:\ns_mov_b32 s{S_SPIN}, 1\nv_mov_b32 v{FM}, 0')
            if cfg.get('wgd'): a('s_add_u32 s85, s85, 1')
            for k in range(4): a(f'v_mov_b64 v[{sa+2*k}:{sa+2*k+1}], 0')
            a(f"v_mov_b32 v{sa+8}, v{F['wz']}\nv_mov_b32 v{sa+9}, v{F['wz']}\nv_mov_b64 v[{sa+10}:{sa+11}], 0")
            q2 = Q('lgkmcnt', 15)
            rl = a.newlabel('L_rl'); rd = a.newlabel('L_rld')
            a(f's_mov_b32 s{S_T0}, 0\n{rl}:')
            a(f"ds_read_b128 v[{T}:{T+3}], v{F['l16']} offset:{LDS_FL + 3072}")
            for b in range(7):
                for hf in range(2): a(tread(b, hf)(q2))
            a('s_waitcnt lgkmcnt(0)')
            if cfg['b3s']:
                a(f"""
                v_min3_u32 v{T}, v{T}, v{T+1}, v{T+2}
                s_add_u32 s{S_T0}, s{S_T0}, 1
                v_cmp_gt_u32 vcc, s{S_EOFF}, v{T}
                s_cbranch_vccz {rd}
                s_cmp_lt_u32 s{S_T0}, 1000
                s_cbranch_scc1 {rl}
{rd}:
                """)
            for b in range(7):
                for m, tags in smfma(b): a(m)
            a(f"""
            v_mov_b64 v[{B1+2}:{B1+3}], 0
            v_mov_b64 v[{B2}:{B2+1}], 0
            v_mov_b32 v{B2+3}, 0
            v_mov_b32 v{EA+3}, 0
            v_add_f32_dpp v{s+4}, v{sa+10}, v{sa+8} {QP}
            v_add_f32_dpp v{s+5}, v{sa+11}, v{sa+9} {QP}
            v_pk_add_f32 v[{s}:{s+1}], v[{sa}:{sa+1}], v[{sa+2}:{sa+3}]
            v_pk_add_f32 v[{s+2}:{s+3}], v[{sa+4}:{sa+5}], v[{sa+6}:{sa+7}]
            v_max3_f32 v{mx}, v{s}, v{s+4}, v{s+2}
            v_max3_f32 v{mx+1}, v{s+1}, v{s+5}, v{s+3}
            """)
            rowred(a, 'v_max_f32', mx)
            for k in range(3): a(f'v_pk_add_f32 v[{s+2*k}:{s+2*k+1}], v[{s+2*k}:{s+2*k+1}], v[{mx}:{mx+1}] neg_lo:[0,1] neg_hi:[0,1]')
            for k in range(6): a(f'v_exp_f32 v{e+(k if k < 4 else k+4)}, v{s+k}')
            a(f's_nop 1\ns_branch {redo}')
        a.cold.append(coldmx)
        stamp(a, stamps, 4)
    if stamps: a('s_memtime s[50:51]\ns_memrealtime s[60:61]')
    stamp_flush(a, stamps, 11, mf)
    step_advance(a, 28672, 458752)
    a(f's_cmp_ge_u32 s{S_STEP}, 63\ns_cbranch_scc1 L_exit')
    if w == 3: read_x()
    elif not cfg['nox'] and not cfg['xin']:
        if cfg['xs']: a(f"s_sleep {cfg['xs']}")
        dma_x()
    if cfg['ssleep'][w]:
        a(f"s_sleep {cfg['ssleep'][w]}")
    a(f's_branch {top}')
    a.flush_cold()

S_YD = 33; S_SAFE = 36; S_CV = 37; S_CU = 38; S_MD = 39
CV = dict(ha=160, one=161, zero=162, cu=163, hw=164, hm=165, nw=172, nr=173, pmr=72, fw=73, fv=74, rw2=75, l8=0, pa=1, idx=2, l16=3, pr=4, mw=6, lw=7, rw=8, rr=5, mf=12, acc=40, itm=72, vx=88, uf=96, tw=128, w=176)

def comb_setup(a, stamps, cfg):
    V = CV; LN = 112
    a(f'v_mov_b32 v{LN}, v1')
    team_register(a)
    common_addrs(a, V, LN)
    img_addr(a, V['mw'], LN+1, LN)
    a(f"""
    s_sub_u32 s{S_ROLE}, s{S_ROLE}, 16
    s_lshl_b32 s{S_ROLE}, s{S_ROLE}, 1
    s_and_b32 s{S_T0}, s{S_WAVE}, 1
    s_add_u32 s{S_T1}, s{S_ROLE}, s{S_T0}
    s_lshr_b32 s{S_T0}, s{S_T1}, 2
    s_lshl_b32 s{S_T0}, s{S_T0}, 10
    s_and_b32 s{S_T1}, s{S_T1}, 3
    s_lshl_b32 s{S_T1}, s{S_T1}, 7
    s_add_u32 s{S_T0}, s{S_T0}, s{S_T1}
    s_add_u32 s{S_T0}, s{S_T0}, 8192
    v_add_u32 v{V['mw']}, s{S_T0}, v{V['mw']}
    v_lshlrev_b32 v{V['l16']}, 4, v{LN}
    s_mul_i32 s{S_T0}, s{S_WAVE}, 28672
    s_add_u32 s{S_T0}, s{S_T0}, {LDS_BW}
    v_add_u32 v{V['lw']}, s{S_T0}, v{V['l16']}
    s_lshl_b32 s{S_T0}, s{S_WAVE}, 10
    v_add_u32 v{V['rw']}, s{S_T0}, v{V['l16']}
    v_add_u32 v{V['pr']}, s{S_T0}, v{V['rw']}
    s_and_b32 s{S_T0}, s{S_WAVE}, 1
    s_lshl_b32 s{S_T0}, s{S_T0}, 3
    v_add_u32 v{V['rr']}, s{S_T0}, v{V['l16']}
    s_mul_i32 s{S_T1}, s{S_WAVE}, {4*28}
    s_add_u32 s{S_T1}, s{S_T1}, s{S_ROLE}
    s_add_u32 s{S_T1}, s{S_T1}, 448
    s_mul_i32 s{S_T1}, s{S_T1}, 14336
    s_add_u32 s{S_T1}, s{S_T1}, {L.WT}
    """)
    toff = lambda u: ((u >> 1)*28 + (u & 1))*14336
    fz = cfg['fused']
    tiles = [(toff(u), [wreg_half(u*7 + k//2, V['w'], k % 2) for k in range(14)]) for u in range(6)]
    ltiles = [(toff(u), [vr(12 + (u-6)*116 + 4*k, 4) if u == 6 else vr(120 + 4*k, 4) for k in range(14)]) for u in (6, 7)]
    if fz:
        a(f"""
        v_bfe_u32 v{LN+4}, v{LN}, 2, 2
        v_mul_u32_u24 v{LN+4}, {14*32}, v{LN+4}
        v_and_b32 v{LN+5}, 3, v{LN}
        v_lshl_add_u32 v{LN+4}, v{LN+5}, 3, v{LN+4}
        s_mul_i32 s{S_T0}, s{S_WAVE}, 56
        s_lshr_b32 s{S_SPIN}, s{S_ROLE}, 2
        s_add_u32 s{S_T0}, s{S_T0}, s{S_SPIN}
        s_add_u32 s{S_T0}, s{S_T0}, 7
        s_lshl_b32 s{S_T0}, s{S_T0}, 5
        v_add_u32 v{LN+4}, s{S_T0}, v{LN+4}
        """)
        wait_flags(a, LN+4, 1, 100)
        load_tiles(a, ltiles + tiles, V['l16'], S_T1, 1, cfg['wfl'], [0])
        wait_flags(a, LN+4, 7, 100)
        load_tiles(a, ltiles + tiles, V['l16'], S_T1, 2, cfg['wfl'], [0])
    else:
        load_tiles(a, ltiles + tiles, V['l16'], S_T1, None, cfg['wfl'], [0], cfg['ccap'])
    if not fz:
        a(team_mode_load(104, 105))
        a(f"v_mov_b32 v106, 0\ns_mov_b32 s{S_CU}, {L.CNT_U}\ns_mov_b32 s{S_CV}, {L.CNT_I}")
        a(f'buffer_load_dword v107, v106, {WSRD}, s{S_CU} offen sc1\nbuffer_load_dword v109, v106, {WSRD}, s{S_CV} offen sc1')
    a('s_waitcnt vmcnt(28)')
    for u in (6, 7):
        for k in range(14):
            a(f"ds_write_b128 v{V['lw']}, {ltiles[u-6][1][k]} offset:{(u-6)*14336+k*1024}")
    a('s_waitcnt lgkmcnt(0)')
    if fz: wait_ln(a, LN, 100)
    a(f"""
    s_mov_b32 s{S_STEP}, 0
    s_mov_b32 s{S_MOFF}, {L.MB_M}
    s_mov_b32 s{S_POFF}, {L.MB_P}
    s_lshl_b32 s{S_GOFF}, s{S_ROLE}, 14
    s_lshl_b32 s{S_T0}, s{S_WAVE}, 12
    s_add_u32 s{S_GOFF}, s{S_GOFF}, s{S_T0}
    s_add_u32 s{S_GOFF}, s{S_GOFF}, {L.U}
    s_lshl_b32 s{S_XOFF}, s{S_ROLE}, 12
    s_add_u32 s{S_XOFF}, s{S_XOFF}, {L.VM}
    s_lshr_b32 s{S_STMP}, s{S_ROLE}, 1
    s_add_u32 s{S_STMP}, s{S_STMP}, 16
    s_lshl_b32 s{S_STMP}, s{S_STMP}, 2
    s_add_u32 s{S_STMP}, s{S_STMP}, s{S_WAVE}
    s_lshl_b32 s{S_STMP}, s{S_STMP}, 12
    s_add_u32 s{S_STMP}, s{S_STMP}, {L.STAMP}
    s_waitcnt vmcnt(0)
    """)
    a(f"""
    v_mov_b32 v{V['one']}, 1
    v_mov_b32 v{V['zero']}, 0
    v_mov_b32 v{V['cu']}, 0
    v_and_b32 v{V['ha']}, {120 if cfg['cutrig'] else 24}, v{V['l8']}
    v_lshrrev_b32 v{V['ha']}, 1, v{V['ha']}
    s_lshl_b32 s{S_T0}, s{S_WAVE}, 4
    s_mul_i32 s{S_T0}, s{S_T0}, {0 if cfg['cutrig'] else 1}
    s_and_b32 s{S_T1}, s{S_ROLE}, 6
    s_lshl_b32 s{S_T1}, s{S_T1}, 6
    s_add_u32 s{S_T0}, s{S_T0}, s{S_T1}
    s_add_u32 s{S_T0}, s{S_T0}, 12288
    v_add_u32 v{V['ha']}, s{S_T0}, v{V['ha']}
    s_lshl_b32 s{S_T0}, s{S_ROLE}, {0 if cfg['cert'] else 1}
    s_add_u32 s{S_T0}, s{S_T0}, s{S_WAVE}
    s_lshl_b32 s{S_T0}, s{S_T0}, 2
    s_add_u32 s{S_T0}, s{S_T0}, {8192 + 7168}
    v_lshlrev_b32 v{V['hw']}, 5, v{V['l8']}
    v_add_u32 v{V['hw']}, s{S_T0}, v{V['hw']}
    s_add_u32 s{S_YD}, s{S_XOFF}, 0x8000000
    v_lshrrev_b32 v{V['hm']}, 1, v{V['l8']}
    v_min_u32 v{V['hm']}, {(27 if cfg['cert'] else 55)*4}, v{V['hm']}
    v_add_u32 v{V['hm']}, 7168, v{V['hm']}
    s_mov_b32 s56, 0
    """)
    if cfg['h64']:
        a(f"""
        v_lshrrev_b32 v{V['hm']}, 3, v{V['l8']}
        v_min_u32 v{V['hm']}, 55, v{V['hm']}
        v_and_b32 v100, 3, v{V['hm']}
        v_lshrrev_b32 v{V['hm']}, 2, v{V['hm']}
        v_lshlrev_b32 v{V['hm']}, 6, v{V['hm']}
        v_lshl_add_u32 v{V['hm']}, v100, 2, v{V['hm']}
        v_add_u32 v{V['hm']}, 7168, v{V['hm']}
        s_lshl_b32 s{S_T0}, s{S_ROLE}, 5
        s_lshl_b32 s{S_T1}, s{S_WAVE}, 2
        s_add_u32 s{S_T0}, s{S_T0}, s{S_T1}
        s_add_u32 s{S_T0}, s{S_T0}, {8192 + 7168}
        v_mov_b32 v{V['hw']}, s{S_T0}
        """)
    if cfg['mlin']:
        x, y = 100, 101
        a(f"""
        v_lshrrev_b32 v{y}, 3, v{V['l8']}
        v_bfe_u32 v{x}, v{y}, 1, 2
        v_mul_u32_u24 v{V['rr']}, 192, v{x}
        v_bfe_u32 v{x}, v{y}, 4, 2
        v_lshl_add_u32 v{V['rr']}, v{x}, 5, v{V['rr']}
        v_and_b32 v{x}, 1, v{y}
        v_lshl_add_u32 v{V['rr']}, v{x}, 4, v{V['rr']}
        v_bfe_u32 v{x}, v{y}, 3, 1
        v_lshl_add_u32 v{V['rr']}, v{x}, 3, v{V['rr']}
        v_lshrrev_b32 v{x}, 4, v{y}
        v_mul_u32_u24 v{V['rw2']}, 192, v{x}
        v_and_b32 v{x}, 15, v{y}
        v_lshl_add_u32 v{V['rw2']}, v{x}, 3, v{V['rw2']}
        s_mul_i32 s{S_T0}, s{S_WAVE}, 1536
        v_add_u32 v{V['rw2']}, s{S_T0}, v{V['rw2']}
        s_and_b32 s{S_T0}, s{S_WAVE}, 1
        s_mul_i32 s{S_T1}, s{S_T0}, 768
        v_add_u32 v{V['rr']}, s{S_T1}, v{V['rr']}
        s_add_u32 s{S_T1}, s{S_ROLE}, s{S_T0}
        s_lshr_b32 s{S_T0}, s{S_T1}, 2
        s_lshl_b32 s{S_T0}, s{S_T0}, 10
        s_and_b32 s{S_T1}, s{S_T1}, 3
        s_lshl_b32 s{S_T1}, s{S_T1}, 7
        s_add_u32 s{S_T0}, s{S_T0}, s{S_T1}
        s_add_u32 s{S_T0}, s{S_T0}, 8192
        v_and_b32 v{x}, 31, v{y}
        v_lshlrev_b32 v{V['mw']}, 2, v{x}
        v_lshrrev_b32 v{x}, 5, v{y}
        v_lshl_add_u32 v{V['mw']}, v{x}, 9, v{V['mw']}
        v_add_u32 v{V['mw']}, s{S_T0}, v{V['mw']}
        """)
    a(f"""
    v_lshrrev_b32 v{V['nw']}, 2, v{V['rw']}
    v_lshrrev_b32 v{V['nr']}, 1, v{V['l8']}
    s_lshl_b32 s{S_MD}, s{S_WAVE}, 11
    s_min_u32 s{S_MD}, s{S_MD}, 5120
    s_mov_b32 s{S_CU}, {L.CNT_U}
    """)
    for k in range(8): a(f"v_mov_b32 v{V['vx']+k}, 0")
    a(f"v_lshrrev_b32 v{V['pmr']}, 1, v{V['rw']}")
    a(f"s_lshl_b32 s{S_T0}, s{S_WAVE}, 2\ns_add_u32 s{S_T0}, s{S_T0}, {LDS_CF}\nv_add_u32 v{V['fw']}, s{S_T0}, v{V['l16']}\nv_mov_b32 v{V['fv']}, 0\nds_write_b32 v{V['fw']}, v{V['fv']}")
    team_mode(a, 104, 105, primed=not fz)
    if cfg['flags']:
        wait_cnt(a, S_CU, 28, 106, primed=not fz)
        a(f's_mov_b32 s{S_CV}, {L.CNT_I}')
        wait_cnt(a, S_CV, 98, 108, primed=not fz)
    for k in range(32): a(f"v_mov_b32 v{V['uf']+k}, 0")

def comb_wave(a, pf, stamps, cfg):
    V = CV; idx = V['idx']; mf = V['mf']; tw = V['tw']; uf = V['uf']; pa = V['pa']
    top = a.newlabel('L_cb_top'); nh0 = a.newlabel('L_nh')
    HT = [10, 11, 166, 167][:cfg['hdepth']]
    def store_vx(base, r):
        return [f"buffer_store_dwordx4 v[{r}:{r+3}], v{V['rw']}, {WSRD}, s{base} offen {cfg['xflags']}",
                f"s_add_u32 s{S_T1}, s{base}, 4096\nbuffer_store_dwordx4 v[{r+4}:{r+7}], v{V['rw']}, {WSRD}, s{S_T1} offen {cfg['xflags']}"]
    lq = Q('lgkmcnt', 15)
    def lread(lam, hf):
        return dsop(f"ds_read_b128 v[{tw+8*(lam%4)+4*hf}:{tw+8*(lam%4)+4*hf+3}], v{V['lw']} offset:{lam*2048+hf*1024}", ('lw', lam))
    def housekeeping_acc(a=a):
        for u in range(8):
            A = V['acc'] + 4*u
            a(f'v_mov_b64 v[{A}:{A+1}], 0\nv_mov_b64 v[{A+2}:{A+3}], 0')
    def housekeeping(a=a, acc=True):
        if acc: housekeeping_acc(a)
        for lam in range(4):
            for hf in range(2): a(lread(lam, hf)(lq))
    uload = lambda k: f"buffer_load_dwordx4 v[{uf+4*k}:{uf+4*k+3}], v{V['l16']}, {WSRD}, s{S_GOFF if k < 4 else S_EOFF} offen offset:{(k%4)*1024} {cfg['xflags']}"
    uorder = [] if cfg['nou'] else [4, 5, 6, 7, 0, 1, 2, 3]
    ue = uorder[:cfg['uearly']]; ul = uorder[cfg['uearly']:]
    housekeeping()
    t = mf
    slow = a.newlabel('L_cms'); back = a.newlabel('L_cmb'); redo = a.newlabel('L_cmr')
    pre = f"""s_add_u32 s{S_EOFF}, s{S_GOFF}, 16384
        s_lshl_b32 s{S_CU}, s{S_STEP}, 7
        s_add_u32 s{S_CU}, s{S_CU}, {L.CNT_U + 128}
        s_add_u32 s{S_T0}, s{S_MOFF}, s{S_MD}
        s_mov_b32 m0, s{S_MD}"""
    a(pre)
    if cfg.get('wgd'): a('s_memrealtime s[96:97]')
    a(f's_branch {top}')
    if cfg['al'] is not None:
        a.raw('    .p2align 6')
        for _ in range(cfg['al'][4]): a.raw('    s_nop 0')
    a(f'{nh0}:\ns_barrier')
    a.label(top)
    stamp(a, stamps, 0)
    if cfg['cdma']:
        a(f"""
        buffer_load_dwordx4 v{V['l16']}, {WSRD}, s{S_T0} offen sc1 lds
        buffer_load_dwordx4 v{V['l16']}, {WSRD}, s{S_T0} offen offset:1024 sc1 lds
        s_mov_b32 s{S_SAFE}, 0
        """)
        if ue: a('s_barrier')
        for k in ue: a(uload(k))
        a(f's_waitcnt vmcnt({len(ue)}) lgkmcnt(0)\ns_barrier\n{back}:')
        def coldr():
            a(f'{redo}:\ns_barrier\ns_mov_b32 s{S_SAFE}, 1\ns_add_u32 s{S_YD}, s{S_XOFF}, 0x8000000')
            if stamps: a(f's_add_u32 s{40+2*8}, s{40+2*8}, 1')
            if cfg.get('wgd'): a('s_add_u32 s84, s84, 1')
            housekeeping()
            poll_m(a, V)
            a(f's_branch {back}')
        a.cold.append(coldr)
    else:
        a(f"""
        buffer_load_dwordx4 v[{t}:{t+3}], v{pa}, {WSRD}, s{S_MOFF} offen sc1
        buffer_load_dwordx4 v[{t+4}:{t+7}], v{pa}, {WSRD}, s{S_MOFF} offen offset:768 sc1
        """)
        if ue: a('s_barrier')
        for k in ue: a(uload(k))
        a(f"""
        s_waitcnt vmcnt({len(ue)+1})
        ds_write_b128 v{pa}, v[{t}:{t+3}]
        v_max3_u32 v{t+8}, v{t}, v{t+1}, v{t+2}
        s_waitcnt vmcnt({len(ue)})
        ds_write_b128 v{pa}, v[{t+4}:{t+7}] offset:768
        v_max3_u32 v{t+8}, v{t+8}, v{t+3}, v{t+4}
        v_max3_u32 v{t+8}, v{t+8}, v{t+5}, v{t+6}
        v_max_u32 v{t+8}, v{t+8}, v{t+7}
        v_cmp_eq_u32 vcc, -1, v{t+8}
        s_cbranch_vccnz {slow}
        s_waitcnt lgkmcnt(0)
        s_barrier
{back}:
        """)
        def coldm():
            a.label(slow)
            if stamps: a(f's_add_u32 s{40+2*8}, s{40+2*8}, 1')
            poll_m(a, V)
            a(f's_branch {back}')
        a.cold.append(coldm)
    lq.drain()
    stamp(a, stamps, 1)
    mrd = [dsop(f"ds_read_b64_tr_b16 v[{mf+4*b+2*hf}:{mf+4*b+2*hf+1}], v{V['l8']} offset:{LDS_M+b*1024+hf*512}", ('mf', b))
           for b in range(7) for hf in range(2)]
    for x in mrd[:cfg['mpre']]: a(x(lq))
    ms = []; last = {}
    rorder = [(u, b) for b in range(7) for u in range(2)] + [(u, b) for u in range(2, 6) for b in range(7)]
    rb = 0
    for p in range(56):
        if p % 4 == 3:
            lam = p // 4; u = 6 + lam // 7; b = lam % 7
            ms.append((SM(V['acc']+4*u, mf+4*b, vr(tw+8*(lam % 4), 8), idx), [('mf', b), ('lw', lam)]))
        else:
            u, b = rorder[rb]; rb += 1
            ms.append((SM(V['acc']+4*u, mf+4*b, wreg(u*7+b, V['w']), idx), [('mf', b)]))
        last[u] = p
    gp = Gaps(56)
    for k, x in enumerate(mrd[cfg['mpre']:]): gp.put('ds', k, x)
    for lam in range(4, 14):
        g = 4*(lam-4) + 3
        g = gp.put('ds', g, lread(lam, 0)) + 1
        gp.put('ds', g, lread(lam, 1))
    g = 0
    for k in ul: g = gp.put('va', g, uload(k)) + cfg['ustep']
    if cfg['flags']:
        g = gp.put('va', g, f"buffer_load_dword v{V['cu']}, v{V['zero']}, {WSRD}, s{S_CU} offen sc1") + 1
    for x in store_vx(S_YD, V['vx']): g = gp.put('va', g, x) + cfg['ustep']
    assert g - cfg['ustep'] < min(last.values()) + 3
    for k in range(len(HT)-1 if cfg['psl'] is None else 0):
        gp.put('ds', 55 - cfg['hpre'] + 4*k, f"buffer_load_dword v{HT[k]}, v{V['ha']}, {WSRD}, s{S_POFF} offen sc1")
    def post(u):
        A = V['acc'] + 4*u; hl = u >> 1; ctl = u & 1
        return ([f'v_pk_add_f32 v[{A}:{A+1}], v[{A}:{A+1}], v[{A+2}:{A+3}]'] if cfg['cpk'] else [f'v_add_f32 v{A}, v{A}, v{A+2}', f'v_add_f32 v{A+1}, v{A+1}, v{A+3}']) + [
                f"v_cvt_pk_bf16_f32 v{V['vx']+4*ctl+hl}, v{A}, v{A+1}"]
    tail = []; gprev = 0
    for u in sorted(last, key=lambda u: last[u]):
        g = max(last[u] + 3, gprev)
        if g + 4 >= 56: tail += post(u); continue
        for x in post(u): g = gp.put('va', g, x) + 1
        gprev = g
        if u == 0: done0 = g
    if cfg['cdma']:
        A0 = V['acc']; N = 168
        g = gp.put('va', done0, f'v_add_f32 v9, v{A0}, v{A0+1}') + 1
        g = gp.put('ds', g, dsop(f"ds_write_b32 v{V['nw']}, v9 offset:{LDS_NAN}", 'nw')) + 4
        gp.force('ds', g, dswait('nw', 's_barrier'))
        g = gp.put('ds', g+1, dsop(f"ds_read2st64_b32 v[{N}:{N+1}], v{V['nr']} offset0:{LDS_NAN//256} offset1:{LDS_NAN//256+1}")) + 1
        g = gp.put('ds', g, dsop(f"ds_read2st64_b32 v[{N+2}:{N+3}], v{V['nr']} offset0:{LDS_NAN//256+2} offset1:{LDS_NAN//256+3}", 'nr')) + 4
        g = gp.put('va', g, dswait('nr', f'v_add_f32 v{N}, v{N}, v{N+2}')) + 1
        g = gp.put('va', g, f'v_add_f32 v{N+1}, v{N+1}, v{N+3}') + 1
        g = gp.put('va', g, f'v_cmp_u_f32 vcc, v{N}, v{N+1}')
        assert g < 54
    emit_stream(a, ms, gp, lq)
    if cfg['cdma']:
        nb = a.newlabel('L_cnb'); nx = a.newlabel('L_cnx')
        a(f's_cbranch_vccnz {nb};nf\n{nx}:;nf')
        a.cold.append(lambda: a(f'{nb}:\ns_nop 7\ns_cmp_eq_u32 s{S_SAFE}, 0\ns_cbranch_scc1 {redo}\ns_branch {nx}'))
    for x in tail: a(x)
    lastl = a.newlabel('L_cbl')
    a(f's_cmp_ge_u32 s{S_STEP}, 63\ns_cbranch_scc1 {lastl}')
    def coldl():
        a.label(lastl)
        for x in store_vx(S_XOFF, V['vx']): a(x)
        a('s_branch L_exit')
    a.cold.append(coldl)
    stamp(a, stamps, 2)
    A = 76
    a(f's_add_u32 s{S_T0}, s{S_POFF}, 8192\ns_mov_b32 s{S_YD}, s{S_XOFF}')
    if stamps and cfg['sdrain']: a('s_waitcnt vmcnt(0)')
    stamp(a, stamps, 3)
    if cfg['psl'] is None:
        jn = a.newlabel('L_jn')
        a(f's_cmp_lg_u32 s{S_WAVE}, 0\ns_cbranch_scc1 {jn}')
        wait_hint(a, V['ha'], S_POFF, HT, delay=cfg['pdelay'], inner=cfg['hinner'], primed=True)
        a(f'{jn}:\ns_barrier')
    else:
        housekeeping(a, False)
        stamp_flush(a, stamps, 11, mf+24)
        if cfg['pw'] is not None:
            tot = cfg['pw'] - (16*cfg['fl'] if stamps else 0)
            for k in range(5): a(f's_nop {max(1, (tot + k) // 5) - 1}')
        else:
            if cfg['psl'] - (cfg['fl'] if stamps else 0) > 0: a(f"s_sleep {cfg['psl'] - (cfg['fl'] if stamps else 0)}")
            if cfg['pdelay']: a(f"s_nop {cfg['pdelay']-1}")
        if cfg['pbar']: a('s_barrier')
    stamp(a, stamps, 6)
    l = a.newlabel('L_pp'); d = a.newlabel('L_ppd'); retry = a.newlabel('L_ppr'); t = 9
    R = A
    B3 = [vr(uf, 8), vr(uf+8, 8), vr(V['itm'], 8)], [vr(uf+16, 8), vr(uf+24, 8), vr(V['itm']+8, 8)]
    mh = f"""s_mov_b64 exec, {1 if cfg['h64'] else 15}
        buffer_store_dword v{V['zero']}, v{V['hw']}, {WSRD}, s{S_MOFF} offen {pf}
        s_mov_b64 exec, -1"""
    def issue(p, a=a):
        a(f"""
        buffer_load_dwordx4 v[{p}:{p+3}], v{V['pr']}, {WSRD}, s{S_POFF} offen sc1
        buffer_load_dwordx4 v[{p+4}:{p+7}], v{V['pr']}, {WSRD}, s{S_POFF} offen offset:1024 sc1
        buffer_load_dwordx2 v[{p+8}:{p+9}], v{V['pmr']}, {WSRD}, s{S_T0} offen sc1
        """)
    def zero(a=a):
        for k in range(4): a(f'v_mov_b64 v[{A+2*k}:{A+2*k+1}], 0')
    def attempt(p, behind, hint_here):
        ex = behind
        a(f's_add_u32 s{S_SPIN}, s{S_SPIN}, 1')
        for k in range(3):
            a(f's_waitcnt vmcnt({2-k+ex})')
            S32 = lambda acc, B: f'v_smfmac_f32_16x16x32_bf16 v[{acc}:{acc+3}], v[{p+8}:{p+9}], {B}, v{idx}'
            a(SM(A, p+4*k, B3[0][k], idx) if k < 2 else S32(A, vr(V['vx'], 4)))
            a(f'v_max_u32 v{t}, v{p}, v{p+2}' if k == 0 else f'v_max3_u32 v{t}, v{t}, v{p+4*k}, v{p+4*k+(2 if k < 2 else 1)}')
            a(SM(A+4, p+4*k, B3[1][k], idx) if k < 2 else S32(A+4, vr(V['vx']+4, 4)))
            if hint_here and k == cfg['mhk']:
                if cfg['mhint'] == 3:
                    a(f"""v_cmp_eq_u32 vcc, -1, v{t}
                    s_cmp_eq_u64 vcc, 0
                    s_cselect_b64 exec, 15, 0
                    buffer_store_dword v{V['zero']}, v{V['hw']}, {WSRD}, s{S_MOFF} offen {pf}
                    s_mov_b64 exec, -1""")
                else: a(mh)
                ex += 1
        a(f'v_cmp_eq_u32 vcc, -1, v{t}')
    a(f's_mov_b32 s{S_SPIN}, 0')
    sub = Asm(); issue(mf, sub); ld3 = [x.text for _, x in sub.items]
    sub = Asm(); zero(sub); sub(f"v_add_u32 v{V['fv']}, 1, v{V['fv']}"); housekeeping_acc(sub); fl = [x.text for _, x in sub.items]
    used = 0
    for k in range(3):
        a(ld3[k])
        if k < 2 and cfg['pst']:
            n_ = min(cfg['pst'], len(fl))
            for x in fl[:n_]: a(x)
            fl = fl[n_:]
            if n_ < cfg['pst']: a(f"s_nop {cfg['pst'] - n_ - 1}")
            used += cfg['pst']
    for x in fl: a(x)
    used += len(fl)
    if cfg['p2']:
        gap = cfg['p2'] + 5 - used
        while gap > 0:
            a(f's_nop {min(gap, 16) - 1}'); gap -= 16
        issue(mf+12)
    if cfg['mhint'] == 0:
        for _ in range(cfg['mhnop']): a('s_nop 3')
        a(mh)
    attempt(mf, (3 if cfg['p2'] else 0) + (cfg['mhint'] == 0), cfg['mhint'] >= 2)
    a(f's_cbranch_vccnz {retry};nf\n{d}:;nf')
    def coldp():
        a(f'{retry}:\ns_nop 7')
        if cfg['p2']:
            a.label(l)
            issue(mf)
            zero()
            attempt(mf+12, 3, cfg['mhint'] == 3)
            a(f's_cbranch_vccz {d}')
            issue(mf+12)
            zero()
            attempt(mf, 3, cfg['mhint'] == 3)
        else:
            a.label(l)
            issue(mf)
            zero()
            attempt(mf, 0, cfg['mhint'] == 3)
        a(f"""
        s_cbranch_vccz {d}
        s_cmp_lt_u32 s{S_SPIN}, s{S_LIM}
        s_cbranch_scc1 {l}
        s_mov_b32 s{S_LIM}, 1
        s_branch {d}
        """)
    a.cold.append(coldp)
    stamp(a, stamps, 4)
    if cfg['mhint'] == 1 and not cfg['cert']: a(mh)
    if stamps: a(f's_mov_b32 s{40+2*7}, s{S_SPIN}')
    if cfg.get('wgd'): a(f's_add_u32 s83, s83, s{S_SPIN}')
    if cfg['flags']: a(f"v_readfirstlane_b32 s{S_CV}, v{V['cu']}")
    hiw = a.newlabel('L_cbh'); rag = a.newlabel('L_rag'); rag2 = a.newlabel('L_rag'); nh = nh0; ny = a.newlabel('L_cny')
    def chores(adv=True):
        if cfg['flags']:
            slow2 = a.newlabel('L_us'); back2 = a.newlabel('L_ub')
            a(f's_cmp_lt_u32 s{S_CV}, 28\ns_cbranch_scc1 {slow2}\n{back2}:')
            def coldu():
                a.label(slow2)
                wait_cnt(a, S_CU, 28, 174)
                a(f's_branch {back2}')
            a.cold.append(coldu)
        if adv: step_advance(a, 458752)
        a(pre)
    def hi_tail():
        w2 = a.newlabel('L_cw2')
        ld = lambda r: f"buffer_load_dword v{r}, v{V['hm']}, {WSRD}, s{S_MOFF} offen sc1"
        a.label(hiw)
        step_advance(a, 458752)
        a(f"""
        s_cmp_eq_u32 s{S_WAVE}, 2
        s_waitcnt lgkmcnt(0)
        s_barrier
        s_cbranch_scc1 {w2}
        {ld(HT[0])}
        """)
        stamp(a, stamps, 5)
        chores(False)
        a(f"s_nop 4\n{ld(HT[1])}\ns_nop 12\n{ld(HT[2])}\ns_nop 12")
        wait_hint(a, V['hm'], S_MOFF, HT, delay=cfg['cdelay'], inner=cfg['hinner'], primed=True)
        a(f's_branch {nh}\n{w2}:')
        if cfg['cq']: a(f"s_sleep {cfg['cq']}")
        stamp(a, stamps, 5)
        chores(False)
        a(f's_branch {nh}')
    a.cold.append(hi_tail)
    a(f"""
    v_pk_add_f32 v[{A}:{A+1}], v[{A}:{A+1}], v[{A+2}:{A+3}]
    ds_write_b64 v{V['rw2']}, v[{A}:{A+1}] offset:{LDS_RED}
    v_pk_add_f32 v[{A+4}:{A+5}], v[{A+4}:{A+5}], v[{A+6}:{A+7}]
    ds_write_b64 v{V['rw2']}, v[{A+4}:{A+5}] offset:{LDS_RED+768}
    s_cmp_ge_u32 s{S_WAVE}, 2
    s_cbranch_scc1 {hiw}
    s_waitcnt lgkmcnt(0)
    s_barrier
    ds_read_b64 v[{R}:{R+1}], v{V['rr']} offset:{LDS_RED}
    ds_read_b64 v[{R+2}:{R+3}], v{V['rr']} offset:{LDS_RED+1536}
    ds_read_b64 v[{R+4}:{R+5}], v{V['rr']} offset:{LDS_RED+3072}
    ds_read_b64 v[{R+6}:{R+7}], v{V['rr']} offset:{LDS_RED+4608}
    s_waitcnt lgkmcnt(2)
    v_pk_add_f32 v[{R}:{R+1}], v[{R}:{R+1}], v[{R+2}:{R+3}]
    s_waitcnt lgkmcnt(0)
    v_pk_add_f32 v[{R+4}:{R+5}], v[{R+4}:{R+5}], v[{R+6}:{R+7}]
    v_pk_add_f32 v[{R}:{R+1}], v[{R}:{R+1}], v[{R+4}:{R+5}]
    v_cvt_pk_bf16_f32 v9, v{R}, v{R+1}
    buffer_store_dword v9, v{V['mw']}, {WSRD}, s{S_MOFF} offen {pf}
    """)
    if cfg['cert']: a(mh)
    stamp(a, stamps, 5)
    a(f"""
    s_cmp_lt_u32 s{S_STEP}, 62
    s_cbranch_scc1 {ny}
    s_add_u32 s{S_T0}, s{S_MOFF}, {L.MB_Y - L.MB_M}
    buffer_store_dword v9, v{V['mw']}, {WSRD}, s{S_T0} offen sc1
{ny}:
    """)
    chores()
    a(f's_branch {nh}')
    while a.cold: a.flush_cold()

def helper_cu(a, cfg):
    V = dict(l8=0, pa=1, idx=2, mf=12); LN = 112
    NP = cfg['npf']; D = cfg['pfd']; PER = cfg['pfper']
    a(f'v_mov_b32 v{LN}, v1')
    team_register(a)
    common_addrs(a, V, LN)
    a(f"""
    v_lshlrev_b32 v4, 7, v{LN}
    v_mov_b32 v3, v4
    v_mov_b32 v5, 0
    v_mov_b32 v6, 14
    s_sub_u32 s{S_ROLE}, s{S_ROLE}, 30
    s_lshl_b32 s{S_EOFF}, s{S_ROLE}, 2
    s_add_u32 s{S_EOFF}, s{S_EOFF}, s{S_WAVE}
    s_mov_b32 s{S_STEP}, 0
    s_mov_b32 s{S_MOFF}, {L.MB_M + 8192}
    s_mov_b32 s{S_CV}, {L.DUMMY + 0x200000}
    s_mul_i32 s{S_GOFF}, s{S_EOFF}, 7168
    s_add_u32 s{S_GOFF}, s{S_GOFF}, {L.XN}
    s_mov_b32 s{S_POFF}, 28672
    s_cmp_lt_u32 s{S_EOFF}, 4
    s_cbranch_scc1 H_t
    s_sub_u32 s{S_GOFF}, s{S_EOFF}, 4
    s_mul_i32 s{S_GOFF}, s{S_GOFF}, 6144
    s_add_u32 s{S_GOFF}, s{S_GOFF}, {L.MB_P}
    s_mov_b32 s{S_POFF}, 16384
    s_cmp_lt_u32 s{S_EOFF}, 6
    s_cbranch_scc1 H_t
    s_mov_b32 s{S_GOFF}, {L.MB_M + 8192}
    s_mov_b32 s{S_POFF}, 8192
    s_cmp_lt_u32 s{S_EOFF}, {7 if cfg['tlb'] else 8}
    s_cbranch_scc1 H_t
    s_mov_b32 s{S_GOFF}, {L.U + cfg['tlb']*458752}
    s_mov_b32 s{S_POFF}, 458752
    v_mul_u32_u24 v3, 7168, v{LN}
H_t:
    """)
    def mtouch():
        a(f'buffer_load_dword v7, v3, {WSRD}, s{S_GOFF} offen sc1\ns_add_u32 s{S_GOFF}, s{S_GOFF}, s{S_POFF}')
    if cfg['fused']: wait_ln(a, LN, 100)
    team_mode(a, V['mf'], V['mf']+1)
    a(f's_mov_b32 s{S_LIM}, {SPIN_MAX*4}')
    a(f"""
    s_getpc_b64 s[70:71]
H_pc:
    s_lshl_b32 s{S_T0}, s{S_EOFF}, 12
    v_lshrrev_b32 v10, 1, v4
    s_add_u32 s70, s70, s{S_T0}
    s_addc_u32 s71, s71, 0
    s_add_u32 s70, s70, L_nothelp-H_pc
    s_addc_u32 s71, s71, 0
    s_mov_b32 s72, s{S_GOFF}
    s_mov_b32 s{S_SPIN}, 0
    s_mov_b32 s73, {L.MB_P}
H_warm:
    s_mov_b32 s{S_GOFF}, s72
    global_load_dword v8, v10, s[70:71] sc1
    """)
    for _ in range(D+1): mtouch()
    a(f"""
    buffer_load_dword v9, v5, {WSRD}, s73 offen sc1
    s_add_u32 s{S_SPIN}, s{S_SPIN}, 1
    s_waitcnt vmcnt(0)
    v_cmp_eq_u32 vcc, -1, v9
    s_cbranch_vccz H_warmed
    s_sleep 8
    s_cmp_lt_u32 s{S_SPIN}, s{S_LIM}
    s_cbranch_scc1 H_warm
H_warmed:
    """)
    mul = {2: (128, 8), 3: (86, 8)}[PER]
    for k in range(NP):
        a(f"""
        s_add_u32 s{S_T0}, s{S_EOFF}, {8*k}
        s_min_u32 s{S_T0}, s{S_T0}, {14*PER-1}
        s_mul_i32 s{S_T1}, s{S_T0}, {mul[0]}
        s_lshr_b32 s{S_T1}, s{S_T1}, {mul[1]}
        s_mul_i32 s{S_T1}, s{S_T1}, {4-PER}
        s_add_u32 s{S_T0}, s{S_T0}, s{S_T1}
        s_lshl_b32 s{60+k}, s{S_T0}, 13
        s_add_u32 s{60+k}, s{60+k}, {L.U}
        """)
    def utouch():
        for k in range(NP):
            a(f'buffer_load_dword v{32+k}, v4, {WSRD}, s{60+k} offen sc1\ns_add_u32 s{60+k}, s{60+k}, 458752')
    a(f's_mov_b32 s{S_CU}, {L.CNT_U}')
    for _ in range(D if NP else 0):
        if cfg['flags']: wait_cnt(a, S_CU, 28, 30)
        utouch()
        a(f's_add_u32 s{S_CU}, s{S_CU}, 128')
    t = V['mf']; pa = V['pa']
    sk = a.newlabel('H_sk'); sk2 = a.newlabel('H_sk'); ok = a.newlabel('H_ok')
    a(f"""
H_top:
    s_mov_b32 s{S_SPIN}, 0
H_poll:
    buffer_load_dwordx4 v[{t}:{t+3}], v{pa}, {WSRD}, s{S_MOFF} offen sc1
    buffer_load_dwordx4 v[{t+4}:{t+7}], v{pa}, {WSRD}, s{S_MOFF} offen offset:768 sc1
    buffer_load_dword v30, v5, {WSRD}, s{S_CU} offen sc1
    s_add_u32 s{S_SPIN}, s{S_SPIN}, 1
    s_waitcnt vmcnt(0)
    v_max3_u32 v{t+8}, v{t}, v{t+1}, v{t+2}
    v_max3_u32 v{t+8}, v{t+8}, v{t+3}, v{t+4}
    v_max3_u32 v{t+8}, v{t+8}, v{t+5}, v{t+6}
    v_max_u32 v{t+8}, v{t+8}, v{t+7}
    v_readfirstlane_b32 s{S_T0}, v30
    v_cmp_eq_u32 vcc, -1, v{t+8}
    s_cbranch_vccz {ok}
    s_sleep {cfg['hsleep']}
    s_cmp_lt_u32 s{S_SPIN}, s{S_LIM}
    s_cbranch_scc1 H_poll
    s_mov_b32 s{S_LIM}, 1
{ok}:
    s_cmp_lg_u32 s{S_ROLE}, 0
    s_cbranch_scc1 {sk}
    s_add_u32 s{S_T1}, s{S_MOFF}, {L.MB_Y - L.MB_M}
    buffer_store_dwordx4 v[{t}:{t+3}], v{pa}, {WSRD}, s{S_T1} offen sc1
    buffer_store_dwordx4 v[{t+4}:{t+7}], v{pa}, {WSRD}, s{S_T1} offen offset:768 sc1
{sk}:
    s_cmp_ge_u32 s{S_STEP}, {63 - D}
    s_cbranch_scc1 {sk2}
    """)
    mtouch()
    if NP:
        sk3 = a.newlabel('H_sk'); sk4 = a.newlabel('H_sk')
        if cfg['flags']: a(f's_cmp_lt_u32 s{S_T0}, 28\ns_cbranch_scc1 {sk3}')
        utouch()
        a(f's_branch {sk4}\n{sk3}:')
        for k in range(NP): a(f's_add_u32 s{60+k}, s{60+k}, 458752')
        a(f'{sk4}:\ns_add_u32 s{S_CU}, s{S_CU}, 128')
    a(f"""
{sk2}:
    s_add_u32 s{S_STEP}, s{S_STEP}, 1
    s_add_u32 s{S_MOFF}, s{S_MOFF}, 8192
    s_cmp_lt_u32 s{S_STEP}, 62
    s_cbranch_scc1 H_top
    s_branch L_exit
    """)

DEFAULT_CFG = dict(ba=[35, 35, 34, 34], bak=3, bb=[53, 53, 0, 0], xflags='', ssleep=[2, 2, 2, 0], csleep=0, psleep=0, touch=1,
                   nou=0, nox=0, cflush=1, flags=0, ustep=3, hsleep=2, mdelay=5, pdelay=1, phint=9, lead=[4, 1], pnop=[0, 8], b5nop=2, npf=0, pfper=2, hdepth=4, hpre=10, psl=3, fl=1, mhk=0, px=9, quiet=7, cq=1, al=[0, 0, 0, 3, 1], prio=[0, 0, 0, 0], wfl='', fused=0, cpk=0, h64=0, mlin=1, pst=0, cert=0, b3s=0, reds=0, pw=50, fin1=0, tlb=0, xin=0, xstep=3, xs=2, xw=[(0, 9), (9, 18), (18, 28), (0, 0)], pbar=1, scap=None, ccap=None, m2=0, mdma=1, m2d=0, msamp=0, cdma=1, m2w=10, p2=32, cutrig=1, hinner=2, uearly=4, mhint=1, mhnop=0, sdrain=0, pfd=3, mpre=6, chint=1, cdelay=22)

def team_body(a, stamps=False, cfg=None):
    cfg = dict(DEFAULT_CFG, **(cfg or {}))
    a(f's_cmp_lt_u32 s{S_ROLE}, 30\ns_cbranch_scc1 L_nothelp')
    helper_cu(a, cfg)
    a.label('L_nothelp')
    a(f's_cmp_ge_u32 s{S_ROLE}, 16\ns_cbranch_scc1 L_comb')
    score_setup(a, stamps, cfg)
    for fast in (1, 0):
        a(f's_cmp_lg_u32 s{S_FAST}, {fast}\ns_cbranch_scc1 L_sc_next{fast}')
        for w in range(4):
            if w < 3:
                a(f's_cmp_lg_u32 s{S_WAVE}, {w}\ns_cbranch_scc1 L_sc{fast}_n{w}')
            score_wave(a, w, '' if fast else 'sc1', stamps, cfg)
            if w < 3: a.label(f'L_sc{fast}_n{w}')
        a.label(f'L_sc_next{fast}')
    a('s_branch L_exit')
    a.label('L_comb')
    comb_setup(a, stamps, cfg)
    for fast in (1, 0):
        a(f's_cmp_lg_u32 s{S_FAST}, {fast}\ns_cbranch_scc1 L_cb_next{fast}')
        comb_wave(a, '' if fast else 'sc1', stamps, cfg)
        a.label(f'L_cb_next{fast}')
    a('s_branch L_exit')
```

```python
from asmlib import *
import layout as L

SENT = -1
S_WS = 8
S_DBG = 12
S_ROLE = 16
S_WAVE = 17
S_XCC = 18
S_STEP = 19
S_FAST = 20
S_MOFF = 21; S_POFF = 22; S_EOFF = 23; S_GOFF = 24; S_XOFF = 25; S_T0 = 26; S_T1 = 27; S_SPIN = 28; S_LIM = 29
S_EXEC = 30
S_STMP = 32
S_TM = 34
SPIN_MAX = 20000
NTEAM = 32

LDS_M = 0
LDS_T = 7168
LDS_FL = 14336
LDS_VD = 18432
LDS_X = 20480
LDS_CF = 14336
LDS_NAN = 13312
LDS_RED = 7168
LDS_BW = 16384
LDS_ROLE = 160*1024 - 16

def prologue(a, stamps, pool_off=0, scatter=False, code=1, guess=0):
    if code:
        a('s_getpc_b64 s[40:41]\nM_pc:\nv_lshlrev_b32 v12, 7, v0\nglobal_load_dword v255, v12, s[40:41]')
        a('v_add_u32 v12, 32768, v12\nv_min_u32 v11, L_end-M_pc, v12\nglobal_load_dword v255, v11, s[40:41]')
    a(f'''
    s_cmp_ge_u32 s2, 256
    s_cbranch_scc1 L_end
    s_load_dwordx2 s[4:5], s[0:1], 96
    s_load_dwordx2 s[6:7], s[0:1], 88
    s_getreg_b32 s{S_XCC}, hwreg(HW_REG_XCC_ID, 0, 4)
    v_lshrrev_b32 v2, 6, v0
    v_and_b32 v1, 63, v0
    v_readfirstlane_b32 s{S_WAVE}, v2
    s_and_b32 s{S_XCC}, s{S_XCC}, 7
    s_waitcnt lgkmcnt(0)
    s_mov_b32 s{S_WS}, s4
    s_and_b32 s{S_WS+1}, s5, 0xffff
    s_mov_b32 s{S_WS+2}, {L.WS_BYTES}
    s_mov_b32 s{S_WS+3}, 0x20000
    s_mov_b32 s{S_DBG}, s6
    s_and_b32 s{S_DBG+1}, s7, 0xffff
    s_mov_b32 s{S_DBG+2}, 256
    s_mov_b32 s{S_DBG+3}, 0x20000
    v_mov_b32 v4, {LDS_ROLE}
    ''')
    if guess:
        a(f'''
        s_cmp_lg_u32 s{S_XCC}, 0
        s_cbranch_scc1 L_ng
        s_lshr_b32 s{S_T0}, s2, 3
        s_cmp_ge_u32 s{S_T0}, 30
        s_cbranch_scc1 L_ng
        s_mul_i32 s{S_T1}, s{S_T0}, 28
        s_add_u32 s{S_T1}, s{S_T1}, s{S_WAVE}
        s_mov_b32 s{S_STEP}, {4*14336}
        s_cmp_lt_u32 s{S_T0}, 16
        s_cbranch_scc1 L_gs
        s_lshl_b32 s{S_T1}, s{S_T0}, 1
        s_mul_i32 s{S_T0}, s{S_WAVE}, 112
        s_add_u32 s{S_T1}, s{S_T1}, s{S_T0}
        s_add_u32 s{S_T1}, s{S_T1}, {448 - 32 + 84}
        s_mov_b32 s{S_STEP}, 14336
L_gs:
        s_mul_i32 s{S_T1}, s{S_T1}, 14336
        s_add_u32 s{S_T1}, s{S_T1}, {L.WT}
        v_min_u32 v5, 55, v1
        v_lshlrev_b32 v5, 7, v5
        ''')
        for k in range(guess):
            a(f's_add_u32 s{S_T0}, s{S_T1}, 7168')
            a(f'buffer_load_dword v255, v5, s[{S_WS}:{S_WS+3}], s{S_T1} offen\nbuffer_load_dword v255, v5, s[{S_WS}:{S_WS+3}], s{S_T0} offen')
            a(f's_add_u32 s{S_T1}, s{S_T1}, s{S_STEP}')
        a.label('L_ng')
    a(f'''
    s_cmp_lg_u32 s{S_WAVE}, 0
    s_cbranch_scc1 L_role_wait
    s_mov_b64 exec, 1
    s_mov_b32 s{S_T0}, 0
L_role_try:
    {f's_lshr_b32 s{S_T1}, s2, 5' if scatter else f's_mov_b32 s{S_T1}, s{S_XCC}'}
    s_add_u32 s{S_T1}, s{S_T1}, s{S_T0}
    s_and_b32 s{S_T1}, s{S_T1}, 7
    s_lshl_b32 s{S_ROLE}, s{S_T1}, 7
    s_add_u32 s{S_ROLE}, s{S_ROLE}, {L.CNT_P + pool_off}
    v_mov_b32 v2, s{S_ROLE}
    v_mov_b32 v3, 1
    buffer_atomic_add v3, v2, s[{S_WS}:{S_WS+3}], 0 offen sc0
    s_waitcnt vmcnt(0)
    v_readfirstlane_b32 s{S_ROLE}, v3
    s_cmp_lt_u32 s{S_ROLE}, 32
    s_cbranch_scc1 L_role_got
    s_add_u32 s{S_T0}, s{S_T0}, 1
    s_cmp_lt_u32 s{S_T0}, 8
    s_cbranch_scc1 L_role_try
    s_mov_b32 s{S_ROLE}, 31
    s_mov_b32 s{S_T1}, 0
L_role_got:
    s_lshl_b32 s{S_T1}, s{S_T1}, 5
    s_add_u32 s{S_ROLE}, s{S_ROLE}, s{S_T1}
    v_mov_b32 v2, s{S_ROLE}
    ds_write_b32 v4, v2
    s_mov_b64 exec, -1
    s_waitcnt lgkmcnt(0)
L_role_wait:
    s_barrier
    ds_read_b32 v2, v4
    s_waitcnt lgkmcnt(0)
    v_readfirstlane_b32 s{S_ROLE}, v2
    ''')

FSL = [8, 32]
def wait_flags(a, vaddr, need, t, n=1):
    l = a.newlabel('L_wf'); d = a.newlabel('L_wfd')
    regs = [t] + [t+4+2*k for k in range(n-1)]
    a(f"""
    s_mov_b32 s{S_SPIN}, 0
    s_mov_b32 s{S_EXEC}, {L.FL}
    s_add_u32 s{S_EXEC+1}, s80, {need}
{l}:
    """)
    for k, r in enumerate(regs):
        a(f'buffer_load_dwordx2 v[{r}:{r+1}], v{vaddr}, s[{S_WS}:{S_WS+3}], s{S_EXEC} offen offset:{k*512} sc1')
    a(f's_add_u32 s{S_SPIN}, s{S_SPIN}, 1\ns_waitcnt vmcnt(0)')
    for k, r in enumerate(regs):
        a(f"""
        v_subrev_u32 v{r}, s{S_EXEC+1}, v{r}
        v_xor_b32 v{r+1}, s81, v{r+1}
        v_lshl_or_b32 v{t+2}, v{r+1}, 3, v{r+1}
        v_or_b32 v{r}, v{r}, v{t+2}
        """)
        if k: a(f'v_max_u32 v{t}, v{t}, v{r}')
    a(f"""
    v_cmp_lt_u32 vcc, {7 - need}, v{t}
    s_cbranch_vccz {d}
    s_sleep {FSL[n > 1]}
    s_cmp_lt_u32 s{S_SPIN}, {SPIN_MAX*4}
    s_cbranch_scc1 {l}
{d}:
    """)

def prologue_fused(a):
    a(f"""
    s_getreg_b32 s{S_XCC}, hwreg(HW_REG_XCC_ID, 0, 4)
    s_mov_b32 s{S_WAVE}, s20
    s_and_b32 s{S_XCC}, s{S_XCC}, 7
    s_mov_b32 s{S_DBG}, s56
    s_mov_b32 s{S_DBG+1}, s57
    s_mov_b32 s{S_DBG+2}, 256
    s_mov_b32 s{S_DBG+3}, 0x20000
    v_mov_b32 v4, {LDS_ROLE}
    s_cmp_lg_u32 s{S_WAVE}, 0
    s_barrier
    s_cbranch_scc1 L_role_wait
    s_mov_b64 exec, 1
    s_mov_b32 s{S_T0}, 0
    s_mov_b32 s{S_T1}, s{S_XCC}
    v_mov_b32 v3, v250
    s_branch L_role_see
L_role_try:
    s_add_u32 s{S_T1}, s{S_XCC}, s{S_T0}
    s_and_b32 s{S_T1}, s{S_T1}, 7
    s_lshl_b32 s{S_ROLE}, s{S_T1}, 2
    v_mov_b32 v2, s{S_ROLE}
    v_mov_b32 v3, 1
    buffer_atomic_add v3, v2, s[{S_DBG}:{S_DBG+3}], 0 offen sc0
    s_waitcnt vmcnt(0)
L_role_see:
    v_readfirstlane_b32 s{S_ROLE}, v3
    s_cmp_lt_u32 s{S_ROLE}, 32
    s_cbranch_scc1 L_role_got
    s_add_u32 s{S_T0}, s{S_T0}, 1
    s_cmp_lt_u32 s{S_T0}, 8
    s_cbranch_scc1 L_role_try
    s_mov_b32 s{S_ROLE}, 31
    s_mov_b32 s{S_T1}, 0
L_role_got:
    s_lshl_b32 s{S_T1}, s{S_T1}, 5
    s_add_u32 s{S_ROLE}, s{S_ROLE}, s{S_T1}
    v_mov_b32 v2, s{S_ROLE}
    ds_write_b32 v4, v2
    s_mov_b64 exec, -1
    s_waitcnt lgkmcnt(0)
L_role_wait:
    s_barrier
    ds_read_b32 v2, v4
    s_waitcnt lgkmcnt(0)
    v_readfirstlane_b32 s{S_ROLE}, v2
    """)

def wait_ln(a, lane, t, sleep=8):
    l = a.newlabel('L_wa'); d = a.newlabel('L_wad')
    a(f"""
    s_lshl_b32 s{S_T0}, s{S_WAVE}, 13
    s_add_u32 s{S_T0}, s{S_T0}, {L.FL}
    s_add_u32 s{S_T1}, s80, 7
    v_lshlrev_b32 v{t+8}, 7, v{lane}
    s_mov_b32 s{S_SPIN}, 0
{l}:
    buffer_load_dwordx4 v[{t}:{t+3}], v{t+8}, s[{S_WS}:{S_WS+3}], s{S_T0} offen sc1
    buffer_load_dwordx4 v[{t+4}:{t+7}], v{t+8}, s[{S_WS}:{S_WS+3}], s{S_T0} offen offset:16 sc1
    s_add_u32 s{S_SPIN}, s{S_SPIN}, 1
    s_waitcnt vmcnt(0)
    """)
    for k in range(4):
        a(f'v_xor_b32 v{t+2*k}, s{S_T1}, v{t+2*k}\nv_xor_b32 v{t+2*k+1}, s81, v{t+2*k+1}')
    a(f"""
    v_or3_b32 v{t}, v{t}, v{t+1}, v{t+2}
    v_or3_b32 v{t+3}, v{t+3}, v{t+4}, v{t+5}
    v_or3_b32 v{t}, v{t}, v{t+6}, v{t+7}
    v_or_b32 v{t}, v{t}, v{t+3}
    v_cmp_ne_u32 vcc, 0, v{t}
    s_cbranch_vccz {d}
    s_sleep {sleep}
    s_cmp_lt_u32 s{S_SPIN}, {SPIN_MAX*4}
    s_cbranch_scc1 {l}
{d}:
    s_barrier
    """)

STAGE1 = (0, 4, 8, 11)
def load_tiles(a, tiles, vaddr, sbase, stage, flags, bud, cap=None):
    for off, dsts in tiles:
        cur = None
        for k in range(14):
            if stage is not None and (k in STAGE1) != (stage == 1): continue
            if cur != k // 4:
                cur = k // 4
                a(f's_add_u32 s{S_T0}, s{sbase}, {off + cur*4096}')
            a(f'buffer_load_dwordx4 {dsts[k]}, v{vaddr}, s[{S_WS}:{S_WS+3}], s{S_T0} offen offset:{(k%4)*1024} {flags}')
            bud[0] += 1
            if cap is not None:
                if bud[0] > cap: a(f's_waitcnt vmcnt({cap})')
            elif bud[0] >= 56:
                a('s_waitcnt vmcnt(28)'); bud[0] = 28

def team_register(a):
    l = a.newlabel('L_reg')
    a(f'''
    s_cmp_lg_u32 s{S_WAVE}, 0
    s_cbranch_scc1 {l}
    s_cmp_eq_u32 s{S_XCC}, 0
    s_cselect_b32 s{S_T0}, 1, 0x10001
    s_mov_b64 exec, 1
    v_mov_b32 v2, 64
    v_mov_b32 v3, s{S_T0}
    buffer_atomic_add v3, v2, s[{S_DBG}:{S_DBG+3}], 0 offen
    s_mov_b64 exec, -1
{l}:
    ''')

def team_mode_load(vt0, vt1):
    return f'v_mov_b32 v{vt0}, 64\nbuffer_load_dword v{vt1}, v{vt0}, s[{S_DBG}:{S_DBG+3}], 0 offen sc1'

def team_mode(a, vt0, vt1, primed=False):
    l = a.newlabel('L_mode'); d = a.newlabel('L_moded'); p = a.newlabel('L_modep')
    a(f'''
    s_mov_b32 s{S_SPIN}, 0
    {f's_branch {p}' if primed else ''}
{l}:
    {team_mode_load(vt0, vt1)}
{p}:
    s_waitcnt vmcnt(0)
    v_readfirstlane_b32 s{S_T0}, v{vt1}
    s_and_b32 s{S_T1}, s{S_T0}, 0xffff
    s_cmp_ge_u32 s{S_T1}, {NTEAM}
    s_cbranch_scc1 {d}
    s_sleep 2
    s_add_u32 s{S_SPIN}, s{S_SPIN}, 1
    s_cmp_lt_u32 s{S_SPIN}, {SPIN_MAX}
    s_cbranch_scc1 {l}
    s_mov_b32 s{S_T0}, 0x10000
{d}:
    s_lshr_b32 s{S_T0}, s{S_T0}, 16
    s_cmp_eq_u32 s{S_T0}, 0
    s_cselect_b32 s{S_FAST}, 1, 0
    s_mov_b32 s{S_LIM}, {SPIN_MAX}
    ''')

def stamp(a, stamps, idx, vt=None):
    if not stamps: return
    a(f's_memtime s[{40+2*idx}:{41+2*idx}]')
    if idx == 2: a('s_memrealtime s[60:61]')

def stamp_flush(a, stamps, n, vt):
    if not stamps: return
    a('s_waitcnt lgkmcnt(0)')
    for k in range(n):
        a(f'v_writelane_b32 v{vt}, s{40+2*k}, {k}')
    a(f"""
    v_lshrrev_b32 v{vt+1}, 1, v0
    s_mov_b64 exec, {(1 << n) - 1}
    buffer_store_dword v{vt}, v{vt+1}, s[{S_WS}:{S_WS+3}], s{S_STMP} offen
    s_mov_b64 exec, -1
    """)

def wreg(wb, vbase):
    return ar(8*wb, 8) if wb < 32 else vr(vbase + 8*(wb-32), 8)
def wreg_half(wb, vbase, half):
    return ar(8*wb + 4*half, 4) if wb < 32 else vr(vbase + 8*(wb-32) + 4*half, 4)

def xlane4(a, op, x, t):
    a(f'''
    v_mov_b32 v{t}, v{x}
    v_permlane16_swap_b32 v{x}, v{t}
    {op} v{x}, v{x}, v{t}
    v_mov_b32 v{t}, v{x}
    v_permlane32_swap_b32 v{x}, v{t}
    {op} v{x}, v{x}, v{t}
    ''')

QP = 'quad_perm:[2,3,0,1] row_mask:0xf bank_mask:0xf'

def read_mf(a, V):
    for b in range(7):
        a(f"ds_read_b64_tr_b16 v[{V['mf']+4*b}:{V['mf']+4*b+1}], v{V['l8']} offset:{LDS_M+b*1024}")
        a(f"ds_read_b64_tr_b16 v[{V['mf']+4*b+2}:{V['mf']+4*b+3}], v{V['l8']} offset:{LDS_M+b*1024+512}")

def SM(acc, A, B, idx):
    return f'v_smfmac_f32_16x16x64_bf16 v[{acc}:{acc+3}], v[{A}:{A+3}], {B}, v{idx}'


class Q:
    def __init__(self, name, cap):
        self.name = name; self.n = 0; self.tags = {}; self.done = 0; self.cap = cap
    def issue(self, tag=None):
        self.n += 1
        if tag is not None: self.tags[tag] = self.n
    def wait(self, tag):
        k = self.tags[tag]
        if k <= self.done: return ''
        self.done = k
        return 's_waitcnt %s(%d)' % (self.name, min(self.n - k, self.cap))
    def drain(self):
        self.done = self.n
        return 's_waitcnt %s(0)' % self.name

WSRD = f's[{S_WS}:{S_WS+3}]'

def poll_m(a, V, sleep=0):
    t = V['mf']; pa = V['pa']
    l = a.newlabel('L_pm'); d = a.newlabel('L_pmd')
    a(f"""
    s_mov_b32 s{S_SPIN}, 0
{l}:
    buffer_load_dwordx4 v[{t}:{t+3}], v{pa}, {WSRD}, s{S_MOFF} offen sc1
    buffer_load_dwordx4 v[{t+4}:{t+7}], v{pa}, {WSRD}, s{S_MOFF} offen offset:768 sc1
    s_add_u32 s{S_SPIN}, s{S_SPIN}, 1
    s_waitcnt vmcnt(1)
    ds_write_b128 v{pa}, v[{t}:{t+3}]
    v_max3_u32 v{t+8}, v{t}, v{t+1}, v{t+2}
    s_waitcnt vmcnt(0)
    ds_write_b128 v{pa}, v[{t+4}:{t+7}] offset:768
    v_max3_u32 v{t+8}, v{t+8}, v{t+3}, v{t+4}
    v_max3_u32 v{t+8}, v{t+8}, v{t+5}, v{t+6}
    v_max_u32 v{t+8}, v{t+8}, v{t+7}
    v_cmp_eq_u32 vcc, -1, v{t+8}
    s_cbranch_vccz {d}
    {'s_sleep %d' % sleep if sleep else ''}
    s_cmp_lt_u32 s{S_SPIN}, s{S_LIM}
    s_cbranch_scc1 {l}
    s_mov_b32 s{S_LIM}, 1
{d}:
    s_waitcnt lgkmcnt(0)
    s_barrier
    """)

def poll_m2(a, V, gap, x):
    pa = V['pa']; sets = (V['acc']+8, V['acc']+16)
    l = a.newlabel('L_pm'); d = a.newlabel('L_pmd')
    def issue(t):
        a(f"""
        buffer_load_dwordx4 v[{t}:{t+3}], v{pa}, {WSRD}, s{S_MOFF} offen sc1
        buffer_load_dwordx4 v[{t+4}:{t+7}], v{pa}, {WSRD}, s{S_MOFF} offen offset:768 sc1
        """)
    def check(t):
        a(f"""
        s_add_u32 s{S_SPIN}, s{S_SPIN}, 1
        s_waitcnt vmcnt(3)
        ds_write_b128 v{pa}, v[{t}:{t+3}]
        v_max3_u32 v{x}, v{t}, v{t+1}, v{t+2}
        s_waitcnt vmcnt(2)
        ds_write_b128 v{pa}, v[{t+4}:{t+7}] offset:768
        v_max3_u32 v{x}, v{x}, v{t+3}, v{t+4}
        v_max3_u32 v{x}, v{x}, v{t+5}, v{t+6}
        v_max_u32 v{x}, v{x}, v{t+7}
        v_cmp_eq_u32 vcc, -1, v{x}
        """)
    a(f's_mov_b32 s{S_SPIN}, 0')
    issue(sets[0])
    while gap > 0:
        a(f's_nop {min(gap, 16) - 1}'); gap -= 16
    issue(sets[1]); check(sets[0])
    a(f's_cbranch_vccnz {l}\n{d}:\ns_waitcnt lgkmcnt(0)\ns_barrier')
    def cold():
        a.label(l)
        issue(sets[0]); check(sets[1])
        a(f's_cbranch_vccz {d}')
        issue(sets[1]); check(sets[0])
        a(f"""
        s_cbranch_vccz {d}
        s_cmp_lt_u32 s{S_SPIN}, s{S_LIM}
        s_cbranch_scc1 {l}
        s_mov_b32 s{S_LIM}, 1
        s_branch {d}
        """)
    a.cold.append(cold)

def wait_hint(a, vaddr, soff, regs, imm=0, delay=0, gap=12, inner=8, fill=None, primed=False):
    n = len(regs)
    l = a.newlabel('L_h'); d = a.newlabel('L_hd')
    ld = lambda r: f'buffer_load_dword v{r}, v{vaddr}, {WSRD}, s{soff} offen offset:{imm} sc1'
    a(f's_mov_b32 s{S_SPIN}, 0')
    fill = list(fill or [])
    per = -(-len(fill) // (n-1))
    for k in range(0 if primed else n-1):
        a(ld(regs[k]))
        for x in fill[k*per:(k+1)*per]: a(x)
        if per < gap: a(f's_nop {gap - per}')
    a.label(l)
    for k in range(n):
        a(f"""
        {ld(regs[(k+n-1) % n])}
        s_waitcnt vmcnt({n-1})
        v_cmp_eq_u32 vcc, -1, v{regs[k]}
        s_cbranch_vccz {d}
        s_nop {inner}
        """)
    a(f"""
    s_add_u32 s{S_SPIN}, s{S_SPIN}, 1
    s_cmp_lt_u32 s{S_SPIN}, s{S_LIM}
    s_cbranch_scc1 {l}
{d}:
    """)
    while delay > 0:
        a(f's_nop {min(delay, 16) - 1}'); delay -= 16

def wait_cnt(a, off_sgpr, target, vt, sleep=4, primed=False):
    l = a.newlabel('L_wc'); d = a.newlabel('L_wcd'); p = a.newlabel('L_wcp')
    a(f"""
    s_mov_b32 s{S_SPIN}, 0
    v_mov_b32 v{vt}, 0
    {f's_branch {p}' if primed else ''}
{l}:
    buffer_load_dword v{vt+1}, v{vt}, {WSRD}, s{off_sgpr} offen sc1
{p}:
    s_add_u32 s{S_SPIN}, s{S_SPIN}, 1
    s_waitcnt vmcnt(0)
    v_readfirstlane_b32 s{S_T0}, v{vt+1}
    s_cmp_ge_u32 s{S_T0}, {target}
    s_cbranch_scc1 {d}
    s_sleep {sleep}
    s_cmp_lt_u32 s{S_SPIN}, s{S_LIM}
    s_cbranch_scc1 {l}
    s_mov_b32 s{S_LIM}, 1
{d}:
    """)

def img_addr(a, dst, t, lane):
    a(f"""
    v_bfe_u32 v{dst}, v{lane}, 3, 1
    v_lshlrev_b32 v{dst}, 9, v{dst}
    v_bfe_u32 v{t}, v{lane}, 2, 1
    v_lshl_add_u32 v{dst}, v{t}, 6, v{dst}
    v_and_b32 v{t}, 1, v{lane}
    v_lshl_add_u32 v{dst}, v{t}, 5, v{dst}
    v_lshrrev_b32 v{t}, 4, v{lane}
    v_lshl_add_u32 v{dst}, v{t}, 3, v{dst}
    v_bfe_u32 v{t}, v{lane}, 1, 1
    v_lshl_add_u32 v{dst}, v{t}, 2, v{dst}
    """)

def common_addrs(a, V, LN):
    a(f"""
    v_lshlrev_b32 v{V['l8']}, 3, v{LN}
    s_mul_i32 s{S_T0}, s{S_WAVE}, {112*16}
    v_lshlrev_b32 v{V['pa']}, 4, v{LN}
    v_add_u32 v{V['pa']}, s{S_T0}, v{V['pa']}
    v_and_b32 v{LN+1}, 2, v{LN}
    v_cmp_ne_u32 vcc, 0, v{LN+1}
    v_mov_b32 v{LN+1}, 0x4444
    v_mov_b32 v{LN+2}, 0xeeee
    v_cndmask_b32 v{V['idx']}, v{LN+1}, v{LN+2}, vcc
    """)

def load_1k_run(a, dsts, vaddr, sbase, flags='', budget=None):
    for i, d in enumerate(dsts):
        if i and i % 4 == 0:
            a(f's_add_u32 s{sbase}, s{sbase}, 4096')
        a(f'buffer_load_dwordx4 {d}, v{vaddr}, {WSRD}, s{sbase} offen offset:{(i%4)*1024} {flags}')
        if budget is not None:
            budget[0] += 1
            if budget[0] >= 56:
                a('s_waitcnt vmcnt(28)'); budget[0] = 28

class Gaps:
    def __init__(self, n):
        self.ds = [[] for _ in range(n)]; self.va = [[] for _ in range(n)]; self.pre = [[] for _ in range(n)]
        self.n = n
    def put(self, kind, g, text, excl=False):
        while g < self.n - 1:
            if excl:
                if not self.ds[g] and not self.va[g]: break
            else:
                lst = self.ds[g] if kind == 'ds' else self.va[g]
                other = self.va[g] if kind == 'ds' else self.ds[g]
                if not lst and not (other and other[-1][1]): break
            g += 1
        (self.ds if kind == 'ds' else self.va)[g].append((text, excl))
        return g
    def force(self, kind, g, text):
        (self.ds if kind == 'ds' else self.va)[min(g, self.n-1)].append((text, False))

def emit_stream(a, mf, gp, lq, pre=None):
    for i, (m, tags) in enumerate(mf):
        for tg in tags:
            w = lq.wait(tg)
            if w: a(w)
        a(m)
        for lst in (gp.ds[i], gp.va[i]):
            for x, _ in lst:
                t = x(lq) if callable(x) else x
                if t: a(t)

def dsop(text, tag=None):
    def f(lq):
        lq.issue(tag); return text
    return f
def dswait(tag, then=''):
    def f(lq):
        return lq.wait(tag) + '\n' + then
    return f

SV = dict(l8=0, pa=1, idx=2, k1=3, mf=12, acc=40, w=64)
def tile_of(w, u):
    if u < 5: return (u, w)
    order = {(0, 5): (5, 0), (1, 5): (5, 1), (2, 5): (5, 2), (2, 6): (5, 3), (0, 6): (6, 0), (1, 6): (6, 1), (0, 7): (6, 2), (1, 7): (6, 3)}
    return order[(w, u)]
NUNIT = [8, 8, 7, 5]
F = dict(l16=4, px=5, pm=6, mk0=7, mk1=8, mk2=9, wz=10, xf=88, tf=200, sa=228, t=240)

def score_setup(a, stamps, cfg):
    V = SV; LN = 44
    a(f'v_mov_b32 v{LN}, v1')
    team_register(a)
    common_addrs(a, V, LN)
    img_addr(a, V['k1'], LN+1, LN)
    g, cc, par, ib, t = LN+1, LN+2, LN+3, LN+4, LN+5
    a(f"""
    v_lshlrev_b32 v{F['l16']}, 4, v{LN}
    v_lshrrev_b32 v{g}, 4, v{LN}
    v_bfe_u32 v{cc}, v{LN}, 2, 2
    v_bfe_u32 v{par}, v{LN}, 1, 1
    v_and_b32 v{ib}, 1, v{LN}
    v_and_b32 v{t}, 15, v{LN}
    v_lshlrev_b32 v{F['px']}, 4, v{t}
    v_lshrrev_b32 v{t}, 1, v{g}
    v_lshl_add_u32 v{F['px']}, v{t}, 8, v{F['px']}
    v_and_b32 v{t}, 1, v{g}
    v_lshl_add_u32 v{F['px']}, v{t}, 3, v{F['px']}
    s_and_b32 s{S_T0}, s{S_ROLE}, 1
    s_lshl_b32 s{S_T0}, s{S_T0}, 4
    s_lshr_b32 s{S_T1}, s{S_ROLE}, 2
    s_lshl_b32 s{S_T1}, s{S_T1}, 9
    s_add_u32 s{S_T0}, s{S_T0}, s{S_T1}
    s_and_b32 s{S_T1}, s{S_ROLE}, 2
    s_lshl_b32 s{S_T1}, s{S_T1}, 1
    s_add_u32 s{S_T0}, s{S_T0}, s{S_T1}
    s_add_u32 s{S_T0}, s{S_T0}, 8192
    v_and_b32 v{F['pm']}, 0xffffffef, v{V['l8']}
    v_add_u32 v{F['pm']}, s{S_T0}, v{F['pm']}
    s_lshl_b32 s{S_T0}, s{S_ROLE}, 9
    v_add_u32 v{F['px']}, s{S_T0}, v{F['px']}
    v_lshlrev_b32 v{t}, 4, v{ib}
    v_mov_b32 v{F['mk2']}, 0xffff
    v_lshlrev_b32 v{F['mk2']}, v{t}, v{F['mk2']}
    v_cmp_eq_u32 vcc, v{cc}, v{g}
    v_mov_b32 v{t}, 0
    v_cndmask_b32 v{F['mk2']}, v{t}, v{F['mk2']}, vcc
    v_cmp_eq_u32 vcc, 0, v{par}
    v_mov_b32 v{t+1}, 0xff800000
    v_cndmask_b32 v{F['mk0']}, v{t}, v{F['mk2']}, vcc
    v_cndmask_b32 v{F['mk1']}, v{F['mk2']}, v{t}, vcc
    v_cndmask_b32 v{F['wz']}, v{t+1}, v{t}, vcc
    s_mul_i32 s{S_T1}, s{S_ROLE}, {28*14336}
    s_add_u32 s{S_T1}, s{S_T1}, {L.WT}
    """)
    done = a.newlabel('L_sw')
    fz = cfg['fused']
    if fz:
        a(f"v_min_u32 v{LN+8}, 27, v{LN}\nv_lshlrev_b32 v{LN+8}, 3, v{LN+8}\ns_mul_i32 s{S_T0}, s{S_ROLE}, {14*32}\nv_add_u32 v{LN+8}, s{S_T0}, v{LN+8}")
        wait_flags(a, LN+8, 1, LN+10)
    for w in range(4):
        nx = a.newlabel('L_swn')
        if w < 3: a(f's_cmp_lg_u32 s{S_WAVE}, {w}\ns_cbranch_scc1 {nx}')
        tiles = []
        for u in range(NUNIT[w]):
            b, ga = tile_of(w, u)
            tiles.append(((4*b+ga)*14336, [wreg_half(u*7 + k//2, V['w'], k % 2) for k in range(14)]))
        if fz:
            load_tiles(a, tiles, F['l16'], S_T1, 1, cfg['wfl'], [0])
            wait_flags(a, LN+8, 7, LN+10)
            load_tiles(a, tiles, F['l16'], S_T1, 2, cfg['wfl'], [0])
        else:
            load_tiles(a, tiles, F['l16'], S_T1, None, cfg['wfl'], [0], cfg['scap'])
        if w < 3: a(f's_branch {done}\n{nx}:')
    a(f"""
{done}:
    {team_mode_load(V['mf'], V['mf']+1) if not fz else ''}
    s_mov_b32 s{S_STEP}, 0
    s_mov_b32 s{S_MOFF}, {L.MB_M}
    s_mov_b32 s{S_POFF}, {L.MB_P}
    s_mov_b32 s{S_GOFF}, {L.XN}
    s_lshl_b32 s{S_STMP}, s{S_ROLE}, 2
    s_add_u32 s{S_STMP}, s{S_STMP}, s{S_WAVE}
    s_lshl_b32 s{S_STMP}, s{S_STMP}, 12
    s_add_u32 s{S_STMP}, s{S_STMP}, {L.STAMP}
    """)
    if fz:
        wait_ln(a, LN, 12)
    else:
        nf = a.newlabel('L_nx0')
        a(f's_cmp_lg_u32 s{S_WAVE}, 3\ns_cbranch_scc1 {nf}\ns_waitcnt vmcnt(30)\ns_mov_b32 s{S_T0}, s{S_GOFF}')
        load_1k_run(a, [vr(F['xf'] + 4*k, 4) for k in range(28)], F['l16'], S_T0, cfg['wfl'])
        a.label(nf)
    team_mode(a, V['mf'], V['mf']+1, primed=not fz)

def step_advance(a, gstride, xstride=114688):
    a(f"""
    s_add_u32 s{S_STEP}, s{S_STEP}, 1
    s_add_u32 s{S_MOFF}, s{S_MOFF}, 8192
    s_add_u32 s{S_POFF}, s{S_POFF}, 16384
    s_add_u32 s{S_GOFF}, s{S_GOFF}, {gstride}
    s_add_u32 s{S_XOFF}, s{S_XOFF}, {xstride}
    s_add_u32 s{S_STMP}, s{S_STMP}, 64
    """)

def rowred(a, op, x):
    for m in ('row_ror:8', 'row_ror:4', 'row_ror:2', 'row_ror:1'):
        for r in (x, x+1):
            a(f'{op}_dpp v{r}, v{r}, v{r} {m} row_mask:0xf bank_mask:0xf')

def score_wave(a, w, pf, stamps, cfg):
    V = SV; idx = V['idx']; mf = V['mf']
    top = a.newlabel(f'L_sc{w}_top'); first = a.newlabel(f'L_sc{w}_first')
    nunit = NUNIT[w]
    accof = lambda u: V['acc'] + 4*(u % 6)
    ok = {0: (0, 9, 2), 1: (2,), 2: (0, 9, 1, 2), 3: (4,) if cfg['fin1'] else (7, 8, 4)}[w]
    ST = (lambda k: f's_memtime s[{40+2*k}:{41+2*k}]' if k in ok else '') if stamps else (lambda k: '')
    def stamp(a, stamps, k):
        a(ST(k))
    xf, tf, sa, T = F['xf'], F['tf'], F['sa'], F['t']
    FA, FV = 8, 9
    HA = 11
    HT = ([5, 6, 7, 10] if w < 3 else [T+4, T+5, T+6, T+7])[:cfg['hdepth']]
    def load_x():
        a(f's_mov_b32 s{S_T0}, s{S_GOFF}')
        load_1k_run(a, [vr(xf + 4*k, 4) for k in range(28)], F['l16'], S_T0, cfg['wfl'])
    XW = cfg['xw']
    def dma_x(a=a, rng=None, ahead=1):
        lo, hi = rng or XW[w]
        if hi <= lo: return
        a(f"""
        s_and_b32 s{S_T0}, s{S_STEP}, 1
        s_xor_b32 s{S_T0}, s{S_T0}, {ahead & 1}
        s_mul_i32 s{S_T0}, s{S_T0}, 28672
        s_add_u32 s{S_T0}, s{S_T0}, {LDS_X + lo*1024}
        s_add_u32 s{S_T1}, s{S_GOFF}, {ahead*28672 + lo*1024 - w*1792}
        """)
        for k in range(hi - lo):
            if k % 4 == 0:
                if k: a(f's_add_u32 s{S_T0}, s{S_T0}, 4096\ns_add_u32 s{S_T1}, s{S_T1}, 4096')
                a(f's_mov_b32 m0, s{S_T0}')
            a(f"buffer_load_dwordx4 v{V['pa']}, {WSRD}, s{S_T1} offen offset:{(k%4)*1024} {cfg['wfl']} lds")
    def read_x():
        a(f"""
        s_and_b32 s{S_T0}, s{S_STEP}, 1
        s_mul_i32 s{S_T0}, s{S_T0}, 28672
        v_add_u32 v{T}, s{S_T0}, v{F['l16']}
        """)
        for k in range(28): a(f'ds_read_b128 v[{xf+4*k}:{xf+4*k+3}], v{T} offset:{LDS_X + k*1024}')
    def zero_acc():
        for u in range(2 if cfg['m2'] else min(6, nunit)):
            a(f'v_mov_b64 v[{accof(u)}:{accof(u)+1}], 0\nv_mov_b64 v[{accof(u)+2}:{accof(u)+3}], 0')
        if w == 3:
            for k in range(4): a(f'v_mov_b64 v[{sa+2*k}:{sa+2*k+1}], 0')
            a(f"v_mov_b32 v{sa+8}, v{F['wz']}\nv_mov_b32 v{sa+9}, v{F['wz']}\nv_mov_b64 v[{sa+10}:{sa+11}], 0")
    a(f"v_lshrrev_b32 v{HA}, 1, v{V['l8']}\nv_min_u32 v{HA}, {(27 if cfg['cert'] else 55)*4}, v{HA}\ns_and_b32 s{S_T0}, s{S_ROLE}, 3\ns_lshl_b32 s{S_T0}, s{S_T0}, 8\ns_add_u32 s{S_T0}, s{S_T0}, 7168\nv_add_u32 v{HA}, s{S_T0}, v{HA}")
    if cfg['h64']:
        a(f"""
        v_lshrrev_b32 v{HA}, 3, v{V['l8']}
        v_min_u32 v{HA}, 55, v{HA}
        v_and_b32 v{mf}, 3, v{HA}
        v_lshrrev_b32 v{HA}, 2, v{HA}
        v_lshlrev_b32 v{HA}, 6, v{HA}
        v_lshl_add_u32 v{HA}, v{mf}, 2, v{HA}
        v_add_u32 v{HA}, 7168, v{HA}
        """)
    if w == 3:
        if cfg['fused']: load_x()
        a(f'v_and_b32 v{T+12}, {15*8}, v0\nv_lshlrev_b32 v{T+12}, 3, v{T+12}\nv_add_u32 v{T+12}, 6144, v{T+12}')
        if stamps: a('s_mov_b32 s40, 0\ns_mov_b32 s42, 0\ns_mov_b32 s44, 0')
        a(f's_mov_b32 s{S_EOFF}, 0\ns_lshl_b32 s{S_T0}, s{S_ROLE}, 2\ns_add_u32 s{S_T0}, s{S_T0}, 12288\nv_lshlrev_b32 v{T+14}, 4, v0\nv_add_u32 v{T+14}, s{S_T0}, v{T+14}\nv_mov_b32 v{T+15}, 0')
    else:
        a(f"v_add_u32 v{FA}, {LDS_FL + 4*w}, v{F['l16']}\nv_mov_b32 v{FV}, 0")
        for k in range(5): a(f'ds_write_b32 v{FA}, v{FV} offset:{k*1024}')
        a(f'v_and_b32 v4, {31*8}, v0\nv_lshlrev_b32 v4, 3, v4\nv_add_u32 v4, {w*2048}, v4')
    if w < 3 and not cfg['xin']: dma_x(rng=[(0, 9), (9, 18), (18, 28)][w])
    if cfg['prio'][w]: a(f"s_setprio {cfg['prio'][w]}")
    zero_acc()
    if cfg.get('wgd'): a('s_memrealtime s[88:89]\ns_memrealtime s[96:97]')
    a(f's_branch {first}')
    if cfg['al'] is not None:
        a.raw('    .p2align 6')
        for _ in range(cfg['al'][w]): a.raw('    s_nop 0')
    a.label(top)
    zero_acc()
    stamp(a, stamps, 0)
    if cfg['cert']:
        got = a.newlabel('L_got')
        a(f'v_add_u32 v{FV}, 1, v{FV}' if w < 3 else f's_add_u32 s{S_EOFF}, s{S_EOFF}, 1')
        a(f's_mov_b32 s{S_SAFE}, 0')
        if w == 0:
            ND = cfg['cert']; regs = HT[:ND]
            lp = a.newlabel('L_ct'); dn = a.newlabel('L_ctd')
            def rnd(r):
                a(f'buffer_load_dword v{r}, v{HA}, {WSRD}, s{S_MOFF} offen sc1\ns_mov_b32 m0, {LDS_M}')
                for k in range(7):
                    if k == 4: a(f's_mov_b32 m0, {LDS_M + 4096}')
                    a(f"buffer_load_dwordx4 v{V['pa']}, {WSRD}, s{S_MOFF if k < 4 else S_T0} offen offset:{(k%4)*1024} sc1 lds")
            a(f's_add_u32 s{S_T0}, s{S_MOFF}, 4096\ns_mov_b32 s{S_SPIN}, 0')
            a(ST(9))
            for k in range(ND-1): rnd(regs[k])
            a.label(lp)
            for k in range(ND):
                rnd(regs[(k+ND-1) % ND])
                a(f"""
                s_add_u32 s{S_SPIN}, s{S_SPIN}, 1
                s_waitcnt vmcnt({8*ND-1})
                v_cmp_eq_u32 vcc, -1, v{regs[k]}
                s_cbranch_vccz {dn}
                """)
            a(f's_cmp_lt_u32 s{S_SPIN}, s{S_LIM}\ns_cbranch_scc1 {lp}\n{dn}:\ns_waitcnt vmcnt({8*(ND-1)}) lgkmcnt(0)')
        else:
            a('s_waitcnt vmcnt(0) lgkmcnt(0)')
        a(f's_barrier\n{got}:')
        def coldf():
            a.label(first)
            a(f'v_add_u32 v{FV}, 1, v{FV}' if w < 3 else f's_add_u32 s{S_EOFF}, s{S_EOFF}, 1')
            a(f's_mov_b32 s{S_SAFE}, 1')
            poll_m(a, V)
            a(f's_branch {got}')
        a.cold.append(coldf)
    else:
        if cfg['msamp'] == 2: a(f'v_mov_b32 v{mf if w < 3 else T+13}, 0')
        if cfg['mdma'] == 2: a(f's_mov_b32 m0, {LDS_M}\ns_add_u32 s{S_T0}, s{S_MOFF}, 4096')
        elif cfg['mdma']: a(f's_mov_b32 m0, {LDS_M + w*2048}\ns_add_u32 s{S_T0}, s{S_MOFF}, {w*2048 - w*1792}')
        if not cfg['cutrig'] or w == 0: wait_hint(a, HA, S_MOFF, HT, delay=cfg['mdelay'], inner=cfg['hinner'])
        if cfg['cutrig'] and cfg['mdma'] != 2: a('s_barrier')
    if cfg['cert']: pass
    elif cfg['mdma']:
        got = a.newlabel('L_got')
        a(ST(9))
        nk = 2 if w < 3 else 1
        SA_ = (4 if w < 3 else T+12)
        def rnd(r):
            if cfg['msamp'] == 2:
                a(f"s_mov_b64 exec, {0x55555555 if w < 3 else 0x5555}\nbuffer_load_dword v{r}, v{SA_}, {WSRD}, s{S_MOFF} offen sc1\ns_mov_b64 exec, -1")
            elif cfg['msamp']: a(f"buffer_load_dword v{r}, v{SA_}, {WSRD}, s{S_MOFF} offen sc1")
            for k in range(nk): a(f"buffer_load_dwordx4 v{V['pa']}, {WSRD}, s{S_T0} offen offset:{k*1024} sc1 lds")
        r0, r1 = (mf, HT[1]) if w < 3 else (T+13, T+15)
        two = cfg['m2d']
        rnd(r0)
        a(f'v_add_u32 v{FV}, 1, v{FV}' if w < 3 else f's_add_u32 s{S_EOFF}, s{S_EOFF}, 1')
        a(f's_mov_b32 s{S_SAFE}, 0\ns_mov_b32 s{S_SPIN}, 1')
        if two:
            gap = two
            while gap > 0:
                a(f's_nop {min(gap, 16) - 1}'); gap -= 16
            rnd(r1)
        ex = (nk+1) if two else 0
        bad = a.newlabel('L_mbad'); okl = a.newlabel('L_mok')
        a(f"""
        {f's_waitcnt vmcnt({nk + ex})' if cfg['msamp'] else ''}
        {f'v_cmp_eq_u32 vcc, -1, v{r0}' if cfg['msamp'] else ''}
        {f's_cbranch_vccnz {bad}' if cfg['msamp'] else ''}
        s_waitcnt vmcnt({ex}) lgkmcnt(0)
{okl}:
        s_barrier
{got}:
        """)
        def coldb():
            lp = a.newlabel('L_mlp')
            a.label(bad)
            if two:
                a(f's_mov_b32 s{S_SPIN}, 2\ns_waitcnt vmcnt(0) lgkmcnt(0)\nv_cmp_eq_u32 vcc, -1, v{r1}\ns_cbranch_vccz {okl}')
            a.label(lp)
            rnd(r0)
            a(f"""
            s_add_u32 s{S_SPIN}, s{S_SPIN}, 1
            s_waitcnt vmcnt(0) lgkmcnt(0)
            v_cmp_eq_u32 vcc, -1, v{r0}
            s_cbranch_vccz {okl}
            s_cmp_lt_u32 s{S_SPIN}, s{S_LIM}
            s_cbranch_scc1 {lp}
            s_mov_b32 s{S_LIM}, 1
            s_branch {okl}
            """)
        a.cold.append(coldb)
        def coldf():
            a.label(first)
            a(f'v_add_u32 v{FV}, 1, v{FV}' if w < 3 else f's_add_u32 s{S_EOFF}, s{S_EOFF}, 1')
            a(f's_mov_b32 s{S_SAFE}, 1')
            poll_m(a, V)
            a(f's_branch {got}')
        a.cold.append(coldf)
    else:
        a.label(first)
        a(f'v_add_u32 v{FV}, 1, v{FV}' if w < 3 else f's_add_u32 s{S_EOFF}, s{S_EOFF}, 1')
        a(ST(9))
        if cfg['m2']: poll_m2(a, V, cfg['m2'], mf)
        else: poll_m(a, V)
    stamp(a, stamps, 1)
    if stamps and w < 3: a(f's_mov_b32 s{40+2*7}, s{S_SPIN}')
    lq = Q('lgkmcnt', 15)
    mrd = [dsop(f"ds_read_b64_tr_b16 v[{mf+4*b+2*hf}:{mf+4*b+2*hf+1}], v{V['l8']} offset:{LDS_M+b*1024+hf*512}", ('mf', b))
           for b in range(7) for hf in range(2)]
    for x in mrd[:cfg['mpre']]: a(x(lq))
    order = [(u, b) for b in range(7) for u in range(2)] + [(u, b) for u in range(2, nunit) for b in range(7)]
    ms = [(SM(accof(u), mf+4*b, wreg(u*7 + b, V['w']), idx), [('mf', b)] if u == 0 else []) for u, b in order]
    last = {u: i for i, (u, b) in enumerate(order)}
    def smfma(b):
        t4 = tf + 4*b
        return [(f"v_mfma_f32_16x16x32_bf16 v[{sa+8}:{sa+11}], v[{t4}:{t4+3}], v[{mf+4*b}:{mf+4*b+3}], " + f'v[{sa+8}:{sa+11}]', [('tf', b)]),
                (SM(sa, t4, vr(xf + 8*b, 8), idx), []),
                (SM(sa+4, t4, vr(xf + 56 + 8*b, 8), idx), [])]
    def tread(b, hf):
        return dsop(f"ds_read_b64_tr_b16 v[{tf+4*b+2*hf}:{tf+4*b+2*hf+1}], v{V['l8']} offset:{LDS_T+b*1024+hf*512}", ('tf', b))
    phases = [(0, 1, 2), (3, 4)]
    starts = []
    if w == 3:
        for ph in phases:
            starts.append(len(ms))
            for b in ph: ms += smfma(b)
    n = len(ms)
    gp = Gaps(n)
    for k, x in enumerate(mrd[cfg['mpre']:]): gp.put('ds', k, x)
    flag_after = {2, 4} | ({5} if w < 2 else {6})
    def post(u):
        A = accof(u); b, ga = tile_of(w, u)
        va = [f'v_add_f32 v{A}, v{A}, v{A+2}', f'v_add_f32 v{A+1}, v{A+1}, v{A+3}', f'v_cvt_pk_bf16_f32 v{A}, v{A}, v{A+1}']
        ds = [dsop(f"ds_write_b32 v{V['k1']}, v{A} offset:{LDS_T+b*1024+ga*128}", ('k', u))]
        if w < 3 and u in flag_after:
            ds.append(dsop(f'ds_write_b32 v{FA}, v{FV} offset:{sorted(flag_after).index(u)*1024}'))
        return va, ds
    g = 0
    done_at = {}
    for u in range(nunit - (0 if w == 3 else 1)):
        va, ds = post(u)
        g = max(g, last[u] + 3 - (len(va) - 3))
        for x in va: g = gp.put('va', g, x) + 1
        for x in ds: g = gp.put('ds', g, x, excl=True) + 1
        done_at[u] = g
    def zero_in_gaps(u, g):
        A = accof(u)
        for k in range(2):
            gg = g
            while gg < 7*u - 2 and (gp.va[gg] or (gp.ds[gg] and gp.ds[gg][-1][1])): gg += 1
            if gg >= 7*u - 2: gg = max(g, 7*u - 4 + k)
            gp.force('va', gg, f'v_mov_b64 v[{A+2*k}:{A+2*k+1}], 0')
    if cfg['m2']:
        gp.force('ds', cfg['m2w'], 's_waitcnt vmcnt(0)')
        for u in range(2, min(6, nunit)): zero_in_gaps(u, cfg['m2w'])
    for u in range(6, nunit): zero_in_gaps(u, done_at[u-6] + 1)
    if w == 3:
        for pi, ph in enumerate(phases):
            flagrd = f"ds_read_b128 v[{T}:{T+3}], v{F['l16']} offset:{LDS_FL + pi*1024}"
            lead = cfg['lead'][pi]
            g = max(starts[pi] - lead, done_at[max(ph)] if max(ph) < 5 else 0)
            g = min(g, starts[pi]-1)
            if cfg['pnop'][pi]: gp.force('ds', g, f"s_nop {cfg['pnop'][pi]-1}")
            gp.force('ds', g, dsop(flagrd, ('fl', pi)))
            ops = [tread(b, hf) for b in ph for hf in range(2)]
            for k, x in enumerate(ops):
                gp.force('ds', min(g + (k+1)//2, starts[pi]-1), x)
            FM = T+11
            def chk(lq, pi=pi):
                return lq.wait(('fl', pi)) + (f'\nv_min3_u32 v{FM}, v{T}, v{T+1}, v{T+2}' if pi == 0 else
                                              f'\nv_min3_u32 v{T}, v{T}, v{T+1}, v{T+2}\nv_min_u32 v{FM}, v{FM}, v{T}')
            gp.force('va', starts[pi], chk)
    if cfg['xin'] and XW[w][1] > XW[w][0]:
        sub = Asm(); dma_x(sub)
        grp = []; cur = []
        for _, x in sub.items:
            cur.append(x.text)
            if x.text.startswith('buffer'): grp.append('\n'.join(cur)); cur = []
        g = cfg['xin']
        for x in grp: g = gp.put('ds', g, x) + cfg['xstep']
    if w == 0 and cfg['phint'] < 0:
        gp.force('ds', n - 1 + cfg['phint'], f"""s_mov_b64 exec, 15
            buffer_store_dword v{FV}, v4, {WSRD}, s{S_POFF} offen {pf}
            s_mov_b64 exec, -1""")
    emit_stream(a, ms, gp, lq)
    hint = f"""s_mov_b64 exec, 15
        buffer_store_dword v{T+15}, v{T+14}, {WSRD}, s{S_POFF} offen {pf}
        s_mov_b64 exec, -1"""
    if w < 3:
        va, ds = post(nunit-1)
        A_ = accof(nunit-1)
        va = [f'v_pk_add_f32 v[{A_}:{A_+1}], v[{A_}:{A_+1}], v[{A_+2}:{A_+3}]', va[-1]]
        for x in va: a(x)
        for x in ds: a(x(lq))
        if cfg['b3s']: a(f'ds_write_b32 v{FA}, v{FV} offset:3072')
        else:
            if w == 2: dma_x(rng=cfg['xa'], ahead=2)
            a(lq.drain())
        a('s_barrier')
        if w == 2: dma_x(rng=cfg['xb'], ahead=2)
        stamp(a, stamps, 2)
        if cfg['mdma']:
            again = a.newlabel('L_again')
            a(f"""
            {'s_waitcnt vmcnt(0)' if cfg['xin'] else ''}
            s_barrier
            v_mov_b32 v{mf}, {LDS_VD}
            ds_read_b32 v{mf}, v{mf}
            s_waitcnt lgkmcnt(0)
            v_cmp_eq_u32 vcc, v{mf}, v{FV}
            s_cbranch_vccnz {again}
            """)
            def colda():
                a.label(again)
                zero_acc()
                a(f's_branch {first}')
            a.cold.append(colda)
        elif cfg['quiet']: a(f"s_sleep {cfg['quiet']}")
    else:
        s = T
        mx = T+6; z = T+8; EA = tf; B1 = tf+4; B2 = tf+8; D1 = tf+12; D2 = tf+16; rz = T+10
        a(f"""
        v_mov_b64 v[{B1+2}:{B1+3}], 0
        v_mov_b64 v[{B2}:{B2+1}], 0
        v_mov_b32 v{B2+3}, 0
        v_mov_b32 v{EA+3}, 0
        """)
        for _ in range(cfg['b5nop']): a('s_nop 3')
        q = Q('lgkmcnt', 15)
        a(f"ds_read_b128 v[{T}:{T+3}], v{F['l16']} offset:{LDS_FL + 2048}"); q.issue('fl')
        for hf in range(2): a(tread(5, hf)(q))
        stamp(a, stamps, 2)
        a('s_barrier')
        stamp(a, stamps, 3)
        PX = lambda k: a('s_memtime s[52:53]') if stamps and cfg['px'] == k else None
        PX(0)
        if cfg['b3s']:
            for _ in range(cfg['b3s'] - 1): a('s_nop 0')
            a(f"ds_read_b64 v[{T+4}:{T+5}], v{F['l16']} offset:{LDS_FL + 3072}"); q.issue('fl3')
        for hf in range(2): a(tread(6, hf)(q))
        PX(1)
        if cfg['phint'] == 0: a(hint)
        PX(2)
        fl5 = [f'v_min3_u32 v{T}, v{T}, v{T+1}, v{T+2}', f'v_min_u32 v{FM}, v{FM}, v{T}', f'v_subrev_u32 v{FM}, s{S_EOFF}, v{FM}']
        if cfg['b3s']: fl5[2:2] = ['', f'v_min3_u32 v{FM}, v{FM}, v{T+4}, v{T+5}']
        for b in (5, 6):
            for m, tags in smfma(b):
                for tg in tags: a(q.wait(tg))
                if b == 6 and tags: PX(4)
                a(m)
                if fl5: a(fl5.pop(0))
            if b == 5: PX(3)
        a(ST(7))
        if cfg['phint'] == 1: a(hint)
        e = sa
        redo = a.newlabel('L_smr'); slowmx = a.newlabel('L_sms'); go = a.newlabel('L_smg')
        a(f"""
        s_mov_b32 s{S_T1}, {120 << 23}
        s_mov_b32 s{S_SPIN}, 0
        v_add_f32_dpp v{s+4}, v{sa+10}, v{sa+8} {QP}
        v_add_f32_dpp v{s+5}, v{sa+11}, v{sa+9} {QP}
        v_pk_add_f32 v[{s}:{s+1}], v[{sa}:{sa+1}], v[{sa+2}:{sa+3}]
        v_exp_f32 v{e+8}, v{s+4}
        v_exp_f32 v{e+9}, v{s+5}
        v_pk_add_f32 v[{s+2}:{s+3}], v[{sa+4}:{sa+5}], v[{sa+6}:{sa+7}]
        v_exp_f32 v{e}, v{s}
        v_exp_f32 v{e+1}, v{s+1}
        v_exp_f32 v{e+2}, v{s+2}
        v_exp_f32 v{e+3}, v{s+3}
{redo}:;nf
        v_pk_add_f32 v[{z}:{z+1}], v[{e}:{e+1}], v[{e+8}:{e+9}]
        v_cvt_pk_bf16_f32 v{EA+2}, v{e+8}, v{e+9}
        v_pk_add_f32 v[{z}:{z+1}], v[{z}:{z+1}], v[{e+2}:{e+3}]
        """)
        if cfg['phint'] == 2: a(hint)
        fill = [f'v_cvt_pk_bf16_f32 v{EA+k}, v{e+2*k}, v{e+2*k+1}' for k in range(2)]
        for m in ('row_ror:8', 'row_ror:4', 'row_ror:2', 'row_ror:1'):
            if fill: a(fill.pop(0))
            for r in (z, z+1):
                a(f'v_add_f32_dpp v{r}, v{r}, v{r} {m} row_mask:0xf bank_mask:0xf')
        LO, HI = (127-60) << 23, (127+60) << 23
        a(ST(8))
        a(f"""
        v_rcp_f32 v{mx}, v{z}
        v_rcp_f32 v{mx+1}, v{z+1}
        v_subrev_u32 v{z}, {LO}, v{z}
        v_cvt_pk_bf16_f32 v{rz}, v{mx}, v{mx+1}
        v_and_b32 v{B1}, v{rz}, v{F['mk0']}
        v_and_b32 v{B1+1}, v{rz}, v{F['mk1']}
        v_and_b32 v{B2+2}, v{rz}, v{F['mk2']}
        v_subrev_u32 v{z+1}, {LO}, v{z+1}
        v_mfma_f32_16x16x32_bf16 v[{D1}:{D1+3}], v[{EA}:{EA+3}], v[{B1}:{B1+3}], 0
        v_mfma_f32_16x16x32_bf16 v[{D2}:{D2+3}], v[{EA}:{EA+3}], v[{B2}:{B2+3}], 0
        v_max3_u32 v{z}, v{z}, v{z+1}, v{FM}
        v_cmp_lt_u32 vcc, s{S_T1}, v{z}
        s_cmp_eq_u64 vcc, 0
        s_cselect_b64 exec, -1, 0
        v_cvt_pk_bf16_f32 v{D1}, v{D1}, v{D1+1}
        v_cvt_pk_bf16_f32 v{D1+1}, v{D1+2}, v{D1+3}
        buffer_store_dwordx2 v[{D1}:{D1+1}], v{F['px']}, {WSRD}, s{S_POFF} offen {pf}
        v_cvt_pk_bf16_f32 v{D2}, v{D2}, v{D2+1}
        buffer_store_dword v{D2}, v{F['pm']}, {WSRD}, s{S_POFF} offen {pf}
        s_mov_b64 exec, -1
        s_cbranch_scc0 {slowmx}
        """)
        if cfg['b4s']: a(f"s_sleep {cfg['b4s']}")
        if cfg['mdma']: a('s_barrier')
        def coldmx():
            a(f'{slowmx}:' + ('\ns_add_u32 s40, s40, 1' if stamps else ''))
            loc = a.newlabel('L_loc'); sf = a.newlabel('L_safe')
            a(f's_cmp_eq_u32 s{S_SPIN}, 0\ns_cbranch_scc1 {loc}')
            if cfg['mdma']:
                a(f"""
                s_cmp_lg_u32 s{S_SAFE}, 0
                s_cbranch_scc1 {sf}
                {'s_add_u32 s86, s86, 1' if cfg.get('wgd') else ''}
                v_mov_b32 v{T}, {LDS_VD}
                v_mov_b32 v{T+1}, s{S_EOFF}
                ds_write_b32 v{T}, v{T+1}
                s_waitcnt lgkmcnt(0)
                s_barrier
                """)
                zero_acc()
                a(f's_branch {first}')
            a(f'{sf}:\ns_mov_b32 s{S_T1}, -1\ns_branch {redo}\n{loc}:\ns_mov_b32 s{S_SPIN}, 1\nv_mov_b32 v{FM}, 0')
            if cfg.get('wgd'): a('s_add_u32 s85, s85, 1')
            for k in range(4): a(f'v_mov_b64 v[{sa+2*k}:{sa+2*k+1}], 0')
            a(f"v_mov_b32 v{sa+8}, v{F['wz']}\nv_mov_b32 v{sa+9}, v{F['wz']}\nv_mov_b64 v[{sa+10}:{sa+11}], 0")
            q2 = Q('lgkmcnt', 15)
            rl = a.newlabel('L_rl'); rd = a.newlabel('L_rld')
            a(f's_mov_b32 s{S_T0}, 0\n{rl}:')
            a(f"ds_read_b128 v[{T}:{T+3}], v{F['l16']} offset:{LDS_FL + 3072}")
            for b in range(7):
                for hf in range(2): a(tread(b, hf)(q2))
            a('s_waitcnt lgkmcnt(0)')
            if cfg['b3s']:
                a(f"""
                v_min3_u32 v{T}, v{T}, v{T+1}, v{T+2}
                s_add_u32 s{S_T0}, s{S_T0}, 1
                v_cmp_gt_u32 vcc, s{S_EOFF}, v{T}
                s_cbranch_vccz {rd}
                s_cmp_lt_u32 s{S_T0}, 1000
                s_cbranch_scc1 {rl}
{rd}:
                """)
            for b in range(7):
                for m, tags in smfma(b): a(m)
            a(f"""
            v_mov_b64 v[{B1+2}:{B1+3}], 0
            v_mov_b64 v[{B2}:{B2+1}], 0
            v_mov_b32 v{B2+3}, 0
            v_mov_b32 v{EA+3}, 0
            v_add_f32_dpp v{s+4}, v{sa+10}, v{sa+8} {QP}
            v_add_f32_dpp v{s+5}, v{sa+11}, v{sa+9} {QP}
            v_pk_add_f32 v[{s}:{s+1}], v[{sa}:{sa+1}], v[{sa+2}:{sa+3}]
            v_pk_add_f32 v[{s+2}:{s+3}], v[{sa+4}:{sa+5}], v[{sa+6}:{sa+7}]
            v_max3_f32 v{mx}, v{s}, v{s+4}, v{s+2}
            v_max3_f32 v{mx+1}, v{s+1}, v{s+5}, v{s+3}
            """)
            rowred(a, 'v_max_f32', mx)
            for k in range(3): a(f'v_pk_add_f32 v[{s+2*k}:{s+2*k+1}], v[{s+2*k}:{s+2*k+1}], v[{mx}:{mx+1}] neg_lo:[0,1] neg_hi:[0,1]')
            for k in range(6): a(f'v_exp_f32 v{e+(k if k < 4 else k+4)}, v{s+k}')
            a(f's_nop 1\ns_branch {redo}')
        a.cold.append(coldmx)
        stamp(a, stamps, 4)
    if stamps: a('s_memtime s[50:51]\ns_memrealtime s[60:61]')
    stamp_flush(a, stamps, 11, mf)
    step_advance(a, 28672, 458752)
    a(f's_cmp_ge_u32 s{S_STEP}, 63\ns_cbranch_scc1 L_exit')
    if w == 3:
        if cfg['rxs']: a(f"s_sleep {cfg['rxs']}")
        read_x()
    elif not cfg['nox'] and not cfg['xin']:
        if cfg['xs']: a(f"s_sleep {cfg['xs']}")
        dma_x()
    if cfg['ssleep'][w]:
        a(f"s_sleep {cfg['ssleep'][w]}")
    a(f's_branch {top}')
    a.flush_cold()

S_YD = 33; S_SAFE = 36; S_CV = 37; S_CU = 38; S_MD = 39
CV = dict(ha=160, one=161, zero=162, cu=163, hw=164, hm=165, nw=172, nr=173, pmr=72, fw=73, fv=74, rw2=75, l8=0, pa=1, idx=2, l16=3, pr=4, mw=6, lw=7, rw=8, rr=5, mf=12, acc=40, itm=72, vx=88, uf=96, tw=128, w=176)

def comb_setup(a, stamps, cfg):
    V = CV; LN = 112
    a(f'v_mov_b32 v{LN}, v1')
    team_register(a)
    common_addrs(a, V, LN)
    img_addr(a, V['mw'], LN+1, LN)
    a(f"""
    s_sub_u32 s{S_ROLE}, s{S_ROLE}, 16
    s_lshl_b32 s{S_ROLE}, s{S_ROLE}, 1
    s_and_b32 s{S_T0}, s{S_WAVE}, 1
    s_add_u32 s{S_T1}, s{S_ROLE}, s{S_T0}
    s_lshr_b32 s{S_T0}, s{S_T1}, 2
    s_lshl_b32 s{S_T0}, s{S_T0}, 10
    s_and_b32 s{S_T1}, s{S_T1}, 3
    s_lshl_b32 s{S_T1}, s{S_T1}, 7
    s_add_u32 s{S_T0}, s{S_T0}, s{S_T1}
    s_add_u32 s{S_T0}, s{S_T0}, 8192
    v_add_u32 v{V['mw']}, s{S_T0}, v{V['mw']}
    v_lshlrev_b32 v{V['l16']}, 4, v{LN}
    s_mul_i32 s{S_T0}, s{S_WAVE}, 28672
    s_add_u32 s{S_T0}, s{S_T0}, {LDS_BW}
    v_add_u32 v{V['lw']}, s{S_T0}, v{V['l16']}
    s_lshl_b32 s{S_T0}, s{S_WAVE}, 10
    v_add_u32 v{V['rw']}, s{S_T0}, v{V['l16']}
    v_add_u32 v{V['pr']}, s{S_T0}, v{V['rw']}
    s_and_b32 s{S_T0}, s{S_WAVE}, 1
    s_lshl_b32 s{S_T0}, s{S_T0}, 3
    v_add_u32 v{V['rr']}, s{S_T0}, v{V['l16']}
    s_mul_i32 s{S_T1}, s{S_WAVE}, {4*28}
    s_add_u32 s{S_T1}, s{S_T1}, s{S_ROLE}
    s_add_u32 s{S_T1}, s{S_T1}, 448
    s_mul_i32 s{S_T1}, s{S_T1}, 14336
    s_add_u32 s{S_T1}, s{S_T1}, {L.WT}
    """)
    toff = lambda u: ((u >> 1)*28 + (u & 1))*14336
    fz = cfg['fused']
    tiles = [(toff(u), [wreg_half(u*7 + k//2, V['w'], k % 2) for k in range(14)]) for u in range(6)]
    ltiles = [(toff(u), [vr(12 + (u-6)*116 + 4*k, 4) if u == 6 else vr(120 + 4*k, 4) for k in range(14)]) for u in (6, 7)]
    if fz:
        a(f"""
        v_bfe_u32 v{LN+4}, v{LN}, 2, 2
        v_mul_u32_u24 v{LN+4}, {14*32}, v{LN+4}
        v_and_b32 v{LN+5}, 3, v{LN}
        v_lshl_add_u32 v{LN+4}, v{LN+5}, 3, v{LN+4}
        s_mul_i32 s{S_T0}, s{S_WAVE}, 56
        s_lshr_b32 s{S_SPIN}, s{S_ROLE}, 2
        s_add_u32 s{S_T0}, s{S_T0}, s{S_SPIN}
        s_add_u32 s{S_T0}, s{S_T0}, 7
        s_lshl_b32 s{S_T0}, s{S_T0}, 5
        v_add_u32 v{LN+4}, s{S_T0}, v{LN+4}
        """)
        wait_flags(a, LN+4, 1, 100)
        load_tiles(a, ltiles + tiles, V['l16'], S_T1, 1, cfg['wfl'], [0])
        wait_flags(a, LN+4, 7, 100)
        load_tiles(a, ltiles + tiles, V['l16'], S_T1, 2, cfg['wfl'], [0])
    else:
        load_tiles(a, ltiles + tiles, V['l16'], S_T1, None, cfg['wfl'], [0], cfg['ccap'])
    if not fz:
        a(team_mode_load(104, 105))
        a(f"v_mov_b32 v106, 0\ns_mov_b32 s{S_CU}, {L.CNT_U}\ns_mov_b32 s{S_CV}, {L.CNT_I}")
        a(f'buffer_load_dword v107, v106, {WSRD}, s{S_CU} offen sc1\nbuffer_load_dword v109, v106, {WSRD}, s{S_CV} offen sc1')
    a('s_waitcnt vmcnt(28)')
    for u in (6, 7):
        for k in range(14):
            a(f"ds_write_b128 v{V['lw']}, {ltiles[u-6][1][k]} offset:{(u-6)*14336+k*1024}")
    a('s_waitcnt lgkmcnt(0)')
    if fz: wait_ln(a, LN, 100)
    a(f"""
    s_mov_b32 s{S_STEP}, 0
    s_mov_b32 s{S_MOFF}, {L.MB_M}
    s_mov_b32 s{S_POFF}, {L.MB_P}
    s_lshl_b32 s{S_GOFF}, s{S_ROLE}, 14
    s_lshl_b32 s{S_T0}, s{S_WAVE}, 12
    s_add_u32 s{S_GOFF}, s{S_GOFF}, s{S_T0}
    s_add_u32 s{S_GOFF}, s{S_GOFF}, {L.U}
    s_lshl_b32 s{S_XOFF}, s{S_ROLE}, 12
    s_add_u32 s{S_XOFF}, s{S_XOFF}, {L.VM}
    s_lshr_b32 s{S_STMP}, s{S_ROLE}, 1
    s_add_u32 s{S_STMP}, s{S_STMP}, 16
    s_lshl_b32 s{S_STMP}, s{S_STMP}, 2
    s_add_u32 s{S_STMP}, s{S_STMP}, s{S_WAVE}
    s_lshl_b32 s{S_STMP}, s{S_STMP}, 12
    s_add_u32 s{S_STMP}, s{S_STMP}, {L.STAMP}
    s_waitcnt vmcnt(0)
    """)
    a(f"""
    v_mov_b32 v{V['one']}, 1
    v_mov_b32 v{V['zero']}, 0
    v_mov_b32 v{V['cu']}, 0
    v_and_b32 v{V['ha']}, {120 if cfg['cutrig'] else 24}, v{V['l8']}
    v_lshrrev_b32 v{V['ha']}, 1, v{V['ha']}
    s_lshl_b32 s{S_T0}, s{S_WAVE}, 4
    s_mul_i32 s{S_T0}, s{S_T0}, {0 if cfg['cutrig'] else 1}
    s_and_b32 s{S_T1}, s{S_ROLE}, 6
    s_lshl_b32 s{S_T1}, s{S_T1}, 6
    s_add_u32 s{S_T0}, s{S_T0}, s{S_T1}
    s_add_u32 s{S_T0}, s{S_T0}, 12288
    v_add_u32 v{V['ha']}, s{S_T0}, v{V['ha']}
    s_lshl_b32 s{S_T0}, s{S_ROLE}, {0 if cfg['cert'] else 1}
    s_add_u32 s{S_T0}, s{S_T0}, s{S_WAVE}
    s_lshl_b32 s{S_T0}, s{S_T0}, 2
    s_add_u32 s{S_T0}, s{S_T0}, {8192 + 7168}
    v_lshlrev_b32 v{V['hw']}, 5, v{V['l8']}
    v_add_u32 v{V['hw']}, s{S_T0}, v{V['hw']}
    s_add_u32 s{S_YD}, s{S_XOFF}, 0x8000000
    v_lshrrev_b32 v{V['hm']}, 1, v{V['l8']}
    v_min_u32 v{V['hm']}, {(27 if cfg['cert'] else 55)*4}, v{V['hm']}
    v_add_u32 v{V['hm']}, 7168, v{V['hm']}
    s_mov_b32 s56, 0
    """)
    if cfg['h64']:
        a(f"""
        v_lshrrev_b32 v{V['hm']}, 3, v{V['l8']}
        v_min_u32 v{V['hm']}, 55, v{V['hm']}
        v_and_b32 v100, 3, v{V['hm']}
        v_lshrrev_b32 v{V['hm']}, 2, v{V['hm']}
        v_lshlrev_b32 v{V['hm']}, 6, v{V['hm']}
        v_lshl_add_u32 v{V['hm']}, v100, 2, v{V['hm']}
        v_add_u32 v{V['hm']}, 7168, v{V['hm']}
        s_lshl_b32 s{S_T0}, s{S_ROLE}, 5
        s_lshl_b32 s{S_T1}, s{S_WAVE}, 2
        s_add_u32 s{S_T0}, s{S_T0}, s{S_T1}
        s_add_u32 s{S_T0}, s{S_T0}, {8192 + 7168}
        v_mov_b32 v{V['hw']}, s{S_T0}
        """)
    if cfg['mlin']:
        x, y = 100, 101
        a(f"""
        v_lshrrev_b32 v{y}, 3, v{V['l8']}
        v_bfe_u32 v{x}, v{y}, 1, 2
        v_mul_u32_u24 v{V['rr']}, 192, v{x}
        v_bfe_u32 v{x}, v{y}, 4, 2
        v_lshl_add_u32 v{V['rr']}, v{x}, 5, v{V['rr']}
        v_and_b32 v{x}, 1, v{y}
        v_lshl_add_u32 v{V['rr']}, v{x}, 4, v{V['rr']}
        v_bfe_u32 v{x}, v{y}, 3, 1
        v_lshl_add_u32 v{V['rr']}, v{x}, 3, v{V['rr']}
        v_lshrrev_b32 v{x}, 4, v{y}
        v_mul_u32_u24 v{V['rw2']}, 192, v{x}
        v_and_b32 v{x}, 15, v{y}
        v_lshl_add_u32 v{V['rw2']}, v{x}, 3, v{V['rw2']}
        s_mul_i32 s{S_T0}, s{S_WAVE}, 1536
        v_add_u32 v{V['rw2']}, s{S_T0}, v{V['rw2']}
        s_and_b32 s{S_T0}, s{S_WAVE}, 1
        s_mul_i32 s{S_T1}, s{S_T0}, 768
        v_add_u32 v{V['rr']}, s{S_T1}, v{V['rr']}
        s_add_u32 s{S_T1}, s{S_ROLE}, s{S_T0}
        s_lshr_b32 s{S_T0}, s{S_T1}, 2
        s_lshl_b32 s{S_T0}, s{S_T0}, 10
        s_and_b32 s{S_T1}, s{S_T1}, 3
        s_lshl_b32 s{S_T1}, s{S_T1}, 7
        s_add_u32 s{S_T0}, s{S_T0}, s{S_T1}
        s_add_u32 s{S_T0}, s{S_T0}, 8192
        v_and_b32 v{x}, 31, v{y}
        v_lshlrev_b32 v{V['mw']}, 2, v{x}
        v_lshrrev_b32 v{x}, 5, v{y}
        v_lshl_add_u32 v{V['mw']}, v{x}, 9, v{V['mw']}
        v_add_u32 v{V['mw']}, s{S_T0}, v{V['mw']}
        """)
    a(f"""
    v_lshrrev_b32 v{V['nw']}, 2, v{V['rw']}
    v_lshrrev_b32 v{V['nr']}, 1, v{V['l8']}
    s_lshl_b32 s{S_MD}, s{S_WAVE}, 11
    s_min_u32 s{S_MD}, s{S_MD}, 5120
    s_mov_b32 s{S_CU}, {L.CNT_U}
    """)
    for k in range(8): a(f"v_mov_b32 v{V['vx']+k}, 0")
    a(f"v_lshrrev_b32 v{V['pmr']}, 1, v{V['rw']}")
    a(f"s_lshl_b32 s{S_T0}, s{S_WAVE}, 2\ns_add_u32 s{S_T0}, s{S_T0}, {LDS_CF}\nv_add_u32 v{V['fw']}, s{S_T0}, v{V['l16']}\nv_mov_b32 v{V['fv']}, 0\nds_write_b32 v{V['fw']}, v{V['fv']}")
    team_mode(a, 104, 105, primed=not fz)
    if cfg['flags']:
        wait_cnt(a, S_CU, 28, 106, primed=not fz)
        a(f's_mov_b32 s{S_CV}, {L.CNT_I}')
        wait_cnt(a, S_CV, 98, 108, primed=not fz)
    for k in range(32): a(f"v_mov_b32 v{V['uf']+k}, 0")

def comb_wave(a, pf, stamps, cfg):
    V = CV; idx = V['idx']; mf = V['mf']; tw = V['tw']; uf = V['uf']; pa = V['pa']
    top = a.newlabel('L_cb_top'); nh0 = a.newlabel('L_nh')
    HT = [10, 11, 166, 167][:cfg['hdepth']]
    def store_vx(base, r):
        return [f"buffer_store_dwordx4 v[{r}:{r+3}], v{V['rw']}, {WSRD}, s{base} offen {cfg['xflags']}",
                f"s_add_u32 s{S_T1}, s{base}, 4096\nbuffer_store_dwordx4 v[{r+4}:{r+7}], v{V['rw']}, {WSRD}, s{S_T1} offen {cfg['xflags']}"]
    lq = Q('lgkmcnt', 15)
    def lread(lam, hf):
        return dsop(f"ds_read_b128 v[{tw+8*(lam%4)+4*hf}:{tw+8*(lam%4)+4*hf+3}], v{V['lw']} offset:{lam*2048+hf*1024}", ('lw', lam))
    def housekeeping_acc(a=a):
        for u in range(8):
            A = V['acc'] + 4*u
            a(f'v_mov_b64 v[{A}:{A+1}], 0\nv_mov_b64 v[{A+2}:{A+3}], 0')
    def housekeeping(a=a, acc=True):
        if acc: housekeeping_acc(a)
        for lam in range(4):
            for hf in range(2): a(lread(lam, hf)(lq))
    uload = lambda k: f"buffer_load_dwordx4 v[{uf+4*k}:{uf+4*k+3}], v{V['l16']}, {WSRD}, s{S_GOFF if k < 4 else S_EOFF} offen offset:{(k%4)*1024} {cfg['xflags']}"
    uorder = [] if cfg['nou'] else [4, 5, 6, 7, 0, 1, 2, 3]
    ue = uorder[:cfg['uearly']]; ul = uorder[cfg['uearly']:]
    housekeeping()
    t = mf
    slow = a.newlabel('L_cms'); back = a.newlabel('L_cmb'); redo = a.newlabel('L_cmr')
    pre = f"""s_add_u32 s{S_EOFF}, s{S_GOFF}, 16384
        s_lshl_b32 s{S_CU}, s{S_STEP}, 7
        s_add_u32 s{S_CU}, s{S_CU}, {L.CNT_U + 128}
        s_add_u32 s{S_T0}, s{S_MOFF}, s{S_MD}
        s_mov_b32 m0, s{S_MD}"""
    a(pre)
    if cfg.get('wgd'): a('s_memrealtime s[96:97]')
    a(f's_branch {top}')
    if cfg['al'] is not None:
        a.raw('    .p2align 6')
        for _ in range(cfg['al'][4]): a.raw('    s_nop 0')
    a(f'{nh0}:\ns_barrier')
    a.label(top)
    stamp(a, stamps, 0)
    if cfg['cdma']:
        a(f"""
        buffer_load_dwordx4 v{V['l16']}, {WSRD}, s{S_T0} offen sc1 lds
        buffer_load_dwordx4 v{V['l16']}, {WSRD}, s{S_T0} offen offset:1024 sc1 lds
        s_mov_b32 s{S_SAFE}, 0
        """)
        if ue: a('s_barrier')
        for k in ue: a(uload(k))
        a(f's_waitcnt vmcnt({len(ue)}) lgkmcnt(0)\ns_barrier\n{back}:')
        def coldr():
            a(f'{redo}:\ns_barrier\ns_mov_b32 s{S_SAFE}, 1\ns_add_u32 s{S_YD}, s{S_XOFF}, 0x8000000')
            if stamps: a(f's_add_u32 s{40+2*8}, s{40+2*8}, 1')
            if cfg.get('wgd'): a('s_add_u32 s84, s84, 1')
            housekeeping()
            poll_m(a, V)
            a(f's_branch {back}')
        a.cold.append(coldr)
    else:
        a(f"""
        buffer_load_dwordx4 v[{t}:{t+3}], v{pa}, {WSRD}, s{S_MOFF} offen sc1
        buffer_load_dwordx4 v[{t+4}:{t+7}], v{pa}, {WSRD}, s{S_MOFF} offen offset:768 sc1
        """)
        if ue: a('s_barrier')
        for k in ue: a(uload(k))
        a(f"""
        s_waitcnt vmcnt({len(ue)+1})
        ds_write_b128 v{pa}, v[{t}:{t+3}]
        v_max3_u32 v{t+8}, v{t}, v{t+1}, v{t+2}
        s_waitcnt vmcnt({len(ue)})
        ds_write_b128 v{pa}, v[{t+4}:{t+7}] offset:768
        v_max3_u32 v{t+8}, v{t+8}, v{t+3}, v{t+4}
        v_max3_u32 v{t+8}, v{t+8}, v{t+5}, v{t+6}
        v_max_u32 v{t+8}, v{t+8}, v{t+7}
        v_cmp_eq_u32 vcc, -1, v{t+8}
        s_cbranch_vccnz {slow}
        s_waitcnt lgkmcnt(0)
        s_barrier
{back}:
        """)
        def coldm():
            a.label(slow)
            if stamps: a(f's_add_u32 s{40+2*8}, s{40+2*8}, 1')
            poll_m(a, V)
            a(f's_branch {back}')
        a.cold.append(coldm)
    lq.drain()
    stamp(a, stamps, 1)
    mrd = [dsop(f"ds_read_b64_tr_b16 v[{mf+4*b+2*hf}:{mf+4*b+2*hf+1}], v{V['l8']} offset:{LDS_M+b*1024+hf*512}", ('mf', b))
           for b in range(7) for hf in range(2)]
    for x in mrd[:cfg['mpre']]: a(x(lq))
    ms = []; last = {}
    rorder = [(u, b) for b in range(7) for u in range(2)] + [(u, b) for u in range(2, 6) for b in range(7)]
    rb = 0
    for p in range(56):
        if p % 4 == 3:
            lam = p // 4; u = 6 + lam // 7; b = lam % 7
            ms.append((SM(V['acc']+4*u, mf+4*b, vr(tw+8*(lam % 4), 8), idx), [('mf', b), ('lw', lam)]))
        else:
            u, b = rorder[rb]; rb += 1
            ms.append((SM(V['acc']+4*u, mf+4*b, wreg(u*7+b, V['w']), idx), [('mf', b)]))
        last[u] = p
    gp = Gaps(56)
    for k, x in enumerate(mrd[cfg['mpre']:]): gp.put('ds', k, x)
    for lam in range(4, 14):
        g = 4*(lam-4) + 3
        g = gp.put('ds', g, lread(lam, 0)) + 1
        gp.put('ds', g, lread(lam, 1))
    g = 0
    for k in ul: g = gp.put('va', g, uload(k)) + cfg['ustep']
    if cfg['flags']:
        g = gp.put('va', g, f"buffer_load_dword v{V['cu']}, v{V['zero']}, {WSRD}, s{S_CU} offen sc1") + 1
    for x in store_vx(S_YD, V['vx']): g = gp.put('va', g, x) + cfg['ustep']
    assert g - cfg['ustep'] < min(last.values()) + 3
    for k in range(len(HT)-1 if cfg['psl'] is None else 0):
        gp.put('ds', 55 - cfg['hpre'] + 4*k, f"buffer_load_dword v{HT[k]}, v{V['ha']}, {WSRD}, s{S_POFF} offen sc1")
    def post(u):
        A = V['acc'] + 4*u; hl = u >> 1; ctl = u & 1
        return ([f'v_pk_add_f32 v[{A}:{A+1}], v[{A}:{A+1}], v[{A+2}:{A+3}]'] if cfg['cpk'] else [f'v_add_f32 v{A}, v{A}, v{A+2}', f'v_add_f32 v{A+1}, v{A+1}, v{A+3}']) + [
                f"v_cvt_pk_bf16_f32 v{V['vx']+4*ctl+hl}, v{A}, v{A+1}"]
    tail = []; gprev = 0
    for u in sorted(last, key=lambda u: last[u]):
        g = max(last[u] + 3, gprev)
        if g + 4 >= 56: tail += post(u); continue
        for x in post(u): g = gp.put('va', g, x) + 1
        gprev = g
        if u == 0: done0 = g
    if cfg['cdma']:
        A0 = V['acc']; N = 168
        g = gp.put('va', done0, f'v_add_f32 v9, v{A0}, v{A0+1}') + 1
        g = gp.put('ds', g, dsop(f"ds_write_b32 v{V['nw']}, v9 offset:{LDS_NAN}", 'nw')) + 4
        gp.force('ds', g, dswait('nw', 's_barrier'))
        g = gp.put('ds', g+1, dsop(f"ds_read2st64_b32 v[{N}:{N+1}], v{V['nr']} offset0:{LDS_NAN//256} offset1:{LDS_NAN//256+1}")) + 1
        g = gp.put('ds', g, dsop(f"ds_read2st64_b32 v[{N+2}:{N+3}], v{V['nr']} offset0:{LDS_NAN//256+2} offset1:{LDS_NAN//256+3}", 'nr')) + 4
        g = gp.put('va', g, dswait('nr', f'v_add_f32 v{N}, v{N}, v{N+2}')) + 1
        g = gp.put('va', g, f'v_add_f32 v{N+1}, v{N+1}, v{N+3}') + 1
        g = gp.put('va', g, f'v_cmp_u_f32 vcc, v{N}, v{N+1}')
        assert g < 54
    emit_stream(a, ms, gp, lq)
    if cfg['cdma']:
        nb = a.newlabel('L_cnb'); nx = a.newlabel('L_cnx')
        a(f's_cbranch_vccnz {nb};nf\n{nx}:;nf')
        a.cold.append(lambda: a(f'{nb}:\ns_nop 7\ns_cmp_eq_u32 s{S_SAFE}, 0\ns_cbranch_scc1 {redo}\ns_branch {nx}'))
    for x in tail: a(x)
    lastl = a.newlabel('L_cbl')
    a(f's_cmp_ge_u32 s{S_STEP}, 63\ns_cbranch_scc1 {lastl}')
    def coldl():
        a.label(lastl)
        for x in store_vx(S_XOFF, V['vx']): a(x)
        a('s_branch L_exit')
    a.cold.append(coldl)
    stamp(a, stamps, 2)
    A = 76
    a(f's_add_u32 s{S_T0}, s{S_POFF}, 8192\ns_mov_b32 s{S_YD}, s{S_XOFF}')
    if stamps and cfg['sdrain']: a('s_waitcnt vmcnt(0)')
    stamp(a, stamps, 3)
    if cfg['psl'] is None:
        jn = a.newlabel('L_jn')
        a(f's_cmp_lg_u32 s{S_WAVE}, 0\ns_cbranch_scc1 {jn}')
        wait_hint(a, V['ha'], S_POFF, HT, delay=cfg['pdelay'], inner=cfg['hinner'], primed=True)
        a(f'{jn}:\ns_barrier')
    else:
        housekeeping(a, False)
        stamp_flush(a, stamps, 11, mf+24)
        if cfg['pw'] is not None:
            tot = cfg['pw'] - (16*cfg['fl'] if stamps else 0)
            for k in range(5): a(f's_nop {max(1, (tot + k) // 5) - 1}')
        else:
            if cfg['psl'] - (cfg['fl'] if stamps else 0) > 0: a(f"s_sleep {cfg['psl'] - (cfg['fl'] if stamps else 0)}")
            if cfg['pdelay']: a(f"s_nop {cfg['pdelay']-1}")
        if cfg['pbar']: a('s_barrier')
    stamp(a, stamps, 6)
    l = a.newlabel('L_pp'); d = a.newlabel('L_ppd'); retry = a.newlabel('L_ppr'); t = 9
    R = A
    B3 = [vr(uf, 8), vr(uf+8, 8), vr(V['itm'], 8)], [vr(uf+16, 8), vr(uf+24, 8), vr(V['itm']+8, 8)]
    mh = f"""s_mov_b64 exec, {1 if cfg['h64'] else 15}
        buffer_store_dword v{V['zero']}, v{V['hw']}, {WSRD}, s{S_MOFF} offen {pf}
        s_mov_b64 exec, -1"""
    def issue(p, a=a):
        a(f"""
        buffer_load_dwordx4 v[{p}:{p+3}], v{V['pr']}, {WSRD}, s{S_POFF} offen sc1
        buffer_load_dwordx4 v[{p+4}:{p+7}], v{V['pr']}, {WSRD}, s{S_POFF} offen offset:1024 sc1
        buffer_load_dwordx2 v[{p+8}:{p+9}], v{V['pmr']}, {WSRD}, s{S_T0} offen sc1
        """)
    def zero(a=a):
        for k in range(4): a(f'v_mov_b64 v[{A+2*k}:{A+2*k+1}], 0')
    def attempt(p, behind, hint_here):
        ex = behind
        a(f's_add_u32 s{S_SPIN}, s{S_SPIN}, 1')
        for k in range(3):
            a(f's_waitcnt vmcnt({2-k+ex})')
            S32 = lambda acc, B: f'v_smfmac_f32_16x16x32_bf16 v[{acc}:{acc+3}], v[{p+8}:{p+9}], {B}, v{idx}'
            a(SM(A, p+4*k, B3[0][k], idx) if k < 2 else S32(A, vr(V['vx'], 4)))
            a(f'v_max_u32 v{t}, v{p}, v{p+2}' if k == 0 else f'v_max3_u32 v{t}, v{t}, v{p+4*k}, v{p+4*k+(2 if k < 2 else 1)}')
            a(SM(A+4, p+4*k, B3[1][k], idx) if k < 2 else S32(A+4, vr(V['vx']+4, 4)))
            if hint_here and k == cfg['mhk']:
                if cfg['mhint'] == 3:
                    a(f"""v_cmp_eq_u32 vcc, -1, v{t}
                    s_cmp_eq_u64 vcc, 0
                    s_cselect_b64 exec, 15, 0
                    buffer_store_dword v{V['zero']}, v{V['hw']}, {WSRD}, s{S_MOFF} offen {pf}
                    s_mov_b64 exec, -1""")
                else: a(mh)
                ex += 1
        a(f'v_cmp_eq_u32 vcc, -1, v{t}')
    a(f's_mov_b32 s{S_SPIN}, 0')
    sub = Asm(); issue(mf, sub); ld3 = [x.text for _, x in sub.items]
    sub = Asm(); zero(sub); sub(f"v_add_u32 v{V['fv']}, 1, v{V['fv']}"); housekeeping_acc(sub); fl = [x.text for _, x in sub.items]
    used = 0
    for k in range(3):
        a(ld3[k])
        if k < 2 and cfg['pst']:
            n_ = min(cfg['pst'], len(fl))
            for x in fl[:n_]: a(x)
            fl = fl[n_:]
            if n_ < cfg['pst']: a(f"s_nop {cfg['pst'] - n_ - 1}")
            used += cfg['pst']
    for x in fl: a(x)
    used += len(fl)
    if cfg['p2']:
        gap = cfg['p2'] + 5 - used
        while gap > 0:
            a(f's_nop {min(gap, 16) - 1}'); gap -= 16
        issue(mf+12)
    if cfg['mhint'] == 0:
        for _ in range(cfg['mhnop']): a('s_nop 3')
        a(mh)
    attempt(mf, (3 if cfg['p2'] else 0) + (cfg['mhint'] == 0), cfg['mhint'] >= 2)
    a(f's_cbranch_vccnz {retry};nf\n{d}:;nf')
    def coldp():
        a(f'{retry}:\ns_nop 7')
        if cfg['p2']:
            a.label(l)
            issue(mf)
            zero()
            attempt(mf+12, 3, cfg['mhint'] == 3)
            a(f's_cbranch_vccz {d}')
            issue(mf+12)
            zero()
            attempt(mf, 3, cfg['mhint'] == 3)
        else:
            a.label(l)
            issue(mf)
            zero()
            attempt(mf, 0, cfg['mhint'] == 3)
        a(f"""
        s_cbranch_vccz {d}
        s_cmp_lt_u32 s{S_SPIN}, s{S_LIM}
        s_cbranch_scc1 {l}
        s_mov_b32 s{S_LIM}, 1
        s_branch {d}
        """)
    a.cold.append(coldp)
    stamp(a, stamps, 4)
    if cfg['mhint'] == 1 and not cfg['cert']: a(mh)
    if stamps: a(f's_mov_b32 s{40+2*7}, s{S_SPIN}')
    if cfg.get('wgd'): a(f's_add_u32 s83, s83, s{S_SPIN}')
    if cfg['flags']: a(f"v_readfirstlane_b32 s{S_CV}, v{V['cu']}")
    hiw = a.newlabel('L_cbh'); rag = a.newlabel('L_rag'); rag2 = a.newlabel('L_rag'); nh = nh0; ny = a.newlabel('L_cny')
    def chores(adv=True):
        if cfg['flags']:
            slow2 = a.newlabel('L_us'); back2 = a.newlabel('L_ub')
            a(f's_cmp_lt_u32 s{S_CV}, 28\ns_cbranch_scc1 {slow2}\n{back2}:')
            def coldu():
                a.label(slow2)
                wait_cnt(a, S_CU, 28, 174)
                a(f's_branch {back2}')
            a.cold.append(coldu)
        if adv: step_advance(a, 458752)
        a(pre)
    def hi_tail():
        w2 = a.newlabel('L_cw2')
        ld = lambda r: f"buffer_load_dword v{r}, v{V['hm']}, {WSRD}, s{S_MOFF} offen sc1"
        a.label(hiw)
        step_advance(a, 458752)
        a(f"""
        s_cmp_eq_u32 s{S_WAVE}, 2
        s_waitcnt lgkmcnt(0)
        s_barrier
        s_cbranch_scc1 {w2}
        {ld(HT[0])}
        """)
        stamp(a, stamps, 5)
        chores(False)
        a(f"s_nop 4\n{ld(HT[1])}\ns_nop 12\n{ld(HT[2])}\ns_nop 12")
        wait_hint(a, V['hm'], S_MOFF, HT, delay=cfg['cdelay'], inner=cfg['hinner'], primed=True)
        a(f's_branch {nh}\n{w2}:')
        if cfg['cq']: a(f"s_sleep {cfg['cq']}")
        stamp(a, stamps, 5)
        chores(False)
        a(f's_branch {nh}')
    a.cold.append(hi_tail)
    a(f"""
    v_pk_add_f32 v[{A}:{A+1}], v[{A}:{A+1}], v[{A+2}:{A+3}]
    ds_write_b64 v{V['rw2']}, v[{A}:{A+1}] offset:{LDS_RED}
    v_pk_add_f32 v[{A+4}:{A+5}], v[{A+4}:{A+5}], v[{A+6}:{A+7}]
    ds_write_b64 v{V['rw2']}, v[{A+4}:{A+5}] offset:{LDS_RED+768}
    s_cmp_ge_u32 s{S_WAVE}, 2
    s_cbranch_scc1 {hiw}
    s_waitcnt lgkmcnt(0)
    s_barrier
    ds_read_b64 v[{R}:{R+1}], v{V['rr']} offset:{LDS_RED}
    ds_read_b64 v[{R+2}:{R+3}], v{V['rr']} offset:{LDS_RED+1536}
    ds_read_b64 v[{R+4}:{R+5}], v{V['rr']} offset:{LDS_RED+3072}
    ds_read_b64 v[{R+6}:{R+7}], v{V['rr']} offset:{LDS_RED+4608}
    s_waitcnt lgkmcnt(2)
    v_pk_add_f32 v[{R}:{R+1}], v[{R}:{R+1}], v[{R+2}:{R+3}]
    s_waitcnt lgkmcnt(0)
    v_pk_add_f32 v[{R+4}:{R+5}], v[{R+4}:{R+5}], v[{R+6}:{R+7}]
    v_pk_add_f32 v[{R}:{R+1}], v[{R}:{R+1}], v[{R+4}:{R+5}]
    v_cvt_pk_bf16_f32 v9, v{R}, v{R+1}
    buffer_store_dword v9, v{V['mw']}, {WSRD}, s{S_MOFF} offen {pf}
    """)
    if cfg['cert']: a(mh)
    stamp(a, stamps, 5)
    a(f"""
    s_cmp_lt_u32 s{S_STEP}, 62
    s_cbranch_scc1 {ny}
    s_add_u32 s{S_T0}, s{S_MOFF}, {L.MB_Y - L.MB_M}
    buffer_store_dword v9, v{V['mw']}, {WSRD}, s{S_T0} offen sc1
{ny}:
    """)
    chores()
    a(f's_branch {nh}')
    while a.cold: a.flush_cold()

def helper_cu(a, cfg):
    V = dict(l8=0, pa=1, idx=2, mf=12); LN = 112
    NP = cfg['npf']; D = cfg['pfd']; PER = cfg['pfper']
    a(f'v_mov_b32 v{LN}, v1')
    team_register(a)
    common_addrs(a, V, LN)
    a(f"""
    v_lshlrev_b32 v4, 7, v{LN}
    v_mov_b32 v3, v4
    v_mov_b32 v5, 0
    v_mov_b32 v6, 14
    s_sub_u32 s{S_ROLE}, s{S_ROLE}, 30
    s_lshl_b32 s{S_EOFF}, s{S_ROLE}, 2
    s_add_u32 s{S_EOFF}, s{S_EOFF}, s{S_WAVE}
    s_mov_b32 s{S_STEP}, 0
    s_mov_b32 s{S_MOFF}, {L.MB_M + 8192}
    s_mov_b32 s{S_CV}, {L.DUMMY + 0x200000}
    s_mul_i32 s{S_GOFF}, s{S_EOFF}, 7168
    s_add_u32 s{S_GOFF}, s{S_GOFF}, {L.XN}
    s_mov_b32 s{S_POFF}, 28672
    s_cmp_lt_u32 s{S_EOFF}, 4
    s_cbranch_scc1 H_t
    s_sub_u32 s{S_GOFF}, s{S_EOFF}, 4
    s_mul_i32 s{S_GOFF}, s{S_GOFF}, 6144
    s_add_u32 s{S_GOFF}, s{S_GOFF}, {L.MB_P}
    s_mov_b32 s{S_POFF}, 16384
    s_cmp_lt_u32 s{S_EOFF}, 6
    s_cbranch_scc1 H_t
    s_mov_b32 s{S_GOFF}, {L.MB_M + 8192}
    s_mov_b32 s{S_POFF}, 8192
    s_cmp_lt_u32 s{S_EOFF}, {7 if cfg['tlb'] else 8}
    s_cbranch_scc1 H_t
    s_mov_b32 s{S_GOFF}, {L.U + cfg['tlb']*458752}
    s_mov_b32 s{S_POFF}, 458752
    v_mul_u32_u24 v3, 7168, v{LN}
H_t:
    """)
    def mtouch():
        a(f'buffer_load_dword v7, v3, {WSRD}, s{S_GOFF} offen sc1\ns_add_u32 s{S_GOFF}, s{S_GOFF}, s{S_POFF}')
    if cfg['fused']: wait_ln(a, LN, 100)
    team_mode(a, V['mf'], V['mf']+1)
    a(f's_mov_b32 s{S_LIM}, {SPIN_MAX*4}')
    a(f"""
    s_getpc_b64 s[70:71]
H_pc:
    s_lshl_b32 s{S_T0}, s{S_EOFF}, 12
    v_lshrrev_b32 v10, 1, v4
    s_add_u32 s70, s70, s{S_T0}
    s_addc_u32 s71, s71, 0
    s_add_u32 s70, s70, L_nothelp-H_pc
    s_addc_u32 s71, s71, 0
    s_mov_b32 s72, s{S_GOFF}
    s_mov_b32 s{S_SPIN}, 0
    s_mov_b32 s73, {L.MB_P}
H_warm:
    s_mov_b32 s{S_GOFF}, s72
    global_load_dword v8, v10, s[70:71] sc1
    """)
    for _ in range(D+1): mtouch()
    a(f"""
    buffer_load_dword v9, v5, {WSRD}, s73 offen sc1
    s_add_u32 s{S_SPIN}, s{S_SPIN}, 1
    s_waitcnt vmcnt(0)
    v_cmp_eq_u32 vcc, -1, v9
    s_cbranch_vccz H_warmed
    s_sleep 8
    s_cmp_lt_u32 s{S_SPIN}, s{S_LIM}
    s_cbranch_scc1 H_warm
H_warmed:
    """)
    mul = {2: (128, 8), 3: (86, 8)}[PER]
    for k in range(NP):
        a(f"""
        s_add_u32 s{S_T0}, s{S_EOFF}, {8*k}
        s_min_u32 s{S_T0}, s{S_T0}, {14*PER-1}
        s_mul_i32 s{S_T1}, s{S_T0}, {mul[0]}
        s_lshr_b32 s{S_T1}, s{S_T1}, {mul[1]}
        s_mul_i32 s{S_T1}, s{S_T1}, {4-PER}
        s_add_u32 s{S_T0}, s{S_T0}, s{S_T1}
        s_lshl_b32 s{60+k}, s{S_T0}, 13
        s_add_u32 s{60+k}, s{60+k}, {L.U}
        """)
    def utouch():
        for k in range(NP):
            a(f'buffer_load_dword v{32+k}, v4, {WSRD}, s{60+k} offen sc1\ns_add_u32 s{60+k}, s{60+k}, 458752')
    a(f's_mov_b32 s{S_CU}, {L.CNT_U}')
    for _ in range(D if NP else 0):
        if cfg['flags']: wait_cnt(a, S_CU, 28, 30)
        utouch()
        a(f's_add_u32 s{S_CU}, s{S_CU}, 128')
    t = V['mf']; pa = V['pa']
    sk = a.newlabel('H_sk'); sk2 = a.newlabel('H_sk'); ok = a.newlabel('H_ok')
    a(f"""
H_top:
    s_mov_b32 s{S_SPIN}, 0
H_poll:
    buffer_load_dwordx4 v[{t}:{t+3}], v{pa}, {WSRD}, s{S_MOFF} offen sc1
    buffer_load_dwordx4 v[{t+4}:{t+7}], v{pa}, {WSRD}, s{S_MOFF} offen offset:768 sc1
    buffer_load_dword v30, v5, {WSRD}, s{S_CU} offen sc1
    s_add_u32 s{S_SPIN}, s{S_SPIN}, 1
    s_waitcnt vmcnt(0)
    v_max3_u32 v{t+8}, v{t}, v{t+1}, v{t+2}
    v_max3_u32 v{t+8}, v{t+8}, v{t+3}, v{t+4}
    v_max3_u32 v{t+8}, v{t+8}, v{t+5}, v{t+6}
    v_max_u32 v{t+8}, v{t+8}, v{t+7}
    v_readfirstlane_b32 s{S_T0}, v30
    v_cmp_eq_u32 vcc, -1, v{t+8}
    s_cbranch_vccz {ok}
    s_sleep {cfg['hsleep']}
    s_cmp_lt_u32 s{S_SPIN}, s{S_LIM}
    s_cbranch_scc1 H_poll
    s_mov_b32 s{S_LIM}, 1
{ok}:
    s_cmp_lg_u32 s{S_ROLE}, 0
    s_cbranch_scc1 {sk}
    s_add_u32 s{S_T1}, s{S_MOFF}, {L.MB_Y - L.MB_M}
    buffer_store_dwordx4 v[{t}:{t+3}], v{pa}, {WSRD}, s{S_T1} offen sc1
    buffer_store_dwordx4 v[{t+4}:{t+7}], v{pa}, {WSRD}, s{S_T1} offen offset:768 sc1
{sk}:
    s_cmp_ge_u32 s{S_STEP}, {63 - D}
    s_cbranch_scc1 {sk2}
    """)
    mtouch()
    if NP:
        sk3 = a.newlabel('H_sk'); sk4 = a.newlabel('H_sk')
        if cfg['flags']: a(f's_cmp_lt_u32 s{S_T0}, 28\ns_cbranch_scc1 {sk3}')
        utouch()
        a(f's_branch {sk4}\n{sk3}:')
        for k in range(NP): a(f's_add_u32 s{60+k}, s{60+k}, 458752')
        a(f'{sk4}:\ns_add_u32 s{S_CU}, s{S_CU}, 128')
    a(f"""
{sk2}:
    s_add_u32 s{S_STEP}, s{S_STEP}, 1
    s_add_u32 s{S_MOFF}, s{S_MOFF}, 8192
    s_cmp_lt_u32 s{S_STEP}, 62
    s_cbranch_scc1 H_top
    s_branch L_exit
    """)

DEFAULT_CFG = dict(ba=[35, 35, 34, 34], bak=3, bb=[53, 53, 0, 0], xflags='', ssleep=[2, 2, 2, 0], csleep=0, psleep=0, touch=1,
                   nou=0, nox=0, cflush=1, flags=0, ustep=3, hsleep=2, mdelay=5, pdelay=1, phint=9, lead=[4, 1], pnop=[0, 8], b5nop=2, npf=0, pfper=2, hdepth=4, hpre=10, psl=3, fl=1, mhk=0, px=9, quiet=7, cq=1, al=[0, 0, 0, 3, 1], prio=[0, 0, 0, 0], wfl='', fused=0, cpk=0, xa=(0, 4), xb=(4, 20), rxs=0, b4s=0, h64=0, mlin=1, pst=0, cert=0, b3s=0, reds=0, pw=27, fin1=0, tlb=0, xin=0, xstep=3, xs=4, xw=[(0, 0), (20, 24), (24, 28), (0, 0)], pbar=1, scap=None, ccap=None, m2=0, mdma=1, m2d=0, msamp=0, cdma=1, m2w=10, p2=32, cutrig=1, hinner=2, uearly=4, mhint=1, mhnop=0, sdrain=0, pfd=3, mpre=6, chint=1, cdelay=22)

def team_body(a, stamps=False, cfg=None):
    cfg = dict(DEFAULT_CFG, **(cfg or {}))
    a(f's_cmp_lt_u32 s{S_ROLE}, 30\ns_cbranch_scc1 L_nothelp')
    helper_cu(a, cfg)
    a.label('L_nothelp')
    a(f's_cmp_ge_u32 s{S_ROLE}, 16\ns_cbranch_scc1 L_comb')
    score_setup(a, stamps, cfg)
    for fast in (1, 0):
        a(f's_cmp_lg_u32 s{S_FAST}, {fast}\ns_cbranch_scc1 L_sc_next{fast}')
        for w in range(4):
            if w < 3:
                a(f's_cmp_lg_u32 s{S_WAVE}, {w}\ns_cbranch_scc1 L_sc{fast}_n{w}')
            score_wave(a, w, '' if fast else 'sc1', stamps, cfg)
            if w < 3: a.label(f'L_sc{fast}_n{w}')
        a.label(f'L_sc_next{fast}')
    a('s_branch L_exit')
    a.label('L_comb')
    comb_setup(a, stamps, cfg)
    for fast in (1, 0):
        a(f's_cmp_lg_u32 s{S_FAST}, {fast}\ns_cbranch_scc1 L_cb_next{fast}')
        comb_wave(a, '' if fast else 'sc1', stamps, cfg)
        a.label(f'L_cb_next{fast}')
    a('s_branch L_exit')
```

```python
from asmlib import *
import layout as L

SENT = -1
S_WS = 8
S_DBG = 12
S_ROLE = 16
S_WAVE = 17
S_XCC = 18
S_STEP = 19
S_FAST = 20
S_MOFF = 21; S_POFF = 22; S_EOFF = 23; S_GOFF = 24; S_XOFF = 25; S_T0 = 26; S_T1 = 27; S_SPIN = 28; S_LIM = 29
S_EXEC = 30
S_STMP = 32
S_TM = 34
SPIN_MAX = 20000
NTEAM = 32

LDS_M = 0
LDS_T = 7168
LDS_FL = 14336
LDS_VD = 18432
LDS_X = 20480
LDS_CF = 14336
LDS_NAN = 13312
LDS_RED = 7168
LDS_BW = 16384
LDS_ROLE = 160*1024 - 16

def prologue(a, stamps, pool_off=0, scatter=False, code=1, guess=0):
    if code:
        a('s_getpc_b64 s[40:41]\nM_pc:\nv_lshlrev_b32 v12, 7, v0\nglobal_load_dword v255, v12, s[40:41]')
        a('v_add_u32 v12, 32768, v12\nv_min_u32 v11, L_end-M_pc, v12\nglobal_load_dword v255, v11, s[40:41]')
    a(f'''
    s_cmp_ge_u32 s2, 256
    s_cbranch_scc1 L_end
    s_load_dwordx2 s[4:5], s[0:1], 96
    s_load_dwordx2 s[6:7], s[0:1], 88
    s_getreg_b32 s{S_XCC}, hwreg(HW_REG_XCC_ID, 0, 4)
    v_lshrrev_b32 v2, 6, v0
    v_and_b32 v1, 63, v0
    v_readfirstlane_b32 s{S_WAVE}, v2
    s_and_b32 s{S_XCC}, s{S_XCC}, 7
    s_waitcnt lgkmcnt(0)
    s_mov_b32 s{S_WS}, s4
    s_and_b32 s{S_WS+1}, s5, 0xffff
    s_mov_b32 s{S_WS+2}, {L.WS_BYTES}
    s_mov_b32 s{S_WS+3}, 0x20000
    s_mov_b32 s{S_DBG}, s6
    s_and_b32 s{S_DBG+1}, s7, 0xffff
    s_mov_b32 s{S_DBG+2}, 256
    s_mov_b32 s{S_DBG+3}, 0x20000
    v_mov_b32 v4, {LDS_ROLE}
    ''')
    if guess:
        a(f'''
        s_cmp_lg_u32 s{S_XCC}, 0
        s_cbranch_scc1 L_ng
        s_lshr_b32 s{S_T0}, s2, 3
        s_cmp_ge_u32 s{S_T0}, 30
        s_cbranch_scc1 L_ng
        s_mul_i32 s{S_T1}, s{S_T0}, 28
        s_add_u32 s{S_T1}, s{S_T1}, s{S_WAVE}
        s_mov_b32 s{S_STEP}, {4*14336}
        s_cmp_lt_u32 s{S_T0}, 16
        s_cbranch_scc1 L_gs
        s_lshl_b32 s{S_T1}, s{S_T0}, 1
        s_mul_i32 s{S_T0}, s{S_WAVE}, 112
        s_add_u32 s{S_T1}, s{S_T1}, s{S_T0}
        s_add_u32 s{S_T1}, s{S_T1}, {448 - 32 + 84}
        s_mov_b32 s{S_STEP}, 14336
L_gs:
        s_mul_i32 s{S_T1}, s{S_T1}, 14336
        s_add_u32 s{S_T1}, s{S_T1}, {L.WT}
        v_min_u32 v5, 55, v1
        v_lshlrev_b32 v5, 7, v5
        ''')
        for k in range(guess):
            a(f's_add_u32 s{S_T0}, s{S_T1}, 7168')
            a(f'buffer_load_dword v255, v5, s[{S_WS}:{S_WS+3}], s{S_T1} offen\nbuffer_load_dword v255, v5, s[{S_WS}:{S_WS+3}], s{S_T0} offen')
            a(f's_add_u32 s{S_T1}, s{S_T1}, s{S_STEP}')
        a.label('L_ng')
    a(f'''
    s_cmp_lg_u32 s{S_WAVE}, 0
    s_cbranch_scc1 L_role_wait
    s_mov_b64 exec, 1
    s_mov_b32 s{S_T0}, 0
L_role_try:
    {f's_lshr_b32 s{S_T1}, s2, 5' if scatter else f's_mov_b32 s{S_T1}, s{S_XCC}'}
    s_add_u32 s{S_T1}, s{S_T1}, s{S_T0}
    s_and_b32 s{S_T1}, s{S_T1}, 7
    s_lshl_b32 s{S_ROLE}, s{S_T1}, 7
    s_add_u32 s{S_ROLE}, s{S_ROLE}, {L.CNT_P + pool_off}
    v_mov_b32 v2, s{S_ROLE}
    v_mov_b32 v3, 1
    buffer_atomic_add v3, v2, s[{S_WS}:{S_WS+3}], 0 offen sc0
    s_waitcnt vmcnt(0)
    v_readfirstlane_b32 s{S_ROLE}, v3
    s_cmp_lt_u32 s{S_ROLE}, 32
    s_cbranch_scc1 L_role_got
    s_add_u32 s{S_T0}, s{S_T0}, 1
    s_cmp_lt_u32 s{S_T0}, 8
    s_cbranch_scc1 L_role_try
    s_mov_b32 s{S_ROLE}, 31
    s_mov_b32 s{S_T1}, 0
L_role_got:
    s_lshl_b32 s{S_T1}, s{S_T1}, 5
    s_add_u32 s{S_ROLE}, s{S_ROLE}, s{S_T1}
    v_mov_b32 v2, s{S_ROLE}
    ds_write_b32 v4, v2
    s_mov_b64 exec, -1
    s_waitcnt lgkmcnt(0)
L_role_wait:
    s_barrier
    ds_read_b32 v2, v4
    s_waitcnt lgkmcnt(0)
    v_readfirstlane_b32 s{S_ROLE}, v2
    ''')

FSL = [8, 32]
def wait_flags(a, vaddr, need, t, n=1):
    l = a.newlabel('L_wf'); d = a.newlabel('L_wfd')
    regs = [t] + [t+4+2*k for k in range(n-1)]
    a(f"""
    s_mov_b32 s{S_SPIN}, 0
    s_mov_b32 s{S_EXEC}, {L.FL}
    s_add_u32 s{S_EXEC+1}, s80, {need}
{l}:
    """)
    for k, r in enumerate(regs):
        a(f'buffer_load_dwordx2 v[{r}:{r+1}], v{vaddr}, s[{S_WS}:{S_WS+3}], s{S_EXEC} offen offset:{k*512} sc1')
    a(f's_add_u32 s{S_SPIN}, s{S_SPIN}, 1\ns_waitcnt vmcnt(0)')
    for k, r in enumerate(regs):
        a(f"""
        v_subrev_u32 v{r}, s{S_EXEC+1}, v{r}
        v_xor_b32 v{r+1}, s81, v{r+1}
        v_lshl_or_b32 v{t+2}, v{r+1}, 3, v{r+1}
        v_or_b32 v{r}, v{r}, v{t+2}
        """)
        if k: a(f'v_max_u32 v{t}, v{t}, v{r}')
    a(f"""
    v_cmp_lt_u32 vcc, {7 - need}, v{t}
    s_cbranch_vccz {d}
    s_sleep {FSL[n > 1]}
    s_cmp_lt_u32 s{S_SPIN}, {SPIN_MAX*4}
    s_cbranch_scc1 {l}
{d}:
    """)

def prologue_fused(a):
    a(f"""
    s_getreg_b32 s{S_XCC}, hwreg(HW_REG_XCC_ID, 0, 4)
    s_mov_b32 s{S_WAVE}, s20
    s_and_b32 s{S_XCC}, s{S_XCC}, 7
    s_mov_b32 s{S_DBG}, s56
    s_mov_b32 s{S_DBG+1}, s57
    s_mov_b32 s{S_DBG+2}, 256
    s_mov_b32 s{S_DBG+3}, 0x20000
    v_mov_b32 v4, {LDS_ROLE}
    s_cmp_lg_u32 s{S_WAVE}, 0
    s_barrier
    s_cbranch_scc1 L_role_wait
    s_mov_b64 exec, 1
    s_mov_b32 s{S_T0}, 0
    s_mov_b32 s{S_T1}, s{S_XCC}
    v_mov_b32 v3, v250
    s_branch L_role_see
L_role_try:
    s_add_u32 s{S_T1}, s{S_XCC}, s{S_T0}
    s_and_b32 s{S_T1}, s{S_T1}, 7
    s_lshl_b32 s{S_ROLE}, s{S_T1}, 2
    v_mov_b32 v2, s{S_ROLE}
    v_mov_b32 v3, 1
    buffer_atomic_add v3, v2, s[{S_DBG}:{S_DBG+3}], 0 offen sc0
    s_waitcnt vmcnt(0)
L_role_see:
    v_readfirstlane_b32 s{S_ROLE}, v3
    s_cmp_lt_u32 s{S_ROLE}, 32
    s_cbranch_scc1 L_role_got
    s_add_u32 s{S_T0}, s{S_T0}, 1
    s_cmp_lt_u32 s{S_T0}, 8
    s_cbranch_scc1 L_role_try
    s_mov_b32 s{S_ROLE}, 31
    s_mov_b32 s{S_T1}, 0
L_role_got:
    s_lshl_b32 s{S_T1}, s{S_T1}, 5
    s_add_u32 s{S_ROLE}, s{S_ROLE}, s{S_T1}
    v_mov_b32 v2, s{S_ROLE}
    ds_write_b32 v4, v2
    s_mov_b64 exec, -1
    s_waitcnt lgkmcnt(0)
L_role_wait:
    s_barrier
    ds_read_b32 v2, v4
    s_waitcnt lgkmcnt(0)
    v_readfirstlane_b32 s{S_ROLE}, v2
    """)

def wait_ln(a, lane, t, sleep=8):
    l = a.newlabel('L_wa'); d = a.newlabel('L_wad')
    a(f"""
    s_lshl_b32 s{S_T0}, s{S_WAVE}, 13
    s_add_u32 s{S_T0}, s{S_T0}, {L.FL}
    s_add_u32 s{S_T1}, s80, 7
    v_lshlrev_b32 v{t+8}, 7, v{lane}
    s_mov_b32 s{S_SPIN}, 0
{l}:
    buffer_load_dwordx4 v[{t}:{t+3}], v{t+8}, s[{S_WS}:{S_WS+3}], s{S_T0} offen sc1
    buffer_load_dwordx4 v[{t+4}:{t+7}], v{t+8}, s[{S_WS}:{S_WS+3}], s{S_T0} offen offset:16 sc1
    s_add_u32 s{S_SPIN}, s{S_SPIN}, 1
    s_waitcnt vmcnt(0)
    """)
    for k in range(4):
        a(f'v_xor_b32 v{t+2*k}, s{S_T1}, v{t+2*k}\nv_xor_b32 v{t+2*k+1}, s81, v{t+2*k+1}')
    a(f"""
    v_or3_b32 v{t}, v{t}, v{t+1}, v{t+2}
    v_or3_b32 v{t+3}, v{t+3}, v{t+4}, v{t+5}
    v_or3_b32 v{t}, v{t}, v{t+6}, v{t+7}
    v_or_b32 v{t}, v{t}, v{t+3}
    v_cmp_ne_u32 vcc, 0, v{t}
    s_cbranch_vccz {d}
    s_sleep {sleep}
    s_cmp_lt_u32 s{S_SPIN}, {SPIN_MAX*4}
    s_cbranch_scc1 {l}
{d}:
    s_barrier
    """)

STAGE1 = (0, 4, 8, 11)
def load_tiles(a, tiles, vaddr, sbase, stage, flags, bud, cap=None):
    for off, dsts in tiles:
        cur = None
        for k in range(14):
            if stage is not None and (k in STAGE1) != (stage == 1): continue
            if cur != k // 4:
                cur = k // 4
                a(f's_add_u32 s{S_T0}, s{sbase}, {off + cur*4096}')
            a(f'buffer_load_dwordx4 {dsts[k]}, v{vaddr}, s[{S_WS}:{S_WS+3}], s{S_T0} offen offset:{(k%4)*1024} {flags}')
            bud[0] += 1
            if cap is not None:
                if bud[0] > cap: a(f's_waitcnt vmcnt({cap})')
            elif bud[0] >= 56:
                a('s_waitcnt vmcnt(28)'); bud[0] = 28

def team_register(a):
    l = a.newlabel('L_reg')
    a(f'''
    s_cmp_lg_u32 s{S_WAVE}, 0
    s_cbranch_scc1 {l}
    s_cmp_eq_u32 s{S_XCC}, 0
    s_cselect_b32 s{S_T0}, 1, 0x10001
    s_mov_b64 exec, 1
    v_mov_b32 v2, 64
    v_mov_b32 v3, s{S_T0}
    buffer_atomic_add v3, v2, s[{S_DBG}:{S_DBG+3}], 0 offen
    s_mov_b64 exec, -1
{l}:
    ''')

def team_mode_load(vt0, vt1):
    return f'v_mov_b32 v{vt0}, 64\nbuffer_load_dword v{vt1}, v{vt0}, s[{S_DBG}:{S_DBG+3}], 0 offen sc1'

def team_mode(a, vt0, vt1, primed=False):
    l = a.newlabel('L_mode'); d = a.newlabel('L_moded'); p = a.newlabel('L_modep')
    a(f'''
    s_mov_b32 s{S_SPIN}, 0
    {f's_branch {p}' if primed else ''}
{l}:
    {team_mode_load(vt0, vt1)}
{p}:
    s_waitcnt vmcnt(0)
    v_readfirstlane_b32 s{S_T0}, v{vt1}
    s_and_b32 s{S_T1}, s{S_T0}, 0xffff
    s_cmp_ge_u32 s{S_T1}, {NTEAM}
    s_cbranch_scc1 {d}
    s_sleep 2
    s_add_u32 s{S_SPIN}, s{S_SPIN}, 1
    s_cmp_lt_u32 s{S_SPIN}, {SPIN_MAX}
    s_cbranch_scc1 {l}
    s_mov_b32 s{S_T0}, 0x10000
{d}:
    s_lshr_b32 s{S_T0}, s{S_T0}, 16
    s_cmp_eq_u32 s{S_T0}, 0
    s_cselect_b32 s{S_FAST}, 1, 0
    s_mov_b32 s{S_LIM}, {SPIN_MAX}
    ''')

def stamp(a, stamps, idx, vt=None):
    if not stamps: return
    a(f's_memtime s[{40+2*idx}:{41+2*idx}]')
    if idx == 2: a('s_memrealtime s[60:61]')

def stamp_flush(a, stamps, n, vt):
    if not stamps: return
    a('s_waitcnt lgkmcnt(0)')
    for k in range(n):
        a(f'v_writelane_b32 v{vt}, s{40+2*k}, {k}')
    a(f"""
    v_lshrrev_b32 v{vt+1}, 1, v0
    s_mov_b64 exec, {(1 << n) - 1}
    buffer_store_dword v{vt}, v{vt+1}, s[{S_WS}:{S_WS+3}], s{S_STMP} offen
    s_mov_b64 exec, -1
    """)

def wreg(wb, vbase):
    return ar(8*wb, 8) if wb < 32 else vr(vbase + 8*(wb-32), 8)
def wreg_half(wb, vbase, half):
    return ar(8*wb + 4*half, 4) if wb < 32 else vr(vbase + 8*(wb-32) + 4*half, 4)

def xlane4(a, op, x, t):
    a(f'''
    v_mov_b32 v{t}, v{x}
    v_permlane16_swap_b32 v{x}, v{t}
    {op} v{x}, v{x}, v{t}
    v_mov_b32 v{t}, v{x}
    v_permlane32_swap_b32 v{x}, v{t}
    {op} v{x}, v{x}, v{t}
    ''')

QP = 'quad_perm:[2,3,0,1] row_mask:0xf bank_mask:0xf'

def read_mf(a, V):
    for b in range(7):
        a(f"ds_read_b64_tr_b16 v[{V['mf']+4*b}:{V['mf']+4*b+1}], v{V['l8']} offset:{LDS_M+b*1024}")
        a(f"ds_read_b64_tr_b16 v[{V['mf']+4*b+2}:{V['mf']+4*b+3}], v{V['l8']} offset:{LDS_M+b*1024+512}")

def SM(acc, A, B, idx):
    return f'v_smfmac_f32_16x16x64_bf16 v[{acc}:{acc+3}], v[{A}:{A+3}], {B}, v{idx}'


class Q:
    def __init__(self, name, cap):
        self.name = name; self.n = 0; self.tags = {}; self.done = 0; self.cap = cap
    def issue(self, tag=None):
        self.n += 1
        if tag is not None: self.tags[tag] = self.n
    def wait(self, tag):
        k = self.tags[tag]
        if k <= self.done: return ''
        self.done = k
        return 's_waitcnt %s(%d)' % (self.name, min(self.n - k, self.cap))
    def drain(self):
        self.done = self.n
        return 's_waitcnt %s(0)' % self.name

WSRD = f's[{S_WS}:{S_WS+3}]'

def poll_m(a, V, sleep=0):
    t = V['mf']; pa = V['pa']
    l = a.newlabel('L_pm'); d = a.newlabel('L_pmd')
    a(f"""
    s_mov_b32 s{S_SPIN}, 0
{l}:
    buffer_load_dwordx4 v[{t}:{t+3}], v{pa}, {WSRD}, s{S_MOFF} offen sc1
    buffer_load_dwordx4 v[{t+4}:{t+7}], v{pa}, {WSRD}, s{S_MOFF} offen offset:768 sc1
    s_add_u32 s{S_SPIN}, s{S_SPIN}, 1
    s_waitcnt vmcnt(1)
    ds_write_b128 v{pa}, v[{t}:{t+3}]
    v_max3_u32 v{t+8}, v{t}, v{t+1}, v{t+2}
    s_waitcnt vmcnt(0)
    ds_write_b128 v{pa}, v[{t+4}:{t+7}] offset:768
    v_max3_u32 v{t+8}, v{t+8}, v{t+3}, v{t+4}
    v_max3_u32 v{t+8}, v{t+8}, v{t+5}, v{t+6}
    v_max_u32 v{t+8}, v{t+8}, v{t+7}
    v_cmp_eq_u32 vcc, -1, v{t+8}
    s_cbranch_vccz {d}
    {'s_sleep %d' % sleep if sleep else ''}
    s_cmp_lt_u32 s{S_SPIN}, s{S_LIM}
    s_cbranch_scc1 {l}
    s_mov_b32 s{S_LIM}, 1
{d}:
    s_waitcnt lgkmcnt(0)
    s_barrier
    """)

def poll_m2(a, V, gap, x):
    pa = V['pa']; sets = (V['acc']+8, V['acc']+16)
    l = a.newlabel('L_pm'); d = a.newlabel('L_pmd')
    def issue(t):
        a(f"""
        buffer_load_dwordx4 v[{t}:{t+3}], v{pa}, {WSRD}, s{S_MOFF} offen sc1
        buffer_load_dwordx4 v[{t+4}:{t+7}], v{pa}, {WSRD}, s{S_MOFF} offen offset:768 sc1
        """)
    def check(t):
        a(f"""
        s_add_u32 s{S_SPIN}, s{S_SPIN}, 1
        s_waitcnt vmcnt(3)
        ds_write_b128 v{pa}, v[{t}:{t+3}]
        v_max3_u32 v{x}, v{t}, v{t+1}, v{t+2}
        s_waitcnt vmcnt(2)
        ds_write_b128 v{pa}, v[{t+4}:{t+7}] offset:768
        v_max3_u32 v{x}, v{x}, v{t+3}, v{t+4}
        v_max3_u32 v{x}, v{x}, v{t+5}, v{t+6}
        v_max_u32 v{x}, v{x}, v{t+7}
        v_cmp_eq_u32 vcc, -1, v{x}
        """)
    a(f's_mov_b32 s{S_SPIN}, 0')
    issue(sets[0])
    while gap > 0:
        a(f's_nop {min(gap, 16) - 1}'); gap -= 16
    issue(sets[1]); check(sets[0])
    a(f's_cbranch_vccnz {l}\n{d}:\ns_waitcnt lgkmcnt(0)\ns_barrier')
    def cold():
        a.label(l)
        issue(sets[0]); check(sets[1])
        a(f's_cbranch_vccz {d}')
        issue(sets[1]); check(sets[0])
        a(f"""
        s_cbranch_vccz {d}
        s_cmp_lt_u32 s{S_SPIN}, s{S_LIM}
        s_cbranch_scc1 {l}
        s_mov_b32 s{S_LIM}, 1
        s_branch {d}
        """)
    a.cold.append(cold)

def wait_hint(a, vaddr, soff, regs, imm=0, delay=0, gap=12, inner=8, fill=None, primed=False):
    n = len(regs)
    l = a.newlabel('L_h'); d = a.newlabel('L_hd')
    ld = lambda r: f'buffer_load_dword v{r}, v{vaddr}, {WSRD}, s{soff} offen offset:{imm} sc1'
    a(f's_mov_b32 s{S_SPIN}, 0')
    fill = list(fill or [])
    per = -(-len(fill) // (n-1))
    for k in range(0 if primed else n-1):
        a(ld(regs[k]))
        for x in fill[k*per:(k+1)*per]: a(x)
        if per < gap: a(f's_nop {gap - per}')
    a.label(l)
    for k in range(n):
        a(f"""
        {ld(regs[(k+n-1) % n])}
        s_waitcnt vmcnt({n-1})
        v_cmp_eq_u32 vcc, -1, v{regs[k]}
        s_cbranch_vccz {d}
        s_nop {inner}
        """)
    a(f"""
    s_add_u32 s{S_SPIN}, s{S_SPIN}, 1
    s_cmp_lt_u32 s{S_SPIN}, s{S_LIM}
    s_cbranch_scc1 {l}
{d}:
    """)
    while delay > 0:
        a(f's_nop {min(delay, 16) - 1}'); delay -= 16

def wait_cnt(a, off_sgpr, target, vt, sleep=4, primed=False):
    l = a.newlabel('L_wc'); d = a.newlabel('L_wcd'); p = a.newlabel('L_wcp')
    a(f"""
    s_mov_b32 s{S_SPIN}, 0
    v_mov_b32 v{vt}, 0
    {f's_branch {p}' if primed else ''}
{l}:
    buffer_load_dword v{vt+1}, v{vt}, {WSRD}, s{off_sgpr} offen sc1
{p}:
    s_add_u32 s{S_SPIN}, s{S_SPIN}, 1
    s_waitcnt vmcnt(0)
    v_readfirstlane_b32 s{S_T0}, v{vt+1}
    s_cmp_ge_u32 s{S_T0}, {target}
    s_cbranch_scc1 {d}
    s_sleep {sleep}
    s_cmp_lt_u32 s{S_SPIN}, s{S_LIM}
    s_cbranch_scc1 {l}
    s_mov_b32 s{S_LIM}, 1
{d}:
    """)

def img_addr(a, dst, t, lane):
    a(f"""
    v_bfe_u32 v{dst}, v{lane}, 3, 1
    v_lshlrev_b32 v{dst}, 9, v{dst}
    v_bfe_u32 v{t}, v{lane}, 2, 1
    v_lshl_add_u32 v{dst}, v{t}, 6, v{dst}
    v_and_b32 v{t}, 1, v{lane}
    v_lshl_add_u32 v{dst}, v{t}, 5, v{dst}
    v_lshrrev_b32 v{t}, 4, v{lane}
    v_lshl_add_u32 v{dst}, v{t}, 3, v{dst}
    v_bfe_u32 v{t}, v{lane}, 1, 1
    v_lshl_add_u32 v{dst}, v{t}, 2, v{dst}
    """)

def common_addrs(a, V, LN):
    a(f"""
    v_lshlrev_b32 v{V['l8']}, 3, v{LN}
    s_mul_i32 s{S_T0}, s{S_WAVE}, {112*16}
    v_lshlrev_b32 v{V['pa']}, 4, v{LN}
    v_add_u32 v{V['pa']}, s{S_T0}, v{V['pa']}
    v_and_b32 v{LN+1}, 2, v{LN}
    v_cmp_ne_u32 vcc, 0, v{LN+1}
    v_mov_b32 v{LN+1}, 0x4444
    v_mov_b32 v{LN+2}, 0xeeee
    v_cndmask_b32 v{V['idx']}, v{LN+1}, v{LN+2}, vcc
    """)

def load_1k_run(a, dsts, vaddr, sbase, flags='', budget=None):
    for i, d in enumerate(dsts):
        if i and i % 4 == 0:
            a(f's_add_u32 s{sbase}, s{sbase}, 4096')
        a(f'buffer_load_dwordx4 {d}, v{vaddr}, {WSRD}, s{sbase} offen offset:{(i%4)*1024} {flags}')
        if budget is not None:
            budget[0] += 1
            if budget[0] >= 56:
                a('s_waitcnt vmcnt(28)'); budget[0] = 28

class Gaps:
    def __init__(self, n):
        self.ds = [[] for _ in range(n)]; self.va = [[] for _ in range(n)]; self.pre = [[] for _ in range(n)]
        self.n = n
    def put(self, kind, g, text, excl=False):
        while g < self.n - 1:
            if excl:
                if not self.ds[g] and not self.va[g]: break
            else:
                lst = self.ds[g] if kind == 'ds' else self.va[g]
                other = self.va[g] if kind == 'ds' else self.ds[g]
                if not lst and not (other and other[-1][1]): break
            g += 1
        (self.ds if kind == 'ds' else self.va)[g].append((text, excl))
        return g
    def force(self, kind, g, text):
        (self.ds if kind == 'ds' else self.va)[min(g, self.n-1)].append((text, False))

def emit_stream(a, mf, gp, lq, pre=None):
    for i, (m, tags) in enumerate(mf):
        for tg in tags:
            w = lq.wait(tg)
            if w: a(w)
        a(m)
        for lst in (gp.ds[i], gp.va[i]):
            for x, _ in lst:
                t = x(lq) if callable(x) else x
                if t: a(t)

def dsop(text, tag=None):
    def f(lq):
        lq.issue(tag); return text
    return f
def dswait(tag, then=''):
    def f(lq):
        return lq.wait(tag) + '\n' + then
    return f

SV = dict(l8=0, pa=1, idx=2, k1=3, mf=12, acc=40, w=64)
def tile_of(w, u):
    if u < 5: return (u, w)
    order = {(0, 5): (5, 0), (1, 5): (5, 1), (2, 5): (5, 2), (2, 6): (5, 3), (0, 6): (6, 0), (1, 6): (6, 1), (0, 7): (6, 2), (1, 7): (6, 3)}
    return order[(w, u)]
NUNIT = [8, 8, 7, 5]
F = dict(l16=4, px=5, pm=6, mk0=7, mk1=8, mk2=9, wz=10, xf=88, tf=200, sa=228, t=240)

def score_setup(a, stamps, cfg):
    V = SV; LN = 44
    a(f'v_mov_b32 v{LN}, v1')
    team_register(a)
    common_addrs(a, V, LN)
    img_addr(a, V['k1'], LN+1, LN)
    g, cc, par, ib, t = LN+1, LN+2, LN+3, LN+4, LN+5
    a(f"""
    v_lshlrev_b32 v{F['l16']}, 4, v{LN}
    v_lshrrev_b32 v{g}, 4, v{LN}
    v_bfe_u32 v{cc}, v{LN}, 2, 2
    v_bfe_u32 v{par}, v{LN}, 1, 1
    v_and_b32 v{ib}, 1, v{LN}
    v_and_b32 v{t}, 15, v{LN}
    v_lshlrev_b32 v{F['px']}, 4, v{t}
    v_lshrrev_b32 v{t}, 1, v{g}
    v_lshl_add_u32 v{F['px']}, v{t}, 8, v{F['px']}
    v_and_b32 v{t}, 1, v{g}
    v_lshl_add_u32 v{F['px']}, v{t}, 3, v{F['px']}
    s_and_b32 s{S_T0}, s{S_ROLE}, 1
    s_lshl_b32 s{S_T0}, s{S_T0}, 4
    s_lshr_b32 s{S_T1}, s{S_ROLE}, 2
    s_lshl_b32 s{S_T1}, s{S_T1}, 9
    s_add_u32 s{S_T0}, s{S_T0}, s{S_T1}
    s_and_b32 s{S_T1}, s{S_ROLE}, 2
    s_lshl_b32 s{S_T1}, s{S_T1}, 1
    s_add_u32 s{S_T0}, s{S_T0}, s{S_T1}
    s_add_u32 s{S_T0}, s{S_T0}, 8192
    v_and_b32 v{F['pm']}, 0xffffffef, v{V['l8']}
    v_add_u32 v{F['pm']}, s{S_T0}, v{F['pm']}
    s_lshl_b32 s{S_T0}, s{S_ROLE}, 9
    v_add_u32 v{F['px']}, s{S_T0}, v{F['px']}
    v_lshlrev_b32 v{t}, 4, v{ib}
    v_mov_b32 v{F['mk2']}, 0xffff
    v_lshlrev_b32 v{F['mk2']}, v{t}, v{F['mk2']}
    v_cmp_eq_u32 vcc, v{cc}, v{g}
    v_mov_b32 v{t}, 0
    v_cndmask_b32 v{F['mk2']}, v{t}, v{F['mk2']}, vcc
    v_cmp_eq_u32 vcc, 0, v{par}
    v_mov_b32 v{t+1}, 0xff800000
    v_cndmask_b32 v{F['mk0']}, v{t}, v{F['mk2']}, vcc
    v_cndmask_b32 v{F['mk1']}, v{F['mk2']}, v{t}, vcc
    v_cndmask_b32 v{F['wz']}, v{t+1}, v{t}, vcc
    s_mul_i32 s{S_T1}, s{S_ROLE}, {28*14336}
    s_add_u32 s{S_T1}, s{S_T1}, {L.WT}
    """)
    done = a.newlabel('L_sw')
    fz = cfg['fused']
    if fz:
        a(f"v_min_u32 v{LN+8}, 27, v{LN}\nv_lshlrev_b32 v{LN+8}, 3, v{LN+8}\ns_mul_i32 s{S_T0}, s{S_ROLE}, {14*32}\nv_add_u32 v{LN+8}, s{S_T0}, v{LN+8}")
        wait_flags(a, LN+8, 1, LN+10)
    for w in range(4):
        nx = a.newlabel('L_swn')
        if w < 3: a(f's_cmp_lg_u32 s{S_WAVE}, {w}\ns_cbranch_scc1 {nx}')
        tiles = []
        for u in range(NUNIT[w]):
            b, ga = tile_of(w, u)
            tiles.append(((4*b+ga)*14336, [wreg_half(u*7 + k//2, V['w'], k % 2) for k in range(14)]))
        if fz:
            load_tiles(a, tiles, F['l16'], S_T1, 1, cfg['wfl'], [0])
            wait_flags(a, LN+8, 7, LN+10)
            load_tiles(a, tiles, F['l16'], S_T1, 2, cfg['wfl'], [0])
        else:
            load_tiles(a, tiles, F['l16'], S_T1, None, cfg['wfl'], [0], cfg['scap'])
        if w < 3: a(f's_branch {done}\n{nx}:')
    a(f"""
{done}:
    {team_mode_load(V['mf'], V['mf']+1) if not fz else ''}
    s_mov_b32 s{S_STEP}, 0
    s_mov_b32 s{S_MOFF}, {L.MB_M}
    s_mov_b32 s{S_POFF}, {L.MB_P}
    s_mov_b32 s{S_GOFF}, {L.XN}
    s_lshl_b32 s{S_STMP}, s{S_ROLE}, 2
    s_add_u32 s{S_STMP}, s{S_STMP}, s{S_WAVE}
    s_lshl_b32 s{S_STMP}, s{S_STMP}, 12
    s_add_u32 s{S_STMP}, s{S_STMP}, {L.STAMP}
    """)
    if fz:
        wait_ln(a, LN, 12)
    else:
        nf = a.newlabel('L_nx0')
        a(f's_cmp_lg_u32 s{S_WAVE}, 3\ns_cbranch_scc1 {nf}\ns_waitcnt vmcnt(30)\ns_mov_b32 s{S_T0}, s{S_GOFF}')
        load_1k_run(a, [vr(F['xf'] + 4*k, 4) for k in range(28)], F['l16'], S_T0, cfg['wfl'])
        a.label(nf)
    team_mode(a, V['mf'], V['mf']+1, primed=not fz)

def step_advance(a, gstride, xstride=114688):
    a(f"""
    s_add_u32 s{S_STEP}, s{S_STEP}, 1
    s_add_u32 s{S_MOFF}, s{S_MOFF}, 8192
    s_add_u32 s{S_POFF}, s{S_POFF}, 16384
    s_add_u32 s{S_GOFF}, s{S_GOFF}, {gstride}
    s_add_u32 s{S_XOFF}, s{S_XOFF}, {xstride}
    s_add_u32 s{S_STMP}, s{S_STMP}, 64
    """)

def rowred(a, op, x):
    for m in ('row_ror:8', 'row_ror:4', 'row_ror:2', 'row_ror:1'):
        for r in (x, x+1):
            a(f'{op}_dpp v{r}, v{r}, v{r} {m} row_mask:0xf bank_mask:0xf')

def score_wave(a, w, pf, stamps, cfg):
    V = SV; idx = V['idx']; mf = V['mf']
    top = a.newlabel(f'L_sc{w}_top'); first = a.newlabel(f'L_sc{w}_first')
    nunit = NUNIT[w]
    accof = lambda u: V['acc'] + 4*(u % 6)
    ok = {0: (0, 9, 2), 1: (2,), 2: (0, 9, 1, 2), 3: (4,) if cfg['fin1'] else (7, 8, 4)}[w]
    ST = (lambda k: f's_memtime s[{40+2*k}:{41+2*k}]' if k in ok else '') if stamps else (lambda k: '')
    def stamp(a, stamps, k):
        a(ST(k))
    xf, tf, sa, T = F['xf'], F['tf'], F['sa'], F['t']
    FA, FV = 8, 9
    HA = 11
    HT = ([5, 6, 7, 10] if w < 3 else [T+4, T+5, T+6, T+7])[:cfg['hdepth']]
    def load_x():
        a(f's_mov_b32 s{S_T0}, s{S_GOFF}')
        load_1k_run(a, [vr(xf + 4*k, 4) for k in range(28)], F['l16'], S_T0, cfg['wfl'])
    XW = cfg['xw']
    def dma_x(a=a, rng=None, ahead=1):
        lo, hi = rng or XW[w]
        if hi <= lo: return
        a(f"""
        s_and_b32 s{S_T0}, s{S_STEP}, 1
        s_xor_b32 s{S_T0}, s{S_T0}, {ahead & 1}
        s_mul_i32 s{S_T0}, s{S_T0}, 28672
        s_add_u32 s{S_T0}, s{S_T0}, {LDS_X + lo*1024}
        s_add_u32 s{S_T1}, s{S_GOFF}, {ahead*28672 + lo*1024 - w*1792}
        """)
        for k in range(hi - lo):
            if k % 4 == 0:
                if k: a(f's_add_u32 s{S_T0}, s{S_T0}, 4096\ns_add_u32 s{S_T1}, s{S_T1}, 4096')
                a(f's_mov_b32 m0, s{S_T0}')
            a(f"buffer_load_dwordx4 v{V['pa']}, {WSRD}, s{S_T1} offen offset:{(k%4)*1024} {cfg['wfl']} lds")
    def read_x():
        a(f"""
        s_and_b32 s{S_T0}, s{S_STEP}, 1
        s_mul_i32 s{S_T0}, s{S_T0}, 28672
        v_add_u32 v{T}, s{S_T0}, v{F['l16']}
        """)
        for k in range(28): a(f'ds_read_b128 v[{xf+4*k}:{xf+4*k+3}], v{T} offset:{LDS_X + k*1024}')
    def zero_acc():
        for u in range(2 if cfg['m2'] else min(6, nunit)):
            a(f'v_mov_b64 v[{accof(u)}:{accof(u)+1}], 0\nv_mov_b64 v[{accof(u)+2}:{accof(u)+3}], 0')
        if w == 3:
            for k in range(4): a(f'v_mov_b64 v[{sa+2*k}:{sa+2*k+1}], 0')
            a(f"v_mov_b32 v{sa+8}, v{F['wz']}\nv_mov_b32 v{sa+9}, v{F['wz']}\nv_mov_b64 v[{sa+10}:{sa+11}], 0")
    a(f"v_lshrrev_b32 v{HA}, 1, v{V['l8']}\nv_min_u32 v{HA}, {(27 if cfg['cert'] else 55)*4}, v{HA}\ns_and_b32 s{S_T0}, s{S_ROLE}, 3\ns_lshl_b32 s{S_T0}, s{S_T0}, 8\ns_add_u32 s{S_T0}, s{S_T0}, 7168\nv_add_u32 v{HA}, s{S_T0}, v{HA}")
    if cfg['h64']:
        a(f"""
        v_lshrrev_b32 v{HA}, 3, v{V['l8']}
        v_min_u32 v{HA}, 55, v{HA}
        v_and_b32 v{mf}, 3, v{HA}
        v_lshrrev_b32 v{HA}, 2, v{HA}
        v_lshlrev_b32 v{HA}, 6, v{HA}
        v_lshl_add_u32 v{HA}, v{mf}, 2, v{HA}
        v_add_u32 v{HA}, 7168, v{HA}
        """)
    if w == 3:
        if cfg['fused']: load_x()
        a(f'v_and_b32 v{T+12}, {15*8}, v0\nv_lshlrev_b32 v{T+12}, 3, v{T+12}\nv_add_u32 v{T+12}, 6144, v{T+12}')
        if stamps: a('s_mov_b32 s40, 0\ns_mov_b32 s42, 0\ns_mov_b32 s44, 0')
        a(f's_mov_b32 s{S_EOFF}, 0\ns_lshl_b32 s{S_T0}, s{S_ROLE}, 2\ns_add_u32 s{S_T0}, s{S_T0}, 12288\nv_lshlrev_b32 v{T+14}, 4, v0\nv_add_u32 v{T+14}, s{S_T0}, v{T+14}\nv_mov_b32 v{T+15}, 0')
    else:
        a(f"v_add_u32 v{FA}, {LDS_FL + 4*w}, v{F['l16']}\nv_mov_b32 v{FV}, 0")
        for k in range(5): a(f'ds_write_b32 v{FA}, v{FV} offset:{k*1024}')
        a(f'v_and_b32 v4, {31*8}, v0\nv_lshlrev_b32 v4, 3, v4\nv_add_u32 v4, {w*2048}, v4')
    if w < 3 and not cfg['xin']: dma_x(rng=[(0, 9), (9, 18), (18, 28)][w])
    if cfg['prio'][w]: a(f"s_setprio {cfg['prio'][w]}")
    zero_acc()
    if cfg.get('wgd'): a('s_memrealtime s[88:89]\ns_memrealtime s[96:97]')
    a(f's_branch {first}')
    if cfg['al'] is not None:
        a.raw('    .p2align 6')
        for _ in range(cfg['al'][w]): a.raw('    s_nop 0')
    a.label(top)
    zero_acc()
    stamp(a, stamps, 0)
    if cfg['cert']:
        got = a.newlabel('L_got')
        a(f'v_add_u32 v{FV}, 1, v{FV}' if w < 3 else f's_add_u32 s{S_EOFF}, s{S_EOFF}, 1')
        a(f's_mov_b32 s{S_SAFE}, 0')
        if w == 0:
            ND = cfg['cert']; regs = HT[:ND]
            lp = a.newlabel('L_ct'); dn = a.newlabel('L_ctd')
            def rnd(r):
                a(f'buffer_load_dword v{r}, v{HA}, {WSRD}, s{S_MOFF} offen sc1\ns_mov_b32 m0, {LDS_M}')
                for k in range(7):
                    if k == 4: a(f's_mov_b32 m0, {LDS_M + 4096}')
                    a(f"buffer_load_dwordx4 v{V['pa']}, {WSRD}, s{S_MOFF if k < 4 else S_T0} offen offset:{(k%4)*1024} sc1 lds")
            a(f's_add_u32 s{S_T0}, s{S_MOFF}, 4096\ns_mov_b32 s{S_SPIN}, 0')
            a(ST(9))
            for k in range(ND-1): rnd(regs[k])
            a.label(lp)
            for k in range(ND):
                rnd(regs[(k+ND-1) % ND])
                a(f"""
                s_add_u32 s{S_SPIN}, s{S_SPIN}, 1
                s_waitcnt vmcnt({8*ND-1})
                v_cmp_eq_u32 vcc, -1, v{regs[k]}
                s_cbranch_vccz {dn}
                """)
            a(f's_cmp_lt_u32 s{S_SPIN}, s{S_LIM}\ns_cbranch_scc1 {lp}\n{dn}:\ns_waitcnt vmcnt({8*(ND-1)}) lgkmcnt(0)')
        else:
            a('s_waitcnt vmcnt(0) lgkmcnt(0)')
        a(f's_barrier\n{got}:')
        def coldf():
            a.label(first)
            a(f'v_add_u32 v{FV}, 1, v{FV}' if w < 3 else f's_add_u32 s{S_EOFF}, s{S_EOFF}, 1')
            a(f's_mov_b32 s{S_SAFE}, 1')
            poll_m(a, V)
            a(f's_branch {got}')
        a.cold.append(coldf)
    else:
        if cfg['msamp'] == 2: a(f'v_mov_b32 v{mf if w < 3 else T+13}, 0')
        if cfg['mdma'] == 2: a(f's_mov_b32 m0, {LDS_M}\ns_add_u32 s{S_T0}, s{S_MOFF}, 4096')
        elif cfg['split']: a(f's_mov_b32 m0, {LDS_M + w*1024}\ns_sub_u32 s{S_T0}, s{S_MOFF}, {w*768}\ns_add_u32 s{S_T1}, s{S_T0}, 4096')
        elif cfg['mdma']: a(f's_mov_b32 m0, {LDS_M + w*2048}\ns_add_u32 s{S_T0}, s{S_MOFF}, {w*2048 - w*1792}')
        if not cfg['cutrig'] or w == 0: wait_hint(a, HA, S_MOFF, HT, delay=cfg['mdelay'], inner=cfg['hinner'])
        if cfg['cutrig'] and cfg['mdma'] != 2: a('s_barrier')
    if cfg['cert']: pass
    elif cfg['mdma']:
        got = a.newlabel('L_got')
        a(ST(9))
        if cfg['split']:
            a(f"buffer_load_dwordx4 v{V['pa']}, {WSRD}, s{S_T0} offen sc1 lds")
            a(f'v_add_u32 v{FV}, 1, v{FV}' if w < 3 else f's_add_u32 s{S_EOFF}, s{S_EOFF}, 1')
            a(f's_mov_b32 s{S_SAFE}, 0\ns_mov_b32 s{S_SPIN}, 1\ns_mov_b32 m0, {LDS_M + 4096 + w*1024}')
            if w < 3:
                a(f"s_nop {cfg['split']}\nbuffer_load_dwordx4 v{V['pa']}, {WSRD}, s{S_T1} offen sc1 lds")
            a(f's_waitcnt vmcnt({1 if w < 3 else 0}) lgkmcnt(0)\ns_barrier\n{got}:')
        else:
            nk = 2 if w < 3 else 1
            SA_ = (4 if w < 3 else T+12)
            def rnd(r):
                if cfg['msamp'] == 2:
                    a(f"s_mov_b64 exec, {0x55555555 if w < 3 else 0x5555}\nbuffer_load_dword v{r}, v{SA_}, {WSRD}, s{S_MOFF} offen sc1\ns_mov_b64 exec, -1")
                elif cfg['msamp']: a(f"buffer_load_dword v{r}, v{SA_}, {WSRD}, s{S_MOFF} offen sc1")
                for k in range(nk): a(f"buffer_load_dwordx4 v{V['pa']}, {WSRD}, s{S_T0} offen offset:{k*1024} sc1 lds")
            r0, r1 = (mf, HT[1]) if w < 3 else (T+13, T+15)
            two = cfg['m2d']
            rnd(r0)
            a(f'v_add_u32 v{FV}, 1, v{FV}' if w < 3 else f's_add_u32 s{S_EOFF}, s{S_EOFF}, 1')
            a(f's_mov_b32 s{S_SAFE}, 0\ns_mov_b32 s{S_SPIN}, 1')
            if two:
                gap = two
                while gap > 0:
                    a(f's_nop {min(gap, 16) - 1}'); gap -= 16
                rnd(r1)
            ex = (nk+1) if two else 0
            bad = a.newlabel('L_mbad'); okl = a.newlabel('L_mok')
            a(f"""
            {f's_waitcnt vmcnt({nk + ex})' if cfg['msamp'] else ''}
            {f'v_cmp_eq_u32 vcc, -1, v{r0}' if cfg['msamp'] else ''}
            {f's_cbranch_vccnz {bad}' if cfg['msamp'] else ''}
            s_waitcnt vmcnt({ex}) lgkmcnt(0)
{okl}:
            s_barrier
{got}:
            """)
            def coldb():
                lp = a.newlabel('L_mlp')
                a.label(bad)
                if two:
                    a(f's_mov_b32 s{S_SPIN}, 2\ns_waitcnt vmcnt(0) lgkmcnt(0)\nv_cmp_eq_u32 vcc, -1, v{r1}\ns_cbranch_vccz {okl}')
                a.label(lp)
                rnd(r0)
                a(f"""
                s_add_u32 s{S_SPIN}, s{S_SPIN}, 1
                s_waitcnt vmcnt(0) lgkmcnt(0)
                v_cmp_eq_u32 vcc, -1, v{r0}
                s_cbranch_vccz {okl}
                s_cmp_lt_u32 s{S_SPIN}, s{S_LIM}
                s_cbranch_scc1 {lp}
                s_mov_b32 s{S_LIM}, 1
                s_branch {okl}
                """)
            a.cold.append(coldb)
        def coldf():
            a.label(first)
            a(f'v_add_u32 v{FV}, 1, v{FV}' if w < 3 else f's_add_u32 s{S_EOFF}, s{S_EOFF}, 1')
            a(f's_mov_b32 s{S_SAFE}, 1')
            poll_m(a, V)
            a(f's_branch {got}')
        a.cold.append(coldf)
    else:
        a.label(first)
        a(f'v_add_u32 v{FV}, 1, v{FV}' if w < 3 else f's_add_u32 s{S_EOFF}, s{S_EOFF}, 1')
        a(ST(9))
        if cfg['m2']: poll_m2(a, V, cfg['m2'], mf)
        else: poll_m(a, V)
    stamp(a, stamps, 1)
    if stamps and w < 3: a(f's_mov_b32 s{40+2*7}, s{S_SPIN}')
    lq = Q('lgkmcnt', 15)
    mrd = [dsop(f"ds_read_b64_tr_b16 v[{mf+4*b+2*hf}:{mf+4*b+2*hf+1}], v{V['l8']} offset:{LDS_M+b*1024+hf*512}", ('mf', b))
           for b in range(7) for hf in range(2)]
    if cfg['split'] and cfg['sg'] < 0:
        for x in mrd[:cfg['spre']]: a(x(lq))
        a('s_waitcnt vmcnt(0)\ns_barrier')
    else:
        for x in mrd[:cfg['mpre']]: a(x(lq))
    order = [(u, b) for b in range(7) for u in range(2)] + [(u, b) for u in range(2, nunit) for b in range(7)]
    ms = [(SM(accof(u), mf+4*b, wreg(u*7 + b, V['w']), idx), [('mf', b)] if u == 0 else []) for u, b in order]
    last = {u: i for i, (u, b) in enumerate(order)}
    def smfma(b):
        t4 = tf + 4*b
        return [(f"v_mfma_f32_16x16x32_bf16 v[{sa+8}:{sa+11}], v[{t4}:{t4+3}], v[{mf+4*b}:{mf+4*b+3}], " + f'v[{sa+8}:{sa+11}]', [('tf', b)]),
                (SM(sa, t4, vr(xf + 8*b, 8), idx), []),
                (SM(sa+4, t4, vr(xf + 56 + 8*b, 8), idx), [])]
    def tread(b, hf):
        return dsop(f"ds_read_b64_tr_b16 v[{tf+4*b+2*hf}:{tf+4*b+2*hf+1}], v{V['l8']} offset:{LDS_T+b*1024+hf*512}", ('tf', b))
    phases = [(0, 1, 2), (3, 4)]
    starts = []
    if w == 3:
        for ph in phases:
            starts.append(len(ms))
            for b in ph: ms += smfma(b)
    n = len(ms)
    gp = Gaps(n)
    npre = cfg['spre'] if cfg['split'] and cfg['sg'] < 0 else cfg['mpre']
    for k, x in enumerate(mrd[npre:]):
        if cfg['split'] and cfg['sg'] >= 0 and k + npre >= 8:
            if k + npre == 8: gp.force('ds', cfg['sg'], 's_waitcnt vmcnt(0)\ns_barrier')
            gp.force('ds', cfg['sg'] + (k + npre - 8)*2//3, x)
        else: gp.put('ds', k, x)
    flag_after = {2, 4} | ({5} if w < 2 else {6})
    def post(u):
        A = accof(u); b, ga = tile_of(w, u)
        va = [f'v_add_f32 v{A}, v{A}, v{A+2}', f'v_add_f32 v{A+1}, v{A+1}, v{A+3}', f'v_cvt_pk_bf16_f32 v{A}, v{A}, v{A+1}']
        ds = [dsop(f"ds_write_b32 v{V['k1']}, v{A} offset:{LDS_T+b*1024+ga*128}", ('k', u))]
        if w < 3 and u in flag_after:
            ds.append(dsop(f'ds_write_b32 v{FA}, v{FV} offset:{sorted(flag_after).index(u)*1024}'))
        return va, ds
    g = 0
    done_at = {}
    for u in range(nunit - (0 if w == 3 else 1)):
        va, ds = post(u)
        g = max(g, last[u] + 3 - (len(va) - 3))
        for x in va: g = gp.put('va', g, x) + 1
        for x in ds: g = gp.put('ds', g, x, excl=True) + 1
        done_at[u] = g
    def zero_in_gaps(u, g):
        A = accof(u)
        for k in range(2):
            gg = g
            while gg < 7*u - 2 and (gp.va[gg] or (gp.ds[gg] and gp.ds[gg][-1][1])): gg += 1
            if gg >= 7*u - 2: gg = max(g, 7*u - 4 + k)
            gp.force('va', gg, f'v_mov_b64 v[{A+2*k}:{A+2*k+1}], 0')
    if cfg['m2']:
        gp.force('ds', cfg['m2w'], 's_waitcnt vmcnt(0)')
        for u in range(2, min(6, nunit)): zero_in_gaps(u, cfg['m2w'])
    for u in range(6, nunit): zero_in_gaps(u, done_at[u-6] + 1)
    if w == 3:
        for pi, ph in enumerate(phases):
            flagrd = f"ds_read_b128 v[{T}:{T+3}], v{F['l16']} offset:{LDS_FL + pi*1024}"
            lead = cfg['lead'][pi]
            g = max(starts[pi] - lead, done_at[max(ph)] if max(ph) < 5 else 0)
            g = min(g, starts[pi]-1)
            if cfg['pnop'][pi]: gp.force('ds', g, f"s_nop {cfg['pnop'][pi]-1}")
            gp.force('ds', g, dsop(flagrd, ('fl', pi)))
            ops = [tread(b, hf) for b in ph for hf in range(2)]
            for k, x in enumerate(ops):
                gp.force('ds', min(g + (k+1)//2, starts[pi]-1), x)
            FM = T+11
            def chk(lq, pi=pi):
                return lq.wait(('fl', pi)) + (f'\nv_min3_u32 v{FM}, v{T}, v{T+1}, v{T+2}' if pi == 0 else
                                              f'\nv_min3_u32 v{T}, v{T}, v{T+1}, v{T+2}\nv_min_u32 v{FM}, v{FM}, v{T}')
            gp.force('va', starts[pi], chk)
    if cfg['xin'] and XW[w][1] > XW[w][0]:
        sub = Asm(); dma_x(sub)
        grp = []; cur = []
        for _, x in sub.items:
            cur.append(x.text)
            if x.text.startswith('buffer'): grp.append('\n'.join(cur)); cur = []
        g = cfg['xin']
        for x in grp: g = gp.put('ds', g, x) + cfg['xstep']
    if w == 0 and cfg['phint'] < 0:
        gp.force('ds', n - 1 + cfg['phint'], f"""s_mov_b64 exec, 15
            buffer_store_dword v{FV}, v4, {WSRD}, s{S_POFF} offen {pf}
            s_mov_b64 exec, -1""")
    emit_stream(a, ms, gp, lq)
    hint = f"""s_mov_b64 exec, 15
        buffer_store_dword v{T+15}, v{T+14}, {WSRD}, s{S_POFF} offen {pf}
        s_mov_b64 exec, -1"""
    if w < 3:
        va, ds = post(nunit-1)
        A_ = accof(nunit-1)
        va = [f'v_pk_add_f32 v[{A_}:{A_+1}], v[{A_}:{A_+1}], v[{A_+2}:{A_+3}]', va[-1]]
        for x in va: a(x)
        for x in ds: a(x(lq))
        if cfg['b3s']: a(f'ds_write_b32 v{FA}, v{FV} offset:3072')
        else:
            if w == 2: dma_x(rng=cfg['xa'], ahead=2)
            a(lq.drain())
        a('s_barrier')
        if w == 2: dma_x(rng=cfg['xb'], ahead=2)
        stamp(a, stamps, 2)
        if cfg['mdma']:
            again = a.newlabel('L_again')
            a(f"""
            {'s_waitcnt vmcnt(0)' if cfg['xin'] else ''}
            s_barrier
            v_mov_b32 v{mf}, {LDS_VD}
            ds_read_b32 v{mf}, v{mf}
            s_waitcnt lgkmcnt(0)
            v_cmp_eq_u32 vcc, v{mf}, v{FV}
            s_cbranch_vccnz {again}
            """)
            def colda():
                a.label(again)
                zero_acc()
                a(f's_branch {first}')
            a.cold.append(colda)
        elif cfg['quiet']: a(f"s_sleep {cfg['quiet']}")
    else:
        s = T
        mx = T+6; z = T+8; EA = tf; B1 = tf+4; B2 = tf+8; D1 = tf+12; D2 = tf+16; rz = T+10
        a(f"""
        v_mov_b64 v[{B1+2}:{B1+3}], 0
        v_mov_b64 v[{B2}:{B2+1}], 0
        v_mov_b32 v{B2+3}, 0
        v_mov_b32 v{EA+3}, 0
        """)
        for _ in range(cfg['b5nop']): a('s_nop 3')
        q = Q('lgkmcnt', 15)
        a(f"ds_read_b128 v[{T}:{T+3}], v{F['l16']} offset:{LDS_FL + 2048}"); q.issue('fl')
        for hf in range(2): a(tread(5, hf)(q))
        stamp(a, stamps, 2)
        a('s_barrier')
        stamp(a, stamps, 3)
        PX = lambda k: a('s_memtime s[52:53]') if stamps and cfg['px'] == k else None
        PX(0)
        if cfg['b3s']:
            for _ in range(cfg['b3s'] - 1): a('s_nop 0')
            a(f"ds_read_b64 v[{T+4}:{T+5}], v{F['l16']} offset:{LDS_FL + 3072}"); q.issue('fl3')
        for hf in range(2): a(tread(6, hf)(q))
        PX(1)
        if cfg['phint'] == 0: a(hint)
        PX(2)
        fl5 = [f'v_min3_u32 v{T}, v{T}, v{T+1}, v{T+2}', f'v_min_u32 v{FM}, v{FM}, v{T}', f'v_subrev_u32 v{FM}, s{S_EOFF}, v{FM}']
        if cfg['b3s']: fl5[2:2] = ['', f'v_min3_u32 v{FM}, v{FM}, v{T+4}, v{T+5}']
        for b in (5, 6):
            for m, tags in smfma(b):
                for tg in tags: a(q.wait(tg))
                if b == 6 and tags: PX(4)
                a(m)
                if fl5: a(fl5.pop(0))
            if b == 5: PX(3)
        a(ST(7))
        if cfg['phint'] == 1: a(hint)
        e = sa
        redo = a.newlabel('L_smr'); slowmx = a.newlabel('L_sms'); go = a.newlabel('L_smg')
        a(f"""
        s_mov_b32 s{S_T1}, {120 << 23}
        s_mov_b32 s{S_SPIN}, 0
        v_add_f32_dpp v{s+4}, v{sa+10}, v{sa+8} {QP}
        v_add_f32_dpp v{s+5}, v{sa+11}, v{sa+9} {QP}
        v_pk_add_f32 v[{s}:{s+1}], v[{sa}:{sa+1}], v[{sa+2}:{sa+3}]
        v_exp_f32 v{e+8}, v{s+4}
        v_exp_f32 v{e+9}, v{s+5}
        v_pk_add_f32 v[{s+2}:{s+3}], v[{sa+4}:{sa+5}], v[{sa+6}:{sa+7}]
        v_exp_f32 v{e}, v{s}
        v_exp_f32 v{e+1}, v{s+1}
        v_exp_f32 v{e+2}, v{s+2}
        v_exp_f32 v{e+3}, v{s+3}
{redo}:;nf
        v_pk_add_f32 v[{z}:{z+1}], v[{e}:{e+1}], v[{e+8}:{e+9}]
        v_cvt_pk_bf16_f32 v{EA+2}, v{e+8}, v{e+9}
        v_pk_add_f32 v[{z}:{z+1}], v[{z}:{z+1}], v[{e+2}:{e+3}]
        """)
        if cfg['phint'] == 2: a(hint)
        fill = [f'v_cvt_pk_bf16_f32 v{EA+k}, v{e+2*k}, v{e+2*k+1}' for k in range(2)]
        for m in ('row_ror:8', 'row_ror:4', 'row_ror:2', 'row_ror:1'):
            if fill: a(fill.pop(0))
            for r in (z, z+1):
                a(f'v_add_f32_dpp v{r}, v{r}, v{r} {m} row_mask:0xf bank_mask:0xf')
        LO, HI = (127-60) << 23, (127+60) << 23
        a(ST(8))
        a(f"""
        v_rcp_f32 v{mx}, v{z}
        v_rcp_f32 v{mx+1}, v{z+1}
        v_subrev_u32 v{z}, {LO}, v{z}
        v_cvt_pk_bf16_f32 v{rz}, v{mx}, v{mx+1}
        v_and_b32 v{B1}, v{rz}, v{F['mk0']}
        v_and_b32 v{B1+1}, v{rz}, v{F['mk1']}
        v_and_b32 v{B2+2}, v{rz}, v{F['mk2']}
        v_subrev_u32 v{z+1}, {LO}, v{z+1}
        v_mfma_f32_16x16x32_bf16 v[{D1}:{D1+3}], v[{EA}:{EA+3}], v[{B1}:{B1+3}], 0
        v_mfma_f32_16x16x32_bf16 v[{D2}:{D2+3}], v[{EA}:{EA+3}], v[{B2}:{B2+3}], 0
        v_max3_u32 v{z}, v{z}, v{z+1}, v{FM}
        v_cmp_lt_u32 vcc, s{S_T1}, v{z}
        s_cmp_eq_u64 vcc, 0
        s_cselect_b64 exec, -1, 0
        v_cvt_pk_bf16_f32 v{D1}, v{D1}, v{D1+1}
        v_cvt_pk_bf16_f32 v{D1+1}, v{D1+2}, v{D1+3}
        buffer_store_dwordx2 v[{D1}:{D1+1}], v{F['px']}, {WSRD}, s{S_POFF} offen {pf}
        v_cvt_pk_bf16_f32 v{D2}, v{D2}, v{D2+1}
        buffer_store_dword v{D2}, v{F['pm']}, {WSRD}, s{S_POFF} offen {pf}
        s_mov_b64 exec, -1
        s_cbranch_scc0 {slowmx}
        """)
        if cfg['b4s']: a(f"s_sleep {cfg['b4s']}")
        if cfg['mdma']: a('s_barrier')
        def coldmx():
            a(f'{slowmx}:' + ('\ns_add_u32 s40, s40, 1' if stamps else ''))
            loc = a.newlabel('L_loc'); sf = a.newlabel('L_safe')
            a(f's_cmp_eq_u32 s{S_SPIN}, 0\ns_cbranch_scc1 {loc}')
            if cfg['mdma']:
                a(f"""
                s_cmp_lg_u32 s{S_SAFE}, 0
                s_cbranch_scc1 {sf}
                {'s_add_u32 s86, s86, 1' if cfg.get('wgd') else ''}
                v_mov_b32 v{T}, {LDS_VD}
                v_mov_b32 v{T+1}, s{S_EOFF}
                ds_write_b32 v{T}, v{T+1}
                s_waitcnt lgkmcnt(0)
                s_barrier
                """)
                zero_acc()
                a(f's_branch {first}')
            a(f'{sf}:\ns_mov_b32 s{S_T1}, -1\ns_branch {redo}\n{loc}:\ns_mov_b32 s{S_SPIN}, 1\nv_mov_b32 v{FM}, 0')
            if cfg.get('wgd'): a('s_add_u32 s85, s85, 1')
            for k in range(4): a(f'v_mov_b64 v[{sa+2*k}:{sa+2*k+1}], 0')
            a(f"v_mov_b32 v{sa+8}, v{F['wz']}\nv_mov_b32 v{sa+9}, v{F['wz']}\nv_mov_b64 v[{sa+10}:{sa+11}], 0")
            q2 = Q('lgkmcnt', 15)
            rl = a.newlabel('L_rl'); rd = a.newlabel('L_rld')
            a(f's_mov_b32 s{S_T0}, 0\n{rl}:')
            a(f"ds_read_b128 v[{T}:{T+3}], v{F['l16']} offset:{LDS_FL + 3072}")
            for b in range(7):
                for hf in range(2): a(tread(b, hf)(q2))
            a('s_waitcnt lgkmcnt(0)')
            if cfg['b3s']:
                a(f"""
                v_min3_u32 v{T}, v{T}, v{T+1}, v{T+2}
                s_add_u32 s{S_T0}, s{S_T0}, 1
                v_cmp_gt_u32 vcc, s{S_EOFF}, v{T}
                s_cbranch_vccz {rd}
                s_cmp_lt_u32 s{S_T0}, 1000
                s_cbranch_scc1 {rl}
{rd}:
                """)
            for b in range(7):
                for m, tags in smfma(b): a(m)
            a(f"""
            v_mov_b64 v[{B1+2}:{B1+3}], 0
            v_mov_b64 v[{B2}:{B2+1}], 0
            v_mov_b32 v{B2+3}, 0
            v_mov_b32 v{EA+3}, 0
            v_add_f32_dpp v{s+4}, v{sa+10}, v{sa+8} {QP}
            v_add_f32_dpp v{s+5}, v{sa+11}, v{sa+9} {QP}
            v_pk_add_f32 v[{s}:{s+1}], v[{sa}:{sa+1}], v[{sa+2}:{sa+3}]
            v_pk_add_f32 v[{s+2}:{s+3}], v[{sa+4}:{sa+5}], v[{sa+6}:{sa+7}]
            v_max3_f32 v{mx}, v{s}, v{s+4}, v{s+2}
            v_max3_f32 v{mx+1}, v{s+1}, v{s+5}, v{s+3}
            """)
            rowred(a, 'v_max_f32', mx)
            for k in range(3): a(f'v_pk_add_f32 v[{s+2*k}:{s+2*k+1}], v[{s+2*k}:{s+2*k+1}], v[{mx}:{mx+1}] neg_lo:[0,1] neg_hi:[0,1]')
            for k in range(6): a(f'v_exp_f32 v{e+(k if k < 4 else k+4)}, v{s+k}')
            a(f's_nop 1\ns_branch {redo}')
        a.cold.append(coldmx)
        stamp(a, stamps, 4)
    if stamps: a('s_memtime s[50:51]\ns_memrealtime s[60:61]')
    stamp_flush(a, stamps, 11, mf)
    step_advance(a, 28672, 458752)
    a(f's_cmp_ge_u32 s{S_STEP}, 63\ns_cbranch_scc1 L_exit')
    if w == 3:
        if cfg['rxs']: a(f"s_sleep {cfg['rxs']}")
        read_x()
    elif not cfg['nox'] and not cfg['xin']:
        if cfg['xs']: a(f"s_sleep {cfg['xs']}")
        dma_x()
    if cfg['ssleep'][w]:
        a(f"s_sleep {cfg['ssleep'][w]}")
    a(f's_branch {top}')
    a.flush_cold()

S_YD = 33; S_SAFE = 36; S_CV = 37; S_CU = 38; S_MD = 39
CV = dict(ha=160, one=161, zero=162, cu=163, hw=164, hm=165, nw=172, nr=173, pmr=72, fw=73, fv=74, rw2=75, l8=0, pa=1, idx=2, l16=3, pr=4, mw=6, lw=7, rw=8, rr=5, mf=12, acc=40, itm=72, vx=88, uf=96, tw=128, w=176)

def comb_setup(a, stamps, cfg):
    V = CV; LN = 112
    a(f'v_mov_b32 v{LN}, v1')
    team_register(a)
    common_addrs(a, V, LN)
    img_addr(a, V['mw'], LN+1, LN)
    a(f"""
    s_sub_u32 s{S_ROLE}, s{S_ROLE}, 16
    s_lshl_b32 s{S_ROLE}, s{S_ROLE}, 1
    s_and_b32 s{S_T0}, s{S_WAVE}, 1
    s_add_u32 s{S_T1}, s{S_ROLE}, s{S_T0}
    s_lshr_b32 s{S_T0}, s{S_T1}, 2
    s_lshl_b32 s{S_T0}, s{S_T0}, 10
    s_and_b32 s{S_T1}, s{S_T1}, 3
    s_lshl_b32 s{S_T1}, s{S_T1}, 7
    s_add_u32 s{S_T0}, s{S_T0}, s{S_T1}
    s_add_u32 s{S_T0}, s{S_T0}, 8192
    v_add_u32 v{V['mw']}, s{S_T0}, v{V['mw']}
    v_lshlrev_b32 v{V['l16']}, 4, v{LN}
    s_mul_i32 s{S_T0}, s{S_WAVE}, 28672
    s_add_u32 s{S_T0}, s{S_T0}, {LDS_BW}
    v_add_u32 v{V['lw']}, s{S_T0}, v{V['l16']}
    s_lshl_b32 s{S_T0}, s{S_WAVE}, 10
    v_add_u32 v{V['rw']}, s{S_T0}, v{V['l16']}
    v_add_u32 v{V['pr']}, s{S_T0}, v{V['rw']}
    s_and_b32 s{S_T0}, s{S_WAVE}, 1
    s_lshl_b32 s{S_T0}, s{S_T0}, 3
    v_add_u32 v{V['rr']}, s{S_T0}, v{V['l16']}
    s_mul_i32 s{S_T1}, s{S_WAVE}, {4*28}
    s_add_u32 s{S_T1}, s{S_T1}, s{S_ROLE}
    s_add_u32 s{S_T1}, s{S_T1}, 448
    s_mul_i32 s{S_T1}, s{S_T1}, 14336
    s_add_u32 s{S_T1}, s{S_T1}, {L.WT}
    """)
    toff = lambda u: ((u >> 1)*28 + (u & 1))*14336
    fz = cfg['fused']
    tiles = [(toff(u), [wreg_half(u*7 + k//2, V['w'], k % 2) for k in range(14)]) for u in range(6)]
    ltiles = [(toff(u), [vr(12 + (u-6)*116 + 4*k, 4) if u == 6 else vr(120 + 4*k, 4) for k in range(14)]) for u in (6, 7)]
    if fz:
        a(f"""
        v_bfe_u32 v{LN+4}, v{LN}, 2, 2
        v_mul_u32_u24 v{LN+4}, {14*32}, v{LN+4}
        v_and_b32 v{LN+5}, 3, v{LN}
        v_lshl_add_u32 v{LN+4}, v{LN+5}, 3, v{LN+4}
        s_mul_i32 s{S_T0}, s{S_WAVE}, 56
        s_lshr_b32 s{S_SPIN}, s{S_ROLE}, 2
        s_add_u32 s{S_T0}, s{S_T0}, s{S_SPIN}
        s_add_u32 s{S_T0}, s{S_T0}, 7
        s_lshl_b32 s{S_T0}, s{S_T0}, 5
        v_add_u32 v{LN+4}, s{S_T0}, v{LN+4}
        """)
        wait_flags(a, LN+4, 1, 100)
        load_tiles(a, ltiles + tiles, V['l16'], S_T1, 1, cfg['wfl'], [0])
        wait_flags(a, LN+4, 7, 100)
        load_tiles(a, ltiles + tiles, V['l16'], S_T1, 2, cfg['wfl'], [0])
    else:
        load_tiles(a, ltiles + tiles, V['l16'], S_T1, None, cfg['wfl'], [0], cfg['ccap'])
    if not fz:
        a(team_mode_load(104, 105))
        a(f"v_mov_b32 v106, 0\ns_mov_b32 s{S_CU}, {L.CNT_U}\ns_mov_b32 s{S_CV}, {L.CNT_I}")
        a(f'buffer_load_dword v107, v106, {WSRD}, s{S_CU} offen sc1\nbuffer_load_dword v109, v106, {WSRD}, s{S_CV} offen sc1')
    a('s_waitcnt vmcnt(28)')
    for u in (6, 7):
        for k in range(14):
            a(f"ds_write_b128 v{V['lw']}, {ltiles[u-6][1][k]} offset:{(u-6)*14336+k*1024}")
    a('s_waitcnt lgkmcnt(0)')
    if fz: wait_ln(a, LN, 100)
    a(f"""
    s_mov_b32 s{S_STEP}, 0
    s_mov_b32 s{S_MOFF}, {L.MB_M}
    s_mov_b32 s{S_POFF}, {L.MB_P}
    s_lshl_b32 s{S_GOFF}, s{S_ROLE}, 14
    s_lshl_b32 s{S_T0}, s{S_WAVE}, 12
    s_add_u32 s{S_GOFF}, s{S_GOFF}, s{S_T0}
    s_add_u32 s{S_GOFF}, s{S_GOFF}, {L.U}
    s_lshl_b32 s{S_XOFF}, s{S_ROLE}, 12
    s_add_u32 s{S_XOFF}, s{S_XOFF}, {L.VM}
    s_lshr_b32 s{S_STMP}, s{S_ROLE}, 1
    s_add_u32 s{S_STMP}, s{S_STMP}, 16
    s_lshl_b32 s{S_STMP}, s{S_STMP}, 2
    s_add_u32 s{S_STMP}, s{S_STMP}, s{S_WAVE}
    s_lshl_b32 s{S_STMP}, s{S_STMP}, 12
    s_add_u32 s{S_STMP}, s{S_STMP}, {L.STAMP}
    s_waitcnt vmcnt(0)
    """)
    a(f"""
    v_mov_b32 v{V['one']}, 1
    v_mov_b32 v{V['zero']}, 0
    v_mov_b32 v{V['cu']}, 0
    v_and_b32 v{V['ha']}, {120 if cfg['cutrig'] else 24}, v{V['l8']}
    v_lshrrev_b32 v{V['ha']}, 1, v{V['ha']}
    s_lshl_b32 s{S_T0}, s{S_WAVE}, 4
    s_mul_i32 s{S_T0}, s{S_T0}, {0 if cfg['cutrig'] else 1}
    s_and_b32 s{S_T1}, s{S_ROLE}, 6
    s_lshl_b32 s{S_T1}, s{S_T1}, 6
    s_add_u32 s{S_T0}, s{S_T0}, s{S_T1}
    s_add_u32 s{S_T0}, s{S_T0}, 12288
    v_add_u32 v{V['ha']}, s{S_T0}, v{V['ha']}
    s_lshl_b32 s{S_T0}, s{S_ROLE}, {0 if cfg['cert'] else 1}
    s_add_u32 s{S_T0}, s{S_T0}, s{S_WAVE}
    s_lshl_b32 s{S_T0}, s{S_T0}, 2
    s_add_u32 s{S_T0}, s{S_T0}, {8192 + 7168}
    v_lshlrev_b32 v{V['hw']}, 5, v{V['l8']}
    v_add_u32 v{V['hw']}, s{S_T0}, v{V['hw']}
    s_add_u32 s{S_YD}, s{S_XOFF}, 0x8000000
    v_lshrrev_b32 v{V['hm']}, 1, v{V['l8']}
    v_min_u32 v{V['hm']}, {(27 if cfg['cert'] else 55)*4}, v{V['hm']}
    v_add_u32 v{V['hm']}, 7168, v{V['hm']}
    s_mov_b32 s56, 0
    """)
    if cfg['h64']:
        a(f"""
        v_lshrrev_b32 v{V['hm']}, 3, v{V['l8']}
        v_min_u32 v{V['hm']}, 55, v{V['hm']}
        v_and_b32 v100, 3, v{V['hm']}
        v_lshrrev_b32 v{V['hm']}, 2, v{V['hm']}
        v_lshlrev_b32 v{V['hm']}, 6, v{V['hm']}
        v_lshl_add_u32 v{V['hm']}, v100, 2, v{V['hm']}
        v_add_u32 v{V['hm']}, 7168, v{V['hm']}
        s_lshl_b32 s{S_T0}, s{S_ROLE}, 5
        s_lshl_b32 s{S_T1}, s{S_WAVE}, 2
        s_add_u32 s{S_T0}, s{S_T0}, s{S_T1}
        s_add_u32 s{S_T0}, s{S_T0}, {8192 + 7168}
        v_mov_b32 v{V['hw']}, s{S_T0}
        """)
    if cfg['mlin']:
        x, y = 100, 101
        a(f"""
        v_lshrrev_b32 v{y}, 3, v{V['l8']}
        v_bfe_u32 v{x}, v{y}, 1, 2
        v_mul_u32_u24 v{V['rr']}, 192, v{x}
        v_bfe_u32 v{x}, v{y}, 4, 2
        v_lshl_add_u32 v{V['rr']}, v{x}, 5, v{V['rr']}
        v_and_b32 v{x}, 1, v{y}
        v_lshl_add_u32 v{V['rr']}, v{x}, 4, v{V['rr']}
        v_bfe_u32 v{x}, v{y}, 3, 1
        v_lshl_add_u32 v{V['rr']}, v{x}, 3, v{V['rr']}
        v_lshrrev_b32 v{x}, 4, v{y}
        v_mul_u32_u24 v{V['rw2']}, 192, v{x}
        v_and_b32 v{x}, 15, v{y}
        v_lshl_add_u32 v{V['rw2']}, v{x}, 3, v{V['rw2']}
        s_mul_i32 s{S_T0}, s{S_WAVE}, 1536
        v_add_u32 v{V['rw2']}, s{S_T0}, v{V['rw2']}
        s_and_b32 s{S_T0}, s{S_WAVE}, 1
        s_mul_i32 s{S_T1}, s{S_T0}, 768
        v_add_u32 v{V['rr']}, s{S_T1}, v{V['rr']}
        s_add_u32 s{S_T1}, s{S_ROLE}, s{S_T0}
        s_lshr_b32 s{S_T0}, s{S_T1}, 2
        s_lshl_b32 s{S_T0}, s{S_T0}, 10
        s_and_b32 s{S_T1}, s{S_T1}, 3
        s_lshl_b32 s{S_T1}, s{S_T1}, 7
        s_add_u32 s{S_T0}, s{S_T0}, s{S_T1}
        s_add_u32 s{S_T0}, s{S_T0}, 8192
        v_and_b32 v{x}, 31, v{y}
        v_lshlrev_b32 v{V['mw']}, 2, v{x}
        v_lshrrev_b32 v{x}, 5, v{y}
        v_lshl_add_u32 v{V['mw']}, v{x}, 9, v{V['mw']}
        v_add_u32 v{V['mw']}, s{S_T0}, v{V['mw']}
        """)
    a(f"""
    v_lshrrev_b32 v{V['nw']}, 2, v{V['rw']}
    v_lshrrev_b32 v{V['nr']}, 1, v{V['l8']}
    s_lshl_b32 s{S_MD}, s{S_WAVE}, 11
    s_min_u32 s{S_MD}, s{S_MD}, 5120
    s_mov_b32 s{S_CU}, {L.CNT_U}
    """)
    for k in range(8): a(f"v_mov_b32 v{V['vx']+k}, 0")
    a(f"v_lshrrev_b32 v{V['pmr']}, 1, v{V['rw']}")
    a(f"s_lshl_b32 s{S_T0}, s{S_WAVE}, 2\ns_add_u32 s{S_T0}, s{S_T0}, {LDS_CF}\nv_add_u32 v{V['fw']}, s{S_T0}, v{V['l16']}\nv_mov_b32 v{V['fv']}, 0\nds_write_b32 v{V['fw']}, v{V['fv']}")
    team_mode(a, 104, 105, primed=not fz)
    if cfg['flags']:
        wait_cnt(a, S_CU, 28, 106, primed=not fz)
        a(f's_mov_b32 s{S_CV}, {L.CNT_I}')
        wait_cnt(a, S_CV, 98, 108, primed=not fz)
    for k in range(32): a(f"v_mov_b32 v{V['uf']+k}, 0")

def comb_wave(a, pf, stamps, cfg):
    V = CV; idx = V['idx']; mf = V['mf']; tw = V['tw']; uf = V['uf']; pa = V['pa']
    top = a.newlabel('L_cb_top'); nh0 = a.newlabel('L_nh')
    HT = [10, 11, 166, 167][:cfg['hdepth']]
    def store_vx(base, r):
        return [f"buffer_store_dwordx4 v[{r}:{r+3}], v{V['rw']}, {WSRD}, s{base} offen {cfg['xflags']}",
                f"s_add_u32 s{S_T1}, s{base}, 4096\nbuffer_store_dwordx4 v[{r+4}:{r+7}], v{V['rw']}, {WSRD}, s{S_T1} offen {cfg['xflags']}"]
    lq = Q('lgkmcnt', 15)
    def lread(lam, hf):
        return dsop(f"ds_read_b128 v[{tw+8*(lam%4)+4*hf}:{tw+8*(lam%4)+4*hf+3}], v{V['lw']} offset:{lam*2048+hf*1024}", ('lw', lam))
    def housekeeping_acc(a=a):
        for u in range(8):
            A = V['acc'] + 4*u
            a(f'v_mov_b64 v[{A}:{A+1}], 0\nv_mov_b64 v[{A+2}:{A+3}], 0')
    def housekeeping(a=a, acc=True):
        if acc: housekeeping_acc(a)
        for lam in range(4):
            for hf in range(2): a(lread(lam, hf)(lq))
    uload = lambda k: f"buffer_load_dwordx4 v[{uf+4*k}:{uf+4*k+3}], v{V['l16']}, {WSRD}, s{S_GOFF if k < 4 else S_EOFF} offen offset:{(k%4)*1024} {cfg['xflags']}"
    uorder = [] if cfg['nou'] else [4, 5, 6, 7, 0, 1, 2, 3]
    ue = uorder[:cfg['uearly']]; ul = uorder[cfg['uearly']:]
    housekeeping()
    t = mf
    slow = a.newlabel('L_cms'); back = a.newlabel('L_cmb'); redo = a.newlabel('L_cmr')
    pre = f"""s_add_u32 s{S_EOFF}, s{S_GOFF}, 16384
        s_lshl_b32 s{S_CU}, s{S_STEP}, 7
        s_add_u32 s{S_CU}, s{S_CU}, {L.CNT_U + 128}
        s_add_u32 s{S_T0}, s{S_MOFF}, s{S_MD}
        s_mov_b32 m0, s{S_MD}"""
    a(pre)
    if cfg.get('wgd'): a('s_memrealtime s[96:97]')
    a(f's_branch {top}')
    if cfg['al'] is not None:
        a.raw('    .p2align 6')
        for _ in range(cfg['al'][4]): a.raw('    s_nop 0')
    a(f'{nh0}:\ns_barrier')
    a.label(top)
    stamp(a, stamps, 0)
    if cfg['cdma']:
        a(f"""
        buffer_load_dwordx4 v{V['l16']}, {WSRD}, s{S_T0} offen sc1 lds
        buffer_load_dwordx4 v{V['l16']}, {WSRD}, s{S_T0} offen offset:1024 sc1 lds
        s_mov_b32 s{S_SAFE}, 0
        """)
        if ue: a('s_barrier')
        for k in ue: a(uload(k))
        a(f's_waitcnt vmcnt({len(ue)}) lgkmcnt(0)\ns_barrier\n{back}:')
        def coldr():
            a(f'{redo}:\ns_barrier\ns_mov_b32 s{S_SAFE}, 1\ns_add_u32 s{S_YD}, s{S_XOFF}, 0x8000000')
            if stamps: a(f's_add_u32 s{40+2*8}, s{40+2*8}, 1')
            if cfg.get('wgd'): a('s_add_u32 s84, s84, 1')
            housekeeping()
            poll_m(a, V)
            a(f's_branch {back}')
        a.cold.append(coldr)
    else:
        a(f"""
        buffer_load_dwordx4 v[{t}:{t+3}], v{pa}, {WSRD}, s{S_MOFF} offen sc1
        buffer_load_dwordx4 v[{t+4}:{t+7}], v{pa}, {WSRD}, s{S_MOFF} offen offset:768 sc1
        """)
        if ue: a('s_barrier')
        for k in ue: a(uload(k))
        a(f"""
        s_waitcnt vmcnt({len(ue)+1})
        ds_write_b128 v{pa}, v[{t}:{t+3}]
        v_max3_u32 v{t+8}, v{t}, v{t+1}, v{t+2}
        s_waitcnt vmcnt({len(ue)})
        ds_write_b128 v{pa}, v[{t+4}:{t+7}] offset:768
        v_max3_u32 v{t+8}, v{t+8}, v{t+3}, v{t+4}
        v_max3_u32 v{t+8}, v{t+8}, v{t+5}, v{t+6}
        v_max_u32 v{t+8}, v{t+8}, v{t+7}
        v_cmp_eq_u32 vcc, -1, v{t+8}
        s_cbranch_vccnz {slow}
        s_waitcnt lgkmcnt(0)
        s_barrier
{back}:
        """)
        def coldm():
            a.label(slow)
            if stamps: a(f's_add_u32 s{40+2*8}, s{40+2*8}, 1')
            poll_m(a, V)
            a(f's_branch {back}')
        a.cold.append(coldm)
    lq.drain()
    stamp(a, stamps, 1)
    mrd = [dsop(f"ds_read_b64_tr_b16 v[{mf+4*b+2*hf}:{mf+4*b+2*hf+1}], v{V['l8']} offset:{LDS_M+b*1024+hf*512}", ('mf', b))
           for b in range(7) for hf in range(2)]
    for x in mrd[:cfg['mpre']]: a(x(lq))
    ms = []; last = {}
    rorder = [(u, b) for b in range(7) for u in range(2)] + [(u, b) for u in range(2, 6) for b in range(7)]
    rb = 0
    for p in range(56):
        if p % 4 == 3:
            lam = p // 4; u = 6 + lam // 7; b = lam % 7
            ms.append((SM(V['acc']+4*u, mf+4*b, vr(tw+8*(lam % 4), 8), idx), [('mf', b), ('lw', lam)]))
        else:
            u, b = rorder[rb]; rb += 1
            ms.append((SM(V['acc']+4*u, mf+4*b, wreg(u*7+b, V['w']), idx), [('mf', b)]))
        last[u] = p
    gp = Gaps(56)
    for k, x in enumerate(mrd[cfg['mpre']:]): gp.put('ds', k, x)
    for lam in range(4, 14):
        g = 4*(lam-4) + 3
        g = gp.put('ds', g, lread(lam, 0)) + 1
        gp.put('ds', g, lread(lam, 1))
    g = 0
    for k in ul: g = gp.put('va', g, uload(k)) + cfg['ustep']
    if cfg['flags']:
        g = gp.put('va', g, f"buffer_load_dword v{V['cu']}, v{V['zero']}, {WSRD}, s{S_CU} offen sc1") + 1
    for x in store_vx(S_YD, V['vx']): g = gp.put('va', g, x) + cfg['ustep']
    assert g - cfg['ustep'] < min(last.values()) + 3
    for k in range(len(HT)-1 if cfg['psl'] is None else 0):
        gp.put('ds', 55 - cfg['hpre'] + 4*k, f"buffer_load_dword v{HT[k]}, v{V['ha']}, {WSRD}, s{S_POFF} offen sc1")
    def post(u):
        A = V['acc'] + 4*u; hl = u >> 1; ctl = u & 1
        return ([f'v_pk_add_f32 v[{A}:{A+1}], v[{A}:{A+1}], v[{A+2}:{A+3}]'] if cfg['cpk'] else [f'v_add_f32 v{A}, v{A}, v{A+2}', f'v_add_f32 v{A+1}, v{A+1}, v{A+3}']) + [
                f"v_cvt_pk_bf16_f32 v{V['vx']+4*ctl+hl}, v{A}, v{A+1}"]
    tail = []; gprev = 0
    for u in sorted(last, key=lambda u: last[u]):
        g = max(last[u] + 3, gprev)
        if g + 4 >= 56: tail += post(u); continue
        for x in post(u): g = gp.put('va', g, x) + 1
        gprev = g
        if u == 0: done0 = g
    if cfg['cdma']:
        A0 = V['acc']; N = 168
        g = gp.put('va', done0, f'v_add_f32 v9, v{A0}, v{A0+1}') + 1
        g = gp.put('ds', g, dsop(f"ds_write_b32 v{V['nw']}, v9 offset:{LDS_NAN}", 'nw')) + 4
        gp.force('ds', g, dswait('nw', 's_barrier'))
        g = gp.put('ds', g+1, dsop(f"ds_read2st64_b32 v[{N}:{N+1}], v{V['nr']} offset0:{LDS_NAN//256} offset1:{LDS_NAN//256+1}")) + 1
        g = gp.put('ds', g, dsop(f"ds_read2st64_b32 v[{N+2}:{N+3}], v{V['nr']} offset0:{LDS_NAN//256+2} offset1:{LDS_NAN//256+3}", 'nr')) + 4
        g = gp.put('va', g, dswait('nr', f'v_add_f32 v{N}, v{N}, v{N+2}')) + 1
        g = gp.put('va', g, f'v_add_f32 v{N+1}, v{N+1}, v{N+3}') + 1
        g = gp.put('va', g, f'v_cmp_u_f32 vcc, v{N}, v{N+1}')
        assert g < 54
    emit_stream(a, ms, gp, lq)
    if cfg['cdma']:
        nb = a.newlabel('L_cnb'); nx = a.newlabel('L_cnx')
        a(f's_cbranch_vccnz {nb};nf\n{nx}:;nf')
        a.cold.append(lambda: a(f'{nb}:\ns_nop 7\ns_cmp_eq_u32 s{S_SAFE}, 0\ns_cbranch_scc1 {redo}\ns_branch {nx}'))
    for x in tail: a(x)
    lastl = a.newlabel('L_cbl')
    a(f's_cmp_ge_u32 s{S_STEP}, 63\ns_cbranch_scc1 {lastl}')
    def coldl():
        a.label(lastl)
        for x in store_vx(S_XOFF, V['vx']): a(x)
        a('s_branch L_exit')
    a.cold.append(coldl)
    stamp(a, stamps, 2)
    A = 76
    a(f's_add_u32 s{S_T0}, s{S_POFF}, 8192\ns_mov_b32 s{S_YD}, s{S_XOFF}')
    if stamps and cfg['sdrain']: a('s_waitcnt vmcnt(0)')
    stamp(a, stamps, 3)
    if cfg['psl'] is None:
        jn = a.newlabel('L_jn')
        a(f's_cmp_lg_u32 s{S_WAVE}, 0\ns_cbranch_scc1 {jn}')
        wait_hint(a, V['ha'], S_POFF, HT, delay=cfg['pdelay'], inner=cfg['hinner'], primed=True)
        a(f'{jn}:\ns_barrier')
    else:
        housekeeping(a, False)
        stamp_flush(a, stamps, 11, mf+24)
        if cfg['pw'] is not None:
            tot = cfg['pw'] - (16*cfg['fl'] if stamps else 0)
            for k in range(5): a(f's_nop {max(1, (tot + k) // 5) - 1}')
        else:
            if cfg['psl'] - (cfg['fl'] if stamps else 0) > 0: a(f"s_sleep {cfg['psl'] - (cfg['fl'] if stamps else 0)}")
            if cfg['pdelay']: a(f"s_nop {cfg['pdelay']-1}")
        if cfg['pbar']: a('s_barrier')
    stamp(a, stamps, 6)
    l = a.newlabel('L_pp'); d = a.newlabel('L_ppd'); retry = a.newlabel('L_ppr'); t = 9
    R = A
    B3 = [vr(uf, 8), vr(uf+8, 8), vr(V['itm'], 8)], [vr(uf+16, 8), vr(uf+24, 8), vr(V['itm']+8, 8)]
    mh = f"""s_mov_b64 exec, {1 if cfg['h64'] else 15}
        buffer_store_dword v{V['zero']}, v{V['hw']}, {WSRD}, s{S_MOFF} offen {pf}
        s_mov_b64 exec, -1"""
    def issue(p, a=a):
        a(f"""
        buffer_load_dwordx4 v[{p}:{p+3}], v{V['pr']}, {WSRD}, s{S_POFF} offen sc1
        buffer_load_dwordx4 v[{p+4}:{p+7}], v{V['pr']}, {WSRD}, s{S_POFF} offen offset:1024 sc1
        buffer_load_dwordx2 v[{p+8}:{p+9}], v{V['pmr']}, {WSRD}, s{S_T0} offen sc1
        """)
    def zero(a=a):
        for k in range(4): a(f'v_mov_b64 v[{A+2*k}:{A+2*k+1}], 0')
    def attempt(p, behind, hint_here):
        ex = behind
        a(f's_add_u32 s{S_SPIN}, s{S_SPIN}, 1')
        for k in range(3):
            a(f's_waitcnt vmcnt({2-k+ex})')
            S32 = lambda acc, B: f'v_smfmac_f32_16x16x32_bf16 v[{acc}:{acc+3}], v[{p+8}:{p+9}], {B}, v{idx}'
            a(SM(A, p+4*k, B3[0][k], idx) if k < 2 else S32(A, vr(V['vx'], 4)))
            a(f'v_max_u32 v{t}, v{p}, v{p+2}' if k == 0 else f'v_max3_u32 v{t}, v{t}, v{p+4*k}, v{p+4*k+(2 if k < 2 else 1)}')
            a(SM(A+4, p+4*k, B3[1][k], idx) if k < 2 else S32(A+4, vr(V['vx']+4, 4)))
            if hint_here and k == cfg['mhk']:
                if cfg['mhint'] == 3:
                    a(f"""v_cmp_eq_u32 vcc, -1, v{t}
                    s_cmp_eq_u64 vcc, 0
                    s_cselect_b64 exec, 15, 0
                    buffer_store_dword v{V['zero']}, v{V['hw']}, {WSRD}, s{S_MOFF} offen {pf}
                    s_mov_b64 exec, -1""")
                else: a(mh)
                ex += 1
        a(f'v_cmp_eq_u32 vcc, -1, v{t}')
    a(f's_mov_b32 s{S_SPIN}, 0')
    sub = Asm(); issue(mf, sub); ld3 = [x.text for _, x in sub.items]
    sub = Asm(); zero(sub); sub(f"v_add_u32 v{V['fv']}, 1, v{V['fv']}"); housekeeping_acc(sub); fl = [x.text for _, x in sub.items]
    used = 0
    for k in range(3):
        a(ld3[k])
        if k < 2 and cfg['pst']:
            n_ = min(cfg['pst'], len(fl))
            for x in fl[:n_]: a(x)
            fl = fl[n_:]
            if n_ < cfg['pst']: a(f"s_nop {cfg['pst'] - n_ - 1}")
            used += cfg['pst']
    for x in fl: a(x)
    used += len(fl)
    if cfg['p2']:
        gap = cfg['p2'] + 5 - used
        while gap > 0:
            a(f's_nop {min(gap, 16) - 1}'); gap -= 16
        issue(mf+12)
    if cfg['mhint'] == 0:
        for _ in range(cfg['mhnop']): a('s_nop 3')
        a(mh)
    attempt(mf, (3 if cfg['p2'] else 0) + (cfg['mhint'] == 0), cfg['mhint'] >= 2)
    a(f's_cbranch_vccnz {retry};nf\n{d}:;nf')
    def coldp():
        a(f'{retry}:\ns_nop 7')
        if cfg['p2']:
            a.label(l)
            issue(mf)
            zero()
            attempt(mf+12, 3, cfg['mhint'] == 3)
            a(f's_cbranch_vccz {d}')
            issue(mf+12)
            zero()
            attempt(mf, 3, cfg['mhint'] == 3)
        else:
            a.label(l)
            issue(mf)
            zero()
            attempt(mf, 0, cfg['mhint'] == 3)
        a(f"""
        s_cbranch_vccz {d}
        s_cmp_lt_u32 s{S_SPIN}, s{S_LIM}
        s_cbranch_scc1 {l}
        s_mov_b32 s{S_LIM}, 1
        s_branch {d}
        """)
    a.cold.append(coldp)
    stamp(a, stamps, 4)
    if cfg['mhint'] == 1 and not cfg['cert']: a(mh)
    if stamps: a(f's_mov_b32 s{40+2*7}, s{S_SPIN}')
    if cfg.get('wgd'): a(f's_add_u32 s83, s83, s{S_SPIN}')
    if cfg['flags']: a(f"v_readfirstlane_b32 s{S_CV}, v{V['cu']}")
    hiw = a.newlabel('L_cbh'); rag = a.newlabel('L_rag'); rag2 = a.newlabel('L_rag'); nh = nh0; ny = a.newlabel('L_cny')
    def chores(adv=True):
        if cfg['flags']:
            slow2 = a.newlabel('L_us'); back2 = a.newlabel('L_ub')
            a(f's_cmp_lt_u32 s{S_CV}, 28\ns_cbranch_scc1 {slow2}\n{back2}:')
            def coldu():
                a.label(slow2)
                wait_cnt(a, S_CU, 28, 174)
                a(f's_branch {back2}')
            a.cold.append(coldu)
        if adv: step_advance(a, 458752)
        a(pre)
    def hi_tail():
        w2 = a.newlabel('L_cw2')
        ld = lambda r: f"buffer_load_dword v{r}, v{V['hm']}, {WSRD}, s{S_MOFF} offen sc1"
        a.label(hiw)
        step_advance(a, 458752)
        a(f"""
        s_cmp_eq_u32 s{S_WAVE}, 2
        s_waitcnt lgkmcnt(0)
        s_barrier
        s_cbranch_scc1 {w2}
        {ld(HT[0])}
        """)
        stamp(a, stamps, 5)
        chores(False)
        a(f"s_nop 4\n{ld(HT[1])}\ns_nop 12\n{ld(HT[2])}\ns_nop 12")
        wait_hint(a, V['hm'], S_MOFF, HT, delay=cfg['cdelay'], inner=cfg['hinner'], primed=True)
        a(f's_branch {nh}\n{w2}:')
        if cfg['cq']: a(f"s_sleep {cfg['cq']}")
        stamp(a, stamps, 5)
        chores(False)
        a(f's_branch {nh}')
    a.cold.append(hi_tail)
    a(f"""
    v_pk_add_f32 v[{A}:{A+1}], v[{A}:{A+1}], v[{A+2}:{A+3}]
    ds_write_b64 v{V['rw2']}, v[{A}:{A+1}] offset:{LDS_RED}
    v_pk_add_f32 v[{A+4}:{A+5}], v[{A+4}:{A+5}], v[{A+6}:{A+7}]
    ds_write_b64 v{V['rw2']}, v[{A+4}:{A+5}] offset:{LDS_RED+768}
    s_cmp_ge_u32 s{S_WAVE}, 2
    s_cbranch_scc1 {hiw}
    s_waitcnt lgkmcnt(0)
    s_barrier
    ds_read_b64 v[{R}:{R+1}], v{V['rr']} offset:{LDS_RED}
    ds_read_b64 v[{R+2}:{R+3}], v{V['rr']} offset:{LDS_RED+1536}
    ds_read_b64 v[{R+4}:{R+5}], v{V['rr']} offset:{LDS_RED+3072}
    ds_read_b64 v[{R+6}:{R+7}], v{V['rr']} offset:{LDS_RED+4608}
    s_waitcnt lgkmcnt(2)
    v_pk_add_f32 v[{R}:{R+1}], v[{R}:{R+1}], v[{R+2}:{R+3}]
    s_waitcnt lgkmcnt(0)
    v_pk_add_f32 v[{R+4}:{R+5}], v[{R+4}:{R+5}], v[{R+6}:{R+7}]
    v_pk_add_f32 v[{R}:{R+1}], v[{R}:{R+1}], v[{R+4}:{R+5}]
    v_cvt_pk_bf16_f32 v9, v{R}, v{R+1}
    buffer_store_dword v9, v{V['mw']}, {WSRD}, s{S_MOFF} offen {pf}
    """)
    if cfg['cert']: a(mh)
    stamp(a, stamps, 5)
    a(f"""
    s_cmp_lt_u32 s{S_STEP}, 62
    s_cbranch_scc1 {ny}
    s_add_u32 s{S_T0}, s{S_MOFF}, {L.MB_Y - L.MB_M}
    buffer_store_dword v9, v{V['mw']}, {WSRD}, s{S_T0} offen sc1
{ny}:
    """)
    chores()
    a(f's_branch {nh}')
    while a.cold: a.flush_cold()

def helper_cu(a, cfg):
    V = dict(l8=0, pa=1, idx=2, mf=12); LN = 112
    NP = cfg['npf']; D = cfg['pfd']; PER = cfg['pfper']
    a(f'v_mov_b32 v{LN}, v1')
    team_register(a)
    common_addrs(a, V, LN)
    a(f"""
    v_lshlrev_b32 v4, 7, v{LN}
    v_mov_b32 v3, v4
    v_mov_b32 v5, 0
    v_mov_b32 v6, 14
    s_sub_u32 s{S_ROLE}, s{S_ROLE}, 30
    s_lshl_b32 s{S_EOFF}, s{S_ROLE}, 2
    s_add_u32 s{S_EOFF}, s{S_EOFF}, s{S_WAVE}
    s_mov_b32 s{S_STEP}, 0
    s_mov_b32 s{S_MOFF}, {L.MB_M + 8192}
    s_mov_b32 s{S_CV}, {L.DUMMY + 0x200000}
    s_mul_i32 s{S_GOFF}, s{S_EOFF}, 7168
    s_add_u32 s{S_GOFF}, s{S_GOFF}, {L.XN}
    s_mov_b32 s{S_POFF}, 28672
    s_cmp_lt_u32 s{S_EOFF}, 4
    s_cbranch_scc1 H_t
    s_sub_u32 s{S_GOFF}, s{S_EOFF}, 4
    s_mul_i32 s{S_GOFF}, s{S_GOFF}, 6144
    s_add_u32 s{S_GOFF}, s{S_GOFF}, {L.MB_P}
    s_mov_b32 s{S_POFF}, 16384
    s_cmp_lt_u32 s{S_EOFF}, 6
    s_cbranch_scc1 H_t
    s_mov_b32 s{S_GOFF}, {L.MB_M + 8192}
    s_mov_b32 s{S_POFF}, 8192
    s_cmp_lt_u32 s{S_EOFF}, {7 if cfg['tlb'] else 8}
    s_cbranch_scc1 H_t
    s_mov_b32 s{S_GOFF}, {L.U + cfg['tlb']*458752}
    s_mov_b32 s{S_POFF}, 458752
    v_mul_u32_u24 v3, 7168, v{LN}
H_t:
    """)
    def mtouch():
        a(f'buffer_load_dword v7, v3, {WSRD}, s{S_GOFF} offen sc1\ns_add_u32 s{S_GOFF}, s{S_GOFF}, s{S_POFF}')
    if cfg['fused']: wait_ln(a, LN, 100)
    team_mode(a, V['mf'], V['mf']+1)
    a(f's_mov_b32 s{S_LIM}, {SPIN_MAX*4}')
    a(f"""
    s_getpc_b64 s[70:71]
H_pc:
    s_lshl_b32 s{S_T0}, s{S_EOFF}, 12
    v_lshrrev_b32 v10, 1, v4
    s_add_u32 s70, s70, s{S_T0}
    s_addc_u32 s71, s71, 0
    s_add_u32 s70, s70, L_nothelp-H_pc
    s_addc_u32 s71, s71, 0
    s_mov_b32 s72, s{S_GOFF}
    s_mov_b32 s{S_SPIN}, 0
    s_mov_b32 s73, {L.MB_P}
H_warm:
    s_mov_b32 s{S_GOFF}, s72
    global_load_dword v8, v10, s[70:71] sc1
    """)
    for _ in range(D+1): mtouch()
    a(f"""
    buffer_load_dword v9, v5, {WSRD}, s73 offen sc1
    s_add_u32 s{S_SPIN}, s{S_SPIN}, 1
    s_waitcnt vmcnt(0)
    v_cmp_eq_u32 vcc, -1, v9
    s_cbranch_vccz H_warmed
    s_sleep 8
    s_cmp_lt_u32 s{S_SPIN}, s{S_LIM}
    s_cbranch_scc1 H_warm
H_warmed:
    """)
    mul = {2: (128, 8), 3: (86, 8)}[PER]
    for k in range(NP):
        a(f"""
        s_add_u32 s{S_T0}, s{S_EOFF}, {8*k}
        s_min_u32 s{S_T0}, s{S_T0}, {14*PER-1}
        s_mul_i32 s{S_T1}, s{S_T0}, {mul[0]}
        s_lshr_b32 s{S_T1}, s{S_T1}, {mul[1]}
        s_mul_i32 s{S_T1}, s{S_T1}, {4-PER}
        s_add_u32 s{S_T0}, s{S_T0}, s{S_T1}
        s_lshl_b32 s{60+k}, s{S_T0}, 13
        s_add_u32 s{60+k}, s{60+k}, {L.U}
        """)
    def utouch():
        for k in range(NP):
            a(f'buffer_load_dword v{32+k}, v4, {WSRD}, s{60+k} offen sc1\ns_add_u32 s{60+k}, s{60+k}, 458752')
    a(f's_mov_b32 s{S_CU}, {L.CNT_U}')
    for _ in range(D if NP else 0):
        if cfg['flags']: wait_cnt(a, S_CU, 28, 30)
        utouch()
        a(f's_add_u32 s{S_CU}, s{S_CU}, 128')
    t = V['mf']; pa = V['pa']
    sk = a.newlabel('H_sk'); sk2 = a.newlabel('H_sk'); ok = a.newlabel('H_ok')
    a(f"""
H_top:
    s_mov_b32 s{S_SPIN}, 0
H_poll:
    buffer_load_dwordx4 v[{t}:{t+3}], v{pa}, {WSRD}, s{S_MOFF} offen sc1
    buffer_load_dwordx4 v[{t+4}:{t+7}], v{pa}, {WSRD}, s{S_MOFF} offen offset:768 sc1
    buffer_load_dword v30, v5, {WSRD}, s{S_CU} offen sc1
    s_add_u32 s{S_SPIN}, s{S_SPIN}, 1
    s_waitcnt vmcnt(0)
    v_max3_u32 v{t+8}, v{t}, v{t+1}, v{t+2}
    v_max3_u32 v{t+8}, v{t+8}, v{t+3}, v{t+4}
    v_max3_u32 v{t+8}, v{t+8}, v{t+5}, v{t+6}
    v_max_u32 v{t+8}, v{t+8}, v{t+7}
    v_readfirstlane_b32 s{S_T0}, v30
    v_cmp_eq_u32 vcc, -1, v{t+8}
    s_cbranch_vccz {ok}
    s_sleep {cfg['hsleep']}
    s_cmp_lt_u32 s{S_SPIN}, s{S_LIM}
    s_cbranch_scc1 H_poll
    s_mov_b32 s{S_LIM}, 1
{ok}:
    s_cmp_lg_u32 s{S_ROLE}, 0
    s_cbranch_scc1 {sk}
    s_add_u32 s{S_T1}, s{S_MOFF}, {L.MB_Y - L.MB_M}
    buffer_store_dwordx4 v[{t}:{t+3}], v{pa}, {WSRD}, s{S_T1} offen sc1
    buffer_store_dwordx4 v[{t+4}:{t+7}], v{pa}, {WSRD}, s{S_T1} offen offset:768 sc1
{sk}:
    s_cmp_ge_u32 s{S_STEP}, {63 - D}
    s_cbranch_scc1 {sk2}
    """)
    mtouch()
    if NP:
        sk3 = a.newlabel('H_sk'); sk4 = a.newlabel('H_sk')
        if cfg['flags']: a(f's_cmp_lt_u32 s{S_T0}, 28\ns_cbranch_scc1 {sk3}')
        utouch()
        a(f's_branch {sk4}\n{sk3}:')
        for k in range(NP): a(f's_add_u32 s{60+k}, s{60+k}, 458752')
        a(f'{sk4}:\ns_add_u32 s{S_CU}, s{S_CU}, 128')
    a(f"""
{sk2}:
    s_add_u32 s{S_STEP}, s{S_STEP}, 1
    s_add_u32 s{S_MOFF}, s{S_MOFF}, 8192
    s_cmp_lt_u32 s{S_STEP}, 62
    s_cbranch_scc1 H_top
    s_branch L_exit
    """)

DEFAULT_CFG = dict(ba=[35, 35, 34, 34], bak=3, bb=[53, 53, 0, 0], xflags='', ssleep=[2, 2, 2, 0], csleep=0, psleep=0, touch=1,
                   nou=0, nox=0, cflush=1, flags=0, ustep=3, hsleep=2, mdelay=5, pdelay=1, phint=9, lead=[4, 1], pnop=[0, 8], b5nop=2, npf=0, pfper=2, hdepth=4, hpre=10, psl=3, fl=1, mhk=0, px=9, quiet=7, cq=1, al=[0, 0, 0, 3, 1], prio=[0, 0, 0, 0], wfl='', fused=0, cpk=0, split=0, sg=2, spre=6, xa=(0, 4), xb=(4, 20), rxs=0, b4s=0, h64=0, mlin=1, pst=0, cert=0, b3s=0, reds=0, pw=27, fin1=0, tlb=0, xin=0, xstep=3, xs=4, xw=[(0, 0), (20, 24), (24, 28), (0, 0)], pbar=1, scap=None, ccap=None, m2=0, mdma=1, m2d=0, msamp=0, cdma=1, m2w=10, p2=32, cutrig=1, hinner=2, uearly=4, mhint=1, mhnop=0, sdrain=0, pfd=3, mpre=6, chint=1, cdelay=22)

def team_body(a, stamps=False, cfg=None):
    cfg = dict(DEFAULT_CFG, **(cfg or {}))
    a(f's_cmp_lt_u32 s{S_ROLE}, 30\ns_cbranch_scc1 L_nothelp')
    helper_cu(a, cfg)
    a.label('L_nothelp')
    a(f's_cmp_ge_u32 s{S_ROLE}, 16\ns_cbranch_scc1 L_comb')
    score_setup(a, stamps, cfg)
    for fast in (1, 0):
        a(f's_cmp_lg_u32 s{S_FAST}, {fast}\ns_cbranch_scc1 L_sc_next{fast}')
        for w in range(4):
            if w < 3:
                a(f's_cmp_lg_u32 s{S_WAVE}, {w}\ns_cbranch_scc1 L_sc{fast}_n{w}')
            score_wave(a, w, '' if fast else 'sc1', stamps, cfg)
            if w < 3: a.label(f'L_sc{fast}_n{w}')
        a.label(f'L_sc_next{fast}')
    a('s_branch L_exit')
    a.label('L_comb')
    comb_setup(a, stamps, cfg)
    for fast in (1, 0):
        a(f's_cmp_lg_u32 s{S_FAST}, {fast}\ns_cbranch_scc1 L_cb_next{fast}')
        comb_wave(a, '' if fast else 'sc1', stamps, cfg)
        a.label(f'L_cb_next{fast}')
    a('s_branch L_exit')
```

```python
from asmlib import *
import layout as L
from team import Q, xlane4

KA = dict(x=0, mem0=8, wq=16, wk=24, wv=32, wo=40, w1=64, w2=72, out=80, dbg=88, ws=96)
LOG2E_16 = 0x3db8aa3b

def srd(a, d, lo, nbytes):
    a(f"""
    s_mov_b32 s{d}, s{lo}
    s_and_b32 s{d+1}, s{lo+1}, 0xffff
    s_mov_b32 s{d+2}, {nbytes}
    s_mov_b32 s{d+3}, 0x20000
    """)

WO_STRIDE = 144
def prep_kernel(a, diag=False, stfl='sc1', touch=1, a1up=0, ldfl='', t0=False, fused=False, early=1, bfl=None, dyn=0, code=1, keep0=0):
    WS, SA, SB = 8, 12, (64 if fused else 16)
    ldfl_b = ldfl if bfl is None else bfl
    if code:
        a(f"""
        s_getpc_b64 s[40:41]
P_pc:
        v_lshlrev_b32 v12, 7, v0
        global_load_dword v255, v12, s[40:41]
        """)
    a(f"""
    s_load_dwordx8 s[24:31], s[0:1], {KA['wq']}
    s_load_dwordx4 s[32:35], s[0:1], {KA['x']}
    s_cmp_ge_u32 s2, 256
    s_cbranch_scc1 {'L_end' if fused else 'P_exit'}
    """)
    if dyn:
        a(f"""
        s_load_dwordx2 s[6:7], s[0:1], {KA['dbg']}
        s_getreg_b32 s19, hwreg(HW_REG_XCC_ID, 0, 4)
        v_mov_b32 v4, 0
        v_cmp_eq_u32 vcc, 0, v0
        s_and_saveexec_b64 s[44:45], vcc
        s_cbranch_execz P_dw
        s_mov_b32 s18, 0
        s_waitcnt lgkmcnt(0)
P_dt:
        s_add_u32 s21, s19, s18
        s_and_b32 s21, s21, 7
        s_lshl_b32 s22, s21, 5
        v_mov_b32 v2, s22
        v_mov_b32 v3, 1
        global_atomic_add v3, v2, v3, s[6:7] sc0
        s_waitcnt vmcnt(0)
        v_readfirstlane_b32 s22, v3
        s_cmp_lt_u32 s22, 32
        s_cbranch_scc1 P_dg
        s_add_u32 s18, s18, 1
        s_cmp_lt_u32 s18, 8
        s_cbranch_scc1 P_dt
        s_mov_b32 s22, 31
P_dg:
        s_lshl_b32 s22, s22, 3
        s_add_u32 s22, s22, s21
        v_mov_b32 v2, s22
        ds_write_b32 v4, v2
        s_waitcnt lgkmcnt(0)
P_dw:
        s_mov_b64 exec, -1
        s_barrier
        ds_read_b32 v2, v4
        s_waitcnt lgkmcnt(0)
        v_readfirstlane_b32 s2, v2
        s_barrier
        """)
    a(f"""
    s_and_b32 s21, s2, 7
    s_lshr_b32 s22, s2, 3
    """)
    if early:
        a(f"""
        s_mul_i32 s23, s22, 37
        s_lshr_b32 s23, s23, 8
        s_mul_i32 s36, s23, 7
        s_sub_u32 s36, s22, s36
        s_lshl_b32 s37, s21, 1
        s_lshr_b32 s38, s23, 1
        s_add_u32 s38, s38, s37
        s_lshl_b32 s46, s36, 19
        s_lshl_b32 s47, s38, 9
        s_add_u32 s46, s46, s47
        v_lshrrev_b32 v9, 2, v0
        v_and_b32 v10, 3, v0
        v_lshlrev_b32 v9, 13, v9
        v_lshl_add_u32 v9, v10, 7, v9
        v_add_u32 v9, s46, v9
        s_cmp_ge_u32 s22, 28
        s_cbranch_scc1 P_e2
        s_bitcmp1_b32 s23, 0
        s_waitcnt lgkmcnt(0)
        s_cbranch_scc1 P_e1
        global_load_dword v14, v9, s[26:27] {ldfl}
        global_load_dword v15, v9, s[24:25] {ldfl}
        s_branch P_e2
P_e1:
        s_mul_i32 s46, s38, 229376
        s_lshl_b32 s47, s36, 7
        s_add_u32 s46, s46, s47
        v_mul_u32_u24 v10, 896, v0
        v_add_u32 v10, s46, v10
        global_load_dword v14, v10, s[30:31] {ldfl}
        global_load_dword v15, v9, s[28:29] {ldfl}
P_e2:
        """)
        touch = 0
    if code > 1:
        for k in (1, 2):
            a(f'v_add_u32 v12, 32768, v12\nv_min_u32 v11, L_end-P_pc, v12\nglobal_load_dword v255, v11, s[40:41]')
    a(f"""
    s_load_dwordx2 s[4:5], s[0:1], {KA['ws']}
    s_load_dwordx2 s[6:7], s[0:1], {KA['dbg']}
    v_lshrrev_b32 v2, 6, v0
    v_and_b32 v1, 63, v0
    v_readfirstlane_b32 s20, v2
    s_waitcnt lgkmcnt(0)
    """)
    srd(a, WS, 4, L.WS_BYTES)
    if t0:
        a(f"""
        s_cmp_lg_u32 s2, 0
        s_cbranch_scc1 P_t0
        s_memrealtime s[60:61]
        s_mov_b32 s62, {L.STAMP + 0xf0000}
        v_mov_b32 v5, 0
        s_waitcnt lgkmcnt(0)
        v_mov_b32 v4, s60
        buffer_store_dword v4, v5, s[{WS}:{WS+3}], s62 offen sc1
P_t0:
        """)
    DB = 56
    if fused:
        srd(a, DB, 6, 256)
        a(f"""
        v_mov_b32 v249, 128
        v_mov_b32 v250, 1
        s_or_b32 s19, s2, s20
        s_cmp_lg_u32 s19, 0
        s_cbranch_scc1 P_na
        s_memrealtime s[80:81]
        s_mov_b64 exec, 1
        s_waitcnt lgkmcnt(0)
        s_lshl_b64 s[80:81], s[80:81], 3
        s_or_b32 s81, s81, 0x80000000
        v_mov_b32 v252, s80
        v_mov_b32 v253, s81
        buffer_store_dwordx2 v[252:253], v249, s[{DB}:{DB+3}], 0 offen sc1
        s_mov_b64 exec, -1
P_na:
        """)
    def ask_role():
        l = a.newlabel('P_ar')
        a(f"""
        s_cmp_lg_u32 s20, 0
        s_cbranch_scc1 {l}
        s_getreg_b32 s19, hwreg(HW_REG_XCC_ID, 0, 4)
        s_and_b32 s19, s19, 7
        s_lshl_b32 s19, s19, 2
        s_mov_b64 exec, 1
        v_mov_b32 v251, s19
        buffer_atomic_add v250, v251, s[{DB}:{DB+3}], 0 offen sc0
        s_mov_b64 exec, -1
{l}:
        """)
    tagld = f'buffer_load_dwordx2 v[252:253], v249, s[{DB}:{DB+3}], 0 offen sc1'
    def tag_take():
        l = a.newlabel('P_tg'); d = a.newlabel('P_tgd')
        a(f"""
        s_mov_b32 s19, 0
{l}:
        v_readfirstlane_b32 s80, v252
        v_readfirstlane_b32 s81, v253
        s_cmp_lg_u32 s81, 0
        s_cbranch_scc1 {d}
        {tagld}
        s_add_u32 s19, s19, 1
        s_waitcnt vmcnt(0)
        s_cmp_lt_u32 s19, 100000
        s_cbranch_scc1 {l}
{d}:
        v_mov_b32 v254, 0
        """)
    def flag(prog):
        return f"""v_add_u32 v252, {prog}, v252
            s_mov_b64 exec, 1
            buffer_store_dwordx2 v[252:253], v254, s[{WS}:{WS+3}], s18 offen sc1
            s_mov_b64 exec, -1"""
    def st(k):
        if diag: a(f's_memtime s[{60+2*k}:{61+2*k}]')
    if diag:
        for k in range(8): a(f's_mov_b64 s[{60+2*k}:{61+2*k}], 0')
    st(0)
    nfill = L.CNT + L.CNT_BYTES - L.MB_M
    assert nfill % (256*4096) == 0 or True
    nwg = 192 if fused else 256
    per = (nfill + nwg - 1) // nwg
    per = (per + 4095) // 4096 * 4096
    def fill_boxes():
        a(f"""
        v_lshlrev_b32 v240, 4, v0
        v_mov_b32 v244, -1
        v_mov_b32 v245, -1
        v_mov_b32 v246, -1
        v_mov_b32 v247, -1
        s_mul_i32 s53, {'s23' if fused else 's2'}, {per}
        s_add_u32 s53, s53, {L.MB_M}
        """)
        assert L.MB_M + nwg*per <= L.STAMP
        for k in range(per // 4096):
            l = a.newlabel('P_fs')
            a(f"""
            s_add_u32 s54, s53, {k*4096}
            s_and_b32 s55, s54, 0xffffe000
            s_cmp_eq_u32 s55, {L.MB_M}
            s_cbranch_scc1 {l}
            s_cmp_eq_u32 s55, {L.MB_Y}
            s_cbranch_scc1 {l}
            s_cmp_ge_u32 s54, {L.CNT}
            s_cselect_b32 s55, 0, -1
            v_mov_b32 v244, s55
            v_mov_b32 v245, s55
            v_mov_b32 v246, s55
            v_mov_b32 v247, s55
            buffer_store_dwordx4 v[244:247], v240, s[{WS}:{WS+3}], s54 offen {stfl}
{l}:
            """)
    if fused:
        a(f"""
        s_mul_i32 s23, s21, 28
        s_add_u32 s23, s23, s22
        s_lshl_b32 s18, s21, 2
        s_add_u32 s18, s18, s22
        s_add_u32 s18, s18, {224-28}
        s_cmp_ge_u32 s22, 28
        s_cselect_b32 s18, s18, s23
        s_lshl_b32 s18, s18, 4
        s_add_u32 s18, s18, s20
        s_lshl_b32 s18, s18, 3
        s_add_u32 s18, s18, {L.FL}
        s_cmp_ge_u32 s22, 28
        s_cbranch_scc1 P_ln
        s_mul_i32 s21, s23, 9363
        s_lshr_b32 s21, s21, 16
        s_mul_i32 s36, s21, 7
        s_sub_u32 s36, s23, s36
        """)
    else:
        a(f"""
        s_cmp_ge_u32 s22, 28
        s_cbranch_scc1 P_ln
        s_mul_i32 s23, s22, 37
        s_lshr_b32 s23, s23, 8
        s_mul_i32 s36, s23, 7
        s_sub_u32 s36, s22, s36
        s_lshl_b32 s21, s21, 2
        s_add_u32 s21, s21, s23
        """)
    a(f"""
    s_and_b32 s37, s21, 1
    s_lshr_b32 s38, s21, 1
    s_cmp_eq_u32 s37, 0
    s_cselect_b32 s40, s24, s28
    s_cselect_b32 s41, s25, s29
    s_cselect_b32 s42, s26, s30
    s_cselect_b32 s43, s27, s31
    """)
    srd(a, SA, 40, 448*8192)
    srd(a, SB, 42, 448*8192)
    BF = 0
    AFR = lambda p: 32 + 64*p
    ACC = lambda p: 160 + 32*p
    OUT = 224
    SLOT = lambda k: (k & 1)*65536
    breg = lambda ks, nt: BF + (ks*4 + nt)*4
    a(f"""
    s_lshl_b32 s39, s20, 2
    s_cmp_eq_u32 s20, 3
    s_cselect_b32 s39, 11, s39
    v_and_b32 v4, 15, v1
    v_lshrrev_b32 v5, 4, v1
    v_lshrrev_b32 v6, 5, v1
    v_and_b32 v7, 31, v1
    v_xor_b32 v7, v7, v6
    v_lshlrev_b32 v8, 13, v6
    v_lshl_add_u32 v8, v7, 4, v8
    s_lshl_b32 s50, s20, 14
    s_lshl_b32 s44, s39, 18
    s_lshl_b32 s45, s38, 9
    s_add_u32 s44, s44, s45
    """)
    if touch:
        a(f"""
        v_lshrrev_b32 v9, 2, v0
        v_lshlrev_b32 v9, 13, v9
        v_and_b32 v10, 3, v0
        v_lshl_add_u32 v9, v10, 7, v9
        """)
        if False:
            a(f"""
            s_sub_u32 s46, s23, s36
            s_and_b32 s47, s23, 0xe0
            s_max_u32 s49, s46, s47
            s_add_u32 s46, s46, 7
            s_add_u32 s47, s47, 32
            s_min_u32 s46, s46, s47
            s_sub_u32 s47, s46, s49
            s_sub_u32 s49, s23, s49
P_tch:
            s_lshl_b32 s46, s49, 19
            s_add_u32 s46, s46, s45
            buffer_load_dword v15, v9, s[{SA}:{SA+3}], s46 offen {ldfl}
            s_add_u32 s49, s49, s47
            s_cmp_lt_u32 s49, 7
            s_cbranch_scc1 P_tch
            """)
        else:
            a(f"""
            s_lshl_b32 s46, s36, 19
            s_add_u32 s46, s46, s45
            buffer_load_dword v15, v9, s[{SA}:{SA+3}], s46 offen {ldfl}
            """)
    for k in range(8):
        a(f'v_xor_b32 v{16+k}, {2*k*16}, v8')
    a(f"""
    v_lshrrev_b32 v6, 2, v4
    v_and_b32 v7, 3, v4
    v_lshl_add_u32 v6, v6, 3, v7
    v_lshlrev_b32 v6, 9, v6
    v_add_u32 v6, s50, v6
    v_xor_b32 v7, v5, v4
    """)
    for k in range(4):
        a(f'v_xor_b32 v9, {4*k}, v7\nv_lshl_add_u32 v{24+k}, v9, 4, v6')
    vq = Q('vmcnt', 63)
    def a_dma(blk, i_):
        xr = 16 + ((i_ >> 2)*2 + (i_ & 1))
        def f(lq=None):
            vq.issue(('a', blk))
            return (f's_add_u32 m0, s50, {SLOT(blk) + i_*1024}\ns_add_u32 s46, s44, {(blk*32 + i_*2)*8192}\n'
                    f'buffer_load_dwordx4 v{xr}, s[{SA}:{SA+3}], s46 offen lds')
        return f
    a('s_cmp_eq_u32 s37, 0\ns_cbranch_scc0 P_t1')
    a(f"""
    s_lshl_b32 s47, s36, 19
    s_add_u32 s47, s47, s45
    s_lshl_b32 s46, s20, 17
    s_add_u32 s47, s47, s46
    s_lshl_b32 s51, s20, 13
    s_mov_b32 s48, {LOG2E_16}
    """)
    for k in range(8):
        a(f's_add_u32 m0, s51, {131072 + k*1024}\ns_add_u32 s46, s47, {k*2*8192}\nbuffer_load_dwordx4 v{16+k}, s[{SB}:{SB+3}], s46 offen {ldfl_b} lds')
    a(f"""
    s_branch P_tj
P_t1:
    v_lshrrev_b32 v10, 3, v1
    v_and_b32 v11, 7, v1
    v_mul_u32_u24 v9, 896, v10
    v_and_b32 v12, 2, v10
    v_xor_b32 v11, v11, v12
    v_lshl_add_u32 v9, v11, 4, v9
    v_xor_b32 v13, 64, v9
    s_mul_i32 s47, s38, 229376
    s_lshl_b32 s46, s36, 7
    s_add_u32 s47, s47, s46
    s_mul_i32 s46, s20, {64*896}
    s_add_u32 s47, s47, s46
    s_lshl_b32 s51, s20, 13
    s_mov_b32 s48, 1.0
    """)
    for k in range(8):
        a(f's_add_u32 m0, s51, {131072 + k*1024}\ns_add_u32 s46, s47, {k*8*896}\nbuffer_load_dwordx4 v{13 if k & 1 else 9}, s[{SB}:{SB+3}], s46 offen {ldfl_b} lds')
    a.label('P_tj')
    st(1)
    for i_ in range(16): a(a_dma(0, i_)())
    if a1up:
        for i_ in range(16): a(a_dma(1, i_)())
    a(f's_waitcnt vmcnt({32 if a1up else 16})\ns_barrier')
    st(2)
    a('s_cmp_eq_u32 s37, 0\ns_cbranch_scc0 P_r1')
    a(f'v_lshlrev_b32 v6, 9, v4\nv_add_u32 v6, 131072, v6')
    for k in range(4):
        a(f'v_xor_b32 v9, {4*k}, v7\nv_lshl_add_u32 v{28+k}, v9, 4, v6')
    for ks in range(8):
        for nt in range(4):
            a(f'ds_read_b128 a[{breg(ks,nt)}:{breg(ks,nt)+3}], v{28+(ks&3)} offset:{nt*8192 + (ks>>2)*256}')
            if nt & 1 and not a1up: a(a_dma(1, ks*2 + (nt >> 1))())
    if not a1up: vq.n -= 16
    a(f"""
    s_branch P_rj
P_r1:
    v_bfe_u32 v10, v1, 2, 2
    v_lshl_add_u32 v11, v5, 3, v10
    v_lshlrev_b32 v13, 7, v11
    v_add_u32 v13, 131072, v13
    v_and_b32 v11, 3, v1
    v_lshl_add_u32 v13, v11, 3, v13
    v_lshrrev_b32 v10, 1, v10
    v_and_b32 v11, 1, v5
    v_lshl_add_u32 v10, v11, 1, v10
    """)
    for nt in range(4):
        a(f'v_xor_b32 v9, {nt}, v10\nv_lshl_add_u32 v{28+nt}, v9, 5, v13')
    for ks in range(8):
        for nt in range(4):
            for hf in range(2):
                r = breg(ks, nt) + 2*hf
                a(f'ds_read_b64_tr_b16 a[{r}:{r+1}], v{28+nt} offset:{(ks*32+hf*4)*128}')
            if nt & 1 and not a1up: a(a_dma(1, ks*2 + (nt >> 1))())
    a(f"""
P_rj:
    s_mul_i32 s52, s37, 448
    s_mul_i32 s47, s38, 28
    s_add_u32 s52, s52, s47
    s_lshl_b32 s47, s36, 2
    s_add_u32 s52, s52, s47
    s_mul_i32 s52, s52, 14336
    s_lshl_b32 s47, s39, 10
    s_add_u32 s52, s52, s47
    s_add_u32 s52, s52, {L.WT}
    s_mov_b32 s49, s48
    v_lshlrev_b32 v3, 4, v1
    s_waitcnt vmcnt(16)
    """)
    def a_read(blk, hf, ks):
        r = AFR(blk & 1) + (hf*8+ks)*4
        off = hf*4*512 + (ks >> 2)*256
        return f'ds_read_b128 v[{r}:{r+3}], v{24+(ks&3) if not blk & 1 else 10+(ks&3)} offset:{off}'
    for k in range(4): a(f'v_add_u32 v{10+k}, 65536, v{24+k}')
    for hf in range(2):
        for ks in range(8): a(a_read(0, hf, ks))
    if fused: a('s_cmp_ge_u32 s23, 192\ns_cbranch_scc1 P_nf')
    fill_boxes()
    if fused: a.label('P_nf')
    a('s_waitcnt lgkmcnt(0)')
    from team import Gaps, emit_stream
    def epi(blk):
        va = []; stt = []
        for nt in range(4):
            ca = ACC(blk & 1) + nt*4; cb = ACC(blk & 1) + (4+nt)*4; o = OUT + nt*4
            v = [f'v_pk_mul_f32 v[{c}:{c+1}], v[{c}:{c+1}], s[48:49]' for c in (ca, ca+2, cb, cb+2)]
            v += [f'v_cvt_pk_bf16_f32 v{o}, v{ca}, v{ca+1}', f'v_cvt_pk_bf16_f32 v{o+1}, v{ca+2}, v{ca+3}',
                  f'v_cvt_pk_bf16_f32 v{o+2}, v{cb}, v{cb+1}', f'v_cvt_pk_bf16_f32 v{o+3}, v{cb+2}, v{cb+3}']
            va.append(v)
            def sf(lq=None, nt=nt, o=o):
                vq.issue(('st', blk))
                return f's_add_u32 s47, s52, {nt*14336}\nbuffer_store_dwordx4 v[{o}:{o+3}], v3, s[{WS}:{WS+3}], s47 offen offset:{blk*1024} {wst[0]}'
            stt.append(sf)
        return va, stt
    lq = Q('lgkmcnt', 15)
    wst = [stfl]
    def block(blk, nb):
        ms = []
        for hf in range(2):
            for ks in range(8):
                r = AFR(blk & 1) + (hf*8+ks)*4
                for nt in range(4):
                    c = ACC(blk & 1) + (hf*4+nt)*4
                    ms.append((f'v_mfma_f32_16x16x32_bf16 v[{c}:{c+3}], v[{r}:{r+3}], a[{breg(ks,nt)}:{breg(ks,nt)+3}], ' + ('0' if ks == 0 else f'v[{c}:{c+3}]'), []))
        gp = Gaps(64)
        g = 0
        if blk + 2 < nb:
            for i_ in range(16): g = gp.put('ds', g, a_dma(blk+2, i_)) + 3
        if blk > 0:
            va, stt = epi(blk-1)
            g2 = 3
            for nt in range(4):
                for x in va[nt]: g2 = gp.put('va', g2, x) + 1
                gp.put('ds', g2+1, stt[nt])
        if blk + 1 < nb:
            gp.force('ds', 44, lambda lq, b=blk+1: vq.wait(('a', b)))
            g = 44
            for hf in range(2):
                for ks in range(8):
                    gp.force('ds', g, a_read(blk+1, hf, ks)); g += 1
            gp.force('va', 63, 's_waitcnt lgkmcnt(0)')
        emit_stream(a, ms, gp, lq)
    block(0, 4)
    st(3)
    keep = (vq.n, dict(vq.tags), vq.done)
    if keep0:
        a('s_getreg_b32 s19, hwreg(HW_REG_XCC_ID, 0, 4)\ns_and_b32 s19, s19, 7\ns_cmp_eq_u32 s19, 0\ns_cbranch_scc1 P_k0')
    for var in range(2 if keep0 else 1):
        if var: a.label('P_k0'); wst[0] = ''
        a(f's_cmp_lt_u32 s20, 2\ns_cbranch_scc1 P_b4{var}')
        for nb in (3, 4):
            if nb == 4: a.label(f'P_b4{var}')
            vq.n, vq.tags, vq.done = keep[0], dict(keep[1]), keep[2]
            for blk in range(1, nb):
                if fused and blk == nb-1:
                    ask_role(); a(tagld)
                block(blk, nb)
            va, stt = epi(nb-1)
            for nt in range(4):
                for x in va[nt]: a(x)
                a(stt[nt]())
            a('s_branch P_last')
    a.label('P_last')
    if fused:
        a('s_waitcnt vmcnt(0)'); tag_take(); a(flag(7))
    a('s_branch P_exit')
    a.label('P_ln')
    srd(a, SA, 32, 2048*896)
    srd(a, SB, 34, 8*896)
    X = 16
    U = 80
    a(f"""
    s_sub_u32 s22, s22, 28
    s_lshl_b32 s21, s21, 2
    s_add_u32 s21, s21, s22
    s_lshl_b32 s21, s21, 2
    s_add_u32 s21, s21, s20
    v_lshrrev_b32 v4, 2, v1
    v_and_b32 v5, 3, v1
    v_mul_u32_u24 v6, 896, v4
    v_lshl_add_u32 v6, v5, 4, v6
    s_mul_i32 s23, s21, {16*896}
    """)
    for kb in range(14):
        a(f'buffer_load_dwordx4 v[{X+4*kb}:{X+4*kb+3}], v6, s[{SA}:{SA+3}], s23 offen offset:{kb*64} {ldfl}')
    if not fused: fill_boxes()
    l = a.newlabel('P_m0')
    a(f's_cmp_ge_u32 s21, 28\ns_cbranch_scc1 {l}')
    from team import img_addr
    img_addr(a, 8, 9, 1)
    a(f"""
    v_lshrrev_b32 v9, 4, v1
    v_mul_u32_u24 v9, {2*896}, v9
    v_and_b32 v7, 15, v1
    v_lshl_add_u32 v9, v7, 1, v9
    s_lshl_b32 s36, s21, 5
    buffer_load_ushort v200, v9, s[{SB}:{SB+3}], s36 offen
    buffer_load_ushort v201, v9, s[{SB}:{SB+3}], s36 offen offset:896
    s_lshr_b32 s36, s21, 2
    s_lshl_b32 s36, s36, 10
    s_and_b32 s37, s21, 3
    s_lshl_b32 s37, s37, 7
    s_add_u32 s36, s36, s37
    s_add_u32 s37, s36, {L.MB_Y}
    s_add_u32 s36, s36, {L.MB_M}
    s_waitcnt vmcnt(0)
    v_lshl_or_b32 v200, v201, 16, v200
    buffer_store_dword v200, v8, s[{WS}:{WS+3}], s36 offen {stfl}
    buffer_store_dword v200, v8, s[{WS}:{WS+3}], s37 offen {stfl}
{l}:
    s_waitcnt vmcnt(0)
    """)
    st(2)
    if fused: ask_role()
    ln_rows(a, X, U, 56, 10, quadred)
    st(4)
    GS, KS = 288, 1152
    a(f"""
    s_mul_i32 s36, s20, {14*KS}
    v_mul_u32_u24 v7, {GS}, v5
    v_lshl_add_u32 v7, v4, 4, v7
    v_add_u32 v7, s36, v7
    v_lshlrev_b32 v3, 4, v1
    v_lshrrev_b32 v6, 4, v1
    v_mul_u32_u24 v6, {GS}, v6
    v_and_b32 v8, 15, v1
    v_lshl_add_u32 v8, v8, 4, v6
    v_add_u32 v8, s36, v8
    """)
    for kb in range(14):
        a(f'ds_write_b128 v7, v[{X+4*kb}:{X+4*kb+3}] offset:{kb*KS}')
    a(f"""
    s_mul_i32 s36, s21, 14336
    s_add_u32 s36, s36, {L.XN}
    """)
    st(3)
    for kb in range(14):
        a(f'ds_read_b128 v[{U+4*kb}:{U+4*kb+3}], v8 offset:{kb*KS}')
    for kb in range(14):
        if kb and kb % 4 == 0: a('s_add_u32 s36, s36, 4096')
        a(f's_waitcnt lgkmcnt({13-kb})')
        a(f'buffer_store_dwordx4 v[{U+4*kb}:{U+4*kb+3}], v3, s[{WS}:{WS+3}], s36 offen offset:{(kb%4)*1024} {stfl}')
    if fused:
        a(tagld + '\ns_waitcnt vmcnt(0)'); tag_take(); a(flag(7))
    a.label('P_exit')
    if fused: return
    if diag:
        a('s_cmp_ge_u32 s2, 256\ns_cbranch_scc1 P_exit2')
        st(5)
        a('s_waitcnt vmcnt(0)')
        st(6)
        a(f's_waitcnt lgkmcnt(0)\ns_lshl_b32 s36, s2, 2\ns_add_u32 s36, s36, s20\ns_lshl_b32 s36, s36, 6\ns_add_u32 s36, s36, {L.STAMP}\ns_mov_b64 exec, 1\nv_mov_b32 v3, 0')
        for k in range(7):
            a(f'v_mov_b32 v4, s{60+2*k}\nbuffer_store_dword v4, v3, s[{WS}:{WS+3}], s36 offen offset:{4*k}\ns_nop 1')
        a.label('P_exit2')
    a('s_endpgm')

def rnd_bf16(a, r, t):
    a(f'v_cvt_pk_bf16_f32 v{r}, v{r}, v{r}\nv_and_b32 v{r}, 0xffff0000, v{r}')

def quadred(a, x, t):
    a(f'v_add_f32_dpp v{x}, v{x}, v{x} quad_perm:[1,0,3,2] row_mask:0xf bank_mask:0xf')
    a(f'v_add_f32_dpp v{x}, v{x}, v{x} quad_perm:[2,3,0,1] row_mask:0xf bank_mask:0xf')

def ln_stats_finish(a, mu, rs, tt):
    rnd_bf16(a, rs, tt)
    a(f'v_add_f32 v{rs}, 0x3727c5ac, v{rs}')
    rnd_bf16(a, rs, tt)
    a(f'v_sqrt_f32 v{rs}, v{rs}')
    rnd_bf16(a, rs, tt)
    a(f'v_rcp_f32 v{rs}, v{rs}')
    rnd_bf16(a, mu, tt)

def ln_rows(a, X, U, n, t, red):
    s0, s1, d0, nm, rs = t, t+1, t+2, t+4, 76
    for i in range(n):
        a(f'v_lshlrev_b32 v{U+2*i}, 16, v{X+i}\nv_and_b32 v{U+2*i+1}, 0xffff0000, v{X+i}')
        if i == 1: a(f'v_pk_add_f32 v[{s0}:{s1}], v[{U}:{U+1}], v[{U+2}:{U+3}]')
        if i > 1: a(f'v_pk_add_f32 v[{s0}:{s1}], v[{s0}:{s1}], v[{U+2*i}:{U+2*i+1}]')
    a(f'v_add_f32 v{s0}, v{s0}, v{s1}')
    red(a, s0, d0)
    a(f'v_mul_f32 v{nm}, 0xbb124925, v{s0}\nv_mul_f32 v{nm+1}, 0xbb124925, v{s0}')
    for i in range(n):
        d = d0 if i & 1 else 72
        a(f'v_pk_add_f32 v[{d}:{d+1}], v[{U+2*i}:{U+2*i+1}], v[{nm}:{nm+1}]')
        if i == 0: a(f'v_pk_mul_f32 v[{s0}:{s1}], v[{d}:{d+1}], v[{d}:{d+1}]')
        else: a(f'v_pk_fma_f32 v[{s0}:{s1}], v[{d}:{d+1}], v[{d}:{d+1}], v[{s0}:{s1}]')
    a(f'v_add_f32 v{s0}, v{s0}, v{s1}')
    red(a, s0, d0)
    a(f'v_mul_f32 v{rs}, 0x3b124925, v{s0}')
    ln_stats_finish(a, nm, rs, d0)
    a(f'v_mov_b32 v{nm+1}, v{nm}\nv_mov_b32 v{rs+1}, v{rs}')
    for i in range(n):
        u = U+2*i
        a(f"""
        v_pk_add_f32 v[{u}:{u+1}], v[{u}:{u+1}], v[{nm}:{nm+1}]
        v_cvt_pk_bf16_f32 v{X+i}, v{u}, v{u+1}
        v_lshlrev_b32 v{u}, 16, v{X+i}
        v_and_b32 v{u+1}, 0xffff0000, v{X+i}
        v_pk_mul_f32 v[{u}:{u+1}], v[{u}:{u+1}], v[{rs}:{rs+1}]
        v_cvt_pk_bf16_f32 v{X+i}, v{u}, v{u+1}
        """)
```

```python
from asmlib import *
import layout as L

SENT = -1
S_WS = 8
S_DBG = 12
S_ROLE = 16
S_WAVE = 17
S_XCC = 18
S_STEP = 19
S_FAST = 20
S_MOFF = 21; S_POFF = 22; S_EOFF = 23; S_GOFF = 24; S_XOFF = 25; S_T0 = 26; S_T1 = 27; S_SPIN = 28; S_LIM = 29
S_EXEC = 30
S_STMP = 32
S_TM = 34
SPIN_MAX = 20000
NTEAM = 32

LDS_M = 0
LDS_T = 7168
LDS_FL = 14336
LDS_VD = 18432
LDS_X = 20480
LDS_CF = 14336
LDS_NAN = 13312
LDS_RED = 7168
LDS_BW = 16384
LDS_ROLE = 160*1024 - 16

def prologue(a, stamps, pool_off=0, scatter=False, code=1, guess=0):
    if code:
        a('s_getpc_b64 s[40:41]\nM_pc:\nv_lshlrev_b32 v12, 7, v0\nglobal_load_dword v255, v12, s[40:41]')
        a('v_add_u32 v12, 32768, v12\nv_min_u32 v11, L_end-M_pc, v12\nglobal_load_dword v255, v11, s[40:41]')
    a(f'''
    s_cmp_ge_u32 s2, 256
    s_cbranch_scc1 L_end
    s_load_dwordx2 s[4:5], s[0:1], 96
    s_load_dwordx2 s[6:7], s[0:1], 88
    s_getreg_b32 s{S_XCC}, hwreg(HW_REG_XCC_ID, 0, 4)
    v_lshrrev_b32 v2, 6, v0
    v_and_b32 v1, 63, v0
    v_readfirstlane_b32 s{S_WAVE}, v2
    s_and_b32 s{S_XCC}, s{S_XCC}, 7
    s_waitcnt lgkmcnt(0)
    s_mov_b32 s{S_WS}, s4
    s_and_b32 s{S_WS+1}, s5, 0xffff
    s_mov_b32 s{S_WS+2}, {L.WS_BYTES}
    s_mov_b32 s{S_WS+3}, 0x20000
    s_mov_b32 s{S_DBG}, s6
    s_and_b32 s{S_DBG+1}, s7, 0xffff
    s_mov_b32 s{S_DBG+2}, 256
    s_mov_b32 s{S_DBG+3}, 0x20000
    v_mov_b32 v4, {LDS_ROLE}
    ''')
    if guess:
        a(f'''
        s_cmp_lg_u32 s{S_XCC}, 0
        s_cbranch_scc1 L_ng
        s_lshr_b32 s{S_T0}, s2, 3
        s_cmp_ge_u32 s{S_T0}, 30
        s_cbranch_scc1 L_ng
        s_mul_i32 s{S_T1}, s{S_T0}, 28
        s_add_u32 s{S_T1}, s{S_T1}, s{S_WAVE}
        s_mov_b32 s{S_STEP}, {4*14336}
        s_cmp_lt_u32 s{S_T0}, 16
        s_cbranch_scc1 L_gs
        s_lshl_b32 s{S_T1}, s{S_T0}, 1
        s_mul_i32 s{S_T0}, s{S_WAVE}, 112
        s_add_u32 s{S_T1}, s{S_T1}, s{S_T0}
        s_add_u32 s{S_T1}, s{S_T1}, {448 - 32 + 84}
        s_mov_b32 s{S_STEP}, 14336
L_gs:
        s_mul_i32 s{S_T1}, s{S_T1}, 14336
        s_add_u32 s{S_T1}, s{S_T1}, {L.WT}
        v_min_u32 v5, 55, v1
        v_lshlrev_b32 v5, 7, v5
        ''')
        for k in range(guess):
            a(f's_add_u32 s{S_T0}, s{S_T1}, 7168')
            a(f'buffer_load_dword v255, v5, s[{S_WS}:{S_WS+3}], s{S_T1} offen\nbuffer_load_dword v255, v5, s[{S_WS}:{S_WS+3}], s{S_T0} offen')
            a(f's_add_u32 s{S_T1}, s{S_T1}, s{S_STEP}')
        a.label('L_ng')
    a(f'''
    s_cmp_lg_u32 s{S_WAVE}, 0
    s_cbranch_scc1 L_role_wait
    s_mov_b64 exec, 1
    s_mov_b32 s{S_T0}, 0
L_role_try:
    {f's_lshr_b32 s{S_T1}, s2, 5' if scatter else f's_mov_b32 s{S_T1}, s{S_XCC}'}
    s_add_u32 s{S_T1}, s{S_T1}, s{S_T0}
    s_and_b32 s{S_T1}, s{S_T1}, 7
    s_lshl_b32 s{S_ROLE}, s{S_T1}, 7
    s_add_u32 s{S_ROLE}, s{S_ROLE}, {L.CNT_P + pool_off}
    v_mov_b32 v2, s{S_ROLE}
    v_mov_b32 v3, 1
    buffer_atomic_add v3, v2, s[{S_WS}:{S_WS+3}], 0 offen sc0
    s_waitcnt vmcnt(0)
    v_readfirstlane_b32 s{S_ROLE}, v3
    s_cmp_lt_u32 s{S_ROLE}, 32
    s_cbranch_scc1 L_role_got
    s_add_u32 s{S_T0}, s{S_T0}, 1
    s_cmp_lt_u32 s{S_T0}, 8
    s_cbranch_scc1 L_role_try
    s_mov_b32 s{S_ROLE}, 31
    s_mov_b32 s{S_T1}, 0
L_role_got:
    s_lshl_b32 s{S_T1}, s{S_T1}, 5
    s_add_u32 s{S_ROLE}, s{S_ROLE}, s{S_T1}
    v_mov_b32 v2, s{S_ROLE}
    ds_write_b32 v4, v2
    s_mov_b64 exec, -1
    s_waitcnt lgkmcnt(0)
L_role_wait:
    s_barrier
    ds_read_b32 v2, v4
    s_waitcnt lgkmcnt(0)
    v_readfirstlane_b32 s{S_ROLE}, v2
    ''')

FSL = [8, 32]
def wait_flags(a, vaddr, need, t, n=1):
    l = a.newlabel('L_wf'); d = a.newlabel('L_wfd')
    regs = [t] + [t+4+2*k for k in range(n-1)]
    a(f"""
    s_mov_b32 s{S_SPIN}, 0
    s_mov_b32 s{S_EXEC}, {L.FL}
    s_add_u32 s{S_EXEC+1}, s80, {need}
{l}:
    """)
    for k, r in enumerate(regs):
        a(f'buffer_load_dwordx2 v[{r}:{r+1}], v{vaddr}, s[{S_WS}:{S_WS+3}], s{S_EXEC} offen offset:{k*512} sc1')
    a(f's_add_u32 s{S_SPIN}, s{S_SPIN}, 1\ns_waitcnt vmcnt(0)')
    for k, r in enumerate(regs):
        a(f"""
        v_subrev_u32 v{r}, s{S_EXEC+1}, v{r}
        v_xor_b32 v{r+1}, s81, v{r+1}
        v_lshl_or_b32 v{t+2}, v{r+1}, 3, v{r+1}
        v_or_b32 v{r}, v{r}, v{t+2}
        """)
        if k: a(f'v_max_u32 v{t}, v{t}, v{r}')
    a(f"""
    v_cmp_lt_u32 vcc, {7 - need}, v{t}
    s_cbranch_vccz {d}
    s_sleep {FSL[n > 1]}
    s_cmp_lt_u32 s{S_SPIN}, {SPIN_MAX*4}
    s_cbranch_scc1 {l}
{d}:
    """)

def prologue_fused(a):
    a(f"""
    s_getreg_b32 s{S_XCC}, hwreg(HW_REG_XCC_ID, 0, 4)
    s_mov_b32 s{S_WAVE}, s20
    s_and_b32 s{S_XCC}, s{S_XCC}, 7
    s_mov_b32 s{S_DBG}, s56
    s_mov_b32 s{S_DBG+1}, s57
    s_mov_b32 s{S_DBG+2}, 256
    s_mov_b32 s{S_DBG+3}, 0x20000
    v_mov_b32 v4, {LDS_ROLE}
    s_cmp_lg_u32 s{S_WAVE}, 0
    s_barrier
    s_cbranch_scc1 L_role_wait
    s_mov_b64 exec, 1
    s_mov_b32 s{S_T0}, 0
    s_mov_b32 s{S_T1}, s{S_XCC}
    v_mov_b32 v3, v250
    s_branch L_role_see
L_role_try:
    s_add_u32 s{S_T1}, s{S_XCC}, s{S_T0}
    s_and_b32 s{S_T1}, s{S_T1}, 7
    s_lshl_b32 s{S_ROLE}, s{S_T1}, 2
    v_mov_b32 v2, s{S_ROLE}
    v_mov_b32 v3, 1
    buffer_atomic_add v3, v2, s[{S_DBG}:{S_DBG+3}], 0 offen sc0
    s_waitcnt vmcnt(0)
L_role_see:
    v_readfirstlane_b32 s{S_ROLE}, v3
    s_cmp_lt_u32 s{S_ROLE}, 32
    s_cbranch_scc1 L_role_got
    s_add_u32 s{S_T0}, s{S_T0}, 1
    s_cmp_lt_u32 s{S_T0}, 8
    s_cbranch_scc1 L_role_try
    s_mov_b32 s{S_ROLE}, 31
    s_mov_b32 s{S_T1}, 0
L_role_got:
    s_lshl_b32 s{S_T1}, s{S_T1}, 5
    s_add_u32 s{S_ROLE}, s{S_ROLE}, s{S_T1}
    v_mov_b32 v2, s{S_ROLE}
    ds_write_b32 v4, v2
    s_mov_b64 exec, -1
    s_waitcnt lgkmcnt(0)
L_role_wait:
    s_barrier
    ds_read_b32 v2, v4
    s_waitcnt lgkmcnt(0)
    v_readfirstlane_b32 s{S_ROLE}, v2
    """)

def wait_ln(a, lane, t, sleep=8):
    l = a.newlabel('L_wa'); d = a.newlabel('L_wad')
    a(f"""
    s_lshl_b32 s{S_T0}, s{S_WAVE}, 13
    s_add_u32 s{S_T0}, s{S_T0}, {L.FL}
    s_add_u32 s{S_T1}, s80, 7
    v_lshlrev_b32 v{t+8}, 7, v{lane}
    s_mov_b32 s{S_SPIN}, 0
{l}:
    buffer_load_dwordx4 v[{t}:{t+3}], v{t+8}, s[{S_WS}:{S_WS+3}], s{S_T0} offen sc1
    buffer_load_dwordx4 v[{t+4}:{t+7}], v{t+8}, s[{S_WS}:{S_WS+3}], s{S_T0} offen offset:16 sc1
    s_add_u32 s{S_SPIN}, s{S_SPIN}, 1
    s_waitcnt vmcnt(0)
    """)
    for k in range(4):
        a(f'v_xor_b32 v{t+2*k}, s{S_T1}, v{t+2*k}\nv_xor_b32 v{t+2*k+1}, s81, v{t+2*k+1}')
    a(f"""
    v_or3_b32 v{t}, v{t}, v{t+1}, v{t+2}
    v_or3_b32 v{t+3}, v{t+3}, v{t+4}, v{t+5}
    v_or3_b32 v{t}, v{t}, v{t+6}, v{t+7}
    v_or_b32 v{t}, v{t}, v{t+3}
    v_cmp_ne_u32 vcc, 0, v{t}
    s_cbranch_vccz {d}
    s_sleep {sleep}
    s_cmp_lt_u32 s{S_SPIN}, {SPIN_MAX*4}
    s_cbranch_scc1 {l}
{d}:
    s_barrier
    """)

STAGE1 = (0, 4, 8, 11)
def load_tiles(a, tiles, vaddr, sbase, stage, flags, bud, cap=None):
    for off, dsts in tiles:
        cur = None
        for k in range(14):
            if stage is not None and (k in STAGE1) != (stage == 1): continue
            if cur != k // 4:
                cur = k // 4
                a(f's_add_u32 s{S_T0}, s{sbase}, {off + cur*4096}')
            a(f'buffer_load_dwordx4 {dsts[k]}, v{vaddr}, s[{S_WS}:{S_WS+3}], s{S_T0} offen offset:{(k%4)*1024} {flags}')
            bud[0] += 1
            if cap is not None:
                if bud[0] > cap: a(f's_waitcnt vmcnt({cap})')
            elif bud[0] >= 56:
                a('s_waitcnt vmcnt(28)'); bud[0] = 28

def team_register(a):
    l = a.newlabel('L_reg')
    a(f'''
    s_cmp_lg_u32 s{S_WAVE}, 0
    s_cbranch_scc1 {l}
    s_cmp_eq_u32 s{S_XCC}, 0
    s_cselect_b32 s{S_T0}, 1, 0x10001
    s_mov_b64 exec, 1
    v_mov_b32 v2, 64
    v_mov_b32 v3, s{S_T0}
    buffer_atomic_add v3, v2, s[{S_DBG}:{S_DBG+3}], 0 offen
    s_mov_b64 exec, -1
{l}:
    ''')

def team_mode_load(vt0, vt1):
    return f'v_mov_b32 v{vt0}, 64\nbuffer_load_dword v{vt1}, v{vt0}, s[{S_DBG}:{S_DBG+3}], 0 offen sc1'

def team_mode(a, vt0, vt1, primed=False):
    l = a.newlabel('L_mode'); d = a.newlabel('L_moded'); p = a.newlabel('L_modep')
    a(f'''
    s_mov_b32 s{S_SPIN}, 0
    {f's_branch {p}' if primed else ''}
{l}:
    {team_mode_load(vt0, vt1)}
{p}:
    s_waitcnt vmcnt(0)
    v_readfirstlane_b32 s{S_T0}, v{vt1}
    s_and_b32 s{S_T1}, s{S_T0}, 0xffff
    s_cmp_ge_u32 s{S_T1}, {NTEAM}
    s_cbranch_scc1 {d}
    s_sleep 2
    s_add_u32 s{S_SPIN}, s{S_SPIN}, 1
    s_cmp_lt_u32 s{S_SPIN}, {SPIN_MAX}
    s_cbranch_scc1 {l}
    s_mov_b32 s{S_T0}, 0x10000
{d}:
    s_lshr_b32 s{S_T0}, s{S_T0}, 16
    s_cmp_eq_u32 s{S_T0}, 0
    s_cselect_b32 s{S_FAST}, 1, 0
    s_mov_b32 s{S_LIM}, {SPIN_MAX}
    ''')

def stamp(a, stamps, idx, vt=None):
    if not stamps: return
    a(f's_memtime s[{40+2*idx}:{41+2*idx}]')
    if idx == 2: a('s_memrealtime s[60:61]')

def stamp_flush(a, stamps, n, vt):
    if not stamps: return
    a('s_waitcnt lgkmcnt(0)')
    for k in range(n):
        a(f'v_writelane_b32 v{vt}, s{40+2*k}, {k}')
    a(f"""
    v_lshrrev_b32 v{vt+1}, 1, v0
    s_mov_b64 exec, {(1 << n) - 1}
    buffer_store_dword v{vt}, v{vt+1}, s[{S_WS}:{S_WS+3}], s{S_STMP} offen
    s_mov_b64 exec, -1
    """)

def wreg(wb, vbase):
    return ar(8*wb, 8) if wb < 32 else vr(vbase + 8*(wb-32), 8)
def wreg_half(wb, vbase, half):
    return ar(8*wb + 4*half, 4) if wb < 32 else vr(vbase + 8*(wb-32) + 4*half, 4)

def xlane4(a, op, x, t):
    a(f'''
    v_mov_b32 v{t}, v{x}
    v_permlane16_swap_b32 v{x}, v{t}
    {op} v{x}, v{x}, v{t}
    v_mov_b32 v{t}, v{x}
    v_permlane32_swap_b32 v{x}, v{t}
    {op} v{x}, v{x}, v{t}
    ''')

QP = 'quad_perm:[2,3,0,1] row_mask:0xf bank_mask:0xf'

def read_mf(a, V):
    for b in range(7):
        a(f"ds_read_b64_tr_b16 v[{V['mf']+4*b}:{V['mf']+4*b+1}], v{V['l8']} offset:{LDS_M+b*1024}")
        a(f"ds_read_b64_tr_b16 v[{V['mf']+4*b+2}:{V['mf']+4*b+3}], v{V['l8']} offset:{LDS_M+b*1024+512}")

def SM(acc, A, B, idx):
    return f'v_smfmac_f32_16x16x64_bf16 v[{acc}:{acc+3}], v[{A}:{A+3}], {B}, v{idx}'


class Q:
    def __init__(self, name, cap):
        self.name = name; self.n = 0; self.tags = {}; self.done = 0; self.cap = cap
    def issue(self, tag=None):
        self.n += 1
        if tag is not None: self.tags[tag] = self.n
    def wait(self, tag):
        k = self.tags[tag]
        if k <= self.done: return ''
        self.done = k
        return 's_waitcnt %s(%d)' % (self.name, min(self.n - k, self.cap))
    def drain(self):
        self.done = self.n
        return 's_waitcnt %s(0)' % self.name

WSRD = f's[{S_WS}:{S_WS+3}]'

def poll_m(a, V, sleep=0):
    t = V['mf']; pa = V['pa']
    l = a.newlabel('L_pm'); d = a.newlabel('L_pmd')
    a(f"""
    s_mov_b32 s{S_SPIN}, 0
{l}:
    buffer_load_dwordx4 v[{t}:{t+3}], v{pa}, {WSRD}, s{S_MOFF} offen sc1
    buffer_load_dwordx4 v[{t+4}:{t+7}], v{pa}, {WSRD}, s{S_MOFF} offen offset:768 sc1
    s_add_u32 s{S_SPIN}, s{S_SPIN}, 1
    s_waitcnt vmcnt(1)
    ds_write_b128 v{pa}, v[{t}:{t+3}]
    v_max3_u32 v{t+8}, v{t}, v{t+1}, v{t+2}
    s_waitcnt vmcnt(0)
    ds_write_b128 v{pa}, v[{t+4}:{t+7}] offset:768
    v_max3_u32 v{t+8}, v{t+8}, v{t+3}, v{t+4}
    v_max3_u32 v{t+8}, v{t+8}, v{t+5}, v{t+6}
    v_max_u32 v{t+8}, v{t+8}, v{t+7}
    v_cmp_eq_u32 vcc, -1, v{t+8}
    s_cbranch_vccz {d}
    {'s_sleep %d' % sleep if sleep else ''}
    s_cmp_lt_u32 s{S_SPIN}, s{S_LIM}
    s_cbranch_scc1 {l}
    s_mov_b32 s{S_LIM}, 1
{d}:
    s_waitcnt lgkmcnt(0)
    s_barrier
    """)

def poll_m2(a, V, gap, x):
    pa = V['pa']; sets = (V['acc']+8, V['acc']+16)
    l = a.newlabel('L_pm'); d = a.newlabel('L_pmd')
    def issue(t):
        a(f"""
        buffer_load_dwordx4 v[{t}:{t+3}], v{pa}, {WSRD}, s{S_MOFF} offen sc1
        buffer_load_dwordx4 v[{t+4}:{t+7}], v{pa}, {WSRD}, s{S_MOFF} offen offset:768 sc1
        """)
    def check(t):
        a(f"""
        s_add_u32 s{S_SPIN}, s{S_SPIN}, 1
        s_waitcnt vmcnt(3)
        ds_write_b128 v{pa}, v[{t}:{t+3}]
        v_max3_u32 v{x}, v{t}, v{t+1}, v{t+2}
        s_waitcnt vmcnt(2)
        ds_write_b128 v{pa}, v[{t+4}:{t+7}] offset:768
        v_max3_u32 v{x}, v{x}, v{t+3}, v{t+4}
        v_max3_u32 v{x}, v{x}, v{t+5}, v{t+6}
        v_max_u32 v{x}, v{x}, v{t+7}
        v_cmp_eq_u32 vcc, -1, v{x}
        """)
    a(f's_mov_b32 s{S_SPIN}, 0')
    issue(sets[0])
    while gap > 0:
        a(f's_nop {min(gap, 16) - 1}'); gap -= 16
    issue(sets[1]); check(sets[0])
    a(f's_cbranch_vccnz {l}\n{d}:\ns_waitcnt lgkmcnt(0)\ns_barrier')
    def cold():
        a.label(l)
        issue(sets[0]); check(sets[1])
        a(f's_cbranch_vccz {d}')
        issue(sets[1]); check(sets[0])
        a(f"""
        s_cbranch_vccz {d}
        s_cmp_lt_u32 s{S_SPIN}, s{S_LIM}
        s_cbranch_scc1 {l}
        s_mov_b32 s{S_LIM}, 1
        s_branch {d}
        """)
    a.cold.append(cold)

def wait_hint(a, vaddr, soff, regs, imm=0, delay=0, gap=12, inner=8, fill=None, primed=False):
    n = len(regs)
    l = a.newlabel('L_h'); d = a.newlabel('L_hd')
    ld = lambda r: f'buffer_load_dword v{r}, v{vaddr}, {WSRD}, s{soff} offen offset:{imm} sc1'
    a(f's_mov_b32 s{S_SPIN}, 0')
    fill = list(fill or [])
    per = -(-len(fill) // (n-1))
    for k in range(0 if primed else n-1):
        a(ld(regs[k]))
        for x in fill[k*per:(k+1)*per]: a(x)
        if per < gap: a(f's_nop {gap - per}')
    a.label(l)
    for k in range(n):
        a(f"""
        {ld(regs[(k+n-1) % n])}
        s_waitcnt vmcnt({n-1})
        v_cmp_eq_u32 vcc, -1, v{regs[k]}
        s_cbranch_vccz {d}
        s_nop {inner}
        """)
    a(f"""
    s_add_u32 s{S_SPIN}, s{S_SPIN}, 1
    s_cmp_lt_u32 s{S_SPIN}, s{S_LIM}
    s_cbranch_scc1 {l}
{d}:
    """)
    while delay > 0:
        a(f's_nop {min(delay, 16) - 1}'); delay -= 16

def wait_cnt(a, off_sgpr, target, vt, sleep=4, primed=False):
    l = a.newlabel('L_wc'); d = a.newlabel('L_wcd'); p = a.newlabel('L_wcp')
    a(f"""
    s_mov_b32 s{S_SPIN}, 0
    v_mov_b32 v{vt}, 0
    {f's_branch {p}' if primed else ''}
{l}:
    buffer_load_dword v{vt+1}, v{vt}, {WSRD}, s{off_sgpr} offen sc1
{p}:
    s_add_u32 s{S_SPIN}, s{S_SPIN}, 1
    s_waitcnt vmcnt(0)
    v_readfirstlane_b32 s{S_T0}, v{vt+1}
    s_cmp_ge_u32 s{S_T0}, {target}
    s_cbranch_scc1 {d}
    s_sleep {sleep}
    s_cmp_lt_u32 s{S_SPIN}, s{S_LIM}
    s_cbranch_scc1 {l}
    s_mov_b32 s{S_LIM}, 1
{d}:
    """)

def img_addr(a, dst, t, lane):
    a(f"""
    v_bfe_u32 v{dst}, v{lane}, 3, 1
    v_lshlrev_b32 v{dst}, 9, v{dst}
    v_bfe_u32 v{t}, v{lane}, 2, 1
    v_lshl_add_u32 v{dst}, v{t}, 6, v{dst}
    v_and_b32 v{t}, 1, v{lane}
    v_lshl_add_u32 v{dst}, v{t}, 5, v{dst}
    v_lshrrev_b32 v{t}, 4, v{lane}
    v_lshl_add_u32 v{dst}, v{t}, 3, v{dst}
    v_bfe_u32 v{t}, v{lane}, 1, 1
    v_lshl_add_u32 v{dst}, v{t}, 2, v{dst}
    """)

def common_addrs(a, V, LN):
    a(f"""
    v_lshlrev_b32 v{V['l8']}, 3, v{LN}
    s_mul_i32 s{S_T0}, s{S_WAVE}, {112*16}
    v_lshlrev_b32 v{V['pa']}, 4, v{LN}
    v_add_u32 v{V['pa']}, s{S_T0}, v{V['pa']}
    v_and_b32 v{LN+1}, 2, v{LN}
    v_cmp_ne_u32 vcc, 0, v{LN+1}
    v_mov_b32 v{LN+1}, 0x4444
    v_mov_b32 v{LN+2}, 0xeeee
    v_cndmask_b32 v{V['idx']}, v{LN+1}, v{LN+2}, vcc
    """)

def load_1k_run(a, dsts, vaddr, sbase, flags='', budget=None):
    for i, d in enumerate(dsts):
        if i and i % 4 == 0:
            a(f's_add_u32 s{sbase}, s{sbase}, 4096')
        a(f'buffer_load_dwordx4 {d}, v{vaddr}, {WSRD}, s{sbase} offen offset:{(i%4)*1024} {flags}')
        if budget is not None:
            budget[0] += 1
            if budget[0] >= 56:
                a('s_waitcnt vmcnt(28)'); budget[0] = 28

class Gaps:
    def __init__(self, n):
        self.ds = [[] for _ in range(n)]; self.va = [[] for _ in range(n)]; self.pre = [[] for _ in range(n)]
        self.n = n
    def put(self, kind, g, text, excl=False):
        while g < self.n - 1:
            if excl:
                if not self.ds[g] and not self.va[g]: break
            else:
                lst = self.ds[g] if kind == 'ds' else self.va[g]
                other = self.va[g] if kind == 'ds' else self.ds[g]
                if not lst and not (other and other[-1][1]): break
            g += 1
        (self.ds if kind == 'ds' else self.va)[g].append((text, excl))
        return g
    def force(self, kind, g, text):
        (self.ds if kind == 'ds' else self.va)[min(g, self.n-1)].append((text, False))

def emit_stream(a, mf, gp, lq, pre=None):
    for i, (m, tags) in enumerate(mf):
        for tg in tags:
            w = lq.wait(tg)
            if w: a(w)
        a(m)
        for lst in (gp.ds[i], gp.va[i]):
            for x, _ in lst:
                t = x(lq) if callable(x) else x
                if t: a(t)

def dsop(text, tag=None):
    def f(lq):
        lq.issue(tag); return text
    return f
def dswait(tag, then=''):
    def f(lq):
        return lq.wait(tag) + '\n' + then
    return f

SV = dict(l8=0, pa=1, idx=2, k1=3, mf=12, acc=40, w=64)
def tile_of(w, u):
    if u < 5: return (u, w)
    order = {(0, 5): (5, 0), (1, 5): (5, 1), (2, 5): (5, 2), (2, 6): (5, 3), (0, 6): (6, 0), (1, 6): (6, 1), (0, 7): (6, 2), (1, 7): (6, 3)}
    return order[(w, u)]
NUNIT = [8, 8, 7, 5]
F = dict(l16=4, px=5, pm=6, mk0=7, mk1=8, mk2=9, wz=10, xf=88, tf=200, sa=228, t=240)

def score_setup(a, stamps, cfg):
    V = SV; LN = 44
    a(f'v_mov_b32 v{LN}, v1')
    team_register(a)
    common_addrs(a, V, LN)
    img_addr(a, V['k1'], LN+1, LN)
    g, cc, par, ib, t = LN+1, LN+2, LN+3, LN+4, LN+5
    a(f"""
    v_lshlrev_b32 v{F['l16']}, 4, v{LN}
    v_lshrrev_b32 v{g}, 4, v{LN}
    v_bfe_u32 v{cc}, v{LN}, 2, 2
    v_bfe_u32 v{par}, v{LN}, 1, 1
    v_and_b32 v{ib}, 1, v{LN}
    v_and_b32 v{t}, 15, v{LN}
    v_lshlrev_b32 v{F['px']}, 4, v{t}
    v_lshrrev_b32 v{t}, 1, v{g}
    v_lshl_add_u32 v{F['px']}, v{t}, 8, v{F['px']}
    v_and_b32 v{t}, 1, v{g}
    v_lshl_add_u32 v{F['px']}, v{t}, 3, v{F['px']}
    s_and_b32 s{S_T0}, s{S_ROLE}, 1
    s_lshl_b32 s{S_T0}, s{S_T0}, 4
    s_lshr_b32 s{S_T1}, s{S_ROLE}, 2
    s_lshl_b32 s{S_T1}, s{S_T1}, 9
    s_add_u32 s{S_T0}, s{S_T0}, s{S_T1}
    s_and_b32 s{S_T1}, s{S_ROLE}, 2
    s_lshl_b32 s{S_T1}, s{S_T1}, 1
    s_add_u32 s{S_T0}, s{S_T0}, s{S_T1}
    s_add_u32 s{S_T0}, s{S_T0}, 8192
    v_and_b32 v{F['pm']}, 0xffffffef, v{V['l8']}
    v_add_u32 v{F['pm']}, s{S_T0}, v{F['pm']}
    s_lshl_b32 s{S_T0}, s{S_ROLE}, 9
    v_add_u32 v{F['px']}, s{S_T0}, v{F['px']}
    v_lshlrev_b32 v{t}, 4, v{ib}
    v_mov_b32 v{F['mk2']}, 0xffff
    v_lshlrev_b32 v{F['mk2']}, v{t}, v{F['mk2']}
    v_cmp_eq_u32 vcc, v{cc}, v{g}
    v_mov_b32 v{t}, 0
    v_cndmask_b32 v{F['mk2']}, v{t}, v{F['mk2']}, vcc
    v_cmp_eq_u32 vcc, 0, v{par}
    v_mov_b32 v{t+1}, 0xff800000
    v_cndmask_b32 v{F['mk0']}, v{t}, v{F['mk2']}, vcc
    v_cndmask_b32 v{F['mk1']}, v{F['mk2']}, v{t}, vcc
    v_cndmask_b32 v{F['wz']}, v{t+1}, v{t}, vcc
    s_mul_i32 s{S_T1}, s{S_ROLE}, {28*14336}
    s_add_u32 s{S_T1}, s{S_T1}, {L.WT}
    """)
    done = a.newlabel('L_sw')
    fz = cfg['fused']
    if fz:
        a(f"v_min_u32 v{LN+8}, 27, v{LN}\nv_lshlrev_b32 v{LN+8}, 3, v{LN+8}\ns_mul_i32 s{S_T0}, s{S_ROLE}, {14*32}\nv_add_u32 v{LN+8}, s{S_T0}, v{LN+8}")
        wait_flags(a, LN+8, 1, LN+10)
    for w in range(4):
        nx = a.newlabel('L_swn')
        if w < 3: a(f's_cmp_lg_u32 s{S_WAVE}, {w}\ns_cbranch_scc1 {nx}')
        tiles = []
        for u in range(NUNIT[w]):
            b, ga = tile_of(w, u)
            tiles.append(((4*b+ga)*14336, [wreg_half(u*7 + k//2, V['w'], k % 2) for k in range(14)]))
        if fz:
            load_tiles(a, tiles, F['l16'], S_T1, 1, cfg['wfl'], [0])
            wait_flags(a, LN+8, 7, LN+10)
            load_tiles(a, tiles, F['l16'], S_T1, 2, cfg['wfl'], [0])
        else:
            load_tiles(a, tiles, F['l16'], S_T1, None, cfg['wfl'], [0], cfg['scap'])
        if w < 3: a(f's_branch {done}\n{nx}:')
    a(f"""
{done}:
    {team_mode_load(V['mf'], V['mf']+1) if not fz else ''}
    s_mov_b32 s{S_STEP}, 0
    s_mov_b32 s{S_MOFF}, {L.MB_M}
    s_mov_b32 s{S_POFF}, {L.MB_P}
    s_mov_b32 s{S_GOFF}, {L.XN}
    s_lshl_b32 s{S_STMP}, s{S_ROLE}, 2
    s_add_u32 s{S_STMP}, s{S_STMP}, s{S_WAVE}
    s_lshl_b32 s{S_STMP}, s{S_STMP}, 12
    s_add_u32 s{S_STMP}, s{S_STMP}, {L.STAMP}
    """)
    if fz:
        wait_ln(a, LN, 12)
    else:
        nf = a.newlabel('L_nx0')
        a(f's_cmp_lg_u32 s{S_WAVE}, 3\ns_cbranch_scc1 {nf}\ns_waitcnt vmcnt(30)\ns_mov_b32 s{S_T0}, s{S_GOFF}')
        load_1k_run(a, [vr(F['xf'] + 4*k, 4) for k in range(28)], F['l16'], S_T0, cfg['wfl'])
        a.label(nf)
    team_mode(a, V['mf'], V['mf']+1, primed=not fz)

def step_advance(a, gstride, xstride=114688):
    a(f"""
    s_add_u32 s{S_STEP}, s{S_STEP}, 1
    s_add_u32 s{S_MOFF}, s{S_MOFF}, 8192
    s_add_u32 s{S_POFF}, s{S_POFF}, 16384
    s_add_u32 s{S_GOFF}, s{S_GOFF}, {gstride}
    s_add_u32 s{S_XOFF}, s{S_XOFF}, {xstride}
    s_add_u32 s{S_STMP}, s{S_STMP}, 64
    """)

def rowred(a, op, x):
    for m in ('row_ror:8', 'row_ror:4', 'row_ror:2', 'row_ror:1'):
        for r in (x, x+1):
            a(f'{op}_dpp v{r}, v{r}, v{r} {m} row_mask:0xf bank_mask:0xf')

def score_wave(a, w, pf, stamps, cfg):
    V = SV; idx = V['idx']; mf = V['mf']
    top = a.newlabel(f'L_sc{w}_top'); first = a.newlabel(f'L_sc{w}_first')
    nunit = NUNIT[w]
    accof = lambda u: V['acc'] + 4*(u % 6)
    ok = {0: (0, 9, 2), 1: (2,), 2: (0, 9, 1, 2), 3: (4,) if cfg['fin1'] else (7, 8, 4)}[w]
    ST = (lambda k: f's_memtime s[{40+2*k}:{41+2*k}]' if k in ok else '') if stamps else (lambda k: '')
    def stamp(a, stamps, k):
        a(ST(k))
    xf, tf, sa, T = F['xf'], F['tf'], F['sa'], F['t']
    FA, FV = 8, 9
    HA = 11
    HT = ([5, 6, 7, 10] if w < 3 else [T+4, T+5, T+6, T+7])[:cfg['hdepth']]
    def load_x():
        a(f's_mov_b32 s{S_T0}, s{S_GOFF}')
        load_1k_run(a, [vr(xf + 4*k, 4) for k in range(28)], F['l16'], S_T0, cfg['wfl'])
    XW = cfg['xw']
    def dma_x(a=a, rng=None, ahead=1):
        lo, hi = rng or XW[w]
        if hi <= lo: return
        a(f"""
        s_and_b32 s{S_T0}, s{S_STEP}, 1
        s_xor_b32 s{S_T0}, s{S_T0}, {ahead & 1}
        s_mul_i32 s{S_T0}, s{S_T0}, 28672
        s_add_u32 s{S_T0}, s{S_T0}, {LDS_X + lo*1024}
        s_add_u32 s{S_T1}, s{S_GOFF}, {ahead*28672 + lo*1024 - w*1792}
        """)
        for k in range(hi - lo):
            if k % 4 == 0:
                if k: a(f's_add_u32 s{S_T0}, s{S_T0}, 4096\ns_add_u32 s{S_T1}, s{S_T1}, 4096')
                a(f's_mov_b32 m0, s{S_T0}')
            a(f"buffer_load_dwordx4 v{V['pa']}, {WSRD}, s{S_T1} offen offset:{(k%4)*1024} {cfg['wfl']} lds")
    def read_x():
        a(f"""
        s_and_b32 s{S_T0}, s{S_STEP}, 1
        s_mul_i32 s{S_T0}, s{S_T0}, 28672
        v_add_u32 v{T}, s{S_T0}, v{F['l16']}
        """)
        for k in range(28): a(f'ds_read_b128 v[{xf+4*k}:{xf+4*k+3}], v{T} offset:{LDS_X + k*1024}')
    def zero_acc():
        for u in range(2 if cfg['m2'] else min(6, nunit)):
            a(f'v_mov_b64 v[{accof(u)}:{accof(u)+1}], 0\nv_mov_b64 v[{accof(u)+2}:{accof(u)+3}], 0')
        if w == 3:
            for k in range(4): a(f'v_mov_b64 v[{sa+2*k}:{sa+2*k+1}], 0')
            a(f"v_mov_b32 v{sa+8}, v{F['wz']}\nv_mov_b32 v{sa+9}, v{F['wz']}\nv_mov_b64 v[{sa+10}:{sa+11}], 0")
    a(f"v_lshrrev_b32 v{HA}, 1, v{V['l8']}\nv_min_u32 v{HA}, {(27 if cfg['cert'] else 55)*4}, v{HA}\ns_and_b32 s{S_T0}, s{S_ROLE}, 3\ns_lshl_b32 s{S_T0}, s{S_T0}, 8\ns_add_u32 s{S_T0}, s{S_T0}, 7168\nv_add_u32 v{HA}, s{S_T0}, v{HA}")
    if cfg['h64']:
        a(f"""
        v_lshrrev_b32 v{HA}, 3, v{V['l8']}
        v_min_u32 v{HA}, 55, v{HA}
        v_and_b32 v{mf}, 3, v{HA}
        v_lshrrev_b32 v{HA}, 2, v{HA}
        v_lshlrev_b32 v{HA}, 6, v{HA}
        v_lshl_add_u32 v{HA}, v{mf}, 2, v{HA}
        v_add_u32 v{HA}, 7168, v{HA}
        """)
    if w == 3:
        if cfg['fused']: load_x()
        a(f'v_and_b32 v{T+12}, {15*8}, v0\nv_lshlrev_b32 v{T+12}, 3, v{T+12}\nv_add_u32 v{T+12}, 6144, v{T+12}')
        if stamps: a('s_mov_b32 s40, 0\ns_mov_b32 s42, 0\ns_mov_b32 s44, 0')
        a(f's_mov_b32 s{S_EOFF}, 0\ns_lshl_b32 s{S_T0}, s{S_ROLE}, 2\ns_add_u32 s{S_T0}, s{S_T0}, 12288\nv_lshlrev_b32 v{T+14}, 4, v0\nv_add_u32 v{T+14}, s{S_T0}, v{T+14}\nv_mov_b32 v{T+15}, 0')
    else:
        a(f"v_add_u32 v{FA}, {LDS_FL + 4*w}, v{F['l16']}\nv_mov_b32 v{FV}, 0")
        for k in range(5): a(f'ds_write_b32 v{FA}, v{FV} offset:{k*1024}')
        a(f'v_and_b32 v4, {31*8}, v0\nv_lshlrev_b32 v4, 3, v4\nv_add_u32 v4, {w*2048}, v4')
    if w < 3 and not cfg['xin']: dma_x(rng=[(0, 9), (9, 18), (18, 28)][w])
    if cfg['prio'][w]: a(f"s_setprio {cfg['prio'][w]}")
    zero_acc()
    if cfg.get('wgd'): a('s_memrealtime s[88:89]\ns_memrealtime s[96:97]')
    a(f's_branch {first}')
    if cfg['al'] is not None:
        a.raw('    .p2align 6')
        for _ in range(cfg['al'][w]): a.raw('    s_nop 0')
    a.label(top)
    zero_acc()
    stamp(a, stamps, 0)
    if cfg['cert']:
        got = a.newlabel('L_got')
        a(f'v_add_u32 v{FV}, 1, v{FV}' if w < 3 else f's_add_u32 s{S_EOFF}, s{S_EOFF}, 1')
        a(f's_mov_b32 s{S_SAFE}, 0')
        if w == 0:
            ND = cfg['cert']; regs = HT[:ND]
            lp = a.newlabel('L_ct'); dn = a.newlabel('L_ctd')
            def rnd(r):
                a(f'buffer_load_dword v{r}, v{HA}, {WSRD}, s{S_MOFF} offen sc1\ns_mov_b32 m0, {LDS_M}')
                for k in range(7):
                    if k == 4: a(f's_mov_b32 m0, {LDS_M + 4096}')
                    a(f"buffer_load_dwordx4 v{V['pa']}, {WSRD}, s{S_MOFF if k < 4 else S_T0} offen offset:{(k%4)*1024} sc1 lds")
            a(f's_add_u32 s{S_T0}, s{S_MOFF}, 4096\ns_mov_b32 s{S_SPIN}, 0')
            a(ST(9))
            for k in range(ND-1): rnd(regs[k])
            a.label(lp)
            for k in range(ND):
                rnd(regs[(k+ND-1) % ND])
                a(f"""
                s_add_u32 s{S_SPIN}, s{S_SPIN}, 1
                s_waitcnt vmcnt({8*ND-1})
                v_cmp_eq_u32 vcc, -1, v{regs[k]}
                s_cbranch_vccz {dn}
                """)
            a(f's_cmp_lt_u32 s{S_SPIN}, s{S_LIM}\ns_cbranch_scc1 {lp}\n{dn}:\ns_waitcnt vmcnt({8*(ND-1)}) lgkmcnt(0)')
        else:
            a('s_waitcnt vmcnt(0) lgkmcnt(0)')
        a(f's_barrier\n{got}:')
        def coldf():
            a.label(first)
            a(f'v_add_u32 v{FV}, 1, v{FV}' if w < 3 else f's_add_u32 s{S_EOFF}, s{S_EOFF}, 1')
            a(f's_mov_b32 s{S_SAFE}, 1')
            poll_m(a, V)
            a(f's_branch {got}')
        a.cold.append(coldf)
    else:
        if cfg['msamp'] == 2: a(f'v_mov_b32 v{mf if w < 3 else T+13}, 0')
        if cfg['mdma'] == 2: a(f's_mov_b32 m0, {LDS_M}\ns_add_u32 s{S_T0}, s{S_MOFF}, 4096')
        elif cfg['split']: a(f's_mov_b32 m0, {LDS_M + w*1024}\ns_sub_u32 s{S_T0}, s{S_MOFF}, {w*768}\ns_add_u32 s{S_T1}, s{S_T0}, 4096')
        elif cfg['mdma']: a(f's_mov_b32 m0, {LDS_M + w*2048}\ns_add_u32 s{S_T0}, s{S_MOFF}, {w*2048 - w*1792}')
        if not cfg['cutrig'] or w == 0: wait_hint(a, HA, S_MOFF, HT, delay=cfg['mdelay'], inner=cfg['hinner'])
        if cfg['cutrig'] and cfg['mdma'] != 2: a('s_barrier')
    if cfg['cert']: pass
    elif cfg['mdma']:
        got = a.newlabel('L_got')
        a(ST(9))
        if cfg['split']:
            a(f"buffer_load_dwordx4 v{V['pa']}, {WSRD}, s{S_T0} offen sc1 lds")
            a(f'v_add_u32 v{FV}, 1, v{FV}' if w < 3 else f's_add_u32 s{S_EOFF}, s{S_EOFF}, 1')
            a(f's_mov_b32 s{S_SAFE}, 0\ns_mov_b32 s{S_SPIN}, 1\ns_mov_b32 m0, {LDS_M + 4096 + w*1024}')
            if w < 3:
                a(f"s_nop {cfg['split']}\nbuffer_load_dwordx4 v{V['pa']}, {WSRD}, s{S_T1} offen sc1 lds")
            a(f's_waitcnt vmcnt({1 if w < 3 else 0}) lgkmcnt(0)\ns_barrier\n{got}:')
        else:
            nk = 2 if w < 3 else 1
            SA_ = (4 if w < 3 else T+12)
            def rnd(r):
                if cfg['msamp'] == 2:
                    a(f"s_mov_b64 exec, {0x55555555 if w < 3 else 0x5555}\nbuffer_load_dword v{r}, v{SA_}, {WSRD}, s{S_MOFF} offen sc1\ns_mov_b64 exec, -1")
                elif cfg['msamp']: a(f"buffer_load_dword v{r}, v{SA_}, {WSRD}, s{S_MOFF} offen sc1")
                for k in range(nk): a(f"buffer_load_dwordx4 v{V['pa']}, {WSRD}, s{S_T0} offen offset:{k*1024} sc1 lds")
            r0, r1 = (mf, HT[1]) if w < 3 else (T+13, T+15)
            two = cfg['m2d']
            rnd(r0)
            a(f'v_add_u32 v{FV}, 1, v{FV}' if w < 3 else f's_add_u32 s{S_EOFF}, s{S_EOFF}, 1')
            a(f's_mov_b32 s{S_SAFE}, 0\ns_mov_b32 s{S_SPIN}, 1')
            if two:
                gap = two
                while gap > 0:
                    a(f's_nop {min(gap, 16) - 1}'); gap -= 16
                rnd(r1)
            ex = (nk+1) if two else 0
            bad = a.newlabel('L_mbad'); okl = a.newlabel('L_mok')
            a(f"""
            {f's_waitcnt vmcnt({nk + ex})' if cfg['msamp'] else ''}
            {f'v_cmp_eq_u32 vcc, -1, v{r0}' if cfg['msamp'] else ''}
            {f's_cbranch_vccnz {bad}' if cfg['msamp'] else ''}
            s_waitcnt vmcnt({ex}) lgkmcnt(0)
{okl}:
            s_barrier
{got}:
            """)
            def coldb():
                lp = a.newlabel('L_mlp')
                a.label(bad)
                if two:
                    a(f's_mov_b32 s{S_SPIN}, 2\ns_waitcnt vmcnt(0) lgkmcnt(0)\nv_cmp_eq_u32 vcc, -1, v{r1}\ns_cbranch_vccz {okl}')
                a.label(lp)
                rnd(r0)
                a(f"""
                s_add_u32 s{S_SPIN}, s{S_SPIN}, 1
                s_waitcnt vmcnt(0) lgkmcnt(0)
                v_cmp_eq_u32 vcc, -1, v{r0}
                s_cbranch_vccz {okl}
                s_cmp_lt_u32 s{S_SPIN}, s{S_LIM}
                s_cbranch_scc1 {lp}
                s_mov_b32 s{S_LIM}, 1
                s_branch {okl}
                """)
            a.cold.append(coldb)
        def coldf():
            a.label(first)
            a(f'v_add_u32 v{FV}, 1, v{FV}' if w < 3 else f's_add_u32 s{S_EOFF}, s{S_EOFF}, 1')
            a(f's_mov_b32 s{S_SAFE}, 1')
            poll_m(a, V)
            a(f's_branch {got}')
        a.cold.append(coldf)
    else:
        a.label(first)
        a(f'v_add_u32 v{FV}, 1, v{FV}' if w < 3 else f's_add_u32 s{S_EOFF}, s{S_EOFF}, 1')
        a(ST(9))
        if cfg['m2']: poll_m2(a, V, cfg['m2'], mf)
        else: poll_m(a, V)
    stamp(a, stamps, 1)
    if stamps and w < 3: a(f's_mov_b32 s{40+2*7}, s{S_SPIN}')
    lq = Q('lgkmcnt', 15)
    mrd = [dsop(f"ds_read_b64_tr_b16 v[{mf+4*b+2*hf}:{mf+4*b+2*hf+1}], v{V['l8']} offset:{LDS_M+b*1024+hf*512}", ('mf', b))
           for b in range(7) for hf in range(2)]
    if cfg['split'] and cfg['sg'] < 0:
        for x in mrd[:cfg['spre']]: a(x(lq))
        a('s_waitcnt vmcnt(0)\ns_barrier')
    else:
        for x in mrd[:cfg['mpre']]: a(x(lq))
    order = [(u, b) for b in range(7) for u in range(2)] + [(u, b) for u in range(2, nunit) for b in range(7)]
    ms = [(SM(accof(u), mf+4*b, wreg(u*7 + b, V['w']), idx), [('mf', b)] if u == 0 else []) for u, b in order]
    last = {u: i for i, (u, b) in enumerate(order)}
    def smfma(b):
        t4 = tf + 4*b
        return [(f"v_mfma_f32_16x16x32_bf16 v[{sa+8}:{sa+11}], v[{t4}:{t4+3}], v[{mf+4*b}:{mf+4*b+3}], " + f'v[{sa+8}:{sa+11}]', [('tf', b)]),
                (SM(sa, t4, vr(xf + 8*b, 8), idx), []),
                (SM(sa+4, t4, vr(xf + 56 + 8*b, 8), idx), [])]
    def tread(b, hf):
        return dsop(f"ds_read_b64_tr_b16 v[{tf+4*b+2*hf}:{tf+4*b+2*hf+1}], v{V['l8']} offset:{LDS_T+b*1024+hf*512}", ('tf', b))
    phases = [(0, 1, 2), (3, 4)]
    starts = []
    if w == 3:
        for ph in phases:
            starts.append(len(ms))
            for b in ph: ms += smfma(b)
    n = len(ms)
    gp = Gaps(n)
    npre = cfg['spre'] if cfg['split'] and cfg['sg'] < 0 else cfg['mpre']
    for k, x in enumerate(mrd[npre:]):
        if cfg['split'] and cfg['sg'] >= 0 and k + npre >= 8:
            if k + npre == 8: gp.force('ds', cfg['sg'], 's_waitcnt vmcnt(0)\ns_barrier')
            gp.force('ds', cfg['sg'] + (k + npre - 8)*2//3, x)
        else: gp.put('ds', k, x)
    flag_after = {2, 4} | ({5} if w < 2 else {6})
    def post(u):
        A = accof(u); b, ga = tile_of(w, u)
        va = [f'v_add_f32 v{A}, v{A}, v{A+2}', f'v_add_f32 v{A+1}, v{A+1}, v{A+3}', f'v_cvt_pk_bf16_f32 v{A}, v{A}, v{A+1}']
        ds = [dsop(f"ds_write_b32 v{V['k1']}, v{A} offset:{LDS_T+b*1024+ga*128}", ('k', u))]
        if w < 3 and u in flag_after:
            ds.append(dsop(f'ds_write_b32 v{FA}, v{FV} offset:{sorted(flag_after).index(u)*1024}'))
        return va, ds
    g = 0
    done_at = {}
    for u in range(nunit - (0 if w == 3 else 1)):
        va, ds = post(u)
        g = max(g, last[u] + 3 - (len(va) - 3))
        for x in va: g = gp.put('va', g, x) + 1
        for x in ds: g = gp.put('ds', g, x, excl=True) + 1
        done_at[u] = g
    def zero_in_gaps(u, g):
        A = accof(u)
        for k in range(2):
            gg = g
            while gg < 7*u - 2 and (gp.va[gg] or (gp.ds[gg] and gp.ds[gg][-1][1])): gg += 1
            if gg >= 7*u - 2: gg = max(g, 7*u - 4 + k)
            gp.force('va', gg, f'v_mov_b64 v[{A+2*k}:{A+2*k+1}], 0')
    if cfg['m2']:
        gp.force('ds', cfg['m2w'], 's_waitcnt vmcnt(0)')
        for u in range(2, min(6, nunit)): zero_in_gaps(u, cfg['m2w'])
    for u in range(6, nunit): zero_in_gaps(u, done_at[u-6] + 1)
    if w == 3:
        for pi, ph in enumerate(phases):
            flagrd = f"ds_read_b128 v[{T}:{T+3}], v{F['l16']} offset:{LDS_FL + pi*1024}"
            lead = cfg['lead'][pi]
            g = max(starts[pi] - lead, done_at[max(ph)] if max(ph) < 5 else 0)
            g = min(g, starts[pi]-1)
            if cfg['pnop'][pi]: gp.force('ds', g, f"s_nop {cfg['pnop'][pi]-1}")
            gp.force('ds', g, dsop(flagrd, ('fl', pi)))
            ops = [tread(b, hf) for b in ph for hf in range(2)]
            for k, x in enumerate(ops):
                gp.force('ds', min(g + (k+1)//2, starts[pi]-1), x)
            FM = T+11
            def chk(lq, pi=pi):
                return lq.wait(('fl', pi)) + (f'\nv_min3_u32 v{FM}, v{T}, v{T+1}, v{T+2}' if pi == 0 else
                                              f'\nv_min3_u32 v{T}, v{T}, v{T+1}, v{T+2}\nv_min_u32 v{FM}, v{FM}, v{T}')
            gp.force('va', starts[pi], chk)
    if cfg['xin'] and XW[w][1] > XW[w][0]:
        sub = Asm(); dma_x(sub)
        grp = []; cur = []
        for _, x in sub.items:
            cur.append(x.text)
            if x.text.startswith('buffer'): grp.append('\n'.join(cur)); cur = []
        g = cfg['xin']
        for x in grp: g = gp.put('ds', g, x) + cfg['xstep']
    if w == 0 and cfg['phint'] < 0:
        gp.force('ds', n - 1 + cfg['phint'], f"""s_mov_b64 exec, 15
            buffer_store_dword v{FV}, v4, {WSRD}, s{S_POFF} offen {pf}
            s_mov_b64 exec, -1""")
    emit_stream(a, ms, gp, lq)
    hint = f"""s_mov_b64 exec, 15
        buffer_store_dword v{T+15}, v{T+14}, {WSRD}, s{S_POFF} offen {pf}
        s_mov_b64 exec, -1"""
    if w < 3:
        va, ds = post(nunit-1)
        A_ = accof(nunit-1)
        va = [f'v_pk_add_f32 v[{A_}:{A_+1}], v[{A_}:{A_+1}], v[{A_+2}:{A_+3}]', va[-1]]
        for x in va: a(x)
        for x in ds: a(x(lq))
        if cfg['b3s']: a(f'ds_write_b32 v{FA}, v{FV} offset:3072')
        else:
            if w == 2: dma_x(rng=cfg['xa'], ahead=2)
            a(lq.drain())
        a('s_barrier')
        if w == 2: dma_x(rng=cfg['xb'], ahead=2)
        stamp(a, stamps, 2)
        if cfg['mdma']:
            again = a.newlabel('L_again')
            a(f"""
            {'s_waitcnt vmcnt(0)' if cfg['xin'] else ''}
            s_barrier
            v_mov_b32 v{mf}, {LDS_VD}
            ds_read_b32 v{mf}, v{mf}
            s_waitcnt lgkmcnt(0)
            v_cmp_eq_u32 vcc, v{mf}, v{FV}
            s_cbranch_vccnz {again}
            """)
            def colda():
                a.label(again)
                zero_acc()
                a(f's_branch {first}')
            a.cold.append(colda)
        elif cfg['quiet']: a(f"s_sleep {cfg['quiet']}")
    else:
        s = T
        mx = T+6; z = T+8; EA = tf; B1 = tf+4; B2 = tf+8; D1 = tf+12; D2 = tf+16; rz = T+10
        a(f"""
        v_mov_b64 v[{B1+2}:{B1+3}], 0
        v_mov_b64 v[{B2}:{B2+1}], 0
        v_mov_b32 v{B2+3}, 0
        v_mov_b32 v{EA+3}, 0
        """)
        for _ in range(cfg['b5nop']): a('s_nop 3')
        q = Q('lgkmcnt', 15)
        a(f"ds_read_b128 v[{T}:{T+3}], v{F['l16']} offset:{LDS_FL + 2048}"); q.issue('fl')
        for hf in range(2): a(tread(5, hf)(q))
        stamp(a, stamps, 2)
        a('s_barrier')
        stamp(a, stamps, 3)
        PX = lambda k: a('s_memtime s[52:53]') if stamps and cfg['px'] == k else None
        PX(0)
        if cfg['b3s']:
            for _ in range(cfg['b3s'] - 1): a('s_nop 0')
            a(f"ds_read_b64 v[{T+4}:{T+5}], v{F['l16']} offset:{LDS_FL + 3072}"); q.issue('fl3')
        for hf in range(2): a(tread(6, hf)(q))
        PX(1)
        if cfg['phint'] == 0: a(hint)
        PX(2)
        fl5 = [f'v_min3_u32 v{T}, v{T}, v{T+1}, v{T+2}', f'v_min_u32 v{FM}, v{FM}, v{T}', f'v_subrev_u32 v{FM}, s{S_EOFF}, v{FM}']
        if cfg['b3s']: fl5[2:2] = ['', f'v_min3_u32 v{FM}, v{FM}, v{T+4}, v{T+5}']
        for b in (5, 6):
            for m, tags in smfma(b):
                for tg in tags: a(q.wait(tg))
                if b == 6 and tags: PX(4)
                a(m)
                if fl5: a(fl5.pop(0))
            if b == 5: PX(3)
        a(ST(7))
        if cfg['phint'] == 1: a(hint)
        e = sa
        redo = a.newlabel('L_smr'); slowmx = a.newlabel('L_sms'); go = a.newlabel('L_smg')
        a(f"""
        s_mov_b32 s{S_T1}, {120 << 23}
        s_mov_b32 s{S_SPIN}, 0
        v_add_f32_dpp v{s+4}, v{sa+10}, v{sa+8} {QP}
        v_add_f32_dpp v{s+5}, v{sa+11}, v{sa+9} {QP}
        v_pk_add_f32 v[{s}:{s+1}], v[{sa}:{sa+1}], v[{sa+2}:{sa+3}]
        v_exp_f32 v{e+8}, v{s+4}
        v_exp_f32 v{e+9}, v{s+5}
        v_pk_add_f32 v[{s+2}:{s+3}], v[{sa+4}:{sa+5}], v[{sa+6}:{sa+7}]
        v_exp_f32 v{e}, v{s}
        v_exp_f32 v{e+1}, v{s+1}
        v_exp_f32 v{e+2}, v{s+2}
        v_exp_f32 v{e+3}, v{s+3}
{redo}:;nf
        v_pk_add_f32 v[{z}:{z+1}], v[{e}:{e+1}], v[{e+8}:{e+9}]
        v_cvt_pk_bf16_f32 v{EA+2}, v{e+8}, v{e+9}
        v_pk_add_f32 v[{z}:{z+1}], v[{z}:{z+1}], v[{e+2}:{e+3}]
        """)
        if cfg['phint'] == 2: a(hint)
        fill = [f'v_cvt_pk_bf16_f32 v{EA+k}, v{e+2*k}, v{e+2*k+1}' for k in range(2)]
        for m in ('row_ror:8', 'row_ror:4', 'row_ror:2', 'row_ror:1'):
            if fill: a(fill.pop(0))
            for r in (z, z+1):
                a(f'v_add_f32_dpp v{r}, v{r}, v{r} {m} row_mask:0xf bank_mask:0xf')
        LO, HI = (127-60) << 23, (127+60) << 23
        a(ST(8))
        a(f"""
        v_rcp_f32 v{mx}, v{z}
        v_rcp_f32 v{mx+1}, v{z+1}
        v_subrev_u32 v{z}, {LO}, v{z}
        v_cvt_pk_bf16_f32 v{rz}, v{mx}, v{mx+1}
        v_and_b32 v{B1}, v{rz}, v{F['mk0']}
        v_and_b32 v{B1+1}, v{rz}, v{F['mk1']}
        v_and_b32 v{B2+2}, v{rz}, v{F['mk2']}
        v_subrev_u32 v{z+1}, {LO}, v{z+1}
        v_mfma_f32_16x16x32_bf16 v[{D1}:{D1+3}], v[{EA}:{EA+3}], v[{B1}:{B1+3}], 0
        v_mfma_f32_16x16x32_bf16 v[{D2}:{D2+3}], v[{EA}:{EA+3}], v[{B2}:{B2+3}], 0
        v_max3_u32 v{z}, v{z}, v{z+1}, v{FM}
        v_cmp_lt_u32 vcc, s{S_T1}, v{z}
        s_cmp_eq_u64 vcc, 0
        s_cselect_b64 exec, -1, 0
        v_cvt_pk_bf16_f32 v{D1}, v{D1}, v{D1+1}
        v_cvt_pk_bf16_f32 v{D1+1}, v{D1+2}, v{D1+3}
        buffer_store_dwordx2 v[{D1}:{D1+1}], v{F['px']}, {WSRD}, s{S_POFF} offen {pf}
        v_cvt_pk_bf16_f32 v{D2}, v{D2}, v{D2+1}
        buffer_store_dword v{D2}, v{F['pm']}, {WSRD}, s{S_POFF} offen {pf}
        s_mov_b64 exec, -1
        s_cbranch_scc0 {slowmx}
        """)
        if cfg['b4s']: a(f"s_sleep {cfg['b4s']}")
        if cfg['mdma']: a('s_barrier')
        def coldmx():
            a(f'{slowmx}:' + ('\ns_add_u32 s40, s40, 1' if stamps else ''))
            loc = a.newlabel('L_loc'); sf = a.newlabel('L_safe')
            a(f's_cmp_eq_u32 s{S_SPIN}, 0\ns_cbranch_scc1 {loc}')
            if cfg['mdma']:
                a(f"""
                s_cmp_lg_u32 s{S_SAFE}, 0
                s_cbranch_scc1 {sf}
                {'s_add_u32 s86, s86, 1' if cfg.get('wgd') else ''}
                v_mov_b32 v{T}, {LDS_VD}
                v_mov_b32 v{T+1}, s{S_EOFF}
                ds_write_b32 v{T}, v{T+1}
                s_waitcnt lgkmcnt(0)
                s_barrier
                """)
                zero_acc()
                a(f's_branch {first}')
            a(f'{sf}:\ns_mov_b32 s{S_T1}, -1\ns_branch {redo}\n{loc}:\ns_mov_b32 s{S_SPIN}, 1\nv_mov_b32 v{FM}, 0')
            if cfg.get('wgd'): a('s_add_u32 s85, s85, 1')
            for k in range(4): a(f'v_mov_b64 v[{sa+2*k}:{sa+2*k+1}], 0')
            a(f"v_mov_b32 v{sa+8}, v{F['wz']}\nv_mov_b32 v{sa+9}, v{F['wz']}\nv_mov_b64 v[{sa+10}:{sa+11}], 0")
            q2 = Q('lgkmcnt', 15)
            rl = a.newlabel('L_rl'); rd = a.newlabel('L_rld')
            a(f's_mov_b32 s{S_T0}, 0\n{rl}:')
            a(f"ds_read_b128 v[{T}:{T+3}], v{F['l16']} offset:{LDS_FL + 3072}")
            for b in range(7):
                for hf in range(2): a(tread(b, hf)(q2))
            a('s_waitcnt lgkmcnt(0)')
            if cfg['b3s']:
                a(f"""
                v_min3_u32 v{T}, v{T}, v{T+1}, v{T+2}
                s_add_u32 s{S_T0}, s{S_T0}, 1
                v_cmp_gt_u32 vcc, s{S_EOFF}, v{T}
                s_cbranch_vccz {rd}
                s_cmp_lt_u32 s{S_T0}, 1000
                s_cbranch_scc1 {rl}
{rd}:
                """)
            for b in range(7):
                for m, tags in smfma(b): a(m)
            a(f"""
            v_mov_b64 v[{B1+2}:{B1+3}], 0
            v_mov_b64 v[{B2}:{B2+1}], 0
            v_mov_b32 v{B2+3}, 0
            v_mov_b32 v{EA+3}, 0
            v_add_f32_dpp v{s+4}, v{sa+10}, v{sa+8} {QP}
            v_add_f32_dpp v{s+5}, v{sa+11}, v{sa+9} {QP}
            v_pk_add_f32 v[{s}:{s+1}], v[{sa}:{sa+1}], v[{sa+2}:{sa+3}]
            v_pk_add_f32 v[{s+2}:{s+3}], v[{sa+4}:{sa+5}], v[{sa+6}:{sa+7}]
            v_max3_f32 v{mx}, v{s}, v{s+4}, v{s+2}
            v_max3_f32 v{mx+1}, v{s+1}, v{s+5}, v{s+3}
            """)
            rowred(a, 'v_max_f32', mx)
            for k in range(3): a(f'v_pk_add_f32 v[{s+2*k}:{s+2*k+1}], v[{s+2*k}:{s+2*k+1}], v[{mx}:{mx+1}] neg_lo:[0,1] neg_hi:[0,1]')
            for k in range(6): a(f'v_exp_f32 v{e+(k if k < 4 else k+4)}, v{s+k}')
            a(f's_nop 1\ns_branch {redo}')
        a.cold.append(coldmx)
        stamp(a, stamps, 4)
    if stamps: a('s_memtime s[50:51]\ns_memrealtime s[60:61]')
    stamp_flush(a, stamps, 11, mf)
    step_advance(a, 28672, 458752)
    a(f's_cmp_ge_u32 s{S_STEP}, 63\ns_cbranch_scc1 L_exit')
    if w == 3:
        if cfg['rxs']: a(f"s_sleep {cfg['rxs']}")
        read_x()
    elif not cfg['nox'] and not cfg['xin']:
        if cfg['xs']: a(f"s_sleep {cfg['xs']}")
        dma_x()
    if cfg['ssleep'][w]:
        a(f"s_sleep {cfg['ssleep'][w]}")
    a(f's_branch {top}')
    a.flush_cold()

S_YD = 33; S_SAFE = 36; S_CV = 37; S_CU = 38; S_MD = 39
CV = dict(ha=160, one=161, zero=162, cu=163, hw=164, hm=165, nw=172, nr=173, pmr=72, fw=73, fv=74, rw2=75, l8=0, pa=1, idx=2, l16=3, pr=4, mw=6, lw=7, rw=8, rr=5, mf=12, acc=40, itm=72, vx=88, uf=96, tw=128, w=176)

def comb_setup(a, stamps, cfg):
    V = CV; LN = 112
    a(f'v_mov_b32 v{LN}, v1')
    team_register(a)
    common_addrs(a, V, LN)
    img_addr(a, V['mw'], LN+1, LN)
    a(f"""
    s_sub_u32 s{S_ROLE}, s{S_ROLE}, 16
    s_lshl_b32 s{S_ROLE}, s{S_ROLE}, 1
    s_and_b32 s{S_T0}, s{S_WAVE}, 1
    s_add_u32 s{S_T1}, s{S_ROLE}, s{S_T0}
    s_lshr_b32 s{S_T0}, s{S_T1}, 2
    s_lshl_b32 s{S_T0}, s{S_T0}, 10
    s_and_b32 s{S_T1}, s{S_T1}, 3
    s_lshl_b32 s{S_T1}, s{S_T1}, 7
    s_add_u32 s{S_T0}, s{S_T0}, s{S_T1}
    s_add_u32 s{S_T0}, s{S_T0}, 8192
    v_add_u32 v{V['mw']}, s{S_T0}, v{V['mw']}
    v_lshlrev_b32 v{V['l16']}, 4, v{LN}
    s_mul_i32 s{S_T0}, s{S_WAVE}, 28672
    s_add_u32 s{S_T0}, s{S_T0}, {LDS_BW}
    v_add_u32 v{V['lw']}, s{S_T0}, v{V['l16']}
    s_lshl_b32 s{S_T0}, s{S_WAVE}, 10
    v_add_u32 v{V['rw']}, s{S_T0}, v{V['l16']}
    v_add_u32 v{V['pr']}, s{S_T0}, v{V['rw']}
    s_and_b32 s{S_T0}, s{S_WAVE}, 1
    s_lshl_b32 s{S_T0}, s{S_T0}, 3
    v_add_u32 v{V['rr']}, s{S_T0}, v{V['l16']}
    s_mul_i32 s{S_T1}, s{S_WAVE}, {4*28}
    s_add_u32 s{S_T1}, s{S_T1}, s{S_ROLE}
    s_add_u32 s{S_T1}, s{S_T1}, 448
    s_mul_i32 s{S_T1}, s{S_T1}, 14336
    s_add_u32 s{S_T1}, s{S_T1}, {L.WT}
    """)
    toff = lambda u: ((u >> 1)*28 + (u & 1))*14336
    fz = cfg['fused']
    tiles = [(toff(u), [wreg_half(u*7 + k//2, V['w'], k % 2) for k in range(14)]) for u in range(6)]
    ltiles = [(toff(u), [vr(12 + (u-6)*116 + 4*k, 4) if u == 6 else vr(120 + 4*k, 4) for k in range(14)]) for u in (6, 7)]
    if fz:
        a(f"""
        v_bfe_u32 v{LN+4}, v{LN}, 2, 2
        v_mul_u32_u24 v{LN+4}, {14*32}, v{LN+4}
        v_and_b32 v{LN+5}, 3, v{LN}
        v_lshl_add_u32 v{LN+4}, v{LN+5}, 3, v{LN+4}
        s_mul_i32 s{S_T0}, s{S_WAVE}, 56
        s_lshr_b32 s{S_SPIN}, s{S_ROLE}, 2
        s_add_u32 s{S_T0}, s{S_T0}, s{S_SPIN}
        s_add_u32 s{S_T0}, s{S_T0}, 7
        s_lshl_b32 s{S_T0}, s{S_T0}, 5
        v_add_u32 v{LN+4}, s{S_T0}, v{LN+4}
        """)
        wait_flags(a, LN+4, 1, 100)
        load_tiles(a, ltiles + tiles, V['l16'], S_T1, 1, cfg['wfl'], [0])
        wait_flags(a, LN+4, 7, 100)
        load_tiles(a, ltiles + tiles, V['l16'], S_T1, 2, cfg['wfl'], [0])
    else:
        load_tiles(a, ltiles + tiles, V['l16'], S_T1, None, cfg['wfl'], [0], cfg['ccap'])
    if not fz:
        a(team_mode_load(104, 105))
        a(f"v_mov_b32 v106, 0\ns_mov_b32 s{S_CU}, {L.CNT_U}\ns_mov_b32 s{S_CV}, {L.CNT_I}")
        a(f'buffer_load_dword v107, v106, {WSRD}, s{S_CU} offen sc1\nbuffer_load_dword v109, v106, {WSRD}, s{S_CV} offen sc1')
    a('s_waitcnt vmcnt(28)')
    for u in (6, 7):
        for k in range(14):
            a(f"ds_write_b128 v{V['lw']}, {ltiles[u-6][1][k]} offset:{(u-6)*14336+k*1024}")
    a('s_waitcnt lgkmcnt(0)')
    if fz: wait_ln(a, LN, 100)
    a(f"""
    s_mov_b32 s{S_STEP}, 0
    s_mov_b32 s{S_MOFF}, {L.MB_M}
    s_mov_b32 s{S_POFF}, {L.MB_P}
    s_lshl_b32 s{S_GOFF}, s{S_ROLE}, 14
    s_lshl_b32 s{S_T0}, s{S_WAVE}, 12
    s_add_u32 s{S_GOFF}, s{S_GOFF}, s{S_T0}
    s_add_u32 s{S_GOFF}, s{S_GOFF}, {L.U}
    s_lshl_b32 s{S_XOFF}, s{S_ROLE}, 12
    s_add_u32 s{S_XOFF}, s{S_XOFF}, {L.VM}
    s_lshr_b32 s{S_STMP}, s{S_ROLE}, 1
    s_add_u32 s{S_STMP}, s{S_STMP}, 16
    s_lshl_b32 s{S_STMP}, s{S_STMP}, 2
    s_add_u32 s{S_STMP}, s{S_STMP}, s{S_WAVE}
    s_lshl_b32 s{S_STMP}, s{S_STMP}, 12
    s_add_u32 s{S_STMP}, s{S_STMP}, {L.STAMP}
    s_waitcnt vmcnt(0)
    """)
    a(f"""
    v_mov_b32 v{V['one']}, 1
    v_mov_b32 v{V['zero']}, 0
    v_mov_b32 v{V['cu']}, 0
    v_and_b32 v{V['ha']}, {120 if cfg['cutrig'] else 24}, v{V['l8']}
    v_lshrrev_b32 v{V['ha']}, 1, v{V['ha']}
    s_lshl_b32 s{S_T0}, s{S_WAVE}, 4
    s_mul_i32 s{S_T0}, s{S_T0}, {0 if cfg['cutrig'] else 1}
    s_and_b32 s{S_T1}, s{S_ROLE}, 6
    s_lshl_b32 s{S_T1}, s{S_T1}, 6
    s_add_u32 s{S_T0}, s{S_T0}, s{S_T1}
    s_add_u32 s{S_T0}, s{S_T0}, 12288
    v_add_u32 v{V['ha']}, s{S_T0}, v{V['ha']}
    s_lshl_b32 s{S_T0}, s{S_ROLE}, {0 if cfg['cert'] else 1}
    s_add_u32 s{S_T0}, s{S_T0}, s{S_WAVE}
    s_lshl_b32 s{S_T0}, s{S_T0}, 2
    s_add_u32 s{S_T0}, s{S_T0}, {8192 + 7168}
    v_lshlrev_b32 v{V['hw']}, 5, v{V['l8']}
    v_add_u32 v{V['hw']}, s{S_T0}, v{V['hw']}
    s_add_u32 s{S_YD}, s{S_XOFF}, 0x8000000
    v_lshrrev_b32 v{V['hm']}, 1, v{V['l8']}
    v_min_u32 v{V['hm']}, {(27 if cfg['cert'] else 55)*4}, v{V['hm']}
    v_add_u32 v{V['hm']}, 7168, v{V['hm']}
    s_mov_b32 s56, 0
    """)
    if cfg['h64']:
        a(f"""
        v_lshrrev_b32 v{V['hm']}, 3, v{V['l8']}
        v_min_u32 v{V['hm']}, 55, v{V['hm']}
        v_and_b32 v100, 3, v{V['hm']}
        v_lshrrev_b32 v{V['hm']}, 2, v{V['hm']}
        v_lshlrev_b32 v{V['hm']}, 6, v{V['hm']}
        v_lshl_add_u32 v{V['hm']}, v100, 2, v{V['hm']}
        v_add_u32 v{V['hm']}, 7168, v{V['hm']}
        s_lshl_b32 s{S_T0}, s{S_ROLE}, 5
        s_lshl_b32 s{S_T1}, s{S_WAVE}, 2
        s_add_u32 s{S_T0}, s{S_T0}, s{S_T1}
        s_add_u32 s{S_T0}, s{S_T0}, {8192 + 7168}
        v_mov_b32 v{V['hw']}, s{S_T0}
        """)
    if cfg['mlin']:
        x, y = 100, 101
        a(f"""
        v_lshrrev_b32 v{y}, 3, v{V['l8']}
        v_bfe_u32 v{x}, v{y}, 1, 2
        v_mul_u32_u24 v{V['rr']}, 192, v{x}
        v_bfe_u32 v{x}, v{y}, 4, 2
        v_lshl_add_u32 v{V['rr']}, v{x}, 5, v{V['rr']}
        v_and_b32 v{x}, 1, v{y}
        v_lshl_add_u32 v{V['rr']}, v{x}, 4, v{V['rr']}
        v_bfe_u32 v{x}, v{y}, 3, 1
        v_lshl_add_u32 v{V['rr']}, v{x}, 3, v{V['rr']}
        v_lshrrev_b32 v{x}, 4, v{y}
        v_mul_u32_u24 v{V['rw2']}, 192, v{x}
        v_and_b32 v{x}, 15, v{y}
        v_lshl_add_u32 v{V['rw2']}, v{x}, 3, v{V['rw2']}
        s_mul_i32 s{S_T0}, s{S_WAVE}, 1536
        v_add_u32 v{V['rw2']}, s{S_T0}, v{V['rw2']}
        s_and_b32 s{S_T0}, s{S_WAVE}, 1
        s_mul_i32 s{S_T1}, s{S_T0}, 768
        v_add_u32 v{V['rr']}, s{S_T1}, v{V['rr']}
        s_add_u32 s{S_T1}, s{S_ROLE}, s{S_T0}
        s_lshr_b32 s{S_T0}, s{S_T1}, 2
        s_lshl_b32 s{S_T0}, s{S_T0}, 10
        s_and_b32 s{S_T1}, s{S_T1}, 3
        s_lshl_b32 s{S_T1}, s{S_T1}, 7
        s_add_u32 s{S_T0}, s{S_T0}, s{S_T1}
        s_add_u32 s{S_T0}, s{S_T0}, 8192
        v_and_b32 v{x}, 31, v{y}
        v_lshlrev_b32 v{V['mw']}, 2, v{x}
        v_lshrrev_b32 v{x}, 5, v{y}
        v_lshl_add_u32 v{V['mw']}, v{x}, 9, v{V['mw']}
        v_add_u32 v{V['mw']}, s{S_T0}, v{V['mw']}
        """)
    a(f"""
    v_lshrrev_b32 v{V['nw']}, 2, v{V['rw']}
    v_lshrrev_b32 v{V['nr']}, 1, v{V['l8']}
    s_lshl_b32 s{S_MD}, s{S_WAVE}, 11
    s_min_u32 s{S_MD}, s{S_MD}, 5120
    s_mov_b32 s{S_CU}, {L.CNT_U}
    """)
    for k in range(8): a(f"v_mov_b32 v{V['vx']+k}, 0")
    a(f"v_lshrrev_b32 v{V['pmr']}, 1, v{V['rw']}")
    a(f"s_lshl_b32 s{S_T0}, s{S_WAVE}, 2\ns_add_u32 s{S_T0}, s{S_T0}, {LDS_CF}\nv_add_u32 v{V['fw']}, s{S_T0}, v{V['l16']}\nv_mov_b32 v{V['fv']}, 0\nds_write_b32 v{V['fw']}, v{V['fv']}")
    team_mode(a, 104, 105, primed=not fz)
    if cfg['flags']:
        wait_cnt(a, S_CU, 28, 106, primed=not fz)
        a(f's_mov_b32 s{S_CV}, {L.CNT_I}')
        wait_cnt(a, S_CV, 98, 108, primed=not fz)
    for k in range(32): a(f"v_mov_b32 v{V['uf']+k}, 0")

def comb_wave(a, pf, stamps, cfg):
    V = CV; idx = V['idx']; mf = V['mf']; tw = V['tw']; uf = V['uf']; pa = V['pa']
    top = a.newlabel('L_cb_top'); nh0 = a.newlabel('L_nh')
    HT = [10, 11, 166, 167][:cfg['hdepth']]
    def store_vx(base, r):
        return [f"buffer_store_dwordx4 v[{r}:{r+3}], v{V['rw']}, {WSRD}, s{base} offen {cfg['xflags']}",
                f"s_add_u32 s{S_T1}, s{base}, 4096\nbuffer_store_dwordx4 v[{r+4}:{r+7}], v{V['rw']}, {WSRD}, s{S_T1} offen {cfg['xflags']}"]
    lq = Q('lgkmcnt', 15)
    def lread(lam, hf):
        return dsop(f"ds_read_b128 v[{tw+8*(lam%4)+4*hf}:{tw+8*(lam%4)+4*hf+3}], v{V['lw']} offset:{lam*2048+hf*1024}", ('lw', lam))
    def housekeeping_acc(a=a):
        for u in range(8):
            A = V['acc'] + 4*u
            a(f'v_mov_b64 v[{A}:{A+1}], 0\nv_mov_b64 v[{A+2}:{A+3}], 0')
    def housekeeping(a=a, acc=True):
        if acc: housekeeping_acc(a)
        for lam in range(4):
            for hf in range(2): a(lread(lam, hf)(lq))
    uload = lambda k: f"buffer_load_dwordx4 v[{uf+4*k}:{uf+4*k+3}], v{V['l16']}, {WSRD}, s{S_GOFF if k < 4 else S_EOFF} offen offset:{(k%4)*1024} {cfg['xflags']}"
    uorder = [] if cfg['nou'] else [4, 5, 6, 7, 0, 1, 2, 3]
    ue = uorder[:cfg['uearly']]; ul = uorder[cfg['uearly']:]
    housekeeping()
    t = mf
    slow = a.newlabel('L_cms'); back = a.newlabel('L_cmb'); redo = a.newlabel('L_cmr')
    pre = f"""s_add_u32 s{S_EOFF}, s{S_GOFF}, 16384
        s_lshl_b32 s{S_CU}, s{S_STEP}, 7
        s_add_u32 s{S_CU}, s{S_CU}, {L.CNT_U + 128}
        s_add_u32 s{S_T0}, s{S_MOFF}, s{S_MD}
        s_mov_b32 m0, s{S_MD}"""
    a(pre)
    if cfg.get('wgd'): a('s_memrealtime s[96:97]')
    a(f's_branch {top}')
    if cfg['al'] is not None:
        a.raw('    .p2align 6')
        for _ in range(cfg['al'][4]): a.raw('    s_nop 0')
    a(f'{nh0}:\ns_barrier')
    a.label(top)
    stamp(a, stamps, 0)
    if cfg['cdma']:
        a(f"""
        buffer_load_dwordx4 v{V['l16']}, {WSRD}, s{S_T0} offen sc1 lds
        buffer_load_dwordx4 v{V['l16']}, {WSRD}, s{S_T0} offen offset:1024 sc1 lds
        s_mov_b32 s{S_SAFE}, 0
        """)
        if ue: a('s_barrier')
        for k in ue: a(uload(k))
        a(f's_waitcnt vmcnt({len(ue)}) lgkmcnt(0)\ns_barrier\n{back}:')
        def coldr():
            a(f'{redo}:\ns_barrier\ns_mov_b32 s{S_SAFE}, 1\ns_add_u32 s{S_YD}, s{S_XOFF}, 0x8000000')
            if stamps: a(f's_add_u32 s{40+2*8}, s{40+2*8}, 1')
            if cfg.get('wgd'): a('s_add_u32 s84, s84, 1')
            housekeeping()
            poll_m(a, V)
            a(f's_branch {back}')
        a.cold.append(coldr)
    else:
        a(f"""
        buffer_load_dwordx4 v[{t}:{t+3}], v{pa}, {WSRD}, s{S_MOFF} offen sc1
        buffer_load_dwordx4 v[{t+4}:{t+7}], v{pa}, {WSRD}, s{S_MOFF} offen offset:768 sc1
        """)
        if ue: a('s_barrier')
        for k in ue: a(uload(k))
        a(f"""
        s_waitcnt vmcnt({len(ue)+1})
        ds_write_b128 v{pa}, v[{t}:{t+3}]
        v_max3_u32 v{t+8}, v{t}, v{t+1}, v{t+2}
        s_waitcnt vmcnt({len(ue)})
        ds_write_b128 v{pa}, v[{t+4}:{t+7}] offset:768
        v_max3_u32 v{t+8}, v{t+8}, v{t+3}, v{t+4}
        v_max3_u32 v{t+8}, v{t+8}, v{t+5}, v{t+6}
        v_max_u32 v{t+8}, v{t+8}, v{t+7}
        v_cmp_eq_u32 vcc, -1, v{t+8}
        s_cbranch_vccnz {slow}
        s_waitcnt lgkmcnt(0)
        s_barrier
{back}:
        """)
        def coldm():
            a.label(slow)
            if stamps: a(f's_add_u32 s{40+2*8}, s{40+2*8}, 1')
            poll_m(a, V)
            a(f's_branch {back}')
        a.cold.append(coldm)
    lq.drain()
    stamp(a, stamps, 1)
    mrd = [dsop(f"ds_read_b64_tr_b16 v[{mf+4*b+2*hf}:{mf+4*b+2*hf+1}], v{V['l8']} offset:{LDS_M+b*1024+hf*512}", ('mf', b))
           for b in range(7) for hf in range(2)]
    for x in mrd[:cfg['mpre']]: a(x(lq))
    ms = []; last = {}
    rorder = [(u, b) for b in range(7) for u in range(2)] + [(u, b) for u in range(2, 6) for b in range(7)]
    rb = 0
    for p in range(56):
        if p % 4 == 3:
            lam = p // 4; u = 6 + lam // 7; b = lam % 7
            ms.append((SM(V['acc']+4*u, mf+4*b, vr(tw+8*(lam % 4), 8), idx), [('mf', b), ('lw', lam)]))
        else:
            u, b = rorder[rb]; rb += 1
            ms.append((SM(V['acc']+4*u, mf+4*b, wreg(u*7+b, V['w']), idx), [('mf', b)]))
        last[u] = p
    gp = Gaps(56)
    for k, x in enumerate(mrd[cfg['mpre']:]): gp.put('ds', k, x)
    for lam in range(4, 14):
        g = 4*(lam-4) + 3
        g = gp.put('ds', g, lread(lam, 0)) + 1
        gp.put('ds', g, lread(lam, 1))
    g = 0
    for k in ul: g = gp.put('va', g, uload(k)) + cfg['ustep']
    if cfg['flags']:
        g = gp.put('va', g, f"buffer_load_dword v{V['cu']}, v{V['zero']}, {WSRD}, s{S_CU} offen sc1") + 1
    for x in store_vx(S_YD, V['vx']): g = gp.put('va', g, x) + cfg['ustep']
    assert g - cfg['ustep'] < min(last.values()) + 3
    for k in range(len(HT)-1 if cfg['psl'] is None else 0):
        gp.put('ds', 55 - cfg['hpre'] + 4*k, f"buffer_load_dword v{HT[k]}, v{V['ha']}, {WSRD}, s{S_POFF} offen sc1")
    def post(u):
        A = V['acc'] + 4*u; hl = u >> 1; ctl = u & 1
        return ([f'v_pk_add_f32 v[{A}:{A+1}], v[{A}:{A+1}], v[{A+2}:{A+3}]'] if cfg['cpk'] else [f'v_add_f32 v{A}, v{A}, v{A+2}', f'v_add_f32 v{A+1}, v{A+1}, v{A+3}']) + [
                f"v_cvt_pk_bf16_f32 v{V['vx']+4*ctl+hl}, v{A}, v{A+1}"]
    tail = []; gprev = 0
    for u in sorted(last, key=lambda u: last[u]):
        g = max(last[u] + 3, gprev)
        if g + 4 >= 56: tail += post(u); continue
        for x in post(u): g = gp.put('va', g, x) + 1
        gprev = g
        if u == 0: done0 = g
    if cfg['cdma']:
        A0 = V['acc']; N = 168
        g = gp.put('va', done0, f'v_add_f32 v9, v{A0}, v{A0+1}') + 1
        g = gp.put('ds', g, dsop(f"ds_write_b32 v{V['nw']}, v9 offset:{LDS_NAN}", 'nw')) + 4
        gp.force('ds', g, dswait('nw', 's_barrier'))
        g = gp.put('ds', g+1, dsop(f"ds_read2st64_b32 v[{N}:{N+1}], v{V['nr']} offset0:{LDS_NAN//256} offset1:{LDS_NAN//256+1}")) + 1
        g = gp.put('ds', g, dsop(f"ds_read2st64_b32 v[{N+2}:{N+3}], v{V['nr']} offset0:{LDS_NAN//256+2} offset1:{LDS_NAN//256+3}", 'nr')) + 4
        g = gp.put('va', g, dswait('nr', f'v_add_f32 v{N}, v{N}, v{N+2}')) + 1
        g = gp.put('va', g, f'v_add_f32 v{N+1}, v{N+1}, v{N+3}') + 1
        g = gp.put('va', g, f'v_cmp_u_f32 vcc, v{N}, v{N+1}')
        assert g < 54
    emit_stream(a, ms, gp, lq)
    if cfg['cdma']:
        nb = a.newlabel('L_cnb'); nx = a.newlabel('L_cnx')
        a(f's_cbranch_vccnz {nb};nf\n{nx}:;nf')
        a.cold.append(lambda: a(f'{nb}:\ns_nop 7\ns_cmp_eq_u32 s{S_SAFE}, 0\ns_cbranch_scc1 {redo}\ns_branch {nx}'))
    for x in tail: a(x)
    lastl = a.newlabel('L_cbl')
    a(f's_cmp_ge_u32 s{S_STEP}, 63\ns_cbranch_scc1 {lastl}')
    def coldl():
        a.label(lastl)
        for x in store_vx(S_XOFF, V['vx']): a(x)
        a('s_branch L_exit')
    a.cold.append(coldl)
    stamp(a, stamps, 2)
    A = 76
    a(f's_add_u32 s{S_T0}, s{S_POFF}, 8192\ns_mov_b32 s{S_YD}, s{S_XOFF}')
    if stamps and cfg['sdrain']: a('s_waitcnt vmcnt(0)')
    stamp(a, stamps, 3)
    if cfg['psl'] is None:
        jn = a.newlabel('L_jn')
        a(f's_cmp_lg_u32 s{S_WAVE}, 0\ns_cbranch_scc1 {jn}')
        wait_hint(a, V['ha'], S_POFF, HT, delay=cfg['pdelay'], inner=cfg['hinner'], primed=True)
        a(f'{jn}:\ns_barrier')
    else:
        housekeeping(a, False)
        stamp_flush(a, stamps, 11, mf+24)
        if cfg['pw'] is not None:
            tot = cfg['pw'] - (16*cfg['fl'] if stamps else 0)
            for k in range(5): a(f's_nop {max(1, (tot + k) // 5) - 1}')
        else:
            if cfg['psl'] - (cfg['fl'] if stamps else 0) > 0: a(f"s_sleep {cfg['psl'] - (cfg['fl'] if stamps else 0)}")
            if cfg['pdelay']: a(f"s_nop {cfg['pdelay']-1}")
        if cfg['pbar']: a('s_barrier')
    stamp(a, stamps, 6)
    l = a.newlabel('L_pp'); d = a.newlabel('L_ppd'); retry = a.newlabel('L_ppr'); t = 9
    R = A
    B3 = [vr(uf, 8), vr(uf+8, 8), vr(V['itm'], 8)], [vr(uf+16, 8), vr(uf+24, 8), vr(V['itm']+8, 8)]
    mh = f"""s_mov_b64 exec, {1 if cfg['h64'] else 15}
        buffer_store_dword v{V['zero']}, v{V['hw']}, {WSRD}, s{S_MOFF} offen {pf}
        s_mov_b64 exec, -1"""
    def issue(p, a=a):
        a(f"""
        buffer_load_dwordx4 v[{p}:{p+3}], v{V['pr']}, {WSRD}, s{S_POFF} offen sc1
        buffer_load_dwordx4 v[{p+4}:{p+7}], v{V['pr']}, {WSRD}, s{S_POFF} offen offset:1024 sc1
        buffer_load_dwordx2 v[{p+8}:{p+9}], v{V['pmr']}, {WSRD}, s{S_T0} offen sc1
        """)
    def zero(a=a):
        for k in range(4): a(f'v_mov_b64 v[{A+2*k}:{A+2*k+1}], 0')
    def attempt(p, behind, hint_here):
        ex = behind
        a(f's_add_u32 s{S_SPIN}, s{S_SPIN}, 1')
        for k in range(3):
            a(f's_waitcnt vmcnt({2-k+ex})')
            S32 = lambda acc, B: f'v_smfmac_f32_16x16x32_bf16 v[{acc}:{acc+3}], v[{p+8}:{p+9}], {B}, v{idx}'
            a(SM(A, p+4*k, B3[0][k], idx) if k < 2 else S32(A, vr(V['vx'], 4)))
            a(f'v_max_u32 v{t}, v{p}, v{p+2}' if k == 0 else f'v_max3_u32 v{t}, v{t}, v{p+4*k}, v{p+4*k+(2 if k < 2 else 1)}')
            a(SM(A+4, p+4*k, B3[1][k], idx) if k < 2 else S32(A+4, vr(V['vx']+4, 4)))
            if hint_here and k == cfg['mhk']:
                if cfg['mhint'] == 3:
                    a(f"""v_cmp_eq_u32 vcc, -1, v{t}
                    s_cmp_eq_u64 vcc, 0
                    s_cselect_b64 exec, 15, 0
                    buffer_store_dword v{V['zero']}, v{V['hw']}, {WSRD}, s{S_MOFF} offen {pf}
                    s_mov_b64 exec, -1""")
                else: a(mh)
                ex += 1
        a(f'v_cmp_eq_u32 vcc, -1, v{t}')
    a(f's_mov_b32 s{S_SPIN}, 0')
    sub = Asm(); issue(mf, sub); ld3 = [x.text for _, x in sub.items]
    sub = Asm(); zero(sub); sub(f"v_add_u32 v{V['fv']}, 1, v{V['fv']}"); housekeeping_acc(sub); fl = [x.text for _, x in sub.items]
    used = 0
    for k in range(3):
        a(ld3[k])
        if k < 2 and cfg['pst']:
            n_ = min(cfg['pst'], len(fl))
            for x in fl[:n_]: a(x)
            fl = fl[n_:]
            if n_ < cfg['pst']: a(f"s_nop {cfg['pst'] - n_ - 1}")
            used += cfg['pst']
    for x in fl: a(x)
    used += len(fl)
    if cfg['p2']:
        gap = cfg['p2'] + 5 - used
        while gap > 0:
            a(f's_nop {min(gap, 16) - 1}'); gap -= 16
        issue(mf+12)
    if cfg['mhint'] == 0:
        for _ in range(cfg['mhnop']): a('s_nop 3')
        a(mh)
    attempt(mf, (3 if cfg['p2'] else 0) + (cfg['mhint'] == 0), cfg['mhint'] >= 2)
    if not cfg['lateb']: a(f's_cbranch_vccnz {retry};nf')
    a(f'{d}:;nf')
    def coldp():
        a(f'{retry}:\ns_nop 7')
        if cfg['p2']:
            a.label(l)
            issue(mf)
            zero()
            attempt(mf+12, 3, cfg['mhint'] == 3)
            a(f's_cbranch_vccz {d}')
            issue(mf+12)
            zero()
            attempt(mf, 3, cfg['mhint'] == 3)
        else:
            a.label(l)
            issue(mf)
            zero()
            attempt(mf, 0, cfg['mhint'] == 3)
        a(f"""
        s_cbranch_vccz {d}
        s_cmp_lt_u32 s{S_SPIN}, s{S_LIM}
        s_cbranch_scc1 {l}
        s_mov_b32 s{S_LIM}, 1
        s_mov_b64 vcc, 0
        s_branch {d}
        """)
    a.cold.append(coldp)
    stamp(a, stamps, 4)
    if cfg['lateb']:
        a(f"""
        s_cmp_eq_u64 vcc, 0
        s_cselect_b64 exec, 15, 0
        buffer_store_dword v{V['zero']}, v{V['hw']}, {WSRD}, s{S_MOFF} offen {pf}
        s_mov_b64 exec, -1
        """)
    elif cfg['mhint'] == 1 and not cfg['cert']: a(mh)
    if stamps: a(f's_mov_b32 s{40+2*7}, s{S_SPIN}')
    if cfg.get('wgd'): a(f's_add_u32 s83, s83, s{S_SPIN}')
    if cfg['flags']: a(f"v_readfirstlane_b32 s{S_CV}, v{V['cu']}")
    hiw = a.newlabel('L_cbh'); rag = a.newlabel('L_rag'); rag2 = a.newlabel('L_rag'); nh = nh0; ny = a.newlabel('L_cny')
    def chores(adv=True):
        if cfg['flags']:
            slow2 = a.newlabel('L_us'); back2 = a.newlabel('L_ub')
            a(f's_cmp_lt_u32 s{S_CV}, 28\ns_cbranch_scc1 {slow2}\n{back2}:')
            def coldu():
                a.label(slow2)
                wait_cnt(a, S_CU, 28, 174)
                a(f's_branch {back2}')
            a.cold.append(coldu)
        if adv: step_advance(a, 458752)
        a(pre)
    def hi_tail():
        w2 = a.newlabel('L_cw2')
        ld = lambda r: f"buffer_load_dword v{r}, v{V['hm']}, {WSRD}, s{S_MOFF} offen sc1"
        a.label(hiw)
        step_advance(a, 458752)
        a(f"""
        s_cmp_eq_u32 s{S_WAVE}, 2
        s_waitcnt lgkmcnt(0)
        s_barrier
        s_cbranch_scc1 {w2}
        {ld(HT[0])}
        """)
        stamp(a, stamps, 5)
        chores(False)
        a(f"s_nop 4\n{ld(HT[1])}\ns_nop 12\n{ld(HT[2])}\ns_nop 12")
        wait_hint(a, V['hm'], S_MOFF, HT, delay=cfg['cdelay'], inner=cfg['hinner'], primed=True)
        a(f's_branch {nh}\n{w2}:')
        if cfg['cq']: a(f"s_sleep {cfg['cq']}")
        stamp(a, stamps, 5)
        chores(False)
        a(f's_branch {nh}')
    a.cold.append(hi_tail)
    a(f"""
    v_pk_add_f32 v[{A}:{A+1}], v[{A}:{A+1}], v[{A+2}:{A+3}]
    ds_write_b64 v{V['rw2']}, v[{A}:{A+1}] offset:{LDS_RED}
    v_pk_add_f32 v[{A+4}:{A+5}], v[{A+4}:{A+5}], v[{A+6}:{A+7}]
    ds_write_b64 v{V['rw2']}, v[{A+4}:{A+5}] offset:{LDS_RED+768}
    {f's_cbranch_vccnz {retry}' if cfg['lateb'] else ''}
    s_cmp_ge_u32 s{S_WAVE}, 2
    s_cbranch_scc1 {hiw}
    s_waitcnt lgkmcnt(0)
    s_barrier
    ds_read_b64 v[{R}:{R+1}], v{V['rr']} offset:{LDS_RED}
    ds_read_b64 v[{R+2}:{R+3}], v{V['rr']} offset:{LDS_RED+1536}
    ds_read_b64 v[{R+4}:{R+5}], v{V['rr']} offset:{LDS_RED+3072}
    ds_read_b64 v[{R+6}:{R+7}], v{V['rr']} offset:{LDS_RED+4608}
    s_waitcnt lgkmcnt(2)
    v_pk_add_f32 v[{R}:{R+1}], v[{R}:{R+1}], v[{R+2}:{R+3}]
    s_waitcnt lgkmcnt(0)
    v_pk_add_f32 v[{R+4}:{R+5}], v[{R+4}:{R+5}], v[{R+6}:{R+7}]
    v_pk_add_f32 v[{R}:{R+1}], v[{R}:{R+1}], v[{R+4}:{R+5}]
    v_cvt_pk_bf16_f32 v9, v{R}, v{R+1}
    buffer_store_dword v9, v{V['mw']}, {WSRD}, s{S_MOFF} offen {pf}
    """)
    if cfg['cert']: a(mh)
    stamp(a, stamps, 5)
    a(f"""
    s_cmp_lt_u32 s{S_STEP}, 62
    s_cbranch_scc1 {ny}
    s_add_u32 s{S_T0}, s{S_MOFF}, {L.MB_Y - L.MB_M}
    buffer_store_dword v9, v{V['mw']}, {WSRD}, s{S_T0} offen sc1
{ny}:
    """)
    chores()
    a(f's_branch {nh}')
    while a.cold: a.flush_cold()

def helper_cu(a, cfg):
    V = dict(l8=0, pa=1, idx=2, mf=12); LN = 112
    NP = cfg['npf']; D = cfg['pfd']; PER = cfg['pfper']
    a(f'v_mov_b32 v{LN}, v1')
    team_register(a)
    common_addrs(a, V, LN)
    a(f"""
    v_lshlrev_b32 v4, 7, v{LN}
    v_mov_b32 v3, v4
    v_mov_b32 v5, 0
    v_mov_b32 v6, 14
    s_sub_u32 s{S_ROLE}, s{S_ROLE}, 30
    s_lshl_b32 s{S_EOFF}, s{S_ROLE}, 2
    s_add_u32 s{S_EOFF}, s{S_EOFF}, s{S_WAVE}
    s_mov_b32 s{S_STEP}, 0
    s_mov_b32 s{S_MOFF}, {L.MB_M + 8192}
    s_mov_b32 s{S_CV}, {L.DUMMY + 0x200000}
    s_mul_i32 s{S_GOFF}, s{S_EOFF}, 7168
    s_add_u32 s{S_GOFF}, s{S_GOFF}, {L.XN}
    s_mov_b32 s{S_POFF}, 28672
    s_cmp_lt_u32 s{S_EOFF}, 4
    s_cbranch_scc1 H_t
    s_sub_u32 s{S_GOFF}, s{S_EOFF}, 4
    s_mul_i32 s{S_GOFF}, s{S_GOFF}, 6144
    s_add_u32 s{S_GOFF}, s{S_GOFF}, {L.MB_P}
    s_mov_b32 s{S_POFF}, 16384
    s_cmp_lt_u32 s{S_EOFF}, 6
    s_cbranch_scc1 H_t
    s_mov_b32 s{S_GOFF}, {L.MB_M + 8192}
    s_mov_b32 s{S_POFF}, 8192
    s_cmp_lt_u32 s{S_EOFF}, {7 if cfg['tlb'] else 8}
    s_cbranch_scc1 H_t
    s_mov_b32 s{S_GOFF}, {L.U + cfg['tlb']*458752}
    s_mov_b32 s{S_POFF}, 458752
    v_mul_u32_u24 v3, 7168, v{LN}
H_t:
    """)
    def mtouch():
        a(f'buffer_load_dword v7, v3, {WSRD}, s{S_GOFF} offen sc1\ns_add_u32 s{S_GOFF}, s{S_GOFF}, s{S_POFF}')
    if cfg['fused']: wait_ln(a, LN, 100)
    team_mode(a, V['mf'], V['mf']+1)
    a(f's_mov_b32 s{S_LIM}, {SPIN_MAX*4}')
    a(f"""
    s_getpc_b64 s[70:71]
H_pc:
    s_lshl_b32 s{S_T0}, s{S_EOFF}, 12
    v_lshrrev_b32 v10, 1, v4
    s_add_u32 s70, s70, s{S_T0}
    s_addc_u32 s71, s71, 0
    s_add_u32 s70, s70, L_nothelp-H_pc
    s_addc_u32 s71, s71, 0
    s_mov_b32 s72, s{S_GOFF}
    s_mov_b32 s{S_SPIN}, 0
    s_mov_b32 s73, {L.MB_P}
H_warm:
    s_mov_b32 s{S_GOFF}, s72
    global_load_dword v8, v10, s[70:71] sc1
    """)
    for _ in range(D+1): mtouch()
    a(f"""
    buffer_load_dword v9, v5, {WSRD}, s73 offen sc1
    s_add_u32 s{S_SPIN}, s{S_SPIN}, 1
    s_waitcnt vmcnt(0)
    v_cmp_eq_u32 vcc, -1, v9
    s_cbranch_vccz H_warmed
    s_sleep 8
    s_cmp_lt_u32 s{S_SPIN}, s{S_LIM}
    s_cbranch_scc1 H_warm
H_warmed:
    """)
    mul = {2: (128, 8), 3: (86, 8)}[PER]
    for k in range(NP):
        a(f"""
        s_add_u32 s{S_T0}, s{S_EOFF}, {8*k}
        s_min_u32 s{S_T0}, s{S_T0}, {14*PER-1}
        s_mul_i32 s{S_T1}, s{S_T0}, {mul[0]}
        s_lshr_b32 s{S_T1}, s{S_T1}, {mul[1]}
        s_mul_i32 s{S_T1}, s{S_T1}, {4-PER}
        s_add_u32 s{S_T0}, s{S_T0}, s{S_T1}
        s_lshl_b32 s{60+k}, s{S_T0}, 13
        s_add_u32 s{60+k}, s{60+k}, {L.U}
        """)
    def utouch():
        for k in range(NP):
            a(f'buffer_load_dword v{32+k}, v4, {WSRD}, s{60+k} offen sc1\ns_add_u32 s{60+k}, s{60+k}, 458752')
    a(f's_mov_b32 s{S_CU}, {L.CNT_U}')
    for _ in range(D if NP else 0):
        if cfg['flags']: wait_cnt(a, S_CU, 28, 30)
        utouch()
        a(f's_add_u32 s{S_CU}, s{S_CU}, 128')
    t = V['mf']; pa = V['pa']
    sk = a.newlabel('H_sk'); sk2 = a.newlabel('H_sk'); ok = a.newlabel('H_ok')
    a(f"""
H_top:
    s_mov_b32 s{S_SPIN}, 0
H_poll:
    buffer_load_dwordx4 v[{t}:{t+3}], v{pa}, {WSRD}, s{S_MOFF} offen sc1
    buffer_load_dwordx4 v[{t+4}:{t+7}], v{pa}, {WSRD}, s{S_MOFF} offen offset:768 sc1
    buffer_load_dword v30, v5, {WSRD}, s{S_CU} offen sc1
    s_add_u32 s{S_SPIN}, s{S_SPIN}, 1
    s_waitcnt vmcnt(0)
    v_max3_u32 v{t+8}, v{t}, v{t+1}, v{t+2}
    v_max3_u32 v{t+8}, v{t+8}, v{t+3}, v{t+4}
    v_max3_u32 v{t+8}, v{t+8}, v{t+5}, v{t+6}
    v_max_u32 v{t+8}, v{t+8}, v{t+7}
    v_readfirstlane_b32 s{S_T0}, v30
    v_cmp_eq_u32 vcc, -1, v{t+8}
    s_cbranch_vccz {ok}
    s_sleep {cfg['hsleep']}
    s_cmp_lt_u32 s{S_SPIN}, s{S_LIM}
    s_cbranch_scc1 H_poll
    s_mov_b32 s{S_LIM}, 1
{ok}:
    s_cmp_lg_u32 s{S_ROLE}, 0
    s_cbranch_scc1 {sk}
    s_add_u32 s{S_T1}, s{S_MOFF}, {L.MB_Y - L.MB_M}
    buffer_store_dwordx4 v[{t}:{t+3}], v{pa}, {WSRD}, s{S_T1} offen sc1
    buffer_store_dwordx4 v[{t+4}:{t+7}], v{pa}, {WSRD}, s{S_T1} offen offset:768 sc1
{sk}:
    s_cmp_ge_u32 s{S_STEP}, {63 - D}
    s_cbranch_scc1 {sk2}
    """)
    mtouch()
    if NP:
        sk3 = a.newlabel('H_sk'); sk4 = a.newlabel('H_sk')
        if cfg['flags']: a(f's_cmp_lt_u32 s{S_T0}, 28\ns_cbranch_scc1 {sk3}')
        utouch()
        a(f's_branch {sk4}\n{sk3}:')
        for k in range(NP): a(f's_add_u32 s{60+k}, s{60+k}, 458752')
        a(f'{sk4}:\ns_add_u32 s{S_CU}, s{S_CU}, 128')
    a(f"""
{sk2}:
    s_add_u32 s{S_STEP}, s{S_STEP}, 1
    s_add_u32 s{S_MOFF}, s{S_MOFF}, 8192
    s_cmp_lt_u32 s{S_STEP}, 62
    s_cbranch_scc1 H_top
    s_branch L_exit
    """)

DEFAULT_CFG = dict(ba=[35, 35, 34, 34], bak=3, bb=[53, 53, 0, 0], xflags='', ssleep=[2, 2, 2, 0], csleep=0, psleep=0, touch=1,
                   nou=0, nox=0, cflush=1, flags=0, ustep=3, hsleep=2, mdelay=6, pdelay=1, phint=9, lead=[4, 1], pnop=[0, 8], b5nop=2, npf=0, pfper=2, hdepth=4, hpre=10, psl=3, fl=1, mhk=0, px=9, quiet=7, cq=1, al=[0, 0, 0, 4, 1], prio=[0, 0, 0, 0], wfl='', fused=0, cpk=0, lateb=0, split=4, sg=-1, spre=5, xa=(0, 4), xb=(4, 20), rxs=0, b4s=0, h64=0, mlin=1, pst=0, cert=0, b3s=0, reds=0, pw=26, fin1=0, tlb=0, xin=0, xstep=3, xs=4, xw=[(0, 0), (20, 24), (24, 28), (0, 0)], pbar=1, scap=None, ccap=None, m2=0, mdma=1, m2d=0, msamp=0, cdma=1, m2w=10, p2=32, cutrig=1, hinner=2, uearly=4, mhint=1, mhnop=0, sdrain=0, pfd=3, mpre=6, chint=1, cdelay=19)

def team_body(a, stamps=False, cfg=None):
    cfg = dict(DEFAULT_CFG, **(cfg or {}))
    a(f's_cmp_lt_u32 s{S_ROLE}, 30\ns_cbranch_scc1 L_nothelp')
    helper_cu(a, cfg)
    a.label('L_nothelp')
    a(f's_cmp_ge_u32 s{S_ROLE}, 16\ns_cbranch_scc1 L_comb')
    score_setup(a, stamps, cfg)
    for fast in (1, 0):
        a(f's_cmp_lg_u32 s{S_FAST}, {fast}\ns_cbranch_scc1 L_sc_next{fast}')
        for w in range(4):
            if w < 3:
                a(f's_cmp_lg_u32 s{S_WAVE}, {w}\ns_cbranch_scc1 L_sc{fast}_n{w}')
            score_wave(a, w, '' if fast else 'sc1', stamps, cfg)
            if w < 3: a.label(f'L_sc{fast}_n{w}')
        a.label(f'L_sc_next{fast}')
    a('s_branch L_exit')
    a.label('L_comb')
    comb_setup(a, stamps, cfg)
    for fast in (1, 0):
        a(f's_cmp_lg_u32 s{S_FAST}, {fast}\ns_cbranch_scc1 L_cb_next{fast}')
        comb_wave(a, '' if fast else 'sc1', stamps, cfg)
        a.label(f'L_cb_next{fast}')
    a('s_branch L_exit')
```

```python
from asmlib import *
import layout as L

SENT = -1
S_WS = 8
S_DBG = 12
S_ROLE = 16
S_WAVE = 17
S_XCC = 18
S_STEP = 19
S_FAST = 20
S_MOFF = 21; S_POFF = 22; S_EOFF = 23; S_GOFF = 24; S_XOFF = 25; S_T0 = 26; S_T1 = 27; S_SPIN = 28; S_LIM = 29
S_EXEC = 30
S_STMP = 32
S_TM = 34
SPIN_MAX = 20000
NTEAM = 32

LDS_M = 0
LDS_T = 7168
LDS_FL = 14336
LDS_VD = 18432
LDS_X = 20480
LDS_CF = 14336
LDS_NAN = 13312
LDS_RED = 7168
LDS_BW = 16384
LDS_ROLE = 160*1024 - 16

def prologue(a, stamps, pool_off=0, scatter=False, code=1, guess=0):
    if code:
        a('s_getpc_b64 s[40:41]\nM_pc:\nv_lshlrev_b32 v12, 7, v0\nglobal_load_dword v255, v12, s[40:41]')
        a('v_add_u32 v12, 32768, v12\nv_min_u32 v11, L_end-M_pc, v12\nglobal_load_dword v255, v11, s[40:41]')
    a(f'''
    s_cmp_ge_u32 s2, 256
    s_cbranch_scc1 L_end
    s_load_dwordx2 s[4:5], s[0:1], 96
    s_load_dwordx2 s[6:7], s[0:1], 88
    s_getreg_b32 s{S_XCC}, hwreg(HW_REG_XCC_ID, 0, 4)
    v_lshrrev_b32 v2, 6, v0
    v_and_b32 v1, 63, v0
    v_readfirstlane_b32 s{S_WAVE}, v2
    s_and_b32 s{S_XCC}, s{S_XCC}, 7
    s_waitcnt lgkmcnt(0)
    s_mov_b32 s{S_WS}, s4
    s_and_b32 s{S_WS+1}, s5, 0xffff
    s_mov_b32 s{S_WS+2}, {L.WS_BYTES}
    s_mov_b32 s{S_WS+3}, 0x20000
    s_mov_b32 s{S_DBG}, s6
    s_and_b32 s{S_DBG+1}, s7, 0xffff
    s_mov_b32 s{S_DBG+2}, 256
    s_mov_b32 s{S_DBG+3}, 0x20000
    v_mov_b32 v4, {LDS_ROLE}
    ''')
    if guess:
        a(f'''
        s_cmp_lg_u32 s{S_XCC}, 0
        s_cbranch_scc1 L_ng
        s_lshr_b32 s{S_T0}, s2, 3
        s_cmp_ge_u32 s{S_T0}, 30
        s_cbranch_scc1 L_ng
        s_mul_i32 s{S_T1}, s{S_T0}, 28
        s_add_u32 s{S_T1}, s{S_T1}, s{S_WAVE}
        s_mov_b32 s{S_STEP}, {4*14336}
        s_cmp_lt_u32 s{S_T0}, 16
        s_cbranch_scc1 L_gs
        s_lshl_b32 s{S_T1}, s{S_T0}, 1
        s_mul_i32 s{S_T0}, s{S_WAVE}, 112
        s_add_u32 s{S_T1}, s{S_T1}, s{S_T0}
        s_add_u32 s{S_T1}, s{S_T1}, {448 - 32 + 84}
        s_mov_b32 s{S_STEP}, 14336
L_gs:
        s_mul_i32 s{S_T1}, s{S_T1}, 14336
        s_add_u32 s{S_T1}, s{S_T1}, {L.WT}
        v_min_u32 v5, 55, v1
        v_lshlrev_b32 v5, 7, v5
        ''')
        for k in range(guess):
            a(f's_add_u32 s{S_T0}, s{S_T1}, 7168')
            a(f'buffer_load_dword v255, v5, s[{S_WS}:{S_WS+3}], s{S_T1} offen\nbuffer_load_dword v255, v5, s[{S_WS}:{S_WS+3}], s{S_T0} offen')
            a(f's_add_u32 s{S_T1}, s{S_T1}, s{S_STEP}')
        a.label('L_ng')
    a(f'''
    s_cmp_lg_u32 s{S_WAVE}, 0
    s_cbranch_scc1 L_role_wait
    s_mov_b64 exec, 1
    s_mov_b32 s{S_T0}, 0
L_role_try:
    {f's_lshr_b32 s{S_T1}, s2, 5' if scatter else f's_mov_b32 s{S_T1}, s{S_XCC}'}
    s_add_u32 s{S_T1}, s{S_T1}, s{S_T0}
    s_and_b32 s{S_T1}, s{S_T1}, 7
    s_lshl_b32 s{S_ROLE}, s{S_T1}, 7
    s_add_u32 s{S_ROLE}, s{S_ROLE}, {L.CNT_P + pool_off}
    v_mov_b32 v2, s{S_ROLE}
    v_mov_b32 v3, 1
    buffer_atomic_add v3, v2, s[{S_WS}:{S_WS+3}], 0 offen sc0
    s_waitcnt vmcnt(0)
    v_readfirstlane_b32 s{S_ROLE}, v3
    s_cmp_lt_u32 s{S_ROLE}, 32
    s_cbranch_scc1 L_role_got
    s_add_u32 s{S_T0}, s{S_T0}, 1
    s_cmp_lt_u32 s{S_T0}, 8
    s_cbranch_scc1 L_role_try
    s_mov_b32 s{S_ROLE}, 31
    s_mov_b32 s{S_T1}, 0
L_role_got:
    s_lshl_b32 s{S_T1}, s{S_T1}, 5
    s_add_u32 s{S_ROLE}, s{S_ROLE}, s{S_T1}
    v_mov_b32 v2, s{S_ROLE}
    ds_write_b32 v4, v2
    s_mov_b64 exec, -1
    s_waitcnt lgkmcnt(0)
L_role_wait:
    s_barrier
    ds_read_b32 v2, v4
    s_waitcnt lgkmcnt(0)
    v_readfirstlane_b32 s{S_ROLE}, v2
    ''')

FSL = [8, 32]
def wait_flags(a, vaddr, need, t, n=1):
    l = a.newlabel('L_wf'); d = a.newlabel('L_wfd')
    regs = [t] + [t+4+2*k for k in range(n-1)]
    a(f"""
    s_mov_b32 s{S_SPIN}, 0
    s_mov_b32 s{S_EXEC}, {L.FL}
    s_add_u32 s{S_EXEC+1}, s80, {need}
{l}:
    """)
    for k, r in enumerate(regs):
        a(f'buffer_load_dwordx2 v[{r}:{r+1}], v{vaddr}, s[{S_WS}:{S_WS+3}], s{S_EXEC} offen offset:{k*512} sc1')
    a(f's_add_u32 s{S_SPIN}, s{S_SPIN}, 1\ns_waitcnt vmcnt(0)')
    for k, r in enumerate(regs):
        a(f"""
        v_subrev_u32 v{r}, s{S_EXEC+1}, v{r}
        v_xor_b32 v{r+1}, s81, v{r+1}
        v_lshl_or_b32 v{t+2}, v{r+1}, 3, v{r+1}
        v_or_b32 v{r}, v{r}, v{t+2}
        """)
        if k: a(f'v_max_u32 v{t}, v{t}, v{r}')
    a(f"""
    v_cmp_lt_u32 vcc, {7 - need}, v{t}
    s_cbranch_vccz {d}
    s_sleep {FSL[n > 1]}
    s_cmp_lt_u32 s{S_SPIN}, {SPIN_MAX*4}
    s_cbranch_scc1 {l}
{d}:
    """)

def prologue_fused(a):
    a(f"""
    s_getreg_b32 s{S_XCC}, hwreg(HW_REG_XCC_ID, 0, 4)
    s_mov_b32 s{S_WAVE}, s20
    s_and_b32 s{S_XCC}, s{S_XCC}, 7
    s_mov_b32 s{S_DBG}, s56
    s_mov_b32 s{S_DBG+1}, s57
    s_mov_b32 s{S_DBG+2}, 256
    s_mov_b32 s{S_DBG+3}, 0x20000
    v_mov_b32 v4, {LDS_ROLE}
    s_cmp_lg_u32 s{S_WAVE}, 0
    s_barrier
    s_cbranch_scc1 L_role_wait
    s_mov_b64 exec, 1
    s_mov_b32 s{S_T0}, 0
    s_mov_b32 s{S_T1}, s{S_XCC}
    v_mov_b32 v3, v250
    s_branch L_role_see
L_role_try:
    s_add_u32 s{S_T1}, s{S_XCC}, s{S_T0}
    s_and_b32 s{S_T1}, s{S_T1}, 7
    s_lshl_b32 s{S_ROLE}, s{S_T1}, 2
    v_mov_b32 v2, s{S_ROLE}
    v_mov_b32 v3, 1
    buffer_atomic_add v3, v2, s[{S_DBG}:{S_DBG+3}], 0 offen sc0
    s_waitcnt vmcnt(0)
L_role_see:
    v_readfirstlane_b32 s{S_ROLE}, v3
    s_cmp_lt_u32 s{S_ROLE}, 32
    s_cbranch_scc1 L_role_got
    s_add_u32 s{S_T0}, s{S_T0}, 1
    s_cmp_lt_u32 s{S_T0}, 8
    s_cbranch_scc1 L_role_try
    s_mov_b32 s{S_ROLE}, 31
    s_mov_b32 s{S_T1}, 0
L_role_got:
    s_lshl_b32 s{S_T1}, s{S_T1}, 5
    s_add_u32 s{S_ROLE}, s{S_ROLE}, s{S_T1}
    v_mov_b32 v2, s{S_ROLE}
    ds_write_b32 v4, v2
    s_mov_b64 exec, -1
    s_waitcnt lgkmcnt(0)
L_role_wait:
    s_barrier
    ds_read_b32 v2, v4
    s_waitcnt lgkmcnt(0)
    v_readfirstlane_b32 s{S_ROLE}, v2
    """)

def wait_ln(a, lane, t, sleep=8):
    l = a.newlabel('L_wa'); d = a.newlabel('L_wad')
    a(f"""
    s_lshl_b32 s{S_T0}, s{S_WAVE}, 13
    s_add_u32 s{S_T0}, s{S_T0}, {L.FL}
    s_add_u32 s{S_T1}, s80, 7
    v_lshlrev_b32 v{t+8}, 7, v{lane}
    s_mov_b32 s{S_SPIN}, 0
{l}:
    buffer_load_dwordx4 v[{t}:{t+3}], v{t+8}, s[{S_WS}:{S_WS+3}], s{S_T0} offen sc1
    buffer_load_dwordx4 v[{t+4}:{t+7}], v{t+8}, s[{S_WS}:{S_WS+3}], s{S_T0} offen offset:16 sc1
    s_add_u32 s{S_SPIN}, s{S_SPIN}, 1
    s_waitcnt vmcnt(0)
    """)
    for k in range(4):
        a(f'v_xor_b32 v{t+2*k}, s{S_T1}, v{t+2*k}\nv_xor_b32 v{t+2*k+1}, s81, v{t+2*k+1}')
    a(f"""
    v_or3_b32 v{t}, v{t}, v{t+1}, v{t+2}
    v_or3_b32 v{t+3}, v{t+3}, v{t+4}, v{t+5}
    v_or3_b32 v{t}, v{t}, v{t+6}, v{t+7}
    v_or_b32 v{t}, v{t}, v{t+3}
    v_cmp_ne_u32 vcc, 0, v{t}
    s_cbranch_vccz {d}
    s_sleep {sleep}
    s_cmp_lt_u32 s{S_SPIN}, {SPIN_MAX*4}
    s_cbranch_scc1 {l}
{d}:
    s_barrier
    """)

STAGE1 = (0, 4, 8, 11)
def load_tiles(a, tiles, vaddr, sbase, stage, flags, bud, cap=None):
    for off, dsts in tiles:
        cur = None
        for k in range(14):
            if stage is not None and (k in STAGE1) != (stage == 1): continue
            if cur != k // 4:
                cur = k // 4
                a(f's_add_u32 s{S_T0}, s{sbase}, {off + cur*4096}')
            a(f'buffer_load_dwordx4 {dsts[k]}, v{vaddr}, s[{S_WS}:{S_WS+3}], s{S_T0} offen offset:{(k%4)*1024} {flags}')
            bud[0] += 1
            if cap is not None:
                if bud[0] > cap: a(f's_waitcnt vmcnt({cap})')
            elif bud[0] >= 56:
                a('s_waitcnt vmcnt(28)'); bud[0] = 28

def team_register(a):
    l = a.newlabel('L_reg')
    a(f'''
    s_cmp_lg_u32 s{S_WAVE}, 0
    s_cbranch_scc1 {l}
    s_cmp_eq_u32 s{S_XCC}, 0
    s_cselect_b32 s{S_T0}, 1, 0x10001
    s_mov_b64 exec, 1
    v_mov_b32 v2, 64
    v_mov_b32 v3, s{S_T0}
    buffer_atomic_add v3, v2, s[{S_DBG}:{S_DBG+3}], 0 offen
    s_mov_b64 exec, -1
{l}:
    ''')

def team_mode_load(vt0, vt1):
    return f'v_mov_b32 v{vt0}, 64\nbuffer_load_dword v{vt1}, v{vt0}, s[{S_DBG}:{S_DBG+3}], 0 offen sc1'

def team_mode(a, vt0, vt1, primed=False):
    l = a.newlabel('L_mode'); d = a.newlabel('L_moded'); p = a.newlabel('L_modep')
    a(f'''
    s_mov_b32 s{S_SPIN}, 0
    {f's_branch {p}' if primed else ''}
{l}:
    {team_mode_load(vt0, vt1)}
{p}:
    s_waitcnt vmcnt(0)
    v_readfirstlane_b32 s{S_T0}, v{vt1}
    s_and_b32 s{S_T1}, s{S_T0}, 0xffff
    s_cmp_ge_u32 s{S_T1}, {NTEAM}
    s_cbranch_scc1 {d}
    s_sleep 2
    s_add_u32 s{S_SPIN}, s{S_SPIN}, 1
    s_cmp_lt_u32 s{S_SPIN}, {SPIN_MAX}
    s_cbranch_scc1 {l}
    s_mov_b32 s{S_T0}, 0x10000
{d}:
    s_lshr_b32 s{S_T0}, s{S_T0}, 16
    s_cmp_eq_u32 s{S_T0}, 0
    s_cselect_b32 s{S_FAST}, 1, 0
    s_mov_b32 s{S_LIM}, {SPIN_MAX}
    ''')

def stamp(a, stamps, idx, vt=None):
    if not stamps: return
    a(f's_memtime s[{40+2*idx}:{41+2*idx}]')
    if idx == 2: a('s_memrealtime s[60:61]')

def stamp_flush(a, stamps, n, vt):
    if not stamps: return
    a('s_waitcnt lgkmcnt(0)')
    for k in range(n):
        a(f'v_writelane_b32 v{vt}, s{40+2*k}, {k}')
    a(f"""
    v_lshrrev_b32 v{vt+1}, 1, v0
    s_mov_b64 exec, {(1 << n) - 1}
    buffer_store_dword v{vt}, v{vt+1}, s[{S_WS}:{S_WS+3}], s{S_STMP} offen
    s_mov_b64 exec, -1
    """)

def wreg(wb, vbase):
    return ar(8*wb, 8) if wb < 32 else vr(vbase + 8*(wb-32), 8)
def wreg_half(wb, vbase, half):
    return ar(8*wb + 4*half, 4) if wb < 32 else vr(vbase + 8*(wb-32) + 4*half, 4)

def xlane4(a, op, x, t):
    a(f'''
    v_mov_b32 v{t}, v{x}
    v_permlane16_swap_b32 v{x}, v{t}
    {op} v{x}, v{x}, v{t}
    v_mov_b32 v{t}, v{x}
    v_permlane32_swap_b32 v{x}, v{t}
    {op} v{x}, v{x}, v{t}
    ''')

QP = 'quad_perm:[2,3,0,1] row_mask:0xf bank_mask:0xf'

def read_mf(a, V):
    for b in range(7):
        a(f"ds_read_b64_tr_b16 v[{V['mf']+4*b}:{V['mf']+4*b+1}], v{V['l8']} offset:{LDS_M+b*1024}")
        a(f"ds_read_b64_tr_b16 v[{V['mf']+4*b+2}:{V['mf']+4*b+3}], v{V['l8']} offset:{LDS_M+b*1024+512}")

def SM(acc, A, B, idx):
    return f'v_smfmac_f32_16x16x64_bf16 v[{acc}:{acc+3}], v[{A}:{A+3}], {B}, v{idx}'


class Q:
    def __init__(self, name, cap):
        self.name = name; self.n = 0; self.tags = {}; self.done = 0; self.cap = cap
    def issue(self, tag=None):
        self.n += 1
        if tag is not None: self.tags[tag] = self.n
    def wait(self, tag):
        k = self.tags[tag]
        if k <= self.done: return ''
        self.done = k
        return 's_waitcnt %s(%d)' % (self.name, min(self.n - k, self.cap))
    def drain(self):
        self.done = self.n
        return 's_waitcnt %s(0)' % self.name

WSRD = f's[{S_WS}:{S_WS+3}]'

def poll_m(a, V, sleep=0):
    t = V['mf']; pa = V['pa']
    l = a.newlabel('L_pm'); d = a.newlabel('L_pmd')
    a(f"""
    s_mov_b32 s{S_SPIN}, 0
{l}:
    buffer_load_dwordx4 v[{t}:{t+3}], v{pa}, {WSRD}, s{S_MOFF} offen sc1
    buffer_load_dwordx4 v[{t+4}:{t+7}], v{pa}, {WSRD}, s{S_MOFF} offen offset:768 sc1
    s_add_u32 s{S_SPIN}, s{S_SPIN}, 1
    s_waitcnt vmcnt(1)
    ds_write_b128 v{pa}, v[{t}:{t+3}]
    v_max3_u32 v{t+8}, v{t}, v{t+1}, v{t+2}
    s_waitcnt vmcnt(0)
    ds_write_b128 v{pa}, v[{t+4}:{t+7}] offset:768
    v_max3_u32 v{t+8}, v{t+8}, v{t+3}, v{t+4}
    v_max3_u32 v{t+8}, v{t+8}, v{t+5}, v{t+6}
    v_max_u32 v{t+8}, v{t+8}, v{t+7}
    v_cmp_eq_u32 vcc, -1, v{t+8}
    s_cbranch_vccz {d}
    {'s_sleep %d' % sleep if sleep else ''}
    s_cmp_lt_u32 s{S_SPIN}, s{S_LIM}
    s_cbranch_scc1 {l}
    s_mov_b32 s{S_LIM}, 1
{d}:
    s_waitcnt lgkmcnt(0)
    s_barrier
    """)

def poll_m2(a, V, gap, x):
    pa = V['pa']; sets = (V['acc']+8, V['acc']+16)
    l = a.newlabel('L_pm'); d = a.newlabel('L_pmd')
    def issue(t):
        a(f"""
        buffer_load_dwordx4 v[{t}:{t+3}], v{pa}, {WSRD}, s{S_MOFF} offen sc1
        buffer_load_dwordx4 v[{t+4}:{t+7}], v{pa}, {WSRD}, s{S_MOFF} offen offset:768 sc1
        """)
    def check(t):
        a(f"""
        s_add_u32 s{S_SPIN}, s{S_SPIN}, 1
        s_waitcnt vmcnt(3)
        ds_write_b128 v{pa}, v[{t}:{t+3}]
        v_max3_u32 v{x}, v{t}, v{t+1}, v{t+2}
        s_waitcnt vmcnt(2)
        ds_write_b128 v{pa}, v[{t+4}:{t+7}] offset:768
        v_max3_u32 v{x}, v{x}, v{t+3}, v{t+4}
        v_max3_u32 v{x}, v{x}, v{t+5}, v{t+6}
        v_max_u32 v{x}, v{x}, v{t+7}
        v_cmp_eq_u32 vcc, -1, v{x}
        """)
    a(f's_mov_b32 s{S_SPIN}, 0')
    issue(sets[0])
    while gap > 0:
        a(f's_nop {min(gap, 16) - 1}'); gap -= 16
    issue(sets[1]); check(sets[0])
    a(f's_cbranch_vccnz {l}\n{d}:\ns_waitcnt lgkmcnt(0)\ns_barrier')
    def cold():
        a.label(l)
        issue(sets[0]); check(sets[1])
        a(f's_cbranch_vccz {d}')
        issue(sets[1]); check(sets[0])
        a(f"""
        s_cbranch_vccz {d}
        s_cmp_lt_u32 s{S_SPIN}, s{S_LIM}
        s_cbranch_scc1 {l}
        s_mov_b32 s{S_LIM}, 1
        s_branch {d}
        """)
    a.cold.append(cold)

def wait_hint(a, vaddr, soff, regs, imm=0, delay=0, gap=12, inner=8, fill=None, primed=False):
    n = len(regs)
    l = a.newlabel('L_h'); d = a.newlabel('L_hd')
    ld = lambda r: f'buffer_load_dword v{r}, v{vaddr}, {WSRD}, s{soff} offen offset:{imm} sc1'
    a(f's_mov_b32 s{S_SPIN}, 0')
    fill = list(fill or [])
    per = -(-len(fill) // (n-1))
    for k in range(0 if primed else n-1):
        a(ld(regs[k]))
        for x in fill[k*per:(k+1)*per]: a(x)
        if per < gap: a(f's_nop {gap - per}')
    a.label(l)
    for k in range(n):
        a(f"""
        {ld(regs[(k+n-1) % n])}
        s_waitcnt vmcnt({n-1})
        v_cmp_eq_u32 vcc, -1, v{regs[k]}
        s_cbranch_vccz {d}
        s_nop {inner}
        """)
    a(f"""
    s_add_u32 s{S_SPIN}, s{S_SPIN}, 1
    s_cmp_lt_u32 s{S_SPIN}, s{S_LIM}
    s_cbranch_scc1 {l}
{d}:
    """)
    while delay > 0:
        a(f's_nop {min(delay, 16) - 1}'); delay -= 16

def wait_cnt(a, off_sgpr, target, vt, sleep=4, primed=False):
    l = a.newlabel('L_wc'); d = a.newlabel('L_wcd'); p = a.newlabel('L_wcp')
    a(f"""
    s_mov_b32 s{S_SPIN}, 0
    v_mov_b32 v{vt}, 0
    {f's_branch {p}' if primed else ''}
{l}:
    buffer_load_dword v{vt+1}, v{vt}, {WSRD}, s{off_sgpr} offen sc1
{p}:
    s_add_u32 s{S_SPIN}, s{S_SPIN}, 1
    s_waitcnt vmcnt(0)
    v_readfirstlane_b32 s{S_T0}, v{vt+1}
    s_cmp_ge_u32 s{S_T0}, {target}
    s_cbranch_scc1 {d}
    s_sleep {sleep}
    s_cmp_lt_u32 s{S_SPIN}, s{S_LIM}
    s_cbranch_scc1 {l}
    s_mov_b32 s{S_LIM}, 1
{d}:
    """)

def img_addr(a, dst, t, lane):
    a(f"""
    v_bfe_u32 v{dst}, v{lane}, 3, 1
    v_lshlrev_b32 v{dst}, 9, v{dst}
    v_bfe_u32 v{t}, v{lane}, 2, 1
    v_lshl_add_u32 v{dst}, v{t}, 6, v{dst}
    v_and_b32 v{t}, 1, v{lane}
    v_lshl_add_u32 v{dst}, v{t}, 5, v{dst}
    v_lshrrev_b32 v{t}, 4, v{lane}
    v_lshl_add_u32 v{dst}, v{t}, 3, v{dst}
    v_bfe_u32 v{t}, v{lane}, 1, 1
    v_lshl_add_u32 v{dst}, v{t}, 2, v{dst}
    """)

def common_addrs(a, V, LN):
    a(f"""
    v_lshlrev_b32 v{V['l8']}, 3, v{LN}
    s_mul_i32 s{S_T0}, s{S_WAVE}, {112*16}
    v_lshlrev_b32 v{V['pa']}, 4, v{LN}
    v_add_u32 v{V['pa']}, s{S_T0}, v{V['pa']}
    v_and_b32 v{LN+1}, 2, v{LN}
    v_cmp_ne_u32 vcc, 0, v{LN+1}
    v_mov_b32 v{LN+1}, 0x4444
    v_mov_b32 v{LN+2}, 0xeeee
    v_cndmask_b32 v{V['idx']}, v{LN+1}, v{LN+2}, vcc
    """)

def load_1k_run(a, dsts, vaddr, sbase, flags='', budget=None):
    for i, d in enumerate(dsts):
        if i and i % 4 == 0:
            a(f's_add_u32 s{sbase}, s{sbase}, 4096')
        a(f'buffer_load_dwordx4 {d}, v{vaddr}, {WSRD}, s{sbase} offen offset:{(i%4)*1024} {flags}')
        if budget is not None:
            budget[0] += 1
            if budget[0] >= 56:
                a('s_waitcnt vmcnt(28)'); budget[0] = 28

class Gaps:
    def __init__(self, n):
        self.ds = [[] for _ in range(n)]; self.va = [[] for _ in range(n)]; self.pre = [[] for _ in range(n)]
        self.n = n
    def put(self, kind, g, text, excl=False):
        while g < self.n - 1:
            if excl:
                if not self.ds[g] and not self.va[g]: break
            else:
                lst = self.ds[g] if kind == 'ds' else self.va[g]
                other = self.va[g] if kind == 'ds' else self.ds[g]
                if not lst and not (other and other[-1][1]): break
            g += 1
        (self.ds if kind == 'ds' else self.va)[g].append((text, excl))
        return g
    def force(self, kind, g, text):
        (self.ds if kind == 'ds' else self.va)[min(g, self.n-1)].append((text, False))

def emit_stream(a, mf, gp, lq, pre=None):
    for i, (m, tags) in enumerate(mf):
        for tg in tags:
            w = lq.wait(tg)
            if w: a(w)
        a(m)
        for lst in (gp.ds[i], gp.va[i]):
            for x, _ in lst:
                t = x(lq) if callable(x) else x
                if t: a(t)

def dsop(text, tag=None):
    def f(lq):
        lq.issue(tag); return text
    return f
def dswait(tag, then=''):
    def f(lq):
        return lq.wait(tag) + '\n' + then
    return f

SV = dict(l8=0, pa=1, idx=2, k1=3, mf=12, acc=40, w=64)
def tile_of(w, u):
    if u < 5: return (u, w)
    order = {(0, 5): (5, 0), (1, 5): (5, 1), (2, 5): (5, 2), (2, 6): (5, 3), (0, 6): (6, 0), (1, 6): (6, 1), (0, 7): (6, 2), (1, 7): (6, 3)}
    return order[(w, u)]
NUNIT = [8, 8, 7, 5]
F = dict(l16=4, px=5, pm=6, mk0=7, mk1=8, mk2=9, wz=10, xf=88, tf=200, sa=228, t=240)

def score_setup(a, stamps, cfg):
    V = SV; LN = 44
    a(f'v_mov_b32 v{LN}, v1')
    team_register(a)
    common_addrs(a, V, LN)
    img_addr(a, V['k1'], LN+1, LN)
    g, cc, par, ib, t = LN+1, LN+2, LN+3, LN+4, LN+5
    a(f"""
    v_lshlrev_b32 v{F['l16']}, 4, v{LN}
    v_lshrrev_b32 v{g}, 4, v{LN}
    v_bfe_u32 v{cc}, v{LN}, 2, 2
    v_bfe_u32 v{par}, v{LN}, 1, 1
    v_and_b32 v{ib}, 1, v{LN}
    v_and_b32 v{t}, 15, v{LN}
    v_lshlrev_b32 v{F['px']}, 4, v{t}
    v_lshrrev_b32 v{t}, 1, v{g}
    v_lshl_add_u32 v{F['px']}, v{t}, 8, v{F['px']}
    v_and_b32 v{t}, 1, v{g}
    v_lshl_add_u32 v{F['px']}, v{t}, 3, v{F['px']}
    s_and_b32 s{S_T0}, s{S_ROLE}, 1
    s_lshl_b32 s{S_T0}, s{S_T0}, 4
    s_lshr_b32 s{S_T1}, s{S_ROLE}, 2
    s_lshl_b32 s{S_T1}, s{S_T1}, 9
    s_add_u32 s{S_T0}, s{S_T0}, s{S_T1}
    s_and_b32 s{S_T1}, s{S_ROLE}, 2
    s_lshl_b32 s{S_T1}, s{S_T1}, 1
    s_add_u32 s{S_T0}, s{S_T0}, s{S_T1}
    s_add_u32 s{S_T0}, s{S_T0}, 8192
    v_and_b32 v{F['pm']}, 0xffffffef, v{V['l8']}
    v_add_u32 v{F['pm']}, s{S_T0}, v{F['pm']}
    s_lshl_b32 s{S_T0}, s{S_ROLE}, 9
    v_add_u32 v{F['px']}, s{S_T0}, v{F['px']}
    v_lshlrev_b32 v{t}, 4, v{ib}
    v_mov_b32 v{F['mk2']}, 0xffff
    v_lshlrev_b32 v{F['mk2']}, v{t}, v{F['mk2']}
    v_cmp_eq_u32 vcc, v{cc}, v{g}
    v_mov_b32 v{t}, 0
    v_cndmask_b32 v{F['mk2']}, v{t}, v{F['mk2']}, vcc
    v_cmp_eq_u32 vcc, 0, v{par}
    v_mov_b32 v{t+1}, 0xff800000
    v_cndmask_b32 v{F['mk0']}, v{t}, v{F['mk2']}, vcc
    v_cndmask_b32 v{F['mk1']}, v{F['mk2']}, v{t}, vcc
    v_cndmask_b32 v{F['wz']}, v{t+1}, v{t}, vcc
    s_mul_i32 s{S_T1}, s{S_ROLE}, {28*14336}
    s_add_u32 s{S_T1}, s{S_T1}, {L.WT}
    """)
    done = a.newlabel('L_sw')
    fz = cfg['fused']
    if fz:
        a(f"v_min_u32 v{LN+8}, 27, v{LN}\nv_lshlrev_b32 v{LN+8}, 3, v{LN+8}\ns_mul_i32 s{S_T0}, s{S_ROLE}, {14*32}\nv_add_u32 v{LN+8}, s{S_T0}, v{LN+8}")
        wait_flags(a, LN+8, 1, LN+10)
    for w in range(4):
        nx = a.newlabel('L_swn')
        if w < 3: a(f's_cmp_lg_u32 s{S_WAVE}, {w}\ns_cbranch_scc1 {nx}')
        tiles = []
        for u in range(NUNIT[w]):
            b, ga = tile_of(w, u)
            tiles.append(((4*b+ga)*14336, [wreg_half(u*7 + k//2, V['w'], k % 2) for k in range(14)]))
        if fz:
            load_tiles(a, tiles, F['l16'], S_T1, 1, cfg['wfl'], [0])
            wait_flags(a, LN+8, 7, LN+10)
            load_tiles(a, tiles, F['l16'], S_T1, 2, cfg['wfl'], [0])
        else:
            load_tiles(a, tiles, F['l16'], S_T1, None, cfg['wfl'], [0], cfg['scap'])
        if w < 3: a(f's_branch {done}\n{nx}:')
    a(f"""
{done}:
    {team_mode_load(V['mf'], V['mf']+1) if not fz else ''}
    s_mov_b32 s{S_STEP}, 0
    s_mov_b32 s{S_MOFF}, {L.MB_M}
    s_mov_b32 s{S_POFF}, {L.MB_P}
    s_mov_b32 s{S_GOFF}, {L.XN}
    s_lshl_b32 s{S_STMP}, s{S_ROLE}, 2
    s_add_u32 s{S_STMP}, s{S_STMP}, s{S_WAVE}
    s_lshl_b32 s{S_STMP}, s{S_STMP}, 12
    s_add_u32 s{S_STMP}, s{S_STMP}, {L.STAMP}
    """)
    if fz:
        wait_ln(a, LN, 12)
    else:
        nf = a.newlabel('L_nx0')
        a(f's_cmp_lg_u32 s{S_WAVE}, 3\ns_cbranch_scc1 {nf}\ns_waitcnt vmcnt(30)\ns_mov_b32 s{S_T0}, s{S_GOFF}')
        load_1k_run(a, [vr(F['xf'] + 4*k, 4) for k in range(28)], F['l16'], S_T0, cfg['wfl'])
        a.label(nf)
    team_mode(a, V['mf'], V['mf']+1, primed=not fz)

def step_advance(a, gstride, xstride=114688):
    a(f"""
    s_add_u32 s{S_STEP}, s{S_STEP}, 1
    s_add_u32 s{S_MOFF}, s{S_MOFF}, 8192
    s_add_u32 s{S_POFF}, s{S_POFF}, 16384
    s_add_u32 s{S_GOFF}, s{S_GOFF}, {gstride}
    s_add_u32 s{S_XOFF}, s{S_XOFF}, {xstride}
    s_add_u32 s{S_STMP}, s{S_STMP}, 64
    """)

def rowred(a, op, x):
    for m in ('row_ror:8', 'row_ror:4', 'row_ror:2', 'row_ror:1'):
        for r in (x, x+1):
            a(f'{op}_dpp v{r}, v{r}, v{r} {m} row_mask:0xf bank_mask:0xf')

def score_wave(a, w, pf, stamps, cfg):
    V = SV; idx = V['idx']; mf = V['mf']
    top = a.newlabel(f'L_sc{w}_top'); first = a.newlabel(f'L_sc{w}_first')
    nunit = NUNIT[w]
    accof = lambda u: V['acc'] + 4*(u % 6)
    ok = {0: (0, 9, 2), 1: (2,), 2: (0, 9, 1, 2), 3: (4,) if cfg['fin1'] else (7, 8, 4)}[w]
    ST = (lambda k: f's_memtime s[{40+2*k}:{41+2*k}]' if k in ok else '') if stamps else (lambda k: '')
    def stamp(a, stamps, k):
        a(ST(k))
    xf, tf, sa, T = F['xf'], F['tf'], F['sa'], F['t']
    FA, FV = 8, 9
    HA = 11
    HT = ([5, 6, 7, 10] if w < 3 else [T+4, T+5, T+6, T+7])[:cfg['hdepth']]
    def load_x():
        a(f's_mov_b32 s{S_T0}, s{S_GOFF}')
        load_1k_run(a, [vr(xf + 4*k, 4) for k in range(28)], F['l16'], S_T0, cfg['wfl'])
    XW = cfg['xw']
    def dma_x(a=a, rng=None, ahead=1):
        lo, hi = rng or XW[w]
        if hi <= lo: return
        a(f"""
        s_and_b32 s{S_T0}, s{S_STEP}, 1
        s_xor_b32 s{S_T0}, s{S_T0}, {ahead & 1}
        s_mul_i32 s{S_T0}, s{S_T0}, 28672
        s_add_u32 s{S_T0}, s{S_T0}, {LDS_X + lo*1024}
        s_add_u32 s{S_T1}, s{S_GOFF}, {ahead*28672 + lo*1024 - w*1792}
        """)
        for k in range(hi - lo):
            if k % 4 == 0:
                if k: a(f's_add_u32 s{S_T0}, s{S_T0}, 4096\ns_add_u32 s{S_T1}, s{S_T1}, 4096')
                a(f's_mov_b32 m0, s{S_T0}')
            a(f"buffer_load_dwordx4 v{V['pa']}, {WSRD}, s{S_T1} offen offset:{(k%4)*1024} {cfg['wfl']} lds")
    def read_x():
        a(f"""
        s_and_b32 s{S_T0}, s{S_STEP}, 1
        s_mul_i32 s{S_T0}, s{S_T0}, 28672
        v_add_u32 v{T}, s{S_T0}, v{F['l16']}
        """)
        for k in range(28): a(f'ds_read_b128 v[{xf+4*k}:{xf+4*k+3}], v{T} offset:{LDS_X + k*1024}')
    def zero_acc():
        for u in range(2 if cfg['m2'] else min(6, nunit)):
            a(f'v_mov_b64 v[{accof(u)}:{accof(u)+1}], 0\nv_mov_b64 v[{accof(u)+2}:{accof(u)+3}], 0')
        if w == 3:
            for k in range(4): a(f'v_mov_b64 v[{sa+2*k}:{sa+2*k+1}], 0')
            a(f"v_mov_b32 v{sa+8}, v{F['wz']}\nv_mov_b32 v{sa+9}, v{F['wz']}\nv_mov_b64 v[{sa+10}:{sa+11}], 0")
    a(f"v_lshrrev_b32 v{HA}, 1, v{V['l8']}\nv_min_u32 v{HA}, {(27 if cfg['cert'] else 55)*4}, v{HA}\ns_and_b32 s{S_T0}, s{S_ROLE}, 3\ns_lshl_b32 s{S_T0}, s{S_T0}, 8\ns_add_u32 s{S_T0}, s{S_T0}, 7168\nv_add_u32 v{HA}, s{S_T0}, v{HA}")
    if cfg['h64']:
        a(f"""
        v_lshrrev_b32 v{HA}, 3, v{V['l8']}
        v_min_u32 v{HA}, 55, v{HA}
        v_and_b32 v{mf}, 3, v{HA}
        v_lshrrev_b32 v{HA}, 2, v{HA}
        v_lshlrev_b32 v{HA}, 6, v{HA}
        v_lshl_add_u32 v{HA}, v{mf}, 2, v{HA}
        v_add_u32 v{HA}, 7168, v{HA}
        """)
    if w == 3:
        if cfg['fused']: load_x()
        a(f'v_and_b32 v{T+12}, {15*8}, v0\nv_lshlrev_b32 v{T+12}, 3, v{T+12}\nv_add_u32 v{T+12}, 6144, v{T+12}')
        if stamps: a('s_mov_b32 s40, 0\ns_mov_b32 s42, 0\ns_mov_b32 s44, 0')
        a(f's_mov_b32 s{S_EOFF}, 0\ns_lshl_b32 s{S_T0}, s{S_ROLE}, 2\ns_add_u32 s{S_T0}, s{S_T0}, 12288\nv_lshlrev_b32 v{T+14}, 4, v0\nv_add_u32 v{T+14}, s{S_T0}, v{T+14}\nv_mov_b32 v{T+15}, 0')
    else:
        a(f"v_add_u32 v{FA}, {LDS_FL + 4*w}, v{F['l16']}\nv_mov_b32 v{FV}, 0")
        for k in range(5): a(f'ds_write_b32 v{FA}, v{FV} offset:{k*1024}')
        a(f'v_and_b32 v4, {31*8}, v0\nv_lshlrev_b32 v4, 3, v4\nv_add_u32 v4, {w*2048}, v4')
    if w < 3 and not cfg['xin']: dma_x(rng=[(0, 9), (9, 18), (18, 28)][w])
    if cfg['prio'][w]: a(f"s_setprio {cfg['prio'][w]}")
    zero_acc()
    if cfg.get('wgd'): a('s_memrealtime s[88:89]\ns_memrealtime s[96:97]')
    a(f's_branch {first}')
    if cfg['al'] is not None:
        a.raw('    .p2align 6')
        for _ in range(cfg['al'][w]): a.raw('    s_nop 0')
    a.label(top)
    zero_acc()
    stamp(a, stamps, 0)
    if cfg['cert']:
        got = a.newlabel('L_got')
        a(f'v_add_u32 v{FV}, 1, v{FV}' if w < 3 else f's_add_u32 s{S_EOFF}, s{S_EOFF}, 1')
        a(f's_mov_b32 s{S_SAFE}, 0')
        if w == 0:
            ND = cfg['cert']; regs = HT[:ND]
            lp = a.newlabel('L_ct'); dn = a.newlabel('L_ctd')
            def rnd(r):
                a(f'buffer_load_dword v{r}, v{HA}, {WSRD}, s{S_MOFF} offen sc1\ns_mov_b32 m0, {LDS_M}')
                for k in range(7):
                    if k == 4: a(f's_mov_b32 m0, {LDS_M + 4096}')
                    a(f"buffer_load_dwordx4 v{V['pa']}, {WSRD}, s{S_MOFF if k < 4 else S_T0} offen offset:{(k%4)*1024} sc1 lds")
            a(f's_add_u32 s{S_T0}, s{S_MOFF}, 4096\ns_mov_b32 s{S_SPIN}, 0')
            a(ST(9))
            for k in range(ND-1): rnd(regs[k])
            a.label(lp)
            for k in range(ND):
                rnd(regs[(k+ND-1) % ND])
                a(f"""
                s_add_u32 s{S_SPIN}, s{S_SPIN}, 1
                s_waitcnt vmcnt({8*ND-1})
                v_cmp_eq_u32 vcc, -1, v{regs[k]}
                s_cbranch_vccz {dn}
                """)
            a(f's_cmp_lt_u32 s{S_SPIN}, s{S_LIM}\ns_cbranch_scc1 {lp}\n{dn}:\ns_waitcnt vmcnt({8*(ND-1)}) lgkmcnt(0)')
        else:
            a('s_waitcnt vmcnt(0) lgkmcnt(0)')
        a(f's_barrier\n{got}:')
        def coldf():
            a.label(first)
            a(f'v_add_u32 v{FV}, 1, v{FV}' if w < 3 else f's_add_u32 s{S_EOFF}, s{S_EOFF}, 1')
            a(f's_mov_b32 s{S_SAFE}, 1')
            poll_m(a, V)
            a(f's_branch {got}')
        a.cold.append(coldf)
    else:
        if cfg['msamp'] == 2: a(f'v_mov_b32 v{mf if w < 3 else T+13}, 0')
        if cfg['mdma'] == 2: a(f's_mov_b32 m0, {LDS_M}\ns_add_u32 s{S_T0}, s{S_MOFF}, 4096')
        elif cfg['split']: a(f's_mov_b32 m0, {LDS_M + w*1024}\ns_sub_u32 s{S_T0}, s{S_MOFF}, {w*768}\ns_add_u32 s{S_T1}, s{S_T0}, 4096')
        elif cfg['mdma']: a(f's_mov_b32 m0, {LDS_M + w*2048}\ns_add_u32 s{S_T0}, s{S_MOFF}, {w*2048 - w*1792}')
        if not cfg['cutrig'] or w == 0: wait_hint(a, HA, S_MOFF, HT, delay=cfg['mdelay'], inner=cfg['hinner'])
        if cfg['cutrig'] and cfg['mdma'] != 2: a('s_barrier')
    if cfg['cert']: pass
    elif cfg['mdma']:
        got = a.newlabel('L_got')
        a(ST(9))
        if cfg['split']:
            a(f"buffer_load_dwordx4 v{V['pa']}, {WSRD}, s{S_T0} offen sc1 lds")
            a(f'v_add_u32 v{FV}, 1, v{FV}' if w < 3 else f's_add_u32 s{S_EOFF}, s{S_EOFF}, 1')
            a(f's_mov_b32 s{S_SAFE}, 0\ns_mov_b32 s{S_SPIN}, 1\ns_mov_b32 m0, {LDS_M + 4096 + w*1024}')
            if w < 3:
                a(f"s_nop {cfg['split']}\nbuffer_load_dwordx4 v{V['pa']}, {WSRD}, s{S_T1} offen sc1 lds")
            a(f's_waitcnt vmcnt({1 if w < 3 else 0}) lgkmcnt(0)\ns_barrier\n{got}:')
        else:
            nk = 2 if w < 3 else 1
            SA_ = (4 if w < 3 else T+12)
            def rnd(r):
                if cfg['msamp'] == 2:
                    a(f"s_mov_b64 exec, {0x55555555 if w < 3 else 0x5555}\nbuffer_load_dword v{r}, v{SA_}, {WSRD}, s{S_MOFF} offen sc1\ns_mov_b64 exec, -1")
                elif cfg['msamp']: a(f"buffer_load_dword v{r}, v{SA_}, {WSRD}, s{S_MOFF} offen sc1")
                for k in range(nk): a(f"buffer_load_dwordx4 v{V['pa']}, {WSRD}, s{S_T0} offen offset:{k*1024} sc1 lds")
            r0, r1 = (mf, HT[1]) if w < 3 else (T+13, T+15)
            two = cfg['m2d']
            rnd(r0)
            a(f'v_add_u32 v{FV}, 1, v{FV}' if w < 3 else f's_add_u32 s{S_EOFF}, s{S_EOFF}, 1')
            a(f's_mov_b32 s{S_SAFE}, 0\ns_mov_b32 s{S_SPIN}, 1')
            if two:
                gap = two
                while gap > 0:
                    a(f's_nop {min(gap, 16) - 1}'); gap -= 16
                rnd(r1)
            ex = (nk+1) if two else 0
            bad = a.newlabel('L_mbad'); okl = a.newlabel('L_mok')
            a(f"""
            {f's_waitcnt vmcnt({nk + ex})' if cfg['msamp'] else ''}
            {f'v_cmp_eq_u32 vcc, -1, v{r0}' if cfg['msamp'] else ''}
            {f's_cbranch_vccnz {bad}' if cfg['msamp'] else ''}
            s_waitcnt vmcnt({ex}) lgkmcnt(0)
{okl}:
            s_barrier
{got}:
            """)
            def coldb():
                lp = a.newlabel('L_mlp')
                a.label(bad)
                if two:
                    a(f's_mov_b32 s{S_SPIN}, 2\ns_waitcnt vmcnt(0) lgkmcnt(0)\nv_cmp_eq_u32 vcc, -1, v{r1}\ns_cbranch_vccz {okl}')
                a.label(lp)
                rnd(r0)
                a(f"""
                s_add_u32 s{S_SPIN}, s{S_SPIN}, 1
                s_waitcnt vmcnt(0) lgkmcnt(0)
                v_cmp_eq_u32 vcc, -1, v{r0}
                s_cbranch_vccz {okl}
                s_cmp_lt_u32 s{S_SPIN}, s{S_LIM}
                s_cbranch_scc1 {lp}
                s_mov_b32 s{S_LIM}, 1
                s_branch {okl}
                """)
            a.cold.append(coldb)
        def coldf():
            a.label(first)
            a(f'v_add_u32 v{FV}, 1, v{FV}' if w < 3 else f's_add_u32 s{S_EOFF}, s{S_EOFF}, 1')
            a(f's_mov_b32 s{S_SAFE}, 1')
            poll_m(a, V)
            a(f's_branch {got}')
        a.cold.append(coldf)
    else:
        a.label(first)
        a(f'v_add_u32 v{FV}, 1, v{FV}' if w < 3 else f's_add_u32 s{S_EOFF}, s{S_EOFF}, 1')
        a(ST(9))
        if cfg['m2']: poll_m2(a, V, cfg['m2'], mf)
        else: poll_m(a, V)
    stamp(a, stamps, 1)
    if stamps and w < 3: a(f's_mov_b32 s{40+2*7}, s{S_SPIN}')
    lq = Q('lgkmcnt', 15)
    mrd = [dsop(f"ds_read_b64_tr_b16 v[{mf+4*b+2*hf}:{mf+4*b+2*hf+1}], v{V['l8']} offset:{LDS_M+b*1024+hf*512}", ('mf', b))
           for b in range(7) for hf in range(2)]
    if cfg['split'] and cfg['sg'] < 0:
        for x in mrd[:cfg['spre']]: a(x(lq))
        a('s_waitcnt vmcnt(0)\ns_barrier')
    else:
        for x in mrd[:cfg['mpre']]: a(x(lq))
    order = [(u, b) for b in range(7) for u in range(2)] + [(u, b) for u in range(2, nunit) for b in range(7)]
    ms = [(SM(accof(u), mf+4*b, wreg(u*7 + b, V['w']), idx), [('mf', b)] if u == 0 else []) for u, b in order]
    last = {u: i for i, (u, b) in enumerate(order)}
    def smfma(b):
        t4 = tf + 4*b
        return [(f"v_mfma_f32_16x16x32_bf16 v[{sa+8}:{sa+11}], v[{t4}:{t4+3}], v[{mf+4*b}:{mf+4*b+3}], " + f'v[{sa+8}:{sa+11}]', [('tf', b)]),
                (SM(sa, t4, vr(xf + 8*b, 8), idx), []),
                (SM(sa+4, t4, vr(xf + 56 + 8*b, 8), idx), [])]
    def tread(b, hf):
        return dsop(f"ds_read_b64_tr_b16 v[{tf+4*b+2*hf}:{tf+4*b+2*hf+1}], v{V['l8']} offset:{LDS_T+b*1024+hf*512}", ('tf', b))
    phases = [(0, 1, 2), (3, 4)]
    starts = []
    if w == 3:
        for ph in phases:
            starts.append(len(ms))
            for b in ph: ms += smfma(b)
    n = len(ms)
    gp = Gaps(n)
    npre = cfg['spre'] if cfg['split'] and cfg['sg'] < 0 else cfg['mpre']
    for k, x in enumerate(mrd[npre:]):
        if cfg['split'] and cfg['sg'] >= 0 and k + npre >= 8:
            if k + npre == 8: gp.force('ds', cfg['sg'], 's_waitcnt vmcnt(0)\ns_barrier')
            gp.force('ds', cfg['sg'] + (k + npre - 8)*2//3, x)
        else: gp.put('ds', k, x)
    flag_after = {2, 4} | ({5} if w < 2 else {6})
    def post(u):
        A = accof(u); b, ga = tile_of(w, u)
        va = [f'v_add_f32 v{A}, v{A}, v{A+2}', f'v_add_f32 v{A+1}, v{A+1}, v{A+3}', f'v_cvt_pk_bf16_f32 v{A}, v{A}, v{A+1}']
        ds = [dsop(f"ds_write_b32 v{V['k1']}, v{A} offset:{LDS_T+b*1024+ga*128}", ('k', u))]
        if w < 3 and u in flag_after:
            ds.append(dsop(f'ds_write_b32 v{FA}, v{FV} offset:{sorted(flag_after).index(u)*1024}'))
        return va, ds
    g = 0
    done_at = {}
    for u in range(nunit - (0 if w == 3 else 1)):
        va, ds = post(u)
        g = max(g, last[u] + 3 - (len(va) - 3))
        for x in va: g = gp.put('va', g, x) + 1
        for x in ds: g = gp.put('ds', g, x, excl=True) + 1
        done_at[u] = g
    def zero_in_gaps(u, g):
        A = accof(u)
        for k in range(2):
            gg = g
            while gg < 7*u - 2 and (gp.va[gg] or (gp.ds[gg] and gp.ds[gg][-1][1])): gg += 1
            if gg >= 7*u - 2: gg = max(g, 7*u - 4 + k)
            gp.force('va', gg, f'v_mov_b64 v[{A+2*k}:{A+2*k+1}], 0')
    if cfg['m2']:
        gp.force('ds', cfg['m2w'], 's_waitcnt vmcnt(0)')
        for u in range(2, min(6, nunit)): zero_in_gaps(u, cfg['m2w'])
    for u in range(6, nunit): zero_in_gaps(u, done_at[u-6] + 1)
    if w == 3:
        for pi, ph in enumerate(phases):
            flagrd = f"ds_read_b128 v[{T}:{T+3}], v{F['l16']} offset:{LDS_FL + pi*1024}"
            lead = cfg['lead'][pi]
            g = max(starts[pi] - lead, done_at[max(ph)] if max(ph) < 5 else 0)
            g = min(g, starts[pi]-1)
            if cfg['pnop'][pi]: gp.force('ds', g, f"s_nop {cfg['pnop'][pi]-1}")
            gp.force('ds', g, dsop(flagrd, ('fl', pi)))
            ops = [tread(b, hf) for b in ph for hf in range(2)]
            for k, x in enumerate(ops):
                gp.force('ds', min(g + (k+1)//2, starts[pi]-1), x)
            FM = T+11
            def chk(lq, pi=pi):
                return lq.wait(('fl', pi)) + (f'\nv_min3_u32 v{FM}, v{T}, v{T+1}, v{T+2}' if pi == 0 else
                                              f'\nv_min3_u32 v{T}, v{T}, v{T+1}, v{T+2}\nv_min_u32 v{FM}, v{FM}, v{T}')
            gp.force('va', starts[pi], chk)
    if w == 3 and cfg['early']:
        eb = a.newlabel('L_eb'); ec = a.newlabel('L_ec')
        g = gp.put('va', done_at[0], f'v_cmp_u_f32 vcc, v{accof(0)+1}, v{accof(0)+2}')
        gp.force('va', g+1, f's_cbranch_vccnz {eb};nf\n{ec}:;nf')
        def colde():
            lp = a.newlabel('L_el'); dn = a.newlabel('L_ed')
            a(f'{eb}:\ns_cmp_lg_u32 s{S_SAFE}, 0\ns_cbranch_scc1 {ec}')
            if cfg.get('wgd'): a('s_add_u32 s86, s86, 1')
            a(f's_mov_b32 s{S_SPIN}, 0\n{lp}:\ns_mov_b32 s{S_T0}, s{S_MOFF}')
            load_1k_run(a, [vr(tf + 4*k, 4) for k in range(7)], F['l16'], S_T0, 'sc1')
            a(f's_add_u32 s{S_SPIN}, s{S_SPIN}, 1\ns_waitcnt vmcnt(0)\nv_max_u32 v{T}, v{tf}, v{tf+1}')
            for k in range(1, 14): a(f'v_max3_u32 v{T}, v{T}, v{tf+2*k}, v{tf+2*k+1}')
            a(f"""
            v_cmp_eq_u32 vcc, -1, v{T}
            s_cbranch_vccz {dn}
            s_cmp_lt_u32 s{S_SPIN}, s{S_LIM}
            s_cbranch_scc1 {lp}
            s_mov_b32 s{S_LIM}, 1
{dn}:
            """)
            for k in range(7): a(f"ds_write_b128 v{F['l16']}, v[{tf+4*k}:{tf+4*k+3}] offset:{LDS_M + k*1024}")
            a(f"""
            s_or_b32 s{S_T0}, s{S_EOFF}, 0x40000000
            v_mov_b32 v{T}, {LDS_VD}
            v_mov_b32 v{T+1}, s{S_T0}
            ds_write_b32 v{T}, v{T+1}
            """)
            zero_acc()
            a(f's_add_u32 s{S_EOFF}, s{S_EOFF}, 1\ns_mov_b32 s{S_SAFE}, 1\ns_waitcnt lgkmcnt(0)\ns_barrier\ns_barrier\ns_branch {got}')
        a.cold.append(colde)
    if cfg['xin'] and XW[w][1] > XW[w][0]:
        sub = Asm(); dma_x(sub)
        grp = []; cur = []
        for _, x in sub.items:
            cur.append(x.text)
            if x.text.startswith('buffer'): grp.append('\n'.join(cur)); cur = []
        g = cfg['xin']
        for x in grp: g = gp.put('ds', g, x) + cfg['xstep']
    if w == 0 and cfg['phint'] < 0:
        gp.force('ds', n - 1 + cfg['phint'], f"""s_mov_b64 exec, 15
            buffer_store_dword v{FV}, v4, {WSRD}, s{S_POFF} offen {pf}
            s_mov_b64 exec, -1""")
    emit_stream(a, ms, gp, lq)
    hint = f"""s_mov_b64 exec, 15
        buffer_store_dword v{T+15}, v{T+14}, {WSRD}, s{S_POFF} offen {pf}
        s_mov_b64 exec, -1"""
    if w < 3:
        va, ds = post(nunit-1)
        A_ = accof(nunit-1)
        va = [f'v_pk_add_f32 v[{A_}:{A_+1}], v[{A_}:{A_+1}], v[{A_+2}:{A_+3}]', va[-1]]
        for x in va: a(x)
        for x in ds: a(x(lq))
        if cfg['b3s']: a(f'ds_write_b32 v{FA}, v{FV} offset:3072')
        else:
            if w == 2: dma_x(rng=cfg['xa'], ahead=2)
            a(lq.drain())
        a('s_barrier')
        if w == 2: dma_x(rng=cfg['xb'], ahead=2)
        stamp(a, stamps, 2)
        if cfg['mdma']:
            again = a.newlabel('L_again')
            a(f"""
            {'s_waitcnt vmcnt(0)' if cfg['xin'] else ''}
            s_barrier
            v_mov_b32 v{mf}, {LDS_VD}
            ds_read_b32 v{mf}, v{mf}
            s_waitcnt lgkmcnt(0)
            v_and_b32 v{mf+1}, 0x3fffffff, v{mf}
            v_cmp_eq_u32 vcc, v{mf+1}, v{FV}
            s_cbranch_vccnz {again}
            """)
            def colda():
                a.label(again)
                zero_acc()
                a(f"""
                v_cmp_eq_u32 vcc, v{mf}, v{FV}
                s_cbranch_vccnz {first}
                v_add_u32 v{FV}, 1, v{FV}
                s_branch {got}
                """)
            a.cold.append(colda)
        elif cfg['quiet']: a(f"s_sleep {cfg['quiet']}")
    else:
        s = T
        mx = T+6; z = T+8; EA = tf; B1 = tf+4; B2 = tf+8; D1 = tf+12; D2 = tf+16; rz = T+10
        a(f"""
        v_mov_b64 v[{B1+2}:{B1+3}], 0
        v_mov_b64 v[{B2}:{B2+1}], 0
        v_mov_b32 v{B2+3}, 0
        v_mov_b32 v{EA+3}, 0
        """)
        for _ in range(cfg['b5nop']): a('s_nop 3')
        q = Q('lgkmcnt', 15)
        a(f"ds_read_b128 v[{T}:{T+3}], v{F['l16']} offset:{LDS_FL + 2048}"); q.issue('fl')
        for hf in range(2): a(tread(5, hf)(q))
        stamp(a, stamps, 2)
        a('s_barrier')
        stamp(a, stamps, 3)
        PX = lambda k: a('s_memtime s[52:53]') if stamps and cfg['px'] == k else None
        PX(0)
        if cfg['b3s']:
            for _ in range(cfg['b3s'] - 1): a('s_nop 0')
            a(f"ds_read_b64 v[{T+4}:{T+5}], v{F['l16']} offset:{LDS_FL + 3072}"); q.issue('fl3')
        for hf in range(2): a(tread(6, hf)(q))
        PX(1)
        if cfg['phint'] == 0: a(hint)
        PX(2)
        fl5 = [f'v_min3_u32 v{T}, v{T}, v{T+1}, v{T+2}', f'v_min_u32 v{FM}, v{FM}, v{T}', f'v_subrev_u32 v{FM}, s{S_EOFF}, v{FM}']
        if cfg['b3s']: fl5[2:2] = ['', f'v_min3_u32 v{FM}, v{FM}, v{T+4}, v{T+5}']
        for b in (5, 6):
            for m, tags in smfma(b):
                for tg in tags: a(q.wait(tg))
                if b == 6 and tags: PX(4)
                a(m)
                if fl5: a(fl5.pop(0))
            if b == 5: PX(3)
        a(ST(7))
        if cfg['phint'] == 1: a(hint)
        e = sa
        redo = a.newlabel('L_smr'); slowmx = a.newlabel('L_sms'); go = a.newlabel('L_smg')
        a(f"""
        s_mov_b32 s{S_T1}, {120 << 23}
        s_mov_b32 s{S_SPIN}, 0
        v_add_f32_dpp v{s+4}, v{sa+10}, v{sa+8} {QP}
        v_add_f32_dpp v{s+5}, v{sa+11}, v{sa+9} {QP}
        v_pk_add_f32 v[{s}:{s+1}], v[{sa}:{sa+1}], v[{sa+2}:{sa+3}]
        v_exp_f32 v{e+8}, v{s+4}
        v_exp_f32 v{e+9}, v{s+5}
        v_pk_add_f32 v[{s+2}:{s+3}], v[{sa+4}:{sa+5}], v[{sa+6}:{sa+7}]
        v_exp_f32 v{e}, v{s}
        v_exp_f32 v{e+1}, v{s+1}
        v_exp_f32 v{e+2}, v{s+2}
        v_exp_f32 v{e+3}, v{s+3}
{redo}:;nf
        v_pk_add_f32 v[{z}:{z+1}], v[{e}:{e+1}], v[{e+8}:{e+9}]
        v_cvt_pk_bf16_f32 v{EA+2}, v{e+8}, v{e+9}
        v_pk_add_f32 v[{z}:{z+1}], v[{z}:{z+1}], v[{e+2}:{e+3}]
        """)
        if cfg['phint'] == 2: a(hint)
        fill = [f'v_cvt_pk_bf16_f32 v{EA+k}, v{e+2*k}, v{e+2*k+1}' for k in range(2)]
        for m in ('row_ror:8', 'row_ror:4', 'row_ror:2', 'row_ror:1'):
            if fill: a(fill.pop(0))
            for r in (z, z+1):
                a(f'v_add_f32_dpp v{r}, v{r}, v{r} {m} row_mask:0xf bank_mask:0xf')
        LO, HI = (127-60) << 23, (127+60) << 23
        a(ST(8))
        a(f"""
        v_rcp_f32 v{mx}, v{z}
        v_rcp_f32 v{mx+1}, v{z+1}
        v_subrev_u32 v{z}, {LO}, v{z}
        v_cvt_pk_bf16_f32 v{rz}, v{mx}, v{mx+1}
        v_and_b32 v{B1}, v{rz}, v{F['mk0']}
        v_and_b32 v{B1+1}, v{rz}, v{F['mk1']}
        v_and_b32 v{B2+2}, v{rz}, v{F['mk2']}
        v_subrev_u32 v{z+1}, {LO}, v{z+1}
        v_mfma_f32_16x16x32_bf16 v[{D1}:{D1+3}], v[{EA}:{EA+3}], v[{B1}:{B1+3}], 0
        v_mfma_f32_16x16x32_bf16 v[{D2}:{D2+3}], v[{EA}:{EA+3}], v[{B2}:{B2+3}], 0
        v_max3_u32 v{z}, v{z}, v{z+1}, v{FM}
        v_cmp_lt_u32 vcc, s{S_T1}, v{z}
        s_cmp_eq_u64 vcc, 0
        s_cselect_b64 exec, -1, 0
        v_cvt_pk_bf16_f32 v{D1}, v{D1}, v{D1+1}
        v_cvt_pk_bf16_f32 v{D1+1}, v{D1+2}, v{D1+3}
        buffer_store_dwordx2 v[{D1}:{D1+1}], v{F['px']}, {WSRD}, s{S_POFF} offen {pf}
        v_cvt_pk_bf16_f32 v{D2}, v{D2}, v{D2+1}
        buffer_store_dword v{D2}, v{F['pm']}, {WSRD}, s{S_POFF} offen {pf}
        s_mov_b64 exec, -1
        s_cbranch_scc0 {slowmx}
        """)
        if cfg['b4s']: a(f"s_sleep {cfg['b4s']}")
        if cfg['mdma']: a('s_barrier')
        def coldmx():
            a(f'{slowmx}:' + ('\ns_add_u32 s40, s40, 1' if stamps else ''))
            loc = a.newlabel('L_loc'); sf = a.newlabel('L_safe')
            a(f's_cmp_eq_u32 s{S_SPIN}, 0\ns_cbranch_scc1 {loc}')
            if cfg['mdma']:
                a(f"""
                s_cmp_lg_u32 s{S_SAFE}, 0
                s_cbranch_scc1 {sf}
                {'s_add_u32 s86, s86, 1' if cfg.get('wgd') else ''}
                v_mov_b32 v{T}, {LDS_VD}
                v_mov_b32 v{T+1}, s{S_EOFF}
                ds_write_b32 v{T}, v{T+1}
                s_waitcnt lgkmcnt(0)
                s_barrier
                """)
                zero_acc()
                a(f's_branch {first}')
            a(f'{sf}:\ns_mov_b32 s{S_T1}, -1\ns_branch {redo}\n{loc}:\ns_mov_b32 s{S_SPIN}, 1\nv_mov_b32 v{FM}, 0')
            if cfg.get('wgd'): a('s_add_u32 s85, s85, 1')
            for k in range(4): a(f'v_mov_b64 v[{sa+2*k}:{sa+2*k+1}], 0')
            a(f"v_mov_b32 v{sa+8}, v{F['wz']}\nv_mov_b32 v{sa+9}, v{F['wz']}\nv_mov_b64 v[{sa+10}:{sa+11}], 0")
            q2 = Q('lgkmcnt', 15)
            rl = a.newlabel('L_rl'); rd = a.newlabel('L_rld')
            a(f's_mov_b32 s{S_T0}, 0\n{rl}:')
            a(f"ds_read_b128 v[{T}:{T+3}], v{F['l16']} offset:{LDS_FL + 3072}")
            for b in range(7):
                for hf in range(2): a(tread(b, hf)(q2))
            a('s_waitcnt lgkmcnt(0)')
            if cfg['b3s']:
                a(f"""
                v_min3_u32 v{T}, v{T}, v{T+1}, v{T+2}
                s_add_u32 s{S_T0}, s{S_T0}, 1
                v_cmp_gt_u32 vcc, s{S_EOFF}, v{T}
                s_cbranch_vccz {rd}
                s_cmp_lt_u32 s{S_T0}, 1000
                s_cbranch_scc1 {rl}
{rd}:
                """)
            for b in range(7):
                for m, tags in smfma(b): a(m)
            a(f"""
            v_mov_b64 v[{B1+2}:{B1+3}], 0
            v_mov_b64 v[{B2}:{B2+1}], 0
            v_mov_b32 v{B2+3}, 0
            v_mov_b32 v{EA+3}, 0
            v_add_f32_dpp v{s+4}, v{sa+10}, v{sa+8} {QP}
            v_add_f32_dpp v{s+5}, v{sa+11}, v{sa+9} {QP}
            v_pk_add_f32 v[{s}:{s+1}], v[{sa}:{sa+1}], v[{sa+2}:{sa+3}]
            v_pk_add_f32 v[{s+2}:{s+3}], v[{sa+4}:{sa+5}], v[{sa+6}:{sa+7}]
            v_max3_f32 v{mx}, v{s}, v{s+4}, v{s+2}
            v_max3_f32 v{mx+1}, v{s+1}, v{s+5}, v{s+3}
            """)
            rowred(a, 'v_max_f32', mx)
            for k in range(3): a(f'v_pk_add_f32 v[{s+2*k}:{s+2*k+1}], v[{s+2*k}:{s+2*k+1}], v[{mx}:{mx+1}] neg_lo:[0,1] neg_hi:[0,1]')
            for k in range(6): a(f'v_exp_f32 v{e+(k if k < 4 else k+4)}, v{s+k}')
            a(f's_nop 1\ns_branch {redo}')
        a.cold.append(coldmx)
        stamp(a, stamps, 4)
    if stamps: a('s_memtime s[50:51]\ns_memrealtime s[60:61]')
    stamp_flush(a, stamps, 11, mf)
    step_advance(a, 28672, 458752)
    a(f's_cmp_ge_u32 s{S_STEP}, 63\ns_cbranch_scc1 L_exit')
    if w == 3:
        if cfg['rxs']: a(f"s_sleep {cfg['rxs']}")
        read_x()
    elif not cfg['nox'] and not cfg['xin']:
        if cfg['xs']: a(f"s_sleep {cfg['xs']}")
        dma_x()
    if cfg['ssleep'][w]:
        a(f"s_sleep {cfg['ssleep'][w]}")
    a(f's_branch {top}')
    a.flush_cold()

S_YD = 33; S_SAFE = 36; S_CV = 37; S_CU = 38; S_MD = 39
CV = dict(ha=160, one=161, zero=162, cu=163, hw=164, hm=165, nw=172, nr=173, pmr=72, fw=73, fv=74, rw2=75, l8=0, pa=1, idx=2, l16=3, pr=4, mw=6, lw=7, rw=8, rr=5, mf=12, acc=40, itm=72, vx=88, uf=96, tw=128, w=176)

def comb_setup(a, stamps, cfg):
    V = CV; LN = 112
    a(f'v_mov_b32 v{LN}, v1')
    team_register(a)
    common_addrs(a, V, LN)
    img_addr(a, V['mw'], LN+1, LN)
    a(f"""
    s_sub_u32 s{S_ROLE}, s{S_ROLE}, 16
    s_lshl_b32 s{S_ROLE}, s{S_ROLE}, 1
    s_and_b32 s{S_T0}, s{S_WAVE}, 1
    s_add_u32 s{S_T1}, s{S_ROLE}, s{S_T0}
    s_lshr_b32 s{S_T0}, s{S_T1}, 2
    s_lshl_b32 s{S_T0}, s{S_T0}, 10
    s_and_b32 s{S_T1}, s{S_T1}, 3
    s_lshl_b32 s{S_T1}, s{S_T1}, 7
    s_add_u32 s{S_T0}, s{S_T0}, s{S_T1}
    s_add_u32 s{S_T0}, s{S_T0}, 8192
    v_add_u32 v{V['mw']}, s{S_T0}, v{V['mw']}
    v_lshlrev_b32 v{V['l16']}, 4, v{LN}
    s_mul_i32 s{S_T0}, s{S_WAVE}, 28672
    s_add_u32 s{S_T0}, s{S_T0}, {LDS_BW}
    v_add_u32 v{V['lw']}, s{S_T0}, v{V['l16']}
    s_lshl_b32 s{S_T0}, s{S_WAVE}, 10
    v_add_u32 v{V['rw']}, s{S_T0}, v{V['l16']}
    v_add_u32 v{V['pr']}, s{S_T0}, v{V['rw']}
    s_and_b32 s{S_T0}, s{S_WAVE}, 1
    s_lshl_b32 s{S_T0}, s{S_T0}, 3
    v_add_u32 v{V['rr']}, s{S_T0}, v{V['l16']}
    s_mul_i32 s{S_T1}, s{S_WAVE}, {4*28}
    s_add_u32 s{S_T1}, s{S_T1}, s{S_ROLE}
    s_add_u32 s{S_T1}, s{S_T1}, 448
    s_mul_i32 s{S_T1}, s{S_T1}, 14336
    s_add_u32 s{S_T1}, s{S_T1}, {L.WT}
    """)
    toff = lambda u: ((u >> 1)*28 + (u & 1))*14336
    fz = cfg['fused']
    tiles = [(toff(u), [wreg_half(u*7 + k//2, V['w'], k % 2) for k in range(14)]) for u in range(6)]
    ltiles = [(toff(u), [vr(12 + (u-6)*116 + 4*k, 4) if u == 6 else vr(120 + 4*k, 4) for k in range(14)]) for u in (6, 7)]
    if fz:
        a(f"""
        v_bfe_u32 v{LN+4}, v{LN}, 2, 2
        v_mul_u32_u24 v{LN+4}, {14*32}, v{LN+4}
        v_and_b32 v{LN+5}, 3, v{LN}
        v_lshl_add_u32 v{LN+4}, v{LN+5}, 3, v{LN+4}
        s_mul_i32 s{S_T0}, s{S_WAVE}, 56
        s_lshr_b32 s{S_SPIN}, s{S_ROLE}, 2
        s_add_u32 s{S_T0}, s{S_T0}, s{S_SPIN}
        s_add_u32 s{S_T0}, s{S_T0}, 7
        s_lshl_b32 s{S_T0}, s{S_T0}, 5
        v_add_u32 v{LN+4}, s{S_T0}, v{LN+4}
        """)
        wait_flags(a, LN+4, 1, 100)
        load_tiles(a, ltiles + tiles, V['l16'], S_T1, 1, cfg['wfl'], [0])
        wait_flags(a, LN+4, 7, 100)
        load_tiles(a, ltiles + tiles, V['l16'], S_T1, 2, cfg['wfl'], [0])
    else:
        load_tiles(a, ltiles + tiles, V['l16'], S_T1, None, cfg['wfl'], [0], cfg['ccap'])
    if not fz:
        a(team_mode_load(104, 105))
        a(f"v_mov_b32 v106, 0\ns_mov_b32 s{S_CU}, {L.CNT_U}\ns_mov_b32 s{S_CV}, {L.CNT_I}")
        a(f'buffer_load_dword v107, v106, {WSRD}, s{S_CU} offen sc1\nbuffer_load_dword v109, v106, {WSRD}, s{S_CV} offen sc1')
    a('s_waitcnt vmcnt(28)')
    for u in (6, 7):
        for k in range(14):
            a(f"ds_write_b128 v{V['lw']}, {ltiles[u-6][1][k]} offset:{(u-6)*14336+k*1024}")
    a('s_waitcnt lgkmcnt(0)')
    if fz: wait_ln(a, LN, 100)
    a(f"""
    s_mov_b32 s{S_STEP}, 0
    s_mov_b32 s{S_MOFF}, {L.MB_M}
    s_mov_b32 s{S_POFF}, {L.MB_P}
    s_lshl_b32 s{S_GOFF}, s{S_ROLE}, 14
    s_lshl_b32 s{S_T0}, s{S_WAVE}, 12
    s_add_u32 s{S_GOFF}, s{S_GOFF}, s{S_T0}
    s_add_u32 s{S_GOFF}, s{S_GOFF}, {L.U}
    s_lshl_b32 s{S_XOFF}, s{S_ROLE}, 12
    s_add_u32 s{S_XOFF}, s{S_XOFF}, {L.VM}
    s_lshr_b32 s{S_STMP}, s{S_ROLE}, 1
    s_add_u32 s{S_STMP}, s{S_STMP}, 16
    s_lshl_b32 s{S_STMP}, s{S_STMP}, 2
    s_add_u32 s{S_STMP}, s{S_STMP}, s{S_WAVE}
    s_lshl_b32 s{S_STMP}, s{S_STMP}, 12
    s_add_u32 s{S_STMP}, s{S_STMP}, {L.STAMP}
    s_waitcnt vmcnt(0)
    """)
    a(f"""
    v_mov_b32 v{V['one']}, 1
    v_mov_b32 v{V['zero']}, 0
    v_mov_b32 v{V['cu']}, 0
    v_and_b32 v{V['ha']}, {120 if cfg['cutrig'] else 24}, v{V['l8']}
    v_lshrrev_b32 v{V['ha']}, 1, v{V['ha']}
    s_lshl_b32 s{S_T0}, s{S_WAVE}, 4
    s_mul_i32 s{S_T0}, s{S_T0}, {0 if cfg['cutrig'] else 1}
    s_and_b32 s{S_T1}, s{S_ROLE}, 6
    s_lshl_b32 s{S_T1}, s{S_T1}, 6
    s_add_u32 s{S_T0}, s{S_T0}, s{S_T1}
    s_add_u32 s{S_T0}, s{S_T0}, 12288
    v_add_u32 v{V['ha']}, s{S_T0}, v{V['ha']}
    s_lshl_b32 s{S_T0}, s{S_ROLE}, {0 if cfg['cert'] else 1}
    s_add_u32 s{S_T0}, s{S_T0}, s{S_WAVE}
    s_lshl_b32 s{S_T0}, s{S_T0}, 2
    s_add_u32 s{S_T0}, s{S_T0}, {8192 + 7168}
    v_lshlrev_b32 v{V['hw']}, 5, v{V['l8']}
    v_add_u32 v{V['hw']}, s{S_T0}, v{V['hw']}
    s_add_u32 s{S_YD}, s{S_XOFF}, 0x8000000
    v_lshrrev_b32 v{V['hm']}, 1, v{V['l8']}
    v_min_u32 v{V['hm']}, {(27 if cfg['cert'] else 55)*4}, v{V['hm']}
    v_add_u32 v{V['hm']}, 7168, v{V['hm']}
    s_mov_b32 s56, 0
    """)
    if cfg['h64']:
        a(f"""
        v_lshrrev_b32 v{V['hm']}, 3, v{V['l8']}
        v_min_u32 v{V['hm']}, 55, v{V['hm']}
        v_and_b32 v100, 3, v{V['hm']}
        v_lshrrev_b32 v{V['hm']}, 2, v{V['hm']}
        v_lshlrev_b32 v{V['hm']}, 6, v{V['hm']}
        v_lshl_add_u32 v{V['hm']}, v100, 2, v{V['hm']}
        v_add_u32 v{V['hm']}, 7168, v{V['hm']}
        s_lshl_b32 s{S_T0}, s{S_ROLE}, 5
        s_lshl_b32 s{S_T1}, s{S_WAVE}, 2
        s_add_u32 s{S_T0}, s{S_T0}, s{S_T1}
        s_add_u32 s{S_T0}, s{S_T0}, {8192 + 7168}
        v_mov_b32 v{V['hw']}, s{S_T0}
        """)
    if cfg['mlin']:
        x, y = 100, 101
        a(f"""
        v_lshrrev_b32 v{y}, 3, v{V['l8']}
        v_bfe_u32 v{x}, v{y}, 1, 2
        v_mul_u32_u24 v{V['rr']}, 192, v{x}
        v_bfe_u32 v{x}, v{y}, 4, 2
        v_lshl_add_u32 v{V['rr']}, v{x}, 5, v{V['rr']}
        v_and_b32 v{x}, 1, v{y}
        v_lshl_add_u32 v{V['rr']}, v{x}, 4, v{V['rr']}
        v_bfe_u32 v{x}, v{y}, 3, 1
        v_lshl_add_u32 v{V['rr']}, v{x}, 3, v{V['rr']}
        v_lshrrev_b32 v{x}, 4, v{y}
        v_mul_u32_u24 v{V['rw2']}, 192, v{x}
        v_and_b32 v{x}, 15, v{y}
        v_lshl_add_u32 v{V['rw2']}, v{x}, 3, v{V['rw2']}
        s_mul_i32 s{S_T0}, s{S_WAVE}, 1536
        v_add_u32 v{V['rw2']}, s{S_T0}, v{V['rw2']}
        s_and_b32 s{S_T0}, s{S_WAVE}, 1
        s_mul_i32 s{S_T1}, s{S_T0}, 768
        v_add_u32 v{V['rr']}, s{S_T1}, v{V['rr']}
        s_add_u32 s{S_T1}, s{S_ROLE}, s{S_T0}
        s_lshr_b32 s{S_T0}, s{S_T1}, 2
        s_lshl_b32 s{S_T0}, s{S_T0}, 10
        s_and_b32 s{S_T1}, s{S_T1}, 3
        s_lshl_b32 s{S_T1}, s{S_T1}, 7
        s_add_u32 s{S_T0}, s{S_T0}, s{S_T1}
        s_add_u32 s{S_T0}, s{S_T0}, 8192
        v_and_b32 v{x}, 31, v{y}
        v_lshlrev_b32 v{V['mw']}, 2, v{x}
        v_lshrrev_b32 v{x}, 5, v{y}
        v_lshl_add_u32 v{V['mw']}, v{x}, 9, v{V['mw']}
        v_add_u32 v{V['mw']}, s{S_T0}, v{V['mw']}
        """)
    a(f"""
    v_lshrrev_b32 v{V['nw']}, 2, v{V['rw']}
    v_lshrrev_b32 v{V['nr']}, 1, v{V['l8']}
    s_lshl_b32 s{S_MD}, s{S_WAVE}, 11
    s_min_u32 s{S_MD}, s{S_MD}, 5120
    s_mov_b32 s{S_CU}, {L.CNT_U}
    """)
    for k in range(8): a(f"v_mov_b32 v{V['vx']+k}, 0")
    a(f"v_lshrrev_b32 v{V['pmr']}, 1, v{V['rw']}")
    a(f"s_lshl_b32 s{S_T0}, s{S_WAVE}, 2\ns_add_u32 s{S_T0}, s{S_T0}, {LDS_CF}\nv_add_u32 v{V['fw']}, s{S_T0}, v{V['l16']}\nv_mov_b32 v{V['fv']}, 0\nds_write_b32 v{V['fw']}, v{V['fv']}")
    team_mode(a, 104, 105, primed=not fz)
    if cfg['flags']:
        wait_cnt(a, S_CU, 28, 106, primed=not fz)
        a(f's_mov_b32 s{S_CV}, {L.CNT_I}')
        wait_cnt(a, S_CV, 98, 108, primed=not fz)
    for k in range(32): a(f"v_mov_b32 v{V['uf']+k}, 0")

def comb_wave(a, pf, stamps, cfg):
    V = CV; idx = V['idx']; mf = V['mf']; tw = V['tw']; uf = V['uf']; pa = V['pa']
    top = a.newlabel('L_cb_top'); nh0 = a.newlabel('L_nh')
    HT = [10, 11, 166, 167][:cfg['hdepth']]
    def store_vx(base, r):
        return [f"buffer_store_dwordx4 v[{r}:{r+3}], v{V['rw']}, {WSRD}, s{base} offen {cfg['xflags']}",
                f"s_add_u32 s{S_T1}, s{base}, 4096\nbuffer_store_dwordx4 v[{r+4}:{r+7}], v{V['rw']}, {WSRD}, s{S_T1} offen {cfg['xflags']}"]
    lq = Q('lgkmcnt', 15)
    def lread(lam, hf):
        return dsop(f"ds_read_b128 v[{tw+8*(lam%4)+4*hf}:{tw+8*(lam%4)+4*hf+3}], v{V['lw']} offset:{lam*2048+hf*1024}", ('lw', lam))
    def housekeeping_acc(a=a):
        for u in range(8):
            A = V['acc'] + 4*u
            a(f'v_mov_b64 v[{A}:{A+1}], 0\nv_mov_b64 v[{A+2}:{A+3}], 0')
    def housekeeping(a=a, acc=True):
        if acc: housekeeping_acc(a)
        for lam in range(4):
            for hf in range(2): a(lread(lam, hf)(lq))
    uload = lambda k: f"buffer_load_dwordx4 v[{uf+4*k}:{uf+4*k+3}], v{V['l16']}, {WSRD}, s{S_GOFF if k < 4 else S_EOFF} offen offset:{(k%4)*1024} {cfg['xflags']}"
    uorder = [] if cfg['nou'] else [4, 5, 6, 7, 0, 1, 2, 3]
    ue = uorder[:cfg['uearly']]; ul = uorder[cfg['uearly']:]
    housekeeping()
    t = mf
    slow = a.newlabel('L_cms'); back = a.newlabel('L_cmb'); redo = a.newlabel('L_cmr')
    pre = f"""s_add_u32 s{S_EOFF}, s{S_GOFF}, 16384
        s_lshl_b32 s{S_CU}, s{S_STEP}, 7
        s_add_u32 s{S_CU}, s{S_CU}, {L.CNT_U + 128}
        s_add_u32 s{S_T0}, s{S_MOFF}, s{S_MD}
        s_mov_b32 m0, s{S_MD}"""
    a(pre)
    if cfg.get('wgd'): a('s_memrealtime s[96:97]')
    a(f's_branch {top}')
    if cfg['al'] is not None:
        a.raw('    .p2align 6')
        for _ in range(cfg['al'][4]): a.raw('    s_nop 0')
    a(f'{nh0}:\ns_barrier')
    a.label(top)
    stamp(a, stamps, 0)
    if cfg['cdma']:
        a(f"""
        buffer_load_dwordx4 v{V['l16']}, {WSRD}, s{S_T0} offen sc1 lds
        buffer_load_dwordx4 v{V['l16']}, {WSRD}, s{S_T0} offen offset:1024 sc1 lds
        s_mov_b32 s{S_SAFE}, 0
        """)
        if ue: a('s_barrier')
        for k in ue: a(uload(k))
        a(f's_waitcnt vmcnt({len(ue)}) lgkmcnt(0)\ns_barrier\n{back}:')
        def coldr():
            a(f'{redo}:\ns_barrier\ns_mov_b32 s{S_SAFE}, 1\ns_add_u32 s{S_YD}, s{S_XOFF}, 0x8000000')
            if stamps: a(f's_add_u32 s{40+2*8}, s{40+2*8}, 1')
            if cfg.get('wgd'): a('s_add_u32 s84, s84, 1')
            housekeeping()
            poll_m(a, V)
            a(f's_branch {back}')
        a.cold.append(coldr)
    else:
        a(f"""
        buffer_load_dwordx4 v[{t}:{t+3}], v{pa}, {WSRD}, s{S_MOFF} offen sc1
        buffer_load_dwordx4 v[{t+4}:{t+7}], v{pa}, {WSRD}, s{S_MOFF} offen offset:768 sc1
        """)
        if ue: a('s_barrier')
        for k in ue: a(uload(k))
        a(f"""
        s_waitcnt vmcnt({len(ue)+1})
        ds_write_b128 v{pa}, v[{t}:{t+3}]
        v_max3_u32 v{t+8}, v{t}, v{t+1}, v{t+2}
        s_waitcnt vmcnt({len(ue)})
        ds_write_b128 v{pa}, v[{t+4}:{t+7}] offset:768
        v_max3_u32 v{t+8}, v{t+8}, v{t+3}, v{t+4}
        v_max3_u32 v{t+8}, v{t+8}, v{t+5}, v{t+6}
        v_max_u32 v{t+8}, v{t+8}, v{t+7}
        v_cmp_eq_u32 vcc, -1, v{t+8}
        s_cbranch_vccnz {slow}
        s_waitcnt lgkmcnt(0)
        s_barrier
{back}:
        """)
        def coldm():
            a.label(slow)
            if stamps: a(f's_add_u32 s{40+2*8}, s{40+2*8}, 1')
            poll_m(a, V)
            a(f's_branch {back}')
        a.cold.append(coldm)
    lq.drain()
    stamp(a, stamps, 1)
    mrd = [dsop(f"ds_read_b64_tr_b16 v[{mf+4*b+2*hf}:{mf+4*b+2*hf+1}], v{V['l8']} offset:{LDS_M+b*1024+hf*512}", ('mf', b))
           for b in range(7) for hf in range(2)]
    for x in mrd[:cfg['mpre']]: a(x(lq))
    ms = []; last = {}
    rorder = [(u, b) for b in range(7) for u in range(2)] + [(u, b) for u in range(2, 6) for b in range(7)]
    rb = 0
    for p in range(56):
        if p % 4 == 3:
            lam = p // 4; u = 6 + lam // 7; b = lam % 7
            ms.append((SM(V['acc']+4*u, mf+4*b, vr(tw+8*(lam % 4), 8), idx), [('mf', b), ('lw', lam)]))
        else:
            u, b = rorder[rb]; rb += 1
            ms.append((SM(V['acc']+4*u, mf+4*b, wreg(u*7+b, V['w']), idx), [('mf', b)]))
        last[u] = p
    gp = Gaps(56)
    for k, x in enumerate(mrd[cfg['mpre']:]): gp.put('ds', k, x)
    for lam in range(4, 14):
        g = 4*(lam-4) + 3
        g = gp.put('ds', g, lread(lam, 0)) + 1
        gp.put('ds', g, lread(lam, 1))
    g = 0
    for k in ul: g = gp.put('va', g, uload(k)) + cfg['ustep']
    if cfg['flags']:
        g = gp.put('va', g, f"buffer_load_dword v{V['cu']}, v{V['zero']}, {WSRD}, s{S_CU} offen sc1") + 1
    for x in store_vx(S_YD, V['vx']): g = gp.put('va', g, x) + cfg['ustep']
    assert g - cfg['ustep'] < min(last.values()) + 3
    for k in range(len(HT)-1 if cfg['psl'] is None else 0):
        gp.put('ds', 55 - cfg['hpre'] + 4*k, f"buffer_load_dword v{HT[k]}, v{V['ha']}, {WSRD}, s{S_POFF} offen sc1")
    def post(u):
        A = V['acc'] + 4*u; hl = u >> 1; ctl = u & 1
        return ([f'v_pk_add_f32 v[{A}:{A+1}], v[{A}:{A+1}], v[{A+2}:{A+3}]'] if cfg['cpk'] else [f'v_add_f32 v{A}, v{A}, v{A+2}', f'v_add_f32 v{A+1}, v{A+1}, v{A+3}']) + [
                f"v_cvt_pk_bf16_f32 v{V['vx']+4*ctl+hl}, v{A}, v{A+1}"]
    tail = []; gprev = 0
    for u in sorted(last, key=lambda u: last[u]):
        g = max(last[u] + 3, gprev)
        if g + 4 >= 56: tail += post(u); continue
        for x in post(u): g = gp.put('va', g, x) + 1
        gprev = g
        if u == 0: done0 = g
    if cfg['cdma']:
        A0 = V['acc']; N = 168
        g = gp.put('va', done0, f'v_add_f32 v9, v{A0}, v{A0+1}') + 1
        g = gp.put('ds', g, dsop(f"ds_write_b32 v{V['nw']}, v9 offset:{LDS_NAN}", 'nw')) + 4
        gp.force('ds', g, dswait('nw', 's_barrier'))
        g = gp.put('ds', g+1, dsop(f"ds_read2st64_b32 v[{N}:{N+1}], v{V['nr']} offset0:{LDS_NAN//256} offset1:{LDS_NAN//256+1}")) + 1
        g = gp.put('ds', g, dsop(f"ds_read2st64_b32 v[{N+2}:{N+3}], v{V['nr']} offset0:{LDS_NAN//256+2} offset1:{LDS_NAN//256+3}", 'nr')) + 4
        g = gp.put('va', g, dswait('nr', f'v_add_f32 v{N}, v{N}, v{N+2}')) + 1
        g = gp.put('va', g, f'v_add_f32 v{N+1}, v{N+1}, v{N+3}') + 1
        g = gp.put('va', g, f'v_cmp_u_f32 vcc, v{N}, v{N+1}')
        assert g < 54
    emit_stream(a, ms, gp, lq)
    if cfg['cdma']:
        nb = a.newlabel('L_cnb'); nx = a.newlabel('L_cnx')
        a(f's_cbranch_vccnz {nb};nf\n{nx}:;nf')
        a.cold.append(lambda: a(f'{nb}:\ns_nop 7\ns_cmp_eq_u32 s{S_SAFE}, 0\ns_cbranch_scc1 {redo}\ns_branch {nx}'))
    for x in tail: a(x)
    lastl = a.newlabel('L_cbl')
    a(f's_cmp_ge_u32 s{S_STEP}, 63\ns_cbranch_scc1 {lastl}')
    def coldl():
        a.label(lastl)
        for x in store_vx(S_XOFF, V['vx']): a(x)
        a('s_branch L_exit')
    a.cold.append(coldl)
    stamp(a, stamps, 2)
    A = 76
    a(f's_add_u32 s{S_T0}, s{S_POFF}, 8192\ns_mov_b32 s{S_YD}, s{S_XOFF}')
    if stamps and cfg['sdrain']: a('s_waitcnt vmcnt(0)')
    stamp(a, stamps, 3)
    if cfg['psl'] is None:
        jn = a.newlabel('L_jn')
        a(f's_cmp_lg_u32 s{S_WAVE}, 0\ns_cbranch_scc1 {jn}')
        wait_hint(a, V['ha'], S_POFF, HT, delay=cfg['pdelay'], inner=cfg['hinner'], primed=True)
        a(f'{jn}:\ns_barrier')
    else:
        housekeeping(a, False)
        stamp_flush(a, stamps, 11, mf+24)
        if cfg['pw'] is not None:
            tot = cfg['pw'] - (16*cfg['fl'] if stamps else 0)
            if cfg['pal'] is not None:
                a.raw('    .p2align 5')
                if stamps: a('s_memtime s[52:53]\ns_nop 0\ns_nop 0\ns_nop 0\ns_nop 0\ns_nop 0\ns_nop 0')
            nn = 5 if cfg['pal'] is None else 2 + cfg['pal']
            for k in range(nn): a(f's_nop {max(1, (tot + k) // nn) - 1}')
        else:
            if cfg['psl'] - (cfg['fl'] if stamps else 0) > 0: a(f"s_sleep {cfg['psl'] - (cfg['fl'] if stamps else 0)}")
            if cfg['pdelay']: a(f"s_nop {cfg['pdelay']-1}")
        if cfg['pbar']: a('s_barrier')
    stamp(a, stamps and cfg['pal'] is None, 6)
    l = a.newlabel('L_pp'); d = a.newlabel('L_ppd'); retry = a.newlabel('L_ppr'); t = 9
    R = A
    B3 = [vr(uf, 8), vr(uf+8, 8), vr(V['itm'], 8)], [vr(uf+16, 8), vr(uf+24, 8), vr(V['itm']+8, 8)]
    mh = f"""s_mov_b64 exec, {1 if cfg['h64'] else 15}
        buffer_store_dword v{V['zero']}, v{V['hw']}, {WSRD}, s{S_MOFF} offen {pf}
        s_mov_b64 exec, -1"""
    def issue(p, a=a):
        a(f"""
        buffer_load_dwordx4 v[{p}:{p+3}], v{V['pr']}, {WSRD}, s{S_POFF} offen sc1
        buffer_load_dwordx4 v[{p+4}:{p+7}], v{V['pr']}, {WSRD}, s{S_POFF} offen offset:1024 sc1
        buffer_load_dwordx2 v[{p+8}:{p+9}], v{V['pmr']}, {WSRD}, s{S_T0} offen sc1
        """)
    def zero(a=a):
        for k in range(4): a(f'v_mov_b64 v[{A+2*k}:{A+2*k+1}], 0')
    def attempt(p, behind, hint_here):
        ex = behind
        a(f's_add_u32 s{S_SPIN}, s{S_SPIN}, 1')
        for k in range(3):
            a(f's_waitcnt vmcnt({2-k+ex})')
            S32 = lambda acc, B: f'v_smfmac_f32_16x16x32_bf16 v[{acc}:{acc+3}], v[{p+8}:{p+9}], {B}, v{idx}'
            a(SM(A, p+4*k, B3[0][k], idx) if k < 2 else S32(A, vr(V['vx'], 4)))
            a(f'v_max_u32 v{t}, v{p}, v{p+2}' if k == 0 else f'v_max3_u32 v{t}, v{t}, v{p+4*k}, v{p+4*k+(2 if k < 2 else 1)}')
            a(SM(A+4, p+4*k, B3[1][k], idx) if k < 2 else S32(A+4, vr(V['vx']+4, 4)))
            if hint_here and k == cfg['mhk']:
                if cfg['mhint'] == 3:
                    a(f"""v_cmp_eq_u32 vcc, -1, v{t}
                    s_cmp_eq_u64 vcc, 0
                    s_cselect_b64 exec, 15, 0
                    buffer_store_dword v{V['zero']}, v{V['hw']}, {WSRD}, s{S_MOFF} offen {pf}
                    s_mov_b64 exec, -1""")
                else: a(mh)
                ex += 1
        a(f'v_cmp_eq_u32 vcc, -1, v{t}')
    a(f's_mov_b32 s{S_SPIN}, 0')
    sub = Asm(); issue(mf, sub); ld3 = [x.text for _, x in sub.items]
    sub = Asm(); zero(sub); sub(f"v_add_u32 v{V['fv']}, 1, v{V['fv']}"); housekeeping_acc(sub); fl = [x.text for _, x in sub.items]
    used = 0
    for k in range(3):
        a(ld3[k])
        if k < 2 and cfg['pst']:
            n_ = min(cfg['pst'], len(fl))
            for x in fl[:n_]: a(x)
            fl = fl[n_:]
            if n_ < cfg['pst']: a(f"s_nop {cfg['pst'] - n_ - 1}")
            used += cfg['pst']
    for x in fl: a(x)
    used += len(fl)
    if cfg['p2']:
        gap = cfg['p2'] + 5 - used
        while gap > 0:
            a(f's_nop {min(gap, 16) - 1}'); gap -= 16
        issue(mf+12)
    if cfg['mhint'] == 0:
        for _ in range(cfg['mhnop']): a('s_nop 3')
        a(mh)
    attempt(mf, (3 if cfg['p2'] else 0) + (cfg['mhint'] == 0), cfg['mhint'] >= 2)
    if not cfg['lateb']: a(f's_cbranch_vccnz {retry};nf')
    a(f'{d}:;nf')
    def coldp():
        a(f'{retry}:\ns_nop 7')
        if cfg['p2']:
            a.label(l)
            issue(mf)
            zero()
            attempt(mf+12, 3, cfg['mhint'] == 3)
            a(f's_cbranch_vccz {d}')
            issue(mf+12)
            zero()
            attempt(mf, 3, cfg['mhint'] == 3)
        else:
            a.label(l)
            issue(mf)
            zero()
            attempt(mf, 0, cfg['mhint'] == 3)
        a(f"""
        s_cbranch_vccz {d}
        s_cmp_lt_u32 s{S_SPIN}, s{S_LIM}
        s_cbranch_scc1 {l}
        s_mov_b32 s{S_LIM}, 1
        s_mov_b64 vcc, 0
        s_branch {d}
        """)
    a.cold.append(coldp)
    stamp(a, stamps and cfg['pal'] is None, 4)
    if cfg['lateb']:
        a(f"""
        s_cmp_eq_u64 vcc, 0
        s_cselect_b64 exec, 15, 0
        buffer_store_dword v{V['zero']}, v{V['hw']}, {WSRD}, s{S_MOFF} offen {pf}
        s_mov_b64 exec, -1
        """)
    elif cfg['mhint'] == 1 and not cfg['cert']: a(mh)
    if stamps and cfg['pal'] is None: a(f's_mov_b32 s{40+2*7}, s{S_SPIN}')
    if cfg['flags']: a(f"v_readfirstlane_b32 s{S_CV}, v{V['cu']}")
    hiw = a.newlabel('L_cbh'); rag = a.newlabel('L_rag'); rag2 = a.newlabel('L_rag'); nh = nh0; ny = a.newlabel('L_cny')
    def chores(adv=True):
        if cfg['flags']:
            slow2 = a.newlabel('L_us'); back2 = a.newlabel('L_ub')
            a(f's_cmp_lt_u32 s{S_CV}, 28\ns_cbranch_scc1 {slow2}\n{back2}:')
            def coldu():
                a.label(slow2)
                wait_cnt(a, S_CU, 28, 174)
                a(f's_branch {back2}')
            a.cold.append(coldu)
        if adv: step_advance(a, 458752)
        a(pre)
        if cfg.get('wgd'): a(f's_add_u32 s83, s83, s{S_SPIN}')
    def hi_tail():
        w2 = a.newlabel('L_cw2')
        ld = lambda r: f"buffer_load_dword v{r}, v{V['hm']}, {WSRD}, s{S_MOFF} offen sc1"
        a.label(hiw)
        step_advance(a, 458752)
        a(f"""
        s_cmp_eq_u32 s{S_WAVE}, 2
        s_waitcnt lgkmcnt(0)
        s_barrier
        s_cbranch_scc1 {w2}
        {ld(HT[0])}
        """)
        stamp(a, stamps, 5)
        chores(False)
        a(f"s_nop 4\n{ld(HT[1])}\ns_nop 12\n{ld(HT[2])}\ns_nop 12")
        wait_hint(a, V['hm'], S_MOFF, HT, delay=cfg['cdelay'], inner=cfg['hinner'], primed=True)
        a(f's_branch {nh}\n{w2}:')
        if cfg['cq']: a(f"s_sleep {cfg['cq']}")
        stamp(a, stamps, 5)
        chores(False)
        a(f's_branch {nh}')
    a.cold.append(hi_tail)
    a(f"""
    v_pk_add_f32 v[{A}:{A+1}], v[{A}:{A+1}], v[{A+2}:{A+3}]
    ds_write_b64 v{V['rw2']}, v[{A}:{A+1}] offset:{LDS_RED}
    v_pk_add_f32 v[{A+4}:{A+5}], v[{A+4}:{A+5}], v[{A+6}:{A+7}]
    ds_write_b64 v{V['rw2']}, v[{A+4}:{A+5}] offset:{LDS_RED+768}
    {f's_cbranch_vccnz {retry}' if cfg['lateb'] else ''}
    s_cmp_ge_u32 s{S_WAVE}, 2
    s_cbranch_scc1 {hiw}
    s_waitcnt lgkmcnt(0)
    s_barrier
    ds_read_b64 v[{R}:{R+1}], v{V['rr']} offset:{LDS_RED}
    ds_read_b64 v[{R+2}:{R+3}], v{V['rr']} offset:{LDS_RED+1536}
    ds_read_b64 v[{R+4}:{R+5}], v{V['rr']} offset:{LDS_RED+3072}
    ds_read_b64 v[{R+6}:{R+7}], v{V['rr']} offset:{LDS_RED+4608}
    s_waitcnt lgkmcnt(2)
    v_pk_add_f32 v[{R}:{R+1}], v[{R}:{R+1}], v[{R+2}:{R+3}]
    s_waitcnt lgkmcnt(0)
    v_pk_add_f32 v[{R+4}:{R+5}], v[{R+4}:{R+5}], v[{R+6}:{R+7}]
    v_pk_add_f32 v[{R}:{R+1}], v[{R}:{R+1}], v[{R+4}:{R+5}]
    v_cvt_pk_bf16_f32 v9, v{R}, v{R+1}
    buffer_store_dword v9, v{V['mw']}, {WSRD}, s{S_MOFF} offen {pf}
    """)
    if cfg['cert']: a(mh)
    stamp(a, stamps, 5)
    a(f"""
    s_cmp_lt_u32 s{S_STEP}, 62
    s_cbranch_scc1 {ny}
    s_add_u32 s{S_T0}, s{S_MOFF}, {L.MB_Y - L.MB_M}
    buffer_store_dword v9, v{V['mw']}, {WSRD}, s{S_T0} offen sc1
{ny}:
    """)
    chores()
    a(f's_branch {nh}')
    while a.cold: a.flush_cold()

def helper_cu(a, cfg):
    V = dict(l8=0, pa=1, idx=2, mf=12); LN = 112
    NP = cfg['npf']; D = cfg['pfd']; PER = cfg['pfper']
    a(f'v_mov_b32 v{LN}, v1')
    team_register(a)
    common_addrs(a, V, LN)
    a(f"""
    v_lshlrev_b32 v4, 7, v{LN}
    v_mov_b32 v3, v4
    v_mov_b32 v5, 0
    v_mov_b32 v6, 14
    s_sub_u32 s{S_ROLE}, s{S_ROLE}, 30
    s_lshl_b32 s{S_EOFF}, s{S_ROLE}, 2
    s_add_u32 s{S_EOFF}, s{S_EOFF}, s{S_WAVE}
    s_mov_b32 s{S_STEP}, 0
    s_mov_b32 s{S_MOFF}, {L.MB_M + 8192}
    s_mov_b32 s{S_CV}, {L.DUMMY + 0x200000}
    s_mul_i32 s{S_GOFF}, s{S_EOFF}, 7168
    s_add_u32 s{S_GOFF}, s{S_GOFF}, {L.XN}
    s_mov_b32 s{S_POFF}, 28672
    s_cmp_lt_u32 s{S_EOFF}, 4
    s_cbranch_scc1 H_t
    s_sub_u32 s{S_GOFF}, s{S_EOFF}, 4
    s_mul_i32 s{S_GOFF}, s{S_GOFF}, 6144
    s_add_u32 s{S_GOFF}, s{S_GOFF}, {L.MB_P}
    s_mov_b32 s{S_POFF}, 16384
    s_cmp_lt_u32 s{S_EOFF}, 6
    s_cbranch_scc1 H_t
    s_mov_b32 s{S_GOFF}, {L.MB_M + 8192}
    s_mov_b32 s{S_POFF}, 8192
    s_cmp_lt_u32 s{S_EOFF}, {7 if cfg['tlb'] else 8}
    s_cbranch_scc1 H_t
    s_mov_b32 s{S_GOFF}, {L.U + cfg['tlb']*458752}
    s_mov_b32 s{S_POFF}, 458752
    v_mul_u32_u24 v3, 7168, v{LN}
H_t:
    """)
    def mtouch():
        a(f'buffer_load_dword v7, v3, {WSRD}, s{S_GOFF} offen sc1\ns_add_u32 s{S_GOFF}, s{S_GOFF}, s{S_POFF}')
    if cfg['fused']: wait_ln(a, LN, 100)
    team_mode(a, V['mf'], V['mf']+1)
    a(f's_mov_b32 s{S_LIM}, {SPIN_MAX*4}')
    a(f"""
    s_getpc_b64 s[70:71]
H_pc:
    s_lshl_b32 s{S_T0}, s{S_EOFF}, 12
    v_lshrrev_b32 v10, 1, v4
    s_add_u32 s70, s70, s{S_T0}
    s_addc_u32 s71, s71, 0
    s_add_u32 s70, s70, L_nothelp-H_pc
    s_addc_u32 s71, s71, 0
    s_mov_b32 s72, s{S_GOFF}
    s_mov_b32 s{S_SPIN}, 0
    s_mov_b32 s73, {L.MB_P}
H_warm:
    s_mov_b32 s{S_GOFF}, s72
    global_load_dword v8, v10, s[70:71] sc1
    """)
    for _ in range(D+1): mtouch()
    a(f"""
    buffer_load_dword v9, v5, {WSRD}, s73 offen sc1
    s_add_u32 s{S_SPIN}, s{S_SPIN}, 1
    s_waitcnt vmcnt(0)
    v_cmp_eq_u32 vcc, -1, v9
    s_cbranch_vccz H_warmed
    s_sleep 8
    s_cmp_lt_u32 s{S_SPIN}, s{S_LIM}
    s_cbranch_scc1 H_warm
H_warmed:
    """)
    mul = {2: (128, 8), 3: (86, 8)}[PER]
    for k in range(NP):
        a(f"""
        s_add_u32 s{S_T0}, s{S_EOFF}, {8*k}
        s_min_u32 s{S_T0}, s{S_T0}, {14*PER-1}
        s_mul_i32 s{S_T1}, s{S_T0}, {mul[0]}
        s_lshr_b32 s{S_T1}, s{S_T1}, {mul[1]}
        s_mul_i32 s{S_T1}, s{S_T1}, {4-PER}
        s_add_u32 s{S_T0}, s{S_T0}, s{S_T1}
        s_lshl_b32 s{60+k}, s{S_T0}, 13
        s_add_u32 s{60+k}, s{60+k}, {L.U}
        """)
    def utouch():
        for k in range(NP):
            a(f'buffer_load_dword v{32+k}, v4, {WSRD}, s{60+k} offen sc1\ns_add_u32 s{60+k}, s{60+k}, 458752')
    a(f's_mov_b32 s{S_CU}, {L.CNT_U}')
    for _ in range(D if NP else 0):
        if cfg['flags']: wait_cnt(a, S_CU, 28, 30)
        utouch()
        a(f's_add_u32 s{S_CU}, s{S_CU}, 128')
    t = V['mf']; pa = V['pa']
    sk = a.newlabel('H_sk'); sk2 = a.newlabel('H_sk'); ok = a.newlabel('H_ok')
    a(f"""
H_top:
    s_mov_b32 s{S_SPIN}, 0
H_poll:
    buffer_load_dwordx4 v[{t}:{t+3}], v{pa}, {WSRD}, s{S_MOFF} offen sc1
    buffer_load_dwordx4 v[{t+4}:{t+7}], v{pa}, {WSRD}, s{S_MOFF} offen offset:768 sc1
    buffer_load_dword v30, v5, {WSRD}, s{S_CU} offen sc1
    s_add_u32 s{S_SPIN}, s{S_SPIN}, 1
    s_waitcnt vmcnt(0)
    v_max3_u32 v{t+8}, v{t}, v{t+1}, v{t+2}
    v_max3_u32 v{t+8}, v{t+8}, v{t+3}, v{t+4}
    v_max3_u32 v{t+8}, v{t+8}, v{t+5}, v{t+6}
    v_max_u32 v{t+8}, v{t+8}, v{t+7}
    v_readfirstlane_b32 s{S_T0}, v30
    v_cmp_eq_u32 vcc, -1, v{t+8}
    s_cbranch_vccz {ok}
    s_sleep {cfg['hsleep']}
    s_cmp_lt_u32 s{S_SPIN}, s{S_LIM}
    s_cbranch_scc1 H_poll
    s_mov_b32 s{S_LIM}, 1
{ok}:
    s_cmp_lg_u32 s{S_ROLE}, 0
    s_cbranch_scc1 {sk}
    s_add_u32 s{S_T1}, s{S_MOFF}, {L.MB_Y - L.MB_M}
    buffer_store_dwordx4 v[{t}:{t+3}], v{pa}, {WSRD}, s{S_T1} offen sc1
    buffer_store_dwordx4 v[{t+4}:{t+7}], v{pa}, {WSRD}, s{S_T1} offen offset:768 sc1
{sk}:
    s_cmp_ge_u32 s{S_STEP}, {63 - D}
    s_cbranch_scc1 {sk2}
    """)
    mtouch()
    if NP:
        sk3 = a.newlabel('H_sk'); sk4 = a.newlabel('H_sk')
        if cfg['flags']: a(f's_cmp_lt_u32 s{S_T0}, 28\ns_cbranch_scc1 {sk3}')
        utouch()
        a(f's_branch {sk4}\n{sk3}:')
        for k in range(NP): a(f's_add_u32 s{60+k}, s{60+k}, 458752')
        a(f'{sk4}:\ns_add_u32 s{S_CU}, s{S_CU}, 128')
    a(f"""
{sk2}:
    s_add_u32 s{S_STEP}, s{S_STEP}, 1
    s_add_u32 s{S_MOFF}, s{S_MOFF}, 8192
    s_cmp_lt_u32 s{S_STEP}, 62
    s_cbranch_scc1 H_top
    s_branch L_exit
    """)

DEFAULT_CFG = dict(ba=[35, 35, 34, 34], bak=3, bb=[53, 53, 0, 0], xflags='', ssleep=[2, 2, 2, 0], csleep=0, psleep=0, touch=1,
                   nou=0, nox=0, cflush=1, flags=0, ustep=3, hsleep=2, mdelay=5, pdelay=1, phint=9, lead=[4, 1], pnop=[0, 8], b5nop=2, npf=0, pfper=2, hdepth=4, hpre=10, psl=3, fl=1, mhk=0, px=9, quiet=7, cq=1, al=[0, 0, 0, 5, 1], prio=[0, 0, 0, 0], wfl='', fused=0, cpk=0, pal=4, early=1, lateb=0, split=4, sg=-1, spre=5, xa=(0, 4), xb=(4, 20), rxs=0, b4s=0, h64=0, mlin=1, pst=0, cert=0, b3s=0, reds=0, pw=21, fin1=0, tlb=0, xin=0, xstep=3, xs=4, xw=[(0, 0), (20, 24), (24, 28), (0, 0)], pbar=1, scap=None, ccap=None, m2=0, mdma=1, m2d=0, msamp=0, cdma=1, m2w=10, p2=32, cutrig=1, hinner=2, uearly=4, mhint=1, mhnop=0, sdrain=0, pfd=3, mpre=6, chint=1, cdelay=19)

def team_body(a, stamps=False, cfg=None):
    cfg = dict(DEFAULT_CFG, **(cfg or {}))
    a(f's_cmp_lt_u32 s{S_ROLE}, 30\ns_cbranch_scc1 L_nothelp')
    helper_cu(a, cfg)
    a.label('L_nothelp')
    a(f's_cmp_ge_u32 s{S_ROLE}, 16\ns_cbranch_scc1 L_comb')
    score_setup(a, stamps, cfg)
    for fast in (1, 0):
        a(f's_cmp_lg_u32 s{S_FAST}, {fast}\ns_cbranch_scc1 L_sc_next{fast}')
        for w in range(4):
            if w < 3:
                a(f's_cmp_lg_u32 s{S_WAVE}, {w}\ns_cbranch_scc1 L_sc{fast}_n{w}')
            score_wave(a, w, '' if fast else 'sc1', stamps, cfg)
            if w < 3: a.label(f'L_sc{fast}_n{w}')
        a.label(f'L_sc_next{fast}')
    a('s_branch L_exit')
    a.label('L_comb')
    comb_setup(a, stamps, cfg)
    for fast in (1, 0):
        a(f's_cmp_lg_u32 s{S_FAST}, {fast}\ns_cbranch_scc1 L_cb_next{fast}')
        comb_wave(a, '' if fast else 'sc1', stamps, cfg)
        a.label(f'L_cb_next{fast}')
    a('s_branch L_exit')
```

```python
from asmlib import *
import layout as L
from team import *

G_SEG = 36; G_XO = 37; G_OO = 38; G_M0 = 39; G_IT = 40; G_CO = 41; G_CS = 42; G_CN = 43; G_CN2 = 44; G_SLOT = 46; G_CT = 45
XF = 16
ACC = 48
OUT = 112

def gemm_role(a, cfg):
    xfl = cfg['xflags']; wfl = cfg.get('wfl', '')
    NG = cfg.get('ng', 4); NSLOT = cfg.get('nslot', 4); LAG = cfg.get('lag', 2)
    assert LAG <= NSLOT - 1
    diag = cfg.get('diag')
    def st_(k):
        if diag: a(f's_memtime s[{60+2*k}:{61+2*k}]')
    st_(1)
    a(f"""
    s_lshr_b32 s{S_T0}, s{S_ROLE}, {NG.bit_length()-1}
    s_and_b32 s{G_SEG}, s{S_ROLE}, {NG-1}
    {f's_mov_b32 s{G_SEG}, s79' if cfg.get('tailseg') else ''}
    s_lshl_b32 s{S_T0}, s{S_T0}, 2
    s_add_u32 s{S_T0}, s{S_T0}, s{S_WAVE}
    v_lshlrev_b32 v2, 4, v1
    s_mul_i32 s{G_M0}, s{S_WAVE}, 7168
    s_mul_i32 s{G_XO}, s{G_SEG}, 28672
    s_add_u32 s{G_XO}, s{G_XO}, s{G_M0}
    s_add_u32 s{G_XO}, s{G_XO}, {L.XN}
    """)
    def dma(slot_off_sgpr=None, slot_const=None):
        o = []
        if slot_const is not None: o.append(f's_add_u32 m0, s{G_M0}, {slot_const}')
        else: o.append(f's_add_u32 m0, s{G_M0}, s{slot_off_sgpr}')
        for k in range(7):
            if k == 4:
                o.append(f's_add_u32 m0, m0, 4096\ns_add_u32 s{G_XO}, s{G_XO}, 4096')
            o.append(f'buffer_load_dwordx4 v2, {WSRD}, s{G_XO} offen offset:{(k%4)*1024} {wfl} lds')
        o.append(f's_add_u32 s{G_XO}, s{G_XO}, {NG*28672-4096}')
        return o
    for sl in range(NSLOT-1):
        for x in dma(slot_const=sl*28672): a(x)
    a(f"""
    s_mul_i32 s{S_T1}, s{S_T0}, {4*14336}
    s_add_u32 s{S_T1}, s{S_T1}, {L.WT}
    s_lshl_b32 s{G_CO}, s{S_ROLE}, 2
    s_add_u32 s{G_CO}, s{G_CO}, s{S_WAVE}
    s_lshl_b32 s{G_CO}, s{G_CO}, 7
    s_add_u32 s{G_CO}, s{G_CO}, {L.DUMMY + 0x100000}
    s_lshl_b32 s{G_CN}, s{G_SEG}, 12
    s_add_u32 s{G_CO}, s{G_CO}, s{G_CN}
    s_mov_b32 s{G_CN}, 0
    s_mul_i32 s{G_OO}, s{G_SEG}, 458752
    s_cmp_ge_u32 s{S_T0}, 112
    s_cbranch_scc1 G_type1
    """)
    for typ in (0, 1):
        if typ: a.label('G_type1'); a(f's_sub_u32 s{S_T0}, s{S_T0}, 112')
        a(f"""
        s_mul_i32 s{G_IT}, s{S_T0}, 37
        s_lshr_b32 s{G_IT}, s{G_IT}, 8
        s_mul_i32 s{G_SLOT}, s{G_IT}, 7
        s_cmp_gt_u32 s{G_SLOT}, s{S_T0}
        s_cselect_b32 s{G_SLOT}, 1, 0
        s_sub_u32 s{G_IT}, s{G_IT}, s{G_SLOT}
        s_mul_i32 s{G_SLOT}, s{G_IT}, 7
        s_sub_u32 s{G_SLOT}, s{S_T0}, s{G_SLOT}
        """)
        if cfg.get('fused'):
            a(f"""
            s_mul_i32 s{S_T0}, s{G_IT}, 14
            s_add_u32 s{S_T0}, s{S_T0}, s{G_SLOT}
            s_add_u32 s{S_T0}, s{S_T0}, {7*typ}
            s_lshl_b32 s{S_T0}, s{S_T0}, 5
            v_and_b32 v9, 3, v1
            v_lshlrev_b32 v9, 3, v9
            v_add_u32 v9, s{S_T0}, v9
            """)
            wait_flags(a, 9, 7, 10)
        if typ == 0:
            a(f"""
            s_mul_i32 s{G_IT}, s{G_IT}, 28672
            s_lshl_b32 s{G_SLOT}, s{G_SLOT}, 11
            s_add_u32 s{G_OO}, s{G_OO}, s{G_IT}
            s_add_u32 s{G_OO}, s{G_OO}, s{G_SLOT}
            s_add_u32 s{G_OO}, s{G_OO}, {L.TX}
            v_bfe_u32 v3, v1, 3, 1
            v_mul_u32_u24 v3, 14336, v3
            v_lshrrev_b32 v4, 4, v1
            v_lshl_add_u32 v3, v4, 8, v3
            v_bfe_u32 v4, v1, 2, 1
            v_lshl_add_u32 v3, v4, 7, v3
            v_and_b32 v4, 3, v1
            v_lshl_add_u32 v3, v4, 4, v3
            """)
            ooff = [0, 1024, 14336, 15360]
        else:
            a(f"""
            s_lshl_b32 s{G_IT}, s{G_IT}, 10
            s_lshl_b32 s{G_SLOT}, s{G_SLOT}, 16
            s_add_u32 s{G_OO}, s{G_OO}, s{G_IT}
            s_add_u32 s{G_OO}, s{G_OO}, s{G_SLOT}
            s_add_u32 s{G_OO}, s{G_OO}, {L.U}
            v_mov_b32 v3, v2
            """)
            ooff = [0, 16384, 32768, 49152]
        n = 7*(NSLOT-1)
        for t in range(4):
            base = (t >> 1)*2*14336 + (t & 1)*64 if typ == 0 else t*14336
            for kb in range(14):
                if kb % 3 == 0: a(f's_add_u32 s{S_T0}, s{S_T1}, {base + kb*1024}')
                r = (t*14+kb)*4
                a(f'buffer_load_dwordx4 a[{r}:{r+3}], v3, {WSRD}, s{S_T0} offen offset:{(kb%3)*1024} {wfl}')
                n += 1
                if n >= 60: a('s_waitcnt vmcnt(30)'); n = 30
        a(f"""
        s_lshl_b32 s{G_CN2}, s{G_SEG}, 7
        s_add_u32 s{G_CN2}, s{G_CN2}, {L.CNT_U if typ else L.CNT_T}
        s_cmp_eq_u32 s{S_WAVE}, 0
        s_cselect_b32 s{G_CN2}, s{G_CN2}, s{G_CO}
        s_cselect_b32 s{G_CS}, {128*NG}, 0
        s_mov_b32 s{S_T1}, {(0x100000000 - 0x8000000) & 0xffffffff}
        s_add_u32 s{G_OO}, s{G_OO}, 0x8000000
        v_mov_b32 v4, v2
        v_mov_b32 v6, 0
        v_mov_b32 v7, 1
        s_mov_b32 s{G_IT}, 0
        s_mov_b32 s{G_SLOT}, {(NSLOT-1)*28672}
        s_waitcnt vmcnt(0)
        s_barrier
        """)
        st_(2)
        xr = lambda kb, z: XF + ((kb % 4)*2 + z)*4
        def xread(kb, z, addr):
            return dsop(f'ds_read_b128 v[{xr(kb,z)}:{xr(kb,z)+3}], v{addr} offset:{z*14336+(kb%14)*1024}', ('x', kb))
        PD = 2
        lq = Q('lgkmcnt', 15)
        for kb in range(PD):
            for z in range(2): a(xread(kb, z, 4)(lq))
        top = f'G_top{typ}'
        signal = f"""s_mov_b64 exec, 1
            buffer_atomic_add v7, v6, {WSRD}, s{G_CO} offen
            s_mov_b64 exec, -1
            s_add_u32 s{G_CN}, s{G_CN}, 1
            s_cmp_ge_u32 s{G_CN}, {LAG}
            s_cselect_b32 s{G_CO}, s{G_CN2}, s{G_CO}
            s_cselect_b32 s{G_CT}, s{G_CS}, 0
            s_add_u32 s{G_CN2}, s{G_CN2}, s{G_CT}"""
        a.label(top)
        def epi(par):
            va = []; st = []
            for o in range(4):
                if typ == 0: z, T = o >> 1, o & 1; ca = ACC + par*32 + ((2*T)*2+z)*4; cb = ACC + par*32 + ((2*T+1)*2+z)*4
                else: ca = ACC + par*32 + (o*2)*4; cb = ACC + par*32 + (o*2+1)*4
                r = OUT + 4*o
                m1, m2 = (1, 2) if typ == 0 else (2, 1)
                va.append([f'v_cvt_pk_bf16_f32 v{r}, v{ca}, v{ca+1}', f'v_cvt_pk_bf16_f32 v{r+m1}, v{ca+2}, v{ca+3}',
                           f'v_cvt_pk_bf16_f32 v{r+m2}, v{cb}, v{cb+1}', f'v_cvt_pk_bf16_f32 v{r+3}, v{cb+2}, v{cb+3}'])
                st.append(f's_add_u32 s{S_T0}, s{G_OO}, {ooff[o]}\n' + ('' if cfg.get('nost') else f'buffer_store_dwordx4 v[{r}:{r+3}], v2, {WSRD}, s{S_T0} offen {xfl}'))
            return va, st
        for par in range(2):
            cur, nxt = (4, 5) if par == 0 else (5, 4)
            ms = []
            for kb in range(14):
                K = par*14 + kb
                for t in range(4):
                    for z in range(2):
                        c = ACC + par*32 + (t*2+z)*4
                        wr = f'a[{(t*14+kb)*4}:{(t*14+kb)*4+3}]'; x = f'v[{xr(K,z)}:{xr(K,z)+3}]'
                        A, B = (wr, x) if typ == 0 else (x, wr)
                        ms.append((f'v_mfma_f32_16x16x32_bf16 v[{c}:{c+3}], {A}, {B}, ' + ('0' if kb == 0 else f'v[{c}:{c+3}]'),
                                   [('x', K)] if t == 0 and z == 0 else []))
            gp = Gaps(112)
            for kb in range(14):
                K = par*14 + kb + PD
                addr = cur if kb + PD < 14 else nxt
                for z in range(2): gp.put('ds', kb*8 + 1 + 2*z, xread(K % 28 if K >= 28 else K, z, addr))
            va, st = epi(1-par)
            g = 4
            for o in range(4):
                for x in va[o]: g = gp.put('va', g, x) + 1
                g = gp.put('ds', g+1, st[o]) + 1
            gp.force('va', g+1, f's_add_u32 s{G_OO}, s{G_OO}, s{S_T1}\ns_mov_b32 s{S_T1}, {NG*458752}')
            gp.force('va', 60, f"""v_add_u32 v{nxt}, 28672, v{cur}
                v_subrev_u32 v8, {NSLOT*28672}, v{nxt}
                v_min_u32 v{nxt}, v{nxt}, v8""")
            sync = f's_waitcnt vmcnt({12*(LAG-1)-1 if LAG < NSLOT-1 else 12*(LAG-2)+4})\ns_barrier\n' + signal
            gp.force('ds', 80, sync)
            d = dma(slot_off_sgpr=G_SLOT)
            g = 82
            for x in d: g = gp.put('ds', g, x) + 2
            gp.force('va', g, f"""s_add_u32 s{G_SLOT}, s{G_SLOT}, 28672
                s_cmp_ge_u32 s{G_SLOT}, {NSLOT*28672}
                s_cselect_b32 s{G_SLOT}, 0, s{G_SLOT}""")
            emit_stream(a, ms, gp, lq)
        if diag:
            for k in range(8, 3, -1): a(f's_mov_b64 s[{60+2*k}:{61+2*k}], s[{58+2*k}:{59+2*k}]')
            st_(3); a('s_waitcnt lgkmcnt(0)')
        a(f"""
        s_add_u32 s{G_IT}, s{G_IT}, 1
        s_cmp_lt_u32 s{G_IT}, {'s47' if cfg.get('tailseg') else 32//NG}
        s_cbranch_scc1 {top}
        """)
        va, st = epi(1)
        for o in range(4):
            for x in va[o]: a(x)
            a(st[o])
        a('s_waitcnt vmcnt(0) lgkmcnt(0)\ns_barrier')
        for _ in range(LAG): a(signal)
        a('s_branch G_done')
    a.label('G_done')
    if diag:
        st_(9)
        a(f's_waitcnt lgkmcnt(0)\ns_lshl_b32 s36, s{S_ROLE}, 2\ns_add_u32 s36, s36, s{S_WAVE}\ns_lshl_b32 s36, s36, 6\ns_add_u32 s36, s36, {L.STAMP}\ns_mov_b64 exec, 1\nv_mov_b32 v3, 0')
        for k in range(10):
            a(f'v_mov_b32 v4, s{60+2*k}\nbuffer_store_dword v4, v3, {WSRD}, s36 offen offset:{4*k}\ns_nop 1')
        a('s_mov_b64 exec, -1')
```

```python
from build import *
import team, prep, gemm, attn, ffn
HEADER = open('sequential_preLN__memory_aug_recurrent_mem_tr__dense_activation_relu__prompt.s.ref').read().split('; Override launch')[0]
DOC = """;
"""
HEADER += DOC
def relabel(fn, tag):
    def g(a):
        fn(a)
        import re
        for i, (k, x) in enumerate(a.items):
            if k == 'l' and x.startswith(('L_exit', 'L_role')): a.items[i] = ('l', x + tag)
            elif k == 'i' and ('L_exit' in x.text or 'L_role' in x.text):
                x.text = re.sub(r'(L_exit|L_role\w+)', lambda m: m.group(1) + tag, x.text)
    return g
EV = '''s_cmp_ge_u32 s92, 30
s_cbranch_scc1 L_exit2
            v_mov_b32 v10, s86
            v_mov_b32 v11, s85
            v_mov_b32 v12, s84
            v_mov_b32 v13, s83
            buffer_atomic_add v10, v0, s[12:15], 0 offen offset:180
            buffer_atomic_add v11, v0, s[12:15], 0 offen offset:184
            buffer_atomic_add v12, v0, s[12:15], 0 offen offset:188
            buffer_atomic_add v13, v0, s[12:15], 0 offen offset:192
'''
PAD = """v_readfirstlane_b32 s90, v{r}
s_mov_b32 s91, 0
L_pad:
s_memrealtime s[94:95]
s_add_u32 s91, s91, 1
s_waitcnt lgkmcnt(0)
s_sub_u32 s94, s94, s90
s_cmp_ge_u32 s94, {t}
s_cbranch_scc1 L_exit2
s_cmp_lt_u32 s91, 100000
s_cbranch_scc1 L_pad"""
def v2(tcfg=None, stamps=False, acfg=None):
    tcfg = dict(tcfg or {}); al8 = tcfg.pop('al8', None)
    t = v2raw(tcfg, stamps, acfg)
    if al8 is not None:
        import align8
        t, st = align8.align(t, al8)
    return t
def v2raw(tcfg=None, stamps=False, acfg=None):
    tcfg = dict(tcfg or {}); ng = tcfg.pop('ng', 1); pcfg = tcfg.pop('pcfg', {}); fused = tcfg.pop('one', 0); tcfg_ev = tcfg.pop('ev', 0); scat = tcfg.pop('scatter', 0); pad = tcfg.pop('pad', 0); mcode = tcfg.pop('mcode', 1); guess = tcfg.pop('guess', 0); ts = tcfg.pop('ts', 2); gcfg = tcfg.pop('gcfg', {}); fz = dict(wfl='sc1') if fused else {}; fsl = tcfg.pop('fsl', 8); fcfg = tcfg.pop('fcfg', {}); acfg = dict(acfg or {}, **tcfg.pop('acfg', {}))
    def km(a):
        if stamps: a('s_memrealtime s[90:91]')
        if fused:
            prep.prep_kernel(a, t0=bool(stamps), fused=True, **pcfg)
            if stamps: a('s_memrealtime s[74:75]')
            team.prologue_fused(a)
            team.wait_ln(a, 1, 12, fsl)
        else:
            team.prologue(a, stamps, scatter=scat, code=mcode, guess=guess)
        R = team.S_ROLE
        if stamps: a(f's_mov_b32 s92, s{R}\ns_memrealtime s[94:95]\ns_mov_b64 s[96:97], 0\ns_mov_b64 s[88:89], 0\ns_mov_b64 s[84:85], 0\ns_mov_b32 s86, 0\ns_mov_b32 s83, 0')
        a(f"""
        s_cmp_ge_u32 s{R}, 32
        s_cbranch_scc1 M_worker
        """)
        team.team_body(a, stamps is True, dict(dict(xflags='sc1', flags=1, wgd=bool(stamps), **fz), **(tcfg or {})))
        a(f"""
M_worker:
        """)
        a(f"""
        s_lshr_b32 s26, s{R}, 5
        s_sub_u32 s26, s26, 1
        s_mov_b32 s78, s26
        s_and_b32 s27, s{R}, 31
        s_cmp_ge_u32 s27, 30
        s_cbranch_scc1 M_attn
        s_cmp_ge_u32 s27, 16
        s_cbranch_scc1 M_ffn
        """)
        if ts:
            a(f"""
            s_cmp_ge_u32 s27, 8
            s_cselect_b32 s79, {64-ts}, 0
            s_cselect_b32 s47, {ts//2}, {(64-ts)//2}
            s_and_b32 s27, s27, 7
            s_lshl_b32 s{R}, s26, 3
            s_add_u32 s{R}, s{R}, s27
            """)
        else:
            a(f"""
            s_cmp_ge_u32 s27, {8*ng}
            s_cbranch_scc1 M_attn
            s_mul_i32 s{R}, s26, {8*ng}
            s_add_u32 s{R}, s{R}, s27
            """)
        gemm.gemm_role(a, dict(dict(xflags='sc1', ng=ng, tailseg=ts, **fz), **gcfg))
        if stamps: a('s_memrealtime s[96:97]')
        a.label('M_attn')
        attn.attn_role(a, dict(dict(xflags='sc1', flags=1, asleep=16, ring=1, ticket=1, diag=bool(stamps), **fz), **(acfg or {})))
        a(f"""
M_ffn:
        s_mov_b32 s{ffn.F_Q}, s26
        s_sub_u32 s{ffn.F_J}, s27, 16
        """)
        ffn.ffn_role(a, dict(dict(xflags='sc1', flags=1, diag=bool(stamps)), **fcfg), 7)
        a.label('L_exit')
        if stamps:
            a(f"""
            s_memrealtime s[98:99]
            s_lshl_b32 s93, s92, 5
            s_add_u32 s93, s93, {L.STAMP + 0x80000}
            s_mov_b64 exec, 1
            s_waitcnt lgkmcnt(0)
            v_mov_b32 v0, 0
            v_mov_b32 v4, s90
            v_mov_b32 v5, s94
            v_mov_b32 v6, s96
            v_mov_b32 v7, s98
            buffer_store_dwordx4 v[4:7], v0, s[8:11], s93 offen
            s_getreg_b32 s87, hwreg(HW_REG_HW_ID)
            v_mov_b32 v9, {'s74' if fused else 's87'}
            buffer_store_dword v9, v0, s[8:11], s93 offen offset:16
            buffer_atomic_umax v7, v0, s[12:15], 0 offen offset:172
            {EV if tcfg_ev else ''}
            s_cmp_lg_u32 s92, 0
            s_cbranch_scc1 L_exit2
            s_mov_b32 s93, {L.STAMP + 0xf0000}
            buffer_load_dword v8, v0, s[8:11], s93 offen sc1
            v_mov_b32 v5, s88
            buffer_store_dword v4, v0, s[12:15], 0 offen offset:160
            buffer_store_dword v5, v0, s[12:15], 0 offen offset:164
            buffer_store_dword v7, v0, s[12:15], 0 offen offset:168
            s_waitcnt vmcnt(0)
            buffer_store_dword v8, v0, s[12:15], 0 offen offset:176
            {PAD.format(t=pad[0], r=pad[1]) if pad else ''}
L_exit2:
            """)
        a.label('L_end')
        a('s_endpgm')
    if fused: return assemble([('main_kernel', km, 256, 256, 163840)], HEADER)
    return assemble([('prep_kernel', lambda a: prep.prep_kernel(a, t0=bool(stamps), **pcfg), 256, 256, 163840), ('main_kernel', km, 256, 256, 163840)], HEADER)
if __name__ == '__main__':
    args = [eval(x) for x in sys.argv[3:]]
    open(sys.argv[2], 'w').write(globals()[sys.argv[1]](*args))
```

```python
from asmlib import *
import layout as L
from team import *
import prep

A_SEG = 36; A_Z = 37; A_TX = 38; A_U = 39; A_S0 = 40; A_S1 = 41; A_XS = 44
AL_M = 0
AL_E = 8192
AL_ST = 24576
AL_X = 28672
AV = dict(l8=0, pa=1, idx=2, l16=3, mf=12)
TXV = lambda hl, kb: f'a[{(hl*14+kb)*4}:{(hl*14+kb)*4+3}]'
TX8 = lambda hl, b: f'a[{(hl*14+2*b)*4}:{(hl*14+2*b)*4+7}]'
def oreg(p, c):
    i = c*8 + p
    return ('v', 64 + 4*i) if i < 48 else ('a', 224 + 4*(i-48))

def dma_run(a, n, vaddr, sbase, lds_base_sgpr, flags):
    for k in range(n):
        if k % 4 == 0:
            if k: a(f's_add_u32 s{sbase}, s{sbase}, 4096\ns_add_u32 s{lds_base_sgpr}, s{lds_base_sgpr}, 4096')
            a(f's_mov_b32 m0, s{lds_base_sgpr}')
        a(f'buffer_load_dwordx4 v{vaddr}, {WSRD}, s{sbase} offen offset:{(k%4)*1024} {flags} lds')

def attn_role(a, cfg):
    V = AV; xfl = cfg['xflags']; LN = 40
    mf = V['mf']
    def rt(k):
        if cfg.get('diag'): a(f's_memrealtime s[{60+2*k}:{61+2*k}]')
    a(f's_mov_b32 s{S_LIM}, {SPIN_MAX*8}')
    if cfg.get('ticket'):
        a(f"""
A_top:
        v_mov_b32 v4, {LDS_ROLE}
        s_cmp_lg_u32 s{S_WAVE}, 0
        s_barrier
        s_cbranch_scc1 A_tw
        s_mov_b64 exec, 1
        s_lshl_b32 s{S_T0}, s78, 7
        s_add_u32 s{S_T0}, s{S_T0}, {L.CNT_TK7}
        v_mov_b32 v2, s{S_T0}
        v_mov_b32 v3, 1
        buffer_atomic_add v3, v2, {WSRD}, 0 offen sc0
        s_waitcnt vmcnt(0)
        ds_write_b32 v4, v3
        s_mov_b64 exec, -1
        s_waitcnt lgkmcnt(0)
A_tw:
        s_barrier
        ds_read_b32 v2, v4
        s_waitcnt lgkmcnt(0)
        v_readfirstlane_b32 s{S_ROLE}, v2
        s_mul_i32 s{S_ROLE}, s{S_ROLE}, 7
        s_add_u32 s{S_ROLE}, s{S_ROLE}, s78
        s_cmp_ge_u32 s{S_ROLE}, 128
        s_cbranch_scc1 L_exit
        """)
    a(f"""
    v_mbcnt_lo_u32_b32 v{LN}, -1, 0
    v_mbcnt_hi_u32_b32 v{LN}, -1, v{LN}
    s_load_dwordx2 s[4:5], s[0:1], 0
    s_lshr_b32 s{A_SEG}, s{S_ROLE}, 1
    s_and_b32 s{A_Z}, s{S_ROLE}, 1
    """)
    common_addrs(a, V, LN)
    a(f"""
    v_lshlrev_b32 v{V['l16']}, 4, v{LN}
    s_waitcnt lgkmcnt(0)
    """)
    prep.srd(a, A_XS, 4, 2048*896)
    q, g, t = LN+1, LN+2, LN+3
    a(f"""
    v_and_b32 v{q}, 15, v{LN}
    v_lshrrev_b32 v{g}, 4, v{LN}
    s_lshl_b32 s{S_T0}, s{A_Z}, 4
    v_add_u32 v{t}, s{S_T0}, v{q}
    v_lshlrev_b32 v{t+1}, 2, v{g}
    v_mov_b32 v{t+2}, 0
    v_mov_b32 v{t+3}, 0xff800000
    """)
    for k in range(8):
        a(f"""
        v_add_u32 v{t+4}, {(k>>2)*16 + (k&3)}, v{t+1}
        v_cmp_gt_u32 vcc, v{t+4}, v{t}
        v_cndmask_b32 v{4+k}, v{t+2}, v{t+3}, vcc
        """)
    rt(0)
    a(f"""
    s_lshl_b32 s{A_S0}, s{A_SEG}, 7
    s_add_u32 s{A_S0}, s{A_S0}, {L.CNT_T}
    """)
    if cfg['flags']: wait_cnt(a, A_S0, 28, t)
    if cfg['ring']:
        a(f's_sub_u32 s{A_S0}, s{A_S0}, {L.CNT_T - L.CNT_U}')
        wait_cnt(a, A_S0, 28, t)
    a(f"""
    s_mul_i32 s{A_S0}, s{A_SEG}, 28672
    s_mul_i32 s{A_S1}, s{S_WAVE}, 7168
    s_add_u32 s{A_S0}, s{A_S0}, s{A_S1}
    s_add_u32 s{A_S0}, s{A_S0}, {L.XN}
    s_add_u32 s{A_S1}, s{A_S1}, {AL_X}
    """)
    dma_run(a, 7, V['l16'], A_S0, A_S1, cfg.get('wfl', ''))
    a(f"""
    s_mul_i32 s{A_TX}, s{A_SEG}, 458752
    s_mov_b32 s{A_U}, s{A_TX}
    s_mul_i32 s{S_T0}, s{S_WAVE}, {4*28672}
    s_add_u32 s{A_TX}, s{A_TX}, s{S_T0}
    s_mul_i32 s{S_T0}, s{A_Z}, 14336
    s_add_u32 s{A_TX}, s{A_TX}, s{S_T0}
    s_add_u32 s{A_TX}, s{A_TX}, {L.TX}
    s_mul_i32 s{S_T0}, s{S_WAVE}, {7*16384}
    s_add_u32 s{A_U}, s{A_U}, s{S_T0}
    s_add_u32 s{A_U}, s{A_U}, {L.U}
    """)
    def load_tx():
        for hl in range(4):
            a(f's_add_u32 s{S_T0}, s{A_TX}, {hl*28672}')
            load_1k_run(a, [TXV(hl, kb) for kb in range(14)], V['l16'], S_T0, xfl)
    load_tx()
    a('s_waitcnt vmcnt(56)\ns_barrier')
    KF = 64; SC = 176; LM = 48
    for kt in range(2):
        for kb in range(14):
            a(f"ds_read_b128 v[{KF+(kt*14+kb)*4}:{KF+(kt*14+kb)*4+3}], v{V['l16']} offset:{AL_X+kt*14336+kb*1024}")
    a('s_waitcnt lgkmcnt(0)')
    NRG = 24; AL_R = 57344
    vq = Q('vmcnt', 63)
    for hl in range(4):
        for kb in range(14): vq.issue(('tx', hl))
    def udma(i):
        vq.issue(i)
        return (f's_add_u32 m0, s{A_S1}, {(i % NRG)*1024}\ns_add_u32 s{S_T1}, s{A_U}, {i*1024}\n'
                f"buffer_load_dwordx4 v{V['l16']}, {WSRD}, s{S_T1} offen {xfl} lds")
    if cfg['ring']:
        a(f"s_mul_i32 s{A_S1}, s{S_WAVE}, {NRG*1024}\ns_add_u32 s{A_S1}, s{A_S1}, {AL_R}\nv_add_u32 v63, s{A_S1}, v{V['l16']}")
    for hl in range(4):
        a(vq.wait(('tx', hl)))
        if cfg['ring'] and hl < 2:
            for i in range(12*hl, 12*hl+12): a(udma(i))
        for kb in range(14):
            for kt in range(2):
                c = SC + (hl*2+kt)*4; k = KF+(kt*14+kb)*4
                a(f'v_mfma_f32_16x16x32_bf16 v[{c}:{c+3}], v[{k}:{k+3}], {TXV(hl,kb)}, ' + ('0' if kb == 0 else f'v[{c}:{c+3}]'))
    NR = 56
    def uload(i):
        o = []
        if i % 4 == 0: o.append(f's_add_u32 s{S_T1}, s{A_U}, {i*1024}')
        r = (i % NR)*4
        o.append(f"buffer_load_dwordx4 a[{r}:{r+3}], v{V['l16']}, {WSRD}, s{S_T1} offen offset:{(i%4)*1024} {xfl}")
        vq.issue(i)
        return '\n'.join(o)
    if not cfg['ring']:
        a(f"""
        s_lshl_b32 s{A_S0}, s{A_SEG}, 7
        s_add_u32 s{A_S0}, s{A_S0}, {L.CNT_U}
        """)
        if cfg['flags']: wait_cnt(a, A_S0, 28, t)
        vq.drain()
        a('s_nop 7')
        for i in range(NR): a(uload(i))
    T = 208
    for hl in range(4):
        c = SC + hl*8
        for k in range(8): a(f'v_add_f32 v{c+k}, v{c+k}, v{4+k}')
        a(f"""
        v_max3_f32 v{LM+hl}, v{c}, v{c+1}, v{c+2}
        v_max3_f32 v{LM+hl}, v{LM+hl}, v{c+3}, v{c+4}
        v_max3_f32 v{LM+hl}, v{LM+hl}, v{c+5}, v{c+6}
        v_max_f32 v{LM+hl}, v{LM+hl}, v{c+7}
        """)
        xlane4(a, 'v_max_f32', LM+hl, T)
        for k in range(8): a(f'v_sub_f32 v{c+k}, v{c+k}, v{LM+hl}')
        for k in range(8): a(f'v_exp_f32 v{c+k}, v{c+k}')
        s = LM+4+hl
        a(f'v_add_f32 v{s}, v{c}, v{c+1}')
        for k in range(2, 8): a(f'v_add_f32 v{s}, v{s}, v{c+k}')
        xlane4(a, 'v_add_f32', s, T)
        for k in range(4): a(f'v_cvt_pk_bf16_f32 v{T+4+(0, 2, 1, 3)[k]}, v{c+2*k}, v{c+2*k+1}')
        if hl == 0:
            a(f"s_lshl_b32 s{S_T0}, s{S_WAVE}, 12\nv_add_u32 v{LN+1}, s{S_T0}, v{V['l16']}")
        a(f'ds_write_b128 v{LN+1}, v[{T+4}:{T+7}] offset:{AL_E+hl*1024}')
    a('s_waitcnt lgkmcnt(0)\ns_barrier')
    EF = 12; OA = 28
    oacc = [28, 32, 36, 56]
    lq = Q('lgkmcnt', 15)
    def eread(i):
        r = EF + (i % 4)*4
        lq.issue(i)
        return f"ds_read_b128 v[{r}:{r+3}], v{V['l16']} offset:{AL_E+(i%16)*1024}"
    for i in range(3): a(eread(i))
    def opost(i):
        c, h = i // 16, i % 16
        k, r = oreg(h >> 1, c); r += 2*(h & 1); A = oacc[i % 4]
        if k == 'v':
            return [f'v_cvt_pk_bf16_f32 v{r}, v{A}, v{A+1}', f'v_cvt_pk_bf16_f32 v{r+1}, v{A+2}, v{A+3}']
        return [f'v_cvt_pk_bf16_f32 v{A}, v{A}, v{A+1}', f'v_cvt_pk_bf16_f32 v{A+2}, v{A+2}, v{A+3}',
                f'v_accvgpr_write_b32 a{r}, v{A}', f'v_accvgpr_write_b32 a{r+1}, v{A+2}']
    if cfg['ring']:
        UR = [4, 8, 44]
        def rd(i):
            w_ = vq.wait(i)
            if w_: a(w_)
            a(f'ds_read_b128 v[{UR[i%3]}:{UR[i%3]+3}], v63 offset:{(i % NRG)*1024}'); lq.issue(('u', i))
        for i in range(2): rd(i)
        for i in range(112):
            for w in (lq.wait(i), lq.wait(('u', i))):
                if w: a(w)
            A = oacc[i % 4]; e = EF + (i % 4)*4; u = UR[i % 3]
            a(f'v_mfma_f32_16x16x32_bf16 v[{A}:{A+3}], v[{e}:{e+3}], v[{u}:{u+3}], 0')
            if i + NRG < 112: a(udma(i + NRG))
            if i + 2 < 112: rd(i+2)
            if i + 3 < 112: a(eread(i+3))
            if i >= 3:
                for x in opost(i-3): a(x)
    else:
      for i in range(112):
        for w in (vq.wait(i), lq.wait(i)):
            if w: a(w)
        A = oacc[i % 4]; e = EF + (i % 4)*4; u = (i % NR)*4
        a(f'v_mfma_f32_16x16x32_bf16 v[{A}:{A+3}], v[{e}:{e+3}], a[{u}:{u+3}], 0')
        if i + 3 < 112: a(eread(i+3))
        if i >= 3:
            for x in opost(i-3): a(x)
        if i >= 1 and i - 1 + NR < 112: a(uload(i-1+NR))
    for i in range(109, 112):
        for x in opost(i): a(x)
    a('s_nop 7')
    if not cfg['ring']: load_tx()
    XR = 4
    xreg = lambda c: (4 + 2*c) if c < 4 else (56 + 2*(c-4))
    a(f"""
    v_and_b32 v{q}, 15, v{LN}
    v_lshrrev_b32 v{g}, 4, v{LN}
    v_mul_u32_u24 v{t}, 896, v{q}
    v_lshl_add_u32 v{t}, v{g}, 3, v{t}
    s_mul_i32 s{S_T0}, s{S_ROLE}, {16*896}
    s_mul_i32 s{S_T1}, s{S_WAVE}, 224
    s_add_u32 s{S_T0}, s{S_T0}, s{S_T1}
    """)
    for c in range(7):
        a(f'buffer_load_dwordx2 v[{xreg(c)}:{xreg(c)+1}], v{t}, s[{A_XS}:{A_XS+3}], s{S_T0} offen offset:{c*32}')
    MK = 62
    a(f"""
    v_and_b32 v{t+1}, 1, v{q}
    v_lshlrev_b32 v{t+1}, 4, v{t+1}
    v_mov_b32 v{t+2}, 0xffff
    v_lshlrev_b32 v{t+2}, v{t+1}, v{t+2}
    v_lshrrev_b32 v{t+1}, 1, v{q}
    v_lshlrev_b32 v{t+3}, 1, v{g}
    v_mov_b32 v{t+4}, 0
    v_cmp_eq_u32 vcc, v{t+1}, v{t+3}
    v_add_u32 v{t+3}, 1, v{t+3}
    v_cndmask_b32 v{MK}, v{t+4}, v{t+2}, vcc
    v_cmp_eq_u32 vcc, v{t+1}, v{t+3}
    s_lshl_b32 s{S_MOFF}, s{A_SEG}, 13
    s_add_u32 s{S_MOFF}, s{S_MOFF}, {L.MB_Y}
    v_cndmask_b32 v{MK+1}, v{t+4}, v{t+2}, vcc
    """)
    rt(1)
    a('s_waitcnt vmcnt(40)')
    a(f's_mov_b32 s{A_S0}, {L.CNT_I2}')
    wait_cnt(a, A_S0, 98, mf)
    a(f"""
    s_lshl_b32 s{A_S0}, s78, 7
    s_add_u32 s{A_S0}, s{A_S0}, {L.CNT_G}
    buffer_load_dword v{mf+1}, v{mf}, {WSRD}, s{A_S0} offen sc1
    s_add_u32 s{S_T1}, s78, 1
    s_waitcnt vmcnt(0)
    v_readfirstlane_b32 s{S_T0}, v{mf+1}
    s_cmp_eq_u32 s{S_T0}, 14
    s_cselect_b32 s{S_FAST}, 1, 0
    s_cmp_eq_u32 s{S_T1}, s{S_XCC}
    s_cselect_b32 s{S_FAST}, s{S_FAST}, 0
    s_cmp_ge_u32 s{S_ROLE}, {cfg.get('qfast', 114)}
    s_cselect_b32 s{S_FAST}, s{S_FAST}, 0
    """)
    def both(emit):
        l1 = a.newlabel('A_sf'); l2 = a.newlabel('A_sj')
        a(f's_cmp_eq_u32 s{S_FAST}, 0\ns_cbranch_scc1 {l1}')
        emit('')
        a(f'{l2}:')
        def c():
            a.label(l1); emit(xfl); a(f's_branch {l2}')
        a.cold.append(c)
    fl = a.newlabel('A_far'); fd = a.newlabel('A_near')
    a(f"""
    s_cmp_eq_u32 s{A_SEG}, 0
    s_cbranch_scc1 {fd}
    s_sub_u32 s{A_S0}, s{S_MOFF}, 8192
    s_mov_b32 s{S_SPIN}, 0
    v_mov_b32 v{mf}, 0
{fl}:
    buffer_load_dword v{mf+1}, v{mf}, {WSRD}, s{A_S0} offen sc1
    s_add_u32 s{S_SPIN}, s{S_SPIN}, 1
    s_waitcnt vmcnt(0)
    v_cmp_eq_u32 vcc, -1, v{mf+1}
    s_cbranch_vccz {fd}
    s_sleep {cfg['asleep']}
    s_cmp_lt_u32 s{S_SPIN}, s{S_LIM}
    s_cbranch_scc1 {fl}
{fd}:
    """)
    poll_m(a, V, sleep=1)
    rt(2)
    lq = Q('lgkmcnt', 15)
    for b in range(7):
        for hf in range(2):
            a(f"ds_read_b64_tr_b16 v[{mf+4*b+2*hf}:{mf+4*b+2*hf+1}], v{V['l8']} offset:{AL_M+b*1024+hf*512}")
            lq.issue(b)
    SA = 40
    for half in range(2):
        for k in range(4): a(f'v_mov_b64 v[{SA+2*k}:{SA+2*k+1}], 0')
        for b in range(7):
            w = lq.wait(b)
            if w: a(w)
            for hh in range(2):
                a(SM(SA+4*hh, mf+4*b, TX8(2*half+hh, b), V['idx']))
        if half == 0:
            for hh in range(2):
                A = SA+4*hh
                a(f'v_add_f32 v{A}, v{A}, v{A+2}\nv_add_f32 v{A+1}, v{A+1}, v{A+3}')
                a(f'v_accvgpr_write_b32 a{2*hh}, v{A}\nv_accvgpr_write_b32 a{2*hh+1}, v{A+1}')
    S = 12
    for hh in range(2):
        A = SA+4*hh
        a(f'v_add_f32 v{S+4+2*hh}, v{A}, v{A+2}\nv_add_f32 v{S+5+2*hh}, v{A+1}, v{A+3}')
    for k in range(4): a(f'v_accvgpr_read_b32 v{S+k}, a{k}')
    PRB = 1
    a(f"""
    s_mul_i32 s{A_S0}, s{A_SEG}, 114688
    s_mul_i32 s{A_S1}, s{S_WAVE}, 28672
    s_add_u32 s{A_S0}, s{A_S0}, s{A_S1}
    s_add_u32 s{A_S0}, s{A_S0}, {L.VM}
    v_min_u32 v{PRB}, {27*16}, v{V['l16']}
    v_lshlrev_b32 v{PRB}, 6, v{PRB}
    buffer_load_dword v{PRB}, v{PRB}, {WSRD}, s{A_S0} offen sc1
    """)
    MX, TT, FX, Z = 20, 24, 28, 32
    H4 = range(4)
    def x4(op, x):
        for h in H4: a(f'v_mov_b32 v{TT+h}, v{x+h}')
        for h in H4: a(f'v_permlane16_swap_b32 v{x+h}, v{TT+h}')
        for h in H4: a(f'{op} v{x+h}, v{x+h}, v{TT+h}')
        for h in H4: a(f'v_mov_b32 v{TT+h}, v{x+h}')
        for h in H4: a(f'v_permlane32_swap_b32 v{x+h}, v{TT+h}')
        for h in H4: a(f'{op} v{x+h}, v{x+h}, v{TT+h}')
    for h in H4: a(f'v_max3_f32 v{MX+h}, v{S+2*h}, v{S+2*h+1}, v{LM+h}')
    x4('v_max_f32', MX)
    for h in H4: a(f'v_sub_f32 v{S+2*h}, v{S+2*h}, v{MX+h}\nv_sub_f32 v{S+2*h+1}, v{S+2*h+1}, v{MX+h}\nv_sub_f32 v{FX+h}, v{LM+h}, v{MX+h}')
    for h in H4: a(f'v_exp_f32 v{S+2*h}, v{S+2*h}\nv_exp_f32 v{S+2*h+1}, v{S+2*h+1}\nv_exp_f32 v{FX+h}, v{FX+h}')
    for h in H4: a(f'v_add_f32 v{Z+h}, v{S+2*h}, v{S+2*h+1}')
    x4('v_add_f32', Z)
    for h in H4: a(f'v_fmac_f32 v{Z+h}, v{FX+h}, v{LM+4+h}')
    for h in H4: a(f'v_rcp_f32 v{Z+h}, v{Z+h}')
    for h in H4: a(f'v_mul_f32 v{S+2*h}, v{S+2*h}, v{Z+h}\nv_mul_f32 v{S+2*h+1}, v{S+2*h+1}, v{Z+h}\nv_mul_f32 v{FX+h}, v{FX+h}, v{Z+h}')
    PM = 36; DG = 40
    for h in H4: a(f'v_cvt_pk_bf16_f32 v{PM+h}, v{S+2*h}, v{S+2*h+1}\nv_cvt_pk_bf16_f32 v{FX+h}, v{FX+h}, v{FX+h}')
    for h in H4: a(f'v_and_b32 v{DG+2*h}, v{FX+h}, v{MK}\nv_and_b32 v{DG+2*h+1}, v{FX+h}, v{MK+1}')
    a(f"""
    s_mul_i32 s{S_T0}, s{S_WAVE}, 3072
    v_add_u32 v{MX}, s{S_T0}, v{V['l16']}
    ds_write_b128 v{MX}, v[{DG}:{DG+3}] offset:{AL_E}
    ds_write_b128 v{MX}, v[{DG+4}:{DG+7}] offset:{AL_E+1024}
    ds_write_b128 v{MX}, v[{PM}:{PM+3}] offset:{AL_E+2048}
    s_waitcnt vmcnt(0) lgkmcnt(0)
    s_barrier
    """)
    a(f"""
    s_mul_i32 s{A_S0}, s{A_SEG}, 114688
    s_mul_i32 s{A_S1}, s{S_WAVE}, 28672
    s_add_u32 s{A_S0}, s{A_S0}, s{A_S1}
    s_add_u32 s{A_S0}, s{A_S0}, {L.VM}
    s_mov_b32 s{A_U}, 0
    s_mov_b32 s{S_SPIN}, 0
    v_min_u32 v40, {27*16}, v{V['l16']}
    v_lshlrev_b32 v40, 6, v40
    v_mov_b32 v41, v{PRB}
    """)
    CF = 128
    for k in range(12):
        a(f"ds_read_b128 a[{CF+4*k}:{CF+4*k+3}], v{V['l16']} offset:{AL_E+k*1024}")
    cfd = lambda p: CF + 4*((p >> 1)*3 + (p & 1))
    cfm = lambda u: CF + 4*(u*3 + 2)
    FA = 12
    VFa = 8; HP = 64; HF = 80; KP = 240
    vl = a.newlabel('A_vl'); vd = a.newlabel('A_vd'); vg = a.newlabel('A_vg'); vr_ = a.newlabel('A_vr')
    a(f'v_cmp_eq_u32 vcc, -1, v41\ns_cbranch_vccz {vg}')
    wait_hint(a, 40, A_S0, [41, 42, 43], gap=15, inner=15)
    a(f'{vg}:\ns_mov_b32 s{S_SPIN}, 0')
    rt(3)
    sub = Asm()
    sub(f's_mov_b32 s{A_S1}, s{A_S0}')
    load_1k_run(sub, [f'a[{VFa+4*k}:{VFa+4*k+3}]' for k in range(28)], V['l16'], A_S1, xfl)
    lds_ = [x.text for _, x in sub.items]
    def take(n):
        while lds_ and n > 0:
            x = lds_.pop(0); a(x)
            if x.startswith('buffer'): n -= 1
    take(6)
    a('s_waitcnt lgkmcnt(0)')
    i_ = 0
    for p in range(8):
        for c in range(7):
            k, r = oreg(p, c); A = FA + 4*c
            a(f'v_mfma_f32_16x16x32_bf16 v[{A}:{A+3}], {k}[{r}:{r+3}], a[{cfd(p)}:{cfd(p)+3}], ' + ('0' if p == 0 else f'v[{A}:{A+3}]'))
            i_ += 1
            if i_ % 4 == 0: take(1)
    take(28)
    def coldv():
        a(f'{vl}:')
        for _, x in sub.items: a(x.text)
        a(f's_branch {vr_}')
    a.cold.append(coldv)
    a(f'{vr_}:\ns_add_u32 s{S_SPIN}, s{S_SPIN}, 1')
    rt(4)
    def tile_epi(c):
        A = KP + 4*(c & 1); x = xreg(c)
        for k in range(2):
            a(f"""
            v_cvt_pk_bf16_f32 v{A+2*k}, v{A+2*k}, v{A+2*k+1}
            v_and_b32 v{A+2*k+1}, 0xffff0000, v{A+2*k}
            v_lshlrev_b32 v{A+2*k}, 16, v{A+2*k}
            v_lshlrev_b32 v{HF+4*c+2*k}, 16, v{x+k}
            v_and_b32 v{HF+4*c+2*k+1}, 0xffff0000, v{x+k}
            v_pk_add_f32 v[{A+2*k}:{A+2*k+1}], v[{A+2*k}:{A+2*k+1}], v[{HF+4*c+2*k}:{HF+4*c+2*k+1}]
            v_cvt_pk_bf16_f32 v{HP+2*c+k}, v{A+2*k}, v{A+2*k+1}
            v_lshlrev_b32 v{HF+4*c+2*k}, 16, v{HP+2*c+k}
            v_and_b32 v{HF+4*c+2*k+1}, 0xffff0000, v{HP+2*c+k}
            """)
    for c in range(7):
        a(f's_waitcnt vmcnt({4*(6-c)})')
        for u in range(4):
            A = KP + 4*(c & 1); r = VFa + 4*(c*4+u)
            a(f'v_mfma_f32_16x16x32_bf16 v[{A}:{A+3}], a[{r}:{r+3}], a[{cfm(u)}:{cfm(u)+3}], v[{FA+4*c if u == 0 else A}:{(FA+4*c if u == 0 else A)+3}]')
            a(f'v_accvgpr_read_b32 v{44+u}, a{r}')
        a(f'v_max_u32 v43, v44, v45' if c == 0 else f'v_max3_u32 v43, v43, v44, v45')
        a(f'v_max3_u32 v43, v43, v46, v47')
        if c: tile_epi(c-1)
    a(f"""
    v_cmp_eq_u32 vcc, -1, v43
    s_cbranch_vccz {vd}
    s_cmp_lt_u32 s{S_SPIN}, s{S_LIM}
    s_cbranch_scc1 {vl}
    s_mov_b32 s{S_LIM}, 1
{vd}:
    """)
    tile_epi(6)
    rt(5)
    a(f"""
    s_mul_i32 s{A_S0}, s{S_ROLE}, 14336
    s_mul_i32 s{S_T0}, s{S_WAVE}, 3584
    s_add_u32 s{A_S1}, s{A_S0}, s{S_T0}
    s_add_u32 s{A_S1}, s{A_S1}, {L.HB}
    """)
    def st_h(fl):
        for c in range(7):
            a(f"buffer_store_dwordx2 v[{HP+2*c}:{HP+2*c+1}], v{V['l8']}, {WSRD}, s{A_U} offen offset:{c*512} {fl}")
    a(f's_mov_b32 s{A_U}, s{A_S1}')
    s0, nm, d0, st = 40, 42, 44, 48
    a(f'v_pk_add_f32 v[{s0}:{s0+1}], v[{HF}:{HF+1}], v[{HF+2}:{HF+3}]')
    for i in range(2, 14): a(f'v_pk_add_f32 v[{s0}:{s0+1}], v[{s0}:{s0+1}], v[{HF+2*i}:{HF+2*i+1}]')
    a(f'v_add_f32 v{s0}, v{s0}, v{s0+1}')
    xlane4(a, 'v_add_f32', s0, d0)
    a(f'v_mul_f32 v{nm}, 0xbc124925, v{s0}\nv_mul_f32 v{nm+1}, 0xbc124925, v{s0}')
    for i in range(14):
        d = d0 + 2*(i & 1)
        a(f'v_pk_add_f32 v[{d}:{d+1}], v[{HF+2*i}:{HF+2*i+1}], v[{nm}:{nm+1}]')
        a(f'v_pk_mul_f32 v[{s0}:{s0+1}], v[{d}:{d+1}], v[{d}:{d+1}]' if i == 0 else f'v_pk_fma_f32 v[{s0}:{s0+1}], v[{d}:{d+1}], v[{d}:{d+1}], v[{s0}:{s0+1}]')
    a(f'v_add_f32 v{nm+1}, v{s0}, v{s0+1}')
    xlane4(a, 'v_add_f32', nm+1, d0)
    a(f"""
    s_lshl_b32 s{S_T0}, s{S_WAVE}, 9
    v_add_u32 v{d0}, s{S_T0}, v{V['l8']}
    ds_write_b64 v{d0}, v[{nm}:{nm+1}] offset:{AL_ST}
    s_waitcnt lgkmcnt(0)
    s_barrier
    """)
    for k in range(4): a(f"ds_read_b64 v[{st+2*k}:{st+2*k+1}], v{V['l8']} offset:{AL_ST+k*512}")
    rs = 46
    a(f"""
    s_waitcnt lgkmcnt(0)
    v_add_f32 v{nm}, v{st}, v{st+2}
    v_add_f32 v{d0}, v{st+4}, v{st+6}
    v_add_f32 v{nm}, v{nm}, v{d0}
    v_mul_f32 v{nm}, 0.25, v{nm}
    v_add_f32 v{rs}, v{st+1}, v{st+3}
    v_add_f32 v{d0}, v{st+5}, v{st+7}
    v_add_f32 v{rs}, v{rs}, v{d0}
    v_sub_f32 v{st}, v{st}, v{nm}
    v_sub_f32 v{st+2}, v{st+2}, v{nm}
    v_sub_f32 v{st+4}, v{st+4}, v{nm}
    v_sub_f32 v{st+6}, v{st+6}, v{nm}
    v_mul_f32 v{d0}, v{st}, v{st}
    v_fmac_f32 v{d0}, v{st+2}, v{st+2}
    v_fmac_f32 v{d0}, v{st+4}, v{st+4}
    v_fmac_f32 v{d0}, v{st+6}, v{st+6}
    v_fmac_f32 v{rs}, 0x42e00000, v{d0}
    v_mul_f32 v{rs}, 0x3b124925, v{rs}
    """)
    prep.ln_stats_finish(a, nm, rs, d0)
    a(f'v_mov_b32 v{nm+1}, v{nm}\nv_mov_b32 v{rs+1}, v{rs}')
    NP = 108
    for i in range(14):
        u = HF+2*i
        a(f"""
        v_pk_add_f32 v[{u}:{u+1}], v[{u}:{u+1}], v[{nm}:{nm+1}]
        v_cvt_pk_bf16_f32 v{NP+i}, v{u}, v{u+1}
        v_lshlrev_b32 v{u}, 16, v{NP+i}
        v_and_b32 v{u+1}, 0xffff0000, v{NP+i}
        v_pk_mul_f32 v[{u}:{u+1}], v[{u}:{u+1}], v[{rs}:{rs+1}]
        v_cvt_pk_bf16_f32 v{NP+i}, v{u}, v{u+1}
        """)
    a(f"""
    s_mul_i32 s{S_T0}, s{S_WAVE}, 3072
    s_add_u32 s{A_S0}, s{A_S0}, {L.HN}
    s_add_u32 s{A_S1}, s{A_S0}, s{S_T0}
    s_lshr_b32 s{S_T0}, s{S_WAVE}, 1
    s_lshl_b32 s{S_T0}, s{S_T0}, 10
    s_and_b32 s{S_T1}, s{S_WAVE}, 1
    s_lshl_b32 s{S_T1}, s{S_T1}, 3
    s_add_u32 s{S_T0}, s{S_T0}, s{S_T1}
    s_add_u32 s{A_S0}, s{A_S0}, s{S_T0}
    s_add_u32 s{A_S0}, s{A_S0}, 12288
    """)
    def st_n(fl):
        for i in range(3):
            a(f"buffer_store_dwordx4 v[{NP+4*i}:{NP+4*i+3}], v{V['l16']}, {WSRD}, s{A_S1} offen offset:{i*1024} {fl}")
        a(f"buffer_store_dwordx2 v[{NP+12}:{NP+13}], v{V['l16']}, {WSRD}, s{A_S0} offen {fl}")
        st_h(fl)
    both(st_n)
    rt(6)
    if cfg.get('diag'):
        rt(7)
        a(f's_waitcnt lgkmcnt(0)\ns_lshl_b32 s{A_S0}, s{S_ROLE}, 6\ns_add_u32 s{A_S0}, s{A_S0}, {L.STAMP + 0x90000}')
        for k in range(8): a(f'v_writelane_b32 v6, s{60+2*k}, {k}')
        a(f"v_lshrrev_b32 v7, 1, v{V['l8']}\ns_mov_b64 exec, 255\nbuffer_store_dword v6, v7, {WSRD}, s{A_S0} offen\ns_mov_b64 exec, -1")
    if cfg.get('ticket'): a('s_branch A_top')
    a.flush_cold()
```

```python
from asmlib import *
import layout as L
from team import *
from attn import dma_run
import prep

F_J = 36; F_Q = 37; F_S0 = 38; F_S1 = 39; F_C = 40; F_G = 41; F_W = 44; F_OUT = 48
CT_PAIRS = [(7*w+2*i, 7*w+2*i+1) for w in range(4) for i in range(3)] + [(6, 13), (20, 27)]
W1S = 272
FL_RED = 0
FL_HN = 8192

def ffn_role(a, cfg, ngroups):
    xfl = cfg['xflags']
    LN, l16, l8 = 1, 2, 3
    def rt(k):
        if cfg.get('diag'): a(f's_memrealtime s[{60+2*k}:{61+2*k}]')
    a(f"""
    v_mbcnt_lo_u32_b32 v{LN}, -1, 0
    v_mbcnt_hi_u32_b32 v{LN}, -1, v{LN}
    s_load_dwordx4 s[4:7], s[0:1], 64
    s_load_dwordx2 s[52:53], s[0:1], 80
    s_mov_b32 s{S_LIM}, {SPIN_MAX*8}
    v_lshlrev_b32 v{l16}, 4, v{LN}
    v_lshlrev_b32 v{l8}, 3, v{LN}
    s_lshl_b32 s{S_T0}, s{S_WAVE}, 6
    v_add_u32 v0, s{S_T0}, v{LN}
    s_waitcnt lgkmcnt(0)
    """)
    a(f"""
    v_mov_b32 v12, -1
    v_mov_b32 v13, -1
    v_mov_b32 v14, -1
    v_mov_b32 v15, -1
    s_mul_i32 s{F_C}, s{F_Q}, 14
    s_add_u32 s{F_C}, s{F_C}, s{F_J}
    s_lshl_b32 s{F_C}, s{F_C}, 2
    s_add_u32 s{F_C}, s{F_C}, s{S_WAVE}
    s_lshl_b32 s{F_C}, s{F_C}, 10
    s_add_u32 s{F_C}, s{F_C}, {L.VM}
F_fill:
    buffer_store_dwordx4 v[12:15], v{l16}, {WSRD}, s{F_C} offen sc1
    s_add_u32 s{F_C}, s{F_C}, {ngroups*56*1024}
    s_cmp_lt_u32 s{F_C}, {L.VM + 64*114688}
    s_cbranch_scc1 F_fill
    s_mov_b32 s{S_T0}, {L.CNT_I}
    v_mov_b32 v8, 0
    v_mov_b32 v9, 1
    s_cmp_lg_u32 s{S_WAVE}, 0
    s_waitcnt vmcnt(0)
    s_barrier
    s_cbranch_scc1 F_fill1
    s_mov_b64 exec, 1
    buffer_atomic_add v9, v8, {WSRD}, s{S_T0} offen
    s_mov_b64 exec, -1
F_fill1:
    """)
    def fill2():
        a(f"""
        s_mov_b32 s{F_S0}, {L.MB_Y + 8192}
        s_mov_b32 s{S_SPIN}, 0
F_go:
        buffer_load_dword v10, v8, {WSRD}, s{F_S0} offen sc1
        s_add_u32 s{S_SPIN}, s{S_SPIN}, 1
        s_waitcnt vmcnt(0)
        v_cmp_eq_u32 vcc, -1, v10
        s_cbranch_vccz F_god
        s_sleep 16
        s_cmp_lt_u32 s{S_SPIN}, s{S_LIM}
        s_cbranch_scc1 F_go
F_god:
        s_lshl_b32 s{F_S0}, s{F_J}, 2
        s_add_u32 s{F_S0}, s{F_S0}, s{S_WAVE}
        s_lshl_b32 s{F_S0}, s{F_S0}, 10
        s_mul_i32 s{S_T0}, s{F_Q}, 57344
        s_add_u32 s{F_S0}, s{F_S0}, s{S_T0}
        s_add_u32 s{F_S0}, s{F_S0}, {L.HID}
        s_mul_i32 s{F_S1}, s{F_Q}, 14336
        s_lshl_b32 s{S_T0}, s{F_J}, 10
        s_add_u32 s{F_S1}, s{F_S1}, s{S_T0}
        s_cmp_eq_u32 s{S_WAVE}, 0
        s_cselect_b32 s{S_T0}, {L.HN - L.HB}, 0
        s_add_u32 s{F_S1}, s{F_S1}, s{S_T0}
        s_add_u32 s{F_S1}, s{F_S1}, {L.HB}
        s_mov_b32 s{S_T1}, s{F_Q}
F_fill2:
        buffer_store_dwordx4 v[12:15], v{l16}, {WSRD}, s{F_S0} offen sc1
        s_cmp_ge_u32 s{S_WAVE}, 2
        s_cbranch_scc1 F_fill3
        buffer_store_dwordx4 v[12:15], v{l16}, {WSRD}, s{F_S1} offen sc1
F_fill3:
        s_add_u32 s{F_S0}, s{F_S0}, {ngroups*57344}
        s_add_u32 s{F_S1}, s{F_S1}, {ngroups*14336}
        s_add_u32 s{S_T1}, s{S_T1}, {ngroups}
        s_cmp_lt_u32 s{S_T1}, 128
        s_cbranch_scc1 F_fill2
        s_add_u32 s{S_T1}, s{F_Q}, 1
        s_cmp_eq_u32 s{S_XCC}, s{S_T1}
        s_cselect_b32 s{S_T1}, 1, 0x10001
        s_lshl_b32 s{F_G}, s{F_Q}, 7
        s_add_u32 s{F_G}, s{F_G}, {L.CNT_G}
        s_mov_b32 s{S_T0}, {L.CNT_I2}
        v_mov_b32 v11, 1
        v_mov_b32 v10, s{S_T1}
        s_cmp_lg_u32 s{S_WAVE}, 0
        s_waitcnt vmcnt(0)
        s_barrier
        s_cbranch_scc1 F_fill4
        s_mov_b64 exec, 1
        buffer_atomic_add v11, v8, {WSRD}, s{S_T0} offen
        buffer_atomic_add v10, v8, {WSRD}, s{F_G} offen
        s_mov_b64 exec, -1
F_fill4:
        """)
    prep.srd(a, F_W, 4, 448*3584)
    prep.srd(a, F_OUT, 52, 2048*896)
    a(f"""
    v_lshrrev_b32 v4, 4, v0
    v_and_b32 v5, 15, v0
    v_mul_u32_u24 v6, 3584, v4
    v_lshl_add_u32 v6, v5, 4, v6
    v_mul_u32_u24 v7, {W1S}, v4
    v_lshl_add_u32 v7, v5, 4, v7
    v_add_u32 v9, {14*16*W1S}, v7
    s_lshl_b32 s{F_S0}, s{F_J}, 8
    """)
    for k in range(28):
        a(f'buffer_load_dwordx4 v[{16+4*k}:{16+4*k+3}], v6, s[{F_W}:{F_W+3}], s{F_S0} offen\ns_add_u32 s{F_S0}, s{F_S0}, {16*3584}')
    prep.srd(a, F_W, 6, 1792*896)
    a(f"""
    v_lshrrev_b32 v4, 2, v0
    v_and_b32 v5, 3, v0
    v_mul_u32_u24 v6, 896, v4
    v_lshl_add_u32 v6, v5, 4, v6
    v_lshlrev_b32 v8, 5, v4
    v_and_b32 v5, 1, v0
    v_lshl_add_u32 v8, v5, 4, v8
    v_bfe_u32 v5, v0, 1, 1
    v_mul_u32_u24 v5, 57344, v5
    v_add_u32 v8, v8, v5
    s_lshl_b32 s{F_S0}, s{F_J}, 6
    """)
    for k in range(28):
        a(f'buffer_load_dwordx4 v[{128+4*k}:{128+4*k+3}], v6, s[{F_W}:{F_W+3}], s{F_S0} offen\ns_add_u32 s{F_S0}, s{F_S0}, {64*896}')
    for k in range(28):
        a(f's_waitcnt vmcnt({55-k})\nds_write_b128 v{7 if k < 14 else 9}, v[{16+4*k}:{16+4*k+3}] offset:{(k%14)*16*W1S}')
    a(f"""
    v_lshrrev_b32 v4, 2, v{LN}
    v_mul_u32_u24 v4, {W1S}, v4
    v_and_b32 v5, 3, v{LN}
    v_lshl_add_u32 v4, v5, 3, v4
    s_lshl_b32 s{S_T0}, s{S_WAVE}, 6
    v_add_u32 v4, s{S_T0}, v4
    v_add_u32 v10, {14*16*W1S}, v4
    s_mul_i32 s{S_T0}, s{S_WAVE}, 14336
    v_add_u32 v5, s{S_T0}, v{l8}
    v_add_u32 v11, 57344, v5
    s_waitcnt lgkmcnt(0)
    s_barrier
    """)
    W1 = lambda t, kb: (t*14+kb)*4
    W2 = lambda t, kb: 112 + (t*14+kb)*4
    for t in range(2):
        for kb in range(14):
            for hf in range(2):
                r = W1(t, kb) + 2*hf; ct = CT_PAIRS[kb][hf]
                a(f'ds_read_b64_tr_b16 a[{r}:{r+1}], v{4 if ct < 14 else 10} offset:{(ct%14)*16*W1S + t*32}')
    a('s_waitcnt lgkmcnt(0)\ns_barrier')
    for k in range(28):
        a(f's_waitcnt vmcnt({27-k})\nds_write_b128 v8, v[{128+4*k}:{128+4*k+3}] offset:{k*2048}')
    a('s_waitcnt lgkmcnt(0)\ns_barrier')
    for t in range(2):
        for kb in range(14):
            for hf in range(2):
                r = W2(t, kb) + 2*hf
                a(f'ds_read_b64_tr_b16 a[{r}:{r+1}], v{5 if t == 0 else 11} offset:{kb*1024+hf*512}')
    a(f"""
    v_and_b32 v4, 15, v{LN}
    v_mul_u32_u24 v4, 896, v4
    v_lshrrev_b32 v5, 4, v{LN}
    v_lshl_add_u32 v4, v5, 3, v4
    s_lshl_b32 s{S_T0}, s{S_WAVE}, 11
    v_add_u32 v5, s{S_T0}, v{l16}
    s_and_b32 s{S_T0}, s{S_WAVE}, 1
    s_lshl_b32 s{S_T0}, s{S_T0}, 10
    v_add_u32 v6, s{S_T0}, v{l16}
    v_mov_b32 v8, 0
    v_min_u32 v7, 13, v{LN}
    v_lshlrev_b32 v7, 10, v7
    s_lshl_b32 s{S_T0}, s{S_WAVE}, 12
    s_min_u32 s{S_T0}, s{S_T0}, 10240
    v_add_u32 v9, s{S_T0}, v{l16}
    s_waitcnt lgkmcnt(0)
    """)
    fill2()
    a(f"""
    s_mov_b32 s{S_SPIN}, 0
F_mode:
    buffer_load_dword v10, v8, {WSRD}, s{F_G} offen sc1
    s_add_u32 s{S_SPIN}, s{S_SPIN}, 1
    s_waitcnt vmcnt(0)
    v_readfirstlane_b32 s{S_T0}, v10
    s_and_b32 s{S_T1}, s{S_T0}, 0xffff
    s_cmp_ge_u32 s{S_T1}, 14
    s_cbranch_scc1 F_moded
    s_sleep 4
    s_cmp_lt_u32 s{S_SPIN}, s{S_LIM}
    s_cbranch_scc1 F_mode
    s_mov_b32 s{S_T0}, 0x10000
F_moded:
    s_lshr_b32 s{S_FAST}, s{S_T0}, 16
F_top:
    """)
    B = 16; AC = 128
    a(f"""
    s_mul_i32 s{F_S0}, s{F_Q}, 14336
    s_lshl_b32 s{F_C}, s{F_J}, 1
    s_and_b32 s{S_T0}, s{S_WAVE}, 1
    s_add_u32 s{F_C}, s{F_C}, s{S_T0}
    s_lshl_b32 s{F_C}, s{F_C}, 9
    s_add_u32 s{F_C}, s{F_C}, s{F_S0}
    s_add_u32 s{F_C}, s{F_C}, {L.HB}
    s_add_u32 s{F_S0}, s{F_S0}, {L.HN}
    s_mov_b32 s{S_SPIN}, 0
    s_cmp_ge_u32 s{F_Q}, {cfg.get('qhot', 121)}
    s_cbranch_scc1 F_hn
F_lt:
    buffer_load_dword v11, v8, {WSRD}, s{F_S0} offen sc1
    s_add_u32 s{S_SPIN}, s{S_SPIN}, 1
    s_waitcnt vmcnt(0)
    v_cmp_eq_u32 vcc, -1, v11
    s_cbranch_vccz F_hn
    s_sleep 4
    s_cmp_lt_u32 s{S_SPIN}, s{S_LIM}
    s_cbranch_scc1 F_lt
F_hn:
    """)
    for k in range(4): a(f'buffer_load_dwordx4 v[{B+4*k}:{B+4*k+3}], v9, {WSRD}, s{F_S0} offen offset:{k*1024} sc1')
    a(f's_add_u32 s{S_SPIN}, s{S_SPIN}, 1')
    for k in range(4):
        a(f's_waitcnt vmcnt({3-k})\nds_write_b128 v9, v[{B+4*k}:{B+4*k+3}] offset:{FL_HN+k*1024}')
        a(f'v_max_u32 v11, v{B}, v{B+2}' if k == 0 else f'v_max3_u32 v11, v11, v{B+4*k}, v{B+4*k+2}')
    a(f"""
    v_cmp_eq_u32 vcc, -1, v11
    s_cbranch_vccz F_hnd
    s_sleep {cfg.get('fsleep', 1)}
    s_cmp_lt_u32 s{S_SPIN}, s{S_LIM}
    s_cbranch_scc1 F_hn
    s_mov_b32 s{S_LIM}, 1
F_hnd:
    s_waitcnt lgkmcnt(0)
    s_barrier
    """)
    rt(0)
    for kb in range(14):
        a(f'ds_read_b128 v[{B+4*kb}:{B+4*kb+3}], v{l16} offset:{FL_HN+kb*1024}')
    for kb in range(14):
        a(f's_waitcnt lgkmcnt({13-kb})')
        for t in range(2):
            c = AC + 4*t
            a(f'v_mfma_f32_16x16x32_bf16 v[{c}:{c+3}], a[{W1(t,kb)}:{W1(t,kb)+3}], v[{B+4*kb}:{B+4*kb+3}], ' + ('0' if kb == 0 else f'v[{c}:{c+3}]'))
    a(f"""
    s_mul_i32 s{F_S1}, s{F_Q}, 57344
    s_add_u32 s{F_S1}, s{F_S1}, {L.HID}
    s_lshl_b32 s{S_T0}, s{F_J}, 2
    s_add_u32 s{S_T0}, s{S_T0}, s{S_WAVE}
    s_lshl_b32 s{S_T0}, s{S_T0}, 10
    s_add_u32 s{F_S0}, s{F_S1}, s{S_T0}
    s_mul_i32 s{S_T0}, s{S_WAVE}, 14336
    s_add_u32 s{F_S1}, s{F_S1}, s{S_T0}
    s_cmp_lt_u32 s{F_Q}, {cfg.get('qfast', 114)}
    s_cselect_b32 s{S_T0}, 1, s{S_FAST}
    s_cmp_lg_u32 s{S_T0}, 0
    """)
    for k in range(8): a(f'v_max_f32 v{AC+k}, 0, v{AC+k}')
    for k in range(4): a(f'v_cvt_pk_bf16_f32 v{AC+8+k}, v{AC+2*k}, v{AC+2*k+1}')
    a(f"""
    s_cbranch_scc1 F_st1
    buffer_store_dwordx4 v[{AC+8}:{AC+11}], v{l16}, {WSRD}, s{F_S0} offen
    s_branch F_st2
F_st1:
    buffer_store_dwordx4 v[{AC+8}:{AC+11}], v{l16}, {WSRD}, s{F_S0} offen sc1
F_st2:
    buffer_load_dwordx2 v[12:13], v{l8}, {WSRD}, s{F_C} offen sc1
    """)
    rt(1)
    wait_hint(a, 7, F_S1, [140, 141, 142], gap=14, inner=10)
    rt(2)
    a(f's_mov_b32 s{S_SPIN}, 0\nF_hid:\ns_mov_b32 s{F_S0}, s{F_S1}\ns_add_u32 s{S_SPIN}, s{S_SPIN}, 1')
    load_1k_run(a, [vr(B+4*k, 4) for k in range(14)], l16, F_S0, 'sc1')
    for kb in range(14):
        a(f's_waitcnt vmcnt({13-kb})')
        for t in range(2):
            c = AC + 4*t; b = B + 4*kb
            a(f'v_mfma_f32_16x16x32_bf16 v[{c}:{c+3}], a[{W2(t,kb)}:{W2(t,kb)+3}], v[{b}:{b+3}], ' + ('0' if kb == 0 else f'v[{c}:{c+3}]'))
        a(f'v_max3_u32 v11, v12, v13, v{B}' if kb == 0 else f'v_max_u32 v11, v11, v{B+4*kb}')
    a(f"""
    v_cmp_eq_u32 vcc, -1, v11
    s_cbranch_vccz F_hidd
    buffer_load_dwordx2 v[12:13], v{l8}, {WSRD}, s{F_C} offen sc1
    s_cmp_lt_u32 s{S_SPIN}, s{S_LIM}
    s_cbranch_scc1 F_hid
    s_mov_b32 s{S_LIM}, 1
    s_waitcnt vmcnt(0)
F_hidd:
    """)
    rt(3)
    fin = a.newlabel('F_fin')
    R = AC + 8
    a(f"""
    ds_write_b128 v5, v[{AC}:{AC+3}] offset:{FL_RED}
    ds_write_b128 v5, v[{AC+4}:{AC+7}] offset:{FL_RED+1024}
    s_cmp_ge_u32 s{S_WAVE}, 2
    s_waitcnt lgkmcnt(0)
    s_barrier
    s_cbranch_scc1 {fin}
    ds_read_b128 v[{R}:{R+3}], v6 offset:{FL_RED}
    ds_read_b128 v[{R+4}:{R+7}], v6 offset:{FL_RED+2048}
    ds_read_b128 v[{R+8}:{R+11}], v6 offset:{FL_RED+4096}
    ds_read_b128 v[{R+12}:{R+15}], v6 offset:{FL_RED+6144}
    s_mul_i32 s{F_S0}, s{F_Q}, {16*896}
    s_lshl_b32 s{S_T0}, s{F_J}, 1
    s_add_u32 s{S_T0}, s{S_T0}, s{S_WAVE}
    s_lshl_b32 s{S_T0}, s{S_T0}, 5
    s_add_u32 s{F_S0}, s{F_S0}, s{S_T0}
    v_lshlrev_b32 v{AC}, 16, v12
    v_and_b32 v{AC+1}, 0xffff0000, v12
    v_lshlrev_b32 v{AC+2}, 16, v13
    v_and_b32 v{AC+3}, 0xffff0000, v13
    s_waitcnt lgkmcnt(0)
    """)
    for k in range(2):
        r = R + 2*k
        a(f"""
        v_pk_add_f32 v[{r}:{r+1}], v[{r}:{r+1}], v[{r+4}:{r+5}]
        v_pk_add_f32 v[{r+8}:{r+9}], v[{r+8}:{r+9}], v[{r+12}:{r+13}]
        v_pk_add_f32 v[{r}:{r+1}], v[{r}:{r+1}], v[{r+8}:{r+9}]
        v_cvt_pk_bf16_f32 v{r}, v{r}, v{r+1}
        v_and_b32 v{r+1}, 0xffff0000, v{r}
        v_lshlrev_b32 v{r}, 16, v{r}
        v_pk_add_f32 v[{r}:{r+1}], v[{r}:{r+1}], v[{AC+2*k}:{AC+2*k+1}]
        v_cvt_pk_bf16_f32 v{14+k}, v{r}, v{r+1}
        """)
    a(f"""
    buffer_store_dwordx2 v[14:15], v4, s[{F_OUT}:{F_OUT+3}], s{F_S0} offen {cfg.get('ofl', '')}
{fin}:
    """)
    if cfg.get('diag'):
        rt(4)
        a(f's_waitcnt lgkmcnt(0)\ns_mov_b32 s70, s{S_SPIN}\ns_lshl_b32 s{F_S0}, s{F_Q}, 4\ns_add_u32 s{F_S0}, s{F_S0}, s{F_J}\ns_lshl_b32 s{F_S0}, s{F_S0}, 2\ns_add_u32 s{F_S0}, s{F_S0}, s{S_WAVE}\ns_lshl_b32 s{F_S0}, s{F_S0}, 5\ns_add_u32 s{F_S0}, s{F_S0}, {L.STAMP + 0xa0000}')
        for k in range(6): a(f'v_writelane_b32 v150, s{60+2*k}, {k}')
        a(f"v_lshrrev_b32 v151, 1, v{l8}\ns_mov_b64 exec, 63\nbuffer_store_dword v150, v151, {WSRD}, s{F_S0} offen\ns_mov_b64 exec, -1")
    a(f"""
    s_add_u32 s{F_Q}, s{F_Q}, {ngroups}
    s_cmp_lt_u32 s{F_Q}, 128
    s_cbranch_scc1 F_top
    """)
```

```python
from asmlib import *
import layout as L
from team import Q, xlane4

KA = dict(x=0, mem0=8, wq=16, wk=24, wv=32, wo=40, w1=64, w2=72, out=80, dbg=88, ws=96)
LOG2E_16 = 0x3db8aa3b

def srd(a, d, lo, nbytes):
    a(f"""
    s_mov_b32 s{d}, s{lo}
    s_and_b32 s{d+1}, s{lo+1}, 0xffff
    s_mov_b32 s{d+2}, {nbytes}
    s_mov_b32 s{d+3}, 0x20000
    """)

WO_STRIDE = 144
def prep_kernel(a, diag=False, stfl='sc1', touch=1, a1up=0, ldfl='', t0=False, fused=False, early=1, bfl=None, dyn=0, code=1, keep0=0):
    WS, SA, SB = 8, 12, (64 if fused else 16)
    ldfl_b = ldfl if bfl is None else bfl
    if code:
        a(f"""
        s_getpc_b64 s[40:41]
P_pc:
        v_lshlrev_b32 v12, 7, v0
        global_load_dword v255, v12, s[40:41]
        """)
    a(f"""
    s_load_dwordx8 s[24:31], s[0:1], {KA['wq']}
    s_load_dwordx4 s[32:35], s[0:1], {KA['x']}
    s_cmp_ge_u32 s2, 256
    s_cbranch_scc1 {'L_end' if fused else 'P_exit'}
    """)
    if dyn:
        a(f"""
        s_load_dwordx2 s[6:7], s[0:1], {KA['dbg']}
        s_getreg_b32 s19, hwreg(HW_REG_XCC_ID, 0, 4)
        v_mov_b32 v4, 0
        v_cmp_eq_u32 vcc, 0, v0
        s_and_saveexec_b64 s[44:45], vcc
        s_cbranch_execz P_dw
        s_mov_b32 s18, 0
        s_waitcnt lgkmcnt(0)
P_dt:
        s_add_u32 s21, s19, s18
        s_and_b32 s21, s21, 7
        s_lshl_b32 s22, s21, 5
        v_mov_b32 v2, s22
        v_mov_b32 v3, 1
        global_atomic_add v3, v2, v3, s[6:7] sc0
        s_waitcnt vmcnt(0)
        v_readfirstlane_b32 s22, v3
        s_cmp_lt_u32 s22, 32
        s_cbranch_scc1 P_dg
        s_add_u32 s18, s18, 1
        s_cmp_lt_u32 s18, 8
        s_cbranch_scc1 P_dt
        s_mov_b32 s22, 31
P_dg:
        s_lshl_b32 s22, s22, 3
        s_add_u32 s22, s22, s21
        v_mov_b32 v2, s22
        ds_write_b32 v4, v2
        s_waitcnt lgkmcnt(0)
P_dw:
        s_mov_b64 exec, -1
        s_barrier
        ds_read_b32 v2, v4
        s_waitcnt lgkmcnt(0)
        v_readfirstlane_b32 s2, v2
        s_barrier
        """)
    a(f"""
    s_and_b32 s21, s2, 7
    s_lshr_b32 s22, s2, 3
    """)
    if early:
        a(f"""
        s_mul_i32 s23, s22, 37
        s_lshr_b32 s23, s23, 8
        s_mul_i32 s36, s23, 7
        s_sub_u32 s36, s22, s36
        s_lshl_b32 s37, s21, 1
        s_lshr_b32 s38, s23, 1
        s_add_u32 s38, s38, s37
        s_lshl_b32 s46, s36, 19
        s_lshl_b32 s47, s38, 9
        s_add_u32 s46, s46, s47
        v_lshrrev_b32 v9, 2, v0
        v_and_b32 v10, 3, v0
        v_lshlrev_b32 v9, 13, v9
        v_lshl_add_u32 v9, v10, 7, v9
        v_add_u32 v9, s46, v9
        s_cmp_ge_u32 s22, 28
        s_cbranch_scc1 P_e2
        s_bitcmp1_b32 s23, 0
        s_waitcnt lgkmcnt(0)
        s_cbranch_scc1 P_e1
        global_load_dword v14, v9, s[26:27] {ldfl}
        global_load_dword v15, v9, s[24:25] {ldfl}
        s_branch P_e2
P_e1:
        s_mul_i32 s46, s38, 229376
        s_lshl_b32 s47, s36, 7
        s_add_u32 s46, s46, s47
        v_mul_u32_u24 v10, 896, v0
        v_add_u32 v10, s46, v10
        global_load_dword v14, v10, s[30:31] {ldfl}
        global_load_dword v15, v9, s[28:29] {ldfl}
P_e2:
        """)
        touch = 0
    if code > 1:
        for k in (1, 2):
            a(f'v_add_u32 v12, 32768, v12\nv_min_u32 v11, L_end-P_pc, v12\nglobal_load_dword v255, v11, s[40:41]')
    a(f"""
    s_load_dwordx2 s[4:5], s[0:1], {KA['ws']}
    s_load_dwordx2 s[6:7], s[0:1], {KA['dbg']}
    v_lshrrev_b32 v2, 6, v0
    v_and_b32 v1, 63, v0
    v_readfirstlane_b32 s20, v2
    s_waitcnt lgkmcnt(0)
    """)
    srd(a, WS, 4, L.WS_BYTES)
    if t0:
        a(f"""
        s_cmp_lg_u32 s2, 0
        s_cbranch_scc1 P_t0
        s_memrealtime s[60:61]
        s_mov_b32 s62, {L.STAMP + 0xf0000}
        v_mov_b32 v5, 0
        s_waitcnt lgkmcnt(0)
        v_mov_b32 v4, s60
        buffer_store_dword v4, v5, s[{WS}:{WS+3}], s62 offen sc1
P_t0:
        """)
    DB = 56
    if fused:
        srd(a, DB, 6, 256)
        a(f"""
        v_mov_b32 v249, 248
        v_mov_b32 v250, 1
        s_or_b32 s19, s2, s20
        s_cmp_lg_u32 s19, 0
        s_cbranch_scc1 P_na
        s_memrealtime s[80:81]
        s_mov_b64 exec, 1
        s_waitcnt lgkmcnt(0)
        s_lshl_b64 s[80:81], s[80:81], 3
        s_or_b32 s81, s81, 0x80000000
        v_mov_b32 v252, s80
        v_mov_b32 v253, s81
        buffer_store_dwordx2 v[252:253], v249, s[{DB}:{DB+3}], 0 offen sc1
        s_mov_b64 exec, -1
P_na:
        """)
    def ask_role():
        l = a.newlabel('P_ar')
        a(f"""
        s_cmp_lg_u32 s20, 0
        s_cbranch_scc1 {l}
        s_getreg_b32 s19, hwreg(HW_REG_XCC_ID, 0, 4)
        s_and_b32 s17, s19, 1
        s_lshl_b32 s17, s17, 7
        s_and_b32 s19, s19, 6
        s_lshl_b32 s19, s19, 1
        s_add_u32 s19, s19, s17
        s_mov_b64 exec, 1
        v_mov_b32 v251, s19
        buffer_atomic_add v250, v251, s[{DB}:{DB+3}], 0 offen sc0
        s_mov_b64 exec, -1
{l}:
        """)
    if fused: ask_role()
    tagld = f'buffer_load_dwordx2 v[252:253], v249, s[{DB}:{DB+3}], 0 offen sc1'
    def tag_take():
        l = a.newlabel('P_tg'); d = a.newlabel('P_tgd')
        a(f"""
        s_mov_b32 s19, 0
{l}:
        v_readfirstlane_b32 s80, v252
        v_readfirstlane_b32 s81, v253
        s_cmp_lg_u32 s81, 0
        s_cbranch_scc1 {d}
        {tagld}
        s_add_u32 s19, s19, 1
        s_waitcnt vmcnt(0)
        s_cmp_lt_u32 s19, 100000
        s_cbranch_scc1 {l}
{d}:
        v_mov_b32 v254, 0
        """)
    def flag(prog):
        return f"""v_add_u32 v252, {prog}, v252
            s_mov_b64 exec, 1
            buffer_store_dwordx2 v[252:253], v254, s[{WS}:{WS+3}], s18 offen sc1
            s_mov_b64 exec, -1"""
    def st(k):
        if diag: a(f's_memtime s[{60+2*k}:{61+2*k}]')
    if diag:
        for k in range(8): a(f's_mov_b64 s[{60+2*k}:{61+2*k}], 0')
    st(0)
    nfill = L.CNT + L.CNT_BYTES - L.MB_M
    assert nfill % (256*4096) == 0 or True
    nwg = 192 if fused else 256
    per = (nfill + nwg - 1) // nwg
    per = (per + 4095) // 4096 * 4096
    def fill_boxes():
        a(f"""
        v_lshlrev_b32 v240, 4, v0
        v_mov_b32 v244, -1
        v_mov_b32 v245, -1
        v_mov_b32 v246, -1
        v_mov_b32 v247, -1
        s_mul_i32 s53, {'s23' if fused else 's2'}, {per}
        s_add_u32 s53, s53, {L.MB_M}
        """)
        assert L.MB_M + nwg*per <= L.STAMP
        for k in range(per // 4096):
            l = a.newlabel('P_fs')
            a(f"""
            s_add_u32 s54, s53, {k*4096}
            s_and_b32 s55, s54, 0xffffe000
            s_cmp_eq_u32 s55, {L.MB_M}
            s_cbranch_scc1 {l}
            s_cmp_eq_u32 s55, {L.MB_Y}
            s_cbranch_scc1 {l}
            s_cmp_ge_u32 s54, {L.CNT}
            s_cselect_b32 s55, 0, -1
            v_mov_b32 v244, s55
            v_mov_b32 v245, s55
            v_mov_b32 v246, s55
            v_mov_b32 v247, s55
            buffer_store_dwordx4 v[244:247], v240, s[{WS}:{WS+3}], s54 offen {stfl}
{l}:
            """)
    if fused:
        a(f"""
        s_mul_i32 s23, s21, 28
        s_add_u32 s23, s23, s22
        s_lshl_b32 s18, s21, 2
        s_add_u32 s18, s18, s22
        s_add_u32 s18, s18, {224-28}
        s_cmp_ge_u32 s22, 28
        s_cselect_b32 s18, s18, s23
        s_lshl_b32 s18, s18, 4
        s_add_u32 s18, s18, s20
        s_lshl_b32 s18, s18, 3
        s_add_u32 s18, s18, {L.FL}
        s_cmp_ge_u32 s22, 28
        s_cbranch_scc1 P_ln
        s_mul_i32 s21, s23, 9363
        s_lshr_b32 s21, s21, 16
        s_mul_i32 s36, s21, 7
        s_sub_u32 s36, s23, s36
        """)
    else:
        a(f"""
        s_cmp_ge_u32 s22, 28
        s_cbranch_scc1 P_ln
        s_mul_i32 s23, s22, 37
        s_lshr_b32 s23, s23, 8
        s_mul_i32 s36, s23, 7
        s_sub_u32 s36, s22, s36
        s_lshl_b32 s21, s21, 2
        s_add_u32 s21, s21, s23
        """)
    a(f"""
    s_and_b32 s37, s21, 1
    s_lshr_b32 s38, s21, 1
    s_cmp_eq_u32 s37, 0
    s_cselect_b32 s40, s24, s28
    s_cselect_b32 s41, s25, s29
    s_cselect_b32 s42, s26, s30
    s_cselect_b32 s43, s27, s31
    """)
    srd(a, SA, 40, 448*8192)
    srd(a, SB, 42, 448*8192)
    BF = 0
    AFR = lambda p: 32 + 64*p
    ACC = lambda p: 160 + 32*p
    OUT = 224
    SLOT = lambda k: (k & 1)*65536
    breg = lambda ks, nt: BF + (ks*4 + nt)*4
    a(f"""
    s_lshl_b32 s39, s20, 2
    s_cmp_eq_u32 s20, 3
    s_cselect_b32 s39, 11, s39
    v_and_b32 v4, 15, v1
    v_lshrrev_b32 v5, 4, v1
    v_lshrrev_b32 v6, 5, v1
    v_and_b32 v7, 31, v1
    v_xor_b32 v7, v7, v6
    v_lshlrev_b32 v8, 13, v6
    v_lshl_add_u32 v8, v7, 4, v8
    s_lshl_b32 s50, s20, 14
    s_lshl_b32 s44, s39, 18
    s_lshl_b32 s45, s38, 9
    s_add_u32 s44, s44, s45
    """)
    if touch:
        a(f"""
        v_lshrrev_b32 v9, 2, v0
        v_lshlrev_b32 v9, 13, v9
        v_and_b32 v10, 3, v0
        v_lshl_add_u32 v9, v10, 7, v9
        """)
        if False:
            a(f"""
            s_sub_u32 s46, s23, s36
            s_and_b32 s47, s23, 0xe0
            s_max_u32 s49, s46, s47
            s_add_u32 s46, s46, 7
            s_add_u32 s47, s47, 32
            s_min_u32 s46, s46, s47
            s_sub_u32 s47, s46, s49
            s_sub_u32 s49, s23, s49
P_tch:
            s_lshl_b32 s46, s49, 19
            s_add_u32 s46, s46, s45
            buffer_load_dword v15, v9, s[{SA}:{SA+3}], s46 offen {ldfl}
            s_add_u32 s49, s49, s47
            s_cmp_lt_u32 s49, 7
            s_cbranch_scc1 P_tch
            """)
        else:
            a(f"""
            s_lshl_b32 s46, s36, 19
            s_add_u32 s46, s46, s45
            buffer_load_dword v15, v9, s[{SA}:{SA+3}], s46 offen {ldfl}
            """)
    for k in range(8):
        a(f'v_xor_b32 v{16+k}, {2*k*16}, v8')
    a(f"""
    v_lshrrev_b32 v6, 2, v4
    v_and_b32 v7, 3, v4
    v_lshl_add_u32 v6, v6, 3, v7
    v_lshlrev_b32 v6, 9, v6
    v_add_u32 v6, s50, v6
    v_xor_b32 v7, v5, v4
    """)
    for k in range(4):
        a(f'v_xor_b32 v9, {4*k}, v7\nv_lshl_add_u32 v{24+k}, v9, 4, v6')
    vq = Q('vmcnt', 63)
    def a_dma(blk, i_):
        xr = 16 + ((i_ >> 2)*2 + (i_ & 1))
        def f(lq=None):
            vq.issue(('a', blk))
            return (f's_add_u32 m0, s50, {SLOT(blk) + i_*1024}\ns_add_u32 s46, s44, {(blk*32 + i_*2)*8192}\n'
                    f'buffer_load_dwordx4 v{xr}, s[{SA}:{SA+3}], s46 offen lds')
        return f
    a('s_cmp_eq_u32 s37, 0\ns_cbranch_scc0 P_t1')
    a(f"""
    s_lshl_b32 s47, s36, 19
    s_add_u32 s47, s47, s45
    s_lshl_b32 s46, s20, 17
    s_add_u32 s47, s47, s46
    s_lshl_b32 s51, s20, 13
    s_mov_b32 s48, {LOG2E_16}
    """)
    for k in range(8):
        a(f's_add_u32 m0, s51, {131072 + k*1024}\ns_add_u32 s46, s47, {k*2*8192}\nbuffer_load_dwordx4 v{16+k}, s[{SB}:{SB+3}], s46 offen {ldfl_b} lds')
    a(f"""
    s_branch P_tj
P_t1:
    v_lshrrev_b32 v10, 3, v1
    v_and_b32 v11, 7, v1
    v_mul_u32_u24 v9, 896, v10
    v_and_b32 v12, 2, v10
    v_xor_b32 v11, v11, v12
    v_lshl_add_u32 v9, v11, 4, v9
    v_xor_b32 v13, 64, v9
    s_mul_i32 s47, s38, 229376
    s_lshl_b32 s46, s36, 7
    s_add_u32 s47, s47, s46
    s_mul_i32 s46, s20, {64*896}
    s_add_u32 s47, s47, s46
    s_lshl_b32 s51, s20, 13
    s_mov_b32 s48, 1.0
    """)
    for k in range(8):
        a(f's_add_u32 m0, s51, {131072 + k*1024}\ns_add_u32 s46, s47, {k*8*896}\nbuffer_load_dwordx4 v{13 if k & 1 else 9}, s[{SB}:{SB+3}], s46 offen {ldfl_b} lds')
    a.label('P_tj')
    st(1)
    for i_ in range(16): a(a_dma(0, i_)())
    if a1up:
        for i_ in range(16): a(a_dma(1, i_)())
    a(f's_waitcnt vmcnt({32 if a1up else 16})\ns_barrier')
    st(2)
    a('s_cmp_eq_u32 s37, 0\ns_cbranch_scc0 P_r1')
    a(f'v_lshlrev_b32 v6, 9, v4\nv_add_u32 v6, 131072, v6')
    for k in range(4):
        a(f'v_xor_b32 v9, {4*k}, v7\nv_lshl_add_u32 v{28+k}, v9, 4, v6')
    for ks in range(8):
        for nt in range(4):
            a(f'ds_read_b128 a[{breg(ks,nt)}:{breg(ks,nt)+3}], v{28+(ks&3)} offset:{nt*8192 + (ks>>2)*256}')
            if nt & 1 and not a1up: a(a_dma(1, ks*2 + (nt >> 1))())
    if not a1up: vq.n -= 16
    a(f"""
    s_branch P_rj
P_r1:
    v_bfe_u32 v10, v1, 2, 2
    v_lshl_add_u32 v11, v5, 3, v10
    v_lshlrev_b32 v13, 7, v11
    v_add_u32 v13, 131072, v13
    v_and_b32 v11, 3, v1
    v_lshl_add_u32 v13, v11, 3, v13
    v_lshrrev_b32 v10, 1, v10
    v_and_b32 v11, 1, v5
    v_lshl_add_u32 v10, v11, 1, v10
    """)
    for nt in range(4):
        a(f'v_xor_b32 v9, {nt}, v10\nv_lshl_add_u32 v{28+nt}, v9, 5, v13')
    for ks in range(8):
        for nt in range(4):
            for hf in range(2):
                r = breg(ks, nt) + 2*hf
                a(f'ds_read_b64_tr_b16 a[{r}:{r+1}], v{28+nt} offset:{(ks*32+hf*4)*128}')
            if nt & 1 and not a1up: a(a_dma(1, ks*2 + (nt >> 1))())
    a(f"""
P_rj:
    s_mul_i32 s52, s37, 448
    s_mul_i32 s47, s38, 28
    s_add_u32 s52, s52, s47
    s_lshl_b32 s47, s36, 2
    s_add_u32 s52, s52, s47
    s_mul_i32 s52, s52, 14336
    s_lshl_b32 s47, s39, 10
    s_add_u32 s52, s52, s47
    s_add_u32 s52, s52, {L.WT}
    s_mov_b32 s49, s48
    v_lshlrev_b32 v3, 4, v1
    s_waitcnt vmcnt(16)
    """)
    def a_read(blk, hf, ks):
        r = AFR(blk & 1) + (hf*8+ks)*4
        off = hf*4*512 + (ks >> 2)*256
        return f'ds_read_b128 v[{r}:{r+3}], v{24+(ks&3) if not blk & 1 else 10+(ks&3)} offset:{off}'
    for k in range(4): a(f'v_add_u32 v{10+k}, 65536, v{24+k}')
    for hf in range(2):
        for ks in range(8): a(a_read(0, hf, ks))
    if fused: a('s_cmp_ge_u32 s23, 192\ns_cbranch_scc1 P_nf')
    fill_boxes()
    if fused: a.label('P_nf')
    a('s_waitcnt lgkmcnt(0)')
    from team import Gaps, emit_stream
    def epi(blk):
        va = []; stt = []
        for nt in range(4):
            ca = ACC(blk & 1) + nt*4; cb = ACC(blk & 1) + (4+nt)*4; o = OUT + nt*4
            v = [f'v_pk_mul_f32 v[{c}:{c+1}], v[{c}:{c+1}], s[48:49]' for c in (ca, ca+2, cb, cb+2)]
            v += [f'v_cvt_pk_bf16_f32 v{o}, v{ca}, v{ca+1}', f'v_cvt_pk_bf16_f32 v{o+1}, v{ca+2}, v{ca+3}',
                  f'v_cvt_pk_bf16_f32 v{o+2}, v{cb}, v{cb+1}', f'v_cvt_pk_bf16_f32 v{o+3}, v{cb+2}, v{cb+3}']
            va.append(v)
            def sf(lq=None, nt=nt, o=o):
                vq.issue(('st', blk))
                return f's_add_u32 s47, s52, {nt*14336}\nbuffer_store_dwordx4 v[{o}:{o+3}], v3, s[{WS}:{WS+3}], s47 offen offset:{blk*1024} {wst[0]}'
            stt.append(sf)
        return va, stt
    lq = Q('lgkmcnt', 15)
    wst = [stfl]
    def block(blk, nb):
        ms = []
        for hf in range(2):
            for ks in range(8):
                r = AFR(blk & 1) + (hf*8+ks)*4
                for nt in range(4):
                    c = ACC(blk & 1) + (hf*4+nt)*4
                    ms.append((f'v_mfma_f32_16x16x32_bf16 v[{c}:{c+3}], v[{r}:{r+3}], a[{breg(ks,nt)}:{breg(ks,nt)+3}], ' + ('0' if ks == 0 else f'v[{c}:{c+3}]'), []))
        gp = Gaps(64)
        g = 0
        if blk + 2 < nb:
            for i_ in range(16): g = gp.put('ds', g, a_dma(blk+2, i_)) + 3
        if blk > 0:
            va, stt = epi(blk-1)
            g2 = 3
            for nt in range(4):
                for x in va[nt]: g2 = gp.put('va', g2, x) + 1
                gp.put('ds', g2+1, stt[nt])
        if blk + 1 < nb:
            gp.force('ds', 44, lambda lq, b=blk+1: vq.wait(('a', b)))
            g = 44
            for hf in range(2):
                for ks in range(8):
                    gp.force('ds', g, a_read(blk+1, hf, ks)); g += 1
            gp.force('va', 63, 's_waitcnt lgkmcnt(0)')
        emit_stream(a, ms, gp, lq)
    block(0, 4)
    st(3)
    keep = (vq.n, dict(vq.tags), vq.done)
    if keep0:
        a('s_getreg_b32 s19, hwreg(HW_REG_XCC_ID, 0, 4)\ns_and_b32 s19, s19, 7\ns_cmp_eq_u32 s19, 0\ns_cbranch_scc1 P_k0')
    for var in range(2 if keep0 else 1):
        if var: a.label('P_k0'); wst[0] = ''
        a(f's_cmp_lt_u32 s20, 2\ns_cbranch_scc1 P_b4{var}')
        for nb in (3, 4):
            if nb == 4: a.label(f'P_b4{var}')
            vq.n, vq.tags, vq.done = keep[0], dict(keep[1]), keep[2]
            for blk in range(1, nb):
                if fused and blk == nb-1:
                    a(tagld)
                block(blk, nb)
            va, stt = epi(nb-1)
            for nt in range(4):
                for x in va[nt]: a(x)
                a(stt[nt]())
            a('s_branch P_last')
    a.label('P_last')
    if fused:
        a('s_waitcnt vmcnt(0)'); tag_take(); a(flag(7))
    a('s_branch P_exit')
    a.label('P_ln')
    srd(a, SA, 32, 2048*896)
    srd(a, SB, 34, 8*896)
    X = 16
    U = 80
    a(f"""
    s_sub_u32 s22, s22, 28
    s_lshl_b32 s21, s21, 2
    s_add_u32 s21, s21, s22
    s_lshl_b32 s21, s21, 2
    s_add_u32 s21, s21, s20
    v_lshrrev_b32 v4, 2, v1
    v_and_b32 v5, 3, v1
    v_mul_u32_u24 v6, 896, v4
    v_lshl_add_u32 v6, v5, 4, v6
    s_mul_i32 s23, s21, {16*896}
    """)
    for kb in range(14):
        a(f'buffer_load_dwordx4 v[{X+4*kb}:{X+4*kb+3}], v6, s[{SA}:{SA+3}], s23 offen offset:{kb*64} {ldfl}')
    if not fused: fill_boxes()
    l = a.newlabel('P_m0')
    a(f's_cmp_ge_u32 s21, 28\ns_cbranch_scc1 {l}')
    from team import img_addr
    img_addr(a, 8, 9, 1)
    a(f"""
    v_lshrrev_b32 v9, 4, v1
    v_mul_u32_u24 v9, {2*896}, v9
    v_and_b32 v7, 15, v1
    v_lshl_add_u32 v9, v7, 1, v9
    s_lshl_b32 s36, s21, 5
    buffer_load_ushort v200, v9, s[{SB}:{SB+3}], s36 offen
    buffer_load_ushort v201, v9, s[{SB}:{SB+3}], s36 offen offset:896
    s_lshr_b32 s36, s21, 2
    s_lshl_b32 s36, s36, 10
    s_and_b32 s37, s21, 3
    s_lshl_b32 s37, s37, 7
    s_add_u32 s36, s36, s37
    s_add_u32 s37, s36, {L.MB_Y}
    s_add_u32 s36, s36, {L.MB_M}
    s_waitcnt vmcnt(0)
    v_lshl_or_b32 v200, v201, 16, v200
    buffer_store_dword v200, v8, s[{WS}:{WS+3}], s36 offen {stfl}
    buffer_store_dword v200, v8, s[{WS}:{WS+3}], s37 offen {stfl}
{l}:
    s_waitcnt vmcnt(0)
    """)
    st(2)
    ln_rows(a, X, U, 56, 10, quadred)
    st(4)
    GS, KS = 288, 1152
    a(f"""
    s_mul_i32 s36, s20, {14*KS}
    v_mul_u32_u24 v7, {GS}, v5
    v_lshl_add_u32 v7, v4, 4, v7
    v_add_u32 v7, s36, v7
    v_lshlrev_b32 v3, 4, v1
    v_lshrrev_b32 v6, 4, v1
    v_mul_u32_u24 v6, {GS}, v6
    v_and_b32 v8, 15, v1
    v_lshl_add_u32 v8, v8, 4, v6
    v_add_u32 v8, s36, v8
    """)
    for kb in range(14):
        a(f'ds_write_b128 v7, v[{X+4*kb}:{X+4*kb+3}] offset:{kb*KS}')
    a(f"""
    s_mul_i32 s36, s21, 14336
    s_add_u32 s36, s36, {L.XN}
    """)
    st(3)
    for kb in range(14):
        a(f'ds_read_b128 v[{U+4*kb}:{U+4*kb+3}], v8 offset:{kb*KS}')
    for kb in range(14):
        if kb and kb % 4 == 0: a('s_add_u32 s36, s36, 4096')
        a(f's_waitcnt lgkmcnt({13-kb})')
        a(f'buffer_store_dwordx4 v[{U+4*kb}:{U+4*kb+3}], v3, s[{WS}:{WS+3}], s36 offen offset:{(kb%4)*1024} {stfl}')
    if fused:
        a(tagld + '\ns_waitcnt vmcnt(0)'); tag_take(); a(flag(7))
    a.label('P_exit')
    if fused: return
    if diag:
        a('s_cmp_ge_u32 s2, 256\ns_cbranch_scc1 P_exit2')
        st(5)
        a('s_waitcnt vmcnt(0)')
        st(6)
        a(f's_waitcnt lgkmcnt(0)\ns_lshl_b32 s36, s2, 2\ns_add_u32 s36, s36, s20\ns_lshl_b32 s36, s36, 6\ns_add_u32 s36, s36, {L.STAMP}\ns_mov_b64 exec, 1\nv_mov_b32 v3, 0')
        for k in range(7):
            a(f'v_mov_b32 v4, s{60+2*k}\nbuffer_store_dword v4, v3, s[{WS}:{WS+3}], s36 offen offset:{4*k}\ns_nop 1')
        a.label('P_exit2')
    a('s_endpgm')

def rnd_bf16(a, r, t):
    a(f'v_cvt_pk_bf16_f32 v{r}, v{r}, v{r}\nv_and_b32 v{r}, 0xffff0000, v{r}')

def quadred(a, x, t):
    a(f'v_add_f32_dpp v{x}, v{x}, v{x} quad_perm:[1,0,3,2] row_mask:0xf bank_mask:0xf')
    a(f'v_add_f32_dpp v{x}, v{x}, v{x} quad_perm:[2,3,0,1] row_mask:0xf bank_mask:0xf')

def ln_stats_finish(a, mu, rs, tt):
    rnd_bf16(a, rs, tt)
    a(f'v_add_f32 v{rs}, 0x3727c5ac, v{rs}')
    rnd_bf16(a, rs, tt)
    a(f'v_sqrt_f32 v{rs}, v{rs}')
    rnd_bf16(a, rs, tt)
    a(f'v_rcp_f32 v{rs}, v{rs}')
    rnd_bf16(a, mu, tt)

def ln_rows(a, X, U, n, t, red):
    s0, s1, d0, nm, rs = t, t+1, t+2, t+4, 76
    for i in range(n):
        a(f'v_lshlrev_b32 v{U+2*i}, 16, v{X+i}\nv_and_b32 v{U+2*i+1}, 0xffff0000, v{X+i}')
        if i == 1: a(f'v_pk_add_f32 v[{s0}:{s1}], v[{U}:{U+1}], v[{U+2}:{U+3}]')
        if i > 1: a(f'v_pk_add_f32 v[{s0}:{s1}], v[{s0}:{s1}], v[{U+2*i}:{U+2*i+1}]')
    a(f'v_add_f32 v{s0}, v{s0}, v{s1}')
    red(a, s0, d0)
    a(f'v_mul_f32 v{nm}, 0xbb124925, v{s0}\nv_mul_f32 v{nm+1}, 0xbb124925, v{s0}')
    for i in range(n):
        d = d0 if i & 1 else 72
        a(f'v_pk_add_f32 v[{d}:{d+1}], v[{U+2*i}:{U+2*i+1}], v[{nm}:{nm+1}]')
        if i == 0: a(f'v_pk_mul_f32 v[{s0}:{s1}], v[{d}:{d+1}], v[{d}:{d+1}]')
        else: a(f'v_pk_fma_f32 v[{s0}:{s1}], v[{d}:{d+1}], v[{d}:{d+1}], v[{s0}:{s1}]')
    a(f'v_add_f32 v{s0}, v{s0}, v{s1}')
    red(a, s0, d0)
    a(f'v_mul_f32 v{rs}, 0x3b124925, v{s0}')
    ln_stats_finish(a, nm, rs, d0)
    a(f'v_mov_b32 v{nm+1}, v{nm}\nv_mov_b32 v{rs+1}, v{rs}')
    for i in range(n):
        u = U+2*i
        a(f"""
        v_pk_add_f32 v[{u}:{u+1}], v[{u}:{u+1}], v[{nm}:{nm+1}]
        v_cvt_pk_bf16_f32 v{X+i}, v{u}, v{u+1}
        v_lshlrev_b32 v{u}, 16, v{X+i}
        v_and_b32 v{u+1}, 0xffff0000, v{X+i}
        v_pk_mul_f32 v[{u}:{u+1}], v[{u}:{u+1}], v[{rs}:{rs+1}]
        v_cvt_pk_bf16_f32 v{X+i}, v{u}, v{u+1}
        """)
```

```python
from asmlib import *
import layout as L

SENT = -1
S_WS = 8
S_DBG = 12
S_ROLE = 16
S_WAVE = 17
S_XCC = 18
S_STEP = 19
S_FAST = 20
S_MOFF = 21; S_POFF = 22; S_EOFF = 23; S_GOFF = 24; S_XOFF = 25; S_T0 = 26; S_T1 = 27; S_SPIN = 28; S_LIM = 29
S_EXEC = 30
S_STMP = 32
S_TM = 34
SPIN_MAX = 20000
NTEAM = 32

LDS_M = 0
LDS_T = 7168
LDS_FL = 14336
LDS_VD = 18432
LDS_X = 20480
LDS_CF = 14336
LDS_NAN = 13312
LDS_RED = 7168
LDS_BW = 16384
LDS_ROLE = 160*1024 - 16

def prologue(a, stamps, pool_off=0, scatter=False, code=1, guess=0):
    if code:
        a('s_getpc_b64 s[40:41]\nM_pc:\nv_lshlrev_b32 v12, 7, v0\nglobal_load_dword v255, v12, s[40:41]')
        a('v_add_u32 v12, 32768, v12\nv_min_u32 v11, L_end-M_pc, v12\nglobal_load_dword v255, v11, s[40:41]')
    a(f'''
    s_cmp_ge_u32 s2, 256
    s_cbranch_scc1 L_end
    s_load_dwordx2 s[4:5], s[0:1], 96
    s_load_dwordx2 s[6:7], s[0:1], 88
    s_getreg_b32 s{S_XCC}, hwreg(HW_REG_XCC_ID, 0, 4)
    v_lshrrev_b32 v2, 6, v0
    v_and_b32 v1, 63, v0
    v_readfirstlane_b32 s{S_WAVE}, v2
    s_and_b32 s{S_XCC}, s{S_XCC}, 7
    s_waitcnt lgkmcnt(0)
    s_mov_b32 s{S_WS}, s4
    s_and_b32 s{S_WS+1}, s5, 0xffff
    s_mov_b32 s{S_WS+2}, {L.WS_BYTES}
    s_mov_b32 s{S_WS+3}, 0x20000
    s_mov_b32 s{S_DBG}, s6
    s_and_b32 s{S_DBG+1}, s7, 0xffff
    s_mov_b32 s{S_DBG+2}, 256
    s_mov_b32 s{S_DBG+3}, 0x20000
    v_mov_b32 v4, {LDS_ROLE}
    ''')
    if guess:
        a(f'''
        s_cmp_lg_u32 s{S_XCC}, 0
        s_cbranch_scc1 L_ng
        s_lshr_b32 s{S_T0}, s2, 3
        s_cmp_ge_u32 s{S_T0}, 30
        s_cbranch_scc1 L_ng
        s_mul_i32 s{S_T1}, s{S_T0}, 28
        s_add_u32 s{S_T1}, s{S_T1}, s{S_WAVE}
        s_mov_b32 s{S_STEP}, {4*14336}
        s_cmp_lt_u32 s{S_T0}, 16
        s_cbranch_scc1 L_gs
        s_lshl_b32 s{S_T1}, s{S_T0}, 1
        s_mul_i32 s{S_T0}, s{S_WAVE}, 112
        s_add_u32 s{S_T1}, s{S_T1}, s{S_T0}
        s_add_u32 s{S_T1}, s{S_T1}, {448 - 32 + 84}
        s_mov_b32 s{S_STEP}, 14336
L_gs:
        s_mul_i32 s{S_T1}, s{S_T1}, 14336
        s_add_u32 s{S_T1}, s{S_T1}, {L.WT}
        v_min_u32 v5, 55, v1
        v_lshlrev_b32 v5, 7, v5
        ''')
        for k in range(guess):
            a(f's_add_u32 s{S_T0}, s{S_T1}, 7168')
            a(f'buffer_load_dword v255, v5, s[{S_WS}:{S_WS+3}], s{S_T1} offen\nbuffer_load_dword v255, v5, s[{S_WS}:{S_WS+3}], s{S_T0} offen')
            a(f's_add_u32 s{S_T1}, s{S_T1}, s{S_STEP}')
        a.label('L_ng')
    a(f'''
    s_cmp_lg_u32 s{S_WAVE}, 0
    s_cbranch_scc1 L_role_wait
    s_mov_b64 exec, 1
    s_mov_b32 s{S_T0}, 0
L_role_try:
    {f's_lshr_b32 s{S_T1}, s2, 5' if scatter else f's_mov_b32 s{S_T1}, s{S_XCC}'}
    s_add_u32 s{S_T1}, s{S_T1}, s{S_T0}
    s_and_b32 s{S_T1}, s{S_T1}, 7
    s_lshl_b32 s{S_ROLE}, s{S_T1}, 7
    s_add_u32 s{S_ROLE}, s{S_ROLE}, {L.CNT_P + pool_off}
    v_mov_b32 v2, s{S_ROLE}
    v_mov_b32 v3, 1
    buffer_atomic_add v3, v2, s[{S_WS}:{S_WS+3}], 0 offen sc0
    s_waitcnt vmcnt(0)
    v_readfirstlane_b32 s{S_ROLE}, v3
    s_cmp_lt_u32 s{S_ROLE}, 32
    s_cbranch_scc1 L_role_got
    s_add_u32 s{S_T0}, s{S_T0}, 1
    s_cmp_lt_u32 s{S_T0}, 8
    s_cbranch_scc1 L_role_try
    s_mov_b32 s{S_ROLE}, 31
    s_mov_b32 s{S_T1}, 0
L_role_got:
    s_lshl_b32 s{S_T1}, s{S_T1}, 5
    s_add_u32 s{S_ROLE}, s{S_ROLE}, s{S_T1}
    v_mov_b32 v2, s{S_ROLE}
    ds_write_b32 v4, v2
    s_mov_b64 exec, -1
    s_waitcnt lgkmcnt(0)
L_role_wait:
    s_barrier
    ds_read_b32 v2, v4
    s_waitcnt lgkmcnt(0)
    v_readfirstlane_b32 s{S_ROLE}, v2
    ''')

FSL = [8, 32]
def wait_flags(a, vaddr, need, t, n=1):
    l = a.newlabel('L_wf'); d = a.newlabel('L_wfd')
    regs = [t] + [t+4+2*k for k in range(n-1)]
    a(f"""
    s_mov_b32 s{S_SPIN}, 0
    s_mov_b32 s{S_EXEC}, {L.FL}
    s_add_u32 s{S_EXEC+1}, s80, {need}
{l}:
    """)
    for k, r in enumerate(regs):
        a(f'buffer_load_dwordx2 v[{r}:{r+1}], v{vaddr}, s[{S_WS}:{S_WS+3}], s{S_EXEC} offen offset:{k*512} sc1')
    a(f's_add_u32 s{S_SPIN}, s{S_SPIN}, 1\ns_waitcnt vmcnt(0)')
    for k, r in enumerate(regs):
        a(f"""
        v_subrev_u32 v{r}, s{S_EXEC+1}, v{r}
        v_xor_b32 v{r+1}, s81, v{r+1}
        v_lshl_or_b32 v{t+2}, v{r+1}, 3, v{r+1}
        v_or_b32 v{r}, v{r}, v{t+2}
        """)
        if k: a(f'v_max_u32 v{t}, v{t}, v{r}')
    a(f"""
    v_cmp_lt_u32 vcc, {7 - need}, v{t}
    s_cbranch_vccz {d}
    s_sleep {FSL[n > 1]}
    s_cmp_lt_u32 s{S_SPIN}, {SPIN_MAX*4}
    s_cbranch_scc1 {l}
{d}:
    """)

def prologue_fused(a):
    a(f"""
    s_getreg_b32 s{S_XCC}, hwreg(HW_REG_XCC_ID, 0, 4)
    s_mov_b32 s{S_WAVE}, s20
    s_and_b32 s{S_XCC}, s{S_XCC}, 7
    s_mov_b32 s{S_DBG}, s56
    s_mov_b32 s{S_DBG+1}, s57
    s_mov_b32 s{S_DBG+2}, 256
    s_mov_b32 s{S_DBG+3}, 0x20000
    v_mov_b32 v4, {LDS_ROLE}
    s_cmp_lg_u32 s{S_WAVE}, 0
    s_barrier
    s_cbranch_scc1 L_role_wait
    s_mov_b64 exec, 1
    s_mov_b32 s{S_T0}, 0
    s_mov_b32 s{S_T1}, s{S_XCC}
    v_mov_b32 v3, v250
    s_branch L_role_see
L_role_try:
    s_add_u32 s{S_T1}, s{S_XCC}, s{S_T0}
    s_and_b32 s{S_T1}, s{S_T1}, 7
    s_and_b32 s{S_ROLE}, s{S_T1}, 1
    s_lshl_b32 s{S_ROLE}, s{S_ROLE}, 7
    s_and_b32 s{S_SPIN}, s{S_T1}, 6
    s_lshl_b32 s{S_SPIN}, s{S_SPIN}, 1
    s_add_u32 s{S_ROLE}, s{S_ROLE}, s{S_SPIN}
    v_mov_b32 v2, s{S_ROLE}
    v_mov_b32 v3, 1
    buffer_atomic_add v3, v2, s[{S_DBG}:{S_DBG+3}], 0 offen sc0
    s_waitcnt vmcnt(0)
L_role_see:
    v_readfirstlane_b32 s{S_ROLE}, v3
    s_cmp_lt_u32 s{S_ROLE}, 32
    s_cbranch_scc1 L_role_got
    s_add_u32 s{S_T0}, s{S_T0}, 1
    s_cmp_lt_u32 s{S_T0}, 8
    s_cbranch_scc1 L_role_try
    s_mov_b32 s{S_ROLE}, 31
    s_mov_b32 s{S_T1}, 0
L_role_got:
    s_lshl_b32 s{S_T1}, s{S_T1}, 5
    s_add_u32 s{S_ROLE}, s{S_ROLE}, s{S_T1}
    v_mov_b32 v2, s{S_ROLE}
    ds_write_b32 v4, v2
    s_mov_b64 exec, -1
    s_waitcnt lgkmcnt(0)
L_role_wait:
    s_barrier
    ds_read_b32 v2, v4
    s_waitcnt lgkmcnt(0)
    v_readfirstlane_b32 s{S_ROLE}, v2
    """)

def wait_ln(a, lane, t, sleep=8):
    l = a.newlabel('L_wa'); d = a.newlabel('L_wad')
    a(f"""
    s_lshl_b32 s{S_T0}, s{S_WAVE}, 13
    s_add_u32 s{S_T0}, s{S_T0}, {L.FL}
    s_add_u32 s{S_T1}, s80, 7
    v_lshlrev_b32 v{t+8}, 7, v{lane}
    s_mov_b32 s{S_SPIN}, 0
{l}:
    buffer_load_dwordx4 v[{t}:{t+3}], v{t+8}, s[{S_WS}:{S_WS+3}], s{S_T0} offen sc1
    buffer_load_dwordx4 v[{t+4}:{t+7}], v{t+8}, s[{S_WS}:{S_WS+3}], s{S_T0} offen offset:16 sc1
    s_add_u32 s{S_SPIN}, s{S_SPIN}, 1
    s_waitcnt vmcnt(0)
    """)
    for k in range(4):
        a(f'v_xor_b32 v{t+2*k}, s{S_T1}, v{t+2*k}\nv_xor_b32 v{t+2*k+1}, s81, v{t+2*k+1}')
    a(f"""
    v_or3_b32 v{t}, v{t}, v{t+1}, v{t+2}
    v_or3_b32 v{t+3}, v{t+3}, v{t+4}, v{t+5}
    v_or3_b32 v{t}, v{t}, v{t+6}, v{t+7}
    v_or_b32 v{t}, v{t}, v{t+3}
    v_cmp_ne_u32 vcc, 0, v{t}
    s_cbranch_vccz {d}
    s_sleep {sleep}
    s_cmp_lt_u32 s{S_SPIN}, {SPIN_MAX*4}
    s_cbranch_scc1 {l}
{d}:
    s_barrier
    """)

STAGE1 = (0, 4, 8, 11)
def load_tiles(a, tiles, vaddr, sbase, stage, flags, bud, cap=None):
    for off, dsts in tiles:
        cur = None
        for k in range(14):
            if stage is not None and (k in STAGE1) != (stage == 1): continue
            if cur != k // 4:
                cur = k // 4
                a(f's_add_u32 s{S_T0}, s{sbase}, {off + cur*4096}')
            a(f'buffer_load_dwordx4 {dsts[k]}, v{vaddr}, s[{S_WS}:{S_WS+3}], s{S_T0} offen offset:{(k%4)*1024} {flags}')
            bud[0] += 1
            if cap is not None:
                if bud[0] > cap: a(f's_waitcnt vmcnt({cap})')
            elif bud[0] >= 56:
                a('s_waitcnt vmcnt(28)'); bud[0] = 28

def team_register(a):
    l = a.newlabel('L_reg')
    a(f'''
    s_cmp_lg_u32 s{S_WAVE}, 0
    s_cbranch_scc1 {l}
    s_cmp_eq_u32 s{S_XCC}, 0
    s_cselect_b32 s{S_T0}, 1, 0x10001
    s_mov_b64 exec, 1
    v_mov_b32 v2, 64
    v_mov_b32 v3, s{S_T0}
    buffer_atomic_add v3, v2, s[{S_DBG}:{S_DBG+3}], 0 offen
    s_mov_b64 exec, -1
{l}:
    ''')

def team_mode_load(vt0, vt1):
    return f'v_mov_b32 v{vt0}, 64\nbuffer_load_dword v{vt1}, v{vt0}, s[{S_DBG}:{S_DBG+3}], 0 offen sc1'

def team_mode(a, vt0, vt1, primed=False):
    l = a.newlabel('L_mode'); d = a.newlabel('L_moded'); p = a.newlabel('L_modep')
    a(f'''
    s_mov_b32 s{S_SPIN}, 0
    {f's_branch {p}' if primed else ''}
{l}:
    {team_mode_load(vt0, vt1)}
{p}:
    s_waitcnt vmcnt(0)
    v_readfirstlane_b32 s{S_T0}, v{vt1}
    s_and_b32 s{S_T1}, s{S_T0}, 0xffff
    s_cmp_ge_u32 s{S_T1}, {NTEAM}
    s_cbranch_scc1 {d}
    s_sleep 2
    s_add_u32 s{S_SPIN}, s{S_SPIN}, 1
    s_cmp_lt_u32 s{S_SPIN}, {SPIN_MAX}
    s_cbranch_scc1 {l}
    s_mov_b32 s{S_T0}, 0x10000
{d}:
    s_lshr_b32 s{S_T0}, s{S_T0}, 16
    s_cmp_eq_u32 s{S_T0}, 0
    s_cselect_b32 s{S_FAST}, 1, 0
    s_mov_b32 s{S_LIM}, {SPIN_MAX}
    ''')

def stamp(a, stamps, idx, vt=None):
    if not stamps: return
    a(f's_memtime s[{40+2*idx}:{41+2*idx}]')
    if idx == 2: a('s_memrealtime s[60:61]')

def stamp_flush(a, stamps, n, vt):
    if not stamps: return
    a('s_waitcnt lgkmcnt(0)')
    for k in range(n):
        a(f'v_writelane_b32 v{vt}, s{40+2*k}, {k}')
    a(f"""
    v_lshrrev_b32 v{vt+1}, 1, v0
    s_mov_b64 exec, {(1 << n) - 1}
    buffer_store_dword v{vt}, v{vt+1}, s[{S_WS}:{S_WS+3}], s{S_STMP} offen
    s_mov_b64 exec, -1
    """)

def wreg(wb, vbase):
    return ar(8*wb, 8) if wb < 32 else vr(vbase + 8*(wb-32), 8)
def wreg_half(wb, vbase, half):
    return ar(8*wb + 4*half, 4) if wb < 32 else vr(vbase + 8*(wb-32) + 4*half, 4)

def xlane4(a, op, x, t):
    a(f'''
    v_mov_b32 v{t}, v{x}
    v_permlane16_swap_b32 v{x}, v{t}
    {op} v{x}, v{x}, v{t}
    v_mov_b32 v{t}, v{x}
    v_permlane32_swap_b32 v{x}, v{t}
    {op} v{x}, v{x}, v{t}
    ''')

QP = 'quad_perm:[2,3,0,1] row_mask:0xf bank_mask:0xf'

def read_mf(a, V):
    for b in range(7):
        a(f"ds_read_b64_tr_b16 v[{V['mf']+4*b}:{V['mf']+4*b+1}], v{V['l8']} offset:{LDS_M+b*1024}")
        a(f"ds_read_b64_tr_b16 v[{V['mf']+4*b+2}:{V['mf']+4*b+3}], v{V['l8']} offset:{LDS_M+b*1024+512}")

def SM(acc, A, B, idx):
    return f'v_smfmac_f32_16x16x64_bf16 v[{acc}:{acc+3}], v[{A}:{A+3}], {B}, v{idx}'


class Q:
    def __init__(self, name, cap):
        self.name = name; self.n = 0; self.tags = {}; self.done = 0; self.cap = cap
    def issue(self, tag=None):
        self.n += 1
        if tag is not None: self.tags[tag] = self.n
    def wait(self, tag):
        k = self.tags[tag]
        if k <= self.done: return ''
        self.done = k
        return 's_waitcnt %s(%d)' % (self.name, min(self.n - k, self.cap))
    def drain(self):
        self.done = self.n
        return 's_waitcnt %s(0)' % self.name

WSRD = f's[{S_WS}:{S_WS+3}]'

def poll_m(a, V, sleep=0):
    t = V['mf']; pa = V['pa']
    l = a.newlabel('L_pm'); d = a.newlabel('L_pmd')
    a(f"""
    s_mov_b32 s{S_SPIN}, 0
{l}:
    buffer_load_dwordx4 v[{t}:{t+3}], v{pa}, {WSRD}, s{S_MOFF} offen sc1
    buffer_load_dwordx4 v[{t+4}:{t+7}], v{pa}, {WSRD}, s{S_MOFF} offen offset:768 sc1
    s_add_u32 s{S_SPIN}, s{S_SPIN}, 1
    s_waitcnt vmcnt(1)
    ds_write_b128 v{pa}, v[{t}:{t+3}]
    v_max3_u32 v{t+8}, v{t}, v{t+1}, v{t+2}
    s_waitcnt vmcnt(0)
    ds_write_b128 v{pa}, v[{t+4}:{t+7}] offset:768
    v_max3_u32 v{t+8}, v{t+8}, v{t+3}, v{t+4}
    v_max3_u32 v{t+8}, v{t+8}, v{t+5}, v{t+6}
    v_max_u32 v{t+8}, v{t+8}, v{t+7}
    v_cmp_eq_u32 vcc, -1, v{t+8}
    s_cbranch_vccz {d}
    {'s_sleep %d' % sleep if sleep else ''}
    s_cmp_lt_u32 s{S_SPIN}, s{S_LIM}
    s_cbranch_scc1 {l}
    s_mov_b32 s{S_LIM}, 1
{d}:
    s_waitcnt lgkmcnt(0)
    s_barrier
    """)

def poll_m2(a, V, gap, x):
    pa = V['pa']; sets = (V['acc']+8, V['acc']+16)
    l = a.newlabel('L_pm'); d = a.newlabel('L_pmd')
    def issue(t):
        a(f"""
        buffer_load_dwordx4 v[{t}:{t+3}], v{pa}, {WSRD}, s{S_MOFF} offen sc1
        buffer_load_dwordx4 v[{t+4}:{t+7}], v{pa}, {WSRD}, s{S_MOFF} offen offset:768 sc1
        """)
    def check(t):
        a(f"""
        s_add_u32 s{S_SPIN}, s{S_SPIN}, 1
        s_waitcnt vmcnt(3)
        ds_write_b128 v{pa}, v[{t}:{t+3}]
        v_max3_u32 v{x}, v{t}, v{t+1}, v{t+2}
        s_waitcnt vmcnt(2)
        ds_write_b128 v{pa}, v[{t+4}:{t+7}] offset:768
        v_max3_u32 v{x}, v{x}, v{t+3}, v{t+4}
        v_max3_u32 v{x}, v{x}, v{t+5}, v{t+6}
        v_max_u32 v{x}, v{x}, v{t+7}
        v_cmp_eq_u32 vcc, -1, v{x}
        """)
    a(f's_mov_b32 s{S_SPIN}, 0')
    issue(sets[0])
    while gap > 0:
        a(f's_nop {min(gap, 16) - 1}'); gap -= 16
    issue(sets[1]); check(sets[0])
    a(f's_cbranch_vccnz {l}\n{d}:\ns_waitcnt lgkmcnt(0)\ns_barrier')
    def cold():
        a.label(l)
        issue(sets[0]); check(sets[1])
        a(f's_cbranch_vccz {d}')
        issue(sets[1]); check(sets[0])
        a(f"""
        s_cbranch_vccz {d}
        s_cmp_lt_u32 s{S_SPIN}, s{S_LIM}
        s_cbranch_scc1 {l}
        s_mov_b32 s{S_LIM}, 1
        s_branch {d}
        """)
    a.cold.append(cold)

def wait_hint(a, vaddr, soff, regs, imm=0, delay=0, gap=12, inner=8, fill=None, primed=False):
    n = len(regs)
    l = a.newlabel('L_h'); d = a.newlabel('L_hd')
    ld = lambda r: f'buffer_load_dword v{r}, v{vaddr}, {WSRD}, s{soff} offen offset:{imm} sc1'
    a(f's_mov_b32 s{S_SPIN}, 0')
    fill = list(fill or [])
    per = -(-len(fill) // (n-1))
    for k in range(0 if primed else n-1):
        a(ld(regs[k]))
        for x in fill[k*per:(k+1)*per]: a(x)
        if per < gap: a(f's_nop {gap - per}')
    a.label(l)
    for k in range(n):
        a(f"""
        {ld(regs[(k+n-1) % n])}
        s_waitcnt vmcnt({n-1})
        v_cmp_eq_u32 vcc, -1, v{regs[k]}
        s_cbranch_vccz {d}
        s_nop {inner}
        """)
    a(f"""
    s_add_u32 s{S_SPIN}, s{S_SPIN}, 1
    s_cmp_lt_u32 s{S_SPIN}, s{S_LIM}
    s_cbranch_scc1 {l}
{d}:
    """)
    while delay > 0:
        a(f's_nop {min(delay, 16) - 1}'); delay -= 16

def wait_cnt(a, off_sgpr, target, vt, sleep=4, primed=False):
    l = a.newlabel('L_wc'); d = a.newlabel('L_wcd'); p = a.newlabel('L_wcp')
    a(f"""
    s_mov_b32 s{S_SPIN}, 0
    v_mov_b32 v{vt}, 0
    {f's_branch {p}' if primed else ''}
{l}:
    buffer_load_dword v{vt+1}, v{vt}, {WSRD}, s{off_sgpr} offen sc1
{p}:
    s_add_u32 s{S_SPIN}, s{S_SPIN}, 1
    s_waitcnt vmcnt(0)
    v_readfirstlane_b32 s{S_T0}, v{vt+1}
    s_cmp_ge_u32 s{S_T0}, {target}
    s_cbranch_scc1 {d}
    s_sleep {sleep}
    s_cmp_lt_u32 s{S_SPIN}, s{S_LIM}
    s_cbranch_scc1 {l}
    s_mov_b32 s{S_LIM}, 1
{d}:
    """)

def img_addr(a, dst, t, lane):
    a(f"""
    v_bfe_u32 v{dst}, v{lane}, 3, 1
    v_lshlrev_b32 v{dst}, 9, v{dst}
    v_bfe_u32 v{t}, v{lane}, 2, 1
    v_lshl_add_u32 v{dst}, v{t}, 6, v{dst}
    v_and_b32 v{t}, 1, v{lane}
    v_lshl_add_u32 v{dst}, v{t}, 5, v{dst}
    v_lshrrev_b32 v{t}, 4, v{lane}
    v_lshl_add_u32 v{dst}, v{t}, 3, v{dst}
    v_bfe_u32 v{t}, v{lane}, 1, 1
    v_lshl_add_u32 v{dst}, v{t}, 2, v{dst}
    """)

def common_addrs(a, V, LN):
    a(f"""
    v_lshlrev_b32 v{V['l8']}, 3, v{LN}
    s_mul_i32 s{S_T0}, s{S_WAVE}, {112*16}
    v_lshlrev_b32 v{V['pa']}, 4, v{LN}
    v_add_u32 v{V['pa']}, s{S_T0}, v{V['pa']}
    v_and_b32 v{LN+1}, 2, v{LN}
    v_cmp_ne_u32 vcc, 0, v{LN+1}
    v_mov_b32 v{LN+1}, 0x4444
    v_mov_b32 v{LN+2}, 0xeeee
    v_cndmask_b32 v{V['idx']}, v{LN+1}, v{LN+2}, vcc
    """)

def load_1k_run(a, dsts, vaddr, sbase, flags='', budget=None):
    for i, d in enumerate(dsts):
        if i and i % 4 == 0:
            a(f's_add_u32 s{sbase}, s{sbase}, 4096')
        a(f'buffer_load_dwordx4 {d}, v{vaddr}, {WSRD}, s{sbase} offen offset:{(i%4)*1024} {flags}')
        if budget is not None:
            budget[0] += 1
            if budget[0] >= 56:
                a('s_waitcnt vmcnt(28)'); budget[0] = 28

class Gaps:
    def __init__(self, n):
        self.ds = [[] for _ in range(n)]; self.va = [[] for _ in range(n)]; self.pre = [[] for _ in range(n)]
        self.n = n
    def put(self, kind, g, text, excl=False):
        while g < self.n - 1:
            if excl:
                if not self.ds[g] and not self.va[g]: break
            else:
                lst = self.ds[g] if kind == 'ds' else self.va[g]
                other = self.va[g] if kind == 'ds' else self.ds[g]
                if not lst and not (other and other[-1][1]): break
            g += 1
        (self.ds if kind == 'ds' else self.va)[g].append((text, excl))
        return g
    def force(self, kind, g, text):
        (self.ds if kind == 'ds' else self.va)[min(g, self.n-1)].append((text, False))

def emit_stream(a, mf, gp, lq, pre=None):
    for i, (m, tags) in enumerate(mf):
        for tg in tags:
            w = lq.wait(tg)
            if w: a(w)
        a(m)
        for lst in (gp.ds[i], gp.va[i]):
            for x, _ in lst:
                t = x(lq) if callable(x) else x
                if t: a(t)

def dsop(text, tag=None):
    def f(lq):
        lq.issue(tag); return text
    return f
def dswait(tag, then=''):
    def f(lq):
        return lq.wait(tag) + '\n' + then
    return f

SV = dict(l8=0, pa=1, idx=2, k1=3, mf=12, acc=40, w=64)
def tile_of(w, u):
    if u < 5: return (u, w)
    order = {(0, 5): (5, 0), (1, 5): (5, 1), (2, 5): (5, 2), (2, 6): (5, 3), (0, 6): (6, 0), (1, 6): (6, 1), (0, 7): (6, 2), (1, 7): (6, 3)}
    return order[(w, u)]
NUNIT = [8, 8, 7, 5]
F = dict(l16=4, px=5, pm=6, mk0=7, mk1=8, mk2=9, wz=10, xf=88, tf=200, sa=228, t=240)

def score_setup(a, stamps, cfg):
    V = SV; LN = 44
    a(f'v_mov_b32 v{LN}, v1')
    team_register(a)
    common_addrs(a, V, LN)
    img_addr(a, V['k1'], LN+1, LN)
    g, cc, par, ib, t = LN+1, LN+2, LN+3, LN+4, LN+5
    a(f"""
    v_lshlrev_b32 v{F['l16']}, 4, v{LN}
    v_lshrrev_b32 v{g}, 4, v{LN}
    v_bfe_u32 v{cc}, v{LN}, 2, 2
    v_bfe_u32 v{par}, v{LN}, 1, 1
    v_and_b32 v{ib}, 1, v{LN}
    v_and_b32 v{t}, 15, v{LN}
    v_lshlrev_b32 v{F['px']}, 4, v{t}
    v_lshrrev_b32 v{t}, 1, v{g}
    v_lshl_add_u32 v{F['px']}, v{t}, 8, v{F['px']}
    v_and_b32 v{t}, 1, v{g}
    v_lshl_add_u32 v{F['px']}, v{t}, 3, v{F['px']}
    s_and_b32 s{S_T0}, s{S_ROLE}, 1
    s_lshl_b32 s{S_T0}, s{S_T0}, 4
    s_lshr_b32 s{S_T1}, s{S_ROLE}, 2
    s_lshl_b32 s{S_T1}, s{S_T1}, 9
    s_add_u32 s{S_T0}, s{S_T0}, s{S_T1}
    s_and_b32 s{S_T1}, s{S_ROLE}, 2
    s_lshl_b32 s{S_T1}, s{S_T1}, 1
    s_add_u32 s{S_T0}, s{S_T0}, s{S_T1}
    s_add_u32 s{S_T0}, s{S_T0}, 8192
    v_and_b32 v{F['pm']}, 0xffffffef, v{V['l8']}
    v_add_u32 v{F['pm']}, s{S_T0}, v{F['pm']}
    s_lshl_b32 s{S_T0}, s{S_ROLE}, 9
    v_add_u32 v{F['px']}, s{S_T0}, v{F['px']}
    v_lshlrev_b32 v{t}, 4, v{ib}
    v_mov_b32 v{F['mk2']}, 0xffff
    v_lshlrev_b32 v{F['mk2']}, v{t}, v{F['mk2']}
    v_cmp_eq_u32 vcc, v{cc}, v{g}
    v_mov_b32 v{t}, 0
    v_cndmask_b32 v{F['mk2']}, v{t}, v{F['mk2']}, vcc
    v_cmp_eq_u32 vcc, 0, v{par}
    v_mov_b32 v{t+1}, 0xff800000
    v_cndmask_b32 v{F['mk0']}, v{t}, v{F['mk2']}, vcc
    v_cndmask_b32 v{F['mk1']}, v{F['mk2']}, v{t}, vcc
    v_cndmask_b32 v{F['wz']}, v{t+1}, v{t}, vcc
    s_mul_i32 s{S_T1}, s{S_ROLE}, {28*14336}
    s_add_u32 s{S_T1}, s{S_T1}, {L.WT}
    """)
    done = a.newlabel('L_sw')
    fz = cfg['fused']
    if fz:
        a(f"v_min_u32 v{LN+8}, 27, v{LN}\nv_lshlrev_b32 v{LN+8}, 3, v{LN+8}\ns_mul_i32 s{S_T0}, s{S_ROLE}, {14*32}\nv_add_u32 v{LN+8}, s{S_T0}, v{LN+8}")
        wait_flags(a, LN+8, 1, LN+10)
    for w in range(4):
        nx = a.newlabel('L_swn')
        if w < 3: a(f's_cmp_lg_u32 s{S_WAVE}, {w}\ns_cbranch_scc1 {nx}')
        tiles = []
        for u in range(NUNIT[w]):
            b, ga = tile_of(w, u)
            tiles.append(((4*b+ga)*14336, [wreg_half(u*7 + k//2, V['w'], k % 2) for k in range(14)]))
        if fz:
            load_tiles(a, tiles, F['l16'], S_T1, 1, cfg['wfl'], [0])
            wait_flags(a, LN+8, 7, LN+10)
            load_tiles(a, tiles, F['l16'], S_T1, 2, cfg['wfl'], [0])
        else:
            load_tiles(a, tiles, F['l16'], S_T1, None, cfg['wfl'], [0], cfg['scap'])
        if w < 3: a(f's_branch {done}\n{nx}:')
    a(f"""
{done}:
    {team_mode_load(V['mf'], V['mf']+1) if not fz else ''}
    s_mov_b32 s{S_STEP}, 0
    s_mov_b32 s{S_MOFF}, {L.MB_M}
    s_mov_b32 s{S_POFF}, {L.MB_P}
    s_mov_b32 s{S_GOFF}, {L.XN}
    s_lshl_b32 s{S_STMP}, s{S_ROLE}, 2
    s_add_u32 s{S_STMP}, s{S_STMP}, s{S_WAVE}
    s_lshl_b32 s{S_STMP}, s{S_STMP}, 12
    s_add_u32 s{S_STMP}, s{S_STMP}, {L.STAMP}
    """)
    if fz:
        wait_ln(a, LN, 12)
    else:
        nf = a.newlabel('L_nx0')
        a(f's_cmp_lg_u32 s{S_WAVE}, 3\ns_cbranch_scc1 {nf}\ns_waitcnt vmcnt(30)\ns_mov_b32 s{S_T0}, s{S_GOFF}')
        load_1k_run(a, [vr(F['xf'] + 4*k, 4) for k in range(28)], F['l16'], S_T0, cfg['wfl'])
        a.label(nf)
    team_mode(a, V['mf'], V['mf']+1, primed=not fz)

def step_advance(a, gstride, xstride=114688):
    a(f"""
    s_add_u32 s{S_STEP}, s{S_STEP}, 1
    s_add_u32 s{S_MOFF}, s{S_MOFF}, 8192
    s_add_u32 s{S_POFF}, s{S_POFF}, 16384
    s_add_u32 s{S_GOFF}, s{S_GOFF}, {gstride}
    s_add_u32 s{S_XOFF}, s{S_XOFF}, {xstride}
    s_add_u32 s{S_STMP}, s{S_STMP}, 64
    """)

def rowred(a, op, x):
    for m in ('row_ror:8', 'row_ror:4', 'row_ror:2', 'row_ror:1'):
        for r in (x, x+1):
            a(f'{op}_dpp v{r}, v{r}, v{r} {m} row_mask:0xf bank_mask:0xf')

def score_wave(a, w, pf, stamps, cfg):
    V = SV; idx = V['idx']; mf = V['mf']
    top = a.newlabel(f'L_sc{w}_top'); first = a.newlabel(f'L_sc{w}_first')
    nunit = NUNIT[w]
    accof = lambda u: V['acc'] + 4*(u % 6)
    ok = {0: (0, 9, 2), 1: (2,), 2: (0, 9, 1, 2), 3: (4,) if cfg['fin1'] else (7, 8, 4)}[w]
    ST = (lambda k: f's_memtime s[{40+2*k}:{41+2*k}]' if k in ok else '') if stamps else (lambda k: '')
    def stamp(a, stamps, k):
        a(ST(k))
    xf, tf, sa, T = F['xf'], F['tf'], F['sa'], F['t']
    FA, FV = 8, 9
    HA = 11
    HT = ([5, 6, 7, 10] if w < 3 else [T+4, T+5, T+6, T+7])[:cfg['hdepth']]
    def load_x():
        a(f's_mov_b32 s{S_T0}, s{S_GOFF}')
        load_1k_run(a, [vr(xf + 4*k, 4) for k in range(28)], F['l16'], S_T0, cfg['wfl'])
    XW = cfg['xw']
    def dma_x(a=a, rng=None, ahead=1):
        lo, hi = rng or XW[w]
        if hi <= lo: return
        a(f"""
        s_and_b32 s{S_T0}, s{S_STEP}, 1
        s_xor_b32 s{S_T0}, s{S_T0}, {ahead & 1}
        s_mul_i32 s{S_T0}, s{S_T0}, 28672
        s_add_u32 s{S_T0}, s{S_T0}, {LDS_X + lo*1024}
        s_add_u32 s{S_T1}, s{S_GOFF}, {ahead*28672 + lo*1024 - w*1792}
        """)
        for k in range(hi - lo):
            if k % 4 == 0:
                if k: a(f's_add_u32 s{S_T0}, s{S_T0}, 4096\ns_add_u32 s{S_T1}, s{S_T1}, 4096')
                a(f's_mov_b32 m0, s{S_T0}')
            a(f"buffer_load_dwordx4 v{V['pa']}, {WSRD}, s{S_T1} offen offset:{(k%4)*1024} {cfg['wfl']} lds")
    def read_x():
        a(f"""
        s_and_b32 s{S_T0}, s{S_STEP}, 1
        s_mul_i32 s{S_T0}, s{S_T0}, 28672
        v_add_u32 v{T}, s{S_T0}, v{F['l16']}
        """)
        for k in range(28): a(f'ds_read_b128 v[{xf+4*k}:{xf+4*k+3}], v{T} offset:{LDS_X + k*1024}')
    def zero_acc():
        for u in range(2 if cfg['m2'] else min(6, nunit)):
            a(f'v_mov_b64 v[{accof(u)}:{accof(u)+1}], 0\nv_mov_b64 v[{accof(u)+2}:{accof(u)+3}], 0')
        if w == 3:
            for k in range(4): a(f'v_mov_b64 v[{sa+2*k}:{sa+2*k+1}], 0')
            a(f"v_mov_b32 v{sa+8}, v{F['wz']}\nv_mov_b32 v{sa+9}, v{F['wz']}\nv_mov_b64 v[{sa+10}:{sa+11}], 0")
    a(f"v_lshrrev_b32 v{HA}, 1, v{V['l8']}\nv_min_u32 v{HA}, {(27 if cfg['cert'] else 55)*4}, v{HA}\ns_and_b32 s{S_T0}, s{S_ROLE}, 3\ns_lshl_b32 s{S_T0}, s{S_T0}, 8\ns_add_u32 s{S_T0}, s{S_T0}, 7168\nv_add_u32 v{HA}, s{S_T0}, v{HA}")
    if cfg['h64']:
        a(f"""
        v_lshrrev_b32 v{HA}, 3, v{V['l8']}
        v_min_u32 v{HA}, 55, v{HA}
        v_and_b32 v{mf}, 3, v{HA}
        v_lshrrev_b32 v{HA}, 2, v{HA}
        v_lshlrev_b32 v{HA}, 6, v{HA}
        v_lshl_add_u32 v{HA}, v{mf}, 2, v{HA}
        v_add_u32 v{HA}, 7168, v{HA}
        """)
    if w == 3:
        if cfg['fused']: load_x()
        a(f'v_and_b32 v{T+12}, {15*8}, v0\nv_lshlrev_b32 v{T+12}, 3, v{T+12}\nv_add_u32 v{T+12}, 6144, v{T+12}')
        if stamps: a('s_mov_b32 s40, 0\ns_mov_b32 s42, 0\ns_mov_b32 s44, 0')
        a(f's_mov_b32 s{S_EOFF}, 0\ns_lshl_b32 s{S_T0}, s{S_ROLE}, 2\ns_add_u32 s{S_T0}, s{S_T0}, 12288\nv_lshlrev_b32 v{T+14}, 4, v0\nv_add_u32 v{T+14}, s{S_T0}, v{T+14}\nv_mov_b32 v{T+15}, 0')
    else:
        a(f"v_add_u32 v{FA}, {LDS_FL + 4*w}, v{F['l16']}\nv_mov_b32 v{FV}, 0")
        for k in range(5): a(f'ds_write_b32 v{FA}, v{FV} offset:{k*1024}')
        a(f'v_and_b32 v4, {31*8}, v0\nv_lshlrev_b32 v4, 3, v4\nv_add_u32 v4, {w*2048}, v4')
    if w < 3 and not cfg['xin']: dma_x(rng=[(0, 9), (9, 18), (18, 28)][w])
    if cfg['prio'][w]: a(f"s_setprio {cfg['prio'][w]}")
    zero_acc()
    if cfg.get('wgd'): a('s_memrealtime s[88:89]\ns_memrealtime s[96:97]')
    a(f's_branch {first}')
    if cfg['al'] is not None:
        a.raw('    .p2align 6')
        for _ in range(cfg['al'][w]): a.raw('    s_nop 0')
    a.label(top)
    zero_acc()
    stamp(a, stamps, 0)
    if cfg['cert']:
        got = a.newlabel('L_got')
        a(f'v_add_u32 v{FV}, 1, v{FV}' if w < 3 else f's_add_u32 s{S_EOFF}, s{S_EOFF}, 1')
        a(f's_mov_b32 s{S_SAFE}, 0')
        if w == 0:
            ND = cfg['cert']; regs = HT[:ND]
            lp = a.newlabel('L_ct'); dn = a.newlabel('L_ctd')
            def rnd(r):
                a(f'buffer_load_dword v{r}, v{HA}, {WSRD}, s{S_MOFF} offen sc1\ns_mov_b32 m0, {LDS_M}')
                for k in range(7):
                    if k == 4: a(f's_mov_b32 m0, {LDS_M + 4096}')
                    a(f"buffer_load_dwordx4 v{V['pa']}, {WSRD}, s{S_MOFF if k < 4 else S_T0} offen offset:{(k%4)*1024} sc1 lds")
            a(f's_add_u32 s{S_T0}, s{S_MOFF}, 4096\ns_mov_b32 s{S_SPIN}, 0')
            a(ST(9))
            for k in range(ND-1): rnd(regs[k])
            a.label(lp)
            for k in range(ND):
                rnd(regs[(k+ND-1) % ND])
                a(f"""
                s_add_u32 s{S_SPIN}, s{S_SPIN}, 1
                s_waitcnt vmcnt({8*ND-1})
                v_cmp_eq_u32 vcc, -1, v{regs[k]}
                s_cbranch_vccz {dn}
                """)
            a(f's_cmp_lt_u32 s{S_SPIN}, s{S_LIM}\ns_cbranch_scc1 {lp}\n{dn}:\ns_waitcnt vmcnt({8*(ND-1)}) lgkmcnt(0)')
        else:
            a('s_waitcnt vmcnt(0) lgkmcnt(0)')
        a(f's_barrier\n{got}:')
        def coldf():
            a.label(first)
            a(f'v_add_u32 v{FV}, 1, v{FV}' if w < 3 else f's_add_u32 s{S_EOFF}, s{S_EOFF}, 1')
            a(f's_mov_b32 s{S_SAFE}, 1')
            poll_m(a, V)
            a(f's_branch {got}')
        a.cold.append(coldf)
    else:
        if cfg['msamp'] == 2: a(f'v_mov_b32 v{mf if w < 3 else T+13}, 0')
        if cfg['mdma'] == 2: a(f's_mov_b32 m0, {LDS_M}\ns_add_u32 s{S_T0}, s{S_MOFF}, 4096')
        elif cfg['split']: a(f's_mov_b32 m0, {LDS_M + w*1024}\ns_sub_u32 s{S_T0}, s{S_MOFF}, {w*768}\ns_add_u32 s{S_T1}, s{S_T0}, 4096')
        elif cfg['mdma']: a(f's_mov_b32 m0, {LDS_M + w*2048}\ns_add_u32 s{S_T0}, s{S_MOFF}, {w*2048 - w*1792}')
        if not cfg['cutrig'] or w == 0: wait_hint(a, HA, S_MOFF, HT, delay=cfg['mdelay'], inner=cfg['hinner'])
        if cfg['cutrig'] and cfg['mdma'] != 2: a('s_barrier')
    if cfg['cert']: pass
    elif cfg['mdma']:
        got = a.newlabel('L_got')
        a(ST(9))
        if cfg['split']:
            a(f"buffer_load_dwordx4 v{V['pa']}, {WSRD}, s{S_T0} offen sc1 lds")
            a(f'v_add_u32 v{FV}, 1, v{FV}' if w < 3 else f's_add_u32 s{S_EOFF}, s{S_EOFF}, 1')
            a(f's_mov_b32 s{S_SAFE}, 0\ns_mov_b32 s{S_SPIN}, 1\ns_mov_b32 m0, {LDS_M + 4096 + w*1024}')
            if w < 3:
                a(f"s_nop {cfg['split']}\nbuffer_load_dwordx4 v{V['pa']}, {WSRD}, s{S_T1} offen sc1 lds")
            a(f's_waitcnt vmcnt({1 if w < 3 else 0}) lgkmcnt(0)\ns_barrier\n{got}:')
        else:
            nk = 2 if w < 3 else 1
            SA_ = (4 if w < 3 else T+12)
            def rnd(r):
                if cfg['msamp'] == 2:
                    a(f"s_mov_b64 exec, {0x55555555 if w < 3 else 0x5555}\nbuffer_load_dword v{r}, v{SA_}, {WSRD}, s{S_MOFF} offen sc1\ns_mov_b64 exec, -1")
                elif cfg['msamp']: a(f"buffer_load_dword v{r}, v{SA_}, {WSRD}, s{S_MOFF} offen sc1")
                for k in range(nk): a(f"buffer_load_dwordx4 v{V['pa']}, {WSRD}, s{S_T0} offen offset:{k*1024} sc1 lds")
            r0, r1 = (mf, HT[1]) if w < 3 else (T+13, T+15)
            two = cfg['m2d']
            rnd(r0)
            a(f'v_add_u32 v{FV}, 1, v{FV}' if w < 3 else f's_add_u32 s{S_EOFF}, s{S_EOFF}, 1')
            a(f's_mov_b32 s{S_SAFE}, 0\ns_mov_b32 s{S_SPIN}, 1')
            if two:
                gap = two
                while gap > 0:
                    a(f's_nop {min(gap, 16) - 1}'); gap -= 16
                rnd(r1)
            ex = (nk+1) if two else 0
            bad = a.newlabel('L_mbad'); okl = a.newlabel('L_mok')
            a(f"""
            {f's_waitcnt vmcnt({nk + ex})' if cfg['msamp'] else ''}
            {f'v_cmp_eq_u32 vcc, -1, v{r0}' if cfg['msamp'] else ''}
            {f's_cbranch_vccnz {bad}' if cfg['msamp'] else ''}
            s_waitcnt vmcnt({ex}) lgkmcnt(0)
{okl}:
            s_barrier
{got}:
            """)
            def coldb():
                lp = a.newlabel('L_mlp')
                a.label(bad)
                if two:
                    a(f's_mov_b32 s{S_SPIN}, 2\ns_waitcnt vmcnt(0) lgkmcnt(0)\nv_cmp_eq_u32 vcc, -1, v{r1}\ns_cbranch_vccz {okl}')
                a.label(lp)
                rnd(r0)
                a(f"""
                s_add_u32 s{S_SPIN}, s{S_SPIN}, 1
                s_waitcnt vmcnt(0) lgkmcnt(0)
                v_cmp_eq_u32 vcc, -1, v{r0}
                s_cbranch_vccz {okl}
                s_cmp_lt_u32 s{S_SPIN}, s{S_LIM}
                s_cbranch_scc1 {lp}
                s_mov_b32 s{S_LIM}, 1
                s_branch {okl}
                """)
            a.cold.append(coldb)
        def coldf():
            a.label(first)
            a(f'v_add_u32 v{FV}, 1, v{FV}' if w < 3 else f's_add_u32 s{S_EOFF}, s{S_EOFF}, 1')
            a(f's_mov_b32 s{S_SAFE}, 1')
            poll_m(a, V)
            a(f's_branch {got}')
        a.cold.append(coldf)
    else:
        a.label(first)
        a(f'v_add_u32 v{FV}, 1, v{FV}' if w < 3 else f's_add_u32 s{S_EOFF}, s{S_EOFF}, 1')
        a(ST(9))
        if cfg['m2']: poll_m2(a, V, cfg['m2'], mf)
        else: poll_m(a, V)
    stamp(a, stamps, 1)
    if stamps and w < 3: a(f's_mov_b32 s{40+2*7}, s{S_SPIN}')
    lq = Q('lgkmcnt', 15)
    mrd = [dsop(f"ds_read_b64_tr_b16 v[{mf+4*b+2*hf}:{mf+4*b+2*hf+1}], v{V['l8']} offset:{LDS_M+b*1024+hf*512}", ('mf', b))
           for b in range(7) for hf in range(2)]
    if cfg['split'] and cfg['sg'] < 0:
        for x in mrd[:cfg['spre']]: a(x(lq))
        a('s_waitcnt vmcnt(0)\ns_barrier')
    else:
        for x in mrd[:cfg['mpre']]: a(x(lq))
    order = [(u, b) for b in range(7) for u in range(2)] + [(u, b) for u in range(2, nunit) for b in range(7)]
    ms = [(SM(accof(u), mf+4*b, wreg(u*7 + b, V['w']), idx), [('mf', b)] if u == 0 else []) for u, b in order]
    last = {u: i for i, (u, b) in enumerate(order)}
    def smfma(b):
        t4 = tf + 4*b
        return [(f"v_mfma_f32_16x16x32_bf16 v[{sa+8}:{sa+11}], v[{t4}:{t4+3}], v[{mf+4*b}:{mf+4*b+3}], " + f'v[{sa+8}:{sa+11}]', [('tf', b)]),
                (SM(sa, t4, vr(xf + 8*b, 8), idx), []),
                (SM(sa+4, t4, vr(xf + 56 + 8*b, 8), idx), [])]
    def tread(b, hf):
        return dsop(f"ds_read_b64_tr_b16 v[{tf+4*b+2*hf}:{tf+4*b+2*hf+1}], v{V['l8']} offset:{LDS_T+b*1024+hf*512}", ('tf', b))
    phases = [(0, 1, 2), (3, 4)]
    starts = []
    if w == 3:
        for ph in phases:
            starts.append(len(ms))
            for b in ph: ms += smfma(b)
    n = len(ms)
    gp = Gaps(n)
    npre = cfg['spre'] if cfg['split'] and cfg['sg'] < 0 else cfg['mpre']
    for k, x in enumerate(mrd[npre:]):
        if cfg['split'] and cfg['sg'] >= 0 and k + npre >= 8:
            if k + npre == 8: gp.force('ds', cfg['sg'], 's_waitcnt vmcnt(0)\ns_barrier')
            gp.force('ds', cfg['sg'] + (k + npre - 8)*2//3, x)
        else: gp.put('ds', k, x)
    flag_after = {2, 4} | ({5} if w < 2 else {6})
    def post(u):
        A = accof(u); b, ga = tile_of(w, u)
        va = [f'v_add_f32 v{A}, v{A}, v{A+2}', f'v_add_f32 v{A+1}, v{A+1}, v{A+3}', f'v_cvt_pk_bf16_f32 v{A}, v{A}, v{A+1}']
        ds = [dsop(f"ds_write_b32 v{V['k1']}, v{A} offset:{LDS_T+b*1024+ga*128}", ('k', u))]
        if w < 3 and u in flag_after:
            ds.append(dsop(f'ds_write_b32 v{FA}, v{FV} offset:{sorted(flag_after).index(u)*1024}'))
        return va, ds
    g = 0
    done_at = {}
    for u in range(nunit - (0 if w == 3 else 1)):
        va, ds = post(u)
        g = max(g, last[u] + 3 - (len(va) - 3))
        for x in va: g = gp.put('va', g, x) + 1
        for x in ds: g = gp.put('ds', g, x, excl=True) + 1
        done_at[u] = g
    def zero_in_gaps(u, g):
        A = accof(u)
        for k in range(2):
            gg = g
            while gg < 7*u - 2 and (gp.va[gg] or (gp.ds[gg] and gp.ds[gg][-1][1])): gg += 1
            if gg >= 7*u - 2: gg = max(g, 7*u - 4 + k)
            gp.force('va', gg, f'v_mov_b64 v[{A+2*k}:{A+2*k+1}], 0')
    if cfg['m2']:
        gp.force('ds', cfg['m2w'], 's_waitcnt vmcnt(0)')
        for u in range(2, min(6, nunit)): zero_in_gaps(u, cfg['m2w'])
    for u in range(6, nunit): zero_in_gaps(u, done_at[u-6] + 1)
    if w == 3:
        for pi, ph in enumerate(phases):
            flagrd = f"ds_read_b128 v[{T}:{T+3}], v{F['l16']} offset:{LDS_FL + pi*1024}"
            lead = cfg['lead'][pi]
            g = max(starts[pi] - lead, done_at[max(ph)] if max(ph) < 5 else 0)
            g = min(g, starts[pi]-1)
            if cfg['pnop'][pi]: gp.force('ds', g, f"s_nop {cfg['pnop'][pi]-1}")
            gp.force('ds', g, dsop(flagrd, ('fl', pi)))
            ops = [tread(b, hf) for b in ph for hf in range(2)]
            for k, x in enumerate(ops):
                gp.force('ds', min(g + (k+1)//2, starts[pi]-1), x)
            FM = T+11
            def chk(lq, pi=pi):
                return lq.wait(('fl', pi)) + (f'\nv_min3_u32 v{FM}, v{T}, v{T+1}, v{T+2}' if pi == 0 else
                                              f'\nv_min3_u32 v{T}, v{T}, v{T+1}, v{T+2}\nv_min_u32 v{FM}, v{FM}, v{T}')
            gp.force('va', starts[pi], chk)
    if w == 3 and cfg['early']:
        eb = a.newlabel('L_eb'); ec = a.newlabel('L_ec')
        g = gp.put('va', done_at[0], f'v_cmp_u_f32 vcc, v{accof(0)+1}, v{accof(0)+2}')
        gp.force('va', g+1, f's_cbranch_vccnz {eb};nf\n{ec}:;nf')
        def colde():
            lp = a.newlabel('L_el'); dn = a.newlabel('L_ed')
            a(f'{eb}:\ns_cmp_lg_u32 s{S_SAFE}, 0\ns_cbranch_scc1 {ec}')
            if cfg.get('wgd'): a('s_add_u32 s86, s86, 1')
            a(f's_mov_b32 s{S_SPIN}, 0\n{lp}:\ns_mov_b32 s{S_T0}, s{S_MOFF}')
            load_1k_run(a, [vr(tf + 4*k, 4) for k in range(7)], F['l16'], S_T0, 'sc1')
            a(f's_add_u32 s{S_SPIN}, s{S_SPIN}, 1\ns_waitcnt vmcnt(0)\nv_max_u32 v{T}, v{tf}, v{tf+1}')
            for k in range(1, 14): a(f'v_max3_u32 v{T}, v{T}, v{tf+2*k}, v{tf+2*k+1}')
            a(f"""
            v_cmp_eq_u32 vcc, -1, v{T}
            s_cbranch_vccz {dn}
            s_cmp_lt_u32 s{S_SPIN}, s{S_LIM}
            s_cbranch_scc1 {lp}
            s_mov_b32 s{S_LIM}, 1
{dn}:
            """)
            for k in range(7): a(f"ds_write_b128 v{F['l16']}, v[{tf+4*k}:{tf+4*k+3}] offset:{LDS_M + k*1024}")
            a(f"""
            s_or_b32 s{S_T0}, s{S_EOFF}, 0x40000000
            v_mov_b32 v{T}, {LDS_VD}
            v_mov_b32 v{T+1}, s{S_T0}
            ds_write_b32 v{T}, v{T+1}
            """)
            zero_acc()
            a(f's_add_u32 s{S_EOFF}, s{S_EOFF}, 1\ns_mov_b32 s{S_SAFE}, 1\ns_waitcnt lgkmcnt(0)\ns_barrier\ns_barrier\ns_branch {got}')
        a.cold.append(colde)
    if cfg['xin'] and XW[w][1] > XW[w][0]:
        sub = Asm(); dma_x(sub)
        grp = []; cur = []
        for _, x in sub.items:
            cur.append(x.text)
            if x.text.startswith('buffer'): grp.append('\n'.join(cur)); cur = []
        g = cfg['xin']
        for x in grp: g = gp.put('ds', g, x) + cfg['xstep']
    if w == 0 and cfg['phint'] < 0:
        gp.force('ds', n - 1 + cfg['phint'], f"""s_mov_b64 exec, 15
            buffer_store_dword v{FV}, v4, {WSRD}, s{S_POFF} offen {pf}
            s_mov_b64 exec, -1""")
    emit_stream(a, ms, gp, lq)
    hint = f"""s_mov_b64 exec, 15
        buffer_store_dword v{T+15}, v{T+14}, {WSRD}, s{S_POFF} offen {pf}
        s_mov_b64 exec, -1"""
    if w < 3:
        va, ds = post(nunit-1)
        A_ = accof(nunit-1)
        va = [f'v_pk_add_f32 v[{A_}:{A_+1}], v[{A_}:{A_+1}], v[{A_+2}:{A_+3}]', va[-1]]
        for x in va: a(x)
        for x in ds: a(x(lq))
        if cfg['b3s']: a(f'ds_write_b32 v{FA}, v{FV} offset:3072')
        else:
            if w == 2: dma_x(rng=cfg['xa'], ahead=2)
            a(lq.drain())
        a('s_barrier')
        if w == 2: dma_x(rng=cfg['xb'], ahead=2)
        stamp(a, stamps, 2)
        if cfg['mdma']:
            again = a.newlabel('L_again')
            a(f"""
            {'s_waitcnt vmcnt(0)' if cfg['xin'] else ''}
            s_barrier
            v_mov_b32 v{mf}, {LDS_VD}
            ds_read_b32 v{mf}, v{mf}
            s_waitcnt lgkmcnt(0)
            v_and_b32 v{mf+1}, 0x3fffffff, v{mf}
            v_cmp_eq_u32 vcc, v{mf+1}, v{FV}
            s_cbranch_vccnz {again}
            """)
            def colda():
                a.label(again)
                zero_acc()
                a(f"""
                v_cmp_eq_u32 vcc, v{mf}, v{FV}
                s_cbranch_vccnz {first}
                v_add_u32 v{FV}, 1, v{FV}
                s_branch {got}
                """)
            a.cold.append(colda)
        elif cfg['quiet']: a(f"s_sleep {cfg['quiet']}")
    else:
        s = T
        mx = T+6; z = T+8; EA = tf; B1 = tf+4; B2 = tf+8; D1 = tf+12; D2 = tf+16; rz = T+10
        a(f"""
        v_mov_b64 v[{B1+2}:{B1+3}], 0
        v_mov_b64 v[{B2}:{B2+1}], 0
        v_mov_b32 v{B2+3}, 0
        v_mov_b32 v{EA+3}, 0
        """)
        for _ in range(cfg['b5nop']): a('s_nop 3')
        q = Q('lgkmcnt', 15)
        a(f"ds_read_b128 v[{T}:{T+3}], v{F['l16']} offset:{LDS_FL + 2048}"); q.issue('fl')
        for hf in range(2): a(tread(5, hf)(q))
        stamp(a, stamps, 2)
        a('s_barrier')
        stamp(a, stamps, 3)
        PX = lambda k: a('s_memtime s[52:53]') if stamps and cfg['px'] == k else None
        PX(0)
        if cfg['b3s']:
            for _ in range(cfg['b3s'] - 1): a('s_nop 0')
            a(f"ds_read_b64 v[{T+4}:{T+5}], v{F['l16']} offset:{LDS_FL + 3072}"); q.issue('fl3')
        for hf in range(2): a(tread(6, hf)(q))
        PX(1)
        if cfg['phint'] == 0: a(hint)
        PX(2)
        fl5 = [f'v_min3_u32 v{T}, v{T}, v{T+1}, v{T+2}', f'v_min_u32 v{FM}, v{FM}, v{T}', f'v_subrev_u32 v{FM}, s{S_EOFF}, v{FM}']
        if cfg['b3s']: fl5[2:2] = ['', f'v_min3_u32 v{FM}, v{FM}, v{T+4}, v{T+5}']
        for b in (5, 6):
            for m, tags in smfma(b):
                for tg in tags: a(q.wait(tg))
                if b == 6 and tags: PX(4)
                a(m)
                if fl5: a(fl5.pop(0))
            if b == 5: PX(3)
        a(ST(7))
        if cfg['phint'] == 1: a(hint)
        e = sa
        redo = a.newlabel('L_smr'); slowmx = a.newlabel('L_sms'); go = a.newlabel('L_smg')
        a(f"""
        s_mov_b32 s{S_T1}, {120 << 23}
        s_mov_b32 s{S_SPIN}, 0
        v_add_f32_dpp v{s+4}, v{sa+10}, v{sa+8} {QP}
        v_add_f32_dpp v{s+5}, v{sa+11}, v{sa+9} {QP}
        v_pk_add_f32 v[{s}:{s+1}], v[{sa}:{sa+1}], v[{sa+2}:{sa+3}]
        v_exp_f32 v{e+8}, v{s+4}
        v_exp_f32 v{e+9}, v{s+5}
        v_pk_add_f32 v[{s+2}:{s+3}], v[{sa+4}:{sa+5}], v[{sa+6}:{sa+7}]
        v_exp_f32 v{e}, v{s}
        v_exp_f32 v{e+1}, v{s+1}
        v_exp_f32 v{e+2}, v{s+2}
        v_exp_f32 v{e+3}, v{s+3}
{redo}:;nf
        v_pk_add_f32 v[{z}:{z+1}], v[{e}:{e+1}], v[{e+8}:{e+9}]
        v_cvt_pk_bf16_f32 v{EA+2}, v{e+8}, v{e+9}
        v_pk_add_f32 v[{z}:{z+1}], v[{z}:{z+1}], v[{e+2}:{e+3}]
        """)
        if cfg['phint'] == 2: a(hint)
        fill = [f'v_cvt_pk_bf16_f32 v{EA+k}, v{e+2*k}, v{e+2*k+1}' for k in range(2)]
        for m in ('row_ror:8', 'row_ror:4', 'row_ror:2', 'row_ror:1'):
            if fill: a(fill.pop(0))
            for r in (z, z+1):
                a(f'v_add_f32_dpp v{r}, v{r}, v{r} {m} row_mask:0xf bank_mask:0xf')
        LO, HI = (127-60) << 23, (127+60) << 23
        a(ST(8))
        a(f"""
        v_rcp_f32 v{mx}, v{z}
        v_rcp_f32 v{mx+1}, v{z+1}
        v_subrev_u32 v{z}, {LO}, v{z}
        v_cvt_pk_bf16_f32 v{rz}, v{mx}, v{mx+1}
        v_and_b32 v{B1}, v{rz}, v{F['mk0']}
        v_and_b32 v{B1+1}, v{rz}, v{F['mk1']}
        v_and_b32 v{B2+2}, v{rz}, v{F['mk2']}
        v_subrev_u32 v{z+1}, {LO}, v{z+1}
        v_mfma_f32_16x16x32_bf16 v[{D1}:{D1+3}], v[{EA}:{EA+3}], v[{B1}:{B1+3}], 0
        v_mfma_f32_16x16x32_bf16 v[{D2}:{D2+3}], v[{EA}:{EA+3}], v[{B2}:{B2+3}], 0
        v_max3_u32 v{z}, v{z}, v{z+1}, v{FM}
        v_cmp_lt_u32 vcc, s{S_T1}, v{z}
        s_cmp_eq_u64 vcc, 0
        s_cselect_b64 exec, -1, 0
        v_cvt_pk_bf16_f32 v{D1}, v{D1}, v{D1+1}
        v_cvt_pk_bf16_f32 v{D1+1}, v{D1+2}, v{D1+3}
        buffer_store_dwordx2 v[{D1}:{D1+1}], v{F['px']}, {WSRD}, s{S_POFF} offen {pf}
        v_cvt_pk_bf16_f32 v{D2}, v{D2}, v{D2+1}
        buffer_store_dword v{D2}, v{F['pm']}, {WSRD}, s{S_POFF} offen {pf}
        s_mov_b64 exec, -1
        s_cbranch_scc0 {slowmx}
        """)
        if cfg['b4s']: a(f"s_sleep {cfg['b4s']}")
        if cfg['mdma']: a('s_barrier')
        def coldmx():
            a(f'{slowmx}:' + ('\ns_add_u32 s40, s40, 1' if stamps else ''))
            loc = a.newlabel('L_loc'); sf = a.newlabel('L_safe')
            a(f's_cmp_eq_u32 s{S_SPIN}, 0\ns_cbranch_scc1 {loc}')
            if cfg['mdma']:
                a(f"""
                s_cmp_lg_u32 s{S_SAFE}, 0
                s_cbranch_scc1 {sf}
                {'s_add_u32 s86, s86, 1' if cfg.get('wgd') else ''}
                v_mov_b32 v{T}, {LDS_VD}
                v_mov_b32 v{T+1}, s{S_EOFF}
                ds_write_b32 v{T}, v{T+1}
                s_waitcnt lgkmcnt(0)
                s_barrier
                """)
                zero_acc()
                a(f's_branch {first}')
            a(f'{sf}:\ns_mov_b32 s{S_T1}, -1\ns_branch {redo}\n{loc}:\ns_mov_b32 s{S_SPIN}, 1\nv_mov_b32 v{FM}, 0')
            if cfg.get('wgd'): a('s_add_u32 s85, s85, 1')
            for k in range(4): a(f'v_mov_b64 v[{sa+2*k}:{sa+2*k+1}], 0')
            a(f"v_mov_b32 v{sa+8}, v{F['wz']}\nv_mov_b32 v{sa+9}, v{F['wz']}\nv_mov_b64 v[{sa+10}:{sa+11}], 0")
            q2 = Q('lgkmcnt', 15)
            rl = a.newlabel('L_rl'); rd = a.newlabel('L_rld')
            a(f's_mov_b32 s{S_T0}, 0\n{rl}:')
            a(f"ds_read_b128 v[{T}:{T+3}], v{F['l16']} offset:{LDS_FL + 3072}")
            for b in range(7):
                for hf in range(2): a(tread(b, hf)(q2))
            a('s_waitcnt lgkmcnt(0)')
            if cfg['b3s']:
                a(f"""
                v_min3_u32 v{T}, v{T}, v{T+1}, v{T+2}
                s_add_u32 s{S_T0}, s{S_T0}, 1
                v_cmp_gt_u32 vcc, s{S_EOFF}, v{T}
                s_cbranch_vccz {rd}
                s_cmp_lt_u32 s{S_T0}, 1000
                s_cbranch_scc1 {rl}
{rd}:
                """)
            for b in range(7):
                for m, tags in smfma(b): a(m)
            a(f"""
            v_mov_b64 v[{B1+2}:{B1+3}], 0
            v_mov_b64 v[{B2}:{B2+1}], 0
            v_mov_b32 v{B2+3}, 0
            v_mov_b32 v{EA+3}, 0
            v_add_f32_dpp v{s+4}, v{sa+10}, v{sa+8} {QP}
            v_add_f32_dpp v{s+5}, v{sa+11}, v{sa+9} {QP}
            v_pk_add_f32 v[{s}:{s+1}], v[{sa}:{sa+1}], v[{sa+2}:{sa+3}]
            v_pk_add_f32 v[{s+2}:{s+3}], v[{sa+4}:{sa+5}], v[{sa+6}:{sa+7}]
            v_max3_f32 v{mx}, v{s}, v{s+4}, v{s+2}
            v_max3_f32 v{mx+1}, v{s+1}, v{s+5}, v{s+3}
            """)
            rowred(a, 'v_max_f32', mx)
            for k in range(3): a(f'v_pk_add_f32 v[{s+2*k}:{s+2*k+1}], v[{s+2*k}:{s+2*k+1}], v[{mx}:{mx+1}] neg_lo:[0,1] neg_hi:[0,1]')
            for k in range(6): a(f'v_exp_f32 v{e+(k if k < 4 else k+4)}, v{s+k}')
            a(f's_nop 1\ns_branch {redo}')
        a.cold.append(coldmx)
        stamp(a, stamps, 4)
    if stamps: a('s_memtime s[50:51]\ns_memrealtime s[60:61]')
    stamp_flush(a, stamps, 11, mf)
    step_advance(a, 28672, 458752)
    a(f's_cmp_ge_u32 s{S_STEP}, 63\ns_cbranch_scc1 L_exit')
    if cfg.get('mark'):
        mk = a.newlabel('L_mk')
        a(f"s_cmp_lg_u32 s{S_STEP}, {cfg['mark']}\ns_cbranch_scc1 {mk}\ns_memrealtime s[88:89]\n{mk}:")
    if w == 3:
        if cfg['rxs']: a(f"s_sleep {cfg['rxs']}")
        read_x()
    elif not cfg['nox'] and not cfg['xin']:
        if cfg['xs']: a(f"s_sleep {cfg['xs']}")
        dma_x()
    if cfg['ssleep'][w]:
        a(f"s_sleep {cfg['ssleep'][w]}")
    a(f's_branch {top}')
    a.flush_cold()

S_YD = 33; S_SAFE = 36; S_CV = 37; S_CU = 38; S_MD = 39
CV = dict(ha=160, one=161, zero=162, cu=163, hw=164, hm=165, nw=172, nr=173, pmr=72, fw=73, fv=74, rw2=75, l8=0, pa=1, idx=2, l16=3, pr=4, mw=6, lw=7, rw=8, rr=5, mf=12, acc=40, itm=72, vx=88, uf=96, tw=128, w=176)

def comb_setup(a, stamps, cfg):
    V = CV; LN = 112
    a(f'v_mov_b32 v{LN}, v1')
    team_register(a)
    common_addrs(a, V, LN)
    img_addr(a, V['mw'], LN+1, LN)
    a(f"""
    s_sub_u32 s{S_ROLE}, s{S_ROLE}, 16
    s_lshl_b32 s{S_ROLE}, s{S_ROLE}, 1
    s_and_b32 s{S_T0}, s{S_WAVE}, 1
    s_add_u32 s{S_T1}, s{S_ROLE}, s{S_T0}
    s_lshr_b32 s{S_T0}, s{S_T1}, 2
    s_lshl_b32 s{S_T0}, s{S_T0}, 10
    s_and_b32 s{S_T1}, s{S_T1}, 3
    s_lshl_b32 s{S_T1}, s{S_T1}, 7
    s_add_u32 s{S_T0}, s{S_T0}, s{S_T1}
    s_add_u32 s{S_T0}, s{S_T0}, 8192
    v_add_u32 v{V['mw']}, s{S_T0}, v{V['mw']}
    v_lshlrev_b32 v{V['l16']}, 4, v{LN}
    s_mul_i32 s{S_T0}, s{S_WAVE}, 28672
    s_add_u32 s{S_T0}, s{S_T0}, {LDS_BW}
    v_add_u32 v{V['lw']}, s{S_T0}, v{V['l16']}
    s_lshl_b32 s{S_T0}, s{S_WAVE}, 10
    v_add_u32 v{V['rw']}, s{S_T0}, v{V['l16']}
    v_add_u32 v{V['pr']}, s{S_T0}, v{V['rw']}
    s_and_b32 s{S_T0}, s{S_WAVE}, 1
    s_lshl_b32 s{S_T0}, s{S_T0}, 3
    v_add_u32 v{V['rr']}, s{S_T0}, v{V['l16']}
    s_mul_i32 s{S_T1}, s{S_WAVE}, {4*28}
    s_add_u32 s{S_T1}, s{S_T1}, s{S_ROLE}
    s_add_u32 s{S_T1}, s{S_T1}, 448
    s_mul_i32 s{S_T1}, s{S_T1}, 14336
    s_add_u32 s{S_T1}, s{S_T1}, {L.WT}
    """)
    toff = lambda u: ((u >> 1)*28 + (u & 1))*14336
    fz = cfg['fused']
    tiles = [(toff(u), [wreg_half(u*7 + k//2, V['w'], k % 2) for k in range(14)]) for u in range(6)]
    ltiles = [(toff(u), [vr(12 + (u-6)*116 + 4*k, 4) if u == 6 else vr(120 + 4*k, 4) for k in range(14)]) for u in (6, 7)]
    if fz:
        a(f"""
        v_bfe_u32 v{LN+4}, v{LN}, 2, 2
        v_mul_u32_u24 v{LN+4}, {14*32}, v{LN+4}
        v_and_b32 v{LN+5}, 3, v{LN}
        v_lshl_add_u32 v{LN+4}, v{LN+5}, 3, v{LN+4}
        s_mul_i32 s{S_T0}, s{S_WAVE}, 56
        s_lshr_b32 s{S_SPIN}, s{S_ROLE}, 2
        s_add_u32 s{S_T0}, s{S_T0}, s{S_SPIN}
        s_add_u32 s{S_T0}, s{S_T0}, 7
        s_lshl_b32 s{S_T0}, s{S_T0}, 5
        v_add_u32 v{LN+4}, s{S_T0}, v{LN+4}
        """)
        wait_flags(a, LN+4, 1, 100)
        load_tiles(a, ltiles + tiles, V['l16'], S_T1, 1, cfg['wfl'], [0])
        wait_flags(a, LN+4, 7, 100)
        load_tiles(a, ltiles + tiles, V['l16'], S_T1, 2, cfg['wfl'], [0])
    else:
        load_tiles(a, ltiles + tiles, V['l16'], S_T1, None, cfg['wfl'], [0], cfg['ccap'])
    if not fz:
        a(team_mode_load(104, 105))
        a(f"v_mov_b32 v106, 0\ns_mov_b32 s{S_CU}, {L.CNT_U}\ns_mov_b32 s{S_CV}, {L.CNT_I}")
        a(f'buffer_load_dword v107, v106, {WSRD}, s{S_CU} offen sc1\nbuffer_load_dword v109, v106, {WSRD}, s{S_CV} offen sc1')
    a('s_waitcnt vmcnt(28)')
    for u in (6, 7):
        for k in range(14):
            a(f"ds_write_b128 v{V['lw']}, {ltiles[u-6][1][k]} offset:{(u-6)*14336+k*1024}")
    a('s_waitcnt lgkmcnt(0)')
    if fz: wait_ln(a, LN, 100)
    a(f"""
    s_mov_b32 s{S_STEP}, 0
    s_mov_b32 s{S_MOFF}, {L.MB_M}
    s_mov_b32 s{S_POFF}, {L.MB_P}
    s_lshl_b32 s{S_GOFF}, s{S_ROLE}, 14
    s_lshl_b32 s{S_T0}, s{S_WAVE}, 12
    s_add_u32 s{S_GOFF}, s{S_GOFF}, s{S_T0}
    s_add_u32 s{S_GOFF}, s{S_GOFF}, {L.U}
    s_lshl_b32 s{S_XOFF}, s{S_ROLE}, 12
    s_add_u32 s{S_XOFF}, s{S_XOFF}, {L.VM}
    s_lshr_b32 s{S_STMP}, s{S_ROLE}, 1
    s_add_u32 s{S_STMP}, s{S_STMP}, 16
    s_lshl_b32 s{S_STMP}, s{S_STMP}, 2
    s_add_u32 s{S_STMP}, s{S_STMP}, s{S_WAVE}
    s_lshl_b32 s{S_STMP}, s{S_STMP}, 12
    s_add_u32 s{S_STMP}, s{S_STMP}, {L.STAMP}
    s_waitcnt vmcnt(0)
    """)
    a(f"""
    v_mov_b32 v{V['one']}, 1
    v_mov_b32 v{V['zero']}, 0
    v_mov_b32 v{V['cu']}, 0
    v_and_b32 v{V['ha']}, {120 if cfg['cutrig'] else 24}, v{V['l8']}
    v_lshrrev_b32 v{V['ha']}, 1, v{V['ha']}
    s_lshl_b32 s{S_T0}, s{S_WAVE}, 4
    s_mul_i32 s{S_T0}, s{S_T0}, {0 if cfg['cutrig'] else 1}
    s_and_b32 s{S_T1}, s{S_ROLE}, 6
    s_lshl_b32 s{S_T1}, s{S_T1}, 6
    s_add_u32 s{S_T0}, s{S_T0}, s{S_T1}
    s_add_u32 s{S_T0}, s{S_T0}, 12288
    v_add_u32 v{V['ha']}, s{S_T0}, v{V['ha']}
    s_lshl_b32 s{S_T0}, s{S_ROLE}, {0 if cfg['cert'] else 1}
    s_add_u32 s{S_T0}, s{S_T0}, s{S_WAVE}
    s_lshl_b32 s{S_T0}, s{S_T0}, 2
    s_add_u32 s{S_T0}, s{S_T0}, {8192 + 7168}
    v_lshlrev_b32 v{V['hw']}, 5, v{V['l8']}
    v_add_u32 v{V['hw']}, s{S_T0}, v{V['hw']}
    s_add_u32 s{S_YD}, s{S_XOFF}, 0x8000000
    v_lshrrev_b32 v{V['hm']}, 1, v{V['l8']}
    v_min_u32 v{V['hm']}, {(27 if cfg['cert'] else 55)*4}, v{V['hm']}
    v_add_u32 v{V['hm']}, 7168, v{V['hm']}
    s_mov_b32 s56, 0
    """)
    if cfg['h64']:
        a(f"""
        v_lshrrev_b32 v{V['hm']}, 3, v{V['l8']}
        v_min_u32 v{V['hm']}, 55, v{V['hm']}
        v_and_b32 v100, 3, v{V['hm']}
        v_lshrrev_b32 v{V['hm']}, 2, v{V['hm']}
        v_lshlrev_b32 v{V['hm']}, 6, v{V['hm']}
        v_lshl_add_u32 v{V['hm']}, v100, 2, v{V['hm']}
        v_add_u32 v{V['hm']}, 7168, v{V['hm']}
        s_lshl_b32 s{S_T0}, s{S_ROLE}, 5
        s_lshl_b32 s{S_T1}, s{S_WAVE}, 2
        s_add_u32 s{S_T0}, s{S_T0}, s{S_T1}
        s_add_u32 s{S_T0}, s{S_T0}, {8192 + 7168}
        v_mov_b32 v{V['hw']}, s{S_T0}
        """)
    if cfg['mlin']:
        x, y = 100, 101
        a(f"""
        v_lshrrev_b32 v{y}, 3, v{V['l8']}
        v_bfe_u32 v{x}, v{y}, 1, 2
        v_mul_u32_u24 v{V['rr']}, 192, v{x}
        v_bfe_u32 v{x}, v{y}, 4, 2
        v_lshl_add_u32 v{V['rr']}, v{x}, 5, v{V['rr']}
        v_and_b32 v{x}, 1, v{y}
        v_lshl_add_u32 v{V['rr']}, v{x}, 4, v{V['rr']}
        v_bfe_u32 v{x}, v{y}, 3, 1
        v_lshl_add_u32 v{V['rr']}, v{x}, 3, v{V['rr']}
        v_lshrrev_b32 v{x}, 4, v{y}
        v_mul_u32_u24 v{V['rw2']}, 192, v{x}
        v_and_b32 v{x}, 15, v{y}
        v_lshl_add_u32 v{V['rw2']}, v{x}, 3, v{V['rw2']}
        s_mul_i32 s{S_T0}, s{S_WAVE}, 1536
        v_add_u32 v{V['rw2']}, s{S_T0}, v{V['rw2']}
        s_and_b32 s{S_T0}, s{S_WAVE}, 1
        s_mul_i32 s{S_T1}, s{S_T0}, 768
        v_add_u32 v{V['rr']}, s{S_T1}, v{V['rr']}
        s_add_u32 s{S_T1}, s{S_ROLE}, s{S_T0}
        s_lshr_b32 s{S_T0}, s{S_T1}, 2
        s_lshl_b32 s{S_T0}, s{S_T0}, 10
        s_and_b32 s{S_T1}, s{S_T1}, 3
        s_lshl_b32 s{S_T1}, s{S_T1}, 7
        s_add_u32 s{S_T0}, s{S_T0}, s{S_T1}
        s_add_u32 s{S_T0}, s{S_T0}, 8192
        v_and_b32 v{x}, 31, v{y}
        v_lshlrev_b32 v{V['mw']}, 2, v{x}
        v_lshrrev_b32 v{x}, 5, v{y}
        v_lshl_add_u32 v{V['mw']}, v{x}, 9, v{V['mw']}
        v_add_u32 v{V['mw']}, s{S_T0}, v{V['mw']}
        """)
    a(f"""
    v_lshrrev_b32 v{V['nw']}, 2, v{V['rw']}
    v_lshrrev_b32 v{V['nr']}, 1, v{V['l8']}
    s_lshl_b32 s{S_MD}, s{S_WAVE}, 11
    s_min_u32 s{S_MD}, s{S_MD}, 5120
    s_mov_b32 s{S_CU}, {L.CNT_U}
    """)
    for k in range(8): a(f"v_mov_b32 v{V['vx']+k}, 0")
    a(f"v_lshrrev_b32 v{V['pmr']}, 1, v{V['rw']}")
    a(f"s_lshl_b32 s{S_T0}, s{S_WAVE}, 2\ns_add_u32 s{S_T0}, s{S_T0}, {LDS_CF}\nv_add_u32 v{V['fw']}, s{S_T0}, v{V['l16']}\nv_mov_b32 v{V['fv']}, 0\nds_write_b32 v{V['fw']}, v{V['fv']}")
    team_mode(a, 104, 105, primed=not fz)
    if cfg['flags']:
        wait_cnt(a, S_CU, 28, 106, primed=not fz)
        a(f's_mov_b32 s{S_CV}, {L.CNT_I}')
        wait_cnt(a, S_CV, 98, 108, primed=not fz)
    for k in range(32): a(f"v_mov_b32 v{V['uf']+k}, 0")

def comb_wave(a, pf, stamps, cfg):
    V = CV; idx = V['idx']; mf = V['mf']; tw = V['tw']; uf = V['uf']; pa = V['pa']
    top = a.newlabel('L_cb_top'); nh0 = a.newlabel('L_nh')
    HT = [10, 11, 166, 167][:cfg['hdepth']]
    def store_vx(base, r):
        return [f"buffer_store_dwordx4 v[{r}:{r+3}], v{V['rw']}, {WSRD}, s{base} offen {cfg['xflags']}",
                f"s_add_u32 s{S_T1}, s{base}, 4096\nbuffer_store_dwordx4 v[{r+4}:{r+7}], v{V['rw']}, {WSRD}, s{S_T1} offen {cfg['xflags']}"]
    lq = Q('lgkmcnt', 15)
    def lread(lam, hf):
        return dsop(f"ds_read_b128 v[{tw+8*(lam%4)+4*hf}:{tw+8*(lam%4)+4*hf+3}], v{V['lw']} offset:{lam*2048+hf*1024}", ('lw', lam))
    def housekeeping_acc(a=a):
        for u in range(8):
            A = V['acc'] + 4*u
            a(f'v_mov_b64 v[{A}:{A+1}], 0\nv_mov_b64 v[{A+2}:{A+3}], 0')
    def housekeeping(a=a, acc=True):
        if acc: housekeeping_acc(a)
        for lam in range(4):
            for hf in range(2): a(lread(lam, hf)(lq))
    uload = lambda k: f"buffer_load_dwordx4 v[{uf+4*k}:{uf+4*k+3}], v{V['l16']}, {WSRD}, s{S_GOFF if k < 4 else S_EOFF} offen offset:{(k%4)*1024} {cfg['xflags']}"
    uorder = [] if cfg['nou'] else [4, 5, 6, 7, 0, 1, 2, 3]
    ue = uorder[:cfg['uearly']]; ul = uorder[cfg['uearly']:]
    housekeeping()
    t = mf
    slow = a.newlabel('L_cms'); back = a.newlabel('L_cmb'); redo = a.newlabel('L_cmr')
    pre = f"""s_add_u32 s{S_EOFF}, s{S_GOFF}, 16384
        s_lshl_b32 s{S_CU}, s{S_STEP}, 7
        s_add_u32 s{S_CU}, s{S_CU}, {L.CNT_U + 128}
        s_add_u32 s{S_T0}, s{S_MOFF}, s{S_MD}
        s_mov_b32 m0, s{S_MD}"""
    a(pre)
    if cfg.get('wgd'): a('s_memrealtime s[96:97]')
    a(f's_branch {top}')
    if cfg['al'] is not None:
        a.raw('    .p2align 6')
        for _ in range(cfg['al'][4]): a.raw('    s_nop 0')
    a(f'{nh0}:\ns_barrier')
    a.label(top)
    stamp(a, stamps, 0)
    if cfg['cdma']:
        a(f"""
        buffer_load_dwordx4 v{V['l16']}, {WSRD}, s{S_T0} offen sc1 lds
        buffer_load_dwordx4 v{V['l16']}, {WSRD}, s{S_T0} offen offset:1024 sc1 lds
        s_mov_b32 s{S_SAFE}, 0
        """)
        if ue: a('s_barrier')
        for k in ue: a(uload(k))
        a(f's_waitcnt vmcnt({len(ue)}) lgkmcnt(0)\ns_barrier\n{back}:')
        def coldr():
            a(f'{redo}:\ns_barrier\ns_mov_b32 s{S_SAFE}, 1\ns_add_u32 s{S_YD}, s{S_XOFF}, 0x8000000')
            if stamps: a(f's_add_u32 s{40+2*8}, s{40+2*8}, 1')
            if cfg.get('wgd'): a('s_add_u32 s84, s84, 1')
            housekeeping()
            poll_m(a, V)
            a(f's_branch {back}')
        a.cold.append(coldr)
    else:
        a(f"""
        buffer_load_dwordx4 v[{t}:{t+3}], v{pa}, {WSRD}, s{S_MOFF} offen sc1
        buffer_load_dwordx4 v[{t+4}:{t+7}], v{pa}, {WSRD}, s{S_MOFF} offen offset:768 sc1
        """)
        if ue: a('s_barrier')
        for k in ue: a(uload(k))
        a(f"""
        s_waitcnt vmcnt({len(ue)+1})
        ds_write_b128 v{pa}, v[{t}:{t+3}]
        v_max3_u32 v{t+8}, v{t}, v{t+1}, v{t+2}
        s_waitcnt vmcnt({len(ue)})
        ds_write_b128 v{pa}, v[{t+4}:{t+7}] offset:768
        v_max3_u32 v{t+8}, v{t+8}, v{t+3}, v{t+4}
        v_max3_u32 v{t+8}, v{t+8}, v{t+5}, v{t+6}
        v_max_u32 v{t+8}, v{t+8}, v{t+7}
        v_cmp_eq_u32 vcc, -1, v{t+8}
        s_cbranch_vccnz {slow}
        s_waitcnt lgkmcnt(0)
        s_barrier
{back}:
        """)
        def coldm():
            a.label(slow)
            if stamps: a(f's_add_u32 s{40+2*8}, s{40+2*8}, 1')
            poll_m(a, V)
            a(f's_branch {back}')
        a.cold.append(coldm)
    lq.drain()
    stamp(a, stamps, 1)
    mrd = [dsop(f"ds_read_b64_tr_b16 v[{mf+4*b+2*hf}:{mf+4*b+2*hf+1}], v{V['l8']} offset:{LDS_M+b*1024+hf*512}", ('mf', b))
           for b in range(7) for hf in range(2)]
    for x in mrd[:cfg['mpre']]: a(x(lq))
    ms = []; last = {}
    rorder = [(u, b) for b in range(7) for u in range(2)] + [(u, b) for u in range(2, 6) for b in range(7)]
    rb = 0
    for p in range(56):
        if p % 4 == 3:
            lam = p // 4; u = 6 + lam // 7; b = lam % 7
            ms.append((SM(V['acc']+4*u, mf+4*b, vr(tw+8*(lam % 4), 8), idx), [('mf', b), ('lw', lam)]))
        else:
            u, b = rorder[rb]; rb += 1
            ms.append((SM(V['acc']+4*u, mf+4*b, wreg(u*7+b, V['w']), idx), [('mf', b)]))
        last[u] = p
    gp = Gaps(56)
    for k, x in enumerate(mrd[cfg['mpre']:]): gp.put('ds', k, x)
    for lam in range(4, 14):
        g = 4*(lam-4) + 3
        g = gp.put('ds', g, lread(lam, 0)) + 1
        gp.put('ds', g, lread(lam, 1))
    g = 0
    for k in ul: g = gp.put('va', g, uload(k)) + cfg['ustep']
    if cfg['flags']:
        g = gp.put('va', g, f"buffer_load_dword v{V['cu']}, v{V['zero']}, {WSRD}, s{S_CU} offen sc1") + 1
    for x in store_vx(S_YD, V['vx']): g = gp.put('va', g, x) + cfg['ustep']
    assert g - cfg['ustep'] < min(last.values()) + 3
    for k in range(len(HT)-1 if cfg['psl'] is None else 0):
        gp.put('ds', 55 - cfg['hpre'] + 4*k, f"buffer_load_dword v{HT[k]}, v{V['ha']}, {WSRD}, s{S_POFF} offen sc1")
    def post(u):
        A = V['acc'] + 4*u; hl = u >> 1; ctl = u & 1
        return ([f'v_pk_add_f32 v[{A}:{A+1}], v[{A}:{A+1}], v[{A+2}:{A+3}]'] if cfg['cpk'] else [f'v_add_f32 v{A}, v{A}, v{A+2}', f'v_add_f32 v{A+1}, v{A+1}, v{A+3}']) + [
                f"v_cvt_pk_bf16_f32 v{V['vx']+4*ctl+hl}, v{A}, v{A+1}"]
    tail = []; gprev = 0
    for u in sorted(last, key=lambda u: last[u]):
        g = max(last[u] + 3, gprev)
        if g + 4 >= 56: tail += post(u); continue
        for x in post(u): g = gp.put('va', g, x) + 1
        gprev = g
        if u == 0: done0 = g
    if cfg['cdma']:
        A0 = V['acc']; N = 168
        g = gp.put('va', done0, f'v_add_f32 v9, v{A0}, v{A0+1}') + 1
        g = gp.put('ds', g, dsop(f"ds_write_b32 v{V['nw']}, v9 offset:{LDS_NAN}", 'nw')) + 4
        gp.force('ds', g, dswait('nw', 's_barrier'))
        g = gp.put('ds', g+1, dsop(f"ds_read2st64_b32 v[{N}:{N+1}], v{V['nr']} offset0:{LDS_NAN//256} offset1:{LDS_NAN//256+1}")) + 1
        g = gp.put('ds', g, dsop(f"ds_read2st64_b32 v[{N+2}:{N+3}], v{V['nr']} offset0:{LDS_NAN//256+2} offset1:{LDS_NAN//256+3}", 'nr')) + 4
        g = gp.put('va', g, dswait('nr', f'v_add_f32 v{N}, v{N}, v{N+2}')) + 1
        g = gp.put('va', g, f'v_add_f32 v{N+1}, v{N+1}, v{N+3}') + 1
        g = gp.put('va', g, f'v_cmp_u_f32 vcc, v{N}, v{N+1}')
        assert g < 54
    emit_stream(a, ms, gp, lq)
    if cfg['cdma']:
        nb = a.newlabel('L_cnb'); nx = a.newlabel('L_cnx')
        a(f's_cbranch_vccnz {nb};nf\n{nx}:;nf')
        a.cold.append(lambda: a(f'{nb}:\ns_nop 7\ns_cmp_eq_u32 s{S_SAFE}, 0\ns_cbranch_scc1 {redo}\ns_branch {nx}'))
    for x in tail: a(x)
    lastl = a.newlabel('L_cbl')
    a(f's_cmp_ge_u32 s{S_STEP}, 63\ns_cbranch_scc1 {lastl}')
    def coldl():
        a.label(lastl)
        for x in store_vx(S_XOFF, V['vx']): a(x)
        a('s_branch L_exit')
    a.cold.append(coldl)
    stamp(a, stamps, 2)
    A = 76
    a(f's_add_u32 s{S_T0}, s{S_POFF}, 8192\ns_mov_b32 s{S_YD}, s{S_XOFF}')
    if stamps and cfg['sdrain']: a('s_waitcnt vmcnt(0)')
    stamp(a, stamps, 3)
    if cfg['psl'] is None:
        jn = a.newlabel('L_jn')
        a(f's_cmp_lg_u32 s{S_WAVE}, 0\ns_cbranch_scc1 {jn}')
        wait_hint(a, V['ha'], S_POFF, HT, delay=cfg['pdelay'], inner=cfg['hinner'], primed=True)
        a(f'{jn}:\ns_barrier')
    else:
        housekeeping(a, False)
        stamp_flush(a, stamps, 11, mf+24)
        if cfg['pw'] is not None:
            tot = cfg['pw'] - (16*cfg['fl'] if stamps else 0)
            if cfg['pal'] is not None:
                a.raw('    .p2align 5')
                if stamps: a('s_memtime s[52:53]\ns_nop 0\ns_nop 0\ns_nop 0\ns_nop 0\ns_nop 0\ns_nop 0')
            nn = 5 if cfg['pal'] is None else 2 + cfg['pal']
            for k in range(nn): a(f's_nop {max(1, (tot + k) // nn) - 1}')
        else:
            if cfg['psl'] - (cfg['fl'] if stamps else 0) > 0: a(f"s_sleep {cfg['psl'] - (cfg['fl'] if stamps else 0)}")
            if cfg['pdelay']: a(f"s_nop {cfg['pdelay']-1}")
        if cfg['pbar']: a('s_barrier')
    stamp(a, stamps and cfg['pal'] is None, 6)
    l = a.newlabel('L_pp'); d = a.newlabel('L_ppd'); retry = a.newlabel('L_ppr'); t = 9
    R = A
    B3 = [vr(uf, 8), vr(uf+8, 8), vr(V['itm'], 8)], [vr(uf+16, 8), vr(uf+24, 8), vr(V['itm']+8, 8)]
    mh = f"""s_mov_b64 exec, {1 if cfg['h64'] else 15}
        buffer_store_dword v{V['zero']}, v{V['hw']}, {WSRD}, s{S_MOFF} offen {pf}
        s_mov_b64 exec, -1"""
    def issue(p, a=a):
        a(f"""
        buffer_load_dwordx4 v[{p}:{p+3}], v{V['pr']}, {WSRD}, s{S_POFF} offen sc1
        buffer_load_dwordx4 v[{p+4}:{p+7}], v{V['pr']}, {WSRD}, s{S_POFF} offen offset:1024 sc1
        buffer_load_dwordx2 v[{p+8}:{p+9}], v{V['pmr']}, {WSRD}, s{S_T0} offen sc1
        """)
    def zero(a=a):
        for k in range(4): a(f'v_mov_b64 v[{A+2*k}:{A+2*k+1}], 0')
    def attempt(p, behind, hint_here):
        ex = behind
        a(f's_add_u32 s{S_SPIN}, s{S_SPIN}, 1')
        for k in range(3):
            a(f's_waitcnt vmcnt({2-k+ex})')
            S32 = lambda acc, B: f'v_smfmac_f32_16x16x32_bf16 v[{acc}:{acc+3}], v[{p+8}:{p+9}], {B}, v{idx}'
            a(SM(A, p+4*k, B3[0][k], idx) if k < 2 else S32(A, vr(V['vx'], 4)))
            a(f'v_max_u32 v{t}, v{p}, v{p+2}' if k == 0 else f'v_max3_u32 v{t}, v{t}, v{p+4*k}, v{p+4*k+(2 if k < 2 else 1)}')
            a(SM(A+4, p+4*k, B3[1][k], idx) if k < 2 else S32(A+4, vr(V['vx']+4, 4)))
            if hint_here and k == cfg['mhk']:
                if cfg['mhint'] == 3:
                    a(f"""v_cmp_eq_u32 vcc, -1, v{t}
                    s_cmp_eq_u64 vcc, 0
                    s_cselect_b64 exec, 15, 0
                    buffer_store_dword v{V['zero']}, v{V['hw']}, {WSRD}, s{S_MOFF} offen {pf}
                    s_mov_b64 exec, -1""")
                else: a(mh)
                ex += 1
        a(f'v_cmp_eq_u32 vcc, -1, v{t}')
    a(f's_mov_b32 s{S_SPIN}, 0')
    sub = Asm(); issue(mf, sub); ld3 = [x.text for _, x in sub.items]
    sub = Asm(); zero(sub); sub(f"v_add_u32 v{V['fv']}, 1, v{V['fv']}"); housekeeping_acc(sub); fl = [x.text for _, x in sub.items]
    used = 0
    for k in range(3):
        a(ld3[k])
        if k < 2 and cfg['pst']:
            n_ = min(cfg['pst'], len(fl))
            for x in fl[:n_]: a(x)
            fl = fl[n_:]
            if n_ < cfg['pst']: a(f"s_nop {cfg['pst'] - n_ - 1}")
            used += cfg['pst']
    for x in fl: a(x)
    used += len(fl)
    if cfg['p2']:
        gap = cfg['p2'] + 5 - used
        while gap > 0:
            a(f's_nop {min(gap, 16) - 1}'); gap -= 16
        issue(mf+12)
    if cfg['mhint'] == 0:
        for _ in range(cfg['mhnop']): a('s_nop 3')
        a(mh)
    attempt(mf, (3 if cfg['p2'] else 0) + (cfg['mhint'] == 0), cfg['mhint'] >= 2)
    if not cfg['lateb']: a(f's_cbranch_vccnz {retry};nf')
    a(f'{d}:;nf')
    def coldp():
        a(f'{retry}:\ns_nop 7')
        if cfg['p2']:
            a.label(l)
            issue(mf)
            zero()
            attempt(mf+12, 3, cfg['mhint'] == 3)
            a(f's_cbranch_vccz {d}')
            issue(mf+12)
            zero()
            attempt(mf, 3, cfg['mhint'] == 3)
        else:
            a.label(l)
            issue(mf)
            zero()
            attempt(mf, 0, cfg['mhint'] == 3)
        a(f"""
        s_cbranch_vccz {d}
        s_cmp_lt_u32 s{S_SPIN}, s{S_LIM}
        s_cbranch_scc1 {l}
        s_mov_b32 s{S_LIM}, 1
        s_mov_b64 vcc, 0
        s_branch {d}
        """)
    a.cold.append(coldp)
    stamp(a, stamps and cfg['pal'] is None, 4)
    if cfg['lateb']:
        a(f"""
        s_cmp_eq_u64 vcc, 0
        s_cselect_b64 exec, 15, 0
        buffer_store_dword v{V['zero']}, v{V['hw']}, {WSRD}, s{S_MOFF} offen {pf}
        s_mov_b64 exec, -1
        """)
    elif cfg['mhint'] == 1 and not cfg['cert']: a(mh)
    if stamps and cfg['pal'] is None: a(f's_mov_b32 s{40+2*7}, s{S_SPIN}')
    if cfg['flags']: a(f"v_readfirstlane_b32 s{S_CV}, v{V['cu']}")
    hiw = a.newlabel('L_cbh'); rag = a.newlabel('L_rag'); rag2 = a.newlabel('L_rag'); nh = nh0; ny = a.newlabel('L_cny')
    def chores(adv=True):
        if cfg['flags']:
            slow2 = a.newlabel('L_us'); back2 = a.newlabel('L_ub')
            a(f's_cmp_lt_u32 s{S_CV}, 28\ns_cbranch_scc1 {slow2}\n{back2}:')
            def coldu():
                a.label(slow2)
                wait_cnt(a, S_CU, 28, 174)
                a(f's_branch {back2}')
            a.cold.append(coldu)
        if adv: step_advance(a, 458752)
        a(pre)
        if cfg.get('wgd'): a(f's_add_u32 s83, s83, s{S_SPIN}')
    def hi_tail():
        w2 = a.newlabel('L_cw2')
        ld = lambda r: f"buffer_load_dword v{r}, v{V['hm']}, {WSRD}, s{S_MOFF} offen sc1"
        a.label(hiw)
        step_advance(a, 458752)
        a(f"""
        s_cmp_eq_u32 s{S_WAVE}, 2
        s_waitcnt lgkmcnt(0)
        s_barrier
        s_cbranch_scc1 {w2}
        {ld(HT[0])}
        """)
        stamp(a, stamps, 5)
        chores(False)
        a(f"s_nop 4\n{ld(HT[1])}\ns_nop 12\n{ld(HT[2])}\ns_nop 12")
        wait_hint(a, V['hm'], S_MOFF, HT, delay=cfg['cdelay'], inner=cfg['hinner'], primed=True)
        a(f's_branch {nh}\n{w2}:')
        if cfg['cq']: a(f"s_sleep {cfg['cq']}")
        stamp(a, stamps, 5)
        chores(False)
        a(f's_branch {nh}')
    a.cold.append(hi_tail)
    a(f"""
    v_pk_add_f32 v[{A}:{A+1}], v[{A}:{A+1}], v[{A+2}:{A+3}]
    ds_write_b64 v{V['rw2']}, v[{A}:{A+1}] offset:{LDS_RED}
    v_pk_add_f32 v[{A+4}:{A+5}], v[{A+4}:{A+5}], v[{A+6}:{A+7}]
    ds_write_b64 v{V['rw2']}, v[{A+4}:{A+5}] offset:{LDS_RED+768}
    {f's_cbranch_vccnz {retry}' if cfg['lateb'] else ''}
    s_cmp_ge_u32 s{S_WAVE}, 2
    s_cbranch_scc1 {hiw}
    s_waitcnt lgkmcnt(0)
    s_barrier
    ds_read_b64 v[{R}:{R+1}], v{V['rr']} offset:{LDS_RED}
    ds_read_b64 v[{R+2}:{R+3}], v{V['rr']} offset:{LDS_RED+1536}
    ds_read_b64 v[{R+4}:{R+5}], v{V['rr']} offset:{LDS_RED+3072}
    ds_read_b64 v[{R+6}:{R+7}], v{V['rr']} offset:{LDS_RED+4608}
    s_waitcnt lgkmcnt(2)
    v_pk_add_f32 v[{R}:{R+1}], v[{R}:{R+1}], v[{R+2}:{R+3}]
    s_waitcnt lgkmcnt(0)
    v_pk_add_f32 v[{R+4}:{R+5}], v[{R+4}:{R+5}], v[{R+6}:{R+7}]
    v_pk_add_f32 v[{R}:{R+1}], v[{R}:{R+1}], v[{R+4}:{R+5}]
    v_cvt_pk_bf16_f32 v9, v{R}, v{R+1}
    buffer_store_dword v9, v{V['mw']}, {WSRD}, s{S_MOFF} offen {pf}
    """)
    if cfg['cert']: a(mh)
    stamp(a, stamps, 5)
    a(f"""
    s_cmp_lt_u32 s{S_STEP}, 62
    s_cbranch_scc1 {ny}
    s_add_u32 s{S_T0}, s{S_MOFF}, {L.MB_Y - L.MB_M}
    buffer_store_dword v9, v{V['mw']}, {WSRD}, s{S_T0} offen sc1
{ny}:
    """)
    chores()
    a(f's_branch {nh}')
    while a.cold: a.flush_cold()

def helper_cu(a, cfg):
    V = dict(l8=0, pa=1, idx=2, mf=12); LN = 112
    NP = cfg['npf']; D = cfg['pfd']; PER = cfg['pfper']
    a(f'v_mov_b32 v{LN}, v1')
    team_register(a)
    common_addrs(a, V, LN)
    a(f"""
    v_lshlrev_b32 v4, 7, v{LN}
    v_mov_b32 v3, v4
    v_mov_b32 v5, 0
    v_mov_b32 v6, 14
    s_sub_u32 s{S_ROLE}, s{S_ROLE}, 30
    s_lshl_b32 s{S_EOFF}, s{S_ROLE}, 2
    s_add_u32 s{S_EOFF}, s{S_EOFF}, s{S_WAVE}
    s_mov_b32 s{S_STEP}, 0
    s_mov_b32 s{S_MOFF}, {L.MB_M + 8192}
    s_mov_b32 s{S_CV}, {L.DUMMY + 0x200000}
    s_mul_i32 s{S_GOFF}, s{S_EOFF}, 7168
    s_add_u32 s{S_GOFF}, s{S_GOFF}, {L.XN}
    s_mov_b32 s{S_POFF}, 28672
    s_cmp_lt_u32 s{S_EOFF}, 4
    s_cbranch_scc1 H_t
    s_sub_u32 s{S_GOFF}, s{S_EOFF}, 4
    s_mul_i32 s{S_GOFF}, s{S_GOFF}, 6144
    s_add_u32 s{S_GOFF}, s{S_GOFF}, {L.MB_P}
    s_mov_b32 s{S_POFF}, 16384
    s_cmp_lt_u32 s{S_EOFF}, 6
    s_cbranch_scc1 H_t
    s_mov_b32 s{S_GOFF}, {L.MB_M + 8192}
    s_mov_b32 s{S_POFF}, 8192
    s_cmp_lt_u32 s{S_EOFF}, {7 if cfg['tlb'] else 8}
    s_cbranch_scc1 H_t
    s_mov_b32 s{S_GOFF}, {L.U + cfg['tlb']*458752}
    s_mov_b32 s{S_POFF}, 458752
    v_mul_u32_u24 v3, 7168, v{LN}
H_t:
    """)
    def mtouch():
        a(f'buffer_load_dword v7, v3, {WSRD}, s{S_GOFF} offen sc1\ns_add_u32 s{S_GOFF}, s{S_GOFF}, s{S_POFF}')
    if cfg['fused']: wait_ln(a, LN, 100)
    team_mode(a, V['mf'], V['mf']+1)
    a(f's_mov_b32 s{S_LIM}, {SPIN_MAX*4}')
    a(f"""
    s_getpc_b64 s[70:71]
H_pc:
    s_lshl_b32 s{S_T0}, s{S_EOFF}, 12
    v_lshrrev_b32 v10, 1, v4
    s_add_u32 s70, s70, s{S_T0}
    s_addc_u32 s71, s71, 0
    s_add_u32 s70, s70, L_nothelp-H_pc
    s_addc_u32 s71, s71, 0
    s_mov_b32 s72, s{S_GOFF}
    s_mov_b32 s{S_SPIN}, 0
    s_mov_b32 s73, {L.MB_P}
H_warm:
    s_mov_b32 s{S_GOFF}, s72
    global_load_dword v8, v10, s[70:71] sc1
    """)
    for _ in range(D+1): mtouch()
    a(f"""
    buffer_load_dword v9, v5, {WSRD}, s73 offen sc1
    s_add_u32 s{S_SPIN}, s{S_SPIN}, 1
    s_waitcnt vmcnt(0)
    v_cmp_eq_u32 vcc, -1, v9
    s_cbranch_vccz H_warmed
    s_sleep 8
    s_cmp_lt_u32 s{S_SPIN}, s{S_LIM}
    s_cbranch_scc1 H_warm
H_warmed:
    """)
    mul = {2: (128, 8), 3: (86, 8)}[PER]
    for k in range(NP):
        a(f"""
        s_add_u32 s{S_T0}, s{S_EOFF}, {8*k}
        s_min_u32 s{S_T0}, s{S_T0}, {14*PER-1}
        s_mul_i32 s{S_T1}, s{S_T0}, {mul[0]}
        s_lshr_b32 s{S_T1}, s{S_T1}, {mul[1]}
        s_mul_i32 s{S_T1}, s{S_T1}, {4-PER}
        s_add_u32 s{S_T0}, s{S_T0}, s{S_T1}
        s_lshl_b32 s{60+k}, s{S_T0}, 13
        s_add_u32 s{60+k}, s{60+k}, {L.U}
        """)
    def utouch():
        for k in range(NP):
            a(f'buffer_load_dword v{32+k}, v4, {WSRD}, s{60+k} offen sc1\ns_add_u32 s{60+k}, s{60+k}, 458752')
    a(f's_mov_b32 s{S_CU}, {L.CNT_U}')
    for _ in range(D if NP else 0):
        if cfg['flags']: wait_cnt(a, S_CU, 28, 30)
        utouch()
        a(f's_add_u32 s{S_CU}, s{S_CU}, 128')
    t = V['mf']; pa = V['pa']
    sk = a.newlabel('H_sk'); sk2 = a.newlabel('H_sk'); ok = a.newlabel('H_ok')
    a(f"""
H_top:
    s_mov_b32 s{S_SPIN}, 0
H_poll:
    buffer_load_dwordx4 v[{t}:{t+3}], v{pa}, {WSRD}, s{S_MOFF} offen sc1
    buffer_load_dwordx4 v[{t+4}:{t+7}], v{pa}, {WSRD}, s{S_MOFF} offen offset:768 sc1
    buffer_load_dword v30, v5, {WSRD}, s{S_CU} offen sc1
    s_add_u32 s{S_SPIN}, s{S_SPIN}, 1
    s_waitcnt vmcnt(0)
    v_max3_u32 v{t+8}, v{t}, v{t+1}, v{t+2}
    v_max3_u32 v{t+8}, v{t+8}, v{t+3}, v{t+4}
    v_max3_u32 v{t+8}, v{t+8}, v{t+5}, v{t+6}
    v_max_u32 v{t+8}, v{t+8}, v{t+7}
    v_readfirstlane_b32 s{S_T0}, v30
    v_cmp_eq_u32 vcc, -1, v{t+8}
    s_cbranch_vccz {ok}
    s_sleep {cfg['hsleep']}
    s_cmp_lt_u32 s{S_SPIN}, s{S_LIM}
    s_cbranch_scc1 H_poll
    s_mov_b32 s{S_LIM}, 1
{ok}:
    s_cmp_lg_u32 s{S_ROLE}, 0
    s_cbranch_scc1 {sk}
    s_add_u32 s{S_T1}, s{S_MOFF}, {L.MB_Y - L.MB_M}
    buffer_store_dwordx4 v[{t}:{t+3}], v{pa}, {WSRD}, s{S_T1} offen sc1
    buffer_store_dwordx4 v[{t+4}:{t+7}], v{pa}, {WSRD}, s{S_T1} offen offset:768 sc1
{sk}:
    s_cmp_ge_u32 s{S_STEP}, {63 - D}
    s_cbranch_scc1 {sk2}
    """)
    mtouch()
    if NP:
        sk3 = a.newlabel('H_sk'); sk4 = a.newlabel('H_sk')
        if cfg['flags']: a(f's_cmp_lt_u32 s{S_T0}, 28\ns_cbranch_scc1 {sk3}')
        utouch()
        a(f's_branch {sk4}\n{sk3}:')
        for k in range(NP): a(f's_add_u32 s{60+k}, s{60+k}, 458752')
        a(f'{sk4}:\ns_add_u32 s{S_CU}, s{S_CU}, 128')
    a(f"""
{sk2}:
    s_add_u32 s{S_STEP}, s{S_STEP}, 1
    s_add_u32 s{S_MOFF}, s{S_MOFF}, 8192
    s_cmp_lt_u32 s{S_STEP}, 62
    s_cbranch_scc1 H_top
    s_branch L_exit
    """)

DEFAULT_CFG = dict(ba=[35, 35, 34, 34], bak=3, bb=[53, 53, 0, 0], xflags='', ssleep=[2, 2, 2, 0], csleep=0, psleep=0, touch=1,
                   nou=0, nox=0, cflush=1, flags=0, ustep=3, hsleep=2, mdelay=5, pdelay=1, phint=9, lead=[4, 1], pnop=[0, 8], b5nop=2, npf=0, pfper=2, hdepth=4, hpre=10, psl=3, fl=1, mhk=0, px=9, quiet=7, cq=1, al=[0, 0, 0, 5, 1], prio=[0, 0, 0, 0], wfl='', fused=0, cpk=0, pal=4, early=1, lateb=0, split=4, sg=-1, spre=5, xa=(0, 4), xb=(4, 20), rxs=0, b4s=0, h64=0, mlin=1, pst=0, cert=0, b3s=0, reds=0, pw=21, fin1=0, tlb=0, xin=0, xstep=3, xs=4, xw=[(0, 0), (20, 24), (24, 28), (0, 0)], pbar=1, scap=None, ccap=None, m2=0, mdma=1, m2d=0, msamp=0, cdma=1, m2w=10, p2=32, cutrig=1, hinner=2, uearly=4, mhint=1, mhnop=0, sdrain=0, pfd=3, mpre=6, chint=1, cdelay=19)

def team_body(a, stamps=False, cfg=None):
    cfg = dict(DEFAULT_CFG, **(cfg or {}))
    a(f's_cmp_lt_u32 s{S_ROLE}, 30\ns_cbranch_scc1 L_nothelp')
    helper_cu(a, cfg)
    a.label('L_nothelp')
    a(f's_cmp_ge_u32 s{S_ROLE}, 16\ns_cbranch_scc1 L_comb')
    score_setup(a, stamps, cfg)
    for fast in (1, 0):
        a(f's_cmp_lg_u32 s{S_FAST}, {fast}\ns_cbranch_scc1 L_sc_next{fast}')
        for w in range(4):
            if w < 3:
                a(f's_cmp_lg_u32 s{S_WAVE}, {w}\ns_cbranch_scc1 L_sc{fast}_n{w}')
            score_wave(a, w, '' if fast else 'sc1', stamps, cfg)
            if w < 3: a.label(f'L_sc{fast}_n{w}')
        a.label(f'L_sc_next{fast}')
    a('s_branch L_exit')
    a.label('L_comb')
    comb_setup(a, stamps, cfg)
    for fast in (1, 0):
        a(f's_cmp_lg_u32 s{S_FAST}, {fast}\ns_cbranch_scc1 L_cb_next{fast}')
        comb_wave(a, '' if fast else 'sc1', stamps, cfg)
        a.label(f'L_cb_next{fast}')
    a('s_branch L_exit')
```

```python
from asmlib import *
import layout as L

SENT = -1
S_WS = 8
S_DBG = 12
S_ROLE = 16
S_WAVE = 17
S_XCC = 18
S_STEP = 19
S_FAST = 20
S_MOFF = 21; S_POFF = 22; S_EOFF = 23; S_GOFF = 24; S_XOFF = 25; S_T0 = 26; S_T1 = 27; S_SPIN = 28; S_LIM = 29
S_EXEC = 30
S_STMP = 32
S_DRY = 34
SPIN_MAX = 20000
NTEAM = 32

LDS_M = 0
LDS_T = 7168
LDS_FL = 14336
LDS_VD = 18432
LDS_X = 20480
LDS_CF = 14336
LDS_NAN = 13312
LDS_RED = 7168
LDS_BW = 16384
LDS_ROLE = 160*1024 - 16

def prologue(a, stamps, pool_off=0, scatter=False, code=1, guess=0):
    if code:
        a('s_getpc_b64 s[40:41]\nM_pc:\nv_lshlrev_b32 v12, 7, v0\nglobal_load_dword v255, v12, s[40:41]')
        a('v_add_u32 v12, 32768, v12\nv_min_u32 v11, L_end-M_pc, v12\nglobal_load_dword v255, v11, s[40:41]')
    a(f'''
    s_cmp_ge_u32 s2, 256
    s_cbranch_scc1 L_end
    s_load_dwordx2 s[4:5], s[0:1], 96
    s_load_dwordx2 s[6:7], s[0:1], 88
    s_getreg_b32 s{S_XCC}, hwreg(HW_REG_XCC_ID, 0, 4)
    v_lshrrev_b32 v2, 6, v0
    v_and_b32 v1, 63, v0
    v_readfirstlane_b32 s{S_WAVE}, v2
    s_and_b32 s{S_XCC}, s{S_XCC}, 7
    s_waitcnt lgkmcnt(0)
    s_mov_b32 s{S_WS}, s4
    s_and_b32 s{S_WS+1}, s5, 0xffff
    s_mov_b32 s{S_WS+2}, {L.WS_BYTES}
    s_mov_b32 s{S_WS+3}, 0x20000
    s_mov_b32 s{S_DBG}, s6
    s_and_b32 s{S_DBG+1}, s7, 0xffff
    s_mov_b32 s{S_DBG+2}, 256
    s_mov_b32 s{S_DBG+3}, 0x20000
    v_mov_b32 v4, {LDS_ROLE}
    ''')
    if guess:
        a(f'''
        s_cmp_lg_u32 s{S_XCC}, 0
        s_cbranch_scc1 L_ng
        s_lshr_b32 s{S_T0}, s2, 3
        s_cmp_ge_u32 s{S_T0}, 30
        s_cbranch_scc1 L_ng
        s_mul_i32 s{S_T1}, s{S_T0}, 28
        s_add_u32 s{S_T1}, s{S_T1}, s{S_WAVE}
        s_mov_b32 s{S_STEP}, {4*14336}
        s_cmp_lt_u32 s{S_T0}, 16
        s_cbranch_scc1 L_gs
        s_lshl_b32 s{S_T1}, s{S_T0}, 1
        s_mul_i32 s{S_T0}, s{S_WAVE}, 112
        s_add_u32 s{S_T1}, s{S_T1}, s{S_T0}
        s_add_u32 s{S_T1}, s{S_T1}, {448 - 32 + 84}
        s_mov_b32 s{S_STEP}, 14336
L_gs:
        s_mul_i32 s{S_T1}, s{S_T1}, 14336
        s_add_u32 s{S_T1}, s{S_T1}, {L.WT}
        v_min_u32 v5, 55, v1
        v_lshlrev_b32 v5, 7, v5
        ''')
        for k in range(guess):
            a(f's_add_u32 s{S_T0}, s{S_T1}, 7168')
            a(f'buffer_load_dword v255, v5, s[{S_WS}:{S_WS+3}], s{S_T1} offen\nbuffer_load_dword v255, v5, s[{S_WS}:{S_WS+3}], s{S_T0} offen')
            a(f's_add_u32 s{S_T1}, s{S_T1}, s{S_STEP}')
        a.label('L_ng')
    a(f'''
    s_cmp_lg_u32 s{S_WAVE}, 0
    s_cbranch_scc1 L_role_wait
    s_mov_b64 exec, 1
    s_mov_b32 s{S_T0}, 0
L_role_try:
    {f's_lshr_b32 s{S_T1}, s2, 5' if scatter else f's_mov_b32 s{S_T1}, s{S_XCC}'}
    s_add_u32 s{S_T1}, s{S_T1}, s{S_T0}
    s_and_b32 s{S_T1}, s{S_T1}, 7
    s_lshl_b32 s{S_ROLE}, s{S_T1}, 7
    s_add_u32 s{S_ROLE}, s{S_ROLE}, {L.CNT_P + pool_off}
    v_mov_b32 v2, s{S_ROLE}
    v_mov_b32 v3, 1
    buffer_atomic_add v3, v2, s[{S_WS}:{S_WS+3}], 0 offen sc0
    s_waitcnt vmcnt(0)
    v_readfirstlane_b32 s{S_ROLE}, v3
    s_cmp_lt_u32 s{S_ROLE}, 32
    s_cbranch_scc1 L_role_got
    s_add_u32 s{S_T0}, s{S_T0}, 1
    s_cmp_lt_u32 s{S_T0}, 8
    s_cbranch_scc1 L_role_try
    s_mov_b32 s{S_ROLE}, 31
    s_mov_b32 s{S_T1}, 0
L_role_got:
    s_lshl_b32 s{S_T1}, s{S_T1}, 5
    s_add_u32 s{S_ROLE}, s{S_ROLE}, s{S_T1}
    v_mov_b32 v2, s{S_ROLE}
    ds_write_b32 v4, v2
    s_mov_b64 exec, -1
    s_waitcnt lgkmcnt(0)
L_role_wait:
    s_barrier
    ds_read_b32 v2, v4
    s_waitcnt lgkmcnt(0)
    v_readfirstlane_b32 s{S_ROLE}, v2
    ''')

FSL = [8, 32]
def wait_flags(a, vaddr, need, t, n=1):
    l = a.newlabel('L_wf'); d = a.newlabel('L_wfd')
    regs = [t] + [t+4+2*k for k in range(n-1)]
    a(f"""
    s_mov_b32 s{S_SPIN}, 0
    s_mov_b32 s{S_EXEC}, {L.FL}
    s_add_u32 s{S_EXEC+1}, s80, {need}
{l}:
    """)
    for k, r in enumerate(regs):
        a(f'buffer_load_dwordx2 v[{r}:{r+1}], v{vaddr}, s[{S_WS}:{S_WS+3}], s{S_EXEC} offen offset:{k*512} sc1')
    a(f's_add_u32 s{S_SPIN}, s{S_SPIN}, 1\ns_waitcnt vmcnt(0)')
    for k, r in enumerate(regs):
        a(f"""
        v_subrev_u32 v{r}, s{S_EXEC+1}, v{r}
        v_xor_b32 v{r+1}, s81, v{r+1}
        v_lshl_or_b32 v{t+2}, v{r+1}, 3, v{r+1}
        v_or_b32 v{r}, v{r}, v{t+2}
        """)
        if k: a(f'v_max_u32 v{t}, v{t}, v{r}')
    a(f"""
    v_cmp_lt_u32 vcc, {7 - need}, v{t}
    s_cbranch_vccz {d}
    s_sleep {FSL[n > 1]}
    s_cmp_lt_u32 s{S_SPIN}, {SPIN_MAX*4}
    s_cbranch_scc1 {l}
{d}:
    """)

def prologue_fused(a):
    a(f"""
    s_getreg_b32 s{S_XCC}, hwreg(HW_REG_XCC_ID, 0, 4)
    s_mov_b32 s{S_WAVE}, s20
    s_and_b32 s{S_XCC}, s{S_XCC}, 7
    s_mov_b32 s{S_DBG}, s56
    s_mov_b32 s{S_DBG+1}, s57
    s_mov_b32 s{S_DBG+2}, 256
    s_mov_b32 s{S_DBG+3}, 0x20000
    v_mov_b32 v4, {LDS_ROLE}
    s_cmp_lg_u32 s{S_WAVE}, 0
    s_barrier
    s_cbranch_scc1 L_role_wait
    s_mov_b64 exec, 1
    s_mov_b32 s{S_T0}, 0
    s_mov_b32 s{S_T1}, s{S_XCC}
    v_mov_b32 v3, v250
    s_branch L_role_see
L_role_try:
    s_add_u32 s{S_T1}, s{S_XCC}, s{S_T0}
    s_and_b32 s{S_T1}, s{S_T1}, 7
    s_and_b32 s{S_ROLE}, s{S_T1}, 1
    s_lshl_b32 s{S_ROLE}, s{S_ROLE}, 7
    s_and_b32 s{S_SPIN}, s{S_T1}, 6
    s_lshl_b32 s{S_SPIN}, s{S_SPIN}, 1
    s_add_u32 s{S_ROLE}, s{S_ROLE}, s{S_SPIN}
    v_mov_b32 v2, s{S_ROLE}
    v_mov_b32 v3, 1
    buffer_atomic_add v3, v2, s[{S_DBG}:{S_DBG+3}], 0 offen sc0
    s_waitcnt vmcnt(0)
L_role_see:
    v_readfirstlane_b32 s{S_ROLE}, v3
    s_cmp_lt_u32 s{S_ROLE}, 32
    s_cbranch_scc1 L_role_got
    s_add_u32 s{S_T0}, s{S_T0}, 1
    s_cmp_lt_u32 s{S_T0}, 8
    s_cbranch_scc1 L_role_try
    s_mov_b32 s{S_ROLE}, 31
    s_mov_b32 s{S_T1}, 0
L_role_got:
    s_lshl_b32 s{S_T1}, s{S_T1}, 5
    s_add_u32 s{S_ROLE}, s{S_ROLE}, s{S_T1}
    v_mov_b32 v2, s{S_ROLE}
    ds_write_b32 v4, v2
    s_mov_b64 exec, -1
    s_waitcnt lgkmcnt(0)
L_role_wait:
    s_barrier
    ds_read_b32 v2, v4
    s_waitcnt lgkmcnt(0)
    v_readfirstlane_b32 s{S_ROLE}, v2
    """)

def wait_ln(a, lane, t, sleep=8):
    l = a.newlabel('L_wa'); d = a.newlabel('L_wad')
    a(f"""
    s_lshl_b32 s{S_T0}, s{S_WAVE}, 13
    s_add_u32 s{S_T0}, s{S_T0}, {L.FL}
    s_add_u32 s{S_T1}, s80, 7
    v_lshlrev_b32 v{t+8}, 7, v{lane}
    s_mov_b32 s{S_SPIN}, 0
{l}:
    buffer_load_dwordx4 v[{t}:{t+3}], v{t+8}, s[{S_WS}:{S_WS+3}], s{S_T0} offen sc1
    buffer_load_dwordx4 v[{t+4}:{t+7}], v{t+8}, s[{S_WS}:{S_WS+3}], s{S_T0} offen offset:16 sc1
    s_add_u32 s{S_SPIN}, s{S_SPIN}, 1
    s_waitcnt vmcnt(0)
    """)
    for k in range(4):
        a(f'v_xor_b32 v{t+2*k}, s{S_T1}, v{t+2*k}\nv_xor_b32 v{t+2*k+1}, s81, v{t+2*k+1}')
    a(f"""
    v_or3_b32 v{t}, v{t}, v{t+1}, v{t+2}
    v_or3_b32 v{t+3}, v{t+3}, v{t+4}, v{t+5}
    v_or3_b32 v{t}, v{t}, v{t+6}, v{t+7}
    v_or_b32 v{t}, v{t}, v{t+3}
    v_cmp_ne_u32 vcc, 0, v{t}
    s_cbranch_vccz {d}
    s_sleep {sleep}
    s_cmp_lt_u32 s{S_SPIN}, {SPIN_MAX*4}
    s_cbranch_scc1 {l}
{d}:
    s_barrier
    """)

STAGE1 = (0, 4, 8, 11)
def load_tiles(a, tiles, vaddr, sbase, stage, flags, bud, cap=None, inject=None):
    cnt = 0
    for off, dsts in tiles:
        cur = None
        for k in range(14):
            cnt += 1
            if inject and cnt == inject[0]:
                a(inject[1]); bud[0] += 1
            if stage is not None and (k in STAGE1) != (stage == 1): continue
            if cur != k // 4:
                cur = k // 4
                a(f's_add_u32 s{S_T0}, s{sbase}, {off + cur*4096}')
            a(f'buffer_load_dwordx4 {dsts[k]}, v{vaddr}, s[{S_WS}:{S_WS+3}], s{S_T0} offen offset:{(k%4)*1024} {flags}')
            bud[0] += 1
            if cap is not None:
                if bud[0] > cap: a(f's_waitcnt vmcnt({cap})')
            elif bud[0] >= 56:
                a('s_waitcnt vmcnt(28)'); bud[0] = 28

def team_register(a):
    l = a.newlabel('L_reg')
    a(f'''
    s_cmp_lg_u32 s{S_WAVE}, 0
    s_cbranch_scc1 {l}
    s_cmp_eq_u32 s{S_XCC}, 0
    s_cselect_b32 s{S_T0}, 1, 0x10001
    s_mov_b64 exec, 1
    v_mov_b32 v2, 64
    v_mov_b32 v3, s{S_T0}
    buffer_atomic_add v3, v2, s[{S_DBG}:{S_DBG+3}], 0 offen
    s_mov_b64 exec, -1
{l}:
    ''')

def team_mode_load(vt0, vt1):
    return f'v_mov_b32 v{vt0}, 64\nbuffer_load_dword v{vt1}, v{vt0}, s[{S_DBG}:{S_DBG+3}], 0 offen sc1'

def team_mode(a, vt0, vt1, primed=False, behind=0):
    l = a.newlabel('L_mode'); d = a.newlabel('L_moded'); p = a.newlabel('L_modep')
    a(f'''
    s_mov_b32 s{S_SPIN}, 0
    {f's_waitcnt vmcnt({behind})' if primed else ''}
    {f's_branch {p}' if primed else ''}
{l}:
    {team_mode_load(vt0, vt1)}
    s_waitcnt vmcnt(0)
{p}:
    v_readfirstlane_b32 s{S_T0}, v{vt1}
    s_and_b32 s{S_T1}, s{S_T0}, 0xffff
    s_cmp_ge_u32 s{S_T1}, {NTEAM}
    s_cbranch_scc1 {d}
    s_sleep 2
    s_add_u32 s{S_SPIN}, s{S_SPIN}, 1
    s_cmp_lt_u32 s{S_SPIN}, {SPIN_MAX}
    s_cbranch_scc1 {l}
    s_mov_b32 s{S_T0}, 0x10000
{d}:
    s_lshr_b32 s{S_T0}, s{S_T0}, 16
    s_cmp_eq_u32 s{S_T0}, 0
    s_cselect_b32 s{S_FAST}, 1, 0
    s_mov_b32 s{S_LIM}, {SPIN_MAX}
    ''')

def stamp(a, stamps, idx, vt=None):
    if not stamps: return
    a(f's_memtime s[{40+2*idx}:{41+2*idx}]')
    if idx == 2: a('s_memrealtime s[60:61]')

def stamp_flush(a, stamps, n, vt):
    if not stamps: return
    a('s_waitcnt lgkmcnt(0)')
    for k in range(n):
        a(f'v_writelane_b32 v{vt}, s{40+2*k}, {k}')
    a(f"""
    v_lshrrev_b32 v{vt+1}, 1, v0
    s_mov_b64 exec, {(1 << n) - 1}
    buffer_store_dword v{vt}, v{vt+1}, s[{S_WS}:{S_WS+3}], s{S_STMP} offen
    s_mov_b64 exec, -1
    """)

def wreg(wb, vbase):
    return ar(8*wb, 8) if wb < 32 else vr(vbase + 8*(wb-32), 8)
def wreg_half(wb, vbase, half):
    return ar(8*wb + 4*half, 4) if wb < 32 else vr(vbase + 8*(wb-32) + 4*half, 4)

def xlane4(a, op, x, t):
    a(f'''
    v_mov_b32 v{t}, v{x}
    v_permlane16_swap_b32 v{x}, v{t}
    {op} v{x}, v{x}, v{t}
    v_mov_b32 v{t}, v{x}
    v_permlane32_swap_b32 v{x}, v{t}
    {op} v{x}, v{x}, v{t}
    ''')

QP = 'quad_perm:[2,3,0,1] row_mask:0xf bank_mask:0xf'

def read_mf(a, V):
    for b in range(7):
        a(f"ds_read_b64_tr_b16 v[{V['mf']+4*b}:{V['mf']+4*b+1}], v{V['l8']} offset:{LDS_M+b*1024}")
        a(f"ds_read_b64_tr_b16 v[{V['mf']+4*b+2}:{V['mf']+4*b+3}], v{V['l8']} offset:{LDS_M+b*1024+512}")

def SM(acc, A, B, idx):
    return f'v_smfmac_f32_16x16x64_bf16 v[{acc}:{acc+3}], v[{A}:{A+3}], {B}, v{idx}'


class Q:
    def __init__(self, name, cap):
        self.name = name; self.n = 0; self.tags = {}; self.done = 0; self.cap = cap
    def issue(self, tag=None):
        self.n += 1
        if tag is not None: self.tags[tag] = self.n
    def wait(self, tag):
        k = self.tags[tag]
        if k <= self.done: return ''
        self.done = k
        return 's_waitcnt %s(%d)' % (self.name, min(self.n - k, self.cap))
    def drain(self):
        self.done = self.n
        return 's_waitcnt %s(0)' % self.name

WSRD = f's[{S_WS}:{S_WS+3}]'

def poll_m(a, V, sleep=0):
    t = V['mf']; pa = V['pa']
    l = a.newlabel('L_pm'); d = a.newlabel('L_pmd')
    a(f"""
    s_mov_b32 s{S_SPIN}, 0
{l}:
    buffer_load_dwordx4 v[{t}:{t+3}], v{pa}, {WSRD}, s{S_MOFF} offen sc1
    buffer_load_dwordx4 v[{t+4}:{t+7}], v{pa}, {WSRD}, s{S_MOFF} offen offset:768 sc1
    s_add_u32 s{S_SPIN}, s{S_SPIN}, 1
    s_waitcnt vmcnt(1)
    ds_write_b128 v{pa}, v[{t}:{t+3}]
    v_max3_u32 v{t+8}, v{t}, v{t+1}, v{t+2}
    s_waitcnt vmcnt(0)
    ds_write_b128 v{pa}, v[{t+4}:{t+7}] offset:768
    v_max3_u32 v{t+8}, v{t+8}, v{t+3}, v{t+4}
    v_max3_u32 v{t+8}, v{t+8}, v{t+5}, v{t+6}
    v_max_u32 v{t+8}, v{t+8}, v{t+7}
    v_cmp_eq_u32 vcc, -1, v{t+8}
    s_cbranch_vccz {d}
    {'s_sleep %d' % sleep if sleep else ''}
    s_cmp_lt_u32 s{S_SPIN}, s{S_LIM}
    s_cbranch_scc1 {l}
    s_mov_b32 s{S_LIM}, 1
{d}:
    s_waitcnt lgkmcnt(0)
    s_barrier
    """)

def poll_m2(a, V, gap, x):
    pa = V['pa']; sets = (V['acc']+8, V['acc']+16)
    l = a.newlabel('L_pm'); d = a.newlabel('L_pmd')
    def issue(t):
        a(f"""
        buffer_load_dwordx4 v[{t}:{t+3}], v{pa}, {WSRD}, s{S_MOFF} offen sc1
        buffer_load_dwordx4 v[{t+4}:{t+7}], v{pa}, {WSRD}, s{S_MOFF} offen offset:768 sc1
        """)
    def check(t):
        a(f"""
        s_add_u32 s{S_SPIN}, s{S_SPIN}, 1
        s_waitcnt vmcnt(3)
        ds_write_b128 v{pa}, v[{t}:{t+3}]
        v_max3_u32 v{x}, v{t}, v{t+1}, v{t+2}
        s_waitcnt vmcnt(2)
        ds_write_b128 v{pa}, v[{t+4}:{t+7}] offset:768
        v_max3_u32 v{x}, v{x}, v{t+3}, v{t+4}
        v_max3_u32 v{x}, v{x}, v{t+5}, v{t+6}
        v_max_u32 v{x}, v{x}, v{t+7}
        v_cmp_eq_u32 vcc, -1, v{x}
        """)
    a(f's_mov_b32 s{S_SPIN}, 0')
    issue(sets[0])
    while gap > 0:
        a(f's_nop {min(gap, 16) - 1}'); gap -= 16
    issue(sets[1]); check(sets[0])
    a(f's_cbranch_vccnz {l}\n{d}:\ns_waitcnt lgkmcnt(0)\ns_barrier')
    def cold():
        a.label(l)
        issue(sets[0]); check(sets[1])
        a(f's_cbranch_vccz {d}')
        issue(sets[1]); check(sets[0])
        a(f"""
        s_cbranch_vccz {d}
        s_cmp_lt_u32 s{S_SPIN}, s{S_LIM}
        s_cbranch_scc1 {l}
        s_mov_b32 s{S_LIM}, 1
        s_branch {d}
        """)
    a.cold.append(cold)

def wait_hint(a, vaddr, soff, regs, imm=0, delay=0, gap=12, inner=8, fill=None, primed=False):
    n = len(regs)
    l = a.newlabel('L_h'); d = a.newlabel('L_hd')
    ld = lambda r: f'buffer_load_dword v{r}, v{vaddr}, {WSRD}, s{soff} offen offset:{imm} sc1'
    a(f's_mov_b32 s{S_SPIN}, 0')
    fill = list(fill or [])
    per = -(-len(fill) // (n-1))
    for k in range(0 if primed else n-1):
        a(ld(regs[k]))
        for x in fill[k*per:(k+1)*per]: a(x)
        if per < gap: a(f's_nop {gap - per}')
    a.label(l)
    for k in range(n):
        a(f"""
        {ld(regs[(k+n-1) % n])}
        s_waitcnt vmcnt({n-1})
        v_cmp_eq_u32 vcc, -1, v{regs[k]}
        s_cbranch_vccz {d}
        s_nop {inner}
        """)
    a(f"""
    s_add_u32 s{S_SPIN}, s{S_SPIN}, 1
    s_cmp_lt_u32 s{S_SPIN}, s{S_LIM}
    s_cbranch_scc1 {l}
{d}:
    """)
    while delay > 0:
        a(f's_nop {min(delay, 16) - 1}'); delay -= 16

def wait_cnt(a, off_sgpr, target, vt, sleep=4, primed=False):
    l = a.newlabel('L_wc'); d = a.newlabel('L_wcd'); p = a.newlabel('L_wcp')
    a(f"""
    s_mov_b32 s{S_SPIN}, 0
    v_mov_b32 v{vt}, 0
    {f's_branch {p}' if primed else ''}
{l}:
    buffer_load_dword v{vt+1}, v{vt}, {WSRD}, s{off_sgpr} offen sc1
{p}:
    s_add_u32 s{S_SPIN}, s{S_SPIN}, 1
    s_waitcnt vmcnt(0)
    v_readfirstlane_b32 s{S_T0}, v{vt+1}
    s_cmp_ge_u32 s{S_T0}, {target}
    s_cbranch_scc1 {d}
    s_sleep {sleep}
    s_cmp_lt_u32 s{S_SPIN}, s{S_LIM}
    s_cbranch_scc1 {l}
    s_mov_b32 s{S_LIM}, 1
{d}:
    """)

def img_addr(a, dst, t, lane):
    a(f"""
    v_bfe_u32 v{dst}, v{lane}, 3, 1
    v_lshlrev_b32 v{dst}, 9, v{dst}
    v_bfe_u32 v{t}, v{lane}, 2, 1
    v_lshl_add_u32 v{dst}, v{t}, 6, v{dst}
    v_and_b32 v{t}, 1, v{lane}
    v_lshl_add_u32 v{dst}, v{t}, 5, v{dst}
    v_lshrrev_b32 v{t}, 4, v{lane}
    v_lshl_add_u32 v{dst}, v{t}, 3, v{dst}
    v_bfe_u32 v{t}, v{lane}, 1, 1
    v_lshl_add_u32 v{dst}, v{t}, 2, v{dst}
    """)

def common_addrs(a, V, LN):
    a(f"""
    v_lshlrev_b32 v{V['l8']}, 3, v{LN}
    s_mul_i32 s{S_T0}, s{S_WAVE}, {112*16}
    v_lshlrev_b32 v{V['pa']}, 4, v{LN}
    v_add_u32 v{V['pa']}, s{S_T0}, v{V['pa']}
    v_and_b32 v{LN+1}, 2, v{LN}
    v_cmp_ne_u32 vcc, 0, v{LN+1}
    v_mov_b32 v{LN+1}, 0x4444
    v_mov_b32 v{LN+2}, 0xeeee
    v_cndmask_b32 v{V['idx']}, v{LN+1}, v{LN+2}, vcc
    """)

def load_1k_run(a, dsts, vaddr, sbase, flags='', budget=None):
    for i, d in enumerate(dsts):
        if i and i % 4 == 0:
            a(f's_add_u32 s{sbase}, s{sbase}, 4096')
        a(f'buffer_load_dwordx4 {d}, v{vaddr}, {WSRD}, s{sbase} offen offset:{(i%4)*1024} {flags}')
        if budget is not None:
            budget[0] += 1
            if budget[0] >= 56:
                a('s_waitcnt vmcnt(28)'); budget[0] = 28

class Gaps:
    def __init__(self, n):
        self.ds = [[] for _ in range(n)]; self.va = [[] for _ in range(n)]; self.pre = [[] for _ in range(n)]
        self.n = n
    def put(self, kind, g, text, excl=False):
        while g < self.n - 1:
            if excl:
                if not self.ds[g] and not self.va[g]: break
            else:
                lst = self.ds[g] if kind == 'ds' else self.va[g]
                other = self.va[g] if kind == 'ds' else self.ds[g]
                if not lst and not (other and other[-1][1]): break
            g += 1
        (self.ds if kind == 'ds' else self.va)[g].append((text, excl))
        return g
    def force(self, kind, g, text):
        (self.ds if kind == 'ds' else self.va)[min(g, self.n-1)].append((text, False))

def emit_stream(a, mf, gp, lq, pre=None):
    for i, (m, tags) in enumerate(mf):
        for tg in tags:
            w = lq.wait(tg)
            if w: a(w)
        a(m)
        for lst in (gp.ds[i], gp.va[i]):
            for x, _ in lst:
                t = x(lq) if callable(x) else x
                if t: a(t)

def dsop(text, tag=None):
    def f(lq):
        lq.issue(tag); return text
    return f
def dswait(tag, then=''):
    def f(lq):
        return lq.wait(tag) + '\n' + then
    return f

SV = dict(l8=0, pa=1, idx=2, k1=3, mf=12, acc=40, w=64)
def tile_of(w, u):
    if u < 5: return (u, w)
    order = {(0, 5): (5, 0), (1, 5): (5, 1), (2, 5): (5, 2), (2, 6): (5, 3), (0, 6): (6, 0), (1, 6): (6, 1), (0, 7): (6, 2), (1, 7): (6, 3)}
    return order[(w, u)]
NUNIT = [8, 8, 7, 5]
F = dict(l16=4, px=5, pm=6, mk0=7, mk1=8, mk2=9, wz=10, xf=88, tf=200, sa=228, t=240)

def score_setup(a, stamps, cfg):
    V = SV; LN = 44
    a(f'v_mov_b32 v{LN}, v1')
    team_register(a)
    common_addrs(a, V, LN)
    img_addr(a, V['k1'], LN+1, LN)
    g, cc, par, ib, t = LN+1, LN+2, LN+3, LN+4, LN+5
    a(f"""
    v_lshlrev_b32 v{F['l16']}, 4, v{LN}
    v_lshrrev_b32 v{g}, 4, v{LN}
    v_bfe_u32 v{cc}, v{LN}, 2, 2
    v_bfe_u32 v{par}, v{LN}, 1, 1
    v_and_b32 v{ib}, 1, v{LN}
    v_and_b32 v{t}, 15, v{LN}
    v_lshlrev_b32 v{F['px']}, 4, v{t}
    v_lshrrev_b32 v{t}, 1, v{g}
    v_lshl_add_u32 v{F['px']}, v{t}, 8, v{F['px']}
    v_and_b32 v{t}, 1, v{g}
    v_lshl_add_u32 v{F['px']}, v{t}, 3, v{F['px']}
    s_and_b32 s{S_T0}, s{S_ROLE}, 1
    s_lshl_b32 s{S_T0}, s{S_T0}, 4
    s_lshr_b32 s{S_T1}, s{S_ROLE}, 2
    s_lshl_b32 s{S_T1}, s{S_T1}, 9
    s_add_u32 s{S_T0}, s{S_T0}, s{S_T1}
    s_and_b32 s{S_T1}, s{S_ROLE}, 2
    s_lshl_b32 s{S_T1}, s{S_T1}, 1
    s_add_u32 s{S_T0}, s{S_T0}, s{S_T1}
    s_add_u32 s{S_T0}, s{S_T0}, 8192
    v_and_b32 v{F['pm']}, 0xffffffef, v{V['l8']}
    v_add_u32 v{F['pm']}, s{S_T0}, v{F['pm']}
    s_lshl_b32 s{S_T0}, s{S_ROLE}, 9
    v_add_u32 v{F['px']}, s{S_T0}, v{F['px']}
    v_lshlrev_b32 v{t}, 4, v{ib}
    v_mov_b32 v{F['mk2']}, 0xffff
    v_lshlrev_b32 v{F['mk2']}, v{t}, v{F['mk2']}
    v_cmp_eq_u32 vcc, v{cc}, v{g}
    v_mov_b32 v{t}, 0
    v_cndmask_b32 v{F['mk2']}, v{t}, v{F['mk2']}, vcc
    v_cmp_eq_u32 vcc, 0, v{par}
    v_mov_b32 v{t+1}, 0xff800000
    v_cndmask_b32 v{F['mk0']}, v{t}, v{F['mk2']}, vcc
    v_cndmask_b32 v{F['mk1']}, v{F['mk2']}, v{t}, vcc
    v_cndmask_b32 v{F['wz']}, v{t+1}, v{t}, vcc
    s_mul_i32 s{S_T1}, s{S_ROLE}, {28*14336}
    s_add_u32 s{S_T1}, s{S_T1}, {L.WT}
    """)
    done = a.newlabel('L_sw')
    fz = cfg['fused']
    if fz:
        a(f"v_min_u32 v{LN+8}, 27, v{LN}\nv_lshlrev_b32 v{LN+8}, 3, v{LN+8}\ns_mul_i32 s{S_T0}, s{S_ROLE}, {14*32}\nv_add_u32 v{LN+8}, s{S_T0}, v{LN+8}")
        wait_flags(a, LN+8, 1, LN+10)
    for w in range(4):
        nx = a.newlabel('L_swn')
        if w < 3: a(f's_cmp_lg_u32 s{S_WAVE}, {w}\ns_cbranch_scc1 {nx}')
        tiles = []
        for u in range(NUNIT[w]):
            b, ga = tile_of(w, u)
            tiles.append(((4*b+ga)*14336, [wreg_half(u*7 + k//2, V['w'], k % 2) for k in range(14)]))
        if fz:
            load_tiles(a, tiles, F['l16'], S_T1, 1, cfg['wfl'], [0])
            wait_flags(a, LN+8, 7, LN+10)
            load_tiles(a, tiles, F['l16'], S_T1, 2, cfg['wfl'], [0])
        else:
            load_tiles(a, tiles, F['l16'], S_T1, None, cfg['wfl'], [0], cfg['scap'], inject=(NUNIT[w]*14 + (28 if w == 3 else 0) - 32, team_mode_load(V['mf'], V['mf']+1)) if cfg['dry'] else None)
        if w < 3: a(f's_branch {done}\n{nx}:')
    a(f"""
{done}:
    {team_mode_load(V['mf'], V['mf']+1) if not fz and not cfg['dry'] else ''}
    s_mov_b32 s{S_STEP}, 0
    s_mov_b32 s{S_MOFF}, {L.MB_M}
    s_mov_b32 s{S_POFF}, {L.MB_P}
    s_mov_b32 s{S_GOFF}, {L.XN}
    s_lshl_b32 s{S_STMP}, s{S_ROLE}, 2
    s_add_u32 s{S_STMP}, s{S_STMP}, s{S_WAVE}
    s_lshl_b32 s{S_STMP}, s{S_STMP}, 12
    s_add_u32 s{S_STMP}, s{S_STMP}, {L.STAMP}
    """)
    if fz:
        wait_ln(a, LN, 12)
    else:
        nf = a.newlabel('L_nx0')
        a(f's_cmp_lg_u32 s{S_WAVE}, 3\ns_cbranch_scc1 {nf}\ns_waitcnt vmcnt(30)\ns_mov_b32 s{S_T0}, s{S_GOFF}')
        load_1k_run(a, [vr(F['xf'] + 4*k, 4) for k in range(28)], F['l16'], S_T0, cfg['wfl'])
        a.label(nf)
    team_mode(a, V['mf'], V['mf']+1, primed=not fz, behind=32 if cfg['dry'] else 0)
    a(f's_mov_b64 s[{S_DRY}:{S_DRY+1}], {-1 if cfg["dry"] else 0}')

def step_advance(a, gstride, xstride=114688):
    a(f"""
    s_add_u32 s{S_STEP}, s{S_STEP}, 1
    s_add_u32 s{S_MOFF}, s{S_MOFF}, 8192
    s_add_u32 s{S_POFF}, s{S_POFF}, 16384
    s_add_u32 s{S_GOFF}, s{S_GOFF}, {gstride}
    s_add_u32 s{S_XOFF}, s{S_XOFF}, {xstride}
    s_add_u32 s{S_STMP}, s{S_STMP}, 64
    """)

def rowred(a, op, x):
    for m in ('row_ror:8', 'row_ror:4', 'row_ror:2', 'row_ror:1'):
        for r in (x, x+1):
            a(f'{op}_dpp v{r}, v{r}, v{r} {m} row_mask:0xf bank_mask:0xf')

def score_wave(a, w, pf, stamps, cfg):
    V = SV; idx = V['idx']; mf = V['mf']
    top = a.newlabel(f'L_sc{w}_top'); first = a.newlabel(f'L_sc{w}_first')
    nunit = NUNIT[w]
    accof = lambda u: V['acc'] + 4*(u % 6)
    ok = {0: (0, 9, 2), 1: (2,), 2: (0, 9, 1, 2), 3: (4,) if cfg['fin1'] else (7, 8, 4)}[w]
    ST = (lambda k: f's_memtime s[{40+2*k}:{41+2*k}]' if k in ok else '') if stamps else (lambda k: '')
    def stamp(a, stamps, k):
        a(ST(k))
    xf, tf, sa, T = F['xf'], F['tf'], F['sa'], F['t']
    FA, FV = 8, 9
    HA = 11
    HT = ([5, 6, 7, 10] if w < 3 else [T+4, T+5, T+6, T+7])[:cfg['hdepth']]
    def load_x():
        a(f's_mov_b32 s{S_T0}, s{S_GOFF}')
        load_1k_run(a, [vr(xf + 4*k, 4) for k in range(28)], F['l16'], S_T0, cfg['wfl'])
    XW = cfg['xw']
    def dma_x(a=a, rng=None, ahead=1):
        lo, hi = rng or XW[w]
        if hi <= lo: return
        a(f"""
        s_and_b32 s{S_T0}, s{S_STEP}, 1
        s_xor_b32 s{S_T0}, s{S_T0}, {ahead & 1}
        s_mul_i32 s{S_T0}, s{S_T0}, 28672
        s_add_u32 s{S_T0}, s{S_T0}, {LDS_X + lo*1024}
        s_add_u32 s{S_T1}, s{S_GOFF}, {ahead*28672 + lo*1024 - w*1792}
        """)
        for k in range(hi - lo):
            if k % 4 == 0:
                if k: a(f's_add_u32 s{S_T0}, s{S_T0}, 4096\ns_add_u32 s{S_T1}, s{S_T1}, 4096')
                a(f's_mov_b32 m0, s{S_T0}')
            a(f"buffer_load_dwordx4 v{V['pa']}, {WSRD}, s{S_T1} offen offset:{(k%4)*1024} {cfg['wfl']} lds")
    def read_x():
        a(f"""
        s_and_b32 s{S_T0}, s{S_STEP}, 1
        s_mul_i32 s{S_T0}, s{S_T0}, 28672
        v_add_u32 v{T}, s{S_T0}, v{F['l16']}
        """)
        for k in range(28): a(f'ds_read_b128 v[{xf+4*k}:{xf+4*k+3}], v{T} offset:{LDS_X + k*1024}')
    def zero_acc():
        for u in range(2 if cfg['m2'] else min(6, nunit)):
            a(f'v_mov_b64 v[{accof(u)}:{accof(u)+1}], 0\nv_mov_b64 v[{accof(u)+2}:{accof(u)+3}], 0')
        if w == 3:
            for k in range(4): a(f'v_mov_b64 v[{sa+2*k}:{sa+2*k+1}], 0')
            a(f"v_mov_b32 v{sa+8}, v{F['wz']}\nv_mov_b32 v{sa+9}, v{F['wz']}\nv_mov_b64 v[{sa+10}:{sa+11}], 0")
    a(f"v_lshrrev_b32 v{HA}, 1, v{V['l8']}\nv_min_u32 v{HA}, {(27 if cfg['cert'] else 55)*4}, v{HA}\ns_and_b32 s{S_T0}, s{S_ROLE}, 3\ns_lshl_b32 s{S_T0}, s{S_T0}, 8\ns_add_u32 s{S_T0}, s{S_T0}, 7168\nv_add_u32 v{HA}, s{S_T0}, v{HA}")
    if cfg['h64']:
        a(f"""
        v_lshrrev_b32 v{HA}, 3, v{V['l8']}
        v_min_u32 v{HA}, 55, v{HA}
        v_and_b32 v{mf}, 3, v{HA}
        v_lshrrev_b32 v{HA}, 2, v{HA}
        v_lshlrev_b32 v{HA}, 6, v{HA}
        v_lshl_add_u32 v{HA}, v{mf}, 2, v{HA}
        v_add_u32 v{HA}, 7168, v{HA}
        """)
    if w == 3:
        if cfg['fused']: load_x()
        a(f'v_and_b32 v{T+12}, {15*8}, v0\nv_lshlrev_b32 v{T+12}, 3, v{T+12}\nv_add_u32 v{T+12}, 6144, v{T+12}')
        if stamps: a('s_mov_b32 s40, 0\ns_mov_b32 s42, 0\ns_mov_b32 s44, 0')
        a(f's_mov_b32 s{S_EOFF}, 0\ns_lshl_b32 s{S_T0}, s{S_ROLE}, 2\ns_add_u32 s{S_T0}, s{S_T0}, 12288\nv_lshlrev_b32 v{T+14}, 4, v0\nv_add_u32 v{T+14}, s{S_T0}, v{T+14}\nv_mov_b32 v{T+15}, 0')
    else:
        a(f"v_add_u32 v{FA}, {LDS_FL + 4*w}, v{F['l16']}\nv_mov_b32 v{FV}, 0")
        for k in range(5): a(f'ds_write_b32 v{FA}, v{FV} offset:{k*1024}')
        a(f'v_and_b32 v4, {31*8}, v0\nv_lshlrev_b32 v4, 3, v4\nv_add_u32 v4, {w*2048}, v4')
    if w < 3 and not cfg['xin']: dma_x(rng=[(0, 9), (9, 18), (18, 28)][w])
    if cfg['prio'][w]: a(f"s_setprio {cfg['prio'][w]}")
    zero_acc()
    if cfg.get('wgd'): a('s_memrealtime s[88:89]\ns_memrealtime s[96:97]')
    dryl = a.newlabel('L_dry')
    if cfg['dry']:
        a(f'v_add_u32 v{FV}, 1, v{FV}' if w < 3 else f's_add_u32 s{S_EOFF}, s{S_EOFF}, 1')
        a(f's_mov_b32 s{S_SAFE}, 1\ns_waitcnt lgkmcnt(0)\ns_barrier\ns_branch {dryl}')
    else:
        a(f's_branch {first}')
    if cfg['al'] is not None:
        a.raw('    .p2align 6')
        for _ in range(cfg['al'][w]): a.raw('    s_nop 0')
    a.label(top)
    zero_acc()
    stamp(a, stamps, 0)
    if cfg['cert']:
        got = a.newlabel('L_got')
        a(f'v_add_u32 v{FV}, 1, v{FV}' if w < 3 else f's_add_u32 s{S_EOFF}, s{S_EOFF}, 1')
        a(f's_mov_b32 s{S_SAFE}, 0')
        if w == 0:
            ND = cfg['cert']; regs = HT[:ND]
            lp = a.newlabel('L_ct'); dn = a.newlabel('L_ctd')
            def rnd(r):
                a(f'buffer_load_dword v{r}, v{HA}, {WSRD}, s{S_MOFF} offen sc1\ns_mov_b32 m0, {LDS_M}')
                for k in range(7):
                    if k == 4: a(f's_mov_b32 m0, {LDS_M + 4096}')
                    a(f"buffer_load_dwordx4 v{V['pa']}, {WSRD}, s{S_MOFF if k < 4 else S_T0} offen offset:{(k%4)*1024} sc1 lds")
            a(f's_add_u32 s{S_T0}, s{S_MOFF}, 4096\ns_mov_b32 s{S_SPIN}, 0')
            a(ST(9))
            for k in range(ND-1): rnd(regs[k])
            a.label(lp)
            for k in range(ND):
                rnd(regs[(k+ND-1) % ND])
                a(f"""
                s_add_u32 s{S_SPIN}, s{S_SPIN}, 1
                s_waitcnt vmcnt({8*ND-1})
                v_cmp_eq_u32 vcc, -1, v{regs[k]}
                s_cbranch_vccz {dn}
                """)
            a(f's_cmp_lt_u32 s{S_SPIN}, s{S_LIM}\ns_cbranch_scc1 {lp}\n{dn}:\ns_waitcnt vmcnt({8*(ND-1)}) lgkmcnt(0)')
        else:
            a('s_waitcnt vmcnt(0) lgkmcnt(0)')
        a(f's_barrier\n{got}:')
        def coldf():
            a.label(first)
            a(f'v_add_u32 v{FV}, 1, v{FV}' if w < 3 else f's_add_u32 s{S_EOFF}, s{S_EOFF}, 1')
            a(f's_mov_b32 s{S_SAFE}, 1')
            poll_m(a, V)
            a(f's_branch {got}')
        a.cold.append(coldf)
    else:
        if cfg['msamp'] == 2: a(f'v_mov_b32 v{mf if w < 3 else T+13}, 0')
        if cfg['mdma'] == 2: a(f's_mov_b32 m0, {LDS_M}\ns_add_u32 s{S_T0}, s{S_MOFF}, 4096')
        elif cfg['split']: a(f's_mov_b32 m0, {LDS_M + w*1024}\ns_sub_u32 s{S_T0}, s{S_MOFF}, {w*768}\ns_add_u32 s{S_T1}, s{S_T0}, 4096')
        elif cfg['mdma']: a(f's_mov_b32 m0, {LDS_M + w*2048}\ns_add_u32 s{S_T0}, s{S_MOFF}, {w*2048 - w*1792}')
        if not cfg['cutrig'] or w == 0: wait_hint(a, HA, S_MOFF, HT, delay=cfg['mdelay'], inner=cfg['hinner'])
        if cfg['cutrig'] and cfg['mdma'] != 2: a('s_barrier')
    if cfg['cert']: pass
    elif cfg['mdma']:
        got = a.newlabel('L_got')
        a(ST(9))
        if cfg['split']:
            a(f"buffer_load_dwordx4 v{V['pa']}, {WSRD}, s{S_T0} offen sc1 lds")
            a(f'v_add_u32 v{FV}, 1, v{FV}' if w < 3 else f's_add_u32 s{S_EOFF}, s{S_EOFF}, 1')
            a(f's_mov_b32 s{S_SAFE}, 0\ns_mov_b32 s{S_SPIN}, 1\ns_mov_b32 m0, {LDS_M + 4096 + w*1024}')
            if w < 3:
                a(f"s_nop {cfg['split']}\nbuffer_load_dwordx4 v{V['pa']}, {WSRD}, s{S_T1} offen sc1 lds")
            a(f's_waitcnt vmcnt({1 if w < 3 else 0}) lgkmcnt(0)\ns_barrier\n{got}:')
        else:
            nk = 2 if w < 3 else 1
            SA_ = (4 if w < 3 else T+12)
            def rnd(r):
                if cfg['msamp'] == 2:
                    a(f"s_mov_b64 exec, {0x55555555 if w < 3 else 0x5555}\nbuffer_load_dword v{r}, v{SA_}, {WSRD}, s{S_MOFF} offen sc1\ns_mov_b64 exec, -1")
                elif cfg['msamp']: a(f"buffer_load_dword v{r}, v{SA_}, {WSRD}, s{S_MOFF} offen sc1")
                for k in range(nk): a(f"buffer_load_dwordx4 v{V['pa']}, {WSRD}, s{S_T0} offen offset:{k*1024} sc1 lds")
            r0, r1 = (mf, HT[1]) if w < 3 else (T+13, T+15)
            two = cfg['m2d']
            rnd(r0)
            a(f'v_add_u32 v{FV}, 1, v{FV}' if w < 3 else f's_add_u32 s{S_EOFF}, s{S_EOFF}, 1')
            a(f's_mov_b32 s{S_SAFE}, 0\ns_mov_b32 s{S_SPIN}, 1')
            if two:
                gap = two
                while gap > 0:
                    a(f's_nop {min(gap, 16) - 1}'); gap -= 16
                rnd(r1)
            ex = (nk+1) if two else 0
            bad = a.newlabel('L_mbad'); okl = a.newlabel('L_mok')
            a(f"""
            {f's_waitcnt vmcnt({nk + ex})' if cfg['msamp'] else ''}
            {f'v_cmp_eq_u32 vcc, -1, v{r0}' if cfg['msamp'] else ''}
            {f's_cbranch_vccnz {bad}' if cfg['msamp'] else ''}
            s_waitcnt vmcnt({ex}) lgkmcnt(0)
{okl}:
            s_barrier
{got}:
            """)
            def coldb():
                lp = a.newlabel('L_mlp')
                a.label(bad)
                if two:
                    a(f's_mov_b32 s{S_SPIN}, 2\ns_waitcnt vmcnt(0) lgkmcnt(0)\nv_cmp_eq_u32 vcc, -1, v{r1}\ns_cbranch_vccz {okl}')
                a.label(lp)
                rnd(r0)
                a(f"""
                s_add_u32 s{S_SPIN}, s{S_SPIN}, 1
                s_waitcnt vmcnt(0) lgkmcnt(0)
                v_cmp_eq_u32 vcc, -1, v{r0}
                s_cbranch_vccz {okl}
                s_cmp_lt_u32 s{S_SPIN}, s{S_LIM}
                s_cbranch_scc1 {lp}
                s_mov_b32 s{S_LIM}, 1
                s_branch {okl}
                """)
            a.cold.append(coldb)
        def coldf():
            a.label(first)
            a(f'v_add_u32 v{FV}, 1, v{FV}' if w < 3 else f's_add_u32 s{S_EOFF}, s{S_EOFF}, 1')
            a(f's_mov_b32 s{S_SAFE}, 1')
            poll_m(a, V)
            a(f's_branch {got}')
        a.cold.append(coldf)
    else:
        a.label(first)
        a(f'v_add_u32 v{FV}, 1, v{FV}' if w < 3 else f's_add_u32 s{S_EOFF}, s{S_EOFF}, 1')
        a(ST(9))
        if cfg['m2']: poll_m2(a, V, cfg['m2'], mf)
        else: poll_m(a, V)
    stamp(a, stamps, 1)
    if stamps and w < 3: a(f's_mov_b32 s{40+2*7}, s{S_SPIN}')
    lq = Q('lgkmcnt', 15)
    mrd = [dsop(f"ds_read_b64_tr_b16 v[{mf+4*b+2*hf}:{mf+4*b+2*hf+1}], v{V['l8']} offset:{LDS_M+b*1024+hf*512}", ('mf', b))
           for b in range(7) for hf in range(2)]
    if cfg['split'] and cfg['sg'] < 0:
        for x in mrd[:cfg['spre']]: a(x(lq))
        a(f's_waitcnt vmcnt(0)\ns_barrier\n{dryl}:;nf')
    else:
        for x in mrd[:cfg['mpre']]: a(x(lq))
    order = [(u, b) for b in range(7) for u in range(2)] + [(u, b) for u in range(2, nunit) for b in range(7)]
    ms = [(SM(accof(u), mf+4*b, wreg(u*7 + b, V['w']), idx), [('mf', b)] if u == 0 else []) for u, b in order]
    last = {u: i for i, (u, b) in enumerate(order)}
    def smfma(b):
        t4 = tf + 4*b
        return [(f"v_mfma_f32_16x16x32_bf16 v[{sa+8}:{sa+11}], v[{t4}:{t4+3}], v[{mf+4*b}:{mf+4*b+3}], " + f'v[{sa+8}:{sa+11}]', [('tf', b)]),
                (SM(sa, t4, vr(xf + 8*b, 8), idx), []),
                (SM(sa+4, t4, vr(xf + 56 + 8*b, 8), idx), [])]
    def tread(b, hf):
        return dsop(f"ds_read_b64_tr_b16 v[{tf+4*b+2*hf}:{tf+4*b+2*hf+1}], v{V['l8']} offset:{LDS_T+b*1024+hf*512}", ('tf', b))
    phases = [(0, 1, 2), (3, 4)]
    starts = []
    if w == 3:
        for ph in phases:
            starts.append(len(ms))
            for b in ph: ms += smfma(b)
    n = len(ms)
    gp = Gaps(n)
    npre = cfg['spre'] if cfg['split'] and cfg['sg'] < 0 else cfg['mpre']
    for k, x in enumerate(mrd[npre:]):
        if cfg['split'] and cfg['sg'] >= 0 and k + npre >= 8:
            if k + npre == 8: gp.force('ds', cfg['sg'], 's_waitcnt vmcnt(0)\ns_barrier')
            gp.force('ds', cfg['sg'] + (k + npre - 8)*2//3, x)
        else: gp.put('ds', k, x)
    flag_after = {2, 4} | ({5} if w < 2 else {6})
    def post(u):
        A = accof(u); b, ga = tile_of(w, u)
        va = [f'v_add_f32 v{A}, v{A}, v{A+2}', f'v_add_f32 v{A+1}, v{A+1}, v{A+3}', f'v_cvt_pk_bf16_f32 v{A}, v{A}, v{A+1}']
        ds = [dsop(f"ds_write_b32 v{V['k1']}, v{A} offset:{LDS_T+b*1024+ga*128}", ('k', u))]
        if w < 3 and u in flag_after:
            ds.append(dsop(f'ds_write_b32 v{FA}, v{FV} offset:{sorted(flag_after).index(u)*1024}'))
        return va, ds
    g = 0
    done_at = {}
    for u in range(nunit - (0 if w == 3 else 1)):
        va, ds = post(u)
        g = max(g, last[u] + 3 - (len(va) - 3))
        for x in va: g = gp.put('va', g, x) + 1
        for x in ds: g = gp.put('ds', g, x, excl=True) + 1
        done_at[u] = g
    def zero_in_gaps(u, g):
        A = accof(u)
        for k in range(2):
            gg = g
            while gg < 7*u - 2 and (gp.va[gg] or (gp.ds[gg] and gp.ds[gg][-1][1])): gg += 1
            if gg >= 7*u - 2: gg = max(g, 7*u - 4 + k)
            gp.force('va', gg, f'v_mov_b64 v[{A+2*k}:{A+2*k+1}], 0')
    if cfg['m2']:
        gp.force('ds', cfg['m2w'], 's_waitcnt vmcnt(0)')
        for u in range(2, min(6, nunit)): zero_in_gaps(u, cfg['m2w'])
    for u in range(6, nunit): zero_in_gaps(u, done_at[u-6] + 1)
    if w == 3:
        for pi, ph in enumerate(phases):
            flagrd = f"ds_read_b128 v[{T}:{T+3}], v{F['l16']} offset:{LDS_FL + pi*1024}"
            lead = cfg['lead'][pi]
            g = max(starts[pi] - lead, done_at[max(ph)] if max(ph) < 5 else 0)
            g = min(g, starts[pi]-1)
            if cfg['pnop'][pi]: gp.force('ds', g, f"s_nop {cfg['pnop'][pi]-1}")
            gp.force('ds', g, dsop(flagrd, ('fl', pi)))
            ops = [tread(b, hf) for b in ph for hf in range(2)]
            for k, x in enumerate(ops):
                gp.force('ds', min(g + (k+1)//2, starts[pi]-1), x)
            FM = T+11
            def chk(lq, pi=pi):
                return lq.wait(('fl', pi)) + (f'\nv_min3_u32 v{FM}, v{T}, v{T+1}, v{T+2}' if pi == 0 else
                                              f'\nv_min3_u32 v{T}, v{T}, v{T+1}, v{T+2}\nv_min_u32 v{FM}, v{FM}, v{T}')
            gp.force('va', starts[pi], chk)
    if w == 3 and cfg['early']:
        eb = a.newlabel('L_eb'); ec = a.newlabel('L_ec')
        g = gp.put('va', done_at[0], f'v_cmp_u_f32 vcc, v{accof(0)+1}, v{accof(0)+2}')
        gp.force('va', g+1, f's_cbranch_vccnz {eb};nf\n{ec}:;nf')
        def colde():
            lp = a.newlabel('L_el'); dn = a.newlabel('L_ed')
            a(f'{eb}:\ns_cmp_lg_u32 s{S_SAFE}, 0\ns_cbranch_scc1 {ec}')
            if cfg.get('wgd'): a('s_add_u32 s86, s86, 1')
            a(f's_mov_b32 s{S_SPIN}, 0\n{lp}:\ns_mov_b32 s{S_T0}, s{S_MOFF}')
            load_1k_run(a, [vr(tf + 4*k, 4) for k in range(7)], F['l16'], S_T0, 'sc1')
            a(f's_add_u32 s{S_SPIN}, s{S_SPIN}, 1\ns_waitcnt vmcnt(0)\nv_max_u32 v{T}, v{tf}, v{tf+1}')
            for k in range(1, 14): a(f'v_max3_u32 v{T}, v{T}, v{tf+2*k}, v{tf+2*k+1}')
            a(f"""
            v_cmp_eq_u32 vcc, -1, v{T}
            s_cbranch_vccz {dn}
            s_cmp_lt_u32 s{S_SPIN}, s{S_LIM}
            s_cbranch_scc1 {lp}
            s_mov_b32 s{S_LIM}, 1
{dn}:
            """)
            for k in range(7): a(f"ds_write_b128 v{F['l16']}, v[{tf+4*k}:{tf+4*k+3}] offset:{LDS_M + k*1024}")
            a(f"""
            s_or_b32 s{S_T0}, s{S_EOFF}, 0x40000000
            v_mov_b32 v{T}, {LDS_VD}
            v_mov_b32 v{T+1}, s{S_T0}
            ds_write_b32 v{T}, v{T+1}
            """)
            zero_acc()
            a(f's_add_u32 s{S_EOFF}, s{S_EOFF}, 1\ns_mov_b32 s{S_SAFE}, 1\ns_waitcnt lgkmcnt(0)\ns_barrier\ns_barrier\ns_branch {got}')
        a.cold.append(colde)
    if cfg['xin'] and XW[w][1] > XW[w][0]:
        sub = Asm(); dma_x(sub)
        grp = []; cur = []
        for _, x in sub.items:
            cur.append(x.text)
            if x.text.startswith('buffer'): grp.append('\n'.join(cur)); cur = []
        g = cfg['xin']
        for x in grp: g = gp.put('ds', g, x) + cfg['xstep']
    if w == 0 and cfg['phint'] < 0:
        gp.force('ds', n - 1 + cfg['phint'], f"""s_mov_b64 exec, 15
            buffer_store_dword v{FV}, v4, {WSRD}, s{S_POFF} offen {pf}
            s_mov_b64 exec, -1""")
    emit_stream(a, ms, gp, lq)
    hint = f"""s_mov_b64 exec, 15
        buffer_store_dword v{T+15}, v{T+14}, {WSRD}, s{S_POFF} offen {pf}
        s_mov_b64 exec, -1"""
    if w < 3:
        va, ds = post(nunit-1)
        A_ = accof(nunit-1)
        va = [f'v_pk_add_f32 v[{A_}:{A_+1}], v[{A_}:{A_+1}], v[{A_+2}:{A_+3}]', va[-1]]
        for x in va: a(x)
        for x in ds: a(x(lq))
        if cfg['b3s']: a(f'ds_write_b32 v{FA}, v{FV} offset:3072')
        else:
            if w == 2: dma_x(rng=cfg['xa'], ahead=2)
            a(lq.drain())
        a('s_barrier')
        if w == 2: dma_x(rng=cfg['xb'], ahead=2)
        stamp(a, stamps, 2)
        if cfg['mdma']:
            again = a.newlabel('L_again')
            a(f"""
            {'s_waitcnt vmcnt(0)' if cfg['xin'] else ''}
            s_barrier
            v_mov_b32 v{mf}, {LDS_VD}
            ds_read_b32 v{mf}, v{mf}
            s_waitcnt lgkmcnt(0)
            v_and_b32 v{mf+1}, 0x3fffffff, v{mf}
            v_cmp_eq_u32 vcc, v{mf+1}, v{FV}
            s_cbranch_vccnz {again}
            """)
            def colda():
                a.label(again)
                zero_acc()
                a(f"""
                v_cmp_eq_u32 vcc, v{mf}, v{FV}
                s_cbranch_vccnz {first}
                v_add_u32 v{FV}, 1, v{FV}
                s_branch {got}
                """)
            a.cold.append(colda)
        elif cfg['quiet']: a(f"s_sleep {cfg['quiet']}")
    else:
        s = T
        mx = T+6; z = T+8; EA = tf; B1 = tf+4; B2 = tf+8; D1 = tf+12; D2 = tf+16; rz = T+10
        a(f"""
        v_mov_b64 v[{B1+2}:{B1+3}], 0
        v_mov_b64 v[{B2}:{B2+1}], 0
        v_mov_b32 v{B2+3}, 0
        v_mov_b32 v{EA+3}, 0
        """)
        for _ in range(cfg['b5nop']): a('s_nop 3')
        q = Q('lgkmcnt', 15)
        a(f"ds_read_b128 v[{T}:{T+3}], v{F['l16']} offset:{LDS_FL + 2048}"); q.issue('fl')
        for hf in range(2): a(tread(5, hf)(q))
        stamp(a, stamps, 2)
        a('s_barrier')
        stamp(a, stamps, 3)
        PX = lambda k: a('s_memtime s[52:53]') if stamps and cfg['px'] == k else None
        PX(0)
        if cfg['b3s']:
            for _ in range(cfg['b3s'] - 1): a('s_nop 0')
            a(f"ds_read_b64 v[{T+4}:{T+5}], v{F['l16']} offset:{LDS_FL + 3072}"); q.issue('fl3')
        for hf in range(2): a(tread(6, hf)(q))
        PX(1)
        if cfg['phint'] == 0: a(hint)
        PX(2)
        fl5 = [f'v_min3_u32 v{T}, v{T}, v{T+1}, v{T+2}', f'v_min_u32 v{FM}, v{FM}, v{T}', f'v_subrev_u32 v{FM}, s{S_EOFF}, v{FM}']
        if cfg['b3s']: fl5[2:2] = ['', f'v_min3_u32 v{FM}, v{FM}, v{T+4}, v{T+5}']
        for b in (5, 6):
            for m, tags in smfma(b):
                for tg in tags: a(q.wait(tg))
                if b == 6 and tags: PX(4)
                a(m)
                if fl5: a(fl5.pop(0))
            if b == 5: PX(3)
        a(ST(7))
        if cfg['phint'] == 1: a(hint)
        e = sa
        redo = a.newlabel('L_smr'); slowmx = a.newlabel('L_sms'); go = a.newlabel('L_smg')
        a(f"""
        s_mov_b32 s{S_T1}, {120 << 23}
        s_mov_b32 s{S_SPIN}, 0
        v_add_f32_dpp v{s+4}, v{sa+10}, v{sa+8} {QP}
        v_add_f32_dpp v{s+5}, v{sa+11}, v{sa+9} {QP}
        v_pk_add_f32 v[{s}:{s+1}], v[{sa}:{sa+1}], v[{sa+2}:{sa+3}]
        v_exp_f32 v{e+8}, v{s+4}
        v_exp_f32 v{e+9}, v{s+5}
        v_pk_add_f32 v[{s+2}:{s+3}], v[{sa+4}:{sa+5}], v[{sa+6}:{sa+7}]
        v_exp_f32 v{e}, v{s}
        v_exp_f32 v{e+1}, v{s+1}
        v_exp_f32 v{e+2}, v{s+2}
        v_exp_f32 v{e+3}, v{s+3}
{redo}:;nf
        v_pk_add_f32 v[{z}:{z+1}], v[{e}:{e+1}], v[{e+8}:{e+9}]
        v_cvt_pk_bf16_f32 v{EA+2}, v{e+8}, v{e+9}
        v_pk_add_f32 v[{z}:{z+1}], v[{z}:{z+1}], v[{e+2}:{e+3}]
        """)
        if cfg['phint'] == 2: a(hint)
        fill = [f'v_cvt_pk_bf16_f32 v{EA+k}, v{e+2*k}, v{e+2*k+1}' for k in range(2)]
        for m in ('row_ror:8', 'row_ror:4', 'row_ror:2', 'row_ror:1'):
            if fill: a(fill.pop(0))
            for r in (z, z+1):
                a(f'v_add_f32_dpp v{r}, v{r}, v{r} {m} row_mask:0xf bank_mask:0xf')
        LO, HI = (127-60) << 23, (127+60) << 23
        a(ST(8))
        a(f"""
        v_rcp_f32 v{mx}, v{z}
        v_rcp_f32 v{mx+1}, v{z+1}
        v_subrev_u32 v{z}, {LO}, v{z}
        v_cvt_pk_bf16_f32 v{rz}, v{mx}, v{mx+1}
        v_and_b32 v{B1}, v{rz}, v{F['mk0']}
        v_and_b32 v{B1+1}, v{rz}, v{F['mk1']}
        v_and_b32 v{B2+2}, v{rz}, v{F['mk2']}
        v_subrev_u32 v{z+1}, {LO}, v{z+1}
        v_mfma_f32_16x16x32_bf16 v[{D1}:{D1+3}], v[{EA}:{EA+3}], v[{B1}:{B1+3}], 0
        v_mfma_f32_16x16x32_bf16 v[{D2}:{D2+3}], v[{EA}:{EA+3}], v[{B2}:{B2+3}], 0
        v_max3_u32 v{z}, v{z}, v{z+1}, v{FM}
        v_cmp_lt_u32 vcc, s{S_T1}, v{z}
        s_or_b64 vcc, vcc, s[{S_DRY}:{S_DRY+1}]
        s_cselect_b64 exec, 0, -1
        v_cvt_pk_bf16_f32 v{D1}, v{D1}, v{D1+1}
        v_cvt_pk_bf16_f32 v{D1+1}, v{D1+2}, v{D1+3}
        buffer_store_dwordx2 v[{D1}:{D1+1}], v{F['px']}, {WSRD}, s{S_POFF} offen {pf}
        v_cvt_pk_bf16_f32 v{D2}, v{D2}, v{D2+1}
        buffer_store_dword v{D2}, v{F['pm']}, {WSRD}, s{S_POFF} offen {pf}
        s_mov_b64 exec, -1
        s_cbranch_scc1 {slowmx}
        """)
        if cfg['b4s']: a(f"s_sleep {cfg['b4s']}")
        if cfg['mdma']: a('s_barrier')
        def coldmx():
            a(f'{slowmx}:' + ('\ns_add_u32 s40, s40, 1' if stamps else ''))
            loc = a.newlabel('L_loc'); sf = a.newlabel('L_safe')
            vd = a.newlabel('L_vd')
            a(f's_cmp_lg_u32 s{S_DRY}, 0\ns_mov_b64 s[{S_DRY}:{S_DRY+1}], 0\ns_cbranch_scc1 {vd}')
            a(f's_cmp_eq_u32 s{S_SPIN}, 0\ns_cbranch_scc1 {loc}')
            if cfg['mdma']:
                a(f"""
                s_cmp_lg_u32 s{S_SAFE}, 0
                s_cbranch_scc1 {sf}
                {'s_add_u32 s86, s86, 1' if cfg.get('wgd') else ''}
{vd}:
                v_mov_b32 v{T}, {LDS_VD}
                v_mov_b32 v{T+1}, s{S_EOFF}
                ds_write_b32 v{T}, v{T+1}
                s_waitcnt lgkmcnt(0)
                s_barrier
                """)
                zero_acc()
                a(f's_branch {first}')
            a(f'{sf}:\ns_mov_b32 s{S_T1}, -1\ns_branch {redo}\n{loc}:\ns_mov_b32 s{S_SPIN}, 1\nv_mov_b32 v{FM}, 0')
            if cfg.get('wgd'): a('s_add_u32 s85, s85, 1')
            for k in range(4): a(f'v_mov_b64 v[{sa+2*k}:{sa+2*k+1}], 0')
            a(f"v_mov_b32 v{sa+8}, v{F['wz']}\nv_mov_b32 v{sa+9}, v{F['wz']}\nv_mov_b64 v[{sa+10}:{sa+11}], 0")
            q2 = Q('lgkmcnt', 15)
            rl = a.newlabel('L_rl'); rd = a.newlabel('L_rld')
            a(f's_mov_b32 s{S_T0}, 0\n{rl}:')
            a(f"ds_read_b128 v[{T}:{T+3}], v{F['l16']} offset:{LDS_FL + 3072}")
            for b in range(7):
                for hf in range(2): a(tread(b, hf)(q2))
            a('s_waitcnt lgkmcnt(0)')
            if cfg['b3s']:
                a(f"""
                v_min3_u32 v{T}, v{T}, v{T+1}, v{T+2}
                s_add_u32 s{S_T0}, s{S_T0}, 1
                v_cmp_gt_u32 vcc, s{S_EOFF}, v{T}
                s_cbranch_vccz {rd}
                s_cmp_lt_u32 s{S_T0}, 1000
                s_cbranch_scc1 {rl}
{rd}:
                """)
            for b in range(7):
                for m, tags in smfma(b): a(m)
            a(f"""
            v_mov_b64 v[{B1+2}:{B1+3}], 0
            v_mov_b64 v[{B2}:{B2+1}], 0
            v_mov_b32 v{B2+3}, 0
            v_mov_b32 v{EA+3}, 0
            v_add_f32_dpp v{s+4}, v{sa+10}, v{sa+8} {QP}
            v_add_f32_dpp v{s+5}, v{sa+11}, v{sa+9} {QP}
            v_pk_add_f32 v[{s}:{s+1}], v[{sa}:{sa+1}], v[{sa+2}:{sa+3}]
            v_pk_add_f32 v[{s+2}:{s+3}], v[{sa+4}:{sa+5}], v[{sa+6}:{sa+7}]
            v_max3_f32 v{mx}, v{s}, v{s+4}, v{s+2}
            v_max3_f32 v{mx+1}, v{s+1}, v{s+5}, v{s+3}
            """)
            rowred(a, 'v_max_f32', mx)
            for k in range(3): a(f'v_pk_add_f32 v[{s+2*k}:{s+2*k+1}], v[{s+2*k}:{s+2*k+1}], v[{mx}:{mx+1}] neg_lo:[0,1] neg_hi:[0,1]')
            for k in range(6): a(f'v_exp_f32 v{e+(k if k < 4 else k+4)}, v{s+k}')
            a(f's_nop 1\ns_branch {redo}')
        a.cold.append(coldmx)
        stamp(a, stamps, 4)
    if stamps: a('s_memtime s[50:51]\ns_memrealtime s[60:61]')
    stamp_flush(a, stamps, 11, mf)
    step_advance(a, 28672, 458752)
    a(f's_cmp_ge_u32 s{S_STEP}, 63\ns_cbranch_scc1 L_exit')
    if cfg.get('mark'):
        mk = a.newlabel('L_mk')
        a(f"s_cmp_lg_u32 s{S_STEP}, {cfg['mark']}\ns_cbranch_scc1 {mk}\ns_memrealtime s[88:89]\n{mk}:")
    if w == 3:
        if cfg['rxs']: a(f"s_sleep {cfg['rxs']}")
        read_x()
    elif not cfg['nox'] and not cfg['xin']:
        if cfg['xs']: a(f"s_sleep {cfg['xs']}")
        dma_x()
    if cfg['ssleep'][w]:
        a(f"s_sleep {cfg['ssleep'][w]}")
    a(f's_branch {top}')
    a.flush_cold()

S_YD = 33; S_SAFE = 36; S_CV = 37; S_CU = 38; S_MD = 39
CV = dict(ha=160, one=161, zero=162, cu=163, hw=164, hm=165, nw=172, nr=173, pmr=72, fw=73, fv=74, rw2=75, l8=0, pa=1, idx=2, l16=3, pr=4, mw=6, lw=7, rw=8, rr=5, mf=12, acc=40, itm=72, vx=88, uf=96, tw=128, w=176)

def comb_setup(a, stamps, cfg):
    V = CV; LN = 112
    a(f'v_mov_b32 v{LN}, v1')
    team_register(a)
    common_addrs(a, V, LN)
    img_addr(a, V['mw'], LN+1, LN)
    a(f"""
    s_sub_u32 s{S_ROLE}, s{S_ROLE}, 16
    s_lshl_b32 s{S_ROLE}, s{S_ROLE}, 1
    s_and_b32 s{S_T0}, s{S_WAVE}, 1
    s_add_u32 s{S_T1}, s{S_ROLE}, s{S_T0}
    s_lshr_b32 s{S_T0}, s{S_T1}, 2
    s_lshl_b32 s{S_T0}, s{S_T0}, 10
    s_and_b32 s{S_T1}, s{S_T1}, 3
    s_lshl_b32 s{S_T1}, s{S_T1}, 7
    s_add_u32 s{S_T0}, s{S_T0}, s{S_T1}
    s_add_u32 s{S_T0}, s{S_T0}, 8192
    v_add_u32 v{V['mw']}, s{S_T0}, v{V['mw']}
    v_lshlrev_b32 v{V['l16']}, 4, v{LN}
    s_mul_i32 s{S_T0}, s{S_WAVE}, 28672
    s_add_u32 s{S_T0}, s{S_T0}, {LDS_BW}
    v_add_u32 v{V['lw']}, s{S_T0}, v{V['l16']}
    s_lshl_b32 s{S_T0}, s{S_WAVE}, 10
    v_add_u32 v{V['rw']}, s{S_T0}, v{V['l16']}
    v_add_u32 v{V['pr']}, s{S_T0}, v{V['rw']}
    s_and_b32 s{S_T0}, s{S_WAVE}, 1
    s_lshl_b32 s{S_T0}, s{S_T0}, 3
    v_add_u32 v{V['rr']}, s{S_T0}, v{V['l16']}
    s_mul_i32 s{S_T1}, s{S_WAVE}, {4*28}
    s_add_u32 s{S_T1}, s{S_T1}, s{S_ROLE}
    s_add_u32 s{S_T1}, s{S_T1}, 448
    s_mul_i32 s{S_T1}, s{S_T1}, 14336
    s_add_u32 s{S_T1}, s{S_T1}, {L.WT}
    """)
    toff = lambda u: ((u >> 1)*28 + (u & 1))*14336
    fz = cfg['fused']
    tiles = [(toff(u), [wreg_half(u*7 + k//2, V['w'], k % 2) for k in range(14)]) for u in range(6)]
    ltiles = [(toff(u), [vr(12 + (u-6)*116 + 4*k, 4) if u == 6 else vr(120 + 4*k, 4) for k in range(14)]) for u in (6, 7)]
    if fz:
        a(f"""
        v_bfe_u32 v{LN+4}, v{LN}, 2, 2
        v_mul_u32_u24 v{LN+4}, {14*32}, v{LN+4}
        v_and_b32 v{LN+5}, 3, v{LN}
        v_lshl_add_u32 v{LN+4}, v{LN+5}, 3, v{LN+4}
        s_mul_i32 s{S_T0}, s{S_WAVE}, 56
        s_lshr_b32 s{S_SPIN}, s{S_ROLE}, 2
        s_add_u32 s{S_T0}, s{S_T0}, s{S_SPIN}
        s_add_u32 s{S_T0}, s{S_T0}, 7
        s_lshl_b32 s{S_T0}, s{S_T0}, 5
        v_add_u32 v{LN+4}, s{S_T0}, v{LN+4}
        """)
        wait_flags(a, LN+4, 1, 100)
        load_tiles(a, ltiles + tiles, V['l16'], S_T1, 1, cfg['wfl'], [0])
        wait_flags(a, LN+4, 7, 100)
        load_tiles(a, ltiles + tiles, V['l16'], S_T1, 2, cfg['wfl'], [0])
    else:
        load_tiles(a, ltiles + tiles, V['l16'], S_T1, None, cfg['wfl'], [0], cfg['ccap'], inject=(60, team_mode_load(104, 105)) if cfg['dry'] else None)
    if not fz and not cfg['dry']:
        a(team_mode_load(104, 105))
        a(f"v_mov_b32 v106, 0\ns_mov_b32 s{S_CU}, {L.CNT_U}\ns_mov_b32 s{S_CV}, {L.CNT_I}")
        a(f'buffer_load_dword v107, v106, {WSRD}, s{S_CU} offen sc1\nbuffer_load_dword v109, v106, {WSRD}, s{S_CV} offen sc1')
    a(f"s_waitcnt vmcnt({48 if cfg['dry'] else 28})")
    for u in (6, 7):
        for k in range(14):
            a(f"ds_write_b128 v{V['lw']}, {ltiles[u-6][1][k]} offset:{(u-6)*14336+k*1024}")
    a('s_waitcnt lgkmcnt(0)')
    if fz: wait_ln(a, LN, 100)
    a(f"""
    s_mov_b32 s{S_STEP}, 0
    s_mov_b32 s{S_MOFF}, {L.MB_M}
    s_mov_b32 s{S_POFF}, {L.MB_P}
    s_lshl_b32 s{S_GOFF}, s{S_ROLE}, 14
    s_lshl_b32 s{S_T0}, s{S_WAVE}, 12
    s_add_u32 s{S_GOFF}, s{S_GOFF}, s{S_T0}
    s_add_u32 s{S_GOFF}, s{S_GOFF}, {L.U}
    s_lshl_b32 s{S_XOFF}, s{S_ROLE}, 12
    s_add_u32 s{S_XOFF}, s{S_XOFF}, {L.VM}
    s_lshr_b32 s{S_STMP}, s{S_ROLE}, 1
    s_add_u32 s{S_STMP}, s{S_STMP}, 16
    s_lshl_b32 s{S_STMP}, s{S_STMP}, 2
    s_add_u32 s{S_STMP}, s{S_STMP}, s{S_WAVE}
    s_lshl_b32 s{S_STMP}, s{S_STMP}, 12
    s_add_u32 s{S_STMP}, s{S_STMP}, {L.STAMP}
    """)
    a(f"""
    v_mov_b32 v{V['one']}, 1
    v_mov_b32 v{V['zero']}, 0
    v_mov_b32 v{V['cu']}, 0
    v_and_b32 v{V['ha']}, {120 if cfg['cutrig'] else 24}, v{V['l8']}
    v_lshrrev_b32 v{V['ha']}, 1, v{V['ha']}
    s_lshl_b32 s{S_T0}, s{S_WAVE}, 4
    s_mul_i32 s{S_T0}, s{S_T0}, {0 if cfg['cutrig'] else 1}
    s_and_b32 s{S_T1}, s{S_ROLE}, 6
    s_lshl_b32 s{S_T1}, s{S_T1}, 6
    s_add_u32 s{S_T0}, s{S_T0}, s{S_T1}
    s_add_u32 s{S_T0}, s{S_T0}, 12288
    v_add_u32 v{V['ha']}, s{S_T0}, v{V['ha']}
    s_lshl_b32 s{S_T0}, s{S_ROLE}, {0 if cfg['cert'] else 1}
    s_add_u32 s{S_T0}, s{S_T0}, s{S_WAVE}
    s_lshl_b32 s{S_T0}, s{S_T0}, 2
    s_add_u32 s{S_T0}, s{S_T0}, {8192 + 7168}
    v_lshlrev_b32 v{V['hw']}, 5, v{V['l8']}
    v_add_u32 v{V['hw']}, s{S_T0}, v{V['hw']}
    s_add_u32 s{S_YD}, s{S_XOFF}, 0x8000000
    v_lshrrev_b32 v{V['hm']}, 1, v{V['l8']}
    v_min_u32 v{V['hm']}, {(27 if cfg['cert'] else 55)*4}, v{V['hm']}
    v_add_u32 v{V['hm']}, 7168, v{V['hm']}
    s_mov_b32 s56, 0
    """)
    if cfg['h64']:
        a(f"""
        v_lshrrev_b32 v{V['hm']}, 3, v{V['l8']}
        v_min_u32 v{V['hm']}, 55, v{V['hm']}
        v_and_b32 v100, 3, v{V['hm']}
        v_lshrrev_b32 v{V['hm']}, 2, v{V['hm']}
        v_lshlrev_b32 v{V['hm']}, 6, v{V['hm']}
        v_lshl_add_u32 v{V['hm']}, v100, 2, v{V['hm']}
        v_add_u32 v{V['hm']}, 7168, v{V['hm']}
        s_lshl_b32 s{S_T0}, s{S_ROLE}, 5
        s_lshl_b32 s{S_T1}, s{S_WAVE}, 2
        s_add_u32 s{S_T0}, s{S_T0}, s{S_T1}
        s_add_u32 s{S_T0}, s{S_T0}, {8192 + 7168}
        v_mov_b32 v{V['hw']}, s{S_T0}
        """)
    if cfg['mlin']:
        x, y = 100, 101
        a(f"""
        v_lshrrev_b32 v{y}, 3, v{V['l8']}
        v_bfe_u32 v{x}, v{y}, 1, 2
        v_mul_u32_u24 v{V['rr']}, 192, v{x}
        v_bfe_u32 v{x}, v{y}, 4, 2
        v_lshl_add_u32 v{V['rr']}, v{x}, 5, v{V['rr']}
        v_and_b32 v{x}, 1, v{y}
        v_lshl_add_u32 v{V['rr']}, v{x}, 4, v{V['rr']}
        v_bfe_u32 v{x}, v{y}, 3, 1
        v_lshl_add_u32 v{V['rr']}, v{x}, 3, v{V['rr']}
        v_lshrrev_b32 v{x}, 4, v{y}
        v_mul_u32_u24 v{V['rw2']}, 192, v{x}
        v_and_b32 v{x}, 15, v{y}
        v_lshl_add_u32 v{V['rw2']}, v{x}, 3, v{V['rw2']}
        s_mul_i32 s{S_T0}, s{S_WAVE}, 1536
        v_add_u32 v{V['rw2']}, s{S_T0}, v{V['rw2']}
        s_and_b32 s{S_T0}, s{S_WAVE}, 1
        s_mul_i32 s{S_T1}, s{S_T0}, 768
        v_add_u32 v{V['rr']}, s{S_T1}, v{V['rr']}
        s_add_u32 s{S_T1}, s{S_ROLE}, s{S_T0}
        s_lshr_b32 s{S_T0}, s{S_T1}, 2
        s_lshl_b32 s{S_T0}, s{S_T0}, 10
        s_and_b32 s{S_T1}, s{S_T1}, 3
        s_lshl_b32 s{S_T1}, s{S_T1}, 7
        s_add_u32 s{S_T0}, s{S_T0}, s{S_T1}
        s_add_u32 s{S_T0}, s{S_T0}, 8192
        v_and_b32 v{x}, 31, v{y}
        v_lshlrev_b32 v{V['mw']}, 2, v{x}
        v_lshrrev_b32 v{x}, 5, v{y}
        v_lshl_add_u32 v{V['mw']}, v{x}, 9, v{V['mw']}
        v_add_u32 v{V['mw']}, s{S_T0}, v{V['mw']}
        """)
    a(f"""
    v_lshrrev_b32 v{V['nw']}, 2, v{V['rw']}
    v_lshrrev_b32 v{V['nr']}, 1, v{V['l8']}
    s_lshl_b32 s{S_MD}, s{S_WAVE}, 11
    s_min_u32 s{S_MD}, s{S_MD}, 5120
    s_mov_b32 s{S_CU}, {L.CNT_U}
    """)
    for k in range(8): a(f"v_mov_b32 v{V['vx']+k}, 0")
    a(f"v_lshrrev_b32 v{V['pmr']}, 1, v{V['rw']}")
    a(f"s_lshl_b32 s{S_T0}, s{S_WAVE}, 2\ns_add_u32 s{S_T0}, s{S_T0}, {LDS_CF}\nv_add_u32 v{V['fw']}, s{S_T0}, v{V['l16']}\nv_mov_b32 v{V['fv']}, 0\nds_write_b32 v{V['fw']}, v{V['fv']}")
    team_mode(a, 104, 105, primed=not fz, behind=48 if cfg['dry'] else 0)
    if not cfg['dry']: comb_gate(a, cfg, primed=not fz)

def comb_gate(a, cfg, primed):
    if cfg['flags']:
        wait_cnt(a, S_CU, 28, 106, primed=primed)
        a(f's_mov_b32 s{S_CV}, {L.CNT_I}')
        wait_cnt(a, S_CV, 98, 108, primed=primed)
    if cfg['nou']:
        for k in range(32): a(f"v_mov_b32 v{CV['uf']+k}, 0")

def comb_wave(a, pf, stamps, cfg):
    V = CV; idx = V['idx']; mf = V['mf']; tw = V['tw']; uf = V['uf']; pa = V['pa']
    top = a.newlabel('L_cb_top'); nh0 = a.newlabel('L_nh')
    HT = [10, 11, 166, 167][:cfg['hdepth']]
    def store_vx(base, r):
        return [f"buffer_store_dwordx4 v[{r}:{r+3}], v{V['rw']}, {WSRD}, s{base} offen {cfg['xflags']}",
                f"s_add_u32 s{S_T1}, s{base}, 4096\nbuffer_store_dwordx4 v[{r+4}:{r+7}], v{V['rw']}, {WSRD}, s{S_T1} offen {cfg['xflags']}"]
    lq = Q('lgkmcnt', 15)
    def lread(lam, hf):
        return dsop(f"ds_read_b128 v[{tw+8*(lam%4)+4*hf}:{tw+8*(lam%4)+4*hf+3}], v{V['lw']} offset:{lam*2048+hf*1024}", ('lw', lam))
    def housekeeping_acc(a=a):
        for u in range(8):
            A = V['acc'] + 4*u
            a(f'v_mov_b64 v[{A}:{A+1}], 0\nv_mov_b64 v[{A+2}:{A+3}], 0')
    def housekeeping(a=a, acc=True):
        if acc: housekeeping_acc(a)
        for lam in range(4):
            for hf in range(2): a(lread(lam, hf)(lq))
    uload = lambda k: f"buffer_load_dwordx4 v[{uf+4*k}:{uf+4*k+3}], v{V['l16']}, {WSRD}, s{S_GOFF if k < 4 else S_EOFF} offen offset:{(k%4)*1024} {cfg['xflags']}"
    uorder = [] if cfg['nou'] else [4, 5, 6, 7, 0, 1, 2, 3]
    ue = uorder[:cfg['uearly']]; ul = uorder[cfg['uearly']:]
    housekeeping()
    t = mf
    slow = a.newlabel('L_cms'); back = a.newlabel('L_cmb'); redo = a.newlabel('L_cmr')
    pre = f"""s_add_u32 s{S_EOFF}, s{S_GOFF}, 16384
        s_lshl_b32 s{S_CU}, s{S_STEP}, 7
        s_add_u32 s{S_CU}, s{S_CU}, {L.CNT_U + 128}
        s_add_u32 s{S_T0}, s{S_MOFF}, s{S_MD}
        s_mov_b32 m0, s{S_MD}"""
    dry2 = a.newlabel('L_cdry')
    a(f's_mov_b64 s[{S_DRY}:{S_DRY+1}], 0')
    if cfg['dry']:
        a(f"""
        s_mov_b64 s[{S_DRY}:{S_DRY+1}], -1
        s_mov_b32 s{S_CV}, s{S_GOFF}
        s_mov_b32 s{S_GOFF}, {L.XN}
        s_mov_b32 s{S_CU}, {L.CNT_U}
        s_waitcnt lgkmcnt(0)
        s_branch {back}
{dry2}:
        s_mov_b64 s[{S_DRY}:{S_DRY+1}], 0
        s_mov_b32 s{S_GOFF}, s{S_CV}
        s_mov_b32 s{S_CV}, {L.CNT_I}
        v_mov_b32 v174, 0
        buffer_load_dword v175, v174, {WSRD}, s{S_CU} offen sc1
        buffer_load_dword v167, v174, {WSRD}, s{S_CV} offen sc1
        """)
        housekeeping()
        if cfg['flags']:
            wait_cnt(a, S_CU, 28, 174, primed=True)
            wait_cnt(a, S_CV, 98, 166, primed=True)
        else: a('s_waitcnt vmcnt(0)')
    a(pre)
    if cfg.get('wgd'): a('s_memrealtime s[96:97]')
    a(f's_branch {top}')
    if cfg['al'] is not None:
        a.raw('    .p2align 6')
        for _ in range(cfg['al'][4]): a.raw('    s_nop 0')
    a(f'{nh0}:\ns_barrier')
    a.label(top)
    stamp(a, stamps, 0)
    if cfg['cdma']:
        a(f"""
        buffer_load_dwordx4 v{V['l16']}, {WSRD}, s{S_T0} offen sc1 lds
        buffer_load_dwordx4 v{V['l16']}, {WSRD}, s{S_T0} offen offset:1024 sc1 lds
        s_mov_b32 s{S_SAFE}, 0
        """)
        if ue: a('s_barrier')
        for k in ue: a(uload(k))
        a(f's_waitcnt vmcnt({len(ue)}) lgkmcnt(0)\ns_barrier\n{back}:')
        def coldr():
            a(f'{redo}:\ns_barrier\ns_mov_b32 s{S_SAFE}, 1\ns_add_u32 s{S_YD}, s{S_XOFF}, 0x8000000')
            if stamps: a(f's_add_u32 s{40+2*8}, s{40+2*8}, 1')
            if cfg.get('wgd'): a('s_add_u32 s84, s84, 1')
            housekeeping()
            poll_m(a, V)
            a(f's_branch {back}')
        a.cold.append(coldr)
    else:
        a(f"""
        buffer_load_dwordx4 v[{t}:{t+3}], v{pa}, {WSRD}, s{S_MOFF} offen sc1
        buffer_load_dwordx4 v[{t+4}:{t+7}], v{pa}, {WSRD}, s{S_MOFF} offen offset:768 sc1
        """)
        if ue: a('s_barrier')
        for k in ue: a(uload(k))
        a(f"""
        s_waitcnt vmcnt({len(ue)+1})
        ds_write_b128 v{pa}, v[{t}:{t+3}]
        v_max3_u32 v{t+8}, v{t}, v{t+1}, v{t+2}
        s_waitcnt vmcnt({len(ue)})
        ds_write_b128 v{pa}, v[{t+4}:{t+7}] offset:768
        v_max3_u32 v{t+8}, v{t+8}, v{t+3}, v{t+4}
        v_max3_u32 v{t+8}, v{t+8}, v{t+5}, v{t+6}
        v_max_u32 v{t+8}, v{t+8}, v{t+7}
        v_cmp_eq_u32 vcc, -1, v{t+8}
        s_cbranch_vccnz {slow}
        s_waitcnt lgkmcnt(0)
        s_barrier
{back}:
        """)
        def coldm():
            a.label(slow)
            if stamps: a(f's_add_u32 s{40+2*8}, s{40+2*8}, 1')
            poll_m(a, V)
            a(f's_branch {back}')
        a.cold.append(coldm)
    lq.drain()
    stamp(a, stamps, 1)
    mrd = [dsop(f"ds_read_b64_tr_b16 v[{mf+4*b+2*hf}:{mf+4*b+2*hf+1}], v{V['l8']} offset:{LDS_M+b*1024+hf*512}", ('mf', b))
           for b in range(7) for hf in range(2)]
    for x in mrd[:cfg['mpre']]: a(x(lq))
    ms = []; last = {}
    rorder = [(u, b) for b in range(7) for u in range(2)] + [(u, b) for u in range(2, 6) for b in range(7)]
    rb = 0
    for p in range(56):
        if p % 4 == 3:
            lam = p // 4; u = 6 + lam // 7; b = lam % 7
            ms.append((SM(V['acc']+4*u, mf+4*b, vr(tw+8*(lam % 4), 8), idx), [('mf', b), ('lw', lam)]))
        else:
            u, b = rorder[rb]; rb += 1
            ms.append((SM(V['acc']+4*u, mf+4*b, wreg(u*7+b, V['w']), idx), [('mf', b)]))
        last[u] = p
    gp = Gaps(56)
    for k, x in enumerate(mrd[cfg['mpre']:]): gp.put('ds', k, x)
    for lam in range(4, 14):
        g = 4*(lam-4) + 3
        g = gp.put('ds', g, lread(lam, 0)) + 1
        gp.put('ds', g, lread(lam, 1))
    g = 0
    for k in ul: g = gp.put('va', g, uload(k)) + cfg['ustep']
    if cfg['flags']:
        g = gp.put('va', g, f"buffer_load_dword v{V['cu']}, v{V['zero']}, {WSRD}, s{S_CU} offen sc1") + 1
    for x in store_vx(S_YD, V['vx']): g = gp.put('va', g, x) + cfg['ustep']
    assert g - cfg['ustep'] < min(last.values()) + 3
    for k in range(len(HT)-1 if cfg['psl'] is None else 0):
        gp.put('ds', 55 - cfg['hpre'] + 4*k, f"buffer_load_dword v{HT[k]}, v{V['ha']}, {WSRD}, s{S_POFF} offen sc1")
    def post(u):
        A = V['acc'] + 4*u; hl = u >> 1; ctl = u & 1
        return ([f'v_pk_add_f32 v[{A}:{A+1}], v[{A}:{A+1}], v[{A+2}:{A+3}]'] if cfg['cpk'] else [f'v_add_f32 v{A}, v{A}, v{A+2}', f'v_add_f32 v{A+1}, v{A+1}, v{A+3}']) + [
                f"v_cvt_pk_bf16_f32 v{V['vx']+4*ctl+hl}, v{A}, v{A+1}"]
    tail = []; gprev = 0
    for u in sorted(last, key=lambda u: last[u]):
        g = max(last[u] + 3, gprev)
        if g + 4 >= 56: tail += post(u); continue
        for x in post(u): g = gp.put('va', g, x) + 1
        gprev = g
        if u == 0: done0 = g
    if cfg['cdma']:
        A0 = V['acc']; N = 168
        g = gp.put('va', done0, f'v_add_f32 v9, v{A0}, v{A0+1}') + 1
        g = gp.put('ds', g, dsop(f"ds_write_b32 v{V['nw']}, v9 offset:{LDS_NAN}", 'nw')) + 4
        gp.force('ds', g, dswait('nw', 's_barrier'))
        g = gp.put('ds', g+1, dsop(f"ds_read2st64_b32 v[{N}:{N+1}], v{V['nr']} offset0:{LDS_NAN//256} offset1:{LDS_NAN//256+1}")) + 1
        g = gp.put('ds', g, dsop(f"ds_read2st64_b32 v[{N+2}:{N+3}], v{V['nr']} offset0:{LDS_NAN//256+2} offset1:{LDS_NAN//256+3}", 'nr')) + 4
        g = gp.put('va', g, dswait('nr', f'v_add_f32 v{N}, v{N}, v{N+2}')) + 1
        g = gp.put('va', g, f'v_add_f32 v{N+1}, v{N+1}, v{N+3}') + 1
        g = gp.put('va', g, f'v_cmp_u_f32 vcc, v{N}, v{N+1}')
        if cfg['dry']: gp.force('va', g+2, f's_or_b64 vcc, vcc, s[{S_DRY}:{S_DRY+1}]')
        assert g < 54
    emit_stream(a, ms, gp, lq)
    if cfg['cdma']:
        nb = a.newlabel('L_cnb'); nx = a.newlabel('L_cnx')
        a(f's_cbranch_vccnz {nb};nf\n{nx}:;nf')
        a.cold.append(lambda: a(f'{nb}:\ns_nop 7\n' + (f's_cmp_lg_u32 s{S_DRY}, 0\ns_cbranch_scc1 {dry2}\n' if cfg['dry'] else '') + f's_cmp_eq_u32 s{S_SAFE}, 0\ns_cbranch_scc1 {redo}\ns_branch {nx}'))
    for x in tail: a(x)
    lastl = a.newlabel('L_cbl')
    a(f's_cmp_ge_u32 s{S_STEP}, 63\ns_cbranch_scc1 {lastl}')
    def coldl():
        a.label(lastl)
        for x in store_vx(S_XOFF, V['vx']): a(x)
        a('s_branch L_exit')
    a.cold.append(coldl)
    stamp(a, stamps, 2)
    A = 76
    a(f's_add_u32 s{S_T0}, s{S_POFF}, 8192\ns_mov_b32 s{S_YD}, s{S_XOFF}')
    if stamps and cfg['sdrain']: a('s_waitcnt vmcnt(0)')
    stamp(a, stamps, 3)
    if cfg['psl'] is None:
        jn = a.newlabel('L_jn')
        a(f's_cmp_lg_u32 s{S_WAVE}, 0\ns_cbranch_scc1 {jn}')
        wait_hint(a, V['ha'], S_POFF, HT, delay=cfg['pdelay'], inner=cfg['hinner'], primed=True)
        a(f'{jn}:\ns_barrier')
    else:
        housekeeping(a, False)
        stamp_flush(a, stamps, 11, mf+24)
        if cfg['pw'] is not None:
            tot = cfg['pw'] - (16*cfg['fl'] if stamps else 0)
            if cfg['pal'] is not None:
                a.raw('    .p2align 5')
                if stamps: a('s_memtime s[52:53]\ns_nop 0\ns_nop 0\ns_nop 0\ns_nop 0\ns_nop 0\ns_nop 0')
            nn = 5 if cfg['pal'] is None else 2 + cfg['pal']
            for k in range(nn): a(f's_nop {max(1, (tot + k) // nn) - 1}')
        else:
            if cfg['psl'] - (cfg['fl'] if stamps else 0) > 0: a(f"s_sleep {cfg['psl'] - (cfg['fl'] if stamps else 0)}")
            if cfg['pdelay']: a(f"s_nop {cfg['pdelay']-1}")
        if cfg['pbar']: a('s_barrier')
    stamp(a, stamps and cfg['pal'] is None, 6)
    l = a.newlabel('L_pp'); d = a.newlabel('L_ppd'); retry = a.newlabel('L_ppr'); t = 9
    R = A
    B3 = [vr(uf, 8), vr(uf+8, 8), vr(V['itm'], 8)], [vr(uf+16, 8), vr(uf+24, 8), vr(V['itm']+8, 8)]
    mh = f"""s_mov_b64 exec, {1 if cfg['h64'] else 15}
        buffer_store_dword v{V['zero']}, v{V['hw']}, {WSRD}, s{S_MOFF} offen {pf}
        s_mov_b64 exec, -1"""
    def issue(p, a=a):
        a(f"""
        buffer_load_dwordx4 v[{p}:{p+3}], v{V['pr']}, {WSRD}, s{S_POFF} offen sc1
        buffer_load_dwordx4 v[{p+4}:{p+7}], v{V['pr']}, {WSRD}, s{S_POFF} offen offset:1024 sc1
        buffer_load_dwordx2 v[{p+8}:{p+9}], v{V['pmr']}, {WSRD}, s{S_T0} offen sc1
        """)
    def zero(a=a):
        for k in range(4): a(f'v_mov_b64 v[{A+2*k}:{A+2*k+1}], 0')
    def attempt(p, behind, hint_here):
        ex = behind
        a(f's_add_u32 s{S_SPIN}, s{S_SPIN}, 1')
        for k in range(3):
            a(f's_waitcnt vmcnt({2-k+ex})')
            S32 = lambda acc, B: f'v_smfmac_f32_16x16x32_bf16 v[{acc}:{acc+3}], v[{p+8}:{p+9}], {B}, v{idx}'
            a(SM(A, p+4*k, B3[0][k], idx) if k < 2 else S32(A, vr(V['vx'], 4)))
            a(f'v_max_u32 v{t}, v{p}, v{p+2}' if k == 0 else f'v_max3_u32 v{t}, v{t}, v{p+4*k}, v{p+4*k+(2 if k < 2 else 1)}')
            a(SM(A+4, p+4*k, B3[1][k], idx) if k < 2 else S32(A+4, vr(V['vx']+4, 4)))
            if hint_here and k == cfg['mhk']:
                if cfg['mhint'] == 3:
                    a(f"""v_cmp_eq_u32 vcc, -1, v{t}
                    s_cmp_eq_u64 vcc, 0
                    s_cselect_b64 exec, 15, 0
                    buffer_store_dword v{V['zero']}, v{V['hw']}, {WSRD}, s{S_MOFF} offen {pf}
                    s_mov_b64 exec, -1""")
                else: a(mh)
                ex += 1
        a(f'v_cmp_eq_u32 vcc, -1, v{t}')
    a(f's_mov_b32 s{S_SPIN}, 0')
    sub = Asm(); issue(mf, sub); ld3 = [x.text for _, x in sub.items]
    sub = Asm(); zero(sub); sub(f"v_add_u32 v{V['fv']}, 1, v{V['fv']}"); housekeeping_acc(sub); fl = [x.text for _, x in sub.items]
    used = 0
    for k in range(3):
        a(ld3[k])
        if k < 2 and cfg['pst']:
            n_ = min(cfg['pst'], len(fl))
            for x in fl[:n_]: a(x)
            fl = fl[n_:]
            if n_ < cfg['pst']: a(f"s_nop {cfg['pst'] - n_ - 1}")
            used += cfg['pst']
    for x in fl: a(x)
    used += len(fl)
    if cfg['p2']:
        gap = cfg['p2'] + 5 - used
        while gap > 0:
            a(f's_nop {min(gap, 16) - 1}'); gap -= 16
        issue(mf+12)
    if cfg['mhint'] == 0:
        for _ in range(cfg['mhnop']): a('s_nop 3')
        a(mh)
    attempt(mf, (3 if cfg['p2'] else 0) + (cfg['mhint'] == 0), cfg['mhint'] >= 2)
    if not cfg['lateb']: a(f's_cbranch_vccnz {retry};nf')
    a(f'{d}:;nf')
    def coldp():
        a(f'{retry}:\ns_nop 7')
        if cfg['p2']:
            a.label(l)
            issue(mf)
            zero()
            attempt(mf+12, 3, cfg['mhint'] == 3)
            a(f's_cbranch_vccz {d}')
            issue(mf+12)
            zero()
            attempt(mf, 3, cfg['mhint'] == 3)
        else:
            a.label(l)
            issue(mf)
            zero()
            attempt(mf, 0, cfg['mhint'] == 3)
        a(f"""
        s_cbranch_vccz {d}
        s_cmp_lt_u32 s{S_SPIN}, s{S_LIM}
        s_cbranch_scc1 {l}
        s_mov_b32 s{S_LIM}, 1
        s_mov_b64 vcc, 0
        s_branch {d}
        """)
    a.cold.append(coldp)
    stamp(a, stamps and cfg['pal'] is None, 4)
    if cfg['lateb']:
        a(f"""
        s_cmp_eq_u64 vcc, 0
        s_cselect_b64 exec, 15, 0
        buffer_store_dword v{V['zero']}, v{V['hw']}, {WSRD}, s{S_MOFF} offen {pf}
        s_mov_b64 exec, -1
        """)
    elif cfg['mhint'] == 1 and not cfg['cert']: a(mh)
    if stamps and cfg['pal'] is None: a(f's_mov_b32 s{40+2*7}, s{S_SPIN}')
    if cfg['flags']: a(f"v_readfirstlane_b32 s{S_CV}, v{V['cu']}")
    hiw = a.newlabel('L_cbh'); rag = a.newlabel('L_rag'); rag2 = a.newlabel('L_rag'); nh = nh0; ny = a.newlabel('L_cny')
    def chores(adv=True):
        if cfg['flags']:
            slow2 = a.newlabel('L_us'); back2 = a.newlabel('L_ub')
            a(f's_cmp_lt_u32 s{S_CV}, 28\ns_cbranch_scc1 {slow2}\n{back2}:')
            def coldu():
                a.label(slow2)
                wait_cnt(a, S_CU, 28, 174)
                a(f's_branch {back2}')
            a.cold.append(coldu)
        if adv: step_advance(a, 458752)
        a(pre)
        if cfg.get('wgd'): a(f's_add_u32 s83, s83, s{S_SPIN}')
    def hi_tail():
        w2 = a.newlabel('L_cw2')
        ld = lambda r: f"buffer_load_dword v{r}, v{V['hm']}, {WSRD}, s{S_MOFF} offen sc1"
        a.label(hiw)
        step_advance(a, 458752)
        a(f"""
        s_cmp_eq_u32 s{S_WAVE}, 2
        s_waitcnt lgkmcnt(0)
        s_barrier
        s_cbranch_scc1 {w2}
        {ld(HT[0])}
        """)
        stamp(a, stamps, 5)
        chores(False)
        a(f"s_nop 4\n{ld(HT[1])}\ns_nop 12\n{ld(HT[2])}\ns_nop 12")
        wait_hint(a, V['hm'], S_MOFF, HT, delay=cfg['cdelay'], inner=cfg['hinner'], primed=True)
        a(f's_branch {nh}\n{w2}:')
        if cfg['cq']: a(f"s_sleep {cfg['cq']}")
        stamp(a, stamps, 5)
        chores(False)
        a(f's_branch {nh}')
    a.cold.append(hi_tail)
    a(f"""
    v_pk_add_f32 v[{A}:{A+1}], v[{A}:{A+1}], v[{A+2}:{A+3}]
    ds_write_b64 v{V['rw2']}, v[{A}:{A+1}] offset:{LDS_RED}
    v_pk_add_f32 v[{A+4}:{A+5}], v[{A+4}:{A+5}], v[{A+6}:{A+7}]
    ds_write_b64 v{V['rw2']}, v[{A+4}:{A+5}] offset:{LDS_RED+768}
    {f's_cbranch_vccnz {retry}' if cfg['lateb'] else ''}
    s_cmp_ge_u32 s{S_WAVE}, 2
    s_cbranch_scc1 {hiw}
    s_waitcnt lgkmcnt(0)
    s_barrier
    ds_read_b64 v[{R}:{R+1}], v{V['rr']} offset:{LDS_RED}
    ds_read_b64 v[{R+2}:{R+3}], v{V['rr']} offset:{LDS_RED+1536}
    ds_read_b64 v[{R+4}:{R+5}], v{V['rr']} offset:{LDS_RED+3072}
    ds_read_b64 v[{R+6}:{R+7}], v{V['rr']} offset:{LDS_RED+4608}
    s_waitcnt lgkmcnt(2)
    v_pk_add_f32 v[{R}:{R+1}], v[{R}:{R+1}], v[{R+2}:{R+3}]
    s_waitcnt lgkmcnt(0)
    v_pk_add_f32 v[{R+4}:{R+5}], v[{R+4}:{R+5}], v[{R+6}:{R+7}]
    v_pk_add_f32 v[{R}:{R+1}], v[{R}:{R+1}], v[{R+4}:{R+5}]
    v_cvt_pk_bf16_f32 v9, v{R}, v{R+1}
    buffer_store_dword v9, v{V['mw']}, {WSRD}, s{S_MOFF} offen {pf}
    """)
    if cfg['cert']: a(mh)
    stamp(a, stamps, 5)
    a(f"""
    s_cmp_lt_u32 s{S_STEP}, 62
    s_cbranch_scc1 {ny}
    s_add_u32 s{S_T0}, s{S_MOFF}, {L.MB_Y - L.MB_M}
    buffer_store_dword v9, v{V['mw']}, {WSRD}, s{S_T0} offen sc1
{ny}:
    """)
    chores()
    a(f's_branch {nh}')
    while a.cold: a.flush_cold()

def helper_cu(a, cfg):
    V = dict(l8=0, pa=1, idx=2, mf=12); LN = 112
    NP = cfg['npf']; D = cfg['pfd']; PER = cfg['pfper']
    a(f'v_mov_b32 v{LN}, v1')
    team_register(a)
    common_addrs(a, V, LN)
    a(f"""
    v_lshlrev_b32 v4, 7, v{LN}
    v_mov_b32 v3, v4
    v_mov_b32 v5, 0
    v_mov_b32 v6, 14
    s_sub_u32 s{S_ROLE}, s{S_ROLE}, 30
    s_lshl_b32 s{S_EOFF}, s{S_ROLE}, 2
    s_add_u32 s{S_EOFF}, s{S_EOFF}, s{S_WAVE}
    s_mov_b32 s{S_STEP}, 0
    s_mov_b32 s{S_MOFF}, {L.MB_M + 8192}
    s_mov_b32 s{S_CV}, {L.DUMMY + 0x200000}
    s_mul_i32 s{S_GOFF}, s{S_EOFF}, 7168
    s_add_u32 s{S_GOFF}, s{S_GOFF}, {L.XN}
    s_mov_b32 s{S_POFF}, 28672
    s_cmp_lt_u32 s{S_EOFF}, 4
    s_cbranch_scc1 H_t
    s_sub_u32 s{S_GOFF}, s{S_EOFF}, 4
    s_mul_i32 s{S_GOFF}, s{S_GOFF}, 6144
    s_add_u32 s{S_GOFF}, s{S_GOFF}, {L.MB_P}
    s_mov_b32 s{S_POFF}, 16384
    s_cmp_lt_u32 s{S_EOFF}, 6
    s_cbranch_scc1 H_t
    s_mov_b32 s{S_GOFF}, {L.MB_M + 8192}
    s_mov_b32 s{S_POFF}, 8192
    s_cmp_lt_u32 s{S_EOFF}, {7 if cfg['tlb'] else 8}
    s_cbranch_scc1 H_t
    s_mov_b32 s{S_GOFF}, {L.U + cfg['tlb']*458752}
    s_mov_b32 s{S_POFF}, 458752
    v_mul_u32_u24 v3, 7168, v{LN}
H_t:
    """)
    def mtouch():
        a(f'buffer_load_dword v7, v3, {WSRD}, s{S_GOFF} offen sc1\ns_add_u32 s{S_GOFF}, s{S_GOFF}, s{S_POFF}')
    if cfg['fused']: wait_ln(a, LN, 100)
    team_mode(a, V['mf'], V['mf']+1)
    a(f's_mov_b32 s{S_LIM}, {SPIN_MAX*4}')
    a(f"""
    s_getpc_b64 s[70:71]
H_pc:
    s_lshl_b32 s{S_T0}, s{S_EOFF}, 12
    v_lshrrev_b32 v10, 1, v4
    s_add_u32 s70, s70, s{S_T0}
    s_addc_u32 s71, s71, 0
    s_add_u32 s70, s70, L_nothelp-H_pc
    s_addc_u32 s71, s71, 0
    s_mov_b32 s72, s{S_GOFF}
    s_mov_b32 s{S_SPIN}, 0
    s_mov_b32 s73, {L.MB_P}
H_warm:
    s_mov_b32 s{S_GOFF}, s72
    global_load_dword v8, v10, s[70:71] sc1
    """)
    for _ in range(D+1): mtouch()
    a(f"""
    buffer_load_dword v9, v5, {WSRD}, s73 offen sc1
    s_add_u32 s{S_SPIN}, s{S_SPIN}, 1
    s_waitcnt vmcnt(0)
    v_cmp_eq_u32 vcc, -1, v9
    s_cbranch_vccz H_warmed
    s_sleep 8
    s_cmp_lt_u32 s{S_SPIN}, s{S_LIM}
    s_cbranch_scc1 H_warm
H_warmed:
    """)
    mul = {2: (128, 8), 3: (86, 8)}[PER]
    for k in range(NP):
        a(f"""
        s_add_u32 s{S_T0}, s{S_EOFF}, {8*k}
        s_min_u32 s{S_T0}, s{S_T0}, {14*PER-1}
        s_mul_i32 s{S_T1}, s{S_T0}, {mul[0]}
        s_lshr_b32 s{S_T1}, s{S_T1}, {mul[1]}
        s_mul_i32 s{S_T1}, s{S_T1}, {4-PER}
        s_add_u32 s{S_T0}, s{S_T0}, s{S_T1}
        s_lshl_b32 s{60+k}, s{S_T0}, 13
        s_add_u32 s{60+k}, s{60+k}, {L.U}
        """)
    def utouch():
        for k in range(NP):
            a(f'buffer_load_dword v{32+k}, v4, {WSRD}, s{60+k} offen sc1\ns_add_u32 s{60+k}, s{60+k}, 458752')
    a(f's_mov_b32 s{S_CU}, {L.CNT_U}')
    for _ in range(D if NP else 0):
        if cfg['flags']: wait_cnt(a, S_CU, 28, 30)
        utouch()
        a(f's_add_u32 s{S_CU}, s{S_CU}, 128')
    t = V['mf']; pa = V['pa']
    sk = a.newlabel('H_sk'); sk2 = a.newlabel('H_sk'); ok = a.newlabel('H_ok')
    a(f"""
H_top:
    s_mov_b32 s{S_SPIN}, 0
H_poll:
    buffer_load_dwordx4 v[{t}:{t+3}], v{pa}, {WSRD}, s{S_MOFF} offen sc1
    buffer_load_dwordx4 v[{t+4}:{t+7}], v{pa}, {WSRD}, s{S_MOFF} offen offset:768 sc1
    buffer_load_dword v30, v5, {WSRD}, s{S_CU} offen sc1
    s_add_u32 s{S_SPIN}, s{S_SPIN}, 1
    s_waitcnt vmcnt(0)
    v_max3_u32 v{t+8}, v{t}, v{t+1}, v{t+2}
    v_max3_u32 v{t+8}, v{t+8}, v{t+3}, v{t+4}
    v_max3_u32 v{t+8}, v{t+8}, v{t+5}, v{t+6}
    v_max_u32 v{t+8}, v{t+8}, v{t+7}
    v_readfirstlane_b32 s{S_T0}, v30
    v_cmp_eq_u32 vcc, -1, v{t+8}
    s_cbranch_vccz {ok}
    s_sleep {cfg['hsleep']}
    s_cmp_lt_u32 s{S_SPIN}, s{S_LIM}
    s_cbranch_scc1 H_poll
    s_mov_b32 s{S_LIM}, 1
{ok}:
    s_cmp_lg_u32 s{S_ROLE}, 0
    s_cbranch_scc1 {sk}
    s_add_u32 s{S_T1}, s{S_MOFF}, {L.MB_Y - L.MB_M}
    buffer_store_dwordx4 v[{t}:{t+3}], v{pa}, {WSRD}, s{S_T1} offen sc1
    buffer_store_dwordx4 v[{t+4}:{t+7}], v{pa}, {WSRD}, s{S_T1} offen offset:768 sc1
{sk}:
    s_cmp_ge_u32 s{S_STEP}, {63 - D}
    s_cbranch_scc1 {sk2}
    """)
    mtouch()
    if NP:
        sk3 = a.newlabel('H_sk'); sk4 = a.newlabel('H_sk')
        if cfg['flags']: a(f's_cmp_lt_u32 s{S_T0}, 28\ns_cbranch_scc1 {sk3}')
        utouch()
        a(f's_branch {sk4}\n{sk3}:')
        for k in range(NP): a(f's_add_u32 s{60+k}, s{60+k}, 458752')
        a(f'{sk4}:\ns_add_u32 s{S_CU}, s{S_CU}, 128')
    a(f"""
{sk2}:
    s_add_u32 s{S_STEP}, s{S_STEP}, 1
    s_add_u32 s{S_MOFF}, s{S_MOFF}, 8192
    s_cmp_lt_u32 s{S_STEP}, 62
    s_cbranch_scc1 H_top
    s_branch L_exit
    """)

DEFAULT_CFG = dict(ba=[35, 35, 34, 34], bak=3, bb=[53, 53, 0, 0], xflags='', ssleep=[2, 2, 2, 0], csleep=0, psleep=0, touch=1,
                   nou=0, nox=0, cflush=1, flags=0, ustep=3, hsleep=2, mdelay=5, pdelay=1, phint=9, lead=[4, 1], pnop=[0, 8], b5nop=2, npf=0, pfper=2, hdepth=4, hpre=10, psl=3, fl=1, mhk=0, px=9, quiet=7, cq=1, al=[0, 0, 0, 5, 1], prio=[0, 0, 0, 0], wfl='', fused=0, cpk=0, dry=0, pal=4, early=1, lateb=0, split=4, sg=-1, spre=5, xa=(0, 4), xb=(4, 20), rxs=0, b4s=0, h64=0, mlin=1, pst=0, cert=0, b3s=0, reds=0, pw=21, fin1=0, tlb=0, xin=0, xstep=3, xs=4, xw=[(0, 0), (20, 24), (24, 28), (0, 0)], pbar=1, scap=None, ccap=None, m2=0, mdma=1, m2d=0, msamp=0, cdma=1, m2w=10, p2=32, cutrig=1, hinner=2, uearly=4, mhint=1, mhnop=0, sdrain=0, pfd=3, mpre=6, chint=1, cdelay=19)

def team_body(a, stamps=False, cfg=None):
    cfg = dict(DEFAULT_CFG, **(cfg or {}))
    a(f's_cmp_lt_u32 s{S_ROLE}, 30\ns_cbranch_scc1 L_nothelp')
    helper_cu(a, cfg)
    a.label('L_nothelp')
    a(f's_cmp_ge_u32 s{S_ROLE}, 16\ns_cbranch_scc1 L_comb')
    score_setup(a, stamps, cfg)
    for fast in (1, 0):
        a(f's_cmp_lg_u32 s{S_FAST}, {fast}\ns_cbranch_scc1 L_sc_next{fast}')
        for w in range(4):
            if w < 3:
                a(f's_cmp_lg_u32 s{S_WAVE}, {w}\ns_cbranch_scc1 L_sc{fast}_n{w}')
            score_wave(a, w, '' if fast else 'sc1', stamps, cfg)
            if w < 3: a.label(f'L_sc{fast}_n{w}')
        a.label(f'L_sc_next{fast}')
    a('s_branch L_exit')
    a.label('L_comb')
    comb_setup(a, stamps, cfg)
    for fast in (1, 0):
        a(f's_cmp_lg_u32 s{S_FAST}, {fast}\ns_cbranch_scc1 L_cb_next{fast}')
        comb_wave(a, '' if fast else 'sc1', stamps, cfg)
        a.label(f'L_cb_next{fast}')
    a('s_branch L_exit')
```

```python
from asmlib import *
import layout as L

SENT = -1
S_WS = 8
S_DBG = 12
S_ROLE = 16
S_WAVE = 17
S_XCC = 18
S_STEP = 19
S_FAST = 20
S_MOFF = 21; S_POFF = 22; S_EOFF = 23; S_GOFF = 24; S_XOFF = 25; S_T0 = 26; S_T1 = 27; S_SPIN = 28; S_LIM = 29
S_EXEC = 30
S_STMP = 32
S_DRY = 34
SPIN_MAX = 20000
NTEAM = 32

LDS_M = 0
LDS_T = 7168
LDS_FL = 14336
LDS_VD = 18432
LDS_PT = 19456
LDS_X = 20480
LDS_CF = 14336
LDS_NAN = 13312
LDS_RED = 7168
LDS_BW = 16384
LDS_ROLE = 160*1024 - 16

def prologue(a, stamps, pool_off=0, scatter=False, code=1, guess=0):
    if code:
        a('s_getpc_b64 s[40:41]\nM_pc:\nv_lshlrev_b32 v12, 7, v0\nglobal_load_dword v255, v12, s[40:41]')
        a('v_add_u32 v12, 32768, v12\nv_min_u32 v11, L_end-M_pc, v12\nglobal_load_dword v255, v11, s[40:41]')
    a(f'''
    s_cmp_ge_u32 s2, 256
    s_cbranch_scc1 L_end
    s_load_dwordx2 s[4:5], s[0:1], 96
    s_load_dwordx2 s[6:7], s[0:1], 88
    s_getreg_b32 s{S_XCC}, hwreg(HW_REG_XCC_ID, 0, 4)
    v_lshrrev_b32 v2, 6, v0
    v_and_b32 v1, 63, v0
    v_readfirstlane_b32 s{S_WAVE}, v2
    s_and_b32 s{S_XCC}, s{S_XCC}, 7
    s_waitcnt lgkmcnt(0)
    s_mov_b32 s{S_WS}, s4
    s_and_b32 s{S_WS+1}, s5, 0xffff
    s_mov_b32 s{S_WS+2}, {L.WS_BYTES}
    s_mov_b32 s{S_WS+3}, 0x20000
    s_mov_b32 s{S_DBG}, s6
    s_and_b32 s{S_DBG+1}, s7, 0xffff
    s_mov_b32 s{S_DBG+2}, 256
    s_mov_b32 s{S_DBG+3}, 0x20000
    v_mov_b32 v4, {LDS_ROLE}
    ''')
    if guess:
        a(f'''
        s_cmp_lg_u32 s{S_XCC}, 0
        s_cbranch_scc1 L_ng
        s_lshr_b32 s{S_T0}, s2, 3
        s_cmp_ge_u32 s{S_T0}, 30
        s_cbranch_scc1 L_ng
        s_mul_i32 s{S_T1}, s{S_T0}, 28
        s_add_u32 s{S_T1}, s{S_T1}, s{S_WAVE}
        s_mov_b32 s{S_STEP}, {4*14336}
        s_cmp_lt_u32 s{S_T0}, 16
        s_cbranch_scc1 L_gs
        s_lshl_b32 s{S_T1}, s{S_T0}, 1
        s_mul_i32 s{S_T0}, s{S_WAVE}, 112
        s_add_u32 s{S_T1}, s{S_T1}, s{S_T0}
        s_add_u32 s{S_T1}, s{S_T1}, {448 - 32 + 84}
        s_mov_b32 s{S_STEP}, 14336
L_gs:
        s_mul_i32 s{S_T1}, s{S_T1}, 14336
        s_add_u32 s{S_T1}, s{S_T1}, {L.WT}
        v_min_u32 v5, 55, v1
        v_lshlrev_b32 v5, 7, v5
        ''')
        for k in range(guess):
            a(f's_add_u32 s{S_T0}, s{S_T1}, 7168')
            a(f'buffer_load_dword v255, v5, s[{S_WS}:{S_WS+3}], s{S_T1} offen\nbuffer_load_dword v255, v5, s[{S_WS}:{S_WS+3}], s{S_T0} offen')
            a(f's_add_u32 s{S_T1}, s{S_T1}, s{S_STEP}')
        a.label('L_ng')
    a(f'''
    s_cmp_lg_u32 s{S_WAVE}, 0
    s_cbranch_scc1 L_role_wait
    s_mov_b64 exec, 1
    s_mov_b32 s{S_T0}, 0
L_role_try:
    {f's_lshr_b32 s{S_T1}, s2, 5' if scatter else f's_mov_b32 s{S_T1}, s{S_XCC}'}
    s_add_u32 s{S_T1}, s{S_T1}, s{S_T0}
    s_and_b32 s{S_T1}, s{S_T1}, 7
    s_lshl_b32 s{S_ROLE}, s{S_T1}, 7
    s_add_u32 s{S_ROLE}, s{S_ROLE}, {L.CNT_P + pool_off}
    v_mov_b32 v2, s{S_ROLE}
    v_mov_b32 v3, 1
    buffer_atomic_add v3, v2, s[{S_WS}:{S_WS+3}], 0 offen sc0
    s_waitcnt vmcnt(0)
    v_readfirstlane_b32 s{S_ROLE}, v3
    s_cmp_lt_u32 s{S_ROLE}, 32
    s_cbranch_scc1 L_role_got
    s_add_u32 s{S_T0}, s{S_T0}, 1
    s_cmp_lt_u32 s{S_T0}, 8
    s_cbranch_scc1 L_role_try
    s_mov_b32 s{S_ROLE}, 31
    s_mov_b32 s{S_T1}, 0
L_role_got:
    s_lshl_b32 s{S_T1}, s{S_T1}, 5
    s_add_u32 s{S_ROLE}, s{S_ROLE}, s{S_T1}
    v_mov_b32 v2, s{S_ROLE}
    ds_write_b32 v4, v2
    s_mov_b64 exec, -1
    s_waitcnt lgkmcnt(0)
L_role_wait:
    s_barrier
    ds_read_b32 v2, v4
    s_waitcnt lgkmcnt(0)
    v_readfirstlane_b32 s{S_ROLE}, v2
    ''')

FSL = [8, 32]
def wait_flags(a, vaddr, need, t, n=1):
    l = a.newlabel('L_wf'); d = a.newlabel('L_wfd')
    regs = [t] + [t+4+2*k for k in range(n-1)]
    a(f"""
    s_mov_b32 s{S_SPIN}, 0
    s_mov_b32 s{S_EXEC}, {L.FL}
    s_add_u32 s{S_EXEC+1}, s80, {need}
{l}:
    """)
    for k, r in enumerate(regs):
        a(f'buffer_load_dwordx2 v[{r}:{r+1}], v{vaddr}, s[{S_WS}:{S_WS+3}], s{S_EXEC} offen offset:{k*512} sc1')
    a(f's_add_u32 s{S_SPIN}, s{S_SPIN}, 1\ns_waitcnt vmcnt(0)')
    for k, r in enumerate(regs):
        a(f"""
        v_subrev_u32 v{r}, s{S_EXEC+1}, v{r}
        v_xor_b32 v{r+1}, s81, v{r+1}
        v_lshl_or_b32 v{t+2}, v{r+1}, 3, v{r+1}
        v_or_b32 v{r}, v{r}, v{t+2}
        """)
        if k: a(f'v_max_u32 v{t}, v{t}, v{r}')
    a(f"""
    v_cmp_lt_u32 vcc, {7 - need}, v{t}
    s_cbranch_vccz {d}
    s_sleep {FSL[n > 1]}
    s_cmp_lt_u32 s{S_SPIN}, {SPIN_MAX*4}
    s_cbranch_scc1 {l}
{d}:
    """)

def prologue_fused(a):
    a(f"""
    s_getreg_b32 s{S_XCC}, hwreg(HW_REG_XCC_ID, 0, 4)
    s_mov_b32 s{S_WAVE}, s20
    s_and_b32 s{S_XCC}, s{S_XCC}, 7
    s_mov_b32 s{S_DBG}, s56
    s_mov_b32 s{S_DBG+1}, s57
    s_mov_b32 s{S_DBG+2}, 256
    s_mov_b32 s{S_DBG+3}, 0x20000
    v_mov_b32 v4, {LDS_ROLE}
    s_cmp_lg_u32 s{S_WAVE}, 0
    s_barrier
    s_cbranch_scc1 L_role_wait
    s_mov_b64 exec, 1
    s_mov_b32 s{S_T0}, 0
    s_mov_b32 s{S_T1}, s{S_XCC}
    v_mov_b32 v3, v250
    s_branch L_role_see
L_role_try:
    s_add_u32 s{S_T1}, s{S_XCC}, s{S_T0}
    s_and_b32 s{S_T1}, s{S_T1}, 7
    s_and_b32 s{S_ROLE}, s{S_T1}, 1
    s_lshl_b32 s{S_ROLE}, s{S_ROLE}, 7
    s_and_b32 s{S_SPIN}, s{S_T1}, 6
    s_lshl_b32 s{S_SPIN}, s{S_SPIN}, 1
    s_add_u32 s{S_ROLE}, s{S_ROLE}, s{S_SPIN}
    v_mov_b32 v2, s{S_ROLE}
    v_mov_b32 v3, 1
    buffer_atomic_add v3, v2, s[{S_DBG}:{S_DBG+3}], 0 offen sc0
    s_waitcnt vmcnt(0)
L_role_see:
    v_readfirstlane_b32 s{S_ROLE}, v3
    s_cmp_lt_u32 s{S_ROLE}, 32
    s_cbranch_scc1 L_role_got
    s_add_u32 s{S_T0}, s{S_T0}, 1
    s_cmp_lt_u32 s{S_T0}, 8
    s_cbranch_scc1 L_role_try
    s_mov_b32 s{S_ROLE}, 31
    s_mov_b32 s{S_T1}, 0
L_role_got:
    s_lshl_b32 s{S_T1}, s{S_T1}, 5
    s_add_u32 s{S_ROLE}, s{S_ROLE}, s{S_T1}
    v_mov_b32 v2, s{S_ROLE}
    ds_write_b32 v4, v2
    s_mov_b64 exec, -1
    s_waitcnt lgkmcnt(0)
L_role_wait:
    s_barrier
    ds_read_b32 v2, v4
    s_waitcnt lgkmcnt(0)
    v_readfirstlane_b32 s{S_ROLE}, v2
    """)

def wait_ln(a, lane, t, sleep=8):
    l = a.newlabel('L_wa'); d = a.newlabel('L_wad')
    a(f"""
    s_lshl_b32 s{S_T0}, s{S_WAVE}, 13
    s_add_u32 s{S_T0}, s{S_T0}, {L.FL}
    s_add_u32 s{S_T1}, s80, 7
    v_lshlrev_b32 v{t+8}, 7, v{lane}
    s_mov_b32 s{S_SPIN}, 0
{l}:
    buffer_load_dwordx4 v[{t}:{t+3}], v{t+8}, s[{S_WS}:{S_WS+3}], s{S_T0} offen sc1
    buffer_load_dwordx4 v[{t+4}:{t+7}], v{t+8}, s[{S_WS}:{S_WS+3}], s{S_T0} offen offset:16 sc1
    s_add_u32 s{S_SPIN}, s{S_SPIN}, 1
    s_waitcnt vmcnt(0)
    """)
    for k in range(4):
        a(f'v_xor_b32 v{t+2*k}, s{S_T1}, v{t+2*k}\nv_xor_b32 v{t+2*k+1}, s81, v{t+2*k+1}')
    a(f"""
    v_or3_b32 v{t}, v{t}, v{t+1}, v{t+2}
    v_or3_b32 v{t+3}, v{t+3}, v{t+4}, v{t+5}
    v_or3_b32 v{t}, v{t}, v{t+6}, v{t+7}
    v_or_b32 v{t}, v{t}, v{t+3}
    v_cmp_ne_u32 vcc, 0, v{t}
    s_cbranch_vccz {d}
    s_sleep {sleep}
    s_cmp_lt_u32 s{S_SPIN}, {SPIN_MAX*4}
    s_cbranch_scc1 {l}
{d}:
    s_barrier
    """)

STAGE1 = (0, 4, 8, 11)
def load_tiles(a, tiles, vaddr, sbase, stage, flags, bud, cap=None, inject=None):
    cnt = 0
    for off, dsts in tiles:
        cur = None
        for k in range(14):
            cnt += 1
            if inject and cnt == inject[0]:
                a(inject[1]); bud[0] += 1
            if dsts[k] is None: continue
            if stage is not None and (k in STAGE1) != (stage == 1): continue
            if cur != k // 4:
                cur = k // 4
                a(f's_add_u32 s{S_T0}, s{sbase}, {off + cur*4096}')
            a(f'buffer_load_dwordx4 {dsts[k]}, v{vaddr}, s[{S_WS}:{S_WS+3}], s{S_T0} offen offset:{(k%4)*1024} {flags}')
            bud[0] += 1
            if cap is not None:
                if bud[0] > cap: a(f's_waitcnt vmcnt({cap})')
            elif bud[0] >= 56:
                a('s_waitcnt vmcnt(28)'); bud[0] = 28

def team_register(a):
    l = a.newlabel('L_reg')
    a(f'''
    s_cmp_lg_u32 s{S_WAVE}, 0
    s_cbranch_scc1 {l}
    s_cmp_eq_u32 s{S_XCC}, 0
    s_cselect_b32 s{S_T0}, 1, 0x10001
    s_mov_b64 exec, 1
    v_mov_b32 v2, 64
    v_mov_b32 v3, s{S_T0}
    buffer_atomic_add v3, v2, s[{S_DBG}:{S_DBG+3}], 0 offen
    s_mov_b64 exec, -1
{l}:
    ''')

def team_mode_load(vt0, vt1):
    return f'v_mov_b32 v{vt0}, 64\nbuffer_load_dword v{vt1}, v{vt0}, s[{S_DBG}:{S_DBG+3}], 0 offen sc1'

def team_mode(a, vt0, vt1, primed=False, behind=0):
    l = a.newlabel('L_mode'); d = a.newlabel('L_moded'); p = a.newlabel('L_modep')
    a(f'''
    s_mov_b32 s{S_SPIN}, 0
    {f's_waitcnt vmcnt({behind})' if primed else ''}
    {f's_branch {p}' if primed else ''}
{l}:
    {team_mode_load(vt0, vt1)}
    s_waitcnt vmcnt(0)
{p}:
    v_readfirstlane_b32 s{S_T0}, v{vt1}
    s_and_b32 s{S_T1}, s{S_T0}, 0xffff
    s_cmp_ge_u32 s{S_T1}, {NTEAM}
    s_cbranch_scc1 {d}
    s_sleep 2
    s_add_u32 s{S_SPIN}, s{S_SPIN}, 1
    s_cmp_lt_u32 s{S_SPIN}, {SPIN_MAX}
    s_cbranch_scc1 {l}
    s_mov_b32 s{S_T0}, 0x10000
{d}:
    s_lshr_b32 s{S_T0}, s{S_T0}, 16
    s_cmp_eq_u32 s{S_T0}, 0
    s_cselect_b32 s{S_FAST}, 1, 0
    s_mov_b32 s{S_LIM}, {SPIN_MAX}
    ''')

def stamp(a, stamps, idx, vt=None):
    if not stamps: return
    a(f's_memtime s[{40+2*idx}:{41+2*idx}]')
    if idx == 2: a('s_memrealtime s[60:61]')

def stamp_flush(a, stamps, n, vt):
    if not stamps: return
    a('s_waitcnt lgkmcnt(0)')
    for k in range(n):
        a(f'v_writelane_b32 v{vt}, s{40+2*k}, {k}')
    a(f"""
    v_lshrrev_b32 v{vt+1}, 1, v0
    s_mov_b64 exec, {(1 << n) - 1}
    buffer_store_dword v{vt}, v{vt+1}, s[{S_WS}:{S_WS+3}], s{S_STMP} offen
    s_mov_b64 exec, -1
    """)

def wreg(wb, vbase):
    return ar(8*wb, 8) if wb < 32 else vr(vbase + 8*(wb-32), 8)
def wreg_half(wb, vbase, half):
    return ar(8*wb + 4*half, 4) if wb < 32 else vr(vbase + 8*(wb-32) + 4*half, 4)

def xlane4(a, op, x, t):
    a(f'''
    v_mov_b32 v{t}, v{x}
    v_permlane16_swap_b32 v{x}, v{t}
    {op} v{x}, v{x}, v{t}
    v_mov_b32 v{t}, v{x}
    v_permlane32_swap_b32 v{x}, v{t}
    {op} v{x}, v{x}, v{t}
    ''')

QP = 'quad_perm:[2,3,0,1] row_mask:0xf bank_mask:0xf'

def read_mf(a, V):
    for b in range(7):
        a(f"ds_read_b64_tr_b16 v[{V['mf']+4*b}:{V['mf']+4*b+1}], v{V['l8']} offset:{LDS_M+b*1024}")
        a(f"ds_read_b64_tr_b16 v[{V['mf']+4*b+2}:{V['mf']+4*b+3}], v{V['l8']} offset:{LDS_M+b*1024+512}")

def SM(acc, A, B, idx):
    return f'v_smfmac_f32_16x16x64_bf16 v[{acc}:{acc+3}], v[{A}:{A+3}], {B}, v{idx}'


class Q:
    def __init__(self, name, cap):
        self.name = name; self.n = 0; self.tags = {}; self.done = 0; self.cap = cap
    def issue(self, tag=None):
        self.n += 1
        if tag is not None: self.tags[tag] = self.n
    def wait(self, tag):
        k = self.tags[tag]
        if k <= self.done: return ''
        self.done = k
        return 's_waitcnt %s(%d)' % (self.name, min(self.n - k, self.cap))
    def drain(self):
        self.done = self.n
        return 's_waitcnt %s(0)' % self.name

WSRD = f's[{S_WS}:{S_WS+3}]'

def poll_m(a, V, sleep=0):
    t = V['mf']; pa = V['pa']
    l = a.newlabel('L_pm'); d = a.newlabel('L_pmd')
    a(f"""
    s_mov_b32 s{S_SPIN}, 0
{l}:
    buffer_load_dwordx4 v[{t}:{t+3}], v{pa}, {WSRD}, s{S_MOFF} offen sc1
    buffer_load_dwordx4 v[{t+4}:{t+7}], v{pa}, {WSRD}, s{S_MOFF} offen offset:768 sc1
    s_add_u32 s{S_SPIN}, s{S_SPIN}, 1
    s_waitcnt vmcnt(1)
    ds_write_b128 v{pa}, v[{t}:{t+3}]
    v_max3_u32 v{t+8}, v{t}, v{t+1}, v{t+2}
    s_waitcnt vmcnt(0)
    ds_write_b128 v{pa}, v[{t+4}:{t+7}] offset:768
    v_max3_u32 v{t+8}, v{t+8}, v{t+3}, v{t+4}
    v_max3_u32 v{t+8}, v{t+8}, v{t+5}, v{t+6}
    v_max_u32 v{t+8}, v{t+8}, v{t+7}
    v_cmp_eq_u32 vcc, -1, v{t+8}
    s_cbranch_vccz {d}
    {'s_sleep %d' % sleep if sleep else ''}
    s_cmp_lt_u32 s{S_SPIN}, s{S_LIM}
    s_cbranch_scc1 {l}
    s_mov_b32 s{S_LIM}, 1
{d}:
    s_waitcnt lgkmcnt(0)
    s_barrier
    """)

def poll_m2(a, V, gap, x):
    pa = V['pa']; sets = (V['acc']+8, V['acc']+16)
    l = a.newlabel('L_pm'); d = a.newlabel('L_pmd')
    def issue(t):
        a(f"""
        buffer_load_dwordx4 v[{t}:{t+3}], v{pa}, {WSRD}, s{S_MOFF} offen sc1
        buffer_load_dwordx4 v[{t+4}:{t+7}], v{pa}, {WSRD}, s{S_MOFF} offen offset:768 sc1
        """)
    def check(t):
        a(f"""
        s_add_u32 s{S_SPIN}, s{S_SPIN}, 1
        s_waitcnt vmcnt(3)
        ds_write_b128 v{pa}, v[{t}:{t+3}]
        v_max3_u32 v{x}, v{t}, v{t+1}, v{t+2}
        s_waitcnt vmcnt(2)
        ds_write_b128 v{pa}, v[{t+4}:{t+7}] offset:768
        v_max3_u32 v{x}, v{x}, v{t+3}, v{t+4}
        v_max3_u32 v{x}, v{x}, v{t+5}, v{t+6}
        v_max_u32 v{x}, v{x}, v{t+7}
        v_cmp_eq_u32 vcc, -1, v{x}
        """)
    a(f's_mov_b32 s{S_SPIN}, 0')
    issue(sets[0])
    while gap > 0:
        a(f's_nop {min(gap, 16) - 1}'); gap -= 16
    issue(sets[1]); check(sets[0])
    a(f's_cbranch_vccnz {l}\n{d}:\ns_waitcnt lgkmcnt(0)\ns_barrier')
    def cold():
        a.label(l)
        issue(sets[0]); check(sets[1])
        a(f's_cbranch_vccz {d}')
        issue(sets[1]); check(sets[0])
        a(f"""
        s_cbranch_vccz {d}
        s_cmp_lt_u32 s{S_SPIN}, s{S_LIM}
        s_cbranch_scc1 {l}
        s_mov_b32 s{S_LIM}, 1
        s_branch {d}
        """)
    a.cold.append(cold)

def wait_hint(a, vaddr, soff, regs, imm=0, delay=0, gap=12, inner=8, fill=None, primed=False):
    n = len(regs)
    l = a.newlabel('L_h'); d = a.newlabel('L_hd')
    ld = lambda r: f'buffer_load_dword v{r}, v{vaddr}, {WSRD}, s{soff} offen offset:{imm} sc1'
    a(f's_mov_b32 s{S_SPIN}, 0')
    fill = list(fill or [])
    per = -(-len(fill) // (n-1))
    for k in range(0 if primed else n-1):
        a(ld(regs[k]))
        for x in fill[k*per:(k+1)*per]: a(x)
        if per < gap: a(f's_nop {gap - per}')
    a.label(l)
    for k in range(n):
        a(f"""
        {ld(regs[(k+n-1) % n])}
        s_waitcnt vmcnt({n-1})
        v_cmp_eq_u32 vcc, -1, v{regs[k]}
        s_cbranch_vccz {d}
        s_nop {inner}
        """)
    a(f"""
    s_add_u32 s{S_SPIN}, s{S_SPIN}, 1
    s_cmp_lt_u32 s{S_SPIN}, s{S_LIM}
    s_cbranch_scc1 {l}
{d}:
    """)
    while delay > 0:
        a(f's_nop {min(delay, 16) - 1}'); delay -= 16

def wait_cnt(a, off_sgpr, target, vt, sleep=4, primed=False):
    l = a.newlabel('L_wc'); d = a.newlabel('L_wcd'); p = a.newlabel('L_wcp')
    a(f"""
    s_mov_b32 s{S_SPIN}, 0
    v_mov_b32 v{vt}, 0
    {f's_branch {p}' if primed else ''}
{l}:
    buffer_load_dword v{vt+1}, v{vt}, {WSRD}, s{off_sgpr} offen sc1
{p}:
    s_add_u32 s{S_SPIN}, s{S_SPIN}, 1
    s_waitcnt vmcnt(0)
    v_readfirstlane_b32 s{S_T0}, v{vt+1}
    s_cmp_ge_u32 s{S_T0}, {target}
    s_cbranch_scc1 {d}
    s_sleep {sleep}
    s_cmp_lt_u32 s{S_SPIN}, s{S_LIM}
    s_cbranch_scc1 {l}
    s_mov_b32 s{S_LIM}, 1
{d}:
    """)

def img_addr(a, dst, t, lane):
    a(f"""
    v_bfe_u32 v{dst}, v{lane}, 3, 1
    v_lshlrev_b32 v{dst}, 9, v{dst}
    v_bfe_u32 v{t}, v{lane}, 2, 1
    v_lshl_add_u32 v{dst}, v{t}, 6, v{dst}
    v_and_b32 v{t}, 1, v{lane}
    v_lshl_add_u32 v{dst}, v{t}, 5, v{dst}
    v_lshrrev_b32 v{t}, 4, v{lane}
    v_lshl_add_u32 v{dst}, v{t}, 3, v{dst}
    v_bfe_u32 v{t}, v{lane}, 1, 1
    v_lshl_add_u32 v{dst}, v{t}, 2, v{dst}
    """)

def common_addrs(a, V, LN):
    a(f"""
    v_lshlrev_b32 v{V['l8']}, 3, v{LN}
    s_mul_i32 s{S_T0}, s{S_WAVE}, {112*16}
    v_lshlrev_b32 v{V['pa']}, 4, v{LN}
    v_add_u32 v{V['pa']}, s{S_T0}, v{V['pa']}
    v_and_b32 v{LN+1}, 2, v{LN}
    v_cmp_ne_u32 vcc, 0, v{LN+1}
    v_mov_b32 v{LN+1}, 0x4444
    v_mov_b32 v{LN+2}, 0xeeee
    v_cndmask_b32 v{V['idx']}, v{LN+1}, v{LN+2}, vcc
    """)

def load_1k_run(a, dsts, vaddr, sbase, flags='', budget=None):
    for i, d in enumerate(dsts):
        if i and i % 4 == 0:
            a(f's_add_u32 s{sbase}, s{sbase}, 4096')
        a(f'buffer_load_dwordx4 {d}, v{vaddr}, {WSRD}, s{sbase} offen offset:{(i%4)*1024} {flags}')
        if budget is not None:
            budget[0] += 1
            if budget[0] >= 56:
                a('s_waitcnt vmcnt(28)'); budget[0] = 28

class Gaps:
    def __init__(self, n):
        self.ds = [[] for _ in range(n)]; self.va = [[] for _ in range(n)]; self.pre = [[] for _ in range(n)]
        self.n = n
    def put(self, kind, g, text, excl=False):
        while g < self.n - 1:
            if excl:
                if not self.ds[g] and not self.va[g]: break
            else:
                lst = self.ds[g] if kind == 'ds' else self.va[g]
                other = self.va[g] if kind == 'ds' else self.ds[g]
                if not lst and not (other and other[-1][1]): break
            g += 1
        (self.ds if kind == 'ds' else self.va)[g].append((text, excl))
        return g
    def force(self, kind, g, text):
        (self.ds if kind == 'ds' else self.va)[min(g, self.n-1)].append((text, False))

def emit_stream(a, mf, gp, lq, pre=None):
    for i, (m, tags) in enumerate(mf):
        for tg in tags:
            w = lq.wait(tg)
            if w: a(w)
        a(m)
        for lst in (gp.ds[i], gp.va[i]):
            for x, _ in lst:
                t = x(lq) if callable(x) else x
                if t: a(t)

def dsop(text, tag=None):
    def f(lq):
        lq.issue(tag); return text
    return f
def dswait(tag, then=''):
    def f(lq):
        return lq.wait(tag) + '\n' + then
    return f

SV = dict(l8=0, pa=1, idx=2, k1=3, mf=12, acc=40, w=64)
KS = [0]
def tile_of(w, u):
    if u < 5: return (u, w)
    if KS[0]:
        return {(0, 5): (5, 0), (1, 5): (5, 1), (2, 5): (5, 2), (0, 6): (5, 3), (1, 6): (6, 0), (2, 6): (6, 1), (0, 7): (6, 2), (1, 7): (6, 3)}[(w, u)]
    order = {(0, 5): (5, 0), (1, 5): (5, 1), (2, 5): (5, 2), (2, 6): (5, 3), (0, 6): (6, 0), (1, 6): (6, 1), (0, 7): (6, 2), (1, 7): (6, 3)}
    return order[(w, u)]
NUNIT = [8, 8, 7, 5]
F = dict(l16=4, px=5, pm=6, mk0=7, mk1=8, mk2=9, wz=10, xf=88, tf=200, sa=228, t=240)

def score_setup(a, stamps, cfg):
    V = SV; LN = 44
    a(f'v_mov_b32 v{LN}, v1')
    team_register(a)
    common_addrs(a, V, LN)
    img_addr(a, V['k1'], LN+1, LN)
    g, cc, par, ib, t = LN+1, LN+2, LN+3, LN+4, LN+5
    a(f"""
    v_lshlrev_b32 v{F['l16']}, 4, v{LN}
    v_lshrrev_b32 v{g}, 4, v{LN}
    v_bfe_u32 v{cc}, v{LN}, 2, 2
    v_bfe_u32 v{par}, v{LN}, 1, 1
    v_and_b32 v{ib}, 1, v{LN}
    v_and_b32 v{t}, 15, v{LN}
    v_lshlrev_b32 v{F['px']}, 4, v{t}
    v_lshrrev_b32 v{t}, 1, v{g}
    v_lshl_add_u32 v{F['px']}, v{t}, 8, v{F['px']}
    v_and_b32 v{t}, 1, v{g}
    v_lshl_add_u32 v{F['px']}, v{t}, 3, v{F['px']}
    s_and_b32 s{S_T0}, s{S_ROLE}, 1
    s_lshl_b32 s{S_T0}, s{S_T0}, 4
    s_lshr_b32 s{S_T1}, s{S_ROLE}, 2
    s_lshl_b32 s{S_T1}, s{S_T1}, 9
    s_add_u32 s{S_T0}, s{S_T0}, s{S_T1}
    s_and_b32 s{S_T1}, s{S_ROLE}, 2
    s_lshl_b32 s{S_T1}, s{S_T1}, 1
    s_add_u32 s{S_T0}, s{S_T0}, s{S_T1}
    s_add_u32 s{S_T0}, s{S_T0}, 8192
    v_and_b32 v{F['pm']}, 0xffffffef, v{V['l8']}
    v_add_u32 v{F['pm']}, s{S_T0}, v{F['pm']}
    s_lshl_b32 s{S_T0}, s{S_ROLE}, 9
    v_add_u32 v{F['px']}, s{S_T0}, v{F['px']}
    v_lshlrev_b32 v{t}, 4, v{ib}
    v_mov_b32 v{F['mk2']}, 0xffff
    v_lshlrev_b32 v{F['mk2']}, v{t}, v{F['mk2']}
    v_cmp_eq_u32 vcc, v{cc}, v{g}
    v_mov_b32 v{t}, 0
    v_cndmask_b32 v{F['mk2']}, v{t}, v{F['mk2']}, vcc
    v_cmp_eq_u32 vcc, 0, v{par}
    v_mov_b32 v{t+1}, 0xff800000
    v_cndmask_b32 v{F['mk0']}, v{t}, v{F['mk2']}, vcc
    v_cndmask_b32 v{F['mk1']}, v{F['mk2']}, v{t}, vcc
    v_cndmask_b32 v{F['wz']}, v{t+1}, v{t}, vcc
    s_mul_i32 s{S_T1}, s{S_ROLE}, {28*14336}
    s_add_u32 s{S_T1}, s{S_T1}, {L.WT}
    """)
    done = a.newlabel('L_sw')
    fz = cfg['fused']
    if fz:
        a(f"v_min_u32 v{LN+8}, 27, v{LN}\nv_lshlrev_b32 v{LN+8}, 3, v{LN+8}\ns_mul_i32 s{S_T0}, s{S_ROLE}, {14*32}\nv_add_u32 v{LN+8}, s{S_T0}, v{LN+8}")
        wait_flags(a, LN+8, 1, LN+10)
    for w in range(4):
        nx = a.newlabel('L_swn')
        if w < 3: a(f's_cmp_lg_u32 s{S_WAVE}, {w}\ns_cbranch_scc1 {nx}')
        tiles = []
        for u in range(NUNIT[w]):
            b, ga = tile_of(w, u)
            tiles.append(((4*b+ga)*14336, [wreg_half(u*7 + k//2, V['w'], k % 2) if not (u == 7 and k//2 >= 7-KS[0]) else None for k in range(14)]))
        if w == 2:
            for o in range(2 if KS[0] else 0):
                b, ga = tile_of(o, 7)
                tiles.append(((4*b+ga)*14336, [wreg_half(49 + o*KS[0] + k//2 - (7-KS[0]), V['w'], k % 2) if k//2 >= 7-KS[0] else None for k in range(14)]))
        if fz:
            load_tiles(a, tiles, F['l16'], S_T1, 1, cfg['wfl'], [0])
            wait_flags(a, LN+8, 7, LN+10)
            load_tiles(a, tiles, F['l16'], S_T1, 2, cfg['wfl'], [0])
        else:
            load_tiles(a, tiles, F['l16'], S_T1, None, cfg['wfl'], [0], cfg['scap'], inject=(NUNIT[w]*14 + (28 if w == 3 else 0) - 32, team_mode_load(V['mf'], V['mf']+1)) if cfg['dry'] else None)
        if w < 3: a(f's_branch {done}\n{nx}:')
    a(f"""
{done}:
    {team_mode_load(V['mf'], V['mf']+1) if not fz and not cfg['dry'] else ''}
    s_mov_b32 s{S_STEP}, 0
    s_mov_b32 s{S_MOFF}, {L.MB_M}
    s_mov_b32 s{S_POFF}, {L.MB_P}
    s_mov_b32 s{S_GOFF}, {L.XN}
    s_lshl_b32 s{S_STMP}, s{S_ROLE}, 2
    s_add_u32 s{S_STMP}, s{S_STMP}, s{S_WAVE}
    s_lshl_b32 s{S_STMP}, s{S_STMP}, 12
    s_add_u32 s{S_STMP}, s{S_STMP}, {L.STAMP}
    """)
    if fz:
        wait_ln(a, LN, 12)
    else:
        nf = a.newlabel('L_nx0')
        a(f's_cmp_lg_u32 s{S_WAVE}, 3\ns_cbranch_scc1 {nf}\ns_waitcnt vmcnt(30)\ns_mov_b32 s{S_T0}, s{S_GOFF}')
        load_1k_run(a, [vr(F['xf'] + 4*k, 4) for k in range(28)], F['l16'], S_T0, cfg['wfl'])
        a.label(nf)
    team_mode(a, V['mf'], V['mf']+1, primed=not fz, behind=32 if cfg['dry'] else 0)
    a(f's_mov_b64 s[{S_DRY}:{S_DRY+1}], {-1 if cfg["dry"] else 0}')

def step_advance(a, gstride, xstride=114688):
    a(f"""
    s_add_u32 s{S_STEP}, s{S_STEP}, 1
    s_add_u32 s{S_MOFF}, s{S_MOFF}, 8192
    s_add_u32 s{S_POFF}, s{S_POFF}, 16384
    s_add_u32 s{S_GOFF}, s{S_GOFF}, {gstride}
    s_add_u32 s{S_XOFF}, s{S_XOFF}, {xstride}
    s_add_u32 s{S_STMP}, s{S_STMP}, 64
    """)

def rowred(a, op, x):
    for m in ('row_ror:8', 'row_ror:4', 'row_ror:2', 'row_ror:1'):
        for r in (x, x+1):
            a(f'{op}_dpp v{r}, v{r}, v{r} {m} row_mask:0xf bank_mask:0xf')

def score_wave(a, w, pf, stamps, cfg):
    V = SV; idx = V['idx']; mf = V['mf']
    top = a.newlabel(f'L_sc{w}_top'); first = a.newlabel(f'L_sc{w}_first')
    nunit = NUNIT[w]
    accof = lambda u: V['acc'] + 4*(u % 6)
    ok = {0: (0, 9, 2), 1: (2,), 2: (0, 9, 1, 2), 3: (4,) if cfg['fin1'] else (7, 8, 4)}[w]
    ST = (lambda k: f's_memtime s[{40+2*k}:{41+2*k}]' if k in ok else '') if stamps else (lambda k: '')
    def stamp(a, stamps, k):
        a(ST(k))
    xf, tf, sa, T = F['xf'], F['tf'], F['sa'], F['t']
    FA, FV = 8, 9
    HA = 11
    HT = ([5, 6, 7, 10] if w < 3 else [T+4, T+5, T+6, T+7])[:cfg['hdepth']]
    def load_x():
        a(f's_mov_b32 s{S_T0}, s{S_GOFF}')
        load_1k_run(a, [vr(xf + 4*k, 4) for k in range(28)], F['l16'], S_T0, cfg['wfl'])
    XW = cfg['xw']
    def dma_x(a=a, rng=None, ahead=1):
        lo, hi = rng or XW[w]
        if hi <= lo: return
        a(f"""
        s_and_b32 s{S_T0}, s{S_STEP}, 1
        s_xor_b32 s{S_T0}, s{S_T0}, {ahead & 1}
        s_mul_i32 s{S_T0}, s{S_T0}, 28672
        s_add_u32 s{S_T0}, s{S_T0}, {LDS_X + lo*1024}
        s_add_u32 s{S_T1}, s{S_GOFF}, {ahead*28672 + lo*1024 - w*1792}
        """)
        for k in range(hi - lo):
            if k % 4 == 0:
                if k: a(f's_add_u32 s{S_T0}, s{S_T0}, 4096\ns_add_u32 s{S_T1}, s{S_T1}, 4096')
                a(f's_mov_b32 m0, s{S_T0}')
            a(f"buffer_load_dwordx4 v{V['pa']}, {WSRD}, s{S_T1} offen offset:{(k%4)*1024} {cfg['wfl']} lds")
    def read_x():
        a(f"""
        s_and_b32 s{S_T0}, s{S_STEP}, 1
        s_mul_i32 s{S_T0}, s{S_T0}, 28672
        v_add_u32 v{T}, s{S_T0}, v{F['l16']}
        """)
        for k in range(28): a(f'ds_read_b128 v[{xf+4*k}:{xf+4*k+3}], v{T} offset:{LDS_X + k*1024}')
    def zero_acc():
        for u in range(2 if cfg['m2'] else min(6, nunit)):
            a(f'v_mov_b64 v[{accof(u)}:{accof(u)+1}], 0\nv_mov_b64 v[{accof(u)+2}:{accof(u)+3}], 0')
        if w == 2 and KS[0]:
            for k in range(4): a(f'v_mov_b64 v[{240+2*k}:{241+2*k}], 0')
        if w == 3:
            for k in range(4): a(f'v_mov_b64 v[{sa+2*k}:{sa+2*k+1}], 0')
            a(f"v_mov_b32 v{sa+8}, v{F['wz']}\nv_mov_b32 v{sa+9}, v{F['wz']}\nv_mov_b64 v[{sa+10}:{sa+11}], 0")
    a(f"v_lshrrev_b32 v{HA}, 1, v{V['l8']}\nv_min_u32 v{HA}, {(27 if cfg['cert'] else 55)*4}, v{HA}\ns_and_b32 s{S_T0}, s{S_ROLE}, 3\ns_lshl_b32 s{S_T0}, s{S_T0}, 8\ns_add_u32 s{S_T0}, s{S_T0}, 7168\nv_add_u32 v{HA}, s{S_T0}, v{HA}")
    if cfg['h64']:
        a(f"""
        v_lshrrev_b32 v{HA}, 3, v{V['l8']}
        v_min_u32 v{HA}, 55, v{HA}
        v_and_b32 v{mf}, 3, v{HA}
        v_lshrrev_b32 v{HA}, 2, v{HA}
        v_lshlrev_b32 v{HA}, 6, v{HA}
        v_lshl_add_u32 v{HA}, v{mf}, 2, v{HA}
        v_add_u32 v{HA}, 7168, v{HA}
        """)
    if w == 3:
        if cfg['fused']: load_x()
        a(f'v_and_b32 v{T+12}, {15*8}, v0\nv_lshlrev_b32 v{T+12}, 3, v{T+12}\nv_add_u32 v{T+12}, 6144, v{T+12}')
        if stamps: a('s_mov_b32 s40, 0\ns_mov_b32 s42, 0\ns_mov_b32 s44, 0')
        a(f's_mov_b32 s{S_EOFF}, 0\ns_lshl_b32 s{S_T0}, s{S_ROLE}, 2\ns_add_u32 s{S_T0}, s{S_T0}, 12288\nv_lshlrev_b32 v{T+14}, 4, v0\nv_add_u32 v{T+14}, s{S_T0}, v{T+14}\nv_mov_b32 v{T+15}, 0')
    else:
        a(f"v_add_u32 v{FA}, {LDS_FL + 4*w}, v{F['l16']}\nv_mov_b32 v{FV}, 0")
        for k in range(5): a(f'ds_write_b32 v{FA}, v{FV} offset:{k*1024}')
        a(f'v_and_b32 v4, {31*8}, v0\nv_lshlrev_b32 v4, 3, v4\nv_add_u32 v4, {w*2048}, v4')
    if w < 3 and not cfg['xin']: dma_x(rng=[(0, 9), (9, 18), (18, 28)][w])
    if cfg['prio'][w]: a(f"s_setprio {cfg['prio'][w]}")
    zero_acc()
    if cfg.get('wgd'): a('s_memrealtime s[88:89]\ns_memrealtime s[96:97]\ns_memtime s[76:77]')
    dryl = a.newlabel('L_dry')
    if cfg['dry']:
        a(f'v_add_u32 v{FV}, 1, v{FV}' if w < 3 else f's_add_u32 s{S_EOFF}, s{S_EOFF}, 1')
        a(f's_mov_b32 s{S_SAFE}, 1\ns_waitcnt lgkmcnt(0)\ns_barrier\ns_branch {dryl}')
    else:
        a(f's_branch {first}')
    if cfg['al'] is not None:
        a.raw('    .p2align 6')
        for _ in range(cfg['al'][w]): a.raw('    s_nop 0')
    a.label(top)
    zero_acc()
    stamp(a, stamps, 0)
    if cfg['cert']:
        got = a.newlabel('L_got')
        a(f'v_add_u32 v{FV}, 1, v{FV}' if w < 3 else f's_add_u32 s{S_EOFF}, s{S_EOFF}, 1')
        a(f's_mov_b32 s{S_SAFE}, 0')
        if w == 0:
            ND = cfg['cert']; regs = HT[:ND]
            lp = a.newlabel('L_ct'); dn = a.newlabel('L_ctd')
            def rnd(r):
                a(f'buffer_load_dword v{r}, v{HA}, {WSRD}, s{S_MOFF} offen sc1\ns_mov_b32 m0, {LDS_M}')
                for k in range(7):
                    if k == 4: a(f's_mov_b32 m0, {LDS_M + 4096}')
                    a(f"buffer_load_dwordx4 v{V['pa']}, {WSRD}, s{S_MOFF if k < 4 else S_T0} offen offset:{(k%4)*1024} sc1 lds")
            a(f's_add_u32 s{S_T0}, s{S_MOFF}, 4096\ns_mov_b32 s{S_SPIN}, 0')
            a(ST(9))
            for k in range(ND-1): rnd(regs[k])
            a.label(lp)
            for k in range(ND):
                rnd(regs[(k+ND-1) % ND])
                a(f"""
                s_add_u32 s{S_SPIN}, s{S_SPIN}, 1
                s_waitcnt vmcnt({8*ND-1})
                v_cmp_eq_u32 vcc, -1, v{regs[k]}
                s_cbranch_vccz {dn}
                """)
            a(f's_cmp_lt_u32 s{S_SPIN}, s{S_LIM}\ns_cbranch_scc1 {lp}\n{dn}:\ns_waitcnt vmcnt({8*(ND-1)}) lgkmcnt(0)')
        else:
            a('s_waitcnt vmcnt(0) lgkmcnt(0)')
        a(f's_barrier\n{got}:')
        def coldf():
            a.label(first)
            a(f'v_add_u32 v{FV}, 1, v{FV}' if w < 3 else f's_add_u32 s{S_EOFF}, s{S_EOFF}, 1')
            a(f's_mov_b32 s{S_SAFE}, 1')
            poll_m(a, V)
            a(f's_branch {got}')
        a.cold.append(coldf)
    else:
        if cfg['msamp'] == 2: a(f'v_mov_b32 v{mf if w < 3 else T+13}, 0')
        if cfg['mdma'] == 2: a(f's_mov_b32 m0, {LDS_M}\ns_add_u32 s{S_T0}, s{S_MOFF}, 4096')
        elif cfg['split']: a(f's_mov_b32 m0, {LDS_M + w*1024}\ns_sub_u32 s{S_T0}, s{S_MOFF}, {w*768}\ns_add_u32 s{S_T1}, s{S_T0}, 4096')
        elif cfg['mdma']: a(f's_mov_b32 m0, {LDS_M + w*2048}\ns_add_u32 s{S_T0}, s{S_MOFF}, {w*2048 - w*1792}')
        if not cfg['cutrig'] or w == 0: wait_hint(a, HA, S_MOFF, HT, delay=cfg['mdelay'], inner=cfg['hinner'])
        if cfg['cutrig'] and cfg['mdma'] != 2: a('s_barrier')
    if cfg['cert']: pass
    elif cfg['mdma']:
        got = a.newlabel('L_got')
        a(ST(9))
        if cfg['split']:
            a(f"buffer_load_dwordx4 v{V['pa']}, {WSRD}, s{S_T0} offen sc1 lds")
            a(f'v_add_u32 v{FV}, 1, v{FV}' if w < 3 else f's_add_u32 s{S_EOFF}, s{S_EOFF}, 1')
            a(f's_mov_b32 s{S_SAFE}, 0\ns_mov_b32 s{S_SPIN}, 1\ns_mov_b32 m0, {LDS_M + 4096 + w*1024}')
            if w < 3:
                a(f"s_nop {cfg['split']}\nbuffer_load_dwordx4 v{V['pa']}, {WSRD}, s{S_T1} offen sc1 lds")
            a(f's_waitcnt vmcnt({1 if w < 3 else 0}) lgkmcnt(0)\ns_barrier\n{got}:')
        else:
            nk = 2 if w < 3 else 1
            SA_ = (4 if w < 3 else T+12)
            def rnd(r):
                if cfg['msamp'] == 2:
                    a(f"s_mov_b64 exec, {0x55555555 if w < 3 else 0x5555}\nbuffer_load_dword v{r}, v{SA_}, {WSRD}, s{S_MOFF} offen sc1\ns_mov_b64 exec, -1")
                elif cfg['msamp']: a(f"buffer_load_dword v{r}, v{SA_}, {WSRD}, s{S_MOFF} offen sc1")
                for k in range(nk): a(f"buffer_load_dwordx4 v{V['pa']}, {WSRD}, s{S_T0} offen offset:{k*1024} sc1 lds")
            r0, r1 = (mf, HT[1]) if w < 3 else (T+13, T+15)
            two = cfg['m2d']
            rnd(r0)
            a(f'v_add_u32 v{FV}, 1, v{FV}' if w < 3 else f's_add_u32 s{S_EOFF}, s{S_EOFF}, 1')
            a(f's_mov_b32 s{S_SAFE}, 0\ns_mov_b32 s{S_SPIN}, 1')
            if two:
                gap = two
                while gap > 0:
                    a(f's_nop {min(gap, 16) - 1}'); gap -= 16
                rnd(r1)
            ex = (nk+1) if two else 0
            bad = a.newlabel('L_mbad'); okl = a.newlabel('L_mok')
            a(f"""
            {f's_waitcnt vmcnt({nk + ex})' if cfg['msamp'] else ''}
            {f'v_cmp_eq_u32 vcc, -1, v{r0}' if cfg['msamp'] else ''}
            {f's_cbranch_vccnz {bad}' if cfg['msamp'] else ''}
            s_waitcnt vmcnt({ex}) lgkmcnt(0)
{okl}:
            s_barrier
{got}:
            """)
            def coldb():
                lp = a.newlabel('L_mlp')
                a.label(bad)
                if two:
                    a(f's_mov_b32 s{S_SPIN}, 2\ns_waitcnt vmcnt(0) lgkmcnt(0)\nv_cmp_eq_u32 vcc, -1, v{r1}\ns_cbranch_vccz {okl}')
                a.label(lp)
                rnd(r0)
                a(f"""
                s_add_u32 s{S_SPIN}, s{S_SPIN}, 1
                s_waitcnt vmcnt(0) lgkmcnt(0)
                v_cmp_eq_u32 vcc, -1, v{r0}
                s_cbranch_vccz {okl}
                s_cmp_lt_u32 s{S_SPIN}, s{S_LIM}
                s_cbranch_scc1 {lp}
                s_mov_b32 s{S_LIM}, 1
                s_branch {okl}
                """)
            a.cold.append(coldb)
        def coldf():
            a.label(first)
            a(f'v_add_u32 v{FV}, 1, v{FV}' if w < 3 else f's_add_u32 s{S_EOFF}, s{S_EOFF}, 1')
            a(f's_mov_b32 s{S_SAFE}, 1')
            poll_m(a, V)
            a(f's_branch {got}')
        a.cold.append(coldf)
    else:
        a.label(first)
        a(f'v_add_u32 v{FV}, 1, v{FV}' if w < 3 else f's_add_u32 s{S_EOFF}, s{S_EOFF}, 1')
        a(ST(9))
        if cfg['m2']: poll_m2(a, V, cfg['m2'], mf)
        else: poll_m(a, V)
    stamp(a, stamps, 1)
    if stamps and w < 3: a(f's_mov_b32 s{40+2*7}, s{S_SPIN}')
    lq = Q('lgkmcnt', 15)
    mrd = [dsop(f"ds_read_b64_tr_b16 v[{mf+4*b+2*hf}:{mf+4*b+2*hf+1}], v{V['l8']} offset:{LDS_M+b*1024+hf*512}", ('mf', b))
           for b in range(7) for hf in range(2)]
    if cfg['split'] and cfg['sg'] < 0:
        for x in mrd[:cfg['spre']]: a(x(lq))
        a(f's_waitcnt vmcnt(0)\ns_barrier\n{dryl}:;nf')
    else:
        for x in mrd[:cfg['mpre']]: a(x(lq))
    order = [(u, b) for b in range(7) for u in range(2)] + [(u, b) for u in range(2, nunit) for b in range(7)]
    ks = KS[0]; XA = 240; PT = 248
    if ks and w < 2: order = order[:-ks]
    if ks and w == 2:
        order = order[:35] + [(('x', o), b) for b in range(7-ks, 7) for o in range(2)] + order[35:]
    ms = [(SM(accof(u), mf+4*b, wreg(u*7 + b, V['w']), idx), [('mf', b)] if u == 0 else []) if not isinstance(u, tuple) else
          (SM(XA + 4*u[1], mf+4*b, wreg(49 + u[1]*ks + b - (7-ks), V['w']), idx), []) for u, b in order]
    last = {u: i for i, (u, b) in enumerate(order)}
    firstof = {}
    for i_, (u, b) in enumerate(order): firstof.setdefault(u, i_)
    def smfma(b):
        t4 = tf + 4*b
        return [(f"v_mfma_f32_16x16x32_bf16 v[{sa+8}:{sa+11}], v[{t4}:{t4+3}], v[{mf+4*b}:{mf+4*b+3}], " + f'v[{sa+8}:{sa+11}]', [('tf', b)]),
                (SM(sa, t4, vr(xf + 8*b, 8), idx), []),
                (SM(sa+4, t4, vr(xf + 56 + 8*b, 8), idx), [])]
    def tread(b, hf):
        return dsop(f"ds_read_b64_tr_b16 v[{tf+4*b+2*hf}:{tf+4*b+2*hf+1}], v{V['l8']} offset:{LDS_T+b*1024+hf*512}", ('tf', b))
    phases = [(0, 1, 2), (3, 4)]
    starts = []
    if w == 3:
        for ph in phases:
            starts.append(len(ms))
            for b in ph: ms += smfma(b)
    n = len(ms)
    gp = Gaps(n)
    npre = cfg['spre'] if cfg['split'] and cfg['sg'] < 0 else cfg['mpre']
    for k, x in enumerate(mrd[npre:]):
        if cfg['split'] and cfg['sg'] >= 0 and k + npre >= 8:
            if k + npre == 8: gp.force('ds', cfg['sg'], 's_waitcnt vmcnt(0)\ns_barrier')
            gp.force('ds', cfg['sg'] + (k + npre - 8)*2//3, x)
        else: gp.put('ds', k, x)
    flag_after = {2, 4} | (({6} if w == 0 else {5}) if ks else ({5} if w < 2 else {6}))
    def post(u):
        A = accof(u); b, ga = tile_of(w, u)
        va = [f'v_add_f32 v{A}, v{A}, v{A+2}', f'v_add_f32 v{A+1}, v{A+1}, v{A+3}', f'v_cvt_pk_bf16_f32 v{A}, v{A}, v{A+1}']
        ds = [dsop(f"ds_write_b32 v{V['k1']}, v{A} offset:{LDS_T+b*1024+ga*128}", ('k', u))]
        if w < 3 and u in flag_after:
            ds.append(dsop(f'ds_write_b32 v{FA}, v{FV} offset:{sorted(flag_after).index(u)*1024}'))
        return va, ds
    g = 0
    done_at = {}
    for u in range(nunit - (0 if w == 3 else 1)):
        va, ds = post(u)
        g = max(g, last[u] + 3 - (len(va) - 3))
        if ks and w < 2 and u == 6:
            gp.force('va', g, va[0]); gp.force('va', g, va[1]); gp.force('va', g+1, va[2])
            for x in ds: gp.force('ds', g+2, x)
            done_at[u] = g+3
            continue
        for x in va: g = gp.put('va', g, x) + 1
        for x in ds: g = gp.put('ds', g, x, excl=True) + 1
        done_at[u] = g
        if ks and w == 2 and u == 4:
            for o in range(2):
                A = XA + 4*o
                g = max(g, last[('x', o)] + 3)
                g = gp.put('va', g, f'v_add_f32 v{A}, v{A}, v{A+2}') + 1
                g = gp.put('va', g, f'v_add_f32 v{A+1}, v{A+1}, v{A+3}') + 1
                gp.force('ds', g, dsop(f"ds_write_b64 v{V['l8']}, v[{A}:{A+1}] offset:{LDS_PT + o*512}"))
            gp.force('ds', g, dsop(f'ds_write_b32 v{FA}, v{FV} offset:3072')); g += 1
    ptr = [f"ds_read_b32 v{PT+2}, v{FA} offset:{3072 + 8 - 4*w}", f"ds_read_b64 v[{PT}:{PT+1}], v{V['l8']} offset:{LDS_PT + w*512}"]
    if ks and w < 2:
        gp.force('ds', n - cfg['ptl'], dsop(ptr[0])); gp.force('ds', n - cfg['ptl'], dsop(ptr[1], 'pt'))
    def zero_in_gaps(u, g):
        A = accof(u)
        for k in range(2):
            gg = g
            while gg < firstof[u] - 2 and (gp.va[gg] or (gp.ds[gg] and gp.ds[gg][-1][1])): gg += 1
            if gg >= firstof[u] - 2: gg = max(g, firstof[u] - 4 + k)
            gp.force('va', gg, f'v_mov_b64 v[{A+2*k}:{A+2*k+1}], 0')
    if cfg['m2']:
        gp.force('ds', cfg['m2w'], 's_waitcnt vmcnt(0)')
        for u in range(2, min(6, nunit)): zero_in_gaps(u, cfg['m2w'])
    for u in range(6, nunit): zero_in_gaps(u, done_at[u-6] + 1)
    if w == 3:
        for pi, ph in enumerate(phases):
            flagrd = f"ds_read_b128 v[{T}:{T+3}], v{F['l16']} offset:{LDS_FL + pi*1024}"
            lead = cfg['lead'][pi]
            g = max(starts[pi] - lead, done_at[max(ph)] if max(ph) < 5 else 0)
            g = min(g, starts[pi]-1)
            if cfg['pnop'][pi]: gp.force('ds', g, f"s_nop {cfg['pnop'][pi]-1}")
            gp.force('ds', g, dsop(flagrd, ('fl', pi)))
            ops = [tread(b, hf) for b in ph for hf in range(2)]
            for k, x in enumerate(ops):
                gp.force('ds', min(g + (k+1)//2, starts[pi]-1), x)
            FM = T+11
            def chk(lq, pi=pi):
                return lq.wait(('fl', pi)) + (f'\nv_min3_u32 v{FM}, v{T}, v{T+1}, v{T+2}' if pi == 0 else
                                              f'\nv_min3_u32 v{T}, v{T}, v{T+1}, v{T+2}\nv_min_u32 v{FM}, v{FM}, v{T}')
            gp.force('va', starts[pi], chk)
    if w == 3 and cfg['early']:
        eb = a.newlabel('L_eb'); ec = a.newlabel('L_ec')
        g = gp.put('va', done_at[0], f'v_cmp_u_f32 vcc, v{accof(0)+1}, v{accof(0)+2}')
        gp.force('va', g+1, f's_cbranch_vccnz {eb};nf\n{ec}:;nf')
        def colde():
            lp = a.newlabel('L_el'); dn = a.newlabel('L_ed')
            a(f'{eb}:\ns_cmp_lg_u32 s{S_SAFE}, 0\ns_cbranch_scc1 {ec}')
            if cfg.get('wgd'): a('s_add_u32 s86, s86, 1')
            a(f's_mov_b32 s{S_SPIN}, 0\n{lp}:\ns_mov_b32 s{S_T0}, s{S_MOFF}')
            load_1k_run(a, [vr(tf + 4*k, 4) for k in range(7)], F['l16'], S_T0, 'sc1')
            a(f's_add_u32 s{S_SPIN}, s{S_SPIN}, 1\ns_waitcnt vmcnt(0)\nv_max_u32 v{T}, v{tf}, v{tf+1}')
            for k in range(1, 14): a(f'v_max3_u32 v{T}, v{T}, v{tf+2*k}, v{tf+2*k+1}')
            a(f"""
            v_cmp_eq_u32 vcc, -1, v{T}
            s_cbranch_vccz {dn}
            s_cmp_lt_u32 s{S_SPIN}, s{S_LIM}
            s_cbranch_scc1 {lp}
            s_mov_b32 s{S_LIM}, 1
{dn}:
            """)
            for k in range(7): a(f"ds_write_b128 v{F['l16']}, v[{tf+4*k}:{tf+4*k+3}] offset:{LDS_M + k*1024}")
            a(f"""
            s_or_b32 s{S_T0}, s{S_EOFF}, 0x40000000
            v_mov_b32 v{T}, {LDS_VD}
            v_mov_b32 v{T+1}, s{S_T0}
            ds_write_b32 v{T}, v{T+1}
            """)
            zero_acc()
            a(f's_add_u32 s{S_EOFF}, s{S_EOFF}, 1\ns_mov_b32 s{S_SAFE}, 1\ns_waitcnt lgkmcnt(0)\ns_barrier\ns_barrier\ns_branch {got}')
        a.cold.append(colde)
    if cfg['xin'] and XW[w][1] > XW[w][0]:
        sub = Asm(); dma_x(sub)
        grp = []; cur = []
        for _, x in sub.items:
            cur.append(x.text)
            if x.text.startswith('buffer'): grp.append('\n'.join(cur)); cur = []
        g = cfg['xin']
        for x in grp: g = gp.put('ds', g, x) + cfg['xstep']
    if w == 0 and cfg['phint'] < 0:
        gp.force('ds', n - 1 + cfg['phint'], f"""s_mov_b64 exec, 15
            buffer_store_dword v{FV}, v4, {WSRD}, s{S_POFF} offen {pf}
            s_mov_b64 exec, -1""")
    emit_stream(a, ms, gp, lq)
    hint = f"""s_mov_b64 exec, 15
        buffer_store_dword v{T+15}, v{T+14}, {WSRD}, s{S_POFF} offen {pf}
        s_mov_b64 exec, -1"""
    if w < 3:
        va, ds = post(nunit-1)
        A_ = accof(nunit-1)
        va = [f'v_pk_add_f32 v[{A_}:{A_+1}], v[{A_}:{A_+1}], v[{A_+2}:{A_+3}]', va[-1]]
        if ks and w < 2:
            pb = a.newlabel('L_pb'); pc = a.newlabel('L_pc')
            a(lq.wait('pt') + f'\nv_cmp_ne_u32 vcc, v{PT+2}, v{FV}\ns_cbranch_vccnz {pb};nf\n{pc}:;nf')
            def coldpt():
                a(f'{pb}:\n{ptr[0]}\n{ptr[1]}\ns_waitcnt lgkmcnt(0)\nv_cmp_ne_u32 vcc, v{PT+2}, v{FV}\ns_cbranch_vccnz {pb}\ns_branch {pc}')
            a.cold.append(coldpt)
            va.insert(1, f'v_pk_add_f32 v[{A_}:{A_+1}], v[{A_}:{A_+1}], v[{PT}:{PT+1}]')
        for x in va: a(x)
        for x in ds: a(x(lq))
        if cfg['b3s']: a(f'ds_write_b32 v{FA}, v{FV} offset:3072')
        else:
            if w == 2: dma_x(rng=cfg['xa'], ahead=2)
            a(lq.drain())
        a('s_barrier')
        if w == 2: dma_x(rng=cfg['xb'], ahead=2)
        stamp(a, stamps, 2)
        if cfg['mdma']:
            again = a.newlabel('L_again')
            a(f"""
            {'s_waitcnt vmcnt(0)' if cfg['xin'] else ''}
            s_barrier
            v_mov_b32 v{mf}, {LDS_VD}
            ds_read_b32 v{mf}, v{mf}
            s_waitcnt lgkmcnt(0)
            v_and_b32 v{mf+1}, 0x3fffffff, v{mf}
            v_cmp_eq_u32 vcc, v{mf+1}, v{FV}
            s_cbranch_vccnz {again}
            """)
            def colda():
                a.label(again)
                zero_acc()
                a(f"""
                v_cmp_eq_u32 vcc, v{mf}, v{FV}
                s_cbranch_vccnz {first}
                v_add_u32 v{FV}, 1, v{FV}
                s_branch {got}
                """)
            a.cold.append(colda)
        elif cfg['quiet']: a(f"s_sleep {cfg['quiet']}")
    else:
        s = T
        mx = T+6; z = T+8; EA = tf; B1 = tf+4; B2 = tf+8; D1 = tf+12; D2 = tf+16; rz = T+10
        a(f"""
        v_mov_b64 v[{B1+2}:{B1+3}], 0
        v_mov_b64 v[{B2}:{B2+1}], 0
        v_mov_b32 v{B2+3}, 0
        v_mov_b32 v{EA+3}, 0
        """)
        for _ in range(cfg['b5nop']): a('s_nop 3')
        q = Q('lgkmcnt', 15)
        a(f"ds_read_b128 v[{T}:{T+3}], v{F['l16']} offset:{LDS_FL + 2048}"); q.issue('fl')
        for hf in range(2): a(tread(5, hf)(q))
        stamp(a, stamps, 2)
        a('s_barrier')
        stamp(a, stamps, 3)
        PX = lambda k: a('s_memtime s[52:53]') if stamps and cfg['px'] == k else None
        PX(0)
        if cfg['b3s']:
            for _ in range(cfg['b3s'] - 1): a('s_nop 0')
            a(f"ds_read_b64 v[{T+4}:{T+5}], v{F['l16']} offset:{LDS_FL + 3072}"); q.issue('fl3')
        for hf in range(2): a(tread(6, hf)(q))
        PX(1)
        if cfg['phint'] == 0: a(hint)
        PX(2)
        fl5 = [f'v_min3_u32 v{T}, v{T}, v{T+1}, v{T+2}', f'v_min_u32 v{FM}, v{FM}, v{T}', f'v_subrev_u32 v{FM}, s{S_EOFF}, v{FM}']
        if cfg['b3s']: fl5[2:2] = ['', f'v_min3_u32 v{FM}, v{FM}, v{T+4}, v{T+5}']
        for b in (5, 6):
            for m, tags in smfma(b):
                for tg in tags: a(q.wait(tg))
                if b == 6 and tags: PX(4)
                a(m)
                if fl5: a(fl5.pop(0))
            if b == 5: PX(3)
        a(ST(7))
        if cfg['phint'] == 1: a(hint)
        e = sa
        redo = a.newlabel('L_smr'); slowmx = a.newlabel('L_sms'); go = a.newlabel('L_smg')
        a(f"""
        s_mov_b32 s{S_T1}, {120 << 23}
        s_mov_b32 s{S_SPIN}, 0
        v_add_f32_dpp v{s+4}, v{sa+10}, v{sa+8} {QP}
        v_add_f32_dpp v{s+5}, v{sa+11}, v{sa+9} {QP}
        v_pk_add_f32 v[{s}:{s+1}], v[{sa}:{sa+1}], v[{sa+2}:{sa+3}]
        v_exp_f32 v{e+8}, v{s+4}
        v_exp_f32 v{e+9}, v{s+5}
        v_pk_add_f32 v[{s+2}:{s+3}], v[{sa+4}:{sa+5}], v[{sa+6}:{sa+7}]
        v_exp_f32 v{e}, v{s}
        v_exp_f32 v{e+1}, v{s+1}
        v_exp_f32 v{e+2}, v{s+2}
        v_exp_f32 v{e+3}, v{s+3}
{redo}:;nf
        v_pk_add_f32 v[{z}:{z+1}], v[{e}:{e+1}], v[{e+8}:{e+9}]
        v_cvt_pk_bf16_f32 v{EA+2}, v{e+8}, v{e+9}
        v_pk_add_f32 v[{z}:{z+1}], v[{z}:{z+1}], v[{e+2}:{e+3}]
        """)
        if cfg['phint'] == 2: a(hint)
        fill = [f'v_cvt_pk_bf16_f32 v{EA+k}, v{e+2*k}, v{e+2*k+1}' for k in range(2)]
        for m in ('row_ror:8', 'row_ror:4', 'row_ror:2', 'row_ror:1'):
            if fill: a(fill.pop(0))
            for r in (z, z+1):
                a(f'v_add_f32_dpp v{r}, v{r}, v{r} {m} row_mask:0xf bank_mask:0xf')
        LO, HI = (127-60) << 23, (127+60) << 23
        a(ST(8))
        a(f"""
        v_rcp_f32 v{mx}, v{z}
        v_rcp_f32 v{mx+1}, v{z+1}
        v_subrev_u32 v{z}, {LO}, v{z}
        v_cvt_pk_bf16_f32 v{rz}, v{mx}, v{mx+1}
        v_and_b32 v{B1}, v{rz}, v{F['mk0']}
        v_and_b32 v{B1+1}, v{rz}, v{F['mk1']}
        v_and_b32 v{B2+2}, v{rz}, v{F['mk2']}
        v_subrev_u32 v{z+1}, {LO}, v{z+1}
        v_mfma_f32_16x16x32_bf16 v[{D1}:{D1+3}], v[{EA}:{EA+3}], v[{B1}:{B1+3}], 0
        v_mfma_f32_16x16x32_bf16 v[{D2}:{D2+3}], v[{EA}:{EA+3}], v[{B2}:{B2+3}], 0
        v_max3_u32 v{z}, v{z}, v{z+1}, v{FM}
        v_cmp_lt_u32 vcc, s{S_T1}, v{z}
        s_or_b64 vcc, vcc, s[{S_DRY}:{S_DRY+1}]
        s_cselect_b64 exec, 0, -1
        v_cvt_pk_bf16_f32 v{D1}, v{D1}, v{D1+1}
        v_cvt_pk_bf16_f32 v{D1+1}, v{D1+2}, v{D1+3}
        buffer_store_dwordx2 v[{D1}:{D1+1}], v{F['px']}, {WSRD}, s{S_POFF} offen {pf}
        v_cvt_pk_bf16_f32 v{D2}, v{D2}, v{D2+1}
        buffer_store_dword v{D2}, v{F['pm']}, {WSRD}, s{S_POFF} offen {pf}
        s_mov_b64 exec, -1
        s_cbranch_scc1 {slowmx}
        """)
        if cfg['b4s']: a(f"s_sleep {cfg['b4s']}")
        if cfg['mdma']: a('s_barrier')
        def coldmx():
            a(f'{slowmx}:' + ('\ns_add_u32 s40, s40, 1' if stamps else ''))
            loc = a.newlabel('L_loc'); sf = a.newlabel('L_safe')
            vd = a.newlabel('L_vd')
            a(f's_cmp_lg_u32 s{S_DRY}, 0\ns_mov_b64 s[{S_DRY}:{S_DRY+1}], 0\ns_cbranch_scc1 {vd}')
            a(f's_cmp_eq_u32 s{S_SPIN}, 0\ns_cbranch_scc1 {loc}')
            if cfg['mdma']:
                a(f"""
                s_cmp_lg_u32 s{S_SAFE}, 0
                s_cbranch_scc1 {sf}
                {'s_add_u32 s86, s86, 1' if cfg.get('wgd') else ''}
{vd}:
                v_mov_b32 v{T}, {LDS_VD}
                v_mov_b32 v{T+1}, s{S_EOFF}
                ds_write_b32 v{T}, v{T+1}
                s_waitcnt lgkmcnt(0)
                s_barrier
                """)
                zero_acc()
                a(f's_branch {first}')
            a(f'{sf}:\ns_mov_b32 s{S_T1}, -1\ns_branch {redo}\n{loc}:\ns_mov_b32 s{S_SPIN}, 1\nv_mov_b32 v{FM}, 0')
            if cfg.get('wgd'): a('s_add_u32 s85, s85, 1')
            for k in range(4): a(f'v_mov_b64 v[{sa+2*k}:{sa+2*k+1}], 0')
            a(f"v_mov_b32 v{sa+8}, v{F['wz']}\nv_mov_b32 v{sa+9}, v{F['wz']}\nv_mov_b64 v[{sa+10}:{sa+11}], 0")
            q2 = Q('lgkmcnt', 15)
            rl = a.newlabel('L_rl'); rd = a.newlabel('L_rld')
            a(f's_mov_b32 s{S_T0}, 0\n{rl}:')
            a(f"ds_read_b128 v[{T}:{T+3}], v{F['l16']} offset:{LDS_FL + 3072}")
            for b in range(7):
                for hf in range(2): a(tread(b, hf)(q2))
            a('s_waitcnt lgkmcnt(0)')
            if cfg['b3s']:
                a(f"""
                v_min3_u32 v{T}, v{T}, v{T+1}, v{T+2}
                s_add_u32 s{S_T0}, s{S_T0}, 1
                v_cmp_gt_u32 vcc, s{S_EOFF}, v{T}
                s_cbranch_vccz {rd}
                s_cmp_lt_u32 s{S_T0}, 1000
                s_cbranch_scc1 {rl}
{rd}:
                """)
            for b in range(7):
                for m, tags in smfma(b): a(m)
            a(f"""
            v_mov_b64 v[{B1+2}:{B1+3}], 0
            v_mov_b64 v[{B2}:{B2+1}], 0
            v_mov_b32 v{B2+3}, 0
            v_mov_b32 v{EA+3}, 0
            v_add_f32_dpp v{s+4}, v{sa+10}, v{sa+8} {QP}
            v_add_f32_dpp v{s+5}, v{sa+11}, v{sa+9} {QP}
            v_pk_add_f32 v[{s}:{s+1}], v[{sa}:{sa+1}], v[{sa+2}:{sa+3}]
            v_pk_add_f32 v[{s+2}:{s+3}], v[{sa+4}:{sa+5}], v[{sa+6}:{sa+7}]
            v_max3_f32 v{mx}, v{s}, v{s+4}, v{s+2}
            v_max3_f32 v{mx+1}, v{s+1}, v{s+5}, v{s+3}
            """)
            rowred(a, 'v_max_f32', mx)
            for k in range(3): a(f'v_pk_add_f32 v[{s+2*k}:{s+2*k+1}], v[{s+2*k}:{s+2*k+1}], v[{mx}:{mx+1}] neg_lo:[0,1] neg_hi:[0,1]')
            for k in range(6): a(f'v_exp_f32 v{e+(k if k < 4 else k+4)}, v{s+k}')
            a(f's_nop 1\ns_branch {redo}')
        a.cold.append(coldmx)
        stamp(a, stamps, 4)
    if stamps: a('s_memtime s[50:51]\ns_memrealtime s[60:61]')
    stamp_flush(a, stamps, 11, mf)
    step_advance(a, 28672, 458752)
    a(f's_cmp_ge_u32 s{S_STEP}, 63\ns_cbranch_scc1 L_exit')
    if cfg.get('mark'):
        mk = a.newlabel('L_mk')
        a(f"s_cmp_lg_u32 s{S_STEP}, {cfg['mark']}\ns_cbranch_scc1 {mk}\ns_memrealtime s[88:89]\n{mk}:")
    if w == 3:
        if cfg['rxs']: a(f"s_sleep {cfg['rxs']}")
        read_x()
    elif not cfg['nox'] and not cfg['xin']:
        if cfg['xs']: a(f"s_sleep {cfg['xs']}")
        dma_x()
    if cfg['ssleep'][w]:
        a(f"s_sleep {cfg['ssleep'][w]}")
    a(f's_branch {top}')
    a.flush_cold()

S_YD = 33; S_SAFE = 36; S_CV = 37; S_CU = 38; S_MD = 39
CV = dict(ha=160, one=161, zero=162, cu=163, hw=164, hm=165, nw=172, nr=173, pmr=72, fw=73, fv=74, rw2=75, l8=0, pa=1, idx=2, l16=3, pr=4, mw=6, lw=7, rw=8, rr=5, mf=12, acc=40, itm=72, vx=88, uf=96, tw=128, w=176)

def comb_setup(a, stamps, cfg):
    V = CV; LN = 112
    a(f'v_mov_b32 v{LN}, v1')
    team_register(a)
    common_addrs(a, V, LN)
    img_addr(a, V['mw'], LN+1, LN)
    a(f"""
    s_sub_u32 s{S_ROLE}, s{S_ROLE}, 16
    s_lshl_b32 s{S_ROLE}, s{S_ROLE}, 1
    s_and_b32 s{S_T0}, s{S_WAVE}, 1
    s_add_u32 s{S_T1}, s{S_ROLE}, s{S_T0}
    s_lshr_b32 s{S_T0}, s{S_T1}, 2
    s_lshl_b32 s{S_T0}, s{S_T0}, 10
    s_and_b32 s{S_T1}, s{S_T1}, 3
    s_lshl_b32 s{S_T1}, s{S_T1}, 7
    s_add_u32 s{S_T0}, s{S_T0}, s{S_T1}
    s_add_u32 s{S_T0}, s{S_T0}, 8192
    v_add_u32 v{V['mw']}, s{S_T0}, v{V['mw']}
    v_lshlrev_b32 v{V['l16']}, 4, v{LN}
    s_mul_i32 s{S_T0}, s{S_WAVE}, 28672
    s_add_u32 s{S_T0}, s{S_T0}, {LDS_BW}
    v_add_u32 v{V['lw']}, s{S_T0}, v{V['l16']}
    s_lshl_b32 s{S_T0}, s{S_WAVE}, 10
    v_add_u32 v{V['rw']}, s{S_T0}, v{V['l16']}
    v_add_u32 v{V['pr']}, s{S_T0}, v{V['rw']}
    s_and_b32 s{S_T0}, s{S_WAVE}, 1
    s_lshl_b32 s{S_T0}, s{S_T0}, 3
    v_add_u32 v{V['rr']}, s{S_T0}, v{V['l16']}
    s_mul_i32 s{S_T1}, s{S_WAVE}, {4*28}
    s_add_u32 s{S_T1}, s{S_T1}, s{S_ROLE}
    s_add_u32 s{S_T1}, s{S_T1}, 448
    s_mul_i32 s{S_T1}, s{S_T1}, 14336
    s_add_u32 s{S_T1}, s{S_T1}, {L.WT}
    """)
    toff = lambda u: ((u >> 1)*28 + (u & 1))*14336
    fz = cfg['fused']
    tiles = [(toff(u), [wreg_half(u*7 + k//2, V['w'], k % 2) for k in range(14)]) for u in range(6)]
    ltiles = [(toff(u), [vr(12 + (u-6)*116 + 4*k, 4) if u == 6 else vr(120 + 4*k, 4) for k in range(14)]) for u in (6, 7)]
    if fz:
        a(f"""
        v_bfe_u32 v{LN+4}, v{LN}, 2, 2
        v_mul_u32_u24 v{LN+4}, {14*32}, v{LN+4}
        v_and_b32 v{LN+5}, 3, v{LN}
        v_lshl_add_u32 v{LN+4}, v{LN+5}, 3, v{LN+4}
        s_mul_i32 s{S_T0}, s{S_WAVE}, 56
        s_lshr_b32 s{S_SPIN}, s{S_ROLE}, 2
        s_add_u32 s{S_T0}, s{S_T0}, s{S_SPIN}
        s_add_u32 s{S_T0}, s{S_T0}, 7
        s_lshl_b32 s{S_T0}, s{S_T0}, 5
        v_add_u32 v{LN+4}, s{S_T0}, v{LN+4}
        """)
        wait_flags(a, LN+4, 1, 100)
        load_tiles(a, ltiles + tiles, V['l16'], S_T1, 1, cfg['wfl'], [0])
        wait_flags(a, LN+4, 7, 100)
        load_tiles(a, ltiles + tiles, V['l16'], S_T1, 2, cfg['wfl'], [0])
    else:
        load_tiles(a, ltiles + tiles, V['l16'], S_T1, None, cfg['wfl'], [0], cfg['ccap'], inject=(60, team_mode_load(104, 105)) if cfg['dry'] else None)
    if not fz and not cfg['dry']:
        a(team_mode_load(104, 105))
        a(f"v_mov_b32 v106, 0\ns_mov_b32 s{S_CU}, {L.CNT_U}\ns_mov_b32 s{S_CV}, {L.CNT_I}")
        a(f'buffer_load_dword v107, v106, {WSRD}, s{S_CU} offen sc1\nbuffer_load_dword v109, v106, {WSRD}, s{S_CV} offen sc1')
    a(f"s_waitcnt vmcnt({48 if cfg['dry'] else 28})")
    for u in (6, 7):
        for k in range(14):
            a(f"ds_write_b128 v{V['lw']}, {ltiles[u-6][1][k]} offset:{(u-6)*14336+k*1024}")
    a('s_waitcnt lgkmcnt(0)')
    if fz: wait_ln(a, LN, 100)
    a(f"""
    s_mov_b32 s{S_STEP}, 0
    s_mov_b32 s{S_MOFF}, {L.MB_M}
    s_mov_b32 s{S_POFF}, {L.MB_P}
    s_lshl_b32 s{S_GOFF}, s{S_ROLE}, 14
    s_lshl_b32 s{S_T0}, s{S_WAVE}, 12
    s_add_u32 s{S_GOFF}, s{S_GOFF}, s{S_T0}
    s_add_u32 s{S_GOFF}, s{S_GOFF}, {L.U}
    s_lshl_b32 s{S_XOFF}, s{S_ROLE}, 12
    s_add_u32 s{S_XOFF}, s{S_XOFF}, {L.VM}
    s_lshr_b32 s{S_STMP}, s{S_ROLE}, 1
    s_add_u32 s{S_STMP}, s{S_STMP}, 16
    s_lshl_b32 s{S_STMP}, s{S_STMP}, 2
    s_add_u32 s{S_STMP}, s{S_STMP}, s{S_WAVE}
    s_lshl_b32 s{S_STMP}, s{S_STMP}, 12
    s_add_u32 s{S_STMP}, s{S_STMP}, {L.STAMP}
    """)
    a(f"""
    v_mov_b32 v{V['one']}, 1
    v_mov_b32 v{V['zero']}, 0
    v_mov_b32 v{V['cu']}, 0
    v_and_b32 v{V['ha']}, {120 if cfg['cutrig'] else 24}, v{V['l8']}
    v_lshrrev_b32 v{V['ha']}, 1, v{V['ha']}
    s_lshl_b32 s{S_T0}, s{S_WAVE}, 4
    s_mul_i32 s{S_T0}, s{S_T0}, {0 if cfg['cutrig'] else 1}
    s_and_b32 s{S_T1}, s{S_ROLE}, 6
    s_lshl_b32 s{S_T1}, s{S_T1}, 6
    s_add_u32 s{S_T0}, s{S_T0}, s{S_T1}
    s_add_u32 s{S_T0}, s{S_T0}, 12288
    v_add_u32 v{V['ha']}, s{S_T0}, v{V['ha']}
    s_lshl_b32 s{S_T0}, s{S_ROLE}, {0 if cfg['cert'] else 1}
    s_add_u32 s{S_T0}, s{S_T0}, s{S_WAVE}
    s_lshl_b32 s{S_T0}, s{S_T0}, 2
    s_add_u32 s{S_T0}, s{S_T0}, {8192 + 7168}
    v_lshlrev_b32 v{V['hw']}, 5, v{V['l8']}
    v_add_u32 v{V['hw']}, s{S_T0}, v{V['hw']}
    s_add_u32 s{S_YD}, s{S_XOFF}, 0x8000000
    v_lshrrev_b32 v{V['hm']}, 1, v{V['l8']}
    v_min_u32 v{V['hm']}, {(27 if cfg['cert'] else 55)*4}, v{V['hm']}
    v_add_u32 v{V['hm']}, 7168, v{V['hm']}
    s_mov_b32 s56, 0
    """)
    if cfg['h64']:
        a(f"""
        v_lshrrev_b32 v{V['hm']}, 3, v{V['l8']}
        v_min_u32 v{V['hm']}, 55, v{V['hm']}
        v_and_b32 v100, 3, v{V['hm']}
        v_lshrrev_b32 v{V['hm']}, 2, v{V['hm']}
        v_lshlrev_b32 v{V['hm']}, 6, v{V['hm']}
        v_lshl_add_u32 v{V['hm']}, v100, 2, v{V['hm']}
        v_add_u32 v{V['hm']}, 7168, v{V['hm']}
        s_lshl_b32 s{S_T0}, s{S_ROLE}, 5
        s_lshl_b32 s{S_T1}, s{S_WAVE}, 2
        s_add_u32 s{S_T0}, s{S_T0}, s{S_T1}
        s_add_u32 s{S_T0}, s{S_T0}, {8192 + 7168}
        v_mov_b32 v{V['hw']}, s{S_T0}
        """)
    if cfg['mlin']:
        x, y = 100, 101
        a(f"""
        v_lshrrev_b32 v{y}, 3, v{V['l8']}
        v_bfe_u32 v{x}, v{y}, 1, 2
        v_mul_u32_u24 v{V['rr']}, 192, v{x}
        v_bfe_u32 v{x}, v{y}, 4, 2
        v_lshl_add_u32 v{V['rr']}, v{x}, 5, v{V['rr']}
        v_and_b32 v{x}, 1, v{y}
        v_lshl_add_u32 v{V['rr']}, v{x}, 4, v{V['rr']}
        v_bfe_u32 v{x}, v{y}, 3, 1
        v_lshl_add_u32 v{V['rr']}, v{x}, 3, v{V['rr']}
        v_lshrrev_b32 v{x}, 4, v{y}
        v_mul_u32_u24 v{V['rw2']}, 192, v{x}
        v_and_b32 v{x}, 15, v{y}
        v_lshl_add_u32 v{V['rw2']}, v{x}, 3, v{V['rw2']}
        s_mul_i32 s{S_T0}, s{S_WAVE}, 1536
        v_add_u32 v{V['rw2']}, s{S_T0}, v{V['rw2']}
        s_and_b32 s{S_T0}, s{S_WAVE}, 1
        s_mul_i32 s{S_T1}, s{S_T0}, 768
        v_add_u32 v{V['rr']}, s{S_T1}, v{V['rr']}
        s_add_u32 s{S_T1}, s{S_ROLE}, s{S_T0}
        s_lshr_b32 s{S_T0}, s{S_T1}, 2
        s_lshl_b32 s{S_T0}, s{S_T0}, 10
        s_and_b32 s{S_T1}, s{S_T1}, 3
        s_lshl_b32 s{S_T1}, s{S_T1}, 7
        s_add_u32 s{S_T0}, s{S_T0}, s{S_T1}
        s_add_u32 s{S_T0}, s{S_T0}, 8192
        v_and_b32 v{x}, 31, v{y}
        v_lshlrev_b32 v{V['mw']}, 2, v{x}
        v_lshrrev_b32 v{x}, 5, v{y}
        v_lshl_add_u32 v{V['mw']}, v{x}, 9, v{V['mw']}
        v_add_u32 v{V['mw']}, s{S_T0}, v{V['mw']}
        """)
    a(f"""
    v_lshrrev_b32 v{V['nw']}, 2, v{V['rw']}
    v_lshrrev_b32 v{V['nr']}, 1, v{V['l8']}
    s_lshl_b32 s{S_MD}, s{S_WAVE}, 11
    s_min_u32 s{S_MD}, s{S_MD}, 5120
    s_mov_b32 s{S_CU}, {L.CNT_U}
    """)
    for k in range(8): a(f"v_mov_b32 v{V['vx']+k}, 0")
    a(f"v_lshrrev_b32 v{V['pmr']}, 1, v{V['rw']}")
    a(f"s_lshl_b32 s{S_T0}, s{S_WAVE}, 2\ns_add_u32 s{S_T0}, s{S_T0}, {LDS_CF}\nv_add_u32 v{V['fw']}, s{S_T0}, v{V['l16']}\nv_mov_b32 v{V['fv']}, 0\nds_write_b32 v{V['fw']}, v{V['fv']}")
    team_mode(a, 104, 105, primed=not fz, behind=48 if cfg['dry'] else 0)
    if not cfg['dry']: comb_gate(a, cfg, primed=not fz)

def comb_gate(a, cfg, primed):
    if cfg['flags']:
        wait_cnt(a, S_CU, 28, 106, primed=primed)
        a(f's_mov_b32 s{S_CV}, {L.CNT_I}')
        wait_cnt(a, S_CV, 98, 108, primed=primed)
    if cfg['nou']:
        for k in range(32): a(f"v_mov_b32 v{CV['uf']+k}, 0")

def comb_wave(a, pf, stamps, cfg):
    V = CV; idx = V['idx']; mf = V['mf']; tw = V['tw']; uf = V['uf']; pa = V['pa']
    top = a.newlabel('L_cb_top'); nh0 = a.newlabel('L_nh')
    HT = [10, 11, 166, 167][:cfg['hdepth']]
    def store_vx(base, r):
        return [f"buffer_store_dwordx4 v[{r}:{r+3}], v{V['rw']}, {WSRD}, s{base} offen {cfg['xflags']}",
                f"s_add_u32 s{S_T1}, s{base}, 4096\nbuffer_store_dwordx4 v[{r+4}:{r+7}], v{V['rw']}, {WSRD}, s{S_T1} offen {cfg['xflags']}"]
    lq = Q('lgkmcnt', 15)
    def lread(lam, hf):
        return dsop(f"ds_read_b128 v[{tw+8*(lam%4)+4*hf}:{tw+8*(lam%4)+4*hf+3}], v{V['lw']} offset:{lam*2048+hf*1024}", ('lw', lam))
    def housekeeping_acc(a=a):
        for u in range(8):
            A = V['acc'] + 4*u
            a(f'v_mov_b64 v[{A}:{A+1}], 0\nv_mov_b64 v[{A+2}:{A+3}], 0')
    def housekeeping(a=a, acc=True):
        if acc: housekeeping_acc(a)
        for lam in range(4):
            for hf in range(2): a(lread(lam, hf)(lq))
    uload = lambda k: f"buffer_load_dwordx4 v[{uf+4*k}:{uf+4*k+3}], v{V['l16']}, {WSRD}, s{S_GOFF if k < 4 else S_EOFF} offen offset:{(k%4)*1024} {cfg['xflags']}"
    uorder = [] if cfg['nou'] else [4, 5, 6, 7, 0, 1, 2, 3]
    ue = uorder[:cfg['uearly']]; ul = uorder[cfg['uearly']:]
    housekeeping()
    t = mf
    slow = a.newlabel('L_cms'); back = a.newlabel('L_cmb'); redo = a.newlabel('L_cmr')
    pre = f"""s_add_u32 s{S_EOFF}, s{S_GOFF}, 16384
        s_lshl_b32 s{S_CU}, s{S_STEP}, 7
        s_add_u32 s{S_CU}, s{S_CU}, {L.CNT_U + 128}
        s_add_u32 s{S_T0}, s{S_MOFF}, s{S_MD}
        s_mov_b32 m0, s{S_MD}"""
    dry2 = a.newlabel('L_cdry')
    a(f's_mov_b64 s[{S_DRY}:{S_DRY+1}], 0')
    if cfg['dry']:
        a(f"""
        s_mov_b64 s[{S_DRY}:{S_DRY+1}], -1
        s_mov_b32 s{S_CV}, s{S_GOFF}
        s_mov_b32 s{S_GOFF}, {L.XN}
        s_mov_b32 s{S_CU}, {L.CNT_U}
        s_waitcnt lgkmcnt(0)
        s_branch {back}
{dry2}:
        s_mov_b64 s[{S_DRY}:{S_DRY+1}], 0
        s_mov_b32 s{S_GOFF}, s{S_CV}
        s_mov_b32 s{S_CV}, {L.CNT_I}
        v_mov_b32 v174, 0
        buffer_load_dword v175, v174, {WSRD}, s{S_CU} offen sc1
        buffer_load_dword v167, v174, {WSRD}, s{S_CV} offen sc1
        """)
        housekeeping()
        if cfg['flags']:
            wait_cnt(a, S_CU, 28, 174, primed=True)
            wait_cnt(a, S_CV, 98, 166, primed=True)
        else: a('s_waitcnt vmcnt(0)')
    a(pre)
    if cfg.get('wgd'): a('s_memrealtime s[96:97]')
    a(f's_branch {top}')
    if cfg['al'] is not None:
        a.raw('    .p2align 6')
        for _ in range(cfg['al'][4]): a.raw('    s_nop 0')
    a(f'{nh0}:\ns_barrier')
    a.label(top)
    stamp(a, stamps, 0)
    if cfg['cdma']:
        a(f"""
        buffer_load_dwordx4 v{V['l16']}, {WSRD}, s{S_T0} offen sc1 lds
        buffer_load_dwordx4 v{V['l16']}, {WSRD}, s{S_T0} offen offset:1024 sc1 lds
        s_mov_b32 s{S_SAFE}, 0
        """)
        if ue: a('s_barrier')
        for k in ue: a(uload(k))
        a(f's_waitcnt vmcnt({len(ue)}) lgkmcnt(0)\ns_barrier\n{back}:')
        def coldr():
            a(f'{redo}:\ns_barrier\ns_mov_b32 s{S_SAFE}, 1\ns_add_u32 s{S_YD}, s{S_XOFF}, 0x8000000')
            if stamps: a(f's_add_u32 s{40+2*8}, s{40+2*8}, 1')
            if cfg.get('wgd'): a('s_add_u32 s84, s84, 1')
            housekeeping()
            poll_m(a, V)
            a(f's_branch {back}')
        a.cold.append(coldr)
    else:
        a(f"""
        buffer_load_dwordx4 v[{t}:{t+3}], v{pa}, {WSRD}, s{S_MOFF} offen sc1
        buffer_load_dwordx4 v[{t+4}:{t+7}], v{pa}, {WSRD}, s{S_MOFF} offen offset:768 sc1
        """)
        if ue: a('s_barrier')
        for k in ue: a(uload(k))
        a(f"""
        s_waitcnt vmcnt({len(ue)+1})
        ds_write_b128 v{pa}, v[{t}:{t+3}]
        v_max3_u32 v{t+8}, v{t}, v{t+1}, v{t+2}
        s_waitcnt vmcnt({len(ue)})
        ds_write_b128 v{pa}, v[{t+4}:{t+7}] offset:768
        v_max3_u32 v{t+8}, v{t+8}, v{t+3}, v{t+4}
        v_max3_u32 v{t+8}, v{t+8}, v{t+5}, v{t+6}
        v_max_u32 v{t+8}, v{t+8}, v{t+7}
        v_cmp_eq_u32 vcc, -1, v{t+8}
        s_cbranch_vccnz {slow}
        s_waitcnt lgkmcnt(0)
        s_barrier
{back}:
        """)
        def coldm():
            a.label(slow)
            if stamps: a(f's_add_u32 s{40+2*8}, s{40+2*8}, 1')
            poll_m(a, V)
            a(f's_branch {back}')
        a.cold.append(coldm)
    lq.drain()
    stamp(a, stamps, 1)
    mrd = [dsop(f"ds_read_b64_tr_b16 v[{mf+4*b+2*hf}:{mf+4*b+2*hf+1}], v{V['l8']} offset:{LDS_M+b*1024+hf*512}", ('mf', b))
           for b in range(7) for hf in range(2)]
    for x in mrd[:cfg['mpre']]: a(x(lq))
    ms = []; last = {}
    rorder = [(u, b) for b in range(7) for u in range(2)] + [(u, b) for u in range(2, 6) for b in range(7)]
    rb = 0
    for p in range(56):
        if p % 4 == 3:
            lam = p // 4; u = 6 + lam // 7; b = lam % 7
            ms.append((SM(V['acc']+4*u, mf+4*b, vr(tw+8*(lam % 4), 8), idx), [('mf', b), ('lw', lam)]))
        else:
            u, b = rorder[rb]; rb += 1
            ms.append((SM(V['acc']+4*u, mf+4*b, wreg(u*7+b, V['w']), idx), [('mf', b)]))
        last[u] = p
    gp = Gaps(56)
    for k, x in enumerate(mrd[cfg['mpre']:]): gp.put('ds', k, x)
    for lam in range(4, 14):
        g = 4*(lam-4) + 3
        g = gp.put('ds', g, lread(lam, 0)) + 1
        gp.put('ds', g, lread(lam, 1))
    g = 0
    for k in ul: g = gp.put('va', g, uload(k)) + cfg['ustep']
    if cfg['flags']:
        g = gp.put('va', g, f"buffer_load_dword v{V['cu']}, v{V['zero']}, {WSRD}, s{S_CU} offen sc1") + 1
    for x in store_vx(S_YD, V['vx']): g = gp.put('va', g, x) + cfg['ustep']
    assert g - cfg['ustep'] < min(last.values()) + 3
    for k in range(len(HT)-1 if cfg['psl'] is None else 0):
        gp.put('ds', 55 - cfg['hpre'] + 4*k, f"buffer_load_dword v{HT[k]}, v{V['ha']}, {WSRD}, s{S_POFF} offen sc1")
    def post(u):
        A = V['acc'] + 4*u; hl = u >> 1; ctl = u & 1
        return ([f'v_pk_add_f32 v[{A}:{A+1}], v[{A}:{A+1}], v[{A+2}:{A+3}]'] if cfg['cpk'] else [f'v_add_f32 v{A}, v{A}, v{A+2}', f'v_add_f32 v{A+1}, v{A+1}, v{A+3}']) + [
                f"v_cvt_pk_bf16_f32 v{V['vx']+4*ctl+hl}, v{A}, v{A+1}"]
    tail = []; gprev = 0
    for u in sorted(last, key=lambda u: last[u]):
        g = max(last[u] + 3, gprev)
        if g + 4 >= 56: tail += post(u); continue
        for x in post(u): g = gp.put('va', g, x) + 1
        gprev = g
        if u == 0: done0 = g
    if cfg['cdma']:
        A0 = V['acc']; N = 168
        g = gp.put('va', done0, f'v_add_f32 v9, v{A0}, v{A0+1}') + 1
        g = gp.put('ds', g, dsop(f"ds_write_b32 v{V['nw']}, v9 offset:{LDS_NAN}", 'nw')) + 4
        gp.force('ds', g, dswait('nw', 's_barrier'))
        g = gp.put('ds', g+1, dsop(f"ds_read2st64_b32 v[{N}:{N+1}], v{V['nr']} offset0:{LDS_NAN//256} offset1:{LDS_NAN//256+1}")) + 1
        g = gp.put('ds', g, dsop(f"ds_read2st64_b32 v[{N+2}:{N+3}], v{V['nr']} offset0:{LDS_NAN//256+2} offset1:{LDS_NAN//256+3}", 'nr')) + 4
        g = gp.put('va', g, dswait('nr', f'v_add_f32 v{N}, v{N}, v{N+2}')) + 1
        g = gp.put('va', g, f'v_add_f32 v{N+1}, v{N+1}, v{N+3}') + 1
        g = gp.put('va', g, f'v_cmp_u_f32 vcc, v{N}, v{N+1}')
        if cfg['dry']: gp.force('va', g+2, f's_or_b64 vcc, vcc, s[{S_DRY}:{S_DRY+1}]')
        assert g < 54
    emit_stream(a, ms, gp, lq)
    if cfg['cdma']:
        nb = a.newlabel('L_cnb'); nx = a.newlabel('L_cnx')
        a(f's_cbranch_vccnz {nb};nf\n{nx}:;nf')
        a.cold.append(lambda: a(f'{nb}:\ns_nop 7\n' + (f's_cmp_lg_u32 s{S_DRY}, 0\ns_cbranch_scc1 {dry2}\n' if cfg['dry'] else '') + f's_cmp_eq_u32 s{S_SAFE}, 0\ns_cbranch_scc1 {redo}\ns_branch {nx}'))
    for x in tail: a(x)
    lastl = a.newlabel('L_cbl')
    a(f's_cmp_ge_u32 s{S_STEP}, 63\ns_cbranch_scc1 {lastl}')
    def coldl():
        a.label(lastl)
        for x in store_vx(S_XOFF, V['vx']): a(x)
        a('s_branch L_exit')
    a.cold.append(coldl)
    stamp(a, stamps, 2)
    A = 76
    a(f's_add_u32 s{S_T0}, s{S_POFF}, 8192\ns_mov_b32 s{S_YD}, s{S_XOFF}')
    if stamps and cfg['sdrain']: a('s_waitcnt vmcnt(0)')
    stamp(a, stamps, 3)
    if cfg['psl'] is None:
        jn = a.newlabel('L_jn')
        a(f's_cmp_lg_u32 s{S_WAVE}, 0\ns_cbranch_scc1 {jn}')
        wait_hint(a, V['ha'], S_POFF, HT, delay=cfg['pdelay'], inner=cfg['hinner'], primed=True)
        a(f'{jn}:\ns_barrier')
    else:
        housekeeping(a, False)
        stamp_flush(a, stamps, 11, mf+24)
        if cfg['pw'] is not None:
            tot = cfg['pw'] - (16*cfg['fl'] if stamps else 0)
            if cfg['pal'] is not None:
                a.raw('    .p2align 5')
                if stamps: a('s_memtime s[52:53]\ns_nop 0\ns_nop 0\ns_nop 0\ns_nop 0\ns_nop 0\ns_nop 0')
            nn = 5 if cfg['pal'] is None else 2 + cfg['pal']
            for k in range(nn): a(f's_nop {max(1, (tot + k) // nn) - 1}')
        else:
            if cfg['psl'] - (cfg['fl'] if stamps else 0) > 0: a(f"s_sleep {cfg['psl'] - (cfg['fl'] if stamps else 0)}")
            if cfg['pdelay']: a(f"s_nop {cfg['pdelay']-1}")
        if cfg['pbar']: a('s_barrier')
    stamp(a, stamps and cfg['pal'] is None, 6)
    l = a.newlabel('L_pp'); d = a.newlabel('L_ppd'); retry = a.newlabel('L_ppr'); t = 9
    R = A
    B3 = [vr(uf, 8), vr(uf+8, 8), vr(V['itm'], 8)], [vr(uf+16, 8), vr(uf+24, 8), vr(V['itm']+8, 8)]
    mh = f"""s_mov_b64 exec, {1 if cfg['h64'] else 15}
        buffer_store_dword v{V['zero']}, v{V['hw']}, {WSRD}, s{S_MOFF} offen {pf}
        s_mov_b64 exec, -1"""
    def issue(p, a=a):
        a(f"""
        buffer_load_dwordx4 v[{p}:{p+3}], v{V['pr']}, {WSRD}, s{S_POFF} offen sc1
        buffer_load_dwordx4 v[{p+4}:{p+7}], v{V['pr']}, {WSRD}, s{S_POFF} offen offset:1024 sc1
        buffer_load_dwordx2 v[{p+8}:{p+9}], v{V['pmr']}, {WSRD}, s{S_T0} offen sc1
        """)
    def zero(a=a):
        for k in range(4): a(f'v_mov_b64 v[{A+2*k}:{A+2*k+1}], 0')
    def attempt(p, behind, hint_here):
        ex = behind
        a(f's_add_u32 s{S_SPIN}, s{S_SPIN}, 1')
        for k in range(3):
            a(f's_waitcnt vmcnt({2-k+ex})')
            S32 = lambda acc, B: f'v_smfmac_f32_16x16x32_bf16 v[{acc}:{acc+3}], v[{p+8}:{p+9}], {B}, v{idx}'
            a(SM(A, p+4*k, B3[0][k], idx) if k < 2 else S32(A, vr(V['vx'], 4)))
            a(f'v_max_u32 v{t}, v{p}, v{p+2}' if k == 0 else f'v_max3_u32 v{t}, v{t}, v{p+4*k}, v{p+4*k+(2 if k < 2 else 1)}')
            a(SM(A+4, p+4*k, B3[1][k], idx) if k < 2 else S32(A+4, vr(V['vx']+4, 4)))
            if hint_here and k == cfg['mhk']:
                if cfg['mhint'] == 3:
                    a(f"""v_cmp_eq_u32 vcc, -1, v{t}
                    s_cmp_eq_u64 vcc, 0
                    s_cselect_b64 exec, 15, 0
                    buffer_store_dword v{V['zero']}, v{V['hw']}, {WSRD}, s{S_MOFF} offen {pf}
                    s_mov_b64 exec, -1""")
                else: a(mh)
                ex += 1
        a(f'v_cmp_eq_u32 vcc, -1, v{t}')
    a(f's_mov_b32 s{S_SPIN}, 0')
    sub = Asm(); issue(mf, sub); ld3 = [x.text for _, x in sub.items]
    sub = Asm(); zero(sub); sub(f"v_add_u32 v{V['fv']}, 1, v{V['fv']}"); housekeeping_acc(sub); fl = [x.text for _, x in sub.items]
    used = 0
    for k in range(3):
        a(ld3[k])
        if k < 2 and cfg['pst']:
            n_ = min(cfg['pst'], len(fl))
            for x in fl[:n_]: a(x)
            fl = fl[n_:]
            if n_ < cfg['pst']: a(f"s_nop {cfg['pst'] - n_ - 1}")
            used += cfg['pst']
    for x in fl: a(x)
    used += len(fl)
    if cfg['p2']:
        gap = cfg['p2'] + 5 - used
        while gap > 0:
            a(f's_nop {min(gap, 16) - 1}'); gap -= 16
        issue(mf+12)
    if cfg['mhint'] == 0:
        for _ in range(cfg['mhnop']): a('s_nop 3')
        a(mh)
    attempt(mf, (3 if cfg['p2'] else 0) + (cfg['mhint'] == 0), cfg['mhint'] >= 2)
    if not cfg['lateb']: a(f's_cbranch_vccnz {retry};nf')
    a(f'{d}:;nf')
    def coldp():
        a(f'{retry}:\ns_nop 7')
        if cfg['p2']:
            a.label(l)
            issue(mf)
            zero()
            attempt(mf+12, 3, cfg['mhint'] == 3)
            a(f's_cbranch_vccz {d}')
            issue(mf+12)
            zero()
            attempt(mf, 3, cfg['mhint'] == 3)
        else:
            a.label(l)
            issue(mf)
            zero()
            attempt(mf, 0, cfg['mhint'] == 3)
        a(f"""
        s_cbranch_vccz {d}
        s_cmp_lt_u32 s{S_SPIN}, s{S_LIM}
        s_cbranch_scc1 {l}
        s_mov_b32 s{S_LIM}, 1
        s_mov_b64 vcc, 0
        s_branch {d}
        """)
    a.cold.append(coldp)
    stamp(a, stamps and cfg['pal'] is None, 4)
    if cfg['lateb']:
        a(f"""
        s_cmp_eq_u64 vcc, 0
        s_cselect_b64 exec, 15, 0
        buffer_store_dword v{V['zero']}, v{V['hw']}, {WSRD}, s{S_MOFF} offen {pf}
        s_mov_b64 exec, -1
        """)
    elif cfg['mhint'] == 1 and not cfg['cert']: a(mh)
    if stamps and cfg['pal'] is None: a(f's_mov_b32 s{40+2*7}, s{S_SPIN}')
    if cfg['flags']: a(f"v_readfirstlane_b32 s{S_CV}, v{V['cu']}")
    hiw = a.newlabel('L_cbh'); rag = a.newlabel('L_rag'); rag2 = a.newlabel('L_rag'); nh = nh0; ny = a.newlabel('L_cny')
    def chores(adv=True):
        if cfg['flags']:
            slow2 = a.newlabel('L_us'); back2 = a.newlabel('L_ub')
            a(f's_cmp_lt_u32 s{S_CV}, 28\ns_cbranch_scc1 {slow2}\n{back2}:')
            def coldu():
                a.label(slow2)
                wait_cnt(a, S_CU, 28, 174)
                a(f's_branch {back2}')
            a.cold.append(coldu)
        if adv: step_advance(a, 458752)
        a(pre)
        if cfg.get('wgd'): a(f's_add_u32 s83, s83, s{S_SPIN}')
    def hi_tail():
        w2 = a.newlabel('L_cw2')
        ld = lambda r: f"buffer_load_dword v{r}, v{V['hm']}, {WSRD}, s{S_MOFF} offen sc1"
        a.label(hiw)
        step_advance(a, 458752)
        a(f"""
        s_cmp_eq_u32 s{S_WAVE}, 2
        s_waitcnt lgkmcnt(0)
        s_barrier
        s_cbranch_scc1 {w2}
        {ld(HT[0])}
        """)
        stamp(a, stamps, 5)
        chores(False)
        a(f"s_nop 4\n{ld(HT[1])}\ns_nop 12\n{ld(HT[2])}\ns_nop 12")
        wait_hint(a, V['hm'], S_MOFF, HT, delay=cfg['cdelay'], inner=cfg['hinner'], primed=True)
        a(f's_branch {nh}\n{w2}:')
        if cfg['cq']: a(f"s_sleep {cfg['cq']}")
        stamp(a, stamps, 5)
        chores(False)
        a(f's_branch {nh}')
    a.cold.append(hi_tail)
    a(f"""
    v_pk_add_f32 v[{A}:{A+1}], v[{A}:{A+1}], v[{A+2}:{A+3}]
    ds_write_b64 v{V['rw2']}, v[{A}:{A+1}] offset:{LDS_RED}
    v_pk_add_f32 v[{A+4}:{A+5}], v[{A+4}:{A+5}], v[{A+6}:{A+7}]
    ds_write_b64 v{V['rw2']}, v[{A+4}:{A+5}] offset:{LDS_RED+768}
    {f's_cbranch_vccnz {retry}' if cfg['lateb'] else ''}
    s_cmp_ge_u32 s{S_WAVE}, 2
    s_cbranch_scc1 {hiw}
    s_waitcnt lgkmcnt(0)
    s_barrier
    ds_read_b64 v[{R}:{R+1}], v{V['rr']} offset:{LDS_RED}
    ds_read_b64 v[{R+2}:{R+3}], v{V['rr']} offset:{LDS_RED+1536}
    ds_read_b64 v[{R+4}:{R+5}], v{V['rr']} offset:{LDS_RED+3072}
    ds_read_b64 v[{R+6}:{R+7}], v{V['rr']} offset:{LDS_RED+4608}
    s_waitcnt lgkmcnt(2)
    v_pk_add_f32 v[{R}:{R+1}], v[{R}:{R+1}], v[{R+2}:{R+3}]
    s_waitcnt lgkmcnt(0)
    v_pk_add_f32 v[{R+4}:{R+5}], v[{R+4}:{R+5}], v[{R+6}:{R+7}]
    v_pk_add_f32 v[{R}:{R+1}], v[{R}:{R+1}], v[{R+4}:{R+5}]
    v_cvt_pk_bf16_f32 v9, v{R}, v{R+1}
    buffer_store_dword v9, v{V['mw']}, {WSRD}, s{S_MOFF} offen {pf}
    """)
    if cfg['cert']: a(mh)
    stamp(a, stamps, 5)
    a(f"""
    s_cmp_lt_u32 s{S_STEP}, 62
    s_cbranch_scc1 {ny}
    s_add_u32 s{S_T0}, s{S_MOFF}, {L.MB_Y - L.MB_M}
    buffer_store_dword v9, v{V['mw']}, {WSRD}, s{S_T0} offen sc1
{ny}:
    """)
    chores()
    a(f's_branch {nh}')
    while a.cold: a.flush_cold()

def helper_cu(a, cfg):
    V = dict(l8=0, pa=1, idx=2, mf=12); LN = 112
    NP = cfg['npf']; D = cfg['pfd']; PER = cfg['pfper']
    a(f'v_mov_b32 v{LN}, v1')
    team_register(a)
    common_addrs(a, V, LN)
    a(f"""
    v_lshlrev_b32 v4, 7, v{LN}
    v_mov_b32 v3, v4
    v_mov_b32 v5, 0
    v_mov_b32 v6, 14
    s_sub_u32 s{S_ROLE}, s{S_ROLE}, 30
    s_lshl_b32 s{S_EOFF}, s{S_ROLE}, 2
    s_add_u32 s{S_EOFF}, s{S_EOFF}, s{S_WAVE}
    s_mov_b32 s{S_STEP}, 0
    s_mov_b32 s{S_MOFF}, {L.MB_M + 8192}
    s_mov_b32 s{S_CV}, {L.DUMMY + 0x200000}
    s_mul_i32 s{S_GOFF}, s{S_EOFF}, 7168
    s_add_u32 s{S_GOFF}, s{S_GOFF}, {L.XN}
    s_mov_b32 s{S_POFF}, 28672
    s_cmp_lt_u32 s{S_EOFF}, 4
    s_cbranch_scc1 H_t
    s_sub_u32 s{S_GOFF}, s{S_EOFF}, 4
    s_mul_i32 s{S_GOFF}, s{S_GOFF}, 6144
    s_add_u32 s{S_GOFF}, s{S_GOFF}, {L.MB_P}
    s_mov_b32 s{S_POFF}, 16384
    s_cmp_lt_u32 s{S_EOFF}, 6
    s_cbranch_scc1 H_t
    s_mov_b32 s{S_GOFF}, {L.MB_M + 8192}
    s_mov_b32 s{S_POFF}, 8192
    s_cmp_lt_u32 s{S_EOFF}, {7 if cfg['tlb'] else 8}
    s_cbranch_scc1 H_t
    s_mov_b32 s{S_GOFF}, {L.U + cfg['tlb']*458752}
    s_mov_b32 s{S_POFF}, 458752
    v_mul_u32_u24 v3, 7168, v{LN}
H_t:
    """)
    def mtouch():
        a(f'buffer_load_dword v7, v3, {WSRD}, s{S_GOFF} offen sc1\ns_add_u32 s{S_GOFF}, s{S_GOFF}, s{S_POFF}')
    if cfg['fused']: wait_ln(a, LN, 100)
    team_mode(a, V['mf'], V['mf']+1)
    a(f's_mov_b32 s{S_LIM}, {SPIN_MAX*4}')
    a(f"""
    s_getpc_b64 s[70:71]
H_pc:
    s_lshl_b32 s{S_T0}, s{S_EOFF}, 12
    v_lshrrev_b32 v10, 1, v4
    s_add_u32 s70, s70, s{S_T0}
    s_addc_u32 s71, s71, 0
    s_add_u32 s70, s70, L_nothelp-H_pc
    s_addc_u32 s71, s71, 0
    s_mov_b32 s72, s{S_GOFF}
    s_mov_b32 s{S_SPIN}, 0
    s_mov_b32 s73, {L.MB_P}
H_warm:
    s_mov_b32 s{S_GOFF}, s72
    global_load_dword v8, v10, s[70:71] sc1
    """)
    for _ in range(D+1): mtouch()
    a(f"""
    buffer_load_dword v9, v5, {WSRD}, s73 offen sc1
    s_add_u32 s{S_SPIN}, s{S_SPIN}, 1
    s_waitcnt vmcnt(0)
    v_cmp_eq_u32 vcc, -1, v9
    s_cbranch_vccz H_warmed
    s_sleep 8
    s_cmp_lt_u32 s{S_SPIN}, s{S_LIM}
    s_cbranch_scc1 H_warm
H_warmed:
    """)
    mul = {2: (128, 8), 3: (86, 8)}[PER]
    for k in range(NP):
        a(f"""
        s_add_u32 s{S_T0}, s{S_EOFF}, {8*k}
        s_min_u32 s{S_T0}, s{S_T0}, {14*PER-1}
        s_mul_i32 s{S_T1}, s{S_T0}, {mul[0]}
        s_lshr_b32 s{S_T1}, s{S_T1}, {mul[1]}
        s_mul_i32 s{S_T1}, s{S_T1}, {4-PER}
        s_add_u32 s{S_T0}, s{S_T0}, s{S_T1}
        s_lshl_b32 s{60+k}, s{S_T0}, 13
        s_add_u32 s{60+k}, s{60+k}, {L.U}
        """)
    def utouch():
        for k in range(NP):
            a(f'buffer_load_dword v{32+k}, v4, {WSRD}, s{60+k} offen sc1\ns_add_u32 s{60+k}, s{60+k}, 458752')
    a(f's_mov_b32 s{S_CU}, {L.CNT_U}')
    for _ in range(D if NP else 0):
        if cfg['flags']: wait_cnt(a, S_CU, 28, 30)
        utouch()
        a(f's_add_u32 s{S_CU}, s{S_CU}, 128')
    t = V['mf']; pa = V['pa']
    sk = a.newlabel('H_sk'); sk2 = a.newlabel('H_sk'); ok = a.newlabel('H_ok')
    a(f"""
H_top:
    s_mov_b32 s{S_SPIN}, 0
H_poll:
    buffer_load_dwordx4 v[{t}:{t+3}], v{pa}, {WSRD}, s{S_MOFF} offen sc1
    buffer_load_dwordx4 v[{t+4}:{t+7}], v{pa}, {WSRD}, s{S_MOFF} offen offset:768 sc1
    buffer_load_dword v30, v5, {WSRD}, s{S_CU} offen sc1
    s_add_u32 s{S_SPIN}, s{S_SPIN}, 1
    s_waitcnt vmcnt(0)
    v_max3_u32 v{t+8}, v{t}, v{t+1}, v{t+2}
    v_max3_u32 v{t+8}, v{t+8}, v{t+3}, v{t+4}
    v_max3_u32 v{t+8}, v{t+8}, v{t+5}, v{t+6}
    v_max_u32 v{t+8}, v{t+8}, v{t+7}
    v_readfirstlane_b32 s{S_T0}, v30
    v_cmp_eq_u32 vcc, -1, v{t+8}
    s_cbranch_vccz {ok}
    s_sleep {cfg['hsleep']}
    s_cmp_lt_u32 s{S_SPIN}, s{S_LIM}
    s_cbranch_scc1 H_poll
    s_mov_b32 s{S_LIM}, 1
{ok}:
    s_cmp_lg_u32 s{S_ROLE}, 0
    s_cbranch_scc1 {sk}
    s_add_u32 s{S_T1}, s{S_MOFF}, {L.MB_Y - L.MB_M}
    buffer_store_dwordx4 v[{t}:{t+3}], v{pa}, {WSRD}, s{S_T1} offen sc1
    buffer_store_dwordx4 v[{t+4}:{t+7}], v{pa}, {WSRD}, s{S_T1} offen offset:768 sc1
{sk}:
    s_cmp_ge_u32 s{S_STEP}, {63 - D}
    s_cbranch_scc1 {sk2}
    """)
    mtouch()
    if NP:
        sk3 = a.newlabel('H_sk'); sk4 = a.newlabel('H_sk')
        if cfg['flags']: a(f's_cmp_lt_u32 s{S_T0}, 28\ns_cbranch_scc1 {sk3}')
        utouch()
        a(f's_branch {sk4}\n{sk3}:')
        for k in range(NP): a(f's_add_u32 s{60+k}, s{60+k}, 458752')
        a(f'{sk4}:\ns_add_u32 s{S_CU}, s{S_CU}, 128')
    a(f"""
{sk2}:
    s_add_u32 s{S_STEP}, s{S_STEP}, 1
    s_add_u32 s{S_MOFF}, s{S_MOFF}, 8192
    s_cmp_lt_u32 s{S_STEP}, 62
    s_cbranch_scc1 H_top
    s_branch L_exit
    """)

DEFAULT_CFG = dict(ba=[35, 35, 34, 34], bak=3, bb=[53, 53, 0, 0], xflags='', ssleep=[2, 2, 2, 0], csleep=0, psleep=0, touch=1,
                   nou=0, nox=0, cflush=1, flags=0, ustep=3, hsleep=2, mdelay=5, pdelay=1, phint=9, lead=[4, 1], pnop=[0, 8], b5nop=2, npf=0, pfper=2, hdepth=4, hpre=10, psl=3, fl=1, mhk=0, px=9, quiet=7, cq=1, al=[0, 0, 0, 5, 1], prio=[0, 0, 0, 0], wfl='', fused=0, cpk=0, ks=0, ptl=4, dry=0, pal=4, early=1, lateb=0, split=4, sg=-1, spre=5, xa=(0, 4), xb=(4, 20), rxs=0, b4s=0, h64=0, mlin=1, pst=0, cert=0, b3s=0, reds=0, pw=21, fin1=0, tlb=0, xin=0, xstep=3, xs=4, xw=[(0, 0), (20, 24), (24, 28), (0, 0)], pbar=1, scap=7, ccap=None, m2=0, mdma=1, m2d=0, msamp=0, cdma=1, m2w=10, p2=32, cutrig=1, hinner=2, uearly=4, mhint=1, mhnop=0, sdrain=0, pfd=3, mpre=6, chint=1, cdelay=19)

def team_body(a, stamps=False, cfg=None):
    cfg = dict(DEFAULT_CFG, **(cfg or {}))
    KS[0] = cfg['ks']
    a(f's_cmp_lt_u32 s{S_ROLE}, 30\ns_cbranch_scc1 L_nothelp')
    helper_cu(a, cfg)
    a.label('L_nothelp')
    a(f's_cmp_ge_u32 s{S_ROLE}, 16\ns_cbranch_scc1 L_comb')
    score_setup(a, stamps, cfg)
    for fast in (1, 0):
        a(f's_cmp_lg_u32 s{S_FAST}, {fast}\ns_cbranch_scc1 L_sc_next{fast}')
        for w in range(4):
            if w < 3:
                a(f's_cmp_lg_u32 s{S_WAVE}, {w}\ns_cbranch_scc1 L_sc{fast}_n{w}')
            score_wave(a, w, '' if fast else 'sc1', stamps, cfg)
            if w < 3: a.label(f'L_sc{fast}_n{w}')
        a.label(f'L_sc_next{fast}')
    a('s_branch L_exit')
    a.label('L_comb')
    comb_setup(a, stamps, cfg)
    for fast in (1, 0):
        a(f's_cmp_lg_u32 s{S_FAST}, {fast}\ns_cbranch_scc1 L_cb_next{fast}')
        comb_wave(a, '' if fast else 'sc1', stamps, cfg)
        a.label(f'L_cb_next{fast}')
    a('s_branch L_exit')
```

```python
from build import *
import team, prep, gemm, attn, ffn
HEADER = open('sequential_preLN__memory_aug_recurrent_mem_tr__dense_activation_relu__prompt.s.ref').read().split('; Override launch')[0]
DOC = """;
"""
HEADER += DOC
def relabel(fn, tag):
    def g(a):
        fn(a)
        import re
        for i, (k, x) in enumerate(a.items):
            if k == 'l' and x.startswith(('L_exit', 'L_role')): a.items[i] = ('l', x + tag)
            elif k == 'i' and ('L_exit' in x.text or 'L_role' in x.text):
                x.text = re.sub(r'(L_exit|L_role\w+)', lambda m: m.group(1) + tag, x.text)
    return g
EV = '''s_cmp_ge_u32 s92, 30
s_cbranch_scc1 L_exit2
            v_mov_b32 v10, s86
            v_mov_b32 v11, s85
            v_mov_b32 v12, s84
            v_mov_b32 v13, s83
            buffer_atomic_add v10, v0, s[12:15], 0 offen offset:180
            buffer_atomic_add v11, v0, s[12:15], 0 offen offset:184
            buffer_atomic_add v12, v0, s[12:15], 0 offen offset:188
            buffer_atomic_add v13, v0, s[12:15], 0 offen offset:192
'''
PAD = """v_readfirstlane_b32 s90, v{r}
s_mov_b32 s91, 0
L_pad:
s_memrealtime s[94:95]
s_add_u32 s91, s91, 1
s_waitcnt lgkmcnt(0)
s_sub_u32 s94, s94, s90
s_cmp_ge_u32 s94, {t}
s_cbranch_scc1 L_exit2
s_cmp_lt_u32 s91, 100000
s_cbranch_scc1 L_pad"""
def v2(tcfg=None, stamps=False, acfg=None):
    tcfg = dict(tcfg or {}); al8 = tcfg.pop('al8', None)
    t = v2raw(tcfg, stamps, acfg)
    if al8 is not None:
        import align8
        t, st = align8.align(t, al8)
    return t
def v2raw(tcfg=None, stamps=False, acfg=None):
    tcfg = dict(tcfg or {}); ng = tcfg.pop('ng', 1); pcfg = tcfg.pop('pcfg', {}); fused = tcfg.pop('one', 0); tcfg_ev = tcfg.pop('ev', 0); scat = tcfg.pop('scatter', 0); pad = tcfg.pop('pad', 0); mcode = tcfg.pop('mcode', 1); guess = tcfg.pop('guess', 0); ts = tcfg.pop('ts', 2); gcfg = tcfg.pop('gcfg', {}); fz = dict(wfl='sc1') if fused else {}; fsl = tcfg.pop('fsl', 8); fcfg = tcfg.pop('fcfg', {}); acfg = dict(acfg or {}, **tcfg.pop('acfg', {}))
    def km(a):
        if stamps: a('s_memrealtime s[90:91]')
        if fused:
            prep.prep_kernel(a, t0=bool(stamps), fused=True, **pcfg)
            if stamps: a('s_memrealtime s[74:75]')
            team.prologue_fused(a)
            team.wait_ln(a, 1, 12, fsl)
        else:
            team.prologue(a, stamps, scatter=scat, code=mcode, guess=guess)
        R = team.S_ROLE
        if stamps: a(f's_mov_b32 s92, s{R}\ns_memrealtime s[94:95]\ns_mov_b64 s[96:97], 0\ns_mov_b64 s[88:89], 0\ns_mov_b64 s[84:85], 0\ns_mov_b32 s86, 0\ns_mov_b32 s83, 0\ns_mov_b64 s[76:77], 0')
        a(f"""
        s_cmp_ge_u32 s{R}, 32
        s_cbranch_scc1 M_worker
        """)
        team.team_body(a, stamps is True, dict(dict(xflags='sc1', flags=1, wgd=bool(stamps), **fz), **(tcfg or {})))
        a(f"""
M_worker:
        """)
        a(f"""
        s_lshr_b32 s26, s{R}, 5
        s_sub_u32 s26, s26, 1
        s_mov_b32 s78, s26
        s_and_b32 s27, s{R}, 31
        s_cmp_ge_u32 s27, 30
        s_cbranch_scc1 M_attn
        s_cmp_ge_u32 s27, 16
        s_cbranch_scc1 M_ffn
        """)
        if ts:
            a(f"""
            s_cmp_ge_u32 s27, 8
            s_cselect_b32 s79, {64-ts}, 0
            s_cselect_b32 s47, {ts//2}, {(64-ts)//2}
            s_and_b32 s27, s27, 7
            s_lshl_b32 s{R}, s26, 3
            s_add_u32 s{R}, s{R}, s27
            """)
        else:
            a(f"""
            s_cmp_ge_u32 s27, {8*ng}
            s_cbranch_scc1 M_attn
            s_mul_i32 s{R}, s26, {8*ng}
            s_add_u32 s{R}, s{R}, s27
            """)
        gemm.gemm_role(a, dict(dict(xflags='sc1', ng=ng, tailseg=ts, **fz), **gcfg))
        if stamps: a('s_memrealtime s[96:97]')
        a.label('M_attn')
        attn.attn_role(a, dict(dict(xflags='sc1', flags=1, asleep=16, ring=1, ticket=1, diag=bool(stamps), **fz), **(acfg or {})))
        a(f"""
M_ffn:
        s_mov_b32 s{ffn.F_Q}, s26
        s_sub_u32 s{ffn.F_J}, s27, 16
        """)
        ffn.ffn_role(a, dict(dict(xflags='sc1', flags=1, diag=bool(stamps)), **fcfg), 7)
        a.label('L_exit')
        if stamps:
            a(f"""
            s_memrealtime s[98:99]
            s_memtime s[100:101]
            s_lshl_b32 s93, s92, 5
            s_add_u32 s93, s93, {L.STAMP + 0x80000}
            s_mov_b64 exec, 1
            s_waitcnt lgkmcnt(0)
            v_mov_b32 v0, 0
            v_mov_b32 v4, s90
            v_mov_b32 v5, s94
            v_mov_b32 v6, s96
            v_mov_b32 v7, s98
            buffer_store_dwordx4 v[4:7], v0, s[8:11], s93 offen
            s_getreg_b32 s87, hwreg(HW_REG_HW_ID)
            v_mov_b32 v9, {'s74' if fused else 's87'}
            buffer_store_dword v9, v0, s[8:11], s93 offen offset:16
            buffer_atomic_umax v7, v0, s[12:15], 0 offen offset:172
            {EV if tcfg_ev else ''}
            s_cmp_lg_u32 s92, 0
            s_cbranch_scc1 L_exit2
            s_mov_b32 s93, {L.STAMP + 0xf0000}
            buffer_load_dword v8, v0, s[8:11], s93 offen sc1
            v_mov_b32 v5, s88
            s_sub_u32 s100, s100, s76
            v_mov_b32 v14, s100
            buffer_store_dword v14, v0, s[12:15], 0 offen offset:196
            buffer_store_dword v4, v0, s[12:15], 0 offen offset:160
            buffer_store_dword v5, v0, s[12:15], 0 offen offset:164
            buffer_store_dword v7, v0, s[12:15], 0 offen offset:168
            s_waitcnt vmcnt(0)
            buffer_store_dword v8, v0, s[12:15], 0 offen offset:176
            {PAD.format(t=pad[0], r=pad[1]) if pad else ''}
L_exit2:
            """)
        a.label('L_end')
        a('s_endpgm')
    if fused: return assemble([('main_kernel', km, 256, 256, 163840)], HEADER)
    return assemble([('prep_kernel', lambda a: prep.prep_kernel(a, t0=bool(stamps), **pcfg), 256, 256, 163840), ('main_kernel', km, 256, 256, 163840)], HEADER)
if __name__ == '__main__':
    args = [eval(x) for x in sys.argv[3:]]
    open(sys.argv[2], 'w').write(globals()[sys.argv[1]](*args))
```
